```python
import torch

def _softmax(x, axis=-1):
    return torch.softmax(x, dim=axis)
def _gelu(x):
    return torch.nn.functional.gelu(x, approximate="tanh")
def _silu(x):
    return torch.nn.functional.silu(x)
def _sigmoid(x):
    return torch.sigmoid(x)
def _layernorm(x, axis=-1, eps=1e-5):
    m = x.mean(dim=axis, keepdim=True)
    v = x.var(dim=axis, keepdim=True, unbiased=False)
    return (x - m) / torch.sqrt(v + eps)
def _scatter_add(tgt, idx, src, axis=0):
    return tgt.clone().index_add_(axis, idx, src)
def _segment_sum(src, seg, n):
    out = torch.zeros((n,) + src.shape[1:], dtype=src.dtype)
    return out.index_add_(0, seg, src)
def _pad(x, pw):
    flat = tuple(v for pair in reversed(pw) for v in pair)
    return torch.nn.functional.pad(x, flat)

kernel_name = 'sequential_preLN__spectral_fnet__moe_arch_mod__prompt'

def setup_inputs():

    _w = (lambda a: (lambda t: t.to(torch.bfloat16) if t.is_floating_point() else t)(torch.as_tensor(a)))
    def _A_setup():
        B, S, D = 1, 2048, 512
        ns = torch.arange(S)[:, None] * torch.arange(S)[None, :]
        nd = torch.arange(D)[:, None] * torch.arange(D)[None, :]
        Ws_re = torch.cos(-2.0 * torch.pi * ns / S).to(float)
        Ws_im = torch.sin(-2.0 * torch.pi * ns / S).to(float)
        Wd_re = torch.cos(-2.0 * torch.pi * nd / D).to(float)
        Wd_im = torch.sin(-2.0 * torch.pi * nd / D).to(float)
        return {
            "x": _w((lambda *s: torch.randn(*s, dtype=torch.bfloat16) * 0.05)(B, S, D)),
            "dft_seq_re": _w(Ws_re),
            "dft_seq_im": _w(Ws_im),
            "dft_hid_re": _w(Wd_re),
            "dft_hid_im": _w(Wd_im),
        }
    _A_in = _A_setup()

    def _B_setup():
        B, S, D, F, C = 1, 2048, 512, 1792, 1
        return {
            "x": _w((lambda *s: torch.randn(*s, dtype=torch.bfloat16) * 0.05)(B, S, D)),
            "w_r": _w((lambda *s: torch.randn(*s, dtype=torch.bfloat16) * 1.6)(D)),
            "w_gate": _w((lambda *s: torch.randn(*s, dtype=torch.bfloat16) * 0.4)(D, F)),
            "w_up": _w((lambda *s: torch.randn(*s, dtype=torch.bfloat16) * 0.4)(D, F)),
            "w_down": _w((lambda *s: torch.randn(*s, dtype=torch.bfloat16) * 0.4)(F, D)),
        }
    _B_in = _B_setup()

    return {
        "A_x": _A_in["x"],
        "A_dft_seq_re": _A_in["dft_seq_re"],
        "A_dft_seq_im": _A_in["dft_seq_im"],
        "A_dft_hid_re": _A_in["dft_hid_re"],
        "A_dft_hid_im": _A_in["dft_hid_im"],
        "B_x": _B_in["x"],
        "B_w_r": _B_in["w_r"],
        "B_w_gate": _B_in["w_gate"],
        "B_w_up": _B_in["w_up"],
        "B_w_down": _B_in["w_down"],
    }

def reference(A_x, A_dft_seq_re, A_dft_seq_im, A_dft_hid_re, A_dft_hid_im, B_x, B_w_r, B_w_gate, B_w_up, B_w_down):
    def _A_ref(x, dft_seq_re, dft_seq_im, dft_hid_re, dft_hid_im):
        a = torch.einsum("bsd,ed->bse", x, dft_hid_re)
        b = torch.einsum("bsd,ed->bse", x, dft_hid_im)
        y = torch.einsum("ts,bse->bte", dft_seq_re, a) - torch.einsum("ts,bse->bte", dft_seq_im, b)
        return y

    def _B_ref(x, w_r, w_gate, w_up, w_down):
        B, S, D = x.shape
        C = 1
        r = x @ w_r
        idx = torch.argsort(-r, axis=-1)[:, :C]
        idx_e = (lambda x, n, axis: torch.repeat_interleave(x, n, dim=axis))(idx.reshape(B, C, 1), D, axis=2)
        x_sel = (lambda x, i, axis: torch.take_along_dim(x, i, dim=axis))(x, idx_e, axis=1)
        g = _silu(x_sel @ w_gate)
        u = x_sel @ w_up
        y = (g * u) @ w_down
        r_sel = _sigmoid((lambda x, i, axis: torch.take_along_dim(x, i, dim=axis))(r, idx, axis=1))
        y = y * r_sel.reshape(B, C, 1)
        b_off = (torch.arange(B) * S).reshape(B, 1)
        flat_idx = (idx + b_off).reshape(B * C)
        zero = (x * 0.0).reshape(B * S, D)
        upd = _scatter_add(zero, flat_idx, y.reshape(B * C, D), axis=0)
        return x + upd.reshape(B, S, D)

    x = A_x
    h = x + _A_ref(_layernorm(x, axis=-1), A_dft_seq_re, A_dft_seq_im, A_dft_hid_re, A_dft_hid_im)
    h2 = h + _B_ref(_layernorm(h, axis=-1), B_w_r, B_w_gate, B_w_up, B_w_down)
    return h2
```

```python
import sys

NAME = "sequential_preLN__spectral_fnet__moe_arch_mod__prompt"

WS_AT = 0
WS_Y = 4 << 20
WS_CAND = 8 << 20
WS_CROW = (8 << 20) + 4096
WS_SLAB = (9 << 20)
WS_SIZE = 268435456

S, D, F = 2048, 512, 1792


class Asm:
    def __init__(self):
        self.lines = []

    def __call__(self, s):
        self.lines.append("    " + s)

    def label(self, l):
        self.lines.append(l + ":")

    def raw(self, s):
        self.lines.append(s)

    def text(self):
        return "\n".join(self.lines) + "\n"


class VM:
    def __init__(self, a):
        self.a = a
        self.q = []

    def issue(self, tag):
        self.q.append(tag)

    def wait(self, tag):
        idx = max(i for i, t in enumerate(self.q) if t == tag) if tag in self.q else None
        if idx is None:
            return
        n = len(self.q) - 1 - idx
        assert n <= 63
        self.a(f"s_waitcnt vmcnt({n})")
        self.q = self.q[idx + 1:]

    def wait_all(self):
        self.a("s_waitcnt vmcnt(0)")
        self.q = []


def srd(a, d, lo, hi, nbytes):
    a(f"s_mov_b32 s{d}, s{lo}")
    a(f"s_and_b32 s{d+1}, s{hi}, 0xffff")
    a(f"s_mov_b32 s{d+2}, {nbytes}")
    a(f"s_mov_b32 s{d+3}, 0x00020000")


def kernel_begin(a, name):
    a.raw(".text")
    a.raw(f".globl {name}")
    a.raw(".p2align 8")
    a.raw(f".type {name},@function")
    a.label(name)


def kernel_desc(name, vgpr, sgpr, accum):
    return f""".section .rodata,"a"
.p2align 6
.amdhsa_kernel {name}
  .amdhsa_next_free_vgpr {vgpr}
  .amdhsa_next_free_sgpr {sgpr}
  .amdhsa_accum_offset {accum}
  .amdhsa_group_segment_fixed_size 0
  .amdhsa_kernarg_size 104
  .amdhsa_user_sgpr_count 2
  .amdhsa_user_sgpr_kernarg_segment_ptr 1
  .amdhsa_system_sgpr_workgroup_id_x 1
  .amdhsa_float_denorm_mode_32 3
.end_amdhsa_kernel
"""


DPP = "row_mask:0xf bank_mask:0xf"


def emit_perm32(a, dst, src, t):
    a(f"v_and_b32 v{dst}, 3, v{src}")
    a(f"v_lshrrev_b32 v{t}, 3, v{src}")
    a(f"v_lshl_or_b32 v{dst}, v{t}, 2, v{dst}")
    a(f"v_bfe_u32 v{t}, v{src}, 2, 1")
    a(f"v_lshl_or_b32 v{dst}, v{t}, 4, v{dst}")


def wave_allreduce(a, op, v, t):
    a("s_nop 1")
    a(f"{op}_dpp v{v}, v{v}, v{v} quad_perm:[1,0,3,2] {DPP}")
    a("s_nop 1")
    a(f"{op}_dpp v{v}, v{v}, v{v} quad_perm:[2,3,0,1] {DPP}")
    a("s_nop 1")
    a(f"{op}_dpp v{v}, v{v}, v{v} row_half_mirror {DPP}")
    a("s_nop 1")
    a(f"{op}_dpp v{v}, v{v}, v{v} row_mirror {DPP}")
    a(f"v_mov_b32 v{t}, v{v}")
    a("s_nop 1")
    a(f"v_permlane16_swap_b32 v{v}, v{t}")
    a("s_nop 1")
    a(f"{op} v{v}, v{v}, v{t}")
    a(f"v_mov_b32 v{t}, v{v}")
    a("s_nop 1")
    a(f"v_permlane32_swap_b32 v{v}, v{t}")
    a("s_nop 1")
    a(f"{op} v{v}, v{v}, v{t}")


def gen_k1(a, name, prefetch=True):
    kernel_begin(a, name)
    a("s_cmp_ge_u32 s2, 256")
    a(f"s_cbranch_scc1 {name}_done")
    a("s_load_dwordx2 s[4:5], s[0:1], 0")
    a("s_load_dwordx4 s[8:11], s[0:1], 24")
    a("s_load_dwordx2 s[6:7], s[0:1], 96")
    a("s_load_dwordx4 s[36:39], s[0:1], 8")
    a("s_load_dwordx4 s[40:43], s[0:1], 56")
    a("s_load_dwordx2 s[44:45], s[0:1], 72")
    a("s_and_b32 s3, s2, 7")
    a("s_lshr_b32 s28, s2, 3")
    a("s_and_b32 s29, s28, 3")
    a("s_lshl_b32 s30, s3, 2")
    a("s_add_u32 s30, s30, s29")
    a("s_lshr_b32 s31, s28, 2")
    a("v_lshrrev_b32 v1, 6, v0")
    a("v_and_b32 v2, 63, v0")
    a("s_nop 0")
    a("v_readfirstlane_b32 s32, v1")
    a("v_lshrrev_b32 v3, 3, v2")
    a("v_and_b32 v4, 7, v2")
    a("s_waitcnt lgkmcnt(0)")
    srd(a, 12, 4, 5, S * D * 2)
    a("s_cmp_ge_u32 s31, 4")
    a("s_cselect_b32 s8, s10, s8")
    a("s_cselect_b32 s9, s11, s9")
    srd(a, 16, 8, 9, D * D * 2)
    srd(a, 20, 6, 7, 4 << 20)
    a("s_lshl_b32 s33, s30, 6")
    a("s_lshl_b32 s34, s32, 3")
    a("s_add_u32 s33, s33, s34")
    a("s_lshl_b32 s33, s33, 10")
    a("v_lshlrev_b32 v5, 10, v3")
    a("v_lshl_add_u32 v5, v4, 4, v5")
    XR = 32
    for j in range(8):
        a(f"buffer_load_dwordx4 v[{XR+4*j}:{XR+4*j+3}], v5, s[12:15], s33 offen offset:{128*j}")
    a("v_lshrrev_b32 v6, 4, v2")
    a("v_xor_b32 v6, v6, v4")
    a("v_xor_b32 v7, 4, v6")
    a("v_lshlrev_b32 v8, 10, v3")
    a("v_lshl_add_u32 v6, v6, 4, v8")
    a("v_lshl_add_u32 v7, v7, 4, v8")
    a("s_cmp_ge_u32 s32, 4")
    a(f"s_cbranch_scc1 {name}_helper")
    a("s_and_b32 s35, s31, 3")
    a("s_lshl_b32 s35, s35, 7")
    a("s_lshl_b32 s34, s32, 5")
    a("s_add_u32 s35, s35, s34")
    a("s_lshl_b32 s35, s35, 10")
    a("s_mul_i32 s46, s32, 24576")
    a("s_add_u32 s46, s46, 65536")

    def dma_slot(kk):
        for i in range(4):
            a(f"s_add_u32 m0, s46, {(kk % 6) * 4096 + i * 1024}")
            a(f"s_add_u32 s47, s35, {i * 8192 + kk * 128}")
            a(f"buffer_load_dwordx4 v{6 + (i & 1)}, s[16:19], s47 offen lds")

    for kk in range(6):
        dma_slot(kk)
    a("s_waitcnt vmcnt(24)")
    a(f"s_branch {name}_ln")
    a.label(f"{name}_helper")
    npf = 0
    if prefetch:
        a("s_and_b32 s48, s3, 1")
        a("s_cmp_eq_u32 s48, 1")
        a("s_cselect_b32 s36, s38, s36")
        a("s_cselect_b32 s37, s39, s37")
        srd(a, 24, 36, 37, S * S * 2)
        a("s_lshr_b32 s48, s3, 1")
        a("s_lshl_b32 s48, s48, 21")
        a("s_lshl_b32 s49, s28, 16")
        a("s_add_u32 s48, s48, s49")
        a("s_sub_u32 s49, s32, 4")
        a("s_lshl_b32 s49, s49, 14")
        a("s_add_u32 s48, s48, s49")
        a("v_lshlrev_b32 v9, 6, v2")
        for i in range(4):
            a(f"s_add_u32 s49, s48, {i * 4096}")
            a(f"buffer_load_dword v{130 + i}, v9, s[24:27], s49 offen")
            npf += 1
    a(f"s_waitcnt vmcnt({npf})")
    a.label(f"{name}_ln")
    a("s_mov_b32 s50, 0x3f803f80")
    a("s_mov_b32 s51, 0x00003f80")
    a("s_mov_b32 s52, 0x3f800000")
    a("s_mov_b32 s53, 0xffff0000")
    a("v_mov_b32 v16, 0")
    a("v_mov_b32 v17, 0")
    for j in range(32):
        a(f"v_dot2_f32_bf16 v{16 + (j & 1)}, v{XR + j}, s50, v{16 + (j & 1)}")
    a("s_nop 2")
    a("v_add_f32 v16, v16, v17")

    def red8(v):
        a("s_nop 1")
        a(f"v_add_f32_dpp v{v}, v{v}, v{v} quad_perm:[1,0,3,2] {DPP}")
        a("s_nop 1")
        a(f"v_add_f32_dpp v{v}, v{v}, v{v} quad_perm:[2,3,0,1] {DPP}")
        a("s_nop 1")
        a(f"v_add_f32_dpp v{v}, v{v}, v{v} row_half_mirror {DPP}")

    red8(16)
    a("v_mul_f32 v16, 0x3b000000, v16")
    a("v_cvt_pk_bf16_f32 v17, v16, v16")
    a("v_lshlrev_b32 v17, 16, v17")
    a("v_sub_f32 v18, 0, v17")
    a("v_sub_f32 v19, v16, v17")
    a("v_mov_b32 v20, 0")
    a("v_mov_b32 v21, 0")
    for j in range(32):
        t = 22 + 2 * (j & 3)
        a(f"v_dot2_f32_bf16 v{t}, v{XR + j}, s51, v18")
        a(f"v_dot2_f32_bf16 v{t + 1}, v{XR + j}, s52, v18")
        if j >= 1:
            tp = 22 + 2 * ((j - 1) & 3)
            a(f"v_fmac_f32 v20, v{tp}, v{tp}")
            a(f"v_fmac_f32 v21, v{tp + 1}, v{tp + 1}")
            a(f"v_cvt_pk_bf16_f32 v{XR + j - 1}, v{tp}, v{tp + 1}")
    tp = 22 + 2 * (31 & 3)
    a("s_nop 2")
    a(f"v_fmac_f32 v20, v{tp}, v{tp}")
    a(f"v_fmac_f32 v21, v{tp + 1}, v{tp + 1}")
    a(f"v_cvt_pk_bf16_f32 v{XR + 31}, v{tp}, v{tp + 1}")
    a("v_add_f32 v20, v20, v21")
    red8(20)
    a("v_mul_f32 v20, 0x3b000000, v20")
    a("v_fma_f32 v20, -v19, v19, v20")
    a("v_max_f32 v20, 0, v20")
    a("v_cvt_pk_bf16_f32 v20, v20, v20")
    a("v_lshlrev_b32 v20, 16, v20")
    a("v_add_f32 v20, 0x3727c5ac, v20")
    a("v_cvt_pk_bf16_f32 v20, v20, v20")
    a("v_lshlrev_b32 v20, 16, v20")
    a("v_sqrt_f32 v20, v20")
    a("s_nop 0")
    a("v_cvt_pk_bf16_f32 v20, v20, v20")
    a("v_lshlrev_b32 v20, 16, v20")
    a("v_rcp_f32 v20, v20")
    a("s_nop 0")
    for j in range(32):
        t = 22 + 2 * (j & 3)
        a(f"v_lshlrev_b32 v{t}, 16, v{XR + j}")
        a(f"v_and_b32 v{t + 1}, s53, v{XR + j}")
        a(f"v_mul_f32 v{t}, v{t}, v20")
        a(f"v_mul_f32 v{t + 1}, v{t + 1}, v20")
        a(f"v_cvt_pk_bf16_f32 v{XR + j}, v{t}, v{t + 1}")
    a("s_lshl_b32 s34, s32, 3")
    a("v_add_u32 v9, s34, v3")
    a("v_bfe_u32 v10, v9, 1, 3")
    a("v_xor_b32 v10, v10, v4")
    a("v_lshlrev_b32 v10, 4, v10")
    a("v_lshl_add_u32 v10, v9, 7, v10")
    for j in range(8):
        a(f"ds_write_b128 v10, v[{XR + 4 * j}:{XR + 4 * j + 3}] offset:{8192 * j}")
    a("s_waitcnt lgkmcnt(0)")
    a("s_barrier")
    a("s_cmp_ge_u32 s32, 4")
    a(f"s_cbranch_scc1 {name}_done")
    a("v_and_b32 v9, 31, v2")
    emit_perm32(a, 10, 9, 11)
    a("v_bfe_u32 v11, v10, 1, 3")
    a("v_lshrrev_b32 v12, 5, v2")
    a("v_xor_b32 v11, v11, v12")
    a("v_lshlrev_b32 v11, 4, v11")
    a("v_lshl_add_u32 v11, v10, 7, v11")
    for c in range(4):
        a(f"v_xor_b32 v{12 + c}, {c * 32}, v11")
        a(f"v_add_u32 v{16 + c}, s46, v{12 + c}")
    ACC = 64
    FR = [96, 108, 120]
    for i in range(32):
        a(f"v_mov_b32 v{ACC + i}, 0")
    units = [(kk, c) for kk in range(8) for c in range(4)]
    vq = [kk for kk in range(6) for _ in range(4)]

    def wait_slot(kk):
        nonlocal vq
        if kk in vq:
            idx = max(i for i, t in enumerate(vq) if t == kk)
            a(f"s_waitcnt vmcnt({len(vq) - 1 - idx})")
            vq = vq[idx + 1:]

    def reads(n):
        kk, c = units[n]
        f = FR[n % 3]
        if c == 0:
            wait_slot(kk)
        a(f"ds_read_b128 v[{f}:{f + 3}], v{16 + c} offset:{(kk % 6) * 4096}")
        a(f"ds_read_b128 v[{f + 4}:{f + 7}], v{12 + c} offset:{kk * 8192}")
        a(f"ds_read_b128 v[{f + 8}:{f + 11}], v{12 + c} offset:{kk * 8192 + 4096}")

    reads(0)
    reads(1)
    for n in range(len(units)):
        kk, c = units[n]
        if n + 2 < len(units):
            reads(n + 2)
            a("s_waitcnt lgkmcnt(6)")
        elif n + 1 < len(units):
            a("s_waitcnt lgkmcnt(3)")
        else:
            a("s_waitcnt lgkmcnt(0)")
        f = FR[n % 3]
        a(f"v_mfma_f32_32x32x16_bf16 v[{ACC}:{ACC + 15}], v[{f + 4}:{f + 7}], v[{f}:{f + 3}], v[{ACC}:{ACC + 15}]")
        a(f"v_mfma_f32_32x32x16_bf16 v[{ACC + 16}:{ACC + 31}], v[{f + 8}:{f + 11}], v[{f}:{f + 3}], v[{ACC + 16}:{ACC + 31}]")
        if c == 3 and kk + 6 < 8:
            dma_slot(kk + 6)
            vq += [kk + 6] * 4
    a("s_lshl_b32 s34, s31, 2")
    a("s_add_u32 s34, s34, s32")
    a("s_lshl_b32 s34, s34, 6")
    a("s_lshl_b32 s33, s30, 1")
    a("s_add_u32 s34, s34, s33")
    a("s_lshl_b32 s34, s34, 11")
    a("v_lshlrev_b32 v9, 4, v2")
    a("s_nop 7")
    a("s_nop 3")
    for sh in range(2):
        for i in range(8):
            a(f"v_cvt_pk_bf16_f32 v{32 + 8 * sh + i}, v{ACC + 16 * sh + 2 * i}, v{ACC + 16 * sh + 2 * i + 1}")
    for sh in range(2):
        for u in range(2):
            r = 32 + 8 * sh + 4 * u
            a(f"buffer_store_dwordx4 v[{r}:{r + 3}], v9, s[20:23], s34 offen offset:{sh * 2048 + u * 1024}")
    a.label(f"{name}_done")
    a("s_endpgm")
    return kernel_desc(name, 136, 64, 136)


def gen_k2(a, name, NS=9, ED=3):
    kernel_begin(a, name)
    a("s_cmp_ge_u32 s2, 256")
    a(f"s_cbranch_scc1 {name}_done")
    a("s_load_dwordx4 s[4:7], s[0:1], 8")
    a("s_load_dwordx2 s[8:9], s[0:1], 96")
    a("s_and_b32 s3, s2, 7")
    a("s_lshr_b32 s28, s2, 3")
    a("s_and_b32 s29, s3, 1")
    a("s_lshr_b32 s30, s3, 1")
    a("s_lshl_b32 s30, s30, 2")
    a("s_and_b32 s31, s28, 3")
    a("s_add_u32 s30, s30, s31")
    a("s_lshr_b32 s31, s28, 2")
    a("v_lshrrev_b32 v200, 6, v0")
    a("v_and_b32 v201, 63, v0")
    a("s_nop 0")
    a("v_readfirstlane_b32 s32, v200")
    a("v_lshrrev_b32 v202, 3, v201")
    a("v_and_b32 v203, 7, v201")
    a("v_lshrrev_b32 v204, 4, v201")
    a("v_xor_b32 v204, v204, v203")
    a("v_xor_b32 v205, 4, v204")
    a("v_lshlrev_b32 v206, 12, v202")
    a("v_lshl_add_u32 v204, v204, 4, v206")
    a("v_lshl_add_u32 v205, v205, 4, v206")
    a("v_lshlrev_b32 v206, 4, v201")
    a("s_waitcnt lgkmcnt(0)")
    a("s_cmp_eq_u32 s29, 1")
    a("s_cselect_b32 s4, s6, s4")
    a("s_cselect_b32 s5, s7, s5")
    srd(a, 12, 4, 5, S * S * 2)
    srd(a, 16, 8, 9, 8 << 20)
    a("s_lshl_b32 s35, s30, 19")
    a("s_lshl_b32 s34, s32, 10")
    a("s_add_u32 s35, s35, s34")
    for j in range(4):
        a(f"s_add_u32 s34, s32, {j}")
        a("s_and_b32 s34, s34, 3")
        a(f"s_mov_b32 s{52 + j}, s34")
        a("s_lshl_b32 s34, s34, 17")
        a(f"s_add_u32 s{40 + j}, s35, s34")
    a("s_lshl_b32 s36, s29, 4")
    a("s_lshl_b32 s34, s31, 1")
    a("s_add_u32 s36, s36, s34")
    a("s_lshl_b32 s36, s36, 6")
    a("s_lshl_b32 s34, s32, 4")
    a("s_add_u32 s36, s36, s34")
    a("s_lshl_b32 s36, s36, 11")
    a("s_add_u32 s37, s36, 131072")
    RING = NS * 4096
    a(f"s_mul_i32 s46, s32, {RING}")
    vm = VM(a)

    def dma_slot(n):
        kk, j = n // 4, n % 4
        for i in range(4):
            a(f"s_add_u32 m0, s46, {(n % NS) * 4096 + i * 1024}")
            a(f"s_add_u32 s47, s{40 + j}, {(i * 8) * 4096 + kk * 128}")
            a(f"buffer_load_dwordx4 v{204 + (i & 1)}, s[12:15], s47 offen lds")
            vm.issue(("C", n))

    def e_loads(kk):
        st = kk % ED
        for et2 in range(2):
            a(f"s_add_u32 s48, s{36 + et2}, {kk * 4096}")
            for c in range(4):
                r = st * 32 + et2 * 16 + c * 4
                a(f"buffer_load_dwordx4 a[{r}:{r + 3}], v206, s[16:19], s48 offen offset:{c * 1024}")
                vm.issue(("E", kk))

    nslot_issued = 0
    for kk in range(ED):
        e_loads(kk)
        for tt in range(4):
            if nslot_issued < NS:
                dma_slot(nslot_issued)
                nslot_issued += 1
    while nslot_issued < NS:
        dma_slot(nslot_issued)
        nslot_issued += 1
    a("v_and_b32 v207, 31, v201")
    a("v_bfe_u32 v208, v207, 1, 3")
    a("v_lshrrev_b32 v209, 5, v201")
    a("v_lshlrev_b32 v209, 1, v209")
    a("v_xor_b32 v208, v208, v209")
    a("v_lshlrev_b32 v208, 4, v208")
    a("v_lshl_add_u32 v208, v207, 7, v208")
    for c in range(4):
        x = ((c >> 1) * 4 + (c & 1)) << 4
        a(f"v_xor_b32 v{210 + c}, {x}, v208")
        a(f"v_add_u32 v{210 + c}, s46, v{210 + c}")
    for i in range(128):
        a(f"v_mov_b32 v{i}, 0")
    units = [(n, c) for n in range(32) for c in range(4)]
    NF = 6
    LOOKAHEAD = 4

    def reads(un):
        n, c = units[un]
        if c == 0:
            vm.wait(("C", n))
        f = 128 + 4 * (un % NF)
        a(f"ds_read_b128 v[{f}:{f + 3}], v{210 + c} offset:{(n % NS) * 4096}")

    for un in range(LOOKAHEAD):
        reads(un)
    for un in range(len(units)):
        n, c = units[un]
        kk, j = n // 4, n % 4
        if un + LOOKAHEAD < len(units):
            reads(un + LOOKAHEAD)
            a(f"s_waitcnt lgkmcnt({LOOKAHEAD})")
        else:
            a(f"s_waitcnt lgkmcnt({len(units) - 1 - un})")
        if j == 0 and c == 0:
            vm.wait(("E", kk))
        f = 128 + 4 * (un % NF)
        st = kk % ED
        for et2 in range(2):
            acc = (j * 2 + et2) * 16
            r = st * 32 + et2 * 16 + c * 4
            a(f"v_mfma_f32_32x32x16_bf16 v[{acc}:{acc + 15}], a[{r}:{r + 3}], v[{f}:{f + 3}], v[{acc}:{acc + 15}]")
        if c == 3:
            if nslot_issued < 32:
                dma_slot(nslot_issued)
                nslot_issued += 1
            if j == 3 and kk + ED < 8:
                e_loads(kk + ED)
    a("s_barrier")
    for j in range(1, 4):
        a(f"s_mul_i32 s34, s{52 + j}, 24576")
        a(f"s_add_u32 s34, s34, {(j - 1) * 8192}")
        a(f"v_add_u32 v{214 + j}, s34, v206")
    a("s_mul_i32 s34, s32, 24576")
    a("v_add_u32 v214, s34, v206")
    a("s_nop 7")
    for j in range(1, 4):
        for q in range(8):
            r = j * 32 + 4 * q
            a(f"ds_write_b128 v{214 + j}, v[{r}:{r + 3}] offset:{q * 1024}")
    a("s_waitcnt lgkmcnt(0)")
    a("s_barrier")
    for j in range(1, 4):
        for q in range(8):
            r = j * 32 + 4 * q
            a(f"ds_read_b128 v[{r}:{r + 3}], v214 offset:{(j - 1) * 8192 + q * 1024}")
    a("s_lshl_b32 s34, s30, 7")
    a("s_lshl_b32 s33, s32, 5")
    a("s_add_u32 s34, s34, s33")
    a("s_lshl_b32 s34, s34, 10")
    a("s_lshl_b32 s33, s31, 7")
    a("s_add_u32 s34, s34, s33")
    a("s_lshl_b32 s33, s29, 21")
    a("s_add_u32 s34, s34, s33")
    a(f"s_add_u32 s34, s34, {WS_Y}")
    a("v_lshrrev_b32 v209, 5, v201")
    a("v_lshlrev_b32 v209, 5, v209")
    a("v_lshl_add_u32 v209, v207, 10, v209")
    for j in range(1, 4):
        a(f"s_waitcnt lgkmcnt({min(15, (3 - j) * 8)})")
        for i in range(32):
            a(f"v_add_f32 v{i}, v{i}, v{j * 32 + i}")
    for i in range(16):
        a(f"v_cvt_pk_bf16_f32 v{128 + i}, v{2 * i}, v{2 * i + 1}")
    for et2 in range(2):
        for hh in range(2):
            r = 128 + et2 * 8 + hh * 4
            a(f"buffer_store_dwordx4 v[{r}:{r + 3}], v209, s[16:19], s34 offen offset:{et2 * 64 + hh * 16}")
    a.label(f"{name}_done")
    a("s_endpgm")
    return kernel_desc(name, 224 + 32 * ED, 64, 224)


def gen_k3(a, name):
    kernel_begin(a, name)
    a("s_cmp_ge_u32 s2, 256")
    a(f"s_cbranch_scc1 {name}_done")
    a("s_load_dwordx2 s[4:5], s[0:1], 0")
    a("s_load_dwordx2 s[6:7], s[0:1], 48")
    a("s_load_dwordx2 s[8:9], s[0:1], 80")
    a("s_load_dwordx2 s[10:11], s[0:1], 96")
    a("v_lshrrev_b32 v1, 6, v0")
    a("v_and_b32 v2, 63, v0")
    a("s_nop 0")
    a("v_readfirstlane_b32 s32, v1")
    a("v_lshlrev_b32 v3, 4, v2")
    a("s_waitcnt lgkmcnt(0)")
    srd(a, 12, 4, 5, S * D * 2)
    srd(a, 16, 6, 7, D * 2)
    srd(a, 20, 8, 9, S * D * 2)
    srd(a, 24, 10, 11, 10 << 20)
    a("s_lshl_b32 s33, s2, 3")
    a("s_lshl_b32 s34, s32, 1")
    a("s_add_u32 s33, s33, s34")
    a("s_lshl_b32 s34, s33, 10")
    a(f"s_add_u32 s35, s34, {WS_Y}")
    a(f"s_add_u32 s36, s34, {WS_Y + (2 << 20)}")
    for R in range(2):
        B = 16 + 64 * R
        a(f"buffer_load_dwordx4 v[{B}:{B + 3}], v3, s[24:27], s35 offen offset:{1024 * R}")
        a(f"buffer_load_dwordx4 v[{B + 4}:{B + 7}], v3, s[24:27], s36 offen offset:{1024 * R}")
        a(f"buffer_load_dwordx4 v[{B + 8}:{B + 11}], v3, s[12:15], s34 offen offset:{1024 * R}")
    a("buffer_load_dwordx4 v[8:11], v3, s[16:19], 0 offen")
    a("s_mov_b32 s53, 0xffff0000")
    a("s_waitcnt vmcnt(1)")

    def unpack(dst, src):
        a(f"v_lshlrev_b32 v{dst}, 16, v{src}")
        a(f"v_and_b32 v{dst + 1}, s53, v{src}")

    for R in range(2):
        B = 16 + 64 * R
        H, T = B + 16, B + 24
        for i in range(4):
            unpack(T, B + i)
            unpack(T + 2, B + 4 + i)
            a(f"v_sub_f32 v{T}, v{T}, v{T + 2}")
            a(f"v_sub_f32 v{T + 1}, v{T + 1}, v{T + 3}")
            a(f"v_cvt_pk_bf16_f32 v{T + 4}, v{T}, v{T + 1}")
            unpack(T, T + 4)
            unpack(T + 2, B + 8 + i)
            a(f"v_add_f32 v{T}, v{T + 2}, v{T}")
            a(f"v_add_f32 v{T + 1}, v{T + 3}, v{T + 1}")
            a(f"v_cvt_pk_bf16_f32 v{B + 40 + i}, v{T}, v{T + 1}")
            unpack(H + 2 * i, B + 40 + i)
        St = B + 48
        a(f"v_add_f32 v{St}, v{H}, v{H + 1}")
        for i in range(2, 8):
            a(f"v_add_f32 v{St}, v{St}, v{H + i}")
    for R in range(2):
        B = 16 + 64 * R
        wave_allreduce(a, "v_add_f32", B + 48, B + 49)
    for R in range(2):
        B = 16 + 64 * R
        H, T, St = B + 16, B + 24, B + 48
        a(f"v_mul_f32 v{St}, 0x3b000000, v{St}")
        a(f"v_cvt_pk_bf16_f32 v{St + 1}, v{St}, v{St}")
        a(f"v_lshlrev_b32 v{St + 1}, 16, v{St + 1}")
        for i in range(8):
            a(f"v_sub_f32 v{T + i}, v{H + i}, v{St}")
        a(f"v_mul_f32 v{St + 2}, v{T}, v{T}")
        for i in range(1, 8):
            a(f"v_fmac_f32 v{St + 2}, v{T + i}, v{T + i}")
    for R in range(2):
        B = 16 + 64 * R
        wave_allreduce(a, "v_add_f32", B + 50, B + 51)
    a("s_waitcnt vmcnt(0)")
    for R in range(2):
        B = 16 + 64 * R
        H, T, St = B + 16, B + 24, B + 48
        v = St + 2
        a(f"v_mul_f32 v{v}, 0x3b000000, v{v}")
        a(f"v_cvt_pk_bf16_f32 v{v}, v{v}, v{v}")
        a(f"v_lshlrev_b32 v{v}, 16, v{v}")
        a(f"v_add_f32 v{v}, 0x3727c5ac, v{v}")
        a(f"v_cvt_pk_bf16_f32 v{v}, v{v}, v{v}")
        a(f"v_lshlrev_b32 v{v}, 16, v{v}")
        a(f"v_sqrt_f32 v{v}, v{v}")
        a("s_nop 0")
        a(f"v_cvt_pk_bf16_f32 v{v}, v{v}, v{v}")
        a(f"v_lshlrev_b32 v{v}, 16, v{v}")
        a(f"v_rcp_f32 v{v}, v{v}")
        a("s_nop 0")
        a(f"v_mov_b32 v{St + 4}, 0")
        for i in range(4):
            a(f"v_sub_f32 v{T}, v{H + 2 * i}, v{St + 1}")
            a(f"v_sub_f32 v{T + 1}, v{H + 2 * i + 1}, v{St + 1}")
            a(f"v_cvt_pk_bf16_f32 v{T + 2}, v{T}, v{T + 1}")
            unpack(T, T + 2)
            a(f"v_mul_f32 v{T}, v{T}, v{v}")
            a(f"v_mul_f32 v{T + 1}, v{T + 1}, v{v}")
            a(f"v_cvt_pk_bf16_f32 v{B + 44 + i}, v{T}, v{T + 1}")
            unpack(T, B + 44 + i)
            a(f"v_add_f32 v{T}, v{H + 2 * i}, v{T}")
            a(f"v_add_f32 v{T + 1}, v{H + 2 * i + 1}, v{T + 1}")
            a(f"v_cvt_pk_bf16_f32 v{B + 4 + i}, v{T}, v{T + 1}")
            a(f"v_dot2_f32_bf16 v{St + 4}, v{B + 44 + i}, v{8 + i}, v{St + 4}")
        a(f"buffer_store_dwordx4 v[{B + 4}:{B + 7}], v3, s[20:23], s34 offen offset:{1024 * R}")
    a("s_nop 2")
    for R in range(2):
        B = 16 + 64 * R
        wave_allreduce(a, "v_add_f32", B + 52, B + 53)
    for R in range(2):
        B = 16 + 64 * R
        v = B + 52
        a(f"v_cvt_pk_bf16_f32 v{v}, v{v}, v{v}")
        a(f"v_lshlrev_b32 v{v}, 16, v{v}")
        a(f"v_ashrrev_i32 v{v + 1}, 31, v{v}")
        a(f"v_or_b32 v{v + 1}, 0x80000000, v{v + 1}")
        a(f"v_xor_b32 v{v}, v{v}, v{v + 1}")
        a(f"v_and_b32 v{v}, s53, v{v}")
        a(f"s_sub_u32 s37, {2047 - R}, s33")
        a(f"v_or_b32 v{v}, s37, v{v}")
    a("v_max_u32 v4, v68, v132")
    a("s_lshl_b32 s37, s32, 2")
    a("v_mov_b32 v5, s37")
    a("ds_write_b32 v5, v4")
    a("s_waitcnt lgkmcnt(0)")
    a("s_barrier")
    a("v_mov_b32 v5, 0")
    a("ds_read_b128 v[12:15], v5")
    a("s_waitcnt lgkmcnt(0)")
    a("v_max_u32 v12, v12, v13")
    a("v_max_u32 v14, v14, v15")
    a("v_max_u32 v12, v12, v14")
    a("s_nop 0")
    a("v_readfirstlane_b32 s38, v12")
    a("v_readfirstlane_b32 s39, v68")
    a("v_readfirstlane_b32 s40, v132")
    a(f"s_lshl_b32 s41, s2, 11")
    a(f"s_add_u32 s41, s41, {WS_CROW}")
    a(f"s_lshl_b32 s42, s2, 2")
    a(f"s_add_u32 s42, s42, {WS_CAND}")
    a("v_mov_b32 v5, 0")
    for R in range(2):
        B = 16 + 64 * R
        a(f"s_cmp_lg_u32 s38, s{39 + R}")
        a(f"s_cbranch_scc1 {name}_nw{R}")
        a(f"buffer_store_dwordx4 v[{B + 40}:{B + 43}], v3, s[24:27], s41 offen")
        a(f"buffer_store_dwordx4 v[{B + 44}:{B + 47}], v3, s[24:27], s41 offen offset:1024")
        a(f"buffer_store_dword v12, v5, s[24:27], s42 offen")
        a.label(f"{name}_nw{R}")
    a.label(f"{name}_done")
    a("s_endpgm")
    return kernel_desc(name, 144, 64, 144)


NSL = 56


def emit_winner(a, vkey, t, ldsaddr_tmp, s_out):
    wave_allreduce(a, "v_max_u32", vkey, t)
    a("s_lshl_b32 s37, s32, 2")
    a(f"v_mov_b32 v{ldsaddr_tmp}, s37")
    a(f"ds_write_b32 v{ldsaddr_tmp}, v{vkey}")
    a("s_waitcnt lgkmcnt(0)")
    a("s_barrier")
    a(f"v_mov_b32 v{ldsaddr_tmp}, 0")
    a(f"ds_read_b64 v[{t}:{t + 1}], v{ldsaddr_tmp}")
    a(f"ds_read_b64 v[{t + 2}:{t + 3}], v{ldsaddr_tmp} offset:8")
    a("s_waitcnt lgkmcnt(0)")
    a(f"v_max_u32 v{t}, v{t}, v{t + 1}")
    a(f"v_max_u32 v{t + 2}, v{t + 2}, v{t + 3}")
    a(f"v_max_u32 v{t}, v{t}, v{t + 2}")
    a("s_nop 0")
    a(f"v_readfirstlane_b32 s{s_out}, v{t}")


def gen_k4(a, name):
    kernel_begin(a, name)
    a(f"s_cmp_ge_u32 s2, {NSL}")
    a(f"s_cbranch_scc1 {name}_done")
    a("s_load_dwordx4 s[4:7], s[0:1], 56")
    a("s_load_dwordx2 s[8:9], s[0:1], 72")
    a("s_load_dwordx2 s[10:11], s[0:1], 96")
    a("v_lshrrev_b32 v1, 6, v0")
    a("v_and_b32 v2, 63, v0")
    a("s_nop 0")
    a("v_readfirstlane_b32 s32, v1")
    a("v_lshrrev_b32 v3, 2, v0")
    a("v_and_b32 v4, 3, v0")
    a("v_lshlrev_b32 v5, 2, v0")
    a("s_mov_b32 s33, 28672")
    a("v_mul_lo_u32 v6, v3, s33")
    a("v_lshl_add_u32 v6, v4, 4, v6")
    a("v_lshlrev_b32 v7, 4, v2")
    a("s_waitcnt lgkmcnt(0)")
    srd(a, 12, 4, 5, D * F * 2)
    srd(a, 16, 6, 7, D * F * 2)
    srd(a, 20, 8, 9, D * F * 2)
    srd(a, 24, 10, 11, 10 << 20)
    a(f"s_mov_b32 s34, {WS_CAND}")
    a("buffer_load_dword v8, v5, s[24:27], s34 offen")
    a("s_lshl_b32 s34, s2, 6")
    G, U, W = 32, 64, 96
    for j in range(8):
        a(f"s_add_u32 s35, s34, {3584 * j}")
        a(f"buffer_load_dwordx4 v[{G + 4 * j}:{G + 4 * j + 3}], v6, s[12:15], s35 offen")
        a(f"buffer_load_dwordx4 v[{U + 4 * j}:{U + 4 * j + 3}], v6, s[16:19], s35 offen")
    a("s_lshl_b32 s35, s2, 5")
    a("s_lshl_b32 s36, s32, 3")
    a("s_add_u32 s35, s35, s36")
    a("s_lshl_b32 s35, s35, 10")
    for j in range(8):
        a(f"s_add_u32 s36, s35, {1024 * j}")
        a(f"buffer_load_dwordx4 v[{W + 4 * j}:{W + 4 * j + 3}], v7, s[20:23], s36 offen")
    a("s_waitcnt vmcnt(24)")
    emit_winner(a, 8, 12, 9, 38)
    a("s_and_b32 s39, s38, 0xffff")
    a("s_sub_u32 s39, 2047, s39")
    a("s_lshr_b32 s39, s39, 3")
    a("s_lshl_b32 s39, s39, 11")
    a(f"s_add_u32 s39, s39, {WS_CROW + 1024}")
    a("v_lshlrev_b32 v9, 4, v3")
    a("v_add_u32 v9, s39, v9")
    a("buffer_load_dwordx4 v[12:15], v9, s[24:27], 0 offen")
    a("s_mov_b32 s53, 0xffff0000")
    A = 128
    for i in range(16):
        a(f"v_mov_b32 v{A + i}, 0")
    a("s_waitcnt vmcnt(0)")
    X = 16
    for i in range(4):
        a(f"v_lshlrev_b32 v{X + 2 * i}, 16, v{12 + i}")
        a(f"v_and_b32 v{X + 2 * i + 1}, s53, v{12 + i}")
    for j in range(8):
        for (M, ao) in ((G, 0), (U, 8)):
            for i in range(4):
                t = 24 + 2 * (i & 1)
                a(f"v_lshlrev_b32 v{t}, 16, v{M + 4 * j + i}")
                a(f"v_and_b32 v{t + 1}, s53, v{M + 4 * j + i}")
                a(f"v_fmac_f32 v{A + ao + 2 * i}, v{X + j}, v{t}")
                a(f"v_fmac_f32 v{A + ao + 2 * i + 1}, v{X + j}, v{t + 1}")
    a("s_nop 1")
    for i in range(8):
        a(f"v_permlane32_swap_b32 v{A + i}, v{A + i + 8}")
    a("s_nop 1")
    for i in range(8):
        a(f"v_add_f32 v{A + i}, v{A + i}, v{A + i + 8}")
    a("s_nop 1")
    for i in range(4):
        a(f"v_permlane16_swap_b32 v{A + i}, v{A + i + 4}")
    a("s_nop 1")
    for i in range(4):
        a(f"v_add_f32 v{A + i}, v{A + i}, v{A + i + 4}")
    a("s_nop 1")
    for i in range(4):
        a(f"v_add_f32_dpp v{A + i}, v{A + i}, v{A + i} row_ror:4 {DPP}")
    a("s_nop 1")
    for i in range(4):
        a(f"v_add_f32_dpp v{A + i}, v{A + i}, v{A + i} row_ror:8 {DPP}")
    a("v_and_b32 v9, 3, v2")
    a("v_lshlrev_b32 v9, 5, v9")
    a("v_bfe_u32 v10, v2, 4, 1")
    a("v_lshl_add_u32 v9, v10, 4, v9")
    a("v_bfe_u32 v10, v2, 5, 1")
    a("v_lshl_add_u32 v9, v10, 7, v9")
    a("s_lshl_b32 s37, s32, 8")
    a("v_add_u32 v9, s37, v9")
    a(f"ds_write_b128 v9, v[{A}:{A + 3}] offset:64")
    a("s_waitcnt lgkmcnt(0)")
    a("s_barrier")
    a("v_and_b32 v9, 31, v2")
    a("v_lshlrev_b32 v9, 2, v9")
    for w in range(4):
        a(f"ds_read_b32 v{16 + w}, v9 offset:{64 + 256 * w}")
        a(f"ds_read_b32 v{20 + w}, v9 offset:{64 + 256 * w + 128}")
    a("s_waitcnt lgkmcnt(0)")
    a("v_add_f32 v16, v16, v17")
    a("v_add_f32 v18, v18, v19")
    a("v_add_f32 v20, v20, v21")
    a("v_add_f32 v22, v22, v23")
    a("v_add_f32 v16, v16, v18")
    a("v_add_f32 v20, v20, v22")
    a("v_cvt_pk_bf16_f32 v16, v16, v20")
    a("v_and_b32 v20, s53, v16")
    a("v_lshlrev_b32 v16, 16, v16")
    a("v_mul_f32 v17, 0xbfb8aa3b, v16")
    a("v_exp_f32 v17, v17")
    a("s_nop 0")
    a("v_add_f32 v17, 1.0, v17")
    a("v_rcp_f32 v17, v17")
    a("s_nop 0")
    a("v_mul_f32 v16, v16, v17")
    a("v_cvt_pk_bf16_f32 v16, v16, v16")
    a("v_lshlrev_b32 v16, 16, v16")
    a("v_mul_f32 v16, v16, v20")
    a("v_cvt_pk_bf16_f32 v16, v16, v16")
    a("v_lshlrev_b32 v16, 16, v16")
    a("s_lshl_b32 s37, s32, 3")
    for j in range(8):
        a(f"s_add_u32 s36, s37, {j}")
        a("s_nop 0")
        a(f"v_readlane_b32 s{40 + j}, v16, s36")
    for i in range(8):
        a(f"v_mov_b32 v{A + i}, 0")
    a("s_nop 1")
    for j in range(8):
        for i in range(4):
            t = 24 + 2 * (i & 1)
            a(f"v_lshlrev_b32 v{t}, 16, v{W + 4 * j + i}")
            a(f"v_and_b32 v{t + 1}, s53, v{W + 4 * j + i}")
            a(f"v_fmac_f32 v{A + 2 * i}, s{40 + j}, v{t}")
            a(f"v_fmac_f32 v{A + 2 * i + 1}, s{40 + j}, v{t + 1}")
    a("v_lshlrev_b32 v9, 5, v2")
    a("s_lshl_b32 s37, s32, 11")
    a("v_add_u32 v9, s37, v9")
    a(f"ds_write_b128 v9, v[{A}:{A + 3}] offset:2048")
    a(f"ds_write_b128 v9, v[{A + 4}:{A + 7}] offset:2064")
    a("s_waitcnt lgkmcnt(0)")
    a("s_barrier")
    a("v_lshlrev_b32 v9, 3, v0")
    for w in range(4):
        a(f"ds_read_b64 v[{16 + 2 * w}:{17 + 2 * w}], v9 offset:{2048 + 2048 * w}")
    a("s_waitcnt lgkmcnt(0)")
    a("v_add_f32 v16, v16, v18")
    a("v_add_f32 v17, v17, v19")
    a("v_add_f32 v20, v20, v22")
    a("v_add_f32 v21, v21, v23")
    a("v_add_f32 v16, v16, v20")
    a("v_add_f32 v17, v17, v21")
    a("s_lshl_b32 s37, s2, 11")
    a(f"s_add_u32 s37, s37, {WS_SLAB}")
    a("buffer_store_dwordx2 v[16:17], v9, s[24:27], s37 offen")
    a.label(f"{name}_done")
    a("s_endpgm")
    return kernel_desc(name, 144, 64, 144)


def gen_k5(a, name):
    kernel_begin(a, name)
    a("s_cmp_ge_u32 s2, 16")
    a(f"s_cbranch_scc1 {name}_done")
    a("s_load_dwordx2 s[8:9], s[0:1], 80")
    a("s_load_dwordx2 s[10:11], s[0:1], 96")
    a("v_lshrrev_b32 v1, 6, v0")
    a("v_and_b32 v2, 63, v0")
    a("s_nop 0")
    a("v_readfirstlane_b32 s32, v1")
    a("v_lshlrev_b32 v5, 2, v0")
    a("v_lshrrev_b32 v3, 3, v0")
    a("v_and_b32 v4, 7, v0")
    a("v_lshlrev_b32 v6, 11, v3")
    a("v_lshl_add_u32 v6, v4, 4, v6")
    a("s_waitcnt lgkmcnt(0)")
    srd(a, 20, 8, 9, S * D * 2)
    srd(a, 24, 10, 11, 10 << 20)
    srd(a, 28, 10, 11, WS_SLAB + NSL * 2048)
    a(f"s_mov_b32 s34, {WS_CAND}")
    a("buffer_load_dword v8, v5, s[24:27], s34 offen")
    a("s_lshl_b32 s34, s2, 7")
    a(f"s_add_u32 s34, s34, {WS_SLAB}")
    a("s_add_u32 s35, s34, 65536")
    a("buffer_load_dwordx4 v[16:19], v6, s[28:31], s34 offen")
    a("buffer_load_dwordx4 v[20:23], v6, s[28:31], s35 offen")
    a("s_waitcnt vmcnt(2)")
    emit_winner(a, 8, 12, 9, 38)
    a("s_and_b32 s39, s38, 0xffff")
    a("s_sub_u32 s39, 2047, s39")
    a("s_lshr_b32 s40, s39, 3")
    a("s_lshl_b32 s40, s40, 11")
    a(f"s_add_u32 s40, s40, {WS_CROW}")
    a("s_lshl_b32 s41, s2, 6")
    a("s_add_u32 s40, s40, s41")
    a("v_lshlrev_b32 v9, 3, v4")
    a("v_add_u32 v9, s40, v9")
    a("buffer_load_dwordx2 v[24:25], v9, s[24:27], 0 offen")
    a("buffer_load_dwordx2 v[26:27], v9, s[24:27], 0 offen offset:1024")
    a("s_waitcnt vmcnt(2)")
    for i in range(4):
        a(f"v_add_f32 v{16 + i}, v{16 + i}, v{20 + i}")
    a("s_nop 1")
    for i in range(4):
        a(f"v_add_f32_dpp v{16 + i}, v{16 + i}, v{16 + i} row_ror:8 {DPP}")
    for i in range(4):
        a(f"v_mov_b32 v{20 + i}, v{16 + i}")
    a("s_nop 1")
    for i in range(4):
        a(f"v_permlane16_swap_b32 v{16 + i}, v{20 + i}")
    a("s_nop 1")
    for i in range(4):
        a(f"v_add_f32 v{16 + i}, v{16 + i}, v{20 + i}")
    for i in range(4):
        a(f"v_mov_b32 v{20 + i}, v{16 + i}")
    a("s_nop 1")
    for i in range(4):
        a(f"v_permlane32_swap_b32 v{16 + i}, v{20 + i}")
    a("s_nop 1")
    for i in range(4):
        a(f"v_add_f32 v{16 + i}, v{16 + i}, v{20 + i}")
    a("v_lshlrev_b32 v10, 4, v4")
    a("s_lshl_b32 s37, s32, 7")
    a("v_add_u32 v11, s37, v10")
    a("ds_write_b128 v11, v[16:19] offset:64")
    a("s_waitcnt lgkmcnt(0)")
    a("s_barrier")
    for w in range(4):
        a(f"ds_read_b128 v[{32 + 4 * w}:{35 + 4 * w}], v10 offset:{64 + 128 * w}")
    a("s_and_b32 s42, s38, 0xffff0000")
    a("s_xor_b32 s43, s42, 0x80000000")
    a("s_not_b32 s44, s42")
    a("s_and_b32 s44, s44, 0xffff0000")
    a("s_cmp_ge_u32 s42, 0x80000000")
    a("s_cselect_b32 s42, s43, s44")
    a("v_mov_b32 v12, s42")
    a("v_mul_f32 v13, 0xbfb8aa3b, v12")
    a("v_exp_f32 v13, v13")
    a("s_nop 0")
    a("v_add_f32 v13, 1.0, v13")
    a("v_rcp_f32 v13, v13")
    a("s_nop 0")
    a("v_cvt_pk_bf16_f32 v13, v13, v13")
    a("v_lshlrev_b32 v13, 16, v13")
    a("s_mov_b32 s53, 0xffff0000")
    a("s_waitcnt vmcnt(0) lgkmcnt(0)")
    for i in range(4):
        a(f"v_add_f32 v{32 + i}, v{32 + i}, v{36 + i}")
        a(f"v_add_f32 v{40 + i}, v{40 + i}, v{44 + i}")
        a(f"v_add_f32 v{32 + i}, v{32 + i}, v{40 + i}")
    for i in range(2):
        y0, y1 = 32 + 2 * i, 33 + 2 * i
        a(f"v_cvt_pk_bf16_f32 v48, v{y0}, v{y1}")
        a(f"v_lshlrev_b32 v{y0}, 16, v48")
        a(f"v_and_b32 v{y1}, s53, v48")
        a(f"v_mul_f32 v{y0}, v{y0}, v13")
        a(f"v_mul_f32 v{y1}, v{y1}, v13")
        a(f"v_cvt_pk_bf16_f32 v48, v{y0}, v{y1}")
        a(f"v_lshlrev_b32 v{y0}, 16, v48")
        a(f"v_and_b32 v{y1}, s53, v48")
        a(f"v_lshlrev_b32 v49, 16, v{26 + i}")
        a(f"v_and_b32 v50, s53, v{26 + i}")
        a(f"v_add_f32 v{y0}, v49, v{y0}")
        a(f"v_add_f32 v{y1}, v50, v{y1}")
        a(f"v_cvt_pk_bf16_f32 v48, v{y0}, v{y1}")
        a(f"v_lshlrev_b32 v{y0}, 16, v48")
        a(f"v_and_b32 v{y1}, s53, v48")
        a(f"v_lshlrev_b32 v49, 16, v{24 + i}")
        a(f"v_and_b32 v50, s53, v{24 + i}")
        a(f"v_add_f32 v{y0}, v49, v{y0}")
        a(f"v_add_f32 v{y1}, v50, v{y1}")
        a(f"v_cvt_pk_bf16_f32 v{52 + i}, v{y0}, v{y1}")
    a("s_lshl_b32 s39, s39, 10")
    a("s_add_u32 s39, s39, s41")
    a("v_lshlrev_b32 v9, 3, v4")
    a("v_add_u32 v9, s39, v9")
    a("v_cmp_gt_u32 vcc, 8, v0")
    a("s_and_saveexec_b64 s[46:47], vcc")
    a(f"s_cbranch_execz {name}_done")
    a("buffer_store_dwordx2 v[52:53], v9, s[20:23], 0 offen")
    a.label(f"{name}_done")
    a("s_endpgm")
    return kernel_desc(name, 64, 64, 64)


HEADER = open(__file__.rsplit("/", 1)[0] + "/cdna_kernels/" + NAME + ".s.ref").read().split("; Override launch")[0]


def build(path, **opt):
    a = Asm()
    launches = [
        ("k1_kernel", 256, 512, 163840),
        ("k2_kernel", 256, 256, 4 * opt.get("NS", 9) * 4096),
        ("k3_kernel", 256, 256, 64),
        ("k4_kernel", NSL, 256, 10240),
        ("k5_kernel", 16, 256, 1024),
    ]
    hdr = HEADER
    for (k, g, b, l) in launches:
        hdr += f"; @launch kernel={k} grid=({g},1,1) block=({b},1,1) lds={l}\n"
    a.raw('.amdgcn_target "amdgcn-amd-amdhsa--gfx950"')
    descs = []
    descs.append(gen_k1(a, "k1_kernel", prefetch=opt.get("prefetch", True)))
    descs.append(gen_k2(a, "k2_kernel", NS=opt.get("NS", 9), ED=opt.get("ED", 3)))
    descs.append(gen_k3(a, "k3_kernel"))
    descs.append(gen_k4(a, "k4_kernel"))
    descs.append(gen_k5(a, "k5_kernel"))
    open(path, "w").write(hdr + a.text() + "".join(descs))


if __name__ == "__main__":
    out = sys.argv[1] if len(sys.argv) > 1 else "cdna_kernels/" + NAME + ".s"
    opt = {}
    for kv in sys.argv[2:]:
        k, v = kv.split("=")
        opt[k] = int(v)
    build(out, **opt)
```

```python
import sys

NAME = "sequential_preLN__spectral_fnet__moe_arch_mod__prompt"

WS_AT = 0
WS_Y = 4 << 20
WS_CAND = 8 << 20
WS_CROW = (8 << 20) + 4096
WS_SLAB = (9 << 20)
WS_SIZE = 268435456

S, D, F = 2048, 512, 1792


class Asm:
    def __init__(self):
        self.lines = []

    def __call__(self, s):
        self.lines.append("    " + s)

    def label(self, l):
        self.lines.append(l + ":")

    def raw(self, s):
        self.lines.append(s)

    def text(self):
        return "\n".join(self.lines) + "\n"


class VM:
    def __init__(self, a):
        self.a = a
        self.q = []

    def issue(self, tag):
        self.q.append(tag)

    def wait(self, tag):
        idx = max(i for i, t in enumerate(self.q) if t == tag) if tag in self.q else None
        if idx is None:
            return
        n = len(self.q) - 1 - idx
        assert n <= 63
        self.a(f"s_waitcnt vmcnt({n})")
        self.q = self.q[idx + 1:]

    def wait_all(self):
        self.a("s_waitcnt vmcnt(0)")
        self.q = []


def srd(a, d, lo, hi, nbytes):
    a(f"s_mov_b32 s{d}, s{lo}")
    a(f"s_and_b32 s{d+1}, s{hi}, 0xffff")
    a(f"s_mov_b32 s{d+2}, {nbytes}")
    a(f"s_mov_b32 s{d+3}, 0x00020000")


def kernel_begin(a, name):
    a.raw(".text")
    a.raw(f".globl {name}")
    a.raw(".p2align 8")
    a.raw(f".type {name},@function")
    a.label(name)


def kernel_desc(name, vgpr, sgpr, accum):
    return f""".section .rodata,"a"
.p2align 6
.amdhsa_kernel {name}
  .amdhsa_next_free_vgpr {vgpr}
  .amdhsa_next_free_sgpr {sgpr}
  .amdhsa_accum_offset {accum}
  .amdhsa_group_segment_fixed_size 0
  .amdhsa_kernarg_size 104
  .amdhsa_user_sgpr_count 2
  .amdhsa_user_sgpr_kernarg_segment_ptr 1
  .amdhsa_system_sgpr_workgroup_id_x 1
  .amdhsa_float_denorm_mode_32 3
.end_amdhsa_kernel
"""


DPP = "row_mask:0xf bank_mask:0xf"


def emit_perm32(a, dst, src, t):
    a(f"v_and_b32 v{dst}, 3, v{src}")
    a(f"v_lshrrev_b32 v{t}, 3, v{src}")
    a(f"v_lshl_or_b32 v{dst}, v{t}, 2, v{dst}")
    a(f"v_bfe_u32 v{t}, v{src}, 2, 1")
    a(f"v_lshl_or_b32 v{dst}, v{t}, 4, v{dst}")


def wave_allreduce(a, op, v, t):
    a("s_nop 1")
    a(f"{op}_dpp v{v}, v{v}, v{v} quad_perm:[1,0,3,2] {DPP}")
    a("s_nop 1")
    a(f"{op}_dpp v{v}, v{v}, v{v} quad_perm:[2,3,0,1] {DPP}")
    a("s_nop 1")
    a(f"{op}_dpp v{v}, v{v}, v{v} row_half_mirror {DPP}")
    a("s_nop 1")
    a(f"{op}_dpp v{v}, v{v}, v{v} row_mirror {DPP}")
    a(f"v_mov_b32 v{t}, v{v}")
    a("s_nop 1")
    a(f"v_permlane16_swap_b32 v{v}, v{t}")
    a("s_nop 1")
    a(f"{op} v{v}, v{v}, v{t}")
    a(f"v_mov_b32 v{t}, v{v}")
    a("s_nop 1")
    a(f"v_permlane32_swap_b32 v{v}, v{t}")
    a("s_nop 1")
    a(f"{op} v{v}, v{v}, v{t}")


def gen_k1(a, name, prefetch=True):
    kernel_begin(a, name)
    a("s_cmp_ge_u32 s2, 256")
    a(f"s_cbranch_scc1 {name}_done")
    a("s_load_dwordx2 s[4:5], s[0:1], 0")
    a("s_load_dwordx4 s[8:11], s[0:1], 24")
    a("s_load_dwordx2 s[6:7], s[0:1], 96")
    a("s_load_dwordx4 s[36:39], s[0:1], 8")
    a("s_load_dwordx4 s[40:43], s[0:1], 56")
    a("s_load_dwordx2 s[44:45], s[0:1], 72")
    a("s_and_b32 s3, s2, 7")
    a("s_lshr_b32 s28, s2, 3")
    a("s_and_b32 s29, s28, 3")
    a("s_lshl_b32 s30, s3, 2")
    a("s_add_u32 s30, s30, s29")
    a("s_lshr_b32 s31, s28, 2")
    a("v_lshrrev_b32 v1, 6, v0")
    a("v_and_b32 v2, 63, v0")
    a("s_nop 0")
    a("v_readfirstlane_b32 s32, v1")
    a("v_lshrrev_b32 v3, 3, v2")
    a("v_and_b32 v4, 7, v2")
    a("s_waitcnt lgkmcnt(0)")
    srd(a, 12, 4, 5, S * D * 2)
    a("s_cmp_ge_u32 s31, 4")
    a("s_cselect_b32 s8, s10, s8")
    a("s_cselect_b32 s9, s11, s9")
    srd(a, 16, 8, 9, D * D * 2)
    srd(a, 20, 6, 7, 4 << 20)
    a("s_lshl_b32 s33, s30, 6")
    a("s_lshl_b32 s34, s32, 3")
    a("s_add_u32 s33, s33, s34")
    a("s_lshl_b32 s33, s33, 10")
    a("v_lshlrev_b32 v5, 10, v3")
    a("v_lshl_add_u32 v5, v4, 4, v5")
    XR = 32
    for j in range(8):
        a(f"buffer_load_dwordx4 v[{XR+4*j}:{XR+4*j+3}], v5, s[12:15], s33 offen offset:{128*j}")
    a("v_lshrrev_b32 v6, 4, v2")
    a("v_xor_b32 v6, v6, v4")
    a("v_xor_b32 v7, 4, v6")
    a("v_lshlrev_b32 v8, 10, v3")
    a("v_lshl_add_u32 v6, v6, 4, v8")
    a("v_lshl_add_u32 v7, v7, 4, v8")
    a("s_cmp_ge_u32 s32, 4")
    a(f"s_cbranch_scc1 {name}_helper")
    a("s_and_b32 s35, s31, 3")
    a("s_lshl_b32 s35, s35, 7")
    a("s_lshl_b32 s34, s32, 5")
    a("s_add_u32 s35, s35, s34")
    a("s_lshl_b32 s35, s35, 10")
    a("s_mul_i32 s46, s32, 24576")
    a("s_add_u32 s46, s46, 65536")

    def dma_slot(kk):
        for i in range(4):
            a(f"s_add_u32 m0, s46, {(kk % 6) * 4096 + i * 1024}")
            a(f"s_add_u32 s47, s35, {i * 8192 + kk * 128}")
            a(f"buffer_load_dwordx4 v{6 + (i & 1)}, s[16:19], s47 offen lds")

    for kk in range(6):
        dma_slot(kk)
    a("s_waitcnt vmcnt(24)")
    a(f"s_branch {name}_ln")
    a.label(f"{name}_helper")
    npf = 0
    if prefetch:
        a("s_and_b32 s48, s3, 1")
        a("s_cmp_eq_u32 s48, 1")
        a("s_cselect_b32 s36, s38, s36")
        a("s_cselect_b32 s37, s39, s37")
        srd(a, 24, 36, 37, S * S * 2)
        a("s_lshr_b32 s48, s3, 1")
        a("s_lshl_b32 s48, s48, 21")
        a("s_lshl_b32 s49, s28, 16")
        a("s_add_u32 s48, s48, s49")
        a("s_sub_u32 s49, s32, 4")
        a("s_lshl_b32 s49, s49, 14")
        a("s_add_u32 s48, s48, s49")
        a("v_lshlrev_b32 v9, 6, v2")
        for i in range(4):
            a(f"s_add_u32 s49, s48, {i * 4096}")
            a(f"buffer_load_dword v{130 + i}, v9, s[24:27], s49 offen")
            npf += 1
    a(f"s_waitcnt vmcnt({npf})")
    a.label(f"{name}_ln")
    a("s_mov_b32 s50, 0x3f803f80")
    a("s_mov_b32 s51, 0x00003f80")
    a("s_mov_b32 s52, 0x3f800000")
    a("s_mov_b32 s53, 0xffff0000")
    a("v_mov_b32 v16, 0")
    a("v_mov_b32 v17, 0")
    for j in range(32):
        a(f"v_dot2_f32_bf16 v{16 + (j & 1)}, v{XR + j}, s50, v{16 + (j & 1)}")
    a("s_nop 2")
    a("v_add_f32 v16, v16, v17")

    def red8(v):
        a("s_nop 1")
        a(f"v_add_f32_dpp v{v}, v{v}, v{v} quad_perm:[1,0,3,2] {DPP}")
        a("s_nop 1")
        a(f"v_add_f32_dpp v{v}, v{v}, v{v} quad_perm:[2,3,0,1] {DPP}")
        a("s_nop 1")
        a(f"v_add_f32_dpp v{v}, v{v}, v{v} row_half_mirror {DPP}")

    red8(16)
    a("v_mul_f32 v16, 0x3b000000, v16")
    a("v_cvt_pk_bf16_f32 v17, v16, v16")
    a("v_lshlrev_b32 v17, 16, v17")
    a("v_sub_f32 v18, 0, v17")
    a("v_sub_f32 v19, v16, v17")
    a("v_mov_b32 v20, 0")
    a("v_mov_b32 v21, 0")
    for j in range(32):
        t = 22 + 2 * (j & 3)
        a(f"v_dot2_f32_bf16 v{t}, v{XR + j}, s51, v18")
        a(f"v_dot2_f32_bf16 v{t + 1}, v{XR + j}, s52, v18")
        if j >= 1:
            tp = 22 + 2 * ((j - 1) & 3)
            a(f"v_fmac_f32 v20, v{tp}, v{tp}")
            a(f"v_fmac_f32 v21, v{tp + 1}, v{tp + 1}")
            a(f"v_cvt_pk_bf16_f32 v{XR + j - 1}, v{tp}, v{tp + 1}")
    tp = 22 + 2 * (31 & 3)
    a("s_nop 2")
    a(f"v_fmac_f32 v20, v{tp}, v{tp}")
    a(f"v_fmac_f32 v21, v{tp + 1}, v{tp + 1}")
    a(f"v_cvt_pk_bf16_f32 v{XR + 31}, v{tp}, v{tp + 1}")
    a("v_add_f32 v20, v20, v21")
    red8(20)
    a("v_mul_f32 v20, 0x3b000000, v20")
    a("v_fma_f32 v20, -v19, v19, v20")
    a("v_max_f32 v20, 0, v20")
    a("v_cvt_pk_bf16_f32 v20, v20, v20")
    a("v_lshlrev_b32 v20, 16, v20")
    a("v_add_f32 v20, 0x3727c5ac, v20")
    a("v_cvt_pk_bf16_f32 v20, v20, v20")
    a("v_lshlrev_b32 v20, 16, v20")
    a("v_sqrt_f32 v20, v20")
    a("s_nop 0")
    a("v_cvt_pk_bf16_f32 v20, v20, v20")
    a("v_lshlrev_b32 v20, 16, v20")
    a("v_rcp_f32 v20, v20")
    a("s_nop 0")
    for j in range(32):
        t = 22 + 2 * (j & 3)
        a(f"v_lshlrev_b32 v{t}, 16, v{XR + j}")
        a(f"v_and_b32 v{t + 1}, s53, v{XR + j}")
        a(f"v_mul_f32 v{t}, v{t}, v20")
        a(f"v_mul_f32 v{t + 1}, v{t + 1}, v20")
        a(f"v_cvt_pk_bf16_f32 v{XR + j}, v{t}, v{t + 1}")
    a("s_lshl_b32 s34, s32, 3")
    a("v_add_u32 v9, s34, v3")
    a("v_bfe_u32 v10, v9, 1, 3")
    a("v_xor_b32 v10, v10, v4")
    a("v_lshlrev_b32 v10, 4, v10")
    a("v_lshl_add_u32 v10, v9, 7, v10")
    for j in range(8):
        a(f"ds_write_b128 v10, v[{XR + 4 * j}:{XR + 4 * j + 3}] offset:{8192 * j}")
    a("s_waitcnt lgkmcnt(0)")
    a("s_barrier")
    a("s_cmp_ge_u32 s32, 4")
    a(f"s_cbranch_scc1 {name}_done")
    a("v_and_b32 v9, 31, v2")
    emit_perm32(a, 10, 9, 11)
    a("v_bfe_u32 v11, v10, 1, 3")
    a("v_lshrrev_b32 v12, 5, v2")
    a("v_xor_b32 v11, v11, v12")
    a("v_lshlrev_b32 v11, 4, v11")
    a("v_lshl_add_u32 v11, v10, 7, v11")
    for c in range(4):
        a(f"v_xor_b32 v{12 + c}, {c * 32}, v11")
        a(f"v_add_u32 v{16 + c}, s46, v{12 + c}")
    ACC = 64
    FR = [96, 108, 120]
    for i in range(32):
        a(f"v_mov_b32 v{ACC + i}, 0")
    units = [(kk, c) for kk in range(8) for c in range(4)]
    vq = [kk for kk in range(6) for _ in range(4)]

    def wait_slot(kk):
        nonlocal vq
        if kk in vq:
            idx = max(i for i, t in enumerate(vq) if t == kk)
            a(f"s_waitcnt vmcnt({len(vq) - 1 - idx})")
            vq = vq[idx + 1:]

    def reads(n):
        kk, c = units[n]
        f = FR[n % 3]
        if c == 0:
            wait_slot(kk)
        a(f"ds_read_b128 v[{f}:{f + 3}], v{16 + c} offset:{(kk % 6) * 4096}")
        a(f"ds_read_b128 v[{f + 4}:{f + 7}], v{12 + c} offset:{kk * 8192}")
        a(f"ds_read_b128 v[{f + 8}:{f + 11}], v{12 + c} offset:{kk * 8192 + 4096}")

    reads(0)
    reads(1)
    for n in range(len(units)):
        kk, c = units[n]
        if n + 2 < len(units):
            reads(n + 2)
            a("s_waitcnt lgkmcnt(6)")
        elif n + 1 < len(units):
            a("s_waitcnt lgkmcnt(3)")
        else:
            a("s_waitcnt lgkmcnt(0)")
        f = FR[n % 3]
        a(f"v_mfma_f32_32x32x16_bf16 v[{ACC}:{ACC + 15}], v[{f + 4}:{f + 7}], v[{f}:{f + 3}], v[{ACC}:{ACC + 15}]")
        a(f"v_mfma_f32_32x32x16_bf16 v[{ACC + 16}:{ACC + 31}], v[{f + 8}:{f + 11}], v[{f}:{f + 3}], v[{ACC + 16}:{ACC + 31}]")
        if c == 3 and kk + 6 < 8:
            dma_slot(kk + 6)
            vq += [kk + 6] * 4
    a("s_lshl_b32 s34, s31, 2")
    a("s_add_u32 s34, s34, s32")
    a("s_lshl_b32 s34, s34, 6")
    a("s_lshl_b32 s33, s30, 1")
    a("s_add_u32 s34, s34, s33")
    a("s_lshl_b32 s34, s34, 11")
    a("v_lshlrev_b32 v9, 4, v2")
    a("s_nop 7")
    a("s_nop 3")
    for sh in range(2):
        for i in range(8):
            a(f"v_cvt_pk_bf16_f32 v{32 + 8 * sh + i}, v{ACC + 16 * sh + 2 * i}, v{ACC + 16 * sh + 2 * i + 1}")
    for sh in range(2):
        for u in range(2):
            r = 32 + 8 * sh + 4 * u
            a(f"buffer_store_dwordx4 v[{r}:{r + 3}], v9, s[20:23], s34 offen offset:{sh * 2048 + u * 1024}")
    a.label(f"{name}_done")
    a("s_endpgm")
    return kernel_desc(name, 136, 64, 136)


def gen_k2(a, name, NS=9, ED=3, nomfma=0, noload=0, spread=0):
    kernel_begin(a, name)
    a("s_cmp_ge_u32 s2, 256")
    a(f"s_cbranch_scc1 {name}_done")
    a("s_load_dwordx4 s[4:7], s[0:1], 8")
    a("s_load_dwordx2 s[8:9], s[0:1], 96")
    a("s_and_b32 s3, s2, 7")
    a("s_lshr_b32 s28, s2, 3")
    a("s_and_b32 s29, s3, 1")
    a("s_lshr_b32 s30, s3, 1")
    a("s_lshl_b32 s30, s30, 2")
    a("s_and_b32 s31, s28, 3")
    a("s_add_u32 s30, s30, s31")
    a("s_lshr_b32 s31, s28, 2")
    a("v_lshrrev_b32 v200, 6, v0")
    a("v_and_b32 v201, 63, v0")
    a("s_nop 0")
    a("v_readfirstlane_b32 s32, v200")
    a("v_lshrrev_b32 v202, 3, v201")
    a("v_and_b32 v203, 7, v201")
    a("v_lshrrev_b32 v204, 4, v201")
    a("v_xor_b32 v204, v204, v203")
    a("v_xor_b32 v205, 4, v204")
    a("v_lshlrev_b32 v206, 12, v202")
    a("v_lshl_add_u32 v204, v204, 4, v206")
    a("v_lshl_add_u32 v205, v205, 4, v206")
    a("v_lshlrev_b32 v206, 4, v201")
    a("s_waitcnt lgkmcnt(0)")
    a("s_cmp_eq_u32 s29, 1")
    a("s_cselect_b32 s4, s6, s4")
    a("s_cselect_b32 s5, s7, s5")
    srd(a, 12, 4, 5, S * S * 2)
    srd(a, 16, 8, 9, 8 << 20)
    a("s_lshl_b32 s35, s30, 19")
    a("s_lshl_b32 s34, s32, 10")
    a("s_add_u32 s35, s35, s34")
    for j in range(4):
        a(f"s_add_u32 s34, s32, {j}")
        a("s_and_b32 s34, s34, 3")
        a(f"s_mov_b32 s{52 + j}, s34")
        a("s_lshl_b32 s34, s34, 17")
        a(f"s_add_u32 s{40 + j}, s35, s34")
    a("s_lshl_b32 s36, s29, 4")
    a("s_lshl_b32 s34, s31, 1")
    a("s_add_u32 s36, s36, s34")
    a("s_lshl_b32 s36, s36, 6")
    a("s_lshl_b32 s34, s32, 4")
    a("s_add_u32 s36, s36, s34")
    a("s_lshl_b32 s36, s36, 11")
    a("s_add_u32 s37, s36, 131072")
    RING = NS * 4096
    a(f"s_mul_i32 s46, s32, {RING}")
    vm = VM(a)

    pend = []

    def dma_one(n, i):
        kk, j = n // 4, n % 4
        if noload:
            return
        a(f"s_add_u32 m0, s46, {(n % NS) * 4096 + i * 1024}")
        a(f"s_add_u32 s47, s{40 + j}, {(i * 8) * 4096 + kk * 128}")
        a(f"buffer_load_dwordx4 v{204 + (i & 1)}, s[12:15], s47 offen lds")
        vm.issue(("C", n))

    def e_one(kk, et2, c):
        if noload:
            return
        st = kk % ED
        r = st * 32 + et2 * 16 + c * 4
        a(f"s_add_u32 s48, s{36 + et2}, {kk * 4096}")
        a(f"buffer_load_dwordx4 a[{r}:{r + 3}], v206, s[16:19], s48 offen offset:{c * 1024}")
        vm.issue(("E", kk))

    def dma_slot(n, defer=False):
        for i in range(4):
            if defer:
                pend.append(lambda n=n, i=i: dma_one(n, i))
            else:
                dma_one(n, i)

    def e_loads(kk, defer=False):
        for et2 in range(2):
            for c in range(4):
                if defer:
                    pend.append(lambda kk=kk, et2=et2, c=c: e_one(kk, et2, c))
                else:
                    e_one(kk, et2, c)

    def flush_pend(pred=None, maxn=None):
        cnt = 0
        while pend and (maxn is None or cnt < maxn):
            pend.pop(0)()
            cnt += 1

    nslot_issued = 0
    for kk in range(ED):
        e_loads(kk)
        for tt in range(4):
            if nslot_issued < NS:
                dma_slot(nslot_issued)
                nslot_issued += 1
    while nslot_issued < NS:
        dma_slot(nslot_issued)
        nslot_issued += 1
    a("v_and_b32 v207, 31, v201")
    a("v_bfe_u32 v208, v207, 1, 3")
    a("v_lshrrev_b32 v209, 5, v201")
    a("v_lshlrev_b32 v209, 1, v209")
    a("v_xor_b32 v208, v208, v209")
    a("v_lshlrev_b32 v208, 4, v208")
    a("v_lshl_add_u32 v208, v207, 7, v208")
    for c in range(4):
        x = ((c >> 1) * 4 + (c & 1)) << 4
        a(f"v_xor_b32 v{210 + c}, {x}, v208")
        a(f"v_add_u32 v{210 + c}, s46, v{210 + c}")
    for i in range(128):
        a(f"v_mov_b32 v{i}, 0")
    def pend_has(tag):
        return any(getattr(p, '__defaults__', (None,))[0] == tag[1] and len(p.__defaults__) == (2 if tag[0] == 'C' else 3) for p in pend)

    units = [(n, c) for n in range(32) for c in range(4)]
    NF = 6
    LOOKAHEAD = 4

    def reads(un):
        n, c = units[un]
        if c == 0:
            assert noload or vm.q.count(("C", n)) == 4 or ("C", n) not in vm.q and n < nslot_issued and not pend_has(("C", n))
            vm.wait(("C", n))
        f = 128 + 4 * (un % NF)
        a(f"ds_read_b128 v[{f}:{f + 3}], v{210 + c} offset:{(n % NS) * 4096}")

    for un in range(LOOKAHEAD):
        reads(un)
    for un in range(len(units)):
        n, c = units[un]
        kk, j = n // 4, n % 4
        if un + LOOKAHEAD < len(units):
            reads(un + LOOKAHEAD)
            a(f"s_waitcnt lgkmcnt({LOOKAHEAD})")
        else:
            a(f"s_waitcnt lgkmcnt({len(units) - 1 - un})")
        if j == 0 and c == 0:
            assert not pend_has(("E", kk))
            vm.wait(("E", kk))
        f = 128 + 4 * (un % NF)
        st = kk % ED
        for et2 in range(2):
            acc = (j * 2 + et2) * 16
            r = st * 32 + et2 * 16 + c * 4
            if not nomfma:
                a(f"v_mfma_f32_32x32x16_bf16 v[{acc}:{acc + 15}], a[{r}:{r + 3}], v[{f}:{f + 3}], v[{acc}:{acc + 15}]")
            if spread:
                flush_pend(maxn=1)
        if c == 3:
            if nslot_issued < 32:
                dma_slot(nslot_issued, defer=bool(spread))
                nslot_issued += 1
            if j == 3 and kk + ED < 8:
                e_loads(kk + ED, defer=bool(spread))
    a("s_barrier")
    for j in range(1, 4):
        a(f"s_mul_i32 s34, s{52 + j}, 24576")
        a(f"s_add_u32 s34, s34, {(j - 1) * 8192}")
        a(f"v_add_u32 v{214 + j}, s34, v206")
    a("s_mul_i32 s34, s32, 24576")
    a("v_add_u32 v214, s34, v206")
    a("s_nop 7")
    for j in range(1, 4):
        for q in range(8):
            r = j * 32 + 4 * q
            a(f"ds_write_b128 v{214 + j}, v[{r}:{r + 3}] offset:{q * 1024}")
    a("s_waitcnt lgkmcnt(0)")
    a("s_barrier")
    for j in range(1, 4):
        for q in range(8):
            r = j * 32 + 4 * q
            a(f"ds_read_b128 v[{r}:{r + 3}], v214 offset:{(j - 1) * 8192 + q * 1024}")
    a("s_lshl_b32 s34, s30, 7")
    a("s_lshl_b32 s33, s32, 5")
    a("s_add_u32 s34, s34, s33")
    a("s_lshl_b32 s34, s34, 10")
    a("s_lshl_b32 s33, s31, 7")
    a("s_add_u32 s34, s34, s33")
    a("s_lshl_b32 s33, s29, 21")
    a("s_add_u32 s34, s34, s33")
    a(f"s_add_u32 s34, s34, {WS_Y}")
    a("v_lshrrev_b32 v209, 5, v201")
    a("v_lshlrev_b32 v209, 5, v209")
    a("v_lshl_add_u32 v209, v207, 10, v209")
    for j in range(1, 4):
        a(f"s_waitcnt lgkmcnt({min(15, (3 - j) * 8)})")
        for i in range(32):
            a(f"v_add_f32 v{i}, v{i}, v{j * 32 + i}")
    for i in range(16):
        a(f"v_cvt_pk_bf16_f32 v{128 + i}, v{2 * i}, v{2 * i + 1}")
    for et2 in range(2):
        for hh in range(2):
            r = 128 + et2 * 8 + hh * 4
            a(f"buffer_store_dwordx4 v[{r}:{r + 3}], v209, s[16:19], s34 offen offset:{et2 * 64 + hh * 16}")
    a.label(f"{name}_done")
    a("s_endpgm")
    return kernel_desc(name, 224 + 32 * ED, 64, 224)


def gen_k3(a, name):
    kernel_begin(a, name)
    a("s_cmp_ge_u32 s2, 256")
    a(f"s_cbranch_scc1 {name}_done")
    a("s_load_dwordx2 s[4:5], s[0:1], 0")
    a("s_load_dwordx2 s[6:7], s[0:1], 48")
    a("s_load_dwordx2 s[8:9], s[0:1], 80")
    a("s_load_dwordx2 s[10:11], s[0:1], 96")
    a("v_lshrrev_b32 v1, 6, v0")
    a("v_and_b32 v2, 63, v0")
    a("s_nop 0")
    a("v_readfirstlane_b32 s32, v1")
    a("v_lshlrev_b32 v3, 4, v2")
    a("s_waitcnt lgkmcnt(0)")
    srd(a, 12, 4, 5, S * D * 2)
    srd(a, 16, 6, 7, D * 2)
    srd(a, 20, 8, 9, S * D * 2)
    srd(a, 24, 10, 11, 10 << 20)
    a("s_lshl_b32 s33, s2, 3")
    a("s_lshl_b32 s34, s32, 1")
    a("s_add_u32 s33, s33, s34")
    a("s_lshl_b32 s34, s33, 10")
    a(f"s_add_u32 s35, s34, {WS_Y}")
    a(f"s_add_u32 s36, s34, {WS_Y + (2 << 20)}")
    for R in range(2):
        B = 16 + 64 * R
        a(f"buffer_load_dwordx4 v[{B}:{B + 3}], v3, s[24:27], s35 offen offset:{1024 * R}")
        a(f"buffer_load_dwordx4 v[{B + 4}:{B + 7}], v3, s[24:27], s36 offen offset:{1024 * R}")
        a(f"buffer_load_dwordx4 v[{B + 8}:{B + 11}], v3, s[12:15], s34 offen offset:{1024 * R}")
    a("buffer_load_dwordx4 v[8:11], v3, s[16:19], 0 offen")
    a("s_mov_b32 s53, 0xffff0000")
    a("s_waitcnt vmcnt(1)")

    def unpack(dst, src):
        a(f"v_lshlrev_b32 v{dst}, 16, v{src}")
        a(f"v_and_b32 v{dst + 1}, s53, v{src}")

    for R in range(2):
        B = 16 + 64 * R
        H, T = B + 16, B + 24
        for i in range(4):
            unpack(T, B + i)
            unpack(T + 2, B + 4 + i)
            a(f"v_sub_f32 v{T}, v{T}, v{T + 2}")
            a(f"v_sub_f32 v{T + 1}, v{T + 1}, v{T + 3}")
            a(f"v_cvt_pk_bf16_f32 v{T + 4}, v{T}, v{T + 1}")
            unpack(T, T + 4)
            unpack(T + 2, B + 8 + i)
            a(f"v_add_f32 v{T}, v{T + 2}, v{T}")
            a(f"v_add_f32 v{T + 1}, v{T + 3}, v{T + 1}")
            a(f"v_cvt_pk_bf16_f32 v{B + 40 + i}, v{T}, v{T + 1}")
            unpack(H + 2 * i, B + 40 + i)
        St = B + 48
        a(f"v_add_f32 v{St}, v{H}, v{H + 1}")
        for i in range(2, 8):
            a(f"v_add_f32 v{St}, v{St}, v{H + i}")
    for R in range(2):
        B = 16 + 64 * R
        wave_allreduce(a, "v_add_f32", B + 48, B + 49)
    for R in range(2):
        B = 16 + 64 * R
        H, T, St = B + 16, B + 24, B + 48
        a(f"v_mul_f32 v{St}, 0x3b000000, v{St}")
        a(f"v_cvt_pk_bf16_f32 v{St + 1}, v{St}, v{St}")
        a(f"v_lshlrev_b32 v{St + 1}, 16, v{St + 1}")
        for i in range(8):
            a(f"v_sub_f32 v{T + i}, v{H + i}, v{St}")
        a(f"v_mul_f32 v{St + 2}, v{T}, v{T}")
        for i in range(1, 8):
            a(f"v_fmac_f32 v{St + 2}, v{T + i}, v{T + i}")
    for R in range(2):
        B = 16 + 64 * R
        wave_allreduce(a, "v_add_f32", B + 50, B + 51)
    a("s_waitcnt vmcnt(0)")
    for R in range(2):
        B = 16 + 64 * R
        H, T, St = B + 16, B + 24, B + 48
        v = St + 2
        a(f"v_mul_f32 v{v}, 0x3b000000, v{v}")
        a(f"v_cvt_pk_bf16_f32 v{v}, v{v}, v{v}")
        a(f"v_lshlrev_b32 v{v}, 16, v{v}")
        a(f"v_add_f32 v{v}, 0x3727c5ac, v{v}")
        a(f"v_cvt_pk_bf16_f32 v{v}, v{v}, v{v}")
        a(f"v_lshlrev_b32 v{v}, 16, v{v}")
        a(f"v_sqrt_f32 v{v}, v{v}")
        a("s_nop 0")
        a(f"v_cvt_pk_bf16_f32 v{v}, v{v}, v{v}")
        a(f"v_lshlrev_b32 v{v}, 16, v{v}")
        a(f"v_rcp_f32 v{v}, v{v}")
        a("s_nop 0")
        a(f"v_mov_b32 v{St + 4}, 0")
        for i in range(4):
            a(f"v_sub_f32 v{T}, v{H + 2 * i}, v{St + 1}")
            a(f"v_sub_f32 v{T + 1}, v{H + 2 * i + 1}, v{St + 1}")
            a(f"v_cvt_pk_bf16_f32 v{T + 2}, v{T}, v{T + 1}")
            unpack(T, T + 2)
            a(f"v_mul_f32 v{T}, v{T}, v{v}")
            a(f"v_mul_f32 v{T + 1}, v{T + 1}, v{v}")
            a(f"v_cvt_pk_bf16_f32 v{B + 44 + i}, v{T}, v{T + 1}")
            unpack(T, B + 44 + i)
            a(f"v_add_f32 v{T}, v{H + 2 * i}, v{T}")
            a(f"v_add_f32 v{T + 1}, v{H + 2 * i + 1}, v{T + 1}")
            a(f"v_cvt_pk_bf16_f32 v{B + 4 + i}, v{T}, v{T + 1}")
            a(f"v_dot2_f32_bf16 v{St + 4}, v{B + 44 + i}, v{8 + i}, v{St + 4}")
        a(f"buffer_store_dwordx4 v[{B + 4}:{B + 7}], v3, s[20:23], s34 offen offset:{1024 * R}")
    a("s_nop 2")
    for R in range(2):
        B = 16 + 64 * R
        wave_allreduce(a, "v_add_f32", B + 52, B + 53)
    for R in range(2):
        B = 16 + 64 * R
        v = B + 52
        a(f"v_cvt_pk_bf16_f32 v{v}, v{v}, v{v}")
        a(f"v_lshlrev_b32 v{v}, 16, v{v}")
        a(f"v_ashrrev_i32 v{v + 1}, 31, v{v}")
        a(f"v_or_b32 v{v + 1}, 0x80000000, v{v + 1}")
        a(f"v_xor_b32 v{v}, v{v}, v{v + 1}")
        a(f"v_and_b32 v{v}, s53, v{v}")
        a(f"s_sub_u32 s37, {2047 - R}, s33")
        a(f"v_or_b32 v{v}, s37, v{v}")
    a("v_max_u32 v4, v68, v132")
    a("s_lshl_b32 s37, s32, 2")
    a("v_mov_b32 v5, s37")
    a("ds_write_b32 v5, v4")
    a("s_waitcnt lgkmcnt(0)")
    a("s_barrier")
    a("v_mov_b32 v5, 0")
    a("ds_read_b128 v[12:15], v5")
    a("s_waitcnt lgkmcnt(0)")
    a("v_max_u32 v12, v12, v13")
    a("v_max_u32 v14, v14, v15")
    a("v_max_u32 v12, v12, v14")
    a("s_nop 0")
    a("v_readfirstlane_b32 s38, v12")
    a("v_readfirstlane_b32 s39, v68")
    a("v_readfirstlane_b32 s40, v132")
    a(f"s_lshl_b32 s41, s2, 11")
    a(f"s_add_u32 s41, s41, {WS_CROW}")
    a(f"s_lshl_b32 s42, s2, 2")
    a(f"s_add_u32 s42, s42, {WS_CAND}")
    a("v_mov_b32 v5, 0")
    for R in range(2):
        B = 16 + 64 * R
        a(f"s_cmp_lg_u32 s38, s{39 + R}")
        a(f"s_cbranch_scc1 {name}_nw{R}")
        a(f"buffer_store_dwordx4 v[{B + 40}:{B + 43}], v3, s[24:27], s41 offen")
        a(f"buffer_store_dwordx4 v[{B + 44}:{B + 47}], v3, s[24:27], s41 offen offset:1024")
        a(f"buffer_store_dword v12, v5, s[24:27], s42 offen")
        a.label(f"{name}_nw{R}")
    a.label(f"{name}_done")
    a("s_endpgm")
    return kernel_desc(name, 144, 64, 144)


NSL = 56


def emit_winner(a, vkey, t, ldsaddr_tmp, s_out):
    wave_allreduce(a, "v_max_u32", vkey, t)
    a("s_lshl_b32 s37, s32, 2")
    a(f"v_mov_b32 v{ldsaddr_tmp}, s37")
    a(f"ds_write_b32 v{ldsaddr_tmp}, v{vkey}")
    a("s_waitcnt lgkmcnt(0)")
    a("s_barrier")
    a(f"v_mov_b32 v{ldsaddr_tmp}, 0")
    a(f"ds_read_b64 v[{t}:{t + 1}], v{ldsaddr_tmp}")
    a(f"ds_read_b64 v[{t + 2}:{t + 3}], v{ldsaddr_tmp} offset:8")
    a("s_waitcnt lgkmcnt(0)")
    a(f"v_max_u32 v{t}, v{t}, v{t + 1}")
    a(f"v_max_u32 v{t + 2}, v{t + 2}, v{t + 3}")
    a(f"v_max_u32 v{t}, v{t}, v{t + 2}")
    a("s_nop 0")
    a(f"v_readfirstlane_b32 s{s_out}, v{t}")


def gen_k4(a, name):
    kernel_begin(a, name)
    a(f"s_cmp_ge_u32 s2, {NSL}")
    a(f"s_cbranch_scc1 {name}_done")
    a("s_load_dwordx4 s[4:7], s[0:1], 56")
    a("s_load_dwordx2 s[8:9], s[0:1], 72")
    a("s_load_dwordx2 s[10:11], s[0:1], 96")
    a("v_lshrrev_b32 v1, 6, v0")
    a("v_and_b32 v2, 63, v0")
    a("s_nop 0")
    a("v_readfirstlane_b32 s32, v1")
    a("v_lshrrev_b32 v3, 2, v0")
    a("v_and_b32 v4, 3, v0")
    a("v_lshlrev_b32 v5, 2, v0")
    a("s_mov_b32 s33, 28672")
    a("v_mul_lo_u32 v6, v3, s33")
    a("v_lshl_add_u32 v6, v4, 4, v6")
    a("v_lshlrev_b32 v7, 4, v2")
    a("s_waitcnt lgkmcnt(0)")
    srd(a, 12, 4, 5, D * F * 2)
    srd(a, 16, 6, 7, D * F * 2)
    srd(a, 20, 8, 9, D * F * 2)
    srd(a, 24, 10, 11, 10 << 20)
    a(f"s_mov_b32 s34, {WS_CAND}")
    a("buffer_load_dword v8, v5, s[24:27], s34 offen")
    a("s_lshl_b32 s34, s2, 6")
    G, U, W = 32, 64, 96
    for j in range(8):
        a(f"s_add_u32 s35, s34, {3584 * j}")
        a(f"buffer_load_dwordx4 v[{G + 4 * j}:{G + 4 * j + 3}], v6, s[12:15], s35 offen")
        a(f"buffer_load_dwordx4 v[{U + 4 * j}:{U + 4 * j + 3}], v6, s[16:19], s35 offen")
    a("s_lshl_b32 s35, s2, 5")
    a("s_lshl_b32 s36, s32, 3")
    a("s_add_u32 s35, s35, s36")
    a("s_lshl_b32 s35, s35, 10")
    for j in range(8):
        a(f"s_add_u32 s36, s35, {1024 * j}")
        a(f"buffer_load_dwordx4 v[{W + 4 * j}:{W + 4 * j + 3}], v7, s[20:23], s36 offen")
    a("s_waitcnt vmcnt(24)")
    emit_winner(a, 8, 12, 9, 38)
    a("s_and_b32 s39, s38, 0xffff")
    a("s_sub_u32 s39, 2047, s39")
    a("s_lshr_b32 s39, s39, 3")
    a("s_lshl_b32 s39, s39, 11")
    a(f"s_add_u32 s39, s39, {WS_CROW + 1024}")
    a("v_lshlrev_b32 v9, 4, v3")
    a("v_add_u32 v9, s39, v9")
    a("buffer_load_dwordx4 v[12:15], v9, s[24:27], 0 offen")
    a("s_mov_b32 s53, 0xffff0000")
    A = 128
    for i in range(16):
        a(f"v_mov_b32 v{A + i}, 0")
    a("s_waitcnt vmcnt(0)")
    X = 16
    for i in range(4):
        a(f"v_lshlrev_b32 v{X + 2 * i}, 16, v{12 + i}")
        a(f"v_and_b32 v{X + 2 * i + 1}, s53, v{12 + i}")
    for j in range(8):
        for (M, ao) in ((G, 0), (U, 8)):
            for i in range(4):
                t = 24 + 2 * (i & 1)
                a(f"v_lshlrev_b32 v{t}, 16, v{M + 4 * j + i}")
                a(f"v_and_b32 v{t + 1}, s53, v{M + 4 * j + i}")
                a(f"v_fmac_f32 v{A + ao + 2 * i}, v{X + j}, v{t}")
                a(f"v_fmac_f32 v{A + ao + 2 * i + 1}, v{X + j}, v{t + 1}")
    a("s_nop 1")
    for i in range(8):
        a(f"v_permlane32_swap_b32 v{A + i}, v{A + i + 8}")
    a("s_nop 1")
    for i in range(8):
        a(f"v_add_f32 v{A + i}, v{A + i}, v{A + i + 8}")
    a("s_nop 1")
    for i in range(4):
        a(f"v_permlane16_swap_b32 v{A + i}, v{A + i + 4}")
    a("s_nop 1")
    for i in range(4):
        a(f"v_add_f32 v{A + i}, v{A + i}, v{A + i + 4}")
    a("s_nop 1")
    for i in range(4):
        a(f"v_add_f32_dpp v{A + i}, v{A + i}, v{A + i} row_ror:4 {DPP}")
    a("s_nop 1")
    for i in range(4):
        a(f"v_add_f32_dpp v{A + i}, v{A + i}, v{A + i} row_ror:8 {DPP}")
    a("v_and_b32 v9, 3, v2")
    a("v_lshlrev_b32 v9, 5, v9")
    a("v_bfe_u32 v10, v2, 4, 1")
    a("v_lshl_add_u32 v9, v10, 4, v9")
    a("v_bfe_u32 v10, v2, 5, 1")
    a("v_lshl_add_u32 v9, v10, 7, v9")
    a("s_lshl_b32 s37, s32, 8")
    a("v_add_u32 v9, s37, v9")
    a(f"ds_write_b128 v9, v[{A}:{A + 3}] offset:64")
    a("s_waitcnt lgkmcnt(0)")
    a("s_barrier")
    a("v_and_b32 v9, 31, v2")
    a("v_lshlrev_b32 v9, 2, v9")
    for w in range(4):
        a(f"ds_read_b32 v{16 + w}, v9 offset:{64 + 256 * w}")
        a(f"ds_read_b32 v{20 + w}, v9 offset:{64 + 256 * w + 128}")
    a("s_waitcnt lgkmcnt(0)")
    a("v_add_f32 v16, v16, v17")
    a("v_add_f32 v18, v18, v19")
    a("v_add_f32 v20, v20, v21")
    a("v_add_f32 v22, v22, v23")
    a("v_add_f32 v16, v16, v18")
    a("v_add_f32 v20, v20, v22")
    a("v_cvt_pk_bf16_f32 v16, v16, v20")
    a("v_and_b32 v20, s53, v16")
    a("v_lshlrev_b32 v16, 16, v16")
    a("v_mul_f32 v17, 0xbfb8aa3b, v16")
    a("v_exp_f32 v17, v17")
    a("s_nop 0")
    a("v_add_f32 v17, 1.0, v17")
    a("v_rcp_f32 v17, v17")
    a("s_nop 0")
    a("v_mul_f32 v16, v16, v17")
    a("v_cvt_pk_bf16_f32 v16, v16, v16")
    a("v_lshlrev_b32 v16, 16, v16")
    a("v_mul_f32 v16, v16, v20")
    a("v_cvt_pk_bf16_f32 v16, v16, v16")
    a("v_lshlrev_b32 v16, 16, v16")
    a("s_lshl_b32 s37, s32, 3")
    for j in range(8):
        a(f"s_add_u32 s36, s37, {j}")
        a("s_nop 0")
        a(f"v_readlane_b32 s{40 + j}, v16, s36")
    for i in range(8):
        a(f"v_mov_b32 v{A + i}, 0")
    a("s_nop 1")
    for j in range(8):
        for i in range(4):
            t = 24 + 2 * (i & 1)
            a(f"v_lshlrev_b32 v{t}, 16, v{W + 4 * j + i}")
            a(f"v_and_b32 v{t + 1}, s53, v{W + 4 * j + i}")
            a(f"v_fmac_f32 v{A + 2 * i}, s{40 + j}, v{t}")
            a(f"v_fmac_f32 v{A + 2 * i + 1}, s{40 + j}, v{t + 1}")
    a("v_lshlrev_b32 v9, 5, v2")
    a("s_lshl_b32 s37, s32, 11")
    a("v_add_u32 v9, s37, v9")
    a(f"ds_write_b128 v9, v[{A}:{A + 3}] offset:2048")
    a(f"ds_write_b128 v9, v[{A + 4}:{A + 7}] offset:2064")
    a("s_waitcnt lgkmcnt(0)")
    a("s_barrier")
    a("v_lshlrev_b32 v9, 3, v0")
    for w in range(4):
        a(f"ds_read_b64 v[{16 + 2 * w}:{17 + 2 * w}], v9 offset:{2048 + 2048 * w}")
    a("s_waitcnt lgkmcnt(0)")
    a("v_add_f32 v16, v16, v18")
    a("v_add_f32 v17, v17, v19")
    a("v_add_f32 v20, v20, v22")
    a("v_add_f32 v21, v21, v23")
    a("v_add_f32 v16, v16, v20")
    a("v_add_f32 v17, v17, v21")
    a("s_lshl_b32 s37, s2, 11")
    a(f"s_add_u32 s37, s37, {WS_SLAB}")
    a("buffer_store_dwordx2 v[16:17], v9, s[24:27], s37 offen")
    a.label(f"{name}_done")
    a("s_endpgm")
    return kernel_desc(name, 144, 64, 144)


def gen_k5(a, name):
    kernel_begin(a, name)
    a("s_cmp_ge_u32 s2, 16")
    a(f"s_cbranch_scc1 {name}_done")
    a("s_load_dwordx2 s[8:9], s[0:1], 80")
    a("s_load_dwordx2 s[10:11], s[0:1], 96")
    a("v_lshrrev_b32 v1, 6, v0")
    a("v_and_b32 v2, 63, v0")
    a("s_nop 0")
    a("v_readfirstlane_b32 s32, v1")
    a("v_lshlrev_b32 v5, 2, v0")
    a("v_lshrrev_b32 v3, 3, v0")
    a("v_and_b32 v4, 7, v0")
    a("v_lshlrev_b32 v6, 11, v3")
    a("v_lshl_add_u32 v6, v4, 4, v6")
    a("s_waitcnt lgkmcnt(0)")
    srd(a, 20, 8, 9, S * D * 2)
    srd(a, 24, 10, 11, 10 << 20)
    srd(a, 28, 10, 11, WS_SLAB + NSL * 2048)
    a(f"s_mov_b32 s34, {WS_CAND}")
    a("buffer_load_dword v8, v5, s[24:27], s34 offen")
    a("s_lshl_b32 s34, s2, 7")
    a(f"s_add_u32 s34, s34, {WS_SLAB}")
    a("s_add_u32 s35, s34, 65536")
    a("buffer_load_dwordx4 v[16:19], v6, s[28:31], s34 offen")
    a("buffer_load_dwordx4 v[20:23], v6, s[28:31], s35 offen")
    a("s_waitcnt vmcnt(2)")
    emit_winner(a, 8, 12, 9, 38)
    a("s_and_b32 s39, s38, 0xffff")
    a("s_sub_u32 s39, 2047, s39")
    a("s_lshr_b32 s40, s39, 3")
    a("s_lshl_b32 s40, s40, 11")
    a(f"s_add_u32 s40, s40, {WS_CROW}")
    a("s_lshl_b32 s41, s2, 6")
    a("s_add_u32 s40, s40, s41")
    a("v_lshlrev_b32 v9, 3, v4")
    a("v_add_u32 v9, s40, v9")
    a("buffer_load_dwordx2 v[24:25], v9, s[24:27], 0 offen")
    a("buffer_load_dwordx2 v[26:27], v9, s[24:27], 0 offen offset:1024")
    a("s_waitcnt vmcnt(2)")
    for i in range(4):
        a(f"v_add_f32 v{16 + i}, v{16 + i}, v{20 + i}")
    a("s_nop 1")
    for i in range(4):
        a(f"v_add_f32_dpp v{16 + i}, v{16 + i}, v{16 + i} row_ror:8 {DPP}")
    for i in range(4):
        a(f"v_mov_b32 v{20 + i}, v{16 + i}")
    a("s_nop 1")
    for i in range(4):
        a(f"v_permlane16_swap_b32 v{16 + i}, v{20 + i}")
    a("s_nop 1")
    for i in range(4):
        a(f"v_add_f32 v{16 + i}, v{16 + i}, v{20 + i}")
    for i in range(4):
        a(f"v_mov_b32 v{20 + i}, v{16 + i}")
    a("s_nop 1")
    for i in range(4):
        a(f"v_permlane32_swap_b32 v{16 + i}, v{20 + i}")
    a("s_nop 1")
    for i in range(4):
        a(f"v_add_f32 v{16 + i}, v{16 + i}, v{20 + i}")
    a("v_lshlrev_b32 v10, 4, v4")
    a("s_lshl_b32 s37, s32, 7")
    a("v_add_u32 v11, s37, v10")
    a("ds_write_b128 v11, v[16:19] offset:64")
    a("s_waitcnt lgkmcnt(0)")
    a("s_barrier")
    for w in range(4):
        a(f"ds_read_b128 v[{32 + 4 * w}:{35 + 4 * w}], v10 offset:{64 + 128 * w}")
    a("s_and_b32 s42, s38, 0xffff0000")
    a("s_xor_b32 s43, s42, 0x80000000")
    a("s_not_b32 s44, s42")
    a("s_and_b32 s44, s44, 0xffff0000")
    a("s_cmp_ge_u32 s42, 0x80000000")
    a("s_cselect_b32 s42, s43, s44")
    a("v_mov_b32 v12, s42")
    a("v_mul_f32 v13, 0xbfb8aa3b, v12")
    a("v_exp_f32 v13, v13")
    a("s_nop 0")
    a("v_add_f32 v13, 1.0, v13")
    a("v_rcp_f32 v13, v13")
    a("s_nop 0")
    a("v_cvt_pk_bf16_f32 v13, v13, v13")
    a("v_lshlrev_b32 v13, 16, v13")
    a("s_mov_b32 s53, 0xffff0000")
    a("s_waitcnt vmcnt(0) lgkmcnt(0)")
    for i in range(4):
        a(f"v_add_f32 v{32 + i}, v{32 + i}, v{36 + i}")
        a(f"v_add_f32 v{40 + i}, v{40 + i}, v{44 + i}")
        a(f"v_add_f32 v{32 + i}, v{32 + i}, v{40 + i}")
    for i in range(2):
        y0, y1 = 32 + 2 * i, 33 + 2 * i
        a(f"v_cvt_pk_bf16_f32 v48, v{y0}, v{y1}")
        a(f"v_lshlrev_b32 v{y0}, 16, v48")
        a(f"v_and_b32 v{y1}, s53, v48")
        a(f"v_mul_f32 v{y0}, v{y0}, v13")
        a(f"v_mul_f32 v{y1}, v{y1}, v13")
        a(f"v_cvt_pk_bf16_f32 v48, v{y0}, v{y1}")
        a(f"v_lshlrev_b32 v{y0}, 16, v48")
        a(f"v_and_b32 v{y1}, s53, v48")
        a(f"v_lshlrev_b32 v49, 16, v{26 + i}")
        a(f"v_and_b32 v50, s53, v{26 + i}")
        a(f"v_add_f32 v{y0}, v49, v{y0}")
        a(f"v_add_f32 v{y1}, v50, v{y1}")
        a(f"v_cvt_pk_bf16_f32 v48, v{y0}, v{y1}")
        a(f"v_lshlrev_b32 v{y0}, 16, v48")
        a(f"v_and_b32 v{y1}, s53, v48")
        a(f"v_lshlrev_b32 v49, 16, v{24 + i}")
        a(f"v_and_b32 v50, s53, v{24 + i}")
        a(f"v_add_f32 v{y0}, v49, v{y0}")
        a(f"v_add_f32 v{y1}, v50, v{y1}")
        a(f"v_cvt_pk_bf16_f32 v{52 + i}, v{y0}, v{y1}")
    a("s_lshl_b32 s39, s39, 10")
    a("s_add_u32 s39, s39, s41")
    a("v_lshlrev_b32 v9, 3, v4")
    a("v_add_u32 v9, s39, v9")
    a("v_cmp_gt_u32 vcc, 8, v0")
    a("s_and_saveexec_b64 s[46:47], vcc")
    a(f"s_cbranch_execz {name}_done")
    a("buffer_store_dwordx2 v[52:53], v9, s[20:23], 0 offen")
    a.label(f"{name}_done")
    a("s_endpgm")
    return kernel_desc(name, 64, 64, 64)


HEADER = open(__file__.rsplit("/", 1)[0] + "/cdna_kernels/" + NAME + ".s.ref").read().split("; Override launch")[0]


def build(path, **opt):
    a = Asm()
    only = opt.get("only", 0)
    launches = [
        ("k1_kernel", 256, 512, 163840),
        ("k2_kernel", 256, 256, 4 * opt.get("NS", 9) * 4096),
        ("k3_kernel", 256, 256, 64),
        ("k4_kernel", NSL, 256, 10240),
        ("k5_kernel", 16, 256, 1024),
    ]
    if only:
        launches = [launches[int(ch) - 1] for ch in str(only)]
    hdr = HEADER
    for (k, g, b, l) in launches:
        hdr += f"; @launch kernel={k} grid=({g},1,1) block=({b},1,1) lds={l}\n"
    a.raw('.amdgcn_target "amdgcn-amd-amdhsa--gfx950"')
    descs = []
    descs.append(gen_k1(a, "k1_kernel", prefetch=opt.get("prefetch", True)))
    descs.append(gen_k2(a, "k2_kernel", NS=opt.get("NS", 9), ED=opt.get("ED", 3), nomfma=opt.get("nomfma", 0),
                        noload=opt.get("noload", 0), spread=opt.get("spread", 0)))
    descs.append(gen_k3(a, "k3_kernel"))
    descs.append(gen_k4(a, "k4_kernel"))
    descs.append(gen_k5(a, "k5_kernel"))
    open(path, "w").write(hdr + a.text() + "".join(descs))


if __name__ == "__main__":
    out = sys.argv[1] if len(sys.argv) > 1 else "cdna_kernels/" + NAME + ".s"
    opt = {}
    for kv in sys.argv[2:]:
        k, v = kv.split("=")
        opt[k] = int(v)
    build(out, **opt)
```

```python
import sys

NAME = "sequential_preLN__spectral_fnet__moe_arch_mod__prompt"

WS_AT = 0
WS_Y = 4 << 20
WS_CAND = 12 << 20
WS_CROW = (12 << 20) + 4096
WS_SLAB = (13 << 20)
WS_SIZE = 268435456

S, D, F = 2048, 512, 1792


class Asm:
    def __init__(self):
        self.lines = []

    def __call__(self, s):
        self.lines.append("    " + s)

    def label(self, l):
        self.lines.append(l + ":")

    def raw(self, s):
        self.lines.append(s)

    def text(self):
        return "\n".join(self.lines) + "\n"


class VM:
    def __init__(self, a):
        self.a = a
        self.q = []

    def issue(self, tag):
        self.q.append(tag)

    def wait(self, tag):
        idx = max(i for i, t in enumerate(self.q) if t == tag) if tag in self.q else None
        if idx is None:
            return
        n = len(self.q) - 1 - idx
        assert n <= 63
        self.a(f"s_waitcnt vmcnt({n})")
        self.q = self.q[idx + 1:]

    def wait_all(self):
        self.a("s_waitcnt vmcnt(0)")
        self.q = []


def srd(a, d, lo, hi, nbytes):
    a(f"s_mov_b32 s{d}, s{lo}")
    a(f"s_and_b32 s{d+1}, s{hi}, 0xffff")
    a(f"s_mov_b32 s{d+2}, {nbytes}")
    a(f"s_mov_b32 s{d+3}, 0x00020000")


def kernel_begin(a, name):
    a.raw(".text")
    a.raw(f".globl {name}")
    a.raw(".p2align 8")
    a.raw(f".type {name},@function")
    a.label(name)


def kernel_desc(name, vgpr, sgpr, accum):
    return f""".section .rodata,"a"
.p2align 6
.amdhsa_kernel {name}
  .amdhsa_next_free_vgpr {vgpr}
  .amdhsa_next_free_sgpr {102 if STAMP else sgpr}
  .amdhsa_accum_offset {accum}
  .amdhsa_group_segment_fixed_size 0
  .amdhsa_kernarg_size 104
  .amdhsa_user_sgpr_count 2
  .amdhsa_user_sgpr_kernarg_segment_ptr 1
  .amdhsa_system_sgpr_workgroup_id_x 1
  .amdhsa_float_denorm_mode_32 3
.end_amdhsa_kernel
"""


STAMP = 0
WS_STAMP = 16 << 20
_stamp_kid = {}


def stamp(a, i):
    if STAMP == 1:
        a(f"s_memrealtime s[{70 + 2 * i}:{71 + 2 * i}]")
    elif STAMP == 2:
        a(f"s_memtime s[{70 + 2 * i}:{71 + 2 * i}]")


def stamp_flush(a, kid, n, ws_lo, ws_hi, wave_sgpr="s32"):
    if not STAMP:
        return
    a("s_waitcnt vmcnt(0) lgkmcnt(0)")
    stamp(a, n)
    a(f"s_mov_b32 s92, s{ws_lo}")
    a(f"s_and_b32 s93, s{ws_hi}, 0xffff")
    a(f"s_mov_b32 s94, {WS_SIZE}")
    a("s_mov_b32 s95, 0x00020000")
    a(f"s_add_u32 s96, s2, {kid * 512}")
    a("s_lshl_b32 s96, s96, 4")
    a(f"s_add_u32 s96, s96, {wave_sgpr}")
    a("s_lshl_b32 s96, s96, 7")
    a(f"s_add_u32 s96, s96, {WS_STAMP}")
    a("s_waitcnt lgkmcnt(0)")
    a("v_mov_b32 v0, 0")
    for i in range(n + 1):
        a(f"v_mov_b32 v2, s{70 + 2 * i}")
        a(f"v_mov_b32 v3, s{71 + 2 * i}")
        a(f"buffer_store_dwordx2 v[2:3], v0, s[92:95], s96 offen offset:{8 * i}")
        a("s_nop 1")


DPP = "row_mask:0xf bank_mask:0xf"


def emit_perm32(a, dst, src, t):
    a(f"v_and_b32 v{dst}, 3, v{src}")
    a(f"v_lshrrev_b32 v{t}, 3, v{src}")
    a(f"v_lshl_or_b32 v{dst}, v{t}, 2, v{dst}")
    a(f"v_bfe_u32 v{t}, v{src}, 2, 1")
    a(f"v_lshl_or_b32 v{dst}, v{t}, 4, v{dst}")


def wave_allreduce(a, op, v, t):
    a("s_nop 1")
    a(f"{op}_dpp v{v}, v{v}, v{v} quad_perm:[1,0,3,2] {DPP}")
    a("s_nop 1")
    a(f"{op}_dpp v{v}, v{v}, v{v} quad_perm:[2,3,0,1] {DPP}")
    a("s_nop 1")
    a(f"{op}_dpp v{v}, v{v}, v{v} row_half_mirror {DPP}")
    a("s_nop 1")
    a(f"{op}_dpp v{v}, v{v}, v{v} row_mirror {DPP}")
    a(f"v_mov_b32 v{t}, v{v}")
    a("s_nop 1")
    a(f"v_permlane16_swap_b32 v{v}, v{t}")
    a("s_nop 1")
    a(f"{op} v{v}, v{v}, v{t}")
    a(f"v_mov_b32 v{t}, v{v}")
    a("s_nop 1")
    a(f"v_permlane32_swap_b32 v{v}, v{t}")
    a("s_nop 1")
    a(f"{op} v{v}, v{v}, v{t}")


def gen_k1(a, name, prefetch=True):
    kernel_begin(a, name)
    a("s_cmp_ge_u32 s2, 256")
    a(f"s_cbranch_scc1 {name}_done")
    stamp(a, 0)
    a("s_load_dwordx2 s[4:5], s[0:1], 0")
    a("s_load_dwordx4 s[8:11], s[0:1], 24")
    a("s_load_dwordx2 s[6:7], s[0:1], 96")
    a("s_load_dwordx4 s[36:39], s[0:1], 8")
    a("s_load_dwordx4 s[40:43], s[0:1], 56")
    a("s_load_dwordx2 s[44:45], s[0:1], 72")
    a("s_and_b32 s3, s2, 7")
    a("s_lshr_b32 s28, s2, 3")
    a("s_and_b32 s29, s28, 3")
    a("s_lshl_b32 s30, s3, 2")
    a("s_add_u32 s30, s30, s29")
    a("s_lshr_b32 s31, s28, 2")
    a("v_lshrrev_b32 v1, 6, v0")
    a("v_and_b32 v2, 63, v0")
    a("s_nop 0")
    a("v_readfirstlane_b32 s32, v1")
    a("v_lshrrev_b32 v3, 3, v2")
    a("v_and_b32 v4, 7, v2")
    a("s_waitcnt lgkmcnt(0)")
    stamp(a, 1)
    srd(a, 12, 4, 5, S * D * 2)
    a("s_cmp_ge_u32 s31, 4")
    a("s_cselect_b32 s8, s10, s8")
    a("s_cselect_b32 s9, s11, s9")
    srd(a, 16, 8, 9, D * D * 2)
    srd(a, 20, 6, 7, 4 << 20)
    a("s_lshl_b32 s33, s30, 6")
    a("s_lshl_b32 s34, s32, 3")
    a("s_add_u32 s33, s33, s34")
    a("s_lshl_b32 s33, s33, 10")
    a("v_lshlrev_b32 v5, 10, v3")
    a("v_lshl_add_u32 v5, v4, 4, v5")
    XR = 32
    for j in range(8):
        a(f"buffer_load_dwordx4 v[{XR+4*j}:{XR+4*j+3}], v5, s[12:15], s33 offen offset:{128*j}")
    a("v_lshrrev_b32 v6, 4, v2")
    a("v_xor_b32 v6, v6, v4")
    a("v_xor_b32 v7, 4, v6")
    a("v_lshlrev_b32 v8, 10, v3")
    a("v_lshl_add_u32 v6, v6, 4, v8")
    a("v_lshl_add_u32 v7, v7, 4, v8")
    a("s_cmp_ge_u32 s32, 4")
    a(f"s_cbranch_scc1 {name}_helper")
    a("s_and_b32 s35, s31, 3")
    a("s_lshl_b32 s35, s35, 7")
    a("s_lshl_b32 s34, s32, 5")
    a("s_add_u32 s35, s35, s34")
    a("s_lshl_b32 s35, s35, 10")
    a("s_mul_i32 s46, s32, 24576")
    a("s_add_u32 s46, s46, 65536")

    def dma_slot(kk):
        for i in range(4):
            a(f"s_add_u32 m0, s46, {(kk % 6) * 4096 + i * 1024}")
            a(f"s_add_u32 s47, s35, {i * 8192 + kk * 128}")
            a(f"buffer_load_dwordx4 v{6 + (i & 1)}, s[16:19], s47 offen lds")

    for kk in range(6):
        dma_slot(kk)
    a("s_waitcnt vmcnt(24)")
    a(f"s_branch {name}_ln")
    a.label(f"{name}_helper")
    npf = 0
    if prefetch:
        a("s_and_b32 s48, s3, 1")
        a("s_cmp_eq_u32 s48, 1")
        a("s_cselect_b32 s36, s38, s36")
        a("s_cselect_b32 s37, s39, s37")
        srd(a, 24, 36, 37, S * S * 2)
        a("s_lshr_b32 s48, s3, 2")
        a("s_lshl_b32 s48, s48, 10")
        a("s_lshl_b32 s49, s28, 5")
        a("s_add_u32 s48, s48, s49")
        a("s_sub_u32 s49, s32, 4")
        a("s_lshl_b32 s49, s49, 3")
        a("s_add_u32 s48, s48, s49")
        a("s_lshl_b32 s48, s48, 12")
        a("s_bfe_u32 s49, s3, 0x10001")
        a("s_lshl_b32 s49, s49, 11")
        a("s_add_u32 s48, s48, s49")
        a("v_lshrrev_b32 v9, 5, v2")
        a("v_lshlrev_b32 v9, 12, v9")
        a("v_and_b32 v129, 31, v2")
        a("v_lshl_add_u32 v9, v129, 6, v9")
        a("s_waitcnt vmcnt(0)")
        for i in range(4):
            a(f"s_add_u32 s49, s48, {i * 8192}")
            a(f"buffer_load_dword v{130 + i}, v9, s[24:27], s49 offen")
            npf += 1
    a(f"s_waitcnt vmcnt({npf})")
    a.label(f"{name}_ln")
    stamp(a, 2)
    a("s_mov_b32 s50, 0x3f803f80")
    a("s_mov_b32 s51, 0x00003f80")
    a("s_mov_b32 s52, 0x3f800000")
    a("s_mov_b32 s53, 0xffff0000")
    a("v_mov_b32 v16, 0")
    a("v_mov_b32 v17, 0")
    for j in range(32):
        a(f"v_dot2_f32_bf16 v{16 + (j & 1)}, v{XR + j}, s50, v{16 + (j & 1)}")
    a("s_nop 2")
    a("v_add_f32 v16, v16, v17")

    def red8(v):
        a("s_nop 1")
        a(f"v_add_f32_dpp v{v}, v{v}, v{v} quad_perm:[1,0,3,2] {DPP}")
        a("s_nop 1")
        a(f"v_add_f32_dpp v{v}, v{v}, v{v} quad_perm:[2,3,0,1] {DPP}")
        a("s_nop 1")
        a(f"v_add_f32_dpp v{v}, v{v}, v{v} row_half_mirror {DPP}")

    red8(16)
    a("v_mul_f32 v16, 0x3b000000, v16")
    a("v_cvt_pk_bf16_f32 v17, v16, v16")
    a("v_lshlrev_b32 v17, 16, v17")
    a("v_sub_f32 v18, 0, v17")
    a("v_sub_f32 v19, v16, v17")
    a("v_mov_b32 v20, 0")
    a("v_mov_b32 v21, 0")
    for j in range(32):
        t = 22 + 2 * (j & 3)
        a(f"v_dot2_f32_bf16 v{t}, v{XR + j}, s51, v18")
        a(f"v_dot2_f32_bf16 v{t + 1}, v{XR + j}, s52, v18")
        if j >= 1:
            tp = 22 + 2 * ((j - 1) & 3)
            a(f"v_fmac_f32 v20, v{tp}, v{tp}")
            a(f"v_fmac_f32 v21, v{tp + 1}, v{tp + 1}")
            a(f"v_cvt_pk_bf16_f32 v{XR + j - 1}, v{tp}, v{tp + 1}")
    tp = 22 + 2 * (31 & 3)
    a("s_nop 2")
    a(f"v_fmac_f32 v20, v{tp}, v{tp}")
    a(f"v_fmac_f32 v21, v{tp + 1}, v{tp + 1}")
    a(f"v_cvt_pk_bf16_f32 v{XR + 31}, v{tp}, v{tp + 1}")
    a("v_add_f32 v20, v20, v21")
    red8(20)
    a("v_mul_f32 v20, 0x3b000000, v20")
    a("v_fma_f32 v20, -v19, v19, v20")
    a("v_max_f32 v20, 0, v20")
    a("v_cvt_pk_bf16_f32 v20, v20, v20")
    a("v_lshlrev_b32 v20, 16, v20")
    a("v_add_f32 v20, 0x3727c5ac, v20")
    a("v_cvt_pk_bf16_f32 v20, v20, v20")
    a("v_lshlrev_b32 v20, 16, v20")
    a("v_sqrt_f32 v20, v20")
    a("s_nop 0")
    a("v_cvt_pk_bf16_f32 v20, v20, v20")
    a("v_lshlrev_b32 v20, 16, v20")
    a("v_rcp_f32 v20, v20")
    a("s_nop 0")
    for j in range(32):
        t = 22 + 2 * (j & 3)
        a(f"v_lshlrev_b32 v{t}, 16, v{XR + j}")
        a(f"v_and_b32 v{t + 1}, s53, v{XR + j}")
        a(f"v_mul_f32 v{t}, v{t}, v20")
        a(f"v_mul_f32 v{t + 1}, v{t + 1}, v20")
        a(f"v_cvt_pk_bf16_f32 v{XR + j}, v{t}, v{t + 1}")
    a("s_lshl_b32 s34, s32, 3")
    a("v_add_u32 v9, s34, v3")
    a("v_bfe_u32 v10, v9, 1, 3")
    a("v_xor_b32 v10, v10, v4")
    a("v_lshlrev_b32 v10, 4, v10")
    a("v_lshl_add_u32 v10, v9, 7, v10")
    for j in range(8):
        a(f"ds_write_b128 v10, v[{XR + 4 * j}:{XR + 4 * j + 3}] offset:{8192 * j}")
    stamp(a, 3)
    a("s_waitcnt lgkmcnt(0)")
    a("s_barrier")
    stamp(a, 4)
    a("s_cmp_ge_u32 s32, 4")
    a(f"s_cbranch_scc1 {name}_fin")
    a("v_and_b32 v9, 31, v2")
    emit_perm32(a, 10, 9, 11)
    a("v_bfe_u32 v11, v10, 1, 3")
    a("v_lshrrev_b32 v12, 5, v2")
    a("v_xor_b32 v11, v11, v12")
    a("v_lshlrev_b32 v11, 4, v11")
    a("v_lshl_add_u32 v11, v10, 7, v11")
    for c in range(4):
        a(f"v_xor_b32 v{12 + c}, {c * 32}, v11")
        a(f"v_add_u32 v{16 + c}, s46, v{12 + c}")
    ACC = 64
    FR = [96, 108, 120]
    for i in range(32):
        a(f"v_mov_b32 v{ACC + i}, 0")
    units = [(kk, c) for kk in range(8) for c in range(4)]
    vq = [kk for kk in range(6) for _ in range(4)]

    def wait_slot(kk):
        nonlocal vq
        if kk in vq:
            idx = max(i for i, t in enumerate(vq) if t == kk)
            a(f"s_waitcnt vmcnt({len(vq) - 1 - idx})")
            vq = vq[idx + 1:]

    def reads(n):
        kk, c = units[n]
        f = FR[n % 3]
        if c == 0:
            wait_slot(kk)
        a(f"ds_read_b128 v[{f}:{f + 3}], v{16 + c} offset:{(kk % 6) * 4096}")
        a(f"ds_read_b128 v[{f + 4}:{f + 7}], v{12 + c} offset:{kk * 8192}")
        a(f"ds_read_b128 v[{f + 8}:{f + 11}], v{12 + c} offset:{kk * 8192 + 4096}")

    reads(0)
    reads(1)
    for n in range(len(units)):
        kk, c = units[n]
        if n + 2 < len(units):
            reads(n + 2)
            a("s_waitcnt lgkmcnt(6)")
        elif n + 1 < len(units):
            a("s_waitcnt lgkmcnt(3)")
        else:
            a("s_waitcnt lgkmcnt(0)")
        f = FR[n % 3]
        a(f"v_mfma_f32_32x32x16_bf16 v[{ACC}:{ACC + 15}], v[{f + 4}:{f + 7}], v[{f}:{f + 3}], v[{ACC}:{ACC + 15}]")
        a(f"v_mfma_f32_32x32x16_bf16 v[{ACC + 16}:{ACC + 31}], v[{f + 8}:{f + 11}], v[{f}:{f + 3}], v[{ACC + 16}:{ACC + 31}]")
        if c == 3 and kk + 6 < 8:
            dma_slot(kk + 6)
            vq += [kk + 6] * 4
    stamp(a, 5)
    a("s_lshl_b32 s34, s31, 2")
    a("s_add_u32 s34, s34, s32")
    a("s_lshl_b32 s34, s34, 6")
    a("s_lshl_b32 s33, s30, 1")
    a("s_add_u32 s34, s34, s33")
    a("s_lshl_b32 s34, s34, 11")
    a("v_lshlrev_b32 v9, 4, v2")
    a("s_nop 7")
    a("s_nop 3")
    for sh in range(2):
        for i in range(8):
            a(f"v_cvt_pk_bf16_f32 v{32 + 8 * sh + i}, v{ACC + 16 * sh + 2 * i}, v{ACC + 16 * sh + 2 * i + 1}")
    for sh in range(2):
        for u in range(2):
            r = 32 + 8 * sh + 4 * u
            a(f"buffer_store_dwordx4 v[{r}:{r + 3}], v9, s[20:23], s34 offen offset:{sh * 2048 + u * 1024}")
    a.label(f"{name}_fin")
    stamp_flush(a, 1, 6, 6, 7)
    a.label(f"{name}_done")
    a("s_endpgm")
    return kernel_desc(name, 136, 64, 136)


def gen_k2(a, name, NS=9, ED=3, nomfma=0, noload=0, spread=0, noC=0, noE=0):
    kernel_begin(a, name)
    a("s_cmp_ge_u32 s2, 256")
    a(f"s_cbranch_scc1 {name}_done")
    stamp(a, 0)
    a("s_load_dwordx4 s[4:7], s[0:1], 8")
    a("s_load_dwordx2 s[8:9], s[0:1], 96")
    a("s_and_b32 s3, s2, 7")
    a("s_lshr_b32 s28, s2, 3")
    a("s_and_b32 s29, s3, 1")
    a("s_lshr_b32 s30, s3, 1")
    a("s_lshl_b32 s30, s30, 2")
    a("s_and_b32 s31, s28, 3")
    a("s_add_u32 s30, s30, s31")
    a("s_lshr_b32 s31, s28, 2")
    a("v_lshrrev_b32 v200, 6, v0")
    a("v_and_b32 v201, 63, v0")
    a("s_nop 0")
    a("v_readfirstlane_b32 s32, v200")
    a("v_lshrrev_b32 v202, 3, v201")
    a("v_and_b32 v203, 7, v201")
    a("v_lshrrev_b32 v204, 4, v201")
    a("v_xor_b32 v204, v204, v203")
    a("v_xor_b32 v205, 4, v204")
    a("v_lshlrev_b32 v206, 12, v202")
    a("v_lshl_add_u32 v204, v204, 4, v206")
    a("v_lshl_add_u32 v205, v205, 4, v206")
    a("v_lshlrev_b32 v206, 4, v201")
    a("s_waitcnt lgkmcnt(0)")
    stamp(a, 1)
    a("s_cmp_eq_u32 s29, 1")
    a("s_cselect_b32 s4, s6, s4")
    a("s_cselect_b32 s5, s7, s5")
    srd(a, 12, 4, 5, S * S * 2)
    srd(a, 16, 8, 9, 8 << 20)
    a("s_lshl_b32 s35, s30, 19")
    a("s_lshl_b32 s34, s32, 10")
    a("s_add_u32 s35, s35, s34")
    for j in range(4):
        a(f"s_add_u32 s34, s32, {j}")
        a("s_and_b32 s34, s34, 3")
        a(f"s_mov_b32 s{52 + j}, s34")
        a("s_lshl_b32 s34, s34, 17")
        a(f"s_add_u32 s{40 + j}, s35, s34")
    a("s_lshl_b32 s36, s29, 4")
    a("s_lshl_b32 s34, s31, 1")
    a("s_add_u32 s36, s36, s34")
    a("s_lshl_b32 s36, s36, 6")
    a("s_lshl_b32 s34, s32, 4")
    a("s_add_u32 s36, s36, s34")
    a("s_lshl_b32 s36, s36, 11")
    a("s_add_u32 s37, s36, 131072")
    RING = NS * 4096
    a(f"s_mul_i32 s46, s32, {RING}")
    vm = VM(a)

    pend = []

    def dma_one(n, i):
        kk, j = n // 4, n % 4
        if noload or noC:
            return
        a(f"s_add_u32 m0, s46, {(n % NS) * 4096 + i * 1024}")
        a(f"s_add_u32 s47, s{40 + j}, {(i * 8) * 4096 + kk * 128}")
        a(f"buffer_load_dwordx4 v{204 + (i & 1)}, s[12:15], s47 offen lds")
        vm.issue(("C", n))

    def e_one(kk, et2, c):
        if noload or noE:
            return
        st = kk % ED
        r = st * 32 + et2 * 16 + c * 4
        a(f"s_add_u32 s48, s{36 + et2}, {kk * 4096}")
        a(f"buffer_load_dwordx4 a[{r}:{r + 3}], v206, s[16:19], s48 offen offset:{c * 1024}")
        vm.issue(("E", kk))

    def dma_slot(n, defer=False):
        for i in range(4):
            if defer:
                pend.append(lambda n=n, i=i: dma_one(n, i))
            else:
                dma_one(n, i)

    def e_loads(kk, defer=False):
        for et2 in range(2):
            for c in range(4):
                if defer:
                    pend.append(lambda kk=kk, et2=et2, c=c: e_one(kk, et2, c))
                else:
                    e_one(kk, et2, c)

    def flush_pend(pred=None, maxn=None):
        cnt = 0
        while pend and (maxn is None or cnt < maxn):
            pend.pop(0)()
            cnt += 1

    nslot_issued = 0
    for kk in range(ED):
        e_loads(kk)
        for tt in range(4):
            if nslot_issued < NS:
                dma_slot(nslot_issued)
                nslot_issued += 1
    while nslot_issued < NS:
        dma_slot(nslot_issued)
        nslot_issued += 1
    stamp(a, 2)
    a("v_and_b32 v207, 31, v201")
    a("v_bfe_u32 v208, v207, 1, 3")
    a("v_lshrrev_b32 v209, 5, v201")
    a("v_lshlrev_b32 v209, 1, v209")
    a("v_xor_b32 v208, v208, v209")
    a("v_lshlrev_b32 v208, 4, v208")
    a("v_lshl_add_u32 v208, v207, 7, v208")
    for c in range(4):
        x = ((c >> 1) * 4 + (c & 1)) << 4
        a(f"v_xor_b32 v{210 + c}, {x}, v208")
        a(f"v_add_u32 v{210 + c}, s46, v{210 + c}")
    for i in range(128):
        a(f"v_mov_b32 v{i}, 0")
    def pend_has(tag):
        return any(getattr(p, '__defaults__', (None,))[0] == tag[1] and len(p.__defaults__) == (2 if tag[0] == 'C' else 3) for p in pend)

    units = [(n, c) for n in range(32) for c in range(4)]
    NF = 6
    LOOKAHEAD = 4

    def reads(un):
        n, c = units[un]
        if c == 0:
            assert noload or noC or vm.q.count(("C", n)) == 4 or ("C", n) not in vm.q and n < nslot_issued and not pend_has(("C", n))
            vm.wait(("C", n))
        f = 128 + 4 * (un % NF)
        a(f"ds_read_b128 v[{f}:{f + 3}], v{210 + c} offset:{(n % NS) * 4096}")

    for un in range(LOOKAHEAD):
        reads(un)
    for un in range(len(units)):
        n, c = units[un]
        kk, j = n // 4, n % 4
        if un + LOOKAHEAD < len(units):
            reads(un + LOOKAHEAD)
            a(f"s_waitcnt lgkmcnt({LOOKAHEAD})")
        else:
            a(f"s_waitcnt lgkmcnt({len(units) - 1 - un})")
        if j == 0 and c == 0:
            assert not pend_has(("E", kk))
            vm.wait(("E", kk))
        f = 128 + 4 * (un % NF)
        st = kk % ED
        if un == 0:
            stamp(a, 3)
        if un == 64:
            stamp(a, 4)
        for et2 in range(2):
            acc = (j * 2 + et2) * 16
            r = st * 32 + et2 * 16 + c * 4
            if not nomfma:
                a(f"v_mfma_f32_32x32x16_bf16 v[{acc}:{acc + 15}], a[{r}:{r + 3}], v[{f}:{f + 3}], v[{acc}:{acc + 15}]")
            if spread:
                flush_pend(maxn=1)
        if c == 3:
            if nslot_issued < 32:
                dma_slot(nslot_issued, defer=bool(spread))
                nslot_issued += 1
            if j == 3 and kk + ED < 8:
                e_loads(kk + ED, defer=bool(spread))
    stamp(a, 5)
    a("s_barrier")
    stamp(a, 6)
    for j in range(1, 4):
        a(f"s_mul_i32 s34, s{52 + j}, 24576")
        a(f"s_add_u32 s34, s34, {(j - 1) * 8192}")
        a(f"v_add_u32 v{214 + j}, s34, v206")
    a("s_mul_i32 s34, s32, 24576")
    a("v_add_u32 v214, s34, v206")
    a("s_nop 7")
    for j in range(1, 4):
        for q in range(8):
            r = j * 32 + 4 * q
            a(f"ds_write_b128 v{214 + j}, v[{r}:{r + 3}] offset:{q * 1024}")
    a("s_waitcnt lgkmcnt(0)")
    a("s_barrier")
    stamp(a, 7)
    for j in range(1, 4):
        for q in range(8):
            r = j * 32 + 4 * q
            a(f"ds_read_b128 v[{r}:{r + 3}], v214 offset:{(j - 1) * 8192 + q * 1024}")
    a("s_lshl_b32 s34, s30, 7")
    a("s_lshl_b32 s33, s32, 5")
    a("s_add_u32 s34, s34, s33")
    a("s_lshl_b32 s34, s34, 10")
    a("s_lshl_b32 s33, s31, 7")
    a("s_add_u32 s34, s34, s33")
    a("s_lshl_b32 s33, s29, 21")
    a("s_add_u32 s34, s34, s33")
    a(f"s_add_u32 s34, s34, {WS_Y}")
    a("v_lshrrev_b32 v209, 5, v201")
    a("v_lshlrev_b32 v209, 5, v209")
    a("v_lshl_add_u32 v209, v207, 10, v209")
    for j in range(1, 4):
        a(f"s_waitcnt lgkmcnt({min(15, (3 - j) * 8)})")
        for i in range(32):
            a(f"v_add_f32 v{i}, v{i}, v{j * 32 + i}")
    for i in range(16):
        a(f"v_cvt_pk_bf16_f32 v{128 + i}, v{2 * i}, v{2 * i + 1}")
    for et2 in range(2):
        for hh in range(2):
            r = 128 + et2 * 8 + hh * 4
            a(f"buffer_store_dwordx4 v[{r}:{r + 3}], v209, s[16:19], s34 offen offset:{et2 * 64 + hh * 16}")
    stamp_flush(a, 2, 8, 8, 9)
    a.label(f"{name}_done")
    a("s_endpgm")
    return kernel_desc(name, 224 + 32 * ED, 64, 224)


WS_P = 4 << 20


def gen_k2b(a, name, NSTG=5, LA=2, nomfma=0, noread=0, nodma=0, nostore=0):
    kernel_begin(a, name)
    a("s_cmp_ge_u32 s2, 256")
    a(f"s_cbranch_scc1 {name}_done")
    stamp(a, 0)
    a("s_load_dwordx4 s[4:7], s[0:1], 8")
    a("s_load_dwordx2 s[8:9], s[0:1], 96")
    a("s_and_b32 s3, s2, 7")
    a("s_lshr_b32 s28, s2, 3")
    a("s_and_b32 s29, s3, 1")
    a("s_bfe_u32 s27, s3, 0x10001")
    a("s_lshr_b32 s30, s3, 2")
    a("s_lshl_b32 s30, s30, 3")
    a("s_and_b32 s31, s28, 7")
    a("s_add_u32 s30, s30, s31")
    a("s_lshr_b32 s31, s28, 3")
    a("v_lshrrev_b32 v1, 6, v0")
    a("v_and_b32 v2, 63, v0")
    a("s_nop 0")
    a("v_readfirstlane_b32 s32, v1")
    a("v_lshlrev_b32 v3, 4, v2")
    a("s_waitcnt lgkmcnt(0)")
    stamp(a, 1)
    a("s_cmp_eq_u32 s29, 1")
    a("s_cselect_b32 s4, s6, s4")
    a("s_cselect_b32 s5, s7, s5")
    srd(a, 12, 4, 5, S * S * 2)
    srd(a, 16, 8, 9, 12 << 20)
    a("s_cmp_lt_u32 s32, 4")
    a(f"s_cbranch_scc1 {name}_cons")
    a("s_sub_u32 s33, s32, 4")
    a("v_lshrrev_b32 v4, 3, v2")
    a("v_and_b32 v5, 7, v2")
    a("v_lshrrev_b32 v6, 4, v2")
    a("v_xor_b32 v6, v6, v5")
    a("v_xor_b32 v7, 4, v6")
    a("v_lshlrev_b32 v4, 12, v4")
    a("v_lshl_add_u32 v6, v6, 4, v4")
    a("v_lshl_add_u32 v7, v7, 4, v4")
    a("v_mov_b32 v8, v6")
    a(f"v_add_u32 v9, {32768 - 1024}, v7")
    a(f"v_add_u32 v10, {2 * (32768 - 1024)}, v6")
    a(f"v_add_u32 v11, {3 * (32768 - 1024)}, v7")
    a("s_lshl_b32 s35, s30, 19")
    a("s_lshl_b32 s34, s33, 17")
    a("s_add_u32 s35, s35, s34")
    a("s_lshl_b32 s34, s27, 11")
    a("s_add_u32 s35, s35, s34")
    a("s_lshl_b32 s36, s29, 4")
    a("s_lshl_b32 s34, s31, 2")
    a("s_add_u32 s36, s36, s34")
    a("s_add_u32 s36, s36, s33")
    a("s_lshl_b32 s36, s36, 6")
    a("s_lshl_b32 s34, s27, 5")
    a("s_add_u32 s36, s36, s34")
    a("s_lshl_b32 s36, s36, 11")
    a("s_lshl_b32 s37, s33, 12")

    def load_stage(s):
        slot = (s % NSTG) * 32768
        a(f"s_add_u32 m0, s37, {slot}")
        a(f"s_add_u32 s38, s35, {s * 128}")
        for i in range(4):
            if not nodma:
                a(f"buffer_load_dwordx4 v{8 + i}, s[12:15], s38 offen offset:{i * 1024} lds")
        a(f"s_add_u32 m0, s37, {slot + 16384}")
        a(f"s_add_u32 s39, s36, {s * 4096}")
        for c in range(4):
            if not nodma:
                a(f"buffer_load_dwordx4 v3, s[16:19], s39 offen offset:{c * 1024} lds")

    NST = 16
    for s in range(NSTG - 1):
        load_stage(s)
    stamp(a, 2)
    for s in range(NST):
        issued = min(s + NSTG - 2, NST - 1)
        a(f"s_waitcnt vmcnt({(issued - s) * 8})")
        a("s_barrier")
        if s + NSTG - 1 < NST:
            load_stage(s + NSTG - 1)
    stamp(a, 5)
    a(f"s_branch {name}_fin")
    a.label(f"{name}_cons")
    a("s_and_b32 s33, s32, 1")
    a("s_lshr_b32 s34, s32, 1")
    a("v_and_b32 v4, 31, v2")
    a("v_bfe_u32 v5, v4, 1, 3")
    a("v_lshrrev_b32 v6, 5, v2")
    a("v_lshlrev_b32 v6, 1, v6")
    a("v_xor_b32 v5, v5, v6")
    a("v_lshlrev_b32 v5, 4, v5")
    a("v_lshl_add_u32 v5, v4, 7, v5")
    a("s_lshl_b32 s35, s33, 13")
    a("s_lshl_b32 s36, s34, 13")
    a("s_add_u32 s36, s36, 16384")
    for g in range(3):
        for c in range(4):
            x = ((c >> 1) * 4 + (c & 1)) << 4
            a(f"v_xor_b32 v{8 + 5 * g + c}, {x}, v5")
            a(f"v_add_u32 v{8 + 5 * g + c}, s35, v{8 + 5 * g + c}")
            if g:
                a(f"v_add_u32 v{8 + 5 * g + c}, {65536 * g}, v{8 + 5 * g + c}")
        a(f"v_add_u32 v{8 + 5 * g + 4}, s36, v3")
        if g:
            a(f"v_add_u32 v{8 + 5 * g + 4}, {65536 * g}, v{8 + 5 * g + 4}")
    ACC = 64
    FB = 128
    for i in range(64):
        a(f"v_mov_b32 v{ACC + i}, 0")
    NU = NST * 4

    def reads(u):
        s, c = u // 4, u % 4
        slot = s % NSTG
        g, so = slot // 2, (slot % 2) * 32768
        f = FB + 16 * (u % (LA + 1))
        if c == 0:
            a("s_waitcnt lgkmcnt(0)")
            a("s_barrier")
            if s == 0:
                stamp(a, 3)
            if s == 8:
                stamp(a, 4)
        if noread:
            return
        a(f"ds_read_b128 v[{f}:{f + 3}], v{8 + 5 * g + c} offset:{so}")
        a(f"ds_read_b128 v[{f + 8}:{f + 11}], v{8 + 5 * g + 4} offset:{so + c * 1024}")
        a(f"ds_read_b128 v[{f + 4}:{f + 7}], v{8 + 5 * g + c} offset:{so + 4096}")
        a(f"ds_read_b128 v[{f + 12}:{f + 15}], v{8 + 5 * g + 4} offset:{so + 4096 + c * 1024}")

    for u in range(LA):
        reads(u)
    for u in range(NU):
        if u + LA < NU:
            reads(u + LA)
        nxt = min(u + LA, NU - 1)
        cnt = 0
        for uu in range(u + 1, nxt + 1):
            cnt += 4
        a(f"s_waitcnt lgkmcnt({min(cnt, 15)})")
        f = FB + 16 * (u % (LA + 1))
        for et in range(2):
            for tt in range(2):
                acc = ACC + (et * 2 + tt) * 16
                if not nomfma:
                    a(f"v_mfma_f32_32x32x16_bf16 v[{acc}:{acc + 15}], v[{f + 8 + 4 * et}:{f + 11 + 4 * et}], v[{f + 4 * tt}:{f + 4 * tt + 3}], v[{acc}:{acc + 15}]")
    stamp(a, 5)
    a("s_lshl_b32 s35, s30, 7")
    a("s_lshl_b32 s36, s33, 6")
    a("s_add_u32 s35, s35, s36")
    a("s_lshl_b32 s35, s35, 10")
    a("s_lshl_b32 s36, s31, 8")
    a("s_add_u32 s35, s35, s36")
    a("s_lshl_b32 s36, s34, 7")
    a("s_add_u32 s35, s35, s36")
    a("s_lshl_b32 s36, s29, 1")
    a("s_add_u32 s36, s36, s27")
    a("s_lshl_b32 s36, s36, 21")
    a("s_add_u32 s35, s35, s36")
    a(f"s_add_u32 s35, s35, {WS_P}")
    a("s_add_u32 s36, s35, 32768")
    a("v_lshrrev_b32 v6, 5, v2")
    a("v_lshlrev_b32 v6, 5, v6")
    a("v_lshl_add_u32 v6, v4, 10, v6")
    a("s_nop 4")
    for et in range(2):
        for tt in range(2):
            acc = ACC + (et * 2 + tt) * 16
            o = 24 + (et * 2 + tt) * 8
            for i in range(8):
                a(f"v_cvt_pk_bf16_f32 v{o + i}, v{acc + 2 * i}, v{acc + 2 * i + 1}")
            for hh in range(2):
                if not nostore:
                    a(f"buffer_store_dwordx4 v[{o + 4 * hh}:{o + 4 * hh + 3}], v6, s[16:19], s{35 + tt} offen offset:{et * 64 + hh * 16}")
    a.label(f"{name}_fin")
    stamp_flush(a, 2, 6, 8, 9)
    a.label(f"{name}_done")
    a("s_endpgm")
    nv = FB + 16 * (LA + 1)
    return kernel_desc(name, nv, 64, nv)


def emit_perm2(a, dst, src, t):
    a(f"v_and_b32 v{dst}, 3, v{src}")
    a(f"v_bfe_u32 v{t}, v{src}, 2, 2")
    a(f"v_lshl_or_b32 v{dst}, v{t}, 3, v{dst}")
    a(f"v_bfe_u32 v{t}, v{src}, 4, 1")
    a(f"v_lshl_or_b32 v{dst}, v{t}, 2, v{dst}")


def gen_k1b(a, name, prefetch=1, wt=0, nostats=0, nocs=0, PRO=6, pfpos=2, rot=1):
    NSTG, SLOT = 6, 24576
    STATS = NSTG * SLOT
    kernel_begin(a, name)
    a("s_cmp_ge_u32 s2, 256")
    a(f"s_cbranch_scc1 {name}_done")
    stamp(a, 0)
    a("s_load_dwordx2 s[4:5], s[0:1], 0")
    a("s_load_dwordx4 s[8:11], s[0:1], 24")
    a("s_load_dwordx2 s[6:7], s[0:1], 96")
    a("s_load_dwordx4 s[40:43], s[0:1], 8")
    a("s_and_b32 s3, s2, 7")
    a("s_lshr_b32 s28, s2, 3")
    a("s_and_b32 s29, s28, 3")
    a("s_lshl_b32 s30, s3, 2")
    a("s_add_u32 s30, s30, s29")
    a("s_lshr_b32 s31, s28, 2")
    a("v_lshrrev_b32 v1, 6, v0")
    a("v_and_b32 v2, 63, v0")
    a("s_nop 0")
    a("v_readfirstlane_b32 s32, v1")
    a("s_mov_b32 s53, 0xffff0000")
    a("s_cmp_lt_u32 s32, 4")
    a(f"s_cbranch_scc1 {name}_cons")
    a("s_sub_u32 s33, s32, 4")
    a("v_lshrrev_b32 v3, 3, v2")
    a("v_and_b32 v4, 7, v2")
    a("v_lshrrev_b32 v6, 4, v2")
    a("v_xor_b32 v6, v6, v4")
    a("v_xor_b32 v7, 4, v6")
    a("v_lshlrev_b32 v3, 10, v3")
    a("v_lshl_add_u32 v8, v6, 4, v3")
    a("v_lshl_add_u32 v7, v7, 4, v3")
    a(f"v_add_u32 v9, {8192 - 1024}, v7")
    a(f"v_add_u32 v10, {2 * (8192 - 1024)}, v8")
    a(f"v_add_u32 v11, {3 * (8192 - 1024)}, v7")
    a("s_lshl_b32 s35, s30, 6")
    a("s_lshl_b32 s34, s33, 4")
    a("s_add_u32 s35, s35, s34")
    a("s_lshl_b32 s35, s35, 10")
    a("s_and_b32 s36, s31, 3")
    a("s_lshl_b32 s36, s36, 7")
    a("s_lshl_b32 s34, s33, 5")
    a("s_add_u32 s36, s36, s34")
    a("s_lshl_b32 s36, s36, 10")
    a("s_lshl_b32 s37, s33, 11")
    a("s_lshl_b32 s38, s33, 12")
    a("s_add_u32 s38, s38, 8192")
    a("s_lshl_b32 s34, s29, 1")
    a("s_add_u32 s34, s34, s31")
    for kk in range(8):
        if rot:
            a(f"s_add_u32 s39, s34, {kk}")
            a("s_and_b32 s39, s39, 7")
            a(f"s_lshl_b32 s{54 + kk}, s39, 7")
        else:
            a(f"s_mov_b32 s{54 + kk}, {kk * 128}")
    a("s_waitcnt lgkmcnt(0)")
    stamp(a, 1)
    srd(a, 12, 4, 5, S * D * 2)
    a("s_cmp_ge_u32 s31, 4")
    a("s_cselect_b32 s8, s10, s8")
    a("s_cselect_b32 s9, s11, s9")
    srd(a, 16, 8, 9, D * D * 2)

    def load_stage(kk):
        slot = (kk % NSTG) * SLOT
        a(f"s_add_u32 m0, s37, {slot}")
        a(f"s_add_u32 s39, s35, s{54 + kk}")
        for i in range(2):
            a(f"buffer_load_dwordx4 v{8 + i}, s[12:15], s39 offen offset:{i * 1024} lds")
        a(f"s_add_u32 m0, s38, {slot}")
        a(f"s_add_u32 s39, s36, s{54 + kk}")
        for i in range(4):
            a(f"buffer_load_dwordx4 v{8 + i}, s[16:19], s39 offen offset:{i * 1024} lds")

    for kk in range(PRO):
        load_stage(kk)
    stamp(a, 2)
    a("v_lshrrev_b32 v12, 2, v2")
    a("v_lshlrev_b32 v12, 7, v12")
    a("v_and_b32 v13, 3, v2")
    a("v_lshl_add_u32 v12, v13, 5, v12")
    a("v_add_u32 v12, s37, v12")
    a(f"v_add_u32 v13, {3 * SLOT}, v12")
    a("v_mov_b32 v14, 0")
    a("v_mov_b32 v15, 0")
    a("v_mov_b32 v16, 0")
    a("v_mov_b32 v17, 0")
    issued = PRO
    npf = 0

    def emit_prefetch(vb):
        a("s_and_b32 s48, s3, 1")
        a("s_cmp_eq_u32 s48, 1")
        a("s_cselect_b32 s40, s42, s40")
        a("s_cselect_b32 s41, s43, s41")
        srd(a, 24, 40, 41, S * S * 2)
        a("s_lshr_b32 s48, s3, 2")
        a("s_lshl_b32 s48, s48, 10")
        a("s_lshl_b32 s49, s28, 5")
        a("s_add_u32 s48, s48, s49")
        a("s_and_b32 s49, s32, 3")
        a("s_lshl_b32 s49, s49, 3")
        a("s_add_u32 s48, s48, s49")
        a("s_lshl_b32 s48, s48, 12")
        a("s_bfe_u32 s49, s3, 0x10001")
        a("s_lshl_b32 s49, s49, 11")
        a("s_add_u32 s48, s48, s49")
        a(f"v_lshrrev_b32 v{vb}, 4, v2")
        a(f"v_lshlrev_b32 v{vb}, 12, v{vb}")
        a(f"v_and_b32 v{vb + 1}, 15, v2")
        a(f"v_lshl_add_u32 v{vb}, v{vb + 1}, 7, v{vb}")
        for i in range(2):
            a(f"s_add_u32 s49, s48, {i * 16384}")
            a(f"buffer_load_dword v{vb + 2 + i}, v{vb}, s[24:27], s49 offen")

    vq = [k for k in range(PRO) for _ in range(6)]
    for kk in range(8):
        idx = max(i for i, t in enumerate(vq) if t == kk)
        a(f"s_waitcnt vmcnt({len(vq) - 1 - idx})")
        vq = vq[idx + 1:]
        slot = kk % NSTG
        ar, so = (12, slot * SLOT) if slot < 3 else (13, (slot - 3) * SLOT)
        a(f"ds_read_b128 v[24:27], v{ar} offset:{so}")
        a(f"ds_read_b128 v[28:31], v{ar} offset:{so + 16}")
        a("s_barrier")
        a("s_waitcnt lgkmcnt(0)")
        n_new = 0
        while issued < 8 and issued - NSTG < kk and n_new < 2:
            load_stage(issued)
            vq += [issued] * 6
            issued += 1
            n_new += 1
        if prefetch and pfpos == kk:
            emit_prefetch(40)
            vq += ["pf"] * 2
        if kk == 0:
            a("v_lshlrev_b32 v18, 16, v24")
            a("s_nop 1")
            a(f"v_mov_b32_dpp v18, v18 quad_perm:[0,0,0,0] {DPP}")
        for r in range(0 if nostats else 8):
            t = 32 + 2 * (r & 3)
            a(f"v_lshlrev_b32 v{t}, 16, v{24 + r}")
            a(f"v_and_b32 v{t + 1}, s53, v{24 + r}")
            a(f"v_sub_f32 v{t}, v{t}, v18")
            a(f"v_sub_f32 v{t + 1}, v{t + 1}, v18")
            a(f"v_add_f32 v14, v14, v{t}")
            a(f"v_add_f32 v15, v15, v{t + 1}")
            a(f"v_fmac_f32 v16, v{t}, v{t}")
            a(f"v_fmac_f32 v17, v{t + 1}, v{t + 1}")
    a("v_add_f32 v14, v14, v15")
    a("v_add_f32 v16, v16, v17")
    for qp in ("[1,0,3,2]", "[2,3,0,1]"):
        a("s_nop 1")
        a(f"v_add_f32_dpp v14, v14, v14 quad_perm:{qp} {DPP}")
        a(f"v_add_f32_dpp v16, v16, v16 quad_perm:{qp} {DPP}")
    a("v_mul_f32 v14, 0x3b000000, v14")
    a("v_mul_f32 v16, 0x3b000000, v16")
    a("v_fma_f32 v16, -v14, v14, v16")
    a("v_max_f32 v16, 0, v16")
    a("v_add_f32 v14, v14, v18")
    a("v_cvt_pk_bf16_f32 v14, v14, v14")
    a("v_lshlrev_b32 v14, 16, v14")
    a("v_cvt_pk_bf16_f32 v16, v16, v16")
    a("v_lshlrev_b32 v16, 16, v16")
    a("v_add_f32 v16, 0x3727c5ac, v16")
    a("v_cvt_pk_bf16_f32 v16, v16, v16")
    a("v_lshlrev_b32 v16, 16, v16")
    a("v_sqrt_f32 v16, v16")
    a("s_nop 0")
    a("v_cvt_pk_bf16_f32 v16, v16, v16")
    a("v_lshlrev_b32 v16, 16, v16")
    a("v_rcp_f32 v16, v16")
    a("v_lshrrev_b32 v19, 2, v2")
    a("v_lshlrev_b32 v19, 2, v19")
    a("s_lshl_b32 s34, s33, 6")
    a(f"s_add_u32 s34, s34, {STATS}")
    a("v_add_u32 v19, s34, v19")
    a("ds_write_b32 v19, v14")
    a("ds_write_b32 v19, v16 offset:256")
    a("s_waitcnt lgkmcnt(0)")
    stamp(a, 3)
    a("s_barrier")
    a(f"s_branch {name}_fin")
    a.label(f"{name}_cons")
    a("v_and_b32 v9, 31, v2")
    a("v_lshrrev_b32 v5, 5, v2")
    emit_perm32(a, 10, 9, 11)
    a("v_bfe_u32 v11, v10, 1, 3")
    a("v_xor_b32 v11, v11, v5")
    a("v_lshlrev_b32 v11, 4, v11")
    a("v_lshl_add_u32 v11, v10, 7, v11")
    emit_perm2(a, 10, 9, 12)
    a("v_bfe_u32 v12, v10, 1, 3")
    a("v_xor_b32 v12, v12, v5")
    a("v_lshlrev_b32 v12, 4, v12")
    a("v_lshl_add_u32 v12, v10, 7, v12")
    a("s_lshl_b32 s34, s32, 12")
    a("s_add_u32 s34, s34, 8192")
    a("v_add_u32 v12, s34, v12")
    for g in range(3):
        for c in range(4):
            a(f"v_xor_b32 v{16 + 8 * g + c}, {c * 32}, v11")
            a(f"v_xor_b32 v{20 + 8 * g + c}, {c * 32}, v12")
            if g:
                a(f"v_add_u32 v{16 + 8 * g + c}, {2 * SLOT * g}, v{16 + 8 * g + c}")
                a(f"v_add_u32 v{20 + 8 * g + c}, {2 * SLOT * g}, v{20 + 8 * g + c}")
    ACC = 64
    FR = [96, 108, 120]
    for i in range(32):
        a(f"v_mov_b32 v{ACC + i}, 0")
    a("v_mov_b32 v40, 0")
    a("v_mov_b32 v41, 0")
    a("s_mov_b32 s50, 0x3f803f80")
    a("s_waitcnt lgkmcnt(0)")
    stamp(a, 1)
    srd(a, 20, 6, 7, 4 << 20)
    if prefetch and pfpos == -1:
        emit_prefetch(150)
    units = [(kk, c) for kk in range(8) for c in range(4)]

    def reads(n):
        kk, c = units[n]
        f = FR[n % 3]
        slot = kk % NSTG
        g, so = slot // 2, (slot % 2) * SLOT
        if c == 0:
            a("s_waitcnt lgkmcnt(0)")
            a("s_barrier")
            if kk == 0:
                stamp(a, 2)
        a(f"ds_read_b128 v[{f}:{f + 3}], v{20 + 8 * g + c} offset:{so}")
        a(f"ds_read_b128 v[{f + 4}:{f + 7}], v{16 + 8 * g + c} offset:{so}")
        a(f"ds_read_b128 v[{f + 8}:{f + 11}], v{16 + 8 * g + c} offset:{so + 4096}")

    reads(0)
    reads(1)
    for n in range(len(units)):
        if n + 2 < len(units):
            reads(n + 2)
            a("s_waitcnt lgkmcnt(6)")
        elif n + 1 < len(units):
            a("s_waitcnt lgkmcnt(3)")
        else:
            a("s_waitcnt lgkmcnt(0)")
        f = FR[n % 3]
        a(f"v_mfma_f32_32x32x16_bf16 v[{ACC}:{ACC + 15}], v[{f + 4}:{f + 7}], v[{f}:{f + 3}], v[{ACC}:{ACC + 15}]")
        if not nocs:
            a(f"v_dot2_f32_bf16 v40, v{f}, s50, v40")
        if not nocs:
            a(f"v_dot2_f32_bf16 v41, v{f + 1}, s50, v41")
        a(f"v_mfma_f32_32x32x16_bf16 v[{ACC + 16}:{ACC + 31}], v[{f + 8}:{f + 11}], v[{f}:{f + 3}], v[{ACC + 16}:{ACC + 31}]")
        if not nocs:
            a(f"v_dot2_f32_bf16 v40, v{f + 2}, s50, v40")
        if not nocs:
            a(f"v_dot2_f32_bf16 v41, v{f + 3}, s50, v41")
    stamp(a, 3)
    a("s_barrier")
    stamp(a, 4)
    a("v_lshlrev_b32 v42, 6, v5")
    a(f"v_add_u32 v42, {STATS}, v42")
    for sh in range(2):
        for q in range(4):
            a(f"ds_read_b128 v[{96 + 16 * sh + 4 * q}:{99 + 16 * sh + 4 * q}], v42 offset:{128 * sh + 16 * q}")
            a(f"ds_read_b128 v[{128 + 16 * sh + 4 * q}:{131 + 16 * sh + 4 * q}], v42 offset:{256 + 128 * sh + 16 * q}")
    a("v_add_f32 v40, v40, v41")
    a("v_mov_b32 v41, v40")
    a("s_nop 1")
    a("v_permlane32_swap_b32 v40, v41")
    a("s_nop 1")
    a("v_add_f32 v40, v40, v41")
    a("s_lshl_b32 s34, s31, 2")
    a("s_add_u32 s34, s34, s32")
    a("s_lshl_b32 s34, s34, 7")
    a("s_lshl_b32 s33, s30, 1")
    a("s_add_u32 s34, s34, s33")
    a("s_lshl_b32 s34, s34, 10")
    a("v_bfe_u32 v43, v2, 4, 1")
    a("v_lshlrev_b32 v43, 16, v43")
    a("v_lshl_add_u32 v43, v5, 9, v43")
    a("v_and_b32 v44, 15, v2")
    a("v_lshl_add_u32 v43, v44, 4, v43")
    a("s_waitcnt lgkmcnt(0)")
    for sh in range(2):
        for i in range(16):
            r = ACC + 16 * sh + i
            a(f"v_fma_f32 v{r}, -v{96 + 16 * sh + i}, v40, v{r}")
            a(f"v_mul_f32 v{r}, v{r}, v{128 + 16 * sh + i}")
        for i in range(8):
            a(f"v_cvt_pk_bf16_f32 v{48 + 8 * sh + i}, v{ACC + 16 * sh + 2 * i}, v{ACC + 16 * sh + 2 * i + 1}")
        for u in range(2):
            r = 48 + 8 * sh + 4 * u
            a(f"buffer_store_dwordx4 v[{r}:{r + 3}], v43, s[20:23], s34 offen offset:{sh * 1024 + u * 256}" + (" sc0 sc1" if wt else ""))
    stamp(a, 5)
    a.label(f"{name}_fin")
    stamp_flush(a, 1, 6, 6, 7)
    a.label(f"{name}_done")
    a("s_endpgm")
    return kernel_desc(name, 160, 64, 160)


def gen_k2c(a, name, NSTG=5, LA=1, wt=0, PRO=5, rot=1, BARPOS=1, RSTEP=1):
    kernel_begin(a, name)
    a("s_cmp_ge_u32 s2, 256")
    a(f"s_cbranch_scc1 {name}_done")
    stamp(a, 0)
    a("s_load_dwordx4 s[4:7], s[0:1], 8")
    a("s_load_dwordx2 s[8:9], s[0:1], 96")
    a("s_and_b32 s3, s2, 7")
    a("s_lshr_b32 s28, s2, 3")
    a("s_and_b32 s29, s3, 1")
    a("s_bfe_u32 s27, s3, 0x10001")
    a("s_lshr_b32 s30, s3, 2")
    a("s_lshl_b32 s30, s30, 3")
    a("s_and_b32 s31, s28, 7")
    a("s_add_u32 s30, s30, s31")
    a("s_lshr_b32 s31, s28, 3")
    a("v_lshrrev_b32 v1, 6, v0")
    a("v_and_b32 v2, 63, v0")
    a("s_nop 0")
    a("v_readfirstlane_b32 s32, v1")
    a("v_lshlrev_b32 v3, 4, v2")
    a("s_cmp_lt_u32 s32, 4")
    a(f"s_cbranch_scc1 {name}_cons")
    a("s_sub_u32 s33, s32, 4")
    a("v_lshrrev_b32 v4, 3, v2")
    a("v_and_b32 v5, 7, v2")
    a("v_lshrrev_b32 v6, 4, v2")
    a("v_xor_b32 v6, v6, v5")
    a("v_xor_b32 v7, 4, v6")
    a("v_lshlrev_b32 v4, 12, v4")
    a("v_lshl_add_u32 v6, v6, 4, v4")
    a("v_lshl_add_u32 v7, v7, 4, v4")
    a("v_mov_b32 v8, v6")
    a(f"v_add_u32 v9, {32768 - 1024}, v7")
    a(f"v_add_u32 v10, {2 * (32768 - 1024)}, v6")
    a(f"v_add_u32 v11, {3 * (32768 - 1024)}, v7")
    a(f"v_add_u32 v12, {65536 - 2048}, v3")
    a("s_lshl_b32 s35, s30, 19")
    a("s_lshl_b32 s34, s33, 17")
    a("s_add_u32 s35, s35, s34")
    a("s_lshl_b32 s34, s27, 11")
    a("s_add_u32 s35, s35, s34")
    a("s_lshl_b32 s36, s29, 5")
    a("s_lshl_b32 s34, s31, 3")
    a("s_add_u32 s36, s36, s34")
    a("s_lshl_b32 s34, s33, 1")
    a("s_add_u32 s36, s36, s34")
    a("s_lshl_b32 s36, s36, 6")
    a("s_lshl_b32 s34, s27, 5")
    a("s_add_u32 s36, s36, s34")
    a("s_lshl_b32 s36, s36, 10")
    a("s_lshl_b32 s37, s33, 12")
    for j in range(4):
        if rot:
            a(f"s_add_u32 s34, s31, {j}")
            a("s_and_b32 s34, s34, 3")
        else:
            a(f"s_mov_b32 s34, {j}")
        a("s_lshl_b32 s38, s34, 7")
        a(f"s_add_u32 s{44 + j}, s35, s38")
        a("s_lshl_b32 s38, s34, 11")
        a(f"s_add_u32 s{48 + j}, s36, s38")
    a("s_waitcnt lgkmcnt(0)")
    stamp(a, 1)
    a("s_cmp_eq_u32 s29, 1")
    a("s_cselect_b32 s4, s6, s4")
    a("s_cselect_b32 s5, s7, s5")
    srd(a, 12, 4, 5, S * S * 2)
    srd(a, 16, 8, 9, 12 << 20)

    def load_stage(s):
        slot = (s % NSTG) * 32768
        a(f"s_add_u32 m0, s37, {slot}")
        a(f"s_add_u32 s38, s{44 + (s & 3)}, {(s & ~3) * 128}")
        for i in range(4):
            a(f"buffer_load_dwordx4 v{8 + i}, s[12:15], s38 offen offset:{i * 1024} lds")
        a(f"s_add_u32 m0, s37, {slot + 16384}")
        a(f"s_add_u32 s39, s{48 + (s & 3)}, {(s & ~3) * 2048}")
        for c in range(4):
            a(f"buffer_load_dwordx4 v{3 if c < 2 else 12}, s[16:19], s39 offen offset:{c * 1024} lds")

    NST = 16
    for s in range(PRO):
        load_stage(s)
    stamp(a, 2)
    issued = PRO
    for s in range(NST):
        a(f"s_waitcnt vmcnt({(issued - 1 - s) * 8})")
        a("s_barrier")
        n_new = 0
        while issued < NST and issued - NSTG < s and n_new < 2:
            load_stage(issued)
            issued += 1
            n_new += 1
    stamp(a, 5)
    a(f"s_branch {name}_fin")
    a.label(f"{name}_cons")
    a("s_and_b32 s33, s32, 1")
    a("s_lshr_b32 s34, s32, 1")
    a("v_and_b32 v4, 15, v2")
    a("v_lshrrev_b32 v5, 1, v4")
    a("v_lshrrev_b32 v6, 4, v2")
    a("v_xor_b32 v5, v5, v6")
    a("v_lshlrev_b32 v5, 4, v5")
    a("v_lshl_add_u32 v5, v4, 7, v5")
    a("s_lshl_b32 s35, s33, 13")
    a("s_lshl_b32 s36, s34, 13")
    a("s_add_u32 s36, s36, 16384")
    for g in range(3):
        a(f"v_add_u32 v{8 + 3 * g}, s35, v5")
        a(f"v_xor_b32 v{9 + 3 * g}, 64, v5")
        a(f"v_add_u32 v{9 + 3 * g}, s35, v{9 + 3 * g}")
        a(f"v_add_u32 v{10 + 3 * g}, s36, v3")
        if g:
            for r in range(3):
                a(f"v_add_u32 v{8 + 3 * g + r}, {65536 * g}, v{8 + 3 * g + r}")
    ACC = 64
    FB = 128
    for i in range(64):
        a(f"v_mov_b32 v{ACC + i}, 0")
    a("s_waitcnt lgkmcnt(0)")
    stamp(a, 1)
    srd(a, 16, 8, 9, 12 << 20)
    NU = NST * 2

    def read_list(u):
        s, ks = u // 2, u % 2
        slot = s % NSTG
        g, so = slot // 2, (slot % 2) * 32768
        f = FB + 32 * (u % 2)
        L = []
        for i in range(4):
            L.append(f"ds_read_b128 v[{f + 16 + 4 * i}:{f + 19 + 4 * i}], v{10 + 3 * g} offset:{so + i * 2048 + ks * 1024}")
            L.append(f"ds_read_b128 v[{f + 4 * i}:{f + 3 + 4 * i}], v{8 + 3 * g + ks} offset:{so + i * 2048}")
        return L

    a("s_barrier")
    stamp(a, 3)
    for r in read_list(0):
        a(r)
    for u in range(NU):
        a("s_waitcnt lgkmcnt(0)")
        f = FB + 32 * (u % 2)
        nxt = read_list(u + 1) if u + 1 < NU else []
        n = 0
        for T in range(4):
            for tt in range(4):
                acc = ACC + (T * 4 + tt) * 4
                a(f"v_mfma_f32_16x16x32_bf16 v[{acc}:{acc + 3}], v[{f + 16 + 4 * T}:{f + 19 + 4 * T}], v[{f + 4 * tt}:{f + 4 * tt + 3}], v[{acc}:{acc + 3}]")
                n += 1
                if n == BARPOS and nxt and (u + 1) % 2 == 0:
                    a("s_barrier")
                    if (u + 1) // 2 == 8:
                        stamp(a, 4)
                if n >= BARPOS and nxt and (n - BARPOS) % RSTEP == 0:
                    a(nxt.pop(0))
        for r in nxt:
            a(r)
    stamp(a, 5)
    a("s_lshl_b32 s35, s30, 7")
    a("s_lshl_b32 s36, s33, 6")
    a("s_add_u32 s35, s35, s36")
    a("s_lshl_b32 s35, s35, 10")
    a("s_lshl_b32 s36, s31, 8")
    a("s_add_u32 s35, s35, s36")
    a("s_lshl_b32 s36, s34, 7")
    a("s_add_u32 s35, s35, s36")
    a("s_lshl_b32 s36, s29, 1")
    a("s_add_u32 s36, s36, s27")
    a("s_lshl_b32 s36, s36, 21")
    a("s_add_u32 s35, s35, s36")
    a(f"s_add_u32 s35, s35, {WS_P}")
    a("v_lshlrev_b32 v6, 4, v6")
    a("v_lshl_add_u32 v6, v4, 10, v6")
    for tt in range(4):
        a(f"s_add_u32 s{40 + tt}, s35, {tt * 16384}")
    for tt in range(4):
        for Th in range(2):
            o = 24 + (tt * 2 + Th) * 4
            for Tl in range(2):
                acc = ACC + ((Th * 2 + Tl) * 4 + tt) * 4
                a(f"v_cvt_pk_bf16_f32 v{o + 2 * Tl}, v{acc}, v{acc + 1}")
                a(f"v_cvt_pk_bf16_f32 v{o + 2 * Tl + 1}, v{acc + 2}, v{acc + 3}")
            a(f"buffer_store_dwordx4 v[{o}:{o + 3}], v6, s[16:19], s{40 + tt} offen offset:{Th * 64}" + (" sc0 sc1" if wt else ""))
    a.label(f"{name}_fin")
    stamp_flush(a, 2, 6, 8, 9)
    a.label(f"{name}_done")
    a("s_endpgm")
    nv = FB + 64
    return kernel_desc(name, nv, 64, nv)


def gen_k1c(a, name, wt=1, PRO=3, pf=1, pace=1, pfw=1, pfxd=1):
    NSTG, SLOT, NST = 4, 32768, 8
    STATS = NSTG * SLOT
    kernel_begin(a, name)
    a("s_cmp_ge_u32 s2, 256")
    a(f"s_cbranch_scc1 {name}_done")
    stamp(a, 0)
    a("s_load_dwordx2 s[4:5], s[0:1], 0")
    a("s_load_dwordx4 s[8:11], s[0:1], 24")
    a("s_load_dwordx2 s[6:7], s[0:1], 96")
    a("s_load_dwordx4 s[40:43], s[0:1], 8")
    a("s_load_dwordx4 s[44:47], s[0:1], 56")
    a("s_load_dwordx2 s[48:49], s[0:1], 72")
    a("s_and_b32 s3, s2, 7")
    a("s_lshr_b32 s28, s2, 4")
    a("s_and_b32 s29, s28, 1")
    a("s_lshl_b32 s30, s3, 1")
    a("s_add_u32 s30, s30, s29")
    a("s_lshr_b32 s31, s28, 1")
    a("v_lshrrev_b32 v1, 6, v0")
    a("v_and_b32 v2, 63, v0")
    a("s_nop 0")
    a("v_readfirstlane_b32 s32, v1")
    a("s_mov_b32 s53, 0xffff0000")
    a("s_bitcmp1_b32 s2, 3")
    a(f"s_cbranch_scc1 {name}_pf")
    a("s_cmp_lt_u32 s32, 4")
    a(f"s_cbranch_scc1 {name}_cons")
    a("s_cmp_ge_u32 s32, 8")
    a(f"s_cbranch_scc1 {name}_stat")
    a("s_sub_u32 s33, s32, 4")
    a("v_lshrrev_b32 v3, 3, v2")
    a("v_and_b32 v4, 7, v2")
    a("v_bfe_u32 v5, v2, 4, 1")
    a("v_xor_b32 v4, v4, v5")
    a("v_lshlrev_b32 v3, 10, v3")
    for i in range(4):
        g0g1 = (i & 1) ^ (i >> 1)
        a(f"v_xor_b32 v{8 + i}, {(2 * i) ^ g0g1}, v4")
        a(f"v_lshl_add_u32 v{8 + i}, v{8 + i}, 4, v3")
        if i:
            a(f"v_add_u32 v{8 + i}, {i * (8192 - 1024)}, v{8 + i}")
    a("s_lshl_b32 s34, s33, 5")
    a("s_lshl_b32 s35, s30, 7")
    a("s_add_u32 s35, s35, s34")
    a("s_lshl_b32 s35, s35, 10")
    a("s_and_b32 s36, s31, 3")
    a("s_lshl_b32 s36, s36, 7")
    a("s_add_u32 s36, s36, s34")
    a("s_lshl_b32 s36, s36, 10")
    a("s_lshl_b32 s37, s33, 12")
    a("v_lshlrev_b32 v12, 6, v2")
    a("v_add_u32 v12, s37, v12")
    a("v_add_u32 v12, 16384, v12")
    a(f"v_add_u32 v13, {2 * SLOT}, v12")
    a("v_mov_b32 v14, 0")
    a("v_mov_b32 v15, 0")
    a("s_mov_b32 s50, 0x3f803f80")
    a("s_waitcnt lgkmcnt(0)")
    stamp(a, 1)
    srd(a, 12, 4, 5, S * D * 2)
    a("s_cmp_ge_u32 s31, 4")
    a("s_cselect_b32 s8, s10, s8")
    a("s_cselect_b32 s9, s11, s9")
    srd(a, 16, 8, 9, D * D * 2)

    def load_stage(kk):
        slot = (kk % NSTG) * SLOT
        a(f"s_add_u32 m0, s37, {slot}")
        a(f"s_add_u32 s39, s35, {kk * 128}")
        for i in range(4):
            a(f"buffer_load_dwordx4 v{8 + i}, s[12:15], s39 offen offset:{i * 1024} lds")
        a(f"s_add_u32 m0, s37, {slot + 16384}")
        a(f"s_add_u32 s39, s36, {kk * 128}")
        for i in range(4):
            a(f"buffer_load_dwordx4 v{8 + i}, s[16:19], s39 offen offset:{i * 1024} lds")

    for kk in range(PRO):
        load_stage(kk)
    stamp(a, 2)
    issued = PRO
    for kk in range(NST):
        a(f"s_waitcnt vmcnt({(issued - 1 - kk) * 8})")
        slot = kk % NSTG
        ar, so = (12, slot * SLOT) if slot < 2 else (13, (slot - 2) * SLOT)
        for q in range(4):
            a(f"ds_read_b128 v[{16 + 4 * q}:{19 + 4 * q}], v{ar} offset:{so + 16 * q}")
        a("s_barrier")
        n_new = 0
        while issued < NST and issued - NSTG < kk and n_new < 2:
            load_stage(issued)
            issued += 1
            n_new += 1
        a("s_waitcnt lgkmcnt(0)")
        for r in range(16):
            a(f"v_dot2_f32_bf16 v{14 + (r & 1)}, v{16 + r}, s50, v{14 + (r & 1)}")
    a("s_nop 2")
    a("v_add_f32 v14, v14, v15")
    a("s_nop 1")
    a(f"v_add_f32_dpp v14, v14, v14 quad_perm:[1,0,3,2] {DPP}")
    a("v_lshrrev_b32 v19, 1, v2")
    a("v_lshlrev_b32 v19, 2, v19")
    a("s_lshl_b32 s34, s33, 7")
    a(f"s_add_u32 s34, s34, {STATS + 1024}")
    a("v_add_u32 v19, s34, v19")
    a("ds_write_b32 v19, v14")
    a("s_waitcnt lgkmcnt(0)")
    stamp(a, 3)
    a("s_barrier")
    a(f"s_branch {name}_fin")
    a.label(f"{name}_stat")
    a("s_sub_u32 s33, s32, 8")
    a("s_lshl_b32 s37, s33, 12")
    a("v_lshlrev_b32 v12, 6, v2")
    a("v_add_u32 v12, s37, v12")
    a(f"v_add_u32 v13, {2 * SLOT}, v12")
    for r in range(4):
        a(f"v_mov_b32 v{80 + r}, 0")
    a("s_waitcnt lgkmcnt(0)")
    stamp(a, 1)

    def stat_valu(base):
        for r in range(16):
            t = 72 + 2 * (r & 3)
            a(f"v_lshlrev_b32 v{t}, 16, v{base + r}")
            a(f"v_and_b32 v{t + 1}, s53, v{base + r}")
            a(f"v_sub_f32 v{t}, v{t}, v18")
            a(f"v_sub_f32 v{t + 1}, v{t + 1}, v18")
            a(f"v_add_f32 v80, v80, v{t}")
            a(f"v_add_f32 v81, v81, v{t + 1}")
            a(f"v_fmac_f32 v82, v{t}, v{t}")
            a(f"v_fmac_f32 v83, v{t + 1}, v{t + 1}")

    for kk in range(NST):
        a("s_barrier")
        slot = kk % NSTG
        ar, so = (12, slot * SLOT) if slot < 2 else (13, (slot - 2) * SLOT)
        base = 32 + 16 * (kk & 1)
        for q in range(4):
            a(f"ds_read_b128 v[{base + 4 * q}:{base + 3 + 4 * q}], v{ar} offset:{so + 16 * q}")
        if kk >= 1:
            stat_valu(32 + 16 * ((kk - 1) & 1))
        a("s_waitcnt lgkmcnt(0)")
        if kk == 0:
            a("v_lshlrev_b32 v18, 16, v32")
            a("s_nop 1")
            a(f"v_mov_b32_dpp v18, v18 quad_perm:[0,0,2,2] {DPP}")
    stat_valu(32 + 16 * ((NST - 1) & 1))
    a("v_add_f32 v14, v80, v81")
    a("v_add_f32 v16, v82, v83")
    a("s_nop 1")
    a(f"v_add_f32_dpp v14, v14, v14 quad_perm:[1,0,3,2] {DPP}")
    a(f"v_add_f32_dpp v16, v16, v16 quad_perm:[1,0,3,2] {DPP}")
    a("v_mul_f32 v14, 0x3b000000, v14")
    a("v_mul_f32 v16, 0x3b000000, v16")
    a("v_fma_f32 v16, -v14, v14, v16")
    a("v_max_f32 v16, 0, v16")
    a("v_add_f32 v14, v14, v18")
    a("v_cvt_pk_bf16_f32 v14, v14, v14")
    a("v_lshlrev_b32 v14, 16, v14")
    a("v_cvt_pk_bf16_f32 v16, v16, v16")
    a("v_lshlrev_b32 v16, 16, v16")
    a("v_add_f32 v16, 0x3727c5ac, v16")
    a("v_cvt_pk_bf16_f32 v16, v16, v16")
    a("v_lshlrev_b32 v16, 16, v16")
    a("v_sqrt_f32 v16, v16")
    a("s_nop 0")
    a("v_cvt_pk_bf16_f32 v16, v16, v16")
    a("v_lshlrev_b32 v16, 16, v16")
    a("v_rcp_f32 v16, v16")
    a("v_lshrrev_b32 v19, 1, v2")
    a("v_lshlrev_b32 v19, 2, v19")
    a("s_lshl_b32 s34, s33, 7")
    a(f"s_add_u32 s34, s34, {STATS}")
    a("v_add_u32 v19, s34, v19")
    a("ds_write_b32 v19, v14")
    a("ds_write_b32 v19, v16 offset:512")
    a("s_waitcnt lgkmcnt(0)")
    stamp(a, 3)
    a("s_barrier")
    a(f"s_branch {name}_fin")
    a.label(f"{name}_cons")
    a("s_and_b32 s33, s32, 1")
    a("s_lshr_b32 s34, s32, 1")
    a("v_and_b32 v4, 15, v2")
    a("v_lshrrev_b32 v6, 4, v2")
    a("v_lshrrev_b32 v5, 2, v4")
    a("v_and_b32 v7, 3, v4")
    a("v_lshl_add_u32 v7, v5, 3, v7")
    a("v_lshrrev_b32 v20, 1, v4")
    a("v_lshrrev_b32 v21, 2, v4")
    a("v_lshrrev_b32 v22, 3, v4")
    a("v_xor_b32 v21, v21, v22")
    a("v_and_b32 v21, 1, v21")
    a("v_xor_b32 v20, v20, v21")
    a("v_xor_b32 v20, v20, v6")
    a("v_lshlrev_b32 v20, 4, v20")
    a("v_lshl_add_u32 v20, v7, 7, v20")
    a("s_lshl_b32 s35, s33, 13")
    a("s_lshl_b32 s36, s34, 13")
    a("s_add_u32 s36, s36, 16384")
    for g2 in range(2):
        a(f"v_add_u32 v{8 + 4 * g2}, s35, v20")
        a(f"v_xor_b32 v{9 + 4 * g2}, 64, v{8 + 4 * g2}")
        a(f"v_add_u32 v{10 + 4 * g2}, s36, v20")
        a(f"v_xor_b32 v{11 + 4 * g2}, 64, v{10 + 4 * g2}")
        if g2:
            for r in range(4):
                a(f"v_add_u32 v{8 + 4 * g2 + r}, {65536 * g2}, v{8 + 4 * g2 + r}")
    ACC = 32
    FB = 96
    for i in range(64):
        a(f"v_mov_b32 v{ACC + i}, 0")
    a("s_waitcnt lgkmcnt(0)")
    stamp(a, 1)
    srd(a, 20, 6, 7, 4 << 20)
    NU = NST * 2

    def reads(u):
        s, ks = u // 2, u % 2
        slot = s % NSTG
        g2, so = slot // 2, (slot % 2) * SLOT
        f = FB + 32 * (u % 2)
        if ks == 0:
            a("s_waitcnt lgkmcnt(0)")
            a("s_barrier")
            if s == 0:
                stamp(a, 2)
        for i in range(4):
            off = so + (i >> 1) * 4096 + (i & 1) * 512
            a(f"ds_read_b128 v[{f + 4 * i}:{f + 3 + 4 * i}], v{8 + 4 * g2 + ks} offset:{off}")
            a(f"ds_read_b128 v[{f + 16 + 4 * i}:{f + 19 + 4 * i}], v{10 + 4 * g2 + ks} offset:{off}")

    reads(0)
    for u in range(NU):
        if u + 1 < NU:
            reads(u + 1)
            a("s_waitcnt lgkmcnt(8)")
        else:
            a("s_waitcnt lgkmcnt(0)")
        f = FB + 32 * (u % 2)
        for xi in range(4):
            for T in range(4):
                acc = ACC + (xi * 4 + T) * 4
                a(f"v_mfma_f32_16x16x32_bf16 v[{acc}:{acc + 3}], v[{f + 4 * xi}:{f + 3 + 4 * xi}], v[{f + 16 + 4 * T}:{f + 19 + 4 * T}], v[{acc}:{acc + 3}]")
    stamp(a, 3)
    a("s_barrier")
    stamp(a, 4)
    a("s_lshl_b32 s35, s33, 8")
    a(f"s_add_u32 s35, s35, {STATS}")
    a("v_lshlrev_b32 v20, 5, v6")
    a("v_add_u32 v20, s35, v20")
    for blk in range(2):
        for h in range(2):
            a(f"ds_read_b128 v[{96 + 16 * blk + 4 * h}:{99 + 16 * blk + 4 * h}], v20 offset:{128 * blk + 16 * h}")
            a(f"ds_read_b128 v[{104 + 16 * blk + 4 * h}:{107 + 16 * blk + 4 * h}], v20 offset:{512 + 128 * blk + 16 * h}")
    a("s_lshl_b32 s36, s34, 8")
    a(f"s_add_u32 s36, s36, {STATS + 1024}")
    a("v_lshlrev_b32 v21, 2, v7")
    a("v_add_u32 v21, s36, v21")
    for T in range(4):
        a(f"ds_read_b32 v{128 + T}, v21 offset:{(T >> 1) * 128 + (T & 1) * 16}")
    a("s_lshl_b32 s35, s31, 3")
    a("s_lshl_b32 s36, s34, 2")
    a("s_add_u32 s35, s35, s36")
    a("s_lshl_b32 s35, s35, 6")
    a("s_lshl_b32 s36, s30, 2")
    a("s_add_u32 s35, s35, s36")
    a("s_lshl_b32 s36, s33, 1")
    a("s_add_u32 s35, s35, s36")
    a("s_lshl_b32 s35, s35, 10")
    for T in range(4):
        a(f"s_add_u32 s{40 + T}, s35, {T * 65536}")
    a("v_lshlrev_b32 v22, 4, v2")
    a("s_waitcnt lgkmcnt(0)")
    for blk in range(2):
        for T in range(4):
            o = 132 + 4 * ((blk * 4 + T) & 3)
            for hb in range(2):
                acc = ACC + ((blk * 2 + hb) * 4 + T) * 4
                for j in range(4):
                    a(f"v_fma_f32 v{acc + j}, -v{96 + 16 * blk + 4 * hb + j}, v{128 + T}, v{acc + j}")
                    a(f"v_mul_f32 v{acc + j}, v{acc + j}, v{104 + 16 * blk + 4 * hb + j}")
                a(f"v_cvt_pk_bf16_f32 v{o + 2 * hb}, v{acc}, v{acc + 1}")
                a(f"v_cvt_pk_bf16_f32 v{o + 2 * hb + 1}, v{acc + 2}, v{acc + 3}")
            a(f"buffer_store_dwordx4 v[{o}:{o + 3}], v22, s[20:23], s{40 + T} offen offset:{blk * 1024}" + (" sc0 sc1" if wt else ""))
    stamp(a, 5)
    a(f"s_branch {name}_fin")
    a.label(f"{name}_pf")
    a("s_waitcnt lgkmcnt(0)")
    stamp(a, 1)
    if pf:
        a("v_lshlrev_b32 v3, 7, v2")
        a("v_lshrrev_b32 v4, 4, v2")
        a("v_lshlrev_b32 v4, 12, v4")
        a("v_and_b32 v5, 15, v2")
        a("v_lshl_add_u32 v4, v5, 7, v4")
        a("s_mul_i32 s33, s28, 12")
        a("s_add_u32 s33, s33, s32")
        nld = 0
        if pfxd:
            srd(a, 12, 4, 5, S * D * 2)
            srd(a, 16, 8, 9, D * D * 2)
            srd(a, 20, 10, 11, D * D * 2)
            a("s_lshl_b32 s34, s33, 13")
            a("s_lshl_b32 s35, s3, 18")
            a("s_add_u32 s35, s35, s34")
            a("s_cmp_lt_u32 s33, 32")
            a(f"s_cbranch_scc0 {name}_pf1")
            a("buffer_load_dword v10, v3, s[12:15], s35 offen")
            a(f"s_branch {name}_pf3")
            a.label(f"{name}_pf1")
            a("s_sub_u32 s34, s34, 262144")
            a("s_cmp_lt_u32 s33, 96")
            a(f"s_cbranch_scc0 {name}_pf2")
            a("buffer_load_dword v10, v3, s[16:19], s34 offen")
            a(f"s_branch {name}_pf3")
            a.label(f"{name}_pf2")
            a("s_sub_u32 s34, s34, 524288")
            a("buffer_load_dword v10, v3, s[20:23], s34 offen")
            a.label(f"{name}_pf3")
            if pace:
                a("s_waitcnt vmcnt(0)")
        a("s_and_b32 s48, s3, 1")
        a("s_cmp_eq_u32 s48, 1")
        a("s_cselect_b32 s40, s42, s40")
        a("s_cselect_b32 s41, s43, s41")
        srd(a, 24, 40, 41, S * S * 2)
        a("s_cmp_ge_u32 s33, 128")
        a(f"s_cbranch_scc1 {name}_fin")
        a("s_lshr_b32 s48, s3, 2")
        a("s_lshl_b32 s48, s48, 10")
        a("s_lshl_b32 s49, s33, 3")
        a("s_add_u32 s48, s48, s49")
        a("s_lshl_b32 s48, s48, 12")
        a("s_bfe_u32 s49, s3, 0x10001")
        a("s_lshl_b32 s49, s49, 11")
        a("s_add_u32 s48, s48, s49")
        a("buffer_load_dword v11, v4, s[24:27], s48 offen")
        if pace >= 2:
            a("s_waitcnt vmcnt(0)")
        a("s_add_u32 s48, s48, 16384")
        a("buffer_load_dword v12, v4, s[24:27], s48 offen")
    a.label(f"{name}_fin")
    stamp_flush(a, 1, 6, 6, 7)
    a.label(f"{name}_done")
    a("s_endpgm")
    return kernel_desc(name, 160, 64, 160)


WS_STATS = (12 << 20) + (1 << 19) + 8192


def gen_k1d(a, name, wt=1, PRO=3, pf=1, pace=1, pfq=4):
    NSTG, SLOT, NST = 4, 32768, 8
    STATS = NSTG * SLOT
    kernel_begin(a, name)
    a("s_cmp_ge_u32 s2, 256")
    a(f"s_cbranch_scc1 {name}_done")
    stamp(a, 0)
    a("s_load_dwordx2 s[4:5], s[0:1], 0")
    a("s_load_dwordx4 s[8:11], s[0:1], 24")
    a("s_load_dwordx4 s[44:47], s[0:1], 88")
    a("s_load_dwordx4 s[40:43], s[0:1], 8")
    a("s_and_b32 s3, s2, 7")
    a("s_lshr_b32 s28, s2, 4")
    a("s_and_b32 s29, s28, 1")
    a("s_lshl_b32 s30, s3, 1")
    a("s_add_u32 s30, s30, s29")
    a("s_lshr_b32 s31, s28, 1")
    a("v_lshrrev_b32 v1, 6, v0")
    a("v_and_b32 v2, 63, v0")
    a("s_nop 0")
    a("v_readfirstlane_b32 s32, v1")
    a("s_mov_b32 s53, 0xffff0000")
    a("s_bitcmp1_b32 s2, 3")
    a(f"s_cbranch_scc1 {name}_aux")
    a("s_cmp_lt_u32 s32, 4")
    a(f"s_cbranch_scc1 {name}_cons")
    a("s_sub_u32 s33, s32, 4")
    a("v_lshrrev_b32 v3, 3, v2")
    a("v_and_b32 v4, 7, v2")
    a("v_bfe_u32 v5, v2, 4, 1")
    a("v_xor_b32 v4, v4, v5")
    a("v_lshlrev_b32 v3, 10, v3")
    for i in range(4):
        g0g1 = (i & 1) ^ (i >> 1)
        a(f"v_xor_b32 v{8 + i}, {(2 * i) ^ g0g1}, v4")
        a(f"v_lshl_add_u32 v{8 + i}, v{8 + i}, 4, v3")
        if i:
            a(f"v_add_u32 v{8 + i}, {i * (8192 - 1024)}, v{8 + i}")
    a("s_lshl_b32 s34, s33, 5")
    a("s_lshl_b32 s35, s30, 7")
    a("s_add_u32 s35, s35, s34")
    a("s_lshl_b32 s38, s35, 3")
    a("s_lshl_b32 s35, s35, 10")
    a("s_and_b32 s36, s31, 3")
    a("s_lshl_b32 s36, s36, 7")
    a("s_add_u32 s36, s36, s34")
    a("s_lshl_b32 s36, s36, 10")
    a("s_lshl_b32 s37, s33, 12")
    a("v_lshlrev_b32 v12, 6, v2")
    a("v_add_u32 v12, s37, v12")
    a("v_add_u32 v12, 16384, v12")
    a(f"v_add_u32 v13, {2 * SLOT}, v12")
    a("v_mov_b32 v14, 0")
    a("v_mov_b32 v15, 0")
    a("s_mov_b32 s50, 0x3f803f80")
    a("s_waitcnt lgkmcnt(0)")
    stamp(a, 1)
    srd(a, 12, 4, 5, S * D * 2)
    a("s_cmp_ge_u32 s31, 4")
    a("s_cselect_b32 s8, s10, s8")
    a("s_cselect_b32 s9, s11, s9")
    srd(a, 16, 8, 9, D * D * 2)
    srd(a, 20, 46, 47, 14 << 20)
    srd(a, 24, 44, 45, 256)

    def load_stage(kk):
        slot = (kk % NSTG) * SLOT
        a(f"s_add_u32 m0, s37, {slot}")
        a(f"s_add_u32 s39, s35, {kk * 128}")
        for i in range(4):
            a(f"buffer_load_dwordx4 v{8 + i}, s[12:15], s39 offen offset:{i * 1024} lds")
        a(f"s_add_u32 m0, s37, {slot + 16384}")
        a(f"s_add_u32 s39, s36, {kk * 128}")
        for i in range(4):
            a(f"buffer_load_dwordx4 v{8 + i}, s[16:19], s39 offen offset:{i * 1024} lds")

    for kk in range(PRO):
        load_stage(kk)
    stamp(a, 2)
    issued = PRO
    for kk in range(NST):
        a(f"s_waitcnt vmcnt({(issued - 1 - kk) * 8})")
        slot = kk % NSTG
        ar, so = (12, slot * SLOT) if slot < 2 else (13, (slot - 2) * SLOT)
        for q in range(4):
            a(f"ds_read_b128 v[{16 + 4 * q}:{19 + 4 * q}], v{ar} offset:{so + 16 * q}")
        a("s_barrier")
        n_new = 0
        while issued < NST and issued - NSTG < kk and n_new < 2:
            load_stage(issued)
            issued += 1
            n_new += 1
        a("s_waitcnt lgkmcnt(0)")
        for r in range(16):
            a(f"v_dot2_f32_bf16 v{14 + (r & 1)}, v{16 + r}, s50, v{14 + (r & 1)}")
    a("s_lshl_b32 s34, s30, 2")
    a("v_mov_b32 v20, s34")
    a.label(f"{name}_poll")
    a("buffer_load_dword v21, v20, s[24:27], 0 offen sc0 sc1")
    a("s_waitcnt vmcnt(0)")
    a("v_readfirstlane_b32 s34, v21")
    a("s_cmp_ge_u32 s34, 8")
    a(f"s_cbranch_scc1 {name}_polled")
    a("s_sleep 2")
    a(f"s_branch {name}_poll")
    a.label(f"{name}_polled")
    a("v_and_b32 v20, 31, v2")
    a("v_lshlrev_b32 v20, 3, v20")
    a(f"s_add_u32 s38, s38, {WS_STATS}")
    a("buffer_load_dwordx2 v[22:23], v20, s[20:23], s38 offen sc0 sc1")
    a("v_add_f32 v14, v14, v15")
    a("s_nop 1")
    a(f"v_add_f32_dpp v14, v14, v14 quad_perm:[1,0,3,2] {DPP}")
    a("v_lshrrev_b32 v19, 1, v2")
    a("v_lshlrev_b32 v19, 2, v19")
    a("s_lshl_b32 s34, s33, 7")
    a(f"s_add_u32 s34, s34, {STATS + 1024}")
    a("v_add_u32 v19, s34, v19")
    a("ds_write_b32 v19, v14")
    a("v_lshrrev_b32 v20, 1, v20")
    a("s_lshl_b32 s34, s33, 7")
    a(f"s_add_u32 s34, s34, {STATS}")
    a("v_add_u32 v20, s34, v20")
    a("s_waitcnt vmcnt(0)")
    a("ds_write_b32 v20, v22")
    a("ds_write_b32 v20, v23 offset:512")
    a("s_waitcnt lgkmcnt(0)")
    stamp(a, 3)
    a("s_barrier")
    a(f"s_branch {name}_fin")
    a.label(f"{name}_cons")
    a("s_and_b32 s33, s32, 1")
    a("s_lshr_b32 s34, s32, 1")
    a("v_and_b32 v4, 15, v2")
    a("v_lshrrev_b32 v6, 4, v2")
    a("v_lshrrev_b32 v5, 2, v4")
    a("v_and_b32 v7, 3, v4")
    a("v_lshl_add_u32 v7, v5, 3, v7")
    a("v_lshrrev_b32 v20, 1, v4")
    a("v_lshrrev_b32 v21, 2, v4")
    a("v_lshrrev_b32 v22, 3, v4")
    a("v_xor_b32 v21, v21, v22")
    a("v_and_b32 v21, 1, v21")
    a("v_xor_b32 v20, v20, v21")
    a("v_xor_b32 v20, v20, v6")
    a("v_lshlrev_b32 v20, 4, v20")
    a("v_lshl_add_u32 v20, v7, 7, v20")
    a("s_lshl_b32 s35, s33, 13")
    a("s_lshl_b32 s36, s34, 13")
    a("s_add_u32 s36, s36, 16384")
    for g2 in range(2):
        a(f"v_add_u32 v{8 + 4 * g2}, s35, v20")
        a(f"v_xor_b32 v{9 + 4 * g2}, 64, v{8 + 4 * g2}")
        a(f"v_add_u32 v{10 + 4 * g2}, s36, v20")
        a(f"v_xor_b32 v{11 + 4 * g2}, 64, v{10 + 4 * g2}")
        if g2:
            for r in range(4):
                a(f"v_add_u32 v{8 + 4 * g2 + r}, {65536 * g2}, v{8 + 4 * g2 + r}")
    ACC = 32
    FB = 96
    for i in range(64):
        a(f"v_mov_b32 v{ACC + i}, 0")
    a("s_waitcnt lgkmcnt(0)")
    stamp(a, 1)
    srd(a, 20, 46, 47, 4 << 20)
    NU = NST * 2

    def read_list(u):
        s, ks = u // 2, u % 2
        slot = s % NSTG
        g2, so = slot // 2, (slot % 2) * SLOT
        f = FB + 32 * (u % 2)
        L = []
        for i in range(4):
            off = so + (i >> 1) * 4096 + (i & 1) * 512
            L.append(f"ds_read_b128 v[{f + 4 * i}:{f + 3 + 4 * i}], v{8 + 4 * g2 + ks} offset:{off}")
            L.append(f"ds_read_b128 v[{f + 16 + 4 * i}:{f + 19 + 4 * i}], v{10 + 4 * g2 + ks} offset:{off}")
        return L

    a("s_barrier")
    stamp(a, 2)
    for r in read_list(0):
        a(r)
    for u in range(NU):
        a("s_waitcnt lgkmcnt(0)")
        f = FB + 32 * (u % 2)
        nxt = read_list(u + 1) if u + 1 < NU else []
        n = 0
        for xi in range(4):
            for T in range(4):
                acc = ACC + (xi * 4 + T) * 4
                a(f"v_mfma_f32_16x16x32_bf16 v[{acc}:{acc + 3}], v[{f + 4 * xi}:{f + 3 + 4 * xi}], v[{f + 16 + 4 * T}:{f + 19 + 4 * T}], v[{acc}:{acc + 3}]")
                n += 1
                if n == 1 and nxt and (u + 1) % 2 == 0:
                    a("s_barrier")
                if nxt:
                    a(nxt.pop(0))
    stamp(a, 3)
    a("s_barrier")
    stamp(a, 4)
    a("s_lshl_b32 s35, s33, 8")
    a(f"s_add_u32 s35, s35, {STATS}")
    a("v_lshlrev_b32 v20, 5, v6")
    a("v_add_u32 v20, s35, v20")
    for blk in range(2):
        for h in range(2):
            a(f"ds_read_b128 v[{96 + 16 * blk + 4 * h}:{99 + 16 * blk + 4 * h}], v20 offset:{128 * blk + 16 * h}")
            a(f"ds_read_b128 v[{104 + 16 * blk + 4 * h}:{107 + 16 * blk + 4 * h}], v20 offset:{512 + 128 * blk + 16 * h}")
    a("s_lshl_b32 s36, s34, 8")
    a(f"s_add_u32 s36, s36, {STATS + 1024}")
    a("v_lshlrev_b32 v21, 2, v7")
    a("v_add_u32 v21, s36, v21")
    for T in range(4):
        a(f"ds_read_b32 v{128 + T}, v21 offset:{(T >> 1) * 128 + (T & 1) * 16}")
    a("s_lshl_b32 s35, s31, 3")
    a("s_lshl_b32 s36, s34, 2")
    a("s_add_u32 s35, s35, s36")
    a("s_lshl_b32 s35, s35, 6")
    a("s_lshl_b32 s36, s30, 2")
    a("s_add_u32 s35, s35, s36")
    a("s_lshl_b32 s36, s33, 1")
    a("s_add_u32 s35, s35, s36")
    a("s_lshl_b32 s35, s35, 10")
    for T in range(4):
        a(f"s_add_u32 s{40 + T}, s35, {T * 65536}")
    a("v_lshlrev_b32 v22, 4, v2")
    a("s_waitcnt lgkmcnt(0)")
    for blk in range(2):
        for T in range(4):
            o = 132 + 4 * ((blk * 4 + T) & 3)
            for hb in range(2):
                acc = ACC + ((blk * 2 + hb) * 4 + T) * 4
                for j in range(4):
                    a(f"v_fma_f32 v{acc + j}, -v{96 + 16 * blk + 4 * hb + j}, v{128 + T}, v{acc + j}")
                    a(f"v_mul_f32 v{acc + j}, v{acc + j}, v{104 + 16 * blk + 4 * hb + j}")
                a(f"v_cvt_pk_bf16_f32 v{o + 2 * hb}, v{acc}, v{acc + 1}")
                a(f"v_cvt_pk_bf16_f32 v{o + 2 * hb + 1}, v{acc + 2}, v{acc + 3}")
            a(f"buffer_store_dwordx4 v[{o}:{o + 3}], v22, s[20:23], s{40 + T} offen offset:{blk * 1024}" + (" sc0 sc1" if wt else ""))
    stamp(a, 5)
    a(f"s_branch {name}_fin")
    a.label(f"{name}_aux")
    a("v_mov_b32 v3, 0")
    a("ds_write_b32 v3, v3")
    a("s_waitcnt lgkmcnt(0)")
    a("s_barrier")
    stamp(a, 1)
    a("s_cmp_ge_u32 s32, 4")
    a(f"s_cbranch_scc1 {name}_pfw")
    a("s_lshl_b32 s33, s3, 8")
    a("s_lshl_b32 s34, s28, 4")
    a("s_add_u32 s33, s33, s34")
    a("s_lshl_b32 s34, s32, 2")
    a("s_add_u32 s33, s33, s34")
    a("v_lshrrev_b32 v3, 4, v2")
    a("v_and_b32 v4, 15, v2")
    a("v_lshlrev_b32 v5, 10, v3")
    a("v_lshl_add_u32 v5, v4, 4, v5")
    a("s_lshl_b32 s34, s33, 10")
    srd(a, 12, 4, 5, S * D * 2)
    for jj in range(4):
        a(f"buffer_load_dwordx4 v[{16 + 4 * jj}:{19 + 4 * jj}], v5, s[12:15], s34 offen offset:{256 * jj}")
    srd(a, 20, 46, 47, 14 << 20)
    srd(a, 28, 44, 45, 256)
    a("s_waitcnt vmcnt(0)")
    stamp(a, 2)
    X = 32
    for r in range(16):
        a(f"v_lshlrev_b32 v{X + 2 * r}, 16, v{16 + r}")
        a(f"v_and_b32 v{X + 2 * r + 1}, s53, v{16 + r}")
    a(f"v_add_f32 v8, v{X}, v{X + 1}")
    a(f"v_add_f32 v9, v{X + 2}, v{X + 3}")
    for r in range(4, 32, 2):
        a(f"v_add_f32 v8, v8, v{X + r}")
        a(f"v_add_f32 v9, v9, v{X + r + 1}")
    a("v_add_f32 v8, v8, v9")

    def red16(v):
        for pat in ("quad_perm:[1,0,3,2]", "quad_perm:[2,3,0,1]", "row_half_mirror", "row_mirror"):
            a("s_nop 1")
            a(f"v_add_f32_dpp v{v}, v{v}, v{v} {pat} {DPP}")

    red16(8)
    a("v_mul_f32 v8, 0x3b000000, v8")
    a("v_mov_b32 v10, 0")
    a("v_mov_b32 v11, 0")
    for r in range(0, 32, 2):
        a(f"v_sub_f32 v{X + r}, v{X + r}, v8")
        a(f"v_sub_f32 v{X + r + 1}, v{X + r + 1}, v8")
        a(f"v_fmac_f32 v10, v{X + r}, v{X + r}")
        a(f"v_fmac_f32 v11, v{X + r + 1}, v{X + r + 1}")
    a("v_add_f32 v10, v10, v11")
    red16(10)
    a("v_mul_f32 v10, 0x3b000000, v10")
    a("v_cvt_pk_bf16_f32 v12, v8, v8")
    a("v_lshlrev_b32 v12, 16, v12")
    a("v_cvt_pk_bf16_f32 v10, v10, v10")
    a("v_lshlrev_b32 v10, 16, v10")
    a("v_add_f32 v10, 0x3727c5ac, v10")
    a("v_cvt_pk_bf16_f32 v10, v10, v10")
    a("v_lshlrev_b32 v10, 16, v10")
    a("v_sqrt_f32 v10, v10")
    a("s_nop 0")
    a("v_cvt_pk_bf16_f32 v10, v10, v10")
    a("v_lshlrev_b32 v10, 16, v10")
    a("v_rcp_f32 v13, v10")
    a("v_lshlrev_b32 v14, 3, v3")
    a("s_lshl_b32 s36, s33, 3")
    a(f"s_add_u32 s36, s36, {WS_STATS}")
    a("v_cmp_eq_u32 vcc, 0, v4")
    a("s_and_saveexec_b64 s[54:55], vcc")
    a("buffer_store_dwordx2 v[12:13], v14, s[20:23], s36 offen sc0 sc1")
    a("s_mov_b64 exec, s[54:55]")
    a("s_waitcnt vmcnt(0)")
    stamp(a, 3)
    a("v_mov_b32 v14, 0")
    a("v_mov_b32 v15, 1")
    a("v_cmp_eq_u32 vcc, 0, v2")
    a("s_and_saveexec_b64 s[54:55], vcc")
    a("ds_add_rtn_u32 v6, v14, v15")
    a("s_waitcnt lgkmcnt(0)")
    a("v_readfirstlane_b32 s36, v6")
    a("s_cmp_lg_u32 s36, 3")
    a(f"s_cbranch_scc1 {name}_nosig")
    a("s_lshr_b32 s36, s33, 7")
    a("s_lshl_b32 s36, s36, 2")
    a("v_mov_b32 v14, s36")
    a("buffer_atomic_add v15, v14, s[28:31], 0 offen")
    a.label(f"{name}_nosig")
    a("s_mov_b64 exec, s[54:55]")
    a(f"s_branch {name}_fin")
    a.label(f"{name}_pfw")
    a("v_lshlrev_b32 v6, 7, v2")
    a("v_lshrrev_b32 v7, 4, v2")
    a("v_lshlrev_b32 v7, 12, v7")
    a("v_and_b32 v8, 15, v2")
    a("v_lshl_add_u32 v7, v8, 7, v7")
    a("s_lshl_b32 s35, s28, 2")
    a("s_add_u32 s35, s35, s32")
    a("s_sub_u32 s35, s35, 4")
    srd(a, 16, 8, 9, D * D * 2)
    srd(a, 20, 10, 11, D * D * 2)
    a("s_lshl_b32 s36, s35, 13")
    a("buffer_load_dword v10, v6, s[16:19], s36 offen")
    a("buffer_load_dword v11, v6, s[20:23], s36 offen")
    a("s_and_b32 s48, s3, 1")
    a("s_cmp_eq_u32 s48, 1")
    a("s_cselect_b32 s40, s42, s40")
    a("s_cselect_b32 s41, s43, s41")
    srd(a, 24, 40, 41, S * S * 2)
    a("s_lshr_b32 s48, s3, 2")
    a("s_lshl_b32 s48, s48, 10")
    a("s_lshl_b32 s49, s35, 4")
    a("s_add_u32 s48, s48, s49")
    a("s_lshl_b32 s48, s48, 12")
    a("s_bfe_u32 s49, s3, 0x10001")
    a("s_lshl_b32 s49, s49, 11")
    a("s_add_u32 s48, s48, s49")
    if pace:
        a("s_waitcnt vmcnt(0)")
    stamp(a, 2)
    if pf:
        if pfq < 4:
            a(f"v_cmp_gt_u32 vcc, {4 * pfq}, v8")
            a("s_and_saveexec_b64 s[54:55], vcc")
        for ii in range(4):
            a(f"s_add_u32 s49, s48, {ii * 16384}")
            a(f"buffer_load_dword v{12 + ii}, v7, s[24:27], s49 offen")
        if pfq < 4:
            a("s_mov_b64 exec, s[54:55]")
    a.label(f"{name}_fin")
    stamp_flush(a, 1, 6, 46, 47)
    a.label(f"{name}_done")
    a("s_endpgm")
    return kernel_desc(name, 160, 64, 160)


def gen_k1e(a, name, wt=1, PRO=4, pf=1, pace=1, U1=6, U2=9):
    NSTG, SLOT, NST = 5, 32768, 8
    CS = 3 * SLOT
    kernel_begin(a, name)
    a("s_cmp_ge_u32 s2, 256")
    a(f"s_cbranch_scc1 {name}_done")
    stamp(a, 0)
    a("s_load_dwordx2 s[4:5], s[0:1], 0")
    a("s_load_dwordx4 s[8:11], s[0:1], 24")
    a("s_load_dwordx4 s[44:47], s[0:1], 88")
    a("s_load_dwordx4 s[40:43], s[0:1], 8")
    a("s_and_b32 s3, s2, 7")
    a("s_lshr_b32 s28, s2, 4")
    a("s_and_b32 s29, s3, 1")
    a("s_bfe_u32 s27, s3, 0x10001")
    a("s_lshr_b32 s26, s3, 2")
    a("s_lshl_b32 s30, s27, 3")
    a("s_lshl_b32 s34, s26, 2")
    a("s_add_u32 s30, s30, s34")
    a("s_and_b32 s34, s28, 3")
    a("s_add_u32 s30, s30, s34")
    a("s_lshr_b32 s31, s28, 2")
    a("v_lshrrev_b32 v1, 6, v0")
    a("v_and_b32 v2, 63, v0")
    a("s_nop 0")
    a("v_readfirstlane_b32 s32, v1")
    a("s_mov_b32 s53, 0xffff0000")
    a("s_bitcmp1_b32 s2, 3")
    a(f"s_cbranch_scc1 {name}_aux")
    a("s_cmp_lt_u32 s32, 4")
    a(f"s_cbranch_scc1 {name}_cons")
    a("s_sub_u32 s33, s32, 4")
    a("v_lshrrev_b32 v3, 3, v2")
    a("v_and_b32 v4, 7, v2")
    a("v_bfe_u32 v5, v2, 4, 1")
    a("v_xor_b32 v4, v4, v5")
    a("v_lshlrev_b32 v3, 10, v3")
    for i in range(4):
        g0g1 = (i & 1) ^ (i >> 1)
        a(f"v_xor_b32 v{8 + i}, {(2 * i) ^ g0g1}, v4")
        a(f"v_lshl_add_u32 v{8 + i}, v{8 + i}, 4, v3")
        if i:
            a(f"v_add_u32 v{8 + i}, {i * (8192 - 1024)}, v{8 + i}")
    a("s_lshl_b32 s34, s33, 5")
    a("s_lshl_b32 s35, s30, 7")
    a("s_add_u32 s35, s35, s34")
    a("s_lshl_b32 s35, s35, 10")
    a("s_lshl_b32 s36, s31, 7")
    a("s_add_u32 s36, s36, s34")
    a("s_lshl_b32 s36, s36, 10")
    a("s_lshl_b32 s37, s33, 12")
    a("v_lshlrev_b32 v12, 6, v2")
    a("v_add_u32 v12, s37, v12")
    a("v_add_u32 v12, 16384, v12")
    a(f"v_add_u32 v13, {2 * SLOT}, v12")
    a(f"v_add_u32 v6, {4 * SLOT}, v12")
    a("v_mov_b32 v14, 0")
    a("v_mov_b32 v15, 0")
    a("s_mov_b32 s50, 0x3f803f80")
    a("s_waitcnt lgkmcnt(0)")
    stamp(a, 1)
    srd(a, 12, 4, 5, S * D * 2)
    a("s_cmp_eq_u32 s29, 1")
    a("s_cselect_b32 s8, s10, s8")
    a("s_cselect_b32 s9, s11, s9")
    srd(a, 16, 8, 9, D * D * 2)

    def load_stage(kk):
        slot = (kk % NSTG) * SLOT
        a(f"s_add_u32 m0, s37, {slot}")
        a(f"s_add_u32 s39, s35, {kk * 128}")
        for i in range(4):
            a(f"buffer_load_dwordx4 v{8 + i}, s[12:15], s39 offen offset:{i * 1024} lds")
        a(f"s_add_u32 m0, s37, {slot + 16384}")
        a(f"s_add_u32 s39, s36, {kk * 128}")
        for i in range(4):
            a(f"buffer_load_dwordx4 v{8 + i}, s[16:19], s39 offen offset:{i * 1024} lds")

    for kk in range(PRO):
        load_stage(kk)
    stamp(a, 2)
    issued = PRO
    for kk in range(NST):
        a(f"s_waitcnt vmcnt({(issued - 1 - kk) * 8})")
        slot = kk % NSTG
        ar, so = ((12, 13, 6)[slot // 2], (slot % 2) * SLOT)
        for q in range(4):
            a(f"ds_read_b128 v[{16 + 4 * q}:{19 + 4 * q}], v{ar} offset:{so + 16 * q}")
        a("s_barrier")
        n_new = 0
        while issued < NST and issued - NSTG < kk and n_new < 2:
            load_stage(issued)
            issued += 1
            n_new += 1
        a("s_waitcnt lgkmcnt(0)")
        for r in range(16):
            a(f"v_dot2_f32_bf16 v{14 + (r & 1)}, v{16 + r}, s50, v{14 + (r & 1)}")
    a("s_nop 2")
    a("v_add_f32 v14, v14, v15")
    a("s_nop 1")
    a(f"v_add_f32_dpp v14, v14, v14 quad_perm:[1,0,3,2] {DPP}")
    a("v_lshrrev_b32 v19, 1, v2")
    a("v_lshlrev_b32 v19, 2, v19")
    a("s_lshl_b32 s34, s33, 7")
    a(f"s_add_u32 s34, s34, {CS}")
    a("v_add_u32 v19, s34, v19")
    a("ds_write_b32 v19, v14")
    a("s_waitcnt lgkmcnt(0)")
    stamp(a, 3)
    a("s_barrier")
    a(f"s_branch {name}_fin")
    a.label(f"{name}_cons")
    a("s_and_b32 s33, s32, 1")
    a("s_lshr_b32 s34, s32, 1")
    a("v_and_b32 v4, 15, v2")
    a("v_lshrrev_b32 v6, 4, v2")
    a("v_lshrrev_b32 v5, 2, v4")
    a("v_and_b32 v7, 3, v4")
    a("v_lshl_add_u32 v7, v5, 3, v7")
    a("v_lshrrev_b32 v20, 1, v4")
    a("v_lshrrev_b32 v21, 2, v4")
    a("v_lshrrev_b32 v22, 3, v4")
    a("v_xor_b32 v21, v21, v22")
    a("v_and_b32 v21, 1, v21")
    a("v_xor_b32 v20, v20, v21")
    a("v_xor_b32 v20, v20, v6")
    a("v_lshlrev_b32 v20, 4, v20")
    a("v_lshl_add_u32 v20, v7, 7, v20")
    a("s_lshl_b32 s35, s33, 13")
    a("s_lshl_b32 s36, s34, 13")
    a("s_add_u32 s36, s36, 16384")
    for g2 in range(3):
        a(f"v_add_u32 v{8 + 4 * g2}, s35, v20")
        a(f"v_xor_b32 v{9 + 4 * g2}, 64, v{8 + 4 * g2}")
        a(f"v_add_u32 v{10 + 4 * g2}, s36, v20")
        a(f"v_xor_b32 v{11 + 4 * g2}, 64, v{10 + 4 * g2}")
        if g2:
            for r in range(4):
                a(f"v_add_u32 v{8 + 4 * g2 + r}, {65536 * g2}, v{8 + 4 * g2 + r}")
    ACC = 32
    FB = 96
    ST = 160
    for i in range(64):
        a(f"v_mov_b32 v{ACC + i}, 0")
    a("s_lshl_b32 s38, s30, 7")
    a("s_lshl_b32 s39, s33, 6")
    a("s_add_u32 s38, s38, s39")
    a("s_lshl_b32 s38, s38, 3")
    a(f"s_add_u32 s38, s38, {WS_STATS}")
    a("v_lshlrev_b32 v23, 6, v6")
    a("s_lshl_b32 s39, s30, 2")
    a("v_mov_b32 v24, s39")
    a("s_waitcnt lgkmcnt(0)")
    stamp(a, 1)
    srd(a, 20, 46, 47, 14 << 20)
    srd(a, 24, 44, 45, 256)
    NU = NST * 2

    def read_list(u):
        s, ks = u // 2, u % 2
        slot = s % NSTG
        g2, so = slot // 2, (slot % 2) * SLOT
        f = FB + 32 * (u % 2)
        L = []
        for i in range(4):
            off = so + (i >> 1) * 4096 + (i & 1) * 512
            L.append(f"ds_read_b128 v[{f + 4 * i}:{f + 3 + 4 * i}], v{8 + 4 * g2 + ks} offset:{off}")
            L.append(f"ds_read_b128 v[{f + 16 + 4 * i}:{f + 19 + 4 * i}], v{10 + 4 * g2 + ks} offset:{off}")
        return L

    def stats_loads():
        for blk in range(2):
            for q4 in range(4):
                r = ST + 16 * blk + 4 * q4
                a(f"buffer_load_dwordx4 v[{r}:{r + 3}], v23, s[20:23], s38 offen offset:{256 * blk + 16 * q4} sc0 sc1")

    a("s_barrier")
    stamp(a, 2)
    for r in read_list(0):
        a(r)
    for u in range(NU):
        a("s_waitcnt lgkmcnt(0)")
        f = FB + 32 * (u % 2)
        nxt = read_list(u + 1) if u + 1 < NU else []
        n = 0
        for xi in range(4):
            for T in range(4):
                acc = ACC + (xi * 4 + T) * 4
                a(f"v_mfma_f32_16x16x32_bf16 v[{acc}:{acc + 3}], v[{f + 4 * xi}:{f + 3 + 4 * xi}], v[{f + 16 + 4 * T}:{f + 19 + 4 * T}], v[{acc}:{acc + 3}]")
                n += 1
                if n == 1 and nxt and (u + 1) % 2 == 0:
                    a("s_barrier")
                if nxt:
                    a(nxt.pop(0))
                if u == U1 and n == 10:
                    a("buffer_load_dword v25, v24, s[24:27], 0 offen sc0 sc1")
                if u == U2 and n == 10:
                    a("s_waitcnt vmcnt(0)")
                    a("v_readfirstlane_b32 s60, v25")
                    a("s_cmp_lt_u32 s60, 2")
                    a(f"s_cbranch_scc1 {name}_notyet")
                    stats_loads()
                    a.label(f"{name}_notyet")
    stamp(a, 3)
    a("s_cmp_ge_u32 s60, 2")
    a(f"s_cbranch_scc1 {name}_have")
    a.label(f"{name}_poll")
    a("buffer_load_dword v25, v24, s[24:27], 0 offen sc0 sc1")
    a("s_waitcnt vmcnt(0)")
    a("v_readfirstlane_b32 s60, v25")
    a("s_cmp_ge_u32 s60, 2")
    a(f"s_cbranch_scc1 {name}_polled")
    a("s_sleep 2")
    a(f"s_branch {name}_poll")
    a.label(f"{name}_polled")
    stats_loads()
    a.label(f"{name}_have")
    a("s_barrier")
    stamp(a, 4)
    a("s_lshl_b32 s36, s34, 8")
    a(f"s_add_u32 s36, s36, {CS}")
    a("v_lshlrev_b32 v21, 2, v7")
    a("v_add_u32 v21, s36, v21")
    for T in range(4):
        a(f"ds_read_b32 v{128 + T}, v21 offset:{(T >> 1) * 128 + (T & 1) * 16}")
    a("s_lshl_b32 s35, s29, 5")
    a("s_lshl_b32 s36, s31, 3")
    a("s_add_u32 s35, s35, s36")
    a("s_lshl_b32 s36, s34, 2")
    a("s_add_u32 s35, s35, s36")
    a("s_lshl_b32 s35, s35, 6")
    a("s_lshl_b32 s36, s30, 2")
    a("s_add_u32 s35, s35, s36")
    a("s_lshl_b32 s36, s33, 1")
    a("s_add_u32 s35, s35, s36")
    a("s_lshl_b32 s35, s35, 10")
    for T in range(4):
        a(f"s_add_u32 s{40 + T}, s35, {T * 65536}")
    a("v_lshlrev_b32 v22, 4, v2")
    a("s_waitcnt vmcnt(0) lgkmcnt(0)")
    for blk in range(2):
        for T in range(4):
            o = 132 + 4 * ((blk * 4 + T) & 3)
            for hb in range(2):
                acc = ACC + ((blk * 2 + hb) * 4 + T) * 4
                for j in range(4):
                    sr = ST + 16 * blk + 2 * (4 * hb + j)
                    a(f"v_fma_f32 v{acc + j}, -v{sr}, v{128 + T}, v{acc + j}")
                    a(f"v_mul_f32 v{acc + j}, v{acc + j}, v{sr + 1}")
                a(f"v_cvt_pk_bf16_f32 v{o + 2 * hb}, v{acc}, v{acc + 1}")
                a(f"v_cvt_pk_bf16_f32 v{o + 2 * hb + 1}, v{acc + 2}, v{acc + 3}")
            a(f"buffer_store_dwordx4 v[{o}:{o + 3}], v22, s[20:23], s{40 + T} offen offset:{blk * 1024}" + (" sc0 sc1" if wt else ""))
    stamp(a, 5)
    a(f"s_branch {name}_fin")
    a.label(f"{name}_aux")
    a("v_lshlrev_b32 v6, 7, v2")
    a("v_lshrrev_b32 v7, 4, v2")
    a("v_lshlrev_b32 v7, 12, v7")
    a("v_and_b32 v8, 15, v2")
    a("v_lshl_add_u32 v7, v8, 7, v7")
    a("s_lshl_b32 s35, s28, 3")
    a("s_add_u32 s35, s35, s32")
    a("s_lshl_b32 s48, s26, 10")
    a("s_lshl_b32 s49, s35, 3")
    a("s_add_u32 s48, s48, s49")
    a("s_lshl_b32 s48, s48, 12")
    a("s_lshl_b32 s49, s27, 11")
    a("s_add_u32 s48, s48, s49")
    a("s_add_u32 s49, s48, 16384")
    a("s_waitcnt lgkmcnt(0)")
    stamp(a, 1)
    a("s_cmp_eq_u32 s29, 1")
    a("s_cselect_b32 s40, s42, s40")
    a("s_cselect_b32 s41, s43, s41")
    a("s_cselect_b32 s8, s10, s8")
    a("s_cselect_b32 s9, s11, s9")
    srd(a, 24, 40, 41, S * S * 2)
    srd(a, 12, 4, 5, S * D * 2)
    srd(a, 16, 8, 9, D * D * 2)
    a("s_cmp_ge_u32 s28, 12")
    a(f"s_cbranch_scc1 {name}_statwg")
    a("s_lshl_b32 s36, s27, 20")
    a("s_lshl_b32 s37, s26, 19")
    a("s_add_u32 s36, s36, s37")
    a("s_lshl_b32 s37, s35, 13")
    a("s_cmp_lt_u32 s35, 64")
    a(f"s_cbranch_scc0 {name}_t1")
    a("s_add_u32 s36, s36, s37")
    a("buffer_load_dword v10, v6, s[12:15], s36 offen")
    a("s_cmp_lt_u32 s35, 32")
    a(f"s_cbranch_scc0 {name}_t2")
    a("s_add_u32 s37, s37, 262144")
    a("buffer_load_dword v11, v6, s[16:19], s37 offen")
    a(f"s_branch {name}_t2")
    a.label(f"{name}_t1")
    a("s_sub_u32 s37, s37, 524288")
    a("buffer_load_dword v11, v6, s[16:19], s37 offen")
    a.label(f"{name}_t2")
    if pace:
        a("s_waitcnt vmcnt(0)")
    a(f"s_branch {name}_cpf")
    a.label(f"{name}_statwg")
    a("v_mov_b32 v3, 0")
    a("ds_write_b32 v3, v3")
    a("s_lshl_b32 s33, s3, 2")
    a("s_add_u32 s33, s33, s28")
    a("s_sub_u32 s33, s33, 12")
    a("s_lshl_b32 s33, s33, 6")
    a("s_lshl_b32 s34, s32, 3")
    a("s_add_u32 s33, s33, s34")
    a("v_lshrrev_b32 v3, 3, v2")
    a("v_and_b32 v4, 7, v2")
    a("v_lshlrev_b32 v5, 10, v3")
    a("v_lshl_add_u32 v5, v4, 4, v5")
    a("s_lshl_b32 s34, s33, 10")
    for jj in range(8):
        a(f"buffer_load_dwordx4 v[{16 + 4 * jj}:{19 + 4 * jj}], v5, s[12:15], s34 offen offset:{128 * jj}")
    srd(a, 20, 46, 47, 14 << 20)
    srd(a, 28, 44, 45, 256)
    a("s_waitcnt lgkmcnt(0)")
    a("s_barrier")
    a("s_waitcnt vmcnt(0)")
    stamp(a, 2)
    X = 64
    for r in range(32):
        a(f"v_lshlrev_b32 v{X + 2 * r}, 16, v{16 + r}")
        a(f"v_and_b32 v{X + 2 * r + 1}, s53, v{16 + r}")
    a(f"v_add_f32 v8, v{X}, v{X + 1}")
    a(f"v_add_f32 v9, v{X + 2}, v{X + 3}")
    for r in range(4, 64, 2):
        a(f"v_add_f32 v8, v8, v{X + r}")
        a(f"v_add_f32 v9, v9, v{X + r + 1}")
    a("v_add_f32 v8, v8, v9")

    def red8(v):
        for pat in ("quad_perm:[1,0,3,2]", "quad_perm:[2,3,0,1]", "row_half_mirror"):
            a("s_nop 1")
            a(f"v_add_f32_dpp v{v}, v{v}, v{v} {pat} {DPP}")

    red8(8)
    a("v_mul_f32 v8, 0x3b000000, v8")
    a("v_mov_b32 v10, 0")
    a("v_mov_b32 v11, 0")
    for r in range(0, 64, 2):
        a(f"v_sub_f32 v{X + r}, v{X + r}, v8")
        a(f"v_sub_f32 v{X + r + 1}, v{X + r + 1}, v8")
        a(f"v_fmac_f32 v10, v{X + r}, v{X + r}")
        a(f"v_fmac_f32 v11, v{X + r + 1}, v{X + r + 1}")
    a("v_add_f32 v10, v10, v11")
    red8(10)
    a("v_mul_f32 v10, 0x3b000000, v10")
    a("v_cvt_pk_bf16_f32 v12, v8, v8")
    a("v_lshlrev_b32 v12, 16, v12")
    a("v_cvt_pk_bf16_f32 v10, v10, v10")
    a("v_lshlrev_b32 v10, 16, v10")
    a("v_add_f32 v10, 0x3727c5ac, v10")
    a("v_cvt_pk_bf16_f32 v10, v10, v10")
    a("v_lshlrev_b32 v10, 16, v10")
    a("v_sqrt_f32 v10, v10")
    a("s_nop 0")
    a("v_cvt_pk_bf16_f32 v10, v10, v10")
    a("v_lshlrev_b32 v10, 16, v10")
    a("v_rcp_f32 v13, v10")
    a("v_lshlrev_b32 v14, 3, v3")
    a("s_lshl_b32 s36, s33, 3")
    a(f"s_add_u32 s36, s36, {WS_STATS}")
    a("v_cmp_eq_u32 vcc, 0, v4")
    a("s_and_saveexec_b64 s[54:55], vcc")
    a("buffer_store_dwordx2 v[12:13], v14, s[20:23], s36 offen sc0 sc1")
    a("s_mov_b64 exec, s[54:55]")
    a("s_waitcnt vmcnt(0)")
    a("s_barrier")
    a("s_cmp_lg_u32 s32, 0")
    a(f"s_cbranch_scc1 {name}_sig_done")
    a("s_lshr_b32 s36, s33, 7")
    a("s_lshl_b32 s36, s36, 2")
    a("v_mov_b32 v14, s36")
    a("v_mov_b32 v15, 1")
    a("v_cmp_eq_u32 vcc, 0, v2")
    a("s_and_saveexec_b64 s[54:55], vcc")
    a("buffer_atomic_add v15, v14, s[28:31], 0 offen")
    a("s_mov_b64 exec, s[54:55]")
    a("s_waitcnt vmcnt(0)")
    a.label(f"{name}_sig_done")
    a("s_barrier")
    stamp(a, 3)
    a.label(f"{name}_cpf")
    if pf:
        a("buffer_load_dword v12, v7, s[24:27], s48 offen")
        a("buffer_load_dword v13, v7, s[24:27], s49 offen")
    a.label(f"{name}_fin")
    stamp_flush(a, 1, 6, 46, 47)
    a.label(f"{name}_done")
    a("s_endpgm")
    return kernel_desc(name, 192, 64, 192)


def gen_k3(a, name):
    kernel_begin(a, name)
    a("s_cmp_ge_u32 s2, 256")
    a(f"s_cbranch_scc1 {name}_done")
    stamp(a, 0)
    a("s_load_dwordx2 s[4:5], s[0:1], 0")
    a("s_load_dwordx2 s[6:7], s[0:1], 48")
    a("s_load_dwordx2 s[8:9], s[0:1], 80")
    a("s_load_dwordx2 s[10:11], s[0:1], 96")
    a("v_lshrrev_b32 v1, 6, v0")
    a("v_and_b32 v2, 63, v0")
    a("s_nop 0")
    a("v_readfirstlane_b32 s32, v1")
    a("v_lshlrev_b32 v3, 4, v2")
    a("s_waitcnt lgkmcnt(0)")
    stamp(a, 1)
    srd(a, 12, 4, 5, S * D * 2)
    srd(a, 16, 6, 7, D * 2)
    srd(a, 20, 8, 9, S * D * 2)
    srd(a, 24, 10, 11, 14 << 20)
    a("s_lshl_b32 s33, s2, 3")
    a("s_lshl_b32 s34, s32, 1")
    a("s_add_u32 s33, s33, s34")
    a("s_lshl_b32 s34, s33, 10")
    a(f"s_add_u32 s35, s34, {WS_P}")
    a(f"s_add_u32 s36, s34, {WS_P + (4 << 20)}")
    a(f"s_add_u32 s43, s34, {WS_P + (2 << 20)}")
    a(f"s_add_u32 s44, s34, {WS_P + (6 << 20)}")
    for R in range(2):
        B = 16 + 64 * R
        a(f"buffer_load_dwordx4 v[{B}:{B + 3}], v3, s[24:27], s35 offen offset:{1024 * R}")
        a(f"buffer_load_dwordx4 v[{B + 12}:{B + 15}], v3, s[24:27], s43 offen offset:{1024 * R}")
        a(f"buffer_load_dwordx4 v[{B + 4}:{B + 7}], v3, s[24:27], s36 offen offset:{1024 * R}")
        a(f"buffer_load_dwordx4 v[{B + 56}:{B + 59}], v3, s[24:27], s44 offen offset:{1024 * R}")
        a(f"buffer_load_dwordx4 v[{B + 8}:{B + 11}], v3, s[12:15], s34 offen offset:{1024 * R}")
    a("buffer_load_dwordx4 v[8:11], v3, s[16:19], 0 offen")
    a("s_mov_b32 s53, 0xffff0000")
    a("s_waitcnt vmcnt(1)")
    stamp(a, 2)

    def unpack(dst, src):
        a(f"v_lshlrev_b32 v{dst}, 16, v{src}")
        a(f"v_and_b32 v{dst + 1}, s53, v{src}")

    for R in range(2):
        B = 16 + 64 * R
        H, T = B + 16, B + 24
        for i in range(4):
            unpack(T, B + i)
            unpack(T + 2, B + 12 + i)
            unpack(T + 4, B + 4 + i)
            unpack(T + 6, B + 56 + i)
            a(f"v_add_f32 v{T}, v{T}, v{T + 2}")
            a(f"v_add_f32 v{T + 1}, v{T + 1}, v{T + 3}")
            a(f"v_add_f32 v{T + 4}, v{T + 4}, v{T + 6}")
            a(f"v_add_f32 v{T + 5}, v{T + 5}, v{T + 7}")
            a(f"v_cvt_pk_bf16_f32 v{T + 8}, v{T}, v{T + 1}")
            a(f"v_cvt_pk_bf16_f32 v{T + 9}, v{T + 4}, v{T + 5}")
            unpack(T, T + 8)
            unpack(T + 2, T + 9)
            a(f"v_sub_f32 v{T}, v{T}, v{T + 2}")
            a(f"v_sub_f32 v{T + 1}, v{T + 1}, v{T + 3}")
            a(f"v_cvt_pk_bf16_f32 v{T + 4}, v{T}, v{T + 1}")
            unpack(T, T + 4)
            unpack(T + 2, B + 8 + i)
            a(f"v_add_f32 v{T}, v{T + 2}, v{T}")
            a(f"v_add_f32 v{T + 1}, v{T + 3}, v{T + 1}")
            a(f"v_cvt_pk_bf16_f32 v{B + 40 + i}, v{T}, v{T + 1}")
            unpack(H + 2 * i, B + 40 + i)
        St = B + 48
        a(f"v_add_f32 v{St}, v{H}, v{H + 1}")
        for i in range(2, 8):
            a(f"v_add_f32 v{St}, v{St}, v{H + i}")
    for R in range(2):
        B = 16 + 64 * R
        wave_allreduce(a, "v_add_f32", B + 48, B + 49)
    for R in range(2):
        B = 16 + 64 * R
        H, T, St = B + 16, B + 24, B + 48
        a(f"v_mul_f32 v{St}, 0x3b000000, v{St}")
        a(f"v_cvt_pk_bf16_f32 v{St + 1}, v{St}, v{St}")
        a(f"v_lshlrev_b32 v{St + 1}, 16, v{St + 1}")
        for i in range(8):
            a(f"v_sub_f32 v{T + i}, v{H + i}, v{St}")
        a(f"v_mul_f32 v{St + 2}, v{T}, v{T}")
        for i in range(1, 8):
            a(f"v_fmac_f32 v{St + 2}, v{T + i}, v{T + i}")
    for R in range(2):
        B = 16 + 64 * R
        wave_allreduce(a, "v_add_f32", B + 50, B + 51)
    a("s_waitcnt vmcnt(0)")
    for R in range(2):
        B = 16 + 64 * R
        H, T, St = B + 16, B + 24, B + 48
        v = St + 2
        a(f"v_mul_f32 v{v}, 0x3b000000, v{v}")
        a(f"v_cvt_pk_bf16_f32 v{v}, v{v}, v{v}")
        a(f"v_lshlrev_b32 v{v}, 16, v{v}")
        a(f"v_add_f32 v{v}, 0x3727c5ac, v{v}")
        a(f"v_cvt_pk_bf16_f32 v{v}, v{v}, v{v}")
        a(f"v_lshlrev_b32 v{v}, 16, v{v}")
        a(f"v_sqrt_f32 v{v}, v{v}")
        a("s_nop 0")
        a(f"v_cvt_pk_bf16_f32 v{v}, v{v}, v{v}")
        a(f"v_lshlrev_b32 v{v}, 16, v{v}")
        a(f"v_rcp_f32 v{v}, v{v}")
        a("s_nop 0")
        a(f"v_mov_b32 v{St + 4}, 0")
        for i in range(4):
            a(f"v_sub_f32 v{T}, v{H + 2 * i}, v{St + 1}")
            a(f"v_sub_f32 v{T + 1}, v{H + 2 * i + 1}, v{St + 1}")
            a(f"v_cvt_pk_bf16_f32 v{T + 2}, v{T}, v{T + 1}")
            unpack(T, T + 2)
            a(f"v_mul_f32 v{T}, v{T}, v{v}")
            a(f"v_mul_f32 v{T + 1}, v{T + 1}, v{v}")
            a(f"v_cvt_pk_bf16_f32 v{B + 44 + i}, v{T}, v{T + 1}")
            unpack(T, B + 44 + i)
            a(f"v_add_f32 v{T}, v{H + 2 * i}, v{T}")
            a(f"v_add_f32 v{T + 1}, v{H + 2 * i + 1}, v{T + 1}")
            a(f"v_cvt_pk_bf16_f32 v{B + 4 + i}, v{T}, v{T + 1}")
            a(f"v_dot2_f32_bf16 v{St + 4}, v{B + 44 + i}, v{8 + i}, v{St + 4}")
        a(f"buffer_store_dwordx4 v[{B + 4}:{B + 7}], v3, s[20:23], s34 offen offset:{1024 * R}")
    a("s_nop 2")
    for R in range(2):
        B = 16 + 64 * R
        wave_allreduce(a, "v_add_f32", B + 52, B + 53)
    for R in range(2):
        B = 16 + 64 * R
        v = B + 52
        a(f"v_cvt_pk_bf16_f32 v{v}, v{v}, v{v}")
        a(f"v_lshlrev_b32 v{v}, 16, v{v}")
        a(f"v_ashrrev_i32 v{v + 1}, 31, v{v}")
        a(f"v_or_b32 v{v + 1}, 0x80000000, v{v + 1}")
        a(f"v_xor_b32 v{v}, v{v}, v{v + 1}")
        a(f"v_and_b32 v{v}, s53, v{v}")
        a(f"s_sub_u32 s37, {2047 - R}, s33")
        a(f"v_or_b32 v{v}, s37, v{v}")
    a("v_max_u32 v4, v68, v132")
    a("s_lshl_b32 s37, s32, 2")
    a("v_mov_b32 v5, s37")
    a("ds_write_b32 v5, v4")
    stamp(a, 3)
    a("s_waitcnt lgkmcnt(0)")
    a("s_barrier")
    a("v_mov_b32 v5, 0")
    a("ds_read_b128 v[12:15], v5")
    a("s_waitcnt lgkmcnt(0)")
    a("v_max_u32 v12, v12, v13")
    a("v_max_u32 v14, v14, v15")
    a("v_max_u32 v12, v12, v14")
    a("s_nop 0")
    a("v_readfirstlane_b32 s38, v12")
    a("v_readfirstlane_b32 s39, v68")
    a("v_readfirstlane_b32 s40, v132")
    a(f"s_lshl_b32 s41, s2, 11")
    a(f"s_add_u32 s41, s41, {WS_CROW}")
    a(f"s_lshl_b32 s42, s2, 2")
    a(f"s_add_u32 s42, s42, {WS_CAND}")
    a("v_mov_b32 v5, 0")
    for R in range(2):
        B = 16 + 64 * R
        a(f"s_cmp_lg_u32 s38, s{39 + R}")
        a(f"s_cbranch_scc1 {name}_nw{R}")
        a(f"buffer_store_dwordx4 v[{B + 40}:{B + 43}], v3, s[24:27], s41 offen")
        a(f"buffer_store_dwordx4 v[{B + 44}:{B + 47}], v3, s[24:27], s41 offen offset:1024")
        a(f"buffer_store_dword v12, v5, s[24:27], s42 offen")
        a.label(f"{name}_nw{R}")
    stamp_flush(a, 3, 4, 10, 11)
    a.label(f"{name}_done")
    a("s_endpgm")
    return kernel_desc(name, 144, 64, 144)


NSL = 56


def emit_winner(a, vkey, t, ldsaddr_tmp, s_out):
    wave_allreduce(a, "v_max_u32", vkey, t)
    a("s_lshl_b32 s37, s32, 2")
    a(f"v_mov_b32 v{ldsaddr_tmp}, s37")
    a(f"ds_write_b32 v{ldsaddr_tmp}, v{vkey}")
    a("s_waitcnt lgkmcnt(0)")
    a("s_barrier")
    a(f"v_mov_b32 v{ldsaddr_tmp}, 0")
    a(f"ds_read_b64 v[{t}:{t + 1}], v{ldsaddr_tmp}")
    a(f"ds_read_b64 v[{t + 2}:{t + 3}], v{ldsaddr_tmp} offset:8")
    a("s_waitcnt lgkmcnt(0)")
    a(f"v_max_u32 v{t}, v{t}, v{t + 1}")
    a(f"v_max_u32 v{t + 2}, v{t + 2}, v{t + 3}")
    a(f"v_max_u32 v{t}, v{t}, v{t + 2}")
    a("s_nop 0")
    a(f"v_readfirstlane_b32 s{s_out}, v{t}")


def gen_k4(a, name):
    kernel_begin(a, name)
    a(f"s_cmp_ge_u32 s2, {NSL}")
    a(f"s_cbranch_scc1 {name}_done")
    stamp(a, 0)
    a("s_load_dwordx4 s[4:7], s[0:1], 56")
    a("s_load_dwordx2 s[8:9], s[0:1], 72")
    a("s_load_dwordx2 s[10:11], s[0:1], 96")
    a("v_lshrrev_b32 v1, 6, v0")
    a("v_and_b32 v2, 63, v0")
    a("s_nop 0")
    a("v_readfirstlane_b32 s32, v1")
    a("v_lshrrev_b32 v3, 2, v0")
    a("v_and_b32 v4, 3, v0")
    a("v_lshlrev_b32 v5, 2, v0")
    a("s_mov_b32 s33, 28672")
    a("v_mul_lo_u32 v6, v3, s33")
    a("v_lshl_add_u32 v6, v4, 4, v6")
    a("v_lshlrev_b32 v7, 4, v2")
    a("s_waitcnt lgkmcnt(0)")
    stamp(a, 1)
    srd(a, 12, 4, 5, D * F * 2)
    srd(a, 16, 6, 7, D * F * 2)
    srd(a, 20, 8, 9, D * F * 2)
    srd(a, 24, 10, 11, 14 << 20)
    a(f"s_mov_b32 s34, {WS_CAND}")
    a("buffer_load_dword v8, v5, s[24:27], s34 offen")
    a("s_lshl_b32 s34, s2, 6")
    G, U, W = 32, 64, 96
    for j in range(8):
        a(f"s_add_u32 s35, s34, {3584 * j}")
        a(f"buffer_load_dwordx4 v[{G + 4 * j}:{G + 4 * j + 3}], v6, s[12:15], s35 offen")
        a(f"buffer_load_dwordx4 v[{U + 4 * j}:{U + 4 * j + 3}], v6, s[16:19], s35 offen")
    a("s_lshl_b32 s35, s2, 5")
    a("s_lshl_b32 s36, s32, 3")
    a("s_add_u32 s35, s35, s36")
    a("s_lshl_b32 s35, s35, 10")
    for j in range(8):
        a(f"s_add_u32 s36, s35, {1024 * j}")
        a(f"buffer_load_dwordx4 v[{W + 4 * j}:{W + 4 * j + 3}], v7, s[20:23], s36 offen")
    a("s_waitcnt vmcnt(24)")
    stamp(a, 2)
    emit_winner(a, 8, 12, 9, 38)
    stamp(a, 3)
    a("s_and_b32 s39, s38, 0xffff")
    a("s_sub_u32 s39, 2047, s39")
    a("s_lshr_b32 s39, s39, 3")
    a("s_lshl_b32 s39, s39, 11")
    a(f"s_add_u32 s39, s39, {WS_CROW + 1024}")
    a("v_lshlrev_b32 v9, 4, v3")
    a("v_add_u32 v9, s39, v9")
    a("buffer_load_dwordx4 v[12:15], v9, s[24:27], 0 offen")
    a("s_mov_b32 s53, 0xffff0000")
    A = 128
    for i in range(16):
        a(f"v_mov_b32 v{A + i}, 0")
    a("s_waitcnt vmcnt(0)")
    stamp(a, 4)
    X = 16
    for i in range(4):
        a(f"v_lshlrev_b32 v{X + 2 * i}, 16, v{12 + i}")
        a(f"v_and_b32 v{X + 2 * i + 1}, s53, v{12 + i}")
    for j in range(8):
        for (M, ao) in ((G, 0), (U, 8)):
            for i in range(4):
                t = 24 + 2 * (i & 1)
                a(f"v_lshlrev_b32 v{t}, 16, v{M + 4 * j + i}")
                a(f"v_and_b32 v{t + 1}, s53, v{M + 4 * j + i}")
                a(f"v_fmac_f32 v{A + ao + 2 * i}, v{X + j}, v{t}")
                a(f"v_fmac_f32 v{A + ao + 2 * i + 1}, v{X + j}, v{t + 1}")
    a("s_nop 1")
    for i in range(8):
        a(f"v_permlane32_swap_b32 v{A + i}, v{A + i + 8}")
    a("s_nop 1")
    for i in range(8):
        a(f"v_add_f32 v{A + i}, v{A + i}, v{A + i + 8}")
    a("s_nop 1")
    for i in range(4):
        a(f"v_permlane16_swap_b32 v{A + i}, v{A + i + 4}")
    a("s_nop 1")
    for i in range(4):
        a(f"v_add_f32 v{A + i}, v{A + i}, v{A + i + 4}")
    a("s_nop 1")
    for i in range(4):
        a(f"v_add_f32_dpp v{A + i}, v{A + i}, v{A + i} row_ror:4 {DPP}")
    a("s_nop 1")
    for i in range(4):
        a(f"v_add_f32_dpp v{A + i}, v{A + i}, v{A + i} row_ror:8 {DPP}")
    a("v_and_b32 v9, 3, v2")
    a("v_lshlrev_b32 v9, 5, v9")
    a("v_bfe_u32 v10, v2, 4, 1")
    a("v_lshl_add_u32 v9, v10, 4, v9")
    a("v_bfe_u32 v10, v2, 5, 1")
    a("v_lshl_add_u32 v9, v10, 7, v9")
    a("s_lshl_b32 s37, s32, 8")
    a("v_add_u32 v9, s37, v9")
    a(f"ds_write_b128 v9, v[{A}:{A + 3}] offset:64")
    a("s_waitcnt lgkmcnt(0)")
    a("s_barrier")
    stamp(a, 5)
    a("v_and_b32 v9, 31, v2")
    a("v_lshlrev_b32 v9, 2, v9")
    for w in range(4):
        a(f"ds_read_b32 v{16 + w}, v9 offset:{64 + 256 * w}")
        a(f"ds_read_b32 v{20 + w}, v9 offset:{64 + 256 * w + 128}")
    a("s_waitcnt lgkmcnt(0)")
    a("v_add_f32 v16, v16, v17")
    a("v_add_f32 v18, v18, v19")
    a("v_add_f32 v20, v20, v21")
    a("v_add_f32 v22, v22, v23")
    a("v_add_f32 v16, v16, v18")
    a("v_add_f32 v20, v20, v22")
    a("v_cvt_pk_bf16_f32 v16, v16, v20")
    a("v_and_b32 v20, s53, v16")
    a("v_lshlrev_b32 v16, 16, v16")
    a("v_mul_f32 v17, 0xbfb8aa3b, v16")
    a("v_exp_f32 v17, v17")
    a("s_nop 0")
    a("v_add_f32 v17, 1.0, v17")
    a("v_rcp_f32 v17, v17")
    a("s_nop 0")
    a("v_mul_f32 v16, v16, v17")
    a("v_cvt_pk_bf16_f32 v16, v16, v16")
    a("v_lshlrev_b32 v16, 16, v16")
    a("v_mul_f32 v16, v16, v20")
    a("v_cvt_pk_bf16_f32 v16, v16, v16")
    a("v_lshlrev_b32 v16, 16, v16")
    a("s_lshl_b32 s37, s32, 3")
    for j in range(8):
        a(f"s_add_u32 s36, s37, {j}")
        a("s_nop 0")
        a(f"v_readlane_b32 s{40 + j}, v16, s36")
    for i in range(8):
        a(f"v_mov_b32 v{A + i}, 0")
    a("s_nop 1")
    for j in range(8):
        for i in range(4):
            t = 24 + 2 * (i & 1)
            a(f"v_lshlrev_b32 v{t}, 16, v{W + 4 * j + i}")
            a(f"v_and_b32 v{t + 1}, s53, v{W + 4 * j + i}")
            a(f"v_fmac_f32 v{A + 2 * i}, s{40 + j}, v{t}")
            a(f"v_fmac_f32 v{A + 2 * i + 1}, s{40 + j}, v{t + 1}")
    a("v_lshlrev_b32 v9, 5, v2")
    a("s_lshl_b32 s37, s32, 11")
    a("v_add_u32 v9, s37, v9")
    a(f"ds_write_b128 v9, v[{A}:{A + 3}] offset:2048")
    a(f"ds_write_b128 v9, v[{A + 4}:{A + 7}] offset:2064")
    a("s_waitcnt lgkmcnt(0)")
    a("s_barrier")
    a("v_lshlrev_b32 v9, 3, v0")
    for w in range(4):
        a(f"ds_read_b64 v[{16 + 2 * w}:{17 + 2 * w}], v9 offset:{2048 + 2048 * w}")
    a("s_waitcnt lgkmcnt(0)")
    a("v_add_f32 v16, v16, v18")
    a("v_add_f32 v17, v17, v19")
    a("v_add_f32 v20, v20, v22")
    a("v_add_f32 v21, v21, v23")
    a("v_add_f32 v16, v16, v20")
    a("v_add_f32 v17, v17, v21")
    a("s_lshl_b32 s37, s2, 11")
    a(f"s_add_u32 s37, s37, {WS_SLAB}")
    a("buffer_store_dwordx2 v[16:17], v9, s[24:27], s37 offen")
    stamp_flush(a, 4, 6, 10, 11)
    a.label(f"{name}_done")
    a("s_endpgm")
    return kernel_desc(name, 144, 64, 144)


def gen_k5(a, name):
    kernel_begin(a, name)
    a("s_cmp_ge_u32 s2, 16")
    a(f"s_cbranch_scc1 {name}_done")
    stamp(a, 0)
    a("s_load_dwordx2 s[8:9], s[0:1], 80")
    a("s_load_dwordx2 s[10:11], s[0:1], 96")
    a("v_lshrrev_b32 v1, 6, v0")
    a("v_and_b32 v2, 63, v0")
    a("s_nop 0")
    a("v_readfirstlane_b32 s32, v1")
    a("v_lshlrev_b32 v5, 2, v0")
    a("v_lshrrev_b32 v3, 3, v0")
    a("v_and_b32 v4, 7, v0")
    a("v_lshlrev_b32 v6, 11, v3")
    a("v_lshl_add_u32 v6, v4, 4, v6")
    a("s_waitcnt lgkmcnt(0)")
    stamp(a, 1)
    srd(a, 20, 8, 9, S * D * 2)
    srd(a, 24, 10, 11, 14 << 20)
    srd(a, 28, 10, 11, WS_SLAB + NSL * 2048)
    a(f"s_mov_b32 s34, {WS_CAND}")
    a("buffer_load_dword v8, v5, s[24:27], s34 offen")
    a("s_lshl_b32 s34, s2, 7")
    a(f"s_add_u32 s34, s34, {WS_SLAB}")
    a("s_add_u32 s35, s34, 65536")
    a("buffer_load_dwordx4 v[16:19], v6, s[28:31], s34 offen")
    a("buffer_load_dwordx4 v[20:23], v6, s[28:31], s35 offen")
    a("s_waitcnt vmcnt(2)")
    stamp(a, 2)
    emit_winner(a, 8, 12, 9, 38)
    a("s_and_b32 s39, s38, 0xffff")
    a("s_sub_u32 s39, 2047, s39")
    a("s_lshr_b32 s40, s39, 3")
    a("s_lshl_b32 s40, s40, 11")
    a(f"s_add_u32 s40, s40, {WS_CROW}")
    a("s_lshl_b32 s41, s2, 6")
    a("s_add_u32 s40, s40, s41")
    a("v_lshlrev_b32 v9, 3, v4")
    a("v_add_u32 v9, s40, v9")
    a("buffer_load_dwordx2 v[24:25], v9, s[24:27], 0 offen")
    a("buffer_load_dwordx2 v[26:27], v9, s[24:27], 0 offen offset:1024")
    a("s_waitcnt vmcnt(2)")
    for i in range(4):
        a(f"v_add_f32 v{16 + i}, v{16 + i}, v{20 + i}")
    a("s_nop 1")
    for i in range(4):
        a(f"v_add_f32_dpp v{16 + i}, v{16 + i}, v{16 + i} row_ror:8 {DPP}")
    for i in range(4):
        a(f"v_mov_b32 v{20 + i}, v{16 + i}")
    a("s_nop 1")
    for i in range(4):
        a(f"v_permlane16_swap_b32 v{16 + i}, v{20 + i}")
    a("s_nop 1")
    for i in range(4):
        a(f"v_add_f32 v{16 + i}, v{16 + i}, v{20 + i}")
    for i in range(4):
        a(f"v_mov_b32 v{20 + i}, v{16 + i}")
    a("s_nop 1")
    for i in range(4):
        a(f"v_permlane32_swap_b32 v{16 + i}, v{20 + i}")
    a("s_nop 1")
    for i in range(4):
        a(f"v_add_f32 v{16 + i}, v{16 + i}, v{20 + i}")
    a("v_lshlrev_b32 v10, 4, v4")
    a("s_lshl_b32 s37, s32, 7")
    a("v_add_u32 v11, s37, v10")
    a("ds_write_b128 v11, v[16:19] offset:64")
    a("s_waitcnt lgkmcnt(0)")
    a("s_barrier")
    for w in range(4):
        a(f"ds_read_b128 v[{32 + 4 * w}:{35 + 4 * w}], v10 offset:{64 + 128 * w}")
    a("s_and_b32 s42, s38, 0xffff0000")
    a("s_xor_b32 s43, s42, 0x80000000")
    a("s_not_b32 s44, s42")
    a("s_and_b32 s44, s44, 0xffff0000")
    a("s_cmp_ge_u32 s42, 0x80000000")
    a("s_cselect_b32 s42, s43, s44")
    a("v_mov_b32 v12, s42")
    a("v_mul_f32 v13, 0xbfb8aa3b, v12")
    a("v_exp_f32 v13, v13")
    a("s_nop 0")
    a("v_add_f32 v13, 1.0, v13")
    a("v_rcp_f32 v13, v13")
    a("s_nop 0")
    a("v_cvt_pk_bf16_f32 v13, v13, v13")
    a("v_lshlrev_b32 v13, 16, v13")
    a("s_mov_b32 s53, 0xffff0000")
    a("s_waitcnt vmcnt(0) lgkmcnt(0)")
    stamp(a, 3)
    for i in range(4):
        a(f"v_add_f32 v{32 + i}, v{32 + i}, v{36 + i}")
        a(f"v_add_f32 v{40 + i}, v{40 + i}, v{44 + i}")
        a(f"v_add_f32 v{32 + i}, v{32 + i}, v{40 + i}")
    for i in range(2):
        y0, y1 = 32 + 2 * i, 33 + 2 * i
        a(f"v_cvt_pk_bf16_f32 v48, v{y0}, v{y1}")
        a(f"v_lshlrev_b32 v{y0}, 16, v48")
        a(f"v_and_b32 v{y1}, s53, v48")
        a(f"v_mul_f32 v{y0}, v{y0}, v13")
        a(f"v_mul_f32 v{y1}, v{y1}, v13")
        a(f"v_cvt_pk_bf16_f32 v48, v{y0}, v{y1}")
        a(f"v_lshlrev_b32 v{y0}, 16, v48")
        a(f"v_and_b32 v{y1}, s53, v48")
        a(f"v_lshlrev_b32 v49, 16, v{26 + i}")
        a(f"v_and_b32 v50, s53, v{26 + i}")
        a(f"v_add_f32 v{y0}, v49, v{y0}")
        a(f"v_add_f32 v{y1}, v50, v{y1}")
        a(f"v_cvt_pk_bf16_f32 v48, v{y0}, v{y1}")
        a(f"v_lshlrev_b32 v{y0}, 16, v48")
        a(f"v_and_b32 v{y1}, s53, v48")
        a(f"v_lshlrev_b32 v49, 16, v{24 + i}")
        a(f"v_and_b32 v50, s53, v{24 + i}")
        a(f"v_add_f32 v{y0}, v49, v{y0}")
        a(f"v_add_f32 v{y1}, v50, v{y1}")
        a(f"v_cvt_pk_bf16_f32 v{52 + i}, v{y0}, v{y1}")
    a("s_lshl_b32 s39, s39, 10")
    a("s_add_u32 s39, s39, s41")
    a("v_lshlrev_b32 v9, 3, v4")
    a("v_add_u32 v9, s39, v9")
    a("v_cmp_gt_u32 vcc, 8, v0")
    a("s_and_saveexec_b64 s[46:47], vcc")
    a(f"s_cbranch_execz {name}_fin")
    a("buffer_store_dwordx2 v[52:53], v9, s[20:23], 0 offen")
    a.label(f"{name}_fin")
    a("s_mov_b64 exec, -1")
    stamp_flush(a, 5, 4, 10, 11)
    a.label(f"{name}_done")
    a("s_endpgm")
    return kernel_desc(name, 64, 64, 64)


HEADER = open(__file__.rsplit("/", 1)[0] + "/cdna_kernels/" + NAME + ".s.ref").read().split("; Override launch")[0]


def build(path, **opt):
    global STAMP
    STAMP = opt.get('stamp', 0)
    a = Asm()
    only = opt.get("only", 0)
    launches = [
        ("k1_kernel", 256, 512, 163840),
        ("k2_kernel", 256, 512, 163840),
        ("k3_kernel", 256, 256, 64),
        ("k4_kernel", NSL, 256, 10240),
        ("k5_kernel", 16, 256, 1024),
    ]
    if only:
        launches = [launches[int(ch) - 1] for ch in str(only)]
    hdr = HEADER
    for (k, g, b, l) in launches:
        hdr += f"; @launch kernel={k} grid=({g},1,1) block=({b},1,1) lds={l}\n"
    a.raw('.amdgcn_target "amdgcn-amd-amdhsa--gfx950"')
    descs = []
    descs.append(gen_k1e(a, "k1_kernel", wt=opt.get("wt1", 1), PRO=opt.get("PRO1", 4), pf=opt.get("prefetch", 1), pace=opt.get("pace", 1)))
    descs.append(gen_k2c(a, "k2_kernel", LA=opt.get("LA", 1), wt=opt.get("wt2", 1), PRO=opt.get("PRO2", 3), rot=opt.get("rot", 1), BARPOS=opt.get("BARPOS", 1), RSTEP=opt.get("RSTEP", 1)))
    descs.append(gen_k3(a, "k3_kernel"))
    descs.append(gen_k4(a, "k4_kernel"))
    descs.append(gen_k5(a, "k5_kernel"))
    open(path, "w").write(hdr + a.text() + "".join(descs))


if __name__ == "__main__":
    out = sys.argv[1] if len(sys.argv) > 1 else "cdna_kernels/" + NAME + ".s"
    opt = {}
    for kv in sys.argv[2:]:
        k, v = kv.split("=")
        opt[k] = int(v)
    build(out, **opt)
```

```python
import sys

NAME = "sequential_preLN__spectral_fnet__moe_arch_mod__prompt"

WS_AT = 0
WS_Y = 4 << 20
WS_CAND = 12 << 20
WS_CROW = (12 << 20) + 4096
WS_SLAB = (13 << 20)
WS_SIZE = 268435456

S, D, F = 2048, 512, 1792


class Asm:
    def __init__(self):
        self.lines = []

    def __call__(self, s):
        self.lines.append("    " + s)

    def label(self, l):
        self.lines.append(l + ":")

    def raw(self, s):
        self.lines.append(s)

    def text(self):
        return "\n".join(self.lines) + "\n"


class VM:
    def __init__(self, a):
        self.a = a
        self.q = []

    def issue(self, tag):
        self.q.append(tag)

    def wait(self, tag):
        idx = max(i for i, t in enumerate(self.q) if t == tag) if tag in self.q else None
        if idx is None:
            return
        n = len(self.q) - 1 - idx
        assert n <= 63
        self.a(f"s_waitcnt vmcnt({n})")
        self.q = self.q[idx + 1:]

    def wait_all(self):
        self.a("s_waitcnt vmcnt(0)")
        self.q = []


def srd(a, d, lo, hi, nbytes):
    a(f"s_mov_b32 s{d}, s{lo}")
    a(f"s_and_b32 s{d+1}, s{hi}, 0xffff")
    a(f"s_mov_b32 s{d+2}, {nbytes}")
    a(f"s_mov_b32 s{d+3}, 0x00020000")


def kernel_begin(a, name):
    a.raw(".text")
    a.raw(f".globl {name}")
    a.raw(".p2align 8")
    a.raw(f".type {name},@function")
    a.label(name)


def kernel_desc(name, vgpr, sgpr, accum):
    return f""".section .rodata,"a"
.p2align 6
.amdhsa_kernel {name}
  .amdhsa_next_free_vgpr {vgpr}
  .amdhsa_next_free_sgpr {102 if STAMP else sgpr}
  .amdhsa_accum_offset {accum}
  .amdhsa_group_segment_fixed_size 0
  .amdhsa_kernarg_size 104
  .amdhsa_user_sgpr_count 2
  .amdhsa_user_sgpr_kernarg_segment_ptr 1
  .amdhsa_system_sgpr_workgroup_id_x 1
  .amdhsa_float_denorm_mode_32 3
.end_amdhsa_kernel
"""


STAMP = 0
WS_STAMP = 16 << 20
_stamp_kid = {}


def stamp(a, i):
    if STAMP == 1:
        a(f"s_memrealtime s[{70 + 2 * i}:{71 + 2 * i}]")
    elif STAMP == 2:
        a(f"s_memtime s[{70 + 2 * i}:{71 + 2 * i}]")


def stamp_flush(a, kid, n, ws_lo, ws_hi, wave_sgpr="s32"):
    if not STAMP:
        return
    a("s_waitcnt vmcnt(0) lgkmcnt(0)")
    stamp(a, n)
    a(f"s_mov_b32 s92, s{ws_lo}")
    a(f"s_and_b32 s93, s{ws_hi}, 0xffff")
    a(f"s_mov_b32 s94, {WS_SIZE}")
    a("s_mov_b32 s95, 0x00020000")
    a(f"s_add_u32 s96, s2, {kid * 512}")
    a("s_lshl_b32 s96, s96, 4")
    a(f"s_add_u32 s96, s96, {wave_sgpr}")
    a("s_lshl_b32 s96, s96, 7")
    a(f"s_add_u32 s96, s96, {WS_STAMP}")
    a("s_waitcnt lgkmcnt(0)")
    a("v_mov_b32 v0, 0")
    for i in range(n + 1):
        a(f"v_mov_b32 v2, s{70 + 2 * i}")
        a(f"v_mov_b32 v3, s{71 + 2 * i}")
        a(f"buffer_store_dwordx2 v[2:3], v0, s[92:95], s96 offen offset:{8 * i}")
        a("s_nop 1")


DPP = "row_mask:0xf bank_mask:0xf"


def emit_perm32(a, dst, src, t):
    a(f"v_and_b32 v{dst}, 3, v{src}")
    a(f"v_lshrrev_b32 v{t}, 3, v{src}")
    a(f"v_lshl_or_b32 v{dst}, v{t}, 2, v{dst}")
    a(f"v_bfe_u32 v{t}, v{src}, 2, 1")
    a(f"v_lshl_or_b32 v{dst}, v{t}, 4, v{dst}")


def wave_allreduce(a, op, v, t):
    a("s_nop 1")
    a(f"{op}_dpp v{v}, v{v}, v{v} quad_perm:[1,0,3,2] {DPP}")
    a("s_nop 1")
    a(f"{op}_dpp v{v}, v{v}, v{v} quad_perm:[2,3,0,1] {DPP}")
    a("s_nop 1")
    a(f"{op}_dpp v{v}, v{v}, v{v} row_half_mirror {DPP}")
    a("s_nop 1")
    a(f"{op}_dpp v{v}, v{v}, v{v} row_mirror {DPP}")
    a(f"v_mov_b32 v{t}, v{v}")
    a("s_nop 1")
    a(f"v_permlane16_swap_b32 v{v}, v{t}")
    a("s_nop 1")
    a(f"{op} v{v}, v{v}, v{t}")
    a(f"v_mov_b32 v{t}, v{v}")
    a("s_nop 1")
    a(f"v_permlane32_swap_b32 v{v}, v{t}")
    a("s_nop 1")
    a(f"{op} v{v}, v{v}, v{t}")


def gen_k1(a, name, prefetch=True):
    kernel_begin(a, name)
    a("s_cmp_ge_u32 s2, 256")
    a(f"s_cbranch_scc1 {name}_done")
    stamp(a, 0)
    a("s_load_dwordx2 s[4:5], s[0:1], 0")
    a("s_load_dwordx4 s[8:11], s[0:1], 24")
    a("s_load_dwordx2 s[6:7], s[0:1], 96")
    a("s_load_dwordx4 s[36:39], s[0:1], 8")
    a("s_load_dwordx4 s[40:43], s[0:1], 56")
    a("s_load_dwordx2 s[44:45], s[0:1], 72")
    a("s_and_b32 s3, s2, 7")
    a("s_lshr_b32 s28, s2, 3")
    a("s_and_b32 s29, s28, 3")
    a("s_lshl_b32 s30, s3, 2")
    a("s_add_u32 s30, s30, s29")
    a("s_lshr_b32 s31, s28, 2")
    a("v_lshrrev_b32 v1, 6, v0")
    a("v_and_b32 v2, 63, v0")
    a("s_nop 0")
    a("v_readfirstlane_b32 s32, v1")
    a("v_lshrrev_b32 v3, 3, v2")
    a("v_and_b32 v4, 7, v2")
    a("s_waitcnt lgkmcnt(0)")
    stamp(a, 1)
    srd(a, 12, 4, 5, S * D * 2)
    a("s_cmp_ge_u32 s31, 4")
    a("s_cselect_b32 s8, s10, s8")
    a("s_cselect_b32 s9, s11, s9")
    srd(a, 16, 8, 9, D * D * 2)
    srd(a, 20, 6, 7, 4 << 20)
    a("s_lshl_b32 s33, s30, 6")
    a("s_lshl_b32 s34, s32, 3")
    a("s_add_u32 s33, s33, s34")
    a("s_lshl_b32 s33, s33, 10")
    a("v_lshlrev_b32 v5, 10, v3")
    a("v_lshl_add_u32 v5, v4, 4, v5")
    XR = 32
    for j in range(8):
        a(f"buffer_load_dwordx4 v[{XR+4*j}:{XR+4*j+3}], v5, s[12:15], s33 offen offset:{128*j}")
    a("v_lshrrev_b32 v6, 4, v2")
    a("v_xor_b32 v6, v6, v4")
    a("v_xor_b32 v7, 4, v6")
    a("v_lshlrev_b32 v8, 10, v3")
    a("v_lshl_add_u32 v6, v6, 4, v8")
    a("v_lshl_add_u32 v7, v7, 4, v8")
    a("s_cmp_ge_u32 s32, 4")
    a(f"s_cbranch_scc1 {name}_helper")
    a("s_and_b32 s35, s31, 3")
    a("s_lshl_b32 s35, s35, 7")
    a("s_lshl_b32 s34, s32, 5")
    a("s_add_u32 s35, s35, s34")
    a("s_lshl_b32 s35, s35, 10")
    a("s_mul_i32 s46, s32, 24576")
    a("s_add_u32 s46, s46, 65536")

    def dma_slot(kk):
        for i in range(4):
            a(f"s_add_u32 m0, s46, {(kk % 6) * 4096 + i * 1024}")
            a(f"s_add_u32 s47, s35, {i * 8192 + kk * 128}")
            a(f"buffer_load_dwordx4 v{6 + (i & 1)}, s[16:19], s47 offen lds")

    for kk in range(6):
        dma_slot(kk)
    a("s_waitcnt vmcnt(24)")
    a(f"s_branch {name}_ln")
    a.label(f"{name}_helper")
    npf = 0
    if prefetch:
        a("s_and_b32 s48, s3, 1")
        a("s_cmp_eq_u32 s48, 1")
        a("s_cselect_b32 s36, s38, s36")
        a("s_cselect_b32 s37, s39, s37")
        srd(a, 24, 36, 37, S * S * 2)
        a("s_lshr_b32 s48, s3, 2")
        a("s_lshl_b32 s48, s48, 10")
        a("s_lshl_b32 s49, s28, 5")
        a("s_add_u32 s48, s48, s49")
        a("s_sub_u32 s49, s32, 4")
        a("s_lshl_b32 s49, s49, 3")
        a("s_add_u32 s48, s48, s49")
        a("s_lshl_b32 s48, s48, 12")
        a("s_bfe_u32 s49, s3, 0x10001")
        a("s_lshl_b32 s49, s49, 11")
        a("s_add_u32 s48, s48, s49")
        a("v_lshrrev_b32 v9, 5, v2")
        a("v_lshlrev_b32 v9, 12, v9")
        a("v_and_b32 v129, 31, v2")
        a("v_lshl_add_u32 v9, v129, 6, v9")
        a("s_waitcnt vmcnt(0)")
        for i in range(4):
            a(f"s_add_u32 s49, s48, {i * 8192}")
            a(f"buffer_load_dword v{130 + i}, v9, s[24:27], s49 offen")
            npf += 1
    a(f"s_waitcnt vmcnt({npf})")
    a.label(f"{name}_ln")
    stamp(a, 2)
    a("s_mov_b32 s50, 0x3f803f80")
    a("s_mov_b32 s51, 0x00003f80")
    a("s_mov_b32 s52, 0x3f800000")
    a("s_mov_b32 s53, 0xffff0000")
    a("v_mov_b32 v16, 0")
    a("v_mov_b32 v17, 0")
    for j in range(32):
        a(f"v_dot2_f32_bf16 v{16 + (j & 1)}, v{XR + j}, s50, v{16 + (j & 1)}")
    a("s_nop 2")
    a("v_add_f32 v16, v16, v17")

    def red8(v):
        a("s_nop 1")
        a(f"v_add_f32_dpp v{v}, v{v}, v{v} quad_perm:[1,0,3,2] {DPP}")
        a("s_nop 1")
        a(f"v_add_f32_dpp v{v}, v{v}, v{v} quad_perm:[2,3,0,1] {DPP}")
        a("s_nop 1")
        a(f"v_add_f32_dpp v{v}, v{v}, v{v} row_half_mirror {DPP}")

    red8(16)
    a("v_mul_f32 v16, 0x3b000000, v16")
    a("v_cvt_pk_bf16_f32 v17, v16, v16")
    a("v_lshlrev_b32 v17, 16, v17")
    a("v_sub_f32 v18, 0, v17")
    a("v_sub_f32 v19, v16, v17")
    a("v_mov_b32 v20, 0")
    a("v_mov_b32 v21, 0")
    for j in range(32):
        t = 22 + 2 * (j & 3)
        a(f"v_dot2_f32_bf16 v{t}, v{XR + j}, s51, v18")
        a(f"v_dot2_f32_bf16 v{t + 1}, v{XR + j}, s52, v18")
        if j >= 1:
            tp = 22 + 2 * ((j - 1) & 3)
            a(f"v_fmac_f32 v20, v{tp}, v{tp}")
            a(f"v_fmac_f32 v21, v{tp + 1}, v{tp + 1}")
            a(f"v_cvt_pk_bf16_f32 v{XR + j - 1}, v{tp}, v{tp + 1}")
    tp = 22 + 2 * (31 & 3)
    a("s_nop 2")
    a(f"v_fmac_f32 v20, v{tp}, v{tp}")
    a(f"v_fmac_f32 v21, v{tp + 1}, v{tp + 1}")
    a(f"v_cvt_pk_bf16_f32 v{XR + 31}, v{tp}, v{tp + 1}")
    a("v_add_f32 v20, v20, v21")
    red8(20)
    a("v_mul_f32 v20, 0x3b000000, v20")
    a("v_fma_f32 v20, -v19, v19, v20")
    a("v_max_f32 v20, 0, v20")
    a("v_cvt_pk_bf16_f32 v20, v20, v20")
    a("v_lshlrev_b32 v20, 16, v20")
    a("v_add_f32 v20, 0x3727c5ac, v20")
    a("v_cvt_pk_bf16_f32 v20, v20, v20")
    a("v_lshlrev_b32 v20, 16, v20")
    a("v_sqrt_f32 v20, v20")
    a("s_nop 0")
    a("v_cvt_pk_bf16_f32 v20, v20, v20")
    a("v_lshlrev_b32 v20, 16, v20")
    a("v_rcp_f32 v20, v20")
    a("s_nop 0")
    for j in range(32):
        t = 22 + 2 * (j & 3)
        a(f"v_lshlrev_b32 v{t}, 16, v{XR + j}")
        a(f"v_and_b32 v{t + 1}, s53, v{XR + j}")
        a(f"v_mul_f32 v{t}, v{t}, v20")
        a(f"v_mul_f32 v{t + 1}, v{t + 1}, v20")
        a(f"v_cvt_pk_bf16_f32 v{XR + j}, v{t}, v{t + 1}")
    a("s_lshl_b32 s34, s32, 3")
    a("v_add_u32 v9, s34, v3")
    a("v_bfe_u32 v10, v9, 1, 3")
    a("v_xor_b32 v10, v10, v4")
    a("v_lshlrev_b32 v10, 4, v10")
    a("v_lshl_add_u32 v10, v9, 7, v10")
    for j in range(8):
        a(f"ds_write_b128 v10, v[{XR + 4 * j}:{XR + 4 * j + 3}] offset:{8192 * j}")
    stamp(a, 3)
    a("s_waitcnt lgkmcnt(0)")
    a("s_barrier")
    stamp(a, 4)
    a("s_cmp_ge_u32 s32, 4")
    a(f"s_cbranch_scc1 {name}_fin")
    a("v_and_b32 v9, 31, v2")
    emit_perm32(a, 10, 9, 11)
    a("v_bfe_u32 v11, v10, 1, 3")
    a("v_lshrrev_b32 v12, 5, v2")
    a("v_xor_b32 v11, v11, v12")
    a("v_lshlrev_b32 v11, 4, v11")
    a("v_lshl_add_u32 v11, v10, 7, v11")
    for c in range(4):
        a(f"v_xor_b32 v{12 + c}, {c * 32}, v11")
        a(f"v_add_u32 v{16 + c}, s46, v{12 + c}")
    ACC = 64
    FR = [96, 108, 120]
    for i in range(32):
        a(f"v_mov_b32 v{ACC + i}, 0")
    units = [(kk, c) for kk in range(8) for c in range(4)]
    vq = [kk for kk in range(6) for _ in range(4)]

    def wait_slot(kk):
        nonlocal vq
        if kk in vq:
            idx = max(i for i, t in enumerate(vq) if t == kk)
            a(f"s_waitcnt vmcnt({len(vq) - 1 - idx})")
            vq = vq[idx + 1:]

    def reads(n):
        kk, c = units[n]
        f = FR[n % 3]
        if c == 0:
            wait_slot(kk)
        a(f"ds_read_b128 v[{f}:{f + 3}], v{16 + c} offset:{(kk % 6) * 4096}")
        a(f"ds_read_b128 v[{f + 4}:{f + 7}], v{12 + c} offset:{kk * 8192}")
        a(f"ds_read_b128 v[{f + 8}:{f + 11}], v{12 + c} offset:{kk * 8192 + 4096}")

    reads(0)
    reads(1)
    for n in range(len(units)):
        kk, c = units[n]
        if n + 2 < len(units):
            reads(n + 2)
            a("s_waitcnt lgkmcnt(6)")
        elif n + 1 < len(units):
            a("s_waitcnt lgkmcnt(3)")
        else:
            a("s_waitcnt lgkmcnt(0)")
        f = FR[n % 3]
        a(f"v_mfma_f32_32x32x16_bf16 v[{ACC}:{ACC + 15}], v[{f + 4}:{f + 7}], v[{f}:{f + 3}], v[{ACC}:{ACC + 15}]")
        a(f"v_mfma_f32_32x32x16_bf16 v[{ACC + 16}:{ACC + 31}], v[{f + 8}:{f + 11}], v[{f}:{f + 3}], v[{ACC + 16}:{ACC + 31}]")
        if c == 3 and kk + 6 < 8:
            dma_slot(kk + 6)
            vq += [kk + 6] * 4
    stamp(a, 5)
    a("s_lshl_b32 s34, s31, 2")
    a("s_add_u32 s34, s34, s32")
    a("s_lshl_b32 s34, s34, 6")
    a("s_lshl_b32 s33, s30, 1")
    a("s_add_u32 s34, s34, s33")
    a("s_lshl_b32 s34, s34, 11")
    a("v_lshlrev_b32 v9, 4, v2")
    a("s_nop 7")
    a("s_nop 3")
    for sh in range(2):
        for i in range(8):
            a(f"v_cvt_pk_bf16_f32 v{32 + 8 * sh + i}, v{ACC + 16 * sh + 2 * i}, v{ACC + 16 * sh + 2 * i + 1}")
    for sh in range(2):
        for u in range(2):
            r = 32 + 8 * sh + 4 * u
            a(f"buffer_store_dwordx4 v[{r}:{r + 3}], v9, s[20:23], s34 offen offset:{sh * 2048 + u * 1024}")
    a.label(f"{name}_fin")
    stamp_flush(a, 1, 6, 6, 7)
    a.label(f"{name}_done")
    a("s_endpgm")
    return kernel_desc(name, 136, 64, 136)


def gen_k2(a, name, NS=9, ED=3, nomfma=0, noload=0, spread=0, noC=0, noE=0):
    kernel_begin(a, name)
    a("s_cmp_ge_u32 s2, 256")
    a(f"s_cbranch_scc1 {name}_done")
    stamp(a, 0)
    a("s_load_dwordx4 s[4:7], s[0:1], 8")
    a("s_load_dwordx2 s[8:9], s[0:1], 96")
    a("s_and_b32 s3, s2, 7")
    a("s_lshr_b32 s28, s2, 3")
    a("s_and_b32 s29, s3, 1")
    a("s_lshr_b32 s30, s3, 1")
    a("s_lshl_b32 s30, s30, 2")
    a("s_and_b32 s31, s28, 3")
    a("s_add_u32 s30, s30, s31")
    a("s_lshr_b32 s31, s28, 2")
    a("v_lshrrev_b32 v200, 6, v0")
    a("v_and_b32 v201, 63, v0")
    a("s_nop 0")
    a("v_readfirstlane_b32 s32, v200")
    a("v_lshrrev_b32 v202, 3, v201")
    a("v_and_b32 v203, 7, v201")
    a("v_lshrrev_b32 v204, 4, v201")
    a("v_xor_b32 v204, v204, v203")
    a("v_xor_b32 v205, 4, v204")
    a("v_lshlrev_b32 v206, 12, v202")
    a("v_lshl_add_u32 v204, v204, 4, v206")
    a("v_lshl_add_u32 v205, v205, 4, v206")
    a("v_lshlrev_b32 v206, 4, v201")
    a("s_waitcnt lgkmcnt(0)")
    stamp(a, 1)
    a("s_cmp_eq_u32 s29, 1")
    a("s_cselect_b32 s4, s6, s4")
    a("s_cselect_b32 s5, s7, s5")
    srd(a, 12, 4, 5, S * S * 2)
    srd(a, 16, 8, 9, 8 << 20)
    a("s_lshl_b32 s35, s30, 19")
    a("s_lshl_b32 s34, s32, 10")
    a("s_add_u32 s35, s35, s34")
    for j in range(4):
        a(f"s_add_u32 s34, s32, {j}")
        a("s_and_b32 s34, s34, 3")
        a(f"s_mov_b32 s{52 + j}, s34")
        a("s_lshl_b32 s34, s34, 17")
        a(f"s_add_u32 s{40 + j}, s35, s34")
    a("s_lshl_b32 s36, s29, 4")
    a("s_lshl_b32 s34, s31, 1")
    a("s_add_u32 s36, s36, s34")
    a("s_lshl_b32 s36, s36, 6")
    a("s_lshl_b32 s34, s32, 4")
    a("s_add_u32 s36, s36, s34")
    a("s_lshl_b32 s36, s36, 11")
    a("s_add_u32 s37, s36, 131072")
    RING = NS * 4096
    a(f"s_mul_i32 s46, s32, {RING}")
    vm = VM(a)

    pend = []

    def dma_one(n, i):
        kk, j = n // 4, n % 4
        if noload or noC:
            return
        a(f"s_add_u32 m0, s46, {(n % NS) * 4096 + i * 1024}")
        a(f"s_add_u32 s47, s{40 + j}, {(i * 8) * 4096 + kk * 128}")
        a(f"buffer_load_dwordx4 v{204 + (i & 1)}, s[12:15], s47 offen lds")
        vm.issue(("C", n))

    def e_one(kk, et2, c):
        if noload or noE:
            return
        st = kk % ED
        r = st * 32 + et2 * 16 + c * 4
        a(f"s_add_u32 s48, s{36 + et2}, {kk * 4096}")
        a(f"buffer_load_dwordx4 a[{r}:{r + 3}], v206, s[16:19], s48 offen offset:{c * 1024}")
        vm.issue(("E", kk))

    def dma_slot(n, defer=False):
        for i in range(4):
            if defer:
                pend.append(lambda n=n, i=i: dma_one(n, i))
            else:
                dma_one(n, i)

    def e_loads(kk, defer=False):
        for et2 in range(2):
            for c in range(4):
                if defer:
                    pend.append(lambda kk=kk, et2=et2, c=c: e_one(kk, et2, c))
                else:
                    e_one(kk, et2, c)

    def flush_pend(pred=None, maxn=None):
        cnt = 0
        while pend and (maxn is None or cnt < maxn):
            pend.pop(0)()
            cnt += 1

    nslot_issued = 0
    for kk in range(ED):
        e_loads(kk)
        for tt in range(4):
            if nslot_issued < NS:
                dma_slot(nslot_issued)
                nslot_issued += 1
    while nslot_issued < NS:
        dma_slot(nslot_issued)
        nslot_issued += 1
    stamp(a, 2)
    a("v_and_b32 v207, 31, v201")
    a("v_bfe_u32 v208, v207, 1, 3")
    a("v_lshrrev_b32 v209, 5, v201")
    a("v_lshlrev_b32 v209, 1, v209")
    a("v_xor_b32 v208, v208, v209")
    a("v_lshlrev_b32 v208, 4, v208")
    a("v_lshl_add_u32 v208, v207, 7, v208")
    for c in range(4):
        x = ((c >> 1) * 4 + (c & 1)) << 4
        a(f"v_xor_b32 v{210 + c}, {x}, v208")
        a(f"v_add_u32 v{210 + c}, s46, v{210 + c}")
    for i in range(128):
        a(f"v_mov_b32 v{i}, 0")
    def pend_has(tag):
        return any(getattr(p, '__defaults__', (None,))[0] == tag[1] and len(p.__defaults__) == (2 if tag[0] == 'C' else 3) for p in pend)

    units = [(n, c) for n in range(32) for c in range(4)]
    NF = 6
    LOOKAHEAD = 4

    def reads(un):
        n, c = units[un]
        if c == 0:
            assert noload or noC or vm.q.count(("C", n)) == 4 or ("C", n) not in vm.q and n < nslot_issued and not pend_has(("C", n))
            vm.wait(("C", n))
        f = 128 + 4 * (un % NF)
        a(f"ds_read_b128 v[{f}:{f + 3}], v{210 + c} offset:{(n % NS) * 4096}")

    for un in range(LOOKAHEAD):
        reads(un)
    for un in range(len(units)):
        n, c = units[un]
        kk, j = n // 4, n % 4
        if un + LOOKAHEAD < len(units):
            reads(un + LOOKAHEAD)
            a(f"s_waitcnt lgkmcnt({LOOKAHEAD})")
        else:
            a(f"s_waitcnt lgkmcnt({len(units) - 1 - un})")
        if j == 0 and c == 0:
            assert not pend_has(("E", kk))
            vm.wait(("E", kk))
        f = 128 + 4 * (un % NF)
        st = kk % ED
        if un == 0:
            stamp(a, 3)
        if un == 64:
            stamp(a, 4)
        for et2 in range(2):
            acc = (j * 2 + et2) * 16
            r = st * 32 + et2 * 16 + c * 4
            if not nomfma:
                a(f"v_mfma_f32_32x32x16_bf16 v[{acc}:{acc + 15}], a[{r}:{r + 3}], v[{f}:{f + 3}], v[{acc}:{acc + 15}]")
            if spread:
                flush_pend(maxn=1)
        if c == 3:
            if nslot_issued < 32:
                dma_slot(nslot_issued, defer=bool(spread))
                nslot_issued += 1
            if j == 3 and kk + ED < 8:
                e_loads(kk + ED, defer=bool(spread))
    stamp(a, 5)
    a("s_barrier")
    stamp(a, 6)
    for j in range(1, 4):
        a(f"s_mul_i32 s34, s{52 + j}, 24576")
        a(f"s_add_u32 s34, s34, {(j - 1) * 8192}")
        a(f"v_add_u32 v{214 + j}, s34, v206")
    a("s_mul_i32 s34, s32, 24576")
    a("v_add_u32 v214, s34, v206")
    a("s_nop 7")
    for j in range(1, 4):
        for q in range(8):
            r = j * 32 + 4 * q
            a(f"ds_write_b128 v{214 + j}, v[{r}:{r + 3}] offset:{q * 1024}")
    a("s_waitcnt lgkmcnt(0)")
    a("s_barrier")
    stamp(a, 7)
    for j in range(1, 4):
        for q in range(8):
            r = j * 32 + 4 * q
            a(f"ds_read_b128 v[{r}:{r + 3}], v214 offset:{(j - 1) * 8192 + q * 1024}")
    a("s_lshl_b32 s34, s30, 7")
    a("s_lshl_b32 s33, s32, 5")
    a("s_add_u32 s34, s34, s33")
    a("s_lshl_b32 s34, s34, 10")
    a("s_lshl_b32 s33, s31, 7")
    a("s_add_u32 s34, s34, s33")
    a("s_lshl_b32 s33, s29, 21")
    a("s_add_u32 s34, s34, s33")
    a(f"s_add_u32 s34, s34, {WS_Y}")
    a("v_lshrrev_b32 v209, 5, v201")
    a("v_lshlrev_b32 v209, 5, v209")
    a("v_lshl_add_u32 v209, v207, 10, v209")
    for j in range(1, 4):
        a(f"s_waitcnt lgkmcnt({min(15, (3 - j) * 8)})")
        for i in range(32):
            a(f"v_add_f32 v{i}, v{i}, v{j * 32 + i}")
    for i in range(16):
        a(f"v_cvt_pk_bf16_f32 v{128 + i}, v{2 * i}, v{2 * i + 1}")
    for et2 in range(2):
        for hh in range(2):
            r = 128 + et2 * 8 + hh * 4
            a(f"buffer_store_dwordx4 v[{r}:{r + 3}], v209, s[16:19], s34 offen offset:{et2 * 64 + hh * 16}")
    stamp_flush(a, 2, 8, 8, 9)
    a.label(f"{name}_done")
    a("s_endpgm")
    return kernel_desc(name, 224 + 32 * ED, 64, 224)


WS_P = 4 << 20


def gen_k2b(a, name, NSTG=5, LA=2, nomfma=0, noread=0, nodma=0, nostore=0):
    kernel_begin(a, name)
    a("s_cmp_ge_u32 s2, 256")
    a(f"s_cbranch_scc1 {name}_done")
    stamp(a, 0)
    a("s_load_dwordx4 s[4:7], s[0:1], 8")
    a("s_load_dwordx2 s[8:9], s[0:1], 96")
    a("s_and_b32 s3, s2, 7")
    a("s_lshr_b32 s28, s2, 3")
    a("s_and_b32 s29, s3, 1")
    a("s_bfe_u32 s27, s3, 0x10001")
    a("s_lshr_b32 s30, s3, 2")
    a("s_lshl_b32 s30, s30, 3")
    a("s_and_b32 s31, s28, 7")
    a("s_add_u32 s30, s30, s31")
    a("s_lshr_b32 s31, s28, 3")
    a("v_lshrrev_b32 v1, 6, v0")
    a("v_and_b32 v2, 63, v0")
    a("s_nop 0")
    a("v_readfirstlane_b32 s32, v1")
    a("v_lshlrev_b32 v3, 4, v2")
    a("s_waitcnt lgkmcnt(0)")
    stamp(a, 1)
    a("s_cmp_eq_u32 s29, 1")
    a("s_cselect_b32 s4, s6, s4")
    a("s_cselect_b32 s5, s7, s5")
    srd(a, 12, 4, 5, S * S * 2)
    srd(a, 16, 8, 9, 12 << 20)
    a("s_cmp_lt_u32 s32, 4")
    a(f"s_cbranch_scc1 {name}_cons")
    a("s_sub_u32 s33, s32, 4")
    a("v_lshrrev_b32 v4, 3, v2")
    a("v_and_b32 v5, 7, v2")
    a("v_lshrrev_b32 v6, 4, v2")
    a("v_xor_b32 v6, v6, v5")
    a("v_xor_b32 v7, 4, v6")
    a("v_lshlrev_b32 v4, 12, v4")
    a("v_lshl_add_u32 v6, v6, 4, v4")
    a("v_lshl_add_u32 v7, v7, 4, v4")
    a("v_mov_b32 v8, v6")
    a(f"v_add_u32 v9, {32768 - 1024}, v7")
    a(f"v_add_u32 v10, {2 * (32768 - 1024)}, v6")
    a(f"v_add_u32 v11, {3 * (32768 - 1024)}, v7")
    a("s_lshl_b32 s35, s30, 19")
    a("s_lshl_b32 s34, s33, 17")
    a("s_add_u32 s35, s35, s34")
    a("s_lshl_b32 s34, s27, 11")
    a("s_add_u32 s35, s35, s34")
    a("s_lshl_b32 s36, s29, 4")
    a("s_lshl_b32 s34, s31, 2")
    a("s_add_u32 s36, s36, s34")
    a("s_add_u32 s36, s36, s33")
    a("s_lshl_b32 s36, s36, 6")
    a("s_lshl_b32 s34, s27, 5")
    a("s_add_u32 s36, s36, s34")
    a("s_lshl_b32 s36, s36, 11")
    a("s_lshl_b32 s37, s33, 12")

    def load_stage(s):
        slot = (s % NSTG) * 32768
        a(f"s_add_u32 m0, s37, {slot}")
        a(f"s_add_u32 s38, s35, {s * 128}")
        for i in range(4):
            if not nodma:
                a(f"buffer_load_dwordx4 v{8 + i}, s[12:15], s38 offen offset:{i * 1024} lds")
        a(f"s_add_u32 m0, s37, {slot + 16384}")
        a(f"s_add_u32 s39, s36, {s * 4096}")
        for c in range(4):
            if not nodma:
                a(f"buffer_load_dwordx4 v3, s[16:19], s39 offen offset:{c * 1024} lds")

    NST = 16
    for s in range(NSTG - 1):
        load_stage(s)
    stamp(a, 2)
    for s in range(NST):
        issued = min(s + NSTG - 2, NST - 1)
        a(f"s_waitcnt vmcnt({(issued - s) * 8})")
        a("s_barrier")
        if s + NSTG - 1 < NST:
            load_stage(s + NSTG - 1)
    stamp(a, 5)
    a(f"s_branch {name}_fin")
    a.label(f"{name}_cons")
    a("s_and_b32 s33, s32, 1")
    a("s_lshr_b32 s34, s32, 1")
    a("v_and_b32 v4, 31, v2")
    a("v_bfe_u32 v5, v4, 1, 3")
    a("v_lshrrev_b32 v6, 5, v2")
    a("v_lshlrev_b32 v6, 1, v6")
    a("v_xor_b32 v5, v5, v6")
    a("v_lshlrev_b32 v5, 4, v5")
    a("v_lshl_add_u32 v5, v4, 7, v5")
    a("s_lshl_b32 s35, s33, 13")
    a("s_lshl_b32 s36, s34, 13")
    a("s_add_u32 s36, s36, 16384")
    for g in range(3):
        for c in range(4):
            x = ((c >> 1) * 4 + (c & 1)) << 4
            a(f"v_xor_b32 v{8 + 5 * g + c}, {x}, v5")
            a(f"v_add_u32 v{8 + 5 * g + c}, s35, v{8 + 5 * g + c}")
            if g:
                a(f"v_add_u32 v{8 + 5 * g + c}, {65536 * g}, v{8 + 5 * g + c}")
        a(f"v_add_u32 v{8 + 5 * g + 4}, s36, v3")
        if g:
            a(f"v_add_u32 v{8 + 5 * g + 4}, {65536 * g}, v{8 + 5 * g + 4}")
    ACC = 64
    FB = 128
    for i in range(64):
        a(f"v_mov_b32 v{ACC + i}, 0")
    NU = NST * 4

    def reads(u):
        s, c = u // 4, u % 4
        slot = s % NSTG
        g, so = slot // 2, (slot % 2) * 32768
        f = FB + 16 * (u % (LA + 1))
        if c == 0:
            a("s_waitcnt lgkmcnt(0)")
            a("s_barrier")
            if s == 0:
                stamp(a, 3)
            if s == 8:
                stamp(a, 4)
        if noread:
            return
        a(f"ds_read_b128 v[{f}:{f + 3}], v{8 + 5 * g + c} offset:{so}")
        a(f"ds_read_b128 v[{f + 8}:{f + 11}], v{8 + 5 * g + 4} offset:{so + c * 1024}")
        a(f"ds_read_b128 v[{f + 4}:{f + 7}], v{8 + 5 * g + c} offset:{so + 4096}")
        a(f"ds_read_b128 v[{f + 12}:{f + 15}], v{8 + 5 * g + 4} offset:{so + 4096 + c * 1024}")

    for u in range(LA):
        reads(u)
    for u in range(NU):
        if u + LA < NU:
            reads(u + LA)
        nxt = min(u + LA, NU - 1)
        cnt = 0
        for uu in range(u + 1, nxt + 1):
            cnt += 4
        a(f"s_waitcnt lgkmcnt({min(cnt, 15)})")
        f = FB + 16 * (u % (LA + 1))
        for et in range(2):
            for tt in range(2):
                acc = ACC + (et * 2 + tt) * 16
                if not nomfma:
                    a(f"v_mfma_f32_32x32x16_bf16 v[{acc}:{acc + 15}], v[{f + 8 + 4 * et}:{f + 11 + 4 * et}], v[{f + 4 * tt}:{f + 4 * tt + 3}], v[{acc}:{acc + 15}]")
    stamp(a, 5)
    a("s_lshl_b32 s35, s30, 7")
    a("s_lshl_b32 s36, s33, 6")
    a("s_add_u32 s35, s35, s36")
    a("s_lshl_b32 s35, s35, 10")
    a("s_lshl_b32 s36, s31, 8")
    a("s_add_u32 s35, s35, s36")
    a("s_lshl_b32 s36, s34, 7")
    a("s_add_u32 s35, s35, s36")
    a("s_lshl_b32 s36, s29, 1")
    a("s_add_u32 s36, s36, s27")
    a("s_lshl_b32 s36, s36, 21")
    a("s_add_u32 s35, s35, s36")
    a(f"s_add_u32 s35, s35, {WS_P}")
    a("s_add_u32 s36, s35, 32768")
    a("v_lshrrev_b32 v6, 5, v2")
    a("v_lshlrev_b32 v6, 5, v6")
    a("v_lshl_add_u32 v6, v4, 10, v6")
    a("s_nop 4")
    for et in range(2):
        for tt in range(2):
            acc = ACC + (et * 2 + tt) * 16
            o = 24 + (et * 2 + tt) * 8
            for i in range(8):
                a(f"v_cvt_pk_bf16_f32 v{o + i}, v{acc + 2 * i}, v{acc + 2 * i + 1}")
            for hh in range(2):
                if not nostore:
                    a(f"buffer_store_dwordx4 v[{o + 4 * hh}:{o + 4 * hh + 3}], v6, s[16:19], s{35 + tt} offen offset:{et * 64 + hh * 16}")
    a.label(f"{name}_fin")
    stamp_flush(a, 2, 6, 8, 9)
    a.label(f"{name}_done")
    a("s_endpgm")
    nv = FB + 16 * (LA + 1)
    return kernel_desc(name, nv, 64, nv)


def emit_perm2(a, dst, src, t):
    a(f"v_and_b32 v{dst}, 3, v{src}")
    a(f"v_bfe_u32 v{t}, v{src}, 2, 2")
    a(f"v_lshl_or_b32 v{dst}, v{t}, 3, v{dst}")
    a(f"v_bfe_u32 v{t}, v{src}, 4, 1")
    a(f"v_lshl_or_b32 v{dst}, v{t}, 2, v{dst}")


def gen_k1b(a, name, prefetch=1, wt=0, nostats=0, nocs=0, PRO=6, pfpos=2, rot=1):
    NSTG, SLOT = 6, 24576
    STATS = NSTG * SLOT
    kernel_begin(a, name)
    a("s_cmp_ge_u32 s2, 256")
    a(f"s_cbranch_scc1 {name}_done")
    stamp(a, 0)
    a("s_load_dwordx2 s[4:5], s[0:1], 0")
    a("s_load_dwordx4 s[8:11], s[0:1], 24")
    a("s_load_dwordx2 s[6:7], s[0:1], 96")
    a("s_load_dwordx4 s[40:43], s[0:1], 8")
    a("s_and_b32 s3, s2, 7")
    a("s_lshr_b32 s28, s2, 3")
    a("s_and_b32 s29, s28, 3")
    a("s_lshl_b32 s30, s3, 2")
    a("s_add_u32 s30, s30, s29")
    a("s_lshr_b32 s31, s28, 2")
    a("v_lshrrev_b32 v1, 6, v0")
    a("v_and_b32 v2, 63, v0")
    a("s_nop 0")
    a("v_readfirstlane_b32 s32, v1")
    a("s_mov_b32 s53, 0xffff0000")
    a("s_cmp_lt_u32 s32, 4")
    a(f"s_cbranch_scc1 {name}_cons")
    a("s_sub_u32 s33, s32, 4")
    a("v_lshrrev_b32 v3, 3, v2")
    a("v_and_b32 v4, 7, v2")
    a("v_lshrrev_b32 v6, 4, v2")
    a("v_xor_b32 v6, v6, v4")
    a("v_xor_b32 v7, 4, v6")
    a("v_lshlrev_b32 v3, 10, v3")
    a("v_lshl_add_u32 v8, v6, 4, v3")
    a("v_lshl_add_u32 v7, v7, 4, v3")
    a(f"v_add_u32 v9, {8192 - 1024}, v7")
    a(f"v_add_u32 v10, {2 * (8192 - 1024)}, v8")
    a(f"v_add_u32 v11, {3 * (8192 - 1024)}, v7")
    a("s_lshl_b32 s35, s30, 6")
    a("s_lshl_b32 s34, s33, 4")
    a("s_add_u32 s35, s35, s34")
    a("s_lshl_b32 s35, s35, 10")
    a("s_and_b32 s36, s31, 3")
    a("s_lshl_b32 s36, s36, 7")
    a("s_lshl_b32 s34, s33, 5")
    a("s_add_u32 s36, s36, s34")
    a("s_lshl_b32 s36, s36, 10")
    a("s_lshl_b32 s37, s33, 11")
    a("s_lshl_b32 s38, s33, 12")
    a("s_add_u32 s38, s38, 8192")
    a("s_lshl_b32 s34, s29, 1")
    a("s_add_u32 s34, s34, s31")
    for kk in range(8):
        if rot:
            a(f"s_add_u32 s39, s34, {kk}")
            a("s_and_b32 s39, s39, 7")
            a(f"s_lshl_b32 s{54 + kk}, s39, 7")
        else:
            a(f"s_mov_b32 s{54 + kk}, {kk * 128}")
    a("s_waitcnt lgkmcnt(0)")
    stamp(a, 1)
    srd(a, 12, 4, 5, S * D * 2)
    a("s_cmp_ge_u32 s31, 4")
    a("s_cselect_b32 s8, s10, s8")
    a("s_cselect_b32 s9, s11, s9")
    srd(a, 16, 8, 9, D * D * 2)

    def load_stage(kk):
        slot = (kk % NSTG) * SLOT
        a(f"s_add_u32 m0, s37, {slot}")
        a(f"s_add_u32 s39, s35, s{54 + kk}")
        for i in range(2):
            a(f"buffer_load_dwordx4 v{8 + i}, s[12:15], s39 offen offset:{i * 1024} lds")
        a(f"s_add_u32 m0, s38, {slot}")
        a(f"s_add_u32 s39, s36, s{54 + kk}")
        for i in range(4):
            a(f"buffer_load_dwordx4 v{8 + i}, s[16:19], s39 offen offset:{i * 1024} lds")

    for kk in range(PRO):
        load_stage(kk)
    stamp(a, 2)
    a("v_lshrrev_b32 v12, 2, v2")
    a("v_lshlrev_b32 v12, 7, v12")
    a("v_and_b32 v13, 3, v2")
    a("v_lshl_add_u32 v12, v13, 5, v12")
    a("v_add_u32 v12, s37, v12")
    a(f"v_add_u32 v13, {3 * SLOT}, v12")
    a("v_mov_b32 v14, 0")
    a("v_mov_b32 v15, 0")
    a("v_mov_b32 v16, 0")
    a("v_mov_b32 v17, 0")
    issued = PRO
    npf = 0

    def emit_prefetch(vb):
        a("s_and_b32 s48, s3, 1")
        a("s_cmp_eq_u32 s48, 1")
        a("s_cselect_b32 s40, s42, s40")
        a("s_cselect_b32 s41, s43, s41")
        srd(a, 24, 40, 41, S * S * 2)
        a("s_lshr_b32 s48, s3, 2")
        a("s_lshl_b32 s48, s48, 10")
        a("s_lshl_b32 s49, s28, 5")
        a("s_add_u32 s48, s48, s49")
        a("s_and_b32 s49, s32, 3")
        a("s_lshl_b32 s49, s49, 3")
        a("s_add_u32 s48, s48, s49")
        a("s_lshl_b32 s48, s48, 12")
        a("s_bfe_u32 s49, s3, 0x10001")
        a("s_lshl_b32 s49, s49, 11")
        a("s_add_u32 s48, s48, s49")
        a(f"v_lshrrev_b32 v{vb}, 4, v2")
        a(f"v_lshlrev_b32 v{vb}, 12, v{vb}")
        a(f"v_and_b32 v{vb + 1}, 15, v2")
        a(f"v_lshl_add_u32 v{vb}, v{vb + 1}, 7, v{vb}")
        for i in range(2):
            a(f"s_add_u32 s49, s48, {i * 16384}")
            a(f"buffer_load_dword v{vb + 2 + i}, v{vb}, s[24:27], s49 offen")

    vq = [k for k in range(PRO) for _ in range(6)]
    for kk in range(8):
        idx = max(i for i, t in enumerate(vq) if t == kk)
        a(f"s_waitcnt vmcnt({len(vq) - 1 - idx})")
        vq = vq[idx + 1:]
        slot = kk % NSTG
        ar, so = (12, slot * SLOT) if slot < 3 else (13, (slot - 3) * SLOT)
        a(f"ds_read_b128 v[24:27], v{ar} offset:{so}")
        a(f"ds_read_b128 v[28:31], v{ar} offset:{so + 16}")
        a("s_barrier")
        a("s_waitcnt lgkmcnt(0)")
        n_new = 0
        while issued < 8 and issued - NSTG < kk and n_new < 2:
            load_stage(issued)
            vq += [issued] * 6
            issued += 1
            n_new += 1
        if prefetch and pfpos == kk:
            emit_prefetch(40)
            vq += ["pf"] * 2
        if kk == 0:
            a("v_lshlrev_b32 v18, 16, v24")
            a("s_nop 1")
            a(f"v_mov_b32_dpp v18, v18 quad_perm:[0,0,0,0] {DPP}")
        for r in range(0 if nostats else 8):
            t = 32 + 2 * (r & 3)
            a(f"v_lshlrev_b32 v{t}, 16, v{24 + r}")
            a(f"v_and_b32 v{t + 1}, s53, v{24 + r}")
            a(f"v_sub_f32 v{t}, v{t}, v18")
            a(f"v_sub_f32 v{t + 1}, v{t + 1}, v18")
            a(f"v_add_f32 v14, v14, v{t}")
            a(f"v_add_f32 v15, v15, v{t + 1}")
            a(f"v_fmac_f32 v16, v{t}, v{t}")
            a(f"v_fmac_f32 v17, v{t + 1}, v{t + 1}")
    a("v_add_f32 v14, v14, v15")
    a("v_add_f32 v16, v16, v17")
    for qp in ("[1,0,3,2]", "[2,3,0,1]"):
        a("s_nop 1")
        a(f"v_add_f32_dpp v14, v14, v14 quad_perm:{qp} {DPP}")
        a(f"v_add_f32_dpp v16, v16, v16 quad_perm:{qp} {DPP}")
    a("v_mul_f32 v14, 0x3b000000, v14")
    a("v_mul_f32 v16, 0x3b000000, v16")
    a("v_fma_f32 v16, -v14, v14, v16")
    a("v_max_f32 v16, 0, v16")
    a("v_add_f32 v14, v14, v18")
    a("v_cvt_pk_bf16_f32 v14, v14, v14")
    a("v_lshlrev_b32 v14, 16, v14")
    a("v_cvt_pk_bf16_f32 v16, v16, v16")
    a("v_lshlrev_b32 v16, 16, v16")
    a("v_add_f32 v16, 0x3727c5ac, v16")
    a("v_cvt_pk_bf16_f32 v16, v16, v16")
    a("v_lshlrev_b32 v16, 16, v16")
    a("v_sqrt_f32 v16, v16")
    a("s_nop 0")
    a("v_cvt_pk_bf16_f32 v16, v16, v16")
    a("v_lshlrev_b32 v16, 16, v16")
    a("v_rcp_f32 v16, v16")
    a("v_lshrrev_b32 v19, 2, v2")
    a("v_lshlrev_b32 v19, 2, v19")
    a("s_lshl_b32 s34, s33, 6")
    a(f"s_add_u32 s34, s34, {STATS}")
    a("v_add_u32 v19, s34, v19")
    a("ds_write_b32 v19, v14")
    a("ds_write_b32 v19, v16 offset:256")
    a("s_waitcnt lgkmcnt(0)")
    stamp(a, 3)
    a("s_barrier")
    a(f"s_branch {name}_fin")
    a.label(f"{name}_cons")
    a("v_and_b32 v9, 31, v2")
    a("v_lshrrev_b32 v5, 5, v2")
    emit_perm32(a, 10, 9, 11)
    a("v_bfe_u32 v11, v10, 1, 3")
    a("v_xor_b32 v11, v11, v5")
    a("v_lshlrev_b32 v11, 4, v11")
    a("v_lshl_add_u32 v11, v10, 7, v11")
    emit_perm2(a, 10, 9, 12)
    a("v_bfe_u32 v12, v10, 1, 3")
    a("v_xor_b32 v12, v12, v5")
    a("v_lshlrev_b32 v12, 4, v12")
    a("v_lshl_add_u32 v12, v10, 7, v12")
    a("s_lshl_b32 s34, s32, 12")
    a("s_add_u32 s34, s34, 8192")
    a("v_add_u32 v12, s34, v12")
    for g in range(3):
        for c in range(4):
            a(f"v_xor_b32 v{16 + 8 * g + c}, {c * 32}, v11")
            a(f"v_xor_b32 v{20 + 8 * g + c}, {c * 32}, v12")
            if g:
                a(f"v_add_u32 v{16 + 8 * g + c}, {2 * SLOT * g}, v{16 + 8 * g + c}")
                a(f"v_add_u32 v{20 + 8 * g + c}, {2 * SLOT * g}, v{20 + 8 * g + c}")
    ACC = 64
    FR = [96, 108, 120]
    for i in range(32):
        a(f"v_mov_b32 v{ACC + i}, 0")
    a("v_mov_b32 v40, 0")
    a("v_mov_b32 v41, 0")
    a("s_mov_b32 s50, 0x3f803f80")
    a("s_waitcnt lgkmcnt(0)")
    stamp(a, 1)
    srd(a, 20, 6, 7, 4 << 20)
    if prefetch and pfpos == -1:
        emit_prefetch(150)
    units = [(kk, c) for kk in range(8) for c in range(4)]

    def reads(n):
        kk, c = units[n]
        f = FR[n % 3]
        slot = kk % NSTG
        g, so = slot // 2, (slot % 2) * SLOT
        if c == 0:
            a("s_waitcnt lgkmcnt(0)")
            a("s_barrier")
            if kk == 0:
                stamp(a, 2)
        a(f"ds_read_b128 v[{f}:{f + 3}], v{20 + 8 * g + c} offset:{so}")
        a(f"ds_read_b128 v[{f + 4}:{f + 7}], v{16 + 8 * g + c} offset:{so}")
        a(f"ds_read_b128 v[{f + 8}:{f + 11}], v{16 + 8 * g + c} offset:{so + 4096}")

    reads(0)
    reads(1)
    for n in range(len(units)):
        if n + 2 < len(units):
            reads(n + 2)
            a("s_waitcnt lgkmcnt(6)")
        elif n + 1 < len(units):
            a("s_waitcnt lgkmcnt(3)")
        else:
            a("s_waitcnt lgkmcnt(0)")
        f = FR[n % 3]
        a(f"v_mfma_f32_32x32x16_bf16 v[{ACC}:{ACC + 15}], v[{f + 4}:{f + 7}], v[{f}:{f + 3}], v[{ACC}:{ACC + 15}]")
        if not nocs:
            a(f"v_dot2_f32_bf16 v40, v{f}, s50, v40")
        if not nocs:
            a(f"v_dot2_f32_bf16 v41, v{f + 1}, s50, v41")
        a(f"v_mfma_f32_32x32x16_bf16 v[{ACC + 16}:{ACC + 31}], v[{f + 8}:{f + 11}], v[{f}:{f + 3}], v[{ACC + 16}:{ACC + 31}]")
        if not nocs:
            a(f"v_dot2_f32_bf16 v40, v{f + 2}, s50, v40")
        if not nocs:
            a(f"v_dot2_f32_bf16 v41, v{f + 3}, s50, v41")
    stamp(a, 3)
    a("s_barrier")
    stamp(a, 4)
    a("v_lshlrev_b32 v42, 6, v5")
    a(f"v_add_u32 v42, {STATS}, v42")
    for sh in range(2):
        for q in range(4):
            a(f"ds_read_b128 v[{96 + 16 * sh + 4 * q}:{99 + 16 * sh + 4 * q}], v42 offset:{128 * sh + 16 * q}")
            a(f"ds_read_b128 v[{128 + 16 * sh + 4 * q}:{131 + 16 * sh + 4 * q}], v42 offset:{256 + 128 * sh + 16 * q}")
    a("v_add_f32 v40, v40, v41")
    a("v_mov_b32 v41, v40")
    a("s_nop 1")
    a("v_permlane32_swap_b32 v40, v41")
    a("s_nop 1")
    a("v_add_f32 v40, v40, v41")
    a("s_lshl_b32 s34, s31, 2")
    a("s_add_u32 s34, s34, s32")
    a("s_lshl_b32 s34, s34, 7")
    a("s_lshl_b32 s33, s30, 1")
    a("s_add_u32 s34, s34, s33")
    a("s_lshl_b32 s34, s34, 10")
    a("v_bfe_u32 v43, v2, 4, 1")
    a("v_lshlrev_b32 v43, 16, v43")
    a("v_lshl_add_u32 v43, v5, 9, v43")
    a("v_and_b32 v44, 15, v2")
    a("v_lshl_add_u32 v43, v44, 4, v43")
    a("s_waitcnt lgkmcnt(0)")
    for sh in range(2):
        for i in range(16):
            r = ACC + 16 * sh + i
            a(f"v_fma_f32 v{r}, -v{96 + 16 * sh + i}, v40, v{r}")
            a(f"v_mul_f32 v{r}, v{r}, v{128 + 16 * sh + i}")
        for i in range(8):
            a(f"v_cvt_pk_bf16_f32 v{48 + 8 * sh + i}, v{ACC + 16 * sh + 2 * i}, v{ACC + 16 * sh + 2 * i + 1}")
        for u in range(2):
            r = 48 + 8 * sh + 4 * u
            a(f"buffer_store_dwordx4 v[{r}:{r + 3}], v43, s[20:23], s34 offen offset:{sh * 1024 + u * 256}" + (" sc0 sc1" if wt else ""))
    stamp(a, 5)
    a.label(f"{name}_fin")
    stamp_flush(a, 1, 6, 6, 7)
    a.label(f"{name}_done")
    a("s_endpgm")
    return kernel_desc(name, 160, 64, 160)


def emit_wtouch(a, s_sel, vt, vd):
    a(f"s_cmp_eq_u32 {s_sel}, 1")
    a("s_cselect_b32 s56, s58, s56")
    a("s_cselect_b32 s57, s59, s57")
    a(f"s_cmp_eq_u32 {s_sel}, 2")
    a("s_cselect_b32 s56, s60, s56")
    a("s_cselect_b32 s57, s61, s57")
    a("s_mul_i32 s62, s2, 7168")
    a("s_add_u32 s63, s62, 7168")
    a(f"s_cmp_eq_u32 {s_sel}, 3")
    a("s_cselect_b32 s63, 0, s63")
    a("s_mov_b32 s20, s56")
    a("s_and_b32 s21, s57, 0xffff")
    a("s_mov_b32 s22, s63")
    a("s_mov_b32 s23, 0x00020000")
    a(f"v_lshlrev_b32 v{vt}, 7, v2")
    a(f"buffer_load_dword v{vd}, v{vt}, s[20:23], s62 offen")


def emit_wtouch2(a):
    a("s_cmp_ge_u32 s33, 2")
    a("s_cselect_b32 s56, s66, s64")
    a("s_cselect_b32 s57, s67, s65")
    a("s_cmp_lt_u32 s28, 28")
    a(f"s_cselect_b32 s62, {D * F * 2}, 0")
    a("s_mov_b32 s20, s56")
    a("s_and_b32 s21, s57, 0xffff")
    a("s_mov_b32 s22, s62")
    a("s_mov_b32 s23, 0x00020000")
    a("s_mov_b32 s24, s68")
    a("s_and_b32 s25, s69, 0xffff")
    a("s_mov_b32 s26, s62")
    a("s_mov_b32 s27, 0x00020000")
    a("s_lshr_b32 s58, s28, 2")
    a("s_lshl_b32 s58, s58, 3")
    a("s_add_u32 s58, s58, s3")
    a("s_and_b32 s59, s28, 3")
    a("s_lshl_b32 s62, s59, 1")
    a("s_and_b32 s63, s33, 1")
    a("s_add_u32 s62, s62, s63")
    a("s_mul_i32 s62, s62, 229376")
    a("s_lshr_b32 s63, s58, 1")
    a("s_lshl_b32 s63, s63, 7")
    a("s_add_u32 s62, s62, s63")
    a("s_mov_b32 s63, 3584")
    a("v_mul_lo_u32 v13, v2, s63")
    a("buffer_load_dword v15, v13, s[20:23], s62 offen")
    a("s_lshl_b32 s62, s58, 15")
    a("s_lshl_b32 s63, s59, 13")
    a("s_add_u32 s62, s62, s63")
    a("s_lshl_b32 s63, s33, 11")
    a("s_add_u32 s62, s62, s63")
    a("v_and_b32 v13, 15, v2")
    a("v_lshlrev_b32 v13, 7, v13")
    a("buffer_load_dword v16, v13, s[24:27], s62 offen")


def gen_k2c(a, name, NSTG=5, LA=1, wt=0, PRO=5, rot=1, BARPOS=1, RSTEP=1, wpf=1, wpf2=0):
    kernel_begin(a, name)
    a("s_cmp_ge_u32 s2, 256")
    a(f"s_cbranch_scc1 {name}_done")
    stamp(a, 0)
    a("s_load_dwordx4 s[4:7], s[0:1], 8")
    a("s_load_dwordx2 s[8:9], s[0:1], 96")
    a("s_load_dwordx4 s[56:59], s[0:1], 56")
    a("s_load_dwordx2 s[60:61], s[0:1], 72")
    a("s_load_dwordx4 s[64:67], s[0:1], 56")
    a("s_load_dwordx2 s[68:69], s[0:1], 72")
    a("s_and_b32 s3, s2, 7")
    a("s_lshr_b32 s28, s2, 3")
    a("s_and_b32 s29, s3, 1")
    a("s_bfe_u32 s27, s3, 0x10001")
    a("s_lshr_b32 s30, s3, 2")
    a("s_lshl_b32 s30, s30, 3")
    a("s_and_b32 s31, s28, 7")
    a("s_add_u32 s30, s30, s31")
    a("s_lshr_b32 s31, s28, 3")
    a("v_lshrrev_b32 v1, 6, v0")
    a("v_and_b32 v2, 63, v0")
    a("s_nop 0")
    a("v_readfirstlane_b32 s32, v1")
    a("v_lshlrev_b32 v3, 4, v2")
    a("s_cmp_lt_u32 s32, 4")
    a(f"s_cbranch_scc1 {name}_cons")
    a("s_sub_u32 s33, s32, 4")
    a("v_lshrrev_b32 v4, 3, v2")
    a("v_and_b32 v5, 7, v2")
    a("v_lshrrev_b32 v6, 4, v2")
    a("v_xor_b32 v6, v6, v5")
    a("v_xor_b32 v7, 4, v6")
    a("v_lshlrev_b32 v4, 12, v4")
    a("v_lshl_add_u32 v6, v6, 4, v4")
    a("v_lshl_add_u32 v7, v7, 4, v4")
    a("v_mov_b32 v8, v6")
    a(f"v_add_u32 v9, {32768 - 1024}, v7")
    a(f"v_add_u32 v10, {2 * (32768 - 1024)}, v6")
    a(f"v_add_u32 v11, {3 * (32768 - 1024)}, v7")
    a(f"v_add_u32 v12, {65536 - 2048}, v3")
    a("s_lshl_b32 s35, s30, 19")
    a("s_lshl_b32 s34, s33, 17")
    a("s_add_u32 s35, s35, s34")
    a("s_lshl_b32 s34, s27, 11")
    a("s_add_u32 s35, s35, s34")
    a("s_lshl_b32 s36, s29, 5")
    a("s_lshl_b32 s34, s31, 3")
    a("s_add_u32 s36, s36, s34")
    a("s_lshl_b32 s34, s33, 1")
    a("s_add_u32 s36, s36, s34")
    a("s_lshl_b32 s36, s36, 6")
    a("s_lshl_b32 s34, s27, 5")
    a("s_add_u32 s36, s36, s34")
    a("s_lshl_b32 s36, s36, 10")
    a("s_lshl_b32 s37, s33, 12")
    for j in range(4):
        if rot:
            a(f"s_add_u32 s34, s31, {j}")
            a("s_and_b32 s34, s34, 3")
        else:
            a(f"s_mov_b32 s34, {j}")
        a("s_lshl_b32 s38, s34, 7")
        a(f"s_add_u32 s{44 + j}, s35, s38")
        a("s_lshl_b32 s38, s34, 11")
        a(f"s_add_u32 s{48 + j}, s36, s38")
    a("s_waitcnt lgkmcnt(0)")
    stamp(a, 1)
    a("s_cmp_eq_u32 s29, 1")
    a("s_cselect_b32 s4, s6, s4")
    a("s_cselect_b32 s5, s7, s5")
    srd(a, 12, 4, 5, S * S * 2)
    srd(a, 16, 8, 9, 12 << 20)

    def load_stage(s):
        slot = (s % NSTG) * 32768
        a(f"s_add_u32 m0, s37, {slot}")
        a(f"s_add_u32 s38, s{44 + (s & 3)}, {(s & ~3) * 128}")
        for i in range(4):
            a(f"buffer_load_dwordx4 v{8 + i}, s[12:15], s38 offen offset:{i * 1024} lds")
        a(f"s_add_u32 m0, s37, {slot + 16384}")
        a(f"s_add_u32 s39, s{48 + (s & 3)}, {(s & ~3) * 2048}")
        for c in range(4):
            a(f"buffer_load_dwordx4 v{3 if c < 2 else 12}, s[16:19], s39 offen offset:{c * 1024} lds")

    NST = 16
    for s in range(PRO):
        load_stage(s)
    stamp(a, 2)
    issued = PRO
    vq = [st for st in range(PRO) for _ in range(8)]
    for s in range(NST):
        idx = max(k for k, t in enumerate(vq) if t == s)
        a(f"s_waitcnt vmcnt({len(vq) - 1 - idx})")
        vq = vq[idx + 1:]
        a("s_barrier")
        n_new = 0
        while issued < NST and issued - NSTG < s and n_new < 2:
            load_stage(issued)
            vq += [issued] * 8
            issued += 1
            n_new += 1
            if issued == wpf:
                emit_wtouch(a, "s33", 13, 14)
                vq.append("w")
            if issued == wpf2:
                emit_wtouch2(a)
                vq += ["w", "w"]
    stamp(a, 5)
    a(f"s_branch {name}_fin")
    a.label(f"{name}_cons")
    a("s_and_b32 s33, s32, 1")
    a("s_lshr_b32 s34, s32, 1")
    a("v_and_b32 v4, 15, v2")
    a("v_lshrrev_b32 v5, 1, v4")
    a("v_lshrrev_b32 v6, 4, v2")
    a("v_xor_b32 v5, v5, v6")
    a("v_lshlrev_b32 v5, 4, v5")
    a("v_lshl_add_u32 v5, v4, 7, v5")
    a("s_lshl_b32 s35, s33, 13")
    a("s_lshl_b32 s36, s34, 13")
    a("s_add_u32 s36, s36, 16384")
    for g in range(3):
        a(f"v_add_u32 v{8 + 3 * g}, s35, v5")
        a(f"v_xor_b32 v{9 + 3 * g}, 64, v5")
        a(f"v_add_u32 v{9 + 3 * g}, s35, v{9 + 3 * g}")
        a(f"v_add_u32 v{10 + 3 * g}, s36, v3")
        if g:
            for r in range(3):
                a(f"v_add_u32 v{8 + 3 * g + r}, {65536 * g}, v{8 + 3 * g + r}")
    ACC = 64
    FB = 128
    for i in range(64):
        a(f"v_mov_b32 v{ACC + i}, 0")
    a("s_waitcnt lgkmcnt(0)")
    stamp(a, 1)
    srd(a, 16, 8, 9, 12 << 20)
    NU = NST * 2

    def read_list(u):
        s, ks = u // 2, u % 2
        slot = s % NSTG
        g, so = slot // 2, (slot % 2) * 32768
        f = FB + 32 * (u % 2)
        L = []
        for i in range(4):
            L.append(f"ds_read_b128 v[{f + 16 + 4 * i}:{f + 19 + 4 * i}], v{10 + 3 * g} offset:{so + i * 2048 + ks * 1024}")
            L.append(f"ds_read_b128 v[{f + 4 * i}:{f + 3 + 4 * i}], v{8 + 3 * g + ks} offset:{so + i * 2048}")
        return L

    a("s_barrier")
    stamp(a, 3)
    for r in read_list(0):
        a(r)
    for u in range(NU):
        a("s_waitcnt lgkmcnt(0)")
        f = FB + 32 * (u % 2)
        nxt = read_list(u + 1) if u + 1 < NU else []
        n = 0
        for T in range(4):
            for tt in range(4):
                acc = ACC + (T * 4 + tt) * 4
                a(f"v_mfma_f32_16x16x32_bf16 v[{acc}:{acc + 3}], v[{f + 16 + 4 * T}:{f + 19 + 4 * T}], v[{f + 4 * tt}:{f + 4 * tt + 3}], v[{acc}:{acc + 3}]")
                n += 1
                if n == BARPOS and nxt and (u + 1) % 2 == 0:
                    a("s_barrier")
                    if (u + 1) // 2 == 8:
                        stamp(a, 4)
                if n >= BARPOS and nxt and (n - BARPOS) % RSTEP == 0:
                    a(nxt.pop(0))
        for r in nxt:
            a(r)
    stamp(a, 5)
    a("s_lshl_b32 s35, s30, 7")
    a("s_lshl_b32 s36, s33, 6")
    a("s_add_u32 s35, s35, s36")
    a("s_lshl_b32 s35, s35, 10")
    a("s_lshl_b32 s36, s31, 8")
    a("s_add_u32 s35, s35, s36")
    a("s_lshl_b32 s36, s34, 7")
    a("s_add_u32 s35, s35, s36")
    a("s_lshl_b32 s36, s29, 1")
    a("s_add_u32 s36, s36, s27")
    a("s_lshl_b32 s36, s36, 21")
    a("s_add_u32 s35, s35, s36")
    a(f"s_add_u32 s35, s35, {WS_P}")
    a("v_lshlrev_b32 v6, 4, v6")
    a("v_lshl_add_u32 v6, v4, 10, v6")
    for tt in range(4):
        a(f"s_add_u32 s{40 + tt}, s35, {tt * 16384}")
    for tt in range(4):
        for Th in range(2):
            o = 24 + (tt * 2 + Th) * 4
            for Tl in range(2):
                acc = ACC + ((Th * 2 + Tl) * 4 + tt) * 4
                a(f"v_cvt_pk_bf16_f32 v{o + 2 * Tl}, v{acc}, v{acc + 1}")
                a(f"v_cvt_pk_bf16_f32 v{o + 2 * Tl + 1}, v{acc + 2}, v{acc + 3}")
            a(f"buffer_store_dwordx4 v[{o}:{o + 3}], v6, s[16:19], s{40 + tt} offen offset:{Th * 64}" + (" sc0 sc1" if wt else ""))
    a.label(f"{name}_fin")
    stamp_flush(a, 2, 6, 8, 9)
    a.label(f"{name}_done")
    a("s_endpgm")
    nv = FB + 64
    return kernel_desc(name, nv, 72, nv)


def gen_k1c(a, name, wt=1, PRO=3, pf=1, pace=1, pfw=1, pfxd=1):
    NSTG, SLOT, NST = 4, 32768, 8
    STATS = NSTG * SLOT
    kernel_begin(a, name)
    a("s_cmp_ge_u32 s2, 256")
    a(f"s_cbranch_scc1 {name}_done")
    stamp(a, 0)
    a("s_load_dwordx2 s[4:5], s[0:1], 0")
    a("s_load_dwordx4 s[8:11], s[0:1], 24")
    a("s_load_dwordx2 s[6:7], s[0:1], 96")
    a("s_load_dwordx4 s[40:43], s[0:1], 8")
    a("s_load_dwordx4 s[44:47], s[0:1], 56")
    a("s_load_dwordx2 s[48:49], s[0:1], 72")
    a("s_and_b32 s3, s2, 7")
    a("s_lshr_b32 s28, s2, 4")
    a("s_and_b32 s29, s28, 1")
    a("s_lshl_b32 s30, s3, 1")
    a("s_add_u32 s30, s30, s29")
    a("s_lshr_b32 s31, s28, 1")
    a("v_lshrrev_b32 v1, 6, v0")
    a("v_and_b32 v2, 63, v0")
    a("s_nop 0")
    a("v_readfirstlane_b32 s32, v1")
    a("s_mov_b32 s53, 0xffff0000")
    a("s_bitcmp1_b32 s2, 3")
    a(f"s_cbranch_scc1 {name}_pf")
    a("s_cmp_lt_u32 s32, 4")
    a(f"s_cbranch_scc1 {name}_cons")
    a("s_cmp_ge_u32 s32, 8")
    a(f"s_cbranch_scc1 {name}_stat")
    a("s_sub_u32 s33, s32, 4")
    a("v_lshrrev_b32 v3, 3, v2")
    a("v_and_b32 v4, 7, v2")
    a("v_bfe_u32 v5, v2, 4, 1")
    a("v_xor_b32 v4, v4, v5")
    a("v_lshlrev_b32 v3, 10, v3")
    for i in range(4):
        g0g1 = (i & 1) ^ (i >> 1)
        a(f"v_xor_b32 v{8 + i}, {(2 * i) ^ g0g1}, v4")
        a(f"v_lshl_add_u32 v{8 + i}, v{8 + i}, 4, v3")
        if i:
            a(f"v_add_u32 v{8 + i}, {i * (8192 - 1024)}, v{8 + i}")
    a("s_lshl_b32 s34, s33, 5")
    a("s_lshl_b32 s35, s30, 7")
    a("s_add_u32 s35, s35, s34")
    a("s_lshl_b32 s35, s35, 10")
    a("s_and_b32 s36, s31, 3")
    a("s_lshl_b32 s36, s36, 7")
    a("s_add_u32 s36, s36, s34")
    a("s_lshl_b32 s36, s36, 10")
    a("s_lshl_b32 s37, s33, 12")
    a("v_lshlrev_b32 v12, 6, v2")
    a("v_add_u32 v12, s37, v12")
    a("v_add_u32 v12, 16384, v12")
    a(f"v_add_u32 v13, {2 * SLOT}, v12")
    a("v_mov_b32 v14, 0")
    a("v_mov_b32 v15, 0")
    a("s_mov_b32 s50, 0x3f803f80")
    a("s_waitcnt lgkmcnt(0)")
    stamp(a, 1)
    srd(a, 12, 4, 5, S * D * 2)
    a("s_cmp_ge_u32 s31, 4")
    a("s_cselect_b32 s8, s10, s8")
    a("s_cselect_b32 s9, s11, s9")
    srd(a, 16, 8, 9, D * D * 2)

    def load_stage(kk):
        slot = (kk % NSTG) * SLOT
        a(f"s_add_u32 m0, s37, {slot}")
        a(f"s_add_u32 s39, s35, {kk * 128}")
        for i in range(4):
            a(f"buffer_load_dwordx4 v{8 + i}, s[12:15], s39 offen offset:{i * 1024} lds")
        a(f"s_add_u32 m0, s37, {slot + 16384}")
        a(f"s_add_u32 s39, s36, {kk * 128}")
        for i in range(4):
            a(f"buffer_load_dwordx4 v{8 + i}, s[16:19], s39 offen offset:{i * 1024} lds")

    for kk in range(PRO):
        load_stage(kk)
    stamp(a, 2)
    issued = PRO
    for kk in range(NST):
        a(f"s_waitcnt vmcnt({(issued - 1 - kk) * 8})")
        slot = kk % NSTG
        ar, so = (12, slot * SLOT) if slot < 2 else (13, (slot - 2) * SLOT)
        for q in range(4):
            a(f"ds_read_b128 v[{16 + 4 * q}:{19 + 4 * q}], v{ar} offset:{so + 16 * q}")
        a("s_barrier")
        n_new = 0
        while issued < NST and issued - NSTG < kk and n_new < 2:
            load_stage(issued)
            issued += 1
            n_new += 1
        a("s_waitcnt lgkmcnt(0)")
        for r in range(16):
            a(f"v_dot2_f32_bf16 v{14 + (r & 1)}, v{16 + r}, s50, v{14 + (r & 1)}")
    a("s_nop 2")
    a("v_add_f32 v14, v14, v15")
    a("s_nop 1")
    a(f"v_add_f32_dpp v14, v14, v14 quad_perm:[1,0,3,2] {DPP}")
    a("v_lshrrev_b32 v19, 1, v2")
    a("v_lshlrev_b32 v19, 2, v19")
    a("s_lshl_b32 s34, s33, 7")
    a(f"s_add_u32 s34, s34, {STATS + 1024}")
    a("v_add_u32 v19, s34, v19")
    a("ds_write_b32 v19, v14")
    a("s_waitcnt lgkmcnt(0)")
    stamp(a, 3)
    a("s_barrier")
    a(f"s_branch {name}_fin")
    a.label(f"{name}_stat")
    a("s_sub_u32 s33, s32, 8")
    a("s_lshl_b32 s37, s33, 12")
    a("v_lshlrev_b32 v12, 6, v2")
    a("v_add_u32 v12, s37, v12")
    a(f"v_add_u32 v13, {2 * SLOT}, v12")
    for r in range(4):
        a(f"v_mov_b32 v{80 + r}, 0")
    a("s_waitcnt lgkmcnt(0)")
    stamp(a, 1)

    def stat_valu(base):
        for r in range(16):
            t = 72 + 2 * (r & 3)
            a(f"v_lshlrev_b32 v{t}, 16, v{base + r}")
            a(f"v_and_b32 v{t + 1}, s53, v{base + r}")
            a(f"v_sub_f32 v{t}, v{t}, v18")
            a(f"v_sub_f32 v{t + 1}, v{t + 1}, v18")
            a(f"v_add_f32 v80, v80, v{t}")
            a(f"v_add_f32 v81, v81, v{t + 1}")
            a(f"v_fmac_f32 v82, v{t}, v{t}")
            a(f"v_fmac_f32 v83, v{t + 1}, v{t + 1}")

    for kk in range(NST):
        a("s_barrier")
        slot = kk % NSTG
        ar, so = (12, slot * SLOT) if slot < 2 else (13, (slot - 2) * SLOT)
        base = 32 + 16 * (kk & 1)
        for q in range(4):
            a(f"ds_read_b128 v[{base + 4 * q}:{base + 3 + 4 * q}], v{ar} offset:{so + 16 * q}")
        if kk >= 1:
            stat_valu(32 + 16 * ((kk - 1) & 1))
        a("s_waitcnt lgkmcnt(0)")
        if kk == 0:
            a("v_lshlrev_b32 v18, 16, v32")
            a("s_nop 1")
            a(f"v_mov_b32_dpp v18, v18 quad_perm:[0,0,2,2] {DPP}")
    stat_valu(32 + 16 * ((NST - 1) & 1))
    a("v_add_f32 v14, v80, v81")
    a("v_add_f32 v16, v82, v83")
    a("s_nop 1")
    a(f"v_add_f32_dpp v14, v14, v14 quad_perm:[1,0,3,2] {DPP}")
    a(f"v_add_f32_dpp v16, v16, v16 quad_perm:[1,0,3,2] {DPP}")
    a("v_mul_f32 v14, 0x3b000000, v14")
    a("v_mul_f32 v16, 0x3b000000, v16")
    a("v_fma_f32 v16, -v14, v14, v16")
    a("v_max_f32 v16, 0, v16")
    a("v_add_f32 v14, v14, v18")
    a("v_cvt_pk_bf16_f32 v14, v14, v14")
    a("v_lshlrev_b32 v14, 16, v14")
    a("v_cvt_pk_bf16_f32 v16, v16, v16")
    a("v_lshlrev_b32 v16, 16, v16")
    a("v_add_f32 v16, 0x3727c5ac, v16")
    a("v_cvt_pk_bf16_f32 v16, v16, v16")
    a("v_lshlrev_b32 v16, 16, v16")
    a("v_sqrt_f32 v16, v16")
    a("s_nop 0")
    a("v_cvt_pk_bf16_f32 v16, v16, v16")
    a("v_lshlrev_b32 v16, 16, v16")
    a("v_rcp_f32 v16, v16")
    a("v_lshrrev_b32 v19, 1, v2")
    a("v_lshlrev_b32 v19, 2, v19")
    a("s_lshl_b32 s34, s33, 7")
    a(f"s_add_u32 s34, s34, {STATS}")
    a("v_add_u32 v19, s34, v19")
    a("ds_write_b32 v19, v14")
    a("ds_write_b32 v19, v16 offset:512")
    a("s_waitcnt lgkmcnt(0)")
    stamp(a, 3)
    a("s_barrier")
    a(f"s_branch {name}_fin")
    a.label(f"{name}_cons")
    a("s_and_b32 s33, s32, 1")
    a("s_lshr_b32 s34, s32, 1")
    a("v_and_b32 v4, 15, v2")
    a("v_lshrrev_b32 v6, 4, v2")
    a("v_lshrrev_b32 v5, 2, v4")
    a("v_and_b32 v7, 3, v4")
    a("v_lshl_add_u32 v7, v5, 3, v7")
    a("v_lshrrev_b32 v20, 1, v4")
    a("v_lshrrev_b32 v21, 2, v4")
    a("v_lshrrev_b32 v22, 3, v4")
    a("v_xor_b32 v21, v21, v22")
    a("v_and_b32 v21, 1, v21")
    a("v_xor_b32 v20, v20, v21")
    a("v_xor_b32 v20, v20, v6")
    a("v_lshlrev_b32 v20, 4, v20")
    a("v_lshl_add_u32 v20, v7, 7, v20")
    a("s_lshl_b32 s35, s33, 13")
    a("s_lshl_b32 s36, s34, 13")
    a("s_add_u32 s36, s36, 16384")
    for g2 in range(2):
        a(f"v_add_u32 v{8 + 4 * g2}, s35, v20")
        a(f"v_xor_b32 v{9 + 4 * g2}, 64, v{8 + 4 * g2}")
        a(f"v_add_u32 v{10 + 4 * g2}, s36, v20")
        a(f"v_xor_b32 v{11 + 4 * g2}, 64, v{10 + 4 * g2}")
        if g2:
            for r in range(4):
                a(f"v_add_u32 v{8 + 4 * g2 + r}, {65536 * g2}, v{8 + 4 * g2 + r}")
    ACC = 32
    FB = 96
    for i in range(64):
        a(f"v_mov_b32 v{ACC + i}, 0")
    a("s_waitcnt lgkmcnt(0)")
    stamp(a, 1)
    srd(a, 20, 6, 7, 4 << 20)
    NU = NST * 2

    def reads(u):
        s, ks = u // 2, u % 2
        slot = s % NSTG
        g2, so = slot // 2, (slot % 2) * SLOT
        f = FB + 32 * (u % 2)
        if ks == 0:
            a("s_waitcnt lgkmcnt(0)")
            a("s_barrier")
            if s == 0:
                stamp(a, 2)
        for i in range(4):
            off = so + (i >> 1) * 4096 + (i & 1) * 512
            a(f"ds_read_b128 v[{f + 4 * i}:{f + 3 + 4 * i}], v{8 + 4 * g2 + ks} offset:{off}")
            a(f"ds_read_b128 v[{f + 16 + 4 * i}:{f + 19 + 4 * i}], v{10 + 4 * g2 + ks} offset:{off}")

    reads(0)
    for u in range(NU):
        if u + 1 < NU:
            reads(u + 1)
            a("s_waitcnt lgkmcnt(8)")
        else:
            a("s_waitcnt lgkmcnt(0)")
        f = FB + 32 * (u % 2)
        for xi in range(4):
            for T in range(4):
                acc = ACC + (xi * 4 + T) * 4
                a(f"v_mfma_f32_16x16x32_bf16 v[{acc}:{acc + 3}], v[{f + 4 * xi}:{f + 3 + 4 * xi}], v[{f + 16 + 4 * T}:{f + 19 + 4 * T}], v[{acc}:{acc + 3}]")
    stamp(a, 3)
    a("s_barrier")
    stamp(a, 4)
    a("s_lshl_b32 s35, s33, 8")
    a(f"s_add_u32 s35, s35, {STATS}")
    a("v_lshlrev_b32 v20, 5, v6")
    a("v_add_u32 v20, s35, v20")
    for blk in range(2):
        for h in range(2):
            a(f"ds_read_b128 v[{96 + 16 * blk + 4 * h}:{99 + 16 * blk + 4 * h}], v20 offset:{128 * blk + 16 * h}")
            a(f"ds_read_b128 v[{104 + 16 * blk + 4 * h}:{107 + 16 * blk + 4 * h}], v20 offset:{512 + 128 * blk + 16 * h}")
    a("s_lshl_b32 s36, s34, 8")
    a(f"s_add_u32 s36, s36, {STATS + 1024}")
    a("v_lshlrev_b32 v21, 2, v7")
    a("v_add_u32 v21, s36, v21")
    for T in range(4):
        a(f"ds_read_b32 v{128 + T}, v21 offset:{(T >> 1) * 128 + (T & 1) * 16}")
    a("s_lshl_b32 s35, s31, 3")
    a("s_lshl_b32 s36, s34, 2")
    a("s_add_u32 s35, s35, s36")
    a("s_lshl_b32 s35, s35, 6")
    a("s_lshl_b32 s36, s30, 2")
    a("s_add_u32 s35, s35, s36")
    a("s_lshl_b32 s36, s33, 1")
    a("s_add_u32 s35, s35, s36")
    a("s_lshl_b32 s35, s35, 10")
    for T in range(4):
        a(f"s_add_u32 s{40 + T}, s35, {T * 65536}")
    a("v_lshlrev_b32 v22, 4, v2")
    a("s_waitcnt lgkmcnt(0)")
    for blk in range(2):
        for T in range(4):
            o = 132 + 4 * ((blk * 4 + T) & 3)
            for hb in range(2):
                acc = ACC + ((blk * 2 + hb) * 4 + T) * 4
                for j in range(4):
                    a(f"v_fma_f32 v{acc + j}, -v{96 + 16 * blk + 4 * hb + j}, v{128 + T}, v{acc + j}")
                    a(f"v_mul_f32 v{acc + j}, v{acc + j}, v{104 + 16 * blk + 4 * hb + j}")
                a(f"v_cvt_pk_bf16_f32 v{o + 2 * hb}, v{acc}, v{acc + 1}")
                a(f"v_cvt_pk_bf16_f32 v{o + 2 * hb + 1}, v{acc + 2}, v{acc + 3}")
            a(f"buffer_store_dwordx4 v[{o}:{o + 3}], v22, s[20:23], s{40 + T} offen offset:{blk * 1024}" + (" sc0 sc1" if wt else ""))
    stamp(a, 5)
    a(f"s_branch {name}_fin")
    a.label(f"{name}_pf")
    a("s_waitcnt lgkmcnt(0)")
    stamp(a, 1)
    if pf:
        a("v_lshlrev_b32 v3, 7, v2")
        a("v_lshrrev_b32 v4, 4, v2")
        a("v_lshlrev_b32 v4, 12, v4")
        a("v_and_b32 v5, 15, v2")
        a("v_lshl_add_u32 v4, v5, 7, v4")
        a("s_mul_i32 s33, s28, 12")
        a("s_add_u32 s33, s33, s32")
        nld = 0
        if pfxd:
            srd(a, 12, 4, 5, S * D * 2)
            srd(a, 16, 8, 9, D * D * 2)
            srd(a, 20, 10, 11, D * D * 2)
            a("s_lshl_b32 s34, s33, 13")
            a("s_lshl_b32 s35, s3, 18")
            a("s_add_u32 s35, s35, s34")
            a("s_cmp_lt_u32 s33, 32")
            a(f"s_cbranch_scc0 {name}_pf1")
            a("buffer_load_dword v10, v3, s[12:15], s35 offen")
            a(f"s_branch {name}_pf3")
            a.label(f"{name}_pf1")
            a("s_sub_u32 s34, s34, 262144")
            a("s_cmp_lt_u32 s33, 96")
            a(f"s_cbranch_scc0 {name}_pf2")
            a("buffer_load_dword v10, v3, s[16:19], s34 offen")
            a(f"s_branch {name}_pf3")
            a.label(f"{name}_pf2")
            a("s_sub_u32 s34, s34, 524288")
            a("buffer_load_dword v10, v3, s[20:23], s34 offen")
            a.label(f"{name}_pf3")
            if pace:
                a("s_waitcnt vmcnt(0)")
        a("s_and_b32 s48, s3, 1")
        a("s_cmp_eq_u32 s48, 1")
        a("s_cselect_b32 s40, s42, s40")
        a("s_cselect_b32 s41, s43, s41")
        srd(a, 24, 40, 41, S * S * 2)
        a("s_cmp_ge_u32 s33, 128")
        a(f"s_cbranch_scc1 {name}_fin")
        a("s_lshr_b32 s48, s3, 2")
        a("s_lshl_b32 s48, s48, 10")
        a("s_lshl_b32 s49, s33, 3")
        a("s_add_u32 s48, s48, s49")
        a("s_lshl_b32 s48, s48, 12")
        a("s_bfe_u32 s49, s3, 0x10001")
        a("s_lshl_b32 s49, s49, 11")
        a("s_add_u32 s48, s48, s49")
        a("buffer_load_dword v11, v4, s[24:27], s48 offen")
        if pace >= 2:
            a("s_waitcnt vmcnt(0)")
        a("s_add_u32 s48, s48, 16384")
        a("buffer_load_dword v12, v4, s[24:27], s48 offen")
    a.label(f"{name}_fin")
    stamp_flush(a, 1, 6, 6, 7)
    a.label(f"{name}_done")
    a("s_endpgm")
    return kernel_desc(name, 160, 64, 160)


WS_STATS = (12 << 20) + (1 << 19) + 8192
WS_CS = WS_STATS + 16384


def gen_k1d(a, name, wt=1, PRO=3, pf=1, pace=1, pfq=4):
    NSTG, SLOT, NST = 4, 32768, 8
    STATS = NSTG * SLOT
    kernel_begin(a, name)
    a("s_cmp_ge_u32 s2, 256")
    a(f"s_cbranch_scc1 {name}_done")
    stamp(a, 0)
    a("s_load_dwordx2 s[4:5], s[0:1], 0")
    a("s_load_dwordx4 s[8:11], s[0:1], 24")
    a("s_load_dwordx4 s[44:47], s[0:1], 88")
    a("s_load_dwordx4 s[40:43], s[0:1], 8")
    a("s_and_b32 s3, s2, 7")
    a("s_lshr_b32 s28, s2, 4")
    a("s_and_b32 s29, s28, 1")
    a("s_lshl_b32 s30, s3, 1")
    a("s_add_u32 s30, s30, s29")
    a("s_lshr_b32 s31, s28, 1")
    a("v_lshrrev_b32 v1, 6, v0")
    a("v_and_b32 v2, 63, v0")
    a("s_nop 0")
    a("v_readfirstlane_b32 s32, v1")
    a("s_mov_b32 s53, 0xffff0000")
    a("s_bitcmp1_b32 s2, 3")
    a(f"s_cbranch_scc1 {name}_aux")
    a("s_cmp_lt_u32 s32, 4")
    a(f"s_cbranch_scc1 {name}_cons")
    a("s_sub_u32 s33, s32, 4")
    a("v_lshrrev_b32 v3, 3, v2")
    a("v_and_b32 v4, 7, v2")
    a("v_bfe_u32 v5, v2, 4, 1")
    a("v_xor_b32 v4, v4, v5")
    a("v_lshlrev_b32 v3, 10, v3")
    for i in range(4):
        g0g1 = (i & 1) ^ (i >> 1)
        a(f"v_xor_b32 v{8 + i}, {(2 * i) ^ g0g1}, v4")
        a(f"v_lshl_add_u32 v{8 + i}, v{8 + i}, 4, v3")
        if i:
            a(f"v_add_u32 v{8 + i}, {i * (8192 - 1024)}, v{8 + i}")
    a("s_lshl_b32 s34, s33, 5")
    a("s_lshl_b32 s35, s30, 7")
    a("s_add_u32 s35, s35, s34")
    a("s_lshl_b32 s38, s35, 3")
    a("s_lshl_b32 s35, s35, 10")
    a("s_and_b32 s36, s31, 3")
    a("s_lshl_b32 s36, s36, 7")
    a("s_add_u32 s36, s36, s34")
    a("s_lshl_b32 s36, s36, 10")
    a("s_lshl_b32 s37, s33, 12")
    a("v_lshlrev_b32 v12, 6, v2")
    a("v_add_u32 v12, s37, v12")
    a("v_add_u32 v12, 16384, v12")
    a(f"v_add_u32 v13, {2 * SLOT}, v12")
    a("v_mov_b32 v14, 0")
    a("v_mov_b32 v15, 0")
    a("s_mov_b32 s50, 0x3f803f80")
    a("s_waitcnt lgkmcnt(0)")
    stamp(a, 1)
    srd(a, 12, 4, 5, S * D * 2)
    a("s_cmp_ge_u32 s31, 4")
    a("s_cselect_b32 s8, s10, s8")
    a("s_cselect_b32 s9, s11, s9")
    srd(a, 16, 8, 9, D * D * 2)
    srd(a, 20, 46, 47, 14 << 20)
    srd(a, 24, 44, 45, 256)

    def load_stage(kk):
        slot = (kk % NSTG) * SLOT
        a(f"s_add_u32 m0, s37, {slot}")
        a(f"s_add_u32 s39, s35, {kk * 128}")
        for i in range(4):
            a(f"buffer_load_dwordx4 v{8 + i}, s[12:15], s39 offen offset:{i * 1024} lds")
        a(f"s_add_u32 m0, s37, {slot + 16384}")
        a(f"s_add_u32 s39, s36, {kk * 128}")
        for i in range(4):
            a(f"buffer_load_dwordx4 v{8 + i}, s[16:19], s39 offen offset:{i * 1024} lds")

    for kk in range(PRO):
        load_stage(kk)
    stamp(a, 2)
    issued = PRO
    for kk in range(NST):
        a(f"s_waitcnt vmcnt({(issued - 1 - kk) * 8})")
        slot = kk % NSTG
        ar, so = (12, slot * SLOT) if slot < 2 else (13, (slot - 2) * SLOT)
        for q in range(4):
            a(f"ds_read_b128 v[{16 + 4 * q}:{19 + 4 * q}], v{ar} offset:{so + 16 * q}")
        a("s_barrier")
        n_new = 0
        while issued < NST and issued - NSTG < kk and n_new < 2:
            load_stage(issued)
            issued += 1
            n_new += 1
        a("s_waitcnt lgkmcnt(0)")
        for r in range(16):
            a(f"v_dot2_f32_bf16 v{14 + (r & 1)}, v{16 + r}, s50, v{14 + (r & 1)}")
    a("s_lshl_b32 s34, s30, 2")
    a("v_mov_b32 v20, s34")
    a.label(f"{name}_poll")
    a("buffer_load_dword v21, v20, s[24:27], 0 offen sc0 sc1")
    a("s_waitcnt vmcnt(0)")
    a("v_readfirstlane_b32 s34, v21")
    a("s_cmp_ge_u32 s34, 8")
    a(f"s_cbranch_scc1 {name}_polled")
    a("s_sleep 2")
    a(f"s_branch {name}_poll")
    a.label(f"{name}_polled")
    a("v_and_b32 v20, 31, v2")
    a("v_lshlrev_b32 v20, 3, v20")
    a(f"s_add_u32 s38, s38, {WS_STATS}")
    a("buffer_load_dwordx2 v[22:23], v20, s[20:23], s38 offen sc0 sc1")
    a("v_add_f32 v14, v14, v15")
    a("s_nop 1")
    a(f"v_add_f32_dpp v14, v14, v14 quad_perm:[1,0,3,2] {DPP}")
    a("v_lshrrev_b32 v19, 1, v2")
    a("v_lshlrev_b32 v19, 2, v19")
    a("s_lshl_b32 s34, s33, 7")
    a(f"s_add_u32 s34, s34, {STATS + 1024}")
    a("v_add_u32 v19, s34, v19")
    a("ds_write_b32 v19, v14")
    a("v_lshrrev_b32 v20, 1, v20")
    a("s_lshl_b32 s34, s33, 7")
    a(f"s_add_u32 s34, s34, {STATS}")
    a("v_add_u32 v20, s34, v20")
    a("s_waitcnt vmcnt(0)")
    a("ds_write_b32 v20, v22")
    a("ds_write_b32 v20, v23 offset:512")
    a("s_waitcnt lgkmcnt(0)")
    stamp(a, 3)
    a("s_barrier")
    a(f"s_branch {name}_fin")
    a.label(f"{name}_cons")
    a("s_and_b32 s33, s32, 1")
    a("s_lshr_b32 s34, s32, 1")
    a("v_and_b32 v4, 15, v2")
    a("v_lshrrev_b32 v6, 4, v2")
    a("v_lshrrev_b32 v5, 2, v4")
    a("v_and_b32 v7, 3, v4")
    a("v_lshl_add_u32 v7, v5, 3, v7")
    a("v_lshrrev_b32 v20, 1, v4")
    a("v_lshrrev_b32 v21, 2, v4")
    a("v_lshrrev_b32 v22, 3, v4")
    a("v_xor_b32 v21, v21, v22")
    a("v_and_b32 v21, 1, v21")
    a("v_xor_b32 v20, v20, v21")
    a("v_xor_b32 v20, v20, v6")
    a("v_lshlrev_b32 v20, 4, v20")
    a("v_lshl_add_u32 v20, v7, 7, v20")
    a("s_lshl_b32 s35, s33, 13")
    a("s_lshl_b32 s36, s34, 13")
    a("s_add_u32 s36, s36, 16384")
    for g2 in range(2):
        a(f"v_add_u32 v{8 + 4 * g2}, s35, v20")
        a(f"v_xor_b32 v{9 + 4 * g2}, 64, v{8 + 4 * g2}")
        a(f"v_add_u32 v{10 + 4 * g2}, s36, v20")
        a(f"v_xor_b32 v{11 + 4 * g2}, 64, v{10 + 4 * g2}")
        if g2:
            for r in range(4):
                a(f"v_add_u32 v{8 + 4 * g2 + r}, {65536 * g2}, v{8 + 4 * g2 + r}")
    ACC = 32
    FB = 96
    for i in range(64):
        a(f"v_mov_b32 v{ACC + i}, 0")
    a("s_waitcnt lgkmcnt(0)")
    stamp(a, 1)
    srd(a, 20, 46, 47, 4 << 20)
    NU = NST * 2

    def read_list(u):
        s, ks = u // 2, u % 2
        slot = s % NSTG
        g2, so = slot // 2, (slot % 2) * SLOT
        f = FB + 32 * (u % 2)
        L = []
        for i in range(4):
            off = so + (i >> 1) * 4096 + (i & 1) * 512
            L.append(f"ds_read_b128 v[{f + 4 * i}:{f + 3 + 4 * i}], v{8 + 4 * g2 + ks} offset:{off}")
            L.append(f"ds_read_b128 v[{f + 16 + 4 * i}:{f + 19 + 4 * i}], v{10 + 4 * g2 + ks} offset:{off}")
        return L

    a("s_barrier")
    stamp(a, 2)
    for r in read_list(0):
        a(r)
    for u in range(NU):
        a("s_waitcnt lgkmcnt(0)")
        f = FB + 32 * (u % 2)
        nxt = read_list(u + 1) if u + 1 < NU else []
        n = 0
        for xi in range(4):
            for T in range(4):
                acc = ACC + (xi * 4 + T) * 4
                a(f"v_mfma_f32_16x16x32_bf16 v[{acc}:{acc + 3}], v[{f + 4 * xi}:{f + 3 + 4 * xi}], v[{f + 16 + 4 * T}:{f + 19 + 4 * T}], v[{acc}:{acc + 3}]")
                n += 1
                if n == 1 and nxt and (u + 1) % 2 == 0:
                    a("s_barrier")
                if nxt:
                    a(nxt.pop(0))
    stamp(a, 3)
    a("s_barrier")
    stamp(a, 4)
    a("s_lshl_b32 s35, s33, 8")
    a(f"s_add_u32 s35, s35, {STATS}")
    a("v_lshlrev_b32 v20, 5, v6")
    a("v_add_u32 v20, s35, v20")
    for blk in range(2):
        for h in range(2):
            a(f"ds_read_b128 v[{96 + 16 * blk + 4 * h}:{99 + 16 * blk + 4 * h}], v20 offset:{128 * blk + 16 * h}")
            a(f"ds_read_b128 v[{104 + 16 * blk + 4 * h}:{107 + 16 * blk + 4 * h}], v20 offset:{512 + 128 * blk + 16 * h}")
    a("s_lshl_b32 s36, s34, 8")
    a(f"s_add_u32 s36, s36, {STATS + 1024}")
    a("v_lshlrev_b32 v21, 2, v7")
    a("v_add_u32 v21, s36, v21")
    for T in range(4):
        a(f"ds_read_b32 v{128 + T}, v21 offset:{(T >> 1) * 128 + (T & 1) * 16}")
    a("s_lshl_b32 s35, s31, 3")
    a("s_lshl_b32 s36, s34, 2")
    a("s_add_u32 s35, s35, s36")
    a("s_lshl_b32 s35, s35, 6")
    a("s_lshl_b32 s36, s30, 2")
    a("s_add_u32 s35, s35, s36")
    a("s_lshl_b32 s36, s33, 1")
    a("s_add_u32 s35, s35, s36")
    a("s_lshl_b32 s35, s35, 10")
    for T in range(4):
        a(f"s_add_u32 s{40 + T}, s35, {T * 65536}")
    a("v_lshlrev_b32 v22, 4, v2")
    a("s_waitcnt lgkmcnt(0)")
    for blk in range(2):
        for T in range(4):
            o = 132 + 4 * ((blk * 4 + T) & 3)
            for hb in range(2):
                acc = ACC + ((blk * 2 + hb) * 4 + T) * 4
                for j in range(4):
                    a(f"v_fma_f32 v{acc + j}, -v{96 + 16 * blk + 4 * hb + j}, v{128 + T}, v{acc + j}")
                    a(f"v_mul_f32 v{acc + j}, v{acc + j}, v{104 + 16 * blk + 4 * hb + j}")
                a(f"v_cvt_pk_bf16_f32 v{o + 2 * hb}, v{acc}, v{acc + 1}")
                a(f"v_cvt_pk_bf16_f32 v{o + 2 * hb + 1}, v{acc + 2}, v{acc + 3}")
            a(f"buffer_store_dwordx4 v[{o}:{o + 3}], v22, s[20:23], s{40 + T} offen offset:{blk * 1024}" + (" sc0 sc1" if wt else ""))
    stamp(a, 5)
    a(f"s_branch {name}_fin")
    a.label(f"{name}_aux")
    a("v_mov_b32 v3, 0")
    a("ds_write_b32 v3, v3")
    a("s_waitcnt lgkmcnt(0)")
    a("s_barrier")
    stamp(a, 1)
    a("s_cmp_ge_u32 s32, 4")
    a(f"s_cbranch_scc1 {name}_pfw")
    a("s_lshl_b32 s33, s3, 8")
    a("s_lshl_b32 s34, s28, 4")
    a("s_add_u32 s33, s33, s34")
    a("s_lshl_b32 s34, s32, 2")
    a("s_add_u32 s33, s33, s34")
    a("v_lshrrev_b32 v3, 4, v2")
    a("v_and_b32 v4, 15, v2")
    a("v_lshlrev_b32 v5, 10, v3")
    a("v_lshl_add_u32 v5, v4, 4, v5")
    a("s_lshl_b32 s34, s33, 10")
    srd(a, 12, 4, 5, S * D * 2)
    for jj in range(4):
        a(f"buffer_load_dwordx4 v[{16 + 4 * jj}:{19 + 4 * jj}], v5, s[12:15], s34 offen offset:{256 * jj}")
    srd(a, 20, 46, 47, 14 << 20)
    srd(a, 28, 44, 45, 256)
    a("s_waitcnt vmcnt(0)")
    stamp(a, 2)
    X = 32
    for r in range(16):
        a(f"v_lshlrev_b32 v{X + 2 * r}, 16, v{16 + r}")
        a(f"v_and_b32 v{X + 2 * r + 1}, s53, v{16 + r}")
    a(f"v_add_f32 v8, v{X}, v{X + 1}")
    a(f"v_add_f32 v9, v{X + 2}, v{X + 3}")
    for r in range(4, 32, 2):
        a(f"v_add_f32 v8, v8, v{X + r}")
        a(f"v_add_f32 v9, v9, v{X + r + 1}")
    a("v_add_f32 v8, v8, v9")

    def red16(v):
        for pat in ("quad_perm:[1,0,3,2]", "quad_perm:[2,3,0,1]", "row_half_mirror", "row_mirror"):
            a("s_nop 1")
            a(f"v_add_f32_dpp v{v}, v{v}, v{v} {pat} {DPP}")

    red16(8)
    a("v_mul_f32 v8, 0x3b000000, v8")
    a("v_mov_b32 v10, 0")
    a("v_mov_b32 v11, 0")
    for r in range(0, 32, 2):
        a(f"v_sub_f32 v{X + r}, v{X + r}, v8")
        a(f"v_sub_f32 v{X + r + 1}, v{X + r + 1}, v8")
        a(f"v_fmac_f32 v10, v{X + r}, v{X + r}")
        a(f"v_fmac_f32 v11, v{X + r + 1}, v{X + r + 1}")
    a("v_add_f32 v10, v10, v11")
    red16(10)
    a("v_mul_f32 v10, 0x3b000000, v10")
    a("v_cvt_pk_bf16_f32 v12, v8, v8")
    a("v_lshlrev_b32 v12, 16, v12")
    a("v_cvt_pk_bf16_f32 v10, v10, v10")
    a("v_lshlrev_b32 v10, 16, v10")
    a("v_add_f32 v10, 0x3727c5ac, v10")
    a("v_cvt_pk_bf16_f32 v10, v10, v10")
    a("v_lshlrev_b32 v10, 16, v10")
    a("v_sqrt_f32 v10, v10")
    a("s_nop 0")
    a("v_cvt_pk_bf16_f32 v10, v10, v10")
    a("v_lshlrev_b32 v10, 16, v10")
    a("v_rcp_f32 v13, v10")
    a("v_lshlrev_b32 v14, 3, v3")
    a("s_lshl_b32 s36, s33, 3")
    a(f"s_add_u32 s36, s36, {WS_STATS}")
    a("v_cmp_eq_u32 vcc, 0, v4")
    a("s_and_saveexec_b64 s[54:55], vcc")
    a("buffer_store_dwordx2 v[12:13], v14, s[20:23], s36 offen sc0 sc1")
    a("s_mov_b64 exec, s[54:55]")
    a("s_waitcnt vmcnt(0)")
    stamp(a, 3)
    a("v_mov_b32 v14, 0")
    a("v_mov_b32 v15, 1")
    a("v_cmp_eq_u32 vcc, 0, v2")
    a("s_and_saveexec_b64 s[54:55], vcc")
    a("ds_add_rtn_u32 v6, v14, v15")
    a("s_waitcnt lgkmcnt(0)")
    a("v_readfirstlane_b32 s36, v6")
    a("s_cmp_lg_u32 s36, 3")
    a(f"s_cbranch_scc1 {name}_nosig")
    a("s_lshr_b32 s36, s33, 7")
    a("s_lshl_b32 s36, s36, 2")
    a("v_mov_b32 v14, s36")
    a("buffer_atomic_add v15, v14, s[28:31], 0 offen")
    a.label(f"{name}_nosig")
    a("s_mov_b64 exec, s[54:55]")
    a(f"s_branch {name}_fin")
    a.label(f"{name}_pfw")
    a("v_lshlrev_b32 v6, 7, v2")
    a("v_lshrrev_b32 v7, 4, v2")
    a("v_lshlrev_b32 v7, 12, v7")
    a("v_and_b32 v8, 15, v2")
    a("v_lshl_add_u32 v7, v8, 7, v7")
    a("s_lshl_b32 s35, s28, 2")
    a("s_add_u32 s35, s35, s32")
    a("s_sub_u32 s35, s35, 4")
    srd(a, 16, 8, 9, D * D * 2)
    srd(a, 20, 10, 11, D * D * 2)
    a("s_lshl_b32 s36, s35, 13")
    a("buffer_load_dword v10, v6, s[16:19], s36 offen")
    a("buffer_load_dword v11, v6, s[20:23], s36 offen")
    a("s_and_b32 s48, s3, 1")
    a("s_cmp_eq_u32 s48, 1")
    a("s_cselect_b32 s40, s42, s40")
    a("s_cselect_b32 s41, s43, s41")
    srd(a, 24, 40, 41, S * S * 2)
    a("s_lshr_b32 s48, s3, 2")
    a("s_lshl_b32 s48, s48, 10")
    a("s_lshl_b32 s49, s35, 4")
    a("s_add_u32 s48, s48, s49")
    a("s_lshl_b32 s48, s48, 12")
    a("s_bfe_u32 s49, s3, 0x10001")
    a("s_lshl_b32 s49, s49, 11")
    a("s_add_u32 s48, s48, s49")
    if pace:
        a("s_waitcnt vmcnt(0)")
    stamp(a, 2)
    if pf:
        if pfq < 4:
            a(f"v_cmp_gt_u32 vcc, {4 * pfq}, v8")
            a("s_and_saveexec_b64 s[54:55], vcc")
        for ii in range(4):
            a(f"s_add_u32 s49, s48, {ii * 16384}")
            a(f"buffer_load_dword v{12 + ii}, v7, s[24:27], s49 offen")
        if pfq < 4:
            a("s_mov_b64 exec, s[54:55]")
    a.label(f"{name}_fin")
    stamp_flush(a, 1, 6, 46, 47)
    a.label(f"{name}_done")
    a("s_endpgm")
    return kernel_desc(name, 160, 64, 160)


def gen_k1e(a, name, wt=1, PRO=4, pf=1, pace=1, U1=10, U2=12, pfq=4):
    NSTG, SLOT, NST = 5, 32768, 8
    CS = 3 * SLOT
    kernel_begin(a, name)
    a("s_cmp_ge_u32 s2, 256")
    a(f"s_cbranch_scc1 {name}_done")
    stamp(a, 0)
    a("s_load_dwordx2 s[4:5], s[0:1], 0")
    a("s_load_dwordx4 s[8:11], s[0:1], 24")
    a("s_load_dwordx4 s[44:47], s[0:1], 88")
    a("s_load_dwordx4 s[40:43], s[0:1], 8")
    a("s_and_b32 s3, s2, 7")
    a("s_lshr_b32 s28, s2, 4")
    a("s_and_b32 s29, s3, 1")
    a("s_bfe_u32 s27, s3, 0x10001")
    a("s_lshr_b32 s26, s3, 2")
    a("s_lshl_b32 s30, s27, 3")
    a("s_lshl_b32 s34, s26, 2")
    a("s_add_u32 s30, s30, s34")
    a("s_and_b32 s34, s28, 3")
    a("s_add_u32 s30, s30, s34")
    a("s_lshr_b32 s31, s28, 2")
    a("v_lshrrev_b32 v1, 6, v0")
    a("v_and_b32 v2, 63, v0")
    a("s_nop 0")
    a("v_readfirstlane_b32 s32, v1")
    a("s_mov_b32 s53, 0xffff0000")
    a("s_bitcmp1_b32 s2, 3")
    a(f"s_cbranch_scc1 {name}_aux")
    a("s_cmp_lt_u32 s32, 4")
    a(f"s_cbranch_scc1 {name}_cons")
    a("s_sub_u32 s33, s32, 4")
    a("v_lshrrev_b32 v3, 3, v2")
    a("v_and_b32 v4, 7, v2")
    a("v_bfe_u32 v5, v2, 4, 1")
    a("v_xor_b32 v4, v4, v5")
    a("v_lshlrev_b32 v3, 10, v3")
    for i in range(4):
        g0g1 = (i & 1) ^ (i >> 1)
        a(f"v_xor_b32 v{8 + i}, {(2 * i) ^ g0g1}, v4")
        a(f"v_lshl_add_u32 v{8 + i}, v{8 + i}, 4, v3")
        if i:
            a(f"v_add_u32 v{8 + i}, {i * (8192 - 1024)}, v{8 + i}")
    a("s_lshl_b32 s34, s33, 5")
    a("s_lshl_b32 s35, s30, 7")
    a("s_add_u32 s35, s35, s34")
    a("s_lshl_b32 s35, s35, 10")
    a("s_lshl_b32 s36, s31, 7")
    a("s_add_u32 s36, s36, s34")
    a("s_lshl_b32 s36, s36, 10")
    a("s_lshl_b32 s37, s33, 12")
    a("v_lshlrev_b32 v12, 6, v2")
    a("v_add_u32 v12, s37, v12")
    a("v_add_u32 v12, 16384, v12")
    a(f"v_add_u32 v13, {2 * SLOT}, v12")
    a(f"v_add_u32 v6, {4 * SLOT}, v12")
    a("v_mov_b32 v14, 0")
    a("v_mov_b32 v15, 0")
    a("s_mov_b32 s50, 0x3f803f80")
    a("s_waitcnt lgkmcnt(0)")
    stamp(a, 1)
    srd(a, 12, 4, 5, S * D * 2)
    a("s_cmp_eq_u32 s29, 1")
    a("s_cselect_b32 s8, s10, s8")
    a("s_cselect_b32 s9, s11, s9")
    srd(a, 16, 8, 9, D * D * 2)

    def load_stage(kk):
        slot = (kk % NSTG) * SLOT
        a(f"s_add_u32 m0, s37, {slot}")
        a(f"s_add_u32 s39, s35, {kk * 128}")
        for i in range(4):
            a(f"buffer_load_dwordx4 v{8 + i}, s[12:15], s39 offen offset:{i * 1024} lds")
        a(f"s_add_u32 m0, s37, {slot + 16384}")
        a(f"s_add_u32 s39, s36, {kk * 128}")
        for i in range(4):
            a(f"buffer_load_dwordx4 v{8 + i}, s[16:19], s39 offen offset:{i * 1024} lds")

    for kk in range(PRO):
        load_stage(kk)
    stamp(a, 2)
    issued = PRO
    for kk in range(NST):
        a(f"s_waitcnt vmcnt({(issued - 1 - kk) * 8})")
        a("s_barrier")
        n_new = 0
        while issued < NST and issued - NSTG < kk and n_new < 2:
            load_stage(issued)
            issued += 1
            n_new += 1
    stamp(a, 3)
    a(f"s_branch {name}_fin")
    a.label(f"{name}_cons")
    a("s_and_b32 s33, s32, 1")
    a("s_lshr_b32 s34, s32, 1")
    a("v_and_b32 v4, 15, v2")
    a("v_lshrrev_b32 v6, 4, v2")
    a("v_lshrrev_b32 v5, 2, v4")
    a("v_and_b32 v7, 3, v4")
    a("v_lshl_add_u32 v7, v5, 3, v7")
    a("v_lshrrev_b32 v20, 1, v4")
    a("v_lshrrev_b32 v21, 2, v4")
    a("v_lshrrev_b32 v22, 3, v4")
    a("v_xor_b32 v21, v21, v22")
    a("v_and_b32 v21, 1, v21")
    a("v_xor_b32 v20, v20, v21")
    a("v_xor_b32 v20, v20, v6")
    a("v_lshlrev_b32 v20, 4, v20")
    a("v_lshl_add_u32 v20, v7, 7, v20")
    a("s_lshl_b32 s35, s33, 13")
    a("s_lshl_b32 s36, s34, 13")
    a("s_add_u32 s36, s36, 16384")
    for g2 in range(3):
        a(f"v_add_u32 v{8 + 4 * g2}, s35, v20")
        a(f"v_xor_b32 v{9 + 4 * g2}, 64, v{8 + 4 * g2}")
        a(f"v_add_u32 v{10 + 4 * g2}, s36, v20")
        a(f"v_xor_b32 v{11 + 4 * g2}, 64, v{10 + 4 * g2}")
        if g2:
            for r in range(4):
                a(f"v_add_u32 v{8 + 4 * g2 + r}, {65536 * g2}, v{8 + 4 * g2 + r}")
    ACC = 32
    FB = 96
    ST = 160
    for i in range(64):
        a(f"v_mov_b32 v{ACC + i}, 0")
    a("s_lshl_b32 s38, s30, 7")
    a("s_lshl_b32 s39, s33, 6")
    a("s_add_u32 s38, s38, s39")
    a("s_lshl_b32 s38, s38, 3")
    a(f"s_add_u32 s38, s38, {WS_STATS}")
    a("v_lshlrev_b32 v23, 6, v6")
    a("v_mov_b32 v24, 0")
    a("s_lshl_b32 s39, s29, 9")
    a("s_lshl_b32 s61, s31, 7")
    a("s_add_u32 s39, s39, s61")
    a("s_lshl_b32 s61, s34, 6")
    a("s_add_u32 s39, s39, s61")
    a("s_lshl_b32 s39, s39, 3")
    a(f"s_add_u32 s61, s39, {WS_CS}")
    a("v_lshlrev_b32 v21, 3, v7")
    a("s_memrealtime s[66:67]")
    a("s_waitcnt lgkmcnt(0)")
    stamp(a, 1)
    srd(a, 20, 46, 47, 14 << 20)
    srd(a, 24, 44, 45, 256)
    a("s_or_b32 s62, s2, s32")
    a("s_cmp_lg_u32 s62, 0")
    a(f"s_cbranch_scc1 {name}_nopub")
    a("s_or_b32 s62, s66, 1")
    a("v_mov_b32 v25, s62")
    a("buffer_store_dword v25, v24, s[24:27], 0 offen sc0 sc1")
    a(f"s_mov_b32 s62, {13 << 20}")
    a("buffer_store_dword v25, v24, s[20:23], s62 offen sc0 sc1")
    a.label(f"{name}_nopub")
    NU = NST * 2

    def read_list(u):
        s, ks = u // 2, u % 2
        slot = s % NSTG
        g2, so = slot // 2, (slot % 2) * SLOT
        f = FB + 32 * (u % 2)
        L = []
        for i in range(4):
            off = so + (i >> 1) * 4096 + (i & 1) * 512
            L.append(f"ds_read_b128 v[{f + 4 * i}:{f + 3 + 4 * i}], v{8 + 4 * g2 + ks} offset:{off}")
            L.append(f"ds_read_b128 v[{f + 16 + 4 * i}:{f + 19 + 4 * i}], v{10 + 4 * g2 + ks} offset:{off}")
        return L

    def stats_loads():
        for blk in range(2):
            for q4 in range(4):
                r = ST + 16 * blk + 4 * q4
                a(f"buffer_load_dwordx4 v[{r}:{r + 3}], v23, s[20:23], s38 offen offset:{256 * blk + 16 * q4} sc1")
        for T in range(4):
            a(f"buffer_load_dwordx2 v[{192 + 2 * T}:{193 + 2 * T}], v21, s[20:23], s61 offen offset:{(T >> 1) * 256 + (T & 1) * 32} sc1")
        a("buffer_load_dword v25, v24, s[24:27], 0 offen sc1")

    a("s_barrier")
    stamp(a, 2)
    for r in read_list(0):
        a(r)
    for u in range(NU):
        a("s_waitcnt lgkmcnt(0)")
        f = FB + 32 * (u % 2)
        nxt = read_list(u + 1) if u + 1 < NU else []
        n = 0
        for xi in range(4):
            for T in range(4):
                acc = ACC + (xi * 4 + T) * 4
                a(f"v_mfma_f32_16x16x32_bf16 v[{acc}:{acc + 3}], v[{f + 4 * xi}:{f + 3 + 4 * xi}], v[{f + 16 + 4 * T}:{f + 19 + 4 * T}], v[{acc}:{acc + 3}]")
                n += 1
                if n == 1 and nxt and (u + 1) % 2 == 0:
                    a("s_barrier")
                if nxt:
                    a(nxt.pop(0))
                if u == U1 and n == 10:
                    stats_loads()
    stamp(a, 3)
    a.label(f"{name}_chk")
    a("s_waitcnt vmcnt(0)")
    a("v_cmp_eq_u32 vcc, 0, v25")
    a("s_mov_b64 s[62:63], vcc")
    for r in range(16):
        a(f"v_cmp_ne_u32 vcc, v25, v{ST + 2 * r + 1}")
        a("s_or_b64 s[62:63], s[62:63], vcc")
    for T in range(4):
        a(f"v_cmp_ne_u32 vcc, v25, v{193 + 2 * T}")
        a("s_or_b64 s[62:63], s[62:63], vcc")
    a(f"s_cbranch_scc0 {name}_have")
    a("s_sleep 4")
    stats_loads()
    a(f"s_branch {name}_chk")
    a.label(f"{name}_have")
    stamp(a, 4)
    for r in range(16):
        a(f"v_lshlrev_b32 v{ST + 2 * r + 1}, 16, v{ST + 2 * r}")
        a(f"v_rcp_f32 v{ST + 2 * r + 1}, v{ST + 2 * r + 1}")
        a(f"v_and_b32 v{ST + 2 * r}, s53, v{ST + 2 * r}")
    a("s_lshl_b32 s35, s29, 5")
    a("s_lshl_b32 s36, s31, 3")
    a("s_add_u32 s35, s35, s36")
    a("s_lshl_b32 s36, s34, 2")
    a("s_add_u32 s35, s35, s36")
    a("s_lshl_b32 s35, s35, 6")
    a("s_lshl_b32 s36, s30, 2")
    a("s_add_u32 s35, s35, s36")
    a("s_lshl_b32 s36, s33, 1")
    a("s_add_u32 s35, s35, s36")
    a("s_lshl_b32 s35, s35, 10")
    for T in range(4):
        a(f"s_add_u32 s{40 + T}, s35, {T * 65536}")
    a("v_lshlrev_b32 v22, 4, v2")
    a("s_waitcnt vmcnt(0) lgkmcnt(0)")
    for blk in range(2):
        for T in range(4):
            o = 132 + 4 * ((blk * 4 + T) & 3)
            for hb in range(2):
                acc = ACC + ((blk * 2 + hb) * 4 + T) * 4
                for j in range(4):
                    sr = ST + 16 * blk + 2 * (4 * hb + j)
                    a(f"v_fma_f32 v{acc + j}, -v{sr}, v{192 + 2 * T}, v{acc + j}")
                    a(f"v_mul_f32 v{acc + j}, v{acc + j}, v{sr + 1}")
                a(f"v_cvt_pk_bf16_f32 v{o + 2 * hb}, v{acc}, v{acc + 1}")
                a(f"v_cvt_pk_bf16_f32 v{o + 2 * hb + 1}, v{acc + 2}, v{acc + 3}")
            a(f"buffer_store_dwordx4 v[{o}:{o + 3}], v22, s[20:23], s{40 + T} offen offset:{blk * 1024}" + (" sc0 sc1" if wt else ""))
    stamp(a, 5)
    a(f"s_branch {name}_fin")
    a.label(f"{name}_aux")
    a("v_lshlrev_b32 v6, 7, v2")
    a("v_lshrrev_b32 v3, 4, v2")
    a("v_and_b32 v4, 15, v2")
    a("v_lshlrev_b32 v7, 12, v3")
    a("v_lshl_add_u32 v7, v4, 7, v7")
    a("v_lshlrev_b32 v5, 10, v3")
    a("v_lshl_add_u32 v5, v4, 4, v5")
    a("s_lshl_b32 s35, s28, 3")
    a("s_add_u32 s56, s35, s3")
    a("s_add_u32 s35, s35, s32")
    a("s_lshl_b32 s48, s26, 10")
    a("s_lshl_b32 s49, s35, 3")
    a("s_add_u32 s48, s48, s49")
    a("s_lshl_b32 s48, s48, 12")
    a("s_lshl_b32 s49, s27, 11")
    a("s_add_u32 s48, s48, s49")
    a("s_add_u32 s49, s48, 16384")
    a("s_waitcnt lgkmcnt(0)")
    stamp(a, 1)
    srd(a, 12, 4, 5, S * D * 2)
    srd(a, 20, 46, 47, 14 << 20)
    srd(a, 28, 44, 45, 256)
    a("s_cmp_ge_u32 s32, 6")
    a(f"s_cbranch_scc1 {name}_touch")
    a("s_cmp_ge_u32 s32, 4")
    a(f"s_cbranch_scc1 {name}_csw")
    a("s_lshl_b32 s33, s56, 4")
    a("s_lshl_b32 s34, s32, 2")
    a("s_add_u32 s33, s33, s34")
    a("s_lshl_b32 s34, s33, 10")
    for jj in range(4):
        a(f"buffer_load_dwordx4 v[{16 + 4 * jj}:{19 + 4 * jj}], v5, s[12:15], s34 offen offset:{256 * jj}")
    a("v_mov_b32 v9, 0")
    a.label(f"{name}_nl1")
    a("buffer_load_dword v15, v9, s[28:31], 0 offen sc1")
    a("s_waitcnt vmcnt(0)")
    a("v_readfirstlane_b32 s57, v15")
    a("s_cmp_lg_u32 s57, 0")
    a(f"s_cbranch_scc1 {name}_nd1")
    a("s_sleep 1")
    a(f"s_branch {name}_nl1")
    a.label(f"{name}_nd1")
    stamp(a, 2)
    X = 32
    for r in range(16):
        a(f"v_lshlrev_b32 v{X + 2 * r}, 16, v{16 + r}")
        a(f"v_and_b32 v{X + 2 * r + 1}, s53, v{16 + r}")
    a(f"v_add_f32 v8, v{X}, v{X + 1}")
    a(f"v_add_f32 v9, v{X + 2}, v{X + 3}")
    for r in range(4, 32, 2):
        a(f"v_add_f32 v8, v8, v{X + r}")
        a(f"v_add_f32 v9, v9, v{X + r + 1}")
    a("v_add_f32 v8, v8, v9")

    def red16(v):
        for pat in ("quad_perm:[1,0,3,2]", "quad_perm:[2,3,0,1]", "row_half_mirror", "row_mirror"):
            a("s_nop 1")
            a(f"v_add_f32_dpp v{v}, v{v}, v{v} {pat} {DPP}")

    red16(8)
    a("v_mul_f32 v8, 0x3b000000, v8")
    a("v_mov_b32 v10, 0")
    a("v_mov_b32 v11, 0")
    for r in range(0, 32, 2):
        a(f"v_sub_f32 v{X + r}, v{X + r}, v8")
        a(f"v_sub_f32 v{X + r + 1}, v{X + r + 1}, v8")
        a(f"v_fmac_f32 v10, v{X + r}, v{X + r}")
        a(f"v_fmac_f32 v11, v{X + r + 1}, v{X + r + 1}")
    a("v_add_f32 v10, v10, v11")
    red16(10)
    a("v_mul_f32 v10, 0x3b000000, v10")
    a("v_cvt_pk_bf16_f32 v12, v8, v8")
    a("v_lshlrev_b32 v12, 16, v12")
    a("v_cvt_pk_bf16_f32 v10, v10, v10")
    a("v_lshlrev_b32 v10, 16, v10")
    a("v_add_f32 v10, 0x3727c5ac, v10")
    a("v_cvt_pk_bf16_f32 v10, v10, v10")
    a("v_lshlrev_b32 v10, 16, v10")
    a("v_sqrt_f32 v10, v10")
    a("s_nop 0")
    a("v_cvt_pk_bf16_f32 v10, v10, v10")
    a("v_and_b32 v10, 0xffff, v10")
    a("v_or_b32 v12, v12, v10")
    a("v_mov_b32 v13, v15")
    a("v_lshlrev_b32 v14, 3, v3")
    a("s_lshl_b32 s36, s33, 3")
    a(f"s_add_u32 s36, s36, {WS_STATS}")
    a("v_cmp_eq_u32 vcc, 0, v4")
    a("s_and_saveexec_b64 s[54:55], vcc")
    a("buffer_store_dwordx2 v[12:13], v14, s[20:23], s36 offen sc0 sc1")
    a("s_mov_b64 exec, s[54:55]")
    a(f"s_branch {name}_auxj")
    a.label(f"{name}_csw")
    a("s_lshl_b32 s33, s56, 3")
    a("s_sub_u32 s34, s32, 4")
    a("s_lshl_b32 s34, s34, 2")
    a("s_add_u32 s33, s33, s34")
    a("s_cmp_ge_u32 s33, 512")
    a("s_cselect_b32 s58, s10, s8")
    a("s_cselect_b32 s59, s11, s9")
    srd(a, 16, 58, 59, D * D * 2)
    a("s_and_b32 s34, s33, 511")
    a("s_lshl_b32 s34, s34, 10")
    for jj in range(4):
        a(f"buffer_load_dwordx4 v[{16 + 4 * jj}:{19 + 4 * jj}], v5, s[16:19], s34 offen offset:{256 * jj}")
    a("v_mov_b32 v8, 0")
    a("v_mov_b32 v9, 0")
    a.label(f"{name}_nl2")
    a("buffer_load_dword v15, v9, s[28:31], 0 offen sc1")
    a("s_waitcnt vmcnt(0)")
    a("v_readfirstlane_b32 s57, v15")
    a("s_cmp_lg_u32 s57, 0")
    a(f"s_cbranch_scc1 {name}_nd2")
    a("s_sleep 1")
    a(f"s_branch {name}_nl2")
    a.label(f"{name}_nd2")
    for r in range(16):
        a(f"v_lshlrev_b32 v{32 + 2 * (r & 3)}, 16, v{16 + r}")
        a(f"v_and_b32 v{33 + 2 * (r & 3)}, s53, v{16 + r}")
        a(f"v_add_f32 v8, v8, v{32 + 2 * (r & 3)}")
        a(f"v_add_f32 v9, v9, v{33 + 2 * (r & 3)}")
    a("v_add_f32 v8, v8, v9")
    red16(8)
    a("v_lshlrev_b32 v14, 3, v3")
    a("v_mov_b32 v9, v15")
    a("s_lshl_b32 s36, s33, 3")
    a(f"s_add_u32 s36, s36, {WS_CS}")
    a("v_cmp_eq_u32 vcc, 0, v4")
    a("s_and_saveexec_b64 s[54:55], vcc")
    a("buffer_store_dwordx2 v[8:9], v14, s[20:23], s36 offen sc0 sc1")
    a("s_mov_b64 exec, s[54:55]")
    a(f"s_branch {name}_auxj")
    a.label(f"{name}_touch")
    a("s_cmp_eq_u32 s29, 1")
    a("s_cselect_b32 s58, s10, s8")
    a("s_cselect_b32 s59, s11, s9")
    srd(a, 16, 58, 59, D * D * 2)
    a("s_lshl_b32 s36, s27, 20")
    a("s_lshl_b32 s37, s26, 19")
    a("s_add_u32 s36, s36, s37")
    a("s_lshl_b32 s37, s28, 1")
    a("s_add_u32 s37, s37, s32")
    a("s_sub_u32 s37, s37, 6")
    a("s_lshl_b32 s37, s37, 14")
    a("s_add_u32 s36, s36, s37")
    a("buffer_load_dword v10, v6, s[12:15], s36 offen")
    a("buffer_load_dword v11, v6, s[16:19], s37 offen")
    a("s_add_u32 s36, s36, 8192")
    a("s_add_u32 s37, s37, 8192")
    a("buffer_load_dword v12, v6, s[12:15], s36 offen")
    a("buffer_load_dword v13, v6, s[16:19], s37 offen")
    a.label(f"{name}_auxj")
    a("s_cmp_eq_u32 s29, 1")
    a("s_cselect_b32 s40, s42, s40")
    a("s_cselect_b32 s41, s43, s41")
    srd(a, 24, 40, 41, S * S * 2)
    a("s_barrier")
    stamp(a, 3)
    if pf:
        if pfq < 4:
            a(f"v_cmp_gt_u32 vcc, {4 * pfq}, v4")
            a("s_and_saveexec_b64 s[54:55], vcc")
        a("buffer_load_dword v12, v7, s[24:27], s48 offen")
        a("buffer_load_dword v13, v7, s[24:27], s49 offen")
        if pfq < 4:
            a("s_mov_b64 exec, s[54:55]")
    a.label(f"{name}_fin")
    stamp_flush(a, 1, 6, 46, 47)
    a.label(f"{name}_done")
    a("s_endpgm")
    return kernel_desc(name, 200, 72, 200)


def gen_k3(a, name):
    kernel_begin(a, name)
    a("s_cmp_ge_u32 s2, 256")
    a(f"s_cbranch_scc1 {name}_done")
    stamp(a, 0)
    a("s_load_dwordx2 s[4:5], s[0:1], 0")
    a("s_load_dwordx2 s[6:7], s[0:1], 48")
    a("s_load_dwordx2 s[8:9], s[0:1], 80")
    a("s_load_dwordx2 s[10:11], s[0:1], 96")
    a("v_lshrrev_b32 v1, 6, v0")
    a("v_and_b32 v2, 63, v0")
    a("s_nop 0")
    a("v_readfirstlane_b32 s32, v1")
    a("v_lshlrev_b32 v3, 4, v2")
    a("s_waitcnt lgkmcnt(0)")
    stamp(a, 1)
    srd(a, 12, 4, 5, S * D * 2)
    srd(a, 16, 6, 7, D * 2)
    srd(a, 20, 8, 9, S * D * 2)
    srd(a, 24, 10, 11, 14 << 20)
    a("s_lshl_b32 s33, s2, 3")
    a("s_lshl_b32 s34, s32, 1")
    a("s_add_u32 s33, s33, s34")
    a("s_lshl_b32 s34, s33, 10")
    a(f"s_add_u32 s35, s34, {WS_P}")
    a(f"s_add_u32 s36, s34, {WS_P + (4 << 20)}")
    a(f"s_add_u32 s43, s34, {WS_P + (2 << 20)}")
    a(f"s_add_u32 s44, s34, {WS_P + (6 << 20)}")
    for R in range(2):
        B = 16 + 64 * R
        a(f"buffer_load_dwordx4 v[{B}:{B + 3}], v3, s[24:27], s35 offen offset:{1024 * R}")
        a(f"buffer_load_dwordx4 v[{B + 12}:{B + 15}], v3, s[24:27], s43 offen offset:{1024 * R}")
        a(f"buffer_load_dwordx4 v[{B + 4}:{B + 7}], v3, s[24:27], s36 offen offset:{1024 * R}")
        a(f"buffer_load_dwordx4 v[{B + 56}:{B + 59}], v3, s[24:27], s44 offen offset:{1024 * R}")
        a(f"buffer_load_dwordx4 v[{B + 8}:{B + 11}], v3, s[12:15], s34 offen offset:{1024 * R}")
    a("buffer_load_dwordx4 v[8:11], v3, s[16:19], 0 offen")
    a("s_mov_b32 s53, 0xffff0000")
    a("s_waitcnt vmcnt(1)")
    stamp(a, 2)

    def unpack(dst, src):
        a(f"v_lshlrev_b32 v{dst}, 16, v{src}")
        a(f"v_and_b32 v{dst + 1}, s53, v{src}")

    for R in range(2):
        B = 16 + 64 * R
        H, T = B + 16, B + 24
        for i in range(4):
            unpack(T, B + i)
            unpack(T + 2, B + 12 + i)
            unpack(T + 4, B + 4 + i)
            unpack(T + 6, B + 56 + i)
            a(f"v_add_f32 v{T}, v{T}, v{T + 2}")
            a(f"v_add_f32 v{T + 1}, v{T + 1}, v{T + 3}")
            a(f"v_add_f32 v{T + 4}, v{T + 4}, v{T + 6}")
            a(f"v_add_f32 v{T + 5}, v{T + 5}, v{T + 7}")
            a(f"v_cvt_pk_bf16_f32 v{T + 8}, v{T}, v{T + 1}")
            a(f"v_cvt_pk_bf16_f32 v{T + 9}, v{T + 4}, v{T + 5}")
            unpack(T, T + 8)
            unpack(T + 2, T + 9)
            a(f"v_sub_f32 v{T}, v{T}, v{T + 2}")
            a(f"v_sub_f32 v{T + 1}, v{T + 1}, v{T + 3}")
            a(f"v_cvt_pk_bf16_f32 v{T + 4}, v{T}, v{T + 1}")
            unpack(T, T + 4)
            unpack(T + 2, B + 8 + i)
            a(f"v_add_f32 v{T}, v{T + 2}, v{T}")
            a(f"v_add_f32 v{T + 1}, v{T + 3}, v{T + 1}")
            a(f"v_cvt_pk_bf16_f32 v{B + 40 + i}, v{T}, v{T + 1}")
            unpack(H + 2 * i, B + 40 + i)
        St = B + 48
        a(f"v_add_f32 v{St}, v{H}, v{H + 1}")
        for i in range(2, 8):
            a(f"v_add_f32 v{St}, v{St}, v{H + i}")
    for R in range(2):
        B = 16 + 64 * R
        wave_allreduce(a, "v_add_f32", B + 48, B + 49)
    for R in range(2):
        B = 16 + 64 * R
        H, T, St = B + 16, B + 24, B + 48
        a(f"v_mul_f32 v{St}, 0x3b000000, v{St}")
        a(f"v_cvt_pk_bf16_f32 v{St + 1}, v{St}, v{St}")
        a(f"v_lshlrev_b32 v{St + 1}, 16, v{St + 1}")
        for i in range(8):
            a(f"v_sub_f32 v{T + i}, v{H + i}, v{St}")
        a(f"v_mul_f32 v{St + 2}, v{T}, v{T}")
        for i in range(1, 8):
            a(f"v_fmac_f32 v{St + 2}, v{T + i}, v{T + i}")
    for R in range(2):
        B = 16 + 64 * R
        wave_allreduce(a, "v_add_f32", B + 50, B + 51)
    a("s_waitcnt vmcnt(0)")
    for R in range(2):
        B = 16 + 64 * R
        H, T, St = B + 16, B + 24, B + 48
        v = St + 2
        a(f"v_mul_f32 v{v}, 0x3b000000, v{v}")
        a(f"v_cvt_pk_bf16_f32 v{v}, v{v}, v{v}")
        a(f"v_lshlrev_b32 v{v}, 16, v{v}")
        a(f"v_add_f32 v{v}, 0x3727c5ac, v{v}")
        a(f"v_cvt_pk_bf16_f32 v{v}, v{v}, v{v}")
        a(f"v_lshlrev_b32 v{v}, 16, v{v}")
        a(f"v_sqrt_f32 v{v}, v{v}")
        a("s_nop 0")
        a(f"v_cvt_pk_bf16_f32 v{v}, v{v}, v{v}")
        a(f"v_lshlrev_b32 v{v}, 16, v{v}")
        a(f"v_rcp_f32 v{v}, v{v}")
        a("s_nop 0")
        a(f"v_mov_b32 v{St + 4}, 0")
        for i in range(4):
            a(f"v_sub_f32 v{T}, v{H + 2 * i}, v{St + 1}")
            a(f"v_sub_f32 v{T + 1}, v{H + 2 * i + 1}, v{St + 1}")
            a(f"v_cvt_pk_bf16_f32 v{T + 2}, v{T}, v{T + 1}")
            unpack(T, T + 2)
            a(f"v_mul_f32 v{T}, v{T}, v{v}")
            a(f"v_mul_f32 v{T + 1}, v{T + 1}, v{v}")
            a(f"v_cvt_pk_bf16_f32 v{B + 44 + i}, v{T}, v{T + 1}")
            unpack(T, B + 44 + i)
            a(f"v_add_f32 v{T}, v{H + 2 * i}, v{T}")
            a(f"v_add_f32 v{T + 1}, v{H + 2 * i + 1}, v{T + 1}")
            a(f"v_cvt_pk_bf16_f32 v{B + 4 + i}, v{T}, v{T + 1}")
            a(f"v_dot2_f32_bf16 v{St + 4}, v{B + 44 + i}, v{8 + i}, v{St + 4}")
        a(f"buffer_store_dwordx4 v[{B + 4}:{B + 7}], v3, s[20:23], s34 offen offset:{1024 * R}")
    a("s_nop 2")
    for R in range(2):
        B = 16 + 64 * R
        wave_allreduce(a, "v_add_f32", B + 52, B + 53)
    for R in range(2):
        B = 16 + 64 * R
        v = B + 52
        a(f"v_cvt_pk_bf16_f32 v{v}, v{v}, v{v}")
        a(f"v_lshlrev_b32 v{v}, 16, v{v}")
        a(f"v_ashrrev_i32 v{v + 1}, 31, v{v}")
        a(f"v_or_b32 v{v + 1}, 0x80000000, v{v + 1}")
        a(f"v_xor_b32 v{v}, v{v}, v{v + 1}")
        a(f"v_and_b32 v{v}, s53, v{v}")
        a(f"s_sub_u32 s37, {2047 - R}, s33")
        a(f"v_or_b32 v{v}, s37, v{v}")
    a("v_max_u32 v4, v68, v132")
    a("s_lshl_b32 s37, s32, 2")
    a("v_mov_b32 v5, s37")
    a("ds_write_b32 v5, v4")
    stamp(a, 3)
    a("s_waitcnt lgkmcnt(0)")
    a("s_barrier")
    a("v_mov_b32 v5, 0")
    a("ds_read_b128 v[12:15], v5")
    a("s_waitcnt lgkmcnt(0)")
    a("v_max_u32 v12, v12, v13")
    a("v_max_u32 v14, v14, v15")
    a("v_max_u32 v12, v12, v14")
    a("s_nop 0")
    a("v_readfirstlane_b32 s38, v12")
    a("v_readfirstlane_b32 s39, v68")
    a("v_readfirstlane_b32 s40, v132")
    a(f"s_lshl_b32 s41, s2, 11")
    a(f"s_add_u32 s41, s41, {WS_CROW}")
    a(f"s_lshl_b32 s42, s2, 2")
    a(f"s_add_u32 s42, s42, {WS_CAND}")
    a("v_mov_b32 v5, 0")
    for R in range(2):
        B = 16 + 64 * R
        a(f"s_cmp_lg_u32 s38, s{39 + R}")
        a(f"s_cbranch_scc1 {name}_nw{R}")
        a(f"buffer_store_dwordx4 v[{B + 40}:{B + 43}], v3, s[24:27], s41 offen")
        a(f"buffer_store_dwordx4 v[{B + 44}:{B + 47}], v3, s[24:27], s41 offen offset:1024")
        a(f"buffer_store_dword v12, v5, s[24:27], s42 offen")
        a.label(f"{name}_nw{R}")
    stamp_flush(a, 3, 4, 10, 11)
    a.label(f"{name}_done")
    a("s_endpgm")
    return kernel_desc(name, 144, 64, 144)


NSL = 56


def emit_winner(a, vkey, t, ldsaddr_tmp, s_out):
    wave_allreduce(a, "v_max_u32", vkey, t)
    a("s_lshl_b32 s37, s32, 2")
    a(f"v_mov_b32 v{ldsaddr_tmp}, s37")
    a(f"ds_write_b32 v{ldsaddr_tmp}, v{vkey}")
    a("s_waitcnt lgkmcnt(0)")
    a("s_barrier")
    a(f"v_mov_b32 v{ldsaddr_tmp}, 0")
    a(f"ds_read_b64 v[{t}:{t + 1}], v{ldsaddr_tmp}")
    a(f"ds_read_b64 v[{t + 2}:{t + 3}], v{ldsaddr_tmp} offset:8")
    a("s_waitcnt lgkmcnt(0)")
    a(f"v_max_u32 v{t}, v{t}, v{t + 1}")
    a(f"v_max_u32 v{t + 2}, v{t + 2}, v{t + 3}")
    a(f"v_max_u32 v{t}, v{t}, v{t + 2}")
    a("s_nop 0")
    a(f"v_readfirstlane_b32 s{s_out}, v{t}")


def gen_k4(a, name):
    kernel_begin(a, name)
    a(f"s_cmp_ge_u32 s2, {NSL}")
    a(f"s_cbranch_scc1 {name}_done")
    stamp(a, 0)
    a("s_load_dwordx4 s[4:7], s[0:1], 56")
    a("s_load_dwordx2 s[8:9], s[0:1], 72")
    a("s_load_dwordx2 s[10:11], s[0:1], 96")
    a("v_lshrrev_b32 v1, 6, v0")
    a("v_and_b32 v2, 63, v0")
    a("s_nop 0")
    a("v_readfirstlane_b32 s32, v1")
    a("v_lshrrev_b32 v3, 2, v0")
    a("v_and_b32 v4, 3, v0")
    a("v_lshlrev_b32 v5, 2, v0")
    a("s_mov_b32 s33, 28672")
    a("v_mul_lo_u32 v6, v3, s33")
    a("v_lshl_add_u32 v6, v4, 4, v6")
    a("v_lshlrev_b32 v7, 4, v2")
    a("s_waitcnt lgkmcnt(0)")
    stamp(a, 1)
    srd(a, 12, 4, 5, D * F * 2)
    srd(a, 16, 6, 7, D * F * 2)
    srd(a, 20, 8, 9, D * F * 2)
    srd(a, 24, 10, 11, 14 << 20)
    a(f"s_mov_b32 s34, {WS_CAND}")
    a("buffer_load_dword v8, v5, s[24:27], s34 offen")
    a("s_lshl_b32 s34, s2, 6")
    G, U, W = 32, 64, 96
    for j in range(8):
        a(f"s_add_u32 s35, s34, {3584 * j}")
        a(f"buffer_load_dwordx4 v[{G + 4 * j}:{G + 4 * j + 3}], v6, s[12:15], s35 offen")
        a(f"buffer_load_dwordx4 v[{U + 4 * j}:{U + 4 * j + 3}], v6, s[16:19], s35 offen")
    a("s_lshl_b32 s35, s2, 5")
    a("s_lshl_b32 s36, s32, 3")
    a("s_add_u32 s35, s35, s36")
    a("s_lshl_b32 s35, s35, 10")
    for j in range(8):
        a(f"s_add_u32 s36, s35, {1024 * j}")
        a(f"buffer_load_dwordx4 v[{W + 4 * j}:{W + 4 * j + 3}], v7, s[20:23], s36 offen")
    a("s_waitcnt vmcnt(24)")
    stamp(a, 2)
    emit_winner(a, 8, 12, 9, 38)
    stamp(a, 3)
    a("s_and_b32 s39, s38, 0xffff")
    a("s_sub_u32 s39, 2047, s39")
    a("s_lshr_b32 s39, s39, 3")
    a("s_lshl_b32 s39, s39, 11")
    a(f"s_add_u32 s39, s39, {WS_CROW + 1024}")
    a("v_lshlrev_b32 v9, 4, v3")
    a("v_add_u32 v9, s39, v9")
    a("buffer_load_dwordx4 v[12:15], v9, s[24:27], 0 offen")
    a("s_mov_b32 s53, 0xffff0000")
    A = 128
    for i in range(16):
        a(f"v_mov_b32 v{A + i}, 0")
    a("s_waitcnt vmcnt(0)")
    stamp(a, 4)
    X = 16
    for i in range(4):
        a(f"v_lshlrev_b32 v{X + 2 * i}, 16, v{12 + i}")
        a(f"v_and_b32 v{X + 2 * i + 1}, s53, v{12 + i}")
    for j in range(8):
        for (M, ao) in ((G, 0), (U, 8)):
            for i in range(4):
                t = 24 + 2 * (i & 1)
                a(f"v_lshlrev_b32 v{t}, 16, v{M + 4 * j + i}")
                a(f"v_and_b32 v{t + 1}, s53, v{M + 4 * j + i}")
                a(f"v_fmac_f32 v{A + ao + 2 * i}, v{X + j}, v{t}")
                a(f"v_fmac_f32 v{A + ao + 2 * i + 1}, v{X + j}, v{t + 1}")
    a("s_nop 1")
    for i in range(8):
        a(f"v_permlane32_swap_b32 v{A + i}, v{A + i + 8}")
    a("s_nop 1")
    for i in range(8):
        a(f"v_add_f32 v{A + i}, v{A + i}, v{A + i + 8}")
    a("s_nop 1")
    for i in range(4):
        a(f"v_permlane16_swap_b32 v{A + i}, v{A + i + 4}")
    a("s_nop 1")
    for i in range(4):
        a(f"v_add_f32 v{A + i}, v{A + i}, v{A + i + 4}")
    a("s_nop 1")
    for i in range(4):
        a(f"v_add_f32_dpp v{A + i}, v{A + i}, v{A + i} row_ror:4 {DPP}")
    a("s_nop 1")
    for i in range(4):
        a(f"v_add_f32_dpp v{A + i}, v{A + i}, v{A + i} row_ror:8 {DPP}")
    a("v_and_b32 v9, 3, v2")
    a("v_lshlrev_b32 v9, 5, v9")
    a("v_bfe_u32 v10, v2, 4, 1")
    a("v_lshl_add_u32 v9, v10, 4, v9")
    a("v_bfe_u32 v10, v2, 5, 1")
    a("v_lshl_add_u32 v9, v10, 7, v9")
    a("s_lshl_b32 s37, s32, 8")
    a("v_add_u32 v9, s37, v9")
    a(f"ds_write_b128 v9, v[{A}:{A + 3}] offset:64")
    a("s_waitcnt lgkmcnt(0)")
    a("s_barrier")
    stamp(a, 5)
    a("v_and_b32 v9, 31, v2")
    a("v_lshlrev_b32 v9, 2, v9")
    for w in range(4):
        a(f"ds_read_b32 v{16 + w}, v9 offset:{64 + 256 * w}")
        a(f"ds_read_b32 v{20 + w}, v9 offset:{64 + 256 * w + 128}")
    a("s_waitcnt lgkmcnt(0)")
    a("v_add_f32 v16, v16, v17")
    a("v_add_f32 v18, v18, v19")
    a("v_add_f32 v20, v20, v21")
    a("v_add_f32 v22, v22, v23")
    a("v_add_f32 v16, v16, v18")
    a("v_add_f32 v20, v20, v22")
    a("v_cvt_pk_bf16_f32 v16, v16, v20")
    a("v_and_b32 v20, s53, v16")
    a("v_lshlrev_b32 v16, 16, v16")
    a("v_mul_f32 v17, 0xbfb8aa3b, v16")
    a("v_exp_f32 v17, v17")
    a("s_nop 0")
    a("v_add_f32 v17, 1.0, v17")
    a("v_rcp_f32 v17, v17")
    a("s_nop 0")
    a("v_mul_f32 v16, v16, v17")
    a("v_cvt_pk_bf16_f32 v16, v16, v16")
    a("v_lshlrev_b32 v16, 16, v16")
    a("v_mul_f32 v16, v16, v20")
    a("v_cvt_pk_bf16_f32 v16, v16, v16")
    a("v_lshlrev_b32 v16, 16, v16")
    a("s_lshl_b32 s37, s32, 3")
    for j in range(8):
        a(f"s_add_u32 s36, s37, {j}")
        a("s_nop 0")
        a(f"v_readlane_b32 s{40 + j}, v16, s36")
    for i in range(8):
        a(f"v_mov_b32 v{A + i}, 0")
    a("s_nop 1")
    for j in range(8):
        for i in range(4):
            t = 24 + 2 * (i & 1)
            a(f"v_lshlrev_b32 v{t}, 16, v{W + 4 * j + i}")
            a(f"v_and_b32 v{t + 1}, s53, v{W + 4 * j + i}")
            a(f"v_fmac_f32 v{A + 2 * i}, s{40 + j}, v{t}")
            a(f"v_fmac_f32 v{A + 2 * i + 1}, s{40 + j}, v{t + 1}")
    a("v_lshlrev_b32 v9, 5, v2")
    a("s_lshl_b32 s37, s32, 11")
    a("v_add_u32 v9, s37, v9")
    a(f"ds_write_b128 v9, v[{A}:{A + 3}] offset:2048")
    a(f"ds_write_b128 v9, v[{A + 4}:{A + 7}] offset:2064")
    a("s_waitcnt lgkmcnt(0)")
    a("s_barrier")
    a("v_lshlrev_b32 v9, 3, v0")
    for w in range(4):
        a(f"ds_read_b64 v[{16 + 2 * w}:{17 + 2 * w}], v9 offset:{2048 + 2048 * w}")
    a("s_waitcnt lgkmcnt(0)")
    a("v_add_f32 v16, v16, v18")
    a("v_add_f32 v17, v17, v19")
    a("v_add_f32 v20, v20, v22")
    a("v_add_f32 v21, v21, v23")
    a("v_add_f32 v16, v16, v20")
    a("v_add_f32 v17, v17, v21")
    a("s_lshl_b32 s37, s2, 11")
    a(f"s_add_u32 s37, s37, {WS_SLAB}")
    a("buffer_store_dwordx2 v[16:17], v9, s[24:27], s37 offen")
    stamp_flush(a, 4, 6, 10, 11)
    a.label(f"{name}_done")
    a("s_endpgm")
    return kernel_desc(name, 144, 64, 144)


def gen_k3b(a, name, wpf=0):
    kernel_begin(a, name)
    a("s_cmp_ge_u32 s2, 256")
    a(f"s_cbranch_scc1 {name}_done")
    stamp(a, 0)
    a("s_load_dwordx2 s[4:5], s[0:1], 0")
    a("s_load_dwordx2 s[6:7], s[0:1], 48")
    a("s_load_dwordx2 s[8:9], s[0:1], 80")
    a("s_load_dwordx2 s[10:11], s[0:1], 96")
    if wpf:
        a("s_load_dwordx4 s[56:59], s[0:1], 56")
        a("s_load_dwordx2 s[60:61], s[0:1], 72")
    a("v_lshrrev_b32 v1, 6, v0")
    a("v_and_b32 v2, 63, v0")
    a("s_nop 0")
    a("v_readfirstlane_b32 s32, v1")
    a("v_lshlrev_b32 v3, 4, v2")
    a("s_lshl_b32 s33, s2, 3")
    a("s_add_u32 s33, s33, s32")
    a("s_lshl_b32 s34, s33, 10")
    a(f"s_add_u32 s35, s34, {WS_P}")
    a(f"s_add_u32 s36, s34, {WS_P + (4 << 20)}")
    a(f"s_add_u32 s43, s34, {WS_P + (2 << 20)}")
    a(f"s_add_u32 s44, s34, {WS_P + (6 << 20)}")
    a("s_mov_b32 s53, 0xffff0000")
    a("s_waitcnt lgkmcnt(0)")
    stamp(a, 1)
    srd(a, 24, 10, 11, 14 << 20)
    B = 16
    a(f"buffer_load_dwordx4 v[{B}:{B + 3}], v3, s[24:27], s35 offen")
    a(f"buffer_load_dwordx4 v[{B + 12}:{B + 15}], v3, s[24:27], s43 offen")
    a(f"buffer_load_dwordx4 v[{B + 4}:{B + 7}], v3, s[24:27], s36 offen")
    a(f"buffer_load_dwordx4 v[{B + 56}:{B + 59}], v3, s[24:27], s44 offen")
    srd(a, 12, 4, 5, S * D * 2)
    a(f"buffer_load_dwordx4 v[{B + 8}:{B + 11}], v3, s[12:15], s34 offen")
    srd(a, 16, 6, 7, D * 2)
    a("buffer_load_dwordx4 v[8:11], v3, s[16:19], 0 offen")
    if wpf:
        a("s_sub_u32 s45, s32, 5")
        a("s_min_u32 s45, s45, 3")
        emit_wtouch(a, "s45", 120, 121)
    srd(a, 20, 8, 9, S * D * 2)
    a(f"s_waitcnt vmcnt({2 if wpf else 1})")
    stamp(a, 2)

    def unpack(dst, src):
        a(f"v_lshlrev_b32 v{dst}, 16, v{src}")
        a(f"v_and_b32 v{dst + 1}, s53, v{src}")

    H = B + 16
    TT = [80 + 10 * i for i in range(4)]
    steps = []
    for i in range(4):
        T = TT[i]
        steps.append([
            f"v_lshlrev_b32 v{T}, 16, v{B + i}", f"v_and_b32 v{T + 1}, s53, v{B + i}",
            f"v_lshlrev_b32 v{T + 2}, 16, v{B + 12 + i}", f"v_and_b32 v{T + 3}, s53, v{B + 12 + i}",
            f"v_lshlrev_b32 v{T + 4}, 16, v{B + 4 + i}", f"v_and_b32 v{T + 5}, s53, v{B + 4 + i}",
            f"v_lshlrev_b32 v{T + 6}, 16, v{B + 56 + i}", f"v_and_b32 v{T + 7}, s53, v{B + 56 + i}",
            f"v_add_f32 v{T}, v{T}, v{T + 2}", f"v_add_f32 v{T + 1}, v{T + 1}, v{T + 3}",
            f"v_add_f32 v{T + 4}, v{T + 4}, v{T + 6}", f"v_add_f32 v{T + 5}, v{T + 5}, v{T + 7}",
            f"v_cvt_pk_bf16_f32 v{T + 8}, v{T}, v{T + 1}", f"v_cvt_pk_bf16_f32 v{T + 9}, v{T + 4}, v{T + 5}",
            f"v_lshlrev_b32 v{T}, 16, v{T + 8}", f"v_and_b32 v{T + 1}, s53, v{T + 8}",
            f"v_lshlrev_b32 v{T + 2}, 16, v{T + 9}", f"v_and_b32 v{T + 3}, s53, v{T + 9}",
            f"v_sub_f32 v{T}, v{T}, v{T + 2}", f"v_sub_f32 v{T + 1}, v{T + 1}, v{T + 3}",
            f"v_cvt_pk_bf16_f32 v{T + 4}, v{T}, v{T + 1}",
            f"v_lshlrev_b32 v{T}, 16, v{T + 4}", f"v_and_b32 v{T + 1}, s53, v{T + 4}",
            f"v_lshlrev_b32 v{T + 2}, 16, v{B + 8 + i}", f"v_and_b32 v{T + 3}, s53, v{B + 8 + i}",
            f"v_add_f32 v{T}, v{T + 2}, v{T}", f"v_add_f32 v{T + 1}, v{T + 3}, v{T + 1}",
            f"v_cvt_pk_bf16_f32 v{B + 40 + i}, v{T}, v{T + 1}",
            f"v_lshlrev_b32 v{H + 2 * i}, 16, v{B + 40 + i}", f"v_and_b32 v{H + 2 * i + 1}, s53, v{B + 40 + i}",
        ])
    for k in range(len(steps[0])):
        for i in range(4):
            a(steps[i][k])
    St = B + 48
    a(f"v_add_f32 v{St}, v{H}, v{H + 1}")
    a(f"v_add_f32 v{St + 1}, v{H + 2}, v{H + 3}")
    a(f"v_add_f32 v{St + 2}, v{H + 4}, v{H + 5}")
    a(f"v_add_f32 v{St + 3}, v{H + 6}, v{H + 7}")
    a(f"v_add_f32 v{St}, v{St}, v{St + 1}")
    a(f"v_add_f32 v{St + 2}, v{St + 2}, v{St + 3}")
    a(f"v_add_f32 v{St}, v{St}, v{St + 2}")
    wave_allreduce(a, "v_add_f32", St, St + 1)
    T = 80
    a(f"v_mul_f32 v{St}, 0x3b000000, v{St}")
    for i in range(8):
        a(f"v_sub_f32 v{T + i}, v{H + i}, v{St}")
    a(f"v_cvt_pk_bf16_f32 v{St + 1}, v{St}, v{St}")
    a(f"v_mul_f32 v{St + 2}, v{T}, v{T}")
    a(f"v_mul_f32 v{St + 3}, v{T + 1}, v{T + 1}")
    a(f"v_lshlrev_b32 v{St + 1}, 16, v{St + 1}")
    for i in range(2, 8, 2):
        a(f"v_fmac_f32 v{St + 2}, v{T + i}, v{T + i}")
        a(f"v_fmac_f32 v{St + 3}, v{T + i + 1}, v{T + i + 1}")
    a(f"v_add_f32 v{St + 2}, v{St + 2}, v{St + 3}")
    for i in range(8):
        a(f"v_sub_f32 v{T + 10 + i}, v{H + i}, v{St + 1}")
    for i in range(4):
        a(f"v_cvt_pk_bf16_f32 v{T + 20 + i}, v{T + 10 + 2 * i}, v{T + 11 + 2 * i}")
    for i in range(4):
        unpack(T + 10 + 2 * i, T + 20 + i)
    wave_allreduce(a, "v_add_f32", St + 2, St + 3)
    v = St + 2
    a(f"v_mul_f32 v{v}, 0x3b000000, v{v}")
    a(f"v_cvt_pk_bf16_f32 v{v}, v{v}, v{v}")
    a(f"v_lshlrev_b32 v{v}, 16, v{v}")
    a(f"v_add_f32 v{v}, 0x3727c5ac, v{v}")
    a(f"v_cvt_pk_bf16_f32 v{v}, v{v}, v{v}")
    a(f"v_lshlrev_b32 v{v}, 16, v{v}")
    a(f"v_sqrt_f32 v{v}, v{v}")
    a("s_nop 0")
    a(f"v_cvt_pk_bf16_f32 v{v}, v{v}, v{v}")
    a(f"v_lshlrev_b32 v{v}, 16, v{v}")
    a(f"v_rcp_f32 v{v}, v{v}")
    a(f"s_waitcnt vmcnt({1 if wpf else 0})")
    for i in range(8):
        a(f"v_mul_f32 v{T + 10 + i}, v{T + 10 + i}, v{v}")
    for i in range(4):
        a(f"v_cvt_pk_bf16_f32 v{B + 44 + i}, v{T + 10 + 2 * i}, v{T + 11 + 2 * i}")
    for i in range(4):
        unpack(T + 10 + 2 * i, B + 44 + i)
        unpack(T + 2 * i, 8 + i)
    a(f"v_mul_f32 v{St + 4}, v{T + 10}, v{T}")
    a(f"v_mul_f32 v{St + 5}, v{T + 11}, v{T + 1}")
    for i in range(2, 8, 2):
        a(f"v_fmac_f32 v{St + 4}, v{T + 10 + i}, v{T + i}")
        a(f"v_fmac_f32 v{St + 5}, v{T + 11 + i}, v{T + i + 1}")
    a(f"v_add_f32 v{St + 4}, v{St + 4}, v{St + 5}")
    for i in range(8):
        a(f"v_add_f32 v{T + 20 + i}, v{H + i}, v{T + 10 + i}")
    for i in range(4):
        a(f"v_cvt_pk_bf16_f32 v{B + 4 + i}, v{T + 20 + 2 * i}, v{T + 21 + 2 * i}")
    a(f"buffer_store_dwordx4 v[{B + 4}:{B + 7}], v3, s[20:23], s34 offen")
    wave_allreduce(a, "v_add_f32", St + 4, St + 5)
    v = St + 4
    a(f"v_cvt_pk_bf16_f32 v{v}, v{v}, v{v}")
    a(f"v_lshlrev_b32 v{v}, 16, v{v}")
    a(f"v_ashrrev_i32 v{v + 1}, 31, v{v}")
    a(f"v_or_b32 v{v + 1}, 0x80000000, v{v + 1}")
    a(f"v_xor_b32 v{v}, v{v}, v{v + 1}")
    a(f"v_and_b32 v{v}, s53, v{v}")
    a("s_sub_u32 s37, 2047, s33")
    a(f"v_or_b32 v{v}, s37, v{v}")
    a("s_lshl_b32 s37, s32, 2")
    a("v_mov_b32 v5, s37")
    a(f"ds_write_b32 v5, v{v}")
    stamp(a, 3)
    a("s_waitcnt lgkmcnt(0)")
    a("s_barrier")
    a("v_mov_b32 v5, 0")
    a("ds_read_b128 v[12:15], v5")
    a("ds_read_b128 v[80:83], v5 offset:16")
    a(f"v_readfirstlane_b32 s39, v{v}")
    a(f"s_lshl_b32 s41, s2, 11")
    a(f"s_add_u32 s41, s41, {WS_CROW}")
    a(f"s_lshl_b32 s42, s2, 2")
    a(f"s_add_u32 s42, s42, {WS_CAND}")
    a("s_waitcnt lgkmcnt(0)")
    a("v_max3_u32 v12, v12, v13, v14")
    a("v_max3_u32 v80, v80, v81, v82")
    a("v_max3_u32 v12, v12, v15, v83")
    a("v_max_u32 v12, v12, v80")
    a("s_nop 0")
    a("v_readfirstlane_b32 s38, v12")
    a("s_cmp_lg_u32 s38, s39")
    a(f"s_cbranch_scc1 {name}_nw")
    a(f"buffer_store_dwordx4 v[{B + 40}:{B + 43}], v3, s[24:27], s41 offen")
    a(f"buffer_store_dwordx4 v[{B + 44}:{B + 47}], v3, s[24:27], s41 offen offset:1024")
    a(f"buffer_store_dword v12, v5, s[24:27], s42 offen")
    a.label(f"{name}_nw")
    stamp_flush(a, 3, 4, 10, 11)
    a.label(f"{name}_done")
    a("s_endpgm")
    return kernel_desc(name, 128, 64, 128)


def emit_winner_wave(a, v4, t, s_out):
    a(f"v_max3_u32 v{v4}, v{v4}, v{v4 + 1}, v{v4 + 2}")
    a(f"v_max_u32 v{v4}, v{v4}, v{v4 + 3}")
    wave_allreduce(a, "v_max_u32", v4, t)
    a("s_nop 0")
    a(f"v_readfirstlane_b32 s{s_out}, v{v4}")


def gen_k4b(a, name):
    kernel_begin(a, name)
    a(f"s_cmp_ge_u32 s2, {NSL}")
    a(f"s_cbranch_scc1 {name}_done")
    stamp(a, 0)
    a("s_load_dwordx2 s[10:11], s[0:1], 96")
    a("s_load_dwordx4 s[4:7], s[0:1], 56")
    a("s_load_dwordx2 s[8:9], s[0:1], 72")
    a("v_lshrrev_b32 v1, 6, v0")
    a("v_and_b32 v2, 63, v0")
    a("s_nop 0")
    a("v_readfirstlane_b32 s32, v1")
    a("v_lshrrev_b32 v3, 2, v0")
    a("v_and_b32 v4, 3, v0")
    a("s_mov_b32 s33, 14336")
    a("v_mul_lo_u32 v6, v3, s33")
    a("v_lshl_add_u32 v6, v4, 4, v6")
    a("v_lshlrev_b32 v7, 4, v2")
    a("s_lshl_b32 s34, s2, 6")
    a("s_lshl_b32 s35, s2, 5")
    a("s_lshl_b32 s36, s32, 2")
    a("s_add_u32 s35, s35, s36")
    a("s_lshl_b32 s35, s35, 10")
    a(f"s_mov_b32 s37, {WS_CAND}")
    a("s_mov_b32 s53, 0xffff0000")
    a("s_waitcnt lgkmcnt(0)")
    stamp(a, 1)
    srd(a, 24, 10, 11, 14 << 20)
    a("buffer_load_dwordx4 v[8:11], v7, s[24:27], s37 offen")
    srd(a, 12, 4, 5, D * F * 2)
    srd(a, 16, 6, 7, D * F * 2)
    srd(a, 20, 8, 9, D * F * 2)
    G, U, W = 32, 48, 64
    for j in range(4):
        a(f"s_add_u32 s36, s34, {3584 * j}")
        a(f"buffer_load_dwordx4 v[{G + 4 * j}:{G + 4 * j + 3}], v6, s[12:15], s36 offen")
        a(f"buffer_load_dwordx4 v[{U + 4 * j}:{U + 4 * j + 3}], v6, s[16:19], s36 offen")
    a("s_waitcnt vmcnt(8)")
    stamp(a, 2)
    emit_winner_wave(a, 8, 12, 38)
    a("s_and_b32 s39, s38, 0xffff")
    a("s_sub_u32 s39, 2047, s39")
    a("s_lshr_b32 s39, s39, 3")
    a("s_lshl_b32 s39, s39, 11")
    a(f"s_add_u32 s39, s39, {WS_CROW + 1024}")
    a("v_lshlrev_b32 v9, 3, v3")
    a("v_add_u32 v9, s39, v9")
    a("buffer_load_dwordx2 v[12:13], v9, s[24:27], 0 offen")
    stamp(a, 3)
    for j in range(4):
        a(f"buffer_load_dwordx4 v[{W + 4 * j}:{W + 4 * j + 3}], v7, s[20:23], s35 offen offset:{1024 * j}")
    A = 96
    for i in range(16):
        a(f"v_mov_b32 v{A + i}, 0")
    a("s_waitcnt vmcnt(4)")
    stamp(a, 4)
    X = 16
    for i in range(2):
        a(f"v_lshlrev_b32 v{X + 2 * i}, 16, v{12 + i}")
        a(f"v_and_b32 v{X + 2 * i + 1}, s53, v{12 + i}")
    for j in range(4):
        for (M, ao) in ((G, 0), (U, 8)):
            for i in range(4):
                t = 24 + 2 * (i & 3)
                a(f"v_lshlrev_b32 v{t}, 16, v{M + 4 * j + i}")
                a(f"v_and_b32 v{t + 1}, s53, v{M + 4 * j + i}")
            for i in range(4):
                t = 24 + 2 * (i & 3)
                a(f"v_fmac_f32 v{A + ao + 2 * i}, v{X + j}, v{t}")
                a(f"v_fmac_f32 v{A + ao + 2 * i + 1}, v{X + j}, v{t + 1}")
    a("s_nop 1")
    for i in range(8):
        a(f"v_permlane32_swap_b32 v{A + i}, v{A + i + 8}")
    a("s_nop 1")
    for i in range(8):
        a(f"v_add_f32 v{A + i}, v{A + i}, v{A + i + 8}")
    a("s_nop 1")
    for i in range(4):
        a(f"v_permlane16_swap_b32 v{A + i}, v{A + i + 4}")
    a("s_nop 1")
    for i in range(4):
        a(f"v_add_f32 v{A + i}, v{A + i}, v{A + i + 4}")
    a("s_nop 1")
    for i in range(4):
        a(f"v_add_f32_dpp v{A + i}, v{A + i}, v{A + i} row_ror:4 {DPP}")
    a("s_nop 1")
    for i in range(4):
        a(f"v_add_f32_dpp v{A + i}, v{A + i}, v{A + i} row_ror:8 {DPP}")
    a("v_and_b32 v9, 3, v2")
    a("v_lshlrev_b32 v9, 5, v9")
    a("v_bfe_u32 v10, v2, 4, 1")
    a("v_lshl_add_u32 v9, v10, 4, v9")
    a("v_bfe_u32 v10, v2, 5, 1")
    a("v_lshl_add_u32 v9, v10, 7, v9")
    a("s_lshl_b32 s37, s32, 8")
    a("v_add_u32 v9, s37, v9")
    a(f"ds_write_b128 v9, v[{A}:{A + 3}]")
    a("s_waitcnt lgkmcnt(0)")
    a("s_barrier")
    stamp(a, 5)
    a("v_lshlrev_b32 v9, 2, v2")
    for w in range(8):
        a(f"ds_read_b32 v{16 + w}, v9 offset:{256 * w}")
    a("s_waitcnt lgkmcnt(0)")
    a("v_add_f32 v16, v16, v17")
    a("v_add_f32 v18, v18, v19")
    a("v_add_f32 v20, v20, v21")
    a("v_add_f32 v22, v22, v23")
    a("v_add_f32 v16, v16, v18")
    a("v_add_f32 v20, v20, v22")
    a("v_add_f32 v16, v16, v20")
    a("v_mov_b32 v20, v16")
    a("s_nop 1")
    a("v_permlane32_swap_b32 v16, v20")
    a("s_nop 1")
    a("v_cvt_pk_bf16_f32 v16, v16, v20")
    a("v_and_b32 v20, s53, v16")
    a("v_lshlrev_b32 v16, 16, v16")
    a("v_mul_f32 v17, 0xbfb8aa3b, v16")
    a("v_exp_f32 v17, v17")
    a("s_nop 0")
    a("v_add_f32 v17, 1.0, v17")
    a("v_rcp_f32 v17, v17")
    a("s_nop 0")
    a("v_mul_f32 v16, v16, v17")
    a("v_cvt_pk_bf16_f32 v16, v16, v16")
    a("v_lshlrev_b32 v16, 16, v16")
    a("v_mul_f32 v16, v16, v20")
    a("v_cvt_pk_bf16_f32 v16, v16, v16")
    a("v_lshlrev_b32 v16, 16, v16")
    a("s_lshl_b32 s37, s32, 2")
    for j in range(4):
        a(f"s_add_u32 s36, s37, {j}")
        a("s_nop 0")
        a(f"v_readlane_b32 s{40 + j}, v16, s36")
    a("s_waitcnt vmcnt(0)")
    for j in range(4):
        for i in range(4):
            t = 24 + 2 * i
            a(f"v_lshlrev_b32 v{t}, 16, v{W + 4 * j + i}")
            a(f"v_and_b32 v{t + 1}, s53, v{W + 4 * j + i}")
        for i in range(4):
            t = 24 + 2 * i
            if j == 0:
                a(f"v_mul_f32 v{A + 2 * i}, s{40 + j}, v{t}")
                a(f"v_mul_f32 v{A + 2 * i + 1}, s{40 + j}, v{t + 1}")
            else:
                a(f"v_fmac_f32 v{A + 2 * i}, s{40 + j}, v{t}")
                a(f"v_fmac_f32 v{A + 2 * i + 1}, s{40 + j}, v{t + 1}")
    a("v_lshlrev_b32 v9, 5, v2")
    a("s_lshl_b32 s37, s32, 11")
    a("v_add_u32 v9, s37, v9")
    a(f"ds_write_b128 v9, v[{A}:{A + 3}] offset:2048")
    a(f"ds_write_b128 v9, v[{A + 4}:{A + 7}] offset:2064")
    a("s_waitcnt lgkmcnt(0)")
    a("s_barrier")
    a("v_lshlrev_b32 v9, 2, v0")
    for w in range(8):
        a(f"ds_read_b32 v{16 + w}, v9 offset:{2048 + 2048 * w}")
    a("s_lshl_b32 s37, s2, 11")
    a(f"s_add_u32 s37, s37, {WS_SLAB}")
    a("s_waitcnt lgkmcnt(0)")
    a("v_add_f32 v16, v16, v17")
    a("v_add_f32 v18, v18, v19")
    a("v_add_f32 v20, v20, v21")
    a("v_add_f32 v22, v22, v23")
    a("v_add_f32 v16, v16, v18")
    a("v_add_f32 v20, v20, v22")
    a("v_add_f32 v16, v16, v20")
    a("buffer_store_dword v16, v9, s[24:27], s37 offen")
    stamp_flush(a, 4, 6, 10, 11)
    a.label(f"{name}_done")
    a("s_endpgm")
    return kernel_desc(name, 112, 64, 112)


WS_NONCE = 13 << 20
WS_ANN = WS_NONCE + 128
WS_KEYS = WS_NONCE + 4096
WS_ROWS = WS_NONCE + 8192
WS_SLABS = 15 << 20


def gen_kt(a, name):
    kernel_begin(a, name)
    a("s_cmp_ge_u32 s2, 256")
    a(f"s_cbranch_scc1 {name}_done")
    stamp(a, 0)
    a("s_load_dwordx2 s[10:11], s[0:1], 96")
    a("s_load_dwordx2 s[4:5], s[0:1], 0")
    a("s_load_dwordx2 s[6:7], s[0:1], 48")
    a("s_load_dwordx2 s[8:9], s[0:1], 80")
    a("s_load_dwordx4 s[56:59], s[0:1], 56")
    a("s_load_dwordx2 s[60:61], s[0:1], 72")
    a("v_lshrrev_b32 v1, 6, v0")
    a("v_and_b32 v2, 63, v0")
    a("s_nop 0")
    a("v_readfirstlane_b32 s32, v1")
    a("v_lshlrev_b32 v3, 4, v2")
    a("s_lshl_b32 s33, s2, 3")
    a("s_add_u32 s33, s33, s32")
    a("s_lshl_b32 s34, s33, 10")
    a(f"s_add_u32 s35, s34, {WS_P}")
    a(f"s_add_u32 s36, s34, {WS_P + (4 << 20)}")
    a(f"s_add_u32 s43, s34, {WS_P + (2 << 20)}")
    a(f"s_add_u32 s44, s34, {WS_P + (6 << 20)}")
    a("s_mov_b32 s53, 0xffff0000")
    a(f"s_mov_b32 s45, {WS_NONCE}")
    a("v_mov_b32 v5, 0")
    a("v_lshrrev_b32 v6, 2, v0")
    a("s_mov_b32 s46, 14336")
    a("v_mul_lo_u32 v7, v6, s46")
    a("v_and_b32 v4, 3, v0")
    a("v_lshl_add_u32 v7, v4, 4, v7")
    a("v_lshlrev_b32 v4, 5, v2")
    a("s_waitcnt lgkmcnt(0)")
    stamp(a, 1)
    srd(a, 24, 10, 11, 16 << 20)
    srd(a, 20, 8, 9, S * D * 2)
    P0, P2, XX, P1, P3 = 16, 20, 24, 28, 12
    a(f"buffer_load_dwordx4 v[{P0}:{P0 + 3}], v3, s[24:27], s35 offen")
    a(f"buffer_load_dwordx4 v[{P1}:{P1 + 3}], v3, s[24:27], s43 offen")
    a(f"buffer_load_dwordx4 v[{P2}:{P2 + 3}], v3, s[24:27], s36 offen")
    a(f"buffer_load_dwordx4 v[{P3}:{P3 + 3}], v3, s[24:27], s44 offen")
    srd(a, 12, 4, 5, S * D * 2)
    a(f"buffer_load_dwordx4 v[{XX}:{XX + 3}], v3, s[12:15], s34 offen")
    srd(a, 16, 6, 7, D * 2)
    a("buffer_load_dwordx4 v[8:11], v3, s[16:19], 0 offen")
    a("buffer_load_dword v88, v5, s[24:27], s45 offen")
    G, U = 96, 112
    a("s_waitcnt vmcnt(2)")
    stamp(a, 2)

    def unpack(dst, src):
        a(f"v_lshlrev_b32 v{dst}, 16, v{src}")
        a(f"v_and_b32 v{dst + 1}, s53, v{src}")

    H, HP, HN, St = 32, 40, 44, 48
    for half in range(2):
        steps = []
        for ii in range(2):
            i = 2 * half + ii
            T = 56 + 10 * ii
            steps.append([
                f"v_lshlrev_b32 v{T}, 16, v{P0 + i}", f"v_and_b32 v{T + 1}, s53, v{P0 + i}",
                f"v_lshlrev_b32 v{T + 2}, 16, v{P1 + i}", f"v_and_b32 v{T + 3}, s53, v{P1 + i}",
                f"v_lshlrev_b32 v{T + 4}, 16, v{P2 + i}", f"v_and_b32 v{T + 5}, s53, v{P2 + i}",
                f"v_lshlrev_b32 v{T + 6}, 16, v{P3 + i}", f"v_and_b32 v{T + 7}, s53, v{P3 + i}",
                f"v_add_f32 v{T}, v{T}, v{T + 2}", f"v_add_f32 v{T + 1}, v{T + 1}, v{T + 3}",
                f"v_add_f32 v{T + 4}, v{T + 4}, v{T + 6}", f"v_add_f32 v{T + 5}, v{T + 5}, v{T + 7}",
                f"v_cvt_pk_bf16_f32 v{T + 8}, v{T}, v{T + 1}", f"v_cvt_pk_bf16_f32 v{T + 9}, v{T + 4}, v{T + 5}",
                f"v_lshlrev_b32 v{T}, 16, v{T + 8}", f"v_and_b32 v{T + 1}, s53, v{T + 8}",
                f"v_lshlrev_b32 v{T + 2}, 16, v{T + 9}", f"v_and_b32 v{T + 3}, s53, v{T + 9}",
                f"v_sub_f32 v{T}, v{T}, v{T + 2}", f"v_sub_f32 v{T + 1}, v{T + 1}, v{T + 3}",
                f"v_cvt_pk_bf16_f32 v{T + 4}, v{T}, v{T + 1}",
                f"v_lshlrev_b32 v{T}, 16, v{T + 4}", f"v_and_b32 v{T + 1}, s53, v{T + 4}",
                f"v_lshlrev_b32 v{T + 2}, 16, v{XX + i}", f"v_and_b32 v{T + 3}, s53, v{XX + i}",
                f"v_add_f32 v{T}, v{T + 2}, v{T}", f"v_add_f32 v{T + 1}, v{T + 3}, v{T + 1}",
                f"v_cvt_pk_bf16_f32 v{HP + i}, v{T}, v{T + 1}",
                f"v_lshlrev_b32 v{H + 2 * i}, 16, v{HP + i}", f"v_and_b32 v{H + 2 * i + 1}, s53, v{HP + i}",
            ])
        for k in range(len(steps[0])):
            for ii in range(2):
                a(steps[ii][k])
    a(f"v_add_f32 v{St}, v{H}, v{H + 1}")
    a(f"v_add_f32 v{St + 1}, v{H + 2}, v{H + 3}")
    a(f"v_add_f32 v{St + 2}, v{H + 4}, v{H + 5}")
    a(f"v_add_f32 v{St + 3}, v{H + 6}, v{H + 7}")
    a(f"v_add_f32 v{St}, v{St}, v{St + 1}")
    a(f"v_add_f32 v{St + 2}, v{St + 2}, v{St + 3}")
    a(f"v_add_f32 v{St}, v{St}, v{St + 2}")
    wave_allreduce(a, "v_add_f32", St, St + 1)
    T = 56
    a(f"v_mul_f32 v{St}, 0x3b000000, v{St}")
    for i in range(8):
        a(f"v_sub_f32 v{T + i}, v{H + i}, v{St}")
    a(f"v_cvt_pk_bf16_f32 v{St + 1}, v{St}, v{St}")
    a(f"v_mul_f32 v{St + 2}, v{T}, v{T}")
    a(f"v_mul_f32 v{St + 3}, v{T + 1}, v{T + 1}")
    a(f"v_lshlrev_b32 v{St + 1}, 16, v{St + 1}")
    for i in range(2, 8, 2):
        a(f"v_fmac_f32 v{St + 2}, v{T + i}, v{T + i}")
        a(f"v_fmac_f32 v{St + 3}, v{T + i + 1}, v{T + i + 1}")
    a(f"v_add_f32 v{St + 2}, v{St + 2}, v{St + 3}")
    for i in range(8):
        a(f"v_sub_f32 v{T + 10 + i}, v{H + i}, v{St + 1}")
    for i in range(4):
        a(f"v_cvt_pk_bf16_f32 v{T + 20 + i}, v{T + 10 + 2 * i}, v{T + 11 + 2 * i}")
    for i in range(4):
        unpack(T + 10 + 2 * i, T + 20 + i)
    wave_allreduce(a, "v_add_f32", St + 2, St + 3)
    v = St + 2
    a(f"v_mul_f32 v{v}, 0x3b000000, v{v}")
    a(f"v_cvt_pk_bf16_f32 v{v}, v{v}, v{v}")
    a(f"v_lshlrev_b32 v{v}, 16, v{v}")
    a(f"v_add_f32 v{v}, 0x3727c5ac, v{v}")
    a(f"v_cvt_pk_bf16_f32 v{v}, v{v}, v{v}")
    a(f"v_lshlrev_b32 v{v}, 16, v{v}")
    a(f"v_sqrt_f32 v{v}, v{v}")
    a("s_nop 0")
    a(f"v_cvt_pk_bf16_f32 v{v}, v{v}, v{v}")
    a(f"v_lshlrev_b32 v{v}, 16, v{v}")
    a(f"v_rcp_f32 v{v}, v{v}")
    a("s_waitcnt vmcnt(0)")
    for i in range(8):
        a(f"v_mul_f32 v{T + 10 + i}, v{T + 10 + i}, v{v}")
    for i in range(4):
        a(f"v_cvt_pk_bf16_f32 v{HN + i}, v{T + 10 + 2 * i}, v{T + 11 + 2 * i}")
    for i in range(4):
        unpack(T + 10 + 2 * i, HN + i)
        unpack(T + 2 * i, 8 + i)
    a(f"v_mul_f32 v{St + 4}, v{T + 10}, v{T}")
    a(f"v_mul_f32 v{St + 5}, v{T + 11}, v{T + 1}")
    for i in range(2, 8, 2):
        a(f"v_fmac_f32 v{St + 4}, v{T + 10 + i}, v{T + i}")
        a(f"v_fmac_f32 v{St + 5}, v{T + 11 + i}, v{T + i + 1}")
    a(f"v_add_f32 v{St + 4}, v{St + 4}, v{St + 5}")
    wave_allreduce(a, "v_add_f32", St + 4, St + 5)
    v = St + 4
    a(f"v_cvt_pk_bf16_f32 v{v}, v{v}, v{v}")
    a(f"v_lshlrev_b32 v{v}, 16, v{v}")
    a(f"v_ashrrev_i32 v{v + 1}, 31, v{v}")
    a(f"v_or_b32 v{v + 1}, 0x80000000, v{v + 1}")
    a(f"v_xor_b32 v{v}, v{v}, v{v + 1}")
    a(f"v_and_b32 v{v}, s53, v{v}")
    a("s_sub_u32 s37, 2047, s33")
    a(f"v_or_b32 v{v}, s37, v{v}")
    a("s_lshl_b32 s37, s32, 2")
    a("v_mov_b32 v89, s37")
    a(f"ds_write_b32 v89, v{v}")
    OUT = 84
    for i in range(8):
        a(f"v_add_f32 v{T + 20 + i}, v{H + i}, v{T + 10 + i}")
    for i in range(4):
        a(f"v_cvt_pk_bf16_f32 v{OUT + i}, v{T + 20 + 2 * i}, v{T + 21 + 2 * i}")
    for i in range(4):
        a(f"v_mov_b32 v{56 + 2 * i}, v{HP + i}")
        a(f"v_mov_b32 v{57 + 2 * i}, v88")
        a(f"v_mov_b32 v{64 + 2 * i}, v{HN + i}")
        a(f"v_mov_b32 v{65 + 2 * i}, v88")
    a(f"v_readfirstlane_b32 s39, v{v}")
    a("v_readfirstlane_b32 s50, v88")
    a("s_lshl_b32 s41, s2, 12")
    a(f"s_add_u32 s41, s41, {WS_ROWS}")
    a("s_lshl_b32 s42, s2, 3")
    a(f"s_add_u32 s42, s42, {WS_KEYS}")
    stamp(a, 3)
    a("s_waitcnt lgkmcnt(0)")
    a("s_barrier")
    a("ds_read_b128 v[72:75], v5")
    a("ds_read_b128 v[76:79], v5 offset:16")
    a("s_waitcnt lgkmcnt(0)")
    a("v_max3_u32 v72, v72, v73, v74")
    a("v_max3_u32 v76, v76, v77, v78")
    a("v_max3_u32 v72, v72, v75, v79")
    a("v_max_u32 v72, v72, v76")
    a("v_mov_b32 v73, v88")
    a("s_nop 0")
    a("v_readfirstlane_b32 s38, v72")
    a("s_mov_b32 s51, 0")
    a("s_cmp_lg_u32 s38, s39")
    a(f"s_cbranch_scc1 {name}_nc")
    a("s_mov_b32 s51, 1")
    a("buffer_store_dwordx2 v[72:73], v5, s[24:27], s42 offen sc0 sc1")
    a("buffer_store_dwordx4 v[64:67], v4, s[24:27], s41 offen offset:2048 sc0 sc1")
    a("buffer_store_dwordx4 v[68:71], v4, s[24:27], s41 offen offset:2064 sc0 sc1")
    a("buffer_store_dwordx4 v[56:59], v4, s[24:27], s41 offen sc0 sc1")
    a("buffer_store_dwordx4 v[60:63], v4, s[24:27], s41 offen offset:16 sc0 sc1")
    a(f"s_branch {name}_role")
    a.label(f"{name}_nc")
    a(f"buffer_store_dwordx4 v[{OUT}:{OUT + 3}], v3, s[20:23], s34 offen")
    a.label(f"{name}_role")
    stamp(a, 4)
    a(f"s_cmp_lt_u32 s2, {NSL}")
    a(f"s_cbranch_scc1 {name}_needkeys")
    a("s_sub_u32 s52, s2, 64")
    a("s_cmp_lt_u32 s52, 16")
    a(f"s_cbranch_scc1 {name}_needkeys")
    a("s_cmp_eq_u32 s51, 0")
    a(f"s_cbranch_scc1 {name}_fin")
    a(f"s_mov_b32 s45, {WS_ANN}")
    a.label(f"{name}_annp")
    a("s_sleep 8")
    a("buffer_load_dwordx2 v[72:73], v5, s[24:27], s45 offen sc1")
    a("s_waitcnt vmcnt(0)")
    a("v_readfirstlane_b32 s46, v73")
    a("v_readfirstlane_b32 s38, v72")
    a("s_cmp_lg_u32 s46, s50")
    a(f"s_cbranch_scc1 {name}_annp")
    a("s_cmp_eq_u32 s38, s39")
    a(f"s_cbranch_scc1 {name}_fin")
    a(f"buffer_store_dwordx4 v[{OUT}:{OUT + 3}], v3, s[20:23], s34 offen")
    a(f"s_branch {name}_fin")
    a.label(f"{name}_needkeys")
    W = 16
    a(f"s_cmp_lt_u32 s2, {NSL}")
    a(f"s_cbranch_scc0 {name}_nowd")
    a("s_barrier")
    srd(a, 12, 56, 57, D * F * 2)
    srd(a, 16, 58, 59, D * F * 2)
    a("s_lshl_b32 s48, s2, 6")
    for j in range(4):
        a(f"s_add_u32 s49, s48, {3584 * j}")
        a(f"buffer_load_dwordx4 v[{G + 4 * j}:{G + 4 * j + 3}], v7, s[12:15], s49 offen")
        a(f"buffer_load_dwordx4 v[{U + 4 * j}:{U + 4 * j + 3}], v7, s[16:19], s49 offen")
    srd(a, 28, 60, 61, D * F * 2)
    a("s_lshl_b32 s35, s2, 5")
    a("s_lshl_b32 s36, s32, 2")
    a("s_add_u32 s35, s35, s36")
    a("s_lshl_b32 s35, s35, 10")
    for j in range(4):
        a(f"buffer_load_dwordx4 v[{W + 4 * j}:{W + 4 * j + 3}], v3, s[28:31], s35 offen offset:{1024 * j}")
    a.label(f"{name}_nowd")
    a("s_cmp_lg_u32 s32, 0")
    a(f"s_cbranch_scc1 {name}_kw")
    a(f"s_mov_b32 s45, {WS_KEYS}")
    a.label(f"{name}_kp")
    a("buffer_load_dwordx4 v[56:59], v4, s[24:27], s45 offen sc1")
    a("buffer_load_dwordx4 v[60:63], v4, s[24:27], s45 offen offset:16 sc1")
    a("s_waitcnt vmcnt(0)")
    a("v_cmp_ne_u32 s[46:47], v57, v88")
    a("v_cmp_ne_u32 vcc, v59, v88")
    a("s_or_b64 s[46:47], s[46:47], vcc")
    a("v_cmp_ne_u32 vcc, v61, v88")
    a("s_or_b64 s[46:47], s[46:47], vcc")
    a("v_cmp_ne_u32 vcc, v63, v88")
    a("s_or_b64 s[46:47], s[46:47], vcc")
    a(f"s_cbranch_scc0 {name}_kd")
    a("s_sleep 1")
    a(f"s_branch {name}_kp")
    a.label(f"{name}_kd")
    a("v_max3_u32 v56, v56, v58, v60")
    a("v_max_u32 v56, v56, v62")
    wave_allreduce(a, "v_max_u32", 56, 57)
    a("ds_write_b32 v5, v56 offset:64")
    a("s_cmp_lg_u32 s2, 64")
    a(f"s_cbranch_scc1 {name}_noann")
    a("v_mov_b32 v57, v88")
    a(f"s_mov_b32 s45, {WS_ANN}")
    a("buffer_store_dwordx2 v[56:57], v5, s[24:27], s45 offen sc0 sc1")
    a.label(f"{name}_noann")
    a("s_waitcnt lgkmcnt(0)")
    a.label(f"{name}_kw")
    a("s_barrier")
    a("ds_read_b32 v56, v5 offset:64")
    a("s_waitcnt lgkmcnt(0)")
    a("v_readfirstlane_b32 s38, v56")
    stamp(a, 5)
    a("s_cmp_eq_u32 s51, 0")
    a(f"s_cbranch_scc1 {name}_nodef")
    a("s_cmp_eq_u32 s38, s39")
    a(f"s_cbranch_scc1 {name}_nodef")
    a(f"buffer_store_dwordx4 v[{OUT}:{OUT + 3}], v3, s[20:23], s34 offen")
    a.label(f"{name}_nodef")
    a("s_and_b32 s39, s38, 0xffff")
    a("s_sub_u32 s39, 2047, s39")
    a("s_lshr_b32 s40, s39, 3")
    a("s_lshl_b32 s40, s40, 12")
    a(f"s_add_u32 s40, s40, {WS_ROWS}")
    a(f"s_cmp_lt_u32 s2, {NSL}")
    a(f"s_cbranch_scc0 {name}_red")
    a("v_lshlrev_b32 v9, 4, v6")
    a("v_add_u32 v9, s40, v9")
    A = 32
    a.label(f"{name}_xp")
    a("buffer_load_dwordx4 v[56:59], v9, s[24:27], 0 offen offset:2048 sc1")
    for i in range(16):
        a(f"v_mov_b32 v{A + i}, 0")
    a("s_waitcnt vmcnt(0)")
    a("v_cmp_ne_u32 s[46:47], v57, v88")
    a("v_cmp_ne_u32 vcc, v59, v88")
    a("s_or_b64 s[46:47], s[46:47], vcc")
    a(f"s_cbranch_scc1 {name}_xp")
    stamp(a, 6)
    X = 60
    a(f"v_lshlrev_b32 v{X}, 16, v56")
    a(f"v_and_b32 v{X + 1}, s53, v56")
    a(f"v_lshlrev_b32 v{X + 2}, 16, v58")
    a(f"v_and_b32 v{X + 3}, s53, v58")
    for j in range(4):
        for (M, ao) in ((G, 0), (U, 8)):
            for i in range(4):
                t = 64 + 2 * i
                a(f"v_lshlrev_b32 v{t}, 16, v{M + 4 * j + i}")
                a(f"v_and_b32 v{t + 1}, s53, v{M + 4 * j + i}")
            for i in range(4):
                t = 64 + 2 * i
                a(f"v_fmac_f32 v{A + ao + 2 * i}, v{X + j}, v{t}")
                a(f"v_fmac_f32 v{A + ao + 2 * i + 1}, v{X + j}, v{t + 1}")
    a("s_nop 1")
    for i in range(8):
        a(f"v_permlane32_swap_b32 v{A + i}, v{A + i + 8}")
    a("s_nop 1")
    for i in range(8):
        a(f"v_add_f32 v{A + i}, v{A + i}, v{A + i + 8}")
    a("s_nop 1")
    for i in range(4):
        a(f"v_permlane16_swap_b32 v{A + i}, v{A + i + 4}")
    a("s_nop 1")
    for i in range(4):
        a(f"v_add_f32 v{A + i}, v{A + i}, v{A + i + 4}")
    a("s_nop 1")
    for i in range(4):
        a(f"v_add_f32_dpp v{A + i}, v{A + i}, v{A + i} row_ror:4 {DPP}")
    a("s_nop 1")
    for i in range(4):
        a(f"v_add_f32_dpp v{A + i}, v{A + i}, v{A + i} row_ror:8 {DPP}")
    a("v_and_b32 v9, 3, v2")
    a("v_lshlrev_b32 v9, 5, v9")
    a("v_bfe_u32 v10, v2, 4, 1")
    a("v_lshl_add_u32 v9, v10, 4, v9")
    a("v_bfe_u32 v10, v2, 5, 1")
    a("v_lshl_add_u32 v9, v10, 7, v9")
    a("s_lshl_b32 s37, s32, 8")
    a("v_add_u32 v9, s37, v9")
    a(f"ds_write_b128 v9, v[{A}:{A + 3}] offset:128")
    a("s_waitcnt lgkmcnt(0)")
    a("s_barrier")
    a("v_lshlrev_b32 v9, 2, v2")
    for w in range(8):
        a(f"ds_read_b32 v{56 + w}, v9 offset:{128 + 256 * w}")
    a("s_waitcnt lgkmcnt(0)")
    a("v_add_f32 v56, v56, v57")
    a("v_add_f32 v58, v58, v59")
    a("v_add_f32 v60, v60, v61")
    a("v_add_f32 v62, v62, v63")
    a("v_add_f32 v56, v56, v58")
    a("v_add_f32 v60, v60, v62")
    a("v_add_f32 v56, v56, v60")
    a("v_mov_b32 v60, v56")
    a("s_nop 1")
    a("v_permlane32_swap_b32 v56, v60")
    a("s_nop 1")
    a("v_cvt_pk_bf16_f32 v56, v56, v60")
    a("v_and_b32 v60, s53, v56")
    a("v_lshlrev_b32 v56, 16, v56")
    a("v_mul_f32 v57, 0xbfb8aa3b, v56")
    a("v_exp_f32 v57, v57")
    a("s_nop 0")
    a("v_add_f32 v57, 1.0, v57")
    a("v_rcp_f32 v57, v57")
    a("s_nop 0")
    a("v_mul_f32 v56, v56, v57")
    a("v_cvt_pk_bf16_f32 v56, v56, v56")
    a("v_lshlrev_b32 v56, 16, v56")
    a("v_mul_f32 v56, v56, v60")
    a("v_cvt_pk_bf16_f32 v56, v56, v56")
    a("v_lshlrev_b32 v56, 16, v56")
    a("s_lshl_b32 s37, s32, 2")
    for j in range(4):
        a(f"s_add_u32 s36, s37, {j}")
        a("s_nop 0")
        a(f"v_readlane_b32 s{40 + j}, v56, s36")
    for j in range(4):
        for i in range(4):
            t = 64 + 2 * i
            a(f"v_lshlrev_b32 v{t}, 16, v{W + 4 * j + i}")
            a(f"v_and_b32 v{t + 1}, s53, v{W + 4 * j + i}")
        for i in range(4):
            t = 64 + 2 * i
            if j == 0:
                a(f"v_mul_f32 v{A + 2 * i}, s{40 + j}, v{t}")
                a(f"v_mul_f32 v{A + 2 * i + 1}, s{40 + j}, v{t + 1}")
            else:
                a(f"v_fmac_f32 v{A + 2 * i}, s{40 + j}, v{t}")
                a(f"v_fmac_f32 v{A + 2 * i + 1}, s{40 + j}, v{t + 1}")
    a("s_lshl_b32 s37, s32, 11")
    a("v_add_u32 v9, s37, v4")
    a(f"ds_write_b128 v9, v[{A}:{A + 3}] offset:4096")
    a(f"ds_write_b128 v9, v[{A + 4}:{A + 7}] offset:4112")
    a("s_waitcnt lgkmcnt(0)")
    a("s_barrier")
    a("v_lshlrev_b32 v9, 2, v0")
    for w in range(8):
        a(f"ds_read_b32 v{56 + w}, v9 offset:{4096 + 2048 * w}")
    a("s_lshl_b32 s37, s2, 12")
    a(f"s_add_u32 s37, s37, {WS_SLABS}")
    a("v_lshlrev_b32 v9, 3, v0")
    a("s_waitcnt lgkmcnt(0)")
    a("v_add_f32 v56, v56, v57")
    a("v_add_f32 v58, v58, v59")
    a("v_add_f32 v60, v60, v61")
    a("v_add_f32 v62, v62, v63")
    a("v_add_f32 v56, v56, v58")
    a("v_add_f32 v60, v60, v62")
    a("v_add_f32 v56, v56, v60")
    a("v_mov_b32 v57, v88")
    a("buffer_store_dwordx2 v[56:57], v9, s[24:27], s37 offen sc0 sc1")
    stamp(a, 7)
    a(f"s_branch {name}_fin2")
    a.label(f"{name}_red")
    a("v_lshrrev_b32 v8, 4, v0")
    a("v_and_b32 v9, 15, v0")
    a("s_lshl_b32 s41, s52, 8")
    a(f"s_add_u32 s42, s41, {WS_SLABS}")
    a("v_lshlrev_b32 v10, 12, v8")
    a("v_lshl_add_u32 v10, v9, 4, v10")
    a("v_add_u32 v11, 0x20000, v10")
    a("v_cmp_gt_u32 s[54:55], 24, v8")
    a("s_nop 1")
    a("v_cndmask_b32 v11, v10, v11, s[54:55]")
    a("s_lshl_b32 s43, s52, 7")
    a("s_add_u32 s43, s43, s40")
    a("v_lshlrev_b32 v12, 3, v9")
    a("v_add_u32 v12, s43, v12")
    a("s_and_b32 s44, s38, 0xffff0000")
    a("s_xor_b32 s45, s44, 0x80000000")
    a("s_not_b32 s46, s44")
    a("s_and_b32 s46, s46, 0xffff0000")
    a("s_cmp_ge_u32 s44, 0x80000000")
    a("s_cselect_b32 s44, s45, s46")
    a("v_mov_b32 v13, s44")
    a("v_mul_f32 v13, 0xbfb8aa3b, v13")
    a("v_exp_f32 v13, v13")
    a("s_nop 0")
    a("v_add_f32 v13, 1.0, v13")
    a("v_rcp_f32 v13, v13")
    a("s_nop 0")
    a("v_cvt_pk_bf16_f32 v13, v13, v13")
    a("v_lshlrev_b32 v13, 16, v13")
    a.label(f"{name}_sp")
    a("buffer_load_dwordx4 v[56:59], v10, s[24:27], s42 offen sc1")
    a("buffer_load_dwordx4 v[60:63], v11, s[24:27], s42 offen sc1")
    a("buffer_load_dwordx2 v[64:65], v12, s[24:27], 0 offen sc1")
    a("buffer_load_dwordx2 v[66:67], v12, s[24:27], 0 offen offset:2048 sc1")
    a("s_waitcnt vmcnt(0)")
    a("v_cmp_ne_u32 s[46:47], v57, v88")
    for r in (59, 61, 63, 65, 67):
        a(f"v_cmp_ne_u32 vcc, v{r}, v88")
        a("s_or_b64 s[46:47], s[46:47], vcc")
    a(f"s_cbranch_scc0 {name}_sd")
    a("s_sleep 1")
    a(f"s_branch {name}_sp")
    a.label(f"{name}_sd")
    stamp(a, 6)
    a("v_cndmask_b32 v60, 0, v60, s[54:55]")
    a("v_cndmask_b32 v62, 0, v62, s[54:55]")
    a("v_add_f32 v56, v56, v60")
    a("v_add_f32 v57, v58, v62")
    for sw in ("v_permlane16_swap_b32", "v_permlane32_swap_b32"):
        a("v_mov_b32 v58, v56")
        a("v_mov_b32 v59, v57")
        a("s_nop 1")
        a(f"{sw} v56, v58")
        a(f"{sw} v57, v59")
        a("s_nop 1")
        a("v_add_f32 v56, v56, v58")
        a("v_add_f32 v57, v57, v59")
    a("v_lshlrev_b32 v10, 3, v9")
    a("s_lshl_b32 s37, s32, 7")
    a("v_add_u32 v11, s37, v10")
    a("ds_write_b64 v11, v[56:57] offset:128")
    a("s_waitcnt lgkmcnt(0)")
    a("s_barrier")
    a("s_cmp_lg_u32 s32, 0")
    a(f"s_cbranch_scc1 {name}_fin2")
    for w in range(8):
        a(f"ds_read_b64 v[{32 + 2 * w}:{33 + 2 * w}], v10 offset:{128 + 128 * w}")
    a("s_waitcnt lgkmcnt(0)")
    for (d, s1) in ((32, 34), (36, 38), (40, 42), (44, 46), (32, 36), (40, 44), (32, 40)):
        a(f"v_add_f32 v{d}, v{d}, v{s1}")
        a(f"v_add_f32 v{d + 1}, v{d + 1}, v{s1 + 1}")
    y0, y1 = 32, 33
    a(f"v_cvt_pk_bf16_f32 v48, v{y0}, v{y1}")
    a(f"v_lshlrev_b32 v{y0}, 16, v48")
    a(f"v_and_b32 v{y1}, s53, v48")
    a(f"v_mul_f32 v{y0}, v{y0}, v13")
    a(f"v_mul_f32 v{y1}, v{y1}, v13")
    a(f"v_cvt_pk_bf16_f32 v48, v{y0}, v{y1}")
    a(f"v_lshlrev_b32 v{y0}, 16, v48")
    a(f"v_and_b32 v{y1}, s53, v48")
    a("v_lshlrev_b32 v49, 16, v66")
    a("v_and_b32 v50, s53, v66")
    a(f"v_add_f32 v{y0}, v49, v{y0}")
    a(f"v_add_f32 v{y1}, v50, v{y1}")
    a(f"v_cvt_pk_bf16_f32 v48, v{y0}, v{y1}")
    a(f"v_lshlrev_b32 v{y0}, 16, v48")
    a(f"v_and_b32 v{y1}, s53, v48")
    a("v_lshlrev_b32 v49, 16, v64")
    a("v_and_b32 v50, s53, v64")
    a(f"v_add_f32 v{y0}, v49, v{y0}")
    a(f"v_add_f32 v{y1}, v50, v{y1}")
    a(f"v_cvt_pk_bf16_f32 v48, v{y0}, v{y1}")
    a("s_lshl_b32 s39, s39, 10")
    a("s_lshl_b32 s41, s52, 6")
    a("s_add_u32 s39, s39, s41")
    a("v_lshlrev_b32 v10, 2, v9")
    a("v_add_u32 v10, s39, v10")
    a("buffer_store_dword v48, v10, s[20:23], 0 offen")
    stamp(a, 7)
    a.label(f"{name}_fin2")
    a.label(f"{name}_fin")
    stamp_flush(a, 3, 8, 10, 11)
    a.label(f"{name}_done")
    a("s_endpgm")
    return kernel_desc(name, 128, 64, 128)


def gen_k5(a, name):
    kernel_begin(a, name)
    a("s_cmp_ge_u32 s2, 16")
    a(f"s_cbranch_scc1 {name}_done")
    stamp(a, 0)
    a("s_load_dwordx2 s[8:9], s[0:1], 80")
    a("s_load_dwordx2 s[10:11], s[0:1], 96")
    a("v_lshrrev_b32 v1, 6, v0")
    a("v_and_b32 v2, 63, v0")
    a("s_nop 0")
    a("v_readfirstlane_b32 s32, v1")
    a("v_lshlrev_b32 v5, 2, v0")
    a("v_lshrrev_b32 v3, 3, v0")
    a("v_and_b32 v4, 7, v0")
    a("v_lshlrev_b32 v6, 11, v3")
    a("v_lshl_add_u32 v6, v4, 4, v6")
    a("s_waitcnt lgkmcnt(0)")
    stamp(a, 1)
    srd(a, 20, 8, 9, S * D * 2)
    srd(a, 24, 10, 11, 14 << 20)
    srd(a, 28, 10, 11, WS_SLAB + NSL * 2048)
    a(f"s_mov_b32 s34, {WS_CAND}")
    a("buffer_load_dword v8, v5, s[24:27], s34 offen")
    a("s_lshl_b32 s34, s2, 7")
    a(f"s_add_u32 s34, s34, {WS_SLAB}")
    a("s_add_u32 s35, s34, 65536")
    a("buffer_load_dwordx4 v[16:19], v6, s[28:31], s34 offen")
    a("buffer_load_dwordx4 v[20:23], v6, s[28:31], s35 offen")
    a("s_waitcnt vmcnt(2)")
    stamp(a, 2)
    emit_winner(a, 8, 12, 9, 38)
    a("s_and_b32 s39, s38, 0xffff")
    a("s_sub_u32 s39, 2047, s39")
    a("s_lshr_b32 s40, s39, 3")
    a("s_lshl_b32 s40, s40, 11")
    a(f"s_add_u32 s40, s40, {WS_CROW}")
    a("s_lshl_b32 s41, s2, 6")
    a("s_add_u32 s40, s40, s41")
    a("v_lshlrev_b32 v9, 3, v4")
    a("v_add_u32 v9, s40, v9")
    a("buffer_load_dwordx2 v[24:25], v9, s[24:27], 0 offen")
    a("buffer_load_dwordx2 v[26:27], v9, s[24:27], 0 offen offset:1024")
    a("s_waitcnt vmcnt(2)")
    for i in range(4):
        a(f"v_add_f32 v{16 + i}, v{16 + i}, v{20 + i}")
    a("s_nop 1")
    for i in range(4):
        a(f"v_add_f32_dpp v{16 + i}, v{16 + i}, v{16 + i} row_ror:8 {DPP}")
    for i in range(4):
        a(f"v_mov_b32 v{20 + i}, v{16 + i}")
    a("s_nop 1")
    for i in range(4):
        a(f"v_permlane16_swap_b32 v{16 + i}, v{20 + i}")
    a("s_nop 1")
    for i in range(4):
        a(f"v_add_f32 v{16 + i}, v{16 + i}, v{20 + i}")
    for i in range(4):
        a(f"v_mov_b32 v{20 + i}, v{16 + i}")
    a("s_nop 1")
    for i in range(4):
        a(f"v_permlane32_swap_b32 v{16 + i}, v{20 + i}")
    a("s_nop 1")
    for i in range(4):
        a(f"v_add_f32 v{16 + i}, v{16 + i}, v{20 + i}")
    a("v_lshlrev_b32 v10, 4, v4")
    a("s_lshl_b32 s37, s32, 7")
    a("v_add_u32 v11, s37, v10")
    a("ds_write_b128 v11, v[16:19] offset:64")
    a("s_waitcnt lgkmcnt(0)")
    a("s_barrier")
    for w in range(4):
        a(f"ds_read_b128 v[{32 + 4 * w}:{35 + 4 * w}], v10 offset:{64 + 128 * w}")
    a("s_and_b32 s42, s38, 0xffff0000")
    a("s_xor_b32 s43, s42, 0x80000000")
    a("s_not_b32 s44, s42")
    a("s_and_b32 s44, s44, 0xffff0000")
    a("s_cmp_ge_u32 s42, 0x80000000")
    a("s_cselect_b32 s42, s43, s44")
    a("v_mov_b32 v12, s42")
    a("v_mul_f32 v13, 0xbfb8aa3b, v12")
    a("v_exp_f32 v13, v13")
    a("s_nop 0")
    a("v_add_f32 v13, 1.0, v13")
    a("v_rcp_f32 v13, v13")
    a("s_nop 0")
    a("v_cvt_pk_bf16_f32 v13, v13, v13")
    a("v_lshlrev_b32 v13, 16, v13")
    a("s_mov_b32 s53, 0xffff0000")
    a("s_waitcnt vmcnt(0) lgkmcnt(0)")
    stamp(a, 3)
    for i in range(4):
        a(f"v_add_f32 v{32 + i}, v{32 + i}, v{36 + i}")
        a(f"v_add_f32 v{40 + i}, v{40 + i}, v{44 + i}")
        a(f"v_add_f32 v{32 + i}, v{32 + i}, v{40 + i}")
    for i in range(2):
        y0, y1 = 32 + 2 * i, 33 + 2 * i
        a(f"v_cvt_pk_bf16_f32 v48, v{y0}, v{y1}")
        a(f"v_lshlrev_b32 v{y0}, 16, v48")
        a(f"v_and_b32 v{y1}, s53, v48")
        a(f"v_mul_f32 v{y0}, v{y0}, v13")
        a(f"v_mul_f32 v{y1}, v{y1}, v13")
        a(f"v_cvt_pk_bf16_f32 v48, v{y0}, v{y1}")
        a(f"v_lshlrev_b32 v{y0}, 16, v48")
        a(f"v_and_b32 v{y1}, s53, v48")
        a(f"v_lshlrev_b32 v49, 16, v{26 + i}")
        a(f"v_and_b32 v50, s53, v{26 + i}")
        a(f"v_add_f32 v{y0}, v49, v{y0}")
        a(f"v_add_f32 v{y1}, v50, v{y1}")
        a(f"v_cvt_pk_bf16_f32 v48, v{y0}, v{y1}")
        a(f"v_lshlrev_b32 v{y0}, 16, v48")
        a(f"v_and_b32 v{y1}, s53, v48")
        a(f"v_lshlrev_b32 v49, 16, v{24 + i}")
        a(f"v_and_b32 v50, s53, v{24 + i}")
        a(f"v_add_f32 v{y0}, v49, v{y0}")
        a(f"v_add_f32 v{y1}, v50, v{y1}")
        a(f"v_cvt_pk_bf16_f32 v{52 + i}, v{y0}, v{y1}")
    a("s_lshl_b32 s39, s39, 10")
    a("s_add_u32 s39, s39, s41")
    a("v_lshlrev_b32 v9, 3, v4")
    a("v_add_u32 v9, s39, v9")
    a("v_cmp_gt_u32 vcc, 8, v0")
    a("s_and_saveexec_b64 s[46:47], vcc")
    a(f"s_cbranch_execz {name}_fin")
    a("buffer_store_dwordx2 v[52:53], v9, s[20:23], 0 offen")
    a.label(f"{name}_fin")
    a("s_mov_b64 exec, -1")
    stamp_flush(a, 5, 4, 10, 11)
    a.label(f"{name}_done")
    a("s_endpgm")
    return kernel_desc(name, 64, 64, 64)


HEADER = open(__file__.rsplit("/", 1)[0] + "/cdna_kernels/" + NAME + ".s.ref").read().split("; Override launch")[0]


def build(path, **opt):
    global STAMP
    STAMP = opt.get('stamp', 0)
    a = Asm()
    only = opt.get("only", 0)
    launches = [
        ("k1_kernel", 256, 512, 163840),
        ("k2_kernel", 256, 512, 163840),
        ("k3_kernel", 256, 512, 64),
        ("k4_kernel", NSL, 512, 18432),
        ("k5_kernel", 16, 256, 1024),
    ]
    if opt.get("fused", 1):
        launches = launches[:2] + [("kt_kernel", 256, 512, 4096 + 16384)]
    if only:
        launches = [launches[int(ch) - 1] for ch in str(only)]
    hdr = HEADER
    for (k, g, b, l) in launches:
        hdr += f"; @launch kernel={k} grid=({g},1,1) block=({b},1,1) lds={l}\n"
    a.raw('.amdgcn_target "amdgcn-amd-amdhsa--gfx950"')
    descs = []
    descs.append(gen_k1e(a, "k1_kernel", wt=opt.get("wt1", 1), PRO=opt.get("PRO1", 4), pf=opt.get("prefetch", 1), pace=opt.get("pace", 1), U1=opt.get("U1", 10), U2=opt.get("U2", 12), pfq=opt.get("pfq", 4)))
    descs.append(gen_k2c(a, "k2_kernel", LA=opt.get("LA", 1), wt=opt.get("wt2", 1), PRO=opt.get("PRO2", 3), rot=opt.get("rot", 1), BARPOS=opt.get("BARPOS", 1), RSTEP=opt.get("RSTEP", 1), wpf=opt.get("wpf", 5), wpf2=opt.get("wpf2", 16)))
    if opt.get("fused", 1):
        descs.append(gen_kt(a, "kt_kernel"))
    else:
        descs.append(gen_k3b(a, "k3_kernel", wpf=opt.get("wpf3", 0)))
        descs.append(gen_k4b(a, "k4_kernel"))
        descs.append(gen_k5(a, "k5_kernel"))
    open(path, "w").write(hdr + a.text() + "".join(descs))


if __name__ == "__main__":
    out = sys.argv[1] if len(sys.argv) > 1 else "cdna_kernels/" + NAME + ".s"
    opt = {}
    for kv in sys.argv[2:]:
        k, v = kv.split("=")
        opt[k] = int(v)
    build(out, **opt)
```

```python
import sys

NAME = "sequential_preLN__spectral_fnet__moe_arch_mod__prompt"

WS_AT = 0
WS_Y = 4 << 20
WS_CAND = 12 << 20
WS_CROW = (12 << 20) + 4096
WS_SLAB = (13 << 20)
WS_SIZE = 268435456

S, D, F = 2048, 512, 1792


class Asm:
    def __init__(self):
        self.lines = []

    def __call__(self, s):
        self.lines.append("    " + s)

    def label(self, l):
        self.lines.append(l + ":")

    def raw(self, s):
        self.lines.append(s)

    def text(self):
        return "\n".join(self.lines) + "\n"


class VM:
    def __init__(self, a):
        self.a = a
        self.q = []

    def issue(self, tag):
        self.q.append(tag)

    def wait(self, tag):
        idx = max(i for i, t in enumerate(self.q) if t == tag) if tag in self.q else None
        if idx is None:
            return
        n = len(self.q) - 1 - idx
        assert n <= 63
        self.a(f"s_waitcnt vmcnt({n})")
        self.q = self.q[idx + 1:]

    def wait_all(self):
        self.a("s_waitcnt vmcnt(0)")
        self.q = []


def srd(a, d, lo, hi, nbytes):
    a(f"s_mov_b32 s{d}, s{lo}")
    a(f"s_and_b32 s{d+1}, s{hi}, 0xffff")
    a(f"s_mov_b32 s{d+2}, {nbytes}")
    a(f"s_mov_b32 s{d+3}, 0x00020000")


def kernel_begin(a, name):
    a.raw(".text")
    a.raw(f".globl {name}")
    a.raw(".p2align 8")
    a.raw(f".type {name},@function")
    a.label(name)


def kernel_desc(name, vgpr, sgpr, accum):
    return f""".section .rodata,"a"
.p2align 6
.amdhsa_kernel {name}
  .amdhsa_next_free_vgpr {vgpr}
  .amdhsa_next_free_sgpr {102 if STAMP else sgpr}
  .amdhsa_accum_offset {accum}
  .amdhsa_group_segment_fixed_size 0
  .amdhsa_kernarg_size 104
  .amdhsa_user_sgpr_count 2
  .amdhsa_user_sgpr_kernarg_segment_ptr 1
  .amdhsa_system_sgpr_workgroup_id_x 1
  .amdhsa_float_denorm_mode_32 3
.end_amdhsa_kernel
"""


STAMP = 0
WS_STAMP = 16 << 20
_stamp_kid = {}


def stamp(a, i):
    if STAMP == 1:
        a(f"s_memrealtime s[{70 + 2 * i}:{71 + 2 * i}]")
    elif STAMP == 2:
        a(f"s_memtime s[{70 + 2 * i}:{71 + 2 * i}]")


def stamp_flush(a, kid, n, ws_lo, ws_hi, wave_sgpr="s32"):
    if not STAMP:
        return
    a("s_waitcnt vmcnt(0) lgkmcnt(0)")
    stamp(a, n)
    a(f"s_mov_b32 s92, s{ws_lo}")
    a(f"s_and_b32 s93, s{ws_hi}, 0xffff")
    a(f"s_mov_b32 s94, {WS_SIZE}")
    a("s_mov_b32 s95, 0x00020000")
    a(f"s_add_u32 s96, s2, {kid * 512}")
    a("s_lshl_b32 s96, s96, 4")
    a(f"s_add_u32 s96, s96, {wave_sgpr}")
    a("s_lshl_b32 s96, s96, 7")
    a(f"s_add_u32 s96, s96, {WS_STAMP}")
    a("s_waitcnt lgkmcnt(0)")
    a("v_mov_b32 v0, 0")
    for i in range(n + 1):
        a(f"v_mov_b32 v2, s{70 + 2 * i}")
        a(f"v_mov_b32 v3, s{71 + 2 * i}")
        a(f"buffer_store_dwordx2 v[2:3], v0, s[92:95], s96 offen offset:{8 * i}")
        a("s_nop 1")


DPP = "row_mask:0xf bank_mask:0xf"


def emit_perm32(a, dst, src, t):
    a(f"v_and_b32 v{dst}, 3, v{src}")
    a(f"v_lshrrev_b32 v{t}, 3, v{src}")
    a(f"v_lshl_or_b32 v{dst}, v{t}, 2, v{dst}")
    a(f"v_bfe_u32 v{t}, v{src}, 2, 1")
    a(f"v_lshl_or_b32 v{dst}, v{t}, 4, v{dst}")


def wave_allreduce(a, op, v, t):
    a("s_nop 1")
    a(f"{op}_dpp v{v}, v{v}, v{v} quad_perm:[1,0,3,2] {DPP}")
    a("s_nop 1")
    a(f"{op}_dpp v{v}, v{v}, v{v} quad_perm:[2,3,0,1] {DPP}")
    a("s_nop 1")
    a(f"{op}_dpp v{v}, v{v}, v{v} row_half_mirror {DPP}")
    a("s_nop 1")
    a(f"{op}_dpp v{v}, v{v}, v{v} row_mirror {DPP}")
    a(f"v_mov_b32 v{t}, v{v}")
    a("s_nop 1")
    a(f"v_permlane16_swap_b32 v{v}, v{t}")
    a("s_nop 1")
    a(f"{op} v{v}, v{v}, v{t}")
    a(f"v_mov_b32 v{t}, v{v}")
    a("s_nop 1")
    a(f"v_permlane32_swap_b32 v{v}, v{t}")
    a("s_nop 1")
    a(f"{op} v{v}, v{v}, v{t}")


def gen_k1(a, name, prefetch=True):
    kernel_begin(a, name)
    a("s_cmp_ge_u32 s2, 256")
    a(f"s_cbranch_scc1 {name}_done")
    stamp(a, 0)
    a("s_load_dwordx2 s[4:5], s[0:1], 0")
    a("s_load_dwordx4 s[8:11], s[0:1], 24")
    a("s_load_dwordx2 s[6:7], s[0:1], 96")
    a("s_load_dwordx4 s[36:39], s[0:1], 8")
    a("s_load_dwordx4 s[40:43], s[0:1], 56")
    a("s_load_dwordx2 s[44:45], s[0:1], 72")
    a("s_and_b32 s3, s2, 7")
    a("s_lshr_b32 s28, s2, 3")
    a("s_and_b32 s29, s28, 3")
    a("s_lshl_b32 s30, s3, 2")
    a("s_add_u32 s30, s30, s29")
    a("s_lshr_b32 s31, s28, 2")
    a("v_lshrrev_b32 v1, 6, v0")
    a("v_and_b32 v2, 63, v0")
    a("s_nop 0")
    a("v_readfirstlane_b32 s32, v1")
    a("v_lshrrev_b32 v3, 3, v2")
    a("v_and_b32 v4, 7, v2")
    a("s_waitcnt lgkmcnt(0)")
    stamp(a, 1)
    srd(a, 12, 4, 5, S * D * 2)
    a("s_cmp_ge_u32 s31, 4")
    a("s_cselect_b32 s8, s10, s8")
    a("s_cselect_b32 s9, s11, s9")
    srd(a, 16, 8, 9, D * D * 2)
    srd(a, 20, 6, 7, 4 << 20)
    a("s_lshl_b32 s33, s30, 6")
    a("s_lshl_b32 s34, s32, 3")
    a("s_add_u32 s33, s33, s34")
    a("s_lshl_b32 s33, s33, 10")
    a("v_lshlrev_b32 v5, 10, v3")
    a("v_lshl_add_u32 v5, v4, 4, v5")
    XR = 32
    for j in range(8):
        a(f"buffer_load_dwordx4 v[{XR+4*j}:{XR+4*j+3}], v5, s[12:15], s33 offen offset:{128*j}")
    a("v_lshrrev_b32 v6, 4, v2")
    a("v_xor_b32 v6, v6, v4")
    a("v_xor_b32 v7, 4, v6")
    a("v_lshlrev_b32 v8, 10, v3")
    a("v_lshl_add_u32 v6, v6, 4, v8")
    a("v_lshl_add_u32 v7, v7, 4, v8")
    a("s_cmp_ge_u32 s32, 4")
    a(f"s_cbranch_scc1 {name}_helper")
    a("s_and_b32 s35, s31, 3")
    a("s_lshl_b32 s35, s35, 7")
    a("s_lshl_b32 s34, s32, 5")
    a("s_add_u32 s35, s35, s34")
    a("s_lshl_b32 s35, s35, 10")
    a("s_mul_i32 s46, s32, 24576")
    a("s_add_u32 s46, s46, 65536")

    def dma_slot(kk):
        for i in range(4):
            a(f"s_add_u32 m0, s46, {(kk % 6) * 4096 + i * 1024}")
            a(f"s_add_u32 s47, s35, {i * 8192 + kk * 128}")
            a(f"buffer_load_dwordx4 v{6 + (i & 1)}, s[16:19], s47 offen lds")

    for kk in range(6):
        dma_slot(kk)
    a("s_waitcnt vmcnt(24)")
    a(f"s_branch {name}_ln")
    a.label(f"{name}_helper")
    npf = 0
    if prefetch:
        a("s_and_b32 s48, s3, 1")
        a("s_cmp_eq_u32 s48, 1")
        a("s_cselect_b32 s36, s38, s36")
        a("s_cselect_b32 s37, s39, s37")
        srd(a, 24, 36, 37, S * S * 2)
        a("s_lshr_b32 s48, s3, 2")
        a("s_lshl_b32 s48, s48, 10")
        a("s_lshl_b32 s49, s28, 5")
        a("s_add_u32 s48, s48, s49")
        a("s_sub_u32 s49, s32, 4")
        a("s_lshl_b32 s49, s49, 3")
        a("s_add_u32 s48, s48, s49")
        a("s_lshl_b32 s48, s48, 12")
        a("s_bfe_u32 s49, s3, 0x10001")
        a("s_lshl_b32 s49, s49, 11")
        a("s_add_u32 s48, s48, s49")
        a("v_lshrrev_b32 v9, 5, v2")
        a("v_lshlrev_b32 v9, 12, v9")
        a("v_and_b32 v129, 31, v2")
        a("v_lshl_add_u32 v9, v129, 6, v9")
        a("s_waitcnt vmcnt(0)")
        for i in range(4):
            a(f"s_add_u32 s49, s48, {i * 8192}")
            a(f"buffer_load_dword v{130 + i}, v9, s[24:27], s49 offen")
            npf += 1
    a(f"s_waitcnt vmcnt({npf})")
    a.label(f"{name}_ln")
    stamp(a, 2)
    a("s_mov_b32 s50, 0x3f803f80")
    a("s_mov_b32 s51, 0x00003f80")
    a("s_mov_b32 s52, 0x3f800000")
    a("s_mov_b32 s53, 0xffff0000")
    a("v_mov_b32 v16, 0")
    a("v_mov_b32 v17, 0")
    for j in range(32):
        a(f"v_dot2_f32_bf16 v{16 + (j & 1)}, v{XR + j}, s50, v{16 + (j & 1)}")
    a("s_nop 2")
    a("v_add_f32 v16, v16, v17")

    def red8(v):
        a("s_nop 1")
        a(f"v_add_f32_dpp v{v}, v{v}, v{v} quad_perm:[1,0,3,2] {DPP}")
        a("s_nop 1")
        a(f"v_add_f32_dpp v{v}, v{v}, v{v} quad_perm:[2,3,0,1] {DPP}")
        a("s_nop 1")
        a(f"v_add_f32_dpp v{v}, v{v}, v{v} row_half_mirror {DPP}")

    red8(16)
    a("v_mul_f32 v16, 0x3b000000, v16")
    a("v_cvt_pk_bf16_f32 v17, v16, v16")
    a("v_lshlrev_b32 v17, 16, v17")
    a("v_sub_f32 v18, 0, v17")
    a("v_sub_f32 v19, v16, v17")
    a("v_mov_b32 v20, 0")
    a("v_mov_b32 v21, 0")
    for j in range(32):
        t = 22 + 2 * (j & 3)
        a(f"v_dot2_f32_bf16 v{t}, v{XR + j}, s51, v18")
        a(f"v_dot2_f32_bf16 v{t + 1}, v{XR + j}, s52, v18")
        if j >= 1:
            tp = 22 + 2 * ((j - 1) & 3)
            a(f"v_fmac_f32 v20, v{tp}, v{tp}")
            a(f"v_fmac_f32 v21, v{tp + 1}, v{tp + 1}")
            a(f"v_cvt_pk_bf16_f32 v{XR + j - 1}, v{tp}, v{tp + 1}")
    tp = 22 + 2 * (31 & 3)
    a("s_nop 2")
    a(f"v_fmac_f32 v20, v{tp}, v{tp}")
    a(f"v_fmac_f32 v21, v{tp + 1}, v{tp + 1}")
    a(f"v_cvt_pk_bf16_f32 v{XR + 31}, v{tp}, v{tp + 1}")
    a("v_add_f32 v20, v20, v21")
    red8(20)
    a("v_mul_f32 v20, 0x3b000000, v20")
    a("v_fma_f32 v20, -v19, v19, v20")
    a("v_max_f32 v20, 0, v20")
    a("v_cvt_pk_bf16_f32 v20, v20, v20")
    a("v_lshlrev_b32 v20, 16, v20")
    a("v_add_f32 v20, 0x3727c5ac, v20")
    a("v_cvt_pk_bf16_f32 v20, v20, v20")
    a("v_lshlrev_b32 v20, 16, v20")
    a("v_sqrt_f32 v20, v20")
    a("s_nop 0")
    a("v_cvt_pk_bf16_f32 v20, v20, v20")
    a("v_lshlrev_b32 v20, 16, v20")
    a("v_rcp_f32 v20, v20")
    a("s_nop 0")
    for j in range(32):
        t = 22 + 2 * (j & 3)
        a(f"v_lshlrev_b32 v{t}, 16, v{XR + j}")
        a(f"v_and_b32 v{t + 1}, s53, v{XR + j}")
        a(f"v_mul_f32 v{t}, v{t}, v20")
        a(f"v_mul_f32 v{t + 1}, v{t + 1}, v20")
        a(f"v_cvt_pk_bf16_f32 v{XR + j}, v{t}, v{t + 1}")
    a("s_lshl_b32 s34, s32, 3")
    a("v_add_u32 v9, s34, v3")
    a("v_bfe_u32 v10, v9, 1, 3")
    a("v_xor_b32 v10, v10, v4")
    a("v_lshlrev_b32 v10, 4, v10")
    a("v_lshl_add_u32 v10, v9, 7, v10")
    for j in range(8):
        a(f"ds_write_b128 v10, v[{XR + 4 * j}:{XR + 4 * j + 3}] offset:{8192 * j}")
    stamp(a, 3)
    a("s_waitcnt lgkmcnt(0)")
    a("s_barrier")
    stamp(a, 4)
    a("s_cmp_ge_u32 s32, 4")
    a(f"s_cbranch_scc1 {name}_fin")
    a("v_and_b32 v9, 31, v2")
    emit_perm32(a, 10, 9, 11)
    a("v_bfe_u32 v11, v10, 1, 3")
    a("v_lshrrev_b32 v12, 5, v2")
    a("v_xor_b32 v11, v11, v12")
    a("v_lshlrev_b32 v11, 4, v11")
    a("v_lshl_add_u32 v11, v10, 7, v11")
    for c in range(4):
        a(f"v_xor_b32 v{12 + c}, {c * 32}, v11")
        a(f"v_add_u32 v{16 + c}, s46, v{12 + c}")
    ACC = 64
    FR = [96, 108, 120]
    for i in range(32):
        a(f"v_mov_b32 v{ACC + i}, 0")
    units = [(kk, c) for kk in range(8) for c in range(4)]
    vq = [kk for kk in range(6) for _ in range(4)]

    def wait_slot(kk):
        nonlocal vq
        if kk in vq:
            idx = max(i for i, t in enumerate(vq) if t == kk)
            a(f"s_waitcnt vmcnt({len(vq) - 1 - idx})")
            vq = vq[idx + 1:]

    def reads(n):
        kk, c = units[n]
        f = FR[n % 3]
        if c == 0:
            wait_slot(kk)
        a(f"ds_read_b128 v[{f}:{f + 3}], v{16 + c} offset:{(kk % 6) * 4096}")
        a(f"ds_read_b128 v[{f + 4}:{f + 7}], v{12 + c} offset:{kk * 8192}")
        a(f"ds_read_b128 v[{f + 8}:{f + 11}], v{12 + c} offset:{kk * 8192 + 4096}")

    reads(0)
    reads(1)
    for n in range(len(units)):
        kk, c = units[n]
        if n + 2 < len(units):
            reads(n + 2)
            a("s_waitcnt lgkmcnt(6)")
        elif n + 1 < len(units):
            a("s_waitcnt lgkmcnt(3)")
        else:
            a("s_waitcnt lgkmcnt(0)")
        f = FR[n % 3]
        a(f"v_mfma_f32_32x32x16_bf16 v[{ACC}:{ACC + 15}], v[{f + 4}:{f + 7}], v[{f}:{f + 3}], v[{ACC}:{ACC + 15}]")
        a(f"v_mfma_f32_32x32x16_bf16 v[{ACC + 16}:{ACC + 31}], v[{f + 8}:{f + 11}], v[{f}:{f + 3}], v[{ACC + 16}:{ACC + 31}]")
        if c == 3 and kk + 6 < 8:
            dma_slot(kk + 6)
            vq += [kk + 6] * 4
    stamp(a, 5)
    a("s_lshl_b32 s34, s31, 2")
    a("s_add_u32 s34, s34, s32")
    a("s_lshl_b32 s34, s34, 6")
    a("s_lshl_b32 s33, s30, 1")
    a("s_add_u32 s34, s34, s33")
    a("s_lshl_b32 s34, s34, 11")
    a("v_lshlrev_b32 v9, 4, v2")
    a("s_nop 7")
    a("s_nop 3")
    for sh in range(2):
        for i in range(8):
            a(f"v_cvt_pk_bf16_f32 v{32 + 8 * sh + i}, v{ACC + 16 * sh + 2 * i}, v{ACC + 16 * sh + 2 * i + 1}")
    for sh in range(2):
        for u in range(2):
            r = 32 + 8 * sh + 4 * u
            a(f"buffer_store_dwordx4 v[{r}:{r + 3}], v9, s[20:23], s34 offen offset:{sh * 2048 + u * 1024}")
    a.label(f"{name}_fin")
    stamp_flush(a, 1, 6, 6, 7)
    a.label(f"{name}_done")
    a("s_endpgm")
    return kernel_desc(name, 136, 64, 136)


def gen_k2(a, name, NS=9, ED=3, nomfma=0, noload=0, spread=0, noC=0, noE=0):
    kernel_begin(a, name)
    a("s_cmp_ge_u32 s2, 256")
    a(f"s_cbranch_scc1 {name}_done")
    stamp(a, 0)
    a("s_load_dwordx4 s[4:7], s[0:1], 8")
    a("s_load_dwordx2 s[8:9], s[0:1], 96")
    a("s_and_b32 s3, s2, 7")
    a("s_lshr_b32 s28, s2, 3")
    a("s_and_b32 s29, s3, 1")
    a("s_lshr_b32 s30, s3, 1")
    a("s_lshl_b32 s30, s30, 2")
    a("s_and_b32 s31, s28, 3")
    a("s_add_u32 s30, s30, s31")
    a("s_lshr_b32 s31, s28, 2")
    a("v_lshrrev_b32 v200, 6, v0")
    a("v_and_b32 v201, 63, v0")
    a("s_nop 0")
    a("v_readfirstlane_b32 s32, v200")
    a("v_lshrrev_b32 v202, 3, v201")
    a("v_and_b32 v203, 7, v201")
    a("v_lshrrev_b32 v204, 4, v201")
    a("v_xor_b32 v204, v204, v203")
    a("v_xor_b32 v205, 4, v204")
    a("v_lshlrev_b32 v206, 12, v202")
    a("v_lshl_add_u32 v204, v204, 4, v206")
    a("v_lshl_add_u32 v205, v205, 4, v206")
    a("v_lshlrev_b32 v206, 4, v201")
    a("s_waitcnt lgkmcnt(0)")
    stamp(a, 1)
    a("s_cmp_eq_u32 s29, 1")
    a("s_cselect_b32 s4, s6, s4")
    a("s_cselect_b32 s5, s7, s5")
    srd(a, 12, 4, 5, S * S * 2)
    srd(a, 16, 8, 9, 8 << 20)
    a("s_lshl_b32 s35, s30, 19")
    a("s_lshl_b32 s34, s32, 10")
    a("s_add_u32 s35, s35, s34")
    for j in range(4):
        a(f"s_add_u32 s34, s32, {j}")
        a("s_and_b32 s34, s34, 3")
        a(f"s_mov_b32 s{52 + j}, s34")
        a("s_lshl_b32 s34, s34, 17")
        a(f"s_add_u32 s{40 + j}, s35, s34")
    a("s_lshl_b32 s36, s29, 4")
    a("s_lshl_b32 s34, s31, 1")
    a("s_add_u32 s36, s36, s34")
    a("s_lshl_b32 s36, s36, 6")
    a("s_lshl_b32 s34, s32, 4")
    a("s_add_u32 s36, s36, s34")
    a("s_lshl_b32 s36, s36, 11")
    a("s_add_u32 s37, s36, 131072")
    RING = NS * 4096
    a(f"s_mul_i32 s46, s32, {RING}")
    vm = VM(a)

    pend = []

    def dma_one(n, i):
        kk, j = n // 4, n % 4
        if noload or noC:
            return
        a(f"s_add_u32 m0, s46, {(n % NS) * 4096 + i * 1024}")
        a(f"s_add_u32 s47, s{40 + j}, {(i * 8) * 4096 + kk * 128}")
        a(f"buffer_load_dwordx4 v{204 + (i & 1)}, s[12:15], s47 offen lds")
        vm.issue(("C", n))

    def e_one(kk, et2, c):
        if noload or noE:
            return
        st = kk % ED
        r = st * 32 + et2 * 16 + c * 4
        a(f"s_add_u32 s48, s{36 + et2}, {kk * 4096}")
        a(f"buffer_load_dwordx4 a[{r}:{r + 3}], v206, s[16:19], s48 offen offset:{c * 1024}")
        vm.issue(("E", kk))

    def dma_slot(n, defer=False):
        for i in range(4):
            if defer:
                pend.append(lambda n=n, i=i: dma_one(n, i))
            else:
                dma_one(n, i)

    def e_loads(kk, defer=False):
        for et2 in range(2):
            for c in range(4):
                if defer:
                    pend.append(lambda kk=kk, et2=et2, c=c: e_one(kk, et2, c))
                else:
                    e_one(kk, et2, c)

    def flush_pend(pred=None, maxn=None):
        cnt = 0
        while pend and (maxn is None or cnt < maxn):
            pend.pop(0)()
            cnt += 1

    nslot_issued = 0
    for kk in range(ED):
        e_loads(kk)
        for tt in range(4):
            if nslot_issued < NS:
                dma_slot(nslot_issued)
                nslot_issued += 1
    while nslot_issued < NS:
        dma_slot(nslot_issued)
        nslot_issued += 1
    stamp(a, 2)
    a("v_and_b32 v207, 31, v201")
    a("v_bfe_u32 v208, v207, 1, 3")
    a("v_lshrrev_b32 v209, 5, v201")
    a("v_lshlrev_b32 v209, 1, v209")
    a("v_xor_b32 v208, v208, v209")
    a("v_lshlrev_b32 v208, 4, v208")
    a("v_lshl_add_u32 v208, v207, 7, v208")
    for c in range(4):
        x = ((c >> 1) * 4 + (c & 1)) << 4
        a(f"v_xor_b32 v{210 + c}, {x}, v208")
        a(f"v_add_u32 v{210 + c}, s46, v{210 + c}")
    for i in range(128):
        a(f"v_mov_b32 v{i}, 0")
    def pend_has(tag):
        return any(getattr(p, '__defaults__', (None,))[0] == tag[1] and len(p.__defaults__) == (2 if tag[0] == 'C' else 3) for p in pend)

    units = [(n, c) for n in range(32) for c in range(4)]
    NF = 6
    LOOKAHEAD = 4

    def reads(un):
        n, c = units[un]
        if c == 0:
            assert noload or noC or vm.q.count(("C", n)) == 4 or ("C", n) not in vm.q and n < nslot_issued and not pend_has(("C", n))
            vm.wait(("C", n))
        f = 128 + 4 * (un % NF)
        a(f"ds_read_b128 v[{f}:{f + 3}], v{210 + c} offset:{(n % NS) * 4096}")

    for un in range(LOOKAHEAD):
        reads(un)
    for un in range(len(units)):
        n, c = units[un]
        kk, j = n // 4, n % 4
        if un + LOOKAHEAD < len(units):
            reads(un + LOOKAHEAD)
            a(f"s_waitcnt lgkmcnt({LOOKAHEAD})")
        else:
            a(f"s_waitcnt lgkmcnt({len(units) - 1 - un})")
        if j == 0 and c == 0:
            assert not pend_has(("E", kk))
            vm.wait(("E", kk))
        f = 128 + 4 * (un % NF)
        st = kk % ED
        if un == 0:
            stamp(a, 3)
        if un == 64:
            stamp(a, 4)
        for et2 in range(2):
            acc = (j * 2 + et2) * 16
            r = st * 32 + et2 * 16 + c * 4
            if not nomfma:
                a(f"v_mfma_f32_32x32x16_bf16 v[{acc}:{acc + 15}], a[{r}:{r + 3}], v[{f}:{f + 3}], v[{acc}:{acc + 15}]")
            if spread:
                flush_pend(maxn=1)
        if c == 3:
            if nslot_issued < 32:
                dma_slot(nslot_issued, defer=bool(spread))
                nslot_issued += 1
            if j == 3 and kk + ED < 8:
                e_loads(kk + ED, defer=bool(spread))
    stamp(a, 5)
    a("s_barrier")
    stamp(a, 6)
    for j in range(1, 4):
        a(f"s_mul_i32 s34, s{52 + j}, 24576")
        a(f"s_add_u32 s34, s34, {(j - 1) * 8192}")
        a(f"v_add_u32 v{214 + j}, s34, v206")
    a("s_mul_i32 s34, s32, 24576")
    a("v_add_u32 v214, s34, v206")
    a("s_nop 7")
    for j in range(1, 4):
        for q in range(8):
            r = j * 32 + 4 * q
            a(f"ds_write_b128 v{214 + j}, v[{r}:{r + 3}] offset:{q * 1024}")
    a("s_waitcnt lgkmcnt(0)")
    a("s_barrier")
    stamp(a, 7)
    for j in range(1, 4):
        for q in range(8):
            r = j * 32 + 4 * q
            a(f"ds_read_b128 v[{r}:{r + 3}], v214 offset:{(j - 1) * 8192 + q * 1024}")
    a("s_lshl_b32 s34, s30, 7")
    a("s_lshl_b32 s33, s32, 5")
    a("s_add_u32 s34, s34, s33")
    a("s_lshl_b32 s34, s34, 10")
    a("s_lshl_b32 s33, s31, 7")
    a("s_add_u32 s34, s34, s33")
    a("s_lshl_b32 s33, s29, 21")
    a("s_add_u32 s34, s34, s33")
    a(f"s_add_u32 s34, s34, {WS_Y}")
    a("v_lshrrev_b32 v209, 5, v201")
    a("v_lshlrev_b32 v209, 5, v209")
    a("v_lshl_add_u32 v209, v207, 10, v209")
    for j in range(1, 4):
        a(f"s_waitcnt lgkmcnt({min(15, (3 - j) * 8)})")
        for i in range(32):
            a(f"v_add_f32 v{i}, v{i}, v{j * 32 + i}")
    for i in range(16):
        a(f"v_cvt_pk_bf16_f32 v{128 + i}, v{2 * i}, v{2 * i + 1}")
    for et2 in range(2):
        for hh in range(2):
            r = 128 + et2 * 8 + hh * 4
            a(f"buffer_store_dwordx4 v[{r}:{r + 3}], v209, s[16:19], s34 offen offset:{et2 * 64 + hh * 16}")
    stamp_flush(a, 2, 8, 8, 9)
    a.label(f"{name}_done")
    a("s_endpgm")
    return kernel_desc(name, 224 + 32 * ED, 64, 224)


WS_P = 4 << 20


def gen_k2b(a, name, NSTG=5, LA=2, nomfma=0, noread=0, nodma=0, nostore=0):
    kernel_begin(a, name)
    a("s_cmp_ge_u32 s2, 256")
    a(f"s_cbranch_scc1 {name}_done")
    stamp(a, 0)
    a("s_load_dwordx4 s[4:7], s[0:1], 8")
    a("s_load_dwordx2 s[8:9], s[0:1], 96")
    a("s_and_b32 s3, s2, 7")
    a("s_lshr_b32 s28, s2, 3")
    a("s_and_b32 s29, s3, 1")
    a("s_bfe_u32 s27, s3, 0x10001")
    a("s_lshr_b32 s30, s3, 2")
    a("s_lshl_b32 s30, s30, 3")
    a("s_and_b32 s31, s28, 7")
    a("s_add_u32 s30, s30, s31")
    a("s_lshr_b32 s31, s28, 3")
    a("v_lshrrev_b32 v1, 6, v0")
    a("v_and_b32 v2, 63, v0")
    a("s_nop 0")
    a("v_readfirstlane_b32 s32, v1")
    a("v_lshlrev_b32 v3, 4, v2")
    a("s_waitcnt lgkmcnt(0)")
    stamp(a, 1)
    a("s_cmp_eq_u32 s29, 1")
    a("s_cselect_b32 s4, s6, s4")
    a("s_cselect_b32 s5, s7, s5")
    srd(a, 12, 4, 5, S * S * 2)
    srd(a, 16, 8, 9, 12 << 20)
    a("s_cmp_lt_u32 s32, 4")
    a(f"s_cbranch_scc1 {name}_cons")
    a("s_sub_u32 s33, s32, 4")
    a("v_lshrrev_b32 v4, 3, v2")
    a("v_and_b32 v5, 7, v2")
    a("v_lshrrev_b32 v6, 4, v2")
    a("v_xor_b32 v6, v6, v5")
    a("v_xor_b32 v7, 4, v6")
    a("v_lshlrev_b32 v4, 12, v4")
    a("v_lshl_add_u32 v6, v6, 4, v4")
    a("v_lshl_add_u32 v7, v7, 4, v4")
    a("v_mov_b32 v8, v6")
    a(f"v_add_u32 v9, {32768 - 1024}, v7")
    a(f"v_add_u32 v10, {2 * (32768 - 1024)}, v6")
    a(f"v_add_u32 v11, {3 * (32768 - 1024)}, v7")
    a("s_lshl_b32 s35, s30, 19")
    a("s_lshl_b32 s34, s33, 17")
    a("s_add_u32 s35, s35, s34")
    a("s_lshl_b32 s34, s27, 11")
    a("s_add_u32 s35, s35, s34")
    a("s_lshl_b32 s36, s29, 4")
    a("s_lshl_b32 s34, s31, 2")
    a("s_add_u32 s36, s36, s34")
    a("s_add_u32 s36, s36, s33")
    a("s_lshl_b32 s36, s36, 6")
    a("s_lshl_b32 s34, s27, 5")
    a("s_add_u32 s36, s36, s34")
    a("s_lshl_b32 s36, s36, 11")
    a("s_lshl_b32 s37, s33, 12")

    def load_stage(s):
        slot = (s % NSTG) * 32768
        a(f"s_add_u32 m0, s37, {slot}")
        a(f"s_add_u32 s38, s35, {s * 128}")
        for i in range(4):
            if not nodma:
                a(f"buffer_load_dwordx4 v{8 + i}, s[12:15], s38 offen offset:{i * 1024} lds")
        a(f"s_add_u32 m0, s37, {slot + 16384}")
        a(f"s_add_u32 s39, s36, {s * 4096}")
        for c in range(4):
            if not nodma:
                a(f"buffer_load_dwordx4 v3, s[16:19], s39 offen offset:{c * 1024} lds")

    NST = 16
    for s in range(NSTG - 1):
        load_stage(s)
    stamp(a, 2)
    for s in range(NST):
        issued = min(s + NSTG - 2, NST - 1)
        a(f"s_waitcnt vmcnt({(issued - s) * 8})")
        a("s_barrier")
        if s + NSTG - 1 < NST:
            load_stage(s + NSTG - 1)
    stamp(a, 5)
    a(f"s_branch {name}_fin")
    a.label(f"{name}_cons")
    a("s_and_b32 s33, s32, 1")
    a("s_lshr_b32 s34, s32, 1")
    a("v_and_b32 v4, 31, v2")
    a("v_bfe_u32 v5, v4, 1, 3")
    a("v_lshrrev_b32 v6, 5, v2")
    a("v_lshlrev_b32 v6, 1, v6")
    a("v_xor_b32 v5, v5, v6")
    a("v_lshlrev_b32 v5, 4, v5")
    a("v_lshl_add_u32 v5, v4, 7, v5")
    a("s_lshl_b32 s35, s33, 13")
    a("s_lshl_b32 s36, s34, 13")
    a("s_add_u32 s36, s36, 16384")
    for g in range(3):
        for c in range(4):
            x = ((c >> 1) * 4 + (c & 1)) << 4
            a(f"v_xor_b32 v{8 + 5 * g + c}, {x}, v5")
            a(f"v_add_u32 v{8 + 5 * g + c}, s35, v{8 + 5 * g + c}")
            if g:
                a(f"v_add_u32 v{8 + 5 * g + c}, {65536 * g}, v{8 + 5 * g + c}")
        a(f"v_add_u32 v{8 + 5 * g + 4}, s36, v3")
        if g:
            a(f"v_add_u32 v{8 + 5 * g + 4}, {65536 * g}, v{8 + 5 * g + 4}")
    ACC = 64
    FB = 128
    for i in range(64):
        a(f"v_mov_b32 v{ACC + i}, 0")
    NU = NST * 4

    def reads(u):
        s, c = u // 4, u % 4
        slot = s % NSTG
        g, so = slot // 2, (slot % 2) * 32768
        f = FB + 16 * (u % (LA + 1))
        if c == 0:
            a("s_waitcnt lgkmcnt(0)")
            a("s_barrier")
            if s == 0:
                stamp(a, 3)
            if s == 8:
                stamp(a, 4)
        if noread:
            return
        a(f"ds_read_b128 v[{f}:{f + 3}], v{8 + 5 * g + c} offset:{so}")
        a(f"ds_read_b128 v[{f + 8}:{f + 11}], v{8 + 5 * g + 4} offset:{so + c * 1024}")
        a(f"ds_read_b128 v[{f + 4}:{f + 7}], v{8 + 5 * g + c} offset:{so + 4096}")
        a(f"ds_read_b128 v[{f + 12}:{f + 15}], v{8 + 5 * g + 4} offset:{so + 4096 + c * 1024}")

    for u in range(LA):
        reads(u)
    for u in range(NU):
        if u + LA < NU:
            reads(u + LA)
        nxt = min(u + LA, NU - 1)
        cnt = 0
        for uu in range(u + 1, nxt + 1):
            cnt += 4
        a(f"s_waitcnt lgkmcnt({min(cnt, 15)})")
        f = FB + 16 * (u % (LA + 1))
        for et in range(2):
            for tt in range(2):
                acc = ACC + (et * 2 + tt) * 16
                if not nomfma:
                    a(f"v_mfma_f32_32x32x16_bf16 v[{acc}:{acc + 15}], v[{f + 8 + 4 * et}:{f + 11 + 4 * et}], v[{f + 4 * tt}:{f + 4 * tt + 3}], v[{acc}:{acc + 15}]")
    stamp(a, 5)
    a("s_lshl_b32 s35, s30, 7")
    a("s_lshl_b32 s36, s33, 6")
    a("s_add_u32 s35, s35, s36")
    a("s_lshl_b32 s35, s35, 10")
    a("s_lshl_b32 s36, s31, 8")
    a("s_add_u32 s35, s35, s36")
    a("s_lshl_b32 s36, s34, 7")
    a("s_add_u32 s35, s35, s36")
    a("s_lshl_b32 s36, s29, 1")
    a("s_add_u32 s36, s36, s27")
    a("s_lshl_b32 s36, s36, 21")
    a("s_add_u32 s35, s35, s36")
    a(f"s_add_u32 s35, s35, {WS_P}")
    a("s_add_u32 s36, s35, 32768")
    a("v_lshrrev_b32 v6, 5, v2")
    a("v_lshlrev_b32 v6, 5, v6")
    a("v_lshl_add_u32 v6, v4, 10, v6")
    a("s_nop 4")
    for et in range(2):
        for tt in range(2):
            acc = ACC + (et * 2 + tt) * 16
            o = 24 + (et * 2 + tt) * 8
            for i in range(8):
                a(f"v_cvt_pk_bf16_f32 v{o + i}, v{acc + 2 * i}, v{acc + 2 * i + 1}")
            for hh in range(2):
                if not nostore:
                    a(f"buffer_store_dwordx4 v[{o + 4 * hh}:{o + 4 * hh + 3}], v6, s[16:19], s{35 + tt} offen offset:{et * 64 + hh * 16}")
    a.label(f"{name}_fin")
    stamp_flush(a, 2, 6, 8, 9)
    a.label(f"{name}_done")
    a("s_endpgm")
    nv = FB + 16 * (LA + 1)
    return kernel_desc(name, nv, 64, nv)


def emit_perm2(a, dst, src, t):
    a(f"v_and_b32 v{dst}, 3, v{src}")
    a(f"v_bfe_u32 v{t}, v{src}, 2, 2")
    a(f"v_lshl_or_b32 v{dst}, v{t}, 3, v{dst}")
    a(f"v_bfe_u32 v{t}, v{src}, 4, 1")
    a(f"v_lshl_or_b32 v{dst}, v{t}, 2, v{dst}")


def gen_k1b(a, name, prefetch=1, wt=0, nostats=0, nocs=0, PRO=6, pfpos=2, rot=1):
    NSTG, SLOT = 6, 24576
    STATS = NSTG * SLOT
    kernel_begin(a, name)
    a("s_cmp_ge_u32 s2, 256")
    a(f"s_cbranch_scc1 {name}_done")
    stamp(a, 0)
    a("s_load_dwordx2 s[4:5], s[0:1], 0")
    a("s_load_dwordx4 s[8:11], s[0:1], 24")
    a("s_load_dwordx2 s[6:7], s[0:1], 96")
    a("s_load_dwordx4 s[40:43], s[0:1], 8")
    a("s_and_b32 s3, s2, 7")
    a("s_lshr_b32 s28, s2, 3")
    a("s_and_b32 s29, s28, 3")
    a("s_lshl_b32 s30, s3, 2")
    a("s_add_u32 s30, s30, s29")
    a("s_lshr_b32 s31, s28, 2")
    a("v_lshrrev_b32 v1, 6, v0")
    a("v_and_b32 v2, 63, v0")
    a("s_nop 0")
    a("v_readfirstlane_b32 s32, v1")
    a("s_mov_b32 s53, 0xffff0000")
    a("s_cmp_lt_u32 s32, 4")
    a(f"s_cbranch_scc1 {name}_cons")
    a("s_sub_u32 s33, s32, 4")
    a("v_lshrrev_b32 v3, 3, v2")
    a("v_and_b32 v4, 7, v2")
    a("v_lshrrev_b32 v6, 4, v2")
    a("v_xor_b32 v6, v6, v4")
    a("v_xor_b32 v7, 4, v6")
    a("v_lshlrev_b32 v3, 10, v3")
    a("v_lshl_add_u32 v8, v6, 4, v3")
    a("v_lshl_add_u32 v7, v7, 4, v3")
    a(f"v_add_u32 v9, {8192 - 1024}, v7")
    a(f"v_add_u32 v10, {2 * (8192 - 1024)}, v8")
    a(f"v_add_u32 v11, {3 * (8192 - 1024)}, v7")
    a("s_lshl_b32 s35, s30, 6")
    a("s_lshl_b32 s34, s33, 4")
    a("s_add_u32 s35, s35, s34")
    a("s_lshl_b32 s35, s35, 10")
    a("s_and_b32 s36, s31, 3")
    a("s_lshl_b32 s36, s36, 7")
    a("s_lshl_b32 s34, s33, 5")
    a("s_add_u32 s36, s36, s34")
    a("s_lshl_b32 s36, s36, 10")
    a("s_lshl_b32 s37, s33, 11")
    a("s_lshl_b32 s38, s33, 12")
    a("s_add_u32 s38, s38, 8192")
    a("s_lshl_b32 s34, s29, 1")
    a("s_add_u32 s34, s34, s31")
    for kk in range(8):
        if rot:
            a(f"s_add_u32 s39, s34, {kk}")
            a("s_and_b32 s39, s39, 7")
            a(f"s_lshl_b32 s{54 + kk}, s39, 7")
        else:
            a(f"s_mov_b32 s{54 + kk}, {kk * 128}")
    a("s_waitcnt lgkmcnt(0)")
    stamp(a, 1)
    srd(a, 12, 4, 5, S * D * 2)
    a("s_cmp_ge_u32 s31, 4")
    a("s_cselect_b32 s8, s10, s8")
    a("s_cselect_b32 s9, s11, s9")
    srd(a, 16, 8, 9, D * D * 2)

    def load_stage(kk):
        slot = (kk % NSTG) * SLOT
        a(f"s_add_u32 m0, s37, {slot}")
        a(f"s_add_u32 s39, s35, s{54 + kk}")
        for i in range(2):
            a(f"buffer_load_dwordx4 v{8 + i}, s[12:15], s39 offen offset:{i * 1024} lds")
        a(f"s_add_u32 m0, s38, {slot}")
        a(f"s_add_u32 s39, s36, s{54 + kk}")
        for i in range(4):
            a(f"buffer_load_dwordx4 v{8 + i}, s[16:19], s39 offen offset:{i * 1024} lds")

    for kk in range(PRO):
        load_stage(kk)
    stamp(a, 2)
    a("v_lshrrev_b32 v12, 2, v2")
    a("v_lshlrev_b32 v12, 7, v12")
    a("v_and_b32 v13, 3, v2")
    a("v_lshl_add_u32 v12, v13, 5, v12")
    a("v_add_u32 v12, s37, v12")
    a(f"v_add_u32 v13, {3 * SLOT}, v12")
    a("v_mov_b32 v14, 0")
    a("v_mov_b32 v15, 0")
    a("v_mov_b32 v16, 0")
    a("v_mov_b32 v17, 0")
    issued = PRO
    npf = 0

    def emit_prefetch(vb):
        a("s_and_b32 s48, s3, 1")
        a("s_cmp_eq_u32 s48, 1")
        a("s_cselect_b32 s40, s42, s40")
        a("s_cselect_b32 s41, s43, s41")
        srd(a, 24, 40, 41, S * S * 2)
        a("s_lshr_b32 s48, s3, 2")
        a("s_lshl_b32 s48, s48, 10")
        a("s_lshl_b32 s49, s28, 5")
        a("s_add_u32 s48, s48, s49")
        a("s_and_b32 s49, s32, 3")
        a("s_lshl_b32 s49, s49, 3")
        a("s_add_u32 s48, s48, s49")
        a("s_lshl_b32 s48, s48, 12")
        a("s_bfe_u32 s49, s3, 0x10001")
        a("s_lshl_b32 s49, s49, 11")
        a("s_add_u32 s48, s48, s49")
        a(f"v_lshrrev_b32 v{vb}, 4, v2")
        a(f"v_lshlrev_b32 v{vb}, 12, v{vb}")
        a(f"v_and_b32 v{vb + 1}, 15, v2")
        a(f"v_lshl_add_u32 v{vb}, v{vb + 1}, 7, v{vb}")
        for i in range(2):
            a(f"s_add_u32 s49, s48, {i * 16384}")
            a(f"buffer_load_dword v{vb + 2 + i}, v{vb}, s[24:27], s49 offen")

    vq = [k for k in range(PRO) for _ in range(6)]
    for kk in range(8):
        idx = max(i for i, t in enumerate(vq) if t == kk)
        a(f"s_waitcnt vmcnt({len(vq) - 1 - idx})")
        vq = vq[idx + 1:]
        slot = kk % NSTG
        ar, so = (12, slot * SLOT) if slot < 3 else (13, (slot - 3) * SLOT)
        a(f"ds_read_b128 v[24:27], v{ar} offset:{so}")
        a(f"ds_read_b128 v[28:31], v{ar} offset:{so + 16}")
        a("s_barrier")
        a("s_waitcnt lgkmcnt(0)")
        n_new = 0
        while issued < 8 and issued - NSTG < kk and n_new < 2:
            load_stage(issued)
            vq += [issued] * 6
            issued += 1
            n_new += 1
        if prefetch and pfpos == kk:
            emit_prefetch(40)
            vq += ["pf"] * 2
        if kk == 0:
            a("v_lshlrev_b32 v18, 16, v24")
            a("s_nop 1")
            a(f"v_mov_b32_dpp v18, v18 quad_perm:[0,0,0,0] {DPP}")
        for r in range(0 if nostats else 8):
            t = 32 + 2 * (r & 3)
            a(f"v_lshlrev_b32 v{t}, 16, v{24 + r}")
            a(f"v_and_b32 v{t + 1}, s53, v{24 + r}")
            a(f"v_sub_f32 v{t}, v{t}, v18")
            a(f"v_sub_f32 v{t + 1}, v{t + 1}, v18")
            a(f"v_add_f32 v14, v14, v{t}")
            a(f"v_add_f32 v15, v15, v{t + 1}")
            a(f"v_fmac_f32 v16, v{t}, v{t}")
            a(f"v_fmac_f32 v17, v{t + 1}, v{t + 1}")
    a("v_add_f32 v14, v14, v15")
    a("v_add_f32 v16, v16, v17")
    for qp in ("[1,0,3,2]", "[2,3,0,1]"):
        a("s_nop 1")
        a(f"v_add_f32_dpp v14, v14, v14 quad_perm:{qp} {DPP}")
        a(f"v_add_f32_dpp v16, v16, v16 quad_perm:{qp} {DPP}")
    a("v_mul_f32 v14, 0x3b000000, v14")
    a("v_mul_f32 v16, 0x3b000000, v16")
    a("v_fma_f32 v16, -v14, v14, v16")
    a("v_max_f32 v16, 0, v16")
    a("v_add_f32 v14, v14, v18")
    a("v_cvt_pk_bf16_f32 v14, v14, v14")
    a("v_lshlrev_b32 v14, 16, v14")
    a("v_cvt_pk_bf16_f32 v16, v16, v16")
    a("v_lshlrev_b32 v16, 16, v16")
    a("v_add_f32 v16, 0x3727c5ac, v16")
    a("v_cvt_pk_bf16_f32 v16, v16, v16")
    a("v_lshlrev_b32 v16, 16, v16")
    a("v_sqrt_f32 v16, v16")
    a("s_nop 0")
    a("v_cvt_pk_bf16_f32 v16, v16, v16")
    a("v_lshlrev_b32 v16, 16, v16")
    a("v_rcp_f32 v16, v16")
    a("v_lshrrev_b32 v19, 2, v2")
    a("v_lshlrev_b32 v19, 2, v19")
    a("s_lshl_b32 s34, s33, 6")
    a(f"s_add_u32 s34, s34, {STATS}")
    a("v_add_u32 v19, s34, v19")
    a("ds_write_b32 v19, v14")
    a("ds_write_b32 v19, v16 offset:256")
    a("s_waitcnt lgkmcnt(0)")
    stamp(a, 3)
    a("s_barrier")
    a(f"s_branch {name}_fin")
    a.label(f"{name}_cons")
    a("v_and_b32 v9, 31, v2")
    a("v_lshrrev_b32 v5, 5, v2")
    emit_perm32(a, 10, 9, 11)
    a("v_bfe_u32 v11, v10, 1, 3")
    a("v_xor_b32 v11, v11, v5")
    a("v_lshlrev_b32 v11, 4, v11")
    a("v_lshl_add_u32 v11, v10, 7, v11")
    emit_perm2(a, 10, 9, 12)
    a("v_bfe_u32 v12, v10, 1, 3")
    a("v_xor_b32 v12, v12, v5")
    a("v_lshlrev_b32 v12, 4, v12")
    a("v_lshl_add_u32 v12, v10, 7, v12")
    a("s_lshl_b32 s34, s32, 12")
    a("s_add_u32 s34, s34, 8192")
    a("v_add_u32 v12, s34, v12")
    for g in range(3):
        for c in range(4):
            a(f"v_xor_b32 v{16 + 8 * g + c}, {c * 32}, v11")
            a(f"v_xor_b32 v{20 + 8 * g + c}, {c * 32}, v12")
            if g:
                a(f"v_add_u32 v{16 + 8 * g + c}, {2 * SLOT * g}, v{16 + 8 * g + c}")
                a(f"v_add_u32 v{20 + 8 * g + c}, {2 * SLOT * g}, v{20 + 8 * g + c}")
    ACC = 64
    FR = [96, 108, 120]
    for i in range(32):
        a(f"v_mov_b32 v{ACC + i}, 0")
    a("v_mov_b32 v40, 0")
    a("v_mov_b32 v41, 0")
    a("s_mov_b32 s50, 0x3f803f80")
    a("s_waitcnt lgkmcnt(0)")
    stamp(a, 1)
    srd(a, 20, 6, 7, 4 << 20)
    if prefetch and pfpos == -1:
        emit_prefetch(150)
    units = [(kk, c) for kk in range(8) for c in range(4)]

    def reads(n):
        kk, c = units[n]
        f = FR[n % 3]
        slot = kk % NSTG
        g, so = slot // 2, (slot % 2) * SLOT
        if c == 0:
            a("s_waitcnt lgkmcnt(0)")
            a("s_barrier")
            if kk == 0:
                stamp(a, 2)
        a(f"ds_read_b128 v[{f}:{f + 3}], v{20 + 8 * g + c} offset:{so}")
        a(f"ds_read_b128 v[{f + 4}:{f + 7}], v{16 + 8 * g + c} offset:{so}")
        a(f"ds_read_b128 v[{f + 8}:{f + 11}], v{16 + 8 * g + c} offset:{so + 4096}")

    reads(0)
    reads(1)
    for n in range(len(units)):
        if n + 2 < len(units):
            reads(n + 2)
            a("s_waitcnt lgkmcnt(6)")
        elif n + 1 < len(units):
            a("s_waitcnt lgkmcnt(3)")
        else:
            a("s_waitcnt lgkmcnt(0)")
        f = FR[n % 3]
        a(f"v_mfma_f32_32x32x16_bf16 v[{ACC}:{ACC + 15}], v[{f + 4}:{f + 7}], v[{f}:{f + 3}], v[{ACC}:{ACC + 15}]")
        if not nocs:
            a(f"v_dot2_f32_bf16 v40, v{f}, s50, v40")
        if not nocs:
            a(f"v_dot2_f32_bf16 v41, v{f + 1}, s50, v41")
        a(f"v_mfma_f32_32x32x16_bf16 v[{ACC + 16}:{ACC + 31}], v[{f + 8}:{f + 11}], v[{f}:{f + 3}], v[{ACC + 16}:{ACC + 31}]")
        if not nocs:
            a(f"v_dot2_f32_bf16 v40, v{f + 2}, s50, v40")
        if not nocs:
            a(f"v_dot2_f32_bf16 v41, v{f + 3}, s50, v41")
    stamp(a, 3)
    a("s_barrier")
    stamp(a, 4)
    a("v_lshlrev_b32 v42, 6, v5")
    a(f"v_add_u32 v42, {STATS}, v42")
    for sh in range(2):
        for q in range(4):
            a(f"ds_read_b128 v[{96 + 16 * sh + 4 * q}:{99 + 16 * sh + 4 * q}], v42 offset:{128 * sh + 16 * q}")
            a(f"ds_read_b128 v[{128 + 16 * sh + 4 * q}:{131 + 16 * sh + 4 * q}], v42 offset:{256 + 128 * sh + 16 * q}")
    a("v_add_f32 v40, v40, v41")
    a("v_mov_b32 v41, v40")
    a("s_nop 1")
    a("v_permlane32_swap_b32 v40, v41")
    a("s_nop 1")
    a("v_add_f32 v40, v40, v41")
    a("s_lshl_b32 s34, s31, 2")
    a("s_add_u32 s34, s34, s32")
    a("s_lshl_b32 s34, s34, 7")
    a("s_lshl_b32 s33, s30, 1")
    a("s_add_u32 s34, s34, s33")
    a("s_lshl_b32 s34, s34, 10")
    a("v_bfe_u32 v43, v2, 4, 1")
    a("v_lshlrev_b32 v43, 16, v43")
    a("v_lshl_add_u32 v43, v5, 9, v43")
    a("v_and_b32 v44, 15, v2")
    a("v_lshl_add_u32 v43, v44, 4, v43")
    a("s_waitcnt lgkmcnt(0)")
    for sh in range(2):
        for i in range(16):
            r = ACC + 16 * sh + i
            a(f"v_fma_f32 v{r}, -v{96 + 16 * sh + i}, v40, v{r}")
            a(f"v_mul_f32 v{r}, v{r}, v{128 + 16 * sh + i}")
        for i in range(8):
            a(f"v_cvt_pk_bf16_f32 v{48 + 8 * sh + i}, v{ACC + 16 * sh + 2 * i}, v{ACC + 16 * sh + 2 * i + 1}")
        for u in range(2):
            r = 48 + 8 * sh + 4 * u
            a(f"buffer_store_dwordx4 v[{r}:{r + 3}], v43, s[20:23], s34 offen offset:{sh * 1024 + u * 256}" + (" sc0 sc1" if wt else ""))
    stamp(a, 5)
    a.label(f"{name}_fin")
    stamp_flush(a, 1, 6, 6, 7)
    a.label(f"{name}_done")
    a("s_endpgm")
    return kernel_desc(name, 160, 64, 160)


def emit_wtouch(a, s_sel, vt, vd):
    a(f"s_cmp_eq_u32 {s_sel}, 1")
    a("s_cselect_b32 s56, s58, s56")
    a("s_cselect_b32 s57, s59, s57")
    a(f"s_cmp_eq_u32 {s_sel}, 2")
    a("s_cselect_b32 s56, s60, s56")
    a("s_cselect_b32 s57, s61, s57")
    a("s_mul_i32 s62, s2, 7168")
    a("s_add_u32 s63, s62, 7168")
    a(f"s_cmp_eq_u32 {s_sel}, 3")
    a("s_cselect_b32 s63, 0, s63")
    a("s_mov_b32 s20, s56")
    a("s_and_b32 s21, s57, 0xffff")
    a("s_mov_b32 s22, s63")
    a("s_mov_b32 s23, 0x00020000")
    a(f"v_lshlrev_b32 v{vt}, 7, v2")
    a(f"buffer_load_dword v{vd}, v{vt}, s[20:23], s62 offen")


def emit_wtouch2(a):
    a("s_cmp_ge_u32 s33, 2")
    a("s_cselect_b32 s56, s66, s64")
    a("s_cselect_b32 s57, s67, s65")
    a("s_cmp_lt_u32 s28, 28")
    a(f"s_cselect_b32 s62, {D * F * 2}, 0")
    a("s_mov_b32 s20, s56")
    a("s_and_b32 s21, s57, 0xffff")
    a("s_mov_b32 s22, s62")
    a("s_mov_b32 s23, 0x00020000")
    a("s_mov_b32 s24, s68")
    a("s_and_b32 s25, s69, 0xffff")
    a("s_mov_b32 s26, s62")
    a("s_mov_b32 s27, 0x00020000")
    a("s_lshr_b32 s58, s28, 2")
    a("s_lshl_b32 s58, s58, 3")
    a("s_add_u32 s58, s58, s3")
    a("s_and_b32 s59, s28, 3")
    a("s_lshl_b32 s62, s59, 1")
    a("s_and_b32 s63, s33, 1")
    a("s_add_u32 s62, s62, s63")
    a("s_mul_i32 s62, s62, 229376")
    a("s_lshr_b32 s63, s58, 1")
    a("s_lshl_b32 s63, s63, 7")
    a("s_add_u32 s62, s62, s63")
    a("s_mov_b32 s63, 3584")
    a("v_mul_lo_u32 v13, v2, s63")
    a("buffer_load_dword v15, v13, s[20:23], s62 offen")
    a("s_lshl_b32 s62, s58, 15")
    a("s_lshl_b32 s63, s59, 13")
    a("s_add_u32 s62, s62, s63")
    a("s_lshl_b32 s63, s33, 11")
    a("s_add_u32 s62, s62, s63")
    a("v_and_b32 v13, 15, v2")
    a("v_lshlrev_b32 v13, 7, v13")
    a("buffer_load_dword v16, v13, s[24:27], s62 offen")


def gen_k2c(a, name, NSTG=5, LA=1, wt=0, PRO=5, rot=1, BARPOS=1, RSTEP=1, wpf=1, wpf2=0, pol=0, fuse3=0):
    POL = {0: '', 1: ' sc1', 2: ' nt', 3: ' sc0'}[pol]
    kernel_begin(a, name)
    a("s_cmp_ge_u32 s2, 256")
    a(f"s_cbranch_scc1 {name}_done")
    stamp(a, 0)
    a("s_load_dwordx4 s[4:7], s[0:1], 8")
    a("s_load_dwordx2 s[8:9], s[0:1], 96")
    a("s_load_dwordx4 s[56:59], s[0:1], 56")
    a("s_load_dwordx2 s[60:61], s[0:1], 72")
    a("s_load_dwordx4 s[64:67], s[0:1], 56")
    a("s_load_dwordx2 s[68:69], s[0:1], 72")
    a("s_and_b32 s3, s2, 7")
    a("s_lshr_b32 s28, s2, 3")
    a("s_and_b32 s29, s3, 1")
    a("s_bfe_u32 s27, s3, 0x10001")
    a("s_lshr_b32 s30, s3, 2")
    a("s_lshl_b32 s30, s30, 3")
    a("s_and_b32 s31, s28, 7")
    a("s_add_u32 s30, s30, s31")
    a("s_lshr_b32 s31, s28, 3")
    a("v_lshrrev_b32 v1, 6, v0")
    a("v_and_b32 v2, 63, v0")
    a("s_nop 0")
    a("v_readfirstlane_b32 s32, v1")
    a("v_lshlrev_b32 v3, 4, v2")
    a("s_cmp_lt_u32 s32, 4")
    a(f"s_cbranch_scc1 {name}_cons")
    a("s_sub_u32 s33, s32, 4")
    a("v_lshrrev_b32 v4, 3, v2")
    a("v_and_b32 v5, 7, v2")
    a("v_lshrrev_b32 v6, 4, v2")
    a("v_xor_b32 v6, v6, v5")
    a("v_xor_b32 v7, 4, v6")
    a("v_lshlrev_b32 v4, 12, v4")
    a("v_lshl_add_u32 v6, v6, 4, v4")
    a("v_lshl_add_u32 v7, v7, 4, v4")
    a("v_mov_b32 v8, v6")
    a(f"v_add_u32 v9, {32768 - 1024}, v7")
    a(f"v_add_u32 v10, {2 * (32768 - 1024)}, v6")
    a(f"v_add_u32 v11, {3 * (32768 - 1024)}, v7")
    a(f"v_add_u32 v12, {65536 - 2048}, v3")
    a("s_lshl_b32 s35, s30, 19")
    a("s_lshl_b32 s34, s33, 17")
    a("s_add_u32 s35, s35, s34")
    a("s_lshl_b32 s34, s27, 11")
    a("s_add_u32 s35, s35, s34")
    a("s_lshl_b32 s36, s29, 5")
    a("s_lshl_b32 s34, s31, 3")
    a("s_add_u32 s36, s36, s34")
    a("s_lshl_b32 s34, s33, 1")
    a("s_add_u32 s36, s36, s34")
    a("s_lshl_b32 s36, s36, 6")
    a("s_lshl_b32 s34, s27, 5")
    a("s_add_u32 s36, s36, s34")
    a("s_lshl_b32 s36, s36, 10")
    a("s_lshl_b32 s37, s33, 12")
    if rot >= 2:
        a("s_lshl_b32 s52, s31, 1")
        a("s_add_u32 s52, s52, s30")
        if rot == 3:
            a("s_add_u32 s52, s31, s30")
    for j in range(4):
        if rot:
            a(f"s_add_u32 s34, s31, {j}")
            a("s_and_b32 s34, s34, 3")
        else:
            a(f"s_mov_b32 s34, {j}")
        a("s_lshl_b32 s38, s34, 7")
        a(f"s_add_u32 s{44 + j}, s35, s38")
        a("s_lshl_b32 s38, s34, 11")
        a(f"s_add_u32 s{48 + j}, s36, s38")
    a("s_waitcnt lgkmcnt(0)")
    stamp(a, 1)
    a("s_cmp_eq_u32 s29, 1")
    a("s_cselect_b32 s4, s6, s4")
    a("s_cselect_b32 s5, s7, s5")
    srd(a, 12, 4, 5, S * S * 2)
    srd(a, 16, 8, 9, 12 << 20)

    def load_stage(s):
        slot = (s % NSTG) * 32768
        a(f"s_add_u32 m0, s37, {slot}")
        if rot >= 2:
            G8 = {2: 8, 3: 4, 4: 16}[rot]
            a(f"s_add_u32 s53, s52, {s}")
            a(f"s_and_b32 s53, s53, {G8 - 1}")
            a(f"s_add_u32 s53, s53, {s & ~(G8 - 1)}")
            a("s_lshl_b32 s54, s53, 7")
            a("s_add_u32 s38, s35, s54")
        else:
            a(f"s_add_u32 s38, s{44 + (s & 3)}, {(s & ~3) * 128}")
        for i in range(4):
            a(f"buffer_load_dwordx4 v{8 + i}, s[12:15], s38 offen offset:{i * 1024}{POL} lds")
        a(f"s_add_u32 m0, s37, {slot + 16384}")
        if rot >= 2:
            a("s_lshl_b32 s54, s53, 11")
            a("s_add_u32 s39, s36, s54")
        else:
            a(f"s_add_u32 s39, s{48 + (s & 3)}, {(s & ~3) * 2048}")
        for c in range(4):
            a(f"buffer_load_dwordx4 v{3 if c < 2 else 12}, s[16:19], s39 offen offset:{c * 1024}{POL} lds")

    NST = 16
    for s in range(PRO):
        load_stage(s)
    stamp(a, 2)
    issued = PRO
    vq = [st for st in range(PRO) for _ in range(8)]
    for s in range(NST):
        idx = max(k for k, t in enumerate(vq) if t == s)
        a(f"s_waitcnt vmcnt({len(vq) - 1 - idx})")
        vq = vq[idx + 1:]
        a("s_barrier")
        n_new = 0
        while issued < NST and issued - NSTG < s and n_new < 2:
            load_stage(issued)
            vq += [issued] * 8
            issued += 1
            n_new += 1
            if issued == wpf:
                emit_wtouch(a, "s33", 13, 14)
                vq.append("w")
            if issued == wpf2:
                emit_wtouch2(a)
                vq += ["w", "w"]
    stamp(a, 5)
    a(f"s_branch {name}_fin")
    a.label(f"{name}_cons")
    a("s_and_b32 s33, s32, 1")
    a("s_lshr_b32 s34, s32, 1")
    a("v_and_b32 v4, 15, v2")
    a("v_lshrrev_b32 v5, 1, v4")
    a("v_lshrrev_b32 v6, 4, v2")
    a("v_xor_b32 v5, v5, v6")
    a("v_lshlrev_b32 v5, 4, v5")
    a("v_lshl_add_u32 v5, v4, 7, v5")
    a("s_lshl_b32 s35, s33, 13")
    a("s_lshl_b32 s36, s34, 13")
    a("s_add_u32 s36, s36, 16384")
    for g in range(3):
        a(f"v_add_u32 v{8 + 3 * g}, s35, v5")
        a(f"v_xor_b32 v{9 + 3 * g}, 64, v5")
        a(f"v_add_u32 v{9 + 3 * g}, s35, v{9 + 3 * g}")
        a(f"v_add_u32 v{10 + 3 * g}, s36, v3")
        if g:
            for r in range(3):
                a(f"v_add_u32 v{8 + 3 * g + r}, {65536 * g}, v{8 + 3 * g + r}")
    ACC = 64
    FB = 128
    for i in range(64):
        a(f"v_mov_b32 v{ACC + i}, 0")
    a("s_waitcnt lgkmcnt(0)")
    stamp(a, 1)
    srd(a, 16, 8, 9, 12 << 20)
    NU = NST * 2

    def read_list(u):
        s, ks = u // 2, u % 2
        slot = s % NSTG
        g, so = slot // 2, (slot % 2) * 32768
        f = FB + 32 * (u % 2)
        L = []
        for i in range(4):
            L.append(f"ds_read_b128 v[{f + 16 + 4 * i}:{f + 19 + 4 * i}], v{10 + 3 * g} offset:{so + i * 2048 + ks * 1024}")
            L.append(f"ds_read_b128 v[{f + 4 * i}:{f + 3 + 4 * i}], v{8 + 3 * g + ks} offset:{so + i * 2048}")
        return L

    a("s_barrier")
    stamp(a, 3)
    for r in read_list(0):
        a(r)
    for u in range(NU):
        a("s_waitcnt lgkmcnt(0)")
        f = FB + 32 * (u % 2)
        nxt = read_list(u + 1) if u + 1 < NU else []
        n = 0
        for T in range(4):
            for tt in range(4):
                acc = ACC + (T * 4 + tt) * 4
                a(f"v_mfma_f32_16x16x32_bf16 v[{acc}:{acc + 3}], v[{f + 16 + 4 * T}:{f + 19 + 4 * T}], v[{f + 4 * tt}:{f + 4 * tt + 3}], v[{acc}:{acc + 3}]")
                n += 1
                if n == BARPOS and nxt and (u + 1) % 2 == 0:
                    a("s_barrier")
                    if (u + 1) // 2 == 8:
                        stamp(a, 4)
                if n >= BARPOS and nxt and (n - BARPOS) % RSTEP == 0:
                    a(nxt.pop(0))
        for r in nxt:
            a(r)
    stamp(a, 5)
    a("s_lshl_b32 s35, s30, 7")
    a("s_lshl_b32 s36, s33, 6")
    a("s_add_u32 s35, s35, s36")
    a("s_lshl_b32 s35, s35, 10")
    a("s_lshl_b32 s36, s31, 8")
    a("s_add_u32 s35, s35, s36")
    a("s_lshl_b32 s36, s34, 7")
    a("s_add_u32 s35, s35, s36")
    a("s_lshl_b32 s36, s29, 1")
    a("s_add_u32 s36, s36, s27")
    a("s_lshl_b32 s36, s36, 21")
    a("s_add_u32 s35, s35, s36")
    a(f"s_add_u32 s35, s35, {WS_P}")
    a("v_lshlrev_b32 v6, 4, v6")
    a("v_lshl_add_u32 v6, v4, 10, v6")
    for tt in range(4):
        a(f"s_add_u32 s{40 + tt}, s35, {tt * 16384}")
    for tt in range(4):
        for Th in range(2):
            o = 24 + (tt * 2 + Th) * 4
            for Tl in range(2):
                acc = ACC + ((Th * 2 + Tl) * 4 + tt) * 4
                a(f"v_cvt_pk_bf16_f32 v{o + 2 * Tl}, v{acc}, v{acc + 1}")
                a(f"v_cvt_pk_bf16_f32 v{o + 2 * Tl + 1}, v{acc + 2}, v{acc + 3}")
            a(f"buffer_store_dwordx4 v[{o}:{o + 3}], v6, s[16:19], s{40 + tt} offen offset:{Th * 64}" + (" sc0 sc1" if wt else ""))
    if fuse3:
        a("s_waitcnt vmcnt(0)")
    a.label(f"{name}_fin")
    stamp_flush(a, 2, 6, 8, 9)
    nv = FB + 64
    if fuse3:
        a("s_and_b32 s3, s2, 7")
        a("s_and_b32 s29, s3, 1")
        a("s_bfe_u32 s27, s3, 0x10001")
        a("s_lshl_b32 s62, s29, 1")
        a("s_add_u32 s62, s62, s27")
        a("s_lshl_b32 s62, s62, 2")
        a("s_add_u32 s62, s62, s31")
        a("s_lshl_b32 s63, s30, 4")
        a("s_add_u32 s63, s63, s62")
        a("s_barrier")
        gen_kt(a, name + "t", fused=1)
        a.label(f"{name}_done")
        a("s_endpgm")
        return kernel_desc(name, nv, 72, nv)
    a.label(f"{name}_done")
    a("s_endpgm")
    return kernel_desc(name, nv, 72, nv)


def gen_k1c(a, name, wt=1, PRO=3, pf=1, pace=1, pfw=1, pfxd=1):
    NSTG, SLOT, NST = 4, 32768, 8
    STATS = NSTG * SLOT
    kernel_begin(a, name)
    a("s_cmp_ge_u32 s2, 256")
    a(f"s_cbranch_scc1 {name}_done")
    stamp(a, 0)
    a("s_load_dwordx2 s[4:5], s[0:1], 0")
    a("s_load_dwordx4 s[8:11], s[0:1], 24")
    a("s_load_dwordx2 s[6:7], s[0:1], 96")
    a("s_load_dwordx4 s[40:43], s[0:1], 8")
    a("s_load_dwordx4 s[44:47], s[0:1], 56")
    a("s_load_dwordx2 s[48:49], s[0:1], 72")
    a("s_and_b32 s3, s2, 7")
    a("s_lshr_b32 s28, s2, 4")
    a("s_and_b32 s29, s28, 1")
    a("s_lshl_b32 s30, s3, 1")
    a("s_add_u32 s30, s30, s29")
    a("s_lshr_b32 s31, s28, 1")
    a("v_lshrrev_b32 v1, 6, v0")
    a("v_and_b32 v2, 63, v0")
    a("s_nop 0")
    a("v_readfirstlane_b32 s32, v1")
    a("s_mov_b32 s53, 0xffff0000")
    a("s_bitcmp1_b32 s2, 3")
    a(f"s_cbranch_scc1 {name}_pf")
    a("s_cmp_lt_u32 s32, 4")
    a(f"s_cbranch_scc1 {name}_cons")
    a("s_cmp_ge_u32 s32, 8")
    a(f"s_cbranch_scc1 {name}_stat")
    a("s_sub_u32 s33, s32, 4")
    a("v_lshrrev_b32 v3, 3, v2")
    a("v_and_b32 v4, 7, v2")
    a("v_bfe_u32 v5, v2, 4, 1")
    a("v_xor_b32 v4, v4, v5")
    a("v_lshlrev_b32 v3, 10, v3")
    for i in range(4):
        g0g1 = (i & 1) ^ (i >> 1)
        a(f"v_xor_b32 v{8 + i}, {(2 * i) ^ g0g1}, v4")
        a(f"v_lshl_add_u32 v{8 + i}, v{8 + i}, 4, v3")
        if i:
            a(f"v_add_u32 v{8 + i}, {i * (8192 - 1024)}, v{8 + i}")
    a("s_lshl_b32 s34, s33, 5")
    a("s_lshl_b32 s35, s30, 7")
    a("s_add_u32 s35, s35, s34")
    a("s_lshl_b32 s35, s35, 10")
    a("s_and_b32 s36, s31, 3")
    a("s_lshl_b32 s36, s36, 7")
    a("s_add_u32 s36, s36, s34")
    a("s_lshl_b32 s36, s36, 10")
    a("s_lshl_b32 s37, s33, 12")
    a("v_lshlrev_b32 v12, 6, v2")
    a("v_add_u32 v12, s37, v12")
    a("v_add_u32 v12, 16384, v12")
    a(f"v_add_u32 v13, {2 * SLOT}, v12")
    a("v_mov_b32 v14, 0")
    a("v_mov_b32 v15, 0")
    a("s_mov_b32 s50, 0x3f803f80")
    a("s_waitcnt lgkmcnt(0)")
    stamp(a, 1)
    srd(a, 12, 4, 5, S * D * 2)
    a("s_cmp_ge_u32 s31, 4")
    a("s_cselect_b32 s8, s10, s8")
    a("s_cselect_b32 s9, s11, s9")
    srd(a, 16, 8, 9, D * D * 2)

    def load_stage(kk):
        slot = (kk % NSTG) * SLOT
        a(f"s_add_u32 m0, s37, {slot}")
        a(f"s_add_u32 s39, s35, {kk * 128}")
        for i in range(4):
            a(f"buffer_load_dwordx4 v{8 + i}, s[12:15], s39 offen offset:{i * 1024} lds")
        a(f"s_add_u32 m0, s37, {slot + 16384}")
        a(f"s_add_u32 s39, s36, {kk * 128}")
        for i in range(4):
            a(f"buffer_load_dwordx4 v{8 + i}, s[16:19], s39 offen offset:{i * 1024} lds")

    for kk in range(PRO):
        load_stage(kk)
    stamp(a, 2)
    issued = PRO
    for kk in range(NST):
        a(f"s_waitcnt vmcnt({(issued - 1 - kk) * 8})")
        slot = kk % NSTG
        ar, so = (12, slot * SLOT) if slot < 2 else (13, (slot - 2) * SLOT)
        for q in range(4):
            a(f"ds_read_b128 v[{16 + 4 * q}:{19 + 4 * q}], v{ar} offset:{so + 16 * q}")
        a("s_barrier")
        n_new = 0
        while issued < NST and issued - NSTG < kk and n_new < 2:
            load_stage(issued)
            issued += 1
            n_new += 1
        a("s_waitcnt lgkmcnt(0)")
        for r in range(16):
            a(f"v_dot2_f32_bf16 v{14 + (r & 1)}, v{16 + r}, s50, v{14 + (r & 1)}")
    a("s_nop 2")
    a("v_add_f32 v14, v14, v15")
    a("s_nop 1")
    a(f"v_add_f32_dpp v14, v14, v14 quad_perm:[1,0,3,2] {DPP}")
    a("v_lshrrev_b32 v19, 1, v2")
    a("v_lshlrev_b32 v19, 2, v19")
    a("s_lshl_b32 s34, s33, 7")
    a(f"s_add_u32 s34, s34, {STATS + 1024}")
    a("v_add_u32 v19, s34, v19")
    a("ds_write_b32 v19, v14")
    a("s_waitcnt lgkmcnt(0)")
    stamp(a, 3)
    a("s_barrier")
    a(f"s_branch {name}_fin")
    a.label(f"{name}_stat")
    a("s_sub_u32 s33, s32, 8")
    a("s_lshl_b32 s37, s33, 12")
    a("v_lshlrev_b32 v12, 6, v2")
    a("v_add_u32 v12, s37, v12")
    a(f"v_add_u32 v13, {2 * SLOT}, v12")
    for r in range(4):
        a(f"v_mov_b32 v{80 + r}, 0")
    a("s_waitcnt lgkmcnt(0)")
    stamp(a, 1)

    def stat_valu(base):
        for r in range(16):
            t = 72 + 2 * (r & 3)
            a(f"v_lshlrev_b32 v{t}, 16, v{base + r}")
            a(f"v_and_b32 v{t + 1}, s53, v{base + r}")
            a(f"v_sub_f32 v{t}, v{t}, v18")
            a(f"v_sub_f32 v{t + 1}, v{t + 1}, v18")
            a(f"v_add_f32 v80, v80, v{t}")
            a(f"v_add_f32 v81, v81, v{t + 1}")
            a(f"v_fmac_f32 v82, v{t}, v{t}")
            a(f"v_fmac_f32 v83, v{t + 1}, v{t + 1}")

    for kk in range(NST):
        a("s_barrier")
        slot = kk % NSTG
        ar, so = (12, slot * SLOT) if slot < 2 else (13, (slot - 2) * SLOT)
        base = 32 + 16 * (kk & 1)
        for q in range(4):
            a(f"ds_read_b128 v[{base + 4 * q}:{base + 3 + 4 * q}], v{ar} offset:{so + 16 * q}")
        if kk >= 1:
            stat_valu(32 + 16 * ((kk - 1) & 1))
        a("s_waitcnt lgkmcnt(0)")
        if kk == 0:
            a("v_lshlrev_b32 v18, 16, v32")
            a("s_nop 1")
            a(f"v_mov_b32_dpp v18, v18 quad_perm:[0,0,2,2] {DPP}")
    stat_valu(32 + 16 * ((NST - 1) & 1))
    a("v_add_f32 v14, v80, v81")
    a("v_add_f32 v16, v82, v83")
    a("s_nop 1")
    a(f"v_add_f32_dpp v14, v14, v14 quad_perm:[1,0,3,2] {DPP}")
    a(f"v_add_f32_dpp v16, v16, v16 quad_perm:[1,0,3,2] {DPP}")
    a("v_mul_f32 v14, 0x3b000000, v14")
    a("v_mul_f32 v16, 0x3b000000, v16")
    a("v_fma_f32 v16, -v14, v14, v16")
    a("v_max_f32 v16, 0, v16")
    a("v_add_f32 v14, v14, v18")
    a("v_cvt_pk_bf16_f32 v14, v14, v14")
    a("v_lshlrev_b32 v14, 16, v14")
    a("v_cvt_pk_bf16_f32 v16, v16, v16")
    a("v_lshlrev_b32 v16, 16, v16")
    a("v_add_f32 v16, 0x3727c5ac, v16")
    a("v_cvt_pk_bf16_f32 v16, v16, v16")
    a("v_lshlrev_b32 v16, 16, v16")
    a("v_sqrt_f32 v16, v16")
    a("s_nop 0")
    a("v_cvt_pk_bf16_f32 v16, v16, v16")
    a("v_lshlrev_b32 v16, 16, v16")
    a("v_rcp_f32 v16, v16")
    a("v_lshrrev_b32 v19, 1, v2")
    a("v_lshlrev_b32 v19, 2, v19")
    a("s_lshl_b32 s34, s33, 7")
    a(f"s_add_u32 s34, s34, {STATS}")
    a("v_add_u32 v19, s34, v19")
    a("ds_write_b32 v19, v14")
    a("ds_write_b32 v19, v16 offset:512")
    a("s_waitcnt lgkmcnt(0)")
    stamp(a, 3)
    a("s_barrier")
    a(f"s_branch {name}_fin")
    a.label(f"{name}_cons")
    a("s_and_b32 s33, s32, 1")
    a("s_lshr_b32 s34, s32, 1")
    a("v_and_b32 v4, 15, v2")
    a("v_lshrrev_b32 v6, 4, v2")
    a("v_lshrrev_b32 v5, 2, v4")
    a("v_and_b32 v7, 3, v4")
    a("v_lshl_add_u32 v7, v5, 3, v7")
    a("v_lshrrev_b32 v20, 1, v4")
    a("v_lshrrev_b32 v21, 2, v4")
    a("v_lshrrev_b32 v22, 3, v4")
    a("v_xor_b32 v21, v21, v22")
    a("v_and_b32 v21, 1, v21")
    a("v_xor_b32 v20, v20, v21")
    a("v_xor_b32 v20, v20, v6")
    a("v_lshlrev_b32 v20, 4, v20")
    a("v_lshl_add_u32 v20, v7, 7, v20")
    a("s_lshl_b32 s35, s33, 13")
    a("s_lshl_b32 s36, s34, 13")
    a("s_add_u32 s36, s36, 16384")
    for g2 in range(2):
        a(f"v_add_u32 v{8 + 4 * g2}, s35, v20")
        a(f"v_xor_b32 v{9 + 4 * g2}, 64, v{8 + 4 * g2}")
        a(f"v_add_u32 v{10 + 4 * g2}, s36, v20")
        a(f"v_xor_b32 v{11 + 4 * g2}, 64, v{10 + 4 * g2}")
        if g2:
            for r in range(4):
                a(f"v_add_u32 v{8 + 4 * g2 + r}, {65536 * g2}, v{8 + 4 * g2 + r}")
    ACC = 32
    FB = 96
    for i in range(64):
        a(f"v_mov_b32 v{ACC + i}, 0")
    a("s_waitcnt lgkmcnt(0)")
    stamp(a, 1)
    srd(a, 20, 6, 7, 4 << 20)
    NU = NST * 2

    def reads(u):
        s, ks = u // 2, u % 2
        slot = s % NSTG
        g2, so = slot // 2, (slot % 2) * SLOT
        f = FB + 32 * (u % 2)
        if ks == 0:
            a("s_waitcnt lgkmcnt(0)")
            a("s_barrier")
            if s == 0:
                stamp(a, 2)
        for i in range(4):
            off = so + (i >> 1) * 4096 + (i & 1) * 512
            a(f"ds_read_b128 v[{f + 4 * i}:{f + 3 + 4 * i}], v{8 + 4 * g2 + ks} offset:{off}")
            a(f"ds_read_b128 v[{f + 16 + 4 * i}:{f + 19 + 4 * i}], v{10 + 4 * g2 + ks} offset:{off}")

    reads(0)
    for u in range(NU):
        if u + 1 < NU:
            reads(u + 1)
            a("s_waitcnt lgkmcnt(8)")
        else:
            a("s_waitcnt lgkmcnt(0)")
        f = FB + 32 * (u % 2)
        for xi in range(4):
            for T in range(4):
                acc = ACC + (xi * 4 + T) * 4
                a(f"v_mfma_f32_16x16x32_bf16 v[{acc}:{acc + 3}], v[{f + 4 * xi}:{f + 3 + 4 * xi}], v[{f + 16 + 4 * T}:{f + 19 + 4 * T}], v[{acc}:{acc + 3}]")
    stamp(a, 3)
    a("s_barrier")
    stamp(a, 4)
    a("s_lshl_b32 s35, s33, 8")
    a(f"s_add_u32 s35, s35, {STATS}")
    a("v_lshlrev_b32 v20, 5, v6")
    a("v_add_u32 v20, s35, v20")
    for blk in range(2):
        for h in range(2):
            a(f"ds_read_b128 v[{96 + 16 * blk + 4 * h}:{99 + 16 * blk + 4 * h}], v20 offset:{128 * blk + 16 * h}")
            a(f"ds_read_b128 v[{104 + 16 * blk + 4 * h}:{107 + 16 * blk + 4 * h}], v20 offset:{512 + 128 * blk + 16 * h}")
    a("s_lshl_b32 s36, s34, 8")
    a(f"s_add_u32 s36, s36, {STATS + 1024}")
    a("v_lshlrev_b32 v21, 2, v7")
    a("v_add_u32 v21, s36, v21")
    for T in range(4):
        a(f"ds_read_b32 v{128 + T}, v21 offset:{(T >> 1) * 128 + (T & 1) * 16}")
    a("s_lshl_b32 s35, s31, 3")
    a("s_lshl_b32 s36, s34, 2")
    a("s_add_u32 s35, s35, s36")
    a("s_lshl_b32 s35, s35, 6")
    a("s_lshl_b32 s36, s30, 2")
    a("s_add_u32 s35, s35, s36")
    a("s_lshl_b32 s36, s33, 1")
    a("s_add_u32 s35, s35, s36")
    a("s_lshl_b32 s35, s35, 10")
    for T in range(4):
        a(f"s_add_u32 s{40 + T}, s35, {T * 65536}")
    a("v_lshlrev_b32 v22, 4, v2")
    a("s_waitcnt lgkmcnt(0)")
    for blk in range(2):
        for T in range(4):
            o = 132 + 4 * ((blk * 4 + T) & 3)
            for hb in range(2):
                acc = ACC + ((blk * 2 + hb) * 4 + T) * 4
                for j in range(4):
                    a(f"v_fma_f32 v{acc + j}, -v{96 + 16 * blk + 4 * hb + j}, v{128 + T}, v{acc + j}")
                    a(f"v_mul_f32 v{acc + j}, v{acc + j}, v{104 + 16 * blk + 4 * hb + j}")
                a(f"v_cvt_pk_bf16_f32 v{o + 2 * hb}, v{acc}, v{acc + 1}")
                a(f"v_cvt_pk_bf16_f32 v{o + 2 * hb + 1}, v{acc + 2}, v{acc + 3}")
            a(f"buffer_store_dwordx4 v[{o}:{o + 3}], v22, s[20:23], s{40 + T} offen offset:{blk * 1024}" + (" sc0 sc1" if wt else ""))
    stamp(a, 5)
    a(f"s_branch {name}_fin")
    a.label(f"{name}_pf")
    a("s_waitcnt lgkmcnt(0)")
    stamp(a, 1)
    if pf:
        a("v_lshlrev_b32 v3, 7, v2")
        a("v_lshrrev_b32 v4, 4, v2")
        a("v_lshlrev_b32 v4, 12, v4")
        a("v_and_b32 v5, 15, v2")
        a("v_lshl_add_u32 v4, v5, 7, v4")
        a("s_mul_i32 s33, s28, 12")
        a("s_add_u32 s33, s33, s32")
        nld = 0
        if pfxd:
            srd(a, 12, 4, 5, S * D * 2)
            srd(a, 16, 8, 9, D * D * 2)
            srd(a, 20, 10, 11, D * D * 2)
            a("s_lshl_b32 s34, s33, 13")
            a("s_lshl_b32 s35, s3, 18")
            a("s_add_u32 s35, s35, s34")
            a("s_cmp_lt_u32 s33, 32")
            a(f"s_cbranch_scc0 {name}_pf1")
            a("buffer_load_dword v10, v3, s[12:15], s35 offen")
            a(f"s_branch {name}_pf3")
            a.label(f"{name}_pf1")
            a("s_sub_u32 s34, s34, 262144")
            a("s_cmp_lt_u32 s33, 96")
            a(f"s_cbranch_scc0 {name}_pf2")
            a("buffer_load_dword v10, v3, s[16:19], s34 offen")
            a(f"s_branch {name}_pf3")
            a.label(f"{name}_pf2")
            a("s_sub_u32 s34, s34, 524288")
            a("buffer_load_dword v10, v3, s[20:23], s34 offen")
            a.label(f"{name}_pf3")
            if pace:
                a("s_waitcnt vmcnt(0)")
        a("s_and_b32 s48, s3, 1")
        a("s_cmp_eq_u32 s48, 1")
        a("s_cselect_b32 s40, s42, s40")
        a("s_cselect_b32 s41, s43, s41")
        srd(a, 24, 40, 41, S * S * 2)
        a("s_cmp_ge_u32 s33, 128")
        a(f"s_cbranch_scc1 {name}_fin")
        a("s_lshr_b32 s48, s3, 2")
        a("s_lshl_b32 s48, s48, 10")
        a("s_lshl_b32 s49, s33, 3")
        a("s_add_u32 s48, s48, s49")
        a("s_lshl_b32 s48, s48, 12")
        a("s_bfe_u32 s49, s3, 0x10001")
        a("s_lshl_b32 s49, s49, 11")
        a("s_add_u32 s48, s48, s49")
        a("buffer_load_dword v11, v4, s[24:27], s48 offen")
        if pace >= 2:
            a("s_waitcnt vmcnt(0)")
        a("s_add_u32 s48, s48, 16384")
        a("buffer_load_dword v12, v4, s[24:27], s48 offen")
    a.label(f"{name}_fin")
    stamp_flush(a, 1, 6, 6, 7)
    a.label(f"{name}_done")
    a("s_endpgm")
    return kernel_desc(name, 160, 64, 160)


WS_STATS = (12 << 20) + (1 << 19) + 8192
WS_CS = WS_STATS + 16384


def gen_k1d(a, name, wt=1, PRO=3, pf=1, pace=1, pfq=4):
    NSTG, SLOT, NST = 4, 32768, 8
    STATS = NSTG * SLOT
    kernel_begin(a, name)
    a("s_cmp_ge_u32 s2, 256")
    a(f"s_cbranch_scc1 {name}_done")
    stamp(a, 0)
    a("s_load_dwordx2 s[4:5], s[0:1], 0")
    a("s_load_dwordx4 s[8:11], s[0:1], 24")
    a("s_load_dwordx4 s[44:47], s[0:1], 88")
    a("s_load_dwordx4 s[40:43], s[0:1], 8")
    a("s_and_b32 s3, s2, 7")
    a("s_lshr_b32 s28, s2, 4")
    a("s_and_b32 s29, s28, 1")
    a("s_lshl_b32 s30, s3, 1")
    a("s_add_u32 s30, s30, s29")
    a("s_lshr_b32 s31, s28, 1")
    a("v_lshrrev_b32 v1, 6, v0")
    a("v_and_b32 v2, 63, v0")
    a("s_nop 0")
    a("v_readfirstlane_b32 s32, v1")
    a("s_mov_b32 s53, 0xffff0000")
    a("s_bitcmp1_b32 s2, 3")
    a(f"s_cbranch_scc1 {name}_aux")
    a("s_cmp_lt_u32 s32, 4")
    a(f"s_cbranch_scc1 {name}_cons")
    a("s_sub_u32 s33, s32, 4")
    a("v_lshrrev_b32 v3, 3, v2")
    a("v_and_b32 v4, 7, v2")
    a("v_bfe_u32 v5, v2, 4, 1")
    a("v_xor_b32 v4, v4, v5")
    a("v_lshlrev_b32 v3, 10, v3")
    for i in range(4):
        g0g1 = (i & 1) ^ (i >> 1)
        a(f"v_xor_b32 v{8 + i}, {(2 * i) ^ g0g1}, v4")
        a(f"v_lshl_add_u32 v{8 + i}, v{8 + i}, 4, v3")
        if i:
            a(f"v_add_u32 v{8 + i}, {i * (8192 - 1024)}, v{8 + i}")
    a("s_lshl_b32 s34, s33, 5")
    a("s_lshl_b32 s35, s30, 7")
    a("s_add_u32 s35, s35, s34")
    a("s_lshl_b32 s38, s35, 3")
    a("s_lshl_b32 s35, s35, 10")
    a("s_and_b32 s36, s31, 3")
    a("s_lshl_b32 s36, s36, 7")
    a("s_add_u32 s36, s36, s34")
    a("s_lshl_b32 s36, s36, 10")
    a("s_lshl_b32 s37, s33, 12")
    a("v_lshlrev_b32 v12, 6, v2")
    a("v_add_u32 v12, s37, v12")
    a("v_add_u32 v12, 16384, v12")
    a(f"v_add_u32 v13, {2 * SLOT}, v12")
    a("v_mov_b32 v14, 0")
    a("v_mov_b32 v15, 0")
    a("s_mov_b32 s50, 0x3f803f80")
    a("s_waitcnt lgkmcnt(0)")
    stamp(a, 1)
    srd(a, 12, 4, 5, S * D * 2)
    a("s_cmp_ge_u32 s31, 4")
    a("s_cselect_b32 s8, s10, s8")
    a("s_cselect_b32 s9, s11, s9")
    srd(a, 16, 8, 9, D * D * 2)
    srd(a, 20, 46, 47, 14 << 20)
    srd(a, 24, 44, 45, 256)

    def load_stage(kk):
        slot = (kk % NSTG) * SLOT
        a(f"s_add_u32 m0, s37, {slot}")
        a(f"s_add_u32 s39, s35, {kk * 128}")
        for i in range(4):
            a(f"buffer_load_dwordx4 v{8 + i}, s[12:15], s39 offen offset:{i * 1024} lds")
        a(f"s_add_u32 m0, s37, {slot + 16384}")
        a(f"s_add_u32 s39, s36, {kk * 128}")
        for i in range(4):
            a(f"buffer_load_dwordx4 v{8 + i}, s[16:19], s39 offen offset:{i * 1024} lds")

    for kk in range(PRO):
        load_stage(kk)
    stamp(a, 2)
    issued = PRO
    for kk in range(NST):
        a(f"s_waitcnt vmcnt({(issued - 1 - kk) * 8})")
        slot = kk % NSTG
        ar, so = (12, slot * SLOT) if slot < 2 else (13, (slot - 2) * SLOT)
        for q in range(4):
            a(f"ds_read_b128 v[{16 + 4 * q}:{19 + 4 * q}], v{ar} offset:{so + 16 * q}")
        a("s_barrier")
        n_new = 0
        while issued < NST and issued - NSTG < kk and n_new < 2:
            load_stage(issued)
            issued += 1
            n_new += 1
        a("s_waitcnt lgkmcnt(0)")
        for r in range(16):
            a(f"v_dot2_f32_bf16 v{14 + (r & 1)}, v{16 + r}, s50, v{14 + (r & 1)}")
    a("s_lshl_b32 s34, s30, 2")
    a("v_mov_b32 v20, s34")
    a.label(f"{name}_poll")
    a("buffer_load_dword v21, v20, s[24:27], 0 offen sc0 sc1")
    a("s_waitcnt vmcnt(0)")
    a("v_readfirstlane_b32 s34, v21")
    a("s_cmp_ge_u32 s34, 8")
    a(f"s_cbranch_scc1 {name}_polled")
    a("s_sleep 2")
    a(f"s_branch {name}_poll")
    a.label(f"{name}_polled")
    a("v_and_b32 v20, 31, v2")
    a("v_lshlrev_b32 v20, 3, v20")
    a(f"s_add_u32 s38, s38, {WS_STATS}")
    a("buffer_load_dwordx2 v[22:23], v20, s[20:23], s38 offen sc0 sc1")
    a("v_add_f32 v14, v14, v15")
    a("s_nop 1")
    a(f"v_add_f32_dpp v14, v14, v14 quad_perm:[1,0,3,2] {DPP}")
    a("v_lshrrev_b32 v19, 1, v2")
    a("v_lshlrev_b32 v19, 2, v19")
    a("s_lshl_b32 s34, s33, 7")
    a(f"s_add_u32 s34, s34, {STATS + 1024}")
    a("v_add_u32 v19, s34, v19")
    a("ds_write_b32 v19, v14")
    a("v_lshrrev_b32 v20, 1, v20")
    a("s_lshl_b32 s34, s33, 7")
    a(f"s_add_u32 s34, s34, {STATS}")
    a("v_add_u32 v20, s34, v20")
    a("s_waitcnt vmcnt(0)")
    a("ds_write_b32 v20, v22")
    a("ds_write_b32 v20, v23 offset:512")
    a("s_waitcnt lgkmcnt(0)")
    stamp(a, 3)
    a("s_barrier")
    a(f"s_branch {name}_fin")
    a.label(f"{name}_cons")
    a("s_and_b32 s33, s32, 1")
    a("s_lshr_b32 s34, s32, 1")
    a("v_and_b32 v4, 15, v2")
    a("v_lshrrev_b32 v6, 4, v2")
    a("v_lshrrev_b32 v5, 2, v4")
    a("v_and_b32 v7, 3, v4")
    a("v_lshl_add_u32 v7, v5, 3, v7")
    a("v_lshrrev_b32 v20, 1, v4")
    a("v_lshrrev_b32 v21, 2, v4")
    a("v_lshrrev_b32 v22, 3, v4")
    a("v_xor_b32 v21, v21, v22")
    a("v_and_b32 v21, 1, v21")
    a("v_xor_b32 v20, v20, v21")
    a("v_xor_b32 v20, v20, v6")
    a("v_lshlrev_b32 v20, 4, v20")
    a("v_lshl_add_u32 v20, v7, 7, v20")
    a("s_lshl_b32 s35, s33, 13")
    a("s_lshl_b32 s36, s34, 13")
    a("s_add_u32 s36, s36, 16384")
    for g2 in range(2):
        a(f"v_add_u32 v{8 + 4 * g2}, s35, v20")
        a(f"v_xor_b32 v{9 + 4 * g2}, 64, v{8 + 4 * g2}")
        a(f"v_add_u32 v{10 + 4 * g2}, s36, v20")
        a(f"v_xor_b32 v{11 + 4 * g2}, 64, v{10 + 4 * g2}")
        if g2:
            for r in range(4):
                a(f"v_add_u32 v{8 + 4 * g2 + r}, {65536 * g2}, v{8 + 4 * g2 + r}")
    ACC = 32
    FB = 96
    for i in range(64):
        a(f"v_mov_b32 v{ACC + i}, 0")
    a("s_waitcnt lgkmcnt(0)")
    stamp(a, 1)
    srd(a, 20, 46, 47, 4 << 20)
    NU = NST * 2

    def read_list(u):
        s, ks = u // 2, u % 2
        slot = s % NSTG
        g2, so = slot // 2, (slot % 2) * SLOT
        f = FB + 32 * (u % 2)
        L = []
        for i in range(4):
            off = so + (i >> 1) * 4096 + (i & 1) * 512
            L.append(f"ds_read_b128 v[{f + 4 * i}:{f + 3 + 4 * i}], v{8 + 4 * g2 + ks} offset:{off}")
            L.append(f"ds_read_b128 v[{f + 16 + 4 * i}:{f + 19 + 4 * i}], v{10 + 4 * g2 + ks} offset:{off}")
        return L

    a("s_barrier")
    stamp(a, 2)
    for r in read_list(0):
        a(r)
    for u in range(NU):
        a("s_waitcnt lgkmcnt(0)")
        f = FB + 32 * (u % 2)
        nxt = read_list(u + 1) if u + 1 < NU else []
        n = 0
        for xi in range(4):
            for T in range(4):
                acc = ACC + (xi * 4 + T) * 4
                a(f"v_mfma_f32_16x16x32_bf16 v[{acc}:{acc + 3}], v[{f + 4 * xi}:{f + 3 + 4 * xi}], v[{f + 16 + 4 * T}:{f + 19 + 4 * T}], v[{acc}:{acc + 3}]")
                n += 1
                if n == 1 and nxt and (u + 1) % 2 == 0:
                    a("s_barrier")
                if nxt:
                    a(nxt.pop(0))
    stamp(a, 3)
    a("s_barrier")
    stamp(a, 4)
    a("s_lshl_b32 s35, s33, 8")
    a(f"s_add_u32 s35, s35, {STATS}")
    a("v_lshlrev_b32 v20, 5, v6")
    a("v_add_u32 v20, s35, v20")
    for blk in range(2):
        for h in range(2):
            a(f"ds_read_b128 v[{96 + 16 * blk + 4 * h}:{99 + 16 * blk + 4 * h}], v20 offset:{128 * blk + 16 * h}")
            a(f"ds_read_b128 v[{104 + 16 * blk + 4 * h}:{107 + 16 * blk + 4 * h}], v20 offset:{512 + 128 * blk + 16 * h}")
    a("s_lshl_b32 s36, s34, 8")
    a(f"s_add_u32 s36, s36, {STATS + 1024}")
    a("v_lshlrev_b32 v21, 2, v7")
    a("v_add_u32 v21, s36, v21")
    for T in range(4):
        a(f"ds_read_b32 v{128 + T}, v21 offset:{(T >> 1) * 128 + (T & 1) * 16}")
    a("s_lshl_b32 s35, s31, 3")
    a("s_lshl_b32 s36, s34, 2")
    a("s_add_u32 s35, s35, s36")
    a("s_lshl_b32 s35, s35, 6")
    a("s_lshl_b32 s36, s30, 2")
    a("s_add_u32 s35, s35, s36")
    a("s_lshl_b32 s36, s33, 1")
    a("s_add_u32 s35, s35, s36")
    a("s_lshl_b32 s35, s35, 10")
    for T in range(4):
        a(f"s_add_u32 s{40 + T}, s35, {T * 65536}")
    a("v_lshlrev_b32 v22, 4, v2")
    a("s_waitcnt lgkmcnt(0)")
    for blk in range(2):
        for T in range(4):
            o = 132 + 4 * ((blk * 4 + T) & 3)
            for hb in range(2):
                acc = ACC + ((blk * 2 + hb) * 4 + T) * 4
                for j in range(4):
                    a(f"v_fma_f32 v{acc + j}, -v{96 + 16 * blk + 4 * hb + j}, v{128 + T}, v{acc + j}")
                    a(f"v_mul_f32 v{acc + j}, v{acc + j}, v{104 + 16 * blk + 4 * hb + j}")
                a(f"v_cvt_pk_bf16_f32 v{o + 2 * hb}, v{acc}, v{acc + 1}")
                a(f"v_cvt_pk_bf16_f32 v{o + 2 * hb + 1}, v{acc + 2}, v{acc + 3}")
            a(f"buffer_store_dwordx4 v[{o}:{o + 3}], v22, s[20:23], s{40 + T} offen offset:{blk * 1024}" + (" sc0 sc1" if wt else ""))
    stamp(a, 5)
    a(f"s_branch {name}_fin")
    a.label(f"{name}_aux")
    a("v_mov_b32 v3, 0")
    a("ds_write_b32 v3, v3")
    a("s_waitcnt lgkmcnt(0)")
    a("s_barrier")
    stamp(a, 1)
    a("s_cmp_ge_u32 s32, 4")
    a(f"s_cbranch_scc1 {name}_pfw")
    a("s_lshl_b32 s33, s3, 8")
    a("s_lshl_b32 s34, s28, 4")
    a("s_add_u32 s33, s33, s34")
    a("s_lshl_b32 s34, s32, 2")
    a("s_add_u32 s33, s33, s34")
    a("v_lshrrev_b32 v3, 4, v2")
    a("v_and_b32 v4, 15, v2")
    a("v_lshlrev_b32 v5, 10, v3")
    a("v_lshl_add_u32 v5, v4, 4, v5")
    a("s_lshl_b32 s34, s33, 10")
    srd(a, 12, 4, 5, S * D * 2)
    for jj in range(4):
        a(f"buffer_load_dwordx4 v[{16 + 4 * jj}:{19 + 4 * jj}], v5, s[12:15], s34 offen offset:{256 * jj}")
    srd(a, 20, 46, 47, 14 << 20)
    srd(a, 28, 44, 45, 256)
    a("s_waitcnt vmcnt(0)")
    stamp(a, 2)
    X = 32
    for r in range(16):
        a(f"v_lshlrev_b32 v{X + 2 * r}, 16, v{16 + r}")
        a(f"v_and_b32 v{X + 2 * r + 1}, s53, v{16 + r}")
    a(f"v_add_f32 v8, v{X}, v{X + 1}")
    a(f"v_add_f32 v9, v{X + 2}, v{X + 3}")
    for r in range(4, 32, 2):
        a(f"v_add_f32 v8, v8, v{X + r}")
        a(f"v_add_f32 v9, v9, v{X + r + 1}")
    a("v_add_f32 v8, v8, v9")

    def red16(v):
        for pat in ("quad_perm:[1,0,3,2]", "quad_perm:[2,3,0,1]", "row_half_mirror", "row_mirror"):
            a("s_nop 1")
            a(f"v_add_f32_dpp v{v}, v{v}, v{v} {pat} {DPP}")

    red16(8)
    a("v_mul_f32 v8, 0x3b000000, v8")
    a("v_mov_b32 v10, 0")
    a("v_mov_b32 v11, 0")
    for r in range(0, 32, 2):
        a(f"v_sub_f32 v{X + r}, v{X + r}, v8")
        a(f"v_sub_f32 v{X + r + 1}, v{X + r + 1}, v8")
        a(f"v_fmac_f32 v10, v{X + r}, v{X + r}")
        a(f"v_fmac_f32 v11, v{X + r + 1}, v{X + r + 1}")
    a("v_add_f32 v10, v10, v11")
    red16(10)
    a("v_mul_f32 v10, 0x3b000000, v10")
    a("v_cvt_pk_bf16_f32 v12, v8, v8")
    a("v_lshlrev_b32 v12, 16, v12")
    a("v_cvt_pk_bf16_f32 v10, v10, v10")
    a("v_lshlrev_b32 v10, 16, v10")
    a("v_add_f32 v10, 0x3727c5ac, v10")
    a("v_cvt_pk_bf16_f32 v10, v10, v10")
    a("v_lshlrev_b32 v10, 16, v10")
    a("v_sqrt_f32 v10, v10")
    a("s_nop 0")
    a("v_cvt_pk_bf16_f32 v10, v10, v10")
    a("v_lshlrev_b32 v10, 16, v10")
    a("v_rcp_f32 v13, v10")
    a("v_lshlrev_b32 v14, 3, v3")
    a("s_lshl_b32 s36, s33, 3")
    a(f"s_add_u32 s36, s36, {WS_STATS}")
    a("v_cmp_eq_u32 vcc, 0, v4")
    a("s_and_saveexec_b64 s[54:55], vcc")
    a("buffer_store_dwordx2 v[12:13], v14, s[20:23], s36 offen sc0 sc1")
    a("s_mov_b64 exec, s[54:55]")
    a("s_waitcnt vmcnt(0)")
    stamp(a, 3)
    a("v_mov_b32 v14, 0")
    a("v_mov_b32 v15, 1")
    a("v_cmp_eq_u32 vcc, 0, v2")
    a("s_and_saveexec_b64 s[54:55], vcc")
    a("ds_add_rtn_u32 v6, v14, v15")
    a("s_waitcnt lgkmcnt(0)")
    a("v_readfirstlane_b32 s36, v6")
    a("s_cmp_lg_u32 s36, 3")
    a(f"s_cbranch_scc1 {name}_nosig")
    a("s_lshr_b32 s36, s33, 7")
    a("s_lshl_b32 s36, s36, 2")
    a("v_mov_b32 v14, s36")
    a("buffer_atomic_add v15, v14, s[28:31], 0 offen")
    a.label(f"{name}_nosig")
    a("s_mov_b64 exec, s[54:55]")
    a(f"s_branch {name}_fin")
    a.label(f"{name}_pfw")
    a("v_lshlrev_b32 v6, 7, v2")
    a("v_lshrrev_b32 v7, 4, v2")
    a("v_lshlrev_b32 v7, 12, v7")
    a("v_and_b32 v8, 15, v2")
    a("v_lshl_add_u32 v7, v8, 7, v7")
    a("s_lshl_b32 s35, s28, 2")
    a("s_add_u32 s35, s35, s32")
    a("s_sub_u32 s35, s35, 4")
    srd(a, 16, 8, 9, D * D * 2)
    srd(a, 20, 10, 11, D * D * 2)
    a("s_lshl_b32 s36, s35, 13")
    a("buffer_load_dword v10, v6, s[16:19], s36 offen")
    a("buffer_load_dword v11, v6, s[20:23], s36 offen")
    a("s_and_b32 s48, s3, 1")
    a("s_cmp_eq_u32 s48, 1")
    a("s_cselect_b32 s40, s42, s40")
    a("s_cselect_b32 s41, s43, s41")
    srd(a, 24, 40, 41, S * S * 2)
    a("s_lshr_b32 s48, s3, 2")
    a("s_lshl_b32 s48, s48, 10")
    a("s_lshl_b32 s49, s35, 4")
    a("s_add_u32 s48, s48, s49")
    a("s_lshl_b32 s48, s48, 12")
    a("s_bfe_u32 s49, s3, 0x10001")
    a("s_lshl_b32 s49, s49, 11")
    a("s_add_u32 s48, s48, s49")
    if pace:
        a("s_waitcnt vmcnt(0)")
    stamp(a, 2)
    if pf:
        if pfq < 4:
            a(f"v_cmp_gt_u32 vcc, {4 * pfq}, v8")
            a("s_and_saveexec_b64 s[54:55], vcc")
        for ii in range(4):
            a(f"s_add_u32 s49, s48, {ii * 16384}")
            a(f"buffer_load_dword v{12 + ii}, v7, s[24:27], s49 offen")
        if pfq < 4:
            a("s_mov_b64 exec, s[54:55]")
    a.label(f"{name}_fin")
    stamp_flush(a, 1, 6, 46, 47)
    a.label(f"{name}_done")
    a("s_endpgm")
    return kernel_desc(name, 160, 64, 160)


def gen_k1e(a, name, wt=1, PRO=4, pf=1, pace=1, U1=10, U2=12, pfq=4, pol=0, ppol=0):
    POL = {0: '', 1: ' sc1', 2: ' nt', 3: ' sc0'}[pol]
    PPOL = {0: '', 1: ' sc1', 2: ' nt', 3: ' sc0'}[ppol]
    NSTG, SLOT, NST = 5, 32768, 8
    CS = 3 * SLOT
    kernel_begin(a, name)
    a("s_cmp_ge_u32 s2, 256")
    a(f"s_cbranch_scc1 {name}_done")
    stamp(a, 0)
    a("s_load_dwordx2 s[4:5], s[0:1], 0")
    a("s_load_dwordx4 s[8:11], s[0:1], 24")
    a("s_load_dwordx4 s[44:47], s[0:1], 88")
    a("s_load_dwordx4 s[40:43], s[0:1], 8")
    a("s_and_b32 s3, s2, 7")
    a("s_lshr_b32 s28, s2, 4")
    a("s_and_b32 s29, s3, 1")
    a("s_bfe_u32 s27, s3, 0x10001")
    a("s_lshr_b32 s26, s3, 2")
    a("s_lshl_b32 s30, s27, 3")
    a("s_lshl_b32 s34, s26, 2")
    a("s_add_u32 s30, s30, s34")
    a("s_and_b32 s34, s28, 3")
    a("s_add_u32 s30, s30, s34")
    a("s_lshr_b32 s31, s28, 2")
    a("v_lshrrev_b32 v1, 6, v0")
    a("v_and_b32 v2, 63, v0")
    a("s_nop 0")
    a("v_readfirstlane_b32 s32, v1")
    a("s_mov_b32 s53, 0xffff0000")
    a("s_bitcmp1_b32 s2, 3")
    a(f"s_cbranch_scc1 {name}_aux")
    a("s_cmp_lt_u32 s32, 4")
    a(f"s_cbranch_scc1 {name}_cons")
    a("s_sub_u32 s33, s32, 4")
    a("v_lshrrev_b32 v3, 3, v2")
    a("v_and_b32 v4, 7, v2")
    a("v_bfe_u32 v5, v2, 4, 1")
    a("v_xor_b32 v4, v4, v5")
    a("v_lshlrev_b32 v3, 10, v3")
    for i in range(4):
        g0g1 = (i & 1) ^ (i >> 1)
        a(f"v_xor_b32 v{8 + i}, {(2 * i) ^ g0g1}, v4")
        a(f"v_lshl_add_u32 v{8 + i}, v{8 + i}, 4, v3")
        if i:
            a(f"v_add_u32 v{8 + i}, {i * (8192 - 1024)}, v{8 + i}")
    a("s_lshl_b32 s34, s33, 5")
    a("s_lshl_b32 s35, s30, 7")
    a("s_add_u32 s35, s35, s34")
    a("s_lshl_b32 s35, s35, 10")
    a("s_lshl_b32 s36, s31, 7")
    a("s_add_u32 s36, s36, s34")
    a("s_lshl_b32 s36, s36, 10")
    a("s_lshl_b32 s37, s33, 12")
    a("v_lshlrev_b32 v12, 6, v2")
    a("v_add_u32 v12, s37, v12")
    a("v_add_u32 v12, 16384, v12")
    a(f"v_add_u32 v13, {2 * SLOT}, v12")
    a(f"v_add_u32 v6, {4 * SLOT}, v12")
    a("v_mov_b32 v14, 0")
    a("v_mov_b32 v15, 0")
    a("s_mov_b32 s50, 0x3f803f80")
    a("s_waitcnt lgkmcnt(0)")
    stamp(a, 1)
    srd(a, 12, 4, 5, S * D * 2)
    a("s_cmp_eq_u32 s29, 1")
    a("s_cselect_b32 s8, s10, s8")
    a("s_cselect_b32 s9, s11, s9")
    srd(a, 16, 8, 9, D * D * 2)

    def load_stage(kk):
        slot = (kk % NSTG) * SLOT
        a(f"s_add_u32 m0, s37, {slot}")
        a(f"s_add_u32 s39, s35, {kk * 128}")
        for i in range(4):
            a(f"buffer_load_dwordx4 v{8 + i}, s[12:15], s39 offen offset:{i * 1024}{POL} lds")
        a(f"s_add_u32 m0, s37, {slot + 16384}")
        a(f"s_add_u32 s39, s36, {kk * 128}")
        for i in range(4):
            a(f"buffer_load_dwordx4 v{8 + i}, s[16:19], s39 offen offset:{i * 1024}{POL} lds")

    for kk in range(PRO):
        load_stage(kk)
    stamp(a, 2)
    issued = PRO
    for kk in range(NST):
        a(f"s_waitcnt vmcnt({(issued - 1 - kk) * 8})")
        a("s_barrier")
        n_new = 0
        while issued < NST and issued - NSTG < kk and n_new < 2:
            load_stage(issued)
            issued += 1
            n_new += 1
    stamp(a, 3)
    a(f"s_branch {name}_fin")
    a.label(f"{name}_cons")
    a("s_and_b32 s33, s32, 1")
    a("s_lshr_b32 s34, s32, 1")
    a("v_and_b32 v4, 15, v2")
    a("v_lshrrev_b32 v6, 4, v2")
    a("v_lshrrev_b32 v5, 2, v4")
    a("v_and_b32 v7, 3, v4")
    a("v_lshl_add_u32 v7, v5, 3, v7")
    a("v_lshrrev_b32 v20, 1, v4")
    a("v_lshrrev_b32 v21, 2, v4")
    a("v_lshrrev_b32 v22, 3, v4")
    a("v_xor_b32 v21, v21, v22")
    a("v_and_b32 v21, 1, v21")
    a("v_xor_b32 v20, v20, v21")
    a("v_xor_b32 v20, v20, v6")
    a("v_lshlrev_b32 v20, 4, v20")
    a("v_lshl_add_u32 v20, v7, 7, v20")
    a("s_lshl_b32 s35, s33, 13")
    a("s_lshl_b32 s36, s34, 13")
    a("s_add_u32 s36, s36, 16384")
    for g2 in range(3):
        a(f"v_add_u32 v{8 + 4 * g2}, s35, v20")
        a(f"v_xor_b32 v{9 + 4 * g2}, 64, v{8 + 4 * g2}")
        a(f"v_add_u32 v{10 + 4 * g2}, s36, v20")
        a(f"v_xor_b32 v{11 + 4 * g2}, 64, v{10 + 4 * g2}")
        if g2:
            for r in range(4):
                a(f"v_add_u32 v{8 + 4 * g2 + r}, {65536 * g2}, v{8 + 4 * g2 + r}")
    ACC = 32
    FB = 96
    ST = 160
    for i in range(64):
        a(f"v_mov_b32 v{ACC + i}, 0")
    a("s_lshl_b32 s38, s30, 7")
    a("s_lshl_b32 s39, s33, 6")
    a("s_add_u32 s38, s38, s39")
    a("s_lshl_b32 s38, s38, 3")
    a(f"s_add_u32 s38, s38, {WS_STATS}")
    a("v_lshlrev_b32 v23, 6, v6")
    a("v_mov_b32 v24, 0")
    a("s_lshl_b32 s39, s29, 9")
    a("s_lshl_b32 s61, s31, 7")
    a("s_add_u32 s39, s39, s61")
    a("s_lshl_b32 s61, s34, 6")
    a("s_add_u32 s39, s39, s61")
    a("s_lshl_b32 s39, s39, 3")
    a(f"s_add_u32 s61, s39, {WS_CS}")
    a("v_lshlrev_b32 v21, 3, v7")
    a("s_memrealtime s[66:67]")
    a("s_waitcnt lgkmcnt(0)")
    stamp(a, 1)
    srd(a, 20, 46, 47, 14 << 20)
    srd(a, 24, 44, 45, 256)
    a("s_or_b32 s62, s2, s32")
    a("s_cmp_lg_u32 s62, 0")
    a(f"s_cbranch_scc1 {name}_nopub")
    a("s_or_b32 s62, s66, 1")
    a("v_mov_b32 v25, s62")
    a("buffer_store_dword v25, v24, s[24:27], 0 offen sc0 sc1")
    a(f"s_mov_b32 s62, {13 << 20}")
    a("buffer_store_dword v25, v24, s[20:23], s62 offen sc0 sc1")
    a.label(f"{name}_nopub")
    NU = NST * 2

    def read_list(u):
        s, ks = u // 2, u % 2
        slot = s % NSTG
        g2, so = slot // 2, (slot % 2) * SLOT
        f = FB + 32 * (u % 2)
        L = []
        for i in range(4):
            off = so + (i >> 1) * 4096 + (i & 1) * 512
            L.append(f"ds_read_b128 v[{f + 4 * i}:{f + 3 + 4 * i}], v{8 + 4 * g2 + ks} offset:{off}")
            L.append(f"ds_read_b128 v[{f + 16 + 4 * i}:{f + 19 + 4 * i}], v{10 + 4 * g2 + ks} offset:{off}")
        return L

    def stats_loads():
        for blk in range(2):
            for q4 in range(4):
                r = ST + 16 * blk + 4 * q4
                a(f"buffer_load_dwordx4 v[{r}:{r + 3}], v23, s[20:23], s38 offen offset:{256 * blk + 16 * q4} sc1")
        for T in range(4):
            a(f"buffer_load_dwordx2 v[{192 + 2 * T}:{193 + 2 * T}], v21, s[20:23], s61 offen offset:{(T >> 1) * 256 + (T & 1) * 32} sc1")
        a("buffer_load_dword v25, v24, s[24:27], 0 offen sc1")

    a("s_barrier")
    stamp(a, 2)
    for r in read_list(0):
        a(r)
    for u in range(NU):
        a("s_waitcnt lgkmcnt(0)")
        f = FB + 32 * (u % 2)
        nxt = read_list(u + 1) if u + 1 < NU else []
        n = 0
        for xi in range(4):
            for T in range(4):
                acc = ACC + (xi * 4 + T) * 4
                a(f"v_mfma_f32_16x16x32_bf16 v[{acc}:{acc + 3}], v[{f + 4 * xi}:{f + 3 + 4 * xi}], v[{f + 16 + 4 * T}:{f + 19 + 4 * T}], v[{acc}:{acc + 3}]")
                n += 1
                if n == 1 and nxt and (u + 1) % 2 == 0:
                    a("s_barrier")
                if nxt:
                    a(nxt.pop(0))
                if u == U1 and n == 10:
                    stats_loads()
    stamp(a, 3)
    a.label(f"{name}_chk")
    a("s_waitcnt vmcnt(0)")
    a("v_cmp_eq_u32 vcc, 0, v25")
    a("s_mov_b64 s[62:63], vcc")
    for r in range(16):
        a(f"v_cmp_ne_u32 vcc, v25, v{ST + 2 * r + 1}")
        a("s_or_b64 s[62:63], s[62:63], vcc")
    for T in range(4):
        a(f"v_cmp_ne_u32 vcc, v25, v{193 + 2 * T}")
        a("s_or_b64 s[62:63], s[62:63], vcc")
    a(f"s_cbranch_scc0 {name}_have")
    a("s_sleep 4")
    stats_loads()
    a(f"s_branch {name}_chk")
    a.label(f"{name}_have")
    stamp(a, 4)
    for r in range(16):
        a(f"v_lshlrev_b32 v{ST + 2 * r + 1}, 16, v{ST + 2 * r}")
        a(f"v_rcp_f32 v{ST + 2 * r + 1}, v{ST + 2 * r + 1}")
        a(f"v_and_b32 v{ST + 2 * r}, s53, v{ST + 2 * r}")
    a("s_lshl_b32 s35, s29, 5")
    a("s_lshl_b32 s36, s31, 3")
    a("s_add_u32 s35, s35, s36")
    a("s_lshl_b32 s36, s34, 2")
    a("s_add_u32 s35, s35, s36")
    a("s_lshl_b32 s35, s35, 6")
    a("s_lshl_b32 s36, s30, 2")
    a("s_add_u32 s35, s35, s36")
    a("s_lshl_b32 s36, s33, 1")
    a("s_add_u32 s35, s35, s36")
    a("s_lshl_b32 s35, s35, 10")
    for T in range(4):
        a(f"s_add_u32 s{40 + T}, s35, {T * 65536}")
    a("v_lshlrev_b32 v22, 4, v2")
    a("s_waitcnt vmcnt(0) lgkmcnt(0)")
    for blk in range(2):
        for T in range(4):
            o = 132 + 4 * ((blk * 4 + T) & 3)
            for hb in range(2):
                acc = ACC + ((blk * 2 + hb) * 4 + T) * 4
                for j in range(4):
                    sr = ST + 16 * blk + 2 * (4 * hb + j)
                    a(f"v_fma_f32 v{acc + j}, -v{sr}, v{192 + 2 * T}, v{acc + j}")
                    a(f"v_mul_f32 v{acc + j}, v{acc + j}, v{sr + 1}")
                a(f"v_cvt_pk_bf16_f32 v{o + 2 * hb}, v{acc}, v{acc + 1}")
                a(f"v_cvt_pk_bf16_f32 v{o + 2 * hb + 1}, v{acc + 2}, v{acc + 3}")
            a(f"buffer_store_dwordx4 v[{o}:{o + 3}], v22, s[20:23], s{40 + T} offen offset:{blk * 1024}" + (" sc0 sc1" if wt else ""))
    stamp(a, 5)
    a(f"s_branch {name}_fin")
    a.label(f"{name}_aux")
    a("v_lshlrev_b32 v6, 7, v2")
    a("v_lshrrev_b32 v3, 4, v2")
    a("v_and_b32 v4, 15, v2")
    a("v_lshlrev_b32 v7, 12, v3")
    a("v_lshl_add_u32 v7, v4, 7, v7")
    a("v_lshlrev_b32 v5, 10, v3")
    a("v_lshl_add_u32 v5, v4, 4, v5")
    a("s_lshl_b32 s35, s28, 3")
    a("s_add_u32 s56, s35, s3")
    a("s_add_u32 s35, s35, s32")
    a("s_lshl_b32 s48, s26, 10")
    a("s_lshl_b32 s49, s35, 3")
    a("s_add_u32 s48, s48, s49")
    a("s_lshl_b32 s48, s48, 12")
    a("s_lshl_b32 s49, s27, 11")
    a("s_add_u32 s48, s48, s49")
    a("s_add_u32 s49, s48, 16384")
    a("s_waitcnt lgkmcnt(0)")
    stamp(a, 1)
    srd(a, 12, 4, 5, S * D * 2)
    srd(a, 20, 46, 47, 14 << 20)
    srd(a, 28, 44, 45, 256)
    a("s_cmp_ge_u32 s32, 6")
    a(f"s_cbranch_scc1 {name}_touch")
    a("s_cmp_ge_u32 s32, 4")
    a(f"s_cbranch_scc1 {name}_csw")
    a("s_lshl_b32 s33, s56, 4")
    a("s_lshl_b32 s34, s32, 2")
    a("s_add_u32 s33, s33, s34")
    a("s_lshl_b32 s34, s33, 10")
    for jj in range(4):
        a(f"buffer_load_dwordx4 v[{16 + 4 * jj}:{19 + 4 * jj}], v5, s[12:15], s34 offen offset:{256 * jj}")
    a("v_mov_b32 v9, 0")
    a.label(f"{name}_nl1")
    a("buffer_load_dword v15, v9, s[28:31], 0 offen sc1")
    a("s_waitcnt vmcnt(0)")
    a("v_readfirstlane_b32 s57, v15")
    a("s_cmp_lg_u32 s57, 0")
    a(f"s_cbranch_scc1 {name}_nd1")
    a("s_sleep 1")
    a(f"s_branch {name}_nl1")
    a.label(f"{name}_nd1")
    stamp(a, 2)
    X = 32
    for r in range(16):
        a(f"v_lshlrev_b32 v{X + 2 * r}, 16, v{16 + r}")
        a(f"v_and_b32 v{X + 2 * r + 1}, s53, v{16 + r}")
    a(f"v_add_f32 v8, v{X}, v{X + 1}")
    a(f"v_add_f32 v9, v{X + 2}, v{X + 3}")
    for r in range(4, 32, 2):
        a(f"v_add_f32 v8, v8, v{X + r}")
        a(f"v_add_f32 v9, v9, v{X + r + 1}")
    a("v_add_f32 v8, v8, v9")

    def red16(v):
        for pat in ("quad_perm:[1,0,3,2]", "quad_perm:[2,3,0,1]", "row_half_mirror", "row_mirror"):
            a("s_nop 1")
            a(f"v_add_f32_dpp v{v}, v{v}, v{v} {pat} {DPP}")

    red16(8)
    a("v_mul_f32 v8, 0x3b000000, v8")
    a("v_mov_b32 v10, 0")
    a("v_mov_b32 v11, 0")
    for r in range(0, 32, 2):
        a(f"v_sub_f32 v{X + r}, v{X + r}, v8")
        a(f"v_sub_f32 v{X + r + 1}, v{X + r + 1}, v8")
        a(f"v_fmac_f32 v10, v{X + r}, v{X + r}")
        a(f"v_fmac_f32 v11, v{X + r + 1}, v{X + r + 1}")
    a("v_add_f32 v10, v10, v11")
    red16(10)
    a("v_mul_f32 v10, 0x3b000000, v10")
    a("v_cvt_pk_bf16_f32 v12, v8, v8")
    a("v_lshlrev_b32 v12, 16, v12")
    a("v_cvt_pk_bf16_f32 v10, v10, v10")
    a("v_lshlrev_b32 v10, 16, v10")
    a("v_add_f32 v10, 0x3727c5ac, v10")
    a("v_cvt_pk_bf16_f32 v10, v10, v10")
    a("v_lshlrev_b32 v10, 16, v10")
    a("v_sqrt_f32 v10, v10")
    a("s_nop 0")
    a("v_cvt_pk_bf16_f32 v10, v10, v10")
    a("v_and_b32 v10, 0xffff, v10")
    a("v_or_b32 v12, v12, v10")
    a("v_mov_b32 v13, v15")
    a("v_lshlrev_b32 v14, 3, v3")
    a("s_lshl_b32 s36, s33, 3")
    a(f"s_add_u32 s36, s36, {WS_STATS}")
    a("v_cmp_eq_u32 vcc, 0, v4")
    a("s_and_saveexec_b64 s[54:55], vcc")
    a("buffer_store_dwordx2 v[12:13], v14, s[20:23], s36 offen sc0 sc1")
    a("s_mov_b64 exec, s[54:55]")
    a(f"s_branch {name}_auxj")
    a.label(f"{name}_csw")
    a("s_lshl_b32 s33, s56, 3")
    a("s_sub_u32 s34, s32, 4")
    a("s_lshl_b32 s34, s34, 2")
    a("s_add_u32 s33, s33, s34")
    a("s_cmp_ge_u32 s33, 512")
    a("s_cselect_b32 s58, s10, s8")
    a("s_cselect_b32 s59, s11, s9")
    srd(a, 16, 58, 59, D * D * 2)
    a("s_and_b32 s34, s33, 511")
    a("s_lshl_b32 s34, s34, 10")
    for jj in range(4):
        a(f"buffer_load_dwordx4 v[{16 + 4 * jj}:{19 + 4 * jj}], v5, s[16:19], s34 offen offset:{256 * jj}")
    a("v_mov_b32 v8, 0")
    a("v_mov_b32 v9, 0")
    a.label(f"{name}_nl2")
    a("buffer_load_dword v15, v9, s[28:31], 0 offen sc1")
    a("s_waitcnt vmcnt(0)")
    a("v_readfirstlane_b32 s57, v15")
    a("s_cmp_lg_u32 s57, 0")
    a(f"s_cbranch_scc1 {name}_nd2")
    a("s_sleep 1")
    a(f"s_branch {name}_nl2")
    a.label(f"{name}_nd2")
    for r in range(16):
        a(f"v_lshlrev_b32 v{32 + 2 * (r & 3)}, 16, v{16 + r}")
        a(f"v_and_b32 v{33 + 2 * (r & 3)}, s53, v{16 + r}")
        a(f"v_add_f32 v8, v8, v{32 + 2 * (r & 3)}")
        a(f"v_add_f32 v9, v9, v{33 + 2 * (r & 3)}")
    a("v_add_f32 v8, v8, v9")
    red16(8)
    a("v_lshlrev_b32 v14, 3, v3")
    a("v_mov_b32 v9, v15")
    a("s_lshl_b32 s36, s33, 3")
    a(f"s_add_u32 s36, s36, {WS_CS}")
    a("v_cmp_eq_u32 vcc, 0, v4")
    a("s_and_saveexec_b64 s[54:55], vcc")
    a("buffer_store_dwordx2 v[8:9], v14, s[20:23], s36 offen sc0 sc1")
    a("s_mov_b64 exec, s[54:55]")
    a(f"s_branch {name}_auxj")
    a.label(f"{name}_touch")
    a("s_cmp_eq_u32 s29, 1")
    a("s_cselect_b32 s58, s10, s8")
    a("s_cselect_b32 s59, s11, s9")
    srd(a, 16, 58, 59, D * D * 2)
    a("s_lshl_b32 s36, s27, 20")
    a("s_lshl_b32 s37, s26, 19")
    a("s_add_u32 s36, s36, s37")
    a("s_lshl_b32 s37, s28, 1")
    a("s_add_u32 s37, s37, s32")
    a("s_sub_u32 s37, s37, 6")
    a("s_lshl_b32 s37, s37, 14")
    a("s_add_u32 s36, s36, s37")
    a("buffer_load_dword v10, v6, s[12:15], s36 offen")
    a("buffer_load_dword v11, v6, s[16:19], s37 offen")
    a("s_add_u32 s36, s36, 8192")
    a("s_add_u32 s37, s37, 8192")
    a("buffer_load_dword v12, v6, s[12:15], s36 offen")
    a("buffer_load_dword v13, v6, s[16:19], s37 offen")
    a.label(f"{name}_auxj")
    a("s_cmp_eq_u32 s29, 1")
    a("s_cselect_b32 s40, s42, s40")
    a("s_cselect_b32 s41, s43, s41")
    srd(a, 24, 40, 41, S * S * 2)
    a("s_barrier")
    stamp(a, 3)
    if pf:
        if pfq < 4:
            a(f"v_cmp_gt_u32 vcc, {4 * pfq}, v4")
            a("s_and_saveexec_b64 s[54:55], vcc")
        a(f"buffer_load_dword v12, v7, s[24:27], s48 offen{PPOL}")
        a(f"buffer_load_dword v13, v7, s[24:27], s49 offen{PPOL}")
        if pfq < 4:
            a("s_mov_b64 exec, s[54:55]")
    a.label(f"{name}_fin")
    stamp_flush(a, 1, 6, 46, 47)
    a.label(f"{name}_done")
    a("s_endpgm")
    return kernel_desc(name, 200, 72, 200)


def gen_k3(a, name):
    kernel_begin(a, name)
    a("s_cmp_ge_u32 s2, 256")
    a(f"s_cbranch_scc1 {name}_done")
    stamp(a, 0)
    a("s_load_dwordx2 s[4:5], s[0:1], 0")
    a("s_load_dwordx2 s[6:7], s[0:1], 48")
    a("s_load_dwordx2 s[8:9], s[0:1], 80")
    a("s_load_dwordx2 s[10:11], s[0:1], 96")
    a("v_lshrrev_b32 v1, 6, v0")
    a("v_and_b32 v2, 63, v0")
    a("s_nop 0")
    a("v_readfirstlane_b32 s32, v1")
    a("v_lshlrev_b32 v3, 4, v2")
    a("s_waitcnt lgkmcnt(0)")
    stamp(a, 1)
    srd(a, 12, 4, 5, S * D * 2)
    srd(a, 16, 6, 7, D * 2)
    srd(a, 20, 8, 9, S * D * 2)
    srd(a, 24, 10, 11, 14 << 20)
    a("s_lshl_b32 s33, s2, 3")
    a("s_lshl_b32 s34, s32, 1")
    a("s_add_u32 s33, s33, s34")
    a("s_lshl_b32 s34, s33, 10")
    a(f"s_add_u32 s35, s34, {WS_P}")
    a(f"s_add_u32 s36, s34, {WS_P + (4 << 20)}")
    a(f"s_add_u32 s43, s34, {WS_P + (2 << 20)}")
    a(f"s_add_u32 s44, s34, {WS_P + (6 << 20)}")
    for R in range(2):
        B = 16 + 64 * R
        a(f"buffer_load_dwordx4 v[{B}:{B + 3}], v3, s[24:27], s35 offen offset:{1024 * R}")
        a(f"buffer_load_dwordx4 v[{B + 12}:{B + 15}], v3, s[24:27], s43 offen offset:{1024 * R}")
        a(f"buffer_load_dwordx4 v[{B + 4}:{B + 7}], v3, s[24:27], s36 offen offset:{1024 * R}")
        a(f"buffer_load_dwordx4 v[{B + 56}:{B + 59}], v3, s[24:27], s44 offen offset:{1024 * R}")
        a(f"buffer_load_dwordx4 v[{B + 8}:{B + 11}], v3, s[12:15], s34 offen offset:{1024 * R}")
    a("buffer_load_dwordx4 v[8:11], v3, s[16:19], 0 offen")
    a("s_mov_b32 s53, 0xffff0000")
    a("s_waitcnt vmcnt(1)")
    stamp(a, 2)

    def unpack(dst, src):
        a(f"v_lshlrev_b32 v{dst}, 16, v{src}")
        a(f"v_and_b32 v{dst + 1}, s53, v{src}")

    for R in range(2):
        B = 16 + 64 * R
        H, T = B + 16, B + 24
        for i in range(4):
            unpack(T, B + i)
            unpack(T + 2, B + 12 + i)
            unpack(T + 4, B + 4 + i)
            unpack(T + 6, B + 56 + i)
            a(f"v_add_f32 v{T}, v{T}, v{T + 2}")
            a(f"v_add_f32 v{T + 1}, v{T + 1}, v{T + 3}")
            a(f"v_add_f32 v{T + 4}, v{T + 4}, v{T + 6}")
            a(f"v_add_f32 v{T + 5}, v{T + 5}, v{T + 7}")
            a(f"v_cvt_pk_bf16_f32 v{T + 8}, v{T}, v{T + 1}")
            a(f"v_cvt_pk_bf16_f32 v{T + 9}, v{T + 4}, v{T + 5}")
            unpack(T, T + 8)
            unpack(T + 2, T + 9)
            a(f"v_sub_f32 v{T}, v{T}, v{T + 2}")
            a(f"v_sub_f32 v{T + 1}, v{T + 1}, v{T + 3}")
            a(f"v_cvt_pk_bf16_f32 v{T + 4}, v{T}, v{T + 1}")
            unpack(T, T + 4)
            unpack(T + 2, B + 8 + i)
            a(f"v_add_f32 v{T}, v{T + 2}, v{T}")
            a(f"v_add_f32 v{T + 1}, v{T + 3}, v{T + 1}")
            a(f"v_cvt_pk_bf16_f32 v{B + 40 + i}, v{T}, v{T + 1}")
            unpack(H + 2 * i, B + 40 + i)
        St = B + 48
        a(f"v_add_f32 v{St}, v{H}, v{H + 1}")
        for i in range(2, 8):
            a(f"v_add_f32 v{St}, v{St}, v{H + i}")
    for R in range(2):
        B = 16 + 64 * R
        wave_allreduce(a, "v_add_f32", B + 48, B + 49)
    for R in range(2):
        B = 16 + 64 * R
        H, T, St = B + 16, B + 24, B + 48
        a(f"v_mul_f32 v{St}, 0x3b000000, v{St}")
        a(f"v_cvt_pk_bf16_f32 v{St + 1}, v{St}, v{St}")
        a(f"v_lshlrev_b32 v{St + 1}, 16, v{St + 1}")
        for i in range(8):
            a(f"v_sub_f32 v{T + i}, v{H + i}, v{St}")
        a(f"v_mul_f32 v{St + 2}, v{T}, v{T}")
        for i in range(1, 8):
            a(f"v_fmac_f32 v{St + 2}, v{T + i}, v{T + i}")
    for R in range(2):
        B = 16 + 64 * R
        wave_allreduce(a, "v_add_f32", B + 50, B + 51)
    a("s_waitcnt vmcnt(0)")
    for R in range(2):
        B = 16 + 64 * R
        H, T, St = B + 16, B + 24, B + 48
        v = St + 2
        a(f"v_mul_f32 v{v}, 0x3b000000, v{v}")
        a(f"v_cvt_pk_bf16_f32 v{v}, v{v}, v{v}")
        a(f"v_lshlrev_b32 v{v}, 16, v{v}")
        a(f"v_add_f32 v{v}, 0x3727c5ac, v{v}")
        a(f"v_cvt_pk_bf16_f32 v{v}, v{v}, v{v}")
        a(f"v_lshlrev_b32 v{v}, 16, v{v}")
        a(f"v_sqrt_f32 v{v}, v{v}")
        a("s_nop 0")
        a(f"v_cvt_pk_bf16_f32 v{v}, v{v}, v{v}")
        a(f"v_lshlrev_b32 v{v}, 16, v{v}")
        a(f"v_rcp_f32 v{v}, v{v}")
        a("s_nop 0")
        a(f"v_mov_b32 v{St + 4}, 0")
        for i in range(4):
            a(f"v_sub_f32 v{T}, v{H + 2 * i}, v{St + 1}")
            a(f"v_sub_f32 v{T + 1}, v{H + 2 * i + 1}, v{St + 1}")
            a(f"v_cvt_pk_bf16_f32 v{T + 2}, v{T}, v{T + 1}")
            unpack(T, T + 2)
            a(f"v_mul_f32 v{T}, v{T}, v{v}")
            a(f"v_mul_f32 v{T + 1}, v{T + 1}, v{v}")
            a(f"v_cvt_pk_bf16_f32 v{B + 44 + i}, v{T}, v{T + 1}")
            unpack(T, B + 44 + i)
            a(f"v_add_f32 v{T}, v{H + 2 * i}, v{T}")
            a(f"v_add_f32 v{T + 1}, v{H + 2 * i + 1}, v{T + 1}")
            a(f"v_cvt_pk_bf16_f32 v{B + 4 + i}, v{T}, v{T + 1}")
            a(f"v_dot2_f32_bf16 v{St + 4}, v{B + 44 + i}, v{8 + i}, v{St + 4}")
        a(f"buffer_store_dwordx4 v[{B + 4}:{B + 7}], v3, s[20:23], s34 offen offset:{1024 * R}")
    a("s_nop 2")
    for R in range(2):
        B = 16 + 64 * R
        wave_allreduce(a, "v_add_f32", B + 52, B + 53)
    for R in range(2):
        B = 16 + 64 * R
        v = B + 52
        a(f"v_cvt_pk_bf16_f32 v{v}, v{v}, v{v}")
        a(f"v_lshlrev_b32 v{v}, 16, v{v}")
        a(f"v_ashrrev_i32 v{v + 1}, 31, v{v}")
        a(f"v_or_b32 v{v + 1}, 0x80000000, v{v + 1}")
        a(f"v_xor_b32 v{v}, v{v}, v{v + 1}")
        a(f"v_and_b32 v{v}, s53, v{v}")
        a(f"s_sub_u32 s37, {2047 - R}, s33")
        a(f"v_or_b32 v{v}, s37, v{v}")
    a("v_max_u32 v4, v68, v132")
    a("s_lshl_b32 s37, s32, 2")
    a("v_mov_b32 v5, s37")
    a("ds_write_b32 v5, v4")
    stamp(a, 3)
    a("s_waitcnt lgkmcnt(0)")
    a("s_barrier")
    a("v_mov_b32 v5, 0")
    a("ds_read_b128 v[12:15], v5")
    a("s_waitcnt lgkmcnt(0)")
    a("v_max_u32 v12, v12, v13")
    a("v_max_u32 v14, v14, v15")
    a("v_max_u32 v12, v12, v14")
    a("s_nop 0")
    a("v_readfirstlane_b32 s38, v12")
    a("v_readfirstlane_b32 s39, v68")
    a("v_readfirstlane_b32 s40, v132")
    a(f"s_lshl_b32 s41, s2, 11")
    a(f"s_add_u32 s41, s41, {WS_CROW}")
    a(f"s_lshl_b32 s42, s2, 2")
    a(f"s_add_u32 s42, s42, {WS_CAND}")
    a("v_mov_b32 v5, 0")
    for R in range(2):
        B = 16 + 64 * R
        a(f"s_cmp_lg_u32 s38, s{39 + R}")
        a(f"s_cbranch_scc1 {name}_nw{R}")
        a(f"buffer_store_dwordx4 v[{B + 40}:{B + 43}], v3, s[24:27], s41 offen")
        a(f"buffer_store_dwordx4 v[{B + 44}:{B + 47}], v3, s[24:27], s41 offen offset:1024")
        a(f"buffer_store_dword v12, v5, s[24:27], s42 offen")
        a.label(f"{name}_nw{R}")
    stamp_flush(a, 3, 4, 10, 11)
    a.label(f"{name}_done")
    a("s_endpgm")
    return kernel_desc(name, 144, 64, 144)


NSL = 56


def emit_winner(a, vkey, t, ldsaddr_tmp, s_out):
    wave_allreduce(a, "v_max_u32", vkey, t)
    a("s_lshl_b32 s37, s32, 2")
    a(f"v_mov_b32 v{ldsaddr_tmp}, s37")
    a(f"ds_write_b32 v{ldsaddr_tmp}, v{vkey}")
    a("s_waitcnt lgkmcnt(0)")
    a("s_barrier")
    a(f"v_mov_b32 v{ldsaddr_tmp}, 0")
    a(f"ds_read_b64 v[{t}:{t + 1}], v{ldsaddr_tmp}")
    a(f"ds_read_b64 v[{t + 2}:{t + 3}], v{ldsaddr_tmp} offset:8")
    a("s_waitcnt lgkmcnt(0)")
    a(f"v_max_u32 v{t}, v{t}, v{t + 1}")
    a(f"v_max_u32 v{t + 2}, v{t + 2}, v{t + 3}")
    a(f"v_max_u32 v{t}, v{t}, v{t + 2}")
    a("s_nop 0")
    a(f"v_readfirstlane_b32 s{s_out}, v{t}")


def gen_k4(a, name):
    kernel_begin(a, name)
    a(f"s_cmp_ge_u32 s2, {NSL}")
    a(f"s_cbranch_scc1 {name}_done")
    stamp(a, 0)
    a("s_load_dwordx4 s[4:7], s[0:1], 56")
    a("s_load_dwordx2 s[8:9], s[0:1], 72")
    a("s_load_dwordx2 s[10:11], s[0:1], 96")
    a("v_lshrrev_b32 v1, 6, v0")
    a("v_and_b32 v2, 63, v0")
    a("s_nop 0")
    a("v_readfirstlane_b32 s32, v1")
    a("v_lshrrev_b32 v3, 2, v0")
    a("v_and_b32 v4, 3, v0")
    a("v_lshlrev_b32 v5, 2, v0")
    a("s_mov_b32 s33, 28672")
    a("v_mul_lo_u32 v6, v3, s33")
    a("v_lshl_add_u32 v6, v4, 4, v6")
    a("v_lshlrev_b32 v7, 4, v2")
    a("s_waitcnt lgkmcnt(0)")
    stamp(a, 1)
    srd(a, 12, 4, 5, D * F * 2)
    srd(a, 16, 6, 7, D * F * 2)
    srd(a, 20, 8, 9, D * F * 2)
    srd(a, 24, 10, 11, 14 << 20)
    a(f"s_mov_b32 s34, {WS_CAND}")
    a("buffer_load_dword v8, v5, s[24:27], s34 offen")
    a("s_lshl_b32 s34, s2, 6")
    G, U, W = 32, 64, 96
    for j in range(8):
        a(f"s_add_u32 s35, s34, {3584 * j}")
        a(f"buffer_load_dwordx4 v[{G + 4 * j}:{G + 4 * j + 3}], v6, s[12:15], s35 offen")
        a(f"buffer_load_dwordx4 v[{U + 4 * j}:{U + 4 * j + 3}], v6, s[16:19], s35 offen")
    a("s_lshl_b32 s35, s2, 5")
    a("s_lshl_b32 s36, s32, 3")
    a("s_add_u32 s35, s35, s36")
    a("s_lshl_b32 s35, s35, 10")
    for j in range(8):
        a(f"s_add_u32 s36, s35, {1024 * j}")
        a(f"buffer_load_dwordx4 v[{W + 4 * j}:{W + 4 * j + 3}], v7, s[20:23], s36 offen")
    a("s_waitcnt vmcnt(24)")
    stamp(a, 2)
    emit_winner(a, 8, 12, 9, 38)
    stamp(a, 3)
    a("s_and_b32 s39, s38, 0xffff")
    a("s_sub_u32 s39, 2047, s39")
    a("s_lshr_b32 s39, s39, 3")
    a("s_lshl_b32 s39, s39, 11")
    a(f"s_add_u32 s39, s39, {WS_CROW + 1024}")
    a("v_lshlrev_b32 v9, 4, v3")
    a("v_add_u32 v9, s39, v9")
    a("buffer_load_dwordx4 v[12:15], v9, s[24:27], 0 offen")
    a("s_mov_b32 s53, 0xffff0000")
    A = 128
    for i in range(16):
        a(f"v_mov_b32 v{A + i}, 0")
    a("s_waitcnt vmcnt(0)")
    stamp(a, 4)
    X = 16
    for i in range(4):
        a(f"v_lshlrev_b32 v{X + 2 * i}, 16, v{12 + i}")
        a(f"v_and_b32 v{X + 2 * i + 1}, s53, v{12 + i}")
    for j in range(8):
        for (M, ao) in ((G, 0), (U, 8)):
            for i in range(4):
                t = 24 + 2 * (i & 1)
                a(f"v_lshlrev_b32 v{t}, 16, v{M + 4 * j + i}")
                a(f"v_and_b32 v{t + 1}, s53, v{M + 4 * j + i}")
                a(f"v_fmac_f32 v{A + ao + 2 * i}, v{X + j}, v{t}")
                a(f"v_fmac_f32 v{A + ao + 2 * i + 1}, v{X + j}, v{t + 1}")
    a("s_nop 1")
    for i in range(8):
        a(f"v_permlane32_swap_b32 v{A + i}, v{A + i + 8}")
    a("s_nop 1")
    for i in range(8):
        a(f"v_add_f32 v{A + i}, v{A + i}, v{A + i + 8}")
    a("s_nop 1")
    for i in range(4):
        a(f"v_permlane16_swap_b32 v{A + i}, v{A + i + 4}")
    a("s_nop 1")
    for i in range(4):
        a(f"v_add_f32 v{A + i}, v{A + i}, v{A + i + 4}")
    a("s_nop 1")
    for i in range(4):
        a(f"v_add_f32_dpp v{A + i}, v{A + i}, v{A + i} row_ror:4 {DPP}")
    a("s_nop 1")
    for i in range(4):
        a(f"v_add_f32_dpp v{A + i}, v{A + i}, v{A + i} row_ror:8 {DPP}")
    a("v_and_b32 v9, 3, v2")
    a("v_lshlrev_b32 v9, 5, v9")
    a("v_bfe_u32 v10, v2, 4, 1")
    a("v_lshl_add_u32 v9, v10, 4, v9")
    a("v_bfe_u32 v10, v2, 5, 1")
    a("v_lshl_add_u32 v9, v10, 7, v9")
    a("s_lshl_b32 s37, s32, 8")
    a("v_add_u32 v9, s37, v9")
    a(f"ds_write_b128 v9, v[{A}:{A + 3}] offset:64")
    a("s_waitcnt lgkmcnt(0)")
    a("s_barrier")
    stamp(a, 5)
    a("v_and_b32 v9, 31, v2")
    a("v_lshlrev_b32 v9, 2, v9")
    for w in range(4):
        a(f"ds_read_b32 v{16 + w}, v9 offset:{64 + 256 * w}")
        a(f"ds_read_b32 v{20 + w}, v9 offset:{64 + 256 * w + 128}")
    a("s_waitcnt lgkmcnt(0)")
    a("v_add_f32 v16, v16, v17")
    a("v_add_f32 v18, v18, v19")
    a("v_add_f32 v20, v20, v21")
    a("v_add_f32 v22, v22, v23")
    a("v_add_f32 v16, v16, v18")
    a("v_add_f32 v20, v20, v22")
    a("v_cvt_pk_bf16_f32 v16, v16, v20")
    a("v_and_b32 v20, s53, v16")
    a("v_lshlrev_b32 v16, 16, v16")
    a("v_mul_f32 v17, 0xbfb8aa3b, v16")
    a("v_exp_f32 v17, v17")
    a("s_nop 0")
    a("v_add_f32 v17, 1.0, v17")
    a("v_rcp_f32 v17, v17")
    a("s_nop 0")
    a("v_mul_f32 v16, v16, v17")
    a("v_cvt_pk_bf16_f32 v16, v16, v16")
    a("v_lshlrev_b32 v16, 16, v16")
    a("v_mul_f32 v16, v16, v20")
    a("v_cvt_pk_bf16_f32 v16, v16, v16")
    a("v_lshlrev_b32 v16, 16, v16")
    a("s_lshl_b32 s37, s32, 3")
    for j in range(8):
        a(f"s_add_u32 s36, s37, {j}")
        a("s_nop 0")
        a(f"v_readlane_b32 s{40 + j}, v16, s36")
    for i in range(8):
        a(f"v_mov_b32 v{A + i}, 0")
    a("s_nop 1")
    for j in range(8):
        for i in range(4):
            t = 24 + 2 * (i & 1)
            a(f"v_lshlrev_b32 v{t}, 16, v{W + 4 * j + i}")
            a(f"v_and_b32 v{t + 1}, s53, v{W + 4 * j + i}")
            a(f"v_fmac_f32 v{A + 2 * i}, s{40 + j}, v{t}")
            a(f"v_fmac_f32 v{A + 2 * i + 1}, s{40 + j}, v{t + 1}")
    a("v_lshlrev_b32 v9, 5, v2")
    a("s_lshl_b32 s37, s32, 11")
    a("v_add_u32 v9, s37, v9")
    a(f"ds_write_b128 v9, v[{A}:{A + 3}] offset:2048")
    a(f"ds_write_b128 v9, v[{A + 4}:{A + 7}] offset:2064")
    a("s_waitcnt lgkmcnt(0)")
    a("s_barrier")
    a("v_lshlrev_b32 v9, 3, v0")
    for w in range(4):
        a(f"ds_read_b64 v[{16 + 2 * w}:{17 + 2 * w}], v9 offset:{2048 + 2048 * w}")
    a("s_waitcnt lgkmcnt(0)")
    a("v_add_f32 v16, v16, v18")
    a("v_add_f32 v17, v17, v19")
    a("v_add_f32 v20, v20, v22")
    a("v_add_f32 v21, v21, v23")
    a("v_add_f32 v16, v16, v20")
    a("v_add_f32 v17, v17, v21")
    a("s_lshl_b32 s37, s2, 11")
    a(f"s_add_u32 s37, s37, {WS_SLAB}")
    a("buffer_store_dwordx2 v[16:17], v9, s[24:27], s37 offen")
    stamp_flush(a, 4, 6, 10, 11)
    a.label(f"{name}_done")
    a("s_endpgm")
    return kernel_desc(name, 144, 64, 144)


def gen_k3b(a, name, wpf=0):
    kernel_begin(a, name)
    a("s_cmp_ge_u32 s2, 256")
    a(f"s_cbranch_scc1 {name}_done")
    stamp(a, 0)
    a("s_load_dwordx2 s[4:5], s[0:1], 0")
    a("s_load_dwordx2 s[6:7], s[0:1], 48")
    a("s_load_dwordx2 s[8:9], s[0:1], 80")
    a("s_load_dwordx2 s[10:11], s[0:1], 96")
    if wpf:
        a("s_load_dwordx4 s[56:59], s[0:1], 56")
        a("s_load_dwordx2 s[60:61], s[0:1], 72")
    a("v_lshrrev_b32 v1, 6, v0")
    a("v_and_b32 v2, 63, v0")
    a("s_nop 0")
    a("v_readfirstlane_b32 s32, v1")
    a("v_lshlrev_b32 v3, 4, v2")
    a("s_lshl_b32 s33, s2, 3")
    a("s_add_u32 s33, s33, s32")
    a("s_lshl_b32 s34, s33, 10")
    a(f"s_add_u32 s35, s34, {WS_P}")
    a(f"s_add_u32 s36, s34, {WS_P + (4 << 20)}")
    a(f"s_add_u32 s43, s34, {WS_P + (2 << 20)}")
    a(f"s_add_u32 s44, s34, {WS_P + (6 << 20)}")
    a("s_mov_b32 s53, 0xffff0000")
    a("s_waitcnt lgkmcnt(0)")
    stamp(a, 1)
    srd(a, 24, 10, 11, 14 << 20)
    B = 16
    a(f"buffer_load_dwordx4 v[{B}:{B + 3}], v3, s[24:27], s35 offen")
    a(f"buffer_load_dwordx4 v[{B + 12}:{B + 15}], v3, s[24:27], s43 offen")
    a(f"buffer_load_dwordx4 v[{B + 4}:{B + 7}], v3, s[24:27], s36 offen")
    a(f"buffer_load_dwordx4 v[{B + 56}:{B + 59}], v3, s[24:27], s44 offen")
    srd(a, 12, 4, 5, S * D * 2)
    a(f"buffer_load_dwordx4 v[{B + 8}:{B + 11}], v3, s[12:15], s34 offen")
    srd(a, 16, 6, 7, D * 2)
    a("buffer_load_dwordx4 v[8:11], v3, s[16:19], 0 offen")
    if wpf:
        a("s_sub_u32 s45, s32, 5")
        a("s_min_u32 s45, s45, 3")
        emit_wtouch(a, "s45", 120, 121)
    srd(a, 20, 8, 9, S * D * 2)
    a(f"s_waitcnt vmcnt({2 if wpf else 1})")
    stamp(a, 2)

    def unpack(dst, src):
        a(f"v_lshlrev_b32 v{dst}, 16, v{src}")
        a(f"v_and_b32 v{dst + 1}, s53, v{src}")

    H = B + 16
    TT = [80 + 10 * i for i in range(4)]
    steps = []
    for i in range(4):
        T = TT[i]
        steps.append([
            f"v_lshlrev_b32 v{T}, 16, v{B + i}", f"v_and_b32 v{T + 1}, s53, v{B + i}",
            f"v_lshlrev_b32 v{T + 2}, 16, v{B + 12 + i}", f"v_and_b32 v{T + 3}, s53, v{B + 12 + i}",
            f"v_lshlrev_b32 v{T + 4}, 16, v{B + 4 + i}", f"v_and_b32 v{T + 5}, s53, v{B + 4 + i}",
            f"v_lshlrev_b32 v{T + 6}, 16, v{B + 56 + i}", f"v_and_b32 v{T + 7}, s53, v{B + 56 + i}",
            f"v_add_f32 v{T}, v{T}, v{T + 2}", f"v_add_f32 v{T + 1}, v{T + 1}, v{T + 3}",
            f"v_add_f32 v{T + 4}, v{T + 4}, v{T + 6}", f"v_add_f32 v{T + 5}, v{T + 5}, v{T + 7}",
            f"v_cvt_pk_bf16_f32 v{T + 8}, v{T}, v{T + 1}", f"v_cvt_pk_bf16_f32 v{T + 9}, v{T + 4}, v{T + 5}",
            f"v_lshlrev_b32 v{T}, 16, v{T + 8}", f"v_and_b32 v{T + 1}, s53, v{T + 8}",
            f"v_lshlrev_b32 v{T + 2}, 16, v{T + 9}", f"v_and_b32 v{T + 3}, s53, v{T + 9}",
            f"v_sub_f32 v{T}, v{T}, v{T + 2}", f"v_sub_f32 v{T + 1}, v{T + 1}, v{T + 3}",
            f"v_cvt_pk_bf16_f32 v{T + 4}, v{T}, v{T + 1}",
            f"v_lshlrev_b32 v{T}, 16, v{T + 4}", f"v_and_b32 v{T + 1}, s53, v{T + 4}",
            f"v_lshlrev_b32 v{T + 2}, 16, v{B + 8 + i}", f"v_and_b32 v{T + 3}, s53, v{B + 8 + i}",
            f"v_add_f32 v{T}, v{T + 2}, v{T}", f"v_add_f32 v{T + 1}, v{T + 3}, v{T + 1}",
            f"v_cvt_pk_bf16_f32 v{B + 40 + i}, v{T}, v{T + 1}",
            f"v_lshlrev_b32 v{H + 2 * i}, 16, v{B + 40 + i}", f"v_and_b32 v{H + 2 * i + 1}, s53, v{B + 40 + i}",
        ])
    for k in range(len(steps[0])):
        for i in range(4):
            a(steps[i][k])
    St = B + 48
    a(f"v_add_f32 v{St}, v{H}, v{H + 1}")
    a(f"v_add_f32 v{St + 1}, v{H + 2}, v{H + 3}")
    a(f"v_add_f32 v{St + 2}, v{H + 4}, v{H + 5}")
    a(f"v_add_f32 v{St + 3}, v{H + 6}, v{H + 7}")
    a(f"v_add_f32 v{St}, v{St}, v{St + 1}")
    a(f"v_add_f32 v{St + 2}, v{St + 2}, v{St + 3}")
    a(f"v_add_f32 v{St}, v{St}, v{St + 2}")
    wave_allreduce(a, "v_add_f32", St, St + 1)
    T = 80
    a(f"v_mul_f32 v{St}, 0x3b000000, v{St}")
    for i in range(8):
        a(f"v_sub_f32 v{T + i}, v{H + i}, v{St}")
    a(f"v_cvt_pk_bf16_f32 v{St + 1}, v{St}, v{St}")
    a(f"v_mul_f32 v{St + 2}, v{T}, v{T}")
    a(f"v_mul_f32 v{St + 3}, v{T + 1}, v{T + 1}")
    a(f"v_lshlrev_b32 v{St + 1}, 16, v{St + 1}")
    for i in range(2, 8, 2):
        a(f"v_fmac_f32 v{St + 2}, v{T + i}, v{T + i}")
        a(f"v_fmac_f32 v{St + 3}, v{T + i + 1}, v{T + i + 1}")
    a(f"v_add_f32 v{St + 2}, v{St + 2}, v{St + 3}")
    for i in range(8):
        a(f"v_sub_f32 v{T + 10 + i}, v{H + i}, v{St + 1}")
    for i in range(4):
        a(f"v_cvt_pk_bf16_f32 v{T + 20 + i}, v{T + 10 + 2 * i}, v{T + 11 + 2 * i}")
    for i in range(4):
        unpack(T + 10 + 2 * i, T + 20 + i)
    wave_allreduce(a, "v_add_f32", St + 2, St + 3)
    v = St + 2
    a(f"v_mul_f32 v{v}, 0x3b000000, v{v}")
    a(f"v_cvt_pk_bf16_f32 v{v}, v{v}, v{v}")
    a(f"v_lshlrev_b32 v{v}, 16, v{v}")
    a(f"v_add_f32 v{v}, 0x3727c5ac, v{v}")
    a(f"v_cvt_pk_bf16_f32 v{v}, v{v}, v{v}")
    a(f"v_lshlrev_b32 v{v}, 16, v{v}")
    a(f"v_sqrt_f32 v{v}, v{v}")
    a("s_nop 0")
    a(f"v_cvt_pk_bf16_f32 v{v}, v{v}, v{v}")
    a(f"v_lshlrev_b32 v{v}, 16, v{v}")
    a(f"v_rcp_f32 v{v}, v{v}")
    a(f"s_waitcnt vmcnt({1 if wpf else 0})")
    for i in range(8):
        a(f"v_mul_f32 v{T + 10 + i}, v{T + 10 + i}, v{v}")
    for i in range(4):
        a(f"v_cvt_pk_bf16_f32 v{B + 44 + i}, v{T + 10 + 2 * i}, v{T + 11 + 2 * i}")
    for i in range(4):
        unpack(T + 10 + 2 * i, B + 44 + i)
        unpack(T + 2 * i, 8 + i)
    a(f"v_mul_f32 v{St + 4}, v{T + 10}, v{T}")
    a(f"v_mul_f32 v{St + 5}, v{T + 11}, v{T + 1}")
    for i in range(2, 8, 2):
        a(f"v_fmac_f32 v{St + 4}, v{T + 10 + i}, v{T + i}")
        a(f"v_fmac_f32 v{St + 5}, v{T + 11 + i}, v{T + i + 1}")
    a(f"v_add_f32 v{St + 4}, v{St + 4}, v{St + 5}")
    for i in range(8):
        a(f"v_add_f32 v{T + 20 + i}, v{H + i}, v{T + 10 + i}")
    for i in range(4):
        a(f"v_cvt_pk_bf16_f32 v{B + 4 + i}, v{T + 20 + 2 * i}, v{T + 21 + 2 * i}")
    a(f"buffer_store_dwordx4 v[{B + 4}:{B + 7}], v3, s[20:23], s34 offen")
    wave_allreduce(a, "v_add_f32", St + 4, St + 5)
    v = St + 4
    a(f"v_cvt_pk_bf16_f32 v{v}, v{v}, v{v}")
    a(f"v_lshlrev_b32 v{v}, 16, v{v}")
    a(f"v_ashrrev_i32 v{v + 1}, 31, v{v}")
    a(f"v_or_b32 v{v + 1}, 0x80000000, v{v + 1}")
    a(f"v_xor_b32 v{v}, v{v}, v{v + 1}")
    a(f"v_and_b32 v{v}, s53, v{v}")
    a("s_sub_u32 s37, 2047, s33")
    a(f"v_or_b32 v{v}, s37, v{v}")
    a("s_lshl_b32 s37, s32, 2")
    a("v_mov_b32 v5, s37")
    a(f"ds_write_b32 v5, v{v}")
    stamp(a, 3)
    a("s_waitcnt lgkmcnt(0)")
    a("s_barrier")
    a("v_mov_b32 v5, 0")
    a("ds_read_b128 v[12:15], v5")
    a("ds_read_b128 v[80:83], v5 offset:16")
    a(f"v_readfirstlane_b32 s39, v{v}")
    a(f"s_lshl_b32 s41, s2, 11")
    a(f"s_add_u32 s41, s41, {WS_CROW}")
    a(f"s_lshl_b32 s42, s2, 2")
    a(f"s_add_u32 s42, s42, {WS_CAND}")
    a("s_waitcnt lgkmcnt(0)")
    a("v_max3_u32 v12, v12, v13, v14")
    a("v_max3_u32 v80, v80, v81, v82")
    a("v_max3_u32 v12, v12, v15, v83")
    a("v_max_u32 v12, v12, v80")
    a("s_nop 0")
    a("v_readfirstlane_b32 s38, v12")
    a("s_cmp_lg_u32 s38, s39")
    a(f"s_cbranch_scc1 {name}_nw")
    a(f"buffer_store_dwordx4 v[{B + 40}:{B + 43}], v3, s[24:27], s41 offen")
    a(f"buffer_store_dwordx4 v[{B + 44}:{B + 47}], v3, s[24:27], s41 offen offset:1024")
    a(f"buffer_store_dword v12, v5, s[24:27], s42 offen")
    a.label(f"{name}_nw")
    stamp_flush(a, 3, 4, 10, 11)
    a.label(f"{name}_done")
    a("s_endpgm")
    return kernel_desc(name, 128, 64, 128)


def emit_winner_wave(a, v4, t, s_out):
    a(f"v_max3_u32 v{v4}, v{v4}, v{v4 + 1}, v{v4 + 2}")
    a(f"v_max_u32 v{v4}, v{v4}, v{v4 + 3}")
    wave_allreduce(a, "v_max_u32", v4, t)
    a("s_nop 0")
    a(f"v_readfirstlane_b32 s{s_out}, v{v4}")


def gen_k4b(a, name):
    kernel_begin(a, name)
    a(f"s_cmp_ge_u32 s2, {NSL}")
    a(f"s_cbranch_scc1 {name}_done")
    stamp(a, 0)
    a("s_load_dwordx2 s[10:11], s[0:1], 96")
    a("s_load_dwordx4 s[4:7], s[0:1], 56")
    a("s_load_dwordx2 s[8:9], s[0:1], 72")
    a("v_lshrrev_b32 v1, 6, v0")
    a("v_and_b32 v2, 63, v0")
    a("s_nop 0")
    a("v_readfirstlane_b32 s32, v1")
    a("v_lshrrev_b32 v3, 2, v0")
    a("v_and_b32 v4, 3, v0")
    a("s_mov_b32 s33, 14336")
    a("v_mul_lo_u32 v6, v3, s33")
    a("v_lshl_add_u32 v6, v4, 4, v6")
    a("v_lshlrev_b32 v7, 4, v2")
    a("s_lshl_b32 s34, s2, 6")
    a("s_lshl_b32 s35, s2, 5")
    a("s_lshl_b32 s36, s32, 2")
    a("s_add_u32 s35, s35, s36")
    a("s_lshl_b32 s35, s35, 10")
    a(f"s_mov_b32 s37, {WS_CAND}")
    a("s_mov_b32 s53, 0xffff0000")
    a("s_waitcnt lgkmcnt(0)")
    stamp(a, 1)
    srd(a, 24, 10, 11, 14 << 20)
    a("buffer_load_dwordx4 v[8:11], v7, s[24:27], s37 offen")
    srd(a, 12, 4, 5, D * F * 2)
    srd(a, 16, 6, 7, D * F * 2)
    srd(a, 20, 8, 9, D * F * 2)
    G, U, W = 32, 48, 64
    for j in range(4):
        a(f"s_add_u32 s36, s34, {3584 * j}")
        a(f"buffer_load_dwordx4 v[{G + 4 * j}:{G + 4 * j + 3}], v6, s[12:15], s36 offen")
        a(f"buffer_load_dwordx4 v[{U + 4 * j}:{U + 4 * j + 3}], v6, s[16:19], s36 offen")
    a("s_waitcnt vmcnt(8)")
    stamp(a, 2)
    emit_winner_wave(a, 8, 12, 38)
    a("s_and_b32 s39, s38, 0xffff")
    a("s_sub_u32 s39, 2047, s39")
    a("s_lshr_b32 s39, s39, 3")
    a("s_lshl_b32 s39, s39, 11")
    a(f"s_add_u32 s39, s39, {WS_CROW + 1024}")
    a("v_lshlrev_b32 v9, 3, v3")
    a("v_add_u32 v9, s39, v9")
    a("buffer_load_dwordx2 v[12:13], v9, s[24:27], 0 offen")
    stamp(a, 3)
    for j in range(4):
        a(f"buffer_load_dwordx4 v[{W + 4 * j}:{W + 4 * j + 3}], v7, s[20:23], s35 offen offset:{1024 * j}")
    A = 96
    for i in range(16):
        a(f"v_mov_b32 v{A + i}, 0")
    a("s_waitcnt vmcnt(4)")
    stamp(a, 4)
    X = 16
    for i in range(2):
        a(f"v_lshlrev_b32 v{X + 2 * i}, 16, v{12 + i}")
        a(f"v_and_b32 v{X + 2 * i + 1}, s53, v{12 + i}")
    for j in range(4):
        for (M, ao) in ((G, 0), (U, 8)):
            for i in range(4):
                t = 24 + 2 * (i & 3)
                a(f"v_lshlrev_b32 v{t}, 16, v{M + 4 * j + i}")
                a(f"v_and_b32 v{t + 1}, s53, v{M + 4 * j + i}")
            for i in range(4):
                t = 24 + 2 * (i & 3)
                a(f"v_fmac_f32 v{A + ao + 2 * i}, v{X + j}, v{t}")
                a(f"v_fmac_f32 v{A + ao + 2 * i + 1}, v{X + j}, v{t + 1}")
    a("s_nop 1")
    for i in range(8):
        a(f"v_permlane32_swap_b32 v{A + i}, v{A + i + 8}")
    a("s_nop 1")
    for i in range(8):
        a(f"v_add_f32 v{A + i}, v{A + i}, v{A + i + 8}")
    a("s_nop 1")
    for i in range(4):
        a(f"v_permlane16_swap_b32 v{A + i}, v{A + i + 4}")
    a("s_nop 1")
    for i in range(4):
        a(f"v_add_f32 v{A + i}, v{A + i}, v{A + i + 4}")
    a("s_nop 1")
    for i in range(4):
        a(f"v_add_f32_dpp v{A + i}, v{A + i}, v{A + i} row_ror:4 {DPP}")
    a("s_nop 1")
    for i in range(4):
        a(f"v_add_f32_dpp v{A + i}, v{A + i}, v{A + i} row_ror:8 {DPP}")
    a("v_and_b32 v9, 3, v2")
    a("v_lshlrev_b32 v9, 5, v9")
    a("v_bfe_u32 v10, v2, 4, 1")
    a("v_lshl_add_u32 v9, v10, 4, v9")
    a("v_bfe_u32 v10, v2, 5, 1")
    a("v_lshl_add_u32 v9, v10, 7, v9")
    a("s_lshl_b32 s37, s32, 8")
    a("v_add_u32 v9, s37, v9")
    a(f"ds_write_b128 v9, v[{A}:{A + 3}]")
    a("s_waitcnt lgkmcnt(0)")
    a("s_barrier")
    stamp(a, 5)
    a("v_lshlrev_b32 v9, 2, v2")
    for w in range(8):
        a(f"ds_read_b32 v{16 + w}, v9 offset:{256 * w}")
    a("s_waitcnt lgkmcnt(0)")
    a("v_add_f32 v16, v16, v17")
    a("v_add_f32 v18, v18, v19")
    a("v_add_f32 v20, v20, v21")
    a("v_add_f32 v22, v22, v23")
    a("v_add_f32 v16, v16, v18")
    a("v_add_f32 v20, v20, v22")
    a("v_add_f32 v16, v16, v20")
    a("v_mov_b32 v20, v16")
    a("s_nop 1")
    a("v_permlane32_swap_b32 v16, v20")
    a("s_nop 1")
    a("v_cvt_pk_bf16_f32 v16, v16, v20")
    a("v_and_b32 v20, s53, v16")
    a("v_lshlrev_b32 v16, 16, v16")
    a("v_mul_f32 v17, 0xbfb8aa3b, v16")
    a("v_exp_f32 v17, v17")
    a("s_nop 0")
    a("v_add_f32 v17, 1.0, v17")
    a("v_rcp_f32 v17, v17")
    a("s_nop 0")
    a("v_mul_f32 v16, v16, v17")
    a("v_cvt_pk_bf16_f32 v16, v16, v16")
    a("v_lshlrev_b32 v16, 16, v16")
    a("v_mul_f32 v16, v16, v20")
    a("v_cvt_pk_bf16_f32 v16, v16, v16")
    a("v_lshlrev_b32 v16, 16, v16")
    a("s_lshl_b32 s37, s32, 2")
    for j in range(4):
        a(f"s_add_u32 s36, s37, {j}")
        a("s_nop 0")
        a(f"v_readlane_b32 s{40 + j}, v16, s36")
    a("s_waitcnt vmcnt(0)")
    for j in range(4):
        for i in range(4):
            t = 24 + 2 * i
            a(f"v_lshlrev_b32 v{t}, 16, v{W + 4 * j + i}")
            a(f"v_and_b32 v{t + 1}, s53, v{W + 4 * j + i}")
        for i in range(4):
            t = 24 + 2 * i
            if j == 0:
                a(f"v_mul_f32 v{A + 2 * i}, s{40 + j}, v{t}")
                a(f"v_mul_f32 v{A + 2 * i + 1}, s{40 + j}, v{t + 1}")
            else:
                a(f"v_fmac_f32 v{A + 2 * i}, s{40 + j}, v{t}")
                a(f"v_fmac_f32 v{A + 2 * i + 1}, s{40 + j}, v{t + 1}")
    a("v_lshlrev_b32 v9, 5, v2")
    a("s_lshl_b32 s37, s32, 11")
    a("v_add_u32 v9, s37, v9")
    a(f"ds_write_b128 v9, v[{A}:{A + 3}] offset:2048")
    a(f"ds_write_b128 v9, v[{A + 4}:{A + 7}] offset:2064")
    a("s_waitcnt lgkmcnt(0)")
    a("s_barrier")
    a("v_lshlrev_b32 v9, 2, v0")
    for w in range(8):
        a(f"ds_read_b32 v{16 + w}, v9 offset:{2048 + 2048 * w}")
    a("s_lshl_b32 s37, s2, 11")
    a(f"s_add_u32 s37, s37, {WS_SLAB}")
    a("s_waitcnt lgkmcnt(0)")
    a("v_add_f32 v16, v16, v17")
    a("v_add_f32 v18, v18, v19")
    a("v_add_f32 v20, v20, v21")
    a("v_add_f32 v22, v22, v23")
    a("v_add_f32 v16, v16, v18")
    a("v_add_f32 v20, v20, v22")
    a("v_add_f32 v16, v16, v20")
    a("buffer_store_dword v16, v9, s[24:27], s37 offen")
    stamp_flush(a, 4, 6, 10, 11)
    a.label(f"{name}_done")
    a("s_endpgm")
    return kernel_desc(name, 112, 64, 112)


WS_NONCE = 13 << 20
WS_ANN = WS_NONCE + 128
WS_KEYS = WS_NONCE + 4096
WS_ROWS = WS_NONCE + 8192
WS_SLABS = 15 << 20
WS_FLAG2 = (15 << 20) + (1 << 19)


KSLEEP, SSLEEP, FSLEEP, ASLEEP = 1, 1, 1, 8


def gen_kt(a, name, fused=0):
    SLOT = "s63" if fused else "s2"
    LP = " sc1" if fused else ""
    if not fused:
        kernel_begin(a, name)
        a("s_cmp_ge_u32 s2, 256")
        a(f"s_cbranch_scc1 {name}_done")
    stamp(a, 0)
    a("s_load_dwordx2 s[10:11], s[0:1], 96")
    a("s_load_dwordx2 s[4:5], s[0:1], 0")
    a("s_load_dwordx2 s[6:7], s[0:1], 48")
    a("s_load_dwordx2 s[8:9], s[0:1], 80")
    a("s_load_dwordx4 s[56:59], s[0:1], 56")
    a("s_load_dwordx2 s[60:61], s[0:1], 72")
    if fused:
        a("v_mbcnt_lo_u32_b32 v2, -1, 0")
        a("v_mbcnt_hi_u32_b32 v2, -1, v2")
        a("s_lshl_b32 s33, s32, 6")
        a("v_add_u32 v0, s33, v2")
    else:
        a("v_lshrrev_b32 v1, 6, v0")
        a("v_and_b32 v2, 63, v0")
        a("s_nop 0")
        a("v_readfirstlane_b32 s32, v1")
    a("v_lshlrev_b32 v3, 4, v2")
    a(f"s_lshl_b32 s33, {SLOT}, 3")
    a("s_add_u32 s33, s33, s32")
    a("s_lshl_b32 s34, s33, 10")
    a(f"s_add_u32 s35, s34, {WS_P}")
    a(f"s_add_u32 s36, s34, {WS_P + (4 << 20)}")
    a(f"s_add_u32 s43, s34, {WS_P + (2 << 20)}")
    a(f"s_add_u32 s44, s34, {WS_P + (6 << 20)}")
    a("s_mov_b32 s53, 0xffff0000")
    a(f"s_mov_b32 s45, {WS_NONCE}")
    a("v_mov_b32 v5, 0")
    a("v_lshrrev_b32 v6, 2, v0")
    a("s_mov_b32 s46, 14336")
    a("v_mul_lo_u32 v7, v6, s46")
    a("v_and_b32 v4, 3, v0")
    a("v_lshl_add_u32 v7, v4, 4, v7")
    a("v_lshlrev_b32 v4, 5, v2")
    a("s_waitcnt lgkmcnt(0)")
    stamp(a, 1)
    srd(a, 24, 10, 11, 16 << 20)
    srd(a, 20, 8, 9, S * D * 2)
    P0, P2, XX, P1, P3 = 16, 20, 24, 28, 12

    def p_loads():
        a(f"buffer_load_dwordx4 v[{P0}:{P0 + 3}], v3, s[24:27], s35 offen{LP}")
        a(f"buffer_load_dwordx4 v[{P1}:{P1 + 3}], v3, s[24:27], s43 offen{LP}")
        a(f"buffer_load_dwordx4 v[{P2}:{P2 + 3}], v3, s[24:27], s36 offen{LP}")
        a(f"buffer_load_dwordx4 v[{P3}:{P3 + 3}], v3, s[24:27], s44 offen{LP}")

    if fused:
        a("buffer_load_dword v88, v5, s[24:27], s45 offen")
        srd(a, 12, 4, 5, S * D * 2)
        a(f"buffer_load_dwordx4 v[{XX}:{XX + 3}], v3, s[12:15], s34 offen")
        srd(a, 16, 6, 7, D * 2)
        a("buffer_load_dwordx4 v[8:11], v3, s[16:19], 0 offen")
        a("s_cmp_lg_u32 s32, 0")
        a(f"s_cbranch_scc1 {name}_nf")
        a("s_lshl_b32 s46, s63, 7")
        a(f"s_add_u32 s46, s46, {WS_FLAG2}")
        a("s_waitcnt vmcnt(2)")
        a("buffer_store_dword v88, v5, s[24:27], s46 offen sc0 sc1")
        a.label(f"{name}_nf")
        a("s_cmp_lg_u32 s32, 4")
        a(f"s_cbranch_scc1 {name}_np")
        a("s_lshr_b32 s46, s63, 4")
        a("s_lshl_b32 s46, s46, 11")
        a(f"s_add_u32 s46, s46, {WS_FLAG2}")
        a("v_and_b32 v56, 15, v2")
        a("v_lshlrev_b32 v56, 7, v56")
        a.label(f"{name}_fp")
        a("buffer_load_dword v57, v56, s[24:27], s46 offen sc1")
        a("s_waitcnt vmcnt(0)")
        a("v_cmp_ne_u32 vcc, v57, v88")
        a("s_or_b32 s47, vcc_lo, vcc_hi")
        a(f"s_cbranch_scc0 {name}_np")
        a(f"s_sleep {FSLEEP}")
        a(f"s_branch {name}_fp")
        a.label(f"{name}_np")
        a("s_barrier")
        p_loads()
    else:
        p_loads()
        srd(a, 12, 4, 5, S * D * 2)
        a(f"buffer_load_dwordx4 v[{XX}:{XX + 3}], v3, s[12:15], s34 offen")
        srd(a, 16, 6, 7, D * 2)
        a("buffer_load_dwordx4 v[8:11], v3, s[16:19], 0 offen")
        a("buffer_load_dword v88, v5, s[24:27], s45 offen")
    G, U = 96, 112
    a(f"s_waitcnt vmcnt({0 if fused else 2})")
    stamp(a, 2)

    def unpack(dst, src):
        a(f"v_lshlrev_b32 v{dst}, 16, v{src}")
        a(f"v_and_b32 v{dst + 1}, s53, v{src}")

    H, HP, HN, St = 32, 40, 44, 48
    for half in range(2):
        steps = []
        for ii in range(2):
            i = 2 * half + ii
            T = 56 + 10 * ii
            steps.append([
                f"v_lshlrev_b32 v{T}, 16, v{P0 + i}", f"v_and_b32 v{T + 1}, s53, v{P0 + i}",
                f"v_lshlrev_b32 v{T + 2}, 16, v{P1 + i}", f"v_and_b32 v{T + 3}, s53, v{P1 + i}",
                f"v_lshlrev_b32 v{T + 4}, 16, v{P2 + i}", f"v_and_b32 v{T + 5}, s53, v{P2 + i}",
                f"v_lshlrev_b32 v{T + 6}, 16, v{P3 + i}", f"v_and_b32 v{T + 7}, s53, v{P3 + i}",
                f"v_add_f32 v{T}, v{T}, v{T + 2}", f"v_add_f32 v{T + 1}, v{T + 1}, v{T + 3}",
                f"v_add_f32 v{T + 4}, v{T + 4}, v{T + 6}", f"v_add_f32 v{T + 5}, v{T + 5}, v{T + 7}",
                f"v_cvt_pk_bf16_f32 v{T + 8}, v{T}, v{T + 1}", f"v_cvt_pk_bf16_f32 v{T + 9}, v{T + 4}, v{T + 5}",
                f"v_lshlrev_b32 v{T}, 16, v{T + 8}", f"v_and_b32 v{T + 1}, s53, v{T + 8}",
                f"v_lshlrev_b32 v{T + 2}, 16, v{T + 9}", f"v_and_b32 v{T + 3}, s53, v{T + 9}",
                f"v_sub_f32 v{T}, v{T}, v{T + 2}", f"v_sub_f32 v{T + 1}, v{T + 1}, v{T + 3}",
                f"v_cvt_pk_bf16_f32 v{T + 4}, v{T}, v{T + 1}",
                f"v_lshlrev_b32 v{T}, 16, v{T + 4}", f"v_and_b32 v{T + 1}, s53, v{T + 4}",
                f"v_lshlrev_b32 v{T + 2}, 16, v{XX + i}", f"v_and_b32 v{T + 3}, s53, v{XX + i}",
                f"v_add_f32 v{T}, v{T + 2}, v{T}", f"v_add_f32 v{T + 1}, v{T + 3}, v{T + 1}",
                f"v_cvt_pk_bf16_f32 v{HP + i}, v{T}, v{T + 1}",
                f"v_lshlrev_b32 v{H + 2 * i}, 16, v{HP + i}", f"v_and_b32 v{H + 2 * i + 1}, s53, v{HP + i}",
            ])
        for k in range(len(steps[0])):
            for ii in range(2):
                a(steps[ii][k])
    a(f"v_add_f32 v{St}, v{H}, v{H + 1}")
    a(f"v_add_f32 v{St + 1}, v{H + 2}, v{H + 3}")
    a(f"v_add_f32 v{St + 2}, v{H + 4}, v{H + 5}")
    a(f"v_add_f32 v{St + 3}, v{H + 6}, v{H + 7}")
    a(f"v_add_f32 v{St}, v{St}, v{St + 1}")
    a(f"v_add_f32 v{St + 2}, v{St + 2}, v{St + 3}")
    a(f"v_add_f32 v{St}, v{St}, v{St + 2}")
    wave_allreduce(a, "v_add_f32", St, St + 1)
    T = 56
    a(f"v_mul_f32 v{St}, 0x3b000000, v{St}")
    for i in range(8):
        a(f"v_sub_f32 v{T + i}, v{H + i}, v{St}")
    a(f"v_cvt_pk_bf16_f32 v{St + 1}, v{St}, v{St}")
    a(f"v_mul_f32 v{St + 2}, v{T}, v{T}")
    a(f"v_mul_f32 v{St + 3}, v{T + 1}, v{T + 1}")
    a(f"v_lshlrev_b32 v{St + 1}, 16, v{St + 1}")
    for i in range(2, 8, 2):
        a(f"v_fmac_f32 v{St + 2}, v{T + i}, v{T + i}")
        a(f"v_fmac_f32 v{St + 3}, v{T + i + 1}, v{T + i + 1}")
    a(f"v_add_f32 v{St + 2}, v{St + 2}, v{St + 3}")
    for i in range(8):
        a(f"v_sub_f32 v{T + 10 + i}, v{H + i}, v{St + 1}")
    for i in range(4):
        a(f"v_cvt_pk_bf16_f32 v{T + 20 + i}, v{T + 10 + 2 * i}, v{T + 11 + 2 * i}")
    for i in range(4):
        unpack(T + 10 + 2 * i, T + 20 + i)
    wave_allreduce(a, "v_add_f32", St + 2, St + 3)
    v = St + 2
    a(f"v_mul_f32 v{v}, 0x3b000000, v{v}")
    a(f"v_cvt_pk_bf16_f32 v{v}, v{v}, v{v}")
    a(f"v_lshlrev_b32 v{v}, 16, v{v}")
    a(f"v_add_f32 v{v}, 0x3727c5ac, v{v}")
    a(f"v_cvt_pk_bf16_f32 v{v}, v{v}, v{v}")
    a(f"v_lshlrev_b32 v{v}, 16, v{v}")
    a(f"v_sqrt_f32 v{v}, v{v}")
    a("s_nop 0")
    a(f"v_cvt_pk_bf16_f32 v{v}, v{v}, v{v}")
    a(f"v_lshlrev_b32 v{v}, 16, v{v}")
    a(f"v_rcp_f32 v{v}, v{v}")
    a("s_waitcnt vmcnt(0)")
    for i in range(8):
        a(f"v_mul_f32 v{T + 10 + i}, v{T + 10 + i}, v{v}")
    for i in range(4):
        a(f"v_cvt_pk_bf16_f32 v{HN + i}, v{T + 10 + 2 * i}, v{T + 11 + 2 * i}")
    for i in range(4):
        unpack(T + 10 + 2 * i, HN + i)
        unpack(T + 2 * i, 8 + i)
    a(f"v_mul_f32 v{St + 4}, v{T + 10}, v{T}")
    a(f"v_mul_f32 v{St + 5}, v{T + 11}, v{T + 1}")
    for i in range(2, 8, 2):
        a(f"v_fmac_f32 v{St + 4}, v{T + 10 + i}, v{T + i}")
        a(f"v_fmac_f32 v{St + 5}, v{T + 11 + i}, v{T + i + 1}")
    a(f"v_add_f32 v{St + 4}, v{St + 4}, v{St + 5}")
    wave_allreduce(a, "v_add_f32", St + 4, St + 5)
    v = St + 4
    a(f"v_cvt_pk_bf16_f32 v{v}, v{v}, v{v}")
    a(f"v_lshlrev_b32 v{v}, 16, v{v}")
    a(f"v_ashrrev_i32 v{v + 1}, 31, v{v}")
    a(f"v_or_b32 v{v + 1}, 0x80000000, v{v + 1}")
    a(f"v_xor_b32 v{v}, v{v}, v{v + 1}")
    a(f"v_and_b32 v{v}, s53, v{v}")
    a("s_sub_u32 s37, 2047, s33")
    a(f"v_or_b32 v{v}, s37, v{v}")
    a("s_lshl_b32 s37, s32, 2")
    a("v_mov_b32 v89, s37")
    a(f"ds_write_b32 v89, v{v}")
    OUT = 84
    for i in range(8):
        a(f"v_add_f32 v{T + 20 + i}, v{H + i}, v{T + 10 + i}")
    for i in range(4):
        a(f"v_cvt_pk_bf16_f32 v{OUT + i}, v{T + 20 + 2 * i}, v{T + 21 + 2 * i}")
    for i in range(4):
        a(f"v_mov_b32 v{56 + 2 * i}, v{HP + i}")
        a(f"v_mov_b32 v{57 + 2 * i}, v88")
        a(f"v_mov_b32 v{64 + 2 * i}, v{HN + i}")
        a(f"v_mov_b32 v{65 + 2 * i}, v88")
    a(f"v_readfirstlane_b32 s39, v{v}")
    a("v_readfirstlane_b32 s50, v88")
    a(f"s_lshl_b32 s41, {SLOT}, 12")
    a(f"s_add_u32 s41, s41, {WS_ROWS}")
    a(f"s_lshl_b32 s42, {SLOT}, 3")
    a(f"s_add_u32 s42, s42, {WS_KEYS}")
    stamp(a, 3)
    a("s_waitcnt lgkmcnt(0)")
    a("s_barrier")
    a("ds_read_b128 v[72:75], v5")
    a("ds_read_b128 v[76:79], v5 offset:16")
    a("s_waitcnt lgkmcnt(0)")
    a("v_max3_u32 v72, v72, v73, v74")
    a("v_max3_u32 v76, v76, v77, v78")
    a("v_max3_u32 v72, v72, v75, v79")
    a("v_max_u32 v72, v72, v76")
    a("v_mov_b32 v73, v88")
    a("s_nop 0")
    a("v_readfirstlane_b32 s38, v72")
    a("s_mov_b32 s51, 0")
    a("s_cmp_lg_u32 s38, s39")
    a(f"s_cbranch_scc1 {name}_nc")
    a("s_mov_b32 s51, 1")
    a("buffer_store_dwordx2 v[72:73], v5, s[24:27], s42 offen sc0 sc1")
    a("buffer_store_dwordx4 v[64:67], v4, s[24:27], s41 offen offset:2048 sc0 sc1")
    a("buffer_store_dwordx4 v[68:71], v4, s[24:27], s41 offen offset:2064 sc0 sc1")
    a("buffer_store_dwordx4 v[56:59], v4, s[24:27], s41 offen sc0 sc1")
    a("buffer_store_dwordx4 v[60:63], v4, s[24:27], s41 offen offset:16 sc0 sc1")
    a(f"s_branch {name}_role")
    a.label(f"{name}_nc")
    a(f"buffer_store_dwordx4 v[{OUT}:{OUT + 3}], v3, s[20:23], s34 offen")
    a.label(f"{name}_role")
    stamp(a, 4)
    a(f"s_cmp_lt_u32 s2, {NSL}")
    a(f"s_cbranch_scc1 {name}_needkeys")
    a("s_sub_u32 s52, s2, 64")
    a("s_cmp_lt_u32 s52, 16")
    a(f"s_cbranch_scc1 {name}_needkeys")
    a("s_cmp_eq_u32 s51, 0")
    a(f"s_cbranch_scc1 {name}_fin")
    a(f"s_mov_b32 s45, {WS_ANN}")
    a.label(f"{name}_annp")
    a(f"s_sleep {ASLEEP}")
    a("buffer_load_dwordx2 v[72:73], v5, s[24:27], s45 offen sc1")
    a("s_waitcnt vmcnt(0)")
    a("v_readfirstlane_b32 s46, v73")
    a("v_readfirstlane_b32 s38, v72")
    a("s_cmp_lg_u32 s46, s50")
    a(f"s_cbranch_scc1 {name}_annp")
    a("s_cmp_eq_u32 s38, s39")
    a(f"s_cbranch_scc1 {name}_fin")
    a(f"buffer_store_dwordx4 v[{OUT}:{OUT + 3}], v3, s[20:23], s34 offen")
    a(f"s_branch {name}_fin")
    a.label(f"{name}_needkeys")
    W = 16
    a(f"s_cmp_lt_u32 s2, {NSL}")
    a(f"s_cbranch_scc0 {name}_nowd")
    a("s_barrier")
    srd(a, 12, 56, 57, D * F * 2)
    srd(a, 16, 58, 59, D * F * 2)
    a("s_lshl_b32 s48, s2, 6")
    for j in range(4):
        a(f"s_add_u32 s49, s48, {3584 * j}")
        a(f"buffer_load_dwordx4 v[{G + 4 * j}:{G + 4 * j + 3}], v7, s[12:15], s49 offen")
        a(f"buffer_load_dwordx4 v[{U + 4 * j}:{U + 4 * j + 3}], v7, s[16:19], s49 offen")
    srd(a, 28, 60, 61, D * F * 2)
    a("s_lshl_b32 s35, s2, 5")
    a("s_lshl_b32 s36, s32, 2")
    a("s_add_u32 s35, s35, s36")
    a("s_lshl_b32 s35, s35, 10")
    for j in range(4):
        a(f"buffer_load_dwordx4 v[{W + 4 * j}:{W + 4 * j + 3}], v3, s[28:31], s35 offen offset:{1024 * j}")
    a.label(f"{name}_nowd")
    a("s_cmp_lg_u32 s32, 0")
    a(f"s_cbranch_scc1 {name}_kw")
    a(f"s_mov_b32 s45, {WS_KEYS}")
    a.label(f"{name}_kp")
    a("buffer_load_dwordx4 v[56:59], v4, s[24:27], s45 offen sc1")
    a("buffer_load_dwordx4 v[60:63], v4, s[24:27], s45 offen offset:16 sc1")
    a("s_waitcnt vmcnt(0)")
    a("v_cmp_ne_u32 s[46:47], v57, v88")
    a("v_cmp_ne_u32 vcc, v59, v88")
    a("s_or_b64 s[46:47], s[46:47], vcc")
    a("v_cmp_ne_u32 vcc, v61, v88")
    a("s_or_b64 s[46:47], s[46:47], vcc")
    a("v_cmp_ne_u32 vcc, v63, v88")
    a("s_or_b64 s[46:47], s[46:47], vcc")
    a(f"s_cbranch_scc0 {name}_kd")
    a(f"s_sleep {KSLEEP}")
    a(f"s_branch {name}_kp")
    a.label(f"{name}_kd")
    a("v_max3_u32 v56, v56, v58, v60")
    a("v_max_u32 v56, v56, v62")
    wave_allreduce(a, "v_max_u32", 56, 57)
    a("ds_write_b32 v5, v56 offset:64")
    a("s_cmp_lg_u32 s2, 64")
    a(f"s_cbranch_scc1 {name}_noann")
    a("v_mov_b32 v57, v88")
    a(f"s_mov_b32 s45, {WS_ANN}")
    a("buffer_store_dwordx2 v[56:57], v5, s[24:27], s45 offen sc0 sc1")
    a.label(f"{name}_noann")
    a("s_waitcnt lgkmcnt(0)")
    a.label(f"{name}_kw")
    a("s_barrier")
    a("ds_read_b32 v56, v5 offset:64")
    a("s_waitcnt lgkmcnt(0)")
    a("v_readfirstlane_b32 s38, v56")
    stamp(a, 5)
    a("s_cmp_eq_u32 s51, 0")
    a(f"s_cbranch_scc1 {name}_nodef")
    a("s_cmp_eq_u32 s38, s39")
    a(f"s_cbranch_scc1 {name}_nodef")
    a(f"buffer_store_dwordx4 v[{OUT}:{OUT + 3}], v3, s[20:23], s34 offen")
    a.label(f"{name}_nodef")
    a("s_and_b32 s39, s38, 0xffff")
    a("s_sub_u32 s39, 2047, s39")
    a("s_lshr_b32 s40, s39, 3")
    a("s_lshl_b32 s40, s40, 12")
    a(f"s_add_u32 s40, s40, {WS_ROWS}")
    a(f"s_cmp_lt_u32 s2, {NSL}")
    a(f"s_cbranch_scc0 {name}_red")
    a("v_lshlrev_b32 v9, 4, v6")
    a("v_add_u32 v9, s40, v9")
    A = 32
    a.label(f"{name}_xp")
    a("buffer_load_dwordx4 v[56:59], v9, s[24:27], 0 offen offset:2048 sc1")
    for i in range(16):
        a(f"v_mov_b32 v{A + i}, 0")
    a("s_waitcnt vmcnt(0)")
    a("v_cmp_ne_u32 s[46:47], v57, v88")
    a("v_cmp_ne_u32 vcc, v59, v88")
    a("s_or_b64 s[46:47], s[46:47], vcc")
    a(f"s_cbranch_scc1 {name}_xp")
    stamp(a, 6)
    X = 60
    a(f"v_lshlrev_b32 v{X}, 16, v56")
    a(f"v_and_b32 v{X + 1}, s53, v56")
    a(f"v_lshlrev_b32 v{X + 2}, 16, v58")
    a(f"v_and_b32 v{X + 3}, s53, v58")
    for j in range(4):
        for (M, ao) in ((G, 0), (U, 8)):
            for i in range(4):
                t = 64 + 2 * i
                a(f"v_lshlrev_b32 v{t}, 16, v{M + 4 * j + i}")
                a(f"v_and_b32 v{t + 1}, s53, v{M + 4 * j + i}")
            for i in range(4):
                t = 64 + 2 * i
                a(f"v_fmac_f32 v{A + ao + 2 * i}, v{X + j}, v{t}")
                a(f"v_fmac_f32 v{A + ao + 2 * i + 1}, v{X + j}, v{t + 1}")
    a("s_nop 1")
    for i in range(8):
        a(f"v_permlane32_swap_b32 v{A + i}, v{A + i + 8}")
    a("s_nop 1")
    for i in range(8):
        a(f"v_add_f32 v{A + i}, v{A + i}, v{A + i + 8}")
    a("s_nop 1")
    for i in range(4):
        a(f"v_permlane16_swap_b32 v{A + i}, v{A + i + 4}")
    a("s_nop 1")
    for i in range(4):
        a(f"v_add_f32 v{A + i}, v{A + i}, v{A + i + 4}")
    a("s_nop 1")
    for i in range(4):
        a(f"v_add_f32_dpp v{A + i}, v{A + i}, v{A + i} row_ror:4 {DPP}")
    a("s_nop 1")
    for i in range(4):
        a(f"v_add_f32_dpp v{A + i}, v{A + i}, v{A + i} row_ror:8 {DPP}")
    a("v_and_b32 v9, 3, v2")
    a("v_lshlrev_b32 v9, 5, v9")
    a("v_bfe_u32 v10, v2, 4, 1")
    a("v_lshl_add_u32 v9, v10, 4, v9")
    a("v_bfe_u32 v10, v2, 5, 1")
    a("v_lshl_add_u32 v9, v10, 7, v9")
    a("s_lshl_b32 s37, s32, 8")
    a("v_add_u32 v9, s37, v9")
    a(f"ds_write_b128 v9, v[{A}:{A + 3}] offset:128")
    a("s_waitcnt lgkmcnt(0)")
    a("s_barrier")
    a("v_lshlrev_b32 v9, 2, v2")
    for w in range(8):
        a(f"ds_read_b32 v{56 + w}, v9 offset:{128 + 256 * w}")
    a("s_waitcnt lgkmcnt(0)")
    a("v_add_f32 v56, v56, v57")
    a("v_add_f32 v58, v58, v59")
    a("v_add_f32 v60, v60, v61")
    a("v_add_f32 v62, v62, v63")
    a("v_add_f32 v56, v56, v58")
    a("v_add_f32 v60, v60, v62")
    a("v_add_f32 v56, v56, v60")
    a("v_mov_b32 v60, v56")
    a("s_nop 1")
    a("v_permlane32_swap_b32 v56, v60")
    a("s_nop 1")
    a("v_cvt_pk_bf16_f32 v56, v56, v60")
    a("v_and_b32 v60, s53, v56")
    a("v_lshlrev_b32 v56, 16, v56")
    a("v_mul_f32 v57, 0xbfb8aa3b, v56")
    a("v_exp_f32 v57, v57")
    a("s_nop 0")
    a("v_add_f32 v57, 1.0, v57")
    a("v_rcp_f32 v57, v57")
    a("s_nop 0")
    a("v_mul_f32 v56, v56, v57")
    a("v_cvt_pk_bf16_f32 v56, v56, v56")
    a("v_lshlrev_b32 v56, 16, v56")
    a("v_mul_f32 v56, v56, v60")
    a("v_cvt_pk_bf16_f32 v56, v56, v56")
    a("v_lshlrev_b32 v56, 16, v56")
    a("s_lshl_b32 s37, s32, 2")
    for j in range(4):
        a(f"s_add_u32 s36, s37, {j}")
        a("s_nop 0")
        a(f"v_readlane_b32 s{40 + j}, v56, s36")
    for j in range(4):
        for i in range(4):
            t = 64 + 2 * i
            a(f"v_lshlrev_b32 v{t}, 16, v{W + 4 * j + i}")
            a(f"v_and_b32 v{t + 1}, s53, v{W + 4 * j + i}")
        for i in range(4):
            t = 64 + 2 * i
            if j == 0:
                a(f"v_mul_f32 v{A + 2 * i}, s{40 + j}, v{t}")
                a(f"v_mul_f32 v{A + 2 * i + 1}, s{40 + j}, v{t + 1}")
            else:
                a(f"v_fmac_f32 v{A + 2 * i}, s{40 + j}, v{t}")
                a(f"v_fmac_f32 v{A + 2 * i + 1}, s{40 + j}, v{t + 1}")
    a("s_lshl_b32 s37, s32, 11")
    a("v_add_u32 v9, s37, v4")
    a(f"ds_write_b128 v9, v[{A}:{A + 3}] offset:4096")
    a(f"ds_write_b128 v9, v[{A + 4}:{A + 7}] offset:4112")
    a("s_waitcnt lgkmcnt(0)")
    a("s_barrier")
    a("v_lshlrev_b32 v9, 2, v0")
    for w in range(8):
        a(f"ds_read_b32 v{56 + w}, v9 offset:{4096 + 2048 * w}")
    a("s_lshl_b32 s37, s2, 12")
    a(f"s_add_u32 s37, s37, {WS_SLABS}")
    a("v_lshlrev_b32 v9, 3, v0")
    a("s_waitcnt lgkmcnt(0)")
    a("v_add_f32 v56, v56, v57")
    a("v_add_f32 v58, v58, v59")
    a("v_add_f32 v60, v60, v61")
    a("v_add_f32 v62, v62, v63")
    a("v_add_f32 v56, v56, v58")
    a("v_add_f32 v60, v60, v62")
    a("v_add_f32 v56, v56, v60")
    a("v_mov_b32 v57, v88")
    a("buffer_store_dwordx2 v[56:57], v9, s[24:27], s37 offen sc0 sc1")
    stamp(a, 7)
    a(f"s_branch {name}_fin2")
    a.label(f"{name}_red")
    a("v_lshrrev_b32 v8, 4, v0")
    a("v_and_b32 v9, 15, v0")
    a("s_lshl_b32 s41, s52, 8")
    a(f"s_add_u32 s42, s41, {WS_SLABS}")
    a("v_lshlrev_b32 v10, 12, v8")
    a("v_lshl_add_u32 v10, v9, 4, v10")
    a("v_add_u32 v11, 0x20000, v10")
    a("v_cmp_gt_u32 s[54:55], 24, v8")
    a("s_nop 1")
    a("v_cndmask_b32 v11, v10, v11, s[54:55]")
    a("s_lshl_b32 s43, s52, 7")
    a("s_add_u32 s43, s43, s40")
    a("v_lshlrev_b32 v12, 3, v9")
    a("v_add_u32 v12, s43, v12")
    a("s_and_b32 s44, s38, 0xffff0000")
    a("s_xor_b32 s45, s44, 0x80000000")
    a("s_not_b32 s46, s44")
    a("s_and_b32 s46, s46, 0xffff0000")
    a("s_cmp_ge_u32 s44, 0x80000000")
    a("s_cselect_b32 s44, s45, s46")
    a("v_mov_b32 v13, s44")
    a("v_mul_f32 v13, 0xbfb8aa3b, v13")
    a("v_exp_f32 v13, v13")
    a("s_nop 0")
    a("v_add_f32 v13, 1.0, v13")
    a("v_rcp_f32 v13, v13")
    a("s_nop 0")
    a("v_cvt_pk_bf16_f32 v13, v13, v13")
    a("v_lshlrev_b32 v13, 16, v13")
    a.label(f"{name}_sp")
    a("buffer_load_dwordx4 v[56:59], v10, s[24:27], s42 offen sc1")
    a("buffer_load_dwordx4 v[60:63], v11, s[24:27], s42 offen sc1")
    a("buffer_load_dwordx2 v[64:65], v12, s[24:27], 0 offen sc1")
    a("buffer_load_dwordx2 v[66:67], v12, s[24:27], 0 offen offset:2048 sc1")
    a("s_waitcnt vmcnt(0)")
    a("v_cmp_ne_u32 s[46:47], v57, v88")
    for r in (59, 61, 63, 65, 67):
        a(f"v_cmp_ne_u32 vcc, v{r}, v88")
        a("s_or_b64 s[46:47], s[46:47], vcc")
    a(f"s_cbranch_scc0 {name}_sd")
    a(f"s_sleep {SSLEEP}")
    a(f"s_branch {name}_sp")
    a.label(f"{name}_sd")
    stamp(a, 6)
    a("v_cndmask_b32 v60, 0, v60, s[54:55]")
    a("v_cndmask_b32 v62, 0, v62, s[54:55]")
    a("v_add_f32 v56, v56, v60")
    a("v_add_f32 v57, v58, v62")
    for sw in ("v_permlane16_swap_b32", "v_permlane32_swap_b32"):
        a("v_mov_b32 v58, v56")
        a("v_mov_b32 v59, v57")
        a("s_nop 1")
        a(f"{sw} v56, v58")
        a(f"{sw} v57, v59")
        a("s_nop 1")
        a("v_add_f32 v56, v56, v58")
        a("v_add_f32 v57, v57, v59")
    a("v_lshlrev_b32 v10, 3, v9")
    a("s_lshl_b32 s37, s32, 7")
    a("v_add_u32 v11, s37, v10")
    a("ds_write_b64 v11, v[56:57] offset:128")
    a("s_waitcnt lgkmcnt(0)")
    a("s_barrier")
    a("s_cmp_lg_u32 s32, 0")
    a(f"s_cbranch_scc1 {name}_fin2")
    for w in range(8):
        a(f"ds_read_b64 v[{32 + 2 * w}:{33 + 2 * w}], v10 offset:{128 + 128 * w}")
    a("s_waitcnt lgkmcnt(0)")
    for (d, s1) in ((32, 34), (36, 38), (40, 42), (44, 46), (32, 36), (40, 44), (32, 40)):
        a(f"v_add_f32 v{d}, v{d}, v{s1}")
        a(f"v_add_f32 v{d + 1}, v{d + 1}, v{s1 + 1}")
    y0, y1 = 32, 33
    a(f"v_cvt_pk_bf16_f32 v48, v{y0}, v{y1}")
    a(f"v_lshlrev_b32 v{y0}, 16, v48")
    a(f"v_and_b32 v{y1}, s53, v48")
    a(f"v_mul_f32 v{y0}, v{y0}, v13")
    a(f"v_mul_f32 v{y1}, v{y1}, v13")
    a(f"v_cvt_pk_bf16_f32 v48, v{y0}, v{y1}")
    a(f"v_lshlrev_b32 v{y0}, 16, v48")
    a(f"v_and_b32 v{y1}, s53, v48")
    a("v_lshlrev_b32 v49, 16, v66")
    a("v_and_b32 v50, s53, v66")
    a(f"v_add_f32 v{y0}, v49, v{y0}")
    a(f"v_add_f32 v{y1}, v50, v{y1}")
    a(f"v_cvt_pk_bf16_f32 v48, v{y0}, v{y1}")
    a(f"v_lshlrev_b32 v{y0}, 16, v48")
    a(f"v_and_b32 v{y1}, s53, v48")
    a("v_lshlrev_b32 v49, 16, v64")
    a("v_and_b32 v50, s53, v64")
    a(f"v_add_f32 v{y0}, v49, v{y0}")
    a(f"v_add_f32 v{y1}, v50, v{y1}")
    a(f"v_cvt_pk_bf16_f32 v48, v{y0}, v{y1}")
    a("s_lshl_b32 s39, s39, 10")
    a("s_lshl_b32 s41, s52, 6")
    a("s_add_u32 s39, s39, s41")
    a("v_lshlrev_b32 v10, 2, v9")
    a("v_add_u32 v10, s39, v10")
    a("buffer_store_dword v48, v10, s[20:23], 0 offen")
    stamp(a, 7)
    a.label(f"{name}_fin2")
    a.label(f"{name}_fin")
    stamp_flush(a, 3, 8, 10, 11)
    if fused:
        return None
    a.label(f"{name}_done")
    a("s_endpgm")
    return kernel_desc(name, 128, 64, 128)


def gen_k5(a, name):
    kernel_begin(a, name)
    a("s_cmp_ge_u32 s2, 16")
    a(f"s_cbranch_scc1 {name}_done")
    stamp(a, 0)
    a("s_load_dwordx2 s[8:9], s[0:1], 80")
    a("s_load_dwordx2 s[10:11], s[0:1], 96")
    a("v_lshrrev_b32 v1, 6, v0")
    a("v_and_b32 v2, 63, v0")
    a("s_nop 0")
    a("v_readfirstlane_b32 s32, v1")
    a("v_lshlrev_b32 v5, 2, v0")
    a("v_lshrrev_b32 v3, 3, v0")
    a("v_and_b32 v4, 7, v0")
    a("v_lshlrev_b32 v6, 11, v3")
    a("v_lshl_add_u32 v6, v4, 4, v6")
    a("s_waitcnt lgkmcnt(0)")
    stamp(a, 1)
    srd(a, 20, 8, 9, S * D * 2)
    srd(a, 24, 10, 11, 14 << 20)
    srd(a, 28, 10, 11, WS_SLAB + NSL * 2048)
    a(f"s_mov_b32 s34, {WS_CAND}")
    a("buffer_load_dword v8, v5, s[24:27], s34 offen")
    a("s_lshl_b32 s34, s2, 7")
    a(f"s_add_u32 s34, s34, {WS_SLAB}")
    a("s_add_u32 s35, s34, 65536")
    a("buffer_load_dwordx4 v[16:19], v6, s[28:31], s34 offen")
    a("buffer_load_dwordx4 v[20:23], v6, s[28:31], s35 offen")
    a("s_waitcnt vmcnt(2)")
    stamp(a, 2)
    emit_winner(a, 8, 12, 9, 38)
    a("s_and_b32 s39, s38, 0xffff")
    a("s_sub_u32 s39, 2047, s39")
    a("s_lshr_b32 s40, s39, 3")
    a("s_lshl_b32 s40, s40, 11")
    a(f"s_add_u32 s40, s40, {WS_CROW}")
    a("s_lshl_b32 s41, s2, 6")
    a("s_add_u32 s40, s40, s41")
    a("v_lshlrev_b32 v9, 3, v4")
    a("v_add_u32 v9, s40, v9")
    a("buffer_load_dwordx2 v[24:25], v9, s[24:27], 0 offen")
    a("buffer_load_dwordx2 v[26:27], v9, s[24:27], 0 offen offset:1024")
    a("s_waitcnt vmcnt(2)")
    for i in range(4):
        a(f"v_add_f32 v{16 + i}, v{16 + i}, v{20 + i}")
    a("s_nop 1")
    for i in range(4):
        a(f"v_add_f32_dpp v{16 + i}, v{16 + i}, v{16 + i} row_ror:8 {DPP}")
    for i in range(4):
        a(f"v_mov_b32 v{20 + i}, v{16 + i}")
    a("s_nop 1")
    for i in range(4):
        a(f"v_permlane16_swap_b32 v{16 + i}, v{20 + i}")
    a("s_nop 1")
    for i in range(4):
        a(f"v_add_f32 v{16 + i}, v{16 + i}, v{20 + i}")
    for i in range(4):
        a(f"v_mov_b32 v{20 + i}, v{16 + i}")
    a("s_nop 1")
    for i in range(4):
        a(f"v_permlane32_swap_b32 v{16 + i}, v{20 + i}")
    a("s_nop 1")
    for i in range(4):
        a(f"v_add_f32 v{16 + i}, v{16 + i}, v{20 + i}")
    a("v_lshlrev_b32 v10, 4, v4")
    a("s_lshl_b32 s37, s32, 7")
    a("v_add_u32 v11, s37, v10")
    a("ds_write_b128 v11, v[16:19] offset:64")
    a("s_waitcnt lgkmcnt(0)")
    a("s_barrier")
    for w in range(4):
        a(f"ds_read_b128 v[{32 + 4 * w}:{35 + 4 * w}], v10 offset:{64 + 128 * w}")
    a("s_and_b32 s42, s38, 0xffff0000")
    a("s_xor_b32 s43, s42, 0x80000000")
    a("s_not_b32 s44, s42")
    a("s_and_b32 s44, s44, 0xffff0000")
    a("s_cmp_ge_u32 s42, 0x80000000")
    a("s_cselect_b32 s42, s43, s44")
    a("v_mov_b32 v12, s42")
    a("v_mul_f32 v13, 0xbfb8aa3b, v12")
    a("v_exp_f32 v13, v13")
    a("s_nop 0")
    a("v_add_f32 v13, 1.0, v13")
    a("v_rcp_f32 v13, v13")
    a("s_nop 0")
    a("v_cvt_pk_bf16_f32 v13, v13, v13")
    a("v_lshlrev_b32 v13, 16, v13")
    a("s_mov_b32 s53, 0xffff0000")
    a("s_waitcnt vmcnt(0) lgkmcnt(0)")
    stamp(a, 3)
    for i in range(4):
        a(f"v_add_f32 v{32 + i}, v{32 + i}, v{36 + i}")
        a(f"v_add_f32 v{40 + i}, v{40 + i}, v{44 + i}")
        a(f"v_add_f32 v{32 + i}, v{32 + i}, v{40 + i}")
    for i in range(2):
        y0, y1 = 32 + 2 * i, 33 + 2 * i
        a(f"v_cvt_pk_bf16_f32 v48, v{y0}, v{y1}")
        a(f"v_lshlrev_b32 v{y0}, 16, v48")
        a(f"v_and_b32 v{y1}, s53, v48")
        a(f"v_mul_f32 v{y0}, v{y0}, v13")
        a(f"v_mul_f32 v{y1}, v{y1}, v13")
        a(f"v_cvt_pk_bf16_f32 v48, v{y0}, v{y1}")
        a(f"v_lshlrev_b32 v{y0}, 16, v48")
        a(f"v_and_b32 v{y1}, s53, v48")
        a(f"v_lshlrev_b32 v49, 16, v{26 + i}")
        a(f"v_and_b32 v50, s53, v{26 + i}")
        a(f"v_add_f32 v{y0}, v49, v{y0}")
        a(f"v_add_f32 v{y1}, v50, v{y1}")
        a(f"v_cvt_pk_bf16_f32 v48, v{y0}, v{y1}")
        a(f"v_lshlrev_b32 v{y0}, 16, v48")
        a(f"v_and_b32 v{y1}, s53, v48")
        a(f"v_lshlrev_b32 v49, 16, v{24 + i}")
        a(f"v_and_b32 v50, s53, v{24 + i}")
        a(f"v_add_f32 v{y0}, v49, v{y0}")
        a(f"v_add_f32 v{y1}, v50, v{y1}")
        a(f"v_cvt_pk_bf16_f32 v{52 + i}, v{y0}, v{y1}")
    a("s_lshl_b32 s39, s39, 10")
    a("s_add_u32 s39, s39, s41")
    a("v_lshlrev_b32 v9, 3, v4")
    a("v_add_u32 v9, s39, v9")
    a("v_cmp_gt_u32 vcc, 8, v0")
    a("s_and_saveexec_b64 s[46:47], vcc")
    a(f"s_cbranch_execz {name}_fin")
    a("buffer_store_dwordx2 v[52:53], v9, s[20:23], 0 offen")
    a.label(f"{name}_fin")
    a("s_mov_b64 exec, -1")
    stamp_flush(a, 5, 4, 10, 11)
    a.label(f"{name}_done")
    a("s_endpgm")
    return kernel_desc(name, 64, 64, 64)


HEADER = open(__file__.rsplit("/", 1)[0] + "/cdna_kernels/" + NAME + ".s.ref").read().split("; Override launch")[0]


def build(path, **opt):
    global STAMP, KSLEEP, SSLEEP, FSLEEP, ASLEEP
    STAMP = opt.get('stamp', 0)
    KSLEEP, SSLEEP, FSLEEP, ASLEEP = opt.get('ks', 1), opt.get('ss', 1), opt.get('fs', 1), opt.get('as', 8)
    a = Asm()
    only = opt.get("only", 0)
    launches = [
        ("k1_kernel", 256, 512, 163840),
        ("k2_kernel", 256, 512, 163840),
        ("k3_kernel", 256, 512, 64),
        ("k4_kernel", NSL, 512, 18432),
        ("k5_kernel", 16, 256, 1024),
    ]
    if opt.get("fused", 1) == 1:
        launches = launches[:2] + [("kt_kernel", 256, 512, 4096 + 16384)]
    if opt.get("fused", 1) == 2:
        launches = launches[:2]
    if only:
        launches = [launches[int(ch) - 1] for ch in str(only)]
    hdr = HEADER
    for (k, g, b, l) in launches:
        hdr += f"; @launch kernel={k} grid=({g},1,1) block=({b},1,1) lds={l}\n"
    a.raw('.amdgcn_target "amdgcn-amd-amdhsa--gfx950"')
    descs = []
    descs.append(gen_k1e(a, "k1_kernel", wt=opt.get("wt1", 1), PRO=opt.get("PRO1", 4), pf=opt.get("prefetch", 1), pace=opt.get("pace", 1), U1=opt.get("U1", 10), U2=opt.get("U2", 12), pfq=opt.get("pfq", 4), pol=opt.get("pol1", 0), ppol=opt.get("ppol", 0)))
    descs.append(gen_k2c(a, "k2_kernel", LA=opt.get("LA", 1), wt=opt.get("wt2", 1), PRO=opt.get("PRO2", 3), rot=opt.get("rot", 1), BARPOS=opt.get("BARPOS", 1), RSTEP=opt.get("RSTEP", 1), wpf=opt.get("wpf", 5), wpf2=opt.get("wpf2", 16), pol=opt.get("pol2", 0), fuse3=(opt.get("fused", 1) == 2)))
    if opt.get("fused", 1) == 1:
        descs.append(gen_kt(a, "kt_kernel"))
    elif opt.get("fused", 1) == 0:
        descs.append(gen_k3b(a, "k3_kernel", wpf=opt.get("wpf3", 0)))
        descs.append(gen_k4b(a, "k4_kernel"))
        descs.append(gen_k5(a, "k5_kernel"))
    open(path, "w").write(hdr + a.text() + "".join(descs))


if __name__ == "__main__":
    out = sys.argv[1] if len(sys.argv) > 1 else "cdna_kernels/" + NAME + ".s"
    opt = {}
    for kv in sys.argv[2:]:
        k, v = kv.split("=")
        opt[k] = int(v)
    build(out, **opt)
```

```python
import sys

NAME = "sequential_preLN__spectral_fnet__moe_arch_mod__prompt"

WS_AT = 0
WS_Y = 4 << 20
WS_CAND = 12 << 20
WS_CROW = (12 << 20) + 4096
WS_SLAB = (13 << 20)
WS_SIZE = 268435456

S, D, F = 2048, 512, 1792


class Asm:
    def __init__(self):
        self.lines = []

    def __call__(self, s):
        self.lines.append("    " + s)

    def label(self, l):
        self.lines.append(l + ":")

    def raw(self, s):
        self.lines.append(s)

    def text(self):
        return "\n".join(self.lines) + "\n"


class VM:
    def __init__(self, a):
        self.a = a
        self.q = []

    def issue(self, tag):
        self.q.append(tag)

    def wait(self, tag):
        idx = max(i for i, t in enumerate(self.q) if t == tag) if tag in self.q else None
        if idx is None:
            return
        n = len(self.q) - 1 - idx
        assert n <= 63
        self.a(f"s_waitcnt vmcnt({n})")
        self.q = self.q[idx + 1:]

    def wait_all(self):
        self.a("s_waitcnt vmcnt(0)")
        self.q = []


def srd(a, d, lo, hi, nbytes):
    a(f"s_mov_b32 s{d}, s{lo}")
    a(f"s_and_b32 s{d+1}, s{hi}, 0xffff")
    a(f"s_mov_b32 s{d+2}, {nbytes}")
    a(f"s_mov_b32 s{d+3}, 0x00020000")


def kernel_begin(a, name):
    a.raw(".text")
    a.raw(f".globl {name}")
    a.raw(".p2align 8")
    a.raw(f".type {name},@function")
    a.label(name)


def kernel_desc(name, vgpr, sgpr, accum):
    return f""".section .rodata,"a"
.p2align 6
.amdhsa_kernel {name}
  .amdhsa_next_free_vgpr {vgpr}
  .amdhsa_next_free_sgpr {102 if STAMP else sgpr}
  .amdhsa_accum_offset {accum}
  .amdhsa_group_segment_fixed_size 0
  .amdhsa_kernarg_size 104
  .amdhsa_user_sgpr_count 2
  .amdhsa_user_sgpr_kernarg_segment_ptr 1
  .amdhsa_system_sgpr_workgroup_id_x 1
  .amdhsa_float_denorm_mode_32 3
.end_amdhsa_kernel
"""


STAMP = 0
WS_STAMP = 16 << 20
_stamp_kid = {}


def stamp(a, i):
    if STAMP == 1:
        a(f"s_memrealtime s[{70 + 2 * i}:{71 + 2 * i}]")
    elif STAMP == 2:
        a(f"s_memtime s[{70 + 2 * i}:{71 + 2 * i}]")


def stamp_flush(a, kid, n, ws_lo, ws_hi, wave_sgpr="s32"):
    if not STAMP:
        return
    a("s_waitcnt vmcnt(0) lgkmcnt(0)")
    stamp(a, n)
    a(f"s_mov_b32 s92, s{ws_lo}")
    a(f"s_and_b32 s93, s{ws_hi}, 0xffff")
    a(f"s_mov_b32 s94, {WS_SIZE}")
    a("s_mov_b32 s95, 0x00020000")
    a(f"s_add_u32 s96, s2, {kid * 512}")
    a("s_lshl_b32 s96, s96, 4")
    a(f"s_add_u32 s96, s96, {wave_sgpr}")
    a("s_lshl_b32 s96, s96, 7")
    a(f"s_add_u32 s96, s96, {WS_STAMP}")
    a("s_waitcnt lgkmcnt(0)")
    a("v_mov_b32 v0, 0")
    for i in range(n + 1):
        a(f"v_mov_b32 v2, s{70 + 2 * i}")
        a(f"v_mov_b32 v3, s{71 + 2 * i}")
        a(f"buffer_store_dwordx2 v[2:3], v0, s[92:95], s96 offen offset:{8 * i}")
        a("s_nop 1")


DPP = "row_mask:0xf bank_mask:0xf"


def emit_perm32(a, dst, src, t):
    a(f"v_and_b32 v{dst}, 3, v{src}")
    a(f"v_lshrrev_b32 v{t}, 3, v{src}")
    a(f"v_lshl_or_b32 v{dst}, v{t}, 2, v{dst}")
    a(f"v_bfe_u32 v{t}, v{src}, 2, 1")
    a(f"v_lshl_or_b32 v{dst}, v{t}, 4, v{dst}")


def wave_allreduce(a, op, v, t):
    a("s_nop 1")
    a(f"{op}_dpp v{v}, v{v}, v{v} quad_perm:[1,0,3,2] {DPP}")
    a("s_nop 1")
    a(f"{op}_dpp v{v}, v{v}, v{v} quad_perm:[2,3,0,1] {DPP}")
    a("s_nop 1")
    a(f"{op}_dpp v{v}, v{v}, v{v} row_half_mirror {DPP}")
    a("s_nop 1")
    a(f"{op}_dpp v{v}, v{v}, v{v} row_mirror {DPP}")
    a(f"v_mov_b32 v{t}, v{v}")
    a("s_nop 1")
    a(f"v_permlane16_swap_b32 v{v}, v{t}")
    a("s_nop 1")
    a(f"{op} v{v}, v{v}, v{t}")
    a(f"v_mov_b32 v{t}, v{v}")
    a("s_nop 1")
    a(f"v_permlane32_swap_b32 v{v}, v{t}")
    a("s_nop 1")
    a(f"{op} v{v}, v{v}, v{t}")


def gen_k1(a, name, prefetch=True):
    kernel_begin(a, name)
    a("s_cmp_ge_u32 s2, 256")
    a(f"s_cbranch_scc1 {name}_done")
    stamp(a, 0)
    a("s_load_dwordx2 s[4:5], s[0:1], 0")
    a("s_load_dwordx4 s[8:11], s[0:1], 24")
    a("s_load_dwordx2 s[6:7], s[0:1], 96")
    a("s_load_dwordx4 s[36:39], s[0:1], 8")
    a("s_load_dwordx4 s[40:43], s[0:1], 56")
    a("s_load_dwordx2 s[44:45], s[0:1], 72")
    a("s_and_b32 s3, s2, 7")
    a("s_lshr_b32 s28, s2, 3")
    a("s_and_b32 s29, s28, 3")
    a("s_lshl_b32 s30, s3, 2")
    a("s_add_u32 s30, s30, s29")
    a("s_lshr_b32 s31, s28, 2")
    a("v_lshrrev_b32 v1, 6, v0")
    a("v_and_b32 v2, 63, v0")
    a("s_nop 0")
    a("v_readfirstlane_b32 s32, v1")
    a("v_lshrrev_b32 v3, 3, v2")
    a("v_and_b32 v4, 7, v2")
    a("s_waitcnt lgkmcnt(0)")
    stamp(a, 1)
    srd(a, 12, 4, 5, S * D * 2)
    a("s_cmp_ge_u32 s31, 4")
    a("s_cselect_b32 s8, s10, s8")
    a("s_cselect_b32 s9, s11, s9")
    srd(a, 16, 8, 9, D * D * 2)
    srd(a, 20, 6, 7, 4 << 20)
    a("s_lshl_b32 s33, s30, 6")
    a("s_lshl_b32 s34, s32, 3")
    a("s_add_u32 s33, s33, s34")
    a("s_lshl_b32 s33, s33, 10")
    a("v_lshlrev_b32 v5, 10, v3")
    a("v_lshl_add_u32 v5, v4, 4, v5")
    XR = 32
    for j in range(8):
        a(f"buffer_load_dwordx4 v[{XR+4*j}:{XR+4*j+3}], v5, s[12:15], s33 offen offset:{128*j}")
    a("v_lshrrev_b32 v6, 4, v2")
    a("v_xor_b32 v6, v6, v4")
    a("v_xor_b32 v7, 4, v6")
    a("v_lshlrev_b32 v8, 10, v3")
    a("v_lshl_add_u32 v6, v6, 4, v8")
    a("v_lshl_add_u32 v7, v7, 4, v8")
    a("s_cmp_ge_u32 s32, 4")
    a(f"s_cbranch_scc1 {name}_helper")
    a("s_and_b32 s35, s31, 3")
    a("s_lshl_b32 s35, s35, 7")
    a("s_lshl_b32 s34, s32, 5")
    a("s_add_u32 s35, s35, s34")
    a("s_lshl_b32 s35, s35, 10")
    a("s_mul_i32 s46, s32, 24576")
    a("s_add_u32 s46, s46, 65536")

    def dma_slot(kk):
        for i in range(4):
            a(f"s_add_u32 m0, s46, {(kk % 6) * 4096 + i * 1024}")
            a(f"s_add_u32 s47, s35, {i * 8192 + kk * 128}")
            a(f"buffer_load_dwordx4 v{6 + (i & 1)}, s[16:19], s47 offen lds")

    for kk in range(6):
        dma_slot(kk)
    a("s_waitcnt vmcnt(24)")
    a(f"s_branch {name}_ln")
    a.label(f"{name}_helper")
    npf = 0
    if prefetch:
        a("s_and_b32 s48, s3, 1")
        a("s_cmp_eq_u32 s48, 1")
        a("s_cselect_b32 s36, s38, s36")
        a("s_cselect_b32 s37, s39, s37")
        srd(a, 24, 36, 37, S * S * 2)
        a("s_lshr_b32 s48, s3, 2")
        a("s_lshl_b32 s48, s48, 10")
        a("s_lshl_b32 s49, s28, 5")
        a("s_add_u32 s48, s48, s49")
        a("s_sub_u32 s49, s32, 4")
        a("s_lshl_b32 s49, s49, 3")
        a("s_add_u32 s48, s48, s49")
        a("s_lshl_b32 s48, s48, 12")
        a("s_bfe_u32 s49, s3, 0x10001")
        a("s_lshl_b32 s49, s49, 11")
        a("s_add_u32 s48, s48, s49")
        a("v_lshrrev_b32 v9, 5, v2")
        a("v_lshlrev_b32 v9, 12, v9")
        a("v_and_b32 v129, 31, v2")
        a("v_lshl_add_u32 v9, v129, 6, v9")
        a("s_waitcnt vmcnt(0)")
        for i in range(4):
            a(f"s_add_u32 s49, s48, {i * 8192}")
            a(f"buffer_load_dword v{130 + i}, v9, s[24:27], s49 offen")
            npf += 1
    a(f"s_waitcnt vmcnt({npf})")
    a.label(f"{name}_ln")
    stamp(a, 2)
    a("s_mov_b32 s50, 0x3f803f80")
    a("s_mov_b32 s51, 0x00003f80")
    a("s_mov_b32 s52, 0x3f800000")
    a("s_mov_b32 s53, 0xffff0000")
    a("v_mov_b32 v16, 0")
    a("v_mov_b32 v17, 0")
    for j in range(32):
        a(f"v_dot2_f32_bf16 v{16 + (j & 1)}, v{XR + j}, s50, v{16 + (j & 1)}")
    a("s_nop 2")
    a("v_add_f32 v16, v16, v17")

    def red8(v):
        a("s_nop 1")
        a(f"v_add_f32_dpp v{v}, v{v}, v{v} quad_perm:[1,0,3,2] {DPP}")
        a("s_nop 1")
        a(f"v_add_f32_dpp v{v}, v{v}, v{v} quad_perm:[2,3,0,1] {DPP}")
        a("s_nop 1")
        a(f"v_add_f32_dpp v{v}, v{v}, v{v} row_half_mirror {DPP}")

    red8(16)
    a("v_mul_f32 v16, 0x3b000000, v16")
    a("v_cvt_pk_bf16_f32 v17, v16, v16")
    a("v_lshlrev_b32 v17, 16, v17")
    a("v_sub_f32 v18, 0, v17")
    a("v_sub_f32 v19, v16, v17")
    a("v_mov_b32 v20, 0")
    a("v_mov_b32 v21, 0")
    for j in range(32):
        t = 22 + 2 * (j & 3)
        a(f"v_dot2_f32_bf16 v{t}, v{XR + j}, s51, v18")
        a(f"v_dot2_f32_bf16 v{t + 1}, v{XR + j}, s52, v18")
        if j >= 1:
            tp = 22 + 2 * ((j - 1) & 3)
            a(f"v_fmac_f32 v20, v{tp}, v{tp}")
            a(f"v_fmac_f32 v21, v{tp + 1}, v{tp + 1}")
            a(f"v_cvt_pk_bf16_f32 v{XR + j - 1}, v{tp}, v{tp + 1}")
    tp = 22 + 2 * (31 & 3)
    a("s_nop 2")
    a(f"v_fmac_f32 v20, v{tp}, v{tp}")
    a(f"v_fmac_f32 v21, v{tp + 1}, v{tp + 1}")
    a(f"v_cvt_pk_bf16_f32 v{XR + 31}, v{tp}, v{tp + 1}")
    a("v_add_f32 v20, v20, v21")
    red8(20)
    a("v_mul_f32 v20, 0x3b000000, v20")
    a("v_fma_f32 v20, -v19, v19, v20")
    a("v_max_f32 v20, 0, v20")
    a("v_cvt_pk_bf16_f32 v20, v20, v20")
    a("v_lshlrev_b32 v20, 16, v20")
    a("v_add_f32 v20, 0x3727c5ac, v20")
    a("v_cvt_pk_bf16_f32 v20, v20, v20")
    a("v_lshlrev_b32 v20, 16, v20")
    a("v_sqrt_f32 v20, v20")
    a("s_nop 0")
    a("v_cvt_pk_bf16_f32 v20, v20, v20")
    a("v_lshlrev_b32 v20, 16, v20")
    a("v_rcp_f32 v20, v20")
    a("s_nop 0")
    for j in range(32):
        t = 22 + 2 * (j & 3)
        a(f"v_lshlrev_b32 v{t}, 16, v{XR + j}")
        a(f"v_and_b32 v{t + 1}, s53, v{XR + j}")
        a(f"v_mul_f32 v{t}, v{t}, v20")
        a(f"v_mul_f32 v{t + 1}, v{t + 1}, v20")
        a(f"v_cvt_pk_bf16_f32 v{XR + j}, v{t}, v{t + 1}")
    a("s_lshl_b32 s34, s32, 3")
    a("v_add_u32 v9, s34, v3")
    a("v_bfe_u32 v10, v9, 1, 3")
    a("v_xor_b32 v10, v10, v4")
    a("v_lshlrev_b32 v10, 4, v10")
    a("v_lshl_add_u32 v10, v9, 7, v10")
    for j in range(8):
        a(f"ds_write_b128 v10, v[{XR + 4 * j}:{XR + 4 * j + 3}] offset:{8192 * j}")
    stamp(a, 3)
    a("s_waitcnt lgkmcnt(0)")
    a("s_barrier")
    stamp(a, 4)
    a("s_cmp_ge_u32 s32, 4")
    a(f"s_cbranch_scc1 {name}_fin")
    a("v_and_b32 v9, 31, v2")
    emit_perm32(a, 10, 9, 11)
    a("v_bfe_u32 v11, v10, 1, 3")
    a("v_lshrrev_b32 v12, 5, v2")
    a("v_xor_b32 v11, v11, v12")
    a("v_lshlrev_b32 v11, 4, v11")
    a("v_lshl_add_u32 v11, v10, 7, v11")
    for c in range(4):
        a(f"v_xor_b32 v{12 + c}, {c * 32}, v11")
        a(f"v_add_u32 v{16 + c}, s46, v{12 + c}")
    ACC = 64
    FR = [96, 108, 120]
    for i in range(32):
        a(f"v_mov_b32 v{ACC + i}, 0")
    units = [(kk, c) for kk in range(8) for c in range(4)]
    vq = [kk for kk in range(6) for _ in range(4)]

    def wait_slot(kk):
        nonlocal vq
        if kk in vq:
            idx = max(i for i, t in enumerate(vq) if t == kk)
            a(f"s_waitcnt vmcnt({len(vq) - 1 - idx})")
            vq = vq[idx + 1:]

    def reads(n):
        kk, c = units[n]
        f = FR[n % 3]
        if c == 0:
            wait_slot(kk)
        a(f"ds_read_b128 v[{f}:{f + 3}], v{16 + c} offset:{(kk % 6) * 4096}")
        a(f"ds_read_b128 v[{f + 4}:{f + 7}], v{12 + c} offset:{kk * 8192}")
        a(f"ds_read_b128 v[{f + 8}:{f + 11}], v{12 + c} offset:{kk * 8192 + 4096}")

    reads(0)
    reads(1)
    for n in range(len(units)):
        kk, c = units[n]
        if n + 2 < len(units):
            reads(n + 2)
            a("s_waitcnt lgkmcnt(6)")
        elif n + 1 < len(units):
            a("s_waitcnt lgkmcnt(3)")
        else:
            a("s_waitcnt lgkmcnt(0)")
        f = FR[n % 3]
        a(f"v_mfma_f32_32x32x16_bf16 v[{ACC}:{ACC + 15}], v[{f + 4}:{f + 7}], v[{f}:{f + 3}], v[{ACC}:{ACC + 15}]")
        a(f"v_mfma_f32_32x32x16_bf16 v[{ACC + 16}:{ACC + 31}], v[{f + 8}:{f + 11}], v[{f}:{f + 3}], v[{ACC + 16}:{ACC + 31}]")
        if c == 3 and kk + 6 < 8:
            dma_slot(kk + 6)
            vq += [kk + 6] * 4
    stamp(a, 5)
    a("s_lshl_b32 s34, s31, 2")
    a("s_add_u32 s34, s34, s32")
    a("s_lshl_b32 s34, s34, 6")
    a("s_lshl_b32 s33, s30, 1")
    a("s_add_u32 s34, s34, s33")
    a("s_lshl_b32 s34, s34, 11")
    a("v_lshlrev_b32 v9, 4, v2")
    a("s_nop 7")
    a("s_nop 3")
    for sh in range(2):
        for i in range(8):
            a(f"v_cvt_pk_bf16_f32 v{32 + 8 * sh + i}, v{ACC + 16 * sh + 2 * i}, v{ACC + 16 * sh + 2 * i + 1}")
    for sh in range(2):
        for u in range(2):
            r = 32 + 8 * sh + 4 * u
            a(f"buffer_store_dwordx4 v[{r}:{r + 3}], v9, s[20:23], s34 offen offset:{sh * 2048 + u * 1024}")
    a.label(f"{name}_fin")
    stamp_flush(a, 1, 6, 6, 7)
    a.label(f"{name}_done")
    a("s_endpgm")
    return kernel_desc(name, 136, 64, 136)


def gen_k2(a, name, NS=9, ED=3, nomfma=0, noload=0, spread=0, noC=0, noE=0):
    kernel_begin(a, name)
    a("s_cmp_ge_u32 s2, 256")
    a(f"s_cbranch_scc1 {name}_done")
    stamp(a, 0)
    a("s_load_dwordx4 s[4:7], s[0:1], 8")
    a("s_load_dwordx2 s[8:9], s[0:1], 96")
    a("s_and_b32 s3, s2, 7")
    a("s_lshr_b32 s28, s2, 3")
    a("s_and_b32 s29, s3, 1")
    a("s_lshr_b32 s30, s3, 1")
    a("s_lshl_b32 s30, s30, 2")
    a("s_and_b32 s31, s28, 3")
    a("s_add_u32 s30, s30, s31")
    a("s_lshr_b32 s31, s28, 2")
    a("v_lshrrev_b32 v200, 6, v0")
    a("v_and_b32 v201, 63, v0")
    a("s_nop 0")
    a("v_readfirstlane_b32 s32, v200")
    a("v_lshrrev_b32 v202, 3, v201")
    a("v_and_b32 v203, 7, v201")
    a("v_lshrrev_b32 v204, 4, v201")
    a("v_xor_b32 v204, v204, v203")
    a("v_xor_b32 v205, 4, v204")
    a("v_lshlrev_b32 v206, 12, v202")
    a("v_lshl_add_u32 v204, v204, 4, v206")
    a("v_lshl_add_u32 v205, v205, 4, v206")
    a("v_lshlrev_b32 v206, 4, v201")
    a("s_waitcnt lgkmcnt(0)")
    stamp(a, 1)
    a("s_cmp_eq_u32 s29, 1")
    a("s_cselect_b32 s4, s6, s4")
    a("s_cselect_b32 s5, s7, s5")
    srd(a, 12, 4, 5, S * S * 2)
    srd(a, 16, 8, 9, 8 << 20)
    a("s_lshl_b32 s35, s30, 19")
    a("s_lshl_b32 s34, s32, 10")
    a("s_add_u32 s35, s35, s34")
    for j in range(4):
        a(f"s_add_u32 s34, s32, {j}")
        a("s_and_b32 s34, s34, 3")
        a(f"s_mov_b32 s{52 + j}, s34")
        a("s_lshl_b32 s34, s34, 17")
        a(f"s_add_u32 s{40 + j}, s35, s34")
    a("s_lshl_b32 s36, s29, 4")
    a("s_lshl_b32 s34, s31, 1")
    a("s_add_u32 s36, s36, s34")
    a("s_lshl_b32 s36, s36, 6")
    a("s_lshl_b32 s34, s32, 4")
    a("s_add_u32 s36, s36, s34")
    a("s_lshl_b32 s36, s36, 11")
    a("s_add_u32 s37, s36, 131072")
    RING = NS * 4096
    a(f"s_mul_i32 s46, s32, {RING}")
    vm = VM(a)

    pend = []

    def dma_one(n, i):
        kk, j = n // 4, n % 4
        if noload or noC:
            return
        a(f"s_add_u32 m0, s46, {(n % NS) * 4096 + i * 1024}")
        a(f"s_add_u32 s47, s{40 + j}, {(i * 8) * 4096 + kk * 128}")
        a(f"buffer_load_dwordx4 v{204 + (i & 1)}, s[12:15], s47 offen lds")
        vm.issue(("C", n))

    def e_one(kk, et2, c):
        if noload or noE:
            return
        st = kk % ED
        r = st * 32 + et2 * 16 + c * 4
        a(f"s_add_u32 s48, s{36 + et2}, {kk * 4096}")
        a(f"buffer_load_dwordx4 a[{r}:{r + 3}], v206, s[16:19], s48 offen offset:{c * 1024}")
        vm.issue(("E", kk))

    def dma_slot(n, defer=False):
        for i in range(4):
            if defer:
                pend.append(lambda n=n, i=i: dma_one(n, i))
            else:
                dma_one(n, i)

    def e_loads(kk, defer=False):
        for et2 in range(2):
            for c in range(4):
                if defer:
                    pend.append(lambda kk=kk, et2=et2, c=c: e_one(kk, et2, c))
                else:
                    e_one(kk, et2, c)

    def flush_pend(pred=None, maxn=None):
        cnt = 0
        while pend and (maxn is None or cnt < maxn):
            pend.pop(0)()
            cnt += 1

    nslot_issued = 0
    for kk in range(ED):
        e_loads(kk)
        for tt in range(4):
            if nslot_issued < NS:
                dma_slot(nslot_issued)
                nslot_issued += 1
    while nslot_issued < NS:
        dma_slot(nslot_issued)
        nslot_issued += 1
    stamp(a, 2)
    a("v_and_b32 v207, 31, v201")
    a("v_bfe_u32 v208, v207, 1, 3")
    a("v_lshrrev_b32 v209, 5, v201")
    a("v_lshlrev_b32 v209, 1, v209")
    a("v_xor_b32 v208, v208, v209")
    a("v_lshlrev_b32 v208, 4, v208")
    a("v_lshl_add_u32 v208, v207, 7, v208")
    for c in range(4):
        x = ((c >> 1) * 4 + (c & 1)) << 4
        a(f"v_xor_b32 v{210 + c}, {x}, v208")
        a(f"v_add_u32 v{210 + c}, s46, v{210 + c}")
    for i in range(128):
        a(f"v_mov_b32 v{i}, 0")
    def pend_has(tag):
        return any(getattr(p, '__defaults__', (None,))[0] == tag[1] and len(p.__defaults__) == (2 if tag[0] == 'C' else 3) for p in pend)

    units = [(n, c) for n in range(32) for c in range(4)]
    NF = 6
    LOOKAHEAD = 4

    def reads(un):
        n, c = units[un]
        if c == 0:
            assert noload or noC or vm.q.count(("C", n)) == 4 or ("C", n) not in vm.q and n < nslot_issued and not pend_has(("C", n))
            vm.wait(("C", n))
        f = 128 + 4 * (un % NF)
        a(f"ds_read_b128 v[{f}:{f + 3}], v{210 + c} offset:{(n % NS) * 4096}")

    for un in range(LOOKAHEAD):
        reads(un)
    for un in range(len(units)):
        n, c = units[un]
        kk, j = n // 4, n % 4
        if un + LOOKAHEAD < len(units):
            reads(un + LOOKAHEAD)
            a(f"s_waitcnt lgkmcnt({LOOKAHEAD})")
        else:
            a(f"s_waitcnt lgkmcnt({len(units) - 1 - un})")
        if j == 0 and c == 0:
            assert not pend_has(("E", kk))
            vm.wait(("E", kk))
        f = 128 + 4 * (un % NF)
        st = kk % ED
        if un == 0:
            stamp(a, 3)
        if un == 64:
            stamp(a, 4)
        for et2 in range(2):
            acc = (j * 2 + et2) * 16
            r = st * 32 + et2 * 16 + c * 4
            if not nomfma:
                a(f"v_mfma_f32_32x32x16_bf16 v[{acc}:{acc + 15}], a[{r}:{r + 3}], v[{f}:{f + 3}], v[{acc}:{acc + 15}]")
            if spread:
                flush_pend(maxn=1)
        if c == 3:
            if nslot_issued < 32:
                dma_slot(nslot_issued, defer=bool(spread))
                nslot_issued += 1
            if j == 3 and kk + ED < 8:
                e_loads(kk + ED, defer=bool(spread))
    stamp(a, 5)
    a("s_barrier")
    stamp(a, 6)
    for j in range(1, 4):
        a(f"s_mul_i32 s34, s{52 + j}, 24576")
        a(f"s_add_u32 s34, s34, {(j - 1) * 8192}")
        a(f"v_add_u32 v{214 + j}, s34, v206")
    a("s_mul_i32 s34, s32, 24576")
    a("v_add_u32 v214, s34, v206")
    a("s_nop 7")
    for j in range(1, 4):
        for q in range(8):
            r = j * 32 + 4 * q
            a(f"ds_write_b128 v{214 + j}, v[{r}:{r + 3}] offset:{q * 1024}")
    a("s_waitcnt lgkmcnt(0)")
    a("s_barrier")
    stamp(a, 7)
    for j in range(1, 4):
        for q in range(8):
            r = j * 32 + 4 * q
            a(f"ds_read_b128 v[{r}:{r + 3}], v214 offset:{(j - 1) * 8192 + q * 1024}")
    a("s_lshl_b32 s34, s30, 7")
    a("s_lshl_b32 s33, s32, 5")
    a("s_add_u32 s34, s34, s33")
    a("s_lshl_b32 s34, s34, 10")
    a("s_lshl_b32 s33, s31, 7")
    a("s_add_u32 s34, s34, s33")
    a("s_lshl_b32 s33, s29, 21")
    a("s_add_u32 s34, s34, s33")
    a(f"s_add_u32 s34, s34, {WS_Y}")
    a("v_lshrrev_b32 v209, 5, v201")
    a("v_lshlrev_b32 v209, 5, v209")
    a("v_lshl_add_u32 v209, v207, 10, v209")
    for j in range(1, 4):
        a(f"s_waitcnt lgkmcnt({min(15, (3 - j) * 8)})")
        for i in range(32):
            a(f"v_add_f32 v{i}, v{i}, v{j * 32 + i}")
    for i in range(16):
        a(f"v_cvt_pk_bf16_f32 v{128 + i}, v{2 * i}, v{2 * i + 1}")
    for et2 in range(2):
        for hh in range(2):
            r = 128 + et2 * 8 + hh * 4
            a(f"buffer_store_dwordx4 v[{r}:{r + 3}], v209, s[16:19], s34 offen offset:{et2 * 64 + hh * 16}")
    stamp_flush(a, 2, 8, 8, 9)
    a.label(f"{name}_done")
    a("s_endpgm")
    return kernel_desc(name, 224 + 32 * ED, 64, 224)


WS_P = 4 << 20


def gen_k2b(a, name, NSTG=5, LA=2, nomfma=0, noread=0, nodma=0, nostore=0):
    kernel_begin(a, name)
    a("s_cmp_ge_u32 s2, 256")
    a(f"s_cbranch_scc1 {name}_done")
    stamp(a, 0)
    a("s_load_dwordx4 s[4:7], s[0:1], 8")
    a("s_load_dwordx2 s[8:9], s[0:1], 96")
    a("s_and_b32 s3, s2, 7")
    a("s_lshr_b32 s28, s2, 3")
    a("s_and_b32 s29, s3, 1")
    a("s_bfe_u32 s27, s3, 0x10001")
    a("s_lshr_b32 s30, s3, 2")
    a("s_lshl_b32 s30, s30, 3")
    a("s_and_b32 s31, s28, 7")
    a("s_add_u32 s30, s30, s31")
    a("s_lshr_b32 s31, s28, 3")
    a("v_lshrrev_b32 v1, 6, v0")
    a("v_and_b32 v2, 63, v0")
    a("s_nop 0")
    a("v_readfirstlane_b32 s32, v1")
    a("v_lshlrev_b32 v3, 4, v2")
    a("s_waitcnt lgkmcnt(0)")
    stamp(a, 1)
    a("s_cmp_eq_u32 s29, 1")
    a("s_cselect_b32 s4, s6, s4")
    a("s_cselect_b32 s5, s7, s5")
    srd(a, 12, 4, 5, S * S * 2)
    srd(a, 16, 8, 9, 12 << 20)
    a("s_cmp_lt_u32 s32, 4")
    a(f"s_cbranch_scc1 {name}_cons")
    a("s_sub_u32 s33, s32, 4")
    a("v_lshrrev_b32 v4, 3, v2")
    a("v_and_b32 v5, 7, v2")
    a("v_lshrrev_b32 v6, 4, v2")
    a("v_xor_b32 v6, v6, v5")
    a("v_xor_b32 v7, 4, v6")
    a("v_lshlrev_b32 v4, 12, v4")
    a("v_lshl_add_u32 v6, v6, 4, v4")
    a("v_lshl_add_u32 v7, v7, 4, v4")
    a("v_mov_b32 v8, v6")
    a(f"v_add_u32 v9, {32768 - 1024}, v7")
    a(f"v_add_u32 v10, {2 * (32768 - 1024)}, v6")
    a(f"v_add_u32 v11, {3 * (32768 - 1024)}, v7")
    a("s_lshl_b32 s35, s30, 19")
    a("s_lshl_b32 s34, s33, 17")
    a("s_add_u32 s35, s35, s34")
    a("s_lshl_b32 s34, s27, 11")
    a("s_add_u32 s35, s35, s34")
    a("s_lshl_b32 s36, s29, 4")
    a("s_lshl_b32 s34, s31, 2")
    a("s_add_u32 s36, s36, s34")
    a("s_add_u32 s36, s36, s33")
    a("s_lshl_b32 s36, s36, 6")
    a("s_lshl_b32 s34, s27, 5")
    a("s_add_u32 s36, s36, s34")
    a("s_lshl_b32 s36, s36, 11")
    a("s_lshl_b32 s37, s33, 12")

    def load_stage(s):
        slot = (s % NSTG) * 32768
        a(f"s_add_u32 m0, s37, {slot}")
        a(f"s_add_u32 s38, s35, {s * 128}")
        for i in range(4):
            if not nodma:
                a(f"buffer_load_dwordx4 v{8 + i}, s[12:15], s38 offen offset:{i * 1024} lds")
        a(f"s_add_u32 m0, s37, {slot + 16384}")
        a(f"s_add_u32 s39, s36, {s * 4096}")
        for c in range(4):
            if not nodma:
                a(f"buffer_load_dwordx4 v3, s[16:19], s39 offen offset:{c * 1024} lds")

    NST = 16
    for s in range(NSTG - 1):
        load_stage(s)
    stamp(a, 2)
    for s in range(NST):
        issued = min(s + NSTG - 2, NST - 1)
        a(f"s_waitcnt vmcnt({(issued - s) * 8})")
        a("s_barrier")
        if s + NSTG - 1 < NST:
            load_stage(s + NSTG - 1)
    stamp(a, 5)
    a(f"s_branch {name}_fin")
    a.label(f"{name}_cons")
    a("s_and_b32 s33, s32, 1")
    a("s_lshr_b32 s34, s32, 1")
    a("v_and_b32 v4, 31, v2")
    a("v_bfe_u32 v5, v4, 1, 3")
    a("v_lshrrev_b32 v6, 5, v2")
    a("v_lshlrev_b32 v6, 1, v6")
    a("v_xor_b32 v5, v5, v6")
    a("v_lshlrev_b32 v5, 4, v5")
    a("v_lshl_add_u32 v5, v4, 7, v5")
    a("s_lshl_b32 s35, s33, 13")
    a("s_lshl_b32 s36, s34, 13")
    a("s_add_u32 s36, s36, 16384")
    for g in range(3):
        for c in range(4):
            x = ((c >> 1) * 4 + (c & 1)) << 4
            a(f"v_xor_b32 v{8 + 5 * g + c}, {x}, v5")
            a(f"v_add_u32 v{8 + 5 * g + c}, s35, v{8 + 5 * g + c}")
            if g:
                a(f"v_add_u32 v{8 + 5 * g + c}, {65536 * g}, v{8 + 5 * g + c}")
        a(f"v_add_u32 v{8 + 5 * g + 4}, s36, v3")
        if g:
            a(f"v_add_u32 v{8 + 5 * g + 4}, {65536 * g}, v{8 + 5 * g + 4}")
    ACC = 64
    FB = 128
    for i in range(64):
        a(f"v_mov_b32 v{ACC + i}, 0")
    NU = NST * 4

    def reads(u):
        s, c = u // 4, u % 4
        slot = s % NSTG
        g, so = slot // 2, (slot % 2) * 32768
        f = FB + 16 * (u % (LA + 1))
        if c == 0:
            a("s_waitcnt lgkmcnt(0)")
            a("s_barrier")
            if s == 0:
                stamp(a, 3)
            if s == 8:
                stamp(a, 4)
        if noread:
            return
        a(f"ds_read_b128 v[{f}:{f + 3}], v{8 + 5 * g + c} offset:{so}")
        a(f"ds_read_b128 v[{f + 8}:{f + 11}], v{8 + 5 * g + 4} offset:{so + c * 1024}")
        a(f"ds_read_b128 v[{f + 4}:{f + 7}], v{8 + 5 * g + c} offset:{so + 4096}")
        a(f"ds_read_b128 v[{f + 12}:{f + 15}], v{8 + 5 * g + 4} offset:{so + 4096 + c * 1024}")

    for u in range(LA):
        reads(u)
    for u in range(NU):
        if u + LA < NU:
            reads(u + LA)
        nxt = min(u + LA, NU - 1)
        cnt = 0
        for uu in range(u + 1, nxt + 1):
            cnt += 4
        a(f"s_waitcnt lgkmcnt({min(cnt, 15)})")
        f = FB + 16 * (u % (LA + 1))
        for et in range(2):
            for tt in range(2):
                acc = ACC + (et * 2 + tt) * 16
                if not nomfma:
                    a(f"v_mfma_f32_32x32x16_bf16 v[{acc}:{acc + 15}], v[{f + 8 + 4 * et}:{f + 11 + 4 * et}], v[{f + 4 * tt}:{f + 4 * tt + 3}], v[{acc}:{acc + 15}]")
    stamp(a, 5)
    a("s_lshl_b32 s35, s30, 7")
    a("s_lshl_b32 s36, s33, 6")
    a("s_add_u32 s35, s35, s36")
    a("s_lshl_b32 s35, s35, 10")
    a("s_lshl_b32 s36, s31, 8")
    a("s_add_u32 s35, s35, s36")
    a("s_lshl_b32 s36, s34, 7")
    a("s_add_u32 s35, s35, s36")
    a("s_lshl_b32 s36, s29, 1")
    a("s_add_u32 s36, s36, s27")
    a("s_lshl_b32 s36, s36, 21")
    a("s_add_u32 s35, s35, s36")
    a(f"s_add_u32 s35, s35, {WS_P}")
    a("s_add_u32 s36, s35, 32768")
    a("v_lshrrev_b32 v6, 5, v2")
    a("v_lshlrev_b32 v6, 5, v6")
    a("v_lshl_add_u32 v6, v4, 10, v6")
    a("s_nop 4")
    for et in range(2):
        for tt in range(2):
            acc = ACC + (et * 2 + tt) * 16
            o = 24 + (et * 2 + tt) * 8
            for i in range(8):
                a(f"v_cvt_pk_bf16_f32 v{o + i}, v{acc + 2 * i}, v{acc + 2 * i + 1}")
            for hh in range(2):
                if not nostore:
                    a(f"buffer_store_dwordx4 v[{o + 4 * hh}:{o + 4 * hh + 3}], v6, s[16:19], s{35 + tt} offen offset:{et * 64 + hh * 16}")
    a.label(f"{name}_fin")
    stamp_flush(a, 2, 6, 8, 9)
    a.label(f"{name}_done")
    a("s_endpgm")
    nv = FB + 16 * (LA + 1)
    return kernel_desc(name, nv, 64, nv)


def emit_perm2(a, dst, src, t):
    a(f"v_and_b32 v{dst}, 3, v{src}")
    a(f"v_bfe_u32 v{t}, v{src}, 2, 2")
    a(f"v_lshl_or_b32 v{dst}, v{t}, 3, v{dst}")
    a(f"v_bfe_u32 v{t}, v{src}, 4, 1")
    a(f"v_lshl_or_b32 v{dst}, v{t}, 2, v{dst}")


def gen_k1b(a, name, prefetch=1, wt=0, nostats=0, nocs=0, PRO=6, pfpos=2, rot=1):
    NSTG, SLOT = 6, 24576
    STATS = NSTG * SLOT
    kernel_begin(a, name)
    a("s_cmp_ge_u32 s2, 256")
    a(f"s_cbranch_scc1 {name}_done")
    stamp(a, 0)
    a("s_load_dwordx2 s[4:5], s[0:1], 0")
    a("s_load_dwordx4 s[8:11], s[0:1], 24")
    a("s_load_dwordx2 s[6:7], s[0:1], 96")
    a("s_load_dwordx4 s[40:43], s[0:1], 8")
    a("s_and_b32 s3, s2, 7")
    a("s_lshr_b32 s28, s2, 3")
    a("s_and_b32 s29, s28, 3")
    a("s_lshl_b32 s30, s3, 2")
    a("s_add_u32 s30, s30, s29")
    a("s_lshr_b32 s31, s28, 2")
    a("v_lshrrev_b32 v1, 6, v0")
    a("v_and_b32 v2, 63, v0")
    a("s_nop 0")
    a("v_readfirstlane_b32 s32, v1")
    a("s_mov_b32 s53, 0xffff0000")
    a("s_cmp_lt_u32 s32, 4")
    a(f"s_cbranch_scc1 {name}_cons")
    a("s_sub_u32 s33, s32, 4")
    a("v_lshrrev_b32 v3, 3, v2")
    a("v_and_b32 v4, 7, v2")
    a("v_lshrrev_b32 v6, 4, v2")
    a("v_xor_b32 v6, v6, v4")
    a("v_xor_b32 v7, 4, v6")
    a("v_lshlrev_b32 v3, 10, v3")
    a("v_lshl_add_u32 v8, v6, 4, v3")
    a("v_lshl_add_u32 v7, v7, 4, v3")
    a(f"v_add_u32 v9, {8192 - 1024}, v7")
    a(f"v_add_u32 v10, {2 * (8192 - 1024)}, v8")
    a(f"v_add_u32 v11, {3 * (8192 - 1024)}, v7")
    a("s_lshl_b32 s35, s30, 6")
    a("s_lshl_b32 s34, s33, 4")
    a("s_add_u32 s35, s35, s34")
    a("s_lshl_b32 s35, s35, 10")
    a("s_and_b32 s36, s31, 3")
    a("s_lshl_b32 s36, s36, 7")
    a("s_lshl_b32 s34, s33, 5")
    a("s_add_u32 s36, s36, s34")
    a("s_lshl_b32 s36, s36, 10")
    a("s_lshl_b32 s37, s33, 11")
    a("s_lshl_b32 s38, s33, 12")
    a("s_add_u32 s38, s38, 8192")
    a("s_lshl_b32 s34, s29, 1")
    a("s_add_u32 s34, s34, s31")
    for kk in range(8):
        if rot:
            a(f"s_add_u32 s39, s34, {kk}")
            a("s_and_b32 s39, s39, 7")
            a(f"s_lshl_b32 s{54 + kk}, s39, 7")
        else:
            a(f"s_mov_b32 s{54 + kk}, {kk * 128}")
    a("s_waitcnt lgkmcnt(0)")
    stamp(a, 1)
    srd(a, 12, 4, 5, S * D * 2)
    a("s_cmp_ge_u32 s31, 4")
    a("s_cselect_b32 s8, s10, s8")
    a("s_cselect_b32 s9, s11, s9")
    srd(a, 16, 8, 9, D * D * 2)

    def load_stage(kk):
        slot = (kk % NSTG) * SLOT
        a(f"s_add_u32 m0, s37, {slot}")
        a(f"s_add_u32 s39, s35, s{54 + kk}")
        for i in range(2):
            a(f"buffer_load_dwordx4 v{8 + i}, s[12:15], s39 offen offset:{i * 1024} lds")
        a(f"s_add_u32 m0, s38, {slot}")
        a(f"s_add_u32 s39, s36, s{54 + kk}")
        for i in range(4):
            a(f"buffer_load_dwordx4 v{8 + i}, s[16:19], s39 offen offset:{i * 1024} lds")

    for kk in range(PRO):
        load_stage(kk)
    stamp(a, 2)
    a("v_lshrrev_b32 v12, 2, v2")
    a("v_lshlrev_b32 v12, 7, v12")
    a("v_and_b32 v13, 3, v2")
    a("v_lshl_add_u32 v12, v13, 5, v12")
    a("v_add_u32 v12, s37, v12")
    a(f"v_add_u32 v13, {3 * SLOT}, v12")
    a("v_mov_b32 v14, 0")
    a("v_mov_b32 v15, 0")
    a("v_mov_b32 v16, 0")
    a("v_mov_b32 v17, 0")
    issued = PRO
    npf = 0

    def emit_prefetch(vb):
        a("s_and_b32 s48, s3, 1")
        a("s_cmp_eq_u32 s48, 1")
        a("s_cselect_b32 s40, s42, s40")
        a("s_cselect_b32 s41, s43, s41")
        srd(a, 24, 40, 41, S * S * 2)
        a("s_lshr_b32 s48, s3, 2")
        a("s_lshl_b32 s48, s48, 10")
        a("s_lshl_b32 s49, s28, 5")
        a("s_add_u32 s48, s48, s49")
        a("s_and_b32 s49, s32, 3")
        a("s_lshl_b32 s49, s49, 3")
        a("s_add_u32 s48, s48, s49")
        a("s_lshl_b32 s48, s48, 12")
        a("s_bfe_u32 s49, s3, 0x10001")
        a("s_lshl_b32 s49, s49, 11")
        a("s_add_u32 s48, s48, s49")
        a(f"v_lshrrev_b32 v{vb}, 4, v2")
        a(f"v_lshlrev_b32 v{vb}, 12, v{vb}")
        a(f"v_and_b32 v{vb + 1}, 15, v2")
        a(f"v_lshl_add_u32 v{vb}, v{vb + 1}, 7, v{vb}")
        for i in range(2):
            a(f"s_add_u32 s49, s48, {i * 16384}")
            a(f"buffer_load_dword v{vb + 2 + i}, v{vb}, s[24:27], s49 offen")

    vq = [k for k in range(PRO) for _ in range(6)]
    for kk in range(8):
        idx = max(i for i, t in enumerate(vq) if t == kk)
        a(f"s_waitcnt vmcnt({len(vq) - 1 - idx})")
        vq = vq[idx + 1:]
        slot = kk % NSTG
        ar, so = (12, slot * SLOT) if slot < 3 else (13, (slot - 3) * SLOT)
        a(f"ds_read_b128 v[24:27], v{ar} offset:{so}")
        a(f"ds_read_b128 v[28:31], v{ar} offset:{so + 16}")
        a("s_barrier")
        a("s_waitcnt lgkmcnt(0)")
        n_new = 0
        while issued < 8 and issued - NSTG < kk and n_new < 2:
            load_stage(issued)
            vq += [issued] * 6
            issued += 1
            n_new += 1
        if prefetch and pfpos == kk:
            emit_prefetch(40)
            vq += ["pf"] * 2
        if kk == 0:
            a("v_lshlrev_b32 v18, 16, v24")
            a("s_nop 1")
            a(f"v_mov_b32_dpp v18, v18 quad_perm:[0,0,0,0] {DPP}")
        for r in range(0 if nostats else 8):
            t = 32 + 2 * (r & 3)
            a(f"v_lshlrev_b32 v{t}, 16, v{24 + r}")
            a(f"v_and_b32 v{t + 1}, s53, v{24 + r}")
            a(f"v_sub_f32 v{t}, v{t}, v18")
            a(f"v_sub_f32 v{t + 1}, v{t + 1}, v18")
            a(f"v_add_f32 v14, v14, v{t}")
            a(f"v_add_f32 v15, v15, v{t + 1}")
            a(f"v_fmac_f32 v16, v{t}, v{t}")
            a(f"v_fmac_f32 v17, v{t + 1}, v{t + 1}")
    a("v_add_f32 v14, v14, v15")
    a("v_add_f32 v16, v16, v17")
    for qp in ("[1,0,3,2]", "[2,3,0,1]"):
        a("s_nop 1")
        a(f"v_add_f32_dpp v14, v14, v14 quad_perm:{qp} {DPP}")
        a(f"v_add_f32_dpp v16, v16, v16 quad_perm:{qp} {DPP}")
    a("v_mul_f32 v14, 0x3b000000, v14")
    a("v_mul_f32 v16, 0x3b000000, v16")
    a("v_fma_f32 v16, -v14, v14, v16")
    a("v_max_f32 v16, 0, v16")
    a("v_add_f32 v14, v14, v18")
    a("v_cvt_pk_bf16_f32 v14, v14, v14")
    a("v_lshlrev_b32 v14, 16, v14")
    a("v_cvt_pk_bf16_f32 v16, v16, v16")
    a("v_lshlrev_b32 v16, 16, v16")
    a("v_add_f32 v16, 0x3727c5ac, v16")
    a("v_cvt_pk_bf16_f32 v16, v16, v16")
    a("v_lshlrev_b32 v16, 16, v16")
    a("v_sqrt_f32 v16, v16")
    a("s_nop 0")
    a("v_cvt_pk_bf16_f32 v16, v16, v16")
    a("v_lshlrev_b32 v16, 16, v16")
    a("v_rcp_f32 v16, v16")
    a("v_lshrrev_b32 v19, 2, v2")
    a("v_lshlrev_b32 v19, 2, v19")
    a("s_lshl_b32 s34, s33, 6")
    a(f"s_add_u32 s34, s34, {STATS}")
    a("v_add_u32 v19, s34, v19")
    a("ds_write_b32 v19, v14")
    a("ds_write_b32 v19, v16 offset:256")
    a("s_waitcnt lgkmcnt(0)")
    stamp(a, 3)
    a("s_barrier")
    a(f"s_branch {name}_fin")
    a.label(f"{name}_cons")
    a("v_and_b32 v9, 31, v2")
    a("v_lshrrev_b32 v5, 5, v2")
    emit_perm32(a, 10, 9, 11)
    a("v_bfe_u32 v11, v10, 1, 3")
    a("v_xor_b32 v11, v11, v5")
    a("v_lshlrev_b32 v11, 4, v11")
    a("v_lshl_add_u32 v11, v10, 7, v11")
    emit_perm2(a, 10, 9, 12)
    a("v_bfe_u32 v12, v10, 1, 3")
    a("v_xor_b32 v12, v12, v5")
    a("v_lshlrev_b32 v12, 4, v12")
    a("v_lshl_add_u32 v12, v10, 7, v12")
    a("s_lshl_b32 s34, s32, 12")
    a("s_add_u32 s34, s34, 8192")
    a("v_add_u32 v12, s34, v12")
    for g in range(3):
        for c in range(4):
            a(f"v_xor_b32 v{16 + 8 * g + c}, {c * 32}, v11")
            a(f"v_xor_b32 v{20 + 8 * g + c}, {c * 32}, v12")
            if g:
                a(f"v_add_u32 v{16 + 8 * g + c}, {2 * SLOT * g}, v{16 + 8 * g + c}")
                a(f"v_add_u32 v{20 + 8 * g + c}, {2 * SLOT * g}, v{20 + 8 * g + c}")
    ACC = 64
    FR = [96, 108, 120]
    for i in range(32):
        a(f"v_mov_b32 v{ACC + i}, 0")
    a("v_mov_b32 v40, 0")
    a("v_mov_b32 v41, 0")
    a("s_mov_b32 s50, 0x3f803f80")
    a("s_waitcnt lgkmcnt(0)")
    stamp(a, 1)
    srd(a, 20, 6, 7, 4 << 20)
    if prefetch and pfpos == -1:
        emit_prefetch(150)
    units = [(kk, c) for kk in range(8) for c in range(4)]

    def reads(n):
        kk, c = units[n]
        f = FR[n % 3]
        slot = kk % NSTG
        g, so = slot // 2, (slot % 2) * SLOT
        if c == 0:
            a("s_waitcnt lgkmcnt(0)")
            a("s_barrier")
            if kk == 0:
                stamp(a, 2)
        a(f"ds_read_b128 v[{f}:{f + 3}], v{20 + 8 * g + c} offset:{so}")
        a(f"ds_read_b128 v[{f + 4}:{f + 7}], v{16 + 8 * g + c} offset:{so}")
        a(f"ds_read_b128 v[{f + 8}:{f + 11}], v{16 + 8 * g + c} offset:{so + 4096}")

    reads(0)
    reads(1)
    for n in range(len(units)):
        if n + 2 < len(units):
            reads(n + 2)
            a("s_waitcnt lgkmcnt(6)")
        elif n + 1 < len(units):
            a("s_waitcnt lgkmcnt(3)")
        else:
            a("s_waitcnt lgkmcnt(0)")
        f = FR[n % 3]
        a(f"v_mfma_f32_32x32x16_bf16 v[{ACC}:{ACC + 15}], v[{f + 4}:{f + 7}], v[{f}:{f + 3}], v[{ACC}:{ACC + 15}]")
        if not nocs:
            a(f"v_dot2_f32_bf16 v40, v{f}, s50, v40")
        if not nocs:
            a(f"v_dot2_f32_bf16 v41, v{f + 1}, s50, v41")
        a(f"v_mfma_f32_32x32x16_bf16 v[{ACC + 16}:{ACC + 31}], v[{f + 8}:{f + 11}], v[{f}:{f + 3}], v[{ACC + 16}:{ACC + 31}]")
        if not nocs:
            a(f"v_dot2_f32_bf16 v40, v{f + 2}, s50, v40")
        if not nocs:
            a(f"v_dot2_f32_bf16 v41, v{f + 3}, s50, v41")
    stamp(a, 3)
    a("s_barrier")
    stamp(a, 4)
    a("v_lshlrev_b32 v42, 6, v5")
    a(f"v_add_u32 v42, {STATS}, v42")
    for sh in range(2):
        for q in range(4):
            a(f"ds_read_b128 v[{96 + 16 * sh + 4 * q}:{99 + 16 * sh + 4 * q}], v42 offset:{128 * sh + 16 * q}")
            a(f"ds_read_b128 v[{128 + 16 * sh + 4 * q}:{131 + 16 * sh + 4 * q}], v42 offset:{256 + 128 * sh + 16 * q}")
    a("v_add_f32 v40, v40, v41")
    a("v_mov_b32 v41, v40")
    a("s_nop 1")
    a("v_permlane32_swap_b32 v40, v41")
    a("s_nop 1")
    a("v_add_f32 v40, v40, v41")
    a("s_lshl_b32 s34, s31, 2")
    a("s_add_u32 s34, s34, s32")
    a("s_lshl_b32 s34, s34, 7")
    a("s_lshl_b32 s33, s30, 1")
    a("s_add_u32 s34, s34, s33")
    a("s_lshl_b32 s34, s34, 10")
    a("v_bfe_u32 v43, v2, 4, 1")
    a("v_lshlrev_b32 v43, 16, v43")
    a("v_lshl_add_u32 v43, v5, 9, v43")
    a("v_and_b32 v44, 15, v2")
    a("v_lshl_add_u32 v43, v44, 4, v43")
    a("s_waitcnt lgkmcnt(0)")
    for sh in range(2):
        for i in range(16):
            r = ACC + 16 * sh + i
            a(f"v_fma_f32 v{r}, -v{96 + 16 * sh + i}, v40, v{r}")
            a(f"v_mul_f32 v{r}, v{r}, v{128 + 16 * sh + i}")
        for i in range(8):
            a(f"v_cvt_pk_bf16_f32 v{48 + 8 * sh + i}, v{ACC + 16 * sh + 2 * i}, v{ACC + 16 * sh + 2 * i + 1}")
        for u in range(2):
            r = 48 + 8 * sh + 4 * u
            a(f"buffer_store_dwordx4 v[{r}:{r + 3}], v43, s[20:23], s34 offen offset:{sh * 1024 + u * 256}" + (" sc0 sc1" if wt else ""))
    stamp(a, 5)
    a.label(f"{name}_fin")
    stamp_flush(a, 1, 6, 6, 7)
    a.label(f"{name}_done")
    a("s_endpgm")
    return kernel_desc(name, 160, 64, 160)


def emit_wtouch(a, s_sel, vt, vd):
    a(f"s_cmp_eq_u32 {s_sel}, 1")
    a("s_cselect_b32 s56, s58, s56")
    a("s_cselect_b32 s57, s59, s57")
    a(f"s_cmp_eq_u32 {s_sel}, 2")
    a("s_cselect_b32 s56, s60, s56")
    a("s_cselect_b32 s57, s61, s57")
    a("s_mul_i32 s62, s2, 7168")
    a("s_add_u32 s63, s62, 7168")
    a(f"s_cmp_eq_u32 {s_sel}, 3")
    a("s_cselect_b32 s63, 0, s63")
    a("s_mov_b32 s20, s56")
    a("s_and_b32 s21, s57, 0xffff")
    a("s_mov_b32 s22, s63")
    a("s_mov_b32 s23, 0x00020000")
    a(f"v_lshlrev_b32 v{vt}, 7, v2")
    a(f"buffer_load_dword v{vd}, v{vt}, s[20:23], s62 offen")


def emit_wtouch2(a):
    a("s_cmp_ge_u32 s33, 2")
    a("s_cselect_b32 s56, s66, s64")
    a("s_cselect_b32 s57, s67, s65")
    a("s_cmp_lt_u32 s28, 28")
    a(f"s_cselect_b32 s62, {D * F * 2}, 0")
    a("s_mov_b32 s20, s56")
    a("s_and_b32 s21, s57, 0xffff")
    a("s_mov_b32 s22, s62")
    a("s_mov_b32 s23, 0x00020000")
    a("s_mov_b32 s24, s68")
    a("s_and_b32 s25, s69, 0xffff")
    a("s_mov_b32 s26, s62")
    a("s_mov_b32 s27, 0x00020000")
    a("s_lshr_b32 s58, s28, 2")
    a("s_lshl_b32 s58, s58, 3")
    a("s_add_u32 s58, s58, s3")
    a("s_and_b32 s59, s28, 3")
    a("s_lshl_b32 s62, s59, 1")
    a("s_and_b32 s63, s33, 1")
    a("s_add_u32 s62, s62, s63")
    a("s_mul_i32 s62, s62, 229376")
    a("s_lshr_b32 s63, s58, 1")
    a("s_lshl_b32 s63, s63, 7")
    a("s_add_u32 s62, s62, s63")
    a("s_mov_b32 s63, 3584")
    a("v_mul_lo_u32 v13, v2, s63")
    a("buffer_load_dword v15, v13, s[20:23], s62 offen")
    a("s_lshl_b32 s62, s58, 15")
    a("s_lshl_b32 s63, s59, 13")
    a("s_add_u32 s62, s62, s63")
    a("s_lshl_b32 s63, s33, 11")
    a("s_add_u32 s62, s62, s63")
    a("v_and_b32 v13, 15, v2")
    a("v_lshlrev_b32 v13, 7, v13")
    a("buffer_load_dword v16, v13, s[24:27], s62 offen")


def gen_k2c(a, name, NSTG=5, LA=1, wt=0, PRO=5, rot=1, BARPOS=1, RSTEP=1, wpf=1, wpf2=0, pol=0, fuse3=0):
    POL = {0: '', 1: ' sc1', 2: ' nt', 3: ' sc0'}[pol]
    kernel_begin(a, name)
    a("s_cmp_ge_u32 s2, 256")
    a(f"s_cbranch_scc1 {name}_done")
    stamp(a, 0)
    a("s_load_dwordx4 s[4:7], s[0:1], 8")
    a("s_load_dwordx2 s[8:9], s[0:1], 96")
    a("s_load_dwordx4 s[56:59], s[0:1], 56")
    a("s_load_dwordx2 s[60:61], s[0:1], 72")
    a("s_load_dwordx4 s[64:67], s[0:1], 56")
    a("s_load_dwordx2 s[68:69], s[0:1], 72")
    a("s_and_b32 s3, s2, 7")
    a("s_lshr_b32 s28, s2, 3")
    a("s_and_b32 s29, s3, 1")
    a("s_bfe_u32 s27, s3, 0x10001")
    a("s_lshr_b32 s30, s3, 2")
    a("s_lshl_b32 s30, s30, 3")
    a("s_and_b32 s31, s28, 7")
    a("s_add_u32 s30, s30, s31")
    a("s_lshr_b32 s31, s28, 3")
    a("v_lshrrev_b32 v1, 6, v0")
    a("v_and_b32 v2, 63, v0")
    a("s_nop 0")
    a("v_readfirstlane_b32 s32, v1")
    a("v_lshlrev_b32 v3, 4, v2")
    a("s_cmp_lt_u32 s32, 4")
    a(f"s_cbranch_scc1 {name}_cons")
    a("s_sub_u32 s33, s32, 4")
    a("v_lshrrev_b32 v4, 3, v2")
    a("v_and_b32 v5, 7, v2")
    a("v_lshrrev_b32 v6, 4, v2")
    a("v_xor_b32 v6, v6, v5")
    a("v_xor_b32 v7, 4, v6")
    a("v_lshlrev_b32 v4, 12, v4")
    a("v_lshl_add_u32 v6, v6, 4, v4")
    a("v_lshl_add_u32 v7, v7, 4, v4")
    a("v_mov_b32 v8, v6")
    a(f"v_add_u32 v9, {32768 - 1024}, v7")
    a(f"v_add_u32 v10, {2 * (32768 - 1024)}, v6")
    a(f"v_add_u32 v11, {3 * (32768 - 1024)}, v7")
    a(f"v_add_u32 v12, {65536 - 2048}, v3")
    a("s_lshl_b32 s35, s30, 19")
    a("s_lshl_b32 s34, s33, 17")
    a("s_add_u32 s35, s35, s34")
    a("s_lshl_b32 s34, s27, 11")
    a("s_add_u32 s35, s35, s34")
    a("s_lshl_b32 s36, s29, 5")
    a("s_lshl_b32 s34, s31, 3")
    a("s_add_u32 s36, s36, s34")
    a("s_lshl_b32 s34, s33, 1")
    a("s_add_u32 s36, s36, s34")
    a("s_lshl_b32 s36, s36, 6")
    a("s_lshl_b32 s34, s27, 5")
    a("s_add_u32 s36, s36, s34")
    a("s_lshl_b32 s36, s36, 10")
    a("s_lshl_b32 s37, s33, 12")
    if rot >= 2:
        a("s_lshl_b32 s52, s31, 1")
        a("s_add_u32 s52, s52, s30")
        if rot == 3:
            a("s_add_u32 s52, s31, s30")
    for j in range(4):
        if rot:
            a(f"s_add_u32 s34, s31, {j}")
            a("s_and_b32 s34, s34, 3")
        else:
            a(f"s_mov_b32 s34, {j}")
        a("s_lshl_b32 s38, s34, 7")
        a(f"s_add_u32 s{44 + j}, s35, s38")
        a("s_lshl_b32 s38, s34, 11")
        a(f"s_add_u32 s{48 + j}, s36, s38")
    a("s_waitcnt lgkmcnt(0)")
    stamp(a, 1)
    a("s_cmp_eq_u32 s29, 1")
    a("s_cselect_b32 s4, s6, s4")
    a("s_cselect_b32 s5, s7, s5")
    srd(a, 12, 4, 5, S * S * 2)
    srd(a, 16, 8, 9, 12 << 20)

    def load_stage(s):
        slot = (s % NSTG) * 32768
        a(f"s_add_u32 m0, s37, {slot}")
        if rot >= 2:
            G8 = {2: 8, 3: 4, 4: 16}[rot]
            a(f"s_add_u32 s53, s52, {s}")
            a(f"s_and_b32 s53, s53, {G8 - 1}")
            a(f"s_add_u32 s53, s53, {s & ~(G8 - 1)}")
            a("s_lshl_b32 s54, s53, 7")
            a("s_add_u32 s38, s35, s54")
        else:
            a(f"s_add_u32 s38, s{44 + (s & 3)}, {(s & ~3) * 128}")
        for i in range(4):
            a(f"buffer_load_dwordx4 v{8 + i}, s[12:15], s38 offen offset:{i * 1024}{POL} lds")
        a(f"s_add_u32 m0, s37, {slot + 16384}")
        if rot >= 2:
            a("s_lshl_b32 s54, s53, 11")
            a("s_add_u32 s39, s36, s54")
        else:
            a(f"s_add_u32 s39, s{48 + (s & 3)}, {(s & ~3) * 2048}")
        for c in range(4):
            a(f"buffer_load_dwordx4 v{3 if c < 2 else 12}, s[16:19], s39 offen offset:{c * 1024}{POL} lds")

    NST = 16
    for s in range(PRO):
        load_stage(s)
    stamp(a, 2)
    issued = PRO
    vq = [st for st in range(PRO) for _ in range(8)]
    for s in range(NST):
        idx = max(k for k, t in enumerate(vq) if t == s)
        a(f"s_waitcnt vmcnt({len(vq) - 1 - idx})")
        vq = vq[idx + 1:]
        a("s_barrier")
        n_new = 0
        while issued < NST and issued - NSTG < s and n_new < 2:
            load_stage(issued)
            vq += [issued] * 8
            issued += 1
            n_new += 1
            if issued == wpf:
                emit_wtouch(a, "s33", 13, 14)
                vq.append("w")
            if issued == wpf2:
                emit_wtouch2(a)
                vq += ["w", "w"]
    stamp(a, 5)
    a(f"s_branch {name}_fin")
    a.label(f"{name}_cons")
    a("s_and_b32 s33, s32, 1")
    a("s_lshr_b32 s34, s32, 1")
    a("v_and_b32 v4, 15, v2")
    a("v_lshrrev_b32 v5, 1, v4")
    a("v_lshrrev_b32 v6, 4, v2")
    a("v_xor_b32 v5, v5, v6")
    a("v_lshlrev_b32 v5, 4, v5")
    a("v_lshl_add_u32 v5, v4, 7, v5")
    a("s_lshl_b32 s35, s33, 13")
    a("s_lshl_b32 s36, s34, 13")
    a("s_add_u32 s36, s36, 16384")
    for g in range(3):
        a(f"v_add_u32 v{8 + 3 * g}, s35, v5")
        a(f"v_xor_b32 v{9 + 3 * g}, 64, v5")
        a(f"v_add_u32 v{9 + 3 * g}, s35, v{9 + 3 * g}")
        a(f"v_add_u32 v{10 + 3 * g}, s36, v3")
        if g:
            for r in range(3):
                a(f"v_add_u32 v{8 + 3 * g + r}, {65536 * g}, v{8 + 3 * g + r}")
    ACC = 64
    FB = 128
    for i in range(64):
        a(f"v_mov_b32 v{ACC + i}, 0")
    a("s_waitcnt lgkmcnt(0)")
    stamp(a, 1)
    srd(a, 16, 8, 9, 12 << 20)
    NU = NST * 2

    def read_list(u):
        s, ks = u // 2, u % 2
        slot = s % NSTG
        g, so = slot // 2, (slot % 2) * 32768
        f = FB + 32 * (u % 2)
        L = []
        for i in range(4):
            L.append(f"ds_read_b128 v[{f + 16 + 4 * i}:{f + 19 + 4 * i}], v{10 + 3 * g} offset:{so + i * 2048 + ks * 1024}")
            L.append(f"ds_read_b128 v[{f + 4 * i}:{f + 3 + 4 * i}], v{8 + 3 * g + ks} offset:{so + i * 2048}")
        return L

    a("s_barrier")
    stamp(a, 3)
    for r in read_list(0):
        a(r)
    for u in range(NU):
        a("s_waitcnt lgkmcnt(0)")
        f = FB + 32 * (u % 2)
        nxt = read_list(u + 1) if u + 1 < NU else []
        n = 0
        for T in range(4):
            for tt in range(4):
                acc = ACC + (T * 4 + tt) * 4
                a(f"v_mfma_f32_16x16x32_bf16 v[{acc}:{acc + 3}], v[{f + 16 + 4 * T}:{f + 19 + 4 * T}], v[{f + 4 * tt}:{f + 4 * tt + 3}], v[{acc}:{acc + 3}]")
                n += 1
                if n == BARPOS and nxt and (u + 1) % 2 == 0:
                    a("s_barrier")
                    if (u + 1) // 2 == 8:
                        stamp(a, 4)
                if n >= BARPOS and nxt and (n - BARPOS) % RSTEP == 0:
                    a(nxt.pop(0))
        for r in nxt:
            a(r)
    stamp(a, 5)
    a("s_lshl_b32 s35, s30, 7")
    a("s_lshl_b32 s36, s33, 6")
    a("s_add_u32 s35, s35, s36")
    a("s_lshl_b32 s35, s35, 10")
    a("s_lshl_b32 s36, s31, 8")
    a("s_add_u32 s35, s35, s36")
    a("s_lshl_b32 s36, s34, 7")
    a("s_add_u32 s35, s35, s36")
    a("s_lshl_b32 s36, s29, 1")
    a("s_add_u32 s36, s36, s27")
    a("s_lshl_b32 s36, s36, 21")
    a("s_add_u32 s35, s35, s36")
    a(f"s_add_u32 s35, s35, {WS_P}")
    a("v_lshlrev_b32 v6, 4, v6")
    a("v_lshl_add_u32 v6, v4, 10, v6")
    for tt in range(4):
        a(f"s_add_u32 s{40 + tt}, s35, {tt * 16384}")
    for tt in range(4):
        for Th in range(2):
            o = 24 + (tt * 2 + Th) * 4
            for Tl in range(2):
                acc = ACC + ((Th * 2 + Tl) * 4 + tt) * 4
                a(f"v_cvt_pk_bf16_f32 v{o + 2 * Tl}, v{acc}, v{acc + 1}")
                a(f"v_cvt_pk_bf16_f32 v{o + 2 * Tl + 1}, v{acc + 2}, v{acc + 3}")
            a(f"buffer_store_dwordx4 v[{o}:{o + 3}], v6, s[16:19], s{40 + tt} offen offset:{Th * 64}" + (" sc0 sc1" if wt else ""))
    if fuse3:
        a("s_waitcnt vmcnt(0)")
    a.label(f"{name}_fin")
    stamp_flush(a, 2, 6, 8, 9)
    nv = FB + 64
    if fuse3:
        a("s_and_b32 s3, s2, 7")
        a("s_and_b32 s29, s3, 1")
        a("s_bfe_u32 s27, s3, 0x10001")
        a("s_lshl_b32 s62, s29, 1")
        a("s_add_u32 s62, s62, s27")
        a("s_lshl_b32 s62, s62, 2")
        a("s_add_u32 s62, s62, s31")
        a("s_lshl_b32 s63, s30, 4")
        a("s_add_u32 s63, s63, s62")
        a("s_barrier")
        gen_kt(a, name + "t", fused=1)
        a.label(f"{name}_done")
        a("s_endpgm")
        return kernel_desc(name, nv, 72, nv)
    a.label(f"{name}_done")
    a("s_endpgm")
    return kernel_desc(name, nv, 72, nv)


def gen_k1c(a, name, wt=1, PRO=3, pf=1, pace=1, pfw=1, pfxd=1):
    NSTG, SLOT, NST = 4, 32768, 8
    STATS = NSTG * SLOT
    kernel_begin(a, name)
    a("s_cmp_ge_u32 s2, 256")
    a(f"s_cbranch_scc1 {name}_done")
    stamp(a, 0)
    a("s_load_dwordx2 s[4:5], s[0:1], 0")
    a("s_load_dwordx4 s[8:11], s[0:1], 24")
    a("s_load_dwordx2 s[6:7], s[0:1], 96")
    a("s_load_dwordx4 s[40:43], s[0:1], 8")
    a("s_load_dwordx4 s[44:47], s[0:1], 56")
    a("s_load_dwordx2 s[48:49], s[0:1], 72")
    a("s_and_b32 s3, s2, 7")
    a("s_lshr_b32 s28, s2, 4")
    a("s_and_b32 s29, s28, 1")
    a("s_lshl_b32 s30, s3, 1")
    a("s_add_u32 s30, s30, s29")
    a("s_lshr_b32 s31, s28, 1")
    a("v_lshrrev_b32 v1, 6, v0")
    a("v_and_b32 v2, 63, v0")
    a("s_nop 0")
    a("v_readfirstlane_b32 s32, v1")
    a("s_mov_b32 s53, 0xffff0000")
    a("s_bitcmp1_b32 s2, 3")
    a(f"s_cbranch_scc1 {name}_pf")
    a("s_cmp_lt_u32 s32, 4")
    a(f"s_cbranch_scc1 {name}_cons")
    a("s_cmp_ge_u32 s32, 8")
    a(f"s_cbranch_scc1 {name}_stat")
    a("s_sub_u32 s33, s32, 4")
    a("v_lshrrev_b32 v3, 3, v2")
    a("v_and_b32 v4, 7, v2")
    a("v_bfe_u32 v5, v2, 4, 1")
    a("v_xor_b32 v4, v4, v5")
    a("v_lshlrev_b32 v3, 10, v3")
    for i in range(4):
        g0g1 = (i & 1) ^ (i >> 1)
        a(f"v_xor_b32 v{8 + i}, {(2 * i) ^ g0g1}, v4")
        a(f"v_lshl_add_u32 v{8 + i}, v{8 + i}, 4, v3")
        if i:
            a(f"v_add_u32 v{8 + i}, {i * (8192 - 1024)}, v{8 + i}")
    a("s_lshl_b32 s34, s33, 5")
    a("s_lshl_b32 s35, s30, 7")
    a("s_add_u32 s35, s35, s34")
    a("s_lshl_b32 s35, s35, 10")
    a("s_and_b32 s36, s31, 3")
    a("s_lshl_b32 s36, s36, 7")
    a("s_add_u32 s36, s36, s34")
    a("s_lshl_b32 s36, s36, 10")
    a("s_lshl_b32 s37, s33, 12")
    a("v_lshlrev_b32 v12, 6, v2")
    a("v_add_u32 v12, s37, v12")
    a("v_add_u32 v12, 16384, v12")
    a(f"v_add_u32 v13, {2 * SLOT}, v12")
    a("v_mov_b32 v14, 0")
    a("v_mov_b32 v15, 0")
    a("s_mov_b32 s50, 0x3f803f80")
    a("s_waitcnt lgkmcnt(0)")
    stamp(a, 1)
    srd(a, 12, 4, 5, S * D * 2)
    a("s_cmp_ge_u32 s31, 4")
    a("s_cselect_b32 s8, s10, s8")
    a("s_cselect_b32 s9, s11, s9")
    srd(a, 16, 8, 9, D * D * 2)

    def load_stage(kk):
        slot = (kk % NSTG) * SLOT
        a(f"s_add_u32 m0, s37, {slot}")
        a(f"s_add_u32 s39, s35, {kk * 128}")
        for i in range(4):
            a(f"buffer_load_dwordx4 v{8 + i}, s[12:15], s39 offen offset:{i * 1024} lds")
        a(f"s_add_u32 m0, s37, {slot + 16384}")
        a(f"s_add_u32 s39, s36, {kk * 128}")
        for i in range(4):
            a(f"buffer_load_dwordx4 v{8 + i}, s[16:19], s39 offen offset:{i * 1024} lds")

    for kk in range(PRO):
        load_stage(kk)
    stamp(a, 2)
    issued = PRO
    for kk in range(NST):
        a(f"s_waitcnt vmcnt({(issued - 1 - kk) * 8})")
        slot = kk % NSTG
        ar, so = (12, slot * SLOT) if slot < 2 else (13, (slot - 2) * SLOT)
        for q in range(4):
            a(f"ds_read_b128 v[{16 + 4 * q}:{19 + 4 * q}], v{ar} offset:{so + 16 * q}")
        a("s_barrier")
        n_new = 0
        while issued < NST and issued - NSTG < kk and n_new < 2:
            load_stage(issued)
            issued += 1
            n_new += 1
        a("s_waitcnt lgkmcnt(0)")
        for r in range(16):
            a(f"v_dot2_f32_bf16 v{14 + (r & 1)}, v{16 + r}, s50, v{14 + (r & 1)}")
    a("s_nop 2")
    a("v_add_f32 v14, v14, v15")
    a("s_nop 1")
    a(f"v_add_f32_dpp v14, v14, v14 quad_perm:[1,0,3,2] {DPP}")
    a("v_lshrrev_b32 v19, 1, v2")
    a("v_lshlrev_b32 v19, 2, v19")
    a("s_lshl_b32 s34, s33, 7")
    a(f"s_add_u32 s34, s34, {STATS + 1024}")
    a("v_add_u32 v19, s34, v19")
    a("ds_write_b32 v19, v14")
    a("s_waitcnt lgkmcnt(0)")
    stamp(a, 3)
    a("s_barrier")
    a(f"s_branch {name}_fin")
    a.label(f"{name}_stat")
    a("s_sub_u32 s33, s32, 8")
    a("s_lshl_b32 s37, s33, 12")
    a("v_lshlrev_b32 v12, 6, v2")
    a("v_add_u32 v12, s37, v12")
    a(f"v_add_u32 v13, {2 * SLOT}, v12")
    for r in range(4):
        a(f"v_mov_b32 v{80 + r}, 0")
    a("s_waitcnt lgkmcnt(0)")
    stamp(a, 1)

    def stat_valu(base):
        for r in range(16):
            t = 72 + 2 * (r & 3)
            a(f"v_lshlrev_b32 v{t}, 16, v{base + r}")
            a(f"v_and_b32 v{t + 1}, s53, v{base + r}")
            a(f"v_sub_f32 v{t}, v{t}, v18")
            a(f"v_sub_f32 v{t + 1}, v{t + 1}, v18")
            a(f"v_add_f32 v80, v80, v{t}")
            a(f"v_add_f32 v81, v81, v{t + 1}")
            a(f"v_fmac_f32 v82, v{t}, v{t}")
            a(f"v_fmac_f32 v83, v{t + 1}, v{t + 1}")

    for kk in range(NST):
        a("s_barrier")
        slot = kk % NSTG
        ar, so = (12, slot * SLOT) if slot < 2 else (13, (slot - 2) * SLOT)
        base = 32 + 16 * (kk & 1)
        for q in range(4):
            a(f"ds_read_b128 v[{base + 4 * q}:{base + 3 + 4 * q}], v{ar} offset:{so + 16 * q}")
        if kk >= 1:
            stat_valu(32 + 16 * ((kk - 1) & 1))
        a("s_waitcnt lgkmcnt(0)")
        if kk == 0:
            a("v_lshlrev_b32 v18, 16, v32")
            a("s_nop 1")
            a(f"v_mov_b32_dpp v18, v18 quad_perm:[0,0,2,2] {DPP}")
    stat_valu(32 + 16 * ((NST - 1) & 1))
    a("v_add_f32 v14, v80, v81")
    a("v_add_f32 v16, v82, v83")
    a("s_nop 1")
    a(f"v_add_f32_dpp v14, v14, v14 quad_perm:[1,0,3,2] {DPP}")
    a(f"v_add_f32_dpp v16, v16, v16 quad_perm:[1,0,3,2] {DPP}")
    a("v_mul_f32 v14, 0x3b000000, v14")
    a("v_mul_f32 v16, 0x3b000000, v16")
    a("v_fma_f32 v16, -v14, v14, v16")
    a("v_max_f32 v16, 0, v16")
    a("v_add_f32 v14, v14, v18")
    a("v_cvt_pk_bf16_f32 v14, v14, v14")
    a("v_lshlrev_b32 v14, 16, v14")
    a("v_cvt_pk_bf16_f32 v16, v16, v16")
    a("v_lshlrev_b32 v16, 16, v16")
    a("v_add_f32 v16, 0x3727c5ac, v16")
    a("v_cvt_pk_bf16_f32 v16, v16, v16")
    a("v_lshlrev_b32 v16, 16, v16")
    a("v_sqrt_f32 v16, v16")
    a("s_nop 0")
    a("v_cvt_pk_bf16_f32 v16, v16, v16")
    a("v_lshlrev_b32 v16, 16, v16")
    a("v_rcp_f32 v16, v16")
    a("v_lshrrev_b32 v19, 1, v2")
    a("v_lshlrev_b32 v19, 2, v19")
    a("s_lshl_b32 s34, s33, 7")
    a(f"s_add_u32 s34, s34, {STATS}")
    a("v_add_u32 v19, s34, v19")
    a("ds_write_b32 v19, v14")
    a("ds_write_b32 v19, v16 offset:512")
    a("s_waitcnt lgkmcnt(0)")
    stamp(a, 3)
    a("s_barrier")
    a(f"s_branch {name}_fin")
    a.label(f"{name}_cons")
    a("s_and_b32 s33, s32, 1")
    a("s_lshr_b32 s34, s32, 1")
    a("v_and_b32 v4, 15, v2")
    a("v_lshrrev_b32 v6, 4, v2")
    a("v_lshrrev_b32 v5, 2, v4")
    a("v_and_b32 v7, 3, v4")
    a("v_lshl_add_u32 v7, v5, 3, v7")
    a("v_lshrrev_b32 v20, 1, v4")
    a("v_lshrrev_b32 v21, 2, v4")
    a("v_lshrrev_b32 v22, 3, v4")
    a("v_xor_b32 v21, v21, v22")
    a("v_and_b32 v21, 1, v21")
    a("v_xor_b32 v20, v20, v21")
    a("v_xor_b32 v20, v20, v6")
    a("v_lshlrev_b32 v20, 4, v20")
    a("v_lshl_add_u32 v20, v7, 7, v20")
    a("s_lshl_b32 s35, s33, 13")
    a("s_lshl_b32 s36, s34, 13")
    a("s_add_u32 s36, s36, 16384")
    for g2 in range(2):
        a(f"v_add_u32 v{8 + 4 * g2}, s35, v20")
        a(f"v_xor_b32 v{9 + 4 * g2}, 64, v{8 + 4 * g2}")
        a(f"v_add_u32 v{10 + 4 * g2}, s36, v20")
        a(f"v_xor_b32 v{11 + 4 * g2}, 64, v{10 + 4 * g2}")
        if g2:
            for r in range(4):
                a(f"v_add_u32 v{8 + 4 * g2 + r}, {65536 * g2}, v{8 + 4 * g2 + r}")
    ACC = 32
    FB = 96
    for i in range(64):
        a(f"v_mov_b32 v{ACC + i}, 0")
    a("s_waitcnt lgkmcnt(0)")
    stamp(a, 1)
    srd(a, 20, 6, 7, 4 << 20)
    NU = NST * 2

    def reads(u):
        s, ks = u // 2, u % 2
        slot = s % NSTG
        g2, so = slot // 2, (slot % 2) * SLOT
        f = FB + 32 * (u % 2)
        if ks == 0:
            a("s_waitcnt lgkmcnt(0)")
            a("s_barrier")
            if s == 0:
                stamp(a, 2)
        for i in range(4):
            off = so + (i >> 1) * 4096 + (i & 1) * 512
            a(f"ds_read_b128 v[{f + 4 * i}:{f + 3 + 4 * i}], v{8 + 4 * g2 + ks} offset:{off}")
            a(f"ds_read_b128 v[{f + 16 + 4 * i}:{f + 19 + 4 * i}], v{10 + 4 * g2 + ks} offset:{off}")

    reads(0)
    for u in range(NU):
        if u + 1 < NU:
            reads(u + 1)
            a("s_waitcnt lgkmcnt(8)")
        else:
            a("s_waitcnt lgkmcnt(0)")
        f = FB + 32 * (u % 2)
        for xi in range(4):
            for T in range(4):
                acc = ACC + (xi * 4 + T) * 4
                a(f"v_mfma_f32_16x16x32_bf16 v[{acc}:{acc + 3}], v[{f + 4 * xi}:{f + 3 + 4 * xi}], v[{f + 16 + 4 * T}:{f + 19 + 4 * T}], v[{acc}:{acc + 3}]")
    stamp(a, 3)
    a("s_barrier")
    stamp(a, 4)
    a("s_lshl_b32 s35, s33, 8")
    a(f"s_add_u32 s35, s35, {STATS}")
    a("v_lshlrev_b32 v20, 5, v6")
    a("v_add_u32 v20, s35, v20")
    for blk in range(2):
        for h in range(2):
            a(f"ds_read_b128 v[{96 + 16 * blk + 4 * h}:{99 + 16 * blk + 4 * h}], v20 offset:{128 * blk + 16 * h}")
            a(f"ds_read_b128 v[{104 + 16 * blk + 4 * h}:{107 + 16 * blk + 4 * h}], v20 offset:{512 + 128 * blk + 16 * h}")
    a("s_lshl_b32 s36, s34, 8")
    a(f"s_add_u32 s36, s36, {STATS + 1024}")
    a("v_lshlrev_b32 v21, 2, v7")
    a("v_add_u32 v21, s36, v21")
    for T in range(4):
        a(f"ds_read_b32 v{128 + T}, v21 offset:{(T >> 1) * 128 + (T & 1) * 16}")
    a("s_lshl_b32 s35, s31, 3")
    a("s_lshl_b32 s36, s34, 2")
    a("s_add_u32 s35, s35, s36")
    a("s_lshl_b32 s35, s35, 6")
    a("s_lshl_b32 s36, s30, 2")
    a("s_add_u32 s35, s35, s36")
    a("s_lshl_b32 s36, s33, 1")
    a("s_add_u32 s35, s35, s36")
    a("s_lshl_b32 s35, s35, 10")
    for T in range(4):
        a(f"s_add_u32 s{40 + T}, s35, {T * 65536}")
    a("v_lshlrev_b32 v22, 4, v2")
    a("s_waitcnt lgkmcnt(0)")
    for blk in range(2):
        for T in range(4):
            o = 132 + 4 * ((blk * 4 + T) & 3)
            for hb in range(2):
                acc = ACC + ((blk * 2 + hb) * 4 + T) * 4
                for j in range(4):
                    a(f"v_fma_f32 v{acc + j}, -v{96 + 16 * blk + 4 * hb + j}, v{128 + T}, v{acc + j}")
                    a(f"v_mul_f32 v{acc + j}, v{acc + j}, v{104 + 16 * blk + 4 * hb + j}")
                a(f"v_cvt_pk_bf16_f32 v{o + 2 * hb}, v{acc}, v{acc + 1}")
                a(f"v_cvt_pk_bf16_f32 v{o + 2 * hb + 1}, v{acc + 2}, v{acc + 3}")
            a(f"buffer_store_dwordx4 v[{o}:{o + 3}], v22, s[20:23], s{40 + T} offen offset:{blk * 1024}" + (" sc0 sc1" if wt else ""))
    stamp(a, 5)
    a(f"s_branch {name}_fin")
    a.label(f"{name}_pf")
    a("s_waitcnt lgkmcnt(0)")
    stamp(a, 1)
    if pf:
        a("v_lshlrev_b32 v3, 7, v2")
        a("v_lshrrev_b32 v4, 4, v2")
        a("v_lshlrev_b32 v4, 12, v4")
        a("v_and_b32 v5, 15, v2")
        a("v_lshl_add_u32 v4, v5, 7, v4")
        a("s_mul_i32 s33, s28, 12")
        a("s_add_u32 s33, s33, s32")
        nld = 0
        if pfxd:
            srd(a, 12, 4, 5, S * D * 2)
            srd(a, 16, 8, 9, D * D * 2)
            srd(a, 20, 10, 11, D * D * 2)
            a("s_lshl_b32 s34, s33, 13")
            a("s_lshl_b32 s35, s3, 18")
            a("s_add_u32 s35, s35, s34")
            a("s_cmp_lt_u32 s33, 32")
            a(f"s_cbranch_scc0 {name}_pf1")
            a("buffer_load_dword v10, v3, s[12:15], s35 offen")
            a(f"s_branch {name}_pf3")
            a.label(f"{name}_pf1")
            a("s_sub_u32 s34, s34, 262144")
            a("s_cmp_lt_u32 s33, 96")
            a(f"s_cbranch_scc0 {name}_pf2")
            a("buffer_load_dword v10, v3, s[16:19], s34 offen")
            a(f"s_branch {name}_pf3")
            a.label(f"{name}_pf2")
            a("s_sub_u32 s34, s34, 524288")
            a("buffer_load_dword v10, v3, s[20:23], s34 offen")
            a.label(f"{name}_pf3")
            if pace:
                a("s_waitcnt vmcnt(0)")
        a("s_and_b32 s48, s3, 1")
        a("s_cmp_eq_u32 s48, 1")
        a("s_cselect_b32 s40, s42, s40")
        a("s_cselect_b32 s41, s43, s41")
        srd(a, 24, 40, 41, S * S * 2)
        a("s_cmp_ge_u32 s33, 128")
        a(f"s_cbranch_scc1 {name}_fin")
        a("s_lshr_b32 s48, s3, 2")
        a("s_lshl_b32 s48, s48, 10")
        a("s_lshl_b32 s49, s33, 3")
        a("s_add_u32 s48, s48, s49")
        a("s_lshl_b32 s48, s48, 12")
        a("s_bfe_u32 s49, s3, 0x10001")
        a("s_lshl_b32 s49, s49, 11")
        a("s_add_u32 s48, s48, s49")
        a("buffer_load_dword v11, v4, s[24:27], s48 offen")
        if pace >= 2:
            a("s_waitcnt vmcnt(0)")
        a("s_add_u32 s48, s48, 16384")
        a("buffer_load_dword v12, v4, s[24:27], s48 offen")
    a.label(f"{name}_fin")
    stamp_flush(a, 1, 6, 6, 7)
    a.label(f"{name}_done")
    a("s_endpgm")
    return kernel_desc(name, 160, 64, 160)


WS_STATS = (12 << 20) + (1 << 19) + 8192
WS_CS = WS_STATS + 16384


def gen_k1d(a, name, wt=1, PRO=3, pf=1, pace=1, pfq=4):
    NSTG, SLOT, NST = 4, 32768, 8
    STATS = NSTG * SLOT
    kernel_begin(a, name)
    a("s_cmp_ge_u32 s2, 256")
    a(f"s_cbranch_scc1 {name}_done")
    stamp(a, 0)
    a("s_load_dwordx2 s[4:5], s[0:1], 0")
    a("s_load_dwordx4 s[8:11], s[0:1], 24")
    a("s_load_dwordx4 s[44:47], s[0:1], 88")
    a("s_load_dwordx4 s[40:43], s[0:1], 8")
    a("s_and_b32 s3, s2, 7")
    a("s_lshr_b32 s28, s2, 4")
    a("s_and_b32 s29, s28, 1")
    a("s_lshl_b32 s30, s3, 1")
    a("s_add_u32 s30, s30, s29")
    a("s_lshr_b32 s31, s28, 1")
    a("v_lshrrev_b32 v1, 6, v0")
    a("v_and_b32 v2, 63, v0")
    a("s_nop 0")
    a("v_readfirstlane_b32 s32, v1")
    a("s_mov_b32 s53, 0xffff0000")
    a("s_bitcmp1_b32 s2, 3")
    a(f"s_cbranch_scc1 {name}_aux")
    a("s_cmp_lt_u32 s32, 4")
    a(f"s_cbranch_scc1 {name}_cons")
    a("s_sub_u32 s33, s32, 4")
    a("v_lshrrev_b32 v3, 3, v2")
    a("v_and_b32 v4, 7, v2")
    a("v_bfe_u32 v5, v2, 4, 1")
    a("v_xor_b32 v4, v4, v5")
    a("v_lshlrev_b32 v3, 10, v3")
    for i in range(4):
        g0g1 = (i & 1) ^ (i >> 1)
        a(f"v_xor_b32 v{8 + i}, {(2 * i) ^ g0g1}, v4")
        a(f"v_lshl_add_u32 v{8 + i}, v{8 + i}, 4, v3")
        if i:
            a(f"v_add_u32 v{8 + i}, {i * (8192 - 1024)}, v{8 + i}")
    a("s_lshl_b32 s34, s33, 5")
    a("s_lshl_b32 s35, s30, 7")
    a("s_add_u32 s35, s35, s34")
    a("s_lshl_b32 s38, s35, 3")
    a("s_lshl_b32 s35, s35, 10")
    a("s_and_b32 s36, s31, 3")
    a("s_lshl_b32 s36, s36, 7")
    a("s_add_u32 s36, s36, s34")
    a("s_lshl_b32 s36, s36, 10")
    a("s_lshl_b32 s37, s33, 12")
    a("v_lshlrev_b32 v12, 6, v2")
    a("v_add_u32 v12, s37, v12")
    a("v_add_u32 v12, 16384, v12")
    a(f"v_add_u32 v13, {2 * SLOT}, v12")
    a("v_mov_b32 v14, 0")
    a("v_mov_b32 v15, 0")
    a("s_mov_b32 s50, 0x3f803f80")
    a("s_waitcnt lgkmcnt(0)")
    stamp(a, 1)
    srd(a, 12, 4, 5, S * D * 2)
    a("s_cmp_ge_u32 s31, 4")
    a("s_cselect_b32 s8, s10, s8")
    a("s_cselect_b32 s9, s11, s9")
    srd(a, 16, 8, 9, D * D * 2)
    srd(a, 20, 46, 47, 14 << 20)
    srd(a, 24, 44, 45, 256)

    def load_stage(kk):
        slot = (kk % NSTG) * SLOT
        a(f"s_add_u32 m0, s37, {slot}")
        a(f"s_add_u32 s39, s35, {kk * 128}")
        for i in range(4):
            a(f"buffer_load_dwordx4 v{8 + i}, s[12:15], s39 offen offset:{i * 1024} lds")
        a(f"s_add_u32 m0, s37, {slot + 16384}")
        a(f"s_add_u32 s39, s36, {kk * 128}")
        for i in range(4):
            a(f"buffer_load_dwordx4 v{8 + i}, s[16:19], s39 offen offset:{i * 1024} lds")

    for kk in range(PRO):
        load_stage(kk)
    stamp(a, 2)
    issued = PRO
    for kk in range(NST):
        a(f"s_waitcnt vmcnt({(issued - 1 - kk) * 8})")
        slot = kk % NSTG
        ar, so = (12, slot * SLOT) if slot < 2 else (13, (slot - 2) * SLOT)
        for q in range(4):
            a(f"ds_read_b128 v[{16 + 4 * q}:{19 + 4 * q}], v{ar} offset:{so + 16 * q}")
        a("s_barrier")
        n_new = 0
        while issued < NST and issued - NSTG < kk and n_new < 2:
            load_stage(issued)
            issued += 1
            n_new += 1
        a("s_waitcnt lgkmcnt(0)")
        for r in range(16):
            a(f"v_dot2_f32_bf16 v{14 + (r & 1)}, v{16 + r}, s50, v{14 + (r & 1)}")
    a("s_lshl_b32 s34, s30, 2")
    a("v_mov_b32 v20, s34")
    a.label(f"{name}_poll")
    a("buffer_load_dword v21, v20, s[24:27], 0 offen sc0 sc1")
    a("s_waitcnt vmcnt(0)")
    a("v_readfirstlane_b32 s34, v21")
    a("s_cmp_ge_u32 s34, 8")
    a(f"s_cbranch_scc1 {name}_polled")
    a("s_sleep 2")
    a(f"s_branch {name}_poll")
    a.label(f"{name}_polled")
    a("v_and_b32 v20, 31, v2")
    a("v_lshlrev_b32 v20, 3, v20")
    a(f"s_add_u32 s38, s38, {WS_STATS}")
    a("buffer_load_dwordx2 v[22:23], v20, s[20:23], s38 offen sc0 sc1")
    a("v_add_f32 v14, v14, v15")
    a("s_nop 1")
    a(f"v_add_f32_dpp v14, v14, v14 quad_perm:[1,0,3,2] {DPP}")
    a("v_lshrrev_b32 v19, 1, v2")
    a("v_lshlrev_b32 v19, 2, v19")
    a("s_lshl_b32 s34, s33, 7")
    a(f"s_add_u32 s34, s34, {STATS + 1024}")
    a("v_add_u32 v19, s34, v19")
    a("ds_write_b32 v19, v14")
    a("v_lshrrev_b32 v20, 1, v20")
    a("s_lshl_b32 s34, s33, 7")
    a(f"s_add_u32 s34, s34, {STATS}")
    a("v_add_u32 v20, s34, v20")
    a("s_waitcnt vmcnt(0)")
    a("ds_write_b32 v20, v22")
    a("ds_write_b32 v20, v23 offset:512")
    a("s_waitcnt lgkmcnt(0)")
    stamp(a, 3)
    a("s_barrier")
    a(f"s_branch {name}_fin")
    a.label(f"{name}_cons")
    a("s_and_b32 s33, s32, 1")
    a("s_lshr_b32 s34, s32, 1")
    a("v_and_b32 v4, 15, v2")
    a("v_lshrrev_b32 v6, 4, v2")
    a("v_lshrrev_b32 v5, 2, v4")
    a("v_and_b32 v7, 3, v4")
    a("v_lshl_add_u32 v7, v5, 3, v7")
    a("v_lshrrev_b32 v20, 1, v4")
    a("v_lshrrev_b32 v21, 2, v4")
    a("v_lshrrev_b32 v22, 3, v4")
    a("v_xor_b32 v21, v21, v22")
    a("v_and_b32 v21, 1, v21")
    a("v_xor_b32 v20, v20, v21")
    a("v_xor_b32 v20, v20, v6")
    a("v_lshlrev_b32 v20, 4, v20")
    a("v_lshl_add_u32 v20, v7, 7, v20")
    a("s_lshl_b32 s35, s33, 13")
    a("s_lshl_b32 s36, s34, 13")
    a("s_add_u32 s36, s36, 16384")
    for g2 in range(2):
        a(f"v_add_u32 v{8 + 4 * g2}, s35, v20")
        a(f"v_xor_b32 v{9 + 4 * g2}, 64, v{8 + 4 * g2}")
        a(f"v_add_u32 v{10 + 4 * g2}, s36, v20")
        a(f"v_xor_b32 v{11 + 4 * g2}, 64, v{10 + 4 * g2}")
        if g2:
            for r in range(4):
                a(f"v_add_u32 v{8 + 4 * g2 + r}, {65536 * g2}, v{8 + 4 * g2 + r}")
    ACC = 32
    FB = 96
    for i in range(64):
        a(f"v_mov_b32 v{ACC + i}, 0")
    a("s_waitcnt lgkmcnt(0)")
    stamp(a, 1)
    srd(a, 20, 46, 47, 4 << 20)
    NU = NST * 2

    def read_list(u):
        s, ks = u // 2, u % 2
        slot = s % NSTG
        g2, so = slot // 2, (slot % 2) * SLOT
        f = FB + 32 * (u % 2)
        L = []
        for i in range(4):
            off = so + (i >> 1) * 4096 + (i & 1) * 512
            L.append(f"ds_read_b128 v[{f + 4 * i}:{f + 3 + 4 * i}], v{8 + 4 * g2 + ks} offset:{off}")
            L.append(f"ds_read_b128 v[{f + 16 + 4 * i}:{f + 19 + 4 * i}], v{10 + 4 * g2 + ks} offset:{off}")
        return L

    a("s_barrier")
    stamp(a, 2)
    for r in read_list(0):
        a(r)
    for u in range(NU):
        a("s_waitcnt lgkmcnt(0)")
        f = FB + 32 * (u % 2)
        nxt = read_list(u + 1) if u + 1 < NU else []
        n = 0
        for xi in range(4):
            for T in range(4):
                acc = ACC + (xi * 4 + T) * 4
                a(f"v_mfma_f32_16x16x32_bf16 v[{acc}:{acc + 3}], v[{f + 4 * xi}:{f + 3 + 4 * xi}], v[{f + 16 + 4 * T}:{f + 19 + 4 * T}], v[{acc}:{acc + 3}]")
                n += 1
                if n == 1 and nxt and (u + 1) % 2 == 0:
                    a("s_barrier")
                if nxt:
                    a(nxt.pop(0))
    stamp(a, 3)
    a("s_barrier")
    stamp(a, 4)
    a("s_lshl_b32 s35, s33, 8")
    a(f"s_add_u32 s35, s35, {STATS}")
    a("v_lshlrev_b32 v20, 5, v6")
    a("v_add_u32 v20, s35, v20")
    for blk in range(2):
        for h in range(2):
            a(f"ds_read_b128 v[{96 + 16 * blk + 4 * h}:{99 + 16 * blk + 4 * h}], v20 offset:{128 * blk + 16 * h}")
            a(f"ds_read_b128 v[{104 + 16 * blk + 4 * h}:{107 + 16 * blk + 4 * h}], v20 offset:{512 + 128 * blk + 16 * h}")
    a("s_lshl_b32 s36, s34, 8")
    a(f"s_add_u32 s36, s36, {STATS + 1024}")
    a("v_lshlrev_b32 v21, 2, v7")
    a("v_add_u32 v21, s36, v21")
    for T in range(4):
        a(f"ds_read_b32 v{128 + T}, v21 offset:{(T >> 1) * 128 + (T & 1) * 16}")
    a("s_lshl_b32 s35, s31, 3")
    a("s_lshl_b32 s36, s34, 2")
    a("s_add_u32 s35, s35, s36")
    a("s_lshl_b32 s35, s35, 6")
    a("s_lshl_b32 s36, s30, 2")
    a("s_add_u32 s35, s35, s36")
    a("s_lshl_b32 s36, s33, 1")
    a("s_add_u32 s35, s35, s36")
    a("s_lshl_b32 s35, s35, 10")
    for T in range(4):
        a(f"s_add_u32 s{40 + T}, s35, {T * 65536}")
    a("v_lshlrev_b32 v22, 4, v2")
    a("s_waitcnt lgkmcnt(0)")
    for blk in range(2):
        for T in range(4):
            o = 132 + 4 * ((blk * 4 + T) & 3)
            for hb in range(2):
                acc = ACC + ((blk * 2 + hb) * 4 + T) * 4
                for j in range(4):
                    a(f"v_fma_f32 v{acc + j}, -v{96 + 16 * blk + 4 * hb + j}, v{128 + T}, v{acc + j}")
                    a(f"v_mul_f32 v{acc + j}, v{acc + j}, v{104 + 16 * blk + 4 * hb + j}")
                a(f"v_cvt_pk_bf16_f32 v{o + 2 * hb}, v{acc}, v{acc + 1}")
                a(f"v_cvt_pk_bf16_f32 v{o + 2 * hb + 1}, v{acc + 2}, v{acc + 3}")
            a(f"buffer_store_dwordx4 v[{o}:{o + 3}], v22, s[20:23], s{40 + T} offen offset:{blk * 1024}" + (" sc0 sc1" if wt else ""))
    stamp(a, 5)
    a(f"s_branch {name}_fin")
    a.label(f"{name}_aux")
    a("v_mov_b32 v3, 0")
    a("ds_write_b32 v3, v3")
    a("s_waitcnt lgkmcnt(0)")
    a("s_barrier")
    stamp(a, 1)
    a("s_cmp_ge_u32 s32, 4")
    a(f"s_cbranch_scc1 {name}_pfw")
    a("s_lshl_b32 s33, s3, 8")
    a("s_lshl_b32 s34, s28, 4")
    a("s_add_u32 s33, s33, s34")
    a("s_lshl_b32 s34, s32, 2")
    a("s_add_u32 s33, s33, s34")
    a("v_lshrrev_b32 v3, 4, v2")
    a("v_and_b32 v4, 15, v2")
    a("v_lshlrev_b32 v5, 10, v3")
    a("v_lshl_add_u32 v5, v4, 4, v5")
    a("s_lshl_b32 s34, s33, 10")
    srd(a, 12, 4, 5, S * D * 2)
    for jj in range(4):
        a(f"buffer_load_dwordx4 v[{16 + 4 * jj}:{19 + 4 * jj}], v5, s[12:15], s34 offen offset:{256 * jj}")
    srd(a, 20, 46, 47, 14 << 20)
    srd(a, 28, 44, 45, 256)
    a("s_waitcnt vmcnt(0)")
    stamp(a, 2)
    X = 32
    for r in range(16):
        a(f"v_lshlrev_b32 v{X + 2 * r}, 16, v{16 + r}")
        a(f"v_and_b32 v{X + 2 * r + 1}, s53, v{16 + r}")
    a(f"v_add_f32 v8, v{X}, v{X + 1}")
    a(f"v_add_f32 v9, v{X + 2}, v{X + 3}")
    for r in range(4, 32, 2):
        a(f"v_add_f32 v8, v8, v{X + r}")
        a(f"v_add_f32 v9, v9, v{X + r + 1}")
    a("v_add_f32 v8, v8, v9")

    def red16(v):
        for pat in ("quad_perm:[1,0,3,2]", "quad_perm:[2,3,0,1]", "row_half_mirror", "row_mirror"):
            a("s_nop 1")
            a(f"v_add_f32_dpp v{v}, v{v}, v{v} {pat} {DPP}")

    red16(8)
    a("v_mul_f32 v8, 0x3b000000, v8")
    a("v_mov_b32 v10, 0")
    a("v_mov_b32 v11, 0")
    for r in range(0, 32, 2):
        a(f"v_sub_f32 v{X + r}, v{X + r}, v8")
        a(f"v_sub_f32 v{X + r + 1}, v{X + r + 1}, v8")
        a(f"v_fmac_f32 v10, v{X + r}, v{X + r}")
        a(f"v_fmac_f32 v11, v{X + r + 1}, v{X + r + 1}")
    a("v_add_f32 v10, v10, v11")
    red16(10)
    a("v_mul_f32 v10, 0x3b000000, v10")
    a("v_cvt_pk_bf16_f32 v12, v8, v8")
    a("v_lshlrev_b32 v12, 16, v12")
    a("v_cvt_pk_bf16_f32 v10, v10, v10")
    a("v_lshlrev_b32 v10, 16, v10")
    a("v_add_f32 v10, 0x3727c5ac, v10")
    a("v_cvt_pk_bf16_f32 v10, v10, v10")
    a("v_lshlrev_b32 v10, 16, v10")
    a("v_sqrt_f32 v10, v10")
    a("s_nop 0")
    a("v_cvt_pk_bf16_f32 v10, v10, v10")
    a("v_lshlrev_b32 v10, 16, v10")
    a("v_rcp_f32 v13, v10")
    a("v_lshlrev_b32 v14, 3, v3")
    a("s_lshl_b32 s36, s33, 3")
    a(f"s_add_u32 s36, s36, {WS_STATS}")
    a("v_cmp_eq_u32 vcc, 0, v4")
    a("s_and_saveexec_b64 s[54:55], vcc")
    a("buffer_store_dwordx2 v[12:13], v14, s[20:23], s36 offen sc0 sc1")
    a("s_mov_b64 exec, s[54:55]")
    a("s_waitcnt vmcnt(0)")
    stamp(a, 3)
    a("v_mov_b32 v14, 0")
    a("v_mov_b32 v15, 1")
    a("v_cmp_eq_u32 vcc, 0, v2")
    a("s_and_saveexec_b64 s[54:55], vcc")
    a("ds_add_rtn_u32 v6, v14, v15")
    a("s_waitcnt lgkmcnt(0)")
    a("v_readfirstlane_b32 s36, v6")
    a("s_cmp_lg_u32 s36, 3")
    a(f"s_cbranch_scc1 {name}_nosig")
    a("s_lshr_b32 s36, s33, 7")
    a("s_lshl_b32 s36, s36, 2")
    a("v_mov_b32 v14, s36")
    a("buffer_atomic_add v15, v14, s[28:31], 0 offen")
    a.label(f"{name}_nosig")
    a("s_mov_b64 exec, s[54:55]")
    a(f"s_branch {name}_fin")
    a.label(f"{name}_pfw")
    a("v_lshlrev_b32 v6, 7, v2")
    a("v_lshrrev_b32 v7, 4, v2")
    a("v_lshlrev_b32 v7, 12, v7")
    a("v_and_b32 v8, 15, v2")
    a("v_lshl_add_u32 v7, v8, 7, v7")
    a("s_lshl_b32 s35, s28, 2")
    a("s_add_u32 s35, s35, s32")
    a("s_sub_u32 s35, s35, 4")
    srd(a, 16, 8, 9, D * D * 2)
    srd(a, 20, 10, 11, D * D * 2)
    a("s_lshl_b32 s36, s35, 13")
    a("buffer_load_dword v10, v6, s[16:19], s36 offen")
    a("buffer_load_dword v11, v6, s[20:23], s36 offen")
    a("s_and_b32 s48, s3, 1")
    a("s_cmp_eq_u32 s48, 1")
    a("s_cselect_b32 s40, s42, s40")
    a("s_cselect_b32 s41, s43, s41")
    srd(a, 24, 40, 41, S * S * 2)
    a("s_lshr_b32 s48, s3, 2")
    a("s_lshl_b32 s48, s48, 10")
    a("s_lshl_b32 s49, s35, 4")
    a("s_add_u32 s48, s48, s49")
    a("s_lshl_b32 s48, s48, 12")
    a("s_bfe_u32 s49, s3, 0x10001")
    a("s_lshl_b32 s49, s49, 11")
    a("s_add_u32 s48, s48, s49")
    if pace:
        a("s_waitcnt vmcnt(0)")
    stamp(a, 2)
    if pf:
        if pfq < 4:
            a(f"v_cmp_gt_u32 vcc, {4 * pfq}, v8")
            a("s_and_saveexec_b64 s[54:55], vcc")
        for ii in range(4):
            a(f"s_add_u32 s49, s48, {ii * 16384}")
            a(f"buffer_load_dword v{12 + ii}, v7, s[24:27], s49 offen")
        if pfq < 4:
            a("s_mov_b64 exec, s[54:55]")
    a.label(f"{name}_fin")
    stamp_flush(a, 1, 6, 46, 47)
    a.label(f"{name}_done")
    a("s_endpgm")
    return kernel_desc(name, 160, 64, 160)


def gen_k1e(a, name, wt=1, PRO=4, pf=1, pace=1, U1=10, U2=12, pfq=4, pol=0, ppol=0, tlb=0):
    POL = {0: '', 1: ' sc1', 2: ' nt', 3: ' sc0'}[pol]
    PPOL = {0: '', 1: ' sc1', 2: ' nt', 3: ' sc0'}[ppol]
    NSTG, SLOT, NST = 5, 32768, 8
    CS = 3 * SLOT
    kernel_begin(a, name)
    a("s_cmp_ge_u32 s2, 256")
    a(f"s_cbranch_scc1 {name}_done")
    stamp(a, 0)
    a("s_load_dwordx2 s[4:5], s[0:1], 0")
    a("s_load_dwordx4 s[8:11], s[0:1], 24")
    a("s_load_dwordx4 s[44:47], s[0:1], 88")
    a("s_load_dwordx4 s[40:43], s[0:1], 8")
    a("s_and_b32 s3, s2, 7")
    a("s_lshr_b32 s28, s2, 4")
    a("s_and_b32 s29, s3, 1")
    a("s_bfe_u32 s27, s3, 0x10001")
    a("s_lshr_b32 s26, s3, 2")
    a("s_lshl_b32 s30, s27, 3")
    a("s_lshl_b32 s34, s26, 2")
    a("s_add_u32 s30, s30, s34")
    a("s_and_b32 s34, s28, 3")
    a("s_add_u32 s30, s30, s34")
    a("s_lshr_b32 s31, s28, 2")
    a("v_lshrrev_b32 v1, 6, v0")
    a("v_and_b32 v2, 63, v0")
    a("s_nop 0")
    a("v_readfirstlane_b32 s32, v1")
    a("s_mov_b32 s53, 0xffff0000")
    a("s_bitcmp1_b32 s2, 3")
    a(f"s_cbranch_scc1 {name}_aux")
    a("s_cmp_lt_u32 s32, 4")
    a(f"s_cbranch_scc1 {name}_cons")
    a("s_sub_u32 s33, s32, 4")
    a("v_lshrrev_b32 v3, 3, v2")
    a("v_and_b32 v4, 7, v2")
    a("v_bfe_u32 v5, v2, 4, 1")
    a("v_xor_b32 v4, v4, v5")
    a("v_lshlrev_b32 v3, 10, v3")
    for i in range(4):
        g0g1 = (i & 1) ^ (i >> 1)
        a(f"v_xor_b32 v{8 + i}, {(2 * i) ^ g0g1}, v4")
        a(f"v_lshl_add_u32 v{8 + i}, v{8 + i}, 4, v3")
        if i:
            a(f"v_add_u32 v{8 + i}, {i * (8192 - 1024)}, v{8 + i}")
    a("s_lshl_b32 s34, s33, 5")
    a("s_lshl_b32 s35, s30, 7")
    a("s_add_u32 s35, s35, s34")
    a("s_lshl_b32 s35, s35, 10")
    a("s_lshl_b32 s36, s31, 7")
    a("s_add_u32 s36, s36, s34")
    a("s_lshl_b32 s36, s36, 10")
    a("s_lshl_b32 s37, s33, 12")
    a("v_lshlrev_b32 v12, 6, v2")
    a("v_add_u32 v12, s37, v12")
    a("v_add_u32 v12, 16384, v12")
    a(f"v_add_u32 v13, {2 * SLOT}, v12")
    a(f"v_add_u32 v6, {4 * SLOT}, v12")
    a("v_mov_b32 v14, 0")
    a("v_mov_b32 v15, 0")
    a("s_mov_b32 s50, 0x3f803f80")
    a("s_waitcnt lgkmcnt(0)")
    stamp(a, 1)
    srd(a, 12, 4, 5, S * D * 2)
    a("s_cmp_eq_u32 s29, 1")
    a("s_cselect_b32 s8, s10, s8")
    a("s_cselect_b32 s9, s11, s9")
    srd(a, 16, 8, 9, D * D * 2)

    def load_stage(kk):
        slot = (kk % NSTG) * SLOT
        a(f"s_add_u32 m0, s37, {slot}")
        a(f"s_add_u32 s39, s35, {kk * 128}")
        for i in range(4):
            a(f"buffer_load_dwordx4 v{8 + i}, s[12:15], s39 offen offset:{i * 1024}{POL} lds")
        a(f"s_add_u32 m0, s37, {slot + 16384}")
        a(f"s_add_u32 s39, s36, {kk * 128}")
        for i in range(4):
            a(f"buffer_load_dwordx4 v{8 + i}, s[16:19], s39 offen offset:{i * 1024}{POL} lds")

    for kk in range(PRO):
        load_stage(kk)
    stamp(a, 2)
    issued = PRO
    for kk in range(NST):
        a(f"s_waitcnt vmcnt({(issued - 1 - kk) * 8})")
        a("s_barrier")
        n_new = 0
        while issued < NST and issued - NSTG < kk and n_new < 2:
            load_stage(issued)
            issued += 1
            n_new += 1
    stamp(a, 3)
    a(f"s_branch {name}_fin")
    a.label(f"{name}_cons")
    a("s_and_b32 s33, s32, 1")
    a("s_lshr_b32 s34, s32, 1")
    a("v_and_b32 v4, 15, v2")
    a("v_lshrrev_b32 v6, 4, v2")
    a("v_lshrrev_b32 v5, 2, v4")
    a("v_and_b32 v7, 3, v4")
    a("v_lshl_add_u32 v7, v5, 3, v7")
    a("v_lshrrev_b32 v20, 1, v4")
    a("v_lshrrev_b32 v21, 2, v4")
    a("v_lshrrev_b32 v22, 3, v4")
    a("v_xor_b32 v21, v21, v22")
    a("v_and_b32 v21, 1, v21")
    a("v_xor_b32 v20, v20, v21")
    a("v_xor_b32 v20, v20, v6")
    a("v_lshlrev_b32 v20, 4, v20")
    a("v_lshl_add_u32 v20, v7, 7, v20")
    a("s_lshl_b32 s35, s33, 13")
    a("s_lshl_b32 s36, s34, 13")
    a("s_add_u32 s36, s36, 16384")
    for g2 in range(3):
        a(f"v_add_u32 v{8 + 4 * g2}, s35, v20")
        a(f"v_xor_b32 v{9 + 4 * g2}, 64, v{8 + 4 * g2}")
        a(f"v_add_u32 v{10 + 4 * g2}, s36, v20")
        a(f"v_xor_b32 v{11 + 4 * g2}, 64, v{10 + 4 * g2}")
        if g2:
            for r in range(4):
                a(f"v_add_u32 v{8 + 4 * g2 + r}, {65536 * g2}, v{8 + 4 * g2 + r}")
    ACC = 32
    FB = 96
    ST = 160
    for i in range(64):
        a(f"v_mov_b32 v{ACC + i}, 0")
    a("s_lshl_b32 s38, s30, 7")
    a("s_lshl_b32 s39, s33, 6")
    a("s_add_u32 s38, s38, s39")
    a("s_lshl_b32 s38, s38, 3")
    a(f"s_add_u32 s38, s38, {WS_STATS}")
    a("v_lshlrev_b32 v23, 6, v6")
    a("v_mov_b32 v24, 0")
    a("s_lshl_b32 s39, s29, 9")
    a("s_lshl_b32 s61, s31, 7")
    a("s_add_u32 s39, s39, s61")
    a("s_lshl_b32 s61, s34, 6")
    a("s_add_u32 s39, s39, s61")
    a("s_lshl_b32 s39, s39, 3")
    a(f"s_add_u32 s61, s39, {WS_CS}")
    a("v_lshlrev_b32 v21, 3, v7")
    a("s_memrealtime s[66:67]")
    a("s_waitcnt lgkmcnt(0)")
    stamp(a, 1)
    srd(a, 20, 46, 47, 14 << 20)
    srd(a, 24, 44, 45, 256)
    a("s_or_b32 s62, s2, s32")
    a("s_cmp_lg_u32 s62, 0")
    a(f"s_cbranch_scc1 {name}_nopub")
    a("s_or_b32 s62, s66, 1")
    a("v_mov_b32 v25, s62")
    a("buffer_store_dword v25, v24, s[24:27], 0 offen sc0 sc1")
    a(f"s_mov_b32 s62, {13 << 20}")
    a("buffer_store_dword v25, v24, s[20:23], s62 offen sc0 sc1")
    a.label(f"{name}_nopub")
    NU = NST * 2

    def read_list(u):
        s, ks = u // 2, u % 2
        slot = s % NSTG
        g2, so = slot // 2, (slot % 2) * SLOT
        f = FB + 32 * (u % 2)
        L = []
        for i in range(4):
            off = so + (i >> 1) * 4096 + (i & 1) * 512
            L.append(f"ds_read_b128 v[{f + 4 * i}:{f + 3 + 4 * i}], v{8 + 4 * g2 + ks} offset:{off}")
            L.append(f"ds_read_b128 v[{f + 16 + 4 * i}:{f + 19 + 4 * i}], v{10 + 4 * g2 + ks} offset:{off}")
        return L

    def stats_loads():
        for blk in range(2):
            for q4 in range(4):
                r = ST + 16 * blk + 4 * q4
                a(f"buffer_load_dwordx4 v[{r}:{r + 3}], v23, s[20:23], s38 offen offset:{256 * blk + 16 * q4} sc1")
        for T in range(4):
            a(f"buffer_load_dwordx2 v[{192 + 2 * T}:{193 + 2 * T}], v21, s[20:23], s61 offen offset:{(T >> 1) * 256 + (T & 1) * 32} sc1")
        a("buffer_load_dword v25, v24, s[24:27], 0 offen sc1")

    a("s_barrier")
    stamp(a, 2)
    for r in read_list(0):
        a(r)
    for u in range(NU):
        a("s_waitcnt lgkmcnt(0)")
        f = FB + 32 * (u % 2)
        nxt = read_list(u + 1) if u + 1 < NU else []
        n = 0
        for xi in range(4):
            for T in range(4):
                acc = ACC + (xi * 4 + T) * 4
                a(f"v_mfma_f32_16x16x32_bf16 v[{acc}:{acc + 3}], v[{f + 4 * xi}:{f + 3 + 4 * xi}], v[{f + 16 + 4 * T}:{f + 19 + 4 * T}], v[{acc}:{acc + 3}]")
                n += 1
                if n == 1 and nxt and (u + 1) % 2 == 0:
                    a("s_barrier")
                if nxt:
                    a(nxt.pop(0))
                if u == U1 and n == 10:
                    stats_loads()
    stamp(a, 3)
    a.label(f"{name}_chk")
    a("s_waitcnt vmcnt(0)")
    a("v_cmp_eq_u32 vcc, 0, v25")
    a("s_mov_b64 s[62:63], vcc")
    for r in range(16):
        a(f"v_cmp_ne_u32 vcc, v25, v{ST + 2 * r + 1}")
        a("s_or_b64 s[62:63], s[62:63], vcc")
    for T in range(4):
        a(f"v_cmp_ne_u32 vcc, v25, v{193 + 2 * T}")
        a("s_or_b64 s[62:63], s[62:63], vcc")
    a(f"s_cbranch_scc0 {name}_have")
    a("s_sleep 4")
    stats_loads()
    a(f"s_branch {name}_chk")
    a.label(f"{name}_have")
    stamp(a, 4)
    for r in range(16):
        a(f"v_lshlrev_b32 v{ST + 2 * r + 1}, 16, v{ST + 2 * r}")
        a(f"v_rcp_f32 v{ST + 2 * r + 1}, v{ST + 2 * r + 1}")
        a(f"v_and_b32 v{ST + 2 * r}, s53, v{ST + 2 * r}")
    a("s_lshl_b32 s35, s29, 5")
    a("s_lshl_b32 s36, s31, 3")
    a("s_add_u32 s35, s35, s36")
    a("s_lshl_b32 s36, s34, 2")
    a("s_add_u32 s35, s35, s36")
    a("s_lshl_b32 s35, s35, 6")
    a("s_lshl_b32 s36, s30, 2")
    a("s_add_u32 s35, s35, s36")
    a("s_lshl_b32 s36, s33, 1")
    a("s_add_u32 s35, s35, s36")
    a("s_lshl_b32 s35, s35, 10")
    for T in range(4):
        a(f"s_add_u32 s{40 + T}, s35, {T * 65536}")
    a("v_lshlrev_b32 v22, 4, v2")
    a("s_waitcnt vmcnt(0) lgkmcnt(0)")
    for blk in range(2):
        for T in range(4):
            o = 132 + 4 * ((blk * 4 + T) & 3)
            for hb in range(2):
                acc = ACC + ((blk * 2 + hb) * 4 + T) * 4
                for j in range(4):
                    sr = ST + 16 * blk + 2 * (4 * hb + j)
                    a(f"v_fma_f32 v{acc + j}, -v{sr}, v{192 + 2 * T}, v{acc + j}")
                    a(f"v_mul_f32 v{acc + j}, v{acc + j}, v{sr + 1}")
                a(f"v_cvt_pk_bf16_f32 v{o + 2 * hb}, v{acc}, v{acc + 1}")
                a(f"v_cvt_pk_bf16_f32 v{o + 2 * hb + 1}, v{acc + 2}, v{acc + 3}")
            a(f"buffer_store_dwordx4 v[{o}:{o + 3}], v22, s[20:23], s{40 + T} offen offset:{blk * 1024}" + (" sc0 sc1" if wt else ""))
    stamp(a, 5)
    a(f"s_branch {name}_fin")
    a.label(f"{name}_aux")
    a("v_lshlrev_b32 v6, 7, v2")
    a("v_lshrrev_b32 v3, 4, v2")
    a("v_and_b32 v4, 15, v2")
    a("v_lshlrev_b32 v7, 12, v3")
    a("v_lshl_add_u32 v7, v4, 7, v7")
    a("v_lshlrev_b32 v5, 10, v3")
    a("v_lshl_add_u32 v5, v4, 4, v5")
    a("s_lshl_b32 s35, s28, 3")
    a("s_add_u32 s56, s35, s3")
    a("s_add_u32 s35, s35, s32")
    a("s_lshl_b32 s48, s26, 10")
    a("s_lshl_b32 s49, s35, 3")
    a("s_add_u32 s48, s48, s49")
    a("s_lshl_b32 s48, s48, 12")
    a("s_lshl_b32 s49, s27, 11")
    a("s_add_u32 s48, s48, s49")
    a("s_add_u32 s49, s48, 16384")
    a("s_waitcnt lgkmcnt(0)")
    stamp(a, 1)
    srd(a, 12, 4, 5, S * D * 2)
    srd(a, 20, 46, 47, 14 << 20)
    srd(a, 28, 44, 45, 256)
    a("s_cmp_ge_u32 s32, 6")
    a(f"s_cbranch_scc1 {name}_touch")
    a("s_cmp_ge_u32 s32, 4")
    a(f"s_cbranch_scc1 {name}_csw")
    a("s_lshl_b32 s33, s56, 4")
    a("s_lshl_b32 s34, s32, 2")
    a("s_add_u32 s33, s33, s34")
    a("s_lshl_b32 s34, s33, 10")
    for jj in range(4):
        a(f"buffer_load_dwordx4 v[{16 + 4 * jj}:{19 + 4 * jj}], v5, s[12:15], s34 offen offset:{256 * jj}")
    a("v_mov_b32 v9, 0")
    a.label(f"{name}_nl1")
    a("buffer_load_dword v15, v9, s[28:31], 0 offen sc1")
    a("s_waitcnt vmcnt(0)")
    a("v_readfirstlane_b32 s57, v15")
    a("s_cmp_lg_u32 s57, 0")
    a(f"s_cbranch_scc1 {name}_nd1")
    a("s_sleep 1")
    a(f"s_branch {name}_nl1")
    a.label(f"{name}_nd1")
    stamp(a, 2)
    X = 32
    for r in range(16):
        a(f"v_lshlrev_b32 v{X + 2 * r}, 16, v{16 + r}")
        a(f"v_and_b32 v{X + 2 * r + 1}, s53, v{16 + r}")
    a(f"v_add_f32 v8, v{X}, v{X + 1}")
    a(f"v_add_f32 v9, v{X + 2}, v{X + 3}")
    for r in range(4, 32, 2):
        a(f"v_add_f32 v8, v8, v{X + r}")
        a(f"v_add_f32 v9, v9, v{X + r + 1}")
    a("v_add_f32 v8, v8, v9")

    def red16(v):
        for pat in ("quad_perm:[1,0,3,2]", "quad_perm:[2,3,0,1]", "row_half_mirror", "row_mirror"):
            a("s_nop 1")
            a(f"v_add_f32_dpp v{v}, v{v}, v{v} {pat} {DPP}")

    red16(8)
    a("v_mul_f32 v8, 0x3b000000, v8")
    a("v_mov_b32 v10, 0")
    a("v_mov_b32 v11, 0")
    for r in range(0, 32, 2):
        a(f"v_sub_f32 v{X + r}, v{X + r}, v8")
        a(f"v_sub_f32 v{X + r + 1}, v{X + r + 1}, v8")
        a(f"v_fmac_f32 v10, v{X + r}, v{X + r}")
        a(f"v_fmac_f32 v11, v{X + r + 1}, v{X + r + 1}")
    a("v_add_f32 v10, v10, v11")
    red16(10)
    a("v_mul_f32 v10, 0x3b000000, v10")
    a("v_cvt_pk_bf16_f32 v12, v8, v8")
    a("v_lshlrev_b32 v12, 16, v12")
    a("v_cvt_pk_bf16_f32 v10, v10, v10")
    a("v_lshlrev_b32 v10, 16, v10")
    a("v_add_f32 v10, 0x3727c5ac, v10")
    a("v_cvt_pk_bf16_f32 v10, v10, v10")
    a("v_lshlrev_b32 v10, 16, v10")
    a("v_sqrt_f32 v10, v10")
    a("s_nop 0")
    a("v_cvt_pk_bf16_f32 v10, v10, v10")
    a("v_and_b32 v10, 0xffff, v10")
    a("v_or_b32 v12, v12, v10")
    a("v_mov_b32 v13, v15")
    a("v_lshlrev_b32 v14, 3, v3")
    a("s_lshl_b32 s36, s33, 3")
    a(f"s_add_u32 s36, s36, {WS_STATS}")
    a("v_cmp_eq_u32 vcc, 0, v4")
    a("s_and_saveexec_b64 s[54:55], vcc")
    a("buffer_store_dwordx2 v[12:13], v14, s[20:23], s36 offen sc0 sc1")
    a("s_mov_b64 exec, s[54:55]")
    a(f"s_branch {name}_auxj")
    a.label(f"{name}_csw")
    a("s_lshl_b32 s33, s56, 3")
    a("s_sub_u32 s34, s32, 4")
    a("s_lshl_b32 s34, s34, 2")
    a("s_add_u32 s33, s33, s34")
    a("s_cmp_ge_u32 s33, 512")
    a("s_cselect_b32 s58, s10, s8")
    a("s_cselect_b32 s59, s11, s9")
    srd(a, 16, 58, 59, D * D * 2)
    a("s_and_b32 s34, s33, 511")
    a("s_lshl_b32 s34, s34, 10")
    for jj in range(4):
        a(f"buffer_load_dwordx4 v[{16 + 4 * jj}:{19 + 4 * jj}], v5, s[16:19], s34 offen offset:{256 * jj}")
    a("v_mov_b32 v8, 0")
    a("v_mov_b32 v9, 0")
    a.label(f"{name}_nl2")
    a("buffer_load_dword v15, v9, s[28:31], 0 offen sc1")
    a("s_waitcnt vmcnt(0)")
    a("v_readfirstlane_b32 s57, v15")
    a("s_cmp_lg_u32 s57, 0")
    a(f"s_cbranch_scc1 {name}_nd2")
    a("s_sleep 1")
    a(f"s_branch {name}_nl2")
    a.label(f"{name}_nd2")
    for r in range(16):
        a(f"v_lshlrev_b32 v{32 + 2 * (r & 3)}, 16, v{16 + r}")
        a(f"v_and_b32 v{33 + 2 * (r & 3)}, s53, v{16 + r}")
        a(f"v_add_f32 v8, v8, v{32 + 2 * (r & 3)}")
        a(f"v_add_f32 v9, v9, v{33 + 2 * (r & 3)}")
    a("v_add_f32 v8, v8, v9")
    red16(8)
    a("v_lshlrev_b32 v14, 3, v3")
    a("v_mov_b32 v9, v15")
    a("s_lshl_b32 s36, s33, 3")
    a(f"s_add_u32 s36, s36, {WS_CS}")
    a("v_cmp_eq_u32 vcc, 0, v4")
    a("s_and_saveexec_b64 s[54:55], vcc")
    a("buffer_store_dwordx2 v[8:9], v14, s[20:23], s36 offen sc0 sc1")
    a("s_mov_b64 exec, s[54:55]")
    a(f"s_branch {name}_auxj")
    a.label(f"{name}_touch")
    a("s_cmp_eq_u32 s29, 1")
    a("s_cselect_b32 s58, s10, s8")
    a("s_cselect_b32 s59, s11, s9")
    srd(a, 16, 58, 59, D * D * 2)
    a("s_lshl_b32 s36, s27, 20")
    a("s_lshl_b32 s37, s26, 19")
    a("s_add_u32 s36, s36, s37")
    a("s_lshl_b32 s37, s28, 1")
    a("s_add_u32 s37, s37, s32")
    a("s_sub_u32 s37, s37, 6")
    a("s_lshl_b32 s37, s37, 14")
    a("s_add_u32 s36, s36, s37")
    a("buffer_load_dword v10, v6, s[12:15], s36 offen")
    a("buffer_load_dword v11, v6, s[16:19], s37 offen")
    a("s_add_u32 s36, s36, 8192")
    a("s_add_u32 s37, s37, 8192")
    a("buffer_load_dword v12, v6, s[12:15], s36 offen")
    a("buffer_load_dword v13, v6, s[16:19], s37 offen")
    if tlb:
        a("s_load_dwordx8 s[64:71], s[0:1], 48")
        a("s_load_dwordx2 s[58:59], s[0:1], 80")
        a("v_lshlrev_b32 v16, 14, v2")
        a("v_lshlrev_b32 v17, 11, v2")
        a("s_lshl_b32 s36, s28, 20")
        a("s_lshl_b32 s37, s28, 17")
        a("s_waitcnt lgkmcnt(0)")
        a("s_cmp_eq_u32 s32, 6")
        a(f"s_cbranch_scc0 {name}_tl7")
        srd(a, 16, 46, 47, 16 << 20)
        a("buffer_load_dword v18, v16, s[16:19], s36 offen")
        srd(a, 16, 58, 59, S * D * 2)
        a("buffer_load_dword v19, v17, s[16:19], s37 offen")
        a(f"s_branch {name}_auxj")
        a.label(f"{name}_tl7")
        for k, (lo, hi) in enumerate(((66, 67), (68, 69), (70, 71))):
            srd(a, 16, lo, hi, D * F * 2)
            a(f"buffer_load_dword v{18 + k}, v17, s[16:19], s37 offen")
        srd(a, 16, 64, 65, D * 2)
        a("buffer_load_dword v21, v17, s[16:19], 0 offen")
    a.label(f"{name}_auxj")
    a("s_cmp_eq_u32 s29, 1")
    a("s_cselect_b32 s40, s42, s40")
    a("s_cselect_b32 s41, s43, s41")
    srd(a, 24, 40, 41, S * S * 2)
    a("s_barrier")
    stamp(a, 3)
    if pf:
        if pfq < 4:
            a(f"v_cmp_gt_u32 vcc, {4 * pfq}, v4")
            a("s_and_saveexec_b64 s[54:55], vcc")
        a(f"buffer_load_dword v12, v7, s[24:27], s48 offen{PPOL}")
        a(f"buffer_load_dword v13, v7, s[24:27], s49 offen{PPOL}")
        if pfq < 4:
            a("s_mov_b64 exec, s[54:55]")
    a.label(f"{name}_fin")
    stamp_flush(a, 1, 6, 46, 47)
    a.label(f"{name}_done")
    a("s_endpgm")
    return kernel_desc(name, 200, 72, 200)


def gen_k3(a, name):
    kernel_begin(a, name)
    a("s_cmp_ge_u32 s2, 256")
    a(f"s_cbranch_scc1 {name}_done")
    stamp(a, 0)
    a("s_load_dwordx2 s[4:5], s[0:1], 0")
    a("s_load_dwordx2 s[6:7], s[0:1], 48")
    a("s_load_dwordx2 s[8:9], s[0:1], 80")
    a("s_load_dwordx2 s[10:11], s[0:1], 96")
    a("v_lshrrev_b32 v1, 6, v0")
    a("v_and_b32 v2, 63, v0")
    a("s_nop 0")
    a("v_readfirstlane_b32 s32, v1")
    a("v_lshlrev_b32 v3, 4, v2")
    a("s_waitcnt lgkmcnt(0)")
    stamp(a, 1)
    srd(a, 12, 4, 5, S * D * 2)
    srd(a, 16, 6, 7, D * 2)
    srd(a, 20, 8, 9, S * D * 2)
    srd(a, 24, 10, 11, 14 << 20)
    a("s_lshl_b32 s33, s2, 3")
    a("s_lshl_b32 s34, s32, 1")
    a("s_add_u32 s33, s33, s34")
    a("s_lshl_b32 s34, s33, 10")
    a(f"s_add_u32 s35, s34, {WS_P}")
    a(f"s_add_u32 s36, s34, {WS_P + (4 << 20)}")
    a(f"s_add_u32 s43, s34, {WS_P + (2 << 20)}")
    a(f"s_add_u32 s44, s34, {WS_P + (6 << 20)}")
    for R in range(2):
        B = 16 + 64 * R
        a(f"buffer_load_dwordx4 v[{B}:{B + 3}], v3, s[24:27], s35 offen offset:{1024 * R}")
        a(f"buffer_load_dwordx4 v[{B + 12}:{B + 15}], v3, s[24:27], s43 offen offset:{1024 * R}")
        a(f"buffer_load_dwordx4 v[{B + 4}:{B + 7}], v3, s[24:27], s36 offen offset:{1024 * R}")
        a(f"buffer_load_dwordx4 v[{B + 56}:{B + 59}], v3, s[24:27], s44 offen offset:{1024 * R}")
        a(f"buffer_load_dwordx4 v[{B + 8}:{B + 11}], v3, s[12:15], s34 offen offset:{1024 * R}")
    a("buffer_load_dwordx4 v[8:11], v3, s[16:19], 0 offen")
    a("s_mov_b32 s53, 0xffff0000")
    a("s_waitcnt vmcnt(1)")
    stamp(a, 2)

    def unpack(dst, src):
        a(f"v_lshlrev_b32 v{dst}, 16, v{src}")
        a(f"v_and_b32 v{dst + 1}, s53, v{src}")

    for R in range(2):
        B = 16 + 64 * R
        H, T = B + 16, B + 24
        for i in range(4):
            unpack(T, B + i)
            unpack(T + 2, B + 12 + i)
            unpack(T + 4, B + 4 + i)
            unpack(T + 6, B + 56 + i)
            a(f"v_add_f32 v{T}, v{T}, v{T + 2}")
            a(f"v_add_f32 v{T + 1}, v{T + 1}, v{T + 3}")
            a(f"v_add_f32 v{T + 4}, v{T + 4}, v{T + 6}")
            a(f"v_add_f32 v{T + 5}, v{T + 5}, v{T + 7}")
            a(f"v_cvt_pk_bf16_f32 v{T + 8}, v{T}, v{T + 1}")
            a(f"v_cvt_pk_bf16_f32 v{T + 9}, v{T + 4}, v{T + 5}")
            unpack(T, T + 8)
            unpack(T + 2, T + 9)
            a(f"v_sub_f32 v{T}, v{T}, v{T + 2}")
            a(f"v_sub_f32 v{T + 1}, v{T + 1}, v{T + 3}")
            a(f"v_cvt_pk_bf16_f32 v{T + 4}, v{T}, v{T + 1}")
            unpack(T, T + 4)
            unpack(T + 2, B + 8 + i)
            a(f"v_add_f32 v{T}, v{T + 2}, v{T}")
            a(f"v_add_f32 v{T + 1}, v{T + 3}, v{T + 1}")
            a(f"v_cvt_pk_bf16_f32 v{B + 40 + i}, v{T}, v{T + 1}")
            unpack(H + 2 * i, B + 40 + i)
        St = B + 48
        a(f"v_add_f32 v{St}, v{H}, v{H + 1}")
        for i in range(2, 8):
            a(f"v_add_f32 v{St}, v{St}, v{H + i}")
    for R in range(2):
        B = 16 + 64 * R
        wave_allreduce(a, "v_add_f32", B + 48, B + 49)
    for R in range(2):
        B = 16 + 64 * R
        H, T, St = B + 16, B + 24, B + 48
        a(f"v_mul_f32 v{St}, 0x3b000000, v{St}")
        a(f"v_cvt_pk_bf16_f32 v{St + 1}, v{St}, v{St}")
        a(f"v_lshlrev_b32 v{St + 1}, 16, v{St + 1}")
        for i in range(8):
            a(f"v_sub_f32 v{T + i}, v{H + i}, v{St}")
        a(f"v_mul_f32 v{St + 2}, v{T}, v{T}")
        for i in range(1, 8):
            a(f"v_fmac_f32 v{St + 2}, v{T + i}, v{T + i}")
    for R in range(2):
        B = 16 + 64 * R
        wave_allreduce(a, "v_add_f32", B + 50, B + 51)
    a("s_waitcnt vmcnt(0)")
    for R in range(2):
        B = 16 + 64 * R
        H, T, St = B + 16, B + 24, B + 48
        v = St + 2
        a(f"v_mul_f32 v{v}, 0x3b000000, v{v}")
        a(f"v_cvt_pk_bf16_f32 v{v}, v{v}, v{v}")
        a(f"v_lshlrev_b32 v{v}, 16, v{v}")
        a(f"v_add_f32 v{v}, 0x3727c5ac, v{v}")
        a(f"v_cvt_pk_bf16_f32 v{v}, v{v}, v{v}")
        a(f"v_lshlrev_b32 v{v}, 16, v{v}")
        a(f"v_sqrt_f32 v{v}, v{v}")
        a("s_nop 0")
        a(f"v_cvt_pk_bf16_f32 v{v}, v{v}, v{v}")
        a(f"v_lshlrev_b32 v{v}, 16, v{v}")
        a(f"v_rcp_f32 v{v}, v{v}")
        a("s_nop 0")
        a(f"v_mov_b32 v{St + 4}, 0")
        for i in range(4):
            a(f"v_sub_f32 v{T}, v{H + 2 * i}, v{St + 1}")
            a(f"v_sub_f32 v{T + 1}, v{H + 2 * i + 1}, v{St + 1}")
            a(f"v_cvt_pk_bf16_f32 v{T + 2}, v{T}, v{T + 1}")
            unpack(T, T + 2)
            a(f"v_mul_f32 v{T}, v{T}, v{v}")
            a(f"v_mul_f32 v{T + 1}, v{T + 1}, v{v}")
            a(f"v_cvt_pk_bf16_f32 v{B + 44 + i}, v{T}, v{T + 1}")
            unpack(T, B + 44 + i)
            a(f"v_add_f32 v{T}, v{H + 2 * i}, v{T}")
            a(f"v_add_f32 v{T + 1}, v{H + 2 * i + 1}, v{T + 1}")
            a(f"v_cvt_pk_bf16_f32 v{B + 4 + i}, v{T}, v{T + 1}")
            a(f"v_dot2_f32_bf16 v{St + 4}, v{B + 44 + i}, v{8 + i}, v{St + 4}")
        a(f"buffer_store_dwordx4 v[{B + 4}:{B + 7}], v3, s[20:23], s34 offen offset:{1024 * R}")
    a("s_nop 2")
    for R in range(2):
        B = 16 + 64 * R
        wave_allreduce(a, "v_add_f32", B + 52, B + 53)
    for R in range(2):
        B = 16 + 64 * R
        v = B + 52
        a(f"v_cvt_pk_bf16_f32 v{v}, v{v}, v{v}")
        a(f"v_lshlrev_b32 v{v}, 16, v{v}")
        a(f"v_ashrrev_i32 v{v + 1}, 31, v{v}")
        a(f"v_or_b32 v{v + 1}, 0x80000000, v{v + 1}")
        a(f"v_xor_b32 v{v}, v{v}, v{v + 1}")
        a(f"v_and_b32 v{v}, s53, v{v}")
        a(f"s_sub_u32 s37, {2047 - R}, s33")
        a(f"v_or_b32 v{v}, s37, v{v}")
    a("v_max_u32 v4, v68, v132")
    a("s_lshl_b32 s37, s32, 2")
    a("v_mov_b32 v5, s37")
    a("ds_write_b32 v5, v4")
    stamp(a, 3)
    a("s_waitcnt lgkmcnt(0)")
    a("s_barrier")
    a("v_mov_b32 v5, 0")
    a("ds_read_b128 v[12:15], v5")
    a("s_waitcnt lgkmcnt(0)")
    a("v_max_u32 v12, v12, v13")
    a("v_max_u32 v14, v14, v15")
    a("v_max_u32 v12, v12, v14")
    a("s_nop 0")
    a("v_readfirstlane_b32 s38, v12")
    a("v_readfirstlane_b32 s39, v68")
    a("v_readfirstlane_b32 s40, v132")
    a(f"s_lshl_b32 s41, s2, 11")
    a(f"s_add_u32 s41, s41, {WS_CROW}")
    a(f"s_lshl_b32 s42, s2, 2")
    a(f"s_add_u32 s42, s42, {WS_CAND}")
    a("v_mov_b32 v5, 0")
    for R in range(2):
        B = 16 + 64 * R
        a(f"s_cmp_lg_u32 s38, s{39 + R}")
        a(f"s_cbranch_scc1 {name}_nw{R}")
        a(f"buffer_store_dwordx4 v[{B + 40}:{B + 43}], v3, s[24:27], s41 offen")
        a(f"buffer_store_dwordx4 v[{B + 44}:{B + 47}], v3, s[24:27], s41 offen offset:1024")
        a(f"buffer_store_dword v12, v5, s[24:27], s42 offen")
        a.label(f"{name}_nw{R}")
    stamp_flush(a, 3, 4, 10, 11)
    a.label(f"{name}_done")
    a("s_endpgm")
    return kernel_desc(name, 144, 64, 144)


NSL = 56


def emit_winner(a, vkey, t, ldsaddr_tmp, s_out):
    wave_allreduce(a, "v_max_u32", vkey, t)
    a("s_lshl_b32 s37, s32, 2")
    a(f"v_mov_b32 v{ldsaddr_tmp}, s37")
    a(f"ds_write_b32 v{ldsaddr_tmp}, v{vkey}")
    a("s_waitcnt lgkmcnt(0)")
    a("s_barrier")
    a(f"v_mov_b32 v{ldsaddr_tmp}, 0")
    a(f"ds_read_b64 v[{t}:{t + 1}], v{ldsaddr_tmp}")
    a(f"ds_read_b64 v[{t + 2}:{t + 3}], v{ldsaddr_tmp} offset:8")
    a("s_waitcnt lgkmcnt(0)")
    a(f"v_max_u32 v{t}, v{t}, v{t + 1}")
    a(f"v_max_u32 v{t + 2}, v{t + 2}, v{t + 3}")
    a(f"v_max_u32 v{t}, v{t}, v{t + 2}")
    a("s_nop 0")
    a(f"v_readfirstlane_b32 s{s_out}, v{t}")


def gen_k4(a, name):
    kernel_begin(a, name)
    a(f"s_cmp_ge_u32 s2, {NSL}")
    a(f"s_cbranch_scc1 {name}_done")
    stamp(a, 0)
    a("s_load_dwordx4 s[4:7], s[0:1], 56")
    a("s_load_dwordx2 s[8:9], s[0:1], 72")
    a("s_load_dwordx2 s[10:11], s[0:1], 96")
    a("v_lshrrev_b32 v1, 6, v0")
    a("v_and_b32 v2, 63, v0")
    a("s_nop 0")
    a("v_readfirstlane_b32 s32, v1")
    a("v_lshrrev_b32 v3, 2, v0")
    a("v_and_b32 v4, 3, v0")
    a("v_lshlrev_b32 v5, 2, v0")
    a("s_mov_b32 s33, 28672")
    a("v_mul_lo_u32 v6, v3, s33")
    a("v_lshl_add_u32 v6, v4, 4, v6")
    a("v_lshlrev_b32 v7, 4, v2")
    a("s_waitcnt lgkmcnt(0)")
    stamp(a, 1)
    srd(a, 12, 4, 5, D * F * 2)
    srd(a, 16, 6, 7, D * F * 2)
    srd(a, 20, 8, 9, D * F * 2)
    srd(a, 24, 10, 11, 14 << 20)
    a(f"s_mov_b32 s34, {WS_CAND}")
    a("buffer_load_dword v8, v5, s[24:27], s34 offen")
    a("s_lshl_b32 s34, s2, 6")
    G, U, W = 32, 64, 96
    for j in range(8):
        a(f"s_add_u32 s35, s34, {3584 * j}")
        a(f"buffer_load_dwordx4 v[{G + 4 * j}:{G + 4 * j + 3}], v6, s[12:15], s35 offen")
        a(f"buffer_load_dwordx4 v[{U + 4 * j}:{U + 4 * j + 3}], v6, s[16:19], s35 offen")
    a("s_lshl_b32 s35, s2, 5")
    a("s_lshl_b32 s36, s32, 3")
    a("s_add_u32 s35, s35, s36")
    a("s_lshl_b32 s35, s35, 10")
    for j in range(8):
        a(f"s_add_u32 s36, s35, {1024 * j}")
        a(f"buffer_load_dwordx4 v[{W + 4 * j}:{W + 4 * j + 3}], v7, s[20:23], s36 offen")
    a("s_waitcnt vmcnt(24)")
    stamp(a, 2)
    emit_winner(a, 8, 12, 9, 38)
    stamp(a, 3)
    a("s_and_b32 s39, s38, 0xffff")
    a("s_sub_u32 s39, 2047, s39")
    a("s_lshr_b32 s39, s39, 3")
    a("s_lshl_b32 s39, s39, 11")
    a(f"s_add_u32 s39, s39, {WS_CROW + 1024}")
    a("v_lshlrev_b32 v9, 4, v3")
    a("v_add_u32 v9, s39, v9")
    a("buffer_load_dwordx4 v[12:15], v9, s[24:27], 0 offen")
    a("s_mov_b32 s53, 0xffff0000")
    A = 128
    for i in range(16):
        a(f"v_mov_b32 v{A + i}, 0")
    a("s_waitcnt vmcnt(0)")
    stamp(a, 4)
    X = 16
    for i in range(4):
        a(f"v_lshlrev_b32 v{X + 2 * i}, 16, v{12 + i}")
        a(f"v_and_b32 v{X + 2 * i + 1}, s53, v{12 + i}")
    for j in range(8):
        for (M, ao) in ((G, 0), (U, 8)):
            for i in range(4):
                t = 24 + 2 * (i & 1)
                a(f"v_lshlrev_b32 v{t}, 16, v{M + 4 * j + i}")
                a(f"v_and_b32 v{t + 1}, s53, v{M + 4 * j + i}")
                a(f"v_fmac_f32 v{A + ao + 2 * i}, v{X + j}, v{t}")
                a(f"v_fmac_f32 v{A + ao + 2 * i + 1}, v{X + j}, v{t + 1}")
    a("s_nop 1")
    for i in range(8):
        a(f"v_permlane32_swap_b32 v{A + i}, v{A + i + 8}")
    a("s_nop 1")
    for i in range(8):
        a(f"v_add_f32 v{A + i}, v{A + i}, v{A + i + 8}")
    a("s_nop 1")
    for i in range(4):
        a(f"v_permlane16_swap_b32 v{A + i}, v{A + i + 4}")
    a("s_nop 1")
    for i in range(4):
        a(f"v_add_f32 v{A + i}, v{A + i}, v{A + i + 4}")
    a("s_nop 1")
    for i in range(4):
        a(f"v_add_f32_dpp v{A + i}, v{A + i}, v{A + i} row_ror:4 {DPP}")
    a("s_nop 1")
    for i in range(4):
        a(f"v_add_f32_dpp v{A + i}, v{A + i}, v{A + i} row_ror:8 {DPP}")
    a("v_and_b32 v9, 3, v2")
    a("v_lshlrev_b32 v9, 5, v9")
    a("v_bfe_u32 v10, v2, 4, 1")
    a("v_lshl_add_u32 v9, v10, 4, v9")
    a("v_bfe_u32 v10, v2, 5, 1")
    a("v_lshl_add_u32 v9, v10, 7, v9")
    a("s_lshl_b32 s37, s32, 8")
    a("v_add_u32 v9, s37, v9")
    a(f"ds_write_b128 v9, v[{A}:{A + 3}] offset:64")
    a("s_waitcnt lgkmcnt(0)")
    a("s_barrier")
    stamp(a, 5)
    a("v_and_b32 v9, 31, v2")
    a("v_lshlrev_b32 v9, 2, v9")
    for w in range(4):
        a(f"ds_read_b32 v{16 + w}, v9 offset:{64 + 256 * w}")
        a(f"ds_read_b32 v{20 + w}, v9 offset:{64 + 256 * w + 128}")
    a("s_waitcnt lgkmcnt(0)")
    a("v_add_f32 v16, v16, v17")
    a("v_add_f32 v18, v18, v19")
    a("v_add_f32 v20, v20, v21")
    a("v_add_f32 v22, v22, v23")
    a("v_add_f32 v16, v16, v18")
    a("v_add_f32 v20, v20, v22")
    a("v_cvt_pk_bf16_f32 v16, v16, v20")
    a("v_and_b32 v20, s53, v16")
    a("v_lshlrev_b32 v16, 16, v16")
    a("v_mul_f32 v17, 0xbfb8aa3b, v16")
    a("v_exp_f32 v17, v17")
    a("s_nop 0")
    a("v_add_f32 v17, 1.0, v17")
    a("v_rcp_f32 v17, v17")
    a("s_nop 0")
    a("v_mul_f32 v16, v16, v17")
    a("v_cvt_pk_bf16_f32 v16, v16, v16")
    a("v_lshlrev_b32 v16, 16, v16")
    a("v_mul_f32 v16, v16, v20")
    a("v_cvt_pk_bf16_f32 v16, v16, v16")
    a("v_lshlrev_b32 v16, 16, v16")
    a("s_lshl_b32 s37, s32, 3")
    for j in range(8):
        a(f"s_add_u32 s36, s37, {j}")
        a("s_nop 0")
        a(f"v_readlane_b32 s{40 + j}, v16, s36")
    for i in range(8):
        a(f"v_mov_b32 v{A + i}, 0")
    a("s_nop 1")
    for j in range(8):
        for i in range(4):
            t = 24 + 2 * (i & 1)
            a(f"v_lshlrev_b32 v{t}, 16, v{W + 4 * j + i}")
            a(f"v_and_b32 v{t + 1}, s53, v{W + 4 * j + i}")
            a(f"v_fmac_f32 v{A + 2 * i}, s{40 + j}, v{t}")
            a(f"v_fmac_f32 v{A + 2 * i + 1}, s{40 + j}, v{t + 1}")
    a("v_lshlrev_b32 v9, 5, v2")
    a("s_lshl_b32 s37, s32, 11")
    a("v_add_u32 v9, s37, v9")
    a(f"ds_write_b128 v9, v[{A}:{A + 3}] offset:2048")
    a(f"ds_write_b128 v9, v[{A + 4}:{A + 7}] offset:2064")
    a("s_waitcnt lgkmcnt(0)")
    a("s_barrier")
    a("v_lshlrev_b32 v9, 3, v0")
    for w in range(4):
        a(f"ds_read_b64 v[{16 + 2 * w}:{17 + 2 * w}], v9 offset:{2048 + 2048 * w}")
    a("s_waitcnt lgkmcnt(0)")
    a("v_add_f32 v16, v16, v18")
    a("v_add_f32 v17, v17, v19")
    a("v_add_f32 v20, v20, v22")
    a("v_add_f32 v21, v21, v23")
    a("v_add_f32 v16, v16, v20")
    a("v_add_f32 v17, v17, v21")
    a("s_lshl_b32 s37, s2, 11")
    a(f"s_add_u32 s37, s37, {WS_SLAB}")
    a("buffer_store_dwordx2 v[16:17], v9, s[24:27], s37 offen")
    stamp_flush(a, 4, 6, 10, 11)
    a.label(f"{name}_done")
    a("s_endpgm")
    return kernel_desc(name, 144, 64, 144)


def gen_k3b(a, name, wpf=0):
    kernel_begin(a, name)
    a("s_cmp_ge_u32 s2, 256")
    a(f"s_cbranch_scc1 {name}_done")
    stamp(a, 0)
    a("s_load_dwordx2 s[4:5], s[0:1], 0")
    a("s_load_dwordx2 s[6:7], s[0:1], 48")
    a("s_load_dwordx2 s[8:9], s[0:1], 80")
    a("s_load_dwordx2 s[10:11], s[0:1], 96")
    if wpf:
        a("s_load_dwordx4 s[56:59], s[0:1], 56")
        a("s_load_dwordx2 s[60:61], s[0:1], 72")
    a("v_lshrrev_b32 v1, 6, v0")
    a("v_and_b32 v2, 63, v0")
    a("s_nop 0")
    a("v_readfirstlane_b32 s32, v1")
    a("v_lshlrev_b32 v3, 4, v2")
    a("s_lshl_b32 s33, s2, 3")
    a("s_add_u32 s33, s33, s32")
    a("s_lshl_b32 s34, s33, 10")
    a(f"s_add_u32 s35, s34, {WS_P}")
    a(f"s_add_u32 s36, s34, {WS_P + (4 << 20)}")
    a(f"s_add_u32 s43, s34, {WS_P + (2 << 20)}")
    a(f"s_add_u32 s44, s34, {WS_P + (6 << 20)}")
    a("s_mov_b32 s53, 0xffff0000")
    a("s_waitcnt lgkmcnt(0)")
    stamp(a, 1)
    srd(a, 24, 10, 11, 14 << 20)
    B = 16
    a(f"buffer_load_dwordx4 v[{B}:{B + 3}], v3, s[24:27], s35 offen")
    a(f"buffer_load_dwordx4 v[{B + 12}:{B + 15}], v3, s[24:27], s43 offen")
    a(f"buffer_load_dwordx4 v[{B + 4}:{B + 7}], v3, s[24:27], s36 offen")
    a(f"buffer_load_dwordx4 v[{B + 56}:{B + 59}], v3, s[24:27], s44 offen")
    srd(a, 12, 4, 5, S * D * 2)
    a(f"buffer_load_dwordx4 v[{B + 8}:{B + 11}], v3, s[12:15], s34 offen")
    srd(a, 16, 6, 7, D * 2)
    a("buffer_load_dwordx4 v[8:11], v3, s[16:19], 0 offen")
    if wpf:
        a("s_sub_u32 s45, s32, 5")
        a("s_min_u32 s45, s45, 3")
        emit_wtouch(a, "s45", 120, 121)
    srd(a, 20, 8, 9, S * D * 2)
    a(f"s_waitcnt vmcnt({2 if wpf else 1})")
    stamp(a, 2)

    def unpack(dst, src):
        a(f"v_lshlrev_b32 v{dst}, 16, v{src}")
        a(f"v_and_b32 v{dst + 1}, s53, v{src}")

    H = B + 16
    TT = [80 + 10 * i for i in range(4)]
    steps = []
    for i in range(4):
        T = TT[i]
        steps.append([
            f"v_lshlrev_b32 v{T}, 16, v{B + i}", f"v_and_b32 v{T + 1}, s53, v{B + i}",
            f"v_lshlrev_b32 v{T + 2}, 16, v{B + 12 + i}", f"v_and_b32 v{T + 3}, s53, v{B + 12 + i}",
            f"v_lshlrev_b32 v{T + 4}, 16, v{B + 4 + i}", f"v_and_b32 v{T + 5}, s53, v{B + 4 + i}",
            f"v_lshlrev_b32 v{T + 6}, 16, v{B + 56 + i}", f"v_and_b32 v{T + 7}, s53, v{B + 56 + i}",
            f"v_add_f32 v{T}, v{T}, v{T + 2}", f"v_add_f32 v{T + 1}, v{T + 1}, v{T + 3}",
            f"v_add_f32 v{T + 4}, v{T + 4}, v{T + 6}", f"v_add_f32 v{T + 5}, v{T + 5}, v{T + 7}",
            f"v_cvt_pk_bf16_f32 v{T + 8}, v{T}, v{T + 1}", f"v_cvt_pk_bf16_f32 v{T + 9}, v{T + 4}, v{T + 5}",
            f"v_lshlrev_b32 v{T}, 16, v{T + 8}", f"v_and_b32 v{T + 1}, s53, v{T + 8}",
            f"v_lshlrev_b32 v{T + 2}, 16, v{T + 9}", f"v_and_b32 v{T + 3}, s53, v{T + 9}",
            f"v_sub_f32 v{T}, v{T}, v{T + 2}", f"v_sub_f32 v{T + 1}, v{T + 1}, v{T + 3}",
            f"v_cvt_pk_bf16_f32 v{T + 4}, v{T}, v{T + 1}",
            f"v_lshlrev_b32 v{T}, 16, v{T + 4}", f"v_and_b32 v{T + 1}, s53, v{T + 4}",
            f"v_lshlrev_b32 v{T + 2}, 16, v{B + 8 + i}", f"v_and_b32 v{T + 3}, s53, v{B + 8 + i}",
            f"v_add_f32 v{T}, v{T + 2}, v{T}", f"v_add_f32 v{T + 1}, v{T + 3}, v{T + 1}",
            f"v_cvt_pk_bf16_f32 v{B + 40 + i}, v{T}, v{T + 1}",
            f"v_lshlrev_b32 v{H + 2 * i}, 16, v{B + 40 + i}", f"v_and_b32 v{H + 2 * i + 1}, s53, v{B + 40 + i}",
        ])
    for k in range(len(steps[0])):
        for i in range(4):
            a(steps[i][k])
    St = B + 48
    a(f"v_add_f32 v{St}, v{H}, v{H + 1}")
    a(f"v_add_f32 v{St + 1}, v{H + 2}, v{H + 3}")
    a(f"v_add_f32 v{St + 2}, v{H + 4}, v{H + 5}")
    a(f"v_add_f32 v{St + 3}, v{H + 6}, v{H + 7}")
    a(f"v_add_f32 v{St}, v{St}, v{St + 1}")
    a(f"v_add_f32 v{St + 2}, v{St + 2}, v{St + 3}")
    a(f"v_add_f32 v{St}, v{St}, v{St + 2}")
    wave_allreduce(a, "v_add_f32", St, St + 1)
    T = 80
    a(f"v_mul_f32 v{St}, 0x3b000000, v{St}")
    for i in range(8):
        a(f"v_sub_f32 v{T + i}, v{H + i}, v{St}")
    a(f"v_cvt_pk_bf16_f32 v{St + 1}, v{St}, v{St}")
    a(f"v_mul_f32 v{St + 2}, v{T}, v{T}")
    a(f"v_mul_f32 v{St + 3}, v{T + 1}, v{T + 1}")
    a(f"v_lshlrev_b32 v{St + 1}, 16, v{St + 1}")
    for i in range(2, 8, 2):
        a(f"v_fmac_f32 v{St + 2}, v{T + i}, v{T + i}")
        a(f"v_fmac_f32 v{St + 3}, v{T + i + 1}, v{T + i + 1}")
    a(f"v_add_f32 v{St + 2}, v{St + 2}, v{St + 3}")
    for i in range(8):
        a(f"v_sub_f32 v{T + 10 + i}, v{H + i}, v{St + 1}")
    for i in range(4):
        a(f"v_cvt_pk_bf16_f32 v{T + 20 + i}, v{T + 10 + 2 * i}, v{T + 11 + 2 * i}")
    for i in range(4):
        unpack(T + 10 + 2 * i, T + 20 + i)
    wave_allreduce(a, "v_add_f32", St + 2, St + 3)
    v = St + 2
    a(f"v_mul_f32 v{v}, 0x3b000000, v{v}")
    a(f"v_cvt_pk_bf16_f32 v{v}, v{v}, v{v}")
    a(f"v_lshlrev_b32 v{v}, 16, v{v}")
    a(f"v_add_f32 v{v}, 0x3727c5ac, v{v}")
    a(f"v_cvt_pk_bf16_f32 v{v}, v{v}, v{v}")
    a(f"v_lshlrev_b32 v{v}, 16, v{v}")
    a(f"v_sqrt_f32 v{v}, v{v}")
    a("s_nop 0")
    a(f"v_cvt_pk_bf16_f32 v{v}, v{v}, v{v}")
    a(f"v_lshlrev_b32 v{v}, 16, v{v}")
    a(f"v_rcp_f32 v{v}, v{v}")
    a(f"s_waitcnt vmcnt({1 if wpf else 0})")
    for i in range(8):
        a(f"v_mul_f32 v{T + 10 + i}, v{T + 10 + i}, v{v}")
    for i in range(4):
        a(f"v_cvt_pk_bf16_f32 v{B + 44 + i}, v{T + 10 + 2 * i}, v{T + 11 + 2 * i}")
    for i in range(4):
        unpack(T + 10 + 2 * i, B + 44 + i)
        unpack(T + 2 * i, 8 + i)
    a(f"v_mul_f32 v{St + 4}, v{T + 10}, v{T}")
    a(f"v_mul_f32 v{St + 5}, v{T + 11}, v{T + 1}")
    for i in range(2, 8, 2):
        a(f"v_fmac_f32 v{St + 4}, v{T + 10 + i}, v{T + i}")
        a(f"v_fmac_f32 v{St + 5}, v{T + 11 + i}, v{T + i + 1}")
    a(f"v_add_f32 v{St + 4}, v{St + 4}, v{St + 5}")
    for i in range(8):
        a(f"v_add_f32 v{T + 20 + i}, v{H + i}, v{T + 10 + i}")
    for i in range(4):
        a(f"v_cvt_pk_bf16_f32 v{B + 4 + i}, v{T + 20 + 2 * i}, v{T + 21 + 2 * i}")
    a(f"buffer_store_dwordx4 v[{B + 4}:{B + 7}], v3, s[20:23], s34 offen")
    wave_allreduce(a, "v_add_f32", St + 4, St + 5)
    v = St + 4
    a(f"v_cvt_pk_bf16_f32 v{v}, v{v}, v{v}")
    a(f"v_lshlrev_b32 v{v}, 16, v{v}")
    a(f"v_ashrrev_i32 v{v + 1}, 31, v{v}")
    a(f"v_or_b32 v{v + 1}, 0x80000000, v{v + 1}")
    a(f"v_xor_b32 v{v}, v{v}, v{v + 1}")
    a(f"v_and_b32 v{v}, s53, v{v}")
    a("s_sub_u32 s37, 2047, s33")
    a(f"v_or_b32 v{v}, s37, v{v}")
    a("s_lshl_b32 s37, s32, 2")
    a("v_mov_b32 v5, s37")
    a(f"ds_write_b32 v5, v{v}")
    stamp(a, 3)
    a("s_waitcnt lgkmcnt(0)")
    a("s_barrier")
    a("v_mov_b32 v5, 0")
    a("ds_read_b128 v[12:15], v5")
    a("ds_read_b128 v[80:83], v5 offset:16")
    a(f"v_readfirstlane_b32 s39, v{v}")
    a(f"s_lshl_b32 s41, s2, 11")
    a(f"s_add_u32 s41, s41, {WS_CROW}")
    a(f"s_lshl_b32 s42, s2, 2")
    a(f"s_add_u32 s42, s42, {WS_CAND}")
    a("s_waitcnt lgkmcnt(0)")
    a("v_max3_u32 v12, v12, v13, v14")
    a("v_max3_u32 v80, v80, v81, v82")
    a("v_max3_u32 v12, v12, v15, v83")
    a("v_max_u32 v12, v12, v80")
    a("s_nop 0")
    a("v_readfirstlane_b32 s38, v12")
    a("s_cmp_lg_u32 s38, s39")
    a(f"s_cbranch_scc1 {name}_nw")
    a(f"buffer_store_dwordx4 v[{B + 40}:{B + 43}], v3, s[24:27], s41 offen")
    a(f"buffer_store_dwordx4 v[{B + 44}:{B + 47}], v3, s[24:27], s41 offen offset:1024")
    a(f"buffer_store_dword v12, v5, s[24:27], s42 offen")
    a.label(f"{name}_nw")
    stamp_flush(a, 3, 4, 10, 11)
    a.label(f"{name}_done")
    a("s_endpgm")
    return kernel_desc(name, 128, 64, 128)


def emit_winner_wave(a, v4, t, s_out):
    a(f"v_max3_u32 v{v4}, v{v4}, v{v4 + 1}, v{v4 + 2}")
    a(f"v_max_u32 v{v4}, v{v4}, v{v4 + 3}")
    wave_allreduce(a, "v_max_u32", v4, t)
    a("s_nop 0")
    a(f"v_readfirstlane_b32 s{s_out}, v{v4}")


def gen_k4b(a, name):
    kernel_begin(a, name)
    a(f"s_cmp_ge_u32 s2, {NSL}")
    a(f"s_cbranch_scc1 {name}_done")
    stamp(a, 0)
    a("s_load_dwordx2 s[10:11], s[0:1], 96")
    a("s_load_dwordx4 s[4:7], s[0:1], 56")
    a("s_load_dwordx2 s[8:9], s[0:1], 72")
    a("v_lshrrev_b32 v1, 6, v0")
    a("v_and_b32 v2, 63, v0")
    a("s_nop 0")
    a("v_readfirstlane_b32 s32, v1")
    a("v_lshrrev_b32 v3, 2, v0")
    a("v_and_b32 v4, 3, v0")
    a("s_mov_b32 s33, 14336")
    a("v_mul_lo_u32 v6, v3, s33")
    a("v_lshl_add_u32 v6, v4, 4, v6")
    a("v_lshlrev_b32 v7, 4, v2")
    a("s_lshl_b32 s34, s2, 6")
    a("s_lshl_b32 s35, s2, 5")
    a("s_lshl_b32 s36, s32, 2")
    a("s_add_u32 s35, s35, s36")
    a("s_lshl_b32 s35, s35, 10")
    a(f"s_mov_b32 s37, {WS_CAND}")
    a("s_mov_b32 s53, 0xffff0000")
    a("s_waitcnt lgkmcnt(0)")
    stamp(a, 1)
    srd(a, 24, 10, 11, 14 << 20)
    a("buffer_load_dwordx4 v[8:11], v7, s[24:27], s37 offen")
    srd(a, 12, 4, 5, D * F * 2)
    srd(a, 16, 6, 7, D * F * 2)
    srd(a, 20, 8, 9, D * F * 2)
    G, U, W = 32, 48, 64
    for j in range(4):
        a(f"s_add_u32 s36, s34, {3584 * j}")
        a(f"buffer_load_dwordx4 v[{G + 4 * j}:{G + 4 * j + 3}], v6, s[12:15], s36 offen")
        a(f"buffer_load_dwordx4 v[{U + 4 * j}:{U + 4 * j + 3}], v6, s[16:19], s36 offen")
    a("s_waitcnt vmcnt(8)")
    stamp(a, 2)
    emit_winner_wave(a, 8, 12, 38)
    a("s_and_b32 s39, s38, 0xffff")
    a("s_sub_u32 s39, 2047, s39")
    a("s_lshr_b32 s39, s39, 3")
    a("s_lshl_b32 s39, s39, 11")
    a(f"s_add_u32 s39, s39, {WS_CROW + 1024}")
    a("v_lshlrev_b32 v9, 3, v3")
    a("v_add_u32 v9, s39, v9")
    a("buffer_load_dwordx2 v[12:13], v9, s[24:27], 0 offen")
    stamp(a, 3)
    for j in range(4):
        a(f"buffer_load_dwordx4 v[{W + 4 * j}:{W + 4 * j + 3}], v7, s[20:23], s35 offen offset:{1024 * j}")
    A = 96
    for i in range(16):
        a(f"v_mov_b32 v{A + i}, 0")
    a("s_waitcnt vmcnt(4)")
    stamp(a, 4)
    X = 16
    for i in range(2):
        a(f"v_lshlrev_b32 v{X + 2 * i}, 16, v{12 + i}")
        a(f"v_and_b32 v{X + 2 * i + 1}, s53, v{12 + i}")
    for j in range(4):
        for (M, ao) in ((G, 0), (U, 8)):
            for i in range(4):
                t = 24 + 2 * (i & 3)
                a(f"v_lshlrev_b32 v{t}, 16, v{M + 4 * j + i}")
                a(f"v_and_b32 v{t + 1}, s53, v{M + 4 * j + i}")
            for i in range(4):
                t = 24 + 2 * (i & 3)
                a(f"v_fmac_f32 v{A + ao + 2 * i}, v{X + j}, v{t}")
                a(f"v_fmac_f32 v{A + ao + 2 * i + 1}, v{X + j}, v{t + 1}")
    a("s_nop 1")
    for i in range(8):
        a(f"v_permlane32_swap_b32 v{A + i}, v{A + i + 8}")
    a("s_nop 1")
    for i in range(8):
        a(f"v_add_f32 v{A + i}, v{A + i}, v{A + i + 8}")
    a("s_nop 1")
    for i in range(4):
        a(f"v_permlane16_swap_b32 v{A + i}, v{A + i + 4}")
    a("s_nop 1")
    for i in range(4):
        a(f"v_add_f32 v{A + i}, v{A + i}, v{A + i + 4}")
    a("s_nop 1")
    for i in range(4):
        a(f"v_add_f32_dpp v{A + i}, v{A + i}, v{A + i} row_ror:4 {DPP}")
    a("s_nop 1")
    for i in range(4):
        a(f"v_add_f32_dpp v{A + i}, v{A + i}, v{A + i} row_ror:8 {DPP}")
    a("v_and_b32 v9, 3, v2")
    a("v_lshlrev_b32 v9, 5, v9")
    a("v_bfe_u32 v10, v2, 4, 1")
    a("v_lshl_add_u32 v9, v10, 4, v9")
    a("v_bfe_u32 v10, v2, 5, 1")
    a("v_lshl_add_u32 v9, v10, 7, v9")
    a("s_lshl_b32 s37, s32, 8")
    a("v_add_u32 v9, s37, v9")
    a(f"ds_write_b128 v9, v[{A}:{A + 3}]")
    a("s_waitcnt lgkmcnt(0)")
    a("s_barrier")
    stamp(a, 5)
    a("v_lshlrev_b32 v9, 2, v2")
    for w in range(8):
        a(f"ds_read_b32 v{16 + w}, v9 offset:{256 * w}")
    a("s_waitcnt lgkmcnt(0)")
    a("v_add_f32 v16, v16, v17")
    a("v_add_f32 v18, v18, v19")
    a("v_add_f32 v20, v20, v21")
    a("v_add_f32 v22, v22, v23")
    a("v_add_f32 v16, v16, v18")
    a("v_add_f32 v20, v20, v22")
    a("v_add_f32 v16, v16, v20")
    a("v_mov_b32 v20, v16")
    a("s_nop 1")
    a("v_permlane32_swap_b32 v16, v20")
    a("s_nop 1")
    a("v_cvt_pk_bf16_f32 v16, v16, v20")
    a("v_and_b32 v20, s53, v16")
    a("v_lshlrev_b32 v16, 16, v16")
    a("v_mul_f32 v17, 0xbfb8aa3b, v16")
    a("v_exp_f32 v17, v17")
    a("s_nop 0")
    a("v_add_f32 v17, 1.0, v17")
    a("v_rcp_f32 v17, v17")
    a("s_nop 0")
    a("v_mul_f32 v16, v16, v17")
    a("v_cvt_pk_bf16_f32 v16, v16, v16")
    a("v_lshlrev_b32 v16, 16, v16")
    a("v_mul_f32 v16, v16, v20")
    a("v_cvt_pk_bf16_f32 v16, v16, v16")
    a("v_lshlrev_b32 v16, 16, v16")
    a("s_lshl_b32 s37, s32, 2")
    for j in range(4):
        a(f"s_add_u32 s36, s37, {j}")
        a("s_nop 0")
        a(f"v_readlane_b32 s{40 + j}, v16, s36")
    a("s_waitcnt vmcnt(0)")
    for j in range(4):
        for i in range(4):
            t = 24 + 2 * i
            a(f"v_lshlrev_b32 v{t}, 16, v{W + 4 * j + i}")
            a(f"v_and_b32 v{t + 1}, s53, v{W + 4 * j + i}")
        for i in range(4):
            t = 24 + 2 * i
            if j == 0:
                a(f"v_mul_f32 v{A + 2 * i}, s{40 + j}, v{t}")
                a(f"v_mul_f32 v{A + 2 * i + 1}, s{40 + j}, v{t + 1}")
            else:
                a(f"v_fmac_f32 v{A + 2 * i}, s{40 + j}, v{t}")
                a(f"v_fmac_f32 v{A + 2 * i + 1}, s{40 + j}, v{t + 1}")
    a("v_lshlrev_b32 v9, 5, v2")
    a("s_lshl_b32 s37, s32, 11")
    a("v_add_u32 v9, s37, v9")
    a(f"ds_write_b128 v9, v[{A}:{A + 3}] offset:2048")
    a(f"ds_write_b128 v9, v[{A + 4}:{A + 7}] offset:2064")
    a("s_waitcnt lgkmcnt(0)")
    a("s_barrier")
    a("v_lshlrev_b32 v9, 2, v0")
    for w in range(8):
        a(f"ds_read_b32 v{16 + w}, v9 offset:{2048 + 2048 * w}")
    a("s_lshl_b32 s37, s2, 11")
    a(f"s_add_u32 s37, s37, {WS_SLAB}")
    a("s_waitcnt lgkmcnt(0)")
    a("v_add_f32 v16, v16, v17")
    a("v_add_f32 v18, v18, v19")
    a("v_add_f32 v20, v20, v21")
    a("v_add_f32 v22, v22, v23")
    a("v_add_f32 v16, v16, v18")
    a("v_add_f32 v20, v20, v22")
    a("v_add_f32 v16, v16, v20")
    a("buffer_store_dword v16, v9, s[24:27], s37 offen")
    stamp_flush(a, 4, 6, 10, 11)
    a.label(f"{name}_done")
    a("s_endpgm")
    return kernel_desc(name, 112, 64, 112)


WS_NONCE = 13 << 20
WS_ANN = WS_NONCE + 128
WS_KEYS = WS_NONCE + 4096
WS_ROWS = WS_NONCE + 8192
WS_SLABS = 15 << 20
WS_FLAG2 = (15 << 20) + (1 << 19)


KSLEEP, SSLEEP, FSLEEP, ASLEEP = 1, 1, 1, 8


def gen_kt(a, name, fused=0):
    SLOT = "s63" if fused else "s2"
    LP = " sc1" if fused else ""
    if not fused:
        kernel_begin(a, name)
        a("s_cmp_ge_u32 s2, 256")
        a(f"s_cbranch_scc1 {name}_done")
    stamp(a, 0)
    a("s_load_dwordx2 s[10:11], s[0:1], 96")
    a("s_load_dwordx2 s[4:5], s[0:1], 0")
    a("s_load_dwordx2 s[6:7], s[0:1], 48")
    a("s_load_dwordx2 s[8:9], s[0:1], 80")
    a("s_load_dwordx4 s[56:59], s[0:1], 56")
    a("s_load_dwordx2 s[60:61], s[0:1], 72")
    if fused:
        a("v_mbcnt_lo_u32_b32 v2, -1, 0")
        a("v_mbcnt_hi_u32_b32 v2, -1, v2")
        a("s_lshl_b32 s33, s32, 6")
        a("v_add_u32 v0, s33, v2")
    else:
        a("v_lshrrev_b32 v1, 6, v0")
        a("v_and_b32 v2, 63, v0")
        a("s_nop 0")
        a("v_readfirstlane_b32 s32, v1")
    a("v_lshlrev_b32 v3, 4, v2")
    a(f"s_lshl_b32 s33, {SLOT}, 3")
    a("s_add_u32 s33, s33, s32")
    a("s_lshl_b32 s34, s33, 10")
    a(f"s_add_u32 s35, s34, {WS_P}")
    a(f"s_add_u32 s36, s34, {WS_P + (4 << 20)}")
    a(f"s_add_u32 s43, s34, {WS_P + (2 << 20)}")
    a(f"s_add_u32 s44, s34, {WS_P + (6 << 20)}")
    a("s_mov_b32 s53, 0xffff0000")
    a(f"s_mov_b32 s45, {WS_NONCE}")
    a("v_mov_b32 v5, 0")
    a("v_lshrrev_b32 v6, 2, v0")
    a("s_mov_b32 s46, 14336")
    a("v_mul_lo_u32 v7, v6, s46")
    a("v_and_b32 v4, 3, v0")
    a("v_lshl_add_u32 v7, v4, 4, v7")
    a("v_lshlrev_b32 v4, 5, v2")
    a("s_waitcnt lgkmcnt(0)")
    stamp(a, 1)
    srd(a, 24, 10, 11, 16 << 20)
    srd(a, 20, 8, 9, S * D * 2)
    P0, P2, XX, P1, P3 = 16, 20, 24, 28, 12

    def p_loads():
        a(f"buffer_load_dwordx4 v[{P0}:{P0 + 3}], v3, s[24:27], s35 offen{LP}")
        a(f"buffer_load_dwordx4 v[{P1}:{P1 + 3}], v3, s[24:27], s43 offen{LP}")
        a(f"buffer_load_dwordx4 v[{P2}:{P2 + 3}], v3, s[24:27], s36 offen{LP}")
        a(f"buffer_load_dwordx4 v[{P3}:{P3 + 3}], v3, s[24:27], s44 offen{LP}")

    if fused:
        a("buffer_load_dword v88, v5, s[24:27], s45 offen")
        srd(a, 12, 4, 5, S * D * 2)
        a(f"buffer_load_dwordx4 v[{XX}:{XX + 3}], v3, s[12:15], s34 offen")
        srd(a, 16, 6, 7, D * 2)
        a("buffer_load_dwordx4 v[8:11], v3, s[16:19], 0 offen")
        a("s_cmp_lg_u32 s32, 0")
        a(f"s_cbranch_scc1 {name}_nf")
        a("s_lshl_b32 s46, s63, 7")
        a(f"s_add_u32 s46, s46, {WS_FLAG2}")
        a("s_waitcnt vmcnt(2)")
        a("buffer_store_dword v88, v5, s[24:27], s46 offen sc0 sc1")
        a.label(f"{name}_nf")
        a("s_cmp_lg_u32 s32, 4")
        a(f"s_cbranch_scc1 {name}_np")
        a("s_lshr_b32 s46, s63, 4")
        a("s_lshl_b32 s46, s46, 11")
        a(f"s_add_u32 s46, s46, {WS_FLAG2}")
        a("v_and_b32 v56, 15, v2")
        a("v_lshlrev_b32 v56, 7, v56")
        a.label(f"{name}_fp")
        a("buffer_load_dword v57, v56, s[24:27], s46 offen sc1")
        a("s_waitcnt vmcnt(0)")
        a("v_cmp_ne_u32 vcc, v57, v88")
        a("s_or_b32 s47, vcc_lo, vcc_hi")
        a(f"s_cbranch_scc0 {name}_np")
        a(f"s_sleep {FSLEEP}")
        a(f"s_branch {name}_fp")
        a.label(f"{name}_np")
        a("s_barrier")
        p_loads()
    else:
        p_loads()
        srd(a, 12, 4, 5, S * D * 2)
        a(f"buffer_load_dwordx4 v[{XX}:{XX + 3}], v3, s[12:15], s34 offen")
        srd(a, 16, 6, 7, D * 2)
        a("buffer_load_dwordx4 v[8:11], v3, s[16:19], 0 offen")
        a("buffer_load_dword v88, v5, s[24:27], s45 offen")
    G, U = 96, 112
    a(f"s_waitcnt vmcnt({0 if fused else 2})")
    stamp(a, 2)

    def unpack(dst, src):
        a(f"v_lshlrev_b32 v{dst}, 16, v{src}")
        a(f"v_and_b32 v{dst + 1}, s53, v{src}")

    H, HP, HN, St = 32, 40, 44, 48
    for half in range(2):
        steps = []
        for ii in range(2):
            i = 2 * half + ii
            T = 56 + 10 * ii
            steps.append([
                f"v_lshlrev_b32 v{T}, 16, v{P0 + i}", f"v_and_b32 v{T + 1}, s53, v{P0 + i}",
                f"v_lshlrev_b32 v{T + 2}, 16, v{P1 + i}", f"v_and_b32 v{T + 3}, s53, v{P1 + i}",
                f"v_lshlrev_b32 v{T + 4}, 16, v{P2 + i}", f"v_and_b32 v{T + 5}, s53, v{P2 + i}",
                f"v_lshlrev_b32 v{T + 6}, 16, v{P3 + i}", f"v_and_b32 v{T + 7}, s53, v{P3 + i}",
                f"v_add_f32 v{T}, v{T}, v{T + 2}", f"v_add_f32 v{T + 1}, v{T + 1}, v{T + 3}",
                f"v_add_f32 v{T + 4}, v{T + 4}, v{T + 6}", f"v_add_f32 v{T + 5}, v{T + 5}, v{T + 7}",
                f"v_cvt_pk_bf16_f32 v{T + 8}, v{T}, v{T + 1}", f"v_cvt_pk_bf16_f32 v{T + 9}, v{T + 4}, v{T + 5}",
                f"v_lshlrev_b32 v{T}, 16, v{T + 8}", f"v_and_b32 v{T + 1}, s53, v{T + 8}",
                f"v_lshlrev_b32 v{T + 2}, 16, v{T + 9}", f"v_and_b32 v{T + 3}, s53, v{T + 9}",
                f"v_sub_f32 v{T}, v{T}, v{T + 2}", f"v_sub_f32 v{T + 1}, v{T + 1}, v{T + 3}",
                f"v_cvt_pk_bf16_f32 v{T + 4}, v{T}, v{T + 1}",
                f"v_lshlrev_b32 v{T}, 16, v{T + 4}", f"v_and_b32 v{T + 1}, s53, v{T + 4}",
                f"v_lshlrev_b32 v{T + 2}, 16, v{XX + i}", f"v_and_b32 v{T + 3}, s53, v{XX + i}",
                f"v_add_f32 v{T}, v{T + 2}, v{T}", f"v_add_f32 v{T + 1}, v{T + 3}, v{T + 1}",
                f"v_cvt_pk_bf16_f32 v{HP + i}, v{T}, v{T + 1}",
                f"v_lshlrev_b32 v{H + 2 * i}, 16, v{HP + i}", f"v_and_b32 v{H + 2 * i + 1}, s53, v{HP + i}",
            ])
        for k in range(len(steps[0])):
            for ii in range(2):
                a(steps[ii][k])
    a(f"v_add_f32 v{St}, v{H}, v{H + 1}")
    a(f"v_add_f32 v{St + 1}, v{H + 2}, v{H + 3}")
    a(f"v_add_f32 v{St + 2}, v{H + 4}, v{H + 5}")
    a(f"v_add_f32 v{St + 3}, v{H + 6}, v{H + 7}")
    a(f"v_add_f32 v{St}, v{St}, v{St + 1}")
    a(f"v_add_f32 v{St + 2}, v{St + 2}, v{St + 3}")
    a(f"v_add_f32 v{St}, v{St}, v{St + 2}")
    wave_allreduce(a, "v_add_f32", St, St + 1)
    T = 56
    a(f"v_mul_f32 v{St}, 0x3b000000, v{St}")
    for i in range(8):
        a(f"v_sub_f32 v{T + i}, v{H + i}, v{St}")
    a(f"v_cvt_pk_bf16_f32 v{St + 1}, v{St}, v{St}")
    a(f"v_mul_f32 v{St + 2}, v{T}, v{T}")
    a(f"v_mul_f32 v{St + 3}, v{T + 1}, v{T + 1}")
    a(f"v_lshlrev_b32 v{St + 1}, 16, v{St + 1}")
    for i in range(2, 8, 2):
        a(f"v_fmac_f32 v{St + 2}, v{T + i}, v{T + i}")
        a(f"v_fmac_f32 v{St + 3}, v{T + i + 1}, v{T + i + 1}")
    a(f"v_add_f32 v{St + 2}, v{St + 2}, v{St + 3}")
    for i in range(8):
        a(f"v_sub_f32 v{T + 10 + i}, v{H + i}, v{St + 1}")
    for i in range(4):
        a(f"v_cvt_pk_bf16_f32 v{T + 20 + i}, v{T + 10 + 2 * i}, v{T + 11 + 2 * i}")
    for i in range(4):
        unpack(T + 10 + 2 * i, T + 20 + i)
    wave_allreduce(a, "v_add_f32", St + 2, St + 3)
    v = St + 2
    a(f"v_mul_f32 v{v}, 0x3b000000, v{v}")
    a(f"v_cvt_pk_bf16_f32 v{v}, v{v}, v{v}")
    a(f"v_lshlrev_b32 v{v}, 16, v{v}")
    a(f"v_add_f32 v{v}, 0x3727c5ac, v{v}")
    a(f"v_cvt_pk_bf16_f32 v{v}, v{v}, v{v}")
    a(f"v_lshlrev_b32 v{v}, 16, v{v}")
    a(f"v_sqrt_f32 v{v}, v{v}")
    a("s_nop 0")
    a(f"v_cvt_pk_bf16_f32 v{v}, v{v}, v{v}")
    a(f"v_lshlrev_b32 v{v}, 16, v{v}")
    a(f"v_rcp_f32 v{v}, v{v}")
    a("s_waitcnt vmcnt(0)")
    for i in range(8):
        a(f"v_mul_f32 v{T + 10 + i}, v{T + 10 + i}, v{v}")
    for i in range(4):
        a(f"v_cvt_pk_bf16_f32 v{HN + i}, v{T + 10 + 2 * i}, v{T + 11 + 2 * i}")
    for i in range(4):
        unpack(T + 10 + 2 * i, HN + i)
        unpack(T + 2 * i, 8 + i)
    a(f"v_mul_f32 v{St + 4}, v{T + 10}, v{T}")
    a(f"v_mul_f32 v{St + 5}, v{T + 11}, v{T + 1}")
    for i in range(2, 8, 2):
        a(f"v_fmac_f32 v{St + 4}, v{T + 10 + i}, v{T + i}")
        a(f"v_fmac_f32 v{St + 5}, v{T + 11 + i}, v{T + i + 1}")
    a(f"v_add_f32 v{St + 4}, v{St + 4}, v{St + 5}")
    wave_allreduce(a, "v_add_f32", St + 4, St + 5)
    v = St + 4
    a(f"v_cvt_pk_bf16_f32 v{v}, v{v}, v{v}")
    a(f"v_lshlrev_b32 v{v}, 16, v{v}")
    a(f"v_ashrrev_i32 v{v + 1}, 31, v{v}")
    a(f"v_or_b32 v{v + 1}, 0x80000000, v{v + 1}")
    a(f"v_xor_b32 v{v}, v{v}, v{v + 1}")
    a(f"v_and_b32 v{v}, s53, v{v}")
    a("s_sub_u32 s37, 2047, s33")
    a(f"v_or_b32 v{v}, s37, v{v}")
    a("s_lshl_b32 s37, s32, 2")
    a("v_mov_b32 v89, s37")
    a(f"ds_write_b32 v89, v{v}")
    OUT = 84
    for i in range(8):
        a(f"v_add_f32 v{T + 20 + i}, v{H + i}, v{T + 10 + i}")
    for i in range(4):
        a(f"v_cvt_pk_bf16_f32 v{OUT + i}, v{T + 20 + 2 * i}, v{T + 21 + 2 * i}")
    for i in range(4):
        a(f"v_mov_b32 v{56 + 2 * i}, v{HP + i}")
        a(f"v_mov_b32 v{57 + 2 * i}, v88")
        a(f"v_mov_b32 v{64 + 2 * i}, v{HN + i}")
        a(f"v_mov_b32 v{65 + 2 * i}, v88")
    a(f"v_readfirstlane_b32 s39, v{v}")
    a("v_readfirstlane_b32 s50, v88")
    a(f"s_lshl_b32 s41, {SLOT}, 12")
    a(f"s_add_u32 s41, s41, {WS_ROWS}")
    a(f"s_lshl_b32 s42, {SLOT}, 3")
    a(f"s_add_u32 s42, s42, {WS_KEYS}")
    stamp(a, 3)
    a("s_waitcnt lgkmcnt(0)")
    a("s_barrier")
    a("ds_read_b128 v[72:75], v5")
    a("ds_read_b128 v[76:79], v5 offset:16")
    a("s_waitcnt lgkmcnt(0)")
    a("v_max3_u32 v72, v72, v73, v74")
    a("v_max3_u32 v76, v76, v77, v78")
    a("v_max3_u32 v72, v72, v75, v79")
    a("v_max_u32 v72, v72, v76")
    a("v_mov_b32 v73, v88")
    a("s_nop 0")
    a("v_readfirstlane_b32 s38, v72")
    a("s_mov_b32 s51, 0")
    a("s_cmp_lg_u32 s38, s39")
    a(f"s_cbranch_scc1 {name}_nc")
    a("s_mov_b32 s51, 1")
    a("buffer_store_dwordx2 v[72:73], v5, s[24:27], s42 offen sc0 sc1")
    a("buffer_store_dwordx4 v[64:67], v4, s[24:27], s41 offen offset:2048 sc0 sc1")
    a("buffer_store_dwordx4 v[68:71], v4, s[24:27], s41 offen offset:2064 sc0 sc1")
    a("buffer_store_dwordx4 v[56:59], v4, s[24:27], s41 offen sc0 sc1")
    a("buffer_store_dwordx4 v[60:63], v4, s[24:27], s41 offen offset:16 sc0 sc1")
    a(f"s_branch {name}_role")
    a.label(f"{name}_nc")
    a(f"buffer_store_dwordx4 v[{OUT}:{OUT + 3}], v3, s[20:23], s34 offen")
    a.label(f"{name}_role")
    stamp(a, 4)
    a(f"s_cmp_lt_u32 s2, {NSL}")
    a(f"s_cbranch_scc1 {name}_needkeys")
    a("s_sub_u32 s52, s2, 64")
    a("s_cmp_lt_u32 s52, 16")
    a(f"s_cbranch_scc1 {name}_needkeys")
    a("s_cmp_eq_u32 s51, 0")
    a(f"s_cbranch_scc1 {name}_fin")
    a(f"s_mov_b32 s45, {WS_ANN}")
    a.label(f"{name}_annp")
    a(f"s_sleep {ASLEEP}")
    a("buffer_load_dwordx2 v[72:73], v5, s[24:27], s45 offen sc1")
    a("s_waitcnt vmcnt(0)")
    a("v_readfirstlane_b32 s46, v73")
    a("v_readfirstlane_b32 s38, v72")
    a("s_cmp_lg_u32 s46, s50")
    a(f"s_cbranch_scc1 {name}_annp")
    a("s_cmp_eq_u32 s38, s39")
    a(f"s_cbranch_scc1 {name}_fin")
    a(f"buffer_store_dwordx4 v[{OUT}:{OUT + 3}], v3, s[20:23], s34 offen")
    a(f"s_branch {name}_fin")
    a.label(f"{name}_needkeys")
    W = 16
    a(f"s_cmp_lt_u32 s2, {NSL}")
    a(f"s_cbranch_scc0 {name}_nowd")
    a("s_barrier")
    srd(a, 12, 56, 57, D * F * 2)
    srd(a, 16, 58, 59, D * F * 2)
    a("s_lshl_b32 s48, s2, 6")
    for j in range(4):
        a(f"s_add_u32 s49, s48, {3584 * j}")
        a(f"buffer_load_dwordx4 v[{G + 4 * j}:{G + 4 * j + 3}], v7, s[12:15], s49 offen")
        a(f"buffer_load_dwordx4 v[{U + 4 * j}:{U + 4 * j + 3}], v7, s[16:19], s49 offen")
    srd(a, 28, 60, 61, D * F * 2)
    a("s_lshl_b32 s35, s2, 5")
    a("s_lshl_b32 s36, s32, 2")
    a("s_add_u32 s35, s35, s36")
    a("s_lshl_b32 s35, s35, 10")
    for j in range(4):
        a(f"buffer_load_dwordx4 v[{W + 4 * j}:{W + 4 * j + 3}], v3, s[28:31], s35 offen offset:{1024 * j}")
    a.label(f"{name}_nowd")
    a("s_cmp_lg_u32 s32, 0")
    a(f"s_cbranch_scc1 {name}_kw")
    a(f"s_mov_b32 s45, {WS_KEYS}")
    a.label(f"{name}_kp")
    a("buffer_load_dwordx4 v[56:59], v4, s[24:27], s45 offen sc1")
    a("buffer_load_dwordx4 v[60:63], v4, s[24:27], s45 offen offset:16 sc1")
    a("s_waitcnt vmcnt(0)")
    a("v_cmp_ne_u32 s[46:47], v57, v88")
    a("v_cmp_ne_u32 vcc, v59, v88")
    a("s_or_b64 s[46:47], s[46:47], vcc")
    a("v_cmp_ne_u32 vcc, v61, v88")
    a("s_or_b64 s[46:47], s[46:47], vcc")
    a("v_cmp_ne_u32 vcc, v63, v88")
    a("s_or_b64 s[46:47], s[46:47], vcc")
    a(f"s_cbranch_scc0 {name}_kd")
    a(f"s_sleep {KSLEEP}")
    a(f"s_branch {name}_kp")
    a.label(f"{name}_kd")
    a("v_max3_u32 v56, v56, v58, v60")
    a("v_max_u32 v56, v56, v62")
    wave_allreduce(a, "v_max_u32", 56, 57)
    a("ds_write_b32 v5, v56 offset:64")
    a("s_cmp_lg_u32 s2, 64")
    a(f"s_cbranch_scc1 {name}_noann")
    a("v_mov_b32 v57, v88")
    a(f"s_mov_b32 s45, {WS_ANN}")
    a("buffer_store_dwordx2 v[56:57], v5, s[24:27], s45 offen sc0 sc1")
    a.label(f"{name}_noann")
    a("s_waitcnt lgkmcnt(0)")
    a.label(f"{name}_kw")
    a("s_barrier")
    a("ds_read_b32 v56, v5 offset:64")
    a("s_waitcnt lgkmcnt(0)")
    a("v_readfirstlane_b32 s38, v56")
    stamp(a, 5)
    a("s_cmp_eq_u32 s51, 0")
    a(f"s_cbranch_scc1 {name}_nodef")
    a("s_cmp_eq_u32 s38, s39")
    a(f"s_cbranch_scc1 {name}_nodef")
    a(f"buffer_store_dwordx4 v[{OUT}:{OUT + 3}], v3, s[20:23], s34 offen")
    a.label(f"{name}_nodef")
    a("s_and_b32 s39, s38, 0xffff")
    a("s_sub_u32 s39, 2047, s39")
    a("s_lshr_b32 s40, s39, 3")
    a("s_lshl_b32 s40, s40, 12")
    a(f"s_add_u32 s40, s40, {WS_ROWS}")
    a(f"s_cmp_lt_u32 s2, {NSL}")
    a(f"s_cbranch_scc0 {name}_red")
    a("v_lshlrev_b32 v9, 4, v6")
    a("v_add_u32 v9, s40, v9")
    A = 32
    a.label(f"{name}_xp")
    a("buffer_load_dwordx4 v[56:59], v9, s[24:27], 0 offen offset:2048 sc1")
    for i in range(16):
        a(f"v_mov_b32 v{A + i}, 0")
    a("s_waitcnt vmcnt(0)")
    a("v_cmp_ne_u32 s[46:47], v57, v88")
    a("v_cmp_ne_u32 vcc, v59, v88")
    a("s_or_b64 s[46:47], s[46:47], vcc")
    a(f"s_cbranch_scc1 {name}_xp")
    stamp(a, 6)
    X = 60
    a(f"v_lshlrev_b32 v{X}, 16, v56")
    a(f"v_and_b32 v{X + 1}, s53, v56")
    a(f"v_lshlrev_b32 v{X + 2}, 16, v58")
    a(f"v_and_b32 v{X + 3}, s53, v58")
    for j in range(4):
        for (M, ao) in ((G, 0), (U, 8)):
            for i in range(4):
                t = 64 + 2 * i
                a(f"v_lshlrev_b32 v{t}, 16, v{M + 4 * j + i}")
                a(f"v_and_b32 v{t + 1}, s53, v{M + 4 * j + i}")
            for i in range(4):
                t = 64 + 2 * i
                a(f"v_fmac_f32 v{A + ao + 2 * i}, v{X + j}, v{t}")
                a(f"v_fmac_f32 v{A + ao + 2 * i + 1}, v{X + j}, v{t + 1}")
    a("s_nop 1")
    for i in range(8):
        a(f"v_permlane32_swap_b32 v{A + i}, v{A + i + 8}")
    a("s_nop 1")
    for i in range(8):
        a(f"v_add_f32 v{A + i}, v{A + i}, v{A + i + 8}")
    a("s_nop 1")
    for i in range(4):
        a(f"v_permlane16_swap_b32 v{A + i}, v{A + i + 4}")
    a("s_nop 1")
    for i in range(4):
        a(f"v_add_f32 v{A + i}, v{A + i}, v{A + i + 4}")
    a("s_nop 1")
    for i in range(4):
        a(f"v_add_f32_dpp v{A + i}, v{A + i}, v{A + i} row_ror:4 {DPP}")
    a("s_nop 1")
    for i in range(4):
        a(f"v_add_f32_dpp v{A + i}, v{A + i}, v{A + i} row_ror:8 {DPP}")
    a("v_and_b32 v9, 3, v2")
    a("v_lshlrev_b32 v9, 5, v9")
    a("v_bfe_u32 v10, v2, 4, 1")
    a("v_lshl_add_u32 v9, v10, 4, v9")
    a("v_bfe_u32 v10, v2, 5, 1")
    a("v_lshl_add_u32 v9, v10, 7, v9")
    a("s_lshl_b32 s37, s32, 8")
    a("v_add_u32 v9, s37, v9")
    a(f"ds_write_b128 v9, v[{A}:{A + 3}] offset:128")
    a("s_waitcnt lgkmcnt(0)")
    a("s_barrier")
    a("v_lshlrev_b32 v9, 2, v2")
    for w in range(8):
        a(f"ds_read_b32 v{56 + w}, v9 offset:{128 + 256 * w}")
    a("s_waitcnt lgkmcnt(0)")
    a("v_add_f32 v56, v56, v57")
    a("v_add_f32 v58, v58, v59")
    a("v_add_f32 v60, v60, v61")
    a("v_add_f32 v62, v62, v63")
    a("v_add_f32 v56, v56, v58")
    a("v_add_f32 v60, v60, v62")
    a("v_add_f32 v56, v56, v60")
    a("v_mov_b32 v60, v56")
    a("s_nop 1")
    a("v_permlane32_swap_b32 v56, v60")
    a("s_nop 1")
    a("v_cvt_pk_bf16_f32 v56, v56, v60")
    a("v_and_b32 v60, s53, v56")
    a("v_lshlrev_b32 v56, 16, v56")
    a("v_mul_f32 v57, 0xbfb8aa3b, v56")
    a("v_exp_f32 v57, v57")
    a("s_nop 0")
    a("v_add_f32 v57, 1.0, v57")
    a("v_rcp_f32 v57, v57")
    a("s_nop 0")
    a("v_mul_f32 v56, v56, v57")
    a("v_cvt_pk_bf16_f32 v56, v56, v56")
    a("v_lshlrev_b32 v56, 16, v56")
    a("v_mul_f32 v56, v56, v60")
    a("v_cvt_pk_bf16_f32 v56, v56, v56")
    a("v_lshlrev_b32 v56, 16, v56")
    a("s_lshl_b32 s37, s32, 2")
    for j in range(4):
        a(f"s_add_u32 s36, s37, {j}")
        a("s_nop 0")
        a(f"v_readlane_b32 s{40 + j}, v56, s36")
    for j in range(4):
        for i in range(4):
            t = 64 + 2 * i
            a(f"v_lshlrev_b32 v{t}, 16, v{W + 4 * j + i}")
            a(f"v_and_b32 v{t + 1}, s53, v{W + 4 * j + i}")
        for i in range(4):
            t = 64 + 2 * i
            if j == 0:
                a(f"v_mul_f32 v{A + 2 * i}, s{40 + j}, v{t}")
                a(f"v_mul_f32 v{A + 2 * i + 1}, s{40 + j}, v{t + 1}")
            else:
                a(f"v_fmac_f32 v{A + 2 * i}, s{40 + j}, v{t}")
                a(f"v_fmac_f32 v{A + 2 * i + 1}, s{40 + j}, v{t + 1}")
    a("s_lshl_b32 s37, s32, 11")
    a("v_add_u32 v9, s37, v4")
    a(f"ds_write_b128 v9, v[{A}:{A + 3}] offset:4096")
    a(f"ds_write_b128 v9, v[{A + 4}:{A + 7}] offset:4112")
    a("s_waitcnt lgkmcnt(0)")
    a("s_barrier")
    a("v_lshlrev_b32 v9, 2, v0")
    for w in range(8):
        a(f"ds_read_b32 v{56 + w}, v9 offset:{4096 + 2048 * w}")
    a("s_lshl_b32 s37, s2, 12")
    a(f"s_add_u32 s37, s37, {WS_SLABS}")
    a("v_lshlrev_b32 v9, 3, v0")
    a("s_waitcnt lgkmcnt(0)")
    a("v_add_f32 v56, v56, v57")
    a("v_add_f32 v58, v58, v59")
    a("v_add_f32 v60, v60, v61")
    a("v_add_f32 v62, v62, v63")
    a("v_add_f32 v56, v56, v58")
    a("v_add_f32 v60, v60, v62")
    a("v_add_f32 v56, v56, v60")
    a("v_mov_b32 v57, v88")
    a("buffer_store_dwordx2 v[56:57], v9, s[24:27], s37 offen sc0 sc1")
    stamp(a, 7)
    a(f"s_branch {name}_fin2")
    a.label(f"{name}_red")
    a("v_lshrrev_b32 v8, 4, v0")
    a("v_and_b32 v9, 15, v0")
    a("s_lshl_b32 s41, s52, 8")
    a(f"s_add_u32 s42, s41, {WS_SLABS}")
    a("v_lshlrev_b32 v10, 12, v8")
    a("v_lshl_add_u32 v10, v9, 4, v10")
    a("v_add_u32 v11, 0x20000, v10")
    a("v_cmp_gt_u32 s[54:55], 24, v8")
    a("s_nop 1")
    a("v_cndmask_b32 v11, v10, v11, s[54:55]")
    a("s_lshl_b32 s43, s52, 7")
    a("s_add_u32 s43, s43, s40")
    a("v_lshlrev_b32 v12, 3, v9")
    a("v_add_u32 v12, s43, v12")
    a("s_and_b32 s44, s38, 0xffff0000")
    a("s_xor_b32 s45, s44, 0x80000000")
    a("s_not_b32 s46, s44")
    a("s_and_b32 s46, s46, 0xffff0000")
    a("s_cmp_ge_u32 s44, 0x80000000")
    a("s_cselect_b32 s44, s45, s46")
    a("v_mov_b32 v13, s44")
    a("v_mul_f32 v13, 0xbfb8aa3b, v13")
    a("v_exp_f32 v13, v13")
    a("s_nop 0")
    a("v_add_f32 v13, 1.0, v13")
    a("v_rcp_f32 v13, v13")
    a("s_nop 0")
    a("v_cvt_pk_bf16_f32 v13, v13, v13")
    a("v_lshlrev_b32 v13, 16, v13")
    a.label(f"{name}_sp")
    a("buffer_load_dwordx4 v[56:59], v10, s[24:27], s42 offen sc1")
    a("buffer_load_dwordx4 v[60:63], v11, s[24:27], s42 offen sc1")
    a("buffer_load_dwordx2 v[64:65], v12, s[24:27], 0 offen sc1")
    a("buffer_load_dwordx2 v[66:67], v12, s[24:27], 0 offen offset:2048 sc1")
    a("s_waitcnt vmcnt(0)")
    a("v_cmp_ne_u32 s[46:47], v57, v88")
    for r in (59, 61, 63, 65, 67):
        a(f"v_cmp_ne_u32 vcc, v{r}, v88")
        a("s_or_b64 s[46:47], s[46:47], vcc")
    a(f"s_cbranch_scc0 {name}_sd")
    a(f"s_sleep {SSLEEP}")
    a(f"s_branch {name}_sp")
    a.label(f"{name}_sd")
    stamp(a, 6)
    a("v_cndmask_b32 v60, 0, v60, s[54:55]")
    a("v_cndmask_b32 v62, 0, v62, s[54:55]")
    a("v_add_f32 v56, v56, v60")
    a("v_add_f32 v57, v58, v62")
    for sw in ("v_permlane16_swap_b32", "v_permlane32_swap_b32"):
        a("v_mov_b32 v58, v56")
        a("v_mov_b32 v59, v57")
        a("s_nop 1")
        a(f"{sw} v56, v58")
        a(f"{sw} v57, v59")
        a("s_nop 1")
        a("v_add_f32 v56, v56, v58")
        a("v_add_f32 v57, v57, v59")
    a("v_lshlrev_b32 v10, 3, v9")
    a("s_lshl_b32 s37, s32, 7")
    a("v_add_u32 v11, s37, v10")
    a("ds_write_b64 v11, v[56:57] offset:128")
    a("s_waitcnt lgkmcnt(0)")
    a("s_barrier")
    a("s_cmp_lg_u32 s32, 0")
    a(f"s_cbranch_scc1 {name}_fin2")
    for w in range(8):
        a(f"ds_read_b64 v[{32 + 2 * w}:{33 + 2 * w}], v10 offset:{128 + 128 * w}")
    a("s_waitcnt lgkmcnt(0)")
    for (d, s1) in ((32, 34), (36, 38), (40, 42), (44, 46), (32, 36), (40, 44), (32, 40)):
        a(f"v_add_f32 v{d}, v{d}, v{s1}")
        a(f"v_add_f32 v{d + 1}, v{d + 1}, v{s1 + 1}")
    y0, y1 = 32, 33
    a(f"v_cvt_pk_bf16_f32 v48, v{y0}, v{y1}")
    a(f"v_lshlrev_b32 v{y0}, 16, v48")
    a(f"v_and_b32 v{y1}, s53, v48")
    a(f"v_mul_f32 v{y0}, v{y0}, v13")
    a(f"v_mul_f32 v{y1}, v{y1}, v13")
    a(f"v_cvt_pk_bf16_f32 v48, v{y0}, v{y1}")
    a(f"v_lshlrev_b32 v{y0}, 16, v48")
    a(f"v_and_b32 v{y1}, s53, v48")
    a("v_lshlrev_b32 v49, 16, v66")
    a("v_and_b32 v50, s53, v66")
    a(f"v_add_f32 v{y0}, v49, v{y0}")
    a(f"v_add_f32 v{y1}, v50, v{y1}")
    a(f"v_cvt_pk_bf16_f32 v48, v{y0}, v{y1}")
    a(f"v_lshlrev_b32 v{y0}, 16, v48")
    a(f"v_and_b32 v{y1}, s53, v48")
    a("v_lshlrev_b32 v49, 16, v64")
    a("v_and_b32 v50, s53, v64")
    a(f"v_add_f32 v{y0}, v49, v{y0}")
    a(f"v_add_f32 v{y1}, v50, v{y1}")
    a(f"v_cvt_pk_bf16_f32 v48, v{y0}, v{y1}")
    a("s_lshl_b32 s39, s39, 10")
    a("s_lshl_b32 s41, s52, 6")
    a("s_add_u32 s39, s39, s41")
    a("v_lshlrev_b32 v10, 2, v9")
    a("v_add_u32 v10, s39, v10")
    a("buffer_store_dword v48, v10, s[20:23], 0 offen")
    stamp(a, 7)
    a.label(f"{name}_fin2")
    a.label(f"{name}_fin")
    stamp_flush(a, 3, 8, 10, 11)
    if fused:
        return None
    a.label(f"{name}_done")
    a("s_endpgm")
    return kernel_desc(name, 128, 64, 128)


def gen_k5(a, name):
    kernel_begin(a, name)
    a("s_cmp_ge_u32 s2, 16")
    a(f"s_cbranch_scc1 {name}_done")
    stamp(a, 0)
    a("s_load_dwordx2 s[8:9], s[0:1], 80")
    a("s_load_dwordx2 s[10:11], s[0:1], 96")
    a("v_lshrrev_b32 v1, 6, v0")
    a("v_and_b32 v2, 63, v0")
    a("s_nop 0")
    a("v_readfirstlane_b32 s32, v1")
    a("v_lshlrev_b32 v5, 2, v0")
    a("v_lshrrev_b32 v3, 3, v0")
    a("v_and_b32 v4, 7, v0")
    a("v_lshlrev_b32 v6, 11, v3")
    a("v_lshl_add_u32 v6, v4, 4, v6")
    a("s_waitcnt lgkmcnt(0)")
    stamp(a, 1)
    srd(a, 20, 8, 9, S * D * 2)
    srd(a, 24, 10, 11, 14 << 20)
    srd(a, 28, 10, 11, WS_SLAB + NSL * 2048)
    a(f"s_mov_b32 s34, {WS_CAND}")
    a("buffer_load_dword v8, v5, s[24:27], s34 offen")
    a("s_lshl_b32 s34, s2, 7")
    a(f"s_add_u32 s34, s34, {WS_SLAB}")
    a("s_add_u32 s35, s34, 65536")
    a("buffer_load_dwordx4 v[16:19], v6, s[28:31], s34 offen")
    a("buffer_load_dwordx4 v[20:23], v6, s[28:31], s35 offen")
    a("s_waitcnt vmcnt(2)")
    stamp(a, 2)
    emit_winner(a, 8, 12, 9, 38)
    a("s_and_b32 s39, s38, 0xffff")
    a("s_sub_u32 s39, 2047, s39")
    a("s_lshr_b32 s40, s39, 3")
    a("s_lshl_b32 s40, s40, 11")
    a(f"s_add_u32 s40, s40, {WS_CROW}")
    a("s_lshl_b32 s41, s2, 6")
    a("s_add_u32 s40, s40, s41")
    a("v_lshlrev_b32 v9, 3, v4")
    a("v_add_u32 v9, s40, v9")
    a("buffer_load_dwordx2 v[24:25], v9, s[24:27], 0 offen")
    a("buffer_load_dwordx2 v[26:27], v9, s[24:27], 0 offen offset:1024")
    a("s_waitcnt vmcnt(2)")
    for i in range(4):
        a(f"v_add_f32 v{16 + i}, v{16 + i}, v{20 + i}")
    a("s_nop 1")
    for i in range(4):
        a(f"v_add_f32_dpp v{16 + i}, v{16 + i}, v{16 + i} row_ror:8 {DPP}")
    for i in range(4):
        a(f"v_mov_b32 v{20 + i}, v{16 + i}")
    a("s_nop 1")
    for i in range(4):
        a(f"v_permlane16_swap_b32 v{16 + i}, v{20 + i}")
    a("s_nop 1")
    for i in range(4):
        a(f"v_add_f32 v{16 + i}, v{16 + i}, v{20 + i}")
    for i in range(4):
        a(f"v_mov_b32 v{20 + i}, v{16 + i}")
    a("s_nop 1")
    for i in range(4):
        a(f"v_permlane32_swap_b32 v{16 + i}, v{20 + i}")
    a("s_nop 1")
    for i in range(4):
        a(f"v_add_f32 v{16 + i}, v{16 + i}, v{20 + i}")
    a("v_lshlrev_b32 v10, 4, v4")
    a("s_lshl_b32 s37, s32, 7")
    a("v_add_u32 v11, s37, v10")
    a("ds_write_b128 v11, v[16:19] offset:64")
    a("s_waitcnt lgkmcnt(0)")
    a("s_barrier")
    for w in range(4):
        a(f"ds_read_b128 v[{32 + 4 * w}:{35 + 4 * w}], v10 offset:{64 + 128 * w}")
    a("s_and_b32 s42, s38, 0xffff0000")
    a("s_xor_b32 s43, s42, 0x80000000")
    a("s_not_b32 s44, s42")
    a("s_and_b32 s44, s44, 0xffff0000")
    a("s_cmp_ge_u32 s42, 0x80000000")
    a("s_cselect_b32 s42, s43, s44")
    a("v_mov_b32 v12, s42")
    a("v_mul_f32 v13, 0xbfb8aa3b, v12")
    a("v_exp_f32 v13, v13")
    a("s_nop 0")
    a("v_add_f32 v13, 1.0, v13")
    a("v_rcp_f32 v13, v13")
    a("s_nop 0")
    a("v_cvt_pk_bf16_f32 v13, v13, v13")
    a("v_lshlrev_b32 v13, 16, v13")
    a("s_mov_b32 s53, 0xffff0000")
    a("s_waitcnt vmcnt(0) lgkmcnt(0)")
    stamp(a, 3)
    for i in range(4):
        a(f"v_add_f32 v{32 + i}, v{32 + i}, v{36 + i}")
        a(f"v_add_f32 v{40 + i}, v{40 + i}, v{44 + i}")
        a(f"v_add_f32 v{32 + i}, v{32 + i}, v{40 + i}")
    for i in range(2):
        y0, y1 = 32 + 2 * i, 33 + 2 * i
        a(f"v_cvt_pk_bf16_f32 v48, v{y0}, v{y1}")
        a(f"v_lshlrev_b32 v{y0}, 16, v48")
        a(f"v_and_b32 v{y1}, s53, v48")
        a(f"v_mul_f32 v{y0}, v{y0}, v13")
        a(f"v_mul_f32 v{y1}, v{y1}, v13")
        a(f"v_cvt_pk_bf16_f32 v48, v{y0}, v{y1}")
        a(f"v_lshlrev_b32 v{y0}, 16, v48")
        a(f"v_and_b32 v{y1}, s53, v48")
        a(f"v_lshlrev_b32 v49, 16, v{26 + i}")
        a(f"v_and_b32 v50, s53, v{26 + i}")
        a(f"v_add_f32 v{y0}, v49, v{y0}")
        a(f"v_add_f32 v{y1}, v50, v{y1}")
        a(f"v_cvt_pk_bf16_f32 v48, v{y0}, v{y1}")
        a(f"v_lshlrev_b32 v{y0}, 16, v48")
        a(f"v_and_b32 v{y1}, s53, v48")
        a(f"v_lshlrev_b32 v49, 16, v{24 + i}")
        a(f"v_and_b32 v50, s53, v{24 + i}")
        a(f"v_add_f32 v{y0}, v49, v{y0}")
        a(f"v_add_f32 v{y1}, v50, v{y1}")
        a(f"v_cvt_pk_bf16_f32 v{52 + i}, v{y0}, v{y1}")
    a("s_lshl_b32 s39, s39, 10")
    a("s_add_u32 s39, s39, s41")
    a("v_lshlrev_b32 v9, 3, v4")
    a("v_add_u32 v9, s39, v9")
    a("v_cmp_gt_u32 vcc, 8, v0")
    a("s_and_saveexec_b64 s[46:47], vcc")
    a(f"s_cbranch_execz {name}_fin")
    a("buffer_store_dwordx2 v[52:53], v9, s[20:23], 0 offen")
    a.label(f"{name}_fin")
    a("s_mov_b64 exec, -1")
    stamp_flush(a, 5, 4, 10, 11)
    a.label(f"{name}_done")
    a("s_endpgm")
    return kernel_desc(name, 64, 64, 64)


HEADER = open(__file__.rsplit("/", 1)[0] + "/cdna_kernels/" + NAME + ".s.ref").read().split("; Override launch")[0]


def build(path, **opt):
    global STAMP, KSLEEP, SSLEEP, FSLEEP, ASLEEP
    STAMP = opt.get('stamp', 0)
    KSLEEP, SSLEEP, FSLEEP, ASLEEP = opt.get('ks', 1), opt.get('ss', 1), opt.get('fs', 1), opt.get('as', 8)
    a = Asm()
    only = opt.get("only", 0)
    launches = [
        ("k1_kernel", 256, 512, 163840),
        ("k2_kernel", 256, 512, 163840),
        ("k3_kernel", 256, 512, 64),
        ("k4_kernel", NSL, 512, 18432),
        ("k5_kernel", 16, 256, 1024),
    ]
    if opt.get("fused", 1) == 1:
        launches = launches[:2] + [("kt_kernel", 256, 512, 4096 + 16384)]
    if opt.get("fused", 1) == 2:
        launches = launches[:2]
    if only:
        launches = [launches[int(ch) - 1] for ch in str(only)]
    hdr = HEADER
    for (k, g, b, l) in launches:
        hdr += f"; @launch kernel={k} grid=({g},1,1) block=({b},1,1) lds={l}\n"
    a.raw('.amdgcn_target "amdgcn-amd-amdhsa--gfx950"')
    descs = []
    descs.append(gen_k1e(a, "k1_kernel", wt=opt.get("wt1", 1), PRO=opt.get("PRO1", 4), pf=opt.get("prefetch", 1), pace=opt.get("pace", 1), U1=opt.get("U1", 10), U2=opt.get("U2", 12), pfq=opt.get("pfq", 4), pol=opt.get("pol1", 0), ppol=opt.get("ppol", 0), tlb=opt.get("tlb", 0)))
    descs.append(gen_k2c(a, "k2_kernel", LA=opt.get("LA", 1), wt=opt.get("wt2", 1), PRO=opt.get("PRO2", 3), rot=opt.get("rot", 1), BARPOS=opt.get("BARPOS", 1), RSTEP=opt.get("RSTEP", 1), wpf=opt.get("wpf", 5), wpf2=opt.get("wpf2", 16), pol=opt.get("pol2", 0), fuse3=(opt.get("fused", 1) == 2)))
    if opt.get("fused", 1) == 1:
        descs.append(gen_kt(a, "kt_kernel"))
    elif opt.get("fused", 1) == 0:
        descs.append(gen_k3b(a, "k3_kernel", wpf=opt.get("wpf3", 0)))
        descs.append(gen_k4b(a, "k4_kernel"))
        descs.append(gen_k5(a, "k5_kernel"))
    open(path, "w").write(hdr + a.text() + "".join(descs))


if __name__ == "__main__":
    out = sys.argv[1] if len(sys.argv) > 1 else "cdna_kernels/" + NAME + ".s"
    opt = {}
    for kv in sys.argv[2:]:
        k, v = kv.split("=")
        opt[k] = int(v)
    build(out, **opt)
```

```python
import sys

NAME = "sequential_preLN__spectral_fnet__moe_arch_mod__prompt"

WS_AT = 0
WS_Y = 4 << 20
WS_CAND = 12 << 20
WS_CROW = (12 << 20) + 4096
WS_SLAB = (13 << 20)
WS_SIZE = 268435456

S, D, F = 2048, 512, 1792


class Asm:
    def __init__(self):
        self.lines = []

    def __call__(self, s):
        self.lines.append("    " + s)

    def label(self, l):
        self.lines.append(l + ":")

    def raw(self, s):
        self.lines.append(s)

    def text(self):
        return "\n".join(self.lines) + "\n"


class VM:
    def __init__(self, a):
        self.a = a
        self.q = []

    def issue(self, tag):
        self.q.append(tag)

    def wait(self, tag):
        idx = max(i for i, t in enumerate(self.q) if t == tag) if tag in self.q else None
        if idx is None:
            return
        n = len(self.q) - 1 - idx
        assert n <= 63
        self.a(f"s_waitcnt vmcnt({n})")
        self.q = self.q[idx + 1:]

    def wait_all(self):
        self.a("s_waitcnt vmcnt(0)")
        self.q = []


def srd(a, d, lo, hi, nbytes):
    a(f"s_mov_b32 s{d}, s{lo}")
    a(f"s_and_b32 s{d+1}, s{hi}, 0xffff")
    a(f"s_mov_b32 s{d+2}, {nbytes}")
    a(f"s_mov_b32 s{d+3}, 0x00020000")


def kernel_begin(a, name):
    a.raw(".text")
    a.raw(f".globl {name}")
    a.raw(".p2align 8")
    a.raw(f".type {name},@function")
    a.label(name)


def kernel_desc(name, vgpr, sgpr, accum):
    return f""".section .rodata,"a"
.p2align 6
.amdhsa_kernel {name}
  .amdhsa_next_free_vgpr {vgpr}
  .amdhsa_next_free_sgpr {102 if STAMP else sgpr}
  .amdhsa_accum_offset {accum}
  .amdhsa_group_segment_fixed_size 0
  .amdhsa_kernarg_size 104
  .amdhsa_user_sgpr_count 2
  .amdhsa_user_sgpr_kernarg_segment_ptr 1
  .amdhsa_system_sgpr_workgroup_id_x 1
  .amdhsa_float_denorm_mode_32 3
.end_amdhsa_kernel
"""


STAMP = 0
WS_STAMP = 16 << 20
_stamp_kid = {}


def stamp(a, i):
    if STAMP == 1:
        a(f"s_memrealtime s[{70 + 2 * i}:{71 + 2 * i}]")
    elif STAMP == 2:
        a(f"s_memtime s[{70 + 2 * i}:{71 + 2 * i}]")


def stamp_flush(a, kid, n, ws_lo, ws_hi, wave_sgpr="s32"):
    if not STAMP:
        return
    a("s_waitcnt vmcnt(0) lgkmcnt(0)")
    stamp(a, n)
    a(f"s_mov_b32 s92, s{ws_lo}")
    a(f"s_and_b32 s93, s{ws_hi}, 0xffff")
    a(f"s_mov_b32 s94, {WS_SIZE}")
    a("s_mov_b32 s95, 0x00020000")
    a(f"s_add_u32 s96, s2, {kid * 512}")
    a("s_lshl_b32 s96, s96, 4")
    a(f"s_add_u32 s96, s96, {wave_sgpr}")
    a("s_lshl_b32 s96, s96, 7")
    a(f"s_add_u32 s96, s96, {WS_STAMP}")
    a("s_waitcnt lgkmcnt(0)")
    a("v_mov_b32 v0, 0")
    for i in range(n + 1):
        a(f"v_mov_b32 v2, s{70 + 2 * i}")
        a(f"v_mov_b32 v3, s{71 + 2 * i}")
        a(f"buffer_store_dwordx2 v[2:3], v0, s[92:95], s96 offen offset:{8 * i}")
        a("s_nop 1")


ESLEEP = 4
DPP = "row_mask:0xf bank_mask:0xf"


def emit_perm32(a, dst, src, t):
    a(f"v_and_b32 v{dst}, 3, v{src}")
    a(f"v_lshrrev_b32 v{t}, 3, v{src}")
    a(f"v_lshl_or_b32 v{dst}, v{t}, 2, v{dst}")
    a(f"v_bfe_u32 v{t}, v{src}, 2, 1")
    a(f"v_lshl_or_b32 v{dst}, v{t}, 4, v{dst}")


def wave_allreduce(a, op, v, t):
    a("s_nop 1")
    a(f"{op}_dpp v{v}, v{v}, v{v} quad_perm:[1,0,3,2] {DPP}")
    a("s_nop 1")
    a(f"{op}_dpp v{v}, v{v}, v{v} quad_perm:[2,3,0,1] {DPP}")
    a("s_nop 1")
    a(f"{op}_dpp v{v}, v{v}, v{v} row_half_mirror {DPP}")
    a("s_nop 1")
    a(f"{op}_dpp v{v}, v{v}, v{v} row_mirror {DPP}")
    a(f"v_mov_b32 v{t}, v{v}")
    a("s_nop 1")
    a(f"v_permlane16_swap_b32 v{v}, v{t}")
    a("s_nop 1")
    a(f"{op} v{v}, v{v}, v{t}")
    a(f"v_mov_b32 v{t}, v{v}")
    a("s_nop 1")
    a(f"v_permlane32_swap_b32 v{v}, v{t}")
    a("s_nop 1")
    a(f"{op} v{v}, v{v}, v{t}")


def gen_k1(a, name, prefetch=True):
    kernel_begin(a, name)
    a("s_cmp_ge_u32 s2, 256")
    a(f"s_cbranch_scc1 {name}_done")
    stamp(a, 0)
    a("s_load_dwordx2 s[4:5], s[0:1], 0")
    a("s_load_dwordx4 s[8:11], s[0:1], 24")
    a("s_load_dwordx2 s[6:7], s[0:1], 96")
    a("s_load_dwordx4 s[36:39], s[0:1], 8")
    a("s_load_dwordx4 s[40:43], s[0:1], 56")
    a("s_load_dwordx2 s[44:45], s[0:1], 72")
    a("s_and_b32 s3, s2, 7")
    a("s_lshr_b32 s28, s2, 3")
    a("s_and_b32 s29, s28, 3")
    a("s_lshl_b32 s30, s3, 2")
    a("s_add_u32 s30, s30, s29")
    a("s_lshr_b32 s31, s28, 2")
    a("v_lshrrev_b32 v1, 6, v0")
    a("v_and_b32 v2, 63, v0")
    a("s_nop 0")
    a("v_readfirstlane_b32 s32, v1")
    a("v_lshrrev_b32 v3, 3, v2")
    a("v_and_b32 v4, 7, v2")
    a("s_waitcnt lgkmcnt(0)")
    stamp(a, 1)
    srd(a, 12, 4, 5, S * D * 2)
    a("s_cmp_ge_u32 s31, 4")
    a("s_cselect_b32 s8, s10, s8")
    a("s_cselect_b32 s9, s11, s9")
    srd(a, 16, 8, 9, D * D * 2)
    srd(a, 20, 6, 7, 4 << 20)
    a("s_lshl_b32 s33, s30, 6")
    a("s_lshl_b32 s34, s32, 3")
    a("s_add_u32 s33, s33, s34")
    a("s_lshl_b32 s33, s33, 10")
    a("v_lshlrev_b32 v5, 10, v3")
    a("v_lshl_add_u32 v5, v4, 4, v5")
    XR = 32
    for j in range(8):
        a(f"buffer_load_dwordx4 v[{XR+4*j}:{XR+4*j+3}], v5, s[12:15], s33 offen offset:{128*j}")
    a("v_lshrrev_b32 v6, 4, v2")
    a("v_xor_b32 v6, v6, v4")
    a("v_xor_b32 v7, 4, v6")
    a("v_lshlrev_b32 v8, 10, v3")
    a("v_lshl_add_u32 v6, v6, 4, v8")
    a("v_lshl_add_u32 v7, v7, 4, v8")
    a("s_cmp_ge_u32 s32, 4")
    a(f"s_cbranch_scc1 {name}_helper")
    a("s_and_b32 s35, s31, 3")
    a("s_lshl_b32 s35, s35, 7")
    a("s_lshl_b32 s34, s32, 5")
    a("s_add_u32 s35, s35, s34")
    a("s_lshl_b32 s35, s35, 10")
    a("s_mul_i32 s46, s32, 24576")
    a("s_add_u32 s46, s46, 65536")

    def dma_slot(kk):
        for i in range(4):
            a(f"s_add_u32 m0, s46, {(kk % 6) * 4096 + i * 1024}")
            a(f"s_add_u32 s47, s35, {i * 8192 + kk * 128}")
            a(f"buffer_load_dwordx4 v{6 + (i & 1)}, s[16:19], s47 offen lds")

    for kk in range(6):
        dma_slot(kk)
    a("s_waitcnt vmcnt(24)")
    a(f"s_branch {name}_ln")
    a.label(f"{name}_helper")
    npf = 0
    if prefetch:
        a("s_and_b32 s48, s3, 1")
        a("s_cmp_eq_u32 s48, 1")
        a("s_cselect_b32 s36, s38, s36")
        a("s_cselect_b32 s37, s39, s37")
        srd(a, 24, 36, 37, S * S * 2)
        a("s_lshr_b32 s48, s3, 2")
        a("s_lshl_b32 s48, s48, 10")
        a("s_lshl_b32 s49, s28, 5")
        a("s_add_u32 s48, s48, s49")
        a("s_sub_u32 s49, s32, 4")
        a("s_lshl_b32 s49, s49, 3")
        a("s_add_u32 s48, s48, s49")
        a("s_lshl_b32 s48, s48, 12")
        a("s_bfe_u32 s49, s3, 0x10001")
        a("s_lshl_b32 s49, s49, 11")
        a("s_add_u32 s48, s48, s49")
        a("v_lshrrev_b32 v9, 5, v2")
        a("v_lshlrev_b32 v9, 12, v9")
        a("v_and_b32 v129, 31, v2")
        a("v_lshl_add_u32 v9, v129, 6, v9")
        a("s_waitcnt vmcnt(0)")
        for i in range(4):
            a(f"s_add_u32 s49, s48, {i * 8192}")
            a(f"buffer_load_dword v{130 + i}, v9, s[24:27], s49 offen")
            npf += 1
    a(f"s_waitcnt vmcnt({npf})")
    a.label(f"{name}_ln")
    stamp(a, 2)
    a("s_mov_b32 s50, 0x3f803f80")
    a("s_mov_b32 s51, 0x00003f80")
    a("s_mov_b32 s52, 0x3f800000")
    a("s_mov_b32 s53, 0xffff0000")
    a("v_mov_b32 v16, 0")
    a("v_mov_b32 v17, 0")
    for j in range(32):
        a(f"v_dot2_f32_bf16 v{16 + (j & 1)}, v{XR + j}, s50, v{16 + (j & 1)}")
    a("s_nop 2")
    a("v_add_f32 v16, v16, v17")

    def red8(v):
        a("s_nop 1")
        a(f"v_add_f32_dpp v{v}, v{v}, v{v} quad_perm:[1,0,3,2] {DPP}")
        a("s_nop 1")
        a(f"v_add_f32_dpp v{v}, v{v}, v{v} quad_perm:[2,3,0,1] {DPP}")
        a("s_nop 1")
        a(f"v_add_f32_dpp v{v}, v{v}, v{v} row_half_mirror {DPP}")

    red8(16)
    a("v_mul_f32 v16, 0x3b000000, v16")
    a("v_cvt_pk_bf16_f32 v17, v16, v16")
    a("v_lshlrev_b32 v17, 16, v17")
    a("v_sub_f32 v18, 0, v17")
    a("v_sub_f32 v19, v16, v17")
    a("v_mov_b32 v20, 0")
    a("v_mov_b32 v21, 0")
    for j in range(32):
        t = 22 + 2 * (j & 3)
        a(f"v_dot2_f32_bf16 v{t}, v{XR + j}, s51, v18")
        a(f"v_dot2_f32_bf16 v{t + 1}, v{XR + j}, s52, v18")
        if j >= 1:
            tp = 22 + 2 * ((j - 1) & 3)
            a(f"v_fmac_f32 v20, v{tp}, v{tp}")
            a(f"v_fmac_f32 v21, v{tp + 1}, v{tp + 1}")
            a(f"v_cvt_pk_bf16_f32 v{XR + j - 1}, v{tp}, v{tp + 1}")
    tp = 22 + 2 * (31 & 3)
    a("s_nop 2")
    a(f"v_fmac_f32 v20, v{tp}, v{tp}")
    a(f"v_fmac_f32 v21, v{tp + 1}, v{tp + 1}")
    a(f"v_cvt_pk_bf16_f32 v{XR + 31}, v{tp}, v{tp + 1}")
    a("v_add_f32 v20, v20, v21")
    red8(20)
    a("v_mul_f32 v20, 0x3b000000, v20")
    a("v_fma_f32 v20, -v19, v19, v20")
    a("v_max_f32 v20, 0, v20")
    a("v_cvt_pk_bf16_f32 v20, v20, v20")
    a("v_lshlrev_b32 v20, 16, v20")
    a("v_add_f32 v20, 0x3727c5ac, v20")
    a("v_cvt_pk_bf16_f32 v20, v20, v20")
    a("v_lshlrev_b32 v20, 16, v20")
    a("v_sqrt_f32 v20, v20")
    a("s_nop 0")
    a("v_cvt_pk_bf16_f32 v20, v20, v20")
    a("v_lshlrev_b32 v20, 16, v20")
    a("v_rcp_f32 v20, v20")
    a("s_nop 0")
    for j in range(32):
        t = 22 + 2 * (j & 3)
        a(f"v_lshlrev_b32 v{t}, 16, v{XR + j}")
        a(f"v_and_b32 v{t + 1}, s53, v{XR + j}")
        a(f"v_mul_f32 v{t}, v{t}, v20")
        a(f"v_mul_f32 v{t + 1}, v{t + 1}, v20")
        a(f"v_cvt_pk_bf16_f32 v{XR + j}, v{t}, v{t + 1}")
    a("s_lshl_b32 s34, s32, 3")
    a("v_add_u32 v9, s34, v3")
    a("v_bfe_u32 v10, v9, 1, 3")
    a("v_xor_b32 v10, v10, v4")
    a("v_lshlrev_b32 v10, 4, v10")
    a("v_lshl_add_u32 v10, v9, 7, v10")
    for j in range(8):
        a(f"ds_write_b128 v10, v[{XR + 4 * j}:{XR + 4 * j + 3}] offset:{8192 * j}")
    stamp(a, 3)
    a("s_waitcnt lgkmcnt(0)")
    a("s_barrier")
    stamp(a, 4)
    a("s_cmp_ge_u32 s32, 4")
    a(f"s_cbranch_scc1 {name}_fin")
    a("v_and_b32 v9, 31, v2")
    emit_perm32(a, 10, 9, 11)
    a("v_bfe_u32 v11, v10, 1, 3")
    a("v_lshrrev_b32 v12, 5, v2")
    a("v_xor_b32 v11, v11, v12")
    a("v_lshlrev_b32 v11, 4, v11")
    a("v_lshl_add_u32 v11, v10, 7, v11")
    for c in range(4):
        a(f"v_xor_b32 v{12 + c}, {c * 32}, v11")
        a(f"v_add_u32 v{16 + c}, s46, v{12 + c}")
    ACC = 64
    FR = [96, 108, 120]
    for i in range(32):
        a(f"v_mov_b32 v{ACC + i}, 0")
    units = [(kk, c) for kk in range(8) for c in range(4)]
    vq = [kk for kk in range(6) for _ in range(4)]

    def wait_slot(kk):
        nonlocal vq
        if kk in vq:
            idx = max(i for i, t in enumerate(vq) if t == kk)
            a(f"s_waitcnt vmcnt({len(vq) - 1 - idx})")
            vq = vq[idx + 1:]

    def reads(n):
        kk, c = units[n]
        f = FR[n % 3]
        if c == 0:
            wait_slot(kk)
        a(f"ds_read_b128 v[{f}:{f + 3}], v{16 + c} offset:{(kk % 6) * 4096}")
        a(f"ds_read_b128 v[{f + 4}:{f + 7}], v{12 + c} offset:{kk * 8192}")
        a(f"ds_read_b128 v[{f + 8}:{f + 11}], v{12 + c} offset:{kk * 8192 + 4096}")

    reads(0)
    reads(1)
    for n in range(len(units)):
        kk, c = units[n]
        if n + 2 < len(units):
            reads(n + 2)
            a("s_waitcnt lgkmcnt(6)")
        elif n + 1 < len(units):
            a("s_waitcnt lgkmcnt(3)")
        else:
            a("s_waitcnt lgkmcnt(0)")
        f = FR[n % 3]
        a(f"v_mfma_f32_32x32x16_bf16 v[{ACC}:{ACC + 15}], v[{f + 4}:{f + 7}], v[{f}:{f + 3}], v[{ACC}:{ACC + 15}]")
        a(f"v_mfma_f32_32x32x16_bf16 v[{ACC + 16}:{ACC + 31}], v[{f + 8}:{f + 11}], v[{f}:{f + 3}], v[{ACC + 16}:{ACC + 31}]")
        if c == 3 and kk + 6 < 8:
            dma_slot(kk + 6)
            vq += [kk + 6] * 4
    stamp(a, 5)
    a("s_lshl_b32 s34, s31, 2")
    a("s_add_u32 s34, s34, s32")
    a("s_lshl_b32 s34, s34, 6")
    a("s_lshl_b32 s33, s30, 1")
    a("s_add_u32 s34, s34, s33")
    a("s_lshl_b32 s34, s34, 11")
    a("v_lshlrev_b32 v9, 4, v2")
    a("s_nop 7")
    a("s_nop 3")
    for sh in range(2):
        for i in range(8):
            a(f"v_cvt_pk_bf16_f32 v{32 + 8 * sh + i}, v{ACC + 16 * sh + 2 * i}, v{ACC + 16 * sh + 2 * i + 1}")
    for sh in range(2):
        for u in range(2):
            r = 32 + 8 * sh + 4 * u
            a(f"buffer_store_dwordx4 v[{r}:{r + 3}], v9, s[20:23], s34 offen offset:{sh * 2048 + u * 1024}")
    a.label(f"{name}_fin")
    stamp_flush(a, 1, 6, 6, 7)
    a.label(f"{name}_done")
    a("s_endpgm")
    return kernel_desc(name, 136, 64, 136)


def gen_k2(a, name, NS=9, ED=3, nomfma=0, noload=0, spread=0, noC=0, noE=0):
    kernel_begin(a, name)
    a("s_cmp_ge_u32 s2, 256")
    a(f"s_cbranch_scc1 {name}_done")
    stamp(a, 0)
    a("s_load_dwordx4 s[4:7], s[0:1], 8")
    a("s_load_dwordx2 s[8:9], s[0:1], 96")
    a("s_and_b32 s3, s2, 7")
    a("s_lshr_b32 s28, s2, 3")
    a("s_and_b32 s29, s3, 1")
    a("s_lshr_b32 s30, s3, 1")
    a("s_lshl_b32 s30, s30, 2")
    a("s_and_b32 s31, s28, 3")
    a("s_add_u32 s30, s30, s31")
    a("s_lshr_b32 s31, s28, 2")
    a("v_lshrrev_b32 v200, 6, v0")
    a("v_and_b32 v201, 63, v0")
    a("s_nop 0")
    a("v_readfirstlane_b32 s32, v200")
    a("v_lshrrev_b32 v202, 3, v201")
    a("v_and_b32 v203, 7, v201")
    a("v_lshrrev_b32 v204, 4, v201")
    a("v_xor_b32 v204, v204, v203")
    a("v_xor_b32 v205, 4, v204")
    a("v_lshlrev_b32 v206, 12, v202")
    a("v_lshl_add_u32 v204, v204, 4, v206")
    a("v_lshl_add_u32 v205, v205, 4, v206")
    a("v_lshlrev_b32 v206, 4, v201")
    a("s_waitcnt lgkmcnt(0)")
    stamp(a, 1)
    a("s_cmp_eq_u32 s29, 1")
    a("s_cselect_b32 s4, s6, s4")
    a("s_cselect_b32 s5, s7, s5")
    srd(a, 12, 4, 5, S * S * 2)
    srd(a, 16, 8, 9, 8 << 20)
    a("s_lshl_b32 s35, s30, 19")
    a("s_lshl_b32 s34, s32, 10")
    a("s_add_u32 s35, s35, s34")
    for j in range(4):
        a(f"s_add_u32 s34, s32, {j}")
        a("s_and_b32 s34, s34, 3")
        a(f"s_mov_b32 s{52 + j}, s34")
        a("s_lshl_b32 s34, s34, 17")
        a(f"s_add_u32 s{40 + j}, s35, s34")
    a("s_lshl_b32 s36, s29, 4")
    a("s_lshl_b32 s34, s31, 1")
    a("s_add_u32 s36, s36, s34")
    a("s_lshl_b32 s36, s36, 6")
    a("s_lshl_b32 s34, s32, 4")
    a("s_add_u32 s36, s36, s34")
    a("s_lshl_b32 s36, s36, 11")
    a("s_add_u32 s37, s36, 131072")
    RING = NS * 4096
    a(f"s_mul_i32 s46, s32, {RING}")
    vm = VM(a)

    pend = []

    def dma_one(n, i):
        kk, j = n // 4, n % 4
        if noload or noC:
            return
        a(f"s_add_u32 m0, s46, {(n % NS) * 4096 + i * 1024}")
        a(f"s_add_u32 s47, s{40 + j}, {(i * 8) * 4096 + kk * 128}")
        a(f"buffer_load_dwordx4 v{204 + (i & 1)}, s[12:15], s47 offen lds")
        vm.issue(("C", n))

    def e_one(kk, et2, c):
        if noload or noE:
            return
        st = kk % ED
        r = st * 32 + et2 * 16 + c * 4
        a(f"s_add_u32 s48, s{36 + et2}, {kk * 4096}")
        a(f"buffer_load_dwordx4 a[{r}:{r + 3}], v206, s[16:19], s48 offen offset:{c * 1024}")
        vm.issue(("E", kk))

    def dma_slot(n, defer=False):
        for i in range(4):
            if defer:
                pend.append(lambda n=n, i=i: dma_one(n, i))
            else:
                dma_one(n, i)

    def e_loads(kk, defer=False):
        for et2 in range(2):
            for c in range(4):
                if defer:
                    pend.append(lambda kk=kk, et2=et2, c=c: e_one(kk, et2, c))
                else:
                    e_one(kk, et2, c)

    def flush_pend(pred=None, maxn=None):
        cnt = 0
        while pend and (maxn is None or cnt < maxn):
            pend.pop(0)()
            cnt += 1

    nslot_issued = 0
    for kk in range(ED):
        e_loads(kk)
        for tt in range(4):
            if nslot_issued < NS:
                dma_slot(nslot_issued)
                nslot_issued += 1
    while nslot_issued < NS:
        dma_slot(nslot_issued)
        nslot_issued += 1
    stamp(a, 2)
    a("v_and_b32 v207, 31, v201")
    a("v_bfe_u32 v208, v207, 1, 3")
    a("v_lshrrev_b32 v209, 5, v201")
    a("v_lshlrev_b32 v209, 1, v209")
    a("v_xor_b32 v208, v208, v209")
    a("v_lshlrev_b32 v208, 4, v208")
    a("v_lshl_add_u32 v208, v207, 7, v208")
    for c in range(4):
        x = ((c >> 1) * 4 + (c & 1)) << 4
        a(f"v_xor_b32 v{210 + c}, {x}, v208")
        a(f"v_add_u32 v{210 + c}, s46, v{210 + c}")
    for i in range(128):
        a(f"v_mov_b32 v{i}, 0")
    def pend_has(tag):
        return any(getattr(p, '__defaults__', (None,))[0] == tag[1] and len(p.__defaults__) == (2 if tag[0] == 'C' else 3) for p in pend)

    units = [(n, c) for n in range(32) for c in range(4)]
    NF = 6
    LOOKAHEAD = 4

    def reads(un):
        n, c = units[un]
        if c == 0:
            assert noload or noC or vm.q.count(("C", n)) == 4 or ("C", n) not in vm.q and n < nslot_issued and not pend_has(("C", n))
            vm.wait(("C", n))
        f = 128 + 4 * (un % NF)
        a(f"ds_read_b128 v[{f}:{f + 3}], v{210 + c} offset:{(n % NS) * 4096}")

    for un in range(LOOKAHEAD):
        reads(un)
    for un in range(len(units)):
        n, c = units[un]
        kk, j = n // 4, n % 4
        if un + LOOKAHEAD < len(units):
            reads(un + LOOKAHEAD)
            a(f"s_waitcnt lgkmcnt({LOOKAHEAD})")
        else:
            a(f"s_waitcnt lgkmcnt({len(units) - 1 - un})")
        if j == 0 and c == 0:
            assert not pend_has(("E", kk))
            vm.wait(("E", kk))
        f = 128 + 4 * (un % NF)
        st = kk % ED
        if un == 0:
            stamp(a, 3)
        if un == 64:
            stamp(a, 4)
        for et2 in range(2):
            acc = (j * 2 + et2) * 16
            r = st * 32 + et2 * 16 + c * 4
            if not nomfma:
                a(f"v_mfma_f32_32x32x16_bf16 v[{acc}:{acc + 15}], a[{r}:{r + 3}], v[{f}:{f + 3}], v[{acc}:{acc + 15}]")
            if spread:
                flush_pend(maxn=1)
        if c == 3:
            if nslot_issued < 32:
                dma_slot(nslot_issued, defer=bool(spread))
                nslot_issued += 1
            if j == 3 and kk + ED < 8:
                e_loads(kk + ED, defer=bool(spread))
    stamp(a, 5)
    a("s_barrier")
    stamp(a, 6)
    for j in range(1, 4):
        a(f"s_mul_i32 s34, s{52 + j}, 24576")
        a(f"s_add_u32 s34, s34, {(j - 1) * 8192}")
        a(f"v_add_u32 v{214 + j}, s34, v206")
    a("s_mul_i32 s34, s32, 24576")
    a("v_add_u32 v214, s34, v206")
    a("s_nop 7")
    for j in range(1, 4):
        for q in range(8):
            r = j * 32 + 4 * q
            a(f"ds_write_b128 v{214 + j}, v[{r}:{r + 3}] offset:{q * 1024}")
    a("s_waitcnt lgkmcnt(0)")
    a("s_barrier")
    stamp(a, 7)
    for j in range(1, 4):
        for q in range(8):
            r = j * 32 + 4 * q
            a(f"ds_read_b128 v[{r}:{r + 3}], v214 offset:{(j - 1) * 8192 + q * 1024}")
    a("s_lshl_b32 s34, s30, 7")
    a("s_lshl_b32 s33, s32, 5")
    a("s_add_u32 s34, s34, s33")
    a("s_lshl_b32 s34, s34, 10")
    a("s_lshl_b32 s33, s31, 7")
    a("s_add_u32 s34, s34, s33")
    a("s_lshl_b32 s33, s29, 21")
    a("s_add_u32 s34, s34, s33")
    a(f"s_add_u32 s34, s34, {WS_Y}")
    a("v_lshrrev_b32 v209, 5, v201")
    a("v_lshlrev_b32 v209, 5, v209")
    a("v_lshl_add_u32 v209, v207, 10, v209")
    for j in range(1, 4):
        a(f"s_waitcnt lgkmcnt({min(15, (3 - j) * 8)})")
        for i in range(32):
            a(f"v_add_f32 v{i}, v{i}, v{j * 32 + i}")
    for i in range(16):
        a(f"v_cvt_pk_bf16_f32 v{128 + i}, v{2 * i}, v{2 * i + 1}")
    for et2 in range(2):
        for hh in range(2):
            r = 128 + et2 * 8 + hh * 4
            a(f"buffer_store_dwordx4 v[{r}:{r + 3}], v209, s[16:19], s34 offen offset:{et2 * 64 + hh * 16}")
    stamp_flush(a, 2, 8, 8, 9)
    a.label(f"{name}_done")
    a("s_endpgm")
    return kernel_desc(name, 224 + 32 * ED, 64, 224)


WS_P = 4 << 20


def gen_k2b(a, name, NSTG=5, LA=2, nomfma=0, noread=0, nodma=0, nostore=0):
    kernel_begin(a, name)
    a("s_cmp_ge_u32 s2, 256")
    a(f"s_cbranch_scc1 {name}_done")
    stamp(a, 0)
    a("s_load_dwordx4 s[4:7], s[0:1], 8")
    a("s_load_dwordx2 s[8:9], s[0:1], 96")
    a("s_and_b32 s3, s2, 7")
    a("s_lshr_b32 s28, s2, 3")
    a("s_and_b32 s29, s3, 1")
    a("s_bfe_u32 s27, s3, 0x10001")
    a("s_lshr_b32 s30, s3, 2")
    a("s_lshl_b32 s30, s30, 3")
    a("s_and_b32 s31, s28, 7")
    a("s_add_u32 s30, s30, s31")
    a("s_lshr_b32 s31, s28, 3")
    a("v_lshrrev_b32 v1, 6, v0")
    a("v_and_b32 v2, 63, v0")
    a("s_nop 0")
    a("v_readfirstlane_b32 s32, v1")
    a("v_lshlrev_b32 v3, 4, v2")
    a("s_waitcnt lgkmcnt(0)")
    stamp(a, 1)
    a("s_cmp_eq_u32 s29, 1")
    a("s_cselect_b32 s4, s6, s4")
    a("s_cselect_b32 s5, s7, s5")
    srd(a, 12, 4, 5, S * S * 2)
    srd(a, 16, 8, 9, 12 << 20)
    a("s_cmp_lt_u32 s32, 4")
    a(f"s_cbranch_scc1 {name}_cons")
    a("s_sub_u32 s33, s32, 4")
    a("v_lshrrev_b32 v4, 3, v2")
    a("v_and_b32 v5, 7, v2")
    a("v_lshrrev_b32 v6, 4, v2")
    a("v_xor_b32 v6, v6, v5")
    a("v_xor_b32 v7, 4, v6")
    a("v_lshlrev_b32 v4, 12, v4")
    a("v_lshl_add_u32 v6, v6, 4, v4")
    a("v_lshl_add_u32 v7, v7, 4, v4")
    a("v_mov_b32 v8, v6")
    a(f"v_add_u32 v9, {32768 - 1024}, v7")
    a(f"v_add_u32 v10, {2 * (32768 - 1024)}, v6")
    a(f"v_add_u32 v11, {3 * (32768 - 1024)}, v7")
    a("s_lshl_b32 s35, s30, 19")
    a("s_lshl_b32 s34, s33, 17")
    a("s_add_u32 s35, s35, s34")
    a("s_lshl_b32 s34, s27, 11")
    a("s_add_u32 s35, s35, s34")
    a("s_lshl_b32 s36, s29, 4")
    a("s_lshl_b32 s34, s31, 2")
    a("s_add_u32 s36, s36, s34")
    a("s_add_u32 s36, s36, s33")
    a("s_lshl_b32 s36, s36, 6")
    a("s_lshl_b32 s34, s27, 5")
    a("s_add_u32 s36, s36, s34")
    a("s_lshl_b32 s36, s36, 11")
    a("s_lshl_b32 s37, s33, 12")

    def load_stage(s):
        slot = (s % NSTG) * 32768
        a(f"s_add_u32 m0, s37, {slot}")
        a(f"s_add_u32 s38, s35, {s * 128}")
        for i in range(4):
            if not nodma:
                a(f"buffer_load_dwordx4 v{8 + i}, s[12:15], s38 offen offset:{i * 1024} lds")
        a(f"s_add_u32 m0, s37, {slot + 16384}")
        a(f"s_add_u32 s39, s36, {s * 4096}")
        for c in range(4):
            if not nodma:
                a(f"buffer_load_dwordx4 v3, s[16:19], s39 offen offset:{c * 1024} lds")

    NST = 16
    for s in range(NSTG - 1):
        load_stage(s)
    stamp(a, 2)
    for s in range(NST):
        issued = min(s + NSTG - 2, NST - 1)
        a(f"s_waitcnt vmcnt({(issued - s) * 8})")
        a("s_barrier")
        if s + NSTG - 1 < NST:
            load_stage(s + NSTG - 1)
    stamp(a, 5)
    a(f"s_branch {name}_fin")
    a.label(f"{name}_cons")
    a("s_and_b32 s33, s32, 1")
    a("s_lshr_b32 s34, s32, 1")
    a("v_and_b32 v4, 31, v2")
    a("v_bfe_u32 v5, v4, 1, 3")
    a("v_lshrrev_b32 v6, 5, v2")
    a("v_lshlrev_b32 v6, 1, v6")
    a("v_xor_b32 v5, v5, v6")
    a("v_lshlrev_b32 v5, 4, v5")
    a("v_lshl_add_u32 v5, v4, 7, v5")
    a("s_lshl_b32 s35, s33, 13")
    a("s_lshl_b32 s36, s34, 13")
    a("s_add_u32 s36, s36, 16384")
    for g in range(3):
        for c in range(4):
            x = ((c >> 1) * 4 + (c & 1)) << 4
            a(f"v_xor_b32 v{8 + 5 * g + c}, {x}, v5")
            a(f"v_add_u32 v{8 + 5 * g + c}, s35, v{8 + 5 * g + c}")
            if g:
                a(f"v_add_u32 v{8 + 5 * g + c}, {65536 * g}, v{8 + 5 * g + c}")
        a(f"v_add_u32 v{8 + 5 * g + 4}, s36, v3")
        if g:
            a(f"v_add_u32 v{8 + 5 * g + 4}, {65536 * g}, v{8 + 5 * g + 4}")
    ACC = 64
    FB = 128
    for i in range(64):
        a(f"v_mov_b32 v{ACC + i}, 0")
    NU = NST * 4

    def reads(u):
        s, c = u // 4, u % 4
        slot = s % NSTG
        g, so = slot // 2, (slot % 2) * 32768
        f = FB + 16 * (u % (LA + 1))
        if c == 0:
            a("s_waitcnt lgkmcnt(0)")
            a("s_barrier")
            if s == 0:
                stamp(a, 3)
            if s == 8:
                stamp(a, 4)
        if noread:
            return
        a(f"ds_read_b128 v[{f}:{f + 3}], v{8 + 5 * g + c} offset:{so}")
        a(f"ds_read_b128 v[{f + 8}:{f + 11}], v{8 + 5 * g + 4} offset:{so + c * 1024}")
        a(f"ds_read_b128 v[{f + 4}:{f + 7}], v{8 + 5 * g + c} offset:{so + 4096}")
        a(f"ds_read_b128 v[{f + 12}:{f + 15}], v{8 + 5 * g + 4} offset:{so + 4096 + c * 1024}")

    for u in range(LA):
        reads(u)
    for u in range(NU):
        if u + LA < NU:
            reads(u + LA)
        nxt = min(u + LA, NU - 1)
        cnt = 0
        for uu in range(u + 1, nxt + 1):
            cnt += 4
        a(f"s_waitcnt lgkmcnt({min(cnt, 15)})")
        f = FB + 16 * (u % (LA + 1))
        for et in range(2):
            for tt in range(2):
                acc = ACC + (et * 2 + tt) * 16
                if not nomfma:
                    a(f"v_mfma_f32_32x32x16_bf16 v[{acc}:{acc + 15}], v[{f + 8 + 4 * et}:{f + 11 + 4 * et}], v[{f + 4 * tt}:{f + 4 * tt + 3}], v[{acc}:{acc + 15}]")
    stamp(a, 5)
    a("s_lshl_b32 s35, s30, 7")
    a("s_lshl_b32 s36, s33, 6")
    a("s_add_u32 s35, s35, s36")
    a("s_lshl_b32 s35, s35, 10")
    a("s_lshl_b32 s36, s31, 8")
    a("s_add_u32 s35, s35, s36")
    a("s_lshl_b32 s36, s34, 7")
    a("s_add_u32 s35, s35, s36")
    a("s_lshl_b32 s36, s29, 1")
    a("s_add_u32 s36, s36, s27")
    a("s_lshl_b32 s36, s36, 21")
    a("s_add_u32 s35, s35, s36")
    a(f"s_add_u32 s35, s35, {WS_P}")
    a("s_add_u32 s36, s35, 32768")
    a("v_lshrrev_b32 v6, 5, v2")
    a("v_lshlrev_b32 v6, 5, v6")
    a("v_lshl_add_u32 v6, v4, 10, v6")
    a("s_nop 4")
    for et in range(2):
        for tt in range(2):
            acc = ACC + (et * 2 + tt) * 16
            o = 24 + (et * 2 + tt) * 8
            for i in range(8):
                a(f"v_cvt_pk_bf16_f32 v{o + i}, v{acc + 2 * i}, v{acc + 2 * i + 1}")
            for hh in range(2):
                if not nostore:
                    a(f"buffer_store_dwordx4 v[{o + 4 * hh}:{o + 4 * hh + 3}], v6, s[16:19], s{35 + tt} offen offset:{et * 64 + hh * 16}")
    a.label(f"{name}_fin")
    stamp_flush(a, 2, 6, 8, 9)
    a.label(f"{name}_done")
    a("s_endpgm")
    nv = FB + 16 * (LA + 1)
    return kernel_desc(name, nv, 64, nv)


def emit_perm2(a, dst, src, t):
    a(f"v_and_b32 v{dst}, 3, v{src}")
    a(f"v_bfe_u32 v{t}, v{src}, 2, 2")
    a(f"v_lshl_or_b32 v{dst}, v{t}, 3, v{dst}")
    a(f"v_bfe_u32 v{t}, v{src}, 4, 1")
    a(f"v_lshl_or_b32 v{dst}, v{t}, 2, v{dst}")


def gen_k1b(a, name, prefetch=1, wt=0, nostats=0, nocs=0, PRO=6, pfpos=2, rot=1):
    NSTG, SLOT = 6, 24576
    STATS = NSTG * SLOT
    kernel_begin(a, name)
    a("s_cmp_ge_u32 s2, 256")
    a(f"s_cbranch_scc1 {name}_done")
    stamp(a, 0)
    a("s_load_dwordx2 s[4:5], s[0:1], 0")
    a("s_load_dwordx4 s[8:11], s[0:1], 24")
    a("s_load_dwordx2 s[6:7], s[0:1], 96")
    a("s_load_dwordx4 s[40:43], s[0:1], 8")
    a("s_and_b32 s3, s2, 7")
    a("s_lshr_b32 s28, s2, 3")
    a("s_and_b32 s29, s28, 3")
    a("s_lshl_b32 s30, s3, 2")
    a("s_add_u32 s30, s30, s29")
    a("s_lshr_b32 s31, s28, 2")
    a("v_lshrrev_b32 v1, 6, v0")
    a("v_and_b32 v2, 63, v0")
    a("s_nop 0")
    a("v_readfirstlane_b32 s32, v1")
    a("s_mov_b32 s53, 0xffff0000")
    a("s_cmp_lt_u32 s32, 4")
    a(f"s_cbranch_scc1 {name}_cons")
    a("s_sub_u32 s33, s32, 4")
    a("v_lshrrev_b32 v3, 3, v2")
    a("v_and_b32 v4, 7, v2")
    a("v_lshrrev_b32 v6, 4, v2")
    a("v_xor_b32 v6, v6, v4")
    a("v_xor_b32 v7, 4, v6")
    a("v_lshlrev_b32 v3, 10, v3")
    a("v_lshl_add_u32 v8, v6, 4, v3")
    a("v_lshl_add_u32 v7, v7, 4, v3")
    a(f"v_add_u32 v9, {8192 - 1024}, v7")
    a(f"v_add_u32 v10, {2 * (8192 - 1024)}, v8")
    a(f"v_add_u32 v11, {3 * (8192 - 1024)}, v7")
    a("s_lshl_b32 s35, s30, 6")
    a("s_lshl_b32 s34, s33, 4")
    a("s_add_u32 s35, s35, s34")
    a("s_lshl_b32 s35, s35, 10")
    a("s_and_b32 s36, s31, 3")
    a("s_lshl_b32 s36, s36, 7")
    a("s_lshl_b32 s34, s33, 5")
    a("s_add_u32 s36, s36, s34")
    a("s_lshl_b32 s36, s36, 10")
    a("s_lshl_b32 s37, s33, 11")
    a("s_lshl_b32 s38, s33, 12")
    a("s_add_u32 s38, s38, 8192")
    a("s_lshl_b32 s34, s29, 1")
    a("s_add_u32 s34, s34, s31")
    for kk in range(8):
        if rot:
            a(f"s_add_u32 s39, s34, {kk}")
            a("s_and_b32 s39, s39, 7")
            a(f"s_lshl_b32 s{54 + kk}, s39, 7")
        else:
            a(f"s_mov_b32 s{54 + kk}, {kk * 128}")
    a("s_waitcnt lgkmcnt(0)")
    stamp(a, 1)
    srd(a, 12, 4, 5, S * D * 2)
    a("s_cmp_ge_u32 s31, 4")
    a("s_cselect_b32 s8, s10, s8")
    a("s_cselect_b32 s9, s11, s9")
    srd(a, 16, 8, 9, D * D * 2)

    def load_stage(kk):
        slot = (kk % NSTG) * SLOT
        a(f"s_add_u32 m0, s37, {slot}")
        a(f"s_add_u32 s39, s35, s{54 + kk}")
        for i in range(2):
            a(f"buffer_load_dwordx4 v{8 + i}, s[12:15], s39 offen offset:{i * 1024} lds")
        a(f"s_add_u32 m0, s38, {slot}")
        a(f"s_add_u32 s39, s36, s{54 + kk}")
        for i in range(4):
            a(f"buffer_load_dwordx4 v{8 + i}, s[16:19], s39 offen offset:{i * 1024} lds")

    for kk in range(PRO):
        load_stage(kk)
    stamp(a, 2)
    a("v_lshrrev_b32 v12, 2, v2")
    a("v_lshlrev_b32 v12, 7, v12")
    a("v_and_b32 v13, 3, v2")
    a("v_lshl_add_u32 v12, v13, 5, v12")
    a("v_add_u32 v12, s37, v12")
    a(f"v_add_u32 v13, {3 * SLOT}, v12")
    a("v_mov_b32 v14, 0")
    a("v_mov_b32 v15, 0")
    a("v_mov_b32 v16, 0")
    a("v_mov_b32 v17, 0")
    issued = PRO
    npf = 0

    def emit_prefetch(vb):
        a("s_and_b32 s48, s3, 1")
        a("s_cmp_eq_u32 s48, 1")
        a("s_cselect_b32 s40, s42, s40")
        a("s_cselect_b32 s41, s43, s41")
        srd(a, 24, 40, 41, S * S * 2)
        a("s_lshr_b32 s48, s3, 2")
        a("s_lshl_b32 s48, s48, 10")
        a("s_lshl_b32 s49, s28, 5")
        a("s_add_u32 s48, s48, s49")
        a("s_and_b32 s49, s32, 3")
        a("s_lshl_b32 s49, s49, 3")
        a("s_add_u32 s48, s48, s49")
        a("s_lshl_b32 s48, s48, 12")
        a("s_bfe_u32 s49, s3, 0x10001")
        a("s_lshl_b32 s49, s49, 11")
        a("s_add_u32 s48, s48, s49")
        a(f"v_lshrrev_b32 v{vb}, 4, v2")
        a(f"v_lshlrev_b32 v{vb}, 12, v{vb}")
        a(f"v_and_b32 v{vb + 1}, 15, v2")
        a(f"v_lshl_add_u32 v{vb}, v{vb + 1}, 7, v{vb}")
        for i in range(2):
            a(f"s_add_u32 s49, s48, {i * 16384}")
            a(f"buffer_load_dword v{vb + 2 + i}, v{vb}, s[24:27], s49 offen")

    vq = [k for k in range(PRO) for _ in range(6)]
    for kk in range(8):
        idx = max(i for i, t in enumerate(vq) if t == kk)
        a(f"s_waitcnt vmcnt({len(vq) - 1 - idx})")
        vq = vq[idx + 1:]
        slot = kk % NSTG
        ar, so = (12, slot * SLOT) if slot < 3 else (13, (slot - 3) * SLOT)
        a(f"ds_read_b128 v[24:27], v{ar} offset:{so}")
        a(f"ds_read_b128 v[28:31], v{ar} offset:{so + 16}")
        a("s_barrier")
        a("s_waitcnt lgkmcnt(0)")
        n_new = 0
        while issued < 8 and issued - NSTG < kk and n_new < 2:
            load_stage(issued)
            vq += [issued] * 6
            issued += 1
            n_new += 1
        if prefetch and pfpos == kk:
            emit_prefetch(40)
            vq += ["pf"] * 2
        if kk == 0:
            a("v_lshlrev_b32 v18, 16, v24")
            a("s_nop 1")
            a(f"v_mov_b32_dpp v18, v18 quad_perm:[0,0,0,0] {DPP}")
        for r in range(0 if nostats else 8):
            t = 32 + 2 * (r & 3)
            a(f"v_lshlrev_b32 v{t}, 16, v{24 + r}")
            a(f"v_and_b32 v{t + 1}, s53, v{24 + r}")
            a(f"v_sub_f32 v{t}, v{t}, v18")
            a(f"v_sub_f32 v{t + 1}, v{t + 1}, v18")
            a(f"v_add_f32 v14, v14, v{t}")
            a(f"v_add_f32 v15, v15, v{t + 1}")
            a(f"v_fmac_f32 v16, v{t}, v{t}")
            a(f"v_fmac_f32 v17, v{t + 1}, v{t + 1}")
    a("v_add_f32 v14, v14, v15")
    a("v_add_f32 v16, v16, v17")
    for qp in ("[1,0,3,2]", "[2,3,0,1]"):
        a("s_nop 1")
        a(f"v_add_f32_dpp v14, v14, v14 quad_perm:{qp} {DPP}")
        a(f"v_add_f32_dpp v16, v16, v16 quad_perm:{qp} {DPP}")
    a("v_mul_f32 v14, 0x3b000000, v14")
    a("v_mul_f32 v16, 0x3b000000, v16")
    a("v_fma_f32 v16, -v14, v14, v16")
    a("v_max_f32 v16, 0, v16")
    a("v_add_f32 v14, v14, v18")
    a("v_cvt_pk_bf16_f32 v14, v14, v14")
    a("v_lshlrev_b32 v14, 16, v14")
    a("v_cvt_pk_bf16_f32 v16, v16, v16")
    a("v_lshlrev_b32 v16, 16, v16")
    a("v_add_f32 v16, 0x3727c5ac, v16")
    a("v_cvt_pk_bf16_f32 v16, v16, v16")
    a("v_lshlrev_b32 v16, 16, v16")
    a("v_sqrt_f32 v16, v16")
    a("s_nop 0")
    a("v_cvt_pk_bf16_f32 v16, v16, v16")
    a("v_lshlrev_b32 v16, 16, v16")
    a("v_rcp_f32 v16, v16")
    a("v_lshrrev_b32 v19, 2, v2")
    a("v_lshlrev_b32 v19, 2, v19")
    a("s_lshl_b32 s34, s33, 6")
    a(f"s_add_u32 s34, s34, {STATS}")
    a("v_add_u32 v19, s34, v19")
    a("ds_write_b32 v19, v14")
    a("ds_write_b32 v19, v16 offset:256")
    a("s_waitcnt lgkmcnt(0)")
    stamp(a, 3)
    a("s_barrier")
    a(f"s_branch {name}_fin")
    a.label(f"{name}_cons")
    a("v_and_b32 v9, 31, v2")
    a("v_lshrrev_b32 v5, 5, v2")
    emit_perm32(a, 10, 9, 11)
    a("v_bfe_u32 v11, v10, 1, 3")
    a("v_xor_b32 v11, v11, v5")
    a("v_lshlrev_b32 v11, 4, v11")
    a("v_lshl_add_u32 v11, v10, 7, v11")
    emit_perm2(a, 10, 9, 12)
    a("v_bfe_u32 v12, v10, 1, 3")
    a("v_xor_b32 v12, v12, v5")
    a("v_lshlrev_b32 v12, 4, v12")
    a("v_lshl_add_u32 v12, v10, 7, v12")
    a("s_lshl_b32 s34, s32, 12")
    a("s_add_u32 s34, s34, 8192")
    a("v_add_u32 v12, s34, v12")
    for g in range(3):
        for c in range(4):
            a(f"v_xor_b32 v{16 + 8 * g + c}, {c * 32}, v11")
            a(f"v_xor_b32 v{20 + 8 * g + c}, {c * 32}, v12")
            if g:
                a(f"v_add_u32 v{16 + 8 * g + c}, {2 * SLOT * g}, v{16 + 8 * g + c}")
                a(f"v_add_u32 v{20 + 8 * g + c}, {2 * SLOT * g}, v{20 + 8 * g + c}")
    ACC = 64
    FR = [96, 108, 120]
    for i in range(32):
        a(f"v_mov_b32 v{ACC + i}, 0")
    a("v_mov_b32 v40, 0")
    a("v_mov_b32 v41, 0")
    a("s_mov_b32 s50, 0x3f803f80")
    a("s_waitcnt lgkmcnt(0)")
    stamp(a, 1)
    srd(a, 20, 6, 7, 4 << 20)
    if prefetch and pfpos == -1:
        emit_prefetch(150)
    units = [(kk, c) for kk in range(8) for c in range(4)]

    def reads(n):
        kk, c = units[n]
        f = FR[n % 3]
        slot = kk % NSTG
        g, so = slot // 2, (slot % 2) * SLOT
        if c == 0:
            a("s_waitcnt lgkmcnt(0)")
            a("s_barrier")
            if kk == 0:
                stamp(a, 2)
        a(f"ds_read_b128 v[{f}:{f + 3}], v{20 + 8 * g + c} offset:{so}")
        a(f"ds_read_b128 v[{f + 4}:{f + 7}], v{16 + 8 * g + c} offset:{so}")
        a(f"ds_read_b128 v[{f + 8}:{f + 11}], v{16 + 8 * g + c} offset:{so + 4096}")

    reads(0)
    reads(1)
    for n in range(len(units)):
        if n + 2 < len(units):
            reads(n + 2)
            a("s_waitcnt lgkmcnt(6)")
        elif n + 1 < len(units):
            a("s_waitcnt lgkmcnt(3)")
        else:
            a("s_waitcnt lgkmcnt(0)")
        f = FR[n % 3]
        a(f"v_mfma_f32_32x32x16_bf16 v[{ACC}:{ACC + 15}], v[{f + 4}:{f + 7}], v[{f}:{f + 3}], v[{ACC}:{ACC + 15}]")
        if not nocs:
            a(f"v_dot2_f32_bf16 v40, v{f}, s50, v40")
        if not nocs:
            a(f"v_dot2_f32_bf16 v41, v{f + 1}, s50, v41")
        a(f"v_mfma_f32_32x32x16_bf16 v[{ACC + 16}:{ACC + 31}], v[{f + 8}:{f + 11}], v[{f}:{f + 3}], v[{ACC + 16}:{ACC + 31}]")
        if not nocs:
            a(f"v_dot2_f32_bf16 v40, v{f + 2}, s50, v40")
        if not nocs:
            a(f"v_dot2_f32_bf16 v41, v{f + 3}, s50, v41")
    stamp(a, 3)
    a("s_barrier")
    stamp(a, 4)
    a("v_lshlrev_b32 v42, 6, v5")
    a(f"v_add_u32 v42, {STATS}, v42")
    for sh in range(2):
        for q in range(4):
            a(f"ds_read_b128 v[{96 + 16 * sh + 4 * q}:{99 + 16 * sh + 4 * q}], v42 offset:{128 * sh + 16 * q}")
            a(f"ds_read_b128 v[{128 + 16 * sh + 4 * q}:{131 + 16 * sh + 4 * q}], v42 offset:{256 + 128 * sh + 16 * q}")
    a("v_add_f32 v40, v40, v41")
    a("v_mov_b32 v41, v40")
    a("s_nop 1")
    a("v_permlane32_swap_b32 v40, v41")
    a("s_nop 1")
    a("v_add_f32 v40, v40, v41")
    a("s_lshl_b32 s34, s31, 2")
    a("s_add_u32 s34, s34, s32")
    a("s_lshl_b32 s34, s34, 7")
    a("s_lshl_b32 s33, s30, 1")
    a("s_add_u32 s34, s34, s33")
    a("s_lshl_b32 s34, s34, 10")
    a("v_bfe_u32 v43, v2, 4, 1")
    a("v_lshlrev_b32 v43, 16, v43")
    a("v_lshl_add_u32 v43, v5, 9, v43")
    a("v_and_b32 v44, 15, v2")
    a("v_lshl_add_u32 v43, v44, 4, v43")
    a("s_waitcnt lgkmcnt(0)")
    for sh in range(2):
        for i in range(16):
            r = ACC + 16 * sh + i
            a(f"v_fma_f32 v{r}, -v{96 + 16 * sh + i}, v40, v{r}")
            a(f"v_mul_f32 v{r}, v{r}, v{128 + 16 * sh + i}")
        for i in range(8):
            a(f"v_cvt_pk_bf16_f32 v{48 + 8 * sh + i}, v{ACC + 16 * sh + 2 * i}, v{ACC + 16 * sh + 2 * i + 1}")
        for u in range(2):
            r = 48 + 8 * sh + 4 * u
            a(f"buffer_store_dwordx4 v[{r}:{r + 3}], v43, s[20:23], s34 offen offset:{sh * 1024 + u * 256}" + (" sc0 sc1" if wt else ""))
    stamp(a, 5)
    a.label(f"{name}_fin")
    stamp_flush(a, 1, 6, 6, 7)
    a.label(f"{name}_done")
    a("s_endpgm")
    return kernel_desc(name, 160, 64, 160)


def emit_wtouch(a, s_sel, vt, vd):
    a(f"s_cmp_eq_u32 {s_sel}, 1")
    a("s_cselect_b32 s56, s58, s56")
    a("s_cselect_b32 s57, s59, s57")
    a(f"s_cmp_eq_u32 {s_sel}, 2")
    a("s_cselect_b32 s56, s60, s56")
    a("s_cselect_b32 s57, s61, s57")
    a("s_mul_i32 s62, s2, 7168")
    a("s_add_u32 s63, s62, 7168")
    a(f"s_cmp_eq_u32 {s_sel}, 3")
    a("s_cselect_b32 s63, 0, s63")
    a("s_mov_b32 s20, s56")
    a("s_and_b32 s21, s57, 0xffff")
    a("s_mov_b32 s22, s63")
    a("s_mov_b32 s23, 0x00020000")
    a(f"v_lshlrev_b32 v{vt}, 7, v2")
    a(f"buffer_load_dword v{vd}, v{vt}, s[20:23], s62 offen")


def emit_wtouch2(a):
    a("s_cmp_ge_u32 s33, 2")
    a("s_cselect_b32 s56, s66, s64")
    a("s_cselect_b32 s57, s67, s65")
    a("s_cmp_lt_u32 s28, 28")
    a(f"s_cselect_b32 s62, {D * F * 2}, 0")
    a("s_mov_b32 s20, s56")
    a("s_and_b32 s21, s57, 0xffff")
    a("s_mov_b32 s22, s62")
    a("s_mov_b32 s23, 0x00020000")
    a("s_mov_b32 s24, s68")
    a("s_and_b32 s25, s69, 0xffff")
    a("s_mov_b32 s26, s62")
    a("s_mov_b32 s27, 0x00020000")
    a("s_lshr_b32 s58, s28, 2")
    a("s_lshl_b32 s58, s58, 3")
    a("s_add_u32 s58, s58, s3")
    a("s_and_b32 s59, s28, 3")
    a("s_lshl_b32 s62, s59, 1")
    a("s_and_b32 s63, s33, 1")
    a("s_add_u32 s62, s62, s63")
    a("s_mul_i32 s62, s62, 229376")
    a("s_lshr_b32 s63, s58, 1")
    a("s_lshl_b32 s63, s63, 7")
    a("s_add_u32 s62, s62, s63")
    a("s_mov_b32 s63, 3584")
    a("v_mul_lo_u32 v13, v2, s63")
    a("buffer_load_dword v15, v13, s[20:23], s62 offen")
    a("s_lshl_b32 s62, s58, 15")
    a("s_lshl_b32 s63, s59, 13")
    a("s_add_u32 s62, s62, s63")
    a("s_lshl_b32 s63, s33, 11")
    a("s_add_u32 s62, s62, s63")
    a("v_and_b32 v13, 15, v2")
    a("v_lshlrev_b32 v13, 7, v13")
    a("buffer_load_dword v16, v13, s[24:27], s62 offen")


def gen_k2c(a, name, NSTG=5, LA=1, wt=0, PRO=5, rot=1, BARPOS=1, RSTEP=1, wpf=1, wpf2=0, pol=0, fuse3=0, etouch=0, swap=1, cw=-1, fused_in=0):
    SOFF = 3 if fused_in else 0
    POL = {0: '', 1: ' sc1', 2: ' nt', 3: ' sc0'}[pol]
    if not fused_in:
        kernel_begin(a, name)
        a("s_cmp_ge_u32 s2, 256")
        a(f"s_cbranch_scc1 {name}_done")
    stamp(a, 0)
    if fused_in:
        a("s_load_dwordx2 s[10:11], s[0:1], 88")
    a("s_load_dwordx4 s[4:7], s[0:1], 8")
    a("s_load_dwordx2 s[8:9], s[0:1], 96")
    a("s_load_dwordx4 s[56:59], s[0:1], 56")
    a("s_load_dwordx2 s[60:61], s[0:1], 72")
    a("s_load_dwordx4 s[64:67], s[0:1], 56")
    a("s_load_dwordx2 s[68:69], s[0:1], 72")
    a("s_and_b32 s3, s2, 7")
    a("s_lshr_b32 s28, s2, 3")
    a("s_and_b32 s29, s3, 1")
    a("s_bfe_u32 s27, s3, 0x10001")
    a("s_lshr_b32 s30, s3, 2")
    a("s_lshl_b32 s30, s30, 3")
    a("s_and_b32 s31, s28, 7")
    a("s_add_u32 s30, s30, s31")
    a("s_lshr_b32 s31, s28, 3")
    if fused_in:
        a("v_mbcnt_lo_u32_b32 v2, -1, 0")
        a("v_mbcnt_hi_u32_b32 v2, -1, v2")
    else:
        a("v_lshrrev_b32 v1, 6, v0")
        a("v_and_b32 v2, 63, v0")
        a("s_nop 0")
        a("v_readfirstlane_b32 s32, v1")
    a("v_lshlrev_b32 v3, 4, v2")
    if swap and not fused_in:
        a("s_xor_b32 s32, s32, 4")
    a("s_cmp_lt_u32 s32, 4")
    a(f"s_cbranch_scc1 {name}_cons")
    a("s_sub_u32 s33, s32, 4")
    a("v_lshrrev_b32 v4, 3, v2")
    a("v_and_b32 v5, 7, v2")
    a("v_lshrrev_b32 v6, 4, v2")
    a("v_xor_b32 v6, v6, v5")
    a("v_xor_b32 v7, 4, v6")
    a("v_lshlrev_b32 v4, 12, v4")
    a("v_lshl_add_u32 v6, v6, 4, v4")
    a("v_lshl_add_u32 v7, v7, 4, v4")
    a("v_mov_b32 v8, v6")
    a(f"v_add_u32 v9, {32768 - 1024}, v7")
    a(f"v_add_u32 v10, {2 * (32768 - 1024)}, v6")
    a(f"v_add_u32 v11, {3 * (32768 - 1024)}, v7")
    a(f"v_add_u32 v12, {65536 - 2048}, v3")
    a("s_lshl_b32 s35, s30, 19")
    a("s_lshl_b32 s34, s33, 17")
    a("s_add_u32 s35, s35, s34")
    a("s_lshl_b32 s34, s27, 11")
    a("s_add_u32 s35, s35, s34")
    a("s_lshl_b32 s36, s29, 5")
    a("s_lshl_b32 s34, s31, 3")
    a("s_add_u32 s36, s36, s34")
    a("s_lshl_b32 s34, s33, 1")
    a("s_add_u32 s36, s36, s34")
    a("s_lshl_b32 s36, s36, 6")
    a("s_lshl_b32 s34, s27, 5")
    a("s_add_u32 s36, s36, s34")
    a("s_lshl_b32 s36, s36, 10")
    a("s_lshl_b32 s37, s33, 12")
    if rot >= 2:
        a("s_lshl_b32 s52, s31, 1")
        a("s_add_u32 s52, s52, s30")
        if rot == 3:
            a("s_add_u32 s52, s31, s30")
    for j in range(4):
        if rot:
            a(f"s_add_u32 s34, s31, {j}")
            a("s_and_b32 s34, s34, 3")
        else:
            a(f"s_mov_b32 s34, {j}")
        a("s_lshl_b32 s38, s34, 7")
        a(f"s_add_u32 s{44 + j}, s35, s38")
        a("s_lshl_b32 s38, s34, 11")
        a(f"s_add_u32 s{48 + j}, s36, s38")
    a("s_waitcnt lgkmcnt(0)")
    stamp(a, 1)
    a("s_cmp_eq_u32 s29, 1")
    a("s_cselect_b32 s4, s6, s4")
    a("s_cselect_b32 s5, s7, s5")
    srd(a, 12, 4, 5, S * S * 2)
    srd(a, 16, 8, 9, 14 << 20)

    def load_stage(s, part=3):
        slot = ((s + SOFF) % NSTG) * 32768
        if part & 1:
            load_c(s, slot)
        if part & 2:
            load_e(s, slot)

    def load_c(s, slot):
        a(f"s_add_u32 m0, s37, {slot}")
        if rot >= 2:
            G8 = {2: 8, 3: 4, 4: 16}[rot]
            a(f"s_add_u32 s53, s52, {s}")
            a(f"s_and_b32 s53, s53, {G8 - 1}")
            a(f"s_add_u32 s53, s53, {s & ~(G8 - 1)}")
            a("s_lshl_b32 s54, s53, 7")
            a("s_add_u32 s38, s35, s54")
        else:
            a(f"s_add_u32 s38, s{44 + (s & 3)}, {(s & ~3) * 128}")
        for i in range(4):
            a(f"buffer_load_dwordx4 v{8 + i}, s[12:15], s38 offen offset:{i * 1024}{POL} lds")

    def load_e(s, slot):
        a(f"s_add_u32 m0, s37, {slot + 16384}")
        if rot >= 2:
            a("s_lshl_b32 s54, s53, 11")
            a("s_add_u32 s39, s36, s54")
        else:
            a(f"s_add_u32 s39, s{48 + (s & 3)}, {(s & ~3) * 2048}")
        for c in range(4):
            a(f"buffer_load_dwordx4 v{3 if c < 2 else 12}, s[16:19], s39 offen offset:{c * 1024}{' sc1' if fused_in else POL} lds")

    NST = 16
    if fused_in:
        PRO = 4
        for s in range(PRO):
            load_stage(s, 1)
        srd(a, 20, 10, 11, 256)
        a("s_lshl_b32 s52, s29, 1")
        a("s_add_u32 s52, s52, s27")
        a("s_lshl_b32 s52, s52, 2")
        a("s_add_u32 s52, s52, s31")
        a("s_lshl_b32 s52, s52, 10")
        a(f"s_add_u32 s52, s52, {WS_FLAG1}")
        a("v_bfe_u32 v13, v2, 2, 3")
        a("v_lshlrev_b32 v13, 7, v13")
        a("v_and_b32 v14, 3, v2")
        a("v_lshl_add_u32 v13, v14, 2, v13")
        a("v_mov_b32 v14, 0")
        a("s_mov_b32 s55, 0x40000")
        a.label(f"{name}_np")
        a("buffer_load_dword v15, v14, s[20:23], 0 offen sc1")
        a("v_and_b32 v17, 3, v2")
        a("v_lshlrev_b32 v17, 12, v17")
        a(f"v_add_u32 v17, {3 * 32768 + 16384}, v17")
        a(f"s_add_u32 s54, s37, {3 * 32768 + 16384}")
        a("v_mov_b32 v18, s54")
        a("s_waitcnt vmcnt(0)")
        a("v_readfirstlane_b32 s53, v15")
        a("s_cmp_lg_u32 s53, 0")
        a(f"s_cbranch_scc1 {name}_nd")
        a("s_sub_u32 s55, s55, 1")
        a(f"s_cbranch_scc0 {name}_np")
        a("s_mov_b32 s55, 0")
        a.label(f"{name}_nd")
        a("s_cmp_lg_u32 s33, 0")
        a(f"s_cbranch_scc1 {name}_lp")
        a.label(f"{name}_ep")
        a("buffer_load_dword v16, v13, s[16:19], s52 offen sc1")
        a("s_waitcnt vmcnt(0)")
        a("v_cmp_ne_u32 vcc, v15, v16")
        a("s_or_b32 s62, vcc_lo, vcc_hi")
        a(f"s_cbranch_scc0 {name}_eo")
        a(f"s_sleep {ESLEEP}")
        a("s_sub_u32 s55, s55, 1")
        a(f"s_cbranch_scc0 {name}_ep")
        a.label(f"{name}_eo")
        a("ds_write_b32 v17, v15")
        a("s_waitcnt lgkmcnt(0)")
        a(f"s_branch {name}_ed")
        a.label(f"{name}_lp")
        a("ds_read_b32 v16, v18")
        a("s_waitcnt lgkmcnt(0)")
        a("v_readfirstlane_b32 s62, v16")
        a("s_cmp_eq_u32 s62, s53")
        a(f"s_cbranch_scc1 {name}_ed")
        a("s_sleep 1")
        a("s_sub_u32 s55, s55, 1")
        a(f"s_cbranch_scc0 {name}_lp")
        a.label(f"{name}_ed")
        for s in range(PRO):
            load_stage(s, 2)
        vq = [st for st in range(PRO) for _ in range(4)]
    else:
        for s in range(PRO):
            load_stage(s)
        vq = [st for st in range(PRO) for _ in range(8)]
    stamp(a, 2)
    issued = PRO
    for s in range(NST):
        idx = max(k for k, t in enumerate(vq) if t == s)
        a(f"s_waitcnt vmcnt({len(vq) - 1 - idx})")
        vq = vq[idx + 1:]
        a("s_barrier")
        n_new = 0
        while issued < NST and issued - NSTG < s and n_new < 2:
            load_stage(issued)
            vq += [issued] * 8
            issued += 1
            n_new += 1
            if issued == wpf:
                emit_wtouch(a, "s33", 13, 14)
                vq.append("w")
            if issued == wpf2:
                emit_wtouch2(a)
                vq += ["w", "w"]
    stamp(a, 5)
    a(f"s_branch {name}_fin")
    a.label(f"{name}_cons")
    a("s_and_b32 s33, s32, 1")
    a("s_lshr_b32 s34, s32, 1")
    a("v_and_b32 v4, 15, v2")
    a("v_lshrrev_b32 v5, 1, v4")
    a("v_lshrrev_b32 v6, 4, v2")
    a("v_xor_b32 v5, v5, v6")
    a("v_lshlrev_b32 v5, 4, v5")
    a("v_lshl_add_u32 v5, v4, 7, v5")
    a("s_lshl_b32 s35, s33, 13")
    a("s_lshl_b32 s36, s34, 13")
    a("s_add_u32 s36, s36, 16384")
    for g in range(3):
        a(f"v_add_u32 v{8 + 3 * g}, s35, v5")
        a(f"v_xor_b32 v{9 + 3 * g}, 64, v5")
        a(f"v_add_u32 v{9 + 3 * g}, s35, v{9 + 3 * g}")
        a(f"v_add_u32 v{10 + 3 * g}, s36, v3")
        if g:
            for r in range(3):
                a(f"v_add_u32 v{8 + 3 * g + r}, {65536 * g}, v{8 + 3 * g + r}")
    ACC = 64
    FB = 128
    for i in range(64):
        a(f"v_mov_b32 v{ACC + i}, 0")
    a("s_waitcnt lgkmcnt(0)")
    stamp(a, 1)
    srd(a, 16, 8, 9, 12 << 20)
    if etouch:
        a("s_lshl_b32 s38, s29, 5")
        a("s_add_u32 s38, s38, s28")
        a("s_lshl_b32 s38, s38, 6")
        a("s_lshl_b32 s39, s27, 5")
        a("s_add_u32 s38, s38, s39")
        a("s_lshl_b32 s38, s38, 10")
        a("s_lshl_b32 s39, s32, 13")
        a("s_add_u32 s38, s38, s39")
        a("v_lshlrev_b32 v20, 7, v2")
        a("buffer_load_dword v21, v20, s[16:19], s38 offen")
    NU = NST * 2

    def read_list(u):
        s, ks = u // 2, u % 2
        slot = (s + SOFF) % NSTG
        g, so = slot // 2, (slot % 2) * 32768
        f = FB + 32 * (u % 2)
        L = []
        for i in range(4):
            L.append(f"ds_read_b128 v[{f + 16 + 4 * i}:{f + 19 + 4 * i}], v{10 + 3 * g} offset:{so + i * 2048 + ks * 1024}")
            L.append(f"ds_read_b128 v[{f + 4 * i}:{f + 3 + 4 * i}], v{8 + 3 * g + ks} offset:{so + i * 2048}")
        return L

    if cw == 100:
        emit_wtouch(a, "s32", 20, 21)
    a("s_barrier")
    stamp(a, 3)
    for r in read_list(0):
        a(r)
    for u in range(NU):
        a("s_waitcnt lgkmcnt(0)")
        f = FB + 32 * (u % 2)
        nxt = read_list(u + 1) if u + 1 < NU else []
        n = 0
        for T in range(4):
            for tt in range(4):
                acc = ACC + (T * 4 + tt) * 4
                a(f"v_mfma_f32_16x16x32_bf16 v[{acc}:{acc + 3}], v[{f + 16 + 4 * T}:{f + 19 + 4 * T}], v[{f + 4 * tt}:{f + 4 * tt + 3}], v[{acc}:{acc + 3}]")
                n += 1
                if n == BARPOS and nxt and (u + 1) % 2 == 0:
                    a("s_barrier")
                    if (u + 1) // 2 == 8:
                        stamp(a, 4)
                if n >= BARPOS and nxt and (n - BARPOS) % RSTEP == 0:
                    a(nxt.pop(0))
                if u == cw and n == 10:
                    emit_wtouch(a, "s32", 20, 21)
        for r in nxt:
            a(r)
    stamp(a, 5)
    a("s_lshl_b32 s35, s30, 7")
    a("s_lshl_b32 s36, s33, 6")
    a("s_add_u32 s35, s35, s36")
    a("s_lshl_b32 s35, s35, 10")
    a("s_lshl_b32 s36, s31, 8")
    a("s_add_u32 s35, s35, s36")
    a("s_lshl_b32 s36, s34, 7")
    a("s_add_u32 s35, s35, s36")
    a("s_lshl_b32 s36, s29, 1")
    a("s_add_u32 s36, s36, s27")
    a("s_lshl_b32 s36, s36, 21")
    a("s_add_u32 s35, s35, s36")
    a(f"s_add_u32 s35, s35, {WS_P}")
    a("v_lshlrev_b32 v6, 4, v6")
    a("v_lshl_add_u32 v6, v4, 10, v6")
    for tt in range(4):
        a(f"s_add_u32 s{40 + tt}, s35, {tt * 16384}")
    for tt in range(4):
        for Th in range(2):
            o = 24 + (tt * 2 + Th) * 4
            for Tl in range(2):
                acc = ACC + ((Th * 2 + Tl) * 4 + tt) * 4
                a(f"v_cvt_pk_bf16_f32 v{o + 2 * Tl}, v{acc}, v{acc + 1}")
                a(f"v_cvt_pk_bf16_f32 v{o + 2 * Tl + 1}, v{acc + 2}, v{acc + 3}")
            a(f"buffer_store_dwordx4 v[{o}:{o + 3}], v6, s[16:19], s{40 + tt} offen offset:{Th * 64}" + (" sc0 sc1" if wt else ""))
    if fuse3:
        a("s_waitcnt vmcnt(0)")
    a.label(f"{name}_fin")
    stamp_flush(a, 2, 6, 8, 9)
    nv = FB + 64
    if fuse3:
        a("s_and_b32 s3, s2, 7")
        a("s_and_b32 s29, s3, 1")
        a("s_bfe_u32 s27, s3, 0x10001")
        a("s_lshl_b32 s62, s29, 1")
        a("s_add_u32 s62, s62, s27")
        a("s_lshl_b32 s62, s62, 2")
        a("s_add_u32 s62, s62, s31")
        a("s_lshl_b32 s63, s30, 4")
        a("s_add_u32 s63, s63, s62")
        a("s_barrier")
        gen_kt(a, name + "t", fused=1)
        a.label(f"{name}_done")
        a("s_endpgm")
        return kernel_desc(name, nv, 72, nv)
    if fused_in:
        return None
    a.label(f"{name}_done")
    a("s_endpgm")
    return kernel_desc(name, nv, 72, nv)


def gen_k1c(a, name, wt=1, PRO=3, pf=1, pace=1, pfw=1, pfxd=1):
    NSTG, SLOT, NST = 4, 32768, 8
    STATS = NSTG * SLOT
    kernel_begin(a, name)
    a("s_cmp_ge_u32 s2, 256")
    a(f"s_cbranch_scc1 {name}_done")
    stamp(a, 0)
    a("s_load_dwordx2 s[4:5], s[0:1], 0")
    a("s_load_dwordx4 s[8:11], s[0:1], 24")
    a("s_load_dwordx2 s[6:7], s[0:1], 96")
    a("s_load_dwordx4 s[40:43], s[0:1], 8")
    a("s_load_dwordx4 s[44:47], s[0:1], 56")
    a("s_load_dwordx2 s[48:49], s[0:1], 72")
    a("s_and_b32 s3, s2, 7")
    a("s_lshr_b32 s28, s2, 4")
    a("s_and_b32 s29, s28, 1")
    a("s_lshl_b32 s30, s3, 1")
    a("s_add_u32 s30, s30, s29")
    a("s_lshr_b32 s31, s28, 1")
    a("v_lshrrev_b32 v1, 6, v0")
    a("v_and_b32 v2, 63, v0")
    a("s_nop 0")
    a("v_readfirstlane_b32 s32, v1")
    a("s_mov_b32 s53, 0xffff0000")
    a("s_bitcmp1_b32 s2, 3")
    a(f"s_cbranch_scc1 {name}_pf")
    a("s_cmp_lt_u32 s32, 4")
    a(f"s_cbranch_scc1 {name}_cons")
    a("s_cmp_ge_u32 s32, 8")
    a(f"s_cbranch_scc1 {name}_stat")
    a("s_sub_u32 s33, s32, 4")
    a("v_lshrrev_b32 v3, 3, v2")
    a("v_and_b32 v4, 7, v2")
    a("v_bfe_u32 v5, v2, 4, 1")
    a("v_xor_b32 v4, v4, v5")
    a("v_lshlrev_b32 v3, 10, v3")
    for i in range(4):
        g0g1 = (i & 1) ^ (i >> 1)
        a(f"v_xor_b32 v{8 + i}, {(2 * i) ^ g0g1}, v4")
        a(f"v_lshl_add_u32 v{8 + i}, v{8 + i}, 4, v3")
        if i:
            a(f"v_add_u32 v{8 + i}, {i * (8192 - 1024)}, v{8 + i}")
    a("s_lshl_b32 s34, s33, 5")
    a("s_lshl_b32 s35, s30, 7")
    a("s_add_u32 s35, s35, s34")
    a("s_lshl_b32 s35, s35, 10")
    a("s_and_b32 s36, s31, 3")
    a("s_lshl_b32 s36, s36, 7")
    a("s_add_u32 s36, s36, s34")
    a("s_lshl_b32 s36, s36, 10")
    a("s_lshl_b32 s37, s33, 12")
    a("v_lshlrev_b32 v12, 6, v2")
    a("v_add_u32 v12, s37, v12")
    a("v_add_u32 v12, 16384, v12")
    a(f"v_add_u32 v13, {2 * SLOT}, v12")
    a("v_mov_b32 v14, 0")
    a("v_mov_b32 v15, 0")
    a("s_mov_b32 s50, 0x3f803f80")
    a("s_waitcnt lgkmcnt(0)")
    stamp(a, 1)
    srd(a, 12, 4, 5, S * D * 2)
    a("s_cmp_ge_u32 s31, 4")
    a("s_cselect_b32 s8, s10, s8")
    a("s_cselect_b32 s9, s11, s9")
    srd(a, 16, 8, 9, D * D * 2)

    def load_stage(kk):
        slot = (kk % NSTG) * SLOT
        a(f"s_add_u32 m0, s37, {slot}")
        a(f"s_add_u32 s39, s35, {kk * 128}")
        for i in range(4):
            a(f"buffer_load_dwordx4 v{8 + i}, s[12:15], s39 offen offset:{i * 1024} lds")
        a(f"s_add_u32 m0, s37, {slot + 16384}")
        a(f"s_add_u32 s39, s36, {kk * 128}")
        for i in range(4):
            a(f"buffer_load_dwordx4 v{8 + i}, s[16:19], s39 offen offset:{i * 1024} lds")

    for kk in range(PRO):
        load_stage(kk)
    stamp(a, 2)
    issued = PRO
    for kk in range(NST):
        a(f"s_waitcnt vmcnt({(issued - 1 - kk) * 8})")
        slot = kk % NSTG
        ar, so = (12, slot * SLOT) if slot < 2 else (13, (slot - 2) * SLOT)
        for q in range(4):
            a(f"ds_read_b128 v[{16 + 4 * q}:{19 + 4 * q}], v{ar} offset:{so + 16 * q}")
        a("s_barrier")
        n_new = 0
        while issued < NST and issued - NSTG < kk and n_new < 2:
            load_stage(issued)
            issued += 1
            n_new += 1
        a("s_waitcnt lgkmcnt(0)")
        for r in range(16):
            a(f"v_dot2_f32_bf16 v{14 + (r & 1)}, v{16 + r}, s50, v{14 + (r & 1)}")
    a("s_nop 2")
    a("v_add_f32 v14, v14, v15")
    a("s_nop 1")
    a(f"v_add_f32_dpp v14, v14, v14 quad_perm:[1,0,3,2] {DPP}")
    a("v_lshrrev_b32 v19, 1, v2")
    a("v_lshlrev_b32 v19, 2, v19")
    a("s_lshl_b32 s34, s33, 7")
    a(f"s_add_u32 s34, s34, {STATS + 1024}")
    a("v_add_u32 v19, s34, v19")
    a("ds_write_b32 v19, v14")
    a("s_waitcnt lgkmcnt(0)")
    stamp(a, 3)
    a("s_barrier")
    a(f"s_branch {name}_fin")
    a.label(f"{name}_stat")
    a("s_sub_u32 s33, s32, 8")
    a("s_lshl_b32 s37, s33, 12")
    a("v_lshlrev_b32 v12, 6, v2")
    a("v_add_u32 v12, s37, v12")
    a(f"v_add_u32 v13, {2 * SLOT}, v12")
    for r in range(4):
        a(f"v_mov_b32 v{80 + r}, 0")
    a("s_waitcnt lgkmcnt(0)")
    stamp(a, 1)

    def stat_valu(base):
        for r in range(16):
            t = 72 + 2 * (r & 3)
            a(f"v_lshlrev_b32 v{t}, 16, v{base + r}")
            a(f"v_and_b32 v{t + 1}, s53, v{base + r}")
            a(f"v_sub_f32 v{t}, v{t}, v18")
            a(f"v_sub_f32 v{t + 1}, v{t + 1}, v18")
            a(f"v_add_f32 v80, v80, v{t}")
            a(f"v_add_f32 v81, v81, v{t + 1}")
            a(f"v_fmac_f32 v82, v{t}, v{t}")
            a(f"v_fmac_f32 v83, v{t + 1}, v{t + 1}")

    for kk in range(NST):
        a("s_barrier")
        slot = kk % NSTG
        ar, so = (12, slot * SLOT) if slot < 2 else (13, (slot - 2) * SLOT)
        base = 32 + 16 * (kk & 1)
        for q in range(4):
            a(f"ds_read_b128 v[{base + 4 * q}:{base + 3 + 4 * q}], v{ar} offset:{so + 16 * q}")
        if kk >= 1:
            stat_valu(32 + 16 * ((kk - 1) & 1))
        a("s_waitcnt lgkmcnt(0)")
        if kk == 0:
            a("v_lshlrev_b32 v18, 16, v32")
            a("s_nop 1")
            a(f"v_mov_b32_dpp v18, v18 quad_perm:[0,0,2,2] {DPP}")
    stat_valu(32 + 16 * ((NST - 1) & 1))
    a("v_add_f32 v14, v80, v81")
    a("v_add_f32 v16, v82, v83")
    a("s_nop 1")
    a(f"v_add_f32_dpp v14, v14, v14 quad_perm:[1,0,3,2] {DPP}")
    a(f"v_add_f32_dpp v16, v16, v16 quad_perm:[1,0,3,2] {DPP}")
    a("v_mul_f32 v14, 0x3b000000, v14")
    a("v_mul_f32 v16, 0x3b000000, v16")
    a("v_fma_f32 v16, -v14, v14, v16")
    a("v_max_f32 v16, 0, v16")
    a("v_add_f32 v14, v14, v18")
    a("v_cvt_pk_bf16_f32 v14, v14, v14")
    a("v_lshlrev_b32 v14, 16, v14")
    a("v_cvt_pk_bf16_f32 v16, v16, v16")
    a("v_lshlrev_b32 v16, 16, v16")
    a("v_add_f32 v16, 0x3727c5ac, v16")
    a("v_cvt_pk_bf16_f32 v16, v16, v16")
    a("v_lshlrev_b32 v16, 16, v16")
    a("v_sqrt_f32 v16, v16")
    a("s_nop 0")
    a("v_cvt_pk_bf16_f32 v16, v16, v16")
    a("v_lshlrev_b32 v16, 16, v16")
    a("v_rcp_f32 v16, v16")
    a("v_lshrrev_b32 v19, 1, v2")
    a("v_lshlrev_b32 v19, 2, v19")
    a("s_lshl_b32 s34, s33, 7")
    a(f"s_add_u32 s34, s34, {STATS}")
    a("v_add_u32 v19, s34, v19")
    a("ds_write_b32 v19, v14")
    a("ds_write_b32 v19, v16 offset:512")
    a("s_waitcnt lgkmcnt(0)")
    stamp(a, 3)
    a("s_barrier")
    a(f"s_branch {name}_fin")
    a.label(f"{name}_cons")
    a("s_and_b32 s33, s32, 1")
    a("s_lshr_b32 s34, s32, 1")
    a("v_and_b32 v4, 15, v2")
    a("v_lshrrev_b32 v6, 4, v2")
    a("v_lshrrev_b32 v5, 2, v4")
    a("v_and_b32 v7, 3, v4")
    a("v_lshl_add_u32 v7, v5, 3, v7")
    a("v_lshrrev_b32 v20, 1, v4")
    a("v_lshrrev_b32 v21, 2, v4")
    a("v_lshrrev_b32 v22, 3, v4")
    a("v_xor_b32 v21, v21, v22")
    a("v_and_b32 v21, 1, v21")
    a("v_xor_b32 v20, v20, v21")
    a("v_xor_b32 v20, v20, v6")
    a("v_lshlrev_b32 v20, 4, v20")
    a("v_lshl_add_u32 v20, v7, 7, v20")
    a("s_lshl_b32 s35, s33, 13")
    a("s_lshl_b32 s36, s34, 13")
    a("s_add_u32 s36, s36, 16384")
    for g2 in range(2):
        a(f"v_add_u32 v{8 + 4 * g2}, s35, v20")
        a(f"v_xor_b32 v{9 + 4 * g2}, 64, v{8 + 4 * g2}")
        a(f"v_add_u32 v{10 + 4 * g2}, s36, v20")
        a(f"v_xor_b32 v{11 + 4 * g2}, 64, v{10 + 4 * g2}")
        if g2:
            for r in range(4):
                a(f"v_add_u32 v{8 + 4 * g2 + r}, {65536 * g2}, v{8 + 4 * g2 + r}")
    ACC = 32
    FB = 96
    for i in range(64):
        a(f"v_mov_b32 v{ACC + i}, 0")
    a("s_waitcnt lgkmcnt(0)")
    stamp(a, 1)
    srd(a, 20, 6, 7, 4 << 20)
    NU = NST * 2

    def reads(u):
        s, ks = u // 2, u % 2
        slot = s % NSTG
        g2, so = slot // 2, (slot % 2) * SLOT
        f = FB + 32 * (u % 2)
        if ks == 0:
            a("s_waitcnt lgkmcnt(0)")
            a("s_barrier")
            if s == 0:
                stamp(a, 2)
        for i in range(4):
            off = so + (i >> 1) * 4096 + (i & 1) * 512
            a(f"ds_read_b128 v[{f + 4 * i}:{f + 3 + 4 * i}], v{8 + 4 * g2 + ks} offset:{off}")
            a(f"ds_read_b128 v[{f + 16 + 4 * i}:{f + 19 + 4 * i}], v{10 + 4 * g2 + ks} offset:{off}")

    reads(0)
    for u in range(NU):
        if u + 1 < NU:
            reads(u + 1)
            a("s_waitcnt lgkmcnt(8)")
        else:
            a("s_waitcnt lgkmcnt(0)")
        f = FB + 32 * (u % 2)
        for xi in range(4):
            for T in range(4):
                acc = ACC + (xi * 4 + T) * 4
                a(f"v_mfma_f32_16x16x32_bf16 v[{acc}:{acc + 3}], v[{f + 4 * xi}:{f + 3 + 4 * xi}], v[{f + 16 + 4 * T}:{f + 19 + 4 * T}], v[{acc}:{acc + 3}]")
    stamp(a, 3)
    a("s_barrier")
    stamp(a, 4)
    a("s_lshl_b32 s35, s33, 8")
    a(f"s_add_u32 s35, s35, {STATS}")
    a("v_lshlrev_b32 v20, 5, v6")
    a("v_add_u32 v20, s35, v20")
    for blk in range(2):
        for h in range(2):
            a(f"ds_read_b128 v[{96 + 16 * blk + 4 * h}:{99 + 16 * blk + 4 * h}], v20 offset:{128 * blk + 16 * h}")
            a(f"ds_read_b128 v[{104 + 16 * blk + 4 * h}:{107 + 16 * blk + 4 * h}], v20 offset:{512 + 128 * blk + 16 * h}")
    a("s_lshl_b32 s36, s34, 8")
    a(f"s_add_u32 s36, s36, {STATS + 1024}")
    a("v_lshlrev_b32 v21, 2, v7")
    a("v_add_u32 v21, s36, v21")
    for T in range(4):
        a(f"ds_read_b32 v{128 + T}, v21 offset:{(T >> 1) * 128 + (T & 1) * 16}")
    a("s_lshl_b32 s35, s31, 3")
    a("s_lshl_b32 s36, s34, 2")
    a("s_add_u32 s35, s35, s36")
    a("s_lshl_b32 s35, s35, 6")
    a("s_lshl_b32 s36, s30, 2")
    a("s_add_u32 s35, s35, s36")
    a("s_lshl_b32 s36, s33, 1")
    a("s_add_u32 s35, s35, s36")
    a("s_lshl_b32 s35, s35, 10")
    for T in range(4):
        a(f"s_add_u32 s{40 + T}, s35, {T * 65536}")
    a("v_lshlrev_b32 v22, 4, v2")
    a("s_waitcnt lgkmcnt(0)")
    for blk in range(2):
        for T in range(4):
            o = 132 + 4 * ((blk * 4 + T) & 3)
            for hb in range(2):
                acc = ACC + ((blk * 2 + hb) * 4 + T) * 4
                for j in range(4):
                    a(f"v_fma_f32 v{acc + j}, -v{96 + 16 * blk + 4 * hb + j}, v{128 + T}, v{acc + j}")
                    a(f"v_mul_f32 v{acc + j}, v{acc + j}, v{104 + 16 * blk + 4 * hb + j}")
                a(f"v_cvt_pk_bf16_f32 v{o + 2 * hb}, v{acc}, v{acc + 1}")
                a(f"v_cvt_pk_bf16_f32 v{o + 2 * hb + 1}, v{acc + 2}, v{acc + 3}")
            a(f"buffer_store_dwordx4 v[{o}:{o + 3}], v22, s[20:23], s{40 + T} offen offset:{blk * 1024}" + (" sc0 sc1" if wt else ""))
    stamp(a, 5)
    a(f"s_branch {name}_fin")
    a.label(f"{name}_pf")
    a("s_waitcnt lgkmcnt(0)")
    stamp(a, 1)
    if pf:
        a("v_lshlrev_b32 v3, 7, v2")
        a("v_lshrrev_b32 v4, 4, v2")
        a("v_lshlrev_b32 v4, 12, v4")
        a("v_and_b32 v5, 15, v2")
        a("v_lshl_add_u32 v4, v5, 7, v4")
        a("s_mul_i32 s33, s28, 12")
        a("s_add_u32 s33, s33, s32")
        nld = 0
        if pfxd:
            srd(a, 12, 4, 5, S * D * 2)
            srd(a, 16, 8, 9, D * D * 2)
            srd(a, 20, 10, 11, D * D * 2)
            a("s_lshl_b32 s34, s33, 13")
            a("s_lshl_b32 s35, s3, 18")
            a("s_add_u32 s35, s35, s34")
            a("s_cmp_lt_u32 s33, 32")
            a(f"s_cbranch_scc0 {name}_pf1")
            a("buffer_load_dword v10, v3, s[12:15], s35 offen")
            a(f"s_branch {name}_pf3")
            a.label(f"{name}_pf1")
            a("s_sub_u32 s34, s34, 262144")
            a("s_cmp_lt_u32 s33, 96")
            a(f"s_cbranch_scc0 {name}_pf2")
            a("buffer_load_dword v10, v3, s[16:19], s34 offen")
            a(f"s_branch {name}_pf3")
            a.label(f"{name}_pf2")
            a("s_sub_u32 s34, s34, 524288")
            a("buffer_load_dword v10, v3, s[20:23], s34 offen")
            a.label(f"{name}_pf3")
            if pace:
                a("s_waitcnt vmcnt(0)")
        a("s_and_b32 s48, s3, 1")
        a("s_cmp_eq_u32 s48, 1")
        a("s_cselect_b32 s40, s42, s40")
        a("s_cselect_b32 s41, s43, s41")
        srd(a, 24, 40, 41, S * S * 2)
        a("s_cmp_ge_u32 s33, 128")
        a(f"s_cbranch_scc1 {name}_fin")
        a("s_lshr_b32 s48, s3, 2")
        a("s_lshl_b32 s48, s48, 10")
        a("s_lshl_b32 s49, s33, 3")
        a("s_add_u32 s48, s48, s49")
        a("s_lshl_b32 s48, s48, 12")
        a("s_bfe_u32 s49, s3, 0x10001")
        a("s_lshl_b32 s49, s49, 11")
        a("s_add_u32 s48, s48, s49")
        a("buffer_load_dword v11, v4, s[24:27], s48 offen")
        if pace >= 2:
            a("s_waitcnt vmcnt(0)")
        a("s_add_u32 s48, s48, 16384")
        a("buffer_load_dword v12, v4, s[24:27], s48 offen")
    a.label(f"{name}_fin")
    stamp_flush(a, 1, 6, 6, 7)
    a.label(f"{name}_done")
    a("s_endpgm")
    return kernel_desc(name, 160, 64, 160)


WS_STATS = (12 << 20) + (1 << 19) + 8192
WS_FLAG1 = WS_STATS + 65536
WS_CS = WS_STATS + 16384


def gen_k1d(a, name, wt=1, PRO=3, pf=1, pace=1, pfq=4):
    NSTG, SLOT, NST = 4, 32768, 8
    STATS = NSTG * SLOT
    kernel_begin(a, name)
    a("s_cmp_ge_u32 s2, 256")
    a(f"s_cbranch_scc1 {name}_done")
    stamp(a, 0)
    a("s_load_dwordx2 s[4:5], s[0:1], 0")
    a("s_load_dwordx4 s[8:11], s[0:1], 24")
    a("s_load_dwordx4 s[44:47], s[0:1], 88")
    a("s_load_dwordx4 s[40:43], s[0:1], 8")
    a("s_and_b32 s3, s2, 7")
    a("s_lshr_b32 s28, s2, 4")
    a("s_and_b32 s29, s28, 1")
    a("s_lshl_b32 s30, s3, 1")
    a("s_add_u32 s30, s30, s29")
    a("s_lshr_b32 s31, s28, 1")
    a("v_lshrrev_b32 v1, 6, v0")
    a("v_and_b32 v2, 63, v0")
    a("s_nop 0")
    a("v_readfirstlane_b32 s32, v1")
    a("s_mov_b32 s53, 0xffff0000")
    a("s_bitcmp1_b32 s2, 3")
    a(f"s_cbranch_scc1 {name}_aux")
    a("s_cmp_lt_u32 s32, 4")
    a(f"s_cbranch_scc1 {name}_cons")
    a("s_sub_u32 s33, s32, 4")
    a("v_lshrrev_b32 v3, 3, v2")
    a("v_and_b32 v4, 7, v2")
    a("v_bfe_u32 v5, v2, 4, 1")
    a("v_xor_b32 v4, v4, v5")
    a("v_lshlrev_b32 v3, 10, v3")
    for i in range(4):
        g0g1 = (i & 1) ^ (i >> 1)
        a(f"v_xor_b32 v{8 + i}, {(2 * i) ^ g0g1}, v4")
        a(f"v_lshl_add_u32 v{8 + i}, v{8 + i}, 4, v3")
        if i:
            a(f"v_add_u32 v{8 + i}, {i * (8192 - 1024)}, v{8 + i}")
    a("s_lshl_b32 s34, s33, 5")
    a("s_lshl_b32 s35, s30, 7")
    a("s_add_u32 s35, s35, s34")
    a("s_lshl_b32 s38, s35, 3")
    a("s_lshl_b32 s35, s35, 10")
    a("s_and_b32 s36, s31, 3")
    a("s_lshl_b32 s36, s36, 7")
    a("s_add_u32 s36, s36, s34")
    a("s_lshl_b32 s36, s36, 10")
    a("s_lshl_b32 s37, s33, 12")
    a("v_lshlrev_b32 v12, 6, v2")
    a("v_add_u32 v12, s37, v12")
    a("v_add_u32 v12, 16384, v12")
    a(f"v_add_u32 v13, {2 * SLOT}, v12")
    a("v_mov_b32 v14, 0")
    a("v_mov_b32 v15, 0")
    a("s_mov_b32 s50, 0x3f803f80")
    a("s_waitcnt lgkmcnt(0)")
    stamp(a, 1)
    srd(a, 12, 4, 5, S * D * 2)
    a("s_cmp_ge_u32 s31, 4")
    a("s_cselect_b32 s8, s10, s8")
    a("s_cselect_b32 s9, s11, s9")
    srd(a, 16, 8, 9, D * D * 2)
    srd(a, 20, 46, 47, 14 << 20)
    srd(a, 24, 44, 45, 256)

    def load_stage(kk):
        slot = (kk % NSTG) * SLOT
        a(f"s_add_u32 m0, s37, {slot}")
        a(f"s_add_u32 s39, s35, {kk * 128}")
        for i in range(4):
            a(f"buffer_load_dwordx4 v{8 + i}, s[12:15], s39 offen offset:{i * 1024} lds")
        a(f"s_add_u32 m0, s37, {slot + 16384}")
        a(f"s_add_u32 s39, s36, {kk * 128}")
        for i in range(4):
            a(f"buffer_load_dwordx4 v{8 + i}, s[16:19], s39 offen offset:{i * 1024} lds")

    for kk in range(PRO):
        load_stage(kk)
    stamp(a, 2)
    issued = PRO
    for kk in range(NST):
        a(f"s_waitcnt vmcnt({(issued - 1 - kk) * 8})")
        slot = kk % NSTG
        ar, so = (12, slot * SLOT) if slot < 2 else (13, (slot - 2) * SLOT)
        for q in range(4):
            a(f"ds_read_b128 v[{16 + 4 * q}:{19 + 4 * q}], v{ar} offset:{so + 16 * q}")
        a("s_barrier")
        n_new = 0
        while issued < NST and issued - NSTG < kk and n_new < 2:
            load_stage(issued)
            issued += 1
            n_new += 1
        a("s_waitcnt lgkmcnt(0)")
        for r in range(16):
            a(f"v_dot2_f32_bf16 v{14 + (r & 1)}, v{16 + r}, s50, v{14 + (r & 1)}")
    a("s_lshl_b32 s34, s30, 2")
    a("v_mov_b32 v20, s34")
    a.label(f"{name}_poll")
    a("buffer_load_dword v21, v20, s[24:27], 0 offen sc0 sc1")
    a("s_waitcnt vmcnt(0)")
    a("v_readfirstlane_b32 s34, v21")
    a("s_cmp_ge_u32 s34, 8")
    a(f"s_cbranch_scc1 {name}_polled")
    a("s_sleep 2")
    a(f"s_branch {name}_poll")
    a.label(f"{name}_polled")
    a("v_and_b32 v20, 31, v2")
    a("v_lshlrev_b32 v20, 3, v20")
    a(f"s_add_u32 s38, s38, {WS_STATS}")
    a("buffer_load_dwordx2 v[22:23], v20, s[20:23], s38 offen sc0 sc1")
    a("v_add_f32 v14, v14, v15")
    a("s_nop 1")
    a(f"v_add_f32_dpp v14, v14, v14 quad_perm:[1,0,3,2] {DPP}")
    a("v_lshrrev_b32 v19, 1, v2")
    a("v_lshlrev_b32 v19, 2, v19")
    a("s_lshl_b32 s34, s33, 7")
    a(f"s_add_u32 s34, s34, {STATS + 1024}")
    a("v_add_u32 v19, s34, v19")
    a("ds_write_b32 v19, v14")
    a("v_lshrrev_b32 v20, 1, v20")
    a("s_lshl_b32 s34, s33, 7")
    a(f"s_add_u32 s34, s34, {STATS}")
    a("v_add_u32 v20, s34, v20")
    a("s_waitcnt vmcnt(0)")
    a("ds_write_b32 v20, v22")
    a("ds_write_b32 v20, v23 offset:512")
    a("s_waitcnt lgkmcnt(0)")
    stamp(a, 3)
    a("s_barrier")
    a(f"s_branch {name}_fin")
    a.label(f"{name}_cons")
    a("s_and_b32 s33, s32, 1")
    a("s_lshr_b32 s34, s32, 1")
    a("v_and_b32 v4, 15, v2")
    a("v_lshrrev_b32 v6, 4, v2")
    a("v_lshrrev_b32 v5, 2, v4")
    a("v_and_b32 v7, 3, v4")
    a("v_lshl_add_u32 v7, v5, 3, v7")
    a("v_lshrrev_b32 v20, 1, v4")
    a("v_lshrrev_b32 v21, 2, v4")
    a("v_lshrrev_b32 v22, 3, v4")
    a("v_xor_b32 v21, v21, v22")
    a("v_and_b32 v21, 1, v21")
    a("v_xor_b32 v20, v20, v21")
    a("v_xor_b32 v20, v20, v6")
    a("v_lshlrev_b32 v20, 4, v20")
    a("v_lshl_add_u32 v20, v7, 7, v20")
    a("s_lshl_b32 s35, s33, 13")
    a("s_lshl_b32 s36, s34, 13")
    a("s_add_u32 s36, s36, 16384")
    for g2 in range(2):
        a(f"v_add_u32 v{8 + 4 * g2}, s35, v20")
        a(f"v_xor_b32 v{9 + 4 * g2}, 64, v{8 + 4 * g2}")
        a(f"v_add_u32 v{10 + 4 * g2}, s36, v20")
        a(f"v_xor_b32 v{11 + 4 * g2}, 64, v{10 + 4 * g2}")
        if g2:
            for r in range(4):
                a(f"v_add_u32 v{8 + 4 * g2 + r}, {65536 * g2}, v{8 + 4 * g2 + r}")
    ACC = 32
    FB = 96
    for i in range(64):
        a(f"v_mov_b32 v{ACC + i}, 0")
    a("s_waitcnt lgkmcnt(0)")
    stamp(a, 1)
    srd(a, 20, 46, 47, 4 << 20)
    NU = NST * 2

    def read_list(u):
        s, ks = u // 2, u % 2
        slot = s % NSTG
        g2, so = slot // 2, (slot % 2) * SLOT
        f = FB + 32 * (u % 2)
        L = []
        for i in range(4):
            off = so + (i >> 1) * 4096 + (i & 1) * 512
            L.append(f"ds_read_b128 v[{f + 4 * i}:{f + 3 + 4 * i}], v{8 + 4 * g2 + ks} offset:{off}")
            L.append(f"ds_read_b128 v[{f + 16 + 4 * i}:{f + 19 + 4 * i}], v{10 + 4 * g2 + ks} offset:{off}")
        return L

    a("s_barrier")
    stamp(a, 2)
    for r in read_list(0):
        a(r)
    for u in range(NU):
        a("s_waitcnt lgkmcnt(0)")
        f = FB + 32 * (u % 2)
        nxt = read_list(u + 1) if u + 1 < NU else []
        n = 0
        for xi in range(4):
            for T in range(4):
                acc = ACC + (xi * 4 + T) * 4
                a(f"v_mfma_f32_16x16x32_bf16 v[{acc}:{acc + 3}], v[{f + 4 * xi}:{f + 3 + 4 * xi}], v[{f + 16 + 4 * T}:{f + 19 + 4 * T}], v[{acc}:{acc + 3}]")
                n += 1
                if n == 1 and nxt and (u + 1) % 2 == 0:
                    a("s_barrier")
                if nxt:
                    a(nxt.pop(0))
    stamp(a, 3)
    a("s_barrier")
    stamp(a, 4)
    a("s_lshl_b32 s35, s33, 8")
    a(f"s_add_u32 s35, s35, {STATS}")
    a("v_lshlrev_b32 v20, 5, v6")
    a("v_add_u32 v20, s35, v20")
    for blk in range(2):
        for h in range(2):
            a(f"ds_read_b128 v[{96 + 16 * blk + 4 * h}:{99 + 16 * blk + 4 * h}], v20 offset:{128 * blk + 16 * h}")
            a(f"ds_read_b128 v[{104 + 16 * blk + 4 * h}:{107 + 16 * blk + 4 * h}], v20 offset:{512 + 128 * blk + 16 * h}")
    a("s_lshl_b32 s36, s34, 8")
    a(f"s_add_u32 s36, s36, {STATS + 1024}")
    a("v_lshlrev_b32 v21, 2, v7")
    a("v_add_u32 v21, s36, v21")
    for T in range(4):
        a(f"ds_read_b32 v{128 + T}, v21 offset:{(T >> 1) * 128 + (T & 1) * 16}")
    a("s_lshl_b32 s35, s31, 3")
    a("s_lshl_b32 s36, s34, 2")
    a("s_add_u32 s35, s35, s36")
    a("s_lshl_b32 s35, s35, 6")
    a("s_lshl_b32 s36, s30, 2")
    a("s_add_u32 s35, s35, s36")
    a("s_lshl_b32 s36, s33, 1")
    a("s_add_u32 s35, s35, s36")
    a("s_lshl_b32 s35, s35, 10")
    for T in range(4):
        a(f"s_add_u32 s{40 + T}, s35, {T * 65536}")
    a("v_lshlrev_b32 v22, 4, v2")
    a("s_waitcnt lgkmcnt(0)")
    for blk in range(2):
        for T in range(4):
            o = 132 + 4 * ((blk * 4 + T) & 3)
            for hb in range(2):
                acc = ACC + ((blk * 2 + hb) * 4 + T) * 4
                for j in range(4):
                    a(f"v_fma_f32 v{acc + j}, -v{96 + 16 * blk + 4 * hb + j}, v{128 + T}, v{acc + j}")
                    a(f"v_mul_f32 v{acc + j}, v{acc + j}, v{104 + 16 * blk + 4 * hb + j}")
                a(f"v_cvt_pk_bf16_f32 v{o + 2 * hb}, v{acc}, v{acc + 1}")
                a(f"v_cvt_pk_bf16_f32 v{o + 2 * hb + 1}, v{acc + 2}, v{acc + 3}")
            a(f"buffer_store_dwordx4 v[{o}:{o + 3}], v22, s[20:23], s{40 + T} offen offset:{blk * 1024}" + (" sc0 sc1" if wt else ""))
    stamp(a, 5)
    a(f"s_branch {name}_fin")
    a.label(f"{name}_aux")
    a("v_mov_b32 v3, 0")
    a("ds_write_b32 v3, v3")
    a("s_waitcnt lgkmcnt(0)")
    a("s_barrier")
    stamp(a, 1)
    a("s_cmp_ge_u32 s32, 4")
    a(f"s_cbranch_scc1 {name}_pfw")
    a("s_lshl_b32 s33, s3, 8")
    a("s_lshl_b32 s34, s28, 4")
    a("s_add_u32 s33, s33, s34")
    a("s_lshl_b32 s34, s32, 2")
    a("s_add_u32 s33, s33, s34")
    a("v_lshrrev_b32 v3, 4, v2")
    a("v_and_b32 v4, 15, v2")
    a("v_lshlrev_b32 v5, 10, v3")
    a("v_lshl_add_u32 v5, v4, 4, v5")
    a("s_lshl_b32 s34, s33, 10")
    srd(a, 12, 4, 5, S * D * 2)
    for jj in range(4):
        a(f"buffer_load_dwordx4 v[{16 + 4 * jj}:{19 + 4 * jj}], v5, s[12:15], s34 offen offset:{256 * jj}")
    srd(a, 20, 46, 47, 14 << 20)
    srd(a, 28, 44, 45, 256)
    a("s_waitcnt vmcnt(0)")
    stamp(a, 2)
    X = 32
    for r in range(16):
        a(f"v_lshlrev_b32 v{X + 2 * r}, 16, v{16 + r}")
        a(f"v_and_b32 v{X + 2 * r + 1}, s53, v{16 + r}")
    a(f"v_add_f32 v8, v{X}, v{X + 1}")
    a(f"v_add_f32 v9, v{X + 2}, v{X + 3}")
    for r in range(4, 32, 2):
        a(f"v_add_f32 v8, v8, v{X + r}")
        a(f"v_add_f32 v9, v9, v{X + r + 1}")
    a("v_add_f32 v8, v8, v9")

    def red16(v):
        for pat in ("quad_perm:[1,0,3,2]", "quad_perm:[2,3,0,1]", "row_half_mirror", "row_mirror"):
            a("s_nop 1")
            a(f"v_add_f32_dpp v{v}, v{v}, v{v} {pat} {DPP}")

    red16(8)
    a("v_mul_f32 v8, 0x3b000000, v8")
    a("v_mov_b32 v10, 0")
    a("v_mov_b32 v11, 0")
    for r in range(0, 32, 2):
        a(f"v_sub_f32 v{X + r}, v{X + r}, v8")
        a(f"v_sub_f32 v{X + r + 1}, v{X + r + 1}, v8")
        a(f"v_fmac_f32 v10, v{X + r}, v{X + r}")
        a(f"v_fmac_f32 v11, v{X + r + 1}, v{X + r + 1}")
    a("v_add_f32 v10, v10, v11")
    red16(10)
    a("v_mul_f32 v10, 0x3b000000, v10")
    a("v_cvt_pk_bf16_f32 v12, v8, v8")
    a("v_lshlrev_b32 v12, 16, v12")
    a("v_cvt_pk_bf16_f32 v10, v10, v10")
    a("v_lshlrev_b32 v10, 16, v10")
    a("v_add_f32 v10, 0x3727c5ac, v10")
    a("v_cvt_pk_bf16_f32 v10, v10, v10")
    a("v_lshlrev_b32 v10, 16, v10")
    a("v_sqrt_f32 v10, v10")
    a("s_nop 0")
    a("v_cvt_pk_bf16_f32 v10, v10, v10")
    a("v_lshlrev_b32 v10, 16, v10")
    a("v_rcp_f32 v13, v10")
    a("v_lshlrev_b32 v14, 3, v3")
    a("s_lshl_b32 s36, s33, 3")
    a(f"s_add_u32 s36, s36, {WS_STATS}")
    a("v_cmp_eq_u32 vcc, 0, v4")
    a("s_and_saveexec_b64 s[54:55], vcc")
    a("buffer_store_dwordx2 v[12:13], v14, s[20:23], s36 offen sc0 sc1")
    a("s_mov_b64 exec, s[54:55]")
    a("s_waitcnt vmcnt(0)")
    stamp(a, 3)
    a("v_mov_b32 v14, 0")
    a("v_mov_b32 v15, 1")
    a("v_cmp_eq_u32 vcc, 0, v2")
    a("s_and_saveexec_b64 s[54:55], vcc")
    a("ds_add_rtn_u32 v6, v14, v15")
    a("s_waitcnt lgkmcnt(0)")
    a("v_readfirstlane_b32 s36, v6")
    a("s_cmp_lg_u32 s36, 3")
    a(f"s_cbranch_scc1 {name}_nosig")
    a("s_lshr_b32 s36, s33, 7")
    a("s_lshl_b32 s36, s36, 2")
    a("v_mov_b32 v14, s36")
    a("buffer_atomic_add v15, v14, s[28:31], 0 offen")
    a.label(f"{name}_nosig")
    a("s_mov_b64 exec, s[54:55]")
    a(f"s_branch {name}_fin")
    a.label(f"{name}_pfw")
    a("v_lshlrev_b32 v6, 7, v2")
    a("v_lshrrev_b32 v7, 4, v2")
    a("v_lshlrev_b32 v7, 12, v7")
    a("v_and_b32 v8, 15, v2")
    a("v_lshl_add_u32 v7, v8, 7, v7")
    a("s_lshl_b32 s35, s28, 2")
    a("s_add_u32 s35, s35, s32")
    a("s_sub_u32 s35, s35, 4")
    srd(a, 16, 8, 9, D * D * 2)
    srd(a, 20, 10, 11, D * D * 2)
    a("s_lshl_b32 s36, s35, 13")
    a("buffer_load_dword v10, v6, s[16:19], s36 offen")
    a("buffer_load_dword v11, v6, s[20:23], s36 offen")
    a("s_and_b32 s48, s3, 1")
    a("s_cmp_eq_u32 s48, 1")
    a("s_cselect_b32 s40, s42, s40")
    a("s_cselect_b32 s41, s43, s41")
    srd(a, 24, 40, 41, S * S * 2)
    a("s_lshr_b32 s48, s3, 2")
    a("s_lshl_b32 s48, s48, 10")
    a("s_lshl_b32 s49, s35, 4")
    a("s_add_u32 s48, s48, s49")
    a("s_lshl_b32 s48, s48, 12")
    a("s_bfe_u32 s49, s3, 0x10001")
    a("s_lshl_b32 s49, s49, 11")
    a("s_add_u32 s48, s48, s49")
    if pace:
        a("s_waitcnt vmcnt(0)")
    stamp(a, 2)
    if pf:
        if pfq < 4:
            a(f"v_cmp_gt_u32 vcc, {4 * pfq}, v8")
            a("s_and_saveexec_b64 s[54:55], vcc")
        for ii in range(4):
            a(f"s_add_u32 s49, s48, {ii * 16384}")
            a(f"buffer_load_dword v{12 + ii}, v7, s[24:27], s49 offen")
        if pfq < 4:
            a("s_mov_b64 exec, s[54:55]")
    a.label(f"{name}_fin")
    stamp_flush(a, 1, 6, 46, 47)
    a.label(f"{name}_done")
    a("s_endpgm")
    return kernel_desc(name, 160, 64, 160)


def gen_k1e(a, name, wt=1, PRO=4, pf=1, pace=1, U1=10, U2=12, pfq=4, pol=0, ppol=0, tlb=0, UC=13, vst=0, swap=1, wk1=0, early=0, fuse2=None):
    POL = {0: '', 1: ' sc1', 2: ' nt', 3: ' sc0'}[pol]
    PPOL = {0: '', 1: ' sc1', 2: ' nt', 3: ' sc0'}[ppol]
    NSTG, SLOT, NST = 5, 32768, 8
    CS = 3 * SLOT
    kernel_begin(a, name)
    a("s_cmp_ge_u32 s2, 256")
    a(f"s_cbranch_scc1 {name}_done")
    stamp(a, 0)
    a("s_load_dwordx2 s[4:5], s[0:1], 0")
    a("s_load_dwordx4 s[8:11], s[0:1], 24")
    a("s_load_dwordx4 s[44:47], s[0:1], 88")
    a("s_load_dwordx4 s[40:43], s[0:1], 8")
    a("s_and_b32 s3, s2, 7")
    a("s_lshr_b32 s28, s2, 4")
    a("s_and_b32 s29, s3, 1")
    a("s_bfe_u32 s27, s3, 0x10001")
    a("s_lshr_b32 s26, s3, 2")
    a("s_lshl_b32 s30, s27, 3")
    a("s_lshl_b32 s34, s26, 2")
    a("s_add_u32 s30, s30, s34")
    a("s_and_b32 s34, s28, 3")
    a("s_add_u32 s30, s30, s34")
    a("s_lshr_b32 s31, s28, 2")
    a("v_lshrrev_b32 v1, 6, v0")
    a("v_and_b32 v2, 63, v0")
    a("s_nop 0")
    a("v_readfirstlane_b32 s32, v1")
    a("s_mov_b32 s53, 0xffff0000")
    a("s_mov_b32 s69, 0x40000")
    a("s_bitcmp1_b32 s2, 3")
    a(f"s_cbranch_scc1 {name}_aux")
    if swap:
        a("s_xor_b32 s32, s32, 4")
    a("s_cmp_lt_u32 s32, 4")
    a(f"s_cbranch_scc1 {name}_cons")
    a("s_sub_u32 s33, s32, 4")
    a("v_lshrrev_b32 v3, 3, v2")
    a("v_and_b32 v4, 7, v2")
    a("v_bfe_u32 v5, v2, 4, 1")
    a("v_xor_b32 v4, v4, v5")
    a("v_lshlrev_b32 v3, 10, v3")
    for i in range(4):
        g0g1 = (i & 1) ^ (i >> 1)
        a(f"v_xor_b32 v{8 + i}, {(2 * i) ^ g0g1}, v4")
        a(f"v_lshl_add_u32 v{8 + i}, v{8 + i}, 4, v3")
        if i:
            a(f"v_add_u32 v{8 + i}, {i * (8192 - 1024)}, v{8 + i}")
    a("s_lshl_b32 s34, s33, 5")
    a("s_lshl_b32 s35, s30, 7")
    a("s_add_u32 s35, s35, s34")
    a("s_lshl_b32 s35, s35, 10")
    a("s_lshl_b32 s36, s31, 7")
    a("s_add_u32 s36, s36, s34")
    a("s_lshl_b32 s36, s36, 10")
    a("s_lshl_b32 s37, s33, 12")
    a("v_lshlrev_b32 v12, 6, v2")
    a("v_add_u32 v12, s37, v12")
    a("v_add_u32 v12, 16384, v12")
    a(f"v_add_u32 v13, {2 * SLOT}, v12")
    a(f"v_add_u32 v6, {4 * SLOT}, v12")
    a("v_mov_b32 v14, 0")
    a("v_mov_b32 v15, 0")
    a("s_mov_b32 s50, 0x3f803f80")
    a("s_waitcnt lgkmcnt(0)")
    stamp(a, 1)
    srd(a, 12, 4, 5, S * D * 2)
    a("s_cmp_eq_u32 s29, 1")
    a("s_cselect_b32 s8, s10, s8")
    a("s_cselect_b32 s9, s11, s9")
    srd(a, 16, 8, 9, D * D * 2)

    def load_stage(kk):
        slot = (kk % NSTG) * SLOT
        a(f"s_add_u32 m0, s37, {slot}")
        a(f"s_add_u32 s39, s35, {kk * 128}")
        for i in range(4):
            a(f"buffer_load_dwordx4 v{8 + i}, s[12:15], s39 offen offset:{i * 1024}{POL} lds")
        a(f"s_add_u32 m0, s37, {slot + 16384}")
        a(f"s_add_u32 s39, s36, {kk * 128}")
        for i in range(4):
            a(f"buffer_load_dwordx4 v{8 + i}, s[16:19], s39 offen offset:{i * 1024}{POL} lds")

    if vst:
        VB = 32

        def vload_stage(kk):
            r = VB + (kk - NSTG) * 32
            a(f"s_add_u32 s39, s35, {kk * 128}")
            for i in range(4):
                a(f"buffer_load_dwordx4 v[{r + 4 * i}:{r + 4 * i + 3}], v{8 + i}, s[12:15], s39 offen offset:{i * 1024}")
            a(f"s_add_u32 s39, s36, {kk * 128}")
            for i in range(4):
                a(f"buffer_load_dwordx4 v[{r + 16 + 4 * i}:{r + 19 + 4 * i}], v{8 + i}, s[16:19], s39 offen offset:{i * 1024}")

        def vwrite_stage(kk):
            r = VB + (kk - NSTG) * 32
            slot = (kk % NSTG) * SLOT
            ar = 16 if slot < 65536 - 32768 + 1 else 17
            so = slot if ar == 16 else slot - 65536
            for i in range(4):
                a(f"ds_write_b128 v{ar}, v[{r + 4 * i}:{r + 4 * i + 3}] offset:{so + i * 1024}")
                a(f"ds_write_b128 v{ar}, v[{r + 16 + 4 * i}:{r + 19 + 4 * i}] offset:{so + 16384 + i * 1024}")

        a("v_lshlrev_b32 v16, 4, v2")
        a("v_add_u32 v16, s37, v16")
        a("v_add_u32 v17, 65536, v16")
        for kk in range(PRO):
            load_stage(kk)
        stamp(a, 2)
        issued = PRO
        for kk in range(NST):
            if kk < NSTG:
                a(f"s_waitcnt vmcnt({(issued - 1 - kk) * 8})")
            else:
                a("s_waitcnt lgkmcnt(0)")
            a("s_barrier")
            n_new = 0
            while issued < NST and n_new < 2:
                (load_stage if issued < NSTG else vload_stage)(issued)
                issued += 1
                n_new += 1
            if NSTG <= kk + 1 < NST:
                a(f"s_waitcnt vmcnt({(issued - 1 - (kk + 1)) * 8})")
                vwrite_stage(kk + 1)
    else:
        for kk in range(PRO):
            load_stage(kk)
        stamp(a, 2)
        issued = PRO
        for kk in range(NST):
            a(f"s_waitcnt vmcnt({(issued - 1 - kk) * 8})")
            a("s_barrier")
            n_new = 0
            while issued < NST and issued - NSTG < kk and n_new < 2:
                load_stage(issued)
                issued += 1
                n_new += 1
    stamp(a, 3)
    if fuse2:
        a("s_barrier")
    a(f"s_branch {name}_fin")
    a.label(f"{name}_cons")
    a("s_and_b32 s33, s32, 1")
    a("s_lshr_b32 s34, s32, 1")
    a("v_and_b32 v4, 15, v2")
    a("v_lshrrev_b32 v6, 4, v2")
    a("v_lshrrev_b32 v5, 2, v4")
    a("v_and_b32 v7, 3, v4")
    a("v_lshl_add_u32 v7, v5, 3, v7")
    a("v_lshrrev_b32 v20, 1, v4")
    a("v_lshrrev_b32 v21, 2, v4")
    a("v_lshrrev_b32 v22, 3, v4")
    a("v_xor_b32 v21, v21, v22")
    a("v_and_b32 v21, 1, v21")
    a("v_xor_b32 v20, v20, v21")
    a("v_xor_b32 v20, v20, v6")
    a("v_lshlrev_b32 v20, 4, v20")
    a("v_lshl_add_u32 v20, v7, 7, v20")
    a("s_lshl_b32 s35, s33, 13")
    a("s_lshl_b32 s36, s34, 13")
    a("s_add_u32 s36, s36, 16384")
    for g2 in range(3):
        a(f"v_add_u32 v{8 + 4 * g2}, s35, v20")
        a(f"v_xor_b32 v{9 + 4 * g2}, 64, v{8 + 4 * g2}")
        a(f"v_add_u32 v{10 + 4 * g2}, s36, v20")
        a(f"v_xor_b32 v{11 + 4 * g2}, 64, v{10 + 4 * g2}")
        if g2:
            for r in range(4):
                a(f"v_add_u32 v{8 + 4 * g2 + r}, {65536 * g2}, v{8 + 4 * g2 + r}")
    ACC = 32
    FB = 96
    ST = 160
    for i in range(64):
        a(f"v_mov_b32 v{ACC + i}, 0")
    a("s_lshl_b32 s38, s30, 7")
    a("s_lshl_b32 s39, s33, 6")
    a("s_add_u32 s38, s38, s39")
    a("s_lshl_b32 s38, s38, 3")
    a(f"s_add_u32 s38, s38, {WS_STATS}")
    a("v_lshlrev_b32 v23, 6, v6")
    a("v_mov_b32 v24, 0")
    a("s_lshl_b32 s39, s29, 9")
    a("s_lshl_b32 s61, s31, 7")
    a("s_add_u32 s39, s39, s61")
    a("s_lshl_b32 s61, s34, 6")
    a("s_add_u32 s39, s39, s61")
    a("s_lshl_b32 s39, s39, 3")
    a(f"s_add_u32 s61, s39, {WS_CS}")
    a("v_lshlrev_b32 v21, 3, v7")
    a("s_waitcnt lgkmcnt(0)")
    stamp(a, 1)
    srd(a, 20, 46, 47, 14 << 20)
    srd(a, 24, 44, 45, 256)
    NU = NST * 2

    def read_list(u):
        s, ks = u // 2, u % 2
        slot = s % NSTG
        g2, so = slot // 2, (slot % 2) * SLOT
        f = FB + 32 * (u % 2)
        L = []
        for i in range(4):
            off = so + (i >> 1) * 4096 + (i & 1) * 512
            L.append(f"ds_read_b128 v[{f + 4 * i}:{f + 3 + 4 * i}], v{8 + 4 * g2 + ks} offset:{off}")
            L.append(f"ds_read_b128 v[{f + 16 + 4 * i}:{f + 19 + 4 * i}], v{10 + 4 * g2 + ks} offset:{off}")
        return L

    def stats_loads():
        for blk in range(2):
            for q4 in range(4):
                r = ST + 16 * blk + 4 * q4
                a(f"buffer_load_dwordx4 v[{r}:{r + 3}], v23, s[20:23], s38 offen offset:{256 * blk + 16 * q4} sc1")
        for T in range(4):
            a(f"buffer_load_dwordx2 v[{192 + 2 * T}:{193 + 2 * T}], v21, s[20:23], s61 offen offset:{(T >> 1) * 256 + (T & 1) * 32} sc1")
        a("buffer_load_dword v25, v24, s[24:27], 0 offen sc1")

    a("s_lshl_b32 s35, s29, 5")
    a("s_lshl_b32 s36, s31, 3")
    a("s_add_u32 s35, s35, s36")
    a("s_lshl_b32 s36, s34, 2")
    a("s_add_u32 s35, s35, s36")
    a("s_lshl_b32 s35, s35, 6")
    a("s_lshl_b32 s36, s30, 2")
    a("s_add_u32 s35, s35, s36")
    a("s_lshl_b32 s36, s33, 1")
    a("s_add_u32 s35, s35, s36")
    a("s_lshl_b32 s35, s35, 10")
    for T in range(4):
        a(f"s_add_u32 s{40 + T}, s35, {T * 65536}")

    def check_ops():
        L = [f"v_xor_b32 v26, v25, v{ST + 1}"]
        for r in range(1, 16):
            L.append(f"v_xor_b32 v27, v25, v{ST + 2 * r + 1}")
            L.append("v_or_b32 v26, v26, v27")
        for T in range(4):
            L.append(f"v_xor_b32 v27, v25, v{193 + 2 * T}")
            L.append("v_or_b32 v26, v26, v27")
        for r in range(16):
            L.append(f"v_lshlrev_b32 v{ST + 2 * r + 1}, 16, v{ST + 2 * r}")
            L.append(f"v_rcp_f32 v{ST + 2 * r + 1}, v{ST + 2 * r + 1}")
            L.append(f"v_and_b32 v{ST + 2 * r}, s53, v{ST + 2 * r}")
        return L

    a("s_barrier")
    stamp(a, 2)
    for r in read_list(0):
        a(r)
    shadow = []
    for u in range(NU):
        a("s_waitcnt lgkmcnt(0)")
        f = FB + 32 * (u % 2)
        nxt = read_list(u + 1) if u + 1 < NU else []
        n = 0
        if u == UC:
            a("s_waitcnt vmcnt(0)")
            shadow = check_ops()
        for xi in range(4):
            for T in range(4):
                acc = ACC + (xi * 4 + T) * 4
                a(f"v_mfma_f32_16x16x32_bf16 v[{acc}:{acc + 3}], v[{f + 4 * xi}:{f + 3 + 4 * xi}], v[{f + 16 + 4 * T}:{f + 19 + 4 * T}], v[{acc}:{acc + 3}]")
                n += 1
                if n == 1 and nxt and (u + 1) % 2 == 0:
                    a("s_barrier")
                if nxt:
                    a(nxt.pop(0))
                for _ in range(2):
                    if shadow:
                        a(shadow.pop(0))
                if u == U1 and n == 10:
                    stats_loads()
    for op in shadow:
        a(op)
    stamp(a, 3)
    a.label(f"{name}_chk")
    a("v_cmp_eq_u32 vcc, 0, v25")
    a("v_cmp_ne_u32 s[62:63], 0, v26")
    a("s_or_b64 s[62:63], s[62:63], vcc")
    a(f"s_cbranch_scc0 {name}_have")
    a("s_sleep 4")
    stats_loads()
    a("s_waitcnt vmcnt(0)")
    for op in check_ops():
        a(op)
    a("s_sub_u32 s69, s69, 1")
    a(f"s_cbranch_scc0 {name}_chk")
    a("s_mov_b32 s69, 0")
    a.label(f"{name}_have")
    stamp(a, 4)
    a("v_lshlrev_b32 v22, 4, v2")
    a("s_nop 4")
    for blk in range(2):
        for T in range(4):
            o = 132 + 4 * ((blk * 4 + T) & 3)
            for hb in range(2):
                acc = ACC + ((blk * 2 + hb) * 4 + T) * 4
                for j in range(4):
                    sr = ST + 16 * blk + 2 * (4 * hb + j)
                    a(f"v_fma_f32 v{acc + j}, -v{sr}, v{192 + 2 * T}, v{acc + j}")
                    a(f"v_mul_f32 v{acc + j}, v{acc + j}, v{sr + 1}")
                a(f"v_cvt_pk_bf16_f32 v{o + 2 * hb}, v{acc}, v{acc + 1}")
                a(f"v_cvt_pk_bf16_f32 v{o + 2 * hb + 1}, v{acc + 2}, v{acc + 3}")
            a(f"buffer_store_dwordx4 v[{o}:{o + 3}], v22, s[20:23], s{40 + T} offen offset:{blk * 1024}" + (" sc0 sc1" if wt else ""))
    stamp(a, 5)
    if fuse2:
        a("s_bfe_u32 s36, s3, 0x10001")
        a("s_lshl_b32 s35, s29, 1")
        a("s_add_u32 s35, s35, s36")
        a("s_lshl_b32 s35, s35, 2")
        a("s_add_u32 s35, s35, s31")
        a("s_lshl_b32 s35, s35, 3")
        a("s_and_b32 s36, s30, 7")
        a("s_add_u32 s35, s35, s36")
        a("s_lshl_b32 s35, s35, 7")
        a("s_lshl_b32 s36, s32, 2")
        a("s_add_u32 s35, s35, s36")
        a(f"s_add_u32 s35, s35, {WS_FLAG1}")
        a("s_waitcnt vmcnt(0)")
        a("buffer_store_dword v25, v24, s[20:23], s35 offen sc0 sc1")
        a("s_barrier")
    a(f"s_branch {name}_fin")
    a.label(f"{name}_aux")
    a("s_mov_b32 s50, s28")
    a("s_mov_b32 s51, s29")
    a("s_memrealtime s[66:67]")
    a("v_lshlrev_b32 v6, 7, v2")
    a("v_lshrrev_b32 v3, 4, v2")
    a("v_and_b32 v4, 15, v2")
    a("v_lshlrev_b32 v7, 12, v3")
    a("v_lshl_add_u32 v7, v4, 7, v7")
    a("v_lshlrev_b32 v5, 10, v3")
    a("v_lshl_add_u32 v5, v4, 4, v5")
    a("s_lshl_b32 s35, s50, 3")
    a("s_add_u32 s56, s35, s3")
    a("s_add_u32 s35, s35, s32")
    a("s_lshl_b32 s48, s26, 10")
    a("s_lshl_b32 s49, s35, 3")
    a("s_add_u32 s48, s48, s49")
    a("s_lshl_b32 s48, s48, 12")
    a("s_lshl_b32 s49, s27, 11")
    a("s_add_u32 s48, s48, s49")
    a("s_add_u32 s49, s48, 16384")
    a("s_waitcnt lgkmcnt(0)")
    stamp(a, 1)
    srd(a, 28, 44, 45, 256)
    srd(a, 20, 46, 47, 14 << 20)
    a("s_xor_b32 s62, s2, 8")
    a("s_or_b32 s62, s62, s32")
    a("s_cmp_lg_u32 s62, 0")
    a(f"s_cbranch_scc1 {name}_nopub")
    a("s_or_b32 s62, s66, 1")
    a("v_mov_b32 v25, s62")
    a("v_mov_b32 v24, 0")
    a("buffer_store_dword v25, v24, s[28:31], 0 offen sc0 sc1")
    a(f"s_mov_b32 s62, {13 << 20}")
    a("buffer_store_dword v25, v24, s[20:23], s62 offen sc0 sc1")
    a.label(f"{name}_nopub")
    srd(a, 12, 4, 5, S * D * 2)
    a("s_cmp_ge_u32 s32, 6")
    a(f"s_cbranch_scc1 {name}_touch")
    a("s_cmp_ge_u32 s32, 4")
    a(f"s_cbranch_scc1 {name}_csw")
    a("s_lshl_b32 s33, s56, 4")
    a("s_lshl_b32 s34, s32, 2")
    a("s_add_u32 s33, s33, s34")
    a("s_lshl_b32 s34, s33, 10")
    for jj in range(4):
        a(f"buffer_load_dwordx4 v[{16 + 4 * jj}:{19 + 4 * jj}], v5, s[12:15], s34 offen offset:{256 * jj}")
    a("v_mov_b32 v9, 0")
    a.label(f"{name}_nl1")
    a("buffer_load_dword v15, v9, s[28:31], 0 offen sc1")
    a("s_waitcnt vmcnt(0)")
    a("v_readfirstlane_b32 s57, v15")
    a("s_cmp_lg_u32 s57, 0")
    a(f"s_cbranch_scc1 {name}_nd1")
    a("s_sleep 1")
    a("s_sub_u32 s69, s69, 1")
    a(f"s_cbranch_scc0 {name}_nl1")
    a("s_mov_b32 s69, 0")
    a.label(f"{name}_nd1")
    stamp(a, 2)
    X = 32
    for r in range(16):
        a(f"v_lshlrev_b32 v{X + 2 * r}, 16, v{16 + r}")
        a(f"v_and_b32 v{X + 2 * r + 1}, s53, v{16 + r}")
    a(f"v_add_f32 v8, v{X}, v{X + 1}")
    a(f"v_add_f32 v9, v{X + 2}, v{X + 3}")
    for r in range(4, 32, 2):
        a(f"v_add_f32 v8, v8, v{X + r}")
        a(f"v_add_f32 v9, v9, v{X + r + 1}")
    a("v_add_f32 v8, v8, v9")

    def red16(v):
        for pat in ("quad_perm:[1,0,3,2]", "quad_perm:[2,3,0,1]", "row_half_mirror", "row_mirror"):
            a("s_nop 1")
            a(f"v_add_f32_dpp v{v}, v{v}, v{v} {pat} {DPP}")

    red16(8)
    a("v_mul_f32 v8, 0x3b000000, v8")
    a("v_mov_b32 v10, 0")
    a("v_mov_b32 v11, 0")
    for r in range(0, 32, 2):
        a(f"v_sub_f32 v{X + r}, v{X + r}, v8")
        a(f"v_sub_f32 v{X + r + 1}, v{X + r + 1}, v8")
        a(f"v_fmac_f32 v10, v{X + r}, v{X + r}")
        a(f"v_fmac_f32 v11, v{X + r + 1}, v{X + r + 1}")
    a("v_add_f32 v10, v10, v11")
    red16(10)
    a("v_mul_f32 v10, 0x3b000000, v10")
    a("v_cvt_pk_bf16_f32 v12, v8, v8")
    a("v_lshlrev_b32 v12, 16, v12")
    a("v_cvt_pk_bf16_f32 v10, v10, v10")
    a("v_lshlrev_b32 v10, 16, v10")
    a("v_add_f32 v10, 0x3727c5ac, v10")
    a("v_cvt_pk_bf16_f32 v10, v10, v10")
    a("v_lshlrev_b32 v10, 16, v10")
    a("v_sqrt_f32 v10, v10")
    a("s_nop 0")
    a("v_cvt_pk_bf16_f32 v10, v10, v10")
    a("v_and_b32 v10, 0xffff, v10")
    a("v_or_b32 v12, v12, v10")
    a("v_mov_b32 v13, v15")
    a("v_lshlrev_b32 v14, 3, v3")
    a("s_lshl_b32 s36, s33, 3")
    a(f"s_add_u32 s36, s36, {WS_STATS}")
    a("v_cmp_eq_u32 vcc, 0, v4")
    a("s_and_saveexec_b64 s[54:55], vcc")
    a("buffer_store_dwordx2 v[12:13], v14, s[20:23], s36 offen sc0 sc1")
    a("s_mov_b64 exec, s[54:55]")
    a(f"s_branch {name}_auxj")
    a.label(f"{name}_csw")
    a("s_lshl_b32 s33, s56, 3")
    a("s_sub_u32 s34, s32, 4")
    a("s_lshl_b32 s34, s34, 2")
    a("s_add_u32 s33, s33, s34")
    a("s_cmp_ge_u32 s33, 512")
    a("s_cselect_b32 s58, s10, s8")
    a("s_cselect_b32 s59, s11, s9")
    srd(a, 16, 58, 59, D * D * 2)
    a("s_and_b32 s34, s33, 511")
    a("s_lshl_b32 s34, s34, 10")
    for jj in range(4):
        a(f"buffer_load_dwordx4 v[{16 + 4 * jj}:{19 + 4 * jj}], v5, s[16:19], s34 offen offset:{256 * jj}")
    a("v_mov_b32 v8, 0")
    a("v_mov_b32 v9, 0")
    a.label(f"{name}_nl2")
    a("buffer_load_dword v15, v9, s[28:31], 0 offen sc1")
    a("s_waitcnt vmcnt(0)")
    a("v_readfirstlane_b32 s57, v15")
    a("s_cmp_lg_u32 s57, 0")
    a(f"s_cbranch_scc1 {name}_nd2")
    a("s_sleep 1")
    a("s_sub_u32 s69, s69, 1")
    a(f"s_cbranch_scc0 {name}_nl2")
    a("s_mov_b32 s69, 0")
    a.label(f"{name}_nd2")
    for r in range(16):
        a(f"v_lshlrev_b32 v{32 + 2 * (r & 3)}, 16, v{16 + r}")
        a(f"v_and_b32 v{33 + 2 * (r & 3)}, s53, v{16 + r}")
        a(f"v_add_f32 v8, v8, v{32 + 2 * (r & 3)}")
        a(f"v_add_f32 v9, v9, v{33 + 2 * (r & 3)}")
    a("v_add_f32 v8, v8, v9")
    red16(8)
    a("v_lshlrev_b32 v14, 3, v3")
    a("v_mov_b32 v9, v15")
    a("s_lshl_b32 s36, s33, 3")
    a(f"s_add_u32 s36, s36, {WS_CS}")
    a("v_cmp_eq_u32 vcc, 0, v4")
    a("s_and_saveexec_b64 s[54:55], vcc")
    a("buffer_store_dwordx2 v[8:9], v14, s[20:23], s36 offen sc0 sc1")
    a("s_mov_b64 exec, s[54:55]")
    a(f"s_branch {name}_auxj")
    a.label(f"{name}_touch")
    a("s_cmp_eq_u32 s51, 1")
    a("s_cselect_b32 s58, s10, s8")
    a("s_cselect_b32 s59, s11, s9")
    srd(a, 16, 58, 59, D * D * 2)
    a("s_lshl_b32 s36, s27, 20")
    a("s_lshl_b32 s37, s26, 19")
    a("s_add_u32 s36, s36, s37")
    a("s_lshl_b32 s37, s50, 1")
    a("s_add_u32 s37, s37, s32")
    a("s_sub_u32 s37, s37, 6")
    a("s_lshl_b32 s37, s37, 14")
    a("s_add_u32 s36, s36, s37")
    a("buffer_load_dword v202, v6, s[12:15], s36 offen")
    a("buffer_load_dword v203, v6, s[16:19], s37 offen")
    a("s_add_u32 s36, s36, 8192")
    a("s_add_u32 s37, s37, 8192")
    a("buffer_load_dword v204, v6, s[12:15], s36 offen")
    a("buffer_load_dword v205, v6, s[16:19], s37 offen")
    if tlb:
        a("s_load_dwordx8 s[64:71], s[0:1], 48")
        a("s_load_dwordx2 s[58:59], s[0:1], 80")
        a("v_lshlrev_b32 v16, 14, v2")
        a("v_lshlrev_b32 v17, 11, v2")
        a("s_lshl_b32 s36, s50, 20")
        a("s_lshl_b32 s37, s50, 17")
        a("s_waitcnt lgkmcnt(0)")
        a("s_cmp_eq_u32 s32, 6")
        a(f"s_cbranch_scc0 {name}_tl7")
        srd(a, 16, 46, 47, 16 << 20)
        a("buffer_load_dword v202, v16, s[16:19], s36 offen")
        srd(a, 16, 58, 59, S * D * 2)
        a("buffer_load_dword v203, v17, s[16:19], s37 offen")
        a(f"s_branch {name}_auxj")
        a.label(f"{name}_tl7")
        for k, (lo, hi) in enumerate(((66, 67), (68, 69), (70, 71))):
            srd(a, 16, lo, hi, D * F * 2)
            a(f"buffer_load_dword v{18 + k}, v17, s[16:19], s37 offen")
        srd(a, 16, 64, 65, D * 2)
        a("buffer_load_dword v205, v17, s[16:19], 0 offen")
    a.label(f"{name}_auxj")
    a("s_cmp_eq_u32 s51, 1")
    a("s_cselect_b32 s40, s42, s40")
    a("s_cselect_b32 s41, s43, s41")
    srd(a, 24, 40, 41, S * S * 2)
    if pf and early:
        a("s_cmp_lt_u32 s32, 6")
        a(f"s_cbranch_scc1 {name}_noearly")
        if pfq < 4:
            a(f"v_cmp_gt_u32 vcc, {4 * pfq}, v4")
            a("s_and_saveexec_b64 s[54:55], vcc")
        a("buffer_load_dword v202, v7, s[24:27], s48 offen")
        a("buffer_load_dword v203, v7, s[24:27], s49 offen")
        if early >= 2:
            a("s_sub_u32 s48, s48, 65536")
            a("s_sub_u32 s49, s49, 65536")
            a("buffer_load_dword v204, v7, s[24:27], s48 offen")
            a("buffer_load_dword v205, v7, s[24:27], s49 offen")
        if pfq < 4:
            a("s_mov_b64 exec, s[54:55]")
        a.label(f"{name}_noearly")
    a("s_barrier")
    stamp(a, 3)
    if pf and early:
        a(f"s_cmp_ge_u32 s32, {6 if early == 1 else 4}")
        a(f"s_cbranch_scc1 {name}_pfskip")
    if pf:
        if pfq < 4:
            a(f"v_cmp_gt_u32 vcc, {4 * pfq}, v4")
            a("s_and_saveexec_b64 s[54:55], vcc")
        if pace == 3:
            a("v_lshrrev_b32 v16, 3, v2")
            a("v_lshlrev_b32 v16, 12, v16")
            a("v_and_b32 v17, 7, v2")
            a("v_lshl_add_u32 v16, v17, 7, v16")
            a(f"buffer_load_dword v204, v16, s[24:27], s48 offen{PPOL}")
            a("s_waitcnt vmcnt(0)")
            a(f"buffer_load_dword v205, v16, s[24:27], s48 offen offset:1024{PPOL}")
        else:
            a(f"buffer_load_dword v204, v7, s[24:27], s48 offen{PPOL}")
            if pace == 2:
                a("s_waitcnt vmcnt(0)")
            a(f"buffer_load_dword v205, v7, s[24:27], s49 offen{PPOL}")
        if pfq < 4:
            a("s_mov_b64 exec, s[54:55]")
    a.label(f"{name}_pfskip")
    if wk1:
        a("s_cmp_ge_u32 s32, 6")
        a(f"s_cbranch_scc1 {name}_fina")
        a("s_lshr_b32 s58, s32, 1")
        a("s_lshl_b32 s58, s58, 3")
        a("s_add_u32 s58, s58, 56")
        a("s_load_dwordx2 s[60:61], s[0:1], s58")
        a("s_mul_i32 s62, s56, 14336")
        a("s_and_b32 s63, s32, 1")
        a("s_mul_i32 s63, s63, 7168")
        a("s_add_u32 s62, s62, s63")
        a("s_add_u32 s63, s62, 7168")
        a("s_waitcnt lgkmcnt(0)")
        a("s_mov_b32 s16, s60")
        a("s_and_b32 s17, s61, 0xffff")
        a("s_mov_b32 s18, s63")
        a("s_mov_b32 s19, 0x00020000")
        a("buffer_load_dword v206, v6, s[16:19], s62 offen" + (" nt" if wk1 == 2 else ""))
    a.label(f"{name}_fina")
    if fuse2:
        a("s_xor_b32 s32, s32, 4")
    a.label(f"{name}_fin")
    stamp_flush(a, 1, 6, 46, 47)
    if fuse2:
        fuse2(a, name + "g")
        a.label(f"{name}_done")
        a("s_endpgm")
        return kernel_desc(name, 208, 72, 208)
    a.label(f"{name}_done")
    a("s_endpgm")
    return kernel_desc(name, 208, 72, 208)


def gen_k1g(a, name, wt=1, PRO=3, U1=11, UC=14, wk=1, cpf=1, SPOS=0, NPOS=1):
    NSTG, SLOT, NST = 6, 24576, 8
    kernel_begin(a, name)
    a("s_cmp_ge_u32 s2, 256")
    a(f"s_cbranch_scc1 {name}_done")
    stamp(a, 0)
    a("s_load_dwordx2 s[4:5], s[0:1], 0")
    a("s_load_dwordx4 s[8:11], s[0:1], 24")
    a("s_load_dwordx4 s[44:47], s[0:1], 88")
    a("s_load_dwordx4 s[40:43], s[0:1], 8")
    a("s_load_dwordx4 s[56:59], s[0:1], 56")
    a("s_load_dwordx2 s[60:61], s[0:1], 72")
    a("s_memrealtime s[66:67]")
    a("s_and_b32 s3, s2, 7")
    a("s_lshr_b32 s48, s2, 3")
    a("s_and_b32 s49, s3, 1")
    a("s_bfe_u32 s50, s3, 0x10001")
    a("s_lshr_b32 s51, s3, 2")
    a("s_lshl_b32 s30, s50, 3")
    a("s_lshl_b32 s34, s51, 2")
    a("s_add_u32 s30, s30, s34")
    a("s_and_b32 s34, s48, 3")
    a("s_add_u32 s30, s30, s34")
    a("s_lshr_b32 s31, s48, 2")
    a("v_lshrrev_b32 v1, 6, v0")
    a("v_and_b32 v2, 63, v0")
    a("s_nop 0")
    a("v_readfirstlane_b32 s32, v1")
    a("s_mov_b32 s53, 0xffff0000")
    a("s_mov_b32 s69, 0x40000")
    a("s_xor_b32 s32, s32, 4")
    a("s_cmp_lt_u32 s32, 4")
    a(f"s_cbranch_scc1 {name}_cons")
    a("s_sub_u32 s33, s32, 4")
    a("v_lshrrev_b32 v3, 3, v2")
    a("v_and_b32 v4, 7, v2")
    a("v_bfe_u32 v5, v2, 4, 1")
    a("v_xor_b32 v4, v4, v5")
    a("v_lshlrev_b32 v3, 10, v3")
    for i in range(4):
        g0g1 = (i & 1) ^ (i >> 1)
        a(f"v_xor_b32 v{8 + i}, {(2 * i) ^ g0g1}, v4")
        a(f"v_lshl_add_u32 v{8 + i}, v{8 + i}, 4, v3")
        if i:
            a(f"v_add_u32 v{8 + i}, {i * (8192 - 1024)}, v{8 + i}")
    a("s_bitcmp1_b32 s33, 0")
    a("s_cselect_b32 s34, 5, 0")
    a("s_cselect_b32 s35, 6, 3")
    a("v_xor_b32 v12, s34, v4")
    a("v_lshl_add_u32 v12, v12, 4, v3")
    a("v_xor_b32 v13, s35, v4")
    a("v_lshl_add_u32 v13, v13, 4, v3")
    a(f"v_add_u32 v13, {8192 - 1024}, v13")
    a("s_lshl_b32 s34, s33, 5")
    a("s_lshl_b32 s35, s30, 7")
    a("s_add_u32 s35, s35, s34")
    a("s_lshl_b32 s35, s35, 10")
    a("s_lshl_b32 s36, s31, 6")
    a("s_lshl_b32 s34, s33, 4")
    a("s_add_u32 s36, s36, s34")
    a("s_lshl_b32 s36, s36, 10")
    a("s_lshl_b32 s37, s33, 12")
    a("s_lshl_b32 s38, s33, 11")
    a("s_add_u32 s38, s38, 16384")
    a("v_lshrrev_b32 v14, 4, v2")
    a("v_and_b32 v15, 15, v2")
    a("v_lshlrev_b32 v6, 10, v14")
    a("v_lshl_add_u32 v6, v15, 4, v6")
    a("v_mov_b32 v7, 0")
    a("s_lshl_b32 s52, s2, 3")
    a("s_lshl_b32 s34, s33, 2")
    a("s_add_u32 s52, s52, s34")
    a("s_lshl_b32 s54, s2, 2")
    a("s_waitcnt lgkmcnt(0)")
    stamp(a, 1)
    srd(a, 24, 44, 45, 256)
    srd(a, 20, 46, 47, 14 << 20)
    a("s_or_b32 s62, s2, s33")
    a("s_cmp_lg_u32 s62, 0")
    a(f"s_cbranch_scc1 {name}_nopub")
    a("s_or_b32 s62, s66, 1")
    a("v_mov_b32 v25, s62")
    a("buffer_store_dword v25, v7, s[24:27], 0 offen sc0 sc1")
    a(f"s_mov_b32 s62, {13 << 20}")
    a("buffer_store_dword v25, v7, s[20:23], s62 offen sc0 sc1")
    a.label(f"{name}_nopub")
    srd(a, 12, 4, 5, S * D * 2)
    a("s_cmp_ge_u32 s54, 512")
    a("s_cselect_b32 s62, s10, s8")
    a("s_cselect_b32 s63, s11, s9")
    a("s_and_b32 s55, s54, 511")
    a("s_cmp_lt_u32 s33, 2")
    a("s_cselect_b32 s62, s4, s62")
    a("s_cselect_b32 s63, s5, s63")
    a("s_cselect_b32 s55, s52, s55")
    a(f"s_mov_b32 s65, {D * D * 2}")
    a(f"s_cselect_b32 s64, {S * D * 2}, s65")
    a("s_cmp_eq_u32 s33, 3")
    a("s_cselect_b32 s64, 0, s64")
    a("s_lshl_b32 s55, s55, 10")
    a("s_mov_b32 s16, s62")
    a("s_and_b32 s17, s63, 0xffff")
    a("s_mov_b32 s18, s64")
    a("s_mov_b32 s19, 0x00020000")
    for jj in range(4):
        a(f"buffer_load_dwordx4 v[{16 + 4 * jj}:{19 + 4 * jj}], v6, s[16:19], s55 offen offset:{256 * jj}")
    a("s_cmp_eq_u32 s49, 1")
    a("s_cselect_b32 s8, s10, s8")
    a("s_cselect_b32 s9, s11, s9")
    srd(a, 16, 8, 9, D * D * 2)

    def load_stage(kk):
        slot = (kk % NSTG) * SLOT
        a(f"s_add_u32 m0, s37, {slot}")
        a(f"s_add_u32 s39, s35, {kk * 128}")
        for i in range(4):
            a(f"buffer_load_dwordx4 v{8 + i}, s[12:15], s39 offen offset:{i * 1024} lds")
        a(f"s_add_u32 m0, s38, {slot}")
        a(f"s_add_u32 s39, s36, {kk * 128}")
        for i in range(2):
            a(f"buffer_load_dwordx4 v{12 + i}, s[16:19], s39 offen offset:{i * 1024} lds")

    def red16(v):
        for pat in ("quad_perm:[1,0,3,2]", "quad_perm:[2,3,0,1]", "row_half_mirror", "row_mirror"):
            a("s_nop 1")
            a(f"v_add_f32_dpp v{v}, v{v}, v{v} {pat} {DPP}")

    def stats_block():
        X = 64
        for r in range(16):
            a(f"v_lshlrev_b32 v{X + 2 * r}, 16, v{16 + r}")
            a(f"v_and_b32 v{X + 2 * r + 1}, s53, v{16 + r}")
        a(f"v_add_f32 v34, v{X}, v{X + 1}")
        a(f"v_add_f32 v35, v{X + 2}, v{X + 3}")
        for r in range(4, 32, 2):
            a(f"v_add_f32 v34, v34, v{X + r}")
            a(f"v_add_f32 v35, v35, v{X + r + 1}")
        a("v_add_f32 v34, v34, v35")
        red16(34)
        a("v_mul_f32 v36, 0x3b000000, v34")
        a("v_mov_b32 v37, 0")
        a("v_mov_b32 v38, 0")
        for r in range(0, 32, 2):
            a(f"v_sub_f32 v{X + r}, v{X + r}, v36")
            a(f"v_sub_f32 v{X + r + 1}, v{X + r + 1}, v36")
            a(f"v_fmac_f32 v37, v{X + r}, v{X + r}")
            a(f"v_fmac_f32 v38, v{X + r + 1}, v{X + r + 1}")
        a("v_add_f32 v37, v37, v38")
        red16(37)
        a("v_mul_f32 v37, 0x3b000000, v37")
        a("v_cvt_pk_bf16_f32 v40, v36, v36")
        a("v_lshlrev_b32 v40, 16, v40")
        a("v_cvt_pk_bf16_f32 v37, v37, v37")
        a("v_lshlrev_b32 v37, 16, v37")
        a("v_add_f32 v37, 0x3727c5ac, v37")
        a("v_cvt_pk_bf16_f32 v37, v37, v37")
        a("v_lshlrev_b32 v37, 16, v37")
        a("v_sqrt_f32 v37, v37")
        a("s_nop 0")
        a("v_cvt_pk_bf16_f32 v37, v37, v37")
        a("v_and_b32 v37, 0xffff, v37")
        a("v_or_b32 v40, v40, v37")
        a("s_cmp_eq_u32 s33, 2")
        a("s_cselect_b64 s[62:63], -1, 0")
        a("v_cndmask_b32 v40, v40, v34, s[62:63]")
        a("s_lshl_b32 s64, s52, 3")
        a(f"s_add_u32 s64, s64, {WS_STATS}")
        a("s_lshl_b32 s65, s54, 3")
        a(f"s_add_u32 s65, s65, {WS_CS}")
        a("s_cmp_eq_u32 s33, 2")
        a("s_cselect_b32 s64, s65, s64")
        a("s_add_u32 s65, s65, 8192")
        a("s_cmp_eq_u32 s33, 3")
        a("s_cselect_b32 s64, s65, s64")
        a("v_lshlrev_b32 v42, 3, v14")

    vq = ["s"] * 4
    for kk in range(PRO):
        load_stage(kk)
        vq += [kk] * 6
        if kk == NPOS:
            a("buffer_load_dword v33, v7, s[24:27], 0 offen sc1")
            vq.append("n")
    stamp(a, 2)
    issued = PRO

    def wait_tag(tag):
        nonlocal vq
        if tag in vq:
            idx = max(k for k, t in enumerate(vq) if t == tag)
            a(f"s_waitcnt vmcnt({len(vq) - 1 - idx})")
            vq = vq[idx + 1:]

    for kk in range(NST):
        wait_tag(kk)
        a("s_barrier")
        n_new = 0
        while issued < NST and issued - NSTG < kk and n_new < 2:
            load_stage(issued)
            vq += [issued] * 6
            issued += 1
            n_new += 1
        if kk == SPOS:
            stats_block()
        if kk == SPOS:
            wait_tag("n")
            a("v_readfirstlane_b32 s65, v33")
            a("s_cmp_lg_u32 s65, 0")
            a(f"s_cbranch_scc1 {name}_nok")
            a.label(f"{name}_nl")
            a("buffer_load_dword v33, v7, s[24:27], 0 offen sc1")
            a("s_waitcnt vmcnt(0)")
            a("v_readfirstlane_b32 s65, v33")
            a("s_cmp_lg_u32 s65, 0")
            a(f"s_cbranch_scc1 {name}_nok")
            a("s_sub_u32 s69, s69, 1")
            a(f"s_cbranch_scc0 {name}_nl")
            a("s_mov_b32 s69, 0")
            a.label(f"{name}_nok")
            a("v_mov_b32 v41, v33")
            a("v_cmp_eq_u32 vcc, 0, v15")
            a("s_and_saveexec_b64 s[62:63], vcc")
            a("buffer_store_dwordx2 v[40:41], v42, s[20:23], s64 offen sc0 sc1")
            a("s_mov_b64 exec, s[62:63]")
            vq.append("st")
        if issued == NST and kk == 2:
            if wk:
                emit_wtouch(a, "s33", 44, 45)
            if cpf:
                a("s_cmp_eq_u32 s49, 1")
                a("s_cselect_b32 s40, s42, s40")
                a("s_cselect_b32 s41, s43, s41")
                srd(a, 24, 40, 41, S * S * 2)
                a("s_lshl_b32 s62, s51, 10")
                a("s_lshl_b32 s63, s48, 5")
                a("s_add_u32 s62, s62, s63")
                a("s_lshl_b32 s63, s33, 3")
                a("s_add_u32 s62, s62, s63")
                a("s_lshl_b32 s62, s62, 12")
                a("s_lshl_b32 s63, s50, 11")
                a("s_add_u32 s62, s62, s63")
                a("v_lshrrev_b32 v46, 3, v2")
                a("v_lshlrev_b32 v46, 12, v46")
                a("v_and_b32 v47, 7, v2")
                a("v_lshl_add_u32 v46, v47, 7, v46")
                a("buffer_load_dword v48, v46, s[24:27], s62 offen")
                if cpf >= 2:
                    a("buffer_load_dword v49, v46, s[24:27], s62 offen offset:1024")
            vq += ["t"] * ((1 if wk else 0) + (0 if not cpf else (1 if cpf == 1 else 2)))
    stamp(a, 3)
    a(f"s_branch {name}_fin")
    a.label(f"{name}_cons")
    a("s_and_b32 s33, s32, 1")
    a("s_lshr_b32 s34, s32, 1")
    a("v_and_b32 v4, 15, v2")
    a("v_lshrrev_b32 v6, 4, v2")
    a("v_lshrrev_b32 v5, 2, v4")
    a("v_and_b32 v7, 3, v4")
    a("v_lshl_add_u32 v7, v5, 3, v7")
    a("v_lshrrev_b32 v20, 1, v4")
    a("v_lshrrev_b32 v21, 2, v4")
    a("v_lshrrev_b32 v22, 3, v4")
    a("v_xor_b32 v21, v21, v22")
    a("v_and_b32 v21, 1, v21")
    a("v_xor_b32 v20, v20, v21")
    a("v_xor_b32 v20, v20, v6")
    a("v_lshlrev_b32 v20, 4, v20")
    a("v_lshl_add_u32 v20, v7, 7, v20")
    a("s_lshl_b32 s35, s33, 13")
    a("s_lshl_b32 s36, s34, 12")
    a("s_add_u32 s36, s36, 16384")
    for g2 in range(3):
        a(f"v_add_u32 v{8 + 4 * g2}, s35, v20")
        a(f"v_xor_b32 v{9 + 4 * g2}, 64, v{8 + 4 * g2}")
        a(f"v_add_u32 v{10 + 4 * g2}, s36, v20")
        a(f"v_xor_b32 v{11 + 4 * g2}, 64, v{10 + 4 * g2}")
        if g2:
            for r in range(4):
                a(f"v_add_u32 v{8 + 4 * g2 + r}, {2 * SLOT * g2}, v{8 + 4 * g2 + r}")
    ACC = 32
    FB = 64
    ST = 112
    CSR = 144
    for i in range(32):
        a(f"v_mov_b32 v{ACC + i}, 0")
    a("s_lshl_b32 s38, s30, 7")
    a("s_lshl_b32 s39, s33, 6")
    a("s_add_u32 s38, s38, s39")
    a("s_lshl_b32 s38, s38, 3")
    a(f"s_add_u32 s38, s38, {WS_STATS}")
    a("v_lshlrev_b32 v23, 6, v6")
    a("v_mov_b32 v24, 0")
    a("s_lshl_b32 s39, s49, 9")
    a("s_lshl_b32 s65, s31, 6")
    a("s_add_u32 s39, s39, s65")
    a("s_lshl_b32 s65, s34, 5")
    a("s_add_u32 s39, s39, s65")
    a("s_lshl_b32 s39, s39, 3")
    a(f"s_add_u32 s52, s39, {WS_CS}")
    a("v_lshlrev_b32 v21, 3, v7")
    a("s_lshl_b32 s35, s49, 5")
    a("s_lshl_b32 s36, s31, 2")
    a("s_add_u32 s35, s35, s36")
    a("s_lshl_b32 s36, s34, 1")
    a("s_add_u32 s35, s35, s36")
    a("s_lshl_b32 s35, s35, 6")
    a("s_lshl_b32 s36, s30, 2")
    a("s_add_u32 s35, s35, s36")
    a("s_lshl_b32 s36, s33, 1")
    a("s_add_u32 s35, s35, s36")
    a("s_lshl_b32 s54, s35, 10")
    a("s_add_u32 s55, s54, 65536")
    a("v_lshlrev_b32 v22, 4, v2")
    a("s_waitcnt lgkmcnt(0)")
    stamp(a, 1)
    srd(a, 20, 46, 47, 14 << 20)
    srd(a, 24, 44, 45, 256)
    NU = NST * 2

    def read_list(u):
        s, ks = u // 2, u % 2
        slot = s % NSTG
        g2, so = slot // 2, (slot % 2) * SLOT
        f = FB + 24 * (u % 2)
        L = []
        for i in range(2):
            L.append(f"ds_read_b128 v[{f + 16 + 4 * i}:{f + 19 + 4 * i}], v{10 + 4 * g2 + ks} offset:{so + i * 512}")
        for i in range(4):
            off = so + (i >> 1) * 4096 + (i & 1) * 512
            L.append(f"ds_read_b128 v[{f + 4 * i}:{f + 3 + 4 * i}], v{8 + 4 * g2 + ks} offset:{off}")
        return L

    def stats_loads():
        for blk in range(2):
            for q4 in range(4):
                r = ST + 16 * blk + 4 * q4
                a(f"buffer_load_dwordx4 v[{r}:{r + 3}], v23, s[20:23], s38 offen offset:{256 * blk + 16 * q4} sc1")
        for T in range(2):
            a(f"buffer_load_dwordx2 v[{CSR + 2 * T}:{CSR + 1 + 2 * T}], v21, s[20:23], s52 offen offset:{T * 32} sc1")
        a("buffer_load_dword v25, v24, s[24:27], 0 offen sc1")

    def check_ops():
        L = [f"v_xor_b32 v26, v25, v{ST + 1}"]
        for r in range(1, 16):
            L.append(f"v_xor_b32 v27, v25, v{ST + 2 * r + 1}")
            L.append("v_or_b32 v26, v26, v27")
        for T in range(2):
            L.append(f"v_xor_b32 v27, v25, v{CSR + 1 + 2 * T}")
            L.append("v_or_b32 v26, v26, v27")
        for r in range(16):
            L.append(f"v_lshlrev_b32 v{ST + 2 * r + 1}, 16, v{ST + 2 * r}")
            L.append(f"v_rcp_f32 v{ST + 2 * r + 1}, v{ST + 2 * r + 1}")
            L.append(f"v_and_b32 v{ST + 2 * r}, s53, v{ST + 2 * r}")
        return L

    a("s_barrier")
    stamp(a, 2)
    for r in read_list(0):
        a(r)
    for u in range(NU):
        a("s_waitcnt lgkmcnt(0)")
        f = FB + 24 * (u % 2)
        nxt = read_list(u + 1) if u + 1 < NU else []
        n = 0
        for xi in range(4):
            for T in range(2):
                acc = ACC + (xi * 2 + T) * 4
                a(f"v_mfma_f32_16x16x32_bf16 v[{acc}:{acc + 3}], v[{f + 4 * xi}:{f + 3 + 4 * xi}], v[{f + 16 + 4 * T}:{f + 19 + 4 * T}], v[{acc}:{acc + 3}]")
                n += 1
                if n == 1 and nxt and (u + 1) % 2 == 0:
                    a("s_barrier")
                if nxt:
                    a(nxt.pop(0))
                if u == U1 and n == 7:
                    stats_loads()
    stamp(a, 3)
    a.label(f"{name}_chk")
    a("s_waitcnt vmcnt(0)")
    for op in check_ops():
        a(op)
    a("v_cmp_eq_u32 vcc, 0, v25")
    a("v_cmp_ne_u32 s[62:63], 0, v26")
    a("s_or_b64 s[62:63], s[62:63], vcc")
    a(f"s_cbranch_scc0 {name}_have")
    a("s_sleep 2")
    stats_loads()
    a("s_sub_u32 s69, s69, 1")
    a(f"s_cbranch_scc0 {name}_chk")
    a("s_mov_b32 s69, 0")
    a.label(f"{name}_have")
    stamp(a, 4)
    for blk in range(2):
        for T in range(2):
            o = 64 + 4 * (blk * 2 + T)
            for hb in range(2):
                acc = ACC + ((blk * 2 + hb) * 2 + T) * 4
                for j in range(4):
                    sr = ST + 16 * blk + 2 * (4 * hb + j)
                    a(f"v_fma_f32 v{acc + j}, -v{sr}, v{CSR + 2 * T}, v{acc + j}")
                    a(f"v_mul_f32 v{acc + j}, v{acc + j}, v{sr + 1}")
                a(f"v_cvt_pk_bf16_f32 v{o + 2 * hb}, v{acc}, v{acc + 1}")
                a(f"v_cvt_pk_bf16_f32 v{o + 2 * hb + 1}, v{acc + 2}, v{acc + 3}")
            a(f"buffer_store_dwordx4 v[{o}:{o + 3}], v22, s[20:23], s{54 + T} offen offset:{blk * 1024}" + (" sc0 sc1" if wt else ""))
    stamp(a, 5)
    a.label(f"{name}_fin")
    stamp_flush(a, 1, 6, 46, 47)
    a.label(f"{name}_done")
    a("s_endpgm")
    return kernel_desc(name, 152, 72, 152)


def gen_k3(a, name):
    kernel_begin(a, name)
    a("s_cmp_ge_u32 s2, 256")
    a(f"s_cbranch_scc1 {name}_done")
    stamp(a, 0)
    a("s_load_dwordx2 s[4:5], s[0:1], 0")
    a("s_load_dwordx2 s[6:7], s[0:1], 48")
    a("s_load_dwordx2 s[8:9], s[0:1], 80")
    a("s_load_dwordx2 s[10:11], s[0:1], 96")
    a("v_lshrrev_b32 v1, 6, v0")
    a("v_and_b32 v2, 63, v0")
    a("s_nop 0")
    a("v_readfirstlane_b32 s32, v1")
    a("v_lshlrev_b32 v3, 4, v2")
    a("s_waitcnt lgkmcnt(0)")
    stamp(a, 1)
    srd(a, 12, 4, 5, S * D * 2)
    srd(a, 16, 6, 7, D * 2)
    srd(a, 20, 8, 9, S * D * 2)
    srd(a, 24, 10, 11, 14 << 20)
    a("s_lshl_b32 s33, s2, 3")
    a("s_lshl_b32 s34, s32, 1")
    a("s_add_u32 s33, s33, s34")
    a("s_lshl_b32 s34, s33, 10")
    a(f"s_add_u32 s35, s34, {WS_P}")
    a(f"s_add_u32 s36, s34, {WS_P + (4 << 20)}")
    a(f"s_add_u32 s43, s34, {WS_P + (2 << 20)}")
    a(f"s_add_u32 s44, s34, {WS_P + (6 << 20)}")
    for R in range(2):
        B = 16 + 64 * R
        a(f"buffer_load_dwordx4 v[{B}:{B + 3}], v3, s[24:27], s35 offen offset:{1024 * R}")
        a(f"buffer_load_dwordx4 v[{B + 12}:{B + 15}], v3, s[24:27], s43 offen offset:{1024 * R}")
        a(f"buffer_load_dwordx4 v[{B + 4}:{B + 7}], v3, s[24:27], s36 offen offset:{1024 * R}")
        a(f"buffer_load_dwordx4 v[{B + 56}:{B + 59}], v3, s[24:27], s44 offen offset:{1024 * R}")
        a(f"buffer_load_dwordx4 v[{B + 8}:{B + 11}], v3, s[12:15], s34 offen offset:{1024 * R}")
    a("buffer_load_dwordx4 v[8:11], v3, s[16:19], 0 offen")
    a("s_mov_b32 s53, 0xffff0000")
    a("s_waitcnt vmcnt(1)")
    stamp(a, 2)

    def unpack(dst, src):
        a(f"v_lshlrev_b32 v{dst}, 16, v{src}")
        a(f"v_and_b32 v{dst + 1}, s53, v{src}")

    for R in range(2):
        B = 16 + 64 * R
        H, T = B + 16, B + 24
        for i in range(4):
            unpack(T, B + i)
            unpack(T + 2, B + 12 + i)
            unpack(T + 4, B + 4 + i)
            unpack(T + 6, B + 56 + i)
            a(f"v_add_f32 v{T}, v{T}, v{T + 2}")
            a(f"v_add_f32 v{T + 1}, v{T + 1}, v{T + 3}")
            a(f"v_add_f32 v{T + 4}, v{T + 4}, v{T + 6}")
            a(f"v_add_f32 v{T + 5}, v{T + 5}, v{T + 7}")
            a(f"v_cvt_pk_bf16_f32 v{T + 8}, v{T}, v{T + 1}")
            a(f"v_cvt_pk_bf16_f32 v{T + 9}, v{T + 4}, v{T + 5}")
            unpack(T, T + 8)
            unpack(T + 2, T + 9)
            a(f"v_sub_f32 v{T}, v{T}, v{T + 2}")
            a(f"v_sub_f32 v{T + 1}, v{T + 1}, v{T + 3}")
            a(f"v_cvt_pk_bf16_f32 v{T + 4}, v{T}, v{T + 1}")
            unpack(T, T + 4)
            unpack(T + 2, B + 8 + i)
            a(f"v_add_f32 v{T}, v{T + 2}, v{T}")
            a(f"v_add_f32 v{T + 1}, v{T + 3}, v{T + 1}")
            a(f"v_cvt_pk_bf16_f32 v{B + 40 + i}, v{T}, v{T + 1}")
            unpack(H + 2 * i, B + 40 + i)
        St = B + 48
        a(f"v_add_f32 v{St}, v{H}, v{H + 1}")
        for i in range(2, 8):
            a(f"v_add_f32 v{St}, v{St}, v{H + i}")
    for R in range(2):
        B = 16 + 64 * R
        wave_allreduce(a, "v_add_f32", B + 48, B + 49)
    for R in range(2):
        B = 16 + 64 * R
        H, T, St = B + 16, B + 24, B + 48
        a(f"v_mul_f32 v{St}, 0x3b000000, v{St}")
        a(f"v_cvt_pk_bf16_f32 v{St + 1}, v{St}, v{St}")
        a(f"v_lshlrev_b32 v{St + 1}, 16, v{St + 1}")
        for i in range(8):
            a(f"v_sub_f32 v{T + i}, v{H + i}, v{St}")
        a(f"v_mul_f32 v{St + 2}, v{T}, v{T}")
        for i in range(1, 8):
            a(f"v_fmac_f32 v{St + 2}, v{T + i}, v{T + i}")
    for R in range(2):
        B = 16 + 64 * R
        wave_allreduce(a, "v_add_f32", B + 50, B + 51)
    a("s_waitcnt vmcnt(0)")
    for R in range(2):
        B = 16 + 64 * R
        H, T, St = B + 16, B + 24, B + 48
        v = St + 2
        a(f"v_mul_f32 v{v}, 0x3b000000, v{v}")
        a(f"v_cvt_pk_bf16_f32 v{v}, v{v}, v{v}")
        a(f"v_lshlrev_b32 v{v}, 16, v{v}")
        a(f"v_add_f32 v{v}, 0x3727c5ac, v{v}")
        a(f"v_cvt_pk_bf16_f32 v{v}, v{v}, v{v}")
        a(f"v_lshlrev_b32 v{v}, 16, v{v}")
        a(f"v_sqrt_f32 v{v}, v{v}")
        a("s_nop 0")
        a(f"v_cvt_pk_bf16_f32 v{v}, v{v}, v{v}")
        a(f"v_lshlrev_b32 v{v}, 16, v{v}")
        a(f"v_rcp_f32 v{v}, v{v}")
        a("s_nop 0")
        a(f"v_mov_b32 v{St + 4}, 0")
        for i in range(4):
            a(f"v_sub_f32 v{T}, v{H + 2 * i}, v{St + 1}")
            a(f"v_sub_f32 v{T + 1}, v{H + 2 * i + 1}, v{St + 1}")
            a(f"v_cvt_pk_bf16_f32 v{T + 2}, v{T}, v{T + 1}")
            unpack(T, T + 2)
            a(f"v_mul_f32 v{T}, v{T}, v{v}")
            a(f"v_mul_f32 v{T + 1}, v{T + 1}, v{v}")
            a(f"v_cvt_pk_bf16_f32 v{B + 44 + i}, v{T}, v{T + 1}")
            unpack(T, B + 44 + i)
            a(f"v_add_f32 v{T}, v{H + 2 * i}, v{T}")
            a(f"v_add_f32 v{T + 1}, v{H + 2 * i + 1}, v{T + 1}")
            a(f"v_cvt_pk_bf16_f32 v{B + 4 + i}, v{T}, v{T + 1}")
            a(f"v_dot2_f32_bf16 v{St + 4}, v{B + 44 + i}, v{8 + i}, v{St + 4}")
        a(f"buffer_store_dwordx4 v[{B + 4}:{B + 7}], v3, s[20:23], s34 offen offset:{1024 * R}")
    a("s_nop 2")
    for R in range(2):
        B = 16 + 64 * R
        wave_allreduce(a, "v_add_f32", B + 52, B + 53)
    for R in range(2):
        B = 16 + 64 * R
        v = B + 52
        a(f"v_cvt_pk_bf16_f32 v{v}, v{v}, v{v}")
        a(f"v_lshlrev_b32 v{v}, 16, v{v}")
        a(f"v_ashrrev_i32 v{v + 1}, 31, v{v}")
        a(f"v_or_b32 v{v + 1}, 0x80000000, v{v + 1}")
        a(f"v_xor_b32 v{v}, v{v}, v{v + 1}")
        a(f"v_and_b32 v{v}, s53, v{v}")
        a(f"s_sub_u32 s37, {2047 - R}, s33")
        a(f"v_or_b32 v{v}, s37, v{v}")
    a("v_max_u32 v4, v68, v132")
    a("s_lshl_b32 s37, s32, 2")
    a("v_mov_b32 v5, s37")
    a("ds_write_b32 v5, v4")
    stamp(a, 3)
    a("s_waitcnt lgkmcnt(0)")
    a("s_barrier")
    a("v_mov_b32 v5, 0")
    a("ds_read_b128 v[12:15], v5")
    a("s_waitcnt lgkmcnt(0)")
    a("v_max_u32 v12, v12, v13")
    a("v_max_u32 v14, v14, v15")
    a("v_max_u32 v12, v12, v14")
    a("s_nop 0")
    a("v_readfirstlane_b32 s38, v12")
    a("v_readfirstlane_b32 s39, v68")
    a("v_readfirstlane_b32 s40, v132")
    a(f"s_lshl_b32 s41, s2, 11")
    a(f"s_add_u32 s41, s41, {WS_CROW}")
    a(f"s_lshl_b32 s42, s2, 2")
    a(f"s_add_u32 s42, s42, {WS_CAND}")
    a("v_mov_b32 v5, 0")
    for R in range(2):
        B = 16 + 64 * R
        a(f"s_cmp_lg_u32 s38, s{39 + R}")
        a(f"s_cbranch_scc1 {name}_nw{R}")
        a(f"buffer_store_dwordx4 v[{B + 40}:{B + 43}], v3, s[24:27], s41 offen")
        a(f"buffer_store_dwordx4 v[{B + 44}:{B + 47}], v3, s[24:27], s41 offen offset:1024")
        a(f"buffer_store_dword v12, v5, s[24:27], s42 offen")
        a.label(f"{name}_nw{R}")
    stamp_flush(a, 3, 4, 10, 11)
    a.label(f"{name}_done")
    a("s_endpgm")
    return kernel_desc(name, 144, 64, 144)


NSL = 56


def emit_winner(a, vkey, t, ldsaddr_tmp, s_out):
    wave_allreduce(a, "v_max_u32", vkey, t)
    a("s_lshl_b32 s37, s32, 2")
    a(f"v_mov_b32 v{ldsaddr_tmp}, s37")
    a(f"ds_write_b32 v{ldsaddr_tmp}, v{vkey}")
    a("s_waitcnt lgkmcnt(0)")
    a("s_barrier")
    a(f"v_mov_b32 v{ldsaddr_tmp}, 0")
    a(f"ds_read_b64 v[{t}:{t + 1}], v{ldsaddr_tmp}")
    a(f"ds_read_b64 v[{t + 2}:{t + 3}], v{ldsaddr_tmp} offset:8")
    a("s_waitcnt lgkmcnt(0)")
    a(f"v_max_u32 v{t}, v{t}, v{t + 1}")
    a(f"v_max_u32 v{t + 2}, v{t + 2}, v{t + 3}")
    a(f"v_max_u32 v{t}, v{t}, v{t + 2}")
    a("s_nop 0")
    a(f"v_readfirstlane_b32 s{s_out}, v{t}")


def gen_k4(a, name):
    kernel_begin(a, name)
    a(f"s_cmp_ge_u32 s2, {NSL}")
    a(f"s_cbranch_scc1 {name}_done")
    stamp(a, 0)
    a("s_load_dwordx4 s[4:7], s[0:1], 56")
    a("s_load_dwordx2 s[8:9], s[0:1], 72")
    a("s_load_dwordx2 s[10:11], s[0:1], 96")
    a("v_lshrrev_b32 v1, 6, v0")
    a("v_and_b32 v2, 63, v0")
    a("s_nop 0")
    a("v_readfirstlane_b32 s32, v1")
    a("v_lshrrev_b32 v3, 2, v0")
    a("v_and_b32 v4, 3, v0")
    a("v_lshlrev_b32 v5, 2, v0")
    a("s_mov_b32 s33, 28672")
    a("v_mul_lo_u32 v6, v3, s33")
    a("v_lshl_add_u32 v6, v4, 4, v6")
    a("v_lshlrev_b32 v7, 4, v2")
    a("s_waitcnt lgkmcnt(0)")
    stamp(a, 1)
    srd(a, 12, 4, 5, D * F * 2)
    srd(a, 16, 6, 7, D * F * 2)
    srd(a, 20, 8, 9, D * F * 2)
    srd(a, 24, 10, 11, 14 << 20)
    a(f"s_mov_b32 s34, {WS_CAND}")
    a("buffer_load_dword v8, v5, s[24:27], s34 offen")
    a("s_lshl_b32 s34, s2, 6")
    G, U, W = 32, 64, 96
    for j in range(8):
        a(f"s_add_u32 s35, s34, {3584 * j}")
        a(f"buffer_load_dwordx4 v[{G + 4 * j}:{G + 4 * j + 3}], v6, s[12:15], s35 offen")
        a(f"buffer_load_dwordx4 v[{U + 4 * j}:{U + 4 * j + 3}], v6, s[16:19], s35 offen")
    a("s_lshl_b32 s35, s2, 5")
    a("s_lshl_b32 s36, s32, 3")
    a("s_add_u32 s35, s35, s36")
    a("s_lshl_b32 s35, s35, 10")
    for j in range(8):
        a(f"s_add_u32 s36, s35, {1024 * j}")
        a(f"buffer_load_dwordx4 v[{W + 4 * j}:{W + 4 * j + 3}], v7, s[20:23], s36 offen")
    a("s_waitcnt vmcnt(24)")
    stamp(a, 2)
    emit_winner(a, 8, 12, 9, 38)
    stamp(a, 3)
    a("s_and_b32 s39, s38, 0xffff")
    a("s_sub_u32 s39, 2047, s39")
    a("s_lshr_b32 s39, s39, 3")
    a("s_lshl_b32 s39, s39, 11")
    a(f"s_add_u32 s39, s39, {WS_CROW + 1024}")
    a("v_lshlrev_b32 v9, 4, v3")
    a("v_add_u32 v9, s39, v9")
    a("buffer_load_dwordx4 v[12:15], v9, s[24:27], 0 offen")
    a("s_mov_b32 s53, 0xffff0000")
    A = 128
    for i in range(16):
        a(f"v_mov_b32 v{A + i}, 0")
    a("s_waitcnt vmcnt(0)")
    stamp(a, 4)
    X = 16
    for i in range(4):
        a(f"v_lshlrev_b32 v{X + 2 * i}, 16, v{12 + i}")
        a(f"v_and_b32 v{X + 2 * i + 1}, s53, v{12 + i}")
    for j in range(8):
        for (M, ao) in ((G, 0), (U, 8)):
            for i in range(4):
                t = 24 + 2 * (i & 1)
                a(f"v_lshlrev_b32 v{t}, 16, v{M + 4 * j + i}")
                a(f"v_and_b32 v{t + 1}, s53, v{M + 4 * j + i}")
                a(f"v_fmac_f32 v{A + ao + 2 * i}, v{X + j}, v{t}")
                a(f"v_fmac_f32 v{A + ao + 2 * i + 1}, v{X + j}, v{t + 1}")
    a("s_nop 1")
    for i in range(8):
        a(f"v_permlane32_swap_b32 v{A + i}, v{A + i + 8}")
    a("s_nop 1")
    for i in range(8):
        a(f"v_add_f32 v{A + i}, v{A + i}, v{A + i + 8}")
    a("s_nop 1")
    for i in range(4):
        a(f"v_permlane16_swap_b32 v{A + i}, v{A + i + 4}")
    a("s_nop 1")
    for i in range(4):
        a(f"v_add_f32 v{A + i}, v{A + i}, v{A + i + 4}")
    a("s_nop 1")
    for i in range(4):
        a(f"v_add_f32_dpp v{A + i}, v{A + i}, v{A + i} row_ror:4 {DPP}")
    a("s_nop 1")
    for i in range(4):
        a(f"v_add_f32_dpp v{A + i}, v{A + i}, v{A + i} row_ror:8 {DPP}")
    a("v_and_b32 v9, 3, v2")
    a("v_lshlrev_b32 v9, 5, v9")
    a("v_bfe_u32 v10, v2, 4, 1")
    a("v_lshl_add_u32 v9, v10, 4, v9")
    a("v_bfe_u32 v10, v2, 5, 1")
    a("v_lshl_add_u32 v9, v10, 7, v9")
    a("s_lshl_b32 s37, s32, 8")
    a("v_add_u32 v9, s37, v9")
    a(f"ds_write_b128 v9, v[{A}:{A + 3}] offset:64")
    a("s_waitcnt lgkmcnt(0)")
    a("s_barrier")
    stamp(a, 5)
    a("v_and_b32 v9, 31, v2")
    a("v_lshlrev_b32 v9, 2, v9")
    for w in range(4):
        a(f"ds_read_b32 v{16 + w}, v9 offset:{64 + 256 * w}")
        a(f"ds_read_b32 v{20 + w}, v9 offset:{64 + 256 * w + 128}")
    a("s_waitcnt lgkmcnt(0)")
    a("v_add_f32 v16, v16, v17")
    a("v_add_f32 v18, v18, v19")
    a("v_add_f32 v20, v20, v21")
    a("v_add_f32 v22, v22, v23")
    a("v_add_f32 v16, v16, v18")
    a("v_add_f32 v20, v20, v22")
    a("v_cvt_pk_bf16_f32 v16, v16, v20")
    a("v_and_b32 v20, s53, v16")
    a("v_lshlrev_b32 v16, 16, v16")
    a("v_mul_f32 v17, 0xbfb8aa3b, v16")
    a("v_exp_f32 v17, v17")
    a("s_nop 0")
    a("v_add_f32 v17, 1.0, v17")
    a("v_rcp_f32 v17, v17")
    a("s_nop 0")
    a("v_mul_f32 v16, v16, v17")
    a("v_cvt_pk_bf16_f32 v16, v16, v16")
    a("v_lshlrev_b32 v16, 16, v16")
    a("v_mul_f32 v16, v16, v20")
    a("v_cvt_pk_bf16_f32 v16, v16, v16")
    a("v_lshlrev_b32 v16, 16, v16")
    a("s_lshl_b32 s37, s32, 3")
    for j in range(8):
        a(f"s_add_u32 s36, s37, {j}")
        a("s_nop 0")
        a(f"v_readlane_b32 s{40 + j}, v16, s36")
    for i in range(8):
        a(f"v_mov_b32 v{A + i}, 0")
    a("s_nop 1")
    for j in range(8):
        for i in range(4):
            t = 24 + 2 * (i & 1)
            a(f"v_lshlrev_b32 v{t}, 16, v{W + 4 * j + i}")
            a(f"v_and_b32 v{t + 1}, s53, v{W + 4 * j + i}")
            a(f"v_fmac_f32 v{A + 2 * i}, s{40 + j}, v{t}")
            a(f"v_fmac_f32 v{A + 2 * i + 1}, s{40 + j}, v{t + 1}")
    a("v_lshlrev_b32 v9, 5, v2")
    a("s_lshl_b32 s37, s32, 11")
    a("v_add_u32 v9, s37, v9")
    a(f"ds_write_b128 v9, v[{A}:{A + 3}] offset:2048")
    a(f"ds_write_b128 v9, v[{A + 4}:{A + 7}] offset:2064")
    a("s_waitcnt lgkmcnt(0)")
    a("s_barrier")
    a("v_lshlrev_b32 v9, 3, v0")
    for w in range(4):
        a(f"ds_read_b64 v[{16 + 2 * w}:{17 + 2 * w}], v9 offset:{2048 + 2048 * w}")
    a("s_waitcnt lgkmcnt(0)")
    a("v_add_f32 v16, v16, v18")
    a("v_add_f32 v17, v17, v19")
    a("v_add_f32 v20, v20, v22")
    a("v_add_f32 v21, v21, v23")
    a("v_add_f32 v16, v16, v20")
    a("v_add_f32 v17, v17, v21")
    a("s_lshl_b32 s37, s2, 11")
    a(f"s_add_u32 s37, s37, {WS_SLAB}")
    a("buffer_store_dwordx2 v[16:17], v9, s[24:27], s37 offen")
    stamp_flush(a, 4, 6, 10, 11)
    a.label(f"{name}_done")
    a("s_endpgm")
    return kernel_desc(name, 144, 64, 144)


def gen_k3b(a, name, wpf=0):
    kernel_begin(a, name)
    a("s_cmp_ge_u32 s2, 256")
    a(f"s_cbranch_scc1 {name}_done")
    stamp(a, 0)
    a("s_load_dwordx2 s[4:5], s[0:1], 0")
    a("s_load_dwordx2 s[6:7], s[0:1], 48")
    a("s_load_dwordx2 s[8:9], s[0:1], 80")
    a("s_load_dwordx2 s[10:11], s[0:1], 96")
    if wpf:
        a("s_load_dwordx4 s[56:59], s[0:1], 56")
        a("s_load_dwordx2 s[60:61], s[0:1], 72")
    a("v_lshrrev_b32 v1, 6, v0")
    a("v_and_b32 v2, 63, v0")
    a("s_nop 0")
    a("v_readfirstlane_b32 s32, v1")
    a("v_lshlrev_b32 v3, 4, v2")
    a("s_lshl_b32 s33, s2, 3")
    a("s_add_u32 s33, s33, s32")
    a("s_lshl_b32 s34, s33, 10")
    a(f"s_add_u32 s35, s34, {WS_P}")
    a(f"s_add_u32 s36, s34, {WS_P + (4 << 20)}")
    a(f"s_add_u32 s43, s34, {WS_P + (2 << 20)}")
    a(f"s_add_u32 s44, s34, {WS_P + (6 << 20)}")
    a("s_mov_b32 s53, 0xffff0000")
    a("s_waitcnt lgkmcnt(0)")
    stamp(a, 1)
    srd(a, 24, 10, 11, 14 << 20)
    B = 16
    a(f"buffer_load_dwordx4 v[{B}:{B + 3}], v3, s[24:27], s35 offen")
    a(f"buffer_load_dwordx4 v[{B + 12}:{B + 15}], v3, s[24:27], s43 offen")
    a(f"buffer_load_dwordx4 v[{B + 4}:{B + 7}], v3, s[24:27], s36 offen")
    a(f"buffer_load_dwordx4 v[{B + 56}:{B + 59}], v3, s[24:27], s44 offen")
    srd(a, 12, 4, 5, S * D * 2)
    a(f"buffer_load_dwordx4 v[{B + 8}:{B + 11}], v3, s[12:15], s34 offen")
    srd(a, 16, 6, 7, D * 2)
    a("buffer_load_dwordx4 v[8:11], v3, s[16:19], 0 offen")
    if wpf:
        a("s_sub_u32 s45, s32, 5")
        a("s_min_u32 s45, s45, 3")
        emit_wtouch(a, "s45", 120, 121)
    srd(a, 20, 8, 9, S * D * 2)
    a(f"s_waitcnt vmcnt({2 if wpf else 1})")
    stamp(a, 2)

    def unpack(dst, src):
        a(f"v_lshlrev_b32 v{dst}, 16, v{src}")
        a(f"v_and_b32 v{dst + 1}, s53, v{src}")

    H = B + 16
    TT = [80 + 10 * i for i in range(4)]
    steps = []
    for i in range(4):
        T = TT[i]
        steps.append([
            f"v_lshlrev_b32 v{T}, 16, v{B + i}", f"v_and_b32 v{T + 1}, s53, v{B + i}",
            f"v_lshlrev_b32 v{T + 2}, 16, v{B + 12 + i}", f"v_and_b32 v{T + 3}, s53, v{B + 12 + i}",
            f"v_lshlrev_b32 v{T + 4}, 16, v{B + 4 + i}", f"v_and_b32 v{T + 5}, s53, v{B + 4 + i}",
            f"v_lshlrev_b32 v{T + 6}, 16, v{B + 56 + i}", f"v_and_b32 v{T + 7}, s53, v{B + 56 + i}",
            f"v_add_f32 v{T}, v{T}, v{T + 2}", f"v_add_f32 v{T + 1}, v{T + 1}, v{T + 3}",
            f"v_add_f32 v{T + 4}, v{T + 4}, v{T + 6}", f"v_add_f32 v{T + 5}, v{T + 5}, v{T + 7}",
            f"v_cvt_pk_bf16_f32 v{T + 8}, v{T}, v{T + 1}", f"v_cvt_pk_bf16_f32 v{T + 9}, v{T + 4}, v{T + 5}",
            f"v_lshlrev_b32 v{T}, 16, v{T + 8}", f"v_and_b32 v{T + 1}, s53, v{T + 8}",
            f"v_lshlrev_b32 v{T + 2}, 16, v{T + 9}", f"v_and_b32 v{T + 3}, s53, v{T + 9}",
            f"v_sub_f32 v{T}, v{T}, v{T + 2}", f"v_sub_f32 v{T + 1}, v{T + 1}, v{T + 3}",
            f"v_cvt_pk_bf16_f32 v{T + 4}, v{T}, v{T + 1}",
            f"v_lshlrev_b32 v{T}, 16, v{T + 4}", f"v_and_b32 v{T + 1}, s53, v{T + 4}",
            f"v_lshlrev_b32 v{T + 2}, 16, v{B + 8 + i}", f"v_and_b32 v{T + 3}, s53, v{B + 8 + i}",
            f"v_add_f32 v{T}, v{T + 2}, v{T}", f"v_add_f32 v{T + 1}, v{T + 3}, v{T + 1}",
            f"v_cvt_pk_bf16_f32 v{B + 40 + i}, v{T}, v{T + 1}",
            f"v_lshlrev_b32 v{H + 2 * i}, 16, v{B + 40 + i}", f"v_and_b32 v{H + 2 * i + 1}, s53, v{B + 40 + i}",
        ])
    for k in range(len(steps[0])):
        for i in range(4):
            a(steps[i][k])
    St = B + 48
    a(f"v_add_f32 v{St}, v{H}, v{H + 1}")
    a(f"v_add_f32 v{St + 1}, v{H + 2}, v{H + 3}")
    a(f"v_add_f32 v{St + 2}, v{H + 4}, v{H + 5}")
    a(f"v_add_f32 v{St + 3}, v{H + 6}, v{H + 7}")
    a(f"v_add_f32 v{St}, v{St}, v{St + 1}")
    a(f"v_add_f32 v{St + 2}, v{St + 2}, v{St + 3}")
    a(f"v_add_f32 v{St}, v{St}, v{St + 2}")
    wave_allreduce(a, "v_add_f32", St, St + 1)
    T = 80
    a(f"v_mul_f32 v{St}, 0x3b000000, v{St}")
    for i in range(8):
        a(f"v_sub_f32 v{T + i}, v{H + i}, v{St}")
    a(f"v_cvt_pk_bf16_f32 v{St + 1}, v{St}, v{St}")
    a(f"v_mul_f32 v{St + 2}, v{T}, v{T}")
    a(f"v_mul_f32 v{St + 3}, v{T + 1}, v{T + 1}")
    a(f"v_lshlrev_b32 v{St + 1}, 16, v{St + 1}")
    for i in range(2, 8, 2):
        a(f"v_fmac_f32 v{St + 2}, v{T + i}, v{T + i}")
        a(f"v_fmac_f32 v{St + 3}, v{T + i + 1}, v{T + i + 1}")
    a(f"v_add_f32 v{St + 2}, v{St + 2}, v{St + 3}")
    for i in range(8):
        a(f"v_sub_f32 v{T + 10 + i}, v{H + i}, v{St + 1}")
    for i in range(4):
        a(f"v_cvt_pk_bf16_f32 v{T + 20 + i}, v{T + 10 + 2 * i}, v{T + 11 + 2 * i}")
    for i in range(4):
        unpack(T + 10 + 2 * i, T + 20 + i)
    wave_allreduce(a, "v_add_f32", St + 2, St + 3)
    v = St + 2
    a(f"v_mul_f32 v{v}, 0x3b000000, v{v}")
    a(f"v_cvt_pk_bf16_f32 v{v}, v{v}, v{v}")
    a(f"v_lshlrev_b32 v{v}, 16, v{v}")
    a(f"v_add_f32 v{v}, 0x3727c5ac, v{v}")
    a(f"v_cvt_pk_bf16_f32 v{v}, v{v}, v{v}")
    a(f"v_lshlrev_b32 v{v}, 16, v{v}")
    a(f"v_sqrt_f32 v{v}, v{v}")
    a("s_nop 0")
    a(f"v_cvt_pk_bf16_f32 v{v}, v{v}, v{v}")
    a(f"v_lshlrev_b32 v{v}, 16, v{v}")
    a(f"v_rcp_f32 v{v}, v{v}")
    a(f"s_waitcnt vmcnt({1 if wpf else 0})")
    for i in range(8):
        a(f"v_mul_f32 v{T + 10 + i}, v{T + 10 + i}, v{v}")
    for i in range(4):
        a(f"v_cvt_pk_bf16_f32 v{B + 44 + i}, v{T + 10 + 2 * i}, v{T + 11 + 2 * i}")
    for i in range(4):
        unpack(T + 10 + 2 * i, B + 44 + i)
        unpack(T + 2 * i, 8 + i)
    a(f"v_mul_f32 v{St + 4}, v{T + 10}, v{T}")
    a(f"v_mul_f32 v{St + 5}, v{T + 11}, v{T + 1}")
    for i in range(2, 8, 2):
        a(f"v_fmac_f32 v{St + 4}, v{T + 10 + i}, v{T + i}")
        a(f"v_fmac_f32 v{St + 5}, v{T + 11 + i}, v{T + i + 1}")
    a(f"v_add_f32 v{St + 4}, v{St + 4}, v{St + 5}")
    for i in range(8):
        a(f"v_add_f32 v{T + 20 + i}, v{H + i}, v{T + 10 + i}")
    for i in range(4):
        a(f"v_cvt_pk_bf16_f32 v{B + 4 + i}, v{T + 20 + 2 * i}, v{T + 21 + 2 * i}")
    a(f"buffer_store_dwordx4 v[{B + 4}:{B + 7}], v3, s[20:23], s34 offen")
    wave_allreduce(a, "v_add_f32", St + 4, St + 5)
    v = St + 4
    a(f"v_cvt_pk_bf16_f32 v{v}, v{v}, v{v}")
    a(f"v_lshlrev_b32 v{v}, 16, v{v}")
    a(f"v_ashrrev_i32 v{v + 1}, 31, v{v}")
    a(f"v_or_b32 v{v + 1}, 0x80000000, v{v + 1}")
    a(f"v_xor_b32 v{v}, v{v}, v{v + 1}")
    a(f"v_and_b32 v{v}, s53, v{v}")
    a("s_sub_u32 s37, 2047, s33")
    a(f"v_or_b32 v{v}, s37, v{v}")
    a("s_lshl_b32 s37, s32, 2")
    a("v_mov_b32 v5, s37")
    a(f"ds_write_b32 v5, v{v}")
    stamp(a, 3)
    a("s_waitcnt lgkmcnt(0)")
    a("s_barrier")
    a("v_mov_b32 v5, 0")
    a("ds_read_b128 v[12:15], v5")
    a("ds_read_b128 v[80:83], v5 offset:16")
    a(f"v_readfirstlane_b32 s39, v{v}")
    a(f"s_lshl_b32 s41, s2, 11")
    a(f"s_add_u32 s41, s41, {WS_CROW}")
    a(f"s_lshl_b32 s42, s2, 2")
    a(f"s_add_u32 s42, s42, {WS_CAND}")
    a("s_waitcnt lgkmcnt(0)")
    a("v_max3_u32 v12, v12, v13, v14")
    a("v_max3_u32 v80, v80, v81, v82")
    a("v_max3_u32 v12, v12, v15, v83")
    a("v_max_u32 v12, v12, v80")
    a("s_nop 0")
    a("v_readfirstlane_b32 s38, v12")
    a("s_cmp_lg_u32 s38, s39")
    a(f"s_cbranch_scc1 {name}_nw")
    a(f"buffer_store_dwordx4 v[{B + 40}:{B + 43}], v3, s[24:27], s41 offen")
    a(f"buffer_store_dwordx4 v[{B + 44}:{B + 47}], v3, s[24:27], s41 offen offset:1024")
    a(f"buffer_store_dword v12, v5, s[24:27], s42 offen")
    a.label(f"{name}_nw")
    stamp_flush(a, 3, 4, 10, 11)
    a.label(f"{name}_done")
    a("s_endpgm")
    return kernel_desc(name, 128, 64, 128)


def emit_winner_wave(a, v4, t, s_out):
    a(f"v_max3_u32 v{v4}, v{v4}, v{v4 + 1}, v{v4 + 2}")
    a(f"v_max_u32 v{v4}, v{v4}, v{v4 + 3}")
    wave_allreduce(a, "v_max_u32", v4, t)
    a("s_nop 0")
    a(f"v_readfirstlane_b32 s{s_out}, v{v4}")


def gen_k4b(a, name):
    kernel_begin(a, name)
    a(f"s_cmp_ge_u32 s2, {NSL}")
    a(f"s_cbranch_scc1 {name}_done")
    stamp(a, 0)
    a("s_load_dwordx2 s[10:11], s[0:1], 96")
    a("s_load_dwordx4 s[4:7], s[0:1], 56")
    a("s_load_dwordx2 s[8:9], s[0:1], 72")
    a("v_lshrrev_b32 v1, 6, v0")
    a("v_and_b32 v2, 63, v0")
    a("s_nop 0")
    a("v_readfirstlane_b32 s32, v1")
    a("v_lshrrev_b32 v3, 2, v0")
    a("v_and_b32 v4, 3, v0")
    a("s_mov_b32 s33, 14336")
    a("v_mul_lo_u32 v6, v3, s33")
    a("v_lshl_add_u32 v6, v4, 4, v6")
    a("v_lshlrev_b32 v7, 4, v2")
    a("s_lshl_b32 s34, s2, 6")
    a("s_lshl_b32 s35, s2, 5")
    a("s_lshl_b32 s36, s32, 2")
    a("s_add_u32 s35, s35, s36")
    a("s_lshl_b32 s35, s35, 10")
    a(f"s_mov_b32 s37, {WS_CAND}")
    a("s_mov_b32 s53, 0xffff0000")
    a("s_waitcnt lgkmcnt(0)")
    stamp(a, 1)
    srd(a, 24, 10, 11, 14 << 20)
    a("buffer_load_dwordx4 v[8:11], v7, s[24:27], s37 offen")
    srd(a, 12, 4, 5, D * F * 2)
    srd(a, 16, 6, 7, D * F * 2)
    srd(a, 20, 8, 9, D * F * 2)
    G, U, W = 32, 48, 64
    for j in range(4):
        a(f"s_add_u32 s36, s34, {3584 * j}")
        a(f"buffer_load_dwordx4 v[{G + 4 * j}:{G + 4 * j + 3}], v6, s[12:15], s36 offen")
        a(f"buffer_load_dwordx4 v[{U + 4 * j}:{U + 4 * j + 3}], v6, s[16:19], s36 offen")
    a("s_waitcnt vmcnt(8)")
    stamp(a, 2)
    emit_winner_wave(a, 8, 12, 38)
    a("s_and_b32 s39, s38, 0xffff")
    a("s_sub_u32 s39, 2047, s39")
    a("s_lshr_b32 s39, s39, 3")
    a("s_lshl_b32 s39, s39, 11")
    a(f"s_add_u32 s39, s39, {WS_CROW + 1024}")
    a("v_lshlrev_b32 v9, 3, v3")
    a("v_add_u32 v9, s39, v9")
    a("buffer_load_dwordx2 v[12:13], v9, s[24:27], 0 offen")
    stamp(a, 3)
    for j in range(4):
        a(f"buffer_load_dwordx4 v[{W + 4 * j}:{W + 4 * j + 3}], v7, s[20:23], s35 offen offset:{1024 * j}")
    A = 96
    for i in range(16):
        a(f"v_mov_b32 v{A + i}, 0")
    a("s_waitcnt vmcnt(4)")
    stamp(a, 4)
    X = 16
    for i in range(2):
        a(f"v_lshlrev_b32 v{X + 2 * i}, 16, v{12 + i}")
        a(f"v_and_b32 v{X + 2 * i + 1}, s53, v{12 + i}")
    for j in range(4):
        for (M, ao) in ((G, 0), (U, 8)):
            for i in range(4):
                t = 24 + 2 * (i & 3)
                a(f"v_lshlrev_b32 v{t}, 16, v{M + 4 * j + i}")
                a(f"v_and_b32 v{t + 1}, s53, v{M + 4 * j + i}")
            for i in range(4):
                t = 24 + 2 * (i & 3)
                a(f"v_fmac_f32 v{A + ao + 2 * i}, v{X + j}, v{t}")
                a(f"v_fmac_f32 v{A + ao + 2 * i + 1}, v{X + j}, v{t + 1}")
    a("s_nop 1")
    for i in range(8):
        a(f"v_permlane32_swap_b32 v{A + i}, v{A + i + 8}")
    a("s_nop 1")
    for i in range(8):
        a(f"v_add_f32 v{A + i}, v{A + i}, v{A + i + 8}")
    a("s_nop 1")
    for i in range(4):
        a(f"v_permlane16_swap_b32 v{A + i}, v{A + i + 4}")
    a("s_nop 1")
    for i in range(4):
        a(f"v_add_f32 v{A + i}, v{A + i}, v{A + i + 4}")
    a("s_nop 1")
    for i in range(4):
        a(f"v_add_f32_dpp v{A + i}, v{A + i}, v{A + i} row_ror:4 {DPP}")
    a("s_nop 1")
    for i in range(4):
        a(f"v_add_f32_dpp v{A + i}, v{A + i}, v{A + i} row_ror:8 {DPP}")
    a("v_and_b32 v9, 3, v2")
    a("v_lshlrev_b32 v9, 5, v9")
    a("v_bfe_u32 v10, v2, 4, 1")
    a("v_lshl_add_u32 v9, v10, 4, v9")
    a("v_bfe_u32 v10, v2, 5, 1")
    a("v_lshl_add_u32 v9, v10, 7, v9")
    a("s_lshl_b32 s37, s32, 8")
    a("v_add_u32 v9, s37, v9")
    a(f"ds_write_b128 v9, v[{A}:{A + 3}]")
    a("s_waitcnt lgkmcnt(0)")
    a("s_barrier")
    stamp(a, 5)
    a("v_lshlrev_b32 v9, 2, v2")
    for w in range(8):
        a(f"ds_read_b32 v{16 + w}, v9 offset:{256 * w}")
    a("s_waitcnt lgkmcnt(0)")
    a("v_add_f32 v16, v16, v17")
    a("v_add_f32 v18, v18, v19")
    a("v_add_f32 v20, v20, v21")
    a("v_add_f32 v22, v22, v23")
    a("v_add_f32 v16, v16, v18")
    a("v_add_f32 v20, v20, v22")
    a("v_add_f32 v16, v16, v20")
    a("v_mov_b32 v20, v16")
    a("s_nop 1")
    a("v_permlane32_swap_b32 v16, v20")
    a("s_nop 1")
    a("v_cvt_pk_bf16_f32 v16, v16, v20")
    a("v_and_b32 v20, s53, v16")
    a("v_lshlrev_b32 v16, 16, v16")
    a("v_mul_f32 v17, 0xbfb8aa3b, v16")
    a("v_exp_f32 v17, v17")
    a("s_nop 0")
    a("v_add_f32 v17, 1.0, v17")
    a("v_rcp_f32 v17, v17")
    a("s_nop 0")
    a("v_mul_f32 v16, v16, v17")
    a("v_cvt_pk_bf16_f32 v16, v16, v16")
    a("v_lshlrev_b32 v16, 16, v16")
    a("v_mul_f32 v16, v16, v20")
    a("v_cvt_pk_bf16_f32 v16, v16, v16")
    a("v_lshlrev_b32 v16, 16, v16")
    a("s_lshl_b32 s37, s32, 2")
    for j in range(4):
        a(f"s_add_u32 s36, s37, {j}")
        a("s_nop 0")
        a(f"v_readlane_b32 s{40 + j}, v16, s36")
    a("s_waitcnt vmcnt(0)")
    for j in range(4):
        for i in range(4):
            t = 24 + 2 * i
            a(f"v_lshlrev_b32 v{t}, 16, v{W + 4 * j + i}")
            a(f"v_and_b32 v{t + 1}, s53, v{W + 4 * j + i}")
        for i in range(4):
            t = 24 + 2 * i
            if j == 0:
                a(f"v_mul_f32 v{A + 2 * i}, s{40 + j}, v{t}")
                a(f"v_mul_f32 v{A + 2 * i + 1}, s{40 + j}, v{t + 1}")
            else:
                a(f"v_fmac_f32 v{A + 2 * i}, s{40 + j}, v{t}")
                a(f"v_fmac_f32 v{A + 2 * i + 1}, s{40 + j}, v{t + 1}")
    a("v_lshlrev_b32 v9, 5, v2")
    a("s_lshl_b32 s37, s32, 11")
    a("v_add_u32 v9, s37, v9")
    a(f"ds_write_b128 v9, v[{A}:{A + 3}] offset:2048")
    a(f"ds_write_b128 v9, v[{A + 4}:{A + 7}] offset:2064")
    a("s_waitcnt lgkmcnt(0)")
    a("s_barrier")
    a("v_lshlrev_b32 v9, 2, v0")
    for w in range(8):
        a(f"ds_read_b32 v{16 + w}, v9 offset:{2048 + 2048 * w}")
    a("s_lshl_b32 s37, s2, 11")
    a(f"s_add_u32 s37, s37, {WS_SLAB}")
    a("s_waitcnt lgkmcnt(0)")
    a("v_add_f32 v16, v16, v17")
    a("v_add_f32 v18, v18, v19")
    a("v_add_f32 v20, v20, v21")
    a("v_add_f32 v22, v22, v23")
    a("v_add_f32 v16, v16, v18")
    a("v_add_f32 v20, v20, v22")
    a("v_add_f32 v16, v16, v20")
    a("buffer_store_dword v16, v9, s[24:27], s37 offen")
    stamp_flush(a, 4, 6, 10, 11)
    a.label(f"{name}_done")
    a("s_endpgm")
    return kernel_desc(name, 112, 64, 112)


WS_NONCE = 13 << 20
WS_ANN = WS_NONCE + 128
WS_KEYS = WS_NONCE + 4096
WS_ROWS = WS_NONCE + 8192
WS_SLABS = 15 << 20
WS_FLAG2 = (15 << 20) + (1 << 19)


KSLEEP, SSLEEP, FSLEEP, ASLEEP = 1, 1, 1, 8


def gen_kt(a, name, fused=0):
    SLOT = "s63" if fused else "s2"
    LP = " sc1" if fused else ""
    if not fused:
        kernel_begin(a, name)
        a("s_cmp_ge_u32 s2, 256")
        a(f"s_cbranch_scc1 {name}_done")
    stamp(a, 0)
    a("s_load_dwordx2 s[10:11], s[0:1], 96")
    a("s_load_dwordx2 s[4:5], s[0:1], 0")
    a("s_load_dwordx2 s[6:7], s[0:1], 48")
    a("s_load_dwordx2 s[8:9], s[0:1], 80")
    a("s_load_dwordx4 s[56:59], s[0:1], 56")
    a("s_load_dwordx2 s[60:61], s[0:1], 72")
    if fused:
        a("v_mbcnt_lo_u32_b32 v2, -1, 0")
        a("v_mbcnt_hi_u32_b32 v2, -1, v2")
        a("s_lshl_b32 s33, s32, 6")
        a("v_add_u32 v0, s33, v2")
    else:
        a("v_lshrrev_b32 v1, 6, v0")
        a("v_and_b32 v2, 63, v0")
        a("s_nop 0")
        a("v_readfirstlane_b32 s32, v1")
    a("v_lshlrev_b32 v3, 4, v2")
    a(f"s_lshl_b32 s33, {SLOT}, 3")
    a("s_add_u32 s33, s33, s32")
    a("s_lshl_b32 s34, s33, 10")
    a(f"s_add_u32 s35, s34, {WS_P}")
    a(f"s_add_u32 s36, s34, {WS_P + (4 << 20)}")
    a(f"s_add_u32 s43, s34, {WS_P + (2 << 20)}")
    a(f"s_add_u32 s44, s34, {WS_P + (6 << 20)}")
    a("s_mov_b32 s53, 0xffff0000")
    a("s_mov_b32 s69, 0x40000")
    a(f"s_mov_b32 s45, {WS_NONCE}")
    a("v_mov_b32 v5, 0")
    a("v_lshrrev_b32 v6, 2, v0")
    a("s_mov_b32 s46, 14336")
    a("v_mul_lo_u32 v7, v6, s46")
    a("v_and_b32 v4, 3, v0")
    a("v_lshl_add_u32 v7, v4, 4, v7")
    a("v_lshlrev_b32 v4, 5, v2")
    a("s_waitcnt lgkmcnt(0)")
    stamp(a, 1)
    srd(a, 24, 10, 11, 16 << 20)
    srd(a, 20, 8, 9, S * D * 2)
    P0, P2, XX, P1, P3 = 16, 20, 24, 28, 12

    def p_loads():
        a(f"buffer_load_dwordx4 v[{P0}:{P0 + 3}], v3, s[24:27], s35 offen{LP}")
        a(f"buffer_load_dwordx4 v[{P1}:{P1 + 3}], v3, s[24:27], s43 offen{LP}")
        a(f"buffer_load_dwordx4 v[{P2}:{P2 + 3}], v3, s[24:27], s36 offen{LP}")
        a(f"buffer_load_dwordx4 v[{P3}:{P3 + 3}], v3, s[24:27], s44 offen{LP}")

    if fused:
        a("buffer_load_dword v88, v5, s[24:27], s45 offen")
        srd(a, 12, 4, 5, S * D * 2)
        a(f"buffer_load_dwordx4 v[{XX}:{XX + 3}], v3, s[12:15], s34 offen")
        srd(a, 16, 6, 7, D * 2)
        a("buffer_load_dwordx4 v[8:11], v3, s[16:19], 0 offen")
        a("s_cmp_lg_u32 s32, 0")
        a(f"s_cbranch_scc1 {name}_nf")
        a("s_lshl_b32 s46, s63, 7")
        a(f"s_add_u32 s46, s46, {WS_FLAG2}")
        a("s_waitcnt vmcnt(2)")
        a("buffer_store_dword v88, v5, s[24:27], s46 offen sc0 sc1")
        a.label(f"{name}_nf")
        a("s_cmp_lg_u32 s32, 4")
        a(f"s_cbranch_scc1 {name}_np")
        a("s_lshr_b32 s46, s63, 4")
        a("s_lshl_b32 s46, s46, 11")
        a(f"s_add_u32 s46, s46, {WS_FLAG2}")
        a("v_and_b32 v56, 15, v2")
        a("v_lshlrev_b32 v56, 7, v56")
        a.label(f"{name}_fp")
        a("buffer_load_dword v57, v56, s[24:27], s46 offen sc1")
        a("s_waitcnt vmcnt(0)")
        a("v_cmp_ne_u32 vcc, v57, v88")
        a("s_or_b32 s47, vcc_lo, vcc_hi")
        a(f"s_cbranch_scc0 {name}_np")
        a(f"s_sleep {FSLEEP}")
        a("s_sub_u32 s69, s69, 1")
        a(f"s_cbranch_scc0 {name}_fp")
        a("s_mov_b32 s69, 0")
        a.label(f"{name}_np")
        a("s_barrier")
        p_loads()
    else:
        p_loads()
        srd(a, 12, 4, 5, S * D * 2)
        a(f"buffer_load_dwordx4 v[{XX}:{XX + 3}], v3, s[12:15], s34 offen")
        srd(a, 16, 6, 7, D * 2)
        a("buffer_load_dwordx4 v[8:11], v3, s[16:19], 0 offen")
        a("buffer_load_dword v88, v5, s[24:27], s45 offen")
    G, U = 96, 112
    a(f"s_waitcnt vmcnt({0 if fused else 2})")
    stamp(a, 2)

    def unpack(dst, src):
        a(f"v_lshlrev_b32 v{dst}, 16, v{src}")
        a(f"v_and_b32 v{dst + 1}, s53, v{src}")

    H, HP, HN, St = 32, 40, 44, 48
    for half in range(2):
        steps = []
        for ii in range(2):
            i = 2 * half + ii
            T = 56 + 10 * ii
            steps.append([
                f"v_lshlrev_b32 v{T}, 16, v{P0 + i}", f"v_and_b32 v{T + 1}, s53, v{P0 + i}",
                f"v_lshlrev_b32 v{T + 2}, 16, v{P1 + i}", f"v_and_b32 v{T + 3}, s53, v{P1 + i}",
                f"v_lshlrev_b32 v{T + 4}, 16, v{P2 + i}", f"v_and_b32 v{T + 5}, s53, v{P2 + i}",
                f"v_lshlrev_b32 v{T + 6}, 16, v{P3 + i}", f"v_and_b32 v{T + 7}, s53, v{P3 + i}",
                f"v_add_f32 v{T}, v{T}, v{T + 2}", f"v_add_f32 v{T + 1}, v{T + 1}, v{T + 3}",
                f"v_add_f32 v{T + 4}, v{T + 4}, v{T + 6}", f"v_add_f32 v{T + 5}, v{T + 5}, v{T + 7}",
                f"v_cvt_pk_bf16_f32 v{T + 8}, v{T}, v{T + 1}", f"v_cvt_pk_bf16_f32 v{T + 9}, v{T + 4}, v{T + 5}",
                f"v_lshlrev_b32 v{T}, 16, v{T + 8}", f"v_and_b32 v{T + 1}, s53, v{T + 8}",
                f"v_lshlrev_b32 v{T + 2}, 16, v{T + 9}", f"v_and_b32 v{T + 3}, s53, v{T + 9}",
                f"v_sub_f32 v{T}, v{T}, v{T + 2}", f"v_sub_f32 v{T + 1}, v{T + 1}, v{T + 3}",
                f"v_cvt_pk_bf16_f32 v{T + 4}, v{T}, v{T + 1}",
                f"v_lshlrev_b32 v{T}, 16, v{T + 4}", f"v_and_b32 v{T + 1}, s53, v{T + 4}",
                f"v_lshlrev_b32 v{T + 2}, 16, v{XX + i}", f"v_and_b32 v{T + 3}, s53, v{XX + i}",
                f"v_add_f32 v{T}, v{T + 2}, v{T}", f"v_add_f32 v{T + 1}, v{T + 3}, v{T + 1}",
                f"v_cvt_pk_bf16_f32 v{HP + i}, v{T}, v{T + 1}",
                f"v_lshlrev_b32 v{H + 2 * i}, 16, v{HP + i}", f"v_and_b32 v{H + 2 * i + 1}, s53, v{HP + i}",
            ])
        for k in range(len(steps[0])):
            for ii in range(2):
                a(steps[ii][k])
    a(f"v_add_f32 v{St}, v{H}, v{H + 1}")
    a(f"v_add_f32 v{St + 1}, v{H + 2}, v{H + 3}")
    a(f"v_add_f32 v{St + 2}, v{H + 4}, v{H + 5}")
    a(f"v_add_f32 v{St + 3}, v{H + 6}, v{H + 7}")
    a(f"v_add_f32 v{St}, v{St}, v{St + 1}")
    a(f"v_add_f32 v{St + 2}, v{St + 2}, v{St + 3}")
    a(f"v_add_f32 v{St}, v{St}, v{St + 2}")
    wave_allreduce(a, "v_add_f32", St, St + 1)
    T = 56
    a(f"v_mul_f32 v{St}, 0x3b000000, v{St}")
    for i in range(8):
        a(f"v_sub_f32 v{T + i}, v{H + i}, v{St}")
    a(f"v_cvt_pk_bf16_f32 v{St + 1}, v{St}, v{St}")
    a(f"v_mul_f32 v{St + 2}, v{T}, v{T}")
    a(f"v_mul_f32 v{St + 3}, v{T + 1}, v{T + 1}")
    a(f"v_lshlrev_b32 v{St + 1}, 16, v{St + 1}")
    for i in range(2, 8, 2):
        a(f"v_fmac_f32 v{St + 2}, v{T + i}, v{T + i}")
        a(f"v_fmac_f32 v{St + 3}, v{T + i + 1}, v{T + i + 1}")
    a(f"v_add_f32 v{St + 2}, v{St + 2}, v{St + 3}")
    for i in range(8):
        a(f"v_sub_f32 v{T + 10 + i}, v{H + i}, v{St + 1}")
    for i in range(4):
        a(f"v_cvt_pk_bf16_f32 v{T + 20 + i}, v{T + 10 + 2 * i}, v{T + 11 + 2 * i}")
    for i in range(4):
        unpack(T + 10 + 2 * i, T + 20 + i)
    wave_allreduce(a, "v_add_f32", St + 2, St + 3)
    v = St + 2
    a(f"v_mul_f32 v{v}, 0x3b000000, v{v}")
    a(f"v_cvt_pk_bf16_f32 v{v}, v{v}, v{v}")
    a(f"v_lshlrev_b32 v{v}, 16, v{v}")
    a(f"v_add_f32 v{v}, 0x3727c5ac, v{v}")
    a(f"v_cvt_pk_bf16_f32 v{v}, v{v}, v{v}")
    a(f"v_lshlrev_b32 v{v}, 16, v{v}")
    a(f"v_sqrt_f32 v{v}, v{v}")
    a("s_nop 0")
    a(f"v_cvt_pk_bf16_f32 v{v}, v{v}, v{v}")
    a(f"v_lshlrev_b32 v{v}, 16, v{v}")
    a(f"v_rcp_f32 v{v}, v{v}")
    a("s_waitcnt vmcnt(0)")
    for i in range(8):
        a(f"v_mul_f32 v{T + 10 + i}, v{T + 10 + i}, v{v}")
    for i in range(4):
        a(f"v_cvt_pk_bf16_f32 v{HN + i}, v{T + 10 + 2 * i}, v{T + 11 + 2 * i}")
    for i in range(4):
        unpack(T + 10 + 2 * i, HN + i)
        unpack(T + 2 * i, 8 + i)
    a(f"v_mul_f32 v{St + 4}, v{T + 10}, v{T}")
    a(f"v_mul_f32 v{St + 5}, v{T + 11}, v{T + 1}")
    for i in range(2, 8, 2):
        a(f"v_fmac_f32 v{St + 4}, v{T + 10 + i}, v{T + i}")
        a(f"v_fmac_f32 v{St + 5}, v{T + 11 + i}, v{T + i + 1}")
    a(f"v_add_f32 v{St + 4}, v{St + 4}, v{St + 5}")
    wave_allreduce(a, "v_add_f32", St + 4, St + 5)
    v = St + 4
    a(f"v_cvt_pk_bf16_f32 v{v}, v{v}, v{v}")
    a(f"v_lshlrev_b32 v{v}, 16, v{v}")
    a(f"v_ashrrev_i32 v{v + 1}, 31, v{v}")
    a(f"v_or_b32 v{v + 1}, 0x80000000, v{v + 1}")
    a(f"v_xor_b32 v{v}, v{v}, v{v + 1}")
    a(f"v_and_b32 v{v}, s53, v{v}")
    a("s_sub_u32 s37, 2047, s33")
    a(f"v_or_b32 v{v}, s37, v{v}")
    a("s_lshl_b32 s37, s32, 2")
    a("v_mov_b32 v89, s37")
    a(f"ds_write_b32 v89, v{v}")
    OUT = 84
    for i in range(8):
        a(f"v_add_f32 v{T + 20 + i}, v{H + i}, v{T + 10 + i}")
    for i in range(4):
        a(f"v_cvt_pk_bf16_f32 v{OUT + i}, v{T + 20 + 2 * i}, v{T + 21 + 2 * i}")
    for i in range(4):
        a(f"v_mov_b32 v{56 + 2 * i}, v{HP + i}")
        a(f"v_mov_b32 v{57 + 2 * i}, v88")
        a(f"v_mov_b32 v{64 + 2 * i}, v{HN + i}")
        a(f"v_mov_b32 v{65 + 2 * i}, v88")
    a(f"v_readfirstlane_b32 s39, v{v}")
    a("v_readfirstlane_b32 s50, v88")
    a(f"s_lshl_b32 s41, {SLOT}, 12")
    a(f"s_add_u32 s41, s41, {WS_ROWS}")
    a(f"s_lshl_b32 s42, {SLOT}, 3")
    a(f"s_add_u32 s42, s42, {WS_KEYS}")
    stamp(a, 3)
    a("s_waitcnt lgkmcnt(0)")
    a("s_barrier")
    a("ds_read_b128 v[72:75], v5")
    a("ds_read_b128 v[76:79], v5 offset:16")
    a("s_waitcnt lgkmcnt(0)")
    a("v_max3_u32 v72, v72, v73, v74")
    a("v_max3_u32 v76, v76, v77, v78")
    a("v_max3_u32 v72, v72, v75, v79")
    a("v_max_u32 v72, v72, v76")
    a("v_mov_b32 v73, v88")
    a("s_nop 0")
    a("v_readfirstlane_b32 s38, v72")
    a("s_mov_b32 s51, 0")
    a("s_cmp_lg_u32 s38, s39")
    a(f"s_cbranch_scc1 {name}_nc")
    a("s_mov_b32 s51, 1")
    a("buffer_store_dwordx2 v[72:73], v5, s[24:27], s42 offen sc0 sc1")
    a("buffer_store_dwordx4 v[64:67], v4, s[24:27], s41 offen offset:2048 sc0 sc1")
    a("buffer_store_dwordx4 v[68:71], v4, s[24:27], s41 offen offset:2064 sc0 sc1")
    a("buffer_store_dwordx4 v[56:59], v4, s[24:27], s41 offen sc0 sc1")
    a("buffer_store_dwordx4 v[60:63], v4, s[24:27], s41 offen offset:16 sc0 sc1")
    a(f"s_branch {name}_role")
    a.label(f"{name}_nc")
    a(f"buffer_store_dwordx4 v[{OUT}:{OUT + 3}], v3, s[20:23], s34 offen")
    a.label(f"{name}_role")
    stamp(a, 4)
    a(f"s_cmp_lt_u32 s2, {NSL}")
    a(f"s_cbranch_scc1 {name}_needkeys")
    a("s_sub_u32 s52, s2, 64")
    a("s_cmp_lt_u32 s52, 16")
    a(f"s_cbranch_scc1 {name}_needkeys")
    a("s_cmp_eq_u32 s51, 0")
    a(f"s_cbranch_scc1 {name}_fin")
    a(f"s_mov_b32 s45, {WS_ANN}")
    a.label(f"{name}_annp")
    a(f"s_sleep {ASLEEP}")
    a("buffer_load_dwordx2 v[72:73], v5, s[24:27], s45 offen sc1")
    a("s_waitcnt vmcnt(0)")
    a("v_readfirstlane_b32 s46, v73")
    a("v_readfirstlane_b32 s38, v72")
    a("s_cmp_eq_u32 s46, s50")
    a(f"s_cbranch_scc1 {name}_annd")
    a("s_sub_u32 s69, s69, 1")
    a(f"s_cbranch_scc0 {name}_annp")
    a("s_mov_b32 s69, 0")
    a.label(f"{name}_annd")
    a("s_cmp_eq_u32 s38, s39")
    a(f"s_cbranch_scc1 {name}_fin")
    a(f"buffer_store_dwordx4 v[{OUT}:{OUT + 3}], v3, s[20:23], s34 offen")
    a(f"s_branch {name}_fin")
    a.label(f"{name}_needkeys")
    W = 16
    a(f"s_cmp_lt_u32 s2, {NSL}")
    a(f"s_cbranch_scc0 {name}_nowd")
    a("s_barrier")
    srd(a, 12, 56, 57, D * F * 2)
    srd(a, 16, 58, 59, D * F * 2)
    a("s_lshl_b32 s48, s2, 6")
    for j in range(4):
        a(f"s_add_u32 s49, s48, {3584 * j}")
        a(f"buffer_load_dwordx4 v[{G + 4 * j}:{G + 4 * j + 3}], v7, s[12:15], s49 offen")
        a(f"buffer_load_dwordx4 v[{U + 4 * j}:{U + 4 * j + 3}], v7, s[16:19], s49 offen")
    srd(a, 28, 60, 61, D * F * 2)
    a("s_lshl_b32 s35, s2, 5")
    a("s_lshl_b32 s36, s32, 2")
    a("s_add_u32 s35, s35, s36")
    a("s_lshl_b32 s35, s35, 10")
    for j in range(4):
        a(f"buffer_load_dwordx4 v[{W + 4 * j}:{W + 4 * j + 3}], v3, s[28:31], s35 offen offset:{1024 * j}")
    a.label(f"{name}_nowd")
    a("s_cmp_lg_u32 s32, 0")
    a(f"s_cbranch_scc1 {name}_kw")
    a(f"s_mov_b32 s45, {WS_KEYS}")
    a.label(f"{name}_kp")
    a("buffer_load_dwordx4 v[56:59], v4, s[24:27], s45 offen sc1")
    a("buffer_load_dwordx4 v[60:63], v4, s[24:27], s45 offen offset:16 sc1")
    a("s_waitcnt vmcnt(0)")
    a("v_cmp_ne_u32 s[46:47], v57, v88")
    a("v_cmp_ne_u32 vcc, v59, v88")
    a("s_or_b64 s[46:47], s[46:47], vcc")
    a("v_cmp_ne_u32 vcc, v61, v88")
    a("s_or_b64 s[46:47], s[46:47], vcc")
    a("v_cmp_ne_u32 vcc, v63, v88")
    a("s_or_b64 s[46:47], s[46:47], vcc")
    a(f"s_cbranch_scc0 {name}_kd")
    a(f"s_sleep {KSLEEP}")
    a("s_sub_u32 s69, s69, 1")
    a(f"s_cbranch_scc0 {name}_kp")
    a("s_mov_b32 s69, 0")
    a.label(f"{name}_kd")
    a("v_max3_u32 v56, v56, v58, v60")
    a("v_max_u32 v56, v56, v62")
    wave_allreduce(a, "v_max_u32", 56, 57)
    a("ds_write_b32 v5, v56 offset:64")
    a("s_cmp_lg_u32 s2, 64")
    a(f"s_cbranch_scc1 {name}_noann")
    a("v_mov_b32 v57, v88")
    a(f"s_mov_b32 s45, {WS_ANN}")
    a("buffer_store_dwordx2 v[56:57], v5, s[24:27], s45 offen sc0 sc1")
    a.label(f"{name}_noann")
    a("s_waitcnt lgkmcnt(0)")
    a.label(f"{name}_kw")
    a("s_barrier")
    a("ds_read_b32 v56, v5 offset:64")
    a("s_waitcnt lgkmcnt(0)")
    a("v_readfirstlane_b32 s38, v56")
    stamp(a, 5)
    a("s_cmp_eq_u32 s51, 0")
    a(f"s_cbranch_scc1 {name}_nodef")
    a("s_cmp_eq_u32 s38, s39")
    a(f"s_cbranch_scc1 {name}_nodef")
    a(f"buffer_store_dwordx4 v[{OUT}:{OUT + 3}], v3, s[20:23], s34 offen")
    a.label(f"{name}_nodef")
    a("s_and_b32 s39, s38, 0xffff")
    a("s_sub_u32 s39, 2047, s39")
    a("s_lshr_b32 s40, s39, 3")
    a("s_lshl_b32 s40, s40, 12")
    a(f"s_add_u32 s40, s40, {WS_ROWS}")
    a(f"s_cmp_lt_u32 s2, {NSL}")
    a(f"s_cbranch_scc0 {name}_red")
    a("v_lshlrev_b32 v9, 4, v6")
    a("v_add_u32 v9, s40, v9")
    A = 32
    a.label(f"{name}_xp")
    a("buffer_load_dwordx4 v[56:59], v9, s[24:27], 0 offen offset:2048 sc1")
    for i in range(16):
        a(f"v_mov_b32 v{A + i}, 0")
    a("s_waitcnt vmcnt(0)")
    a("v_cmp_ne_u32 s[46:47], v57, v88")
    a("v_cmp_ne_u32 vcc, v59, v88")
    a("s_or_b64 s[46:47], s[46:47], vcc")
    a(f"s_cbranch_scc0 {name}_xd")
    a("s_sub_u32 s69, s69, 1")
    a(f"s_cbranch_scc0 {name}_xp")
    a("s_mov_b32 s69, 0")
    a.label(f"{name}_xd")
    stamp(a, 6)
    X = 60
    a(f"v_lshlrev_b32 v{X}, 16, v56")
    a(f"v_and_b32 v{X + 1}, s53, v56")
    a(f"v_lshlrev_b32 v{X + 2}, 16, v58")
    a(f"v_and_b32 v{X + 3}, s53, v58")
    for j in range(4):
        for (M, ao) in ((G, 0), (U, 8)):
            for i in range(4):
                t = 64 + 2 * i
                a(f"v_lshlrev_b32 v{t}, 16, v{M + 4 * j + i}")
                a(f"v_and_b32 v{t + 1}, s53, v{M + 4 * j + i}")
            for i in range(4):
                t = 64 + 2 * i
                a(f"v_fmac_f32 v{A + ao + 2 * i}, v{X + j}, v{t}")
                a(f"v_fmac_f32 v{A + ao + 2 * i + 1}, v{X + j}, v{t + 1}")
    a("s_nop 1")
    for i in range(8):
        a(f"v_permlane32_swap_b32 v{A + i}, v{A + i + 8}")
    a("s_nop 1")
    for i in range(8):
        a(f"v_add_f32 v{A + i}, v{A + i}, v{A + i + 8}")
    a("s_nop 1")
    for i in range(4):
        a(f"v_permlane16_swap_b32 v{A + i}, v{A + i + 4}")
    a("s_nop 1")
    for i in range(4):
        a(f"v_add_f32 v{A + i}, v{A + i}, v{A + i + 4}")
    a("s_nop 1")
    for i in range(4):
        a(f"v_add_f32_dpp v{A + i}, v{A + i}, v{A + i} row_ror:4 {DPP}")
    a("s_nop 1")
    for i in range(4):
        a(f"v_add_f32_dpp v{A + i}, v{A + i}, v{A + i} row_ror:8 {DPP}")
    a("v_and_b32 v9, 3, v2")
    a("v_lshlrev_b32 v9, 5, v9")
    a("v_bfe_u32 v10, v2, 4, 1")
    a("v_lshl_add_u32 v9, v10, 4, v9")
    a("v_bfe_u32 v10, v2, 5, 1")
    a("v_lshl_add_u32 v9, v10, 7, v9")
    a("s_lshl_b32 s37, s32, 8")
    a("v_add_u32 v9, s37, v9")
    a(f"ds_write_b128 v9, v[{A}:{A + 3}] offset:128")
    a("s_waitcnt lgkmcnt(0)")
    a("s_barrier")
    a("v_lshlrev_b32 v9, 2, v2")
    for w in range(8):
        a(f"ds_read_b32 v{56 + w}, v9 offset:{128 + 256 * w}")
    a("s_waitcnt lgkmcnt(0)")
    a("v_add_f32 v56, v56, v57")
    a("v_add_f32 v58, v58, v59")
    a("v_add_f32 v60, v60, v61")
    a("v_add_f32 v62, v62, v63")
    a("v_add_f32 v56, v56, v58")
    a("v_add_f32 v60, v60, v62")
    a("v_add_f32 v56, v56, v60")
    a("v_mov_b32 v60, v56")
    a("s_nop 1")
    a("v_permlane32_swap_b32 v56, v60")
    a("s_nop 1")
    a("v_cvt_pk_bf16_f32 v56, v56, v60")
    a("v_and_b32 v60, s53, v56")
    a("v_lshlrev_b32 v56, 16, v56")
    a("v_mul_f32 v57, 0xbfb8aa3b, v56")
    a("v_exp_f32 v57, v57")
    a("s_nop 0")
    a("v_add_f32 v57, 1.0, v57")
    a("v_rcp_f32 v57, v57")
    a("s_nop 0")
    a("v_mul_f32 v56, v56, v57")
    a("v_cvt_pk_bf16_f32 v56, v56, v56")
    a("v_lshlrev_b32 v56, 16, v56")
    a("v_mul_f32 v56, v56, v60")
    a("v_cvt_pk_bf16_f32 v56, v56, v56")
    a("v_lshlrev_b32 v56, 16, v56")
    a("s_lshl_b32 s37, s32, 2")
    for j in range(4):
        a(f"s_add_u32 s36, s37, {j}")
        a("s_nop 0")
        a(f"v_readlane_b32 s{40 + j}, v56, s36")
    for j in range(4):
        for i in range(4):
            t = 64 + 2 * i
            a(f"v_lshlrev_b32 v{t}, 16, v{W + 4 * j + i}")
            a(f"v_and_b32 v{t + 1}, s53, v{W + 4 * j + i}")
        for i in range(4):
            t = 64 + 2 * i
            if j == 0:
                a(f"v_mul_f32 v{A + 2 * i}, s{40 + j}, v{t}")
                a(f"v_mul_f32 v{A + 2 * i + 1}, s{40 + j}, v{t + 1}")
            else:
                a(f"v_fmac_f32 v{A + 2 * i}, s{40 + j}, v{t}")
                a(f"v_fmac_f32 v{A + 2 * i + 1}, s{40 + j}, v{t + 1}")
    a("s_lshl_b32 s37, s32, 11")
    a("v_add_u32 v9, s37, v4")
    a(f"ds_write_b128 v9, v[{A}:{A + 3}] offset:4096")
    a(f"ds_write_b128 v9, v[{A + 4}:{A + 7}] offset:4112")
    a("s_waitcnt lgkmcnt(0)")
    a("s_barrier")
    a("v_lshlrev_b32 v9, 2, v0")
    for w in range(8):
        a(f"ds_read_b32 v{56 + w}, v9 offset:{4096 + 2048 * w}")
    a("s_lshl_b32 s37, s2, 12")
    a(f"s_add_u32 s37, s37, {WS_SLABS}")
    a("v_lshlrev_b32 v9, 3, v0")
    a("s_waitcnt lgkmcnt(0)")
    a("v_add_f32 v56, v56, v57")
    a("v_add_f32 v58, v58, v59")
    a("v_add_f32 v60, v60, v61")
    a("v_add_f32 v62, v62, v63")
    a("v_add_f32 v56, v56, v58")
    a("v_add_f32 v60, v60, v62")
    a("v_add_f32 v56, v56, v60")
    a("v_mov_b32 v57, v88")
    a("buffer_store_dwordx2 v[56:57], v9, s[24:27], s37 offen sc0 sc1")
    stamp(a, 7)
    a(f"s_branch {name}_fin2")
    a.label(f"{name}_red")
    a("v_lshrrev_b32 v8, 4, v0")
    a("v_and_b32 v9, 15, v0")
    a("s_lshl_b32 s41, s52, 8")
    a(f"s_add_u32 s42, s41, {WS_SLABS}")
    a("v_lshlrev_b32 v10, 12, v8")
    a("v_lshl_add_u32 v10, v9, 4, v10")
    a("v_add_u32 v11, 0x20000, v10")
    a("v_cmp_gt_u32 s[54:55], 24, v8")
    a("s_nop 1")
    a("v_cndmask_b32 v11, v10, v11, s[54:55]")
    a("s_lshl_b32 s43, s52, 7")
    a("s_add_u32 s43, s43, s40")
    a("v_lshlrev_b32 v12, 3, v9")
    a("v_add_u32 v12, s43, v12")
    a("s_and_b32 s44, s38, 0xffff0000")
    a("s_xor_b32 s45, s44, 0x80000000")
    a("s_not_b32 s46, s44")
    a("s_and_b32 s46, s46, 0xffff0000")
    a("s_cmp_ge_u32 s44, 0x80000000")
    a("s_cselect_b32 s44, s45, s46")
    a("v_mov_b32 v13, s44")
    a("v_mul_f32 v13, 0xbfb8aa3b, v13")
    a("v_exp_f32 v13, v13")
    a("s_nop 0")
    a("v_add_f32 v13, 1.0, v13")
    a("v_rcp_f32 v13, v13")
    a("s_nop 0")
    a("v_cvt_pk_bf16_f32 v13, v13, v13")
    a("v_lshlrev_b32 v13, 16, v13")
    a.label(f"{name}_sp")
    a("buffer_load_dwordx4 v[56:59], v10, s[24:27], s42 offen sc1")
    a("buffer_load_dwordx4 v[60:63], v11, s[24:27], s42 offen sc1")
    a("buffer_load_dwordx2 v[64:65], v12, s[24:27], 0 offen sc1")
    a("buffer_load_dwordx2 v[66:67], v12, s[24:27], 0 offen offset:2048 sc1")
    a("s_waitcnt vmcnt(0)")
    a("v_cmp_ne_u32 s[46:47], v57, v88")
    for r in (59, 61, 63, 65, 67):
        a(f"v_cmp_ne_u32 vcc, v{r}, v88")
        a("s_or_b64 s[46:47], s[46:47], vcc")
    a(f"s_cbranch_scc0 {name}_sd")
    a(f"s_sleep {SSLEEP}")
    a("s_sub_u32 s69, s69, 1")
    a(f"s_cbranch_scc0 {name}_sp")
    a("s_mov_b32 s69, 0")
    a.label(f"{name}_sd")
    stamp(a, 6)
    a("v_cndmask_b32 v60, 0, v60, s[54:55]")
    a("v_cndmask_b32 v62, 0, v62, s[54:55]")
    a("v_add_f32 v56, v56, v60")
    a("v_add_f32 v57, v58, v62")
    for sw in ("v_permlane16_swap_b32", "v_permlane32_swap_b32"):
        a("v_mov_b32 v58, v56")
        a("v_mov_b32 v59, v57")
        a("s_nop 1")
        a(f"{sw} v56, v58")
        a(f"{sw} v57, v59")
        a("s_nop 1")
        a("v_add_f32 v56, v56, v58")
        a("v_add_f32 v57, v57, v59")
    a("v_lshlrev_b32 v10, 3, v9")
    a("s_lshl_b32 s37, s32, 7")
    a("v_add_u32 v11, s37, v10")
    a("ds_write_b64 v11, v[56:57] offset:128")
    a("s_waitcnt lgkmcnt(0)")
    a("s_barrier")
    a("s_cmp_lg_u32 s32, 0")
    a(f"s_cbranch_scc1 {name}_fin2")
    for w in range(8):
        a(f"ds_read_b64 v[{32 + 2 * w}:{33 + 2 * w}], v10 offset:{128 + 128 * w}")
    a("s_waitcnt lgkmcnt(0)")
    for (d, s1) in ((32, 34), (36, 38), (40, 42), (44, 46), (32, 36), (40, 44), (32, 40)):
        a(f"v_add_f32 v{d}, v{d}, v{s1}")
        a(f"v_add_f32 v{d + 1}, v{d + 1}, v{s1 + 1}")
    y0, y1 = 32, 33
    a(f"v_cvt_pk_bf16_f32 v48, v{y0}, v{y1}")
    a(f"v_lshlrev_b32 v{y0}, 16, v48")
    a(f"v_and_b32 v{y1}, s53, v48")
    a(f"v_mul_f32 v{y0}, v{y0}, v13")
    a(f"v_mul_f32 v{y1}, v{y1}, v13")
    a(f"v_cvt_pk_bf16_f32 v48, v{y0}, v{y1}")
    a(f"v_lshlrev_b32 v{y0}, 16, v48")
    a(f"v_and_b32 v{y1}, s53, v48")
    a("v_lshlrev_b32 v49, 16, v66")
    a("v_and_b32 v50, s53, v66")
    a(f"v_add_f32 v{y0}, v49, v{y0}")
    a(f"v_add_f32 v{y1}, v50, v{y1}")
    a(f"v_cvt_pk_bf16_f32 v48, v{y0}, v{y1}")
    a(f"v_lshlrev_b32 v{y0}, 16, v48")
    a(f"v_and_b32 v{y1}, s53, v48")
    a("v_lshlrev_b32 v49, 16, v64")
    a("v_and_b32 v50, s53, v64")
    a(f"v_add_f32 v{y0}, v49, v{y0}")
    a(f"v_add_f32 v{y1}, v50, v{y1}")
    a(f"v_cvt_pk_bf16_f32 v48, v{y0}, v{y1}")
    a("s_lshl_b32 s39, s39, 10")
    a("s_lshl_b32 s41, s52, 6")
    a("s_add_u32 s39, s39, s41")
    a("v_lshlrev_b32 v10, 2, v9")
    a("v_add_u32 v10, s39, v10")
    a("buffer_store_dword v48, v10, s[20:23], 0 offen")
    stamp(a, 7)
    a.label(f"{name}_fin2")
    a.label(f"{name}_fin")
    stamp_flush(a, 3, 8, 10, 11)
    if fused:
        return None
    a.label(f"{name}_done")
    a("s_endpgm")
    return kernel_desc(name, 128, 72, 128)


def gen_k5(a, name):
    kernel_begin(a, name)
    a("s_cmp_ge_u32 s2, 16")
    a(f"s_cbranch_scc1 {name}_done")
    stamp(a, 0)
    a("s_load_dwordx2 s[8:9], s[0:1], 80")
    a("s_load_dwordx2 s[10:11], s[0:1], 96")
    a("v_lshrrev_b32 v1, 6, v0")
    a("v_and_b32 v2, 63, v0")
    a("s_nop 0")
    a("v_readfirstlane_b32 s32, v1")
    a("v_lshlrev_b32 v5, 2, v0")
    a("v_lshrrev_b32 v3, 3, v0")
    a("v_and_b32 v4, 7, v0")
    a("v_lshlrev_b32 v6, 11, v3")
    a("v_lshl_add_u32 v6, v4, 4, v6")
    a("s_waitcnt lgkmcnt(0)")
    stamp(a, 1)
    srd(a, 20, 8, 9, S * D * 2)
    srd(a, 24, 10, 11, 14 << 20)
    srd(a, 28, 10, 11, WS_SLAB + NSL * 2048)
    a(f"s_mov_b32 s34, {WS_CAND}")
    a("buffer_load_dword v8, v5, s[24:27], s34 offen")
    a("s_lshl_b32 s34, s2, 7")
    a(f"s_add_u32 s34, s34, {WS_SLAB}")
    a("s_add_u32 s35, s34, 65536")
    a("buffer_load_dwordx4 v[16:19], v6, s[28:31], s34 offen")
    a("buffer_load_dwordx4 v[20:23], v6, s[28:31], s35 offen")
    a("s_waitcnt vmcnt(2)")
    stamp(a, 2)
    emit_winner(a, 8, 12, 9, 38)
    a("s_and_b32 s39, s38, 0xffff")
    a("s_sub_u32 s39, 2047, s39")
    a("s_lshr_b32 s40, s39, 3")
    a("s_lshl_b32 s40, s40, 11")
    a(f"s_add_u32 s40, s40, {WS_CROW}")
    a("s_lshl_b32 s41, s2, 6")
    a("s_add_u32 s40, s40, s41")
    a("v_lshlrev_b32 v9, 3, v4")
    a("v_add_u32 v9, s40, v9")
    a("buffer_load_dwordx2 v[24:25], v9, s[24:27], 0 offen")
    a("buffer_load_dwordx2 v[26:27], v9, s[24:27], 0 offen offset:1024")
    a("s_waitcnt vmcnt(2)")
    for i in range(4):
        a(f"v_add_f32 v{16 + i}, v{16 + i}, v{20 + i}")
    a("s_nop 1")
    for i in range(4):
        a(f"v_add_f32_dpp v{16 + i}, v{16 + i}, v{16 + i} row_ror:8 {DPP}")
    for i in range(4):
        a(f"v_mov_b32 v{20 + i}, v{16 + i}")
    a("s_nop 1")
    for i in range(4):
        a(f"v_permlane16_swap_b32 v{16 + i}, v{20 + i}")
    a("s_nop 1")
    for i in range(4):
        a(f"v_add_f32 v{16 + i}, v{16 + i}, v{20 + i}")
    for i in range(4):
        a(f"v_mov_b32 v{20 + i}, v{16 + i}")
    a("s_nop 1")
    for i in range(4):
        a(f"v_permlane32_swap_b32 v{16 + i}, v{20 + i}")
    a("s_nop 1")
    for i in range(4):
        a(f"v_add_f32 v{16 + i}, v{16 + i}, v{20 + i}")
    a("v_lshlrev_b32 v10, 4, v4")
    a("s_lshl_b32 s37, s32, 7")
    a("v_add_u32 v11, s37, v10")
    a("ds_write_b128 v11, v[16:19] offset:64")
    a("s_waitcnt lgkmcnt(0)")
    a("s_barrier")
    for w in range(4):
        a(f"ds_read_b128 v[{32 + 4 * w}:{35 + 4 * w}], v10 offset:{64 + 128 * w}")
    a("s_and_b32 s42, s38, 0xffff0000")
    a("s_xor_b32 s43, s42, 0x80000000")
    a("s_not_b32 s44, s42")
    a("s_and_b32 s44, s44, 0xffff0000")
    a("s_cmp_ge_u32 s42, 0x80000000")
    a("s_cselect_b32 s42, s43, s44")
    a("v_mov_b32 v12, s42")
    a("v_mul_f32 v13, 0xbfb8aa3b, v12")
    a("v_exp_f32 v13, v13")
    a("s_nop 0")
    a("v_add_f32 v13, 1.0, v13")
    a("v_rcp_f32 v13, v13")
    a("s_nop 0")
    a("v_cvt_pk_bf16_f32 v13, v13, v13")
    a("v_lshlrev_b32 v13, 16, v13")
    a("s_mov_b32 s53, 0xffff0000")
    a("s_waitcnt vmcnt(0) lgkmcnt(0)")
    stamp(a, 3)
    for i in range(4):
        a(f"v_add_f32 v{32 + i}, v{32 + i}, v{36 + i}")
        a(f"v_add_f32 v{40 + i}, v{40 + i}, v{44 + i}")
        a(f"v_add_f32 v{32 + i}, v{32 + i}, v{40 + i}")
    for i in range(2):
        y0, y1 = 32 + 2 * i, 33 + 2 * i
        a(f"v_cvt_pk_bf16_f32 v48, v{y0}, v{y1}")
        a(f"v_lshlrev_b32 v{y0}, 16, v48")
        a(f"v_and_b32 v{y1}, s53, v48")
        a(f"v_mul_f32 v{y0}, v{y0}, v13")
        a(f"v_mul_f32 v{y1}, v{y1}, v13")
        a(f"v_cvt_pk_bf16_f32 v48, v{y0}, v{y1}")
        a(f"v_lshlrev_b32 v{y0}, 16, v48")
        a(f"v_and_b32 v{y1}, s53, v48")
        a(f"v_lshlrev_b32 v49, 16, v{26 + i}")
        a(f"v_and_b32 v50, s53, v{26 + i}")
        a(f"v_add_f32 v{y0}, v49, v{y0}")
        a(f"v_add_f32 v{y1}, v50, v{y1}")
        a(f"v_cvt_pk_bf16_f32 v48, v{y0}, v{y1}")
        a(f"v_lshlrev_b32 v{y0}, 16, v48")
        a(f"v_and_b32 v{y1}, s53, v48")
        a(f"v_lshlrev_b32 v49, 16, v{24 + i}")
        a(f"v_and_b32 v50, s53, v{24 + i}")
        a(f"v_add_f32 v{y0}, v49, v{y0}")
        a(f"v_add_f32 v{y1}, v50, v{y1}")
        a(f"v_cvt_pk_bf16_f32 v{52 + i}, v{y0}, v{y1}")
    a("s_lshl_b32 s39, s39, 10")
    a("s_add_u32 s39, s39, s41")
    a("v_lshlrev_b32 v9, 3, v4")
    a("v_add_u32 v9, s39, v9")
    a("v_cmp_gt_u32 vcc, 8, v0")
    a("s_and_saveexec_b64 s[46:47], vcc")
    a(f"s_cbranch_execz {name}_fin")
    a("buffer_store_dwordx2 v[52:53], v9, s[20:23], 0 offen")
    a.label(f"{name}_fin")
    a("s_mov_b64 exec, -1")
    stamp_flush(a, 5, 4, 10, 11)
    a.label(f"{name}_done")
    a("s_endpgm")
    return kernel_desc(name, 64, 64, 64)


HEADER = open(__file__.rsplit("/", 1)[0] + "/cdna_kernels/" + NAME + ".s.ref").read().split("; Override launch")[0]


def build(path, **opt):
    global STAMP, KSLEEP, SSLEEP, FSLEEP, ASLEEP, ESLEEP
    ESLEEP = opt.get('es', 4)
    STAMP = opt.get('stamp', 0)
    KSLEEP, SSLEEP, FSLEEP, ASLEEP = opt.get('ks', 1), opt.get('ss', 1), opt.get('fs', 1), opt.get('as', 8)
    a = Asm()
    only = opt.get("only", 0)
    launches = [
        ("k1_kernel", 256, 512, 163840),
        ("k2_kernel", 256, 512, 163840),
        ("k3_kernel", 256, 512, 64),
        ("k4_kernel", NSL, 512, 18432),
        ("k5_kernel", 16, 256, 1024),
    ]
    if opt.get("fused", 1) == 1:
        launches = launches[:2] + [("kt_kernel", 256, 512, 4096 + 16384)]
    if opt.get("fused", 1) == 2:
        launches = launches[:2]
    if opt.get("f12", 0):
        launches = launches[:1] + launches[2:]
    if only:
        launches = [launches[int(ch) - 1] for ch in str(only)]
    hdr = HEADER
    for (k, g, b, l) in launches:
        hdr += f"; @launch kernel={k} grid=({g},1,1) block=({b},1,1) lds={l}\n"
    a.raw('.amdgcn_target "amdgcn-amd-amdhsa--gfx950"')
    descs = []
    if opt.get("k1g", 0):
        descs.append(gen_k1g(a, "k1_kernel", wt=opt.get("wt1", 1), PRO=opt.get("PRO1", 3), U1=opt.get("U1", 11), wk=opt.get("wk1", 1), cpf=opt.get("cpf", 1), SPOS=opt.get("SPOS", 0), NPOS=opt.get("NPOS", 1)))
    else:
        descs.append(gen_k1e(a, "k1_kernel", wt=opt.get("wt1", 1), PRO=opt.get("PRO1", 3), pf=opt.get("prefetch", 1), pace=opt.get("pace", 1), U1=opt.get("U1", 10), U2=opt.get("U2", 12), pfq=opt.get("pfq", 2), pol=opt.get("pol1", 0), ppol=opt.get("ppol", 0), tlb=opt.get("tlb", 0), UC=opt.get("UC", 13), vst=opt.get("vst", 0), swap=opt.get("swap", 1), wk1=opt.get("wk1", 1), early=opt.get("early", 0), fuse2=((lambda a, n: gen_k2c(a, n, LA=opt.get("LA", 1), wt=opt.get("wt2", 1), PRO=opt.get("PRO2", 3), rot=opt.get("rot", 1), BARPOS=opt.get("BARPOS", 1), RSTEP=opt.get("RSTEP", 1), wpf=opt.get("wpf", 0), wpf2=opt.get("wpf2", 16), pol=opt.get("pol2", 0), fuse3=(opt.get("fused", 1) == 2), etouch=opt.get("etouch", 0), swap=opt.get("swap", 1), cw=opt.get("cw", -1), fused_in=1)) if opt.get("f12", 0) else None)))
    if not opt.get("f12", 0):
        descs.append(gen_k2c(a, "k2_kernel", LA=opt.get("LA", 1), wt=opt.get("wt2", 1), PRO=opt.get("PRO2", 3), rot=opt.get("rot", 1), BARPOS=opt.get("BARPOS", 1), RSTEP=opt.get("RSTEP", 1), wpf=opt.get("wpf", 0), wpf2=opt.get("wpf2", 16), pol=opt.get("pol2", 0), fuse3=(opt.get("fused", 1) == 2), etouch=opt.get("etouch", 0), swap=opt.get("swap", 1), cw=opt.get("cw", -1)))
    if opt.get("fused", 1) == 1:
        descs.append(gen_kt(a, "kt_kernel"))
    elif opt.get("fused", 1) == 0:
        descs.append(gen_k3b(a, "k3_kernel", wpf=opt.get("wpf3", 0)))
        descs.append(gen_k4b(a, "k4_kernel"))
        descs.append(gen_k5(a, "k5_kernel"))
    open(path, "w").write(hdr + a.text() + "".join(descs))


if __name__ == "__main__":
    out = sys.argv[1] if len(sys.argv) > 1 else "cdna_kernels/" + NAME + ".s"
    opt = {}
    for kv in sys.argv[2:]:
        k, v = kv.split("=")
        opt[k] = int(v)
    build(out, **opt)
```

```python
import sys

NAME = "sequential_preLN__spectral_fnet__moe_arch_mod__prompt"

WS_AT = 0
WS_Y = 4 << 20
WS_CAND = 12 << 20
WS_CROW = (12 << 20) + 4096
WS_SLAB = (13 << 20)
WS_SIZE = 268435456

S, D, F = 2048, 512, 1792


class Asm:
    def __init__(self):
        self.lines = []

    def __call__(self, s):
        self.lines.append("    " + s)

    def label(self, l):
        self.lines.append(l + ":")

    def raw(self, s):
        self.lines.append(s)

    def text(self):
        return "\n".join(self.lines) + "\n"


class VM:
    def __init__(self, a):
        self.a = a
        self.q = []

    def issue(self, tag):
        self.q.append(tag)

    def wait(self, tag):
        idx = max(i for i, t in enumerate(self.q) if t == tag) if tag in self.q else None
        if idx is None:
            return
        n = len(self.q) - 1 - idx
        assert n <= 63
        self.a(f"s_waitcnt vmcnt({n})")
        self.q = self.q[idx + 1:]

    def wait_all(self):
        self.a("s_waitcnt vmcnt(0)")
        self.q = []


def srd(a, d, lo, hi, nbytes):
    a(f"s_mov_b32 s{d}, s{lo}")
    a(f"s_and_b32 s{d+1}, s{hi}, 0xffff")
    a(f"s_mov_b32 s{d+2}, {nbytes}")
    a(f"s_mov_b32 s{d+3}, 0x00020000")


def kernel_begin(a, name):
    a.raw(".text")
    a.raw(f".globl {name}")
    a.raw(".p2align 8")
    a.raw(f".type {name},@function")
    a.label(name)


def kernel_desc(name, vgpr, sgpr, accum):
    return f""".section .rodata,"a"
.p2align 6
.amdhsa_kernel {name}
  .amdhsa_next_free_vgpr {vgpr}
  .amdhsa_next_free_sgpr {102 if STAMP else sgpr}
  .amdhsa_accum_offset {accum}
  .amdhsa_group_segment_fixed_size 0
  .amdhsa_kernarg_size 104
  .amdhsa_user_sgpr_count 2
  .amdhsa_user_sgpr_kernarg_segment_ptr 1
  .amdhsa_system_sgpr_workgroup_id_x 1
  .amdhsa_float_denorm_mode_32 3
.end_amdhsa_kernel
"""


STAMP = 0
WS_STAMP = 16 << 20
_stamp_kid = {}


def stamp(a, i):
    if STAMP == 1:
        a(f"s_memrealtime s[{70 + 2 * i}:{71 + 2 * i}]")
    elif STAMP == 2:
        a(f"s_memtime s[{70 + 2 * i}:{71 + 2 * i}]")


def stamp_flush(a, kid, n, ws_lo, ws_hi, wave_sgpr="s32"):
    if not STAMP:
        return
    a("s_waitcnt vmcnt(0) lgkmcnt(0)")
    stamp(a, n)
    a(f"s_mov_b32 s92, s{ws_lo}")
    a(f"s_and_b32 s93, s{ws_hi}, 0xffff")
    a(f"s_mov_b32 s94, {WS_SIZE}")
    a("s_mov_b32 s95, 0x00020000")
    a(f"s_add_u32 s96, s2, {kid * 512}")
    a("s_lshl_b32 s96, s96, 4")
    a(f"s_add_u32 s96, s96, {wave_sgpr}")
    a("s_lshl_b32 s96, s96, 7")
    a(f"s_add_u32 s96, s96, {WS_STAMP}")
    a("s_waitcnt lgkmcnt(0)")
    a("v_mov_b32 v0, 0")
    for i in range(n + 1):
        a(f"v_mov_b32 v2, s{70 + 2 * i}")
        a(f"v_mov_b32 v3, s{71 + 2 * i}")
        a(f"buffer_store_dwordx2 v[2:3], v0, s[92:95], s96 offen offset:{8 * i}")
        a("s_nop 1")


ESLEEP = 4
OWT = ''
DPP = "row_mask:0xf bank_mask:0xf"


def emit_perm32(a, dst, src, t):
    a(f"v_and_b32 v{dst}, 3, v{src}")
    a(f"v_lshrrev_b32 v{t}, 3, v{src}")
    a(f"v_lshl_or_b32 v{dst}, v{t}, 2, v{dst}")
    a(f"v_bfe_u32 v{t}, v{src}, 2, 1")
    a(f"v_lshl_or_b32 v{dst}, v{t}, 4, v{dst}")


def wave_allreduce(a, op, v, t):
    a("s_nop 1")
    a(f"{op}_dpp v{v}, v{v}, v{v} quad_perm:[1,0,3,2] {DPP}")
    a("s_nop 1")
    a(f"{op}_dpp v{v}, v{v}, v{v} quad_perm:[2,3,0,1] {DPP}")
    a("s_nop 1")
    a(f"{op}_dpp v{v}, v{v}, v{v} row_half_mirror {DPP}")
    a("s_nop 1")
    a(f"{op}_dpp v{v}, v{v}, v{v} row_mirror {DPP}")
    a(f"v_mov_b32 v{t}, v{v}")
    a("s_nop 1")
    a(f"v_permlane16_swap_b32 v{v}, v{t}")
    a("s_nop 1")
    a(f"{op} v{v}, v{v}, v{t}")
    a(f"v_mov_b32 v{t}, v{v}")
    a("s_nop 1")
    a(f"v_permlane32_swap_b32 v{v}, v{t}")
    a("s_nop 1")
    a(f"{op} v{v}, v{v}, v{t}")


def gen_k1(a, name, prefetch=True):
    kernel_begin(a, name)
    a("s_cmp_ge_u32 s2, 256")
    a(f"s_cbranch_scc1 {name}_done")
    stamp(a, 0)
    a("s_load_dwordx2 s[4:5], s[0:1], 0")
    a("s_load_dwordx4 s[8:11], s[0:1], 24")
    a("s_load_dwordx2 s[6:7], s[0:1], 96")
    a("s_load_dwordx4 s[36:39], s[0:1], 8")
    a("s_load_dwordx4 s[40:43], s[0:1], 56")
    a("s_load_dwordx2 s[44:45], s[0:1], 72")
    a("s_and_b32 s3, s2, 7")
    a("s_lshr_b32 s28, s2, 3")
    a("s_and_b32 s29, s28, 3")
    a("s_lshl_b32 s30, s3, 2")
    a("s_add_u32 s30, s30, s29")
    a("s_lshr_b32 s31, s28, 2")
    a("v_lshrrev_b32 v1, 6, v0")
    a("v_and_b32 v2, 63, v0")
    a("s_nop 0")
    a("v_readfirstlane_b32 s32, v1")
    a("v_lshrrev_b32 v3, 3, v2")
    a("v_and_b32 v4, 7, v2")
    a("s_waitcnt lgkmcnt(0)")
    stamp(a, 1)
    srd(a, 12, 4, 5, S * D * 2)
    a("s_cmp_ge_u32 s31, 4")
    a("s_cselect_b32 s8, s10, s8")
    a("s_cselect_b32 s9, s11, s9")
    srd(a, 16, 8, 9, D * D * 2)
    srd(a, 20, 6, 7, 4 << 20)
    a("s_lshl_b32 s33, s30, 6")
    a("s_lshl_b32 s34, s32, 3")
    a("s_add_u32 s33, s33, s34")
    a("s_lshl_b32 s33, s33, 10")
    a("v_lshlrev_b32 v5, 10, v3")
    a("v_lshl_add_u32 v5, v4, 4, v5")
    XR = 32
    for j in range(8):
        a(f"buffer_load_dwordx4 v[{XR+4*j}:{XR+4*j+3}], v5, s[12:15], s33 offen offset:{128*j}")
    a("v_lshrrev_b32 v6, 4, v2")
    a("v_xor_b32 v6, v6, v4")
    a("v_xor_b32 v7, 4, v6")
    a("v_lshlrev_b32 v8, 10, v3")
    a("v_lshl_add_u32 v6, v6, 4, v8")
    a("v_lshl_add_u32 v7, v7, 4, v8")
    a("s_cmp_ge_u32 s32, 4")
    a(f"s_cbranch_scc1 {name}_helper")
    a("s_and_b32 s35, s31, 3")
    a("s_lshl_b32 s35, s35, 7")
    a("s_lshl_b32 s34, s32, 5")
    a("s_add_u32 s35, s35, s34")
    a("s_lshl_b32 s35, s35, 10")
    a("s_mul_i32 s46, s32, 24576")
    a("s_add_u32 s46, s46, 65536")

    def dma_slot(kk):
        for i in range(4):
            a(f"s_add_u32 m0, s46, {(kk % 6) * 4096 + i * 1024}")
            a(f"s_add_u32 s47, s35, {i * 8192 + kk * 128}")
            a(f"buffer_load_dwordx4 v{6 + (i & 1)}, s[16:19], s47 offen lds")

    for kk in range(6):
        dma_slot(kk)
    a("s_waitcnt vmcnt(24)")
    a(f"s_branch {name}_ln")
    a.label(f"{name}_helper")
    npf = 0
    if prefetch:
        a("s_and_b32 s48, s3, 1")
        a("s_cmp_eq_u32 s48, 1")
        a("s_cselect_b32 s36, s38, s36")
        a("s_cselect_b32 s37, s39, s37")
        srd(a, 24, 36, 37, S * S * 2)
        a("s_lshr_b32 s48, s3, 2")
        a("s_lshl_b32 s48, s48, 10")
        a("s_lshl_b32 s49, s28, 5")
        a("s_add_u32 s48, s48, s49")
        a("s_sub_u32 s49, s32, 4")
        a("s_lshl_b32 s49, s49, 3")
        a("s_add_u32 s48, s48, s49")
        a("s_lshl_b32 s48, s48, 12")
        a("s_bfe_u32 s49, s3, 0x10001")
        a("s_lshl_b32 s49, s49, 11")
        a("s_add_u32 s48, s48, s49")
        a("v_lshrrev_b32 v9, 5, v2")
        a("v_lshlrev_b32 v9, 12, v9")
        a("v_and_b32 v129, 31, v2")
        a("v_lshl_add_u32 v9, v129, 6, v9")
        a("s_waitcnt vmcnt(0)")
        for i in range(4):
            a(f"s_add_u32 s49, s48, {i * 8192}")
            a(f"buffer_load_dword v{130 + i}, v9, s[24:27], s49 offen")
            npf += 1
    a(f"s_waitcnt vmcnt({npf})")
    a.label(f"{name}_ln")
    stamp(a, 2)
    a("s_mov_b32 s50, 0x3f803f80")
    a("s_mov_b32 s51, 0x00003f80")
    a("s_mov_b32 s52, 0x3f800000")
    a("s_mov_b32 s53, 0xffff0000")
    a("v_mov_b32 v16, 0")
    a("v_mov_b32 v17, 0")
    for j in range(32):
        a(f"v_dot2_f32_bf16 v{16 + (j & 1)}, v{XR + j}, s50, v{16 + (j & 1)}")
    a("s_nop 2")
    a("v_add_f32 v16, v16, v17")

    def red8(v):
        a("s_nop 1")
        a(f"v_add_f32_dpp v{v}, v{v}, v{v} quad_perm:[1,0,3,2] {DPP}")
        a("s_nop 1")
        a(f"v_add_f32_dpp v{v}, v{v}, v{v} quad_perm:[2,3,0,1] {DPP}")
        a("s_nop 1")
        a(f"v_add_f32_dpp v{v}, v{v}, v{v} row_half_mirror {DPP}")

    red8(16)
    a("v_mul_f32 v16, 0x3b000000, v16")
    a("v_cvt_pk_bf16_f32 v17, v16, v16")
    a("v_lshlrev_b32 v17, 16, v17")
    a("v_sub_f32 v18, 0, v17")
    a("v_sub_f32 v19, v16, v17")
    a("v_mov_b32 v20, 0")
    a("v_mov_b32 v21, 0")
    for j in range(32):
        t = 22 + 2 * (j & 3)
        a(f"v_dot2_f32_bf16 v{t}, v{XR + j}, s51, v18")
        a(f"v_dot2_f32_bf16 v{t + 1}, v{XR + j}, s52, v18")
        if j >= 1:
            tp = 22 + 2 * ((j - 1) & 3)
            a(f"v_fmac_f32 v20, v{tp}, v{tp}")
            a(f"v_fmac_f32 v21, v{tp + 1}, v{tp + 1}")
            a(f"v_cvt_pk_bf16_f32 v{XR + j - 1}, v{tp}, v{tp + 1}")
    tp = 22 + 2 * (31 & 3)
    a("s_nop 2")
    a(f"v_fmac_f32 v20, v{tp}, v{tp}")
    a(f"v_fmac_f32 v21, v{tp + 1}, v{tp + 1}")
    a(f"v_cvt_pk_bf16_f32 v{XR + 31}, v{tp}, v{tp + 1}")
    a("v_add_f32 v20, v20, v21")
    red8(20)
    a("v_mul_f32 v20, 0x3b000000, v20")
    a("v_fma_f32 v20, -v19, v19, v20")
    a("v_max_f32 v20, 0, v20")
    a("v_cvt_pk_bf16_f32 v20, v20, v20")
    a("v_lshlrev_b32 v20, 16, v20")
    a("v_add_f32 v20, 0x3727c5ac, v20")
    a("v_cvt_pk_bf16_f32 v20, v20, v20")
    a("v_lshlrev_b32 v20, 16, v20")
    a("v_sqrt_f32 v20, v20")
    a("s_nop 0")
    a("v_cvt_pk_bf16_f32 v20, v20, v20")
    a("v_lshlrev_b32 v20, 16, v20")
    a("v_rcp_f32 v20, v20")
    a("s_nop 0")
    for j in range(32):
        t = 22 + 2 * (j & 3)
        a(f"v_lshlrev_b32 v{t}, 16, v{XR + j}")
        a(f"v_and_b32 v{t + 1}, s53, v{XR + j}")
        a(f"v_mul_f32 v{t}, v{t}, v20")
        a(f"v_mul_f32 v{t + 1}, v{t + 1}, v20")
        a(f"v_cvt_pk_bf16_f32 v{XR + j}, v{t}, v{t + 1}")
    a("s_lshl_b32 s34, s32, 3")
    a("v_add_u32 v9, s34, v3")
    a("v_bfe_u32 v10, v9, 1, 3")
    a("v_xor_b32 v10, v10, v4")
    a("v_lshlrev_b32 v10, 4, v10")
    a("v_lshl_add_u32 v10, v9, 7, v10")
    for j in range(8):
        a(f"ds_write_b128 v10, v[{XR + 4 * j}:{XR + 4 * j + 3}] offset:{8192 * j}")
    stamp(a, 3)
    a("s_waitcnt lgkmcnt(0)")
    a("s_barrier")
    stamp(a, 4)
    a("s_cmp_ge_u32 s32, 4")
    a(f"s_cbranch_scc1 {name}_fin")
    a("v_and_b32 v9, 31, v2")
    emit_perm32(a, 10, 9, 11)
    a("v_bfe_u32 v11, v10, 1, 3")
    a("v_lshrrev_b32 v12, 5, v2")
    a("v_xor_b32 v11, v11, v12")
    a("v_lshlrev_b32 v11, 4, v11")
    a("v_lshl_add_u32 v11, v10, 7, v11")
    for c in range(4):
        a(f"v_xor_b32 v{12 + c}, {c * 32}, v11")
        a(f"v_add_u32 v{16 + c}, s46, v{12 + c}")
    ACC = 64
    FR = [96, 108, 120]
    for i in range(32):
        a(f"v_mov_b32 v{ACC + i}, 0")
    units = [(kk, c) for kk in range(8) for c in range(4)]
    vq = [kk for kk in range(6) for _ in range(4)]

    def wait_slot(kk):
        nonlocal vq
        if kk in vq:
            idx = max(i for i, t in enumerate(vq) if t == kk)
            a(f"s_waitcnt vmcnt({len(vq) - 1 - idx})")
            vq = vq[idx + 1:]

    def reads(n):
        kk, c = units[n]
        f = FR[n % 3]
        if c == 0:
            wait_slot(kk)
        a(f"ds_read_b128 v[{f}:{f + 3}], v{16 + c} offset:{(kk % 6) * 4096}")
        a(f"ds_read_b128 v[{f + 4}:{f + 7}], v{12 + c} offset:{kk * 8192}")
        a(f"ds_read_b128 v[{f + 8}:{f + 11}], v{12 + c} offset:{kk * 8192 + 4096}")

    reads(0)
    reads(1)
    for n in range(len(units)):
        kk, c = units[n]
        if n + 2 < len(units):
            reads(n + 2)
            a("s_waitcnt lgkmcnt(6)")
        elif n + 1 < len(units):
            a("s_waitcnt lgkmcnt(3)")
        else:
            a("s_waitcnt lgkmcnt(0)")
        f = FR[n % 3]
        a(f"v_mfma_f32_32x32x16_bf16 v[{ACC}:{ACC + 15}], v[{f + 4}:{f + 7}], v[{f}:{f + 3}], v[{ACC}:{ACC + 15}]")
        a(f"v_mfma_f32_32x32x16_bf16 v[{ACC + 16}:{ACC + 31}], v[{f + 8}:{f + 11}], v[{f}:{f + 3}], v[{ACC + 16}:{ACC + 31}]")
        if c == 3 and kk + 6 < 8:
            dma_slot(kk + 6)
            vq += [kk + 6] * 4
    stamp(a, 5)
    a("s_lshl_b32 s34, s31, 2")
    a("s_add_u32 s34, s34, s32")
    a("s_lshl_b32 s34, s34, 6")
    a("s_lshl_b32 s33, s30, 1")
    a("s_add_u32 s34, s34, s33")
    a("s_lshl_b32 s34, s34, 11")
    a("v_lshlrev_b32 v9, 4, v2")
    a("s_nop 7")
    a("s_nop 3")
    for sh in range(2):
        for i in range(8):
            a(f"v_cvt_pk_bf16_f32 v{32 + 8 * sh + i}, v{ACC + 16 * sh + 2 * i}, v{ACC + 16 * sh + 2 * i + 1}")
    for sh in range(2):
        for u in range(2):
            r = 32 + 8 * sh + 4 * u
            a(f"buffer_store_dwordx4 v[{r}:{r + 3}], v9, s[20:23], s34 offen offset:{sh * 2048 + u * 1024}")
    a.label(f"{name}_fin")
    stamp_flush(a, 1, 6, 6, 7)
    a.label(f"{name}_done")
    a("s_endpgm")
    return kernel_desc(name, 136, 64, 136)


def gen_k2(a, name, NS=9, ED=3, nomfma=0, noload=0, spread=0, noC=0, noE=0):
    kernel_begin(a, name)
    a("s_cmp_ge_u32 s2, 256")
    a(f"s_cbranch_scc1 {name}_done")
    stamp(a, 0)
    a("s_load_dwordx4 s[4:7], s[0:1], 8")
    a("s_load_dwordx2 s[8:9], s[0:1], 96")
    a("s_and_b32 s3, s2, 7")
    a("s_lshr_b32 s28, s2, 3")
    a("s_and_b32 s29, s3, 1")
    a("s_lshr_b32 s30, s3, 1")
    a("s_lshl_b32 s30, s30, 2")
    a("s_and_b32 s31, s28, 3")
    a("s_add_u32 s30, s30, s31")
    a("s_lshr_b32 s31, s28, 2")
    a("v_lshrrev_b32 v200, 6, v0")
    a("v_and_b32 v201, 63, v0")
    a("s_nop 0")
    a("v_readfirstlane_b32 s32, v200")
    a("v_lshrrev_b32 v202, 3, v201")
    a("v_and_b32 v203, 7, v201")
    a("v_lshrrev_b32 v204, 4, v201")
    a("v_xor_b32 v204, v204, v203")
    a("v_xor_b32 v205, 4, v204")
    a("v_lshlrev_b32 v206, 12, v202")
    a("v_lshl_add_u32 v204, v204, 4, v206")
    a("v_lshl_add_u32 v205, v205, 4, v206")
    a("v_lshlrev_b32 v206, 4, v201")
    a("s_waitcnt lgkmcnt(0)")
    stamp(a, 1)
    a("s_cmp_eq_u32 s29, 1")
    a("s_cselect_b32 s4, s6, s4")
    a("s_cselect_b32 s5, s7, s5")
    srd(a, 12, 4, 5, S * S * 2)
    srd(a, 16, 8, 9, 8 << 20)
    a("s_lshl_b32 s35, s30, 19")
    a("s_lshl_b32 s34, s32, 10")
    a("s_add_u32 s35, s35, s34")
    for j in range(4):
        a(f"s_add_u32 s34, s32, {j}")
        a("s_and_b32 s34, s34, 3")
        a(f"s_mov_b32 s{52 + j}, s34")
        a("s_lshl_b32 s34, s34, 17")
        a(f"s_add_u32 s{40 + j}, s35, s34")
    a("s_lshl_b32 s36, s29, 4")
    a("s_lshl_b32 s34, s31, 1")
    a("s_add_u32 s36, s36, s34")
    a("s_lshl_b32 s36, s36, 6")
    a("s_lshl_b32 s34, s32, 4")
    a("s_add_u32 s36, s36, s34")
    a("s_lshl_b32 s36, s36, 11")
    a("s_add_u32 s37, s36, 131072")
    RING = NS * 4096
    a(f"s_mul_i32 s46, s32, {RING}")
    vm = VM(a)

    pend = []

    def dma_one(n, i):
        kk, j = n // 4, n % 4
        if noload or noC:
            return
        a(f"s_add_u32 m0, s46, {(n % NS) * 4096 + i * 1024}")
        a(f"s_add_u32 s47, s{40 + j}, {(i * 8) * 4096 + kk * 128}")
        a(f"buffer_load_dwordx4 v{204 + (i & 1)}, s[12:15], s47 offen lds")
        vm.issue(("C", n))

    def e_one(kk, et2, c):
        if noload or noE:
            return
        st = kk % ED
        r = st * 32 + et2 * 16 + c * 4
        a(f"s_add_u32 s48, s{36 + et2}, {kk * 4096}")
        a(f"buffer_load_dwordx4 a[{r}:{r + 3}], v206, s[16:19], s48 offen offset:{c * 1024}")
        vm.issue(("E", kk))

    def dma_slot(n, defer=False):
        for i in range(4):
            if defer:
                pend.append(lambda n=n, i=i: dma_one(n, i))
            else:
                dma_one(n, i)

    def e_loads(kk, defer=False):
        for et2 in range(2):
            for c in range(4):
                if defer:
                    pend.append(lambda kk=kk, et2=et2, c=c: e_one(kk, et2, c))
                else:
                    e_one(kk, et2, c)

    def flush_pend(pred=None, maxn=None):
        cnt = 0
        while pend and (maxn is None or cnt < maxn):
            pend.pop(0)()
            cnt += 1

    nslot_issued = 0
    for kk in range(ED):
        e_loads(kk)
        for tt in range(4):
            if nslot_issued < NS:
                dma_slot(nslot_issued)
                nslot_issued += 1
    while nslot_issued < NS:
        dma_slot(nslot_issued)
        nslot_issued += 1
    stamp(a, 2)
    a("v_and_b32 v207, 31, v201")
    a("v_bfe_u32 v208, v207, 1, 3")
    a("v_lshrrev_b32 v209, 5, v201")
    a("v_lshlrev_b32 v209, 1, v209")
    a("v_xor_b32 v208, v208, v209")
    a("v_lshlrev_b32 v208, 4, v208")
    a("v_lshl_add_u32 v208, v207, 7, v208")
    for c in range(4):
        x = ((c >> 1) * 4 + (c & 1)) << 4
        a(f"v_xor_b32 v{210 + c}, {x}, v208")
        a(f"v_add_u32 v{210 + c}, s46, v{210 + c}")
    for i in range(128):
        a(f"v_mov_b32 v{i}, 0")
    def pend_has(tag):
        return any(getattr(p, '__defaults__', (None,))[0] == tag[1] and len(p.__defaults__) == (2 if tag[0] == 'C' else 3) for p in pend)

    units = [(n, c) for n in range(32) for c in range(4)]
    NF = 6
    LOOKAHEAD = 4

    def reads(un):
        n, c = units[un]
        if c == 0:
            assert noload or noC or vm.q.count(("C", n)) == 4 or ("C", n) not in vm.q and n < nslot_issued and not pend_has(("C", n))
            vm.wait(("C", n))
        f = 128 + 4 * (un % NF)
        a(f"ds_read_b128 v[{f}:{f + 3}], v{210 + c} offset:{(n % NS) * 4096}")

    for un in range(LOOKAHEAD):
        reads(un)
    for un in range(len(units)):
        n, c = units[un]
        kk, j = n // 4, n % 4
        if un + LOOKAHEAD < len(units):
            reads(un + LOOKAHEAD)
            a(f"s_waitcnt lgkmcnt({LOOKAHEAD})")
        else:
            a(f"s_waitcnt lgkmcnt({len(units) - 1 - un})")
        if j == 0 and c == 0:
            assert not pend_has(("E", kk))
            vm.wait(("E", kk))
        f = 128 + 4 * (un % NF)
        st = kk % ED
        if un == 0:
            stamp(a, 3)
        if un == 64:
            stamp(a, 4)
        for et2 in range(2):
            acc = (j * 2 + et2) * 16
            r = st * 32 + et2 * 16 + c * 4
            if not nomfma:
                a(f"v_mfma_f32_32x32x16_bf16 v[{acc}:{acc + 15}], a[{r}:{r + 3}], v[{f}:{f + 3}], v[{acc}:{acc + 15}]")
            if spread:
                flush_pend(maxn=1)
        if c == 3:
            if nslot_issued < 32:
                dma_slot(nslot_issued, defer=bool(spread))
                nslot_issued += 1
            if j == 3 and kk + ED < 8:
                e_loads(kk + ED, defer=bool(spread))
    stamp(a, 5)
    a("s_barrier")
    stamp(a, 6)
    for j in range(1, 4):
        a(f"s_mul_i32 s34, s{52 + j}, 24576")
        a(f"s_add_u32 s34, s34, {(j - 1) * 8192}")
        a(f"v_add_u32 v{214 + j}, s34, v206")
    a("s_mul_i32 s34, s32, 24576")
    a("v_add_u32 v214, s34, v206")
    a("s_nop 7")
    for j in range(1, 4):
        for q in range(8):
            r = j * 32 + 4 * q
            a(f"ds_write_b128 v{214 + j}, v[{r}:{r + 3}] offset:{q * 1024}")
    a("s_waitcnt lgkmcnt(0)")
    a("s_barrier")
    stamp(a, 7)
    for j in range(1, 4):
        for q in range(8):
            r = j * 32 + 4 * q
            a(f"ds_read_b128 v[{r}:{r + 3}], v214 offset:{(j - 1) * 8192 + q * 1024}")
    a("s_lshl_b32 s34, s30, 7")
    a("s_lshl_b32 s33, s32, 5")
    a("s_add_u32 s34, s34, s33")
    a("s_lshl_b32 s34, s34, 10")
    a("s_lshl_b32 s33, s31, 7")
    a("s_add_u32 s34, s34, s33")
    a("s_lshl_b32 s33, s29, 21")
    a("s_add_u32 s34, s34, s33")
    a(f"s_add_u32 s34, s34, {WS_Y}")
    a("v_lshrrev_b32 v209, 5, v201")
    a("v_lshlrev_b32 v209, 5, v209")
    a("v_lshl_add_u32 v209, v207, 10, v209")
    for j in range(1, 4):
        a(f"s_waitcnt lgkmcnt({min(15, (3 - j) * 8)})")
        for i in range(32):
            a(f"v_add_f32 v{i}, v{i}, v{j * 32 + i}")
    for i in range(16):
        a(f"v_cvt_pk_bf16_f32 v{128 + i}, v{2 * i}, v{2 * i + 1}")
    for et2 in range(2):
        for hh in range(2):
            r = 128 + et2 * 8 + hh * 4
            a(f"buffer_store_dwordx4 v[{r}:{r + 3}], v209, s[16:19], s34 offen offset:{et2 * 64 + hh * 16}")
    stamp_flush(a, 2, 8, 8, 9)
    a.label(f"{name}_done")
    a("s_endpgm")
    return kernel_desc(name, 224 + 32 * ED, 64, 224)


WS_P = 4 << 20


def gen_k2b(a, name, NSTG=5, LA=2, nomfma=0, noread=0, nodma=0, nostore=0):
    kernel_begin(a, name)
    a("s_cmp_ge_u32 s2, 256")
    a(f"s_cbranch_scc1 {name}_done")
    stamp(a, 0)
    a("s_load_dwordx4 s[4:7], s[0:1], 8")
    a("s_load_dwordx2 s[8:9], s[0:1], 96")
    a("s_and_b32 s3, s2, 7")
    a("s_lshr_b32 s28, s2, 3")
    a("s_and_b32 s29, s3, 1")
    a("s_bfe_u32 s27, s3, 0x10001")
    a("s_lshr_b32 s30, s3, 2")
    a("s_lshl_b32 s30, s30, 3")
    a("s_and_b32 s31, s28, 7")
    a("s_add_u32 s30, s30, s31")
    a("s_lshr_b32 s31, s28, 3")
    a("v_lshrrev_b32 v1, 6, v0")
    a("v_and_b32 v2, 63, v0")
    a("s_nop 0")
    a("v_readfirstlane_b32 s32, v1")
    a("v_lshlrev_b32 v3, 4, v2")
    a("s_waitcnt lgkmcnt(0)")
    stamp(a, 1)
    a("s_cmp_eq_u32 s29, 1")
    a("s_cselect_b32 s4, s6, s4")
    a("s_cselect_b32 s5, s7, s5")
    srd(a, 12, 4, 5, S * S * 2)
    srd(a, 16, 8, 9, 12 << 20)
    a("s_cmp_lt_u32 s32, 4")
    a(f"s_cbranch_scc1 {name}_cons")
    a("s_sub_u32 s33, s32, 4")
    a("v_lshrrev_b32 v4, 3, v2")
    a("v_and_b32 v5, 7, v2")
    a("v_lshrrev_b32 v6, 4, v2")
    a("v_xor_b32 v6, v6, v5")
    a("v_xor_b32 v7, 4, v6")
    a("v_lshlrev_b32 v4, 12, v4")
    a("v_lshl_add_u32 v6, v6, 4, v4")
    a("v_lshl_add_u32 v7, v7, 4, v4")
    a("v_mov_b32 v8, v6")
    a(f"v_add_u32 v9, {32768 - 1024}, v7")
    a(f"v_add_u32 v10, {2 * (32768 - 1024)}, v6")
    a(f"v_add_u32 v11, {3 * (32768 - 1024)}, v7")
    a("s_lshl_b32 s35, s30, 19")
    a("s_lshl_b32 s34, s33, 17")
    a("s_add_u32 s35, s35, s34")
    a("s_lshl_b32 s34, s27, 11")
    a("s_add_u32 s35, s35, s34")
    a("s_lshl_b32 s36, s29, 4")
    a("s_lshl_b32 s34, s31, 2")
    a("s_add_u32 s36, s36, s34")
    a("s_add_u32 s36, s36, s33")
    a("s_lshl_b32 s36, s36, 6")
    a("s_lshl_b32 s34, s27, 5")
    a("s_add_u32 s36, s36, s34")
    a("s_lshl_b32 s36, s36, 11")
    a("s_lshl_b32 s37, s33, 12")

    def load_stage(s):
        slot = (s % NSTG) * 32768
        a(f"s_add_u32 m0, s37, {slot}")
        a(f"s_add_u32 s38, s35, {s * 128}")
        for i in range(4):
            if not nodma:
                a(f"buffer_load_dwordx4 v{8 + i}, s[12:15], s38 offen offset:{i * 1024} lds")
        a(f"s_add_u32 m0, s37, {slot + 16384}")
        a(f"s_add_u32 s39, s36, {s * 4096}")
        for c in range(4):
            if not nodma:
                a(f"buffer_load_dwordx4 v3, s[16:19], s39 offen offset:{c * 1024} lds")

    NST = 16
    for s in range(NSTG - 1):
        load_stage(s)
    stamp(a, 2)
    for s in range(NST):
        issued = min(s + NSTG - 2, NST - 1)
        a(f"s_waitcnt vmcnt({(issued - s) * 8})")
        a("s_barrier")
        if s + NSTG - 1 < NST:
            load_stage(s + NSTG - 1)
    stamp(a, 5)
    a(f"s_branch {name}_fin")
    a.label(f"{name}_cons")
    a("s_and_b32 s33, s32, 1")
    a("s_lshr_b32 s34, s32, 1")
    a("v_and_b32 v4, 31, v2")
    a("v_bfe_u32 v5, v4, 1, 3")
    a("v_lshrrev_b32 v6, 5, v2")
    a("v_lshlrev_b32 v6, 1, v6")
    a("v_xor_b32 v5, v5, v6")
    a("v_lshlrev_b32 v5, 4, v5")
    a("v_lshl_add_u32 v5, v4, 7, v5")
    a("s_lshl_b32 s35, s33, 13")
    a("s_lshl_b32 s36, s34, 13")
    a("s_add_u32 s36, s36, 16384")
    for g in range(3):
        for c in range(4):
            x = ((c >> 1) * 4 + (c & 1)) << 4
            a(f"v_xor_b32 v{8 + 5 * g + c}, {x}, v5")
            a(f"v_add_u32 v{8 + 5 * g + c}, s35, v{8 + 5 * g + c}")
            if g:
                a(f"v_add_u32 v{8 + 5 * g + c}, {65536 * g}, v{8 + 5 * g + c}")
        a(f"v_add_u32 v{8 + 5 * g + 4}, s36, v3")
        if g:
            a(f"v_add_u32 v{8 + 5 * g + 4}, {65536 * g}, v{8 + 5 * g + 4}")
    ACC = 64
    FB = 128
    for i in range(64):
        a(f"v_mov_b32 v{ACC + i}, 0")
    NU = NST * 4

    def reads(u):
        s, c = u // 4, u % 4
        slot = s % NSTG
        g, so = slot // 2, (slot % 2) * 32768
        f = FB + 16 * (u % (LA + 1))
        if c == 0:
            a("s_waitcnt lgkmcnt(0)")
            a("s_barrier")
            if s == 0:
                stamp(a, 3)
            if s == 8:
                stamp(a, 4)
        if noread:
            return
        a(f"ds_read_b128 v[{f}:{f + 3}], v{8 + 5 * g + c} offset:{so}")
        a(f"ds_read_b128 v[{f + 8}:{f + 11}], v{8 + 5 * g + 4} offset:{so + c * 1024}")
        a(f"ds_read_b128 v[{f + 4}:{f + 7}], v{8 + 5 * g + c} offset:{so + 4096}")
        a(f"ds_read_b128 v[{f + 12}:{f + 15}], v{8 + 5 * g + 4} offset:{so + 4096 + c * 1024}")

    for u in range(LA):
        reads(u)
    for u in range(NU):
        if u + LA < NU:
            reads(u + LA)
        nxt = min(u + LA, NU - 1)
        cnt = 0
        for uu in range(u + 1, nxt + 1):
            cnt += 4
        a(f"s_waitcnt lgkmcnt({min(cnt, 15)})")
        f = FB + 16 * (u % (LA + 1))
        for et in range(2):
            for tt in range(2):
                acc = ACC + (et * 2 + tt) * 16
                if not nomfma:
                    a(f"v_mfma_f32_32x32x16_bf16 v[{acc}:{acc + 15}], v[{f + 8 + 4 * et}:{f + 11 + 4 * et}], v[{f + 4 * tt}:{f + 4 * tt + 3}], v[{acc}:{acc + 15}]")
    stamp(a, 5)
    a("s_lshl_b32 s35, s30, 7")
    a("s_lshl_b32 s36, s33, 6")
    a("s_add_u32 s35, s35, s36")
    a("s_lshl_b32 s35, s35, 10")
    a("s_lshl_b32 s36, s31, 8")
    a("s_add_u32 s35, s35, s36")
    a("s_lshl_b32 s36, s34, 7")
    a("s_add_u32 s35, s35, s36")
    a("s_lshl_b32 s36, s29, 1")
    a("s_add_u32 s36, s36, s27")
    a("s_lshl_b32 s36, s36, 21")
    a("s_add_u32 s35, s35, s36")
    a(f"s_add_u32 s35, s35, {WS_P}")
    a("s_add_u32 s36, s35, 32768")
    a("v_lshrrev_b32 v6, 5, v2")
    a("v_lshlrev_b32 v6, 5, v6")
    a("v_lshl_add_u32 v6, v4, 10, v6")
    a("s_nop 4")
    for et in range(2):
        for tt in range(2):
            acc = ACC + (et * 2 + tt) * 16
            o = 24 + (et * 2 + tt) * 8
            for i in range(8):
                a(f"v_cvt_pk_bf16_f32 v{o + i}, v{acc + 2 * i}, v{acc + 2 * i + 1}")
            for hh in range(2):
                if not nostore:
                    a(f"buffer_store_dwordx4 v[{o + 4 * hh}:{o + 4 * hh + 3}], v6, s[16:19], s{35 + tt} offen offset:{et * 64 + hh * 16}")
    a.label(f"{name}_fin")
    stamp_flush(a, 2, 6, 8, 9)
    a.label(f"{name}_done")
    a("s_endpgm")
    nv = FB + 16 * (LA + 1)
    return kernel_desc(name, nv, 64, nv)


def emit_perm2(a, dst, src, t):
    a(f"v_and_b32 v{dst}, 3, v{src}")
    a(f"v_bfe_u32 v{t}, v{src}, 2, 2")
    a(f"v_lshl_or_b32 v{dst}, v{t}, 3, v{dst}")
    a(f"v_bfe_u32 v{t}, v{src}, 4, 1")
    a(f"v_lshl_or_b32 v{dst}, v{t}, 2, v{dst}")


def gen_k1b(a, name, prefetch=1, wt=0, nostats=0, nocs=0, PRO=6, pfpos=2, rot=1):
    NSTG, SLOT = 6, 24576
    STATS = NSTG * SLOT
    kernel_begin(a, name)
    a("s_cmp_ge_u32 s2, 256")
    a(f"s_cbranch_scc1 {name}_done")
    stamp(a, 0)
    a("s_load_dwordx2 s[4:5], s[0:1], 0")
    a("s_load_dwordx4 s[8:11], s[0:1], 24")
    a("s_load_dwordx2 s[6:7], s[0:1], 96")
    a("s_load_dwordx4 s[40:43], s[0:1], 8")
    a("s_and_b32 s3, s2, 7")
    a("s_lshr_b32 s28, s2, 3")
    a("s_and_b32 s29, s28, 3")
    a("s_lshl_b32 s30, s3, 2")
    a("s_add_u32 s30, s30, s29")
    a("s_lshr_b32 s31, s28, 2")
    a("v_lshrrev_b32 v1, 6, v0")
    a("v_and_b32 v2, 63, v0")
    a("s_nop 0")
    a("v_readfirstlane_b32 s32, v1")
    a("s_mov_b32 s53, 0xffff0000")
    a("s_cmp_lt_u32 s32, 4")
    a(f"s_cbranch_scc1 {name}_cons")
    a("s_sub_u32 s33, s32, 4")
    a("v_lshrrev_b32 v3, 3, v2")
    a("v_and_b32 v4, 7, v2")
    a("v_lshrrev_b32 v6, 4, v2")
    a("v_xor_b32 v6, v6, v4")
    a("v_xor_b32 v7, 4, v6")
    a("v_lshlrev_b32 v3, 10, v3")
    a("v_lshl_add_u32 v8, v6, 4, v3")
    a("v_lshl_add_u32 v7, v7, 4, v3")
    a(f"v_add_u32 v9, {8192 - 1024}, v7")
    a(f"v_add_u32 v10, {2 * (8192 - 1024)}, v8")
    a(f"v_add_u32 v11, {3 * (8192 - 1024)}, v7")
    a("s_lshl_b32 s35, s30, 6")
    a("s_lshl_b32 s34, s33, 4")
    a("s_add_u32 s35, s35, s34")
    a("s_lshl_b32 s35, s35, 10")
    a("s_and_b32 s36, s31, 3")
    a("s_lshl_b32 s36, s36, 7")
    a("s_lshl_b32 s34, s33, 5")
    a("s_add_u32 s36, s36, s34")
    a("s_lshl_b32 s36, s36, 10")
    a("s_lshl_b32 s37, s33, 11")
    a("s_lshl_b32 s38, s33, 12")
    a("s_add_u32 s38, s38, 8192")
    a("s_lshl_b32 s34, s29, 1")
    a("s_add_u32 s34, s34, s31")
    for kk in range(8):
        if rot:
            a(f"s_add_u32 s39, s34, {kk}")
            a("s_and_b32 s39, s39, 7")
            a(f"s_lshl_b32 s{54 + kk}, s39, 7")
        else:
            a(f"s_mov_b32 s{54 + kk}, {kk * 128}")
    a("s_waitcnt lgkmcnt(0)")
    stamp(a, 1)
    srd(a, 12, 4, 5, S * D * 2)
    a("s_cmp_ge_u32 s31, 4")
    a("s_cselect_b32 s8, s10, s8")
    a("s_cselect_b32 s9, s11, s9")
    srd(a, 16, 8, 9, D * D * 2)

    def load_stage(kk):
        slot = (kk % NSTG) * SLOT
        a(f"s_add_u32 m0, s37, {slot}")
        a(f"s_add_u32 s39, s35, s{54 + kk}")
        for i in range(2):
            a(f"buffer_load_dwordx4 v{8 + i}, s[12:15], s39 offen offset:{i * 1024} lds")
        a(f"s_add_u32 m0, s38, {slot}")
        a(f"s_add_u32 s39, s36, s{54 + kk}")
        for i in range(4):
            a(f"buffer_load_dwordx4 v{8 + i}, s[16:19], s39 offen offset:{i * 1024} lds")

    for kk in range(PRO):
        load_stage(kk)
    stamp(a, 2)
    a("v_lshrrev_b32 v12, 2, v2")
    a("v_lshlrev_b32 v12, 7, v12")
    a("v_and_b32 v13, 3, v2")
    a("v_lshl_add_u32 v12, v13, 5, v12")
    a("v_add_u32 v12, s37, v12")
    a(f"v_add_u32 v13, {3 * SLOT}, v12")
    a("v_mov_b32 v14, 0")
    a("v_mov_b32 v15, 0")
    a("v_mov_b32 v16, 0")
    a("v_mov_b32 v17, 0")
    issued = PRO
    npf = 0

    def emit_prefetch(vb):
        a("s_and_b32 s48, s3, 1")
        a("s_cmp_eq_u32 s48, 1")
        a("s_cselect_b32 s40, s42, s40")
        a("s_cselect_b32 s41, s43, s41")
        srd(a, 24, 40, 41, S * S * 2)
        a("s_lshr_b32 s48, s3, 2")
        a("s_lshl_b32 s48, s48, 10")
        a("s_lshl_b32 s49, s28, 5")
        a("s_add_u32 s48, s48, s49")
        a("s_and_b32 s49, s32, 3")
        a("s_lshl_b32 s49, s49, 3")
        a("s_add_u32 s48, s48, s49")
        a("s_lshl_b32 s48, s48, 12")
        a("s_bfe_u32 s49, s3, 0x10001")
        a("s_lshl_b32 s49, s49, 11")
        a("s_add_u32 s48, s48, s49")
        a(f"v_lshrrev_b32 v{vb}, 4, v2")
        a(f"v_lshlrev_b32 v{vb}, 12, v{vb}")
        a(f"v_and_b32 v{vb + 1}, 15, v2")
        a(f"v_lshl_add_u32 v{vb}, v{vb + 1}, 7, v{vb}")
        for i in range(2):
            a(f"s_add_u32 s49, s48, {i * 16384}")
            a(f"buffer_load_dword v{vb + 2 + i}, v{vb}, s[24:27], s49 offen")

    vq = [k for k in range(PRO) for _ in range(6)]
    for kk in range(8):
        idx = max(i for i, t in enumerate(vq) if t == kk)
        a(f"s_waitcnt vmcnt({len(vq) - 1 - idx})")
        vq = vq[idx + 1:]
        slot = kk % NSTG
        ar, so = (12, slot * SLOT) if slot < 3 else (13, (slot - 3) * SLOT)
        a(f"ds_read_b128 v[24:27], v{ar} offset:{so}")
        a(f"ds_read_b128 v[28:31], v{ar} offset:{so + 16}")
        a("s_barrier")
        a("s_waitcnt lgkmcnt(0)")
        n_new = 0
        while issued < 8 and issued - NSTG < kk and n_new < 2:
            load_stage(issued)
            vq += [issued] * 6
            issued += 1
            n_new += 1
        if prefetch and pfpos == kk:
            emit_prefetch(40)
            vq += ["pf"] * 2
        if kk == 0:
            a("v_lshlrev_b32 v18, 16, v24")
            a("s_nop 1")
            a(f"v_mov_b32_dpp v18, v18 quad_perm:[0,0,0,0] {DPP}")
        for r in range(0 if nostats else 8):
            t = 32 + 2 * (r & 3)
            a(f"v_lshlrev_b32 v{t}, 16, v{24 + r}")
            a(f"v_and_b32 v{t + 1}, s53, v{24 + r}")
            a(f"v_sub_f32 v{t}, v{t}, v18")
            a(f"v_sub_f32 v{t + 1}, v{t + 1}, v18")
            a(f"v_add_f32 v14, v14, v{t}")
            a(f"v_add_f32 v15, v15, v{t + 1}")
            a(f"v_fmac_f32 v16, v{t}, v{t}")
            a(f"v_fmac_f32 v17, v{t + 1}, v{t + 1}")
    a("v_add_f32 v14, v14, v15")
    a("v_add_f32 v16, v16, v17")
    for qp in ("[1,0,3,2]", "[2,3,0,1]"):
        a("s_nop 1")
        a(f"v_add_f32_dpp v14, v14, v14 quad_perm:{qp} {DPP}")
        a(f"v_add_f32_dpp v16, v16, v16 quad_perm:{qp} {DPP}")
    a("v_mul_f32 v14, 0x3b000000, v14")
    a("v_mul_f32 v16, 0x3b000000, v16")
    a("v_fma_f32 v16, -v14, v14, v16")
    a("v_max_f32 v16, 0, v16")
    a("v_add_f32 v14, v14, v18")
    a("v_cvt_pk_bf16_f32 v14, v14, v14")
    a("v_lshlrev_b32 v14, 16, v14")
    a("v_cvt_pk_bf16_f32 v16, v16, v16")
    a("v_lshlrev_b32 v16, 16, v16")
    a("v_add_f32 v16, 0x3727c5ac, v16")
    a("v_cvt_pk_bf16_f32 v16, v16, v16")
    a("v_lshlrev_b32 v16, 16, v16")
    a("v_sqrt_f32 v16, v16")
    a("s_nop 0")
    a("v_cvt_pk_bf16_f32 v16, v16, v16")
    a("v_lshlrev_b32 v16, 16, v16")
    a("v_rcp_f32 v16, v16")
    a("v_lshrrev_b32 v19, 2, v2")
    a("v_lshlrev_b32 v19, 2, v19")
    a("s_lshl_b32 s34, s33, 6")
    a(f"s_add_u32 s34, s34, {STATS}")
    a("v_add_u32 v19, s34, v19")
    a("ds_write_b32 v19, v14")
    a("ds_write_b32 v19, v16 offset:256")
    a("s_waitcnt lgkmcnt(0)")
    stamp(a, 3)
    a("s_barrier")
    a(f"s_branch {name}_fin")
    a.label(f"{name}_cons")
    a("v_and_b32 v9, 31, v2")
    a("v_lshrrev_b32 v5, 5, v2")
    emit_perm32(a, 10, 9, 11)
    a("v_bfe_u32 v11, v10, 1, 3")
    a("v_xor_b32 v11, v11, v5")
    a("v_lshlrev_b32 v11, 4, v11")
    a("v_lshl_add_u32 v11, v10, 7, v11")
    emit_perm2(a, 10, 9, 12)
    a("v_bfe_u32 v12, v10, 1, 3")
    a("v_xor_b32 v12, v12, v5")
    a("v_lshlrev_b32 v12, 4, v12")
    a("v_lshl_add_u32 v12, v10, 7, v12")
    a("s_lshl_b32 s34, s32, 12")
    a("s_add_u32 s34, s34, 8192")
    a("v_add_u32 v12, s34, v12")
    for g in range(3):
        for c in range(4):
            a(f"v_xor_b32 v{16 + 8 * g + c}, {c * 32}, v11")
            a(f"v_xor_b32 v{20 + 8 * g + c}, {c * 32}, v12")
            if g:
                a(f"v_add_u32 v{16 + 8 * g + c}, {2 * SLOT * g}, v{16 + 8 * g + c}")
                a(f"v_add_u32 v{20 + 8 * g + c}, {2 * SLOT * g}, v{20 + 8 * g + c}")
    ACC = 64
    FR = [96, 108, 120]
    for i in range(32):
        a(f"v_mov_b32 v{ACC + i}, 0")
    a("v_mov_b32 v40, 0")
    a("v_mov_b32 v41, 0")
    a("s_mov_b32 s50, 0x3f803f80")
    a("s_waitcnt lgkmcnt(0)")
    stamp(a, 1)
    srd(a, 20, 6, 7, 4 << 20)
    if prefetch and pfpos == -1:
        emit_prefetch(150)
    units = [(kk, c) for kk in range(8) for c in range(4)]

    def reads(n):
        kk, c = units[n]
        f = FR[n % 3]
        slot = kk % NSTG
        g, so = slot // 2, (slot % 2) * SLOT
        if c == 0:
            a("s_waitcnt lgkmcnt(0)")
            a("s_barrier")
            if kk == 0:
                stamp(a, 2)
        a(f"ds_read_b128 v[{f}:{f + 3}], v{20 + 8 * g + c} offset:{so}")
        a(f"ds_read_b128 v[{f + 4}:{f + 7}], v{16 + 8 * g + c} offset:{so}")
        a(f"ds_read_b128 v[{f + 8}:{f + 11}], v{16 + 8 * g + c} offset:{so + 4096}")

    reads(0)
    reads(1)
    for n in range(len(units)):
        if n + 2 < len(units):
            reads(n + 2)
            a("s_waitcnt lgkmcnt(6)")
        elif n + 1 < len(units):
            a("s_waitcnt lgkmcnt(3)")
        else:
            a("s_waitcnt lgkmcnt(0)")
        f = FR[n % 3]
        a(f"v_mfma_f32_32x32x16_bf16 v[{ACC}:{ACC + 15}], v[{f + 4}:{f + 7}], v[{f}:{f + 3}], v[{ACC}:{ACC + 15}]")
        if not nocs:
            a(f"v_dot2_f32_bf16 v40, v{f}, s50, v40")
        if not nocs:
            a(f"v_dot2_f32_bf16 v41, v{f + 1}, s50, v41")
        a(f"v_mfma_f32_32x32x16_bf16 v[{ACC + 16}:{ACC + 31}], v[{f + 8}:{f + 11}], v[{f}:{f + 3}], v[{ACC + 16}:{ACC + 31}]")
        if not nocs:
            a(f"v_dot2_f32_bf16 v40, v{f + 2}, s50, v40")
        if not nocs:
            a(f"v_dot2_f32_bf16 v41, v{f + 3}, s50, v41")
    stamp(a, 3)
    a("s_barrier")
    stamp(a, 4)
    a("v_lshlrev_b32 v42, 6, v5")
    a(f"v_add_u32 v42, {STATS}, v42")
    for sh in range(2):
        for q in range(4):
            a(f"ds_read_b128 v[{96 + 16 * sh + 4 * q}:{99 + 16 * sh + 4 * q}], v42 offset:{128 * sh + 16 * q}")
            a(f"ds_read_b128 v[{128 + 16 * sh + 4 * q}:{131 + 16 * sh + 4 * q}], v42 offset:{256 + 128 * sh + 16 * q}")
    a("v_add_f32 v40, v40, v41")
    a("v_mov_b32 v41, v40")
    a("s_nop 1")
    a("v_permlane32_swap_b32 v40, v41")
    a("s_nop 1")
    a("v_add_f32 v40, v40, v41")
    a("s_lshl_b32 s34, s31, 2")
    a("s_add_u32 s34, s34, s32")
    a("s_lshl_b32 s34, s34, 7")
    a("s_lshl_b32 s33, s30, 1")
    a("s_add_u32 s34, s34, s33")
    a("s_lshl_b32 s34, s34, 10")
    a("v_bfe_u32 v43, v2, 4, 1")
    a("v_lshlrev_b32 v43, 16, v43")
    a("v_lshl_add_u32 v43, v5, 9, v43")
    a("v_and_b32 v44, 15, v2")
    a("v_lshl_add_u32 v43, v44, 4, v43")
    a("s_waitcnt lgkmcnt(0)")
    for sh in range(2):
        for i in range(16):
            r = ACC + 16 * sh + i
            a(f"v_fma_f32 v{r}, -v{96 + 16 * sh + i}, v40, v{r}")
            a(f"v_mul_f32 v{r}, v{r}, v{128 + 16 * sh + i}")
        for i in range(8):
            a(f"v_cvt_pk_bf16_f32 v{48 + 8 * sh + i}, v{ACC + 16 * sh + 2 * i}, v{ACC + 16 * sh + 2 * i + 1}")
        for u in range(2):
            r = 48 + 8 * sh + 4 * u
            a(f"buffer_store_dwordx4 v[{r}:{r + 3}], v43, s[20:23], s34 offen offset:{sh * 1024 + u * 256}" + (" sc0 sc1" if wt else ""))
    stamp(a, 5)
    a.label(f"{name}_fin")
    stamp_flush(a, 1, 6, 6, 7)
    a.label(f"{name}_done")
    a("s_endpgm")
    return kernel_desc(name, 160, 64, 160)


def emit_wtouch(a, s_sel, vt, vd):
    a(f"s_cmp_eq_u32 {s_sel}, 1")
    a("s_cselect_b32 s56, s58, s56")
    a("s_cselect_b32 s57, s59, s57")
    a(f"s_cmp_eq_u32 {s_sel}, 2")
    a("s_cselect_b32 s56, s60, s56")
    a("s_cselect_b32 s57, s61, s57")
    a("s_mul_i32 s62, s2, 7168")
    a("s_add_u32 s63, s62, 7168")
    a(f"s_cmp_eq_u32 {s_sel}, 3")
    a("s_cselect_b32 s63, 0, s63")
    a("s_mov_b32 s20, s56")
    a("s_and_b32 s21, s57, 0xffff")
    a("s_mov_b32 s22, s63")
    a("s_mov_b32 s23, 0x00020000")
    a(f"v_lshlrev_b32 v{vt}, 7, v2")
    a(f"buffer_load_dword v{vd}, v{vt}, s[20:23], s62 offen")


def emit_wtouch2(a):
    a("s_cmp_ge_u32 s33, 2")
    a("s_cselect_b32 s56, s66, s64")
    a("s_cselect_b32 s57, s67, s65")
    a("s_cmp_lt_u32 s28, 28")
    a(f"s_cselect_b32 s62, {D * F * 2}, 0")
    a("s_mov_b32 s20, s56")
    a("s_and_b32 s21, s57, 0xffff")
    a("s_mov_b32 s22, s62")
    a("s_mov_b32 s23, 0x00020000")
    a("s_mov_b32 s24, s68")
    a("s_and_b32 s25, s69, 0xffff")
    a("s_mov_b32 s26, s62")
    a("s_mov_b32 s27, 0x00020000")
    a("s_lshr_b32 s58, s28, 2")
    a("s_lshl_b32 s58, s58, 3")
    a("s_add_u32 s58, s58, s3")
    a("s_and_b32 s59, s28, 3")
    a("s_lshl_b32 s62, s59, 1")
    a("s_and_b32 s63, s33, 1")
    a("s_add_u32 s62, s62, s63")
    a("s_mul_i32 s62, s62, 229376")
    a("s_lshr_b32 s63, s58, 1")
    a("s_lshl_b32 s63, s63, 7")
    a("s_add_u32 s62, s62, s63")
    a("s_mov_b32 s63, 3584")
    a("v_mul_lo_u32 v13, v2, s63")
    a("buffer_load_dword v15, v13, s[20:23], s62 offen")
    a("s_lshl_b32 s62, s58, 15")
    a("s_lshl_b32 s63, s59, 13")
    a("s_add_u32 s62, s62, s63")
    a("s_lshl_b32 s63, s33, 11")
    a("s_add_u32 s62, s62, s63")
    a("v_and_b32 v13, 15, v2")
    a("v_lshlrev_b32 v13, 7, v13")
    a("buffer_load_dword v16, v13, s[24:27], s62 offen")


def gen_k2c(a, name, NSTG=5, LA=1, wt=0, PRO=5, rot=1, BARPOS=1, RSTEP=1, wpf=1, wpf2=0, pol=0, fuse3=0, etouch=0, swap=1, cw=-1, fused_in=0):
    SOFF = 3 if fused_in else 0
    POL = {0: '', 1: ' sc1', 2: ' nt', 3: ' sc0'}[pol]
    if not fused_in:
        kernel_begin(a, name)
        a("s_cmp_ge_u32 s2, 256")
        a(f"s_cbranch_scc1 {name}_done")
    stamp(a, 0)
    if fused_in:
        a("s_load_dwordx2 s[10:11], s[0:1], 88")
    a("s_load_dwordx4 s[4:7], s[0:1], 8")
    a("s_load_dwordx2 s[8:9], s[0:1], 96")
    a("s_load_dwordx4 s[56:59], s[0:1], 56")
    a("s_load_dwordx2 s[60:61], s[0:1], 72")
    a("s_load_dwordx4 s[64:67], s[0:1], 56")
    a("s_load_dwordx2 s[68:69], s[0:1], 72")
    a("s_and_b32 s3, s2, 7")
    a("s_lshr_b32 s28, s2, 3")
    a("s_and_b32 s29, s3, 1")
    a("s_bfe_u32 s27, s3, 0x10001")
    a("s_lshr_b32 s30, s3, 2")
    a("s_lshl_b32 s30, s30, 3")
    a("s_and_b32 s31, s28, 7")
    a("s_add_u32 s30, s30, s31")
    a("s_lshr_b32 s31, s28, 3")
    if fused_in:
        a("v_mbcnt_lo_u32_b32 v2, -1, 0")
        a("v_mbcnt_hi_u32_b32 v2, -1, v2")
    else:
        a("v_lshrrev_b32 v1, 6, v0")
        a("v_and_b32 v2, 63, v0")
        a("s_nop 0")
        a("v_readfirstlane_b32 s32, v1")
    a("v_lshlrev_b32 v3, 4, v2")
    if swap and not fused_in:
        a("s_xor_b32 s32, s32, 4")
    a("s_cmp_lt_u32 s32, 4")
    a(f"s_cbranch_scc1 {name}_cons")
    a("s_sub_u32 s33, s32, 4")
    a("v_lshrrev_b32 v4, 3, v2")
    a("v_and_b32 v5, 7, v2")
    a("v_lshrrev_b32 v6, 4, v2")
    a("v_xor_b32 v6, v6, v5")
    a("v_xor_b32 v7, 4, v6")
    a("v_lshlrev_b32 v4, 12, v4")
    a("v_lshl_add_u32 v6, v6, 4, v4")
    a("v_lshl_add_u32 v7, v7, 4, v4")
    a("v_mov_b32 v8, v6")
    a(f"v_add_u32 v9, {32768 - 1024}, v7")
    a(f"v_add_u32 v10, {2 * (32768 - 1024)}, v6")
    a(f"v_add_u32 v11, {3 * (32768 - 1024)}, v7")
    a(f"v_add_u32 v12, {65536 - 2048}, v3")
    a("s_lshl_b32 s35, s30, 19")
    a("s_lshl_b32 s34, s33, 17")
    a("s_add_u32 s35, s35, s34")
    a("s_lshl_b32 s34, s27, 11")
    a("s_add_u32 s35, s35, s34")
    a("s_lshl_b32 s36, s29, 5")
    a("s_lshl_b32 s34, s31, 3")
    a("s_add_u32 s36, s36, s34")
    a("s_lshl_b32 s34, s33, 1")
    a("s_add_u32 s36, s36, s34")
    a("s_lshl_b32 s36, s36, 6")
    a("s_lshl_b32 s34, s27, 5")
    a("s_add_u32 s36, s36, s34")
    a("s_lshl_b32 s36, s36, 10")
    a("s_lshl_b32 s37, s33, 12")
    if rot >= 2:
        a("s_lshl_b32 s52, s31, 1")
        a("s_add_u32 s52, s52, s30")
        if rot == 3:
            a("s_add_u32 s52, s31, s30")
    for j in range(4):
        if rot:
            a(f"s_add_u32 s34, s31, {j}")
            a("s_and_b32 s34, s34, 3")
        else:
            a(f"s_mov_b32 s34, {j}")
        a("s_lshl_b32 s38, s34, 7")
        a(f"s_add_u32 s{44 + j}, s35, s38")
        a("s_lshl_b32 s38, s34, 11")
        a(f"s_add_u32 s{48 + j}, s36, s38")
    a("s_waitcnt lgkmcnt(0)")
    stamp(a, 1)
    a("s_cmp_eq_u32 s29, 1")
    a("s_cselect_b32 s4, s6, s4")
    a("s_cselect_b32 s5, s7, s5")
    srd(a, 12, 4, 5, S * S * 2)
    srd(a, 16, 8, 9, 14 << 20)

    def load_stage(s, part=3):
        slot = ((s + SOFF) % NSTG) * 32768
        if part & 1:
            load_c(s, slot)
        if part & 2:
            load_e(s, slot)

    def load_c(s, slot):
        a(f"s_add_u32 m0, s37, {slot}")
        if rot >= 2:
            G8 = {2: 8, 3: 4, 4: 16}[rot]
            a(f"s_add_u32 s53, s52, {s}")
            a(f"s_and_b32 s53, s53, {G8 - 1}")
            a(f"s_add_u32 s53, s53, {s & ~(G8 - 1)}")
            a("s_lshl_b32 s54, s53, 7")
            a("s_add_u32 s38, s35, s54")
        else:
            a(f"s_add_u32 s38, s{44 + (s & 3)}, {(s & ~3) * 128}")
        for i in range(4):
            a(f"buffer_load_dwordx4 v{8 + i}, s[12:15], s38 offen offset:{i * 1024}{POL} lds")

    def load_e(s, slot):
        a(f"s_add_u32 m0, s37, {slot + 16384}")
        if rot >= 2:
            a("s_lshl_b32 s54, s53, 11")
            a("s_add_u32 s39, s36, s54")
        else:
            a(f"s_add_u32 s39, s{48 + (s & 3)}, {(s & ~3) * 2048}")
        for c in range(4):
            a(f"buffer_load_dwordx4 v{3 if c < 2 else 12}, s[16:19], s39 offen offset:{c * 1024}{' sc1' if fused_in else POL} lds")

    NST = 16
    if fused_in:
        PRO = 4
        for s in range(PRO):
            load_stage(s, 1)
        srd(a, 20, 10, 11, 256)
        a("s_lshl_b32 s52, s29, 1")
        a("s_add_u32 s52, s52, s27")
        a("s_lshl_b32 s52, s52, 2")
        a("s_add_u32 s52, s52, s31")
        a("s_lshl_b32 s52, s52, 10")
        a(f"s_add_u32 s52, s52, {WS_FLAG1}")
        a("v_bfe_u32 v13, v2, 2, 3")
        a("v_lshlrev_b32 v13, 7, v13")
        a("v_and_b32 v14, 3, v2")
        a("v_lshl_add_u32 v13, v14, 2, v13")
        a("v_mov_b32 v14, 0")
        a("s_mov_b32 s55, 0x40000")
        a.label(f"{name}_np")
        a("buffer_load_dword v15, v14, s[20:23], 0 offen sc1")
        a("v_and_b32 v17, 3, v2")
        a("v_lshlrev_b32 v17, 12, v17")
        a(f"v_add_u32 v17, {3 * 32768 + 16384}, v17")
        a(f"s_add_u32 s54, s37, {3 * 32768 + 16384}")
        a("v_mov_b32 v18, s54")
        a("s_waitcnt vmcnt(0)")
        a("v_readfirstlane_b32 s53, v15")
        a("s_cmp_lg_u32 s53, 0")
        a(f"s_cbranch_scc1 {name}_nd")
        a("s_sub_u32 s55, s55, 1")
        a(f"s_cbranch_scc0 {name}_np")
        a("s_mov_b32 s55, 0")
        a.label(f"{name}_nd")
        a("s_cmp_lg_u32 s33, 0")
        a(f"s_cbranch_scc1 {name}_lp")
        a.label(f"{name}_ep")
        a("buffer_load_dword v16, v13, s[16:19], s52 offen sc1")
        a("s_waitcnt vmcnt(0)")
        a("v_cmp_ne_u32 vcc, v15, v16")
        a("s_or_b32 s62, vcc_lo, vcc_hi")
        a(f"s_cbranch_scc0 {name}_eo")
        a(f"s_sleep {ESLEEP}")
        a("s_sub_u32 s55, s55, 1")
        a(f"s_cbranch_scc0 {name}_ep")
        a.label(f"{name}_eo")
        a("ds_write_b32 v17, v15")
        a("s_waitcnt lgkmcnt(0)")
        a(f"s_branch {name}_ed")
        a.label(f"{name}_lp")
        a("ds_read_b32 v16, v18")
        a("s_waitcnt lgkmcnt(0)")
        a("v_readfirstlane_b32 s62, v16")
        a("s_cmp_eq_u32 s62, s53")
        a(f"s_cbranch_scc1 {name}_ed")
        a("s_sleep 1")
        a("s_sub_u32 s55, s55, 1")
        a(f"s_cbranch_scc0 {name}_lp")
        a.label(f"{name}_ed")
        for s in range(PRO):
            load_stage(s, 2)
        vq = [st for st in range(PRO) for _ in range(4)]
    else:
        for s in range(PRO):
            load_stage(s)
        vq = [st for st in range(PRO) for _ in range(8)]
    stamp(a, 2)
    issued = PRO
    for s in range(NST):
        idx = max(k for k, t in enumerate(vq) if t == s)
        a(f"s_waitcnt vmcnt({len(vq) - 1 - idx})")
        vq = vq[idx + 1:]
        a("s_barrier")
        n_new = 0
        while issued < NST and issued - NSTG < s and n_new < 2:
            load_stage(issued)
            vq += [issued] * 8
            issued += 1
            n_new += 1
            if issued == wpf:
                emit_wtouch(a, "s33", 13, 14)
                vq.append("w")
            if issued == wpf2:
                emit_wtouch2(a)
                vq += ["w", "w"]
    stamp(a, 5)
    a(f"s_branch {name}_fin")
    a.label(f"{name}_cons")
    a("s_and_b32 s33, s32, 1")
    a("s_lshr_b32 s34, s32, 1")
    a("v_and_b32 v4, 15, v2")
    a("v_lshrrev_b32 v5, 1, v4")
    a("v_lshrrev_b32 v6, 4, v2")
    a("v_xor_b32 v5, v5, v6")
    a("v_lshlrev_b32 v5, 4, v5")
    a("v_lshl_add_u32 v5, v4, 7, v5")
    a("s_lshl_b32 s35, s33, 13")
    a("s_lshl_b32 s36, s34, 13")
    a("s_add_u32 s36, s36, 16384")
    for g in range(3):
        a(f"v_add_u32 v{8 + 3 * g}, s35, v5")
        a(f"v_xor_b32 v{9 + 3 * g}, 64, v5")
        a(f"v_add_u32 v{9 + 3 * g}, s35, v{9 + 3 * g}")
        a(f"v_add_u32 v{10 + 3 * g}, s36, v3")
        if g:
            for r in range(3):
                a(f"v_add_u32 v{8 + 3 * g + r}, {65536 * g}, v{8 + 3 * g + r}")
    ACC = 64
    FB = 128
    for i in range(64):
        a(f"v_mov_b32 v{ACC + i}, 0")
    a("s_waitcnt lgkmcnt(0)")
    stamp(a, 1)
    srd(a, 16, 8, 9, 12 << 20)
    if etouch:
        a("s_lshl_b32 s38, s29, 5")
        a("s_add_u32 s38, s38, s28")
        a("s_lshl_b32 s38, s38, 6")
        a("s_lshl_b32 s39, s27, 5")
        a("s_add_u32 s38, s38, s39")
        a("s_lshl_b32 s38, s38, 10")
        a("s_lshl_b32 s39, s32, 13")
        a("s_add_u32 s38, s38, s39")
        a("v_lshlrev_b32 v20, 7, v2")
        a("buffer_load_dword v21, v20, s[16:19], s38 offen")
    NU = NST * 2

    def read_list(u):
        s, ks = u // 2, u % 2
        slot = (s + SOFF) % NSTG
        g, so = slot // 2, (slot % 2) * 32768
        f = FB + 32 * (u % 2)
        L = []
        for i in range(4):
            L.append(f"ds_read_b128 v[{f + 16 + 4 * i}:{f + 19 + 4 * i}], v{10 + 3 * g} offset:{so + i * 2048 + ks * 1024}")
            L.append(f"ds_read_b128 v[{f + 4 * i}:{f + 3 + 4 * i}], v{8 + 3 * g + ks} offset:{so + i * 2048}")
        return L

    if cw == 100:
        emit_wtouch(a, "s32", 20, 21)
    a("s_barrier")
    stamp(a, 3)
    for r in read_list(0):
        a(r)
    for u in range(NU):
        a("s_waitcnt lgkmcnt(0)")
        f = FB + 32 * (u % 2)
        nxt = read_list(u + 1) if u + 1 < NU else []
        n = 0
        for T in range(4):
            for tt in range(4):
                acc = ACC + (T * 4 + tt) * 4
                a(f"v_mfma_f32_16x16x32_bf16 v[{acc}:{acc + 3}], v[{f + 16 + 4 * T}:{f + 19 + 4 * T}], v[{f + 4 * tt}:{f + 4 * tt + 3}], v[{acc}:{acc + 3}]")
                n += 1
                if n == BARPOS and nxt and (u + 1) % 2 == 0:
                    a("s_barrier")
                    if (u + 1) // 2 == 8:
                        stamp(a, 4)
                if n >= BARPOS and nxt and (n - BARPOS) % RSTEP == 0:
                    a(nxt.pop(0))
                if u == cw and n == 10:
                    emit_wtouch(a, "s32", 20, 21)
        for r in nxt:
            a(r)
    stamp(a, 5)
    a("s_lshl_b32 s35, s30, 7")
    a("s_lshl_b32 s36, s33, 6")
    a("s_add_u32 s35, s35, s36")
    a("s_lshl_b32 s35, s35, 10")
    a("s_lshl_b32 s36, s31, 8")
    a("s_add_u32 s35, s35, s36")
    a("s_lshl_b32 s36, s34, 7")
    a("s_add_u32 s35, s35, s36")
    a("s_lshl_b32 s36, s29, 1")
    a("s_add_u32 s36, s36, s27")
    a("s_lshl_b32 s36, s36, 21")
    a("s_add_u32 s35, s35, s36")
    a(f"s_add_u32 s35, s35, {WS_P}")
    a("v_lshlrev_b32 v6, 4, v6")
    a("v_lshl_add_u32 v6, v4, 10, v6")
    for tt in range(4):
        a(f"s_add_u32 s{40 + tt}, s35, {tt * 16384}")
    for tt in range(4):
        for Th in range(2):
            o = 24 + (tt * 2 + Th) * 4
            for Tl in range(2):
                acc = ACC + ((Th * 2 + Tl) * 4 + tt) * 4
                a(f"v_cvt_pk_bf16_f32 v{o + 2 * Tl}, v{acc}, v{acc + 1}")
                a(f"v_cvt_pk_bf16_f32 v{o + 2 * Tl + 1}, v{acc + 2}, v{acc + 3}")
            a(f"buffer_store_dwordx4 v[{o}:{o + 3}], v6, s[16:19], s{40 + tt} offen offset:{Th * 64}" + (" sc0 sc1" if wt else ""))
    if fuse3:
        a("s_waitcnt vmcnt(0)")
    a.label(f"{name}_fin")
    stamp_flush(a, 2, 6, 8, 9)
    nv = FB + 64
    if fuse3:
        a("s_and_b32 s3, s2, 7")
        a("s_and_b32 s29, s3, 1")
        a("s_bfe_u32 s27, s3, 0x10001")
        a("s_lshl_b32 s62, s29, 1")
        a("s_add_u32 s62, s62, s27")
        a("s_lshl_b32 s62, s62, 2")
        a("s_add_u32 s62, s62, s31")
        a("s_lshl_b32 s63, s30, 4")
        a("s_add_u32 s63, s63, s62")
        a("s_barrier")
        gen_kt(a, name + "t", fused=1)
        a.label(f"{name}_done")
        a("s_endpgm")
        return kernel_desc(name, nv, 72, nv)
    if fused_in:
        return None
    a.label(f"{name}_done")
    a("s_endpgm")
    return kernel_desc(name, nv, 72, nv)


def gen_k1c(a, name, wt=1, PRO=3, pf=1, pace=1, pfw=1, pfxd=1):
    NSTG, SLOT, NST = 4, 32768, 8
    STATS = NSTG * SLOT
    kernel_begin(a, name)
    a("s_cmp_ge_u32 s2, 256")
    a(f"s_cbranch_scc1 {name}_done")
    stamp(a, 0)
    a("s_load_dwordx2 s[4:5], s[0:1], 0")
    a("s_load_dwordx4 s[8:11], s[0:1], 24")
    a("s_load_dwordx2 s[6:7], s[0:1], 96")
    a("s_load_dwordx4 s[40:43], s[0:1], 8")
    a("s_load_dwordx4 s[44:47], s[0:1], 56")
    a("s_load_dwordx2 s[48:49], s[0:1], 72")
    a("s_and_b32 s3, s2, 7")
    a("s_lshr_b32 s28, s2, 4")
    a("s_and_b32 s29, s28, 1")
    a("s_lshl_b32 s30, s3, 1")
    a("s_add_u32 s30, s30, s29")
    a("s_lshr_b32 s31, s28, 1")
    a("v_lshrrev_b32 v1, 6, v0")
    a("v_and_b32 v2, 63, v0")
    a("s_nop 0")
    a("v_readfirstlane_b32 s32, v1")
    a("s_mov_b32 s53, 0xffff0000")
    a("s_bitcmp1_b32 s2, 3")
    a(f"s_cbranch_scc1 {name}_pf")
    a("s_cmp_lt_u32 s32, 4")
    a(f"s_cbranch_scc1 {name}_cons")
    a("s_cmp_ge_u32 s32, 8")
    a(f"s_cbranch_scc1 {name}_stat")
    a("s_sub_u32 s33, s32, 4")
    a("v_lshrrev_b32 v3, 3, v2")
    a("v_and_b32 v4, 7, v2")
    a("v_bfe_u32 v5, v2, 4, 1")
    a("v_xor_b32 v4, v4, v5")
    a("v_lshlrev_b32 v3, 10, v3")
    for i in range(4):
        g0g1 = (i & 1) ^ (i >> 1)
        a(f"v_xor_b32 v{8 + i}, {(2 * i) ^ g0g1}, v4")
        a(f"v_lshl_add_u32 v{8 + i}, v{8 + i}, 4, v3")
        if i:
            a(f"v_add_u32 v{8 + i}, {i * (8192 - 1024)}, v{8 + i}")
    a("s_lshl_b32 s34, s33, 5")
    a("s_lshl_b32 s35, s30, 7")
    a("s_add_u32 s35, s35, s34")
    a("s_lshl_b32 s35, s35, 10")
    a("s_and_b32 s36, s31, 3")
    a("s_lshl_b32 s36, s36, 7")
    a("s_add_u32 s36, s36, s34")
    a("s_lshl_b32 s36, s36, 10")
    a("s_lshl_b32 s37, s33, 12")
    a("v_lshlrev_b32 v12, 6, v2")
    a("v_add_u32 v12, s37, v12")
    a("v_add_u32 v12, 16384, v12")
    a(f"v_add_u32 v13, {2 * SLOT}, v12")
    a("v_mov_b32 v14, 0")
    a("v_mov_b32 v15, 0")
    a("s_mov_b32 s50, 0x3f803f80")
    a("s_waitcnt lgkmcnt(0)")
    stamp(a, 1)
    srd(a, 12, 4, 5, S * D * 2)
    a("s_cmp_ge_u32 s31, 4")
    a("s_cselect_b32 s8, s10, s8")
    a("s_cselect_b32 s9, s11, s9")
    srd(a, 16, 8, 9, D * D * 2)

    def load_stage(kk):
        slot = (kk % NSTG) * SLOT
        a(f"s_add_u32 m0, s37, {slot}")
        a(f"s_add_u32 s39, s35, {kk * 128}")
        for i in range(4):
            a(f"buffer_load_dwordx4 v{8 + i}, s[12:15], s39 offen offset:{i * 1024} lds")
        a(f"s_add_u32 m0, s37, {slot + 16384}")
        a(f"s_add_u32 s39, s36, {kk * 128}")
        for i in range(4):
            a(f"buffer_load_dwordx4 v{8 + i}, s[16:19], s39 offen offset:{i * 1024} lds")

    for kk in range(PRO):
        load_stage(kk)
    stamp(a, 2)
    issued = PRO
    for kk in range(NST):
        a(f"s_waitcnt vmcnt({(issued - 1 - kk) * 8})")
        slot = kk % NSTG
        ar, so = (12, slot * SLOT) if slot < 2 else (13, (slot - 2) * SLOT)
        for q in range(4):
            a(f"ds_read_b128 v[{16 + 4 * q}:{19 + 4 * q}], v{ar} offset:{so + 16 * q}")
        a("s_barrier")
        n_new = 0
        while issued < NST and issued - NSTG < kk and n_new < 2:
            load_stage(issued)
            issued += 1
            n_new += 1
        a("s_waitcnt lgkmcnt(0)")
        for r in range(16):
            a(f"v_dot2_f32_bf16 v{14 + (r & 1)}, v{16 + r}, s50, v{14 + (r & 1)}")
    a("s_nop 2")
    a("v_add_f32 v14, v14, v15")
    a("s_nop 1")
    a(f"v_add_f32_dpp v14, v14, v14 quad_perm:[1,0,3,2] {DPP}")
    a("v_lshrrev_b32 v19, 1, v2")
    a("v_lshlrev_b32 v19, 2, v19")
    a("s_lshl_b32 s34, s33, 7")
    a(f"s_add_u32 s34, s34, {STATS + 1024}")
    a("v_add_u32 v19, s34, v19")
    a("ds_write_b32 v19, v14")
    a("s_waitcnt lgkmcnt(0)")
    stamp(a, 3)
    a("s_barrier")
    a(f"s_branch {name}_fin")
    a.label(f"{name}_stat")
    a("s_sub_u32 s33, s32, 8")
    a("s_lshl_b32 s37, s33, 12")
    a("v_lshlrev_b32 v12, 6, v2")
    a("v_add_u32 v12, s37, v12")
    a(f"v_add_u32 v13, {2 * SLOT}, v12")
    for r in range(4):
        a(f"v_mov_b32 v{80 + r}, 0")
    a("s_waitcnt lgkmcnt(0)")
    stamp(a, 1)

    def stat_valu(base):
        for r in range(16):
            t = 72 + 2 * (r & 3)
            a(f"v_lshlrev_b32 v{t}, 16, v{base + r}")
            a(f"v_and_b32 v{t + 1}, s53, v{base + r}")
            a(f"v_sub_f32 v{t}, v{t}, v18")
            a(f"v_sub_f32 v{t + 1}, v{t + 1}, v18")
            a(f"v_add_f32 v80, v80, v{t}")
            a(f"v_add_f32 v81, v81, v{t + 1}")
            a(f"v_fmac_f32 v82, v{t}, v{t}")
            a(f"v_fmac_f32 v83, v{t + 1}, v{t + 1}")

    for kk in range(NST):
        a("s_barrier")
        slot = kk % NSTG
        ar, so = (12, slot * SLOT) if slot < 2 else (13, (slot - 2) * SLOT)
        base = 32 + 16 * (kk & 1)
        for q in range(4):
            a(f"ds_read_b128 v[{base + 4 * q}:{base + 3 + 4 * q}], v{ar} offset:{so + 16 * q}")
        if kk >= 1:
            stat_valu(32 + 16 * ((kk - 1) & 1))
        a("s_waitcnt lgkmcnt(0)")
        if kk == 0:
            a("v_lshlrev_b32 v18, 16, v32")
            a("s_nop 1")
            a(f"v_mov_b32_dpp v18, v18 quad_perm:[0,0,2,2] {DPP}")
    stat_valu(32 + 16 * ((NST - 1) & 1))
    a("v_add_f32 v14, v80, v81")
    a("v_add_f32 v16, v82, v83")
    a("s_nop 1")
    a(f"v_add_f32_dpp v14, v14, v14 quad_perm:[1,0,3,2] {DPP}")
    a(f"v_add_f32_dpp v16, v16, v16 quad_perm:[1,0,3,2] {DPP}")
    a("v_mul_f32 v14, 0x3b000000, v14")
    a("v_mul_f32 v16, 0x3b000000, v16")
    a("v_fma_f32 v16, -v14, v14, v16")
    a("v_max_f32 v16, 0, v16")
    a("v_add_f32 v14, v14, v18")
    a("v_cvt_pk_bf16_f32 v14, v14, v14")
    a("v_lshlrev_b32 v14, 16, v14")
    a("v_cvt_pk_bf16_f32 v16, v16, v16")
    a("v_lshlrev_b32 v16, 16, v16")
    a("v_add_f32 v16, 0x3727c5ac, v16")
    a("v_cvt_pk_bf16_f32 v16, v16, v16")
    a("v_lshlrev_b32 v16, 16, v16")
    a("v_sqrt_f32 v16, v16")
    a("s_nop 0")
    a("v_cvt_pk_bf16_f32 v16, v16, v16")
    a("v_lshlrev_b32 v16, 16, v16")
    a("v_rcp_f32 v16, v16")
    a("v_lshrrev_b32 v19, 1, v2")
    a("v_lshlrev_b32 v19, 2, v19")
    a("s_lshl_b32 s34, s33, 7")
    a(f"s_add_u32 s34, s34, {STATS}")
    a("v_add_u32 v19, s34, v19")
    a("ds_write_b32 v19, v14")
    a("ds_write_b32 v19, v16 offset:512")
    a("s_waitcnt lgkmcnt(0)")
    stamp(a, 3)
    a("s_barrier")
    a(f"s_branch {name}_fin")
    a.label(f"{name}_cons")
    a("s_and_b32 s33, s32, 1")
    a("s_lshr_b32 s34, s32, 1")
    a("v_and_b32 v4, 15, v2")
    a("v_lshrrev_b32 v6, 4, v2")
    a("v_lshrrev_b32 v5, 2, v4")
    a("v_and_b32 v7, 3, v4")
    a("v_lshl_add_u32 v7, v5, 3, v7")
    a("v_lshrrev_b32 v20, 1, v4")
    a("v_lshrrev_b32 v21, 2, v4")
    a("v_lshrrev_b32 v22, 3, v4")
    a("v_xor_b32 v21, v21, v22")
    a("v_and_b32 v21, 1, v21")
    a("v_xor_b32 v20, v20, v21")
    a("v_xor_b32 v20, v20, v6")
    a("v_lshlrev_b32 v20, 4, v20")
    a("v_lshl_add_u32 v20, v7, 7, v20")
    a("s_lshl_b32 s35, s33, 13")
    a("s_lshl_b32 s36, s34, 13")
    a("s_add_u32 s36, s36, 16384")
    for g2 in range(2):
        a(f"v_add_u32 v{8 + 4 * g2}, s35, v20")
        a(f"v_xor_b32 v{9 + 4 * g2}, 64, v{8 + 4 * g2}")
        a(f"v_add_u32 v{10 + 4 * g2}, s36, v20")
        a(f"v_xor_b32 v{11 + 4 * g2}, 64, v{10 + 4 * g2}")
        if g2:
            for r in range(4):
                a(f"v_add_u32 v{8 + 4 * g2 + r}, {65536 * g2}, v{8 + 4 * g2 + r}")
    ACC = 32
    FB = 96
    for i in range(64):
        a(f"v_mov_b32 v{ACC + i}, 0")
    a("s_waitcnt lgkmcnt(0)")
    stamp(a, 1)
    srd(a, 20, 6, 7, 4 << 20)
    NU = NST * 2

    def reads(u):
        s, ks = u // 2, u % 2
        slot = s % NSTG
        g2, so = slot // 2, (slot % 2) * SLOT
        f = FB + 32 * (u % 2)
        if ks == 0:
            a("s_waitcnt lgkmcnt(0)")
            a("s_barrier")
            if s == 0:
                stamp(a, 2)
        for i in range(4):
            off = so + (i >> 1) * 4096 + (i & 1) * 512
            a(f"ds_read_b128 v[{f + 4 * i}:{f + 3 + 4 * i}], v{8 + 4 * g2 + ks} offset:{off}")
            a(f"ds_read_b128 v[{f + 16 + 4 * i}:{f + 19 + 4 * i}], v{10 + 4 * g2 + ks} offset:{off}")

    reads(0)
    for u in range(NU):
        if u + 1 < NU:
            reads(u + 1)
            a("s_waitcnt lgkmcnt(8)")
        else:
            a("s_waitcnt lgkmcnt(0)")
        f = FB + 32 * (u % 2)
        for xi in range(4):
            for T in range(4):
                acc = ACC + (xi * 4 + T) * 4
                a(f"v_mfma_f32_16x16x32_bf16 v[{acc}:{acc + 3}], v[{f + 4 * xi}:{f + 3 + 4 * xi}], v[{f + 16 + 4 * T}:{f + 19 + 4 * T}], v[{acc}:{acc + 3}]")
    stamp(a, 3)
    a("s_barrier")
    stamp(a, 4)
    a("s_lshl_b32 s35, s33, 8")
    a(f"s_add_u32 s35, s35, {STATS}")
    a("v_lshlrev_b32 v20, 5, v6")
    a("v_add_u32 v20, s35, v20")
    for blk in range(2):
        for h in range(2):
            a(f"ds_read_b128 v[{96 + 16 * blk + 4 * h}:{99 + 16 * blk + 4 * h}], v20 offset:{128 * blk + 16 * h}")
            a(f"ds_read_b128 v[{104 + 16 * blk + 4 * h}:{107 + 16 * blk + 4 * h}], v20 offset:{512 + 128 * blk + 16 * h}")
    a("s_lshl_b32 s36, s34, 8")
    a(f"s_add_u32 s36, s36, {STATS + 1024}")
    a("v_lshlrev_b32 v21, 2, v7")
    a("v_add_u32 v21, s36, v21")
    for T in range(4):
        a(f"ds_read_b32 v{128 + T}, v21 offset:{(T >> 1) * 128 + (T & 1) * 16}")
    a("s_lshl_b32 s35, s31, 3")
    a("s_lshl_b32 s36, s34, 2")
    a("s_add_u32 s35, s35, s36")
    a("s_lshl_b32 s35, s35, 6")
    a("s_lshl_b32 s36, s30, 2")
    a("s_add_u32 s35, s35, s36")
    a("s_lshl_b32 s36, s33, 1")
    a("s_add_u32 s35, s35, s36")
    a("s_lshl_b32 s35, s35, 10")
    for T in range(4):
        a(f"s_add_u32 s{40 + T}, s35, {T * 65536}")
    a("v_lshlrev_b32 v22, 4, v2")
    a("s_waitcnt lgkmcnt(0)")
    for blk in range(2):
        for T in range(4):
            o = 132 + 4 * ((blk * 4 + T) & 3)
            for hb in range(2):
                acc = ACC + ((blk * 2 + hb) * 4 + T) * 4
                for j in range(4):
                    a(f"v_fma_f32 v{acc + j}, -v{96 + 16 * blk + 4 * hb + j}, v{128 + T}, v{acc + j}")
                    a(f"v_mul_f32 v{acc + j}, v{acc + j}, v{104 + 16 * blk + 4 * hb + j}")
                a(f"v_cvt_pk_bf16_f32 v{o + 2 * hb}, v{acc}, v{acc + 1}")
                a(f"v_cvt_pk_bf16_f32 v{o + 2 * hb + 1}, v{acc + 2}, v{acc + 3}")
            a(f"buffer_store_dwordx4 v[{o}:{o + 3}], v22, s[20:23], s{40 + T} offen offset:{blk * 1024}" + (" sc0 sc1" if wt else ""))
    stamp(a, 5)
    a(f"s_branch {name}_fin")
    a.label(f"{name}_pf")
    a("s_waitcnt lgkmcnt(0)")
    stamp(a, 1)
    if pf:
        a("v_lshlrev_b32 v3, 7, v2")
        a("v_lshrrev_b32 v4, 4, v2")
        a("v_lshlrev_b32 v4, 12, v4")
        a("v_and_b32 v5, 15, v2")
        a("v_lshl_add_u32 v4, v5, 7, v4")
        a("s_mul_i32 s33, s28, 12")
        a("s_add_u32 s33, s33, s32")
        nld = 0
        if pfxd:
            srd(a, 12, 4, 5, S * D * 2)
            srd(a, 16, 8, 9, D * D * 2)
            srd(a, 20, 10, 11, D * D * 2)
            a("s_lshl_b32 s34, s33, 13")
            a("s_lshl_b32 s35, s3, 18")
            a("s_add_u32 s35, s35, s34")
            a("s_cmp_lt_u32 s33, 32")
            a(f"s_cbranch_scc0 {name}_pf1")
            a("buffer_load_dword v10, v3, s[12:15], s35 offen")
            a(f"s_branch {name}_pf3")
            a.label(f"{name}_pf1")
            a("s_sub_u32 s34, s34, 262144")
            a("s_cmp_lt_u32 s33, 96")
            a(f"s_cbranch_scc0 {name}_pf2")
            a("buffer_load_dword v10, v3, s[16:19], s34 offen")
            a(f"s_branch {name}_pf3")
            a.label(f"{name}_pf2")
            a("s_sub_u32 s34, s34, 524288")
            a("buffer_load_dword v10, v3, s[20:23], s34 offen")
            a.label(f"{name}_pf3")
            if pace:
                a("s_waitcnt vmcnt(0)")
        a("s_and_b32 s48, s3, 1")
        a("s_cmp_eq_u32 s48, 1")
        a("s_cselect_b32 s40, s42, s40")
        a("s_cselect_b32 s41, s43, s41")
        srd(a, 24, 40, 41, S * S * 2)
        a("s_cmp_ge_u32 s33, 128")
        a(f"s_cbranch_scc1 {name}_fin")
        a("s_lshr_b32 s48, s3, 2")
        a("s_lshl_b32 s48, s48, 10")
        a("s_lshl_b32 s49, s33, 3")
        a("s_add_u32 s48, s48, s49")
        a("s_lshl_b32 s48, s48, 12")
        a("s_bfe_u32 s49, s3, 0x10001")
        a("s_lshl_b32 s49, s49, 11")
        a("s_add_u32 s48, s48, s49")
        a("buffer_load_dword v11, v4, s[24:27], s48 offen")
        if pace >= 2:
            a("s_waitcnt vmcnt(0)")
        a("s_add_u32 s48, s48, 16384")
        a("buffer_load_dword v12, v4, s[24:27], s48 offen")
    a.label(f"{name}_fin")
    stamp_flush(a, 1, 6, 6, 7)
    a.label(f"{name}_done")
    a("s_endpgm")
    return kernel_desc(name, 160, 64, 160)


WS_STATS = (12 << 20) + (1 << 19) + 8192
WS_FLAG1 = WS_STATS + 65536
WS_CS = WS_STATS + 16384


def gen_k1d(a, name, wt=1, PRO=3, pf=1, pace=1, pfq=4):
    NSTG, SLOT, NST = 4, 32768, 8
    STATS = NSTG * SLOT
    kernel_begin(a, name)
    a("s_cmp_ge_u32 s2, 256")
    a(f"s_cbranch_scc1 {name}_done")
    stamp(a, 0)
    a("s_load_dwordx2 s[4:5], s[0:1], 0")
    a("s_load_dwordx4 s[8:11], s[0:1], 24")
    a("s_load_dwordx4 s[44:47], s[0:1], 88")
    a("s_load_dwordx4 s[40:43], s[0:1], 8")
    a("s_and_b32 s3, s2, 7")
    a("s_lshr_b32 s28, s2, 4")
    a("s_and_b32 s29, s28, 1")
    a("s_lshl_b32 s30, s3, 1")
    a("s_add_u32 s30, s30, s29")
    a("s_lshr_b32 s31, s28, 1")
    a("v_lshrrev_b32 v1, 6, v0")
    a("v_and_b32 v2, 63, v0")
    a("s_nop 0")
    a("v_readfirstlane_b32 s32, v1")
    a("s_mov_b32 s53, 0xffff0000")
    a("s_bitcmp1_b32 s2, 3")
    a(f"s_cbranch_scc1 {name}_aux")
    a("s_cmp_lt_u32 s32, 4")
    a(f"s_cbranch_scc1 {name}_cons")
    a("s_sub_u32 s33, s32, 4")
    a("v_lshrrev_b32 v3, 3, v2")
    a("v_and_b32 v4, 7, v2")
    a("v_bfe_u32 v5, v2, 4, 1")
    a("v_xor_b32 v4, v4, v5")
    a("v_lshlrev_b32 v3, 10, v3")
    for i in range(4):
        g0g1 = (i & 1) ^ (i >> 1)
        a(f"v_xor_b32 v{8 + i}, {(2 * i) ^ g0g1}, v4")
        a(f"v_lshl_add_u32 v{8 + i}, v{8 + i}, 4, v3")
        if i:
            a(f"v_add_u32 v{8 + i}, {i * (8192 - 1024)}, v{8 + i}")
    a("s_lshl_b32 s34, s33, 5")
    a("s_lshl_b32 s35, s30, 7")
    a("s_add_u32 s35, s35, s34")
    a("s_lshl_b32 s38, s35, 3")
    a("s_lshl_b32 s35, s35, 10")
    a("s_and_b32 s36, s31, 3")
    a("s_lshl_b32 s36, s36, 7")
    a("s_add_u32 s36, s36, s34")
    a("s_lshl_b32 s36, s36, 10")
    a("s_lshl_b32 s37, s33, 12")
    a("v_lshlrev_b32 v12, 6, v2")
    a("v_add_u32 v12, s37, v12")
    a("v_add_u32 v12, 16384, v12")
    a(f"v_add_u32 v13, {2 * SLOT}, v12")
    a("v_mov_b32 v14, 0")
    a("v_mov_b32 v15, 0")
    a("s_mov_b32 s50, 0x3f803f80")
    a("s_waitcnt lgkmcnt(0)")
    stamp(a, 1)
    srd(a, 12, 4, 5, S * D * 2)
    a("s_cmp_ge_u32 s31, 4")
    a("s_cselect_b32 s8, s10, s8")
    a("s_cselect_b32 s9, s11, s9")
    srd(a, 16, 8, 9, D * D * 2)
    srd(a, 20, 46, 47, 14 << 20)
    srd(a, 24, 44, 45, 256)

    def load_stage(kk):
        slot = (kk % NSTG) * SLOT
        a(f"s_add_u32 m0, s37, {slot}")
        a(f"s_add_u32 s39, s35, {kk * 128}")
        for i in range(4):
            a(f"buffer_load_dwordx4 v{8 + i}, s[12:15], s39 offen offset:{i * 1024} lds")
        a(f"s_add_u32 m0, s37, {slot + 16384}")
        a(f"s_add_u32 s39, s36, {kk * 128}")
        for i in range(4):
            a(f"buffer_load_dwordx4 v{8 + i}, s[16:19], s39 offen offset:{i * 1024} lds")

    for kk in range(PRO):
        load_stage(kk)
    stamp(a, 2)
    issued = PRO
    for kk in range(NST):
        a(f"s_waitcnt vmcnt({(issued - 1 - kk) * 8})")
        slot = kk % NSTG
        ar, so = (12, slot * SLOT) if slot < 2 else (13, (slot - 2) * SLOT)
        for q in range(4):
            a(f"ds_read_b128 v[{16 + 4 * q}:{19 + 4 * q}], v{ar} offset:{so + 16 * q}")
        a("s_barrier")
        n_new = 0
        while issued < NST and issued - NSTG < kk and n_new < 2:
            load_stage(issued)
            issued += 1
            n_new += 1
        a("s_waitcnt lgkmcnt(0)")
        for r in range(16):
            a(f"v_dot2_f32_bf16 v{14 + (r & 1)}, v{16 + r}, s50, v{14 + (r & 1)}")
    a("s_lshl_b32 s34, s30, 2")
    a("v_mov_b32 v20, s34")
    a.label(f"{name}_poll")
    a("buffer_load_dword v21, v20, s[24:27], 0 offen sc0 sc1")
    a("s_waitcnt vmcnt(0)")
    a("v_readfirstlane_b32 s34, v21")
    a("s_cmp_ge_u32 s34, 8")
    a(f"s_cbranch_scc1 {name}_polled")
    a("s_sleep 2")
    a(f"s_branch {name}_poll")
    a.label(f"{name}_polled")
    a("v_and_b32 v20, 31, v2")
    a("v_lshlrev_b32 v20, 3, v20")
    a(f"s_add_u32 s38, s38, {WS_STATS}")
    a("buffer_load_dwordx2 v[22:23], v20, s[20:23], s38 offen sc0 sc1")
    a("v_add_f32 v14, v14, v15")
    a("s_nop 1")
    a(f"v_add_f32_dpp v14, v14, v14 quad_perm:[1,0,3,2] {DPP}")
    a("v_lshrrev_b32 v19, 1, v2")
    a("v_lshlrev_b32 v19, 2, v19")
    a("s_lshl_b32 s34, s33, 7")
    a(f"s_add_u32 s34, s34, {STATS + 1024}")
    a("v_add_u32 v19, s34, v19")
    a("ds_write_b32 v19, v14")
    a("v_lshrrev_b32 v20, 1, v20")
    a("s_lshl_b32 s34, s33, 7")
    a(f"s_add_u32 s34, s34, {STATS}")
    a("v_add_u32 v20, s34, v20")
    a("s_waitcnt vmcnt(0)")
    a("ds_write_b32 v20, v22")
    a("ds_write_b32 v20, v23 offset:512")
    a("s_waitcnt lgkmcnt(0)")
    stamp(a, 3)
    a("s_barrier")
    a(f"s_branch {name}_fin")
    a.label(f"{name}_cons")
    a("s_and_b32 s33, s32, 1")
    a("s_lshr_b32 s34, s32, 1")
    a("v_and_b32 v4, 15, v2")
    a("v_lshrrev_b32 v6, 4, v2")
    a("v_lshrrev_b32 v5, 2, v4")
    a("v_and_b32 v7, 3, v4")
    a("v_lshl_add_u32 v7, v5, 3, v7")
    a("v_lshrrev_b32 v20, 1, v4")
    a("v_lshrrev_b32 v21, 2, v4")
    a("v_lshrrev_b32 v22, 3, v4")
    a("v_xor_b32 v21, v21, v22")
    a("v_and_b32 v21, 1, v21")
    a("v_xor_b32 v20, v20, v21")
    a("v_xor_b32 v20, v20, v6")
    a("v_lshlrev_b32 v20, 4, v20")
    a("v_lshl_add_u32 v20, v7, 7, v20")
    a("s_lshl_b32 s35, s33, 13")
    a("s_lshl_b32 s36, s34, 13")
    a("s_add_u32 s36, s36, 16384")
    for g2 in range(2):
        a(f"v_add_u32 v{8 + 4 * g2}, s35, v20")
        a(f"v_xor_b32 v{9 + 4 * g2}, 64, v{8 + 4 * g2}")
        a(f"v_add_u32 v{10 + 4 * g2}, s36, v20")
        a(f"v_xor_b32 v{11 + 4 * g2}, 64, v{10 + 4 * g2}")
        if g2:
            for r in range(4):
                a(f"v_add_u32 v{8 + 4 * g2 + r}, {65536 * g2}, v{8 + 4 * g2 + r}")
    ACC = 32
    FB = 96
    for i in range(64):
        a(f"v_mov_b32 v{ACC + i}, 0")
    a("s_waitcnt lgkmcnt(0)")
    stamp(a, 1)
    srd(a, 20, 46, 47, 4 << 20)
    NU = NST * 2

    def read_list(u):
        s, ks = u // 2, u % 2
        slot = s % NSTG
        g2, so = slot // 2, (slot % 2) * SLOT
        f = FB + 32 * (u % 2)
        L = []
        for i in range(4):
            off = so + (i >> 1) * 4096 + (i & 1) * 512
            L.append(f"ds_read_b128 v[{f + 4 * i}:{f + 3 + 4 * i}], v{8 + 4 * g2 + ks} offset:{off}")
            L.append(f"ds_read_b128 v[{f + 16 + 4 * i}:{f + 19 + 4 * i}], v{10 + 4 * g2 + ks} offset:{off}")
        return L

    a("s_barrier")
    stamp(a, 2)
    for r in read_list(0):
        a(r)
    for u in range(NU):
        a("s_waitcnt lgkmcnt(0)")
        f = FB + 32 * (u % 2)
        nxt = read_list(u + 1) if u + 1 < NU else []
        n = 0
        for xi in range(4):
            for T in range(4):
                acc = ACC + (xi * 4 + T) * 4
                a(f"v_mfma_f32_16x16x32_bf16 v[{acc}:{acc + 3}], v[{f + 4 * xi}:{f + 3 + 4 * xi}], v[{f + 16 + 4 * T}:{f + 19 + 4 * T}], v[{acc}:{acc + 3}]")
                n += 1
                if n == 1 and nxt and (u + 1) % 2 == 0:
                    a("s_barrier")
                if nxt:
                    a(nxt.pop(0))
    stamp(a, 3)
    a("s_barrier")
    stamp(a, 4)
    a("s_lshl_b32 s35, s33, 8")
    a(f"s_add_u32 s35, s35, {STATS}")
    a("v_lshlrev_b32 v20, 5, v6")
    a("v_add_u32 v20, s35, v20")
    for blk in range(2):
        for h in range(2):
            a(f"ds_read_b128 v[{96 + 16 * blk + 4 * h}:{99 + 16 * blk + 4 * h}], v20 offset:{128 * blk + 16 * h}")
            a(f"ds_read_b128 v[{104 + 16 * blk + 4 * h}:{107 + 16 * blk + 4 * h}], v20 offset:{512 + 128 * blk + 16 * h}")
    a("s_lshl_b32 s36, s34, 8")
    a(f"s_add_u32 s36, s36, {STATS + 1024}")
    a("v_lshlrev_b32 v21, 2, v7")
    a("v_add_u32 v21, s36, v21")
    for T in range(4):
        a(f"ds_read_b32 v{128 + T}, v21 offset:{(T >> 1) * 128 + (T & 1) * 16}")
    a("s_lshl_b32 s35, s31, 3")
    a("s_lshl_b32 s36, s34, 2")
    a("s_add_u32 s35, s35, s36")
    a("s_lshl_b32 s35, s35, 6")
    a("s_lshl_b32 s36, s30, 2")
    a("s_add_u32 s35, s35, s36")
    a("s_lshl_b32 s36, s33, 1")
    a("s_add_u32 s35, s35, s36")
    a("s_lshl_b32 s35, s35, 10")
    for T in range(4):
        a(f"s_add_u32 s{40 + T}, s35, {T * 65536}")
    a("v_lshlrev_b32 v22, 4, v2")
    a("s_waitcnt lgkmcnt(0)")
    for blk in range(2):
        for T in range(4):
            o = 132 + 4 * ((blk * 4 + T) & 3)
            for hb in range(2):
                acc = ACC + ((blk * 2 + hb) * 4 + T) * 4
                for j in range(4):
                    a(f"v_fma_f32 v{acc + j}, -v{96 + 16 * blk + 4 * hb + j}, v{128 + T}, v{acc + j}")
                    a(f"v_mul_f32 v{acc + j}, v{acc + j}, v{104 + 16 * blk + 4 * hb + j}")
                a(f"v_cvt_pk_bf16_f32 v{o + 2 * hb}, v{acc}, v{acc + 1}")
                a(f"v_cvt_pk_bf16_f32 v{o + 2 * hb + 1}, v{acc + 2}, v{acc + 3}")
            a(f"buffer_store_dwordx4 v[{o}:{o + 3}], v22, s[20:23], s{40 + T} offen offset:{blk * 1024}" + (" sc0 sc1" if wt else ""))
    stamp(a, 5)
    a(f"s_branch {name}_fin")
    a.label(f"{name}_aux")
    a("v_mov_b32 v3, 0")
    a("ds_write_b32 v3, v3")
    a("s_waitcnt lgkmcnt(0)")
    a("s_barrier")
    stamp(a, 1)
    a("s_cmp_ge_u32 s32, 4")
    a(f"s_cbranch_scc1 {name}_pfw")
    a("s_lshl_b32 s33, s3, 8")
    a("s_lshl_b32 s34, s28, 4")
    a("s_add_u32 s33, s33, s34")
    a("s_lshl_b32 s34, s32, 2")
    a("s_add_u32 s33, s33, s34")
    a("v_lshrrev_b32 v3, 4, v2")
    a("v_and_b32 v4, 15, v2")
    a("v_lshlrev_b32 v5, 10, v3")
    a("v_lshl_add_u32 v5, v4, 4, v5")
    a("s_lshl_b32 s34, s33, 10")
    srd(a, 12, 4, 5, S * D * 2)
    for jj in range(4):
        a(f"buffer_load_dwordx4 v[{16 + 4 * jj}:{19 + 4 * jj}], v5, s[12:15], s34 offen offset:{256 * jj}")
    srd(a, 20, 46, 47, 14 << 20)
    srd(a, 28, 44, 45, 256)
    a("s_waitcnt vmcnt(0)")
    stamp(a, 2)
    X = 32
    for r in range(16):
        a(f"v_lshlrev_b32 v{X + 2 * r}, 16, v{16 + r}")
        a(f"v_and_b32 v{X + 2 * r + 1}, s53, v{16 + r}")
    a(f"v_add_f32 v8, v{X}, v{X + 1}")
    a(f"v_add_f32 v9, v{X + 2}, v{X + 3}")
    for r in range(4, 32, 2):
        a(f"v_add_f32 v8, v8, v{X + r}")
        a(f"v_add_f32 v9, v9, v{X + r + 1}")
    a("v_add_f32 v8, v8, v9")

    def red16(v):
        for pat in ("quad_perm:[1,0,3,2]", "quad_perm:[2,3,0,1]", "row_half_mirror", "row_mirror"):
            a("s_nop 1")
            a(f"v_add_f32_dpp v{v}, v{v}, v{v} {pat} {DPP}")

    red16(8)
    a("v_mul_f32 v8, 0x3b000000, v8")
    a("v_mov_b32 v10, 0")
    a("v_mov_b32 v11, 0")
    for r in range(0, 32, 2):
        a(f"v_sub_f32 v{X + r}, v{X + r}, v8")
        a(f"v_sub_f32 v{X + r + 1}, v{X + r + 1}, v8")
        a(f"v_fmac_f32 v10, v{X + r}, v{X + r}")
        a(f"v_fmac_f32 v11, v{X + r + 1}, v{X + r + 1}")
    a("v_add_f32 v10, v10, v11")
    red16(10)
    a("v_mul_f32 v10, 0x3b000000, v10")
    a("v_cvt_pk_bf16_f32 v12, v8, v8")
    a("v_lshlrev_b32 v12, 16, v12")
    a("v_cvt_pk_bf16_f32 v10, v10, v10")
    a("v_lshlrev_b32 v10, 16, v10")
    a("v_add_f32 v10, 0x3727c5ac, v10")
    a("v_cvt_pk_bf16_f32 v10, v10, v10")
    a("v_lshlrev_b32 v10, 16, v10")
    a("v_sqrt_f32 v10, v10")
    a("s_nop 0")
    a("v_cvt_pk_bf16_f32 v10, v10, v10")
    a("v_lshlrev_b32 v10, 16, v10")
    a("v_rcp_f32 v13, v10")
    a("v_lshlrev_b32 v14, 3, v3")
    a("s_lshl_b32 s36, s33, 3")
    a(f"s_add_u32 s36, s36, {WS_STATS}")
    a("v_cmp_eq_u32 vcc, 0, v4")
    a("s_and_saveexec_b64 s[54:55], vcc")
    a("buffer_store_dwordx2 v[12:13], v14, s[20:23], s36 offen sc0 sc1")
    a("s_mov_b64 exec, s[54:55]")
    a("s_waitcnt vmcnt(0)")
    stamp(a, 3)
    a("v_mov_b32 v14, 0")
    a("v_mov_b32 v15, 1")
    a("v_cmp_eq_u32 vcc, 0, v2")
    a("s_and_saveexec_b64 s[54:55], vcc")
    a("ds_add_rtn_u32 v6, v14, v15")
    a("s_waitcnt lgkmcnt(0)")
    a("v_readfirstlane_b32 s36, v6")
    a("s_cmp_lg_u32 s36, 3")
    a(f"s_cbranch_scc1 {name}_nosig")
    a("s_lshr_b32 s36, s33, 7")
    a("s_lshl_b32 s36, s36, 2")
    a("v_mov_b32 v14, s36")
    a("buffer_atomic_add v15, v14, s[28:31], 0 offen")
    a.label(f"{name}_nosig")
    a("s_mov_b64 exec, s[54:55]")
    a(f"s_branch {name}_fin")
    a.label(f"{name}_pfw")
    a("v_lshlrev_b32 v6, 7, v2")
    a("v_lshrrev_b32 v7, 4, v2")
    a("v_lshlrev_b32 v7, 12, v7")
    a("v_and_b32 v8, 15, v2")
    a("v_lshl_add_u32 v7, v8, 7, v7")
    a("s_lshl_b32 s35, s28, 2")
    a("s_add_u32 s35, s35, s32")
    a("s_sub_u32 s35, s35, 4")
    srd(a, 16, 8, 9, D * D * 2)
    srd(a, 20, 10, 11, D * D * 2)
    a("s_lshl_b32 s36, s35, 13")
    a("buffer_load_dword v10, v6, s[16:19], s36 offen")
    a("buffer_load_dword v11, v6, s[20:23], s36 offen")
    a("s_and_b32 s48, s3, 1")
    a("s_cmp_eq_u32 s48, 1")
    a("s_cselect_b32 s40, s42, s40")
    a("s_cselect_b32 s41, s43, s41")
    srd(a, 24, 40, 41, S * S * 2)
    a("s_lshr_b32 s48, s3, 2")
    a("s_lshl_b32 s48, s48, 10")
    a("s_lshl_b32 s49, s35, 4")
    a("s_add_u32 s48, s48, s49")
    a("s_lshl_b32 s48, s48, 12")
    a("s_bfe_u32 s49, s3, 0x10001")
    a("s_lshl_b32 s49, s49, 11")
    a("s_add_u32 s48, s48, s49")
    if pace:
        a("s_waitcnt vmcnt(0)")
    stamp(a, 2)
    if pf:
        if pfq < 4:
            a(f"v_cmp_gt_u32 vcc, {4 * pfq}, v8")
            a("s_and_saveexec_b64 s[54:55], vcc")
        for ii in range(4):
            a(f"s_add_u32 s49, s48, {ii * 16384}")
            a(f"buffer_load_dword v{12 + ii}, v7, s[24:27], s49 offen")
        if pfq < 4:
            a("s_mov_b64 exec, s[54:55]")
    a.label(f"{name}_fin")
    stamp_flush(a, 1, 6, 46, 47)
    a.label(f"{name}_done")
    a("s_endpgm")
    return kernel_desc(name, 160, 64, 160)


def gen_k1e(a, name, wt=1, PRO=4, pf=1, pace=1, U1=10, U2=12, pfq=4, pol=0, ppol=0, tlb=0, UC=13, vst=0, swap=1, wk1=0, early=0, fuse2=None):
    POL = {0: '', 1: ' sc1', 2: ' nt', 3: ' sc0'}[pol]
    PPOL = {0: '', 1: ' sc1', 2: ' nt', 3: ' sc0'}[ppol]
    NSTG, SLOT, NST = 5, 32768, 8
    CS = 3 * SLOT
    kernel_begin(a, name)
    a("s_cmp_ge_u32 s2, 256")
    a(f"s_cbranch_scc1 {name}_done")
    stamp(a, 0)
    a("s_load_dwordx2 s[4:5], s[0:1], 0")
    a("s_load_dwordx4 s[8:11], s[0:1], 24")
    a("s_load_dwordx4 s[44:47], s[0:1], 88")
    a("s_load_dwordx4 s[40:43], s[0:1], 8")
    a("s_and_b32 s3, s2, 7")
    a("s_lshr_b32 s28, s2, 4")
    a("s_and_b32 s29, s3, 1")
    a("s_bfe_u32 s27, s3, 0x10001")
    a("s_lshr_b32 s26, s3, 2")
    a("s_lshl_b32 s30, s27, 3")
    a("s_lshl_b32 s34, s26, 2")
    a("s_add_u32 s30, s30, s34")
    a("s_and_b32 s34, s28, 3")
    a("s_add_u32 s30, s30, s34")
    a("s_lshr_b32 s31, s28, 2")
    a("v_lshrrev_b32 v1, 6, v0")
    a("v_and_b32 v2, 63, v0")
    a("s_nop 0")
    a("v_readfirstlane_b32 s32, v1")
    a("s_mov_b32 s53, 0xffff0000")
    a("s_mov_b32 s69, 0x40000")
    a("s_bitcmp1_b32 s2, 3")
    a(f"s_cbranch_scc1 {name}_aux")
    if swap:
        a("s_xor_b32 s32, s32, 4")
    a("s_cmp_lt_u32 s32, 4")
    a(f"s_cbranch_scc1 {name}_cons")
    a("s_sub_u32 s33, s32, 4")
    a("v_lshrrev_b32 v3, 3, v2")
    a("v_and_b32 v4, 7, v2")
    a("v_bfe_u32 v5, v2, 4, 1")
    a("v_xor_b32 v4, v4, v5")
    a("v_lshlrev_b32 v3, 10, v3")
    for i in range(4):
        g0g1 = (i & 1) ^ (i >> 1)
        a(f"v_xor_b32 v{8 + i}, {(2 * i) ^ g0g1}, v4")
        a(f"v_lshl_add_u32 v{8 + i}, v{8 + i}, 4, v3")
        if i:
            a(f"v_add_u32 v{8 + i}, {i * (8192 - 1024)}, v{8 + i}")
    a("s_lshl_b32 s34, s33, 5")
    a("s_lshl_b32 s35, s30, 7")
    a("s_add_u32 s35, s35, s34")
    a("s_lshl_b32 s35, s35, 10")
    a("s_lshl_b32 s36, s31, 7")
    a("s_add_u32 s36, s36, s34")
    a("s_lshl_b32 s36, s36, 10")
    a("s_lshl_b32 s37, s33, 12")
    a("v_lshlrev_b32 v12, 6, v2")
    a("v_add_u32 v12, s37, v12")
    a("v_add_u32 v12, 16384, v12")
    a(f"v_add_u32 v13, {2 * SLOT}, v12")
    a(f"v_add_u32 v6, {4 * SLOT}, v12")
    a("v_mov_b32 v14, 0")
    a("v_mov_b32 v15, 0")
    a("s_mov_b32 s50, 0x3f803f80")
    a("s_waitcnt lgkmcnt(0)")
    stamp(a, 1)
    srd(a, 12, 4, 5, S * D * 2)
    a("s_cmp_eq_u32 s29, 1")
    a("s_cselect_b32 s8, s10, s8")
    a("s_cselect_b32 s9, s11, s9")
    srd(a, 16, 8, 9, D * D * 2)

    def load_stage(kk):
        slot = (kk % NSTG) * SLOT
        a(f"s_add_u32 m0, s37, {slot}")
        a(f"s_add_u32 s39, s35, {kk * 128}")
        for i in range(4):
            a(f"buffer_load_dwordx4 v{8 + i}, s[12:15], s39 offen offset:{i * 1024}{POL} lds")
        a(f"s_add_u32 m0, s37, {slot + 16384}")
        a(f"s_add_u32 s39, s36, {kk * 128}")
        for i in range(4):
            a(f"buffer_load_dwordx4 v{8 + i}, s[16:19], s39 offen offset:{i * 1024}{POL} lds")

    if vst:
        VB = 32

        def vload_stage(kk):
            r = VB + (kk - NSTG) * 32
            a(f"s_add_u32 s39, s35, {kk * 128}")
            for i in range(4):
                a(f"buffer_load_dwordx4 v[{r + 4 * i}:{r + 4 * i + 3}], v{8 + i}, s[12:15], s39 offen offset:{i * 1024}")
            a(f"s_add_u32 s39, s36, {kk * 128}")
            for i in range(4):
                a(f"buffer_load_dwordx4 v[{r + 16 + 4 * i}:{r + 19 + 4 * i}], v{8 + i}, s[16:19], s39 offen offset:{i * 1024}")

        def vwrite_stage(kk):
            r = VB + (kk - NSTG) * 32
            slot = (kk % NSTG) * SLOT
            ar = 16 if slot < 65536 - 32768 + 1 else 17
            so = slot if ar == 16 else slot - 65536
            for i in range(4):
                a(f"ds_write_b128 v{ar}, v[{r + 4 * i}:{r + 4 * i + 3}] offset:{so + i * 1024}")
                a(f"ds_write_b128 v{ar}, v[{r + 16 + 4 * i}:{r + 19 + 4 * i}] offset:{so + 16384 + i * 1024}")

        a("v_lshlrev_b32 v16, 4, v2")
        a("v_add_u32 v16, s37, v16")
        a("v_add_u32 v17, 65536, v16")
        for kk in range(PRO):
            load_stage(kk)
        stamp(a, 2)
        issued = PRO
        for kk in range(NST):
            if kk < NSTG:
                a(f"s_waitcnt vmcnt({(issued - 1 - kk) * 8})")
            else:
                a("s_waitcnt lgkmcnt(0)")
            a("s_barrier")
            n_new = 0
            while issued < NST and n_new < 2:
                (load_stage if issued < NSTG else vload_stage)(issued)
                issued += 1
                n_new += 1
            if NSTG <= kk + 1 < NST:
                a(f"s_waitcnt vmcnt({(issued - 1 - (kk + 1)) * 8})")
                vwrite_stage(kk + 1)
    else:
        for kk in range(PRO):
            load_stage(kk)
        stamp(a, 2)
        issued = PRO
        for kk in range(NST):
            a(f"s_waitcnt vmcnt({(issued - 1 - kk) * 8})")
            a("s_barrier")
            n_new = 0
            while issued < NST and issued - NSTG < kk and n_new < 2:
                load_stage(issued)
                issued += 1
                n_new += 1
    stamp(a, 3)
    if fuse2:
        a("s_barrier")
    a(f"s_branch {name}_fin")
    a.label(f"{name}_cons")
    a("s_and_b32 s33, s32, 1")
    a("s_lshr_b32 s34, s32, 1")
    a("v_and_b32 v4, 15, v2")
    a("v_lshrrev_b32 v6, 4, v2")
    a("v_lshrrev_b32 v5, 2, v4")
    a("v_and_b32 v7, 3, v4")
    a("v_lshl_add_u32 v7, v5, 3, v7")
    a("v_lshrrev_b32 v20, 1, v4")
    a("v_lshrrev_b32 v21, 2, v4")
    a("v_lshrrev_b32 v22, 3, v4")
    a("v_xor_b32 v21, v21, v22")
    a("v_and_b32 v21, 1, v21")
    a("v_xor_b32 v20, v20, v21")
    a("v_xor_b32 v20, v20, v6")
    a("v_lshlrev_b32 v20, 4, v20")
    a("v_lshl_add_u32 v20, v7, 7, v20")
    a("s_lshl_b32 s35, s33, 13")
    a("s_lshl_b32 s36, s34, 13")
    a("s_add_u32 s36, s36, 16384")
    for g2 in range(3):
        a(f"v_add_u32 v{8 + 4 * g2}, s35, v20")
        a(f"v_xor_b32 v{9 + 4 * g2}, 64, v{8 + 4 * g2}")
        a(f"v_add_u32 v{10 + 4 * g2}, s36, v20")
        a(f"v_xor_b32 v{11 + 4 * g2}, 64, v{10 + 4 * g2}")
        if g2:
            for r in range(4):
                a(f"v_add_u32 v{8 + 4 * g2 + r}, {65536 * g2}, v{8 + 4 * g2 + r}")
    ACC = 32
    FB = 96
    ST = 160
    for i in range(64):
        a(f"v_mov_b32 v{ACC + i}, 0")
    a("s_lshl_b32 s38, s30, 7")
    a("s_lshl_b32 s39, s33, 6")
    a("s_add_u32 s38, s38, s39")
    a("s_lshl_b32 s38, s38, 3")
    a(f"s_add_u32 s38, s38, {WS_STATS}")
    a("v_lshlrev_b32 v23, 6, v6")
    a("v_mov_b32 v24, 0")
    a("s_lshl_b32 s39, s29, 9")
    a("s_lshl_b32 s61, s31, 7")
    a("s_add_u32 s39, s39, s61")
    a("s_lshl_b32 s61, s34, 6")
    a("s_add_u32 s39, s39, s61")
    a("s_lshl_b32 s39, s39, 3")
    a(f"s_add_u32 s61, s39, {WS_CS}")
    a("v_lshlrev_b32 v21, 3, v7")
    a("s_waitcnt lgkmcnt(0)")
    stamp(a, 1)
    srd(a, 20, 46, 47, 14 << 20)
    srd(a, 24, 44, 45, 256)
    NU = NST * 2

    def read_list(u):
        s, ks = u // 2, u % 2
        slot = s % NSTG
        g2, so = slot // 2, (slot % 2) * SLOT
        f = FB + 32 * (u % 2)
        L = []
        for i in range(4):
            off = so + (i >> 1) * 4096 + (i & 1) * 512
            L.append(f"ds_read_b128 v[{f + 4 * i}:{f + 3 + 4 * i}], v{8 + 4 * g2 + ks} offset:{off}")
            L.append(f"ds_read_b128 v[{f + 16 + 4 * i}:{f + 19 + 4 * i}], v{10 + 4 * g2 + ks} offset:{off}")
        return L

    def stats_loads():
        for blk in range(2):
            for q4 in range(4):
                r = ST + 16 * blk + 4 * q4
                a(f"buffer_load_dwordx4 v[{r}:{r + 3}], v23, s[20:23], s38 offen offset:{256 * blk + 16 * q4} sc1")
        for T in range(4):
            a(f"buffer_load_dwordx2 v[{192 + 2 * T}:{193 + 2 * T}], v21, s[20:23], s61 offen offset:{(T >> 1) * 256 + (T & 1) * 32} sc1")
        a("buffer_load_dword v25, v24, s[24:27], 0 offen sc1")

    a("s_lshl_b32 s35, s29, 5")
    a("s_lshl_b32 s36, s31, 3")
    a("s_add_u32 s35, s35, s36")
    a("s_lshl_b32 s36, s34, 2")
    a("s_add_u32 s35, s35, s36")
    a("s_lshl_b32 s35, s35, 6")
    a("s_lshl_b32 s36, s30, 2")
    a("s_add_u32 s35, s35, s36")
    a("s_lshl_b32 s36, s33, 1")
    a("s_add_u32 s35, s35, s36")
    a("s_lshl_b32 s35, s35, 10")
    for T in range(4):
        a(f"s_add_u32 s{40 + T}, s35, {T * 65536}")

    def check_ops():
        L = [f"v_xor_b32 v26, v25, v{ST + 1}"]
        for r in range(1, 16):
            L.append(f"v_xor_b32 v27, v25, v{ST + 2 * r + 1}")
            L.append("v_or_b32 v26, v26, v27")
        for T in range(4):
            L.append(f"v_xor_b32 v27, v25, v{193 + 2 * T}")
            L.append("v_or_b32 v26, v26, v27")
        for r in range(16):
            L.append(f"v_lshlrev_b32 v{ST + 2 * r + 1}, 16, v{ST + 2 * r}")
            L.append(f"v_rcp_f32 v{ST + 2 * r + 1}, v{ST + 2 * r + 1}")
            L.append(f"v_and_b32 v{ST + 2 * r}, s53, v{ST + 2 * r}")
        return L

    a("s_barrier")
    stamp(a, 2)
    for r in read_list(0):
        a(r)
    shadow = []
    for u in range(NU):
        a("s_waitcnt lgkmcnt(0)")
        f = FB + 32 * (u % 2)
        nxt = read_list(u + 1) if u + 1 < NU else []
        n = 0
        if u == UC:
            a("s_waitcnt vmcnt(0)")
            shadow = check_ops()
        for xi in range(4):
            for T in range(4):
                acc = ACC + (xi * 4 + T) * 4
                a(f"v_mfma_f32_16x16x32_bf16 v[{acc}:{acc + 3}], v[{f + 4 * xi}:{f + 3 + 4 * xi}], v[{f + 16 + 4 * T}:{f + 19 + 4 * T}], v[{acc}:{acc + 3}]")
                n += 1
                if n == 1 and nxt and (u + 1) % 2 == 0:
                    a("s_barrier")
                if nxt:
                    a(nxt.pop(0))
                for _ in range(2):
                    if shadow:
                        a(shadow.pop(0))
                if u == U1 and n == 10:
                    stats_loads()
    for op in shadow:
        a(op)
    stamp(a, 3)
    a.label(f"{name}_chk")
    a("v_cmp_eq_u32 vcc, 0, v25")
    a("v_cmp_ne_u32 s[62:63], 0, v26")
    a("s_or_b64 s[62:63], s[62:63], vcc")
    a(f"s_cbranch_scc0 {name}_have")
    a("s_sleep 4")
    stats_loads()
    a("s_waitcnt vmcnt(0)")
    for op in check_ops():
        a(op)
    a("s_sub_u32 s69, s69, 1")
    a(f"s_cbranch_scc0 {name}_chk")
    a("s_mov_b32 s69, 0")
    a.label(f"{name}_have")
    stamp(a, 4)
    a("v_lshlrev_b32 v22, 4, v2")
    a("s_nop 4")
    for blk in range(2):
        for T in range(4):
            o = 132 + 4 * ((blk * 4 + T) & 3)
            for hb in range(2):
                acc = ACC + ((blk * 2 + hb) * 4 + T) * 4
                for j in range(4):
                    sr = ST + 16 * blk + 2 * (4 * hb + j)
                    a(f"v_fma_f32 v{acc + j}, -v{sr}, v{192 + 2 * T}, v{acc + j}")
                    a(f"v_mul_f32 v{acc + j}, v{acc + j}, v{sr + 1}")
                a(f"v_cvt_pk_bf16_f32 v{o + 2 * hb}, v{acc}, v{acc + 1}")
                a(f"v_cvt_pk_bf16_f32 v{o + 2 * hb + 1}, v{acc + 2}, v{acc + 3}")
            a(f"buffer_store_dwordx4 v[{o}:{o + 3}], v22, s[20:23], s{40 + T} offen offset:{blk * 1024}" + (" sc0 sc1" if wt else ""))
    stamp(a, 5)
    if fuse2:
        a("s_bfe_u32 s36, s3, 0x10001")
        a("s_lshl_b32 s35, s29, 1")
        a("s_add_u32 s35, s35, s36")
        a("s_lshl_b32 s35, s35, 2")
        a("s_add_u32 s35, s35, s31")
        a("s_lshl_b32 s35, s35, 3")
        a("s_and_b32 s36, s30, 7")
        a("s_add_u32 s35, s35, s36")
        a("s_lshl_b32 s35, s35, 7")
        a("s_lshl_b32 s36, s32, 2")
        a("s_add_u32 s35, s35, s36")
        a(f"s_add_u32 s35, s35, {WS_FLAG1}")
        a("s_waitcnt vmcnt(0)")
        a("buffer_store_dword v25, v24, s[20:23], s35 offen sc0 sc1")
        a("s_barrier")
    a(f"s_branch {name}_fin")
    a.label(f"{name}_aux")
    a("s_mov_b32 s50, s28")
    a("s_mov_b32 s51, s29")
    a("s_memrealtime s[66:67]")
    a("v_lshlrev_b32 v6, 7, v2")
    a("v_lshrrev_b32 v3, 4, v2")
    a("v_and_b32 v4, 15, v2")
    a("v_lshlrev_b32 v7, 12, v3")
    a("v_lshl_add_u32 v7, v4, 7, v7")
    a("v_lshlrev_b32 v5, 10, v3")
    a("v_lshl_add_u32 v5, v4, 4, v5")
    a("s_lshl_b32 s35, s50, 3")
    a("s_add_u32 s56, s35, s3")
    a("s_add_u32 s35, s35, s32")
    a("s_lshl_b32 s48, s26, 10")
    a("s_lshl_b32 s49, s35, 3")
    a("s_add_u32 s48, s48, s49")
    a("s_lshl_b32 s48, s48, 12")
    a("s_lshl_b32 s49, s27, 11")
    a("s_add_u32 s48, s48, s49")
    a("s_add_u32 s49, s48, 16384")
    a("s_waitcnt lgkmcnt(0)")
    stamp(a, 1)
    srd(a, 28, 44, 45, 256)
    srd(a, 20, 46, 47, 14 << 20)
    a("s_xor_b32 s62, s2, 8")
    a("s_or_b32 s62, s62, s32")
    a("s_cmp_lg_u32 s62, 0")
    a(f"s_cbranch_scc1 {name}_nopub")
    a("s_or_b32 s62, s66, 1")
    a("v_mov_b32 v25, s62")
    a("v_mov_b32 v24, 0")
    a("buffer_store_dword v25, v24, s[28:31], 0 offen sc0 sc1")
    a(f"s_mov_b32 s62, {13 << 20}")
    a("buffer_store_dword v25, v24, s[20:23], s62 offen sc0 sc1")
    a.label(f"{name}_nopub")
    srd(a, 12, 4, 5, S * D * 2)
    a("s_cmp_ge_u32 s32, 6")
    a(f"s_cbranch_scc1 {name}_touch")
    a("s_cmp_ge_u32 s32, 4")
    a(f"s_cbranch_scc1 {name}_csw")
    a("s_lshl_b32 s33, s56, 4")
    a("s_lshl_b32 s34, s32, 2")
    a("s_add_u32 s33, s33, s34")
    a("s_lshl_b32 s34, s33, 10")
    for jj in range(4):
        a(f"buffer_load_dwordx4 v[{16 + 4 * jj}:{19 + 4 * jj}], v5, s[12:15], s34 offen offset:{256 * jj}")
    a("v_mov_b32 v9, 0")
    a.label(f"{name}_nl1")
    a("buffer_load_dword v15, v9, s[28:31], 0 offen sc1")
    a("s_waitcnt vmcnt(0)")
    a("v_readfirstlane_b32 s57, v15")
    a("s_cmp_lg_u32 s57, 0")
    a(f"s_cbranch_scc1 {name}_nd1")
    a("s_sleep 1")
    a("s_sub_u32 s69, s69, 1")
    a(f"s_cbranch_scc0 {name}_nl1")
    a("s_mov_b32 s69, 0")
    a.label(f"{name}_nd1")
    stamp(a, 2)
    X = 32
    for r in range(16):
        a(f"v_lshlrev_b32 v{X + 2 * r}, 16, v{16 + r}")
        a(f"v_and_b32 v{X + 2 * r + 1}, s53, v{16 + r}")
    a(f"v_add_f32 v8, v{X}, v{X + 1}")
    a(f"v_add_f32 v9, v{X + 2}, v{X + 3}")
    for r in range(4, 32, 2):
        a(f"v_add_f32 v8, v8, v{X + r}")
        a(f"v_add_f32 v9, v9, v{X + r + 1}")
    a("v_add_f32 v8, v8, v9")

    def red16(v):
        for pat in ("quad_perm:[1,0,3,2]", "quad_perm:[2,3,0,1]", "row_half_mirror", "row_mirror"):
            a("s_nop 1")
            a(f"v_add_f32_dpp v{v}, v{v}, v{v} {pat} {DPP}")

    red16(8)
    a("v_mul_f32 v8, 0x3b000000, v8")
    a("v_mov_b32 v10, 0")
    a("v_mov_b32 v11, 0")
    for r in range(0, 32, 2):
        a(f"v_sub_f32 v{X + r}, v{X + r}, v8")
        a(f"v_sub_f32 v{X + r + 1}, v{X + r + 1}, v8")
        a(f"v_fmac_f32 v10, v{X + r}, v{X + r}")
        a(f"v_fmac_f32 v11, v{X + r + 1}, v{X + r + 1}")
    a("v_add_f32 v10, v10, v11")
    red16(10)
    a("v_mul_f32 v10, 0x3b000000, v10")
    a("v_cvt_pk_bf16_f32 v12, v8, v8")
    a("v_lshlrev_b32 v12, 16, v12")
    a("v_cvt_pk_bf16_f32 v10, v10, v10")
    a("v_lshlrev_b32 v10, 16, v10")
    a("v_add_f32 v10, 0x3727c5ac, v10")
    a("v_cvt_pk_bf16_f32 v10, v10, v10")
    a("v_lshlrev_b32 v10, 16, v10")
    a("v_sqrt_f32 v10, v10")
    a("s_nop 0")
    a("v_cvt_pk_bf16_f32 v10, v10, v10")
    a("v_and_b32 v10, 0xffff, v10")
    a("v_or_b32 v12, v12, v10")
    a("v_mov_b32 v13, v15")
    a("v_lshlrev_b32 v14, 3, v3")
    a("s_lshl_b32 s36, s33, 3")
    a(f"s_add_u32 s36, s36, {WS_STATS}")
    a("v_cmp_eq_u32 vcc, 0, v4")
    a("s_and_saveexec_b64 s[54:55], vcc")
    a("buffer_store_dwordx2 v[12:13], v14, s[20:23], s36 offen sc0 sc1")
    a("s_mov_b64 exec, s[54:55]")
    a(f"s_branch {name}_auxj")
    a.label(f"{name}_csw")
    a("s_lshl_b32 s33, s56, 3")
    a("s_sub_u32 s34, s32, 4")
    a("s_lshl_b32 s34, s34, 2")
    a("s_add_u32 s33, s33, s34")
    a("s_cmp_ge_u32 s33, 512")
    a("s_cselect_b32 s58, s10, s8")
    a("s_cselect_b32 s59, s11, s9")
    srd(a, 16, 58, 59, D * D * 2)
    a("s_and_b32 s34, s33, 511")
    a("s_lshl_b32 s34, s34, 10")
    for jj in range(4):
        a(f"buffer_load_dwordx4 v[{16 + 4 * jj}:{19 + 4 * jj}], v5, s[16:19], s34 offen offset:{256 * jj}")
    a("v_mov_b32 v8, 0")
    a("v_mov_b32 v9, 0")
    a.label(f"{name}_nl2")
    a("buffer_load_dword v15, v9, s[28:31], 0 offen sc1")
    a("s_waitcnt vmcnt(0)")
    a("v_readfirstlane_b32 s57, v15")
    a("s_cmp_lg_u32 s57, 0")
    a(f"s_cbranch_scc1 {name}_nd2")
    a("s_sleep 1")
    a("s_sub_u32 s69, s69, 1")
    a(f"s_cbranch_scc0 {name}_nl2")
    a("s_mov_b32 s69, 0")
    a.label(f"{name}_nd2")
    for r in range(16):
        a(f"v_lshlrev_b32 v{32 + 2 * (r & 3)}, 16, v{16 + r}")
        a(f"v_and_b32 v{33 + 2 * (r & 3)}, s53, v{16 + r}")
        a(f"v_add_f32 v8, v8, v{32 + 2 * (r & 3)}")
        a(f"v_add_f32 v9, v9, v{33 + 2 * (r & 3)}")
    a("v_add_f32 v8, v8, v9")
    red16(8)
    a("v_lshlrev_b32 v14, 3, v3")
    a("v_mov_b32 v9, v15")
    a("s_lshl_b32 s36, s33, 3")
    a(f"s_add_u32 s36, s36, {WS_CS}")
    a("v_cmp_eq_u32 vcc, 0, v4")
    a("s_and_saveexec_b64 s[54:55], vcc")
    a("buffer_store_dwordx2 v[8:9], v14, s[20:23], s36 offen sc0 sc1")
    a("s_mov_b64 exec, s[54:55]")
    a(f"s_branch {name}_auxj")
    a.label(f"{name}_touch")
    a("s_cmp_eq_u32 s51, 1")
    a("s_cselect_b32 s58, s10, s8")
    a("s_cselect_b32 s59, s11, s9")
    srd(a, 16, 58, 59, D * D * 2)
    a("s_lshl_b32 s36, s27, 20")
    a("s_lshl_b32 s37, s26, 19")
    a("s_add_u32 s36, s36, s37")
    a("s_lshl_b32 s37, s50, 1")
    a("s_add_u32 s37, s37, s32")
    a("s_sub_u32 s37, s37, 6")
    a("s_lshl_b32 s37, s37, 14")
    a("s_add_u32 s36, s36, s37")
    a("buffer_load_dword v202, v6, s[12:15], s36 offen")
    a("buffer_load_dword v203, v6, s[16:19], s37 offen")
    a("s_add_u32 s36, s36, 8192")
    a("s_add_u32 s37, s37, 8192")
    a("buffer_load_dword v204, v6, s[12:15], s36 offen")
    a("buffer_load_dword v205, v6, s[16:19], s37 offen")
    if tlb:
        a("s_load_dwordx8 s[64:71], s[0:1], 48")
        a("s_load_dwordx2 s[58:59], s[0:1], 80")
        a("v_lshlrev_b32 v16, 14, v2")
        a("v_lshlrev_b32 v17, 11, v2")
        a("s_lshl_b32 s36, s50, 20")
        a("s_lshl_b32 s37, s50, 17")
        a("s_waitcnt lgkmcnt(0)")
        a("s_cmp_eq_u32 s32, 6")
        a(f"s_cbranch_scc0 {name}_tl7")
        srd(a, 16, 46, 47, 16 << 20)
        a("buffer_load_dword v202, v16, s[16:19], s36 offen")
        srd(a, 16, 58, 59, S * D * 2)
        a("buffer_load_dword v203, v17, s[16:19], s37 offen")
        a(f"s_branch {name}_auxj")
        a.label(f"{name}_tl7")
        for k, (lo, hi) in enumerate(((66, 67), (68, 69), (70, 71))):
            srd(a, 16, lo, hi, D * F * 2)
            a(f"buffer_load_dword v{18 + k}, v17, s[16:19], s37 offen")
        srd(a, 16, 64, 65, D * 2)
        a("buffer_load_dword v205, v17, s[16:19], 0 offen")
    a.label(f"{name}_auxj")
    a("s_cmp_eq_u32 s51, 1")
    a("s_cselect_b32 s40, s42, s40")
    a("s_cselect_b32 s41, s43, s41")
    srd(a, 24, 40, 41, S * S * 2)
    if pf and early:
        a("s_cmp_lt_u32 s32, 6")
        a(f"s_cbranch_scc1 {name}_noearly")
        if pfq < 4:
            a(f"v_cmp_gt_u32 vcc, {4 * pfq}, v4")
            a("s_and_saveexec_b64 s[54:55], vcc")
        a("buffer_load_dword v202, v7, s[24:27], s48 offen")
        a("buffer_load_dword v203, v7, s[24:27], s49 offen")
        if early >= 2:
            a("s_sub_u32 s48, s48, 65536")
            a("s_sub_u32 s49, s49, 65536")
            a("buffer_load_dword v204, v7, s[24:27], s48 offen")
            a("buffer_load_dword v205, v7, s[24:27], s49 offen")
        if pfq < 4:
            a("s_mov_b64 exec, s[54:55]")
        a.label(f"{name}_noearly")
    a("s_barrier")
    stamp(a, 3)
    if pf and early:
        a(f"s_cmp_ge_u32 s32, {6 if early == 1 else 4}")
        a(f"s_cbranch_scc1 {name}_pfskip")
    if pf:
        if pfq < 4:
            a(f"v_cmp_gt_u32 vcc, {4 * pfq}, v4")
            a("s_and_saveexec_b64 s[54:55], vcc")
        if pace == 3:
            a("v_lshrrev_b32 v16, 3, v2")
            a("v_lshlrev_b32 v16, 12, v16")
            a("v_and_b32 v17, 7, v2")
            a("v_lshl_add_u32 v16, v17, 7, v16")
            a(f"buffer_load_dword v204, v16, s[24:27], s48 offen{PPOL}")
            a("s_waitcnt vmcnt(0)")
            a(f"buffer_load_dword v205, v16, s[24:27], s48 offen offset:1024{PPOL}")
        else:
            a(f"buffer_load_dword v204, v7, s[24:27], s48 offen{PPOL}")
            if pace == 2:
                a("s_waitcnt vmcnt(0)")
            a(f"buffer_load_dword v205, v7, s[24:27], s49 offen{PPOL}")
        if pfq < 4:
            a("s_mov_b64 exec, s[54:55]")
    a.label(f"{name}_pfskip")
    if wk1:
        a("s_cmp_ge_u32 s32, 6")
        a(f"s_cbranch_scc1 {name}_fina")
        a("s_lshr_b32 s58, s32, 1")
        a("s_lshl_b32 s58, s58, 3")
        a("s_add_u32 s58, s58, 56")
        a("s_load_dwordx2 s[60:61], s[0:1], s58")
        a("s_mul_i32 s62, s56, 14336")
        a("s_and_b32 s63, s32, 1")
        a("s_mul_i32 s63, s63, 7168")
        a("s_add_u32 s62, s62, s63")
        a("s_add_u32 s63, s62, 7168")
        a("s_waitcnt lgkmcnt(0)")
        a("s_mov_b32 s16, s60")
        a("s_and_b32 s17, s61, 0xffff")
        a("s_mov_b32 s18, s63")
        a("s_mov_b32 s19, 0x00020000")
        a("buffer_load_dword v206, v6, s[16:19], s62 offen" + (" nt" if wk1 == 2 else ""))
    a.label(f"{name}_fina")
    if fuse2:
        a("s_xor_b32 s32, s32, 4")
    a.label(f"{name}_fin")
    stamp_flush(a, 1, 6, 46, 47)
    if fuse2:
        fuse2(a, name + "g")
        a.label(f"{name}_done")
        a("s_endpgm")
        return kernel_desc(name, 208, 72, 208)
    a.label(f"{name}_done")
    a("s_endpgm")
    return kernel_desc(name, 208, 72, 208)


def gen_k1g(a, name, wt=1, PRO=3, U1=11, UC=14, wk=1, cpf=1, SPOS=0, NPOS=1):
    NSTG, SLOT, NST = 6, 24576, 8
    kernel_begin(a, name)
    a("s_cmp_ge_u32 s2, 256")
    a(f"s_cbranch_scc1 {name}_done")
    stamp(a, 0)
    a("s_load_dwordx2 s[4:5], s[0:1], 0")
    a("s_load_dwordx4 s[8:11], s[0:1], 24")
    a("s_load_dwordx4 s[44:47], s[0:1], 88")
    a("s_load_dwordx4 s[40:43], s[0:1], 8")
    a("s_load_dwordx4 s[56:59], s[0:1], 56")
    a("s_load_dwordx2 s[60:61], s[0:1], 72")
    a("s_memrealtime s[66:67]")
    a("s_and_b32 s3, s2, 7")
    a("s_lshr_b32 s48, s2, 3")
    a("s_and_b32 s49, s3, 1")
    a("s_bfe_u32 s50, s3, 0x10001")
    a("s_lshr_b32 s51, s3, 2")
    a("s_lshl_b32 s30, s50, 3")
    a("s_lshl_b32 s34, s51, 2")
    a("s_add_u32 s30, s30, s34")
    a("s_and_b32 s34, s48, 3")
    a("s_add_u32 s30, s30, s34")
    a("s_lshr_b32 s31, s48, 2")
    a("v_lshrrev_b32 v1, 6, v0")
    a("v_and_b32 v2, 63, v0")
    a("s_nop 0")
    a("v_readfirstlane_b32 s32, v1")
    a("s_mov_b32 s53, 0xffff0000")
    a("s_mov_b32 s69, 0x40000")
    a("s_xor_b32 s32, s32, 4")
    a("s_cmp_lt_u32 s32, 4")
    a(f"s_cbranch_scc1 {name}_cons")
    a("s_sub_u32 s33, s32, 4")
    a("v_lshrrev_b32 v3, 3, v2")
    a("v_and_b32 v4, 7, v2")
    a("v_bfe_u32 v5, v2, 4, 1")
    a("v_xor_b32 v4, v4, v5")
    a("v_lshlrev_b32 v3, 10, v3")
    for i in range(4):
        g0g1 = (i & 1) ^ (i >> 1)
        a(f"v_xor_b32 v{8 + i}, {(2 * i) ^ g0g1}, v4")
        a(f"v_lshl_add_u32 v{8 + i}, v{8 + i}, 4, v3")
        if i:
            a(f"v_add_u32 v{8 + i}, {i * (8192 - 1024)}, v{8 + i}")
    a("s_bitcmp1_b32 s33, 0")
    a("s_cselect_b32 s34, 5, 0")
    a("s_cselect_b32 s35, 6, 3")
    a("v_xor_b32 v12, s34, v4")
    a("v_lshl_add_u32 v12, v12, 4, v3")
    a("v_xor_b32 v13, s35, v4")
    a("v_lshl_add_u32 v13, v13, 4, v3")
    a(f"v_add_u32 v13, {8192 - 1024}, v13")
    a("s_lshl_b32 s34, s33, 5")
    a("s_lshl_b32 s35, s30, 7")
    a("s_add_u32 s35, s35, s34")
    a("s_lshl_b32 s35, s35, 10")
    a("s_lshl_b32 s36, s31, 6")
    a("s_lshl_b32 s34, s33, 4")
    a("s_add_u32 s36, s36, s34")
    a("s_lshl_b32 s36, s36, 10")
    a("s_lshl_b32 s37, s33, 12")
    a("s_lshl_b32 s38, s33, 11")
    a("s_add_u32 s38, s38, 16384")
    a("v_lshrrev_b32 v14, 4, v2")
    a("v_and_b32 v15, 15, v2")
    a("v_lshlrev_b32 v6, 10, v14")
    a("v_lshl_add_u32 v6, v15, 4, v6")
    a("v_mov_b32 v7, 0")
    a("s_lshl_b32 s52, s2, 3")
    a("s_lshl_b32 s34, s33, 2")
    a("s_add_u32 s52, s52, s34")
    a("s_lshl_b32 s54, s2, 2")
    a("s_waitcnt lgkmcnt(0)")
    stamp(a, 1)
    srd(a, 24, 44, 45, 256)
    srd(a, 20, 46, 47, 14 << 20)
    a("s_or_b32 s62, s2, s33")
    a("s_cmp_lg_u32 s62, 0")
    a(f"s_cbranch_scc1 {name}_nopub")
    a("s_or_b32 s62, s66, 1")
    a("v_mov_b32 v25, s62")
    a("buffer_store_dword v25, v7, s[24:27], 0 offen sc0 sc1")
    a(f"s_mov_b32 s62, {13 << 20}")
    a("buffer_store_dword v25, v7, s[20:23], s62 offen sc0 sc1")
    a.label(f"{name}_nopub")
    srd(a, 12, 4, 5, S * D * 2)
    a("s_cmp_ge_u32 s54, 512")
    a("s_cselect_b32 s62, s10, s8")
    a("s_cselect_b32 s63, s11, s9")
    a("s_and_b32 s55, s54, 511")
    a("s_cmp_lt_u32 s33, 2")
    a("s_cselect_b32 s62, s4, s62")
    a("s_cselect_b32 s63, s5, s63")
    a("s_cselect_b32 s55, s52, s55")
    a(f"s_mov_b32 s65, {D * D * 2}")
    a(f"s_cselect_b32 s64, {S * D * 2}, s65")
    a("s_cmp_eq_u32 s33, 3")
    a("s_cselect_b32 s64, 0, s64")
    a("s_lshl_b32 s55, s55, 10")
    a("s_mov_b32 s16, s62")
    a("s_and_b32 s17, s63, 0xffff")
    a("s_mov_b32 s18, s64")
    a("s_mov_b32 s19, 0x00020000")
    for jj in range(4):
        a(f"buffer_load_dwordx4 v[{16 + 4 * jj}:{19 + 4 * jj}], v6, s[16:19], s55 offen offset:{256 * jj}")
    a("s_cmp_eq_u32 s49, 1")
    a("s_cselect_b32 s8, s10, s8")
    a("s_cselect_b32 s9, s11, s9")
    srd(a, 16, 8, 9, D * D * 2)

    def load_stage(kk):
        slot = (kk % NSTG) * SLOT
        a(f"s_add_u32 m0, s37, {slot}")
        a(f"s_add_u32 s39, s35, {kk * 128}")
        for i in range(4):
            a(f"buffer_load_dwordx4 v{8 + i}, s[12:15], s39 offen offset:{i * 1024} lds")
        a(f"s_add_u32 m0, s38, {slot}")
        a(f"s_add_u32 s39, s36, {kk * 128}")
        for i in range(2):
            a(f"buffer_load_dwordx4 v{12 + i}, s[16:19], s39 offen offset:{i * 1024} lds")

    def red16(v):
        for pat in ("quad_perm:[1,0,3,2]", "quad_perm:[2,3,0,1]", "row_half_mirror", "row_mirror"):
            a("s_nop 1")
            a(f"v_add_f32_dpp v{v}, v{v}, v{v} {pat} {DPP}")

    def stats_block():
        X = 64
        for r in range(16):
            a(f"v_lshlrev_b32 v{X + 2 * r}, 16, v{16 + r}")
            a(f"v_and_b32 v{X + 2 * r + 1}, s53, v{16 + r}")
        a(f"v_add_f32 v34, v{X}, v{X + 1}")
        a(f"v_add_f32 v35, v{X + 2}, v{X + 3}")
        for r in range(4, 32, 2):
            a(f"v_add_f32 v34, v34, v{X + r}")
            a(f"v_add_f32 v35, v35, v{X + r + 1}")
        a("v_add_f32 v34, v34, v35")
        red16(34)
        a("v_mul_f32 v36, 0x3b000000, v34")
        a("v_mov_b32 v37, 0")
        a("v_mov_b32 v38, 0")
        for r in range(0, 32, 2):
            a(f"v_sub_f32 v{X + r}, v{X + r}, v36")
            a(f"v_sub_f32 v{X + r + 1}, v{X + r + 1}, v36")
            a(f"v_fmac_f32 v37, v{X + r}, v{X + r}")
            a(f"v_fmac_f32 v38, v{X + r + 1}, v{X + r + 1}")
        a("v_add_f32 v37, v37, v38")
        red16(37)
        a("v_mul_f32 v37, 0x3b000000, v37")
        a("v_cvt_pk_bf16_f32 v40, v36, v36")
        a("v_lshlrev_b32 v40, 16, v40")
        a("v_cvt_pk_bf16_f32 v37, v37, v37")
        a("v_lshlrev_b32 v37, 16, v37")
        a("v_add_f32 v37, 0x3727c5ac, v37")
        a("v_cvt_pk_bf16_f32 v37, v37, v37")
        a("v_lshlrev_b32 v37, 16, v37")
        a("v_sqrt_f32 v37, v37")
        a("s_nop 0")
        a("v_cvt_pk_bf16_f32 v37, v37, v37")
        a("v_and_b32 v37, 0xffff, v37")
        a("v_or_b32 v40, v40, v37")
        a("s_cmp_eq_u32 s33, 2")
        a("s_cselect_b64 s[62:63], -1, 0")
        a("v_cndmask_b32 v40, v40, v34, s[62:63]")
        a("s_lshl_b32 s64, s52, 3")
        a(f"s_add_u32 s64, s64, {WS_STATS}")
        a("s_lshl_b32 s65, s54, 3")
        a(f"s_add_u32 s65, s65, {WS_CS}")
        a("s_cmp_eq_u32 s33, 2")
        a("s_cselect_b32 s64, s65, s64")
        a("s_add_u32 s65, s65, 8192")
        a("s_cmp_eq_u32 s33, 3")
        a("s_cselect_b32 s64, s65, s64")
        a("v_lshlrev_b32 v42, 3, v14")

    vq = ["s"] * 4
    for kk in range(PRO):
        load_stage(kk)
        vq += [kk] * 6
        if kk == NPOS:
            a("buffer_load_dword v33, v7, s[24:27], 0 offen sc1")
            vq.append("n")
    stamp(a, 2)
    issued = PRO

    def wait_tag(tag):
        nonlocal vq
        if tag in vq:
            idx = max(k for k, t in enumerate(vq) if t == tag)
            a(f"s_waitcnt vmcnt({len(vq) - 1 - idx})")
            vq = vq[idx + 1:]

    for kk in range(NST):
        wait_tag(kk)
        a("s_barrier")
        n_new = 0
        while issued < NST and issued - NSTG < kk and n_new < 2:
            load_stage(issued)
            vq += [issued] * 6
            issued += 1
            n_new += 1
        if kk == SPOS:
            stats_block()
        if kk == SPOS:
            wait_tag("n")
            a("v_readfirstlane_b32 s65, v33")
            a("s_cmp_lg_u32 s65, 0")
            a(f"s_cbranch_scc1 {name}_nok")
            a.label(f"{name}_nl")
            a("buffer_load_dword v33, v7, s[24:27], 0 offen sc1")
            a("s_waitcnt vmcnt(0)")
            a("v_readfirstlane_b32 s65, v33")
            a("s_cmp_lg_u32 s65, 0")
            a(f"s_cbranch_scc1 {name}_nok")
            a("s_sub_u32 s69, s69, 1")
            a(f"s_cbranch_scc0 {name}_nl")
            a("s_mov_b32 s69, 0")
            a.label(f"{name}_nok")
            a("v_mov_b32 v41, v33")
            a("v_cmp_eq_u32 vcc, 0, v15")
            a("s_and_saveexec_b64 s[62:63], vcc")
            a("buffer_store_dwordx2 v[40:41], v42, s[20:23], s64 offen sc0 sc1")
            a("s_mov_b64 exec, s[62:63]")
            vq.append("st")
        if issued == NST and kk == 2:
            if wk:
                emit_wtouch(a, "s33", 44, 45)
            if cpf:
                a("s_cmp_eq_u32 s49, 1")
                a("s_cselect_b32 s40, s42, s40")
                a("s_cselect_b32 s41, s43, s41")
                srd(a, 24, 40, 41, S * S * 2)
                a("s_lshl_b32 s62, s51, 10")
                a("s_lshl_b32 s63, s48, 5")
                a("s_add_u32 s62, s62, s63")
                a("s_lshl_b32 s63, s33, 3")
                a("s_add_u32 s62, s62, s63")
                a("s_lshl_b32 s62, s62, 12")
                a("s_lshl_b32 s63, s50, 11")
                a("s_add_u32 s62, s62, s63")
                a("v_lshrrev_b32 v46, 3, v2")
                a("v_lshlrev_b32 v46, 12, v46")
                a("v_and_b32 v47, 7, v2")
                a("v_lshl_add_u32 v46, v47, 7, v46")
                a("buffer_load_dword v48, v46, s[24:27], s62 offen")
                if cpf >= 2:
                    a("buffer_load_dword v49, v46, s[24:27], s62 offen offset:1024")
            vq += ["t"] * ((1 if wk else 0) + (0 if not cpf else (1 if cpf == 1 else 2)))
    stamp(a, 3)
    a(f"s_branch {name}_fin")
    a.label(f"{name}_cons")
    a("s_and_b32 s33, s32, 1")
    a("s_lshr_b32 s34, s32, 1")
    a("v_and_b32 v4, 15, v2")
    a("v_lshrrev_b32 v6, 4, v2")
    a("v_lshrrev_b32 v5, 2, v4")
    a("v_and_b32 v7, 3, v4")
    a("v_lshl_add_u32 v7, v5, 3, v7")
    a("v_lshrrev_b32 v20, 1, v4")
    a("v_lshrrev_b32 v21, 2, v4")
    a("v_lshrrev_b32 v22, 3, v4")
    a("v_xor_b32 v21, v21, v22")
    a("v_and_b32 v21, 1, v21")
    a("v_xor_b32 v20, v20, v21")
    a("v_xor_b32 v20, v20, v6")
    a("v_lshlrev_b32 v20, 4, v20")
    a("v_lshl_add_u32 v20, v7, 7, v20")
    a("s_lshl_b32 s35, s33, 13")
    a("s_lshl_b32 s36, s34, 12")
    a("s_add_u32 s36, s36, 16384")
    for g2 in range(3):
        a(f"v_add_u32 v{8 + 4 * g2}, s35, v20")
        a(f"v_xor_b32 v{9 + 4 * g2}, 64, v{8 + 4 * g2}")
        a(f"v_add_u32 v{10 + 4 * g2}, s36, v20")
        a(f"v_xor_b32 v{11 + 4 * g2}, 64, v{10 + 4 * g2}")
        if g2:
            for r in range(4):
                a(f"v_add_u32 v{8 + 4 * g2 + r}, {2 * SLOT * g2}, v{8 + 4 * g2 + r}")
    ACC = 32
    FB = 64
    ST = 112
    CSR = 144
    for i in range(32):
        a(f"v_mov_b32 v{ACC + i}, 0")
    a("s_lshl_b32 s38, s30, 7")
    a("s_lshl_b32 s39, s33, 6")
    a("s_add_u32 s38, s38, s39")
    a("s_lshl_b32 s38, s38, 3")
    a(f"s_add_u32 s38, s38, {WS_STATS}")
    a("v_lshlrev_b32 v23, 6, v6")
    a("v_mov_b32 v24, 0")
    a("s_lshl_b32 s39, s49, 9")
    a("s_lshl_b32 s65, s31, 6")
    a("s_add_u32 s39, s39, s65")
    a("s_lshl_b32 s65, s34, 5")
    a("s_add_u32 s39, s39, s65")
    a("s_lshl_b32 s39, s39, 3")
    a(f"s_add_u32 s52, s39, {WS_CS}")
    a("v_lshlrev_b32 v21, 3, v7")
    a("s_lshl_b32 s35, s49, 5")
    a("s_lshl_b32 s36, s31, 2")
    a("s_add_u32 s35, s35, s36")
    a("s_lshl_b32 s36, s34, 1")
    a("s_add_u32 s35, s35, s36")
    a("s_lshl_b32 s35, s35, 6")
    a("s_lshl_b32 s36, s30, 2")
    a("s_add_u32 s35, s35, s36")
    a("s_lshl_b32 s36, s33, 1")
    a("s_add_u32 s35, s35, s36")
    a("s_lshl_b32 s54, s35, 10")
    a("s_add_u32 s55, s54, 65536")
    a("v_lshlrev_b32 v22, 4, v2")
    a("s_waitcnt lgkmcnt(0)")
    stamp(a, 1)
    srd(a, 20, 46, 47, 14 << 20)
    srd(a, 24, 44, 45, 256)
    NU = NST * 2

    def read_list(u):
        s, ks = u // 2, u % 2
        slot = s % NSTG
        g2, so = slot // 2, (slot % 2) * SLOT
        f = FB + 24 * (u % 2)
        L = []
        for i in range(2):
            L.append(f"ds_read_b128 v[{f + 16 + 4 * i}:{f + 19 + 4 * i}], v{10 + 4 * g2 + ks} offset:{so + i * 512}")
        for i in range(4):
            off = so + (i >> 1) * 4096 + (i & 1) * 512
            L.append(f"ds_read_b128 v[{f + 4 * i}:{f + 3 + 4 * i}], v{8 + 4 * g2 + ks} offset:{off}")
        return L

    def stats_loads():
        for blk in range(2):
            for q4 in range(4):
                r = ST + 16 * blk + 4 * q4
                a(f"buffer_load_dwordx4 v[{r}:{r + 3}], v23, s[20:23], s38 offen offset:{256 * blk + 16 * q4} sc1")
        for T in range(2):
            a(f"buffer_load_dwordx2 v[{CSR + 2 * T}:{CSR + 1 + 2 * T}], v21, s[20:23], s52 offen offset:{T * 32} sc1")
        a("buffer_load_dword v25, v24, s[24:27], 0 offen sc1")

    def check_ops():
        L = [f"v_xor_b32 v26, v25, v{ST + 1}"]
        for r in range(1, 16):
            L.append(f"v_xor_b32 v27, v25, v{ST + 2 * r + 1}")
            L.append("v_or_b32 v26, v26, v27")
        for T in range(2):
            L.append(f"v_xor_b32 v27, v25, v{CSR + 1 + 2 * T}")
            L.append("v_or_b32 v26, v26, v27")
        for r in range(16):
            L.append(f"v_lshlrev_b32 v{ST + 2 * r + 1}, 16, v{ST + 2 * r}")
            L.append(f"v_rcp_f32 v{ST + 2 * r + 1}, v{ST + 2 * r + 1}")
            L.append(f"v_and_b32 v{ST + 2 * r}, s53, v{ST + 2 * r}")
        return L

    a("s_barrier")
    stamp(a, 2)
    for r in read_list(0):
        a(r)
    for u in range(NU):
        a("s_waitcnt lgkmcnt(0)")
        f = FB + 24 * (u % 2)
        nxt = read_list(u + 1) if u + 1 < NU else []
        n = 0
        for xi in range(4):
            for T in range(2):
                acc = ACC + (xi * 2 + T) * 4
                a(f"v_mfma_f32_16x16x32_bf16 v[{acc}:{acc + 3}], v[{f + 4 * xi}:{f + 3 + 4 * xi}], v[{f + 16 + 4 * T}:{f + 19 + 4 * T}], v[{acc}:{acc + 3}]")
                n += 1
                if n == 1 and nxt and (u + 1) % 2 == 0:
                    a("s_barrier")
                if nxt:
                    a(nxt.pop(0))
                if u == U1 and n == 7:
                    stats_loads()
    stamp(a, 3)
    a.label(f"{name}_chk")
    a("s_waitcnt vmcnt(0)")
    for op in check_ops():
        a(op)
    a("v_cmp_eq_u32 vcc, 0, v25")
    a("v_cmp_ne_u32 s[62:63], 0, v26")
    a("s_or_b64 s[62:63], s[62:63], vcc")
    a(f"s_cbranch_scc0 {name}_have")
    a("s_sleep 2")
    stats_loads()
    a("s_sub_u32 s69, s69, 1")
    a(f"s_cbranch_scc0 {name}_chk")
    a("s_mov_b32 s69, 0")
    a.label(f"{name}_have")
    stamp(a, 4)
    for blk in range(2):
        for T in range(2):
            o = 64 + 4 * (blk * 2 + T)
            for hb in range(2):
                acc = ACC + ((blk * 2 + hb) * 2 + T) * 4
                for j in range(4):
                    sr = ST + 16 * blk + 2 * (4 * hb + j)
                    a(f"v_fma_f32 v{acc + j}, -v{sr}, v{CSR + 2 * T}, v{acc + j}")
                    a(f"v_mul_f32 v{acc + j}, v{acc + j}, v{sr + 1}")
                a(f"v_cvt_pk_bf16_f32 v{o + 2 * hb}, v{acc}, v{acc + 1}")
                a(f"v_cvt_pk_bf16_f32 v{o + 2 * hb + 1}, v{acc + 2}, v{acc + 3}")
            a(f"buffer_store_dwordx4 v[{o}:{o + 3}], v22, s[20:23], s{54 + T} offen offset:{blk * 1024}" + (" sc0 sc1" if wt else ""))
    stamp(a, 5)
    a.label(f"{name}_fin")
    stamp_flush(a, 1, 6, 46, 47)
    a.label(f"{name}_done")
    a("s_endpgm")
    return kernel_desc(name, 152, 72, 152)


def gen_k3(a, name):
    kernel_begin(a, name)
    a("s_cmp_ge_u32 s2, 256")
    a(f"s_cbranch_scc1 {name}_done")
    stamp(a, 0)
    a("s_load_dwordx2 s[4:5], s[0:1], 0")
    a("s_load_dwordx2 s[6:7], s[0:1], 48")
    a("s_load_dwordx2 s[8:9], s[0:1], 80")
    a("s_load_dwordx2 s[10:11], s[0:1], 96")
    a("v_lshrrev_b32 v1, 6, v0")
    a("v_and_b32 v2, 63, v0")
    a("s_nop 0")
    a("v_readfirstlane_b32 s32, v1")
    a("v_lshlrev_b32 v3, 4, v2")
    a("s_waitcnt lgkmcnt(0)")
    stamp(a, 1)
    srd(a, 12, 4, 5, S * D * 2)
    srd(a, 16, 6, 7, D * 2)
    srd(a, 20, 8, 9, S * D * 2)
    srd(a, 24, 10, 11, 14 << 20)
    a("s_lshl_b32 s33, s2, 3")
    a("s_lshl_b32 s34, s32, 1")
    a("s_add_u32 s33, s33, s34")
    a("s_lshl_b32 s34, s33, 10")
    a(f"s_add_u32 s35, s34, {WS_P}")
    a(f"s_add_u32 s36, s34, {WS_P + (4 << 20)}")
    a(f"s_add_u32 s43, s34, {WS_P + (2 << 20)}")
    a(f"s_add_u32 s44, s34, {WS_P + (6 << 20)}")
    for R in range(2):
        B = 16 + 64 * R
        a(f"buffer_load_dwordx4 v[{B}:{B + 3}], v3, s[24:27], s35 offen offset:{1024 * R}")
        a(f"buffer_load_dwordx4 v[{B + 12}:{B + 15}], v3, s[24:27], s43 offen offset:{1024 * R}")
        a(f"buffer_load_dwordx4 v[{B + 4}:{B + 7}], v3, s[24:27], s36 offen offset:{1024 * R}")
        a(f"buffer_load_dwordx4 v[{B + 56}:{B + 59}], v3, s[24:27], s44 offen offset:{1024 * R}")
        a(f"buffer_load_dwordx4 v[{B + 8}:{B + 11}], v3, s[12:15], s34 offen offset:{1024 * R}")
    a("buffer_load_dwordx4 v[8:11], v3, s[16:19], 0 offen")
    a("s_mov_b32 s53, 0xffff0000")
    a("s_waitcnt vmcnt(1)")
    stamp(a, 2)

    def unpack(dst, src):
        a(f"v_lshlrev_b32 v{dst}, 16, v{src}")
        a(f"v_and_b32 v{dst + 1}, s53, v{src}")

    for R in range(2):
        B = 16 + 64 * R
        H, T = B + 16, B + 24
        for i in range(4):
            unpack(T, B + i)
            unpack(T + 2, B + 12 + i)
            unpack(T + 4, B + 4 + i)
            unpack(T + 6, B + 56 + i)
            a(f"v_add_f32 v{T}, v{T}, v{T + 2}")
            a(f"v_add_f32 v{T + 1}, v{T + 1}, v{T + 3}")
            a(f"v_add_f32 v{T + 4}, v{T + 4}, v{T + 6}")
            a(f"v_add_f32 v{T + 5}, v{T + 5}, v{T + 7}")
            a(f"v_cvt_pk_bf16_f32 v{T + 8}, v{T}, v{T + 1}")
            a(f"v_cvt_pk_bf16_f32 v{T + 9}, v{T + 4}, v{T + 5}")
            unpack(T, T + 8)
            unpack(T + 2, T + 9)
            a(f"v_sub_f32 v{T}, v{T}, v{T + 2}")
            a(f"v_sub_f32 v{T + 1}, v{T + 1}, v{T + 3}")
            a(f"v_cvt_pk_bf16_f32 v{T + 4}, v{T}, v{T + 1}")
            unpack(T, T + 4)
            unpack(T + 2, B + 8 + i)
            a(f"v_add_f32 v{T}, v{T + 2}, v{T}")
            a(f"v_add_f32 v{T + 1}, v{T + 3}, v{T + 1}")
            a(f"v_cvt_pk_bf16_f32 v{B + 40 + i}, v{T}, v{T + 1}")
            unpack(H + 2 * i, B + 40 + i)
        St = B + 48
        a(f"v_add_f32 v{St}, v{H}, v{H + 1}")
        for i in range(2, 8):
            a(f"v_add_f32 v{St}, v{St}, v{H + i}")
    for R in range(2):
        B = 16 + 64 * R
        wave_allreduce(a, "v_add_f32", B + 48, B + 49)
    for R in range(2):
        B = 16 + 64 * R
        H, T, St = B + 16, B + 24, B + 48
        a(f"v_mul_f32 v{St}, 0x3b000000, v{St}")
        a(f"v_cvt_pk_bf16_f32 v{St + 1}, v{St}, v{St}")
        a(f"v_lshlrev_b32 v{St + 1}, 16, v{St + 1}")
        for i in range(8):
            a(f"v_sub_f32 v{T + i}, v{H + i}, v{St}")
        a(f"v_mul_f32 v{St + 2}, v{T}, v{T}")
        for i in range(1, 8):
            a(f"v_fmac_f32 v{St + 2}, v{T + i}, v{T + i}")
    for R in range(2):
        B = 16 + 64 * R
        wave_allreduce(a, "v_add_f32", B + 50, B + 51)
    a("s_waitcnt vmcnt(0)")
    for R in range(2):
        B = 16 + 64 * R
        H, T, St = B + 16, B + 24, B + 48
        v = St + 2
        a(f"v_mul_f32 v{v}, 0x3b000000, v{v}")
        a(f"v_cvt_pk_bf16_f32 v{v}, v{v}, v{v}")
        a(f"v_lshlrev_b32 v{v}, 16, v{v}")
        a(f"v_add_f32 v{v}, 0x3727c5ac, v{v}")
        a(f"v_cvt_pk_bf16_f32 v{v}, v{v}, v{v}")
        a(f"v_lshlrev_b32 v{v}, 16, v{v}")
        a(f"v_sqrt_f32 v{v}, v{v}")
        a("s_nop 0")
        a(f"v_cvt_pk_bf16_f32 v{v}, v{v}, v{v}")
        a(f"v_lshlrev_b32 v{v}, 16, v{v}")
        a(f"v_rcp_f32 v{v}, v{v}")
        a("s_nop 0")
        a(f"v_mov_b32 v{St + 4}, 0")
        for i in range(4):
            a(f"v_sub_f32 v{T}, v{H + 2 * i}, v{St + 1}")
            a(f"v_sub_f32 v{T + 1}, v{H + 2 * i + 1}, v{St + 1}")
            a(f"v_cvt_pk_bf16_f32 v{T + 2}, v{T}, v{T + 1}")
            unpack(T, T + 2)
            a(f"v_mul_f32 v{T}, v{T}, v{v}")
            a(f"v_mul_f32 v{T + 1}, v{T + 1}, v{v}")
            a(f"v_cvt_pk_bf16_f32 v{B + 44 + i}, v{T}, v{T + 1}")
            unpack(T, B + 44 + i)
            a(f"v_add_f32 v{T}, v{H + 2 * i}, v{T}")
            a(f"v_add_f32 v{T + 1}, v{H + 2 * i + 1}, v{T + 1}")
            a(f"v_cvt_pk_bf16_f32 v{B + 4 + i}, v{T}, v{T + 1}")
            a(f"v_dot2_f32_bf16 v{St + 4}, v{B + 44 + i}, v{8 + i}, v{St + 4}")
        a(f"buffer_store_dwordx4 v[{B + 4}:{B + 7}], v3, s[20:23], s34 offen offset:{1024 * R}")
    a("s_nop 2")
    for R in range(2):
        B = 16 + 64 * R
        wave_allreduce(a, "v_add_f32", B + 52, B + 53)
    for R in range(2):
        B = 16 + 64 * R
        v = B + 52
        a(f"v_cvt_pk_bf16_f32 v{v}, v{v}, v{v}")
        a(f"v_lshlrev_b32 v{v}, 16, v{v}")
        a(f"v_ashrrev_i32 v{v + 1}, 31, v{v}")
        a(f"v_or_b32 v{v + 1}, 0x80000000, v{v + 1}")
        a(f"v_xor_b32 v{v}, v{v}, v{v + 1}")
        a(f"v_and_b32 v{v}, s53, v{v}")
        a(f"s_sub_u32 s37, {2047 - R}, s33")
        a(f"v_or_b32 v{v}, s37, v{v}")
    a("v_max_u32 v4, v68, v132")
    a("s_lshl_b32 s37, s32, 2")
    a("v_mov_b32 v5, s37")
    a("ds_write_b32 v5, v4")
    stamp(a, 3)
    a("s_waitcnt lgkmcnt(0)")
    a("s_barrier")
    a("v_mov_b32 v5, 0")
    a("ds_read_b128 v[12:15], v5")
    a("s_waitcnt lgkmcnt(0)")
    a("v_max_u32 v12, v12, v13")
    a("v_max_u32 v14, v14, v15")
    a("v_max_u32 v12, v12, v14")
    a("s_nop 0")
    a("v_readfirstlane_b32 s38, v12")
    a("v_readfirstlane_b32 s39, v68")
    a("v_readfirstlane_b32 s40, v132")
    a(f"s_lshl_b32 s41, s2, 11")
    a(f"s_add_u32 s41, s41, {WS_CROW}")
    a(f"s_lshl_b32 s42, s2, 2")
    a(f"s_add_u32 s42, s42, {WS_CAND}")
    a("v_mov_b32 v5, 0")
    for R in range(2):
        B = 16 + 64 * R
        a(f"s_cmp_lg_u32 s38, s{39 + R}")
        a(f"s_cbranch_scc1 {name}_nw{R}")
        a(f"buffer_store_dwordx4 v[{B + 40}:{B + 43}], v3, s[24:27], s41 offen")
        a(f"buffer_store_dwordx4 v[{B + 44}:{B + 47}], v3, s[24:27], s41 offen offset:1024")
        a(f"buffer_store_dword v12, v5, s[24:27], s42 offen")
        a.label(f"{name}_nw{R}")
    stamp_flush(a, 3, 4, 10, 11)
    a.label(f"{name}_done")
    a("s_endpgm")
    return kernel_desc(name, 144, 64, 144)


NSL = 56


def emit_winner(a, vkey, t, ldsaddr_tmp, s_out):
    wave_allreduce(a, "v_max_u32", vkey, t)
    a("s_lshl_b32 s37, s32, 2")
    a(f"v_mov_b32 v{ldsaddr_tmp}, s37")
    a(f"ds_write_b32 v{ldsaddr_tmp}, v{vkey}")
    a("s_waitcnt lgkmcnt(0)")
    a("s_barrier")
    a(f"v_mov_b32 v{ldsaddr_tmp}, 0")
    a(f"ds_read_b64 v[{t}:{t + 1}], v{ldsaddr_tmp}")
    a(f"ds_read_b64 v[{t + 2}:{t + 3}], v{ldsaddr_tmp} offset:8")
    a("s_waitcnt lgkmcnt(0)")
    a(f"v_max_u32 v{t}, v{t}, v{t + 1}")
    a(f"v_max_u32 v{t + 2}, v{t + 2}, v{t + 3}")
    a(f"v_max_u32 v{t}, v{t}, v{t + 2}")
    a("s_nop 0")
    a(f"v_readfirstlane_b32 s{s_out}, v{t}")


def gen_k4(a, name):
    kernel_begin(a, name)
    a(f"s_cmp_ge_u32 s2, {NSL}")
    a(f"s_cbranch_scc1 {name}_done")
    stamp(a, 0)
    a("s_load_dwordx4 s[4:7], s[0:1], 56")
    a("s_load_dwordx2 s[8:9], s[0:1], 72")
    a("s_load_dwordx2 s[10:11], s[0:1], 96")
    a("v_lshrrev_b32 v1, 6, v0")
    a("v_and_b32 v2, 63, v0")
    a("s_nop 0")
    a("v_readfirstlane_b32 s32, v1")
    a("v_lshrrev_b32 v3, 2, v0")
    a("v_and_b32 v4, 3, v0")
    a("v_lshlrev_b32 v5, 2, v0")
    a("s_mov_b32 s33, 28672")
    a("v_mul_lo_u32 v6, v3, s33")
    a("v_lshl_add_u32 v6, v4, 4, v6")
    a("v_lshlrev_b32 v7, 4, v2")
    a("s_waitcnt lgkmcnt(0)")
    stamp(a, 1)
    srd(a, 12, 4, 5, D * F * 2)
    srd(a, 16, 6, 7, D * F * 2)
    srd(a, 20, 8, 9, D * F * 2)
    srd(a, 24, 10, 11, 14 << 20)
    a(f"s_mov_b32 s34, {WS_CAND}")
    a("buffer_load_dword v8, v5, s[24:27], s34 offen")
    a("s_lshl_b32 s34, s2, 6")
    G, U, W = 32, 64, 96
    for j in range(8):
        a(f"s_add_u32 s35, s34, {3584 * j}")
        a(f"buffer_load_dwordx4 v[{G + 4 * j}:{G + 4 * j + 3}], v6, s[12:15], s35 offen")
        a(f"buffer_load_dwordx4 v[{U + 4 * j}:{U + 4 * j + 3}], v6, s[16:19], s35 offen")
    a("s_lshl_b32 s35, s2, 5")
    a("s_lshl_b32 s36, s32, 3")
    a("s_add_u32 s35, s35, s36")
    a("s_lshl_b32 s35, s35, 10")
    for j in range(8):
        a(f"s_add_u32 s36, s35, {1024 * j}")
        a(f"buffer_load_dwordx4 v[{W + 4 * j}:{W + 4 * j + 3}], v7, s[20:23], s36 offen")
    a("s_waitcnt vmcnt(24)")
    stamp(a, 2)
    emit_winner(a, 8, 12, 9, 38)
    stamp(a, 3)
    a("s_and_b32 s39, s38, 0xffff")
    a("s_sub_u32 s39, 2047, s39")
    a("s_lshr_b32 s39, s39, 3")
    a("s_lshl_b32 s39, s39, 11")
    a(f"s_add_u32 s39, s39, {WS_CROW + 1024}")
    a("v_lshlrev_b32 v9, 4, v3")
    a("v_add_u32 v9, s39, v9")
    a("buffer_load_dwordx4 v[12:15], v9, s[24:27], 0 offen")
    a("s_mov_b32 s53, 0xffff0000")
    A = 128
    for i in range(16):
        a(f"v_mov_b32 v{A + i}, 0")
    a("s_waitcnt vmcnt(0)")
    stamp(a, 4)
    X = 16
    for i in range(4):
        a(f"v_lshlrev_b32 v{X + 2 * i}, 16, v{12 + i}")
        a(f"v_and_b32 v{X + 2 * i + 1}, s53, v{12 + i}")
    for j in range(8):
        for (M, ao) in ((G, 0), (U, 8)):
            for i in range(4):
                t = 24 + 2 * (i & 1)
                a(f"v_lshlrev_b32 v{t}, 16, v{M + 4 * j + i}")
                a(f"v_and_b32 v{t + 1}, s53, v{M + 4 * j + i}")
                a(f"v_fmac_f32 v{A + ao + 2 * i}, v{X + j}, v{t}")
                a(f"v_fmac_f32 v{A + ao + 2 * i + 1}, v{X + j}, v{t + 1}")
    a("s_nop 1")
    for i in range(8):
        a(f"v_permlane32_swap_b32 v{A + i}, v{A + i + 8}")
    a("s_nop 1")
    for i in range(8):
        a(f"v_add_f32 v{A + i}, v{A + i}, v{A + i + 8}")
    a("s_nop 1")
    for i in range(4):
        a(f"v_permlane16_swap_b32 v{A + i}, v{A + i + 4}")
    a("s_nop 1")
    for i in range(4):
        a(f"v_add_f32 v{A + i}, v{A + i}, v{A + i + 4}")
    a("s_nop 1")
    for i in range(4):
        a(f"v_add_f32_dpp v{A + i}, v{A + i}, v{A + i} row_ror:4 {DPP}")
    a("s_nop 1")
    for i in range(4):
        a(f"v_add_f32_dpp v{A + i}, v{A + i}, v{A + i} row_ror:8 {DPP}")
    a("v_and_b32 v9, 3, v2")
    a("v_lshlrev_b32 v9, 5, v9")
    a("v_bfe_u32 v10, v2, 4, 1")
    a("v_lshl_add_u32 v9, v10, 4, v9")
    a("v_bfe_u32 v10, v2, 5, 1")
    a("v_lshl_add_u32 v9, v10, 7, v9")
    a("s_lshl_b32 s37, s32, 8")
    a("v_add_u32 v9, s37, v9")
    a(f"ds_write_b128 v9, v[{A}:{A + 3}] offset:64")
    a("s_waitcnt lgkmcnt(0)")
    a("s_barrier")
    stamp(a, 5)
    a("v_and_b32 v9, 31, v2")
    a("v_lshlrev_b32 v9, 2, v9")
    for w in range(4):
        a(f"ds_read_b32 v{16 + w}, v9 offset:{64 + 256 * w}")
        a(f"ds_read_b32 v{20 + w}, v9 offset:{64 + 256 * w + 128}")
    a("s_waitcnt lgkmcnt(0)")
    a("v_add_f32 v16, v16, v17")
    a("v_add_f32 v18, v18, v19")
    a("v_add_f32 v20, v20, v21")
    a("v_add_f32 v22, v22, v23")
    a("v_add_f32 v16, v16, v18")
    a("v_add_f32 v20, v20, v22")
    a("v_cvt_pk_bf16_f32 v16, v16, v20")
    a("v_and_b32 v20, s53, v16")
    a("v_lshlrev_b32 v16, 16, v16")
    a("v_mul_f32 v17, 0xbfb8aa3b, v16")
    a("v_exp_f32 v17, v17")
    a("s_nop 0")
    a("v_add_f32 v17, 1.0, v17")
    a("v_rcp_f32 v17, v17")
    a("s_nop 0")
    a("v_mul_f32 v16, v16, v17")
    a("v_cvt_pk_bf16_f32 v16, v16, v16")
    a("v_lshlrev_b32 v16, 16, v16")
    a("v_mul_f32 v16, v16, v20")
    a("v_cvt_pk_bf16_f32 v16, v16, v16")
    a("v_lshlrev_b32 v16, 16, v16")
    a("s_lshl_b32 s37, s32, 3")
    for j in range(8):
        a(f"s_add_u32 s36, s37, {j}")
        a("s_nop 0")
        a(f"v_readlane_b32 s{40 + j}, v16, s36")
    for i in range(8):
        a(f"v_mov_b32 v{A + i}, 0")
    a("s_nop 1")
    for j in range(8):
        for i in range(4):
            t = 24 + 2 * (i & 1)
            a(f"v_lshlrev_b32 v{t}, 16, v{W + 4 * j + i}")
            a(f"v_and_b32 v{t + 1}, s53, v{W + 4 * j + i}")
            a(f"v_fmac_f32 v{A + 2 * i}, s{40 + j}, v{t}")
            a(f"v_fmac_f32 v{A + 2 * i + 1}, s{40 + j}, v{t + 1}")
    a("v_lshlrev_b32 v9, 5, v2")
    a("s_lshl_b32 s37, s32, 11")
    a("v_add_u32 v9, s37, v9")
    a(f"ds_write_b128 v9, v[{A}:{A + 3}] offset:2048")
    a(f"ds_write_b128 v9, v[{A + 4}:{A + 7}] offset:2064")
    a("s_waitcnt lgkmcnt(0)")
    a("s_barrier")
    a("v_lshlrev_b32 v9, 3, v0")
    for w in range(4):
        a(f"ds_read_b64 v[{16 + 2 * w}:{17 + 2 * w}], v9 offset:{2048 + 2048 * w}")
    a("s_waitcnt lgkmcnt(0)")
    a("v_add_f32 v16, v16, v18")
    a("v_add_f32 v17, v17, v19")
    a("v_add_f32 v20, v20, v22")
    a("v_add_f32 v21, v21, v23")
    a("v_add_f32 v16, v16, v20")
    a("v_add_f32 v17, v17, v21")
    a("s_lshl_b32 s37, s2, 11")
    a(f"s_add_u32 s37, s37, {WS_SLAB}")
    a("buffer_store_dwordx2 v[16:17], v9, s[24:27], s37 offen")
    stamp_flush(a, 4, 6, 10, 11)
    a.label(f"{name}_done")
    a("s_endpgm")
    return kernel_desc(name, 144, 64, 144)


def gen_k3b(a, name, wpf=0):
    kernel_begin(a, name)
    a("s_cmp_ge_u32 s2, 256")
    a(f"s_cbranch_scc1 {name}_done")
    stamp(a, 0)
    a("s_load_dwordx2 s[4:5], s[0:1], 0")
    a("s_load_dwordx2 s[6:7], s[0:1], 48")
    a("s_load_dwordx2 s[8:9], s[0:1], 80")
    a("s_load_dwordx2 s[10:11], s[0:1], 96")
    if wpf:
        a("s_load_dwordx4 s[56:59], s[0:1], 56")
        a("s_load_dwordx2 s[60:61], s[0:1], 72")
    a("v_lshrrev_b32 v1, 6, v0")
    a("v_and_b32 v2, 63, v0")
    a("s_nop 0")
    a("v_readfirstlane_b32 s32, v1")
    a("v_lshlrev_b32 v3, 4, v2")
    a("s_lshl_b32 s33, s2, 3")
    a("s_add_u32 s33, s33, s32")
    a("s_lshl_b32 s34, s33, 10")
    a(f"s_add_u32 s35, s34, {WS_P}")
    a(f"s_add_u32 s36, s34, {WS_P + (4 << 20)}")
    a(f"s_add_u32 s43, s34, {WS_P + (2 << 20)}")
    a(f"s_add_u32 s44, s34, {WS_P + (6 << 20)}")
    a("s_mov_b32 s53, 0xffff0000")
    a("s_waitcnt lgkmcnt(0)")
    stamp(a, 1)
    srd(a, 24, 10, 11, 14 << 20)
    B = 16
    a(f"buffer_load_dwordx4 v[{B}:{B + 3}], v3, s[24:27], s35 offen")
    a(f"buffer_load_dwordx4 v[{B + 12}:{B + 15}], v3, s[24:27], s43 offen")
    a(f"buffer_load_dwordx4 v[{B + 4}:{B + 7}], v3, s[24:27], s36 offen")
    a(f"buffer_load_dwordx4 v[{B + 56}:{B + 59}], v3, s[24:27], s44 offen")
    srd(a, 12, 4, 5, S * D * 2)
    a(f"buffer_load_dwordx4 v[{B + 8}:{B + 11}], v3, s[12:15], s34 offen")
    srd(a, 16, 6, 7, D * 2)
    a("buffer_load_dwordx4 v[8:11], v3, s[16:19], 0 offen")
    if wpf:
        a("s_sub_u32 s45, s32, 5")
        a("s_min_u32 s45, s45, 3")
        emit_wtouch(a, "s45", 120, 121)
    srd(a, 20, 8, 9, S * D * 2)
    a(f"s_waitcnt vmcnt({2 if wpf else 1})")
    stamp(a, 2)

    def unpack(dst, src):
        a(f"v_lshlrev_b32 v{dst}, 16, v{src}")
        a(f"v_and_b32 v{dst + 1}, s53, v{src}")

    H = B + 16
    TT = [80 + 10 * i for i in range(4)]
    steps = []
    for i in range(4):
        T = TT[i]
        steps.append([
            f"v_lshlrev_b32 v{T}, 16, v{B + i}", f"v_and_b32 v{T + 1}, s53, v{B + i}",
            f"v_lshlrev_b32 v{T + 2}, 16, v{B + 12 + i}", f"v_and_b32 v{T + 3}, s53, v{B + 12 + i}",
            f"v_lshlrev_b32 v{T + 4}, 16, v{B + 4 + i}", f"v_and_b32 v{T + 5}, s53, v{B + 4 + i}",
            f"v_lshlrev_b32 v{T + 6}, 16, v{B + 56 + i}", f"v_and_b32 v{T + 7}, s53, v{B + 56 + i}",
            f"v_add_f32 v{T}, v{T}, v{T + 2}", f"v_add_f32 v{T + 1}, v{T + 1}, v{T + 3}",
            f"v_add_f32 v{T + 4}, v{T + 4}, v{T + 6}", f"v_add_f32 v{T + 5}, v{T + 5}, v{T + 7}",
            f"v_cvt_pk_bf16_f32 v{T + 8}, v{T}, v{T + 1}", f"v_cvt_pk_bf16_f32 v{T + 9}, v{T + 4}, v{T + 5}",
            f"v_lshlrev_b32 v{T}, 16, v{T + 8}", f"v_and_b32 v{T + 1}, s53, v{T + 8}",
            f"v_lshlrev_b32 v{T + 2}, 16, v{T + 9}", f"v_and_b32 v{T + 3}, s53, v{T + 9}",
            f"v_sub_f32 v{T}, v{T}, v{T + 2}", f"v_sub_f32 v{T + 1}, v{T + 1}, v{T + 3}",
            f"v_cvt_pk_bf16_f32 v{T + 4}, v{T}, v{T + 1}",
            f"v_lshlrev_b32 v{T}, 16, v{T + 4}", f"v_and_b32 v{T + 1}, s53, v{T + 4}",
            f"v_lshlrev_b32 v{T + 2}, 16, v{B + 8 + i}", f"v_and_b32 v{T + 3}, s53, v{B + 8 + i}",
            f"v_add_f32 v{T}, v{T + 2}, v{T}", f"v_add_f32 v{T + 1}, v{T + 3}, v{T + 1}",
            f"v_cvt_pk_bf16_f32 v{B + 40 + i}, v{T}, v{T + 1}",
            f"v_lshlrev_b32 v{H + 2 * i}, 16, v{B + 40 + i}", f"v_and_b32 v{H + 2 * i + 1}, s53, v{B + 40 + i}",
        ])
    for k in range(len(steps[0])):
        for i in range(4):
            a(steps[i][k])
    St = B + 48
    a(f"v_add_f32 v{St}, v{H}, v{H + 1}")
    a(f"v_add_f32 v{St + 1}, v{H + 2}, v{H + 3}")
    a(f"v_add_f32 v{St + 2}, v{H + 4}, v{H + 5}")
    a(f"v_add_f32 v{St + 3}, v{H + 6}, v{H + 7}")
    a(f"v_add_f32 v{St}, v{St}, v{St + 1}")
    a(f"v_add_f32 v{St + 2}, v{St + 2}, v{St + 3}")
    a(f"v_add_f32 v{St}, v{St}, v{St + 2}")
    wave_allreduce(a, "v_add_f32", St, St + 1)
    T = 80
    a(f"v_mul_f32 v{St}, 0x3b000000, v{St}")
    for i in range(8):
        a(f"v_sub_f32 v{T + i}, v{H + i}, v{St}")
    a(f"v_cvt_pk_bf16_f32 v{St + 1}, v{St}, v{St}")
    a(f"v_mul_f32 v{St + 2}, v{T}, v{T}")
    a(f"v_mul_f32 v{St + 3}, v{T + 1}, v{T + 1}")
    a(f"v_lshlrev_b32 v{St + 1}, 16, v{St + 1}")
    for i in range(2, 8, 2):
        a(f"v_fmac_f32 v{St + 2}, v{T + i}, v{T + i}")
        a(f"v_fmac_f32 v{St + 3}, v{T + i + 1}, v{T + i + 1}")
    a(f"v_add_f32 v{St + 2}, v{St + 2}, v{St + 3}")
    for i in range(8):
        a(f"v_sub_f32 v{T + 10 + i}, v{H + i}, v{St + 1}")
    for i in range(4):
        a(f"v_cvt_pk_bf16_f32 v{T + 20 + i}, v{T + 10 + 2 * i}, v{T + 11 + 2 * i}")
    for i in range(4):
        unpack(T + 10 + 2 * i, T + 20 + i)
    wave_allreduce(a, "v_add_f32", St + 2, St + 3)
    v = St + 2
    a(f"v_mul_f32 v{v}, 0x3b000000, v{v}")
    a(f"v_cvt_pk_bf16_f32 v{v}, v{v}, v{v}")
    a(f"v_lshlrev_b32 v{v}, 16, v{v}")
    a(f"v_add_f32 v{v}, 0x3727c5ac, v{v}")
    a(f"v_cvt_pk_bf16_f32 v{v}, v{v}, v{v}")
    a(f"v_lshlrev_b32 v{v}, 16, v{v}")
    a(f"v_sqrt_f32 v{v}, v{v}")
    a("s_nop 0")
    a(f"v_cvt_pk_bf16_f32 v{v}, v{v}, v{v}")
    a(f"v_lshlrev_b32 v{v}, 16, v{v}")
    a(f"v_rcp_f32 v{v}, v{v}")
    a(f"s_waitcnt vmcnt({1 if wpf else 0})")
    for i in range(8):
        a(f"v_mul_f32 v{T + 10 + i}, v{T + 10 + i}, v{v}")
    for i in range(4):
        a(f"v_cvt_pk_bf16_f32 v{B + 44 + i}, v{T + 10 + 2 * i}, v{T + 11 + 2 * i}")
    for i in range(4):
        unpack(T + 10 + 2 * i, B + 44 + i)
        unpack(T + 2 * i, 8 + i)
    a(f"v_mul_f32 v{St + 4}, v{T + 10}, v{T}")
    a(f"v_mul_f32 v{St + 5}, v{T + 11}, v{T + 1}")
    for i in range(2, 8, 2):
        a(f"v_fmac_f32 v{St + 4}, v{T + 10 + i}, v{T + i}")
        a(f"v_fmac_f32 v{St + 5}, v{T + 11 + i}, v{T + i + 1}")
    a(f"v_add_f32 v{St + 4}, v{St + 4}, v{St + 5}")
    for i in range(8):
        a(f"v_add_f32 v{T + 20 + i}, v{H + i}, v{T + 10 + i}")
    for i in range(4):
        a(f"v_cvt_pk_bf16_f32 v{B + 4 + i}, v{T + 20 + 2 * i}, v{T + 21 + 2 * i}")
    a(f"buffer_store_dwordx4 v[{B + 4}:{B + 7}], v3, s[20:23], s34 offen")
    wave_allreduce(a, "v_add_f32", St + 4, St + 5)
    v = St + 4
    a(f"v_cvt_pk_bf16_f32 v{v}, v{v}, v{v}")
    a(f"v_lshlrev_b32 v{v}, 16, v{v}")
    a(f"v_ashrrev_i32 v{v + 1}, 31, v{v}")
    a(f"v_or_b32 v{v + 1}, 0x80000000, v{v + 1}")
    a(f"v_xor_b32 v{v}, v{v}, v{v + 1}")
    a(f"v_and_b32 v{v}, s53, v{v}")
    a("s_sub_u32 s37, 2047, s33")
    a(f"v_or_b32 v{v}, s37, v{v}")
    a("s_lshl_b32 s37, s32, 2")
    a("v_mov_b32 v5, s37")
    a(f"ds_write_b32 v5, v{v}")
    stamp(a, 3)
    a("s_waitcnt lgkmcnt(0)")
    a("s_barrier")
    a("v_mov_b32 v5, 0")
    a("ds_read_b128 v[12:15], v5")
    a("ds_read_b128 v[80:83], v5 offset:16")
    a(f"v_readfirstlane_b32 s39, v{v}")
    a(f"s_lshl_b32 s41, s2, 11")
    a(f"s_add_u32 s41, s41, {WS_CROW}")
    a(f"s_lshl_b32 s42, s2, 2")
    a(f"s_add_u32 s42, s42, {WS_CAND}")
    a("s_waitcnt lgkmcnt(0)")
    a("v_max3_u32 v12, v12, v13, v14")
    a("v_max3_u32 v80, v80, v81, v82")
    a("v_max3_u32 v12, v12, v15, v83")
    a("v_max_u32 v12, v12, v80")
    a("s_nop 0")
    a("v_readfirstlane_b32 s38, v12")
    a("s_cmp_lg_u32 s38, s39")
    a(f"s_cbranch_scc1 {name}_nw")
    a(f"buffer_store_dwordx4 v[{B + 40}:{B + 43}], v3, s[24:27], s41 offen")
    a(f"buffer_store_dwordx4 v[{B + 44}:{B + 47}], v3, s[24:27], s41 offen offset:1024")
    a(f"buffer_store_dword v12, v5, s[24:27], s42 offen")
    a.label(f"{name}_nw")
    stamp_flush(a, 3, 4, 10, 11)
    a.label(f"{name}_done")
    a("s_endpgm")
    return kernel_desc(name, 128, 64, 128)


def emit_winner_wave(a, v4, t, s_out):
    a(f"v_max3_u32 v{v4}, v{v4}, v{v4 + 1}, v{v4 + 2}")
    a(f"v_max_u32 v{v4}, v{v4}, v{v4 + 3}")
    wave_allreduce(a, "v_max_u32", v4, t)
    a("s_nop 0")
    a(f"v_readfirstlane_b32 s{s_out}, v{v4}")


def gen_k4b(a, name):
    kernel_begin(a, name)
    a(f"s_cmp_ge_u32 s2, {NSL}")
    a(f"s_cbranch_scc1 {name}_done")
    stamp(a, 0)
    a("s_load_dwordx2 s[10:11], s[0:1], 96")
    a("s_load_dwordx4 s[4:7], s[0:1], 56")
    a("s_load_dwordx2 s[8:9], s[0:1], 72")
    a("v_lshrrev_b32 v1, 6, v0")
    a("v_and_b32 v2, 63, v0")
    a("s_nop 0")
    a("v_readfirstlane_b32 s32, v1")
    a("v_lshrrev_b32 v3, 2, v0")
    a("v_and_b32 v4, 3, v0")
    a("s_mov_b32 s33, 14336")
    a("v_mul_lo_u32 v6, v3, s33")
    a("v_lshl_add_u32 v6, v4, 4, v6")
    a("v_lshlrev_b32 v7, 4, v2")
    a("s_lshl_b32 s34, s2, 6")
    a("s_lshl_b32 s35, s2, 5")
    a("s_lshl_b32 s36, s32, 2")
    a("s_add_u32 s35, s35, s36")
    a("s_lshl_b32 s35, s35, 10")
    a(f"s_mov_b32 s37, {WS_CAND}")
    a("s_mov_b32 s53, 0xffff0000")
    a("s_waitcnt lgkmcnt(0)")
    stamp(a, 1)
    srd(a, 24, 10, 11, 14 << 20)
    a("buffer_load_dwordx4 v[8:11], v7, s[24:27], s37 offen")
    srd(a, 12, 4, 5, D * F * 2)
    srd(a, 16, 6, 7, D * F * 2)
    srd(a, 20, 8, 9, D * F * 2)
    G, U, W = 32, 48, 64
    for j in range(4):
        a(f"s_add_u32 s36, s34, {3584 * j}")
        a(f"buffer_load_dwordx4 v[{G + 4 * j}:{G + 4 * j + 3}], v6, s[12:15], s36 offen")
        a(f"buffer_load_dwordx4 v[{U + 4 * j}:{U + 4 * j + 3}], v6, s[16:19], s36 offen")
    a("s_waitcnt vmcnt(8)")
    stamp(a, 2)
    emit_winner_wave(a, 8, 12, 38)
    a("s_and_b32 s39, s38, 0xffff")
    a("s_sub_u32 s39, 2047, s39")
    a("s_lshr_b32 s39, s39, 3")
    a("s_lshl_b32 s39, s39, 11")
    a(f"s_add_u32 s39, s39, {WS_CROW + 1024}")
    a("v_lshlrev_b32 v9, 3, v3")
    a("v_add_u32 v9, s39, v9")
    a("buffer_load_dwordx2 v[12:13], v9, s[24:27], 0 offen")
    stamp(a, 3)
    for j in range(4):
        a(f"buffer_load_dwordx4 v[{W + 4 * j}:{W + 4 * j + 3}], v7, s[20:23], s35 offen offset:{1024 * j}")
    A = 96
    for i in range(16):
        a(f"v_mov_b32 v{A + i}, 0")
    a("s_waitcnt vmcnt(4)")
    stamp(a, 4)
    X = 16
    for i in range(2):
        a(f"v_lshlrev_b32 v{X + 2 * i}, 16, v{12 + i}")
        a(f"v_and_b32 v{X + 2 * i + 1}, s53, v{12 + i}")
    for j in range(4):
        for (M, ao) in ((G, 0), (U, 8)):
            for i in range(4):
                t = 24 + 2 * (i & 3)
                a(f"v_lshlrev_b32 v{t}, 16, v{M + 4 * j + i}")
                a(f"v_and_b32 v{t + 1}, s53, v{M + 4 * j + i}")
            for i in range(4):
                t = 24 + 2 * (i & 3)
                a(f"v_fmac_f32 v{A + ao + 2 * i}, v{X + j}, v{t}")
                a(f"v_fmac_f32 v{A + ao + 2 * i + 1}, v{X + j}, v{t + 1}")
    a("s_nop 1")
    for i in range(8):
        a(f"v_permlane32_swap_b32 v{A + i}, v{A + i + 8}")
    a("s_nop 1")
    for i in range(8):
        a(f"v_add_f32 v{A + i}, v{A + i}, v{A + i + 8}")
    a("s_nop 1")
    for i in range(4):
        a(f"v_permlane16_swap_b32 v{A + i}, v{A + i + 4}")
    a("s_nop 1")
    for i in range(4):
        a(f"v_add_f32 v{A + i}, v{A + i}, v{A + i + 4}")
    a("s_nop 1")
    for i in range(4):
        a(f"v_add_f32_dpp v{A + i}, v{A + i}, v{A + i} row_ror:4 {DPP}")
    a("s_nop 1")
    for i in range(4):
        a(f"v_add_f32_dpp v{A + i}, v{A + i}, v{A + i} row_ror:8 {DPP}")
    a("v_and_b32 v9, 3, v2")
    a("v_lshlrev_b32 v9, 5, v9")
    a("v_bfe_u32 v10, v2, 4, 1")
    a("v_lshl_add_u32 v9, v10, 4, v9")
    a("v_bfe_u32 v10, v2, 5, 1")
    a("v_lshl_add_u32 v9, v10, 7, v9")
    a("s_lshl_b32 s37, s32, 8")
    a("v_add_u32 v9, s37, v9")
    a(f"ds_write_b128 v9, v[{A}:{A + 3}]")
    a("s_waitcnt lgkmcnt(0)")
    a("s_barrier")
    stamp(a, 5)
    a("v_lshlrev_b32 v9, 2, v2")
    for w in range(8):
        a(f"ds_read_b32 v{16 + w}, v9 offset:{256 * w}")
    a("s_waitcnt lgkmcnt(0)")
    a("v_add_f32 v16, v16, v17")
    a("v_add_f32 v18, v18, v19")
    a("v_add_f32 v20, v20, v21")
    a("v_add_f32 v22, v22, v23")
    a("v_add_f32 v16, v16, v18")
    a("v_add_f32 v20, v20, v22")
    a("v_add_f32 v16, v16, v20")
    a("v_mov_b32 v20, v16")
    a("s_nop 1")
    a("v_permlane32_swap_b32 v16, v20")
    a("s_nop 1")
    a("v_cvt_pk_bf16_f32 v16, v16, v20")
    a("v_and_b32 v20, s53, v16")
    a("v_lshlrev_b32 v16, 16, v16")
    a("v_mul_f32 v17, 0xbfb8aa3b, v16")
    a("v_exp_f32 v17, v17")
    a("s_nop 0")
    a("v_add_f32 v17, 1.0, v17")
    a("v_rcp_f32 v17, v17")
    a("s_nop 0")
    a("v_mul_f32 v16, v16, v17")
    a("v_cvt_pk_bf16_f32 v16, v16, v16")
    a("v_lshlrev_b32 v16, 16, v16")
    a("v_mul_f32 v16, v16, v20")
    a("v_cvt_pk_bf16_f32 v16, v16, v16")
    a("v_lshlrev_b32 v16, 16, v16")
    a("s_lshl_b32 s37, s32, 2")
    for j in range(4):
        a(f"s_add_u32 s36, s37, {j}")
        a("s_nop 0")
        a(f"v_readlane_b32 s{40 + j}, v16, s36")
    a("s_waitcnt vmcnt(0)")
    for j in range(4):
        for i in range(4):
            t = 24 + 2 * i
            a(f"v_lshlrev_b32 v{t}, 16, v{W + 4 * j + i}")
            a(f"v_and_b32 v{t + 1}, s53, v{W + 4 * j + i}")
        for i in range(4):
            t = 24 + 2 * i
            if j == 0:
                a(f"v_mul_f32 v{A + 2 * i}, s{40 + j}, v{t}")
                a(f"v_mul_f32 v{A + 2 * i + 1}, s{40 + j}, v{t + 1}")
            else:
                a(f"v_fmac_f32 v{A + 2 * i}, s{40 + j}, v{t}")
                a(f"v_fmac_f32 v{A + 2 * i + 1}, s{40 + j}, v{t + 1}")
    a("v_lshlrev_b32 v9, 5, v2")
    a("s_lshl_b32 s37, s32, 11")
    a("v_add_u32 v9, s37, v9")
    a(f"ds_write_b128 v9, v[{A}:{A + 3}] offset:2048")
    a(f"ds_write_b128 v9, v[{A + 4}:{A + 7}] offset:2064")
    a("s_waitcnt lgkmcnt(0)")
    a("s_barrier")
    a("v_lshlrev_b32 v9, 2, v0")
    for w in range(8):
        a(f"ds_read_b32 v{16 + w}, v9 offset:{2048 + 2048 * w}")
    a("s_lshl_b32 s37, s2, 11")
    a(f"s_add_u32 s37, s37, {WS_SLAB}")
    a("s_waitcnt lgkmcnt(0)")
    a("v_add_f32 v16, v16, v17")
    a("v_add_f32 v18, v18, v19")
    a("v_add_f32 v20, v20, v21")
    a("v_add_f32 v22, v22, v23")
    a("v_add_f32 v16, v16, v18")
    a("v_add_f32 v20, v20, v22")
    a("v_add_f32 v16, v16, v20")
    a("buffer_store_dword v16, v9, s[24:27], s37 offen")
    stamp_flush(a, 4, 6, 10, 11)
    a.label(f"{name}_done")
    a("s_endpgm")
    return kernel_desc(name, 112, 64, 112)


WS_NONCE = 13 << 20
WS_ANN = WS_NONCE + 128
WS_KEYS = WS_NONCE + 4096
WS_ROWS = WS_NONCE + 8192
WS_SLABS = 15 << 20
WS_FLAG2 = (15 << 20) + (1 << 19)


KSLEEP, SSLEEP, FSLEEP, ASLEEP = 1, 1, 1, 8


def gen_kt(a, name, fused=0):
    SLOT = "s63" if fused else "s2"
    LP = " sc1" if fused else ""
    if not fused:
        kernel_begin(a, name)
        a("s_cmp_ge_u32 s2, 256")
        a(f"s_cbranch_scc1 {name}_done")
    stamp(a, 0)
    a("s_load_dwordx2 s[10:11], s[0:1], 96")
    a("s_load_dwordx2 s[4:5], s[0:1], 0")
    a("s_load_dwordx2 s[6:7], s[0:1], 48")
    a("s_load_dwordx2 s[8:9], s[0:1], 80")
    a("s_load_dwordx4 s[56:59], s[0:1], 56")
    a("s_load_dwordx2 s[60:61], s[0:1], 72")
    if fused:
        a("v_mbcnt_lo_u32_b32 v2, -1, 0")
        a("v_mbcnt_hi_u32_b32 v2, -1, v2")
        a("s_lshl_b32 s33, s32, 6")
        a("v_add_u32 v0, s33, v2")
    else:
        a("v_lshrrev_b32 v1, 6, v0")
        a("v_and_b32 v2, 63, v0")
        a("s_nop 0")
        a("v_readfirstlane_b32 s32, v1")
    a("v_lshlrev_b32 v3, 4, v2")
    a(f"s_lshl_b32 s33, {SLOT}, 3")
    a("s_add_u32 s33, s33, s32")
    a("s_lshl_b32 s34, s33, 10")
    a(f"s_add_u32 s35, s34, {WS_P}")
    a(f"s_add_u32 s36, s34, {WS_P + (4 << 20)}")
    a(f"s_add_u32 s43, s34, {WS_P + (2 << 20)}")
    a(f"s_add_u32 s44, s34, {WS_P + (6 << 20)}")
    a("s_mov_b32 s53, 0xffff0000")
    a("s_mov_b32 s69, 0x40000")
    a(f"s_mov_b32 s45, {WS_NONCE}")
    a("v_mov_b32 v5, 0")
    a("v_lshrrev_b32 v6, 2, v0")
    a("s_mov_b32 s46, 14336")
    a("v_mul_lo_u32 v7, v6, s46")
    a("v_and_b32 v4, 3, v0")
    a("v_lshl_add_u32 v7, v4, 4, v7")
    a("v_lshlrev_b32 v4, 5, v2")
    a("s_waitcnt lgkmcnt(0)")
    stamp(a, 1)
    srd(a, 24, 10, 11, 16 << 20)
    srd(a, 20, 8, 9, S * D * 2)
    P0, P2, XX, P1, P3 = 16, 20, 24, 28, 12

    def p_loads():
        a(f"buffer_load_dwordx4 v[{P0}:{P0 + 3}], v3, s[24:27], s35 offen{LP}")
        a(f"buffer_load_dwordx4 v[{P1}:{P1 + 3}], v3, s[24:27], s43 offen{LP}")
        a(f"buffer_load_dwordx4 v[{P2}:{P2 + 3}], v3, s[24:27], s36 offen{LP}")
        a(f"buffer_load_dwordx4 v[{P3}:{P3 + 3}], v3, s[24:27], s44 offen{LP}")

    if fused:
        a("buffer_load_dword v88, v5, s[24:27], s45 offen")
        srd(a, 12, 4, 5, S * D * 2)
        a(f"buffer_load_dwordx4 v[{XX}:{XX + 3}], v3, s[12:15], s34 offen")
        srd(a, 16, 6, 7, D * 2)
        a("buffer_load_dwordx4 v[8:11], v3, s[16:19], 0 offen")
        a("s_cmp_lg_u32 s32, 0")
        a(f"s_cbranch_scc1 {name}_nf")
        a("s_lshl_b32 s46, s63, 7")
        a(f"s_add_u32 s46, s46, {WS_FLAG2}")
        a("s_waitcnt vmcnt(2)")
        a("buffer_store_dword v88, v5, s[24:27], s46 offen sc0 sc1")
        a.label(f"{name}_nf")
        a("s_cmp_lg_u32 s32, 4")
        a(f"s_cbranch_scc1 {name}_np")
        a("s_lshr_b32 s46, s63, 4")
        a("s_lshl_b32 s46, s46, 11")
        a(f"s_add_u32 s46, s46, {WS_FLAG2}")
        a("v_and_b32 v56, 15, v2")
        a("v_lshlrev_b32 v56, 7, v56")
        a.label(f"{name}_fp")
        a("buffer_load_dword v57, v56, s[24:27], s46 offen sc1")
        a("s_waitcnt vmcnt(0)")
        a("v_cmp_ne_u32 vcc, v57, v88")
        a("s_or_b32 s47, vcc_lo, vcc_hi")
        a(f"s_cbranch_scc0 {name}_np")
        a(f"s_sleep {FSLEEP}")
        a("s_sub_u32 s69, s69, 1")
        a(f"s_cbranch_scc0 {name}_fp")
        a("s_mov_b32 s69, 0")
        a.label(f"{name}_np")
        a("s_barrier")
        p_loads()
    else:
        p_loads()
        srd(a, 12, 4, 5, S * D * 2)
        a(f"buffer_load_dwordx4 v[{XX}:{XX + 3}], v3, s[12:15], s34 offen")
        srd(a, 16, 6, 7, D * 2)
        a("buffer_load_dwordx4 v[8:11], v3, s[16:19], 0 offen")
        a("buffer_load_dword v88, v5, s[24:27], s45 offen")
    G, U = 96, 112
    a(f"s_waitcnt vmcnt({0 if fused else 2})")
    stamp(a, 2)

    def unpack(dst, src):
        a(f"v_lshlrev_b32 v{dst}, 16, v{src}")
        a(f"v_and_b32 v{dst + 1}, s53, v{src}")

    H, HP, HN, St = 32, 40, 44, 48
    for half in range(2):
        steps = []
        for ii in range(2):
            i = 2 * half + ii
            T = 56 + 10 * ii
            steps.append([
                f"v_lshlrev_b32 v{T}, 16, v{P0 + i}", f"v_and_b32 v{T + 1}, s53, v{P0 + i}",
                f"v_lshlrev_b32 v{T + 2}, 16, v{P1 + i}", f"v_and_b32 v{T + 3}, s53, v{P1 + i}",
                f"v_lshlrev_b32 v{T + 4}, 16, v{P2 + i}", f"v_and_b32 v{T + 5}, s53, v{P2 + i}",
                f"v_lshlrev_b32 v{T + 6}, 16, v{P3 + i}", f"v_and_b32 v{T + 7}, s53, v{P3 + i}",
                f"v_add_f32 v{T}, v{T}, v{T + 2}", f"v_add_f32 v{T + 1}, v{T + 1}, v{T + 3}",
                f"v_add_f32 v{T + 4}, v{T + 4}, v{T + 6}", f"v_add_f32 v{T + 5}, v{T + 5}, v{T + 7}",
                f"v_cvt_pk_bf16_f32 v{T + 8}, v{T}, v{T + 1}", f"v_cvt_pk_bf16_f32 v{T + 9}, v{T + 4}, v{T + 5}",
                f"v_lshlrev_b32 v{T}, 16, v{T + 8}", f"v_and_b32 v{T + 1}, s53, v{T + 8}",
                f"v_lshlrev_b32 v{T + 2}, 16, v{T + 9}", f"v_and_b32 v{T + 3}, s53, v{T + 9}",
                f"v_sub_f32 v{T}, v{T}, v{T + 2}", f"v_sub_f32 v{T + 1}, v{T + 1}, v{T + 3}",
                f"v_cvt_pk_bf16_f32 v{T + 4}, v{T}, v{T + 1}",
                f"v_lshlrev_b32 v{T}, 16, v{T + 4}", f"v_and_b32 v{T + 1}, s53, v{T + 4}",
                f"v_lshlrev_b32 v{T + 2}, 16, v{XX + i}", f"v_and_b32 v{T + 3}, s53, v{XX + i}",
                f"v_add_f32 v{T}, v{T + 2}, v{T}", f"v_add_f32 v{T + 1}, v{T + 3}, v{T + 1}",
                f"v_cvt_pk_bf16_f32 v{HP + i}, v{T}, v{T + 1}",
                f"v_lshlrev_b32 v{H + 2 * i}, 16, v{HP + i}", f"v_and_b32 v{H + 2 * i + 1}, s53, v{HP + i}",
            ])
        for k in range(len(steps[0])):
            for ii in range(2):
                a(steps[ii][k])
    a(f"v_add_f32 v{St}, v{H}, v{H + 1}")
    a(f"v_add_f32 v{St + 1}, v{H + 2}, v{H + 3}")
    a(f"v_add_f32 v{St + 2}, v{H + 4}, v{H + 5}")
    a(f"v_add_f32 v{St + 3}, v{H + 6}, v{H + 7}")
    a(f"v_add_f32 v{St}, v{St}, v{St + 1}")
    a(f"v_add_f32 v{St + 2}, v{St + 2}, v{St + 3}")
    a(f"v_add_f32 v{St}, v{St}, v{St + 2}")
    wave_allreduce(a, "v_add_f32", St, St + 1)
    T = 56
    a(f"v_mul_f32 v{St}, 0x3b000000, v{St}")
    for i in range(8):
        a(f"v_sub_f32 v{T + i}, v{H + i}, v{St}")
    a(f"v_cvt_pk_bf16_f32 v{St + 1}, v{St}, v{St}")
    a(f"v_mul_f32 v{St + 2}, v{T}, v{T}")
    a(f"v_mul_f32 v{St + 3}, v{T + 1}, v{T + 1}")
    a(f"v_lshlrev_b32 v{St + 1}, 16, v{St + 1}")
    for i in range(2, 8, 2):
        a(f"v_fmac_f32 v{St + 2}, v{T + i}, v{T + i}")
        a(f"v_fmac_f32 v{St + 3}, v{T + i + 1}, v{T + i + 1}")
    a(f"v_add_f32 v{St + 2}, v{St + 2}, v{St + 3}")
    for i in range(8):
        a(f"v_sub_f32 v{T + 10 + i}, v{H + i}, v{St + 1}")
    for i in range(4):
        a(f"v_cvt_pk_bf16_f32 v{T + 20 + i}, v{T + 10 + 2 * i}, v{T + 11 + 2 * i}")
    for i in range(4):
        unpack(T + 10 + 2 * i, T + 20 + i)
    wave_allreduce(a, "v_add_f32", St + 2, St + 3)
    v = St + 2
    a(f"v_mul_f32 v{v}, 0x3b000000, v{v}")
    a(f"v_cvt_pk_bf16_f32 v{v}, v{v}, v{v}")
    a(f"v_lshlrev_b32 v{v}, 16, v{v}")
    a(f"v_add_f32 v{v}, 0x3727c5ac, v{v}")
    a(f"v_cvt_pk_bf16_f32 v{v}, v{v}, v{v}")
    a(f"v_lshlrev_b32 v{v}, 16, v{v}")
    a(f"v_sqrt_f32 v{v}, v{v}")
    a("s_nop 0")
    a(f"v_cvt_pk_bf16_f32 v{v}, v{v}, v{v}")
    a(f"v_lshlrev_b32 v{v}, 16, v{v}")
    a(f"v_rcp_f32 v{v}, v{v}")
    a("s_waitcnt vmcnt(0)")
    for i in range(8):
        a(f"v_mul_f32 v{T + 10 + i}, v{T + 10 + i}, v{v}")
    for i in range(4):
        a(f"v_cvt_pk_bf16_f32 v{HN + i}, v{T + 10 + 2 * i}, v{T + 11 + 2 * i}")
    for i in range(4):
        unpack(T + 10 + 2 * i, HN + i)
        unpack(T + 2 * i, 8 + i)
    a(f"v_mul_f32 v{St + 4}, v{T + 10}, v{T}")
    a(f"v_mul_f32 v{St + 5}, v{T + 11}, v{T + 1}")
    for i in range(2, 8, 2):
        a(f"v_fmac_f32 v{St + 4}, v{T + 10 + i}, v{T + i}")
        a(f"v_fmac_f32 v{St + 5}, v{T + 11 + i}, v{T + i + 1}")
    a(f"v_add_f32 v{St + 4}, v{St + 4}, v{St + 5}")
    wave_allreduce(a, "v_add_f32", St + 4, St + 5)
    v = St + 4
    a(f"v_cvt_pk_bf16_f32 v{v}, v{v}, v{v}")
    a(f"v_lshlrev_b32 v{v}, 16, v{v}")
    a(f"v_ashrrev_i32 v{v + 1}, 31, v{v}")
    a(f"v_or_b32 v{v + 1}, 0x80000000, v{v + 1}")
    a(f"v_xor_b32 v{v}, v{v}, v{v + 1}")
    a(f"v_and_b32 v{v}, s53, v{v}")
    a("s_sub_u32 s37, 2047, s33")
    a(f"v_or_b32 v{v}, s37, v{v}")
    a("s_lshl_b32 s37, s32, 2")
    a("v_mov_b32 v89, s37")
    a(f"ds_write_b32 v89, v{v}")
    OUT = 84
    for i in range(8):
        a(f"v_add_f32 v{T + 20 + i}, v{H + i}, v{T + 10 + i}")
    for i in range(4):
        a(f"v_cvt_pk_bf16_f32 v{OUT + i}, v{T + 20 + 2 * i}, v{T + 21 + 2 * i}")
    for i in range(4):
        a(f"v_mov_b32 v{56 + 2 * i}, v{HP + i}")
        a(f"v_mov_b32 v{57 + 2 * i}, v88")
        a(f"v_mov_b32 v{64 + 2 * i}, v{HN + i}")
        a(f"v_mov_b32 v{65 + 2 * i}, v88")
    a(f"v_readfirstlane_b32 s39, v{v}")
    a("v_readfirstlane_b32 s50, v88")
    a(f"s_lshl_b32 s41, {SLOT}, 12")
    a(f"s_add_u32 s41, s41, {WS_ROWS}")
    a(f"s_lshl_b32 s42, {SLOT}, 3")
    a(f"s_add_u32 s42, s42, {WS_KEYS}")
    stamp(a, 3)
    a("s_waitcnt lgkmcnt(0)")
    a("s_barrier")
    a("ds_read_b128 v[72:75], v5")
    a("ds_read_b128 v[76:79], v5 offset:16")
    a("s_waitcnt lgkmcnt(0)")
    a("v_max3_u32 v72, v72, v73, v74")
    a("v_max3_u32 v76, v76, v77, v78")
    a("v_max3_u32 v72, v72, v75, v79")
    a("v_max_u32 v72, v72, v76")
    a("v_mov_b32 v73, v88")
    a("s_nop 0")
    a("v_readfirstlane_b32 s38, v72")
    a("s_mov_b32 s51, 0")
    a("s_cmp_lg_u32 s38, s39")
    a(f"s_cbranch_scc1 {name}_nc")
    a("s_mov_b32 s51, 1")
    a("buffer_store_dwordx2 v[72:73], v5, s[24:27], s42 offen sc0 sc1")
    a("buffer_store_dwordx4 v[64:67], v4, s[24:27], s41 offen offset:2048 sc0 sc1")
    a("buffer_store_dwordx4 v[68:71], v4, s[24:27], s41 offen offset:2064 sc0 sc1")
    a("buffer_store_dwordx4 v[56:59], v4, s[24:27], s41 offen sc0 sc1")
    a("buffer_store_dwordx4 v[60:63], v4, s[24:27], s41 offen offset:16 sc0 sc1")
    a(f"s_branch {name}_role")
    a.label(f"{name}_nc")
    a(f"buffer_store_dwordx4 v[{OUT}:{OUT + 3}], v3, s[20:23], s34 offen{OWT}")
    a.label(f"{name}_role")
    stamp(a, 4)
    a(f"s_cmp_lt_u32 s2, {NSL}")
    a(f"s_cbranch_scc1 {name}_needkeys")
    a("s_sub_u32 s52, s2, 64")
    a("s_cmp_lt_u32 s52, 16")
    a(f"s_cbranch_scc1 {name}_needkeys")
    a("s_cmp_eq_u32 s51, 0")
    a(f"s_cbranch_scc1 {name}_fin")
    a(f"s_mov_b32 s45, {WS_ANN}")
    a.label(f"{name}_annp")
    a(f"s_sleep {ASLEEP}")
    a("buffer_load_dwordx2 v[72:73], v5, s[24:27], s45 offen sc1")
    a("s_waitcnt vmcnt(0)")
    a("v_readfirstlane_b32 s46, v73")
    a("v_readfirstlane_b32 s38, v72")
    a("s_cmp_eq_u32 s46, s50")
    a(f"s_cbranch_scc1 {name}_annd")
    a("s_sub_u32 s69, s69, 1")
    a(f"s_cbranch_scc0 {name}_annp")
    a("s_mov_b32 s69, 0")
    a.label(f"{name}_annd")
    a("s_cmp_eq_u32 s38, s39")
    a(f"s_cbranch_scc1 {name}_fin")
    a(f"buffer_store_dwordx4 v[{OUT}:{OUT + 3}], v3, s[20:23], s34 offen{OWT}")
    a(f"s_branch {name}_fin")
    a.label(f"{name}_needkeys")
    W = 16
    a(f"s_cmp_lt_u32 s2, {NSL}")
    a(f"s_cbranch_scc0 {name}_nowd")
    a("s_barrier")
    srd(a, 12, 56, 57, D * F * 2)
    srd(a, 16, 58, 59, D * F * 2)
    a("s_lshl_b32 s48, s2, 6")
    for j in range(4):
        a(f"s_add_u32 s49, s48, {3584 * j}")
        a(f"buffer_load_dwordx4 v[{G + 4 * j}:{G + 4 * j + 3}], v7, s[12:15], s49 offen")
        a(f"buffer_load_dwordx4 v[{U + 4 * j}:{U + 4 * j + 3}], v7, s[16:19], s49 offen")
    srd(a, 28, 60, 61, D * F * 2)
    a("s_lshl_b32 s35, s2, 5")
    a("s_lshl_b32 s36, s32, 2")
    a("s_add_u32 s35, s35, s36")
    a("s_lshl_b32 s35, s35, 10")
    for j in range(4):
        a(f"buffer_load_dwordx4 v[{W + 4 * j}:{W + 4 * j + 3}], v3, s[28:31], s35 offen offset:{1024 * j}")
    a.label(f"{name}_nowd")
    a("s_cmp_lg_u32 s32, 0")
    a(f"s_cbranch_scc1 {name}_kw")
    a(f"s_mov_b32 s45, {WS_KEYS}")
    a.label(f"{name}_kp")
    a("buffer_load_dwordx4 v[56:59], v4, s[24:27], s45 offen sc1")
    a("buffer_load_dwordx4 v[60:63], v4, s[24:27], s45 offen offset:16 sc1")
    a("s_waitcnt vmcnt(0)")
    a("v_cmp_ne_u32 s[46:47], v57, v88")
    a("v_cmp_ne_u32 vcc, v59, v88")
    a("s_or_b64 s[46:47], s[46:47], vcc")
    a("v_cmp_ne_u32 vcc, v61, v88")
    a("s_or_b64 s[46:47], s[46:47], vcc")
    a("v_cmp_ne_u32 vcc, v63, v88")
    a("s_or_b64 s[46:47], s[46:47], vcc")
    a(f"s_cbranch_scc0 {name}_kd")
    a(f"s_sleep {KSLEEP}")
    a("s_sub_u32 s69, s69, 1")
    a(f"s_cbranch_scc0 {name}_kp")
    a("s_mov_b32 s69, 0")
    a.label(f"{name}_kd")
    a("v_max3_u32 v56, v56, v58, v60")
    a("v_max_u32 v56, v56, v62")
    wave_allreduce(a, "v_max_u32", 56, 57)
    a("ds_write_b32 v5, v56 offset:64")
    a("s_cmp_lg_u32 s2, 64")
    a(f"s_cbranch_scc1 {name}_noann")
    a("v_mov_b32 v57, v88")
    a(f"s_mov_b32 s45, {WS_ANN}")
    a("buffer_store_dwordx2 v[56:57], v5, s[24:27], s45 offen sc0 sc1")
    a.label(f"{name}_noann")
    a("s_waitcnt lgkmcnt(0)")
    a.label(f"{name}_kw")
    a("s_barrier")
    a("ds_read_b32 v56, v5 offset:64")
    a("s_waitcnt lgkmcnt(0)")
    a("v_readfirstlane_b32 s38, v56")
    stamp(a, 5)
    a("s_cmp_eq_u32 s51, 0")
    a(f"s_cbranch_scc1 {name}_nodef")
    a("s_cmp_eq_u32 s38, s39")
    a(f"s_cbranch_scc1 {name}_nodef")
    a(f"buffer_store_dwordx4 v[{OUT}:{OUT + 3}], v3, s[20:23], s34 offen{OWT}")
    a.label(f"{name}_nodef")
    a("s_and_b32 s39, s38, 0xffff")
    a("s_sub_u32 s39, 2047, s39")
    a("s_lshr_b32 s40, s39, 3")
    a("s_lshl_b32 s40, s40, 12")
    a(f"s_add_u32 s40, s40, {WS_ROWS}")
    a(f"s_cmp_lt_u32 s2, {NSL}")
    a(f"s_cbranch_scc0 {name}_red")
    a("v_lshlrev_b32 v9, 4, v6")
    a("v_add_u32 v9, s40, v9")
    A = 32
    a.label(f"{name}_xp")
    a("buffer_load_dwordx4 v[56:59], v9, s[24:27], 0 offen offset:2048 sc1")
    for i in range(16):
        a(f"v_mov_b32 v{A + i}, 0")
    a("s_waitcnt vmcnt(0)")
    a("v_cmp_ne_u32 s[46:47], v57, v88")
    a("v_cmp_ne_u32 vcc, v59, v88")
    a("s_or_b64 s[46:47], s[46:47], vcc")
    a(f"s_cbranch_scc0 {name}_xd")
    a("s_sub_u32 s69, s69, 1")
    a(f"s_cbranch_scc0 {name}_xp")
    a("s_mov_b32 s69, 0")
    a.label(f"{name}_xd")
    stamp(a, 6)
    X = 60
    a(f"v_lshlrev_b32 v{X}, 16, v56")
    a(f"v_and_b32 v{X + 1}, s53, v56")
    a(f"v_lshlrev_b32 v{X + 2}, 16, v58")
    a(f"v_and_b32 v{X + 3}, s53, v58")
    for j in range(4):
        for (M, ao) in ((G, 0), (U, 8)):
            for i in range(4):
                t = 64 + 2 * i
                a(f"v_lshlrev_b32 v{t}, 16, v{M + 4 * j + i}")
                a(f"v_and_b32 v{t + 1}, s53, v{M + 4 * j + i}")
            for i in range(4):
                t = 64 + 2 * i
                a(f"v_fmac_f32 v{A + ao + 2 * i}, v{X + j}, v{t}")
                a(f"v_fmac_f32 v{A + ao + 2 * i + 1}, v{X + j}, v{t + 1}")
    a("s_nop 1")
    for i in range(8):
        a(f"v_permlane32_swap_b32 v{A + i}, v{A + i + 8}")
    a("s_nop 1")
    for i in range(8):
        a(f"v_add_f32 v{A + i}, v{A + i}, v{A + i + 8}")
    a("s_nop 1")
    for i in range(4):
        a(f"v_permlane16_swap_b32 v{A + i}, v{A + i + 4}")
    a("s_nop 1")
    for i in range(4):
        a(f"v_add_f32 v{A + i}, v{A + i}, v{A + i + 4}")
    a("s_nop 1")
    for i in range(4):
        a(f"v_add_f32_dpp v{A + i}, v{A + i}, v{A + i} row_ror:4 {DPP}")
    a("s_nop 1")
    for i in range(4):
        a(f"v_add_f32_dpp v{A + i}, v{A + i}, v{A + i} row_ror:8 {DPP}")
    a("v_and_b32 v9, 3, v2")
    a("v_lshlrev_b32 v9, 5, v9")
    a("v_bfe_u32 v10, v2, 4, 1")
    a("v_lshl_add_u32 v9, v10, 4, v9")
    a("v_bfe_u32 v10, v2, 5, 1")
    a("v_lshl_add_u32 v9, v10, 7, v9")
    a("s_lshl_b32 s37, s32, 8")
    a("v_add_u32 v9, s37, v9")
    a(f"ds_write_b128 v9, v[{A}:{A + 3}] offset:128")
    a("s_waitcnt lgkmcnt(0)")
    a("s_barrier")
    a("v_lshlrev_b32 v9, 2, v2")
    for w in range(8):
        a(f"ds_read_b32 v{56 + w}, v9 offset:{128 + 256 * w}")
    a("s_waitcnt lgkmcnt(0)")
    a("v_add_f32 v56, v56, v57")
    a("v_add_f32 v58, v58, v59")
    a("v_add_f32 v60, v60, v61")
    a("v_add_f32 v62, v62, v63")
    a("v_add_f32 v56, v56, v58")
    a("v_add_f32 v60, v60, v62")
    a("v_add_f32 v56, v56, v60")
    a("v_mov_b32 v60, v56")
    a("s_nop 1")
    a("v_permlane32_swap_b32 v56, v60")
    a("s_nop 1")
    a("v_cvt_pk_bf16_f32 v56, v56, v60")
    a("v_and_b32 v60, s53, v56")
    a("v_lshlrev_b32 v56, 16, v56")
    a("v_mul_f32 v57, 0xbfb8aa3b, v56")
    a("v_exp_f32 v57, v57")
    a("s_nop 0")
    a("v_add_f32 v57, 1.0, v57")
    a("v_rcp_f32 v57, v57")
    a("s_nop 0")
    a("v_mul_f32 v56, v56, v57")
    a("v_cvt_pk_bf16_f32 v56, v56, v56")
    a("v_lshlrev_b32 v56, 16, v56")
    a("v_mul_f32 v56, v56, v60")
    a("v_cvt_pk_bf16_f32 v56, v56, v56")
    a("v_lshlrev_b32 v56, 16, v56")
    a("s_lshl_b32 s37, s32, 2")
    for j in range(4):
        a(f"s_add_u32 s36, s37, {j}")
        a("s_nop 0")
        a(f"v_readlane_b32 s{40 + j}, v56, s36")
    for j in range(4):
        for i in range(4):
            t = 64 + 2 * i
            a(f"v_lshlrev_b32 v{t}, 16, v{W + 4 * j + i}")
            a(f"v_and_b32 v{t + 1}, s53, v{W + 4 * j + i}")
        for i in range(4):
            t = 64 + 2 * i
            if j == 0:
                a(f"v_mul_f32 v{A + 2 * i}, s{40 + j}, v{t}")
                a(f"v_mul_f32 v{A + 2 * i + 1}, s{40 + j}, v{t + 1}")
            else:
                a(f"v_fmac_f32 v{A + 2 * i}, s{40 + j}, v{t}")
                a(f"v_fmac_f32 v{A + 2 * i + 1}, s{40 + j}, v{t + 1}")
    a("s_lshl_b32 s37, s32, 11")
    a("v_add_u32 v9, s37, v4")
    a(f"ds_write_b128 v9, v[{A}:{A + 3}] offset:4096")
    a(f"ds_write_b128 v9, v[{A + 4}:{A + 7}] offset:4112")
    a("s_waitcnt lgkmcnt(0)")
    a("s_barrier")
    a("v_lshlrev_b32 v9, 2, v0")
    for w in range(8):
        a(f"ds_read_b32 v{56 + w}, v9 offset:{4096 + 2048 * w}")
    a("s_lshl_b32 s37, s2, 12")
    a(f"s_add_u32 s37, s37, {WS_SLABS}")
    a("v_lshlrev_b32 v9, 3, v0")
    a("s_waitcnt lgkmcnt(0)")
    a("v_add_f32 v56, v56, v57")
    a("v_add_f32 v58, v58, v59")
    a("v_add_f32 v60, v60, v61")
    a("v_add_f32 v62, v62, v63")
    a("v_add_f32 v56, v56, v58")
    a("v_add_f32 v60, v60, v62")
    a("v_add_f32 v56, v56, v60")
    a("v_mov_b32 v57, v88")
    a("buffer_store_dwordx2 v[56:57], v9, s[24:27], s37 offen sc0 sc1")
    stamp(a, 7)
    a(f"s_branch {name}_fin2")
    a.label(f"{name}_red")
    a("v_lshrrev_b32 v8, 4, v0")
    a("v_and_b32 v9, 15, v0")
    a("s_lshl_b32 s41, s52, 8")
    a(f"s_add_u32 s42, s41, {WS_SLABS}")
    a("v_lshlrev_b32 v10, 12, v8")
    a("v_lshl_add_u32 v10, v9, 4, v10")
    a("v_add_u32 v11, 0x20000, v10")
    a("v_cmp_gt_u32 s[54:55], 24, v8")
    a("s_nop 1")
    a("v_cndmask_b32 v11, v10, v11, s[54:55]")
    a("s_lshl_b32 s43, s52, 7")
    a("s_add_u32 s43, s43, s40")
    a("v_lshlrev_b32 v12, 3, v9")
    a("v_add_u32 v12, s43, v12")
    a("s_and_b32 s44, s38, 0xffff0000")
    a("s_xor_b32 s45, s44, 0x80000000")
    a("s_not_b32 s46, s44")
    a("s_and_b32 s46, s46, 0xffff0000")
    a("s_cmp_ge_u32 s44, 0x80000000")
    a("s_cselect_b32 s44, s45, s46")
    a("v_mov_b32 v13, s44")
    a("v_mul_f32 v13, 0xbfb8aa3b, v13")
    a("v_exp_f32 v13, v13")
    a("s_nop 0")
    a("v_add_f32 v13, 1.0, v13")
    a("v_rcp_f32 v13, v13")
    a("s_nop 0")
    a("v_cvt_pk_bf16_f32 v13, v13, v13")
    a("v_lshlrev_b32 v13, 16, v13")
    a.label(f"{name}_sp")
    a("buffer_load_dwordx4 v[56:59], v10, s[24:27], s42 offen sc1")
    a("buffer_load_dwordx4 v[60:63], v11, s[24:27], s42 offen sc1")
    a("buffer_load_dwordx2 v[64:65], v12, s[24:27], 0 offen sc1")
    a("buffer_load_dwordx2 v[66:67], v12, s[24:27], 0 offen offset:2048 sc1")
    a("s_waitcnt vmcnt(0)")
    a("v_cmp_ne_u32 s[46:47], v57, v88")
    for r in (59, 61, 63, 65, 67):
        a(f"v_cmp_ne_u32 vcc, v{r}, v88")
        a("s_or_b64 s[46:47], s[46:47], vcc")
    a(f"s_cbranch_scc0 {name}_sd")
    a(f"s_sleep {SSLEEP}")
    a("s_sub_u32 s69, s69, 1")
    a(f"s_cbranch_scc0 {name}_sp")
    a("s_mov_b32 s69, 0")
    a.label(f"{name}_sd")
    stamp(a, 6)
    a("v_cndmask_b32 v60, 0, v60, s[54:55]")
    a("v_cndmask_b32 v62, 0, v62, s[54:55]")
    a("v_add_f32 v56, v56, v60")
    a("v_add_f32 v57, v58, v62")
    for sw in ("v_permlane16_swap_b32", "v_permlane32_swap_b32"):
        a("v_mov_b32 v58, v56")
        a("v_mov_b32 v59, v57")
        a("s_nop 1")
        a(f"{sw} v56, v58")
        a(f"{sw} v57, v59")
        a("s_nop 1")
        a("v_add_f32 v56, v56, v58")
        a("v_add_f32 v57, v57, v59")
    a("v_lshlrev_b32 v10, 3, v9")
    a("s_lshl_b32 s37, s32, 7")
    a("v_add_u32 v11, s37, v10")
    a("ds_write_b64 v11, v[56:57] offset:128")
    a("s_waitcnt lgkmcnt(0)")
    a("s_barrier")
    a("s_cmp_lg_u32 s32, 0")
    a(f"s_cbranch_scc1 {name}_fin2")
    for w in range(8):
        a(f"ds_read_b64 v[{32 + 2 * w}:{33 + 2 * w}], v10 offset:{128 + 128 * w}")
    a("s_waitcnt lgkmcnt(0)")
    for (d, s1) in ((32, 34), (36, 38), (40, 42), (44, 46), (32, 36), (40, 44), (32, 40)):
        a(f"v_add_f32 v{d}, v{d}, v{s1}")
        a(f"v_add_f32 v{d + 1}, v{d + 1}, v{s1 + 1}")
    y0, y1 = 32, 33
    a(f"v_cvt_pk_bf16_f32 v48, v{y0}, v{y1}")
    a(f"v_lshlrev_b32 v{y0}, 16, v48")
    a(f"v_and_b32 v{y1}, s53, v48")
    a(f"v_mul_f32 v{y0}, v{y0}, v13")
    a(f"v_mul_f32 v{y1}, v{y1}, v13")
    a(f"v_cvt_pk_bf16_f32 v48, v{y0}, v{y1}")
    a(f"v_lshlrev_b32 v{y0}, 16, v48")
    a(f"v_and_b32 v{y1}, s53, v48")
    a("v_lshlrev_b32 v49, 16, v66")
    a("v_and_b32 v50, s53, v66")
    a(f"v_add_f32 v{y0}, v49, v{y0}")
    a(f"v_add_f32 v{y1}, v50, v{y1}")
    a(f"v_cvt_pk_bf16_f32 v48, v{y0}, v{y1}")
    a(f"v_lshlrev_b32 v{y0}, 16, v48")
    a(f"v_and_b32 v{y1}, s53, v48")
    a("v_lshlrev_b32 v49, 16, v64")
    a("v_and_b32 v50, s53, v64")
    a(f"v_add_f32 v{y0}, v49, v{y0}")
    a(f"v_add_f32 v{y1}, v50, v{y1}")
    a(f"v_cvt_pk_bf16_f32 v48, v{y0}, v{y1}")
    a("s_lshl_b32 s39, s39, 10")
    a("s_lshl_b32 s41, s52, 6")
    a("s_add_u32 s39, s39, s41")
    a("v_lshlrev_b32 v10, 2, v9")
    a("v_add_u32 v10, s39, v10")
    a(f"buffer_store_dword v48, v10, s[20:23], 0 offen{OWT}")
    stamp(a, 7)
    a.label(f"{name}_fin2")
    a.label(f"{name}_fin")
    stamp_flush(a, 3, 8, 10, 11)
    if fused:
        return None
    a.label(f"{name}_done")
    a("s_endpgm")
    return kernel_desc(name, 128, 72, 128)


def gen_k5(a, name):
    kernel_begin(a, name)
    a("s_cmp_ge_u32 s2, 16")
    a(f"s_cbranch_scc1 {name}_done")
    stamp(a, 0)
    a("s_load_dwordx2 s[8:9], s[0:1], 80")
    a("s_load_dwordx2 s[10:11], s[0:1], 96")
    a("v_lshrrev_b32 v1, 6, v0")
    a("v_and_b32 v2, 63, v0")
    a("s_nop 0")
    a("v_readfirstlane_b32 s32, v1")
    a("v_lshlrev_b32 v5, 2, v0")
    a("v_lshrrev_b32 v3, 3, v0")
    a("v_and_b32 v4, 7, v0")
    a("v_lshlrev_b32 v6, 11, v3")
    a("v_lshl_add_u32 v6, v4, 4, v6")
    a("s_waitcnt lgkmcnt(0)")
    stamp(a, 1)
    srd(a, 20, 8, 9, S * D * 2)
    srd(a, 24, 10, 11, 14 << 20)
    srd(a, 28, 10, 11, WS_SLAB + NSL * 2048)
    a(f"s_mov_b32 s34, {WS_CAND}")
    a("buffer_load_dword v8, v5, s[24:27], s34 offen")
    a("s_lshl_b32 s34, s2, 7")
    a(f"s_add_u32 s34, s34, {WS_SLAB}")
    a("s_add_u32 s35, s34, 65536")
    a("buffer_load_dwordx4 v[16:19], v6, s[28:31], s34 offen")
    a("buffer_load_dwordx4 v[20:23], v6, s[28:31], s35 offen")
    a("s_waitcnt vmcnt(2)")
    stamp(a, 2)
    emit_winner(a, 8, 12, 9, 38)
    a("s_and_b32 s39, s38, 0xffff")
    a("s_sub_u32 s39, 2047, s39")
    a("s_lshr_b32 s40, s39, 3")
    a("s_lshl_b32 s40, s40, 11")
    a(f"s_add_u32 s40, s40, {WS_CROW}")
    a("s_lshl_b32 s41, s2, 6")
    a("s_add_u32 s40, s40, s41")
    a("v_lshlrev_b32 v9, 3, v4")
    a("v_add_u32 v9, s40, v9")
    a("buffer_load_dwordx2 v[24:25], v9, s[24:27], 0 offen")
    a("buffer_load_dwordx2 v[26:27], v9, s[24:27], 0 offen offset:1024")
    a("s_waitcnt vmcnt(2)")
    for i in range(4):
        a(f"v_add_f32 v{16 + i}, v{16 + i}, v{20 + i}")
    a("s_nop 1")
    for i in range(4):
        a(f"v_add_f32_dpp v{16 + i}, v{16 + i}, v{16 + i} row_ror:8 {DPP}")
    for i in range(4):
        a(f"v_mov_b32 v{20 + i}, v{16 + i}")
    a("s_nop 1")
    for i in range(4):
        a(f"v_permlane16_swap_b32 v{16 + i}, v{20 + i}")
    a("s_nop 1")
    for i in range(4):
        a(f"v_add_f32 v{16 + i}, v{16 + i}, v{20 + i}")
    for i in range(4):
        a(f"v_mov_b32 v{20 + i}, v{16 + i}")
    a("s_nop 1")
    for i in range(4):
        a(f"v_permlane32_swap_b32 v{16 + i}, v{20 + i}")
    a("s_nop 1")
    for i in range(4):
        a(f"v_add_f32 v{16 + i}, v{16 + i}, v{20 + i}")
    a("v_lshlrev_b32 v10, 4, v4")
    a("s_lshl_b32 s37, s32, 7")
    a("v_add_u32 v11, s37, v10")
    a("ds_write_b128 v11, v[16:19] offset:64")
    a("s_waitcnt lgkmcnt(0)")
    a("s_barrier")
    for w in range(4):
        a(f"ds_read_b128 v[{32 + 4 * w}:{35 + 4 * w}], v10 offset:{64 + 128 * w}")
    a("s_and_b32 s42, s38, 0xffff0000")
    a("s_xor_b32 s43, s42, 0x80000000")
    a("s_not_b32 s44, s42")
    a("s_and_b32 s44, s44, 0xffff0000")
    a("s_cmp_ge_u32 s42, 0x80000000")
    a("s_cselect_b32 s42, s43, s44")
    a("v_mov_b32 v12, s42")
    a("v_mul_f32 v13, 0xbfb8aa3b, v12")
    a("v_exp_f32 v13, v13")
    a("s_nop 0")
    a("v_add_f32 v13, 1.0, v13")
    a("v_rcp_f32 v13, v13")
    a("s_nop 0")
    a("v_cvt_pk_bf16_f32 v13, v13, v13")
    a("v_lshlrev_b32 v13, 16, v13")
    a("s_mov_b32 s53, 0xffff0000")
    a("s_waitcnt vmcnt(0) lgkmcnt(0)")
    stamp(a, 3)
    for i in range(4):
        a(f"v_add_f32 v{32 + i}, v{32 + i}, v{36 + i}")
        a(f"v_add_f32 v{40 + i}, v{40 + i}, v{44 + i}")
        a(f"v_add_f32 v{32 + i}, v{32 + i}, v{40 + i}")
    for i in range(2):
        y0, y1 = 32 + 2 * i, 33 + 2 * i
        a(f"v_cvt_pk_bf16_f32 v48, v{y0}, v{y1}")
        a(f"v_lshlrev_b32 v{y0}, 16, v48")
        a(f"v_and_b32 v{y1}, s53, v48")
        a(f"v_mul_f32 v{y0}, v{y0}, v13")
        a(f"v_mul_f32 v{y1}, v{y1}, v13")
        a(f"v_cvt_pk_bf16_f32 v48, v{y0}, v{y1}")
        a(f"v_lshlrev_b32 v{y0}, 16, v48")
        a(f"v_and_b32 v{y1}, s53, v48")
        a(f"v_lshlrev_b32 v49, 16, v{26 + i}")
        a(f"v_and_b32 v50, s53, v{26 + i}")
        a(f"v_add_f32 v{y0}, v49, v{y0}")
        a(f"v_add_f32 v{y1}, v50, v{y1}")
        a(f"v_cvt_pk_bf16_f32 v48, v{y0}, v{y1}")
        a(f"v_lshlrev_b32 v{y0}, 16, v48")
        a(f"v_and_b32 v{y1}, s53, v48")
        a(f"v_lshlrev_b32 v49, 16, v{24 + i}")
        a(f"v_and_b32 v50, s53, v{24 + i}")
        a(f"v_add_f32 v{y0}, v49, v{y0}")
        a(f"v_add_f32 v{y1}, v50, v{y1}")
        a(f"v_cvt_pk_bf16_f32 v{52 + i}, v{y0}, v{y1}")
    a("s_lshl_b32 s39, s39, 10")
    a("s_add_u32 s39, s39, s41")
    a("v_lshlrev_b32 v9, 3, v4")
    a("v_add_u32 v9, s39, v9")
    a("v_cmp_gt_u32 vcc, 8, v0")
    a("s_and_saveexec_b64 s[46:47], vcc")
    a(f"s_cbranch_execz {name}_fin")
    a("buffer_store_dwordx2 v[52:53], v9, s[20:23], 0 offen")
    a.label(f"{name}_fin")
    a("s_mov_b64 exec, -1")
    stamp_flush(a, 5, 4, 10, 11)
    a.label(f"{name}_done")
    a("s_endpgm")
    return kernel_desc(name, 64, 64, 64)


HEADER = open(__file__.rsplit("/", 1)[0] + "/cdna_kernels/" + NAME + ".s.ref").read().split("; Override launch")[0]


def build(path, **opt):
    global STAMP, KSLEEP, SSLEEP, FSLEEP, ASLEEP, ESLEEP, OWT
    ESLEEP = opt.get('es', 4)
    OWT = {0: '', 1: ' sc0 sc1', 2: ' nt'}[opt.get('owt', 0)]
    STAMP = opt.get('stamp', 0)
    KSLEEP, SSLEEP, FSLEEP, ASLEEP = opt.get('ks', 1), opt.get('ss', 1), opt.get('fs', 1), opt.get('as', 8)
    a = Asm()
    only = opt.get("only", 0)
    launches = [
        ("k1_kernel", 256, 512, 163840),
        ("k2_kernel", 256, 512, 163840),
        ("k3_kernel", 256, 512, 64),
        ("k4_kernel", NSL, 512, 18432),
        ("k5_kernel", 16, 256, 1024),
    ]
    if opt.get("fused", 1) == 1:
        launches = launches[:2] + [("kt_kernel", 256, 512, 4096 + 16384)]
    if opt.get("fused", 1) == 2:
        launches = launches[:2]
    if opt.get("f12", 1):
        launches = launches[:1] + launches[2:]
    if only:
        launches = [launches[int(ch) - 1] for ch in str(only)]
    hdr = HEADER
    for (k, g, b, l) in launches:
        hdr += f"; @launch kernel={k} grid=({g},1,1) block=({b},1,1) lds={l}\n"
    a.raw('.amdgcn_target "amdgcn-amd-amdhsa--gfx950"')
    descs = []
    if opt.get("k1g", 0):
        descs.append(gen_k1g(a, "k1_kernel", wt=opt.get("wt1", 1), PRO=opt.get("PRO1", 3), U1=opt.get("U1", 11), wk=opt.get("wk1", 1), cpf=opt.get("cpf", 1), SPOS=opt.get("SPOS", 0), NPOS=opt.get("NPOS", 1)))
    else:
        descs.append(gen_k1e(a, "k1_kernel", wt=opt.get("wt1", 1), PRO=opt.get("PRO1", 3), pf=opt.get("prefetch", 1), pace=opt.get("pace", 1), U1=opt.get("U1", 10), U2=opt.get("U2", 12), pfq=opt.get("pfq", 2), pol=opt.get("pol1", 0), ppol=opt.get("ppol", 0), tlb=opt.get("tlb", 0), UC=opt.get("UC", 13), vst=opt.get("vst", 0), swap=opt.get("swap", 1), wk1=opt.get("wk1", 1), early=opt.get("early", 0), fuse2=((lambda a, n: gen_k2c(a, n, LA=opt.get("LA", 1), wt=opt.get("wt2", 1), PRO=opt.get("PRO2", 3), rot=opt.get("rot", 1), BARPOS=opt.get("BARPOS", 1), RSTEP=opt.get("RSTEP", 1), wpf=opt.get("wpf", 0), wpf2=opt.get("wpf2", 16), pol=opt.get("pol2", 0), fuse3=(opt.get("fused", 1) == 2), etouch=opt.get("etouch", 0), swap=opt.get("swap", 1), cw=opt.get("cw", -1), fused_in=1)) if opt.get("f12", 1) else None)))
    if not opt.get("f12", 1):
        descs.append(gen_k2c(a, "k2_kernel", LA=opt.get("LA", 1), wt=opt.get("wt2", 1), PRO=opt.get("PRO2", 3), rot=opt.get("rot", 1), BARPOS=opt.get("BARPOS", 1), RSTEP=opt.get("RSTEP", 1), wpf=opt.get("wpf", 0), wpf2=opt.get("wpf2", 16), pol=opt.get("pol2", 0), fuse3=(opt.get("fused", 1) == 2), etouch=opt.get("etouch", 0), swap=opt.get("swap", 1), cw=opt.get("cw", -1)))
    if opt.get("fused", 1) == 1:
        descs.append(gen_kt(a, "kt_kernel"))
    elif opt.get("fused", 1) == 0:
        descs.append(gen_k3b(a, "k3_kernel", wpf=opt.get("wpf3", 0)))
        descs.append(gen_k4b(a, "k4_kernel"))
        descs.append(gen_k5(a, "k5_kernel"))
    open(path, "w").write(hdr + a.text() + "".join(descs))


if __name__ == "__main__":
    out = sys.argv[1] if len(sys.argv) > 1 else "cdna_kernels/" + NAME + ".s"
    opt = {}
    for kv in sys.argv[2:]:
        k, v = kv.split("=")
        opt[k] = int(v)
    build(out, **opt)
```

```python
import sys

NAME = "sequential_preLN__spectral_fnet__moe_arch_mod__prompt"

WS_AT = 0
WS_Y = 4 << 20
WS_CAND = 12 << 20
WS_CROW = (12 << 20) + 4096
WS_SLAB = (13 << 20)
WS_SIZE = 268435456

S, D, F = 2048, 512, 1792


class Asm:
    def __init__(self):
        self.lines = []

    def __call__(self, s):
        self.lines.append("    " + s)

    def label(self, l):
        self.lines.append(l + ":")

    def raw(self, s):
        self.lines.append(s)

    def text(self):
        return "\n".join(self.lines) + "\n"


class VM:
    def __init__(self, a):
        self.a = a
        self.q = []

    def issue(self, tag):
        self.q.append(tag)

    def wait(self, tag):
        idx = max(i for i, t in enumerate(self.q) if t == tag) if tag in self.q else None
        if idx is None:
            return
        n = len(self.q) - 1 - idx
        assert n <= 63
        self.a(f"s_waitcnt vmcnt({n})")
        self.q = self.q[idx + 1:]

    def wait_all(self):
        self.a("s_waitcnt vmcnt(0)")
        self.q = []


def srd(a, d, lo, hi, nbytes):
    a(f"s_mov_b32 s{d}, s{lo}")
    a(f"s_and_b32 s{d+1}, s{hi}, 0xffff")
    a(f"s_mov_b32 s{d+2}, {nbytes}")
    a(f"s_mov_b32 s{d+3}, 0x00020000")


def kernel_begin(a, name):
    a.raw(".text")
    a.raw(f".globl {name}")
    a.raw(".p2align 8")
    a.raw(f".type {name},@function")
    a.label(name)


def kernel_desc(name, vgpr, sgpr, accum):
    return f""".section .rodata,"a"
.p2align 6
.amdhsa_kernel {name}
  .amdhsa_next_free_vgpr {vgpr}
  .amdhsa_next_free_sgpr {102 if STAMP else sgpr}
  .amdhsa_accum_offset {accum}
  .amdhsa_group_segment_fixed_size 0
  .amdhsa_kernarg_size 104
  .amdhsa_user_sgpr_count 2
  .amdhsa_user_sgpr_kernarg_segment_ptr 1
  .amdhsa_system_sgpr_workgroup_id_x 1
  .amdhsa_float_denorm_mode_32 3
.end_amdhsa_kernel
"""


STAMP = 0
WS_STAMP = 16 << 20
_stamp_kid = {}


def stamp(a, i):
    if STAMP == 1:
        a(f"s_memrealtime s[{70 + 2 * i}:{71 + 2 * i}]")
    elif STAMP == 2:
        a(f"s_memtime s[{70 + 2 * i}:{71 + 2 * i}]")


def stamp_flush(a, kid, n, ws_lo, ws_hi, wave_sgpr="s32"):
    if not STAMP:
        return
    a("s_waitcnt vmcnt(0) lgkmcnt(0)")
    stamp(a, n)
    a(f"s_mov_b32 s92, s{ws_lo}")
    a(f"s_and_b32 s93, s{ws_hi}, 0xffff")
    a(f"s_mov_b32 s94, {WS_SIZE}")
    a("s_mov_b32 s95, 0x00020000")
    a(f"s_add_u32 s96, s2, {kid * 512}")
    a("s_lshl_b32 s96, s96, 4")
    a(f"s_add_u32 s96, s96, {wave_sgpr}")
    a("s_lshl_b32 s96, s96, 7")
    a(f"s_add_u32 s96, s96, {WS_STAMP}")
    a("s_waitcnt lgkmcnt(0)")
    a("v_mov_b32 v0, 0")
    for i in range(n + 1):
        a(f"v_mov_b32 v2, s{70 + 2 * i}")
        a(f"v_mov_b32 v3, s{71 + 2 * i}")
        a(f"buffer_store_dwordx2 v[2:3], v0, s[92:95], s96 offen offset:{8 * i}")
        a("s_nop 1")


ESLEEP = 4
OWT = ''
DPP = "row_mask:0xf bank_mask:0xf"


def emit_perm32(a, dst, src, t):
    a(f"v_and_b32 v{dst}, 3, v{src}")
    a(f"v_lshrrev_b32 v{t}, 3, v{src}")
    a(f"v_lshl_or_b32 v{dst}, v{t}, 2, v{dst}")
    a(f"v_bfe_u32 v{t}, v{src}, 2, 1")
    a(f"v_lshl_or_b32 v{dst}, v{t}, 4, v{dst}")


def wave_allreduce(a, op, v, t):
    a("s_nop 1")
    a(f"{op}_dpp v{v}, v{v}, v{v} quad_perm:[1,0,3,2] {DPP}")
    a("s_nop 1")
    a(f"{op}_dpp v{v}, v{v}, v{v} quad_perm:[2,3,0,1] {DPP}")
    a("s_nop 1")
    a(f"{op}_dpp v{v}, v{v}, v{v} row_half_mirror {DPP}")
    a("s_nop 1")
    a(f"{op}_dpp v{v}, v{v}, v{v} row_mirror {DPP}")
    a(f"v_mov_b32 v{t}, v{v}")
    a("s_nop 1")
    a(f"v_permlane16_swap_b32 v{v}, v{t}")
    a("s_nop 1")
    a(f"{op} v{v}, v{v}, v{t}")
    a(f"v_mov_b32 v{t}, v{v}")
    a("s_nop 1")
    a(f"v_permlane32_swap_b32 v{v}, v{t}")
    a("s_nop 1")
    a(f"{op} v{v}, v{v}, v{t}")


def gen_k1(a, name, prefetch=True):
    kernel_begin(a, name)
    a("s_cmp_ge_u32 s2, 256")
    a(f"s_cbranch_scc1 {name}_done")
    stamp(a, 0)
    a("s_load_dwordx2 s[4:5], s[0:1], 0")
    a("s_load_dwordx4 s[8:11], s[0:1], 24")
    a("s_load_dwordx2 s[6:7], s[0:1], 96")
    a("s_load_dwordx4 s[36:39], s[0:1], 8")
    a("s_load_dwordx4 s[40:43], s[0:1], 56")
    a("s_load_dwordx2 s[44:45], s[0:1], 72")
    a("s_and_b32 s3, s2, 7")
    a("s_lshr_b32 s28, s2, 3")
    a("s_and_b32 s29, s28, 3")
    a("s_lshl_b32 s30, s3, 2")
    a("s_add_u32 s30, s30, s29")
    a("s_lshr_b32 s31, s28, 2")
    a("v_lshrrev_b32 v1, 6, v0")
    a("v_and_b32 v2, 63, v0")
    a("s_nop 0")
    a("v_readfirstlane_b32 s32, v1")
    a("v_lshrrev_b32 v3, 3, v2")
    a("v_and_b32 v4, 7, v2")
    a("s_waitcnt lgkmcnt(0)")
    stamp(a, 1)
    srd(a, 12, 4, 5, S * D * 2)
    a("s_cmp_ge_u32 s31, 4")
    a("s_cselect_b32 s8, s10, s8")
    a("s_cselect_b32 s9, s11, s9")
    srd(a, 16, 8, 9, D * D * 2)
    srd(a, 20, 6, 7, 4 << 20)
    a("s_lshl_b32 s33, s30, 6")
    a("s_lshl_b32 s34, s32, 3")
    a("s_add_u32 s33, s33, s34")
    a("s_lshl_b32 s33, s33, 10")
    a("v_lshlrev_b32 v5, 10, v3")
    a("v_lshl_add_u32 v5, v4, 4, v5")
    XR = 32
    for j in range(8):
        a(f"buffer_load_dwordx4 v[{XR+4*j}:{XR+4*j+3}], v5, s[12:15], s33 offen offset:{128*j}")
    a("v_lshrrev_b32 v6, 4, v2")
    a("v_xor_b32 v6, v6, v4")
    a("v_xor_b32 v7, 4, v6")
    a("v_lshlrev_b32 v8, 10, v3")
    a("v_lshl_add_u32 v6, v6, 4, v8")
    a("v_lshl_add_u32 v7, v7, 4, v8")
    a("s_cmp_ge_u32 s32, 4")
    a(f"s_cbranch_scc1 {name}_helper")
    a("s_and_b32 s35, s31, 3")
    a("s_lshl_b32 s35, s35, 7")
    a("s_lshl_b32 s34, s32, 5")
    a("s_add_u32 s35, s35, s34")
    a("s_lshl_b32 s35, s35, 10")
    a("s_mul_i32 s46, s32, 24576")
    a("s_add_u32 s46, s46, 65536")

    def dma_slot(kk):
        for i in range(4):
            a(f"s_add_u32 m0, s46, {(kk % 6) * 4096 + i * 1024}")
            a(f"s_add_u32 s47, s35, {i * 8192 + kk * 128}")
            a(f"buffer_load_dwordx4 v{6 + (i & 1)}, s[16:19], s47 offen lds")

    for kk in range(6):
        dma_slot(kk)
    a("s_waitcnt vmcnt(24)")
    a(f"s_branch {name}_ln")
    a.label(f"{name}_helper")
    npf = 0
    if prefetch:
        a("s_and_b32 s48, s3, 1")
        a("s_cmp_eq_u32 s48, 1")
        a("s_cselect_b32 s36, s38, s36")
        a("s_cselect_b32 s37, s39, s37")
        srd(a, 24, 36, 37, S * S * 2)
        a("s_lshr_b32 s48, s3, 2")
        a("s_lshl_b32 s48, s48, 10")
        a("s_lshl_b32 s49, s28, 5")
        a("s_add_u32 s48, s48, s49")
        a("s_sub_u32 s49, s32, 4")
        a("s_lshl_b32 s49, s49, 3")
        a("s_add_u32 s48, s48, s49")
        a("s_lshl_b32 s48, s48, 12")
        a("s_bfe_u32 s49, s3, 0x10001")
        a("s_lshl_b32 s49, s49, 11")
        a("s_add_u32 s48, s48, s49")
        a("v_lshrrev_b32 v9, 5, v2")
        a("v_lshlrev_b32 v9, 12, v9")
        a("v_and_b32 v129, 31, v2")
        a("v_lshl_add_u32 v9, v129, 6, v9")
        a("s_waitcnt vmcnt(0)")
        for i in range(4):
            a(f"s_add_u32 s49, s48, {i * 8192}")
            a(f"buffer_load_dword v{130 + i}, v9, s[24:27], s49 offen")
            npf += 1
    a(f"s_waitcnt vmcnt({npf})")
    a.label(f"{name}_ln")
    stamp(a, 2)
    a("s_mov_b32 s50, 0x3f803f80")
    a("s_mov_b32 s51, 0x00003f80")
    a("s_mov_b32 s52, 0x3f800000")
    a("s_mov_b32 s53, 0xffff0000")
    a("v_mov_b32 v16, 0")
    a("v_mov_b32 v17, 0")
    for j in range(32):
        a(f"v_dot2_f32_bf16 v{16 + (j & 1)}, v{XR + j}, s50, v{16 + (j & 1)}")
    a("s_nop 2")
    a("v_add_f32 v16, v16, v17")

    def red8(v):
        a("s_nop 1")
        a(f"v_add_f32_dpp v{v}, v{v}, v{v} quad_perm:[1,0,3,2] {DPP}")
        a("s_nop 1")
        a(f"v_add_f32_dpp v{v}, v{v}, v{v} quad_perm:[2,3,0,1] {DPP}")
        a("s_nop 1")
        a(f"v_add_f32_dpp v{v}, v{v}, v{v} row_half_mirror {DPP}")

    red8(16)
    a("v_mul_f32 v16, 0x3b000000, v16")
    a("v_cvt_pk_bf16_f32 v17, v16, v16")
    a("v_lshlrev_b32 v17, 16, v17")
    a("v_sub_f32 v18, 0, v17")
    a("v_sub_f32 v19, v16, v17")
    a("v_mov_b32 v20, 0")
    a("v_mov_b32 v21, 0")
    for j in range(32):
        t = 22 + 2 * (j & 3)
        a(f"v_dot2_f32_bf16 v{t}, v{XR + j}, s51, v18")
        a(f"v_dot2_f32_bf16 v{t + 1}, v{XR + j}, s52, v18")
        if j >= 1:
            tp = 22 + 2 * ((j - 1) & 3)
            a(f"v_fmac_f32 v20, v{tp}, v{tp}")
            a(f"v_fmac_f32 v21, v{tp + 1}, v{tp + 1}")
            a(f"v_cvt_pk_bf16_f32 v{XR + j - 1}, v{tp}, v{tp + 1}")
    tp = 22 + 2 * (31 & 3)
    a("s_nop 2")
    a(f"v_fmac_f32 v20, v{tp}, v{tp}")
    a(f"v_fmac_f32 v21, v{tp + 1}, v{tp + 1}")
    a(f"v_cvt_pk_bf16_f32 v{XR + 31}, v{tp}, v{tp + 1}")
    a("v_add_f32 v20, v20, v21")
    red8(20)
    a("v_mul_f32 v20, 0x3b000000, v20")
    a("v_fma_f32 v20, -v19, v19, v20")
    a("v_max_f32 v20, 0, v20")
    a("v_cvt_pk_bf16_f32 v20, v20, v20")
    a("v_lshlrev_b32 v20, 16, v20")
    a("v_add_f32 v20, 0x3727c5ac, v20")
    a("v_cvt_pk_bf16_f32 v20, v20, v20")
    a("v_lshlrev_b32 v20, 16, v20")
    a("v_sqrt_f32 v20, v20")
    a("s_nop 0")
    a("v_cvt_pk_bf16_f32 v20, v20, v20")
    a("v_lshlrev_b32 v20, 16, v20")
    a("v_rcp_f32 v20, v20")
    a("s_nop 0")
    for j in range(32):
        t = 22 + 2 * (j & 3)
        a(f"v_lshlrev_b32 v{t}, 16, v{XR + j}")
        a(f"v_and_b32 v{t + 1}, s53, v{XR + j}")
        a(f"v_mul_f32 v{t}, v{t}, v20")
        a(f"v_mul_f32 v{t + 1}, v{t + 1}, v20")
        a(f"v_cvt_pk_bf16_f32 v{XR + j}, v{t}, v{t + 1}")
    a("s_lshl_b32 s34, s32, 3")
    a("v_add_u32 v9, s34, v3")
    a("v_bfe_u32 v10, v9, 1, 3")
    a("v_xor_b32 v10, v10, v4")
    a("v_lshlrev_b32 v10, 4, v10")
    a("v_lshl_add_u32 v10, v9, 7, v10")
    for j in range(8):
        a(f"ds_write_b128 v10, v[{XR + 4 * j}:{XR + 4 * j + 3}] offset:{8192 * j}")
    stamp(a, 3)
    a("s_waitcnt lgkmcnt(0)")
    a("s_barrier")
    stamp(a, 4)
    a("s_cmp_ge_u32 s32, 4")
    a(f"s_cbranch_scc1 {name}_fin")
    a("v_and_b32 v9, 31, v2")
    emit_perm32(a, 10, 9, 11)
    a("v_bfe_u32 v11, v10, 1, 3")
    a("v_lshrrev_b32 v12, 5, v2")
    a("v_xor_b32 v11, v11, v12")
    a("v_lshlrev_b32 v11, 4, v11")
    a("v_lshl_add_u32 v11, v10, 7, v11")
    for c in range(4):
        a(f"v_xor_b32 v{12 + c}, {c * 32}, v11")
        a(f"v_add_u32 v{16 + c}, s46, v{12 + c}")
    ACC = 64
    FR = [96, 108, 120]
    for i in range(32):
        a(f"v_mov_b32 v{ACC + i}, 0")
    units = [(kk, c) for kk in range(8) for c in range(4)]
    vq = [kk for kk in range(6) for _ in range(4)]

    def wait_slot(kk):
        nonlocal vq
        if kk in vq:
            idx = max(i for i, t in enumerate(vq) if t == kk)
            a(f"s_waitcnt vmcnt({len(vq) - 1 - idx})")
            vq = vq[idx + 1:]

    def reads(n):
        kk, c = units[n]
        f = FR[n % 3]
        if c == 0:
            wait_slot(kk)
        a(f"ds_read_b128 v[{f}:{f + 3}], v{16 + c} offset:{(kk % 6) * 4096}")
        a(f"ds_read_b128 v[{f + 4}:{f + 7}], v{12 + c} offset:{kk * 8192}")
        a(f"ds_read_b128 v[{f + 8}:{f + 11}], v{12 + c} offset:{kk * 8192 + 4096}")

    reads(0)
    reads(1)
    for n in range(len(units)):
        kk, c = units[n]
        if n + 2 < len(units):
            reads(n + 2)
            a("s_waitcnt lgkmcnt(6)")
        elif n + 1 < len(units):
            a("s_waitcnt lgkmcnt(3)")
        else:
            a("s_waitcnt lgkmcnt(0)")
        f = FR[n % 3]
        a(f"v_mfma_f32_32x32x16_bf16 v[{ACC}:{ACC + 15}], v[{f + 4}:{f + 7}], v[{f}:{f + 3}], v[{ACC}:{ACC + 15}]")
        a(f"v_mfma_f32_32x32x16_bf16 v[{ACC + 16}:{ACC + 31}], v[{f + 8}:{f + 11}], v[{f}:{f + 3}], v[{ACC + 16}:{ACC + 31}]")
        if c == 3 and kk + 6 < 8:
            dma_slot(kk + 6)
            vq += [kk + 6] * 4
    stamp(a, 5)
    a("s_lshl_b32 s34, s31, 2")
    a("s_add_u32 s34, s34, s32")
    a("s_lshl_b32 s34, s34, 6")
    a("s_lshl_b32 s33, s30, 1")
    a("s_add_u32 s34, s34, s33")
    a("s_lshl_b32 s34, s34, 11")
    a("v_lshlrev_b32 v9, 4, v2")
    a("s_nop 7")
    a("s_nop 3")
    for sh in range(2):
        for i in range(8):
            a(f"v_cvt_pk_bf16_f32 v{32 + 8 * sh + i}, v{ACC + 16 * sh + 2 * i}, v{ACC + 16 * sh + 2 * i + 1}")
    for sh in range(2):
        for u in range(2):
            r = 32 + 8 * sh + 4 * u
            a(f"buffer_store_dwordx4 v[{r}:{r + 3}], v9, s[20:23], s34 offen offset:{sh * 2048 + u * 1024}")
    a.label(f"{name}_fin")
    stamp_flush(a, 1, 6, 6, 7)
    a.label(f"{name}_done")
    a("s_endpgm")
    return kernel_desc(name, 136, 64, 136)


def gen_k2(a, name, NS=9, ED=3, nomfma=0, noload=0, spread=0, noC=0, noE=0):
    kernel_begin(a, name)
    a("s_cmp_ge_u32 s2, 256")
    a(f"s_cbranch_scc1 {name}_done")
    stamp(a, 0)
    a("s_load_dwordx4 s[4:7], s[0:1], 8")
    a("s_load_dwordx2 s[8:9], s[0:1], 96")
    a("s_and_b32 s3, s2, 7")
    a("s_lshr_b32 s28, s2, 3")
    a("s_and_b32 s29, s3, 1")
    a("s_lshr_b32 s30, s3, 1")
    a("s_lshl_b32 s30, s30, 2")
    a("s_and_b32 s31, s28, 3")
    a("s_add_u32 s30, s30, s31")
    a("s_lshr_b32 s31, s28, 2")
    a("v_lshrrev_b32 v200, 6, v0")
    a("v_and_b32 v201, 63, v0")
    a("s_nop 0")
    a("v_readfirstlane_b32 s32, v200")
    a("v_lshrrev_b32 v202, 3, v201")
    a("v_and_b32 v203, 7, v201")
    a("v_lshrrev_b32 v204, 4, v201")
    a("v_xor_b32 v204, v204, v203")
    a("v_xor_b32 v205, 4, v204")
    a("v_lshlrev_b32 v206, 12, v202")
    a("v_lshl_add_u32 v204, v204, 4, v206")
    a("v_lshl_add_u32 v205, v205, 4, v206")
    a("v_lshlrev_b32 v206, 4, v201")
    a("s_waitcnt lgkmcnt(0)")
    stamp(a, 1)
    a("s_cmp_eq_u32 s29, 1")
    a("s_cselect_b32 s4, s6, s4")
    a("s_cselect_b32 s5, s7, s5")
    srd(a, 12, 4, 5, S * S * 2)
    srd(a, 16, 8, 9, 8 << 20)
    a("s_lshl_b32 s35, s30, 19")
    a("s_lshl_b32 s34, s32, 10")
    a("s_add_u32 s35, s35, s34")
    for j in range(4):
        a(f"s_add_u32 s34, s32, {j}")
        a("s_and_b32 s34, s34, 3")
        a(f"s_mov_b32 s{52 + j}, s34")
        a("s_lshl_b32 s34, s34, 17")
        a(f"s_add_u32 s{40 + j}, s35, s34")
    a("s_lshl_b32 s36, s29, 4")
    a("s_lshl_b32 s34, s31, 1")
    a("s_add_u32 s36, s36, s34")
    a("s_lshl_b32 s36, s36, 6")
    a("s_lshl_b32 s34, s32, 4")
    a("s_add_u32 s36, s36, s34")
    a("s_lshl_b32 s36, s36, 11")
    a("s_add_u32 s37, s36, 131072")
    RING = NS * 4096
    a(f"s_mul_i32 s46, s32, {RING}")
    vm = VM(a)

    pend = []

    def dma_one(n, i):
        kk, j = n // 4, n % 4
        if noload or noC:
            return
        a(f"s_add_u32 m0, s46, {(n % NS) * 4096 + i * 1024}")
        a(f"s_add_u32 s47, s{40 + j}, {(i * 8) * 4096 + kk * 128}")
        a(f"buffer_load_dwordx4 v{204 + (i & 1)}, s[12:15], s47 offen lds")
        vm.issue(("C", n))

    def e_one(kk, et2, c):
        if noload or noE:
            return
        st = kk % ED
        r = st * 32 + et2 * 16 + c * 4
        a(f"s_add_u32 s48, s{36 + et2}, {kk * 4096}")
        a(f"buffer_load_dwordx4 a[{r}:{r + 3}], v206, s[16:19], s48 offen offset:{c * 1024}")
        vm.issue(("E", kk))

    def dma_slot(n, defer=False):
        for i in range(4):
            if defer:
                pend.append(lambda n=n, i=i: dma_one(n, i))
            else:
                dma_one(n, i)

    def e_loads(kk, defer=False):
        for et2 in range(2):
            for c in range(4):
                if defer:
                    pend.append(lambda kk=kk, et2=et2, c=c: e_one(kk, et2, c))
                else:
                    e_one(kk, et2, c)

    def flush_pend(pred=None, maxn=None):
        cnt = 0
        while pend and (maxn is None or cnt < maxn):
            pend.pop(0)()
            cnt += 1

    nslot_issued = 0
    for kk in range(ED):
        e_loads(kk)
        for tt in range(4):
            if nslot_issued < NS:
                dma_slot(nslot_issued)
                nslot_issued += 1
    while nslot_issued < NS:
        dma_slot(nslot_issued)
        nslot_issued += 1
    stamp(a, 2)
    a("v_and_b32 v207, 31, v201")
    a("v_bfe_u32 v208, v207, 1, 3")
    a("v_lshrrev_b32 v209, 5, v201")
    a("v_lshlrev_b32 v209, 1, v209")
    a("v_xor_b32 v208, v208, v209")
    a("v_lshlrev_b32 v208, 4, v208")
    a("v_lshl_add_u32 v208, v207, 7, v208")
    for c in range(4):
        x = ((c >> 1) * 4 + (c & 1)) << 4
        a(f"v_xor_b32 v{210 + c}, {x}, v208")
        a(f"v_add_u32 v{210 + c}, s46, v{210 + c}")
    for i in range(128):
        a(f"v_mov_b32 v{i}, 0")
    def pend_has(tag):
        return any(getattr(p, '__defaults__', (None,))[0] == tag[1] and len(p.__defaults__) == (2 if tag[0] == 'C' else 3) for p in pend)

    units = [(n, c) for n in range(32) for c in range(4)]
    NF = 6
    LOOKAHEAD = 4

    def reads(un):
        n, c = units[un]
        if c == 0:
            assert noload or noC or vm.q.count(("C", n)) == 4 or ("C", n) not in vm.q and n < nslot_issued and not pend_has(("C", n))
            vm.wait(("C", n))
        f = 128 + 4 * (un % NF)
        a(f"ds_read_b128 v[{f}:{f + 3}], v{210 + c} offset:{(n % NS) * 4096}")

    for un in range(LOOKAHEAD):
        reads(un)
    for un in range(len(units)):
        n, c = units[un]
        kk, j = n // 4, n % 4
        if un + LOOKAHEAD < len(units):
            reads(un + LOOKAHEAD)
            a(f"s_waitcnt lgkmcnt({LOOKAHEAD})")
        else:
            a(f"s_waitcnt lgkmcnt({len(units) - 1 - un})")
        if j == 0 and c == 0:
            assert not pend_has(("E", kk))
            vm.wait(("E", kk))
        f = 128 + 4 * (un % NF)
        st = kk % ED
        if un == 0:
            stamp(a, 3)
        if un == 64:
            stamp(a, 4)
        for et2 in range(2):
            acc = (j * 2 + et2) * 16
            r = st * 32 + et2 * 16 + c * 4
            if not nomfma:
                a(f"v_mfma_f32_32x32x16_bf16 v[{acc}:{acc + 15}], a[{r}:{r + 3}], v[{f}:{f + 3}], v[{acc}:{acc + 15}]")
            if spread:
                flush_pend(maxn=1)
        if c == 3:
            if nslot_issued < 32:
                dma_slot(nslot_issued, defer=bool(spread))
                nslot_issued += 1
            if j == 3 and kk + ED < 8:
                e_loads(kk + ED, defer=bool(spread))
    stamp(a, 5)
    a("s_barrier")
    stamp(a, 6)
    for j in range(1, 4):
        a(f"s_mul_i32 s34, s{52 + j}, 24576")
        a(f"s_add_u32 s34, s34, {(j - 1) * 8192}")
        a(f"v_add_u32 v{214 + j}, s34, v206")
    a("s_mul_i32 s34, s32, 24576")
    a("v_add_u32 v214, s34, v206")
    a("s_nop 7")
    for j in range(1, 4):
        for q in range(8):
            r = j * 32 + 4 * q
            a(f"ds_write_b128 v{214 + j}, v[{r}:{r + 3}] offset:{q * 1024}")
    a("s_waitcnt lgkmcnt(0)")
    a("s_barrier")
    stamp(a, 7)
    for j in range(1, 4):
        for q in range(8):
            r = j * 32 + 4 * q
            a(f"ds_read_b128 v[{r}:{r + 3}], v214 offset:{(j - 1) * 8192 + q * 1024}")
    a("s_lshl_b32 s34, s30, 7")
    a("s_lshl_b32 s33, s32, 5")
    a("s_add_u32 s34, s34, s33")
    a("s_lshl_b32 s34, s34, 10")
    a("s_lshl_b32 s33, s31, 7")
    a("s_add_u32 s34, s34, s33")
    a("s_lshl_b32 s33, s29, 21")
    a("s_add_u32 s34, s34, s33")
    a(f"s_add_u32 s34, s34, {WS_Y}")
    a("v_lshrrev_b32 v209, 5, v201")
    a("v_lshlrev_b32 v209, 5, v209")
    a("v_lshl_add_u32 v209, v207, 10, v209")
    for j in range(1, 4):
        a(f"s_waitcnt lgkmcnt({min(15, (3 - j) * 8)})")
        for i in range(32):
            a(f"v_add_f32 v{i}, v{i}, v{j * 32 + i}")
    for i in range(16):
        a(f"v_cvt_pk_bf16_f32 v{128 + i}, v{2 * i}, v{2 * i + 1}")
    for et2 in range(2):
        for hh in range(2):
            r = 128 + et2 * 8 + hh * 4
            a(f"buffer_store_dwordx4 v[{r}:{r + 3}], v209, s[16:19], s34 offen offset:{et2 * 64 + hh * 16}")
    stamp_flush(a, 2, 8, 8, 9)
    a.label(f"{name}_done")
    a("s_endpgm")
    return kernel_desc(name, 224 + 32 * ED, 64, 224)


WS_P = 4 << 20


def gen_k2b(a, name, NSTG=5, LA=2, nomfma=0, noread=0, nodma=0, nostore=0):
    kernel_begin(a, name)
    a("s_cmp_ge_u32 s2, 256")
    a(f"s_cbranch_scc1 {name}_done")
    stamp(a, 0)
    a("s_load_dwordx4 s[4:7], s[0:1], 8")
    a("s_load_dwordx2 s[8:9], s[0:1], 96")
    a("s_and_b32 s3, s2, 7")
    a("s_lshr_b32 s28, s2, 3")
    a("s_and_b32 s29, s3, 1")
    a("s_bfe_u32 s27, s3, 0x10001")
    a("s_lshr_b32 s30, s3, 2")
    a("s_lshl_b32 s30, s30, 3")
    a("s_and_b32 s31, s28, 7")
    a("s_add_u32 s30, s30, s31")
    a("s_lshr_b32 s31, s28, 3")
    a("v_lshrrev_b32 v1, 6, v0")
    a("v_and_b32 v2, 63, v0")
    a("s_nop 0")
    a("v_readfirstlane_b32 s32, v1")
    a("v_lshlrev_b32 v3, 4, v2")
    a("s_waitcnt lgkmcnt(0)")
    stamp(a, 1)
    a("s_cmp_eq_u32 s29, 1")
    a("s_cselect_b32 s4, s6, s4")
    a("s_cselect_b32 s5, s7, s5")
    srd(a, 12, 4, 5, S * S * 2)
    srd(a, 16, 8, 9, 12 << 20)
    a("s_cmp_lt_u32 s32, 4")
    a(f"s_cbranch_scc1 {name}_cons")
    a("s_sub_u32 s33, s32, 4")
    a("v_lshrrev_b32 v4, 3, v2")
    a("v_and_b32 v5, 7, v2")
    a("v_lshrrev_b32 v6, 4, v2")
    a("v_xor_b32 v6, v6, v5")
    a("v_xor_b32 v7, 4, v6")
    a("v_lshlrev_b32 v4, 12, v4")
    a("v_lshl_add_u32 v6, v6, 4, v4")
    a("v_lshl_add_u32 v7, v7, 4, v4")
    a("v_mov_b32 v8, v6")
    a(f"v_add_u32 v9, {32768 - 1024}, v7")
    a(f"v_add_u32 v10, {2 * (32768 - 1024)}, v6")
    a(f"v_add_u32 v11, {3 * (32768 - 1024)}, v7")
    a("s_lshl_b32 s35, s30, 19")
    a("s_lshl_b32 s34, s33, 17")
    a("s_add_u32 s35, s35, s34")
    a("s_lshl_b32 s34, s27, 11")
    a("s_add_u32 s35, s35, s34")
    a("s_lshl_b32 s36, s29, 4")
    a("s_lshl_b32 s34, s31, 2")
    a("s_add_u32 s36, s36, s34")
    a("s_add_u32 s36, s36, s33")
    a("s_lshl_b32 s36, s36, 6")
    a("s_lshl_b32 s34, s27, 5")
    a("s_add_u32 s36, s36, s34")
    a("s_lshl_b32 s36, s36, 11")
    a("s_lshl_b32 s37, s33, 12")

    def load_stage(s):
        slot = (s % NSTG) * 32768
        a(f"s_add_u32 m0, s37, {slot}")
        a(f"s_add_u32 s38, s35, {s * 128}")
        for i in range(4):
            if not nodma:
                a(f"buffer_load_dwordx4 v{8 + i}, s[12:15], s38 offen offset:{i * 1024} lds")
        a(f"s_add_u32 m0, s37, {slot + 16384}")
        a(f"s_add_u32 s39, s36, {s * 4096}")
        for c in range(4):
            if not nodma:
                a(f"buffer_load_dwordx4 v3, s[16:19], s39 offen offset:{c * 1024} lds")

    NST = 16
    for s in range(NSTG - 1):
        load_stage(s)
    stamp(a, 2)
    for s in range(NST):
        issued = min(s + NSTG - 2, NST - 1)
        a(f"s_waitcnt vmcnt({(issued - s) * 8})")
        a("s_barrier")
        if s + NSTG - 1 < NST:
            load_stage(s + NSTG - 1)
    stamp(a, 5)
    a(f"s_branch {name}_fin")
    a.label(f"{name}_cons")
    a("s_and_b32 s33, s32, 1")
    a("s_lshr_b32 s34, s32, 1")
    a("v_and_b32 v4, 31, v2")
    a("v_bfe_u32 v5, v4, 1, 3")
    a("v_lshrrev_b32 v6, 5, v2")
    a("v_lshlrev_b32 v6, 1, v6")
    a("v_xor_b32 v5, v5, v6")
    a("v_lshlrev_b32 v5, 4, v5")
    a("v_lshl_add_u32 v5, v4, 7, v5")
    a("s_lshl_b32 s35, s33, 13")
    a("s_lshl_b32 s36, s34, 13")
    a("s_add_u32 s36, s36, 16384")
    for g in range(3):
        for c in range(4):
            x = ((c >> 1) * 4 + (c & 1)) << 4
            a(f"v_xor_b32 v{8 + 5 * g + c}, {x}, v5")
            a(f"v_add_u32 v{8 + 5 * g + c}, s35, v{8 + 5 * g + c}")
            if g:
                a(f"v_add_u32 v{8 + 5 * g + c}, {65536 * g}, v{8 + 5 * g + c}")
        a(f"v_add_u32 v{8 + 5 * g + 4}, s36, v3")
        if g:
            a(f"v_add_u32 v{8 + 5 * g + 4}, {65536 * g}, v{8 + 5 * g + 4}")
    ACC = 64
    FB = 128
    for i in range(64):
        a(f"v_mov_b32 v{ACC + i}, 0")
    NU = NST * 4

    def reads(u):
        s, c = u // 4, u % 4
        slot = s % NSTG
        g, so = slot // 2, (slot % 2) * 32768
        f = FB + 16 * (u % (LA + 1))
        if c == 0:
            a("s_waitcnt lgkmcnt(0)")
            a("s_barrier")
            if s == 0:
                stamp(a, 3)
            if s == 8:
                stamp(a, 4)
        if noread:
            return
        a(f"ds_read_b128 v[{f}:{f + 3}], v{8 + 5 * g + c} offset:{so}")
        a(f"ds_read_b128 v[{f + 8}:{f + 11}], v{8 + 5 * g + 4} offset:{so + c * 1024}")
        a(f"ds_read_b128 v[{f + 4}:{f + 7}], v{8 + 5 * g + c} offset:{so + 4096}")
        a(f"ds_read_b128 v[{f + 12}:{f + 15}], v{8 + 5 * g + 4} offset:{so + 4096 + c * 1024}")

    for u in range(LA):
        reads(u)
    for u in range(NU):
        if u + LA < NU:
            reads(u + LA)
        nxt = min(u + LA, NU - 1)
        cnt = 0
        for uu in range(u + 1, nxt + 1):
            cnt += 4
        a(f"s_waitcnt lgkmcnt({min(cnt, 15)})")
        f = FB + 16 * (u % (LA + 1))
        for et in range(2):
            for tt in range(2):
                acc = ACC + (et * 2 + tt) * 16
                if not nomfma:
                    a(f"v_mfma_f32_32x32x16_bf16 v[{acc}:{acc + 15}], v[{f + 8 + 4 * et}:{f + 11 + 4 * et}], v[{f + 4 * tt}:{f + 4 * tt + 3}], v[{acc}:{acc + 15}]")
    stamp(a, 5)
    a("s_lshl_b32 s35, s30, 7")
    a("s_lshl_b32 s36, s33, 6")
    a("s_add_u32 s35, s35, s36")
    a("s_lshl_b32 s35, s35, 10")
    a("s_lshl_b32 s36, s31, 8")
    a("s_add_u32 s35, s35, s36")
    a("s_lshl_b32 s36, s34, 7")
    a("s_add_u32 s35, s35, s36")
    a("s_lshl_b32 s36, s29, 1")
    a("s_add_u32 s36, s36, s27")
    a("s_lshl_b32 s36, s36, 21")
    a("s_add_u32 s35, s35, s36")
    a(f"s_add_u32 s35, s35, {WS_P}")
    a("s_add_u32 s36, s35, 32768")
    a("v_lshrrev_b32 v6, 5, v2")
    a("v_lshlrev_b32 v6, 5, v6")
    a("v_lshl_add_u32 v6, v4, 10, v6")
    a("s_nop 4")
    for et in range(2):
        for tt in range(2):
            acc = ACC + (et * 2 + tt) * 16
            o = 24 + (et * 2 + tt) * 8
            for i in range(8):
                a(f"v_cvt_pk_bf16_f32 v{o + i}, v{acc + 2 * i}, v{acc + 2 * i + 1}")
            for hh in range(2):
                if not nostore:
                    a(f"buffer_store_dwordx4 v[{o + 4 * hh}:{o + 4 * hh + 3}], v6, s[16:19], s{35 + tt} offen offset:{et * 64 + hh * 16}")
    a.label(f"{name}_fin")
    stamp_flush(a, 2, 6, 8, 9)
    a.label(f"{name}_done")
    a("s_endpgm")
    nv = FB + 16 * (LA + 1)
    return kernel_desc(name, nv, 64, nv)


def emit_perm2(a, dst, src, t):
    a(f"v_and_b32 v{dst}, 3, v{src}")
    a(f"v_bfe_u32 v{t}, v{src}, 2, 2")
    a(f"v_lshl_or_b32 v{dst}, v{t}, 3, v{dst}")
    a(f"v_bfe_u32 v{t}, v{src}, 4, 1")
    a(f"v_lshl_or_b32 v{dst}, v{t}, 2, v{dst}")


def gen_k1b(a, name, prefetch=1, wt=0, nostats=0, nocs=0, PRO=6, pfpos=2, rot=1):
    NSTG, SLOT = 6, 24576
    STATS = NSTG * SLOT
    kernel_begin(a, name)
    a("s_cmp_ge_u32 s2, 256")
    a(f"s_cbranch_scc1 {name}_done")
    stamp(a, 0)
    a("s_load_dwordx2 s[4:5], s[0:1], 0")
    a("s_load_dwordx4 s[8:11], s[0:1], 24")
    a("s_load_dwordx2 s[6:7], s[0:1], 96")
    a("s_load_dwordx4 s[40:43], s[0:1], 8")
    a("s_and_b32 s3, s2, 7")
    a("s_lshr_b32 s28, s2, 3")
    a("s_and_b32 s29, s28, 3")
    a("s_lshl_b32 s30, s3, 2")
    a("s_add_u32 s30, s30, s29")
    a("s_lshr_b32 s31, s28, 2")
    a("v_lshrrev_b32 v1, 6, v0")
    a("v_and_b32 v2, 63, v0")
    a("s_nop 0")
    a("v_readfirstlane_b32 s32, v1")
    a("s_mov_b32 s53, 0xffff0000")
    a("s_cmp_lt_u32 s32, 4")
    a(f"s_cbranch_scc1 {name}_cons")
    a("s_sub_u32 s33, s32, 4")
    a("v_lshrrev_b32 v3, 3, v2")
    a("v_and_b32 v4, 7, v2")
    a("v_lshrrev_b32 v6, 4, v2")
    a("v_xor_b32 v6, v6, v4")
    a("v_xor_b32 v7, 4, v6")
    a("v_lshlrev_b32 v3, 10, v3")
    a("v_lshl_add_u32 v8, v6, 4, v3")
    a("v_lshl_add_u32 v7, v7, 4, v3")
    a(f"v_add_u32 v9, {8192 - 1024}, v7")
    a(f"v_add_u32 v10, {2 * (8192 - 1024)}, v8")
    a(f"v_add_u32 v11, {3 * (8192 - 1024)}, v7")
    a("s_lshl_b32 s35, s30, 6")
    a("s_lshl_b32 s34, s33, 4")
    a("s_add_u32 s35, s35, s34")
    a("s_lshl_b32 s35, s35, 10")
    a("s_and_b32 s36, s31, 3")
    a("s_lshl_b32 s36, s36, 7")
    a("s_lshl_b32 s34, s33, 5")
    a("s_add_u32 s36, s36, s34")
    a("s_lshl_b32 s36, s36, 10")
    a("s_lshl_b32 s37, s33, 11")
    a("s_lshl_b32 s38, s33, 12")
    a("s_add_u32 s38, s38, 8192")
    a("s_lshl_b32 s34, s29, 1")
    a("s_add_u32 s34, s34, s31")
    for kk in range(8):
        if rot:
            a(f"s_add_u32 s39, s34, {kk}")
            a("s_and_b32 s39, s39, 7")
            a(f"s_lshl_b32 s{54 + kk}, s39, 7")
        else:
            a(f"s_mov_b32 s{54 + kk}, {kk * 128}")
    a("s_waitcnt lgkmcnt(0)")
    stamp(a, 1)
    srd(a, 12, 4, 5, S * D * 2)
    a("s_cmp_ge_u32 s31, 4")
    a("s_cselect_b32 s8, s10, s8")
    a("s_cselect_b32 s9, s11, s9")
    srd(a, 16, 8, 9, D * D * 2)

    def load_stage(kk):
        slot = (kk % NSTG) * SLOT
        a(f"s_add_u32 m0, s37, {slot}")
        a(f"s_add_u32 s39, s35, s{54 + kk}")
        for i in range(2):
            a(f"buffer_load_dwordx4 v{8 + i}, s[12:15], s39 offen offset:{i * 1024} lds")
        a(f"s_add_u32 m0, s38, {slot}")
        a(f"s_add_u32 s39, s36, s{54 + kk}")
        for i in range(4):
            a(f"buffer_load_dwordx4 v{8 + i}, s[16:19], s39 offen offset:{i * 1024} lds")

    for kk in range(PRO):
        load_stage(kk)
    stamp(a, 2)
    a("v_lshrrev_b32 v12, 2, v2")
    a("v_lshlrev_b32 v12, 7, v12")
    a("v_and_b32 v13, 3, v2")
    a("v_lshl_add_u32 v12, v13, 5, v12")
    a("v_add_u32 v12, s37, v12")
    a(f"v_add_u32 v13, {3 * SLOT}, v12")
    a("v_mov_b32 v14, 0")
    a("v_mov_b32 v15, 0")
    a("v_mov_b32 v16, 0")
    a("v_mov_b32 v17, 0")
    issued = PRO
    npf = 0

    def emit_prefetch(vb):
        a("s_and_b32 s48, s3, 1")
        a("s_cmp_eq_u32 s48, 1")
        a("s_cselect_b32 s40, s42, s40")
        a("s_cselect_b32 s41, s43, s41")
        srd(a, 24, 40, 41, S * S * 2)
        a("s_lshr_b32 s48, s3, 2")
        a("s_lshl_b32 s48, s48, 10")
        a("s_lshl_b32 s49, s28, 5")
        a("s_add_u32 s48, s48, s49")
        a("s_and_b32 s49, s32, 3")
        a("s_lshl_b32 s49, s49, 3")
        a("s_add_u32 s48, s48, s49")
        a("s_lshl_b32 s48, s48, 12")
        a("s_bfe_u32 s49, s3, 0x10001")
        a("s_lshl_b32 s49, s49, 11")
        a("s_add_u32 s48, s48, s49")
        a(f"v_lshrrev_b32 v{vb}, 4, v2")
        a(f"v_lshlrev_b32 v{vb}, 12, v{vb}")
        a(f"v_and_b32 v{vb + 1}, 15, v2")
        a(f"v_lshl_add_u32 v{vb}, v{vb + 1}, 7, v{vb}")
        for i in range(2):
            a(f"s_add_u32 s49, s48, {i * 16384}")
            a(f"buffer_load_dword v{vb + 2 + i}, v{vb}, s[24:27], s49 offen")

    vq = [k for k in range(PRO) for _ in range(6)]
    for kk in range(8):
        idx = max(i for i, t in enumerate(vq) if t == kk)
        a(f"s_waitcnt vmcnt({len(vq) - 1 - idx})")
        vq = vq[idx + 1:]
        slot = kk % NSTG
        ar, so = (12, slot * SLOT) if slot < 3 else (13, (slot - 3) * SLOT)
        a(f"ds_read_b128 v[24:27], v{ar} offset:{so}")
        a(f"ds_read_b128 v[28:31], v{ar} offset:{so + 16}")
        a("s_barrier")
        a("s_waitcnt lgkmcnt(0)")
        n_new = 0
        while issued < 8 and issued - NSTG < kk and n_new < 2:
            load_stage(issued)
            vq += [issued] * 6
            issued += 1
            n_new += 1
        if prefetch and pfpos == kk:
            emit_prefetch(40)
            vq += ["pf"] * 2
        if kk == 0:
            a("v_lshlrev_b32 v18, 16, v24")
            a("s_nop 1")
            a(f"v_mov_b32_dpp v18, v18 quad_perm:[0,0,0,0] {DPP}")
        for r in range(0 if nostats else 8):
            t = 32 + 2 * (r & 3)
            a(f"v_lshlrev_b32 v{t}, 16, v{24 + r}")
            a(f"v_and_b32 v{t + 1}, s53, v{24 + r}")
            a(f"v_sub_f32 v{t}, v{t}, v18")
            a(f"v_sub_f32 v{t + 1}, v{t + 1}, v18")
            a(f"v_add_f32 v14, v14, v{t}")
            a(f"v_add_f32 v15, v15, v{t + 1}")
            a(f"v_fmac_f32 v16, v{t}, v{t}")
            a(f"v_fmac_f32 v17, v{t + 1}, v{t + 1}")
    a("v_add_f32 v14, v14, v15")
    a("v_add_f32 v16, v16, v17")
    for qp in ("[1,0,3,2]", "[2,3,0,1]"):
        a("s_nop 1")
        a(f"v_add_f32_dpp v14, v14, v14 quad_perm:{qp} {DPP}")
        a(f"v_add_f32_dpp v16, v16, v16 quad_perm:{qp} {DPP}")
    a("v_mul_f32 v14, 0x3b000000, v14")
    a("v_mul_f32 v16, 0x3b000000, v16")
    a("v_fma_f32 v16, -v14, v14, v16")
    a("v_max_f32 v16, 0, v16")
    a("v_add_f32 v14, v14, v18")
    a("v_cvt_pk_bf16_f32 v14, v14, v14")
    a("v_lshlrev_b32 v14, 16, v14")
    a("v_cvt_pk_bf16_f32 v16, v16, v16")
    a("v_lshlrev_b32 v16, 16, v16")
    a("v_add_f32 v16, 0x3727c5ac, v16")
    a("v_cvt_pk_bf16_f32 v16, v16, v16")
    a("v_lshlrev_b32 v16, 16, v16")
    a("v_sqrt_f32 v16, v16")
    a("s_nop 0")
    a("v_cvt_pk_bf16_f32 v16, v16, v16")
    a("v_lshlrev_b32 v16, 16, v16")
    a("v_rcp_f32 v16, v16")
    a("v_lshrrev_b32 v19, 2, v2")
    a("v_lshlrev_b32 v19, 2, v19")
    a("s_lshl_b32 s34, s33, 6")
    a(f"s_add_u32 s34, s34, {STATS}")
    a("v_add_u32 v19, s34, v19")
    a("ds_write_b32 v19, v14")
    a("ds_write_b32 v19, v16 offset:256")
    a("s_waitcnt lgkmcnt(0)")
    stamp(a, 3)
    a("s_barrier")
    a(f"s_branch {name}_fin")
    a.label(f"{name}_cons")
    a("v_and_b32 v9, 31, v2")
    a("v_lshrrev_b32 v5, 5, v2")
    emit_perm32(a, 10, 9, 11)
    a("v_bfe_u32 v11, v10, 1, 3")
    a("v_xor_b32 v11, v11, v5")
    a("v_lshlrev_b32 v11, 4, v11")
    a("v_lshl_add_u32 v11, v10, 7, v11")
    emit_perm2(a, 10, 9, 12)
    a("v_bfe_u32 v12, v10, 1, 3")
    a("v_xor_b32 v12, v12, v5")
    a("v_lshlrev_b32 v12, 4, v12")
    a("v_lshl_add_u32 v12, v10, 7, v12")
    a("s_lshl_b32 s34, s32, 12")
    a("s_add_u32 s34, s34, 8192")
    a("v_add_u32 v12, s34, v12")
    for g in range(3):
        for c in range(4):
            a(f"v_xor_b32 v{16 + 8 * g + c}, {c * 32}, v11")
            a(f"v_xor_b32 v{20 + 8 * g + c}, {c * 32}, v12")
            if g:
                a(f"v_add_u32 v{16 + 8 * g + c}, {2 * SLOT * g}, v{16 + 8 * g + c}")
                a(f"v_add_u32 v{20 + 8 * g + c}, {2 * SLOT * g}, v{20 + 8 * g + c}")
    ACC = 64
    FR = [96, 108, 120]
    for i in range(32):
        a(f"v_mov_b32 v{ACC + i}, 0")
    a("v_mov_b32 v40, 0")
    a("v_mov_b32 v41, 0")
    a("s_mov_b32 s50, 0x3f803f80")
    a("s_waitcnt lgkmcnt(0)")
    stamp(a, 1)
    srd(a, 20, 6, 7, 4 << 20)
    if prefetch and pfpos == -1:
        emit_prefetch(150)
    units = [(kk, c) for kk in range(8) for c in range(4)]

    def reads(n):
        kk, c = units[n]
        f = FR[n % 3]
        slot = kk % NSTG
        g, so = slot // 2, (slot % 2) * SLOT
        if c == 0:
            a("s_waitcnt lgkmcnt(0)")
            a("s_barrier")
            if kk == 0:
                stamp(a, 2)
        a(f"ds_read_b128 v[{f}:{f + 3}], v{20 + 8 * g + c} offset:{so}")
        a(f"ds_read_b128 v[{f + 4}:{f + 7}], v{16 + 8 * g + c} offset:{so}")
        a(f"ds_read_b128 v[{f + 8}:{f + 11}], v{16 + 8 * g + c} offset:{so + 4096}")

    reads(0)
    reads(1)
    for n in range(len(units)):
        if n + 2 < len(units):
            reads(n + 2)
            a("s_waitcnt lgkmcnt(6)")
        elif n + 1 < len(units):
            a("s_waitcnt lgkmcnt(3)")
        else:
            a("s_waitcnt lgkmcnt(0)")
        f = FR[n % 3]
        a(f"v_mfma_f32_32x32x16_bf16 v[{ACC}:{ACC + 15}], v[{f + 4}:{f + 7}], v[{f}:{f + 3}], v[{ACC}:{ACC + 15}]")
        if not nocs:
            a(f"v_dot2_f32_bf16 v40, v{f}, s50, v40")
        if not nocs:
            a(f"v_dot2_f32_bf16 v41, v{f + 1}, s50, v41")
        a(f"v_mfma_f32_32x32x16_bf16 v[{ACC + 16}:{ACC + 31}], v[{f + 8}:{f + 11}], v[{f}:{f + 3}], v[{ACC + 16}:{ACC + 31}]")
        if not nocs:
            a(f"v_dot2_f32_bf16 v40, v{f + 2}, s50, v40")
        if not nocs:
            a(f"v_dot2_f32_bf16 v41, v{f + 3}, s50, v41")
    stamp(a, 3)
    a("s_barrier")
    stamp(a, 4)
    a("v_lshlrev_b32 v42, 6, v5")
    a(f"v_add_u32 v42, {STATS}, v42")
    for sh in range(2):
        for q in range(4):
            a(f"ds_read_b128 v[{96 + 16 * sh + 4 * q}:{99 + 16 * sh + 4 * q}], v42 offset:{128 * sh + 16 * q}")
            a(f"ds_read_b128 v[{128 + 16 * sh + 4 * q}:{131 + 16 * sh + 4 * q}], v42 offset:{256 + 128 * sh + 16 * q}")
    a("v_add_f32 v40, v40, v41")
    a("v_mov_b32 v41, v40")
    a("s_nop 1")
    a("v_permlane32_swap_b32 v40, v41")
    a("s_nop 1")
    a("v_add_f32 v40, v40, v41")
    a("s_lshl_b32 s34, s31, 2")
    a("s_add_u32 s34, s34, s32")
    a("s_lshl_b32 s34, s34, 7")
    a("s_lshl_b32 s33, s30, 1")
    a("s_add_u32 s34, s34, s33")
    a("s_lshl_b32 s34, s34, 10")
    a("v_bfe_u32 v43, v2, 4, 1")
    a("v_lshlrev_b32 v43, 16, v43")
    a("v_lshl_add_u32 v43, v5, 9, v43")
    a("v_and_b32 v44, 15, v2")
    a("v_lshl_add_u32 v43, v44, 4, v43")
    a("s_waitcnt lgkmcnt(0)")
    for sh in range(2):
        for i in range(16):
            r = ACC + 16 * sh + i
            a(f"v_fma_f32 v{r}, -v{96 + 16 * sh + i}, v40, v{r}")
            a(f"v_mul_f32 v{r}, v{r}, v{128 + 16 * sh + i}")
        for i in range(8):
            a(f"v_cvt_pk_bf16_f32 v{48 + 8 * sh + i}, v{ACC + 16 * sh + 2 * i}, v{ACC + 16 * sh + 2 * i + 1}")
        for u in range(2):
            r = 48 + 8 * sh + 4 * u
            a(f"buffer_store_dwordx4 v[{r}:{r + 3}], v43, s[20:23], s34 offen offset:{sh * 1024 + u * 256}" + (" sc0 sc1" if wt else ""))
    stamp(a, 5)
    a.label(f"{name}_fin")
    stamp_flush(a, 1, 6, 6, 7)
    a.label(f"{name}_done")
    a("s_endpgm")
    return kernel_desc(name, 160, 64, 160)


def emit_wtouch(a, s_sel, vt, vd):
    a(f"s_cmp_eq_u32 {s_sel}, 1")
    a("s_cselect_b32 s56, s58, s56")
    a("s_cselect_b32 s57, s59, s57")
    a(f"s_cmp_eq_u32 {s_sel}, 2")
    a("s_cselect_b32 s56, s60, s56")
    a("s_cselect_b32 s57, s61, s57")
    a("s_mul_i32 s62, s2, 7168")
    a("s_add_u32 s63, s62, 7168")
    a(f"s_cmp_eq_u32 {s_sel}, 3")
    a("s_cselect_b32 s63, 0, s63")
    a("s_mov_b32 s20, s56")
    a("s_and_b32 s21, s57, 0xffff")
    a("s_mov_b32 s22, s63")
    a("s_mov_b32 s23, 0x00020000")
    a(f"v_lshlrev_b32 v{vt}, 7, v2")
    a(f"buffer_load_dword v{vd}, v{vt}, s[20:23], s62 offen")


def emit_wtouch2(a):
    a("s_cmp_ge_u32 s33, 2")
    a("s_cselect_b32 s56, s66, s64")
    a("s_cselect_b32 s57, s67, s65")
    a("s_cmp_lt_u32 s28, 28")
    a(f"s_cselect_b32 s62, {D * F * 2}, 0")
    a("s_mov_b32 s20, s56")
    a("s_and_b32 s21, s57, 0xffff")
    a("s_mov_b32 s22, s62")
    a("s_mov_b32 s23, 0x00020000")
    a("s_mov_b32 s24, s68")
    a("s_and_b32 s25, s69, 0xffff")
    a("s_mov_b32 s26, s62")
    a("s_mov_b32 s27, 0x00020000")
    a("s_lshr_b32 s58, s28, 2")
    a("s_lshl_b32 s58, s58, 3")
    a("s_add_u32 s58, s58, s3")
    a("s_and_b32 s59, s28, 3")
    a("s_lshl_b32 s62, s59, 1")
    a("s_and_b32 s63, s33, 1")
    a("s_add_u32 s62, s62, s63")
    a("s_mul_i32 s62, s62, 229376")
    a("s_lshr_b32 s63, s58, 1")
    a("s_lshl_b32 s63, s63, 7")
    a("s_add_u32 s62, s62, s63")
    a("s_mov_b32 s63, 3584")
    a("v_mul_lo_u32 v13, v2, s63")
    a("buffer_load_dword v15, v13, s[20:23], s62 offen")
    a("s_lshl_b32 s62, s58, 15")
    a("s_lshl_b32 s63, s59, 13")
    a("s_add_u32 s62, s62, s63")
    a("s_lshl_b32 s63, s33, 11")
    a("s_add_u32 s62, s62, s63")
    a("v_and_b32 v13, 15, v2")
    a("v_lshlrev_b32 v13, 7, v13")
    a("buffer_load_dword v16, v13, s[24:27], s62 offen")


def gen_k2c(a, name, NSTG=5, LA=1, wt=0, PRO=5, rot=1, BARPOS=1, RSTEP=1, wpf=1, wpf2=0, pol=0, fuse3=0, etouch=0, swap=1, cw=-1, fused_in=0):
    SOFF = 3 if fused_in else 0
    POL = {0: '', 1: ' sc1', 2: ' nt', 3: ' sc0'}[pol]
    if not fused_in:
        kernel_begin(a, name)
        a("s_cmp_ge_u32 s2, 256")
        a(f"s_cbranch_scc1 {name}_done")
    stamp(a, 0)
    if fused_in:
        a("s_load_dwordx2 s[10:11], s[0:1], 88")
    a("s_load_dwordx4 s[4:7], s[0:1], 8")
    a("s_load_dwordx2 s[8:9], s[0:1], 96")
    a("s_load_dwordx4 s[56:59], s[0:1], 56")
    a("s_load_dwordx2 s[60:61], s[0:1], 72")
    a("s_load_dwordx4 s[64:67], s[0:1], 56")
    a("s_load_dwordx2 s[68:69], s[0:1], 72")
    a("s_and_b32 s3, s2, 7")
    a("s_lshr_b32 s28, s2, 3")
    a("s_and_b32 s29, s3, 1")
    a("s_bfe_u32 s27, s3, 0x10001")
    a("s_lshr_b32 s30, s3, 2")
    a("s_lshl_b32 s30, s30, 3")
    a("s_and_b32 s31, s28, 7")
    a("s_add_u32 s30, s30, s31")
    a("s_lshr_b32 s31, s28, 3")
    if fused_in:
        a("v_mbcnt_lo_u32_b32 v2, -1, 0")
        a("v_mbcnt_hi_u32_b32 v2, -1, v2")
    else:
        a("v_lshrrev_b32 v1, 6, v0")
        a("v_and_b32 v2, 63, v0")
        a("s_nop 0")
        a("v_readfirstlane_b32 s32, v1")
    a("v_lshlrev_b32 v3, 4, v2")
    if swap and not fused_in:
        a("s_xor_b32 s32, s32, 4")
    a("s_cmp_lt_u32 s32, 4")
    a(f"s_cbranch_scc1 {name}_cons")
    a("s_sub_u32 s33, s32, 4")
    a("v_lshrrev_b32 v4, 3, v2")
    a("v_and_b32 v5, 7, v2")
    a("v_lshrrev_b32 v6, 4, v2")
    a("v_xor_b32 v6, v6, v5")
    a("v_xor_b32 v7, 4, v6")
    a("v_lshlrev_b32 v4, 12, v4")
    a("v_lshl_add_u32 v6, v6, 4, v4")
    a("v_lshl_add_u32 v7, v7, 4, v4")
    a("v_mov_b32 v8, v6")
    a(f"v_add_u32 v9, {32768 - 1024}, v7")
    a(f"v_add_u32 v10, {2 * (32768 - 1024)}, v6")
    a(f"v_add_u32 v11, {3 * (32768 - 1024)}, v7")
    a(f"v_add_u32 v12, {65536 - 2048}, v3")
    a("s_lshl_b32 s35, s30, 19")
    a("s_lshl_b32 s34, s33, 17")
    a("s_add_u32 s35, s35, s34")
    a("s_lshl_b32 s34, s27, 11")
    a("s_add_u32 s35, s35, s34")
    a("s_lshl_b32 s36, s29, 5")
    a("s_lshl_b32 s34, s31, 3")
    a("s_add_u32 s36, s36, s34")
    a("s_lshl_b32 s34, s33, 1")
    a("s_add_u32 s36, s36, s34")
    a("s_lshl_b32 s36, s36, 6")
    a("s_lshl_b32 s34, s27, 5")
    a("s_add_u32 s36, s36, s34")
    a("s_lshl_b32 s36, s36, 10")
    a("s_lshl_b32 s37, s33, 12")
    if rot >= 2:
        a("s_lshl_b32 s52, s31, 1")
        a("s_add_u32 s52, s52, s30")
        if rot == 3:
            a("s_add_u32 s52, s31, s30")
    for j in range(4):
        if rot:
            a(f"s_add_u32 s34, s31, {j}")
            a("s_and_b32 s34, s34, 3")
        else:
            a(f"s_mov_b32 s34, {j}")
        a("s_lshl_b32 s38, s34, 7")
        a(f"s_add_u32 s{44 + j}, s35, s38")
        a("s_lshl_b32 s38, s34, 11")
        a(f"s_add_u32 s{48 + j}, s36, s38")
    a("s_waitcnt lgkmcnt(0)")
    stamp(a, 1)
    a("s_cmp_eq_u32 s29, 1")
    a("s_cselect_b32 s4, s6, s4")
    a("s_cselect_b32 s5, s7, s5")
    srd(a, 12, 4, 5, S * S * 2)
    srd(a, 16, 8, 9, 14 << 20)

    def load_stage(s, part=3):
        slot = ((s + SOFF) % NSTG) * 32768
        if part & 1:
            load_c(s, slot)
        if part & 2:
            load_e(s, slot)

    def load_c(s, slot):
        a(f"s_add_u32 m0, s37, {slot}")
        if rot >= 2:
            G8 = {2: 8, 3: 4, 4: 16}[rot]
            a(f"s_add_u32 s53, s52, {s}")
            a(f"s_and_b32 s53, s53, {G8 - 1}")
            a(f"s_add_u32 s53, s53, {s & ~(G8 - 1)}")
            a("s_lshl_b32 s54, s53, 7")
            a("s_add_u32 s38, s35, s54")
        else:
            a(f"s_add_u32 s38, s{44 + (s & 3)}, {(s & ~3) * 128}")
        for i in range(4):
            a(f"buffer_load_dwordx4 v{8 + i}, s[12:15], s38 offen offset:{i * 1024}{POL} lds")

    def load_e(s, slot):
        a(f"s_add_u32 m0, s37, {slot + 16384}")
        if rot >= 2:
            a("s_lshl_b32 s54, s53, 11")
            a("s_add_u32 s39, s36, s54")
        else:
            a(f"s_add_u32 s39, s{48 + (s & 3)}, {(s & ~3) * 2048}")
        for c in range(4):
            a(f"buffer_load_dwordx4 v{3 if c < 2 else 12}, s[16:19], s39 offen offset:{c * 1024}{' sc1' if fused_in else POL} lds")

    NST = 16
    if fused_in:
        PRO = 4
        for s in range(PRO):
            load_stage(s, 1)
        srd(a, 20, 10, 11, 256)
        a("s_lshl_b32 s52, s29, 1")
        a("s_add_u32 s52, s52, s27")
        a("s_lshl_b32 s52, s52, 2")
        a("s_add_u32 s52, s52, s31")
        a("s_lshl_b32 s52, s52, 10")
        a(f"s_add_u32 s52, s52, {WS_FLAG1}")
        a("v_bfe_u32 v13, v2, 2, 3")
        a("v_lshlrev_b32 v13, 7, v13")
        a("v_and_b32 v14, 3, v2")
        a("v_lshl_add_u32 v13, v14, 2, v13")
        a("v_mov_b32 v14, 0")
        a("s_mov_b32 s55, 0x40000")
        a.label(f"{name}_np")
        a("buffer_load_dword v15, v14, s[20:23], 0 offen sc1")
        a("v_and_b32 v17, 3, v2")
        a("v_lshlrev_b32 v17, 12, v17")
        a(f"v_add_u32 v17, {3 * 32768 + 16384}, v17")
        a(f"s_add_u32 s54, s37, {3 * 32768 + 16384}")
        a("v_mov_b32 v18, s54")
        a("s_waitcnt vmcnt(0)")
        a("v_readfirstlane_b32 s53, v15")
        a("s_cmp_lg_u32 s53, 0")
        a(f"s_cbranch_scc1 {name}_nd")
        a("s_sub_u32 s55, s55, 1")
        a(f"s_cbranch_scc0 {name}_np")
        a("s_mov_b32 s55, 0")
        a.label(f"{name}_nd")
        a("s_cmp_lg_u32 s33, 0")
        a(f"s_cbranch_scc1 {name}_lp")
        a.label(f"{name}_ep")
        a("buffer_load_dword v16, v13, s[16:19], s52 offen sc1")
        a("s_waitcnt vmcnt(0)")
        a("v_cmp_ne_u32 vcc, v15, v16")
        a("s_or_b32 s62, vcc_lo, vcc_hi")
        a(f"s_cbranch_scc0 {name}_eo")
        a(f"s_sleep {ESLEEP}")
        a("s_sub_u32 s55, s55, 1")
        a(f"s_cbranch_scc0 {name}_ep")
        a.label(f"{name}_eo")
        a("ds_write_b32 v17, v15")
        a("s_waitcnt lgkmcnt(0)")
        a(f"s_branch {name}_ed")
        a.label(f"{name}_lp")
        a("ds_read_b32 v16, v18")
        a("s_waitcnt lgkmcnt(0)")
        a("v_readfirstlane_b32 s62, v16")
        a("s_cmp_eq_u32 s62, s53")
        a(f"s_cbranch_scc1 {name}_ed")
        a("s_sleep 1")
        a("s_sub_u32 s55, s55, 1")
        a(f"s_cbranch_scc0 {name}_lp")
        a.label(f"{name}_ed")
        for s in range(PRO):
            load_stage(s, 2)
        vq = [st for st in range(PRO) for _ in range(4)]
    else:
        for s in range(PRO):
            load_stage(s)
        vq = [st for st in range(PRO) for _ in range(8)]
    stamp(a, 2)
    issued = PRO
    for s in range(NST):
        idx = max(k for k, t in enumerate(vq) if t == s)
        a(f"s_waitcnt vmcnt({len(vq) - 1 - idx})")
        vq = vq[idx + 1:]
        a("s_barrier")
        n_new = 0
        while issued < NST and issued - NSTG < s and n_new < 2:
            load_stage(issued)
            vq += [issued] * 8
            issued += 1
            n_new += 1
            if issued == wpf:
                emit_wtouch(a, "s33", 13, 14)
                vq.append("w")
            if issued == wpf2:
                emit_wtouch2(a)
                vq += ["w", "w"]
    stamp(a, 5)
    a(f"s_branch {name}_fin")
    a.label(f"{name}_cons")
    a("s_and_b32 s33, s32, 1")
    a("s_lshr_b32 s34, s32, 1")
    a("v_and_b32 v4, 15, v2")
    a("v_lshrrev_b32 v5, 1, v4")
    a("v_lshrrev_b32 v6, 4, v2")
    a("v_xor_b32 v5, v5, v6")
    a("v_lshlrev_b32 v5, 4, v5")
    a("v_lshl_add_u32 v5, v4, 7, v5")
    a("s_lshl_b32 s35, s33, 13")
    a("s_lshl_b32 s36, s34, 13")
    a("s_add_u32 s36, s36, 16384")
    for g in range(3):
        a(f"v_add_u32 v{8 + 3 * g}, s35, v5")
        a(f"v_xor_b32 v{9 + 3 * g}, 64, v5")
        a(f"v_add_u32 v{9 + 3 * g}, s35, v{9 + 3 * g}")
        a(f"v_add_u32 v{10 + 3 * g}, s36, v3")
        if g:
            for r in range(3):
                a(f"v_add_u32 v{8 + 3 * g + r}, {65536 * g}, v{8 + 3 * g + r}")
    ACC = 64
    FB = 128
    for i in range(64):
        a(f"v_mov_b32 v{ACC + i}, 0")
    a("s_waitcnt lgkmcnt(0)")
    stamp(a, 1)
    srd(a, 16, 8, 9, 12 << 20)
    if etouch:
        a("s_lshl_b32 s38, s29, 5")
        a("s_add_u32 s38, s38, s28")
        a("s_lshl_b32 s38, s38, 6")
        a("s_lshl_b32 s39, s27, 5")
        a("s_add_u32 s38, s38, s39")
        a("s_lshl_b32 s38, s38, 10")
        a("s_lshl_b32 s39, s32, 13")
        a("s_add_u32 s38, s38, s39")
        a("v_lshlrev_b32 v20, 7, v2")
        a("buffer_load_dword v21, v20, s[16:19], s38 offen")
    NU = NST * 2

    def read_list(u):
        s, ks = u // 2, u % 2
        slot = (s + SOFF) % NSTG
        g, so = slot // 2, (slot % 2) * 32768
        f = FB + 32 * (u % 2)
        L = []
        for i in range(4):
            L.append(f"ds_read_b128 v[{f + 16 + 4 * i}:{f + 19 + 4 * i}], v{10 + 3 * g} offset:{so + i * 2048 + ks * 1024}")
            L.append(f"ds_read_b128 v[{f + 4 * i}:{f + 3 + 4 * i}], v{8 + 3 * g + ks} offset:{so + i * 2048}")
        return L

    if cw == 100:
        emit_wtouch(a, "s32", 20, 21)
    a("s_barrier")
    stamp(a, 3)
    for r in read_list(0):
        a(r)
    for u in range(NU):
        a("s_waitcnt lgkmcnt(0)")
        f = FB + 32 * (u % 2)
        nxt = read_list(u + 1) if u + 1 < NU else []
        n = 0
        for T in range(4):
            for tt in range(4):
                acc = ACC + (T * 4 + tt) * 4
                a(f"v_mfma_f32_16x16x32_bf16 v[{acc}:{acc + 3}], v[{f + 16 + 4 * T}:{f + 19 + 4 * T}], v[{f + 4 * tt}:{f + 4 * tt + 3}], v[{acc}:{acc + 3}]")
                n += 1
                if n == BARPOS and nxt and (u + 1) % 2 == 0:
                    a("s_barrier")
                    if (u + 1) // 2 == 8:
                        stamp(a, 4)
                if n >= BARPOS and nxt and (n - BARPOS) % RSTEP == 0:
                    a(nxt.pop(0))
                if u == cw and n == 10:
                    emit_wtouch(a, "s32", 20, 21)
        for r in nxt:
            a(r)
    stamp(a, 5)
    a("s_lshl_b32 s35, s30, 7")
    a("s_lshl_b32 s36, s33, 6")
    a("s_add_u32 s35, s35, s36")
    a("s_lshl_b32 s35, s35, 10")
    a("s_lshl_b32 s36, s31, 8")
    a("s_add_u32 s35, s35, s36")
    a("s_lshl_b32 s36, s34, 7")
    a("s_add_u32 s35, s35, s36")
    a("s_lshl_b32 s36, s29, 1")
    a("s_add_u32 s36, s36, s27")
    a("s_lshl_b32 s36, s36, 21")
    a("s_add_u32 s35, s35, s36")
    a(f"s_add_u32 s35, s35, {WS_P}")
    a("v_lshlrev_b32 v6, 4, v6")
    a("v_lshl_add_u32 v6, v4, 10, v6")
    for tt in range(4):
        a(f"s_add_u32 s{40 + tt}, s35, {tt * 16384}")
    for tt in range(4):
        for Th in range(2):
            o = 24 + (tt * 2 + Th) * 4
            for Tl in range(2):
                acc = ACC + ((Th * 2 + Tl) * 4 + tt) * 4
                a(f"v_cvt_pk_bf16_f32 v{o + 2 * Tl}, v{acc}, v{acc + 1}")
                a(f"v_cvt_pk_bf16_f32 v{o + 2 * Tl + 1}, v{acc + 2}, v{acc + 3}")
            a(f"buffer_store_dwordx4 v[{o}:{o + 3}], v6, s[16:19], s{40 + tt} offen offset:{Th * 64}" + (" sc0 sc1" if wt else ""))
    if fuse3:
        a("s_waitcnt vmcnt(0)")
    a.label(f"{name}_fin")
    stamp_flush(a, 2, 6, 8, 9)
    nv = FB + 64
    if fuse3:
        a("s_and_b32 s3, s2, 7")
        a("s_and_b32 s29, s3, 1")
        a("s_bfe_u32 s27, s3, 0x10001")
        a("s_lshl_b32 s62, s29, 1")
        a("s_add_u32 s62, s62, s27")
        a("s_lshl_b32 s62, s62, 2")
        a("s_add_u32 s62, s62, s31")
        a("s_lshl_b32 s63, s30, 4")
        a("s_add_u32 s63, s63, s62")
        a("s_barrier")
        gen_kt(a, name + "t", fused=1)
        a.label(f"{name}_done")
        a("s_endpgm")
        return kernel_desc(name, nv, 72, nv)
    if fused_in:
        return None
    a.label(f"{name}_done")
    a("s_endpgm")
    return kernel_desc(name, nv, 72, nv)


def gen_k1c(a, name, wt=1, PRO=3, pf=1, pace=1, pfw=1, pfxd=1):
    NSTG, SLOT, NST = 4, 32768, 8
    STATS = NSTG * SLOT
    kernel_begin(a, name)
    a("s_cmp_ge_u32 s2, 256")
    a(f"s_cbranch_scc1 {name}_done")
    stamp(a, 0)
    a("s_load_dwordx2 s[4:5], s[0:1], 0")
    a("s_load_dwordx4 s[8:11], s[0:1], 24")
    a("s_load_dwordx2 s[6:7], s[0:1], 96")
    a("s_load_dwordx4 s[40:43], s[0:1], 8")
    a("s_load_dwordx4 s[44:47], s[0:1], 56")
    a("s_load_dwordx2 s[48:49], s[0:1], 72")
    a("s_and_b32 s3, s2, 7")
    a("s_lshr_b32 s28, s2, 4")
    a("s_and_b32 s29, s28, 1")
    a("s_lshl_b32 s30, s3, 1")
    a("s_add_u32 s30, s30, s29")
    a("s_lshr_b32 s31, s28, 1")
    a("v_lshrrev_b32 v1, 6, v0")
    a("v_and_b32 v2, 63, v0")
    a("s_nop 0")
    a("v_readfirstlane_b32 s32, v1")
    a("s_mov_b32 s53, 0xffff0000")
    a("s_bitcmp1_b32 s2, 3")
    a(f"s_cbranch_scc1 {name}_pf")
    a("s_cmp_lt_u32 s32, 4")
    a(f"s_cbranch_scc1 {name}_cons")
    a("s_cmp_ge_u32 s32, 8")
    a(f"s_cbranch_scc1 {name}_stat")
    a("s_sub_u32 s33, s32, 4")
    a("v_lshrrev_b32 v3, 3, v2")
    a("v_and_b32 v4, 7, v2")
    a("v_bfe_u32 v5, v2, 4, 1")
    a("v_xor_b32 v4, v4, v5")
    a("v_lshlrev_b32 v3, 10, v3")
    for i in range(4):
        g0g1 = (i & 1) ^ (i >> 1)
        a(f"v_xor_b32 v{8 + i}, {(2 * i) ^ g0g1}, v4")
        a(f"v_lshl_add_u32 v{8 + i}, v{8 + i}, 4, v3")
        if i:
            a(f"v_add_u32 v{8 + i}, {i * (8192 - 1024)}, v{8 + i}")
    a("s_lshl_b32 s34, s33, 5")
    a("s_lshl_b32 s35, s30, 7")
    a("s_add_u32 s35, s35, s34")
    a("s_lshl_b32 s35, s35, 10")
    a("s_and_b32 s36, s31, 3")
    a("s_lshl_b32 s36, s36, 7")
    a("s_add_u32 s36, s36, s34")
    a("s_lshl_b32 s36, s36, 10")
    a("s_lshl_b32 s37, s33, 12")
    a("v_lshlrev_b32 v12, 6, v2")
    a("v_add_u32 v12, s37, v12")
    a("v_add_u32 v12, 16384, v12")
    a(f"v_add_u32 v13, {2 * SLOT}, v12")
    a("v_mov_b32 v14, 0")
    a("v_mov_b32 v15, 0")
    a("s_mov_b32 s50, 0x3f803f80")
    a("s_waitcnt lgkmcnt(0)")
    stamp(a, 1)
    srd(a, 12, 4, 5, S * D * 2)
    a("s_cmp_ge_u32 s31, 4")
    a("s_cselect_b32 s8, s10, s8")
    a("s_cselect_b32 s9, s11, s9")
    srd(a, 16, 8, 9, D * D * 2)

    def load_stage(kk):
        slot = (kk % NSTG) * SLOT
        a(f"s_add_u32 m0, s37, {slot}")
        a(f"s_add_u32 s39, s35, {kk * 128}")
        for i in range(4):
            a(f"buffer_load_dwordx4 v{8 + i}, s[12:15], s39 offen offset:{i * 1024} lds")
        a(f"s_add_u32 m0, s37, {slot + 16384}")
        a(f"s_add_u32 s39, s36, {kk * 128}")
        for i in range(4):
            a(f"buffer_load_dwordx4 v{8 + i}, s[16:19], s39 offen offset:{i * 1024} lds")

    for kk in range(PRO):
        load_stage(kk)
    stamp(a, 2)
    issued = PRO
    for kk in range(NST):
        a(f"s_waitcnt vmcnt({(issued - 1 - kk) * 8})")
        slot = kk % NSTG
        ar, so = (12, slot * SLOT) if slot < 2 else (13, (slot - 2) * SLOT)
        for q in range(4):
            a(f"ds_read_b128 v[{16 + 4 * q}:{19 + 4 * q}], v{ar} offset:{so + 16 * q}")
        a("s_barrier")
        n_new = 0
        while issued < NST and issued - NSTG < kk and n_new < 2:
            load_stage(issued)
            issued += 1
            n_new += 1
        a("s_waitcnt lgkmcnt(0)")
        for r in range(16):
            a(f"v_dot2_f32_bf16 v{14 + (r & 1)}, v{16 + r}, s50, v{14 + (r & 1)}")
    a("s_nop 2")
    a("v_add_f32 v14, v14, v15")
    a("s_nop 1")
    a(f"v_add_f32_dpp v14, v14, v14 quad_perm:[1,0,3,2] {DPP}")
    a("v_lshrrev_b32 v19, 1, v2")
    a("v_lshlrev_b32 v19, 2, v19")
    a("s_lshl_b32 s34, s33, 7")
    a(f"s_add_u32 s34, s34, {STATS + 1024}")
    a("v_add_u32 v19, s34, v19")
    a("ds_write_b32 v19, v14")
    a("s_waitcnt lgkmcnt(0)")
    stamp(a, 3)
    a("s_barrier")
    a(f"s_branch {name}_fin")
    a.label(f"{name}_stat")
    a("s_sub_u32 s33, s32, 8")
    a("s_lshl_b32 s37, s33, 12")
    a("v_lshlrev_b32 v12, 6, v2")
    a("v_add_u32 v12, s37, v12")
    a(f"v_add_u32 v13, {2 * SLOT}, v12")
    for r in range(4):
        a(f"v_mov_b32 v{80 + r}, 0")
    a("s_waitcnt lgkmcnt(0)")
    stamp(a, 1)

    def stat_valu(base):
        for r in range(16):
            t = 72 + 2 * (r & 3)
            a(f"v_lshlrev_b32 v{t}, 16, v{base + r}")
            a(f"v_and_b32 v{t + 1}, s53, v{base + r}")
            a(f"v_sub_f32 v{t}, v{t}, v18")
            a(f"v_sub_f32 v{t + 1}, v{t + 1}, v18")
            a(f"v_add_f32 v80, v80, v{t}")
            a(f"v_add_f32 v81, v81, v{t + 1}")
            a(f"v_fmac_f32 v82, v{t}, v{t}")
            a(f"v_fmac_f32 v83, v{t + 1}, v{t + 1}")

    for kk in range(NST):
        a("s_barrier")
        slot = kk % NSTG
        ar, so = (12, slot * SLOT) if slot < 2 else (13, (slot - 2) * SLOT)
        base = 32 + 16 * (kk & 1)
        for q in range(4):
            a(f"ds_read_b128 v[{base + 4 * q}:{base + 3 + 4 * q}], v{ar} offset:{so + 16 * q}")
        if kk >= 1:
            stat_valu(32 + 16 * ((kk - 1) & 1))
        a("s_waitcnt lgkmcnt(0)")
        if kk == 0:
            a("v_lshlrev_b32 v18, 16, v32")
            a("s_nop 1")
            a(f"v_mov_b32_dpp v18, v18 quad_perm:[0,0,2,2] {DPP}")
    stat_valu(32 + 16 * ((NST - 1) & 1))
    a("v_add_f32 v14, v80, v81")
    a("v_add_f32 v16, v82, v83")
    a("s_nop 1")
    a(f"v_add_f32_dpp v14, v14, v14 quad_perm:[1,0,3,2] {DPP}")
    a(f"v_add_f32_dpp v16, v16, v16 quad_perm:[1,0,3,2] {DPP}")
    a("v_mul_f32 v14, 0x3b000000, v14")
    a("v_mul_f32 v16, 0x3b000000, v16")
    a("v_fma_f32 v16, -v14, v14, v16")
    a("v_max_f32 v16, 0, v16")
    a("v_add_f32 v14, v14, v18")
    a("v_cvt_pk_bf16_f32 v14, v14, v14")
    a("v_lshlrev_b32 v14, 16, v14")
    a("v_cvt_pk_bf16_f32 v16, v16, v16")
    a("v_lshlrev_b32 v16, 16, v16")
    a("v_add_f32 v16, 0x3727c5ac, v16")
    a("v_cvt_pk_bf16_f32 v16, v16, v16")
    a("v_lshlrev_b32 v16, 16, v16")
    a("v_sqrt_f32 v16, v16")
    a("s_nop 0")
    a("v_cvt_pk_bf16_f32 v16, v16, v16")
    a("v_lshlrev_b32 v16, 16, v16")
    a("v_rcp_f32 v16, v16")
    a("v_lshrrev_b32 v19, 1, v2")
    a("v_lshlrev_b32 v19, 2, v19")
    a("s_lshl_b32 s34, s33, 7")
    a(f"s_add_u32 s34, s34, {STATS}")
    a("v_add_u32 v19, s34, v19")
    a("ds_write_b32 v19, v14")
    a("ds_write_b32 v19, v16 offset:512")
    a("s_waitcnt lgkmcnt(0)")
    stamp(a, 3)
    a("s_barrier")
    a(f"s_branch {name}_fin")
    a.label(f"{name}_cons")
    a("s_and_b32 s33, s32, 1")
    a("s_lshr_b32 s34, s32, 1")
    a("v_and_b32 v4, 15, v2")
    a("v_lshrrev_b32 v6, 4, v2")
    a("v_lshrrev_b32 v5, 2, v4")
    a("v_and_b32 v7, 3, v4")
    a("v_lshl_add_u32 v7, v5, 3, v7")
    a("v_lshrrev_b32 v20, 1, v4")
    a("v_lshrrev_b32 v21, 2, v4")
    a("v_lshrrev_b32 v22, 3, v4")
    a("v_xor_b32 v21, v21, v22")
    a("v_and_b32 v21, 1, v21")
    a("v_xor_b32 v20, v20, v21")
    a("v_xor_b32 v20, v20, v6")
    a("v_lshlrev_b32 v20, 4, v20")
    a("v_lshl_add_u32 v20, v7, 7, v20")
    a("s_lshl_b32 s35, s33, 13")
    a("s_lshl_b32 s36, s34, 13")
    a("s_add_u32 s36, s36, 16384")
    for g2 in range(2):
        a(f"v_add_u32 v{8 + 4 * g2}, s35, v20")
        a(f"v_xor_b32 v{9 + 4 * g2}, 64, v{8 + 4 * g2}")
        a(f"v_add_u32 v{10 + 4 * g2}, s36, v20")
        a(f"v_xor_b32 v{11 + 4 * g2}, 64, v{10 + 4 * g2}")
        if g2:
            for r in range(4):
                a(f"v_add_u32 v{8 + 4 * g2 + r}, {65536 * g2}, v{8 + 4 * g2 + r}")
    ACC = 32
    FB = 96
    for i in range(64):
        a(f"v_mov_b32 v{ACC + i}, 0")
    a("s_waitcnt lgkmcnt(0)")
    stamp(a, 1)
    srd(a, 20, 6, 7, 4 << 20)
    NU = NST * 2

    def reads(u):
        s, ks = u // 2, u % 2
        slot = s % NSTG
        g2, so = slot // 2, (slot % 2) * SLOT
        f = FB + 32 * (u % 2)
        if ks == 0:
            a("s_waitcnt lgkmcnt(0)")
            a("s_barrier")
            if s == 0:
                stamp(a, 2)
        for i in range(4):
            off = so + (i >> 1) * 4096 + (i & 1) * 512
            a(f"ds_read_b128 v[{f + 4 * i}:{f + 3 + 4 * i}], v{8 + 4 * g2 + ks} offset:{off}")
            a(f"ds_read_b128 v[{f + 16 + 4 * i}:{f + 19 + 4 * i}], v{10 + 4 * g2 + ks} offset:{off}")

    reads(0)
    for u in range(NU):
        if u + 1 < NU:
            reads(u + 1)
            a("s_waitcnt lgkmcnt(8)")
        else:
            a("s_waitcnt lgkmcnt(0)")
        f = FB + 32 * (u % 2)
        for xi in range(4):
            for T in range(4):
                acc = ACC + (xi * 4 + T) * 4
                a(f"v_mfma_f32_16x16x32_bf16 v[{acc}:{acc + 3}], v[{f + 4 * xi}:{f + 3 + 4 * xi}], v[{f + 16 + 4 * T}:{f + 19 + 4 * T}], v[{acc}:{acc + 3}]")
    stamp(a, 3)
    a("s_barrier")
    stamp(a, 4)
    a("s_lshl_b32 s35, s33, 8")
    a(f"s_add_u32 s35, s35, {STATS}")
    a("v_lshlrev_b32 v20, 5, v6")
    a("v_add_u32 v20, s35, v20")
    for blk in range(2):
        for h in range(2):
            a(f"ds_read_b128 v[{96 + 16 * blk + 4 * h}:{99 + 16 * blk + 4 * h}], v20 offset:{128 * blk + 16 * h}")
            a(f"ds_read_b128 v[{104 + 16 * blk + 4 * h}:{107 + 16 * blk + 4 * h}], v20 offset:{512 + 128 * blk + 16 * h}")
    a("s_lshl_b32 s36, s34, 8")
    a(f"s_add_u32 s36, s36, {STATS + 1024}")
    a("v_lshlrev_b32 v21, 2, v7")
    a("v_add_u32 v21, s36, v21")
    for T in range(4):
        a(f"ds_read_b32 v{128 + T}, v21 offset:{(T >> 1) * 128 + (T & 1) * 16}")
    a("s_lshl_b32 s35, s31, 3")
    a("s_lshl_b32 s36, s34, 2")
    a("s_add_u32 s35, s35, s36")
    a("s_lshl_b32 s35, s35, 6")
    a("s_lshl_b32 s36, s30, 2")
    a("s_add_u32 s35, s35, s36")
    a("s_lshl_b32 s36, s33, 1")
    a("s_add_u32 s35, s35, s36")
    a("s_lshl_b32 s35, s35, 10")
    for T in range(4):
        a(f"s_add_u32 s{40 + T}, s35, {T * 65536}")
    a("v_lshlrev_b32 v22, 4, v2")
    a("s_waitcnt lgkmcnt(0)")
    for blk in range(2):
        for T in range(4):
            o = 132 + 4 * ((blk * 4 + T) & 3)
            for hb in range(2):
                acc = ACC + ((blk * 2 + hb) * 4 + T) * 4
                for j in range(4):
                    a(f"v_fma_f32 v{acc + j}, -v{96 + 16 * blk + 4 * hb + j}, v{128 + T}, v{acc + j}")
                    a(f"v_mul_f32 v{acc + j}, v{acc + j}, v{104 + 16 * blk + 4 * hb + j}")
                a(f"v_cvt_pk_bf16_f32 v{o + 2 * hb}, v{acc}, v{acc + 1}")
                a(f"v_cvt_pk_bf16_f32 v{o + 2 * hb + 1}, v{acc + 2}, v{acc + 3}")
            a(f"buffer_store_dwordx4 v[{o}:{o + 3}], v22, s[20:23], s{40 + T} offen offset:{blk * 1024}" + (" sc0 sc1" if wt else ""))
    stamp(a, 5)
    a(f"s_branch {name}_fin")
    a.label(f"{name}_pf")
    a("s_waitcnt lgkmcnt(0)")
    stamp(a, 1)
    if pf:
        a("v_lshlrev_b32 v3, 7, v2")
        a("v_lshrrev_b32 v4, 4, v2")
        a("v_lshlrev_b32 v4, 12, v4")
        a("v_and_b32 v5, 15, v2")
        a("v_lshl_add_u32 v4, v5, 7, v4")
        a("s_mul_i32 s33, s28, 12")
        a("s_add_u32 s33, s33, s32")
        nld = 0
        if pfxd:
            srd(a, 12, 4, 5, S * D * 2)
            srd(a, 16, 8, 9, D * D * 2)
            srd(a, 20, 10, 11, D * D * 2)
            a("s_lshl_b32 s34, s33, 13")
            a("s_lshl_b32 s35, s3, 18")
            a("s_add_u32 s35, s35, s34")
            a("s_cmp_lt_u32 s33, 32")
            a(f"s_cbranch_scc0 {name}_pf1")
            a("buffer_load_dword v10, v3, s[12:15], s35 offen")
            a(f"s_branch {name}_pf3")
            a.label(f"{name}_pf1")
            a("s_sub_u32 s34, s34, 262144")
            a("s_cmp_lt_u32 s33, 96")
            a(f"s_cbranch_scc0 {name}_pf2")
            a("buffer_load_dword v10, v3, s[16:19], s34 offen")
            a(f"s_branch {name}_pf3")
            a.label(f"{name}_pf2")
            a("s_sub_u32 s34, s34, 524288")
            a("buffer_load_dword v10, v3, s[20:23], s34 offen")
            a.label(f"{name}_pf3")
            if pace:
                a("s_waitcnt vmcnt(0)")
        a("s_and_b32 s48, s3, 1")
        a("s_cmp_eq_u32 s48, 1")
        a("s_cselect_b32 s40, s42, s40")
        a("s_cselect_b32 s41, s43, s41")
        srd(a, 24, 40, 41, S * S * 2)
        a("s_cmp_ge_u32 s33, 128")
        a(f"s_cbranch_scc1 {name}_fin")
        a("s_lshr_b32 s48, s3, 2")
        a("s_lshl_b32 s48, s48, 10")
        a("s_lshl_b32 s49, s33, 3")
        a("s_add_u32 s48, s48, s49")
        a("s_lshl_b32 s48, s48, 12")
        a("s_bfe_u32 s49, s3, 0x10001")
        a("s_lshl_b32 s49, s49, 11")
        a("s_add_u32 s48, s48, s49")
        a("buffer_load_dword v11, v4, s[24:27], s48 offen")
        if pace >= 2:
            a("s_waitcnt vmcnt(0)")
        a("s_add_u32 s48, s48, 16384")
        a("buffer_load_dword v12, v4, s[24:27], s48 offen")
    a.label(f"{name}_fin")
    stamp_flush(a, 1, 6, 6, 7)
    a.label(f"{name}_done")
    a("s_endpgm")
    return kernel_desc(name, 160, 64, 160)


WS_STATS = (12 << 20) + (1 << 19) + 8192
WS_FLAG1 = WS_STATS + 65536
WS_CS = WS_STATS + 16384


def gen_k1d(a, name, wt=1, PRO=3, pf=1, pace=1, pfq=4):
    NSTG, SLOT, NST = 4, 32768, 8
    STATS = NSTG * SLOT
    kernel_begin(a, name)
    a("s_cmp_ge_u32 s2, 256")
    a(f"s_cbranch_scc1 {name}_done")
    stamp(a, 0)
    a("s_load_dwordx2 s[4:5], s[0:1], 0")
    a("s_load_dwordx4 s[8:11], s[0:1], 24")
    a("s_load_dwordx4 s[44:47], s[0:1], 88")
    a("s_load_dwordx4 s[40:43], s[0:1], 8")
    a("s_and_b32 s3, s2, 7")
    a("s_lshr_b32 s28, s2, 4")
    a("s_and_b32 s29, s28, 1")
    a("s_lshl_b32 s30, s3, 1")
    a("s_add_u32 s30, s30, s29")
    a("s_lshr_b32 s31, s28, 1")
    a("v_lshrrev_b32 v1, 6, v0")
    a("v_and_b32 v2, 63, v0")
    a("s_nop 0")
    a("v_readfirstlane_b32 s32, v1")
    a("s_mov_b32 s53, 0xffff0000")
    a("s_bitcmp1_b32 s2, 3")
    a(f"s_cbranch_scc1 {name}_aux")
    a("s_cmp_lt_u32 s32, 4")
    a(f"s_cbranch_scc1 {name}_cons")
    a("s_sub_u32 s33, s32, 4")
    a("v_lshrrev_b32 v3, 3, v2")
    a("v_and_b32 v4, 7, v2")
    a("v_bfe_u32 v5, v2, 4, 1")
    a("v_xor_b32 v4, v4, v5")
    a("v_lshlrev_b32 v3, 10, v3")
    for i in range(4):
        g0g1 = (i & 1) ^ (i >> 1)
        a(f"v_xor_b32 v{8 + i}, {(2 * i) ^ g0g1}, v4")
        a(f"v_lshl_add_u32 v{8 + i}, v{8 + i}, 4, v3")
        if i:
            a(f"v_add_u32 v{8 + i}, {i * (8192 - 1024)}, v{8 + i}")
    a("s_lshl_b32 s34, s33, 5")
    a("s_lshl_b32 s35, s30, 7")
    a("s_add_u32 s35, s35, s34")
    a("s_lshl_b32 s38, s35, 3")
    a("s_lshl_b32 s35, s35, 10")
    a("s_and_b32 s36, s31, 3")
    a("s_lshl_b32 s36, s36, 7")
    a("s_add_u32 s36, s36, s34")
    a("s_lshl_b32 s36, s36, 10")
    a("s_lshl_b32 s37, s33, 12")
    a("v_lshlrev_b32 v12, 6, v2")
    a("v_add_u32 v12, s37, v12")
    a("v_add_u32 v12, 16384, v12")
    a(f"v_add_u32 v13, {2 * SLOT}, v12")
    a("v_mov_b32 v14, 0")
    a("v_mov_b32 v15, 0")
    a("s_mov_b32 s50, 0x3f803f80")
    a("s_waitcnt lgkmcnt(0)")
    stamp(a, 1)
    srd(a, 12, 4, 5, S * D * 2)
    a("s_cmp_ge_u32 s31, 4")
    a("s_cselect_b32 s8, s10, s8")
    a("s_cselect_b32 s9, s11, s9")
    srd(a, 16, 8, 9, D * D * 2)
    srd(a, 20, 46, 47, 14 << 20)
    srd(a, 24, 44, 45, 256)

    def load_stage(kk):
        slot = (kk % NSTG) * SLOT
        a(f"s_add_u32 m0, s37, {slot}")
        a(f"s_add_u32 s39, s35, {kk * 128}")
        for i in range(4):
            a(f"buffer_load_dwordx4 v{8 + i}, s[12:15], s39 offen offset:{i * 1024} lds")
        a(f"s_add_u32 m0, s37, {slot + 16384}")
        a(f"s_add_u32 s39, s36, {kk * 128}")
        for i in range(4):
            a(f"buffer_load_dwordx4 v{8 + i}, s[16:19], s39 offen offset:{i * 1024} lds")

    for kk in range(PRO):
        load_stage(kk)
    stamp(a, 2)
    issued = PRO
    for kk in range(NST):
        a(f"s_waitcnt vmcnt({(issued - 1 - kk) * 8})")
        slot = kk % NSTG
        ar, so = (12, slot * SLOT) if slot < 2 else (13, (slot - 2) * SLOT)
        for q in range(4):
            a(f"ds_read_b128 v[{16 + 4 * q}:{19 + 4 * q}], v{ar} offset:{so + 16 * q}")
        a("s_barrier")
        n_new = 0
        while issued < NST and issued - NSTG < kk and n_new < 2:
            load_stage(issued)
            issued += 1
            n_new += 1
        a("s_waitcnt lgkmcnt(0)")
        for r in range(16):
            a(f"v_dot2_f32_bf16 v{14 + (r & 1)}, v{16 + r}, s50, v{14 + (r & 1)}")
    a("s_lshl_b32 s34, s30, 2")
    a("v_mov_b32 v20, s34")
    a.label(f"{name}_poll")
    a("buffer_load_dword v21, v20, s[24:27], 0 offen sc0 sc1")
    a("s_waitcnt vmcnt(0)")
    a("v_readfirstlane_b32 s34, v21")
    a("s_cmp_ge_u32 s34, 8")
    a(f"s_cbranch_scc1 {name}_polled")
    a("s_sleep 2")
    a(f"s_branch {name}_poll")
    a.label(f"{name}_polled")
    a("v_and_b32 v20, 31, v2")
    a("v_lshlrev_b32 v20, 3, v20")
    a(f"s_add_u32 s38, s38, {WS_STATS}")
    a("buffer_load_dwordx2 v[22:23], v20, s[20:23], s38 offen sc0 sc1")
    a("v_add_f32 v14, v14, v15")
    a("s_nop 1")
    a(f"v_add_f32_dpp v14, v14, v14 quad_perm:[1,0,3,2] {DPP}")
    a("v_lshrrev_b32 v19, 1, v2")
    a("v_lshlrev_b32 v19, 2, v19")
    a("s_lshl_b32 s34, s33, 7")
    a(f"s_add_u32 s34, s34, {STATS + 1024}")
    a("v_add_u32 v19, s34, v19")
    a("ds_write_b32 v19, v14")
    a("v_lshrrev_b32 v20, 1, v20")
    a("s_lshl_b32 s34, s33, 7")
    a(f"s_add_u32 s34, s34, {STATS}")
    a("v_add_u32 v20, s34, v20")
    a("s_waitcnt vmcnt(0)")
    a("ds_write_b32 v20, v22")
    a("ds_write_b32 v20, v23 offset:512")
    a("s_waitcnt lgkmcnt(0)")
    stamp(a, 3)
    a("s_barrier")
    a(f"s_branch {name}_fin")
    a.label(f"{name}_cons")
    a("s_and_b32 s33, s32, 1")
    a("s_lshr_b32 s34, s32, 1")
    a("v_and_b32 v4, 15, v2")
    a("v_lshrrev_b32 v6, 4, v2")
    a("v_lshrrev_b32 v5, 2, v4")
    a("v_and_b32 v7, 3, v4")
    a("v_lshl_add_u32 v7, v5, 3, v7")
    a("v_lshrrev_b32 v20, 1, v4")
    a("v_lshrrev_b32 v21, 2, v4")
    a("v_lshrrev_b32 v22, 3, v4")
    a("v_xor_b32 v21, v21, v22")
    a("v_and_b32 v21, 1, v21")
    a("v_xor_b32 v20, v20, v21")
    a("v_xor_b32 v20, v20, v6")
    a("v_lshlrev_b32 v20, 4, v20")
    a("v_lshl_add_u32 v20, v7, 7, v20")
    a("s_lshl_b32 s35, s33, 13")
    a("s_lshl_b32 s36, s34, 13")
    a("s_add_u32 s36, s36, 16384")
    for g2 in range(2):
        a(f"v_add_u32 v{8 + 4 * g2}, s35, v20")
        a(f"v_xor_b32 v{9 + 4 * g2}, 64, v{8 + 4 * g2}")
        a(f"v_add_u32 v{10 + 4 * g2}, s36, v20")
        a(f"v_xor_b32 v{11 + 4 * g2}, 64, v{10 + 4 * g2}")
        if g2:
            for r in range(4):
                a(f"v_add_u32 v{8 + 4 * g2 + r}, {65536 * g2}, v{8 + 4 * g2 + r}")
    ACC = 32
    FB = 96
    for i in range(64):
        a(f"v_mov_b32 v{ACC + i}, 0")
    a("s_waitcnt lgkmcnt(0)")
    stamp(a, 1)
    srd(a, 20, 46, 47, 4 << 20)
    NU = NST * 2

    def read_list(u):
        s, ks = u // 2, u % 2
        slot = s % NSTG
        g2, so = slot // 2, (slot % 2) * SLOT
        f = FB + 32 * (u % 2)
        L = []
        for i in range(4):
            off = so + (i >> 1) * 4096 + (i & 1) * 512
            L.append(f"ds_read_b128 v[{f + 4 * i}:{f + 3 + 4 * i}], v{8 + 4 * g2 + ks} offset:{off}")
            L.append(f"ds_read_b128 v[{f + 16 + 4 * i}:{f + 19 + 4 * i}], v{10 + 4 * g2 + ks} offset:{off}")
        return L

    a("s_barrier")
    stamp(a, 2)
    for r in read_list(0):
        a(r)
    for u in range(NU):
        a("s_waitcnt lgkmcnt(0)")
        f = FB + 32 * (u % 2)
        nxt = read_list(u + 1) if u + 1 < NU else []
        n = 0
        for xi in range(4):
            for T in range(4):
                acc = ACC + (xi * 4 + T) * 4
                a(f"v_mfma_f32_16x16x32_bf16 v[{acc}:{acc + 3}], v[{f + 4 * xi}:{f + 3 + 4 * xi}], v[{f + 16 + 4 * T}:{f + 19 + 4 * T}], v[{acc}:{acc + 3}]")
                n += 1
                if n == 1 and nxt and (u + 1) % 2 == 0:
                    a("s_barrier")
                if nxt:
                    a(nxt.pop(0))
    stamp(a, 3)
    a("s_barrier")
    stamp(a, 4)
    a("s_lshl_b32 s35, s33, 8")
    a(f"s_add_u32 s35, s35, {STATS}")
    a("v_lshlrev_b32 v20, 5, v6")
    a("v_add_u32 v20, s35, v20")
    for blk in range(2):
        for h in range(2):
            a(f"ds_read_b128 v[{96 + 16 * blk + 4 * h}:{99 + 16 * blk + 4 * h}], v20 offset:{128 * blk + 16 * h}")
            a(f"ds_read_b128 v[{104 + 16 * blk + 4 * h}:{107 + 16 * blk + 4 * h}], v20 offset:{512 + 128 * blk + 16 * h}")
    a("s_lshl_b32 s36, s34, 8")
    a(f"s_add_u32 s36, s36, {STATS + 1024}")
    a("v_lshlrev_b32 v21, 2, v7")
    a("v_add_u32 v21, s36, v21")
    for T in range(4):
        a(f"ds_read_b32 v{128 + T}, v21 offset:{(T >> 1) * 128 + (T & 1) * 16}")
    a("s_lshl_b32 s35, s31, 3")
    a("s_lshl_b32 s36, s34, 2")
    a("s_add_u32 s35, s35, s36")
    a("s_lshl_b32 s35, s35, 6")
    a("s_lshl_b32 s36, s30, 2")
    a("s_add_u32 s35, s35, s36")
    a("s_lshl_b32 s36, s33, 1")
    a("s_add_u32 s35, s35, s36")
    a("s_lshl_b32 s35, s35, 10")
    for T in range(4):
        a(f"s_add_u32 s{40 + T}, s35, {T * 65536}")
    a("v_lshlrev_b32 v22, 4, v2")
    a("s_waitcnt lgkmcnt(0)")
    for blk in range(2):
        for T in range(4):
            o = 132 + 4 * ((blk * 4 + T) & 3)
            for hb in range(2):
                acc = ACC + ((blk * 2 + hb) * 4 + T) * 4
                for j in range(4):
                    a(f"v_fma_f32 v{acc + j}, -v{96 + 16 * blk + 4 * hb + j}, v{128 + T}, v{acc + j}")
                    a(f"v_mul_f32 v{acc + j}, v{acc + j}, v{104 + 16 * blk + 4 * hb + j}")
                a(f"v_cvt_pk_bf16_f32 v{o + 2 * hb}, v{acc}, v{acc + 1}")
                a(f"v_cvt_pk_bf16_f32 v{o + 2 * hb + 1}, v{acc + 2}, v{acc + 3}")
            a(f"buffer_store_dwordx4 v[{o}:{o + 3}], v22, s[20:23], s{40 + T} offen offset:{blk * 1024}" + (" sc0 sc1" if wt else ""))
    stamp(a, 5)
    a(f"s_branch {name}_fin")
    a.label(f"{name}_aux")
    a("v_mov_b32 v3, 0")
    a("ds_write_b32 v3, v3")
    a("s_waitcnt lgkmcnt(0)")
    a("s_barrier")
    stamp(a, 1)
    a("s_cmp_ge_u32 s32, 4")
    a(f"s_cbranch_scc1 {name}_pfw")
    a("s_lshl_b32 s33, s3, 8")
    a("s_lshl_b32 s34, s28, 4")
    a("s_add_u32 s33, s33, s34")
    a("s_lshl_b32 s34, s32, 2")
    a("s_add_u32 s33, s33, s34")
    a("v_lshrrev_b32 v3, 4, v2")
    a("v_and_b32 v4, 15, v2")
    a("v_lshlrev_b32 v5, 10, v3")
    a("v_lshl_add_u32 v5, v4, 4, v5")
    a("s_lshl_b32 s34, s33, 10")
    srd(a, 12, 4, 5, S * D * 2)
    for jj in range(4):
        a(f"buffer_load_dwordx4 v[{16 + 4 * jj}:{19 + 4 * jj}], v5, s[12:15], s34 offen offset:{256 * jj}")
    srd(a, 20, 46, 47, 14 << 20)
    srd(a, 28, 44, 45, 256)
    a("s_waitcnt vmcnt(0)")
    stamp(a, 2)
    X = 32
    for r in range(16):
        a(f"v_lshlrev_b32 v{X + 2 * r}, 16, v{16 + r}")
        a(f"v_and_b32 v{X + 2 * r + 1}, s53, v{16 + r}")
    a(f"v_add_f32 v8, v{X}, v{X + 1}")
    a(f"v_add_f32 v9, v{X + 2}, v{X + 3}")
    for r in range(4, 32, 2):
        a(f"v_add_f32 v8, v8, v{X + r}")
        a(f"v_add_f32 v9, v9, v{X + r + 1}")
    a("v_add_f32 v8, v8, v9")

    def red16(v):
        for pat in ("quad_perm:[1,0,3,2]", "quad_perm:[2,3,0,1]", "row_half_mirror", "row_mirror"):
            a("s_nop 1")
            a(f"v_add_f32_dpp v{v}, v{v}, v{v} {pat} {DPP}")

    red16(8)
    a("v_mul_f32 v8, 0x3b000000, v8")
    a("v_mov_b32 v10, 0")
    a("v_mov_b32 v11, 0")
    for r in range(0, 32, 2):
        a(f"v_sub_f32 v{X + r}, v{X + r}, v8")
        a(f"v_sub_f32 v{X + r + 1}, v{X + r + 1}, v8")
        a(f"v_fmac_f32 v10, v{X + r}, v{X + r}")
        a(f"v_fmac_f32 v11, v{X + r + 1}, v{X + r + 1}")
    a("v_add_f32 v10, v10, v11")
    red16(10)
    a("v_mul_f32 v10, 0x3b000000, v10")
    a("v_cvt_pk_bf16_f32 v12, v8, v8")
    a("v_lshlrev_b32 v12, 16, v12")
    a("v_cvt_pk_bf16_f32 v10, v10, v10")
    a("v_lshlrev_b32 v10, 16, v10")
    a("v_add_f32 v10, 0x3727c5ac, v10")
    a("v_cvt_pk_bf16_f32 v10, v10, v10")
    a("v_lshlrev_b32 v10, 16, v10")
    a("v_sqrt_f32 v10, v10")
    a("s_nop 0")
    a("v_cvt_pk_bf16_f32 v10, v10, v10")
    a("v_lshlrev_b32 v10, 16, v10")
    a("v_rcp_f32 v13, v10")
    a("v_lshlrev_b32 v14, 3, v3")
    a("s_lshl_b32 s36, s33, 3")
    a(f"s_add_u32 s36, s36, {WS_STATS}")
    a("v_cmp_eq_u32 vcc, 0, v4")
    a("s_and_saveexec_b64 s[54:55], vcc")
    a("buffer_store_dwordx2 v[12:13], v14, s[20:23], s36 offen sc0 sc1")
    a("s_mov_b64 exec, s[54:55]")
    a("s_waitcnt vmcnt(0)")
    stamp(a, 3)
    a("v_mov_b32 v14, 0")
    a("v_mov_b32 v15, 1")
    a("v_cmp_eq_u32 vcc, 0, v2")
    a("s_and_saveexec_b64 s[54:55], vcc")
    a("ds_add_rtn_u32 v6, v14, v15")
    a("s_waitcnt lgkmcnt(0)")
    a("v_readfirstlane_b32 s36, v6")
    a("s_cmp_lg_u32 s36, 3")
    a(f"s_cbranch_scc1 {name}_nosig")
    a("s_lshr_b32 s36, s33, 7")
    a("s_lshl_b32 s36, s36, 2")
    a("v_mov_b32 v14, s36")
    a("buffer_atomic_add v15, v14, s[28:31], 0 offen")
    a.label(f"{name}_nosig")
    a("s_mov_b64 exec, s[54:55]")
    a(f"s_branch {name}_fin")
    a.label(f"{name}_pfw")
    a("v_lshlrev_b32 v6, 7, v2")
    a("v_lshrrev_b32 v7, 4, v2")
    a("v_lshlrev_b32 v7, 12, v7")
    a("v_and_b32 v8, 15, v2")
    a("v_lshl_add_u32 v7, v8, 7, v7")
    a("s_lshl_b32 s35, s28, 2")
    a("s_add_u32 s35, s35, s32")
    a("s_sub_u32 s35, s35, 4")
    srd(a, 16, 8, 9, D * D * 2)
    srd(a, 20, 10, 11, D * D * 2)
    a("s_lshl_b32 s36, s35, 13")
    a("buffer_load_dword v10, v6, s[16:19], s36 offen")
    a("buffer_load_dword v11, v6, s[20:23], s36 offen")
    a("s_and_b32 s48, s3, 1")
    a("s_cmp_eq_u32 s48, 1")
    a("s_cselect_b32 s40, s42, s40")
    a("s_cselect_b32 s41, s43, s41")
    srd(a, 24, 40, 41, S * S * 2)
    a("s_lshr_b32 s48, s3, 2")
    a("s_lshl_b32 s48, s48, 10")
    a("s_lshl_b32 s49, s35, 4")
    a("s_add_u32 s48, s48, s49")
    a("s_lshl_b32 s48, s48, 12")
    a("s_bfe_u32 s49, s3, 0x10001")
    a("s_lshl_b32 s49, s49, 11")
    a("s_add_u32 s48, s48, s49")
    if pace:
        a("s_waitcnt vmcnt(0)")
    stamp(a, 2)
    if pf:
        if pfq < 4:
            a(f"v_cmp_gt_u32 vcc, {4 * pfq}, v8")
            a("s_and_saveexec_b64 s[54:55], vcc")
        for ii in range(4):
            a(f"s_add_u32 s49, s48, {ii * 16384}")
            a(f"buffer_load_dword v{12 + ii}, v7, s[24:27], s49 offen")
        if pfq < 4:
            a("s_mov_b64 exec, s[54:55]")
    a.label(f"{name}_fin")
    stamp_flush(a, 1, 6, 46, 47)
    a.label(f"{name}_done")
    a("s_endpgm")
    return kernel_desc(name, 160, 64, 160)


def gen_k1e(a, name, wt=1, PRO=4, pf=1, pace=1, U1=10, U2=12, pfq=4, pol=0, ppol=0, tlb=0, UC=13, vst=0, swap=1, wk1=0, early=0, fuse2=None, cpre=0):
    POL = {0: '', 1: ' sc1', 2: ' nt', 3: ' sc0'}[pol]
    PPOL = {0: '', 1: ' sc1', 2: ' nt', 3: ' sc0'}[ppol]
    NSTG, SLOT, NST = 5, 32768, 8
    CS = 3 * SLOT
    kernel_begin(a, name)
    a("s_cmp_ge_u32 s2, 256")
    a(f"s_cbranch_scc1 {name}_done")
    stamp(a, 0)
    a("s_load_dwordx2 s[4:5], s[0:1], 0")
    a("s_load_dwordx4 s[8:11], s[0:1], 24")
    a("s_load_dwordx4 s[44:47], s[0:1], 88")
    a("s_load_dwordx4 s[40:43], s[0:1], 8")
    a("s_and_b32 s3, s2, 7")
    a("s_lshr_b32 s28, s2, 4")
    a("s_and_b32 s29, s3, 1")
    a("s_bfe_u32 s27, s3, 0x10001")
    a("s_lshr_b32 s26, s3, 2")
    a("s_lshl_b32 s30, s27, 3")
    a("s_lshl_b32 s34, s26, 2")
    a("s_add_u32 s30, s30, s34")
    a("s_and_b32 s34, s28, 3")
    a("s_add_u32 s30, s30, s34")
    a("s_lshr_b32 s31, s28, 2")
    a("v_lshrrev_b32 v1, 6, v0")
    a("v_and_b32 v2, 63, v0")
    a("s_nop 0")
    a("v_readfirstlane_b32 s32, v1")
    a("s_mov_b32 s53, 0xffff0000")
    a("s_mov_b32 s69, 0x40000")
    a("s_bitcmp1_b32 s2, 3")
    a(f"s_cbranch_scc1 {name}_aux")
    if swap:
        a("s_xor_b32 s32, s32, 4")
    a("s_cmp_lt_u32 s32, 4")
    a(f"s_cbranch_scc1 {name}_cons")
    a("s_sub_u32 s33, s32, 4")
    a("v_lshrrev_b32 v3, 3, v2")
    a("v_and_b32 v4, 7, v2")
    a("v_bfe_u32 v5, v2, 4, 1")
    a("v_xor_b32 v4, v4, v5")
    a("v_lshlrev_b32 v3, 10, v3")
    for i in range(4):
        g0g1 = (i & 1) ^ (i >> 1)
        a(f"v_xor_b32 v{8 + i}, {(2 * i) ^ g0g1}, v4")
        a(f"v_lshl_add_u32 v{8 + i}, v{8 + i}, 4, v3")
        if i:
            a(f"v_add_u32 v{8 + i}, {i * (8192 - 1024)}, v{8 + i}")
    a("s_lshl_b32 s34, s33, 5")
    a("s_lshl_b32 s35, s30, 7")
    a("s_add_u32 s35, s35, s34")
    a("s_lshl_b32 s35, s35, 10")
    a("s_lshl_b32 s36, s31, 7")
    a("s_add_u32 s36, s36, s34")
    a("s_lshl_b32 s36, s36, 10")
    a("s_lshl_b32 s37, s33, 12")
    a("v_lshlrev_b32 v12, 6, v2")
    a("v_add_u32 v12, s37, v12")
    a("v_add_u32 v12, 16384, v12")
    a(f"v_add_u32 v13, {2 * SLOT}, v12")
    a(f"v_add_u32 v6, {4 * SLOT}, v12")
    a("v_mov_b32 v14, 0")
    a("v_mov_b32 v15, 0")
    a("s_mov_b32 s50, 0x3f803f80")
    a("s_waitcnt lgkmcnt(0)")
    stamp(a, 1)
    srd(a, 12, 4, 5, S * D * 2)
    a("s_cmp_eq_u32 s29, 1")
    a("s_cselect_b32 s8, s10, s8")
    a("s_cselect_b32 s9, s11, s9")
    srd(a, 16, 8, 9, D * D * 2)

    def load_stage(kk):
        slot = (kk % NSTG) * SLOT
        a(f"s_add_u32 m0, s37, {slot}")
        a(f"s_add_u32 s39, s35, {kk * 128}")
        for i in range(4):
            a(f"buffer_load_dwordx4 v{8 + i}, s[12:15], s39 offen offset:{i * 1024}{POL} lds")
        a(f"s_add_u32 m0, s37, {slot + 16384}")
        a(f"s_add_u32 s39, s36, {kk * 128}")
        for i in range(4):
            a(f"buffer_load_dwordx4 v{8 + i}, s[16:19], s39 offen offset:{i * 1024}{POL} lds")

    if vst:
        VB = 32

        def vload_stage(kk):
            r = VB + (kk - NSTG) * 32
            a(f"s_add_u32 s39, s35, {kk * 128}")
            for i in range(4):
                a(f"buffer_load_dwordx4 v[{r + 4 * i}:{r + 4 * i + 3}], v{8 + i}, s[12:15], s39 offen offset:{i * 1024}")
            a(f"s_add_u32 s39, s36, {kk * 128}")
            for i in range(4):
                a(f"buffer_load_dwordx4 v[{r + 16 + 4 * i}:{r + 19 + 4 * i}], v{8 + i}, s[16:19], s39 offen offset:{i * 1024}")

        def vwrite_stage(kk):
            r = VB + (kk - NSTG) * 32
            slot = (kk % NSTG) * SLOT
            ar = 16 if slot < 65536 - 32768 + 1 else 17
            so = slot if ar == 16 else slot - 65536
            for i in range(4):
                a(f"ds_write_b128 v{ar}, v[{r + 4 * i}:{r + 4 * i + 3}] offset:{so + i * 1024}")
                a(f"ds_write_b128 v{ar}, v[{r + 16 + 4 * i}:{r + 19 + 4 * i}] offset:{so + 16384 + i * 1024}")

        a("v_lshlrev_b32 v16, 4, v2")
        a("v_add_u32 v16, s37, v16")
        a("v_add_u32 v17, 65536, v16")
        for kk in range(PRO):
            load_stage(kk)
        stamp(a, 2)
        issued = PRO
        for kk in range(NST):
            if kk < NSTG:
                a(f"s_waitcnt vmcnt({(issued - 1 - kk) * 8})")
            else:
                a("s_waitcnt lgkmcnt(0)")
            a("s_barrier")
            n_new = 0
            while issued < NST and n_new < 2:
                (load_stage if issued < NSTG else vload_stage)(issued)
                issued += 1
                n_new += 1
            if NSTG <= kk + 1 < NST:
                a(f"s_waitcnt vmcnt({(issued - 1 - (kk + 1)) * 8})")
                vwrite_stage(kk + 1)
    else:
        for kk in range(PRO):
            load_stage(kk)
        stamp(a, 2)
        issued = PRO
        for kk in range(NST):
            a(f"s_waitcnt vmcnt({(issued - 1 - kk) * 8})")
            a("s_barrier")
            n_new = 0
            while issued < NST and issued - NSTG < kk and n_new < 2:
                load_stage(issued)
                issued += 1
                n_new += 1
    stamp(a, 3)
    if fuse2:
        a("s_barrier")
    a(f"s_branch {name}_fin")
    a.label(f"{name}_cons")
    a("s_and_b32 s33, s32, 1")
    a("s_lshr_b32 s34, s32, 1")
    a("v_and_b32 v4, 15, v2")
    a("v_lshrrev_b32 v6, 4, v2")
    a("v_lshrrev_b32 v5, 2, v4")
    a("v_and_b32 v7, 3, v4")
    a("v_lshl_add_u32 v7, v5, 3, v7")
    a("v_lshrrev_b32 v20, 1, v4")
    a("v_lshrrev_b32 v21, 2, v4")
    a("v_lshrrev_b32 v22, 3, v4")
    a("v_xor_b32 v21, v21, v22")
    a("v_and_b32 v21, 1, v21")
    a("v_xor_b32 v20, v20, v21")
    a("v_xor_b32 v20, v20, v6")
    a("v_lshlrev_b32 v20, 4, v20")
    a("v_lshl_add_u32 v20, v7, 7, v20")
    a("s_lshl_b32 s35, s33, 13")
    a("s_lshl_b32 s36, s34, 13")
    a("s_add_u32 s36, s36, 16384")
    for g2 in range(3):
        a(f"v_add_u32 v{8 + 4 * g2}, s35, v20")
        a(f"v_xor_b32 v{9 + 4 * g2}, 64, v{8 + 4 * g2}")
        a(f"v_add_u32 v{10 + 4 * g2}, s36, v20")
        a(f"v_xor_b32 v{11 + 4 * g2}, 64, v{10 + 4 * g2}")
        if g2:
            for r in range(4):
                a(f"v_add_u32 v{8 + 4 * g2 + r}, {65536 * g2}, v{8 + 4 * g2 + r}")
    ACC = 32
    FB = 96
    ST = 160
    for i in range(64):
        a(f"v_mov_b32 v{ACC + i}, 0")
    a("s_lshl_b32 s38, s30, 7")
    a("s_lshl_b32 s39, s33, 6")
    a("s_add_u32 s38, s38, s39")
    a("s_lshl_b32 s38, s38, 3")
    a(f"s_add_u32 s38, s38, {WS_STATS}")
    a("v_lshlrev_b32 v23, 6, v6")
    a("v_mov_b32 v24, 0")
    a("s_lshl_b32 s39, s29, 9")
    a("s_lshl_b32 s61, s31, 7")
    a("s_add_u32 s39, s39, s61")
    a("s_lshl_b32 s61, s34, 6")
    a("s_add_u32 s39, s39, s61")
    a("s_lshl_b32 s39, s39, 3")
    a(f"s_add_u32 s61, s39, {WS_CS}")
    a("v_lshlrev_b32 v21, 3, v7")
    a("s_waitcnt lgkmcnt(0)")
    stamp(a, 1)
    srd(a, 20, 46, 47, 14 << 20)
    srd(a, 24, 44, 45, 256)
    NU = NST * 2

    def read_list(u):
        s, ks = u // 2, u % 2
        slot = s % NSTG
        g2, so = slot // 2, (slot % 2) * SLOT
        f = FB + 32 * (u % 2)
        L = []
        for i in range(4):
            off = so + (i >> 1) * 4096 + (i & 1) * 512
            L.append(f"ds_read_b128 v[{f + 4 * i}:{f + 3 + 4 * i}], v{8 + 4 * g2 + ks} offset:{off}")
            L.append(f"ds_read_b128 v[{f + 16 + 4 * i}:{f + 19 + 4 * i}], v{10 + 4 * g2 + ks} offset:{off}")
        return L

    def stats_loads():
        for blk in range(2):
            for q4 in range(4):
                r = ST + 16 * blk + 4 * q4
                a(f"buffer_load_dwordx4 v[{r}:{r + 3}], v23, s[20:23], s38 offen offset:{256 * blk + 16 * q4} sc1")
        for T in range(4):
            a(f"buffer_load_dwordx2 v[{192 + 2 * T}:{193 + 2 * T}], v21, s[20:23], s61 offen offset:{(T >> 1) * 256 + (T & 1) * 32} sc1")
        a("buffer_load_dword v25, v24, s[24:27], 0 offen sc1")

    a("s_lshl_b32 s35, s29, 5")
    a("s_lshl_b32 s36, s31, 3")
    a("s_add_u32 s35, s35, s36")
    a("s_lshl_b32 s36, s34, 2")
    a("s_add_u32 s35, s35, s36")
    a("s_lshl_b32 s35, s35, 6")
    a("s_lshl_b32 s36, s30, 2")
    a("s_add_u32 s35, s35, s36")
    a("s_lshl_b32 s36, s33, 1")
    a("s_add_u32 s35, s35, s36")
    a("s_lshl_b32 s35, s35, 10")
    for T in range(4):
        a(f"s_add_u32 s{40 + T}, s35, {T * 65536}")

    def check_ops():
        L = [f"v_xor_b32 v26, v25, v{ST + 1}"]
        for r in range(1, 16):
            L.append(f"v_xor_b32 v27, v25, v{ST + 2 * r + 1}")
            L.append("v_or_b32 v26, v26, v27")
        for T in range(4):
            L.append(f"v_xor_b32 v27, v25, v{193 + 2 * T}")
            L.append("v_or_b32 v26, v26, v27")
        for r in range(16):
            L.append(f"v_lshlrev_b32 v{ST + 2 * r + 1}, 16, v{ST + 2 * r}")
            L.append(f"v_rcp_f32 v{ST + 2 * r + 1}, v{ST + 2 * r + 1}")
            L.append(f"v_and_b32 v{ST + 2 * r}, s53, v{ST + 2 * r}")
        return L

    a("s_barrier")
    stamp(a, 2)
    for r in read_list(0):
        a(r)
    shadow = []
    for u in range(NU):
        a("s_waitcnt lgkmcnt(0)")
        f = FB + 32 * (u % 2)
        nxt = read_list(u + 1) if u + 1 < NU else []
        n = 0
        if u == UC:
            a("s_waitcnt vmcnt(0)")
            shadow = check_ops()
        for xi in range(4):
            for T in range(4):
                acc = ACC + (xi * 4 + T) * 4
                a(f"v_mfma_f32_16x16x32_bf16 v[{acc}:{acc + 3}], v[{f + 4 * xi}:{f + 3 + 4 * xi}], v[{f + 16 + 4 * T}:{f + 19 + 4 * T}], v[{acc}:{acc + 3}]")
                n += 1
                if n == 1 and nxt and (u + 1) % 2 == 0:
                    a("s_barrier")
                if nxt:
                    a(nxt.pop(0))
                for _ in range(2):
                    if shadow:
                        a(shadow.pop(0))
                if u == U1 and n == 10:
                    stats_loads()
    for op in shadow:
        a(op)
    stamp(a, 3)
    a.label(f"{name}_chk")
    a("v_cmp_eq_u32 vcc, 0, v25")
    a("v_cmp_ne_u32 s[62:63], 0, v26")
    a("s_or_b64 s[62:63], s[62:63], vcc")
    a(f"s_cbranch_scc0 {name}_have")
    a("s_sleep 4")
    stats_loads()
    a("s_waitcnt vmcnt(0)")
    for op in check_ops():
        a(op)
    a("s_sub_u32 s69, s69, 1")
    a(f"s_cbranch_scc0 {name}_chk")
    a("s_mov_b32 s69, 0")
    a.label(f"{name}_have")
    stamp(a, 4)
    a("v_lshlrev_b32 v22, 4, v2")
    a("s_nop 4")
    for blk in range(2):
        for T in range(4):
            o = 132 + 4 * ((blk * 4 + T) & 3)
            for hb in range(2):
                acc = ACC + ((blk * 2 + hb) * 4 + T) * 4
                for j in range(4):
                    sr = ST + 16 * blk + 2 * (4 * hb + j)
                    a(f"v_fma_f32 v{acc + j}, -v{sr}, v{192 + 2 * T}, v{acc + j}")
                    a(f"v_mul_f32 v{acc + j}, v{acc + j}, v{sr + 1}")
                a(f"v_cvt_pk_bf16_f32 v{o + 2 * hb}, v{acc}, v{acc + 1}")
                a(f"v_cvt_pk_bf16_f32 v{o + 2 * hb + 1}, v{acc + 2}, v{acc + 3}")
            a(f"buffer_store_dwordx4 v[{o}:{o + 3}], v22, s[20:23], s{40 + T} offen offset:{blk * 1024}" + (" sc0 sc1" if wt else ""))
    stamp(a, 5)
    if fuse2:
        a("s_bfe_u32 s36, s3, 0x10001")
        a("s_lshl_b32 s35, s29, 1")
        a("s_add_u32 s35, s35, s36")
        a("s_lshl_b32 s35, s35, 2")
        a("s_add_u32 s35, s35, s31")
        a("s_lshl_b32 s35, s35, 3")
        a("s_and_b32 s36, s30, 7")
        a("s_add_u32 s35, s35, s36")
        a("s_lshl_b32 s35, s35, 7")
        a("s_lshl_b32 s36, s32, 2")
        a("s_add_u32 s35, s35, s36")
        a(f"s_add_u32 s35, s35, {WS_FLAG1}")
        a("s_waitcnt vmcnt(0)")
        a("buffer_store_dword v25, v24, s[20:23], s35 offen sc0 sc1")
        a("s_barrier")
    a(f"s_branch {name}_fin")
    a.label(f"{name}_aux")
    a("s_mov_b32 s50, s28")
    a("s_mov_b32 s51, s29")
    a("s_memrealtime s[66:67]")
    a("v_lshlrev_b32 v6, 7, v2")
    a("v_lshrrev_b32 v3, 4, v2")
    a("v_and_b32 v4, 15, v2")
    a("v_lshlrev_b32 v7, 12, v3")
    a("v_lshl_add_u32 v7, v4, 7, v7")
    a("v_lshlrev_b32 v5, 10, v3")
    a("v_lshl_add_u32 v5, v4, 4, v5")
    a("s_lshl_b32 s35, s50, 3")
    a("s_add_u32 s56, s35, s3")
    a("s_add_u32 s35, s35, s32")
    a("s_lshl_b32 s48, s26, 10")
    a("s_lshl_b32 s49, s35, 3")
    a("s_add_u32 s48, s48, s49")
    a("s_lshl_b32 s48, s48, 12")
    a("s_lshl_b32 s49, s27, 11")
    a("s_add_u32 s48, s48, s49")
    a("s_add_u32 s49, s48, 16384")
    a("s_waitcnt lgkmcnt(0)")
    stamp(a, 1)
    srd(a, 28, 44, 45, 256)
    srd(a, 20, 46, 47, 14 << 20)
    a("s_xor_b32 s62, s2, 8")
    a("s_or_b32 s62, s62, s32")
    a("s_cmp_lg_u32 s62, 0")
    a(f"s_cbranch_scc1 {name}_nopub")
    a("s_or_b32 s62, s66, 1")
    a("v_mov_b32 v25, s62")
    a("v_mov_b32 v24, 0")
    a("buffer_store_dword v25, v24, s[28:31], 0 offen sc0 sc1")
    a(f"s_mov_b32 s62, {13 << 20}")
    a("buffer_store_dword v25, v24, s[20:23], s62 offen sc0 sc1")
    a.label(f"{name}_nopub")
    srd(a, 12, 4, 5, S * D * 2)
    a("s_cmp_ge_u32 s32, 6")
    a(f"s_cbranch_scc1 {name}_touch")
    a("s_cmp_ge_u32 s32, 4")
    a(f"s_cbranch_scc1 {name}_csw")
    a("s_lshl_b32 s33, s56, 4")
    a("s_lshl_b32 s34, s32, 2")
    a("s_add_u32 s33, s33, s34")
    a("s_lshl_b32 s34, s33, 10")
    for jj in range(4):
        a(f"buffer_load_dwordx4 v[{16 + 4 * jj}:{19 + 4 * jj}], v5, s[12:15], s34 offen offset:{256 * jj}")
    a("v_mov_b32 v9, 0")
    a.label(f"{name}_nl1")
    a("buffer_load_dword v15, v9, s[28:31], 0 offen sc1")
    a("s_waitcnt vmcnt(0)")
    a("v_readfirstlane_b32 s57, v15")
    a("s_cmp_lg_u32 s57, 0")
    a(f"s_cbranch_scc1 {name}_nd1")
    a("s_sleep 1")
    a("s_sub_u32 s69, s69, 1")
    a(f"s_cbranch_scc0 {name}_nl1")
    a("s_mov_b32 s69, 0")
    a.label(f"{name}_nd1")
    stamp(a, 2)
    X = 32
    for r in range(16):
        a(f"v_lshlrev_b32 v{X + 2 * r}, 16, v{16 + r}")
        a(f"v_and_b32 v{X + 2 * r + 1}, s53, v{16 + r}")
    a(f"v_add_f32 v8, v{X}, v{X + 1}")
    a(f"v_add_f32 v9, v{X + 2}, v{X + 3}")
    for r in range(4, 32, 2):
        a(f"v_add_f32 v8, v8, v{X + r}")
        a(f"v_add_f32 v9, v9, v{X + r + 1}")
    a("v_add_f32 v8, v8, v9")

    def red16(v):
        for pat in ("quad_perm:[1,0,3,2]", "quad_perm:[2,3,0,1]", "row_half_mirror", "row_mirror"):
            a("s_nop 1")
            a(f"v_add_f32_dpp v{v}, v{v}, v{v} {pat} {DPP}")

    red16(8)
    a("v_mul_f32 v8, 0x3b000000, v8")
    a("v_mov_b32 v10, 0")
    a("v_mov_b32 v11, 0")
    for r in range(0, 32, 2):
        a(f"v_sub_f32 v{X + r}, v{X + r}, v8")
        a(f"v_sub_f32 v{X + r + 1}, v{X + r + 1}, v8")
        a(f"v_fmac_f32 v10, v{X + r}, v{X + r}")
        a(f"v_fmac_f32 v11, v{X + r + 1}, v{X + r + 1}")
    a("v_add_f32 v10, v10, v11")
    red16(10)
    a("v_mul_f32 v10, 0x3b000000, v10")
    a("v_cvt_pk_bf16_f32 v12, v8, v8")
    a("v_lshlrev_b32 v12, 16, v12")
    a("v_cvt_pk_bf16_f32 v10, v10, v10")
    a("v_lshlrev_b32 v10, 16, v10")
    a("v_add_f32 v10, 0x3727c5ac, v10")
    a("v_cvt_pk_bf16_f32 v10, v10, v10")
    a("v_lshlrev_b32 v10, 16, v10")
    a("v_sqrt_f32 v10, v10")
    a("s_nop 0")
    a("v_cvt_pk_bf16_f32 v10, v10, v10")
    a("v_and_b32 v10, 0xffff, v10")
    a("v_or_b32 v12, v12, v10")
    a("v_mov_b32 v13, v15")
    a("v_lshlrev_b32 v14, 3, v3")
    a("s_lshl_b32 s36, s33, 3")
    a(f"s_add_u32 s36, s36, {WS_STATS}")
    a("v_cmp_eq_u32 vcc, 0, v4")
    a("s_and_saveexec_b64 s[54:55], vcc")
    a("buffer_store_dwordx2 v[12:13], v14, s[20:23], s36 offen sc0 sc1")
    a("s_mov_b64 exec, s[54:55]")
    a(f"s_branch {name}_auxj")
    a.label(f"{name}_csw")
    a("s_lshl_b32 s33, s56, 3")
    a("s_sub_u32 s34, s32, 4")
    a("s_lshl_b32 s34, s34, 2")
    a("s_add_u32 s33, s33, s34")
    a("s_cmp_ge_u32 s33, 512")
    a("s_cselect_b32 s58, s10, s8")
    a("s_cselect_b32 s59, s11, s9")
    srd(a, 16, 58, 59, D * D * 2)
    a("s_and_b32 s34, s33, 511")
    a("s_lshl_b32 s34, s34, 10")
    for jj in range(4):
        a(f"buffer_load_dwordx4 v[{16 + 4 * jj}:{19 + 4 * jj}], v5, s[16:19], s34 offen offset:{256 * jj}")
    a("v_mov_b32 v8, 0")
    a("v_mov_b32 v9, 0")
    a.label(f"{name}_nl2")
    a("buffer_load_dword v15, v9, s[28:31], 0 offen sc1")
    a("s_waitcnt vmcnt(0)")
    a("v_readfirstlane_b32 s57, v15")
    a("s_cmp_lg_u32 s57, 0")
    a(f"s_cbranch_scc1 {name}_nd2")
    a("s_sleep 1")
    a("s_sub_u32 s69, s69, 1")
    a(f"s_cbranch_scc0 {name}_nl2")
    a("s_mov_b32 s69, 0")
    a.label(f"{name}_nd2")
    for r in range(16):
        a(f"v_lshlrev_b32 v{32 + 2 * (r & 3)}, 16, v{16 + r}")
        a(f"v_and_b32 v{33 + 2 * (r & 3)}, s53, v{16 + r}")
        a(f"v_add_f32 v8, v8, v{32 + 2 * (r & 3)}")
        a(f"v_add_f32 v9, v9, v{33 + 2 * (r & 3)}")
    a("v_add_f32 v8, v8, v9")
    red16(8)
    a("v_lshlrev_b32 v14, 3, v3")
    a("v_mov_b32 v9, v15")
    a("s_lshl_b32 s36, s33, 3")
    a(f"s_add_u32 s36, s36, {WS_CS}")
    a("v_cmp_eq_u32 vcc, 0, v4")
    a("s_and_saveexec_b64 s[54:55], vcc")
    a("buffer_store_dwordx2 v[8:9], v14, s[20:23], s36 offen sc0 sc1")
    a("s_mov_b64 exec, s[54:55]")
    a(f"s_branch {name}_auxj")
    a.label(f"{name}_touch")
    if cpre:
        a("s_cmp_lg_u32 s32, 6")
        a(f"s_cbranch_scc1 {name}_nocp")
        a("s_getpc_b64 s[60:61]")
        a.label(f"{name}_pc")
        a(f"s_sub_u32 s60, s60, {name}_pc-{name}")
        a("s_subb_u32 s61, s61, 0")
        a("s_lshl_b32 s62, s50, 13")
        a("v_add_u32 v16, s62, v6")
        a(f"v_min_u32 v16, code_end-{name}-4, v16")
        a("global_load_dword v207, v16, s[60:61]")
        a.label(f"{name}_nocp")
    a("s_cmp_eq_u32 s51, 1")
    a("s_cselect_b32 s58, s10, s8")
    a("s_cselect_b32 s59, s11, s9")
    srd(a, 16, 58, 59, D * D * 2)
    a("s_lshl_b32 s36, s27, 20")
    a("s_lshl_b32 s37, s26, 19")
    a("s_add_u32 s36, s36, s37")
    a("s_lshl_b32 s37, s50, 1")
    a("s_add_u32 s37, s37, s32")
    a("s_sub_u32 s37, s37, 6")
    a("s_lshl_b32 s37, s37, 14")
    a("s_add_u32 s36, s36, s37")
    a("buffer_load_dword v202, v6, s[12:15], s36 offen")
    a("buffer_load_dword v203, v6, s[16:19], s37 offen")
    a("s_add_u32 s36, s36, 8192")
    a("s_add_u32 s37, s37, 8192")
    a("buffer_load_dword v204, v6, s[12:15], s36 offen")
    a("buffer_load_dword v205, v6, s[16:19], s37 offen")
    if tlb:
        a("s_load_dwordx8 s[64:71], s[0:1], 48")
        a("s_load_dwordx2 s[58:59], s[0:1], 80")
        a("v_lshlrev_b32 v16, 14, v2")
        a("v_lshlrev_b32 v17, 11, v2")
        a("s_lshl_b32 s36, s50, 20")
        a("s_lshl_b32 s37, s50, 17")
        a("s_waitcnt lgkmcnt(0)")
        a("s_cmp_eq_u32 s32, 6")
        a(f"s_cbranch_scc0 {name}_tl7")
        srd(a, 16, 46, 47, 16 << 20)
        a("buffer_load_dword v202, v16, s[16:19], s36 offen")
        srd(a, 16, 58, 59, S * D * 2)
        a("buffer_load_dword v203, v17, s[16:19], s37 offen")
        a(f"s_branch {name}_auxj")
        a.label(f"{name}_tl7")
        for k, (lo, hi) in enumerate(((66, 67), (68, 69), (70, 71))):
            srd(a, 16, lo, hi, D * F * 2)
            a(f"buffer_load_dword v{18 + k}, v17, s[16:19], s37 offen")
        srd(a, 16, 64, 65, D * 2)
        a("buffer_load_dword v205, v17, s[16:19], 0 offen")
    a.label(f"{name}_auxj")
    a("s_cmp_eq_u32 s51, 1")
    a("s_cselect_b32 s40, s42, s40")
    a("s_cselect_b32 s41, s43, s41")
    srd(a, 24, 40, 41, S * S * 2)
    if pf and early:
        a("s_cmp_lt_u32 s32, 6")
        a(f"s_cbranch_scc1 {name}_noearly")
        if pfq < 4:
            a(f"v_cmp_gt_u32 vcc, {4 * pfq}, v4")
            a("s_and_saveexec_b64 s[54:55], vcc")
        a("buffer_load_dword v202, v7, s[24:27], s48 offen")
        a("buffer_load_dword v203, v7, s[24:27], s49 offen")
        if early >= 2:
            a("s_sub_u32 s48, s48, 65536")
            a("s_sub_u32 s49, s49, 65536")
            a("buffer_load_dword v204, v7, s[24:27], s48 offen")
            a("buffer_load_dword v205, v7, s[24:27], s49 offen")
        if pfq < 4:
            a("s_mov_b64 exec, s[54:55]")
        a.label(f"{name}_noearly")
    a("s_barrier")
    stamp(a, 3)
    if pf and early:
        a(f"s_cmp_ge_u32 s32, {6 if early == 1 else 4}")
        a(f"s_cbranch_scc1 {name}_pfskip")
    if pf:
        if pfq < 4:
            a(f"v_cmp_gt_u32 vcc, {4 * pfq}, v4")
            a("s_and_saveexec_b64 s[54:55], vcc")
        if pace == 3:
            a("v_lshrrev_b32 v16, 3, v2")
            a("v_lshlrev_b32 v16, 12, v16")
            a("v_and_b32 v17, 7, v2")
            a("v_lshl_add_u32 v16, v17, 7, v16")
            a(f"buffer_load_dword v204, v16, s[24:27], s48 offen{PPOL}")
            a("s_waitcnt vmcnt(0)")
            a(f"buffer_load_dword v205, v16, s[24:27], s48 offen offset:1024{PPOL}")
        else:
            a(f"buffer_load_dword v204, v7, s[24:27], s48 offen{PPOL}")
            if pace == 2:
                a("s_waitcnt vmcnt(0)")
            a(f"buffer_load_dword v205, v7, s[24:27], s49 offen{PPOL}")
        if pfq < 4:
            a("s_mov_b64 exec, s[54:55]")
    a.label(f"{name}_pfskip")
    if wk1:
        a("s_cmp_ge_u32 s32, 6")
        a(f"s_cbranch_scc1 {name}_fina")
        a("s_lshr_b32 s58, s32, 1")
        a("s_lshl_b32 s58, s58, 3")
        a("s_add_u32 s58, s58, 56")
        a("s_load_dwordx2 s[60:61], s[0:1], s58")
        a("s_mul_i32 s62, s56, 14336")
        a("s_and_b32 s63, s32, 1")
        a("s_mul_i32 s63, s63, 7168")
        a("s_add_u32 s62, s62, s63")
        a("s_add_u32 s63, s62, 7168")
        a("s_waitcnt lgkmcnt(0)")
        a("s_mov_b32 s16, s60")
        a("s_and_b32 s17, s61, 0xffff")
        a("s_mov_b32 s18, s63")
        a("s_mov_b32 s19, 0x00020000")
        a("buffer_load_dword v206, v6, s[16:19], s62 offen" + (" nt" if wk1 == 2 else ""))
    a.label(f"{name}_fina")
    if fuse2:
        a("s_xor_b32 s32, s32, 4")
    a.label(f"{name}_fin")
    stamp_flush(a, 1, 6, 46, 47)
    if fuse2:
        fuse2(a, name + "g")
        a.label(f"{name}_done")
        a("s_endpgm")
        return kernel_desc(name, 208, 72, 208)
    a.label(f"{name}_done")
    a("s_endpgm")
    return kernel_desc(name, 208, 72, 208)


def gen_k1g(a, name, wt=1, PRO=3, U1=11, UC=14, wk=1, cpf=1, SPOS=0, NPOS=1):
    NSTG, SLOT, NST = 6, 24576, 8
    kernel_begin(a, name)
    a("s_cmp_ge_u32 s2, 256")
    a(f"s_cbranch_scc1 {name}_done")
    stamp(a, 0)
    a("s_load_dwordx2 s[4:5], s[0:1], 0")
    a("s_load_dwordx4 s[8:11], s[0:1], 24")
    a("s_load_dwordx4 s[44:47], s[0:1], 88")
    a("s_load_dwordx4 s[40:43], s[0:1], 8")
    a("s_load_dwordx4 s[56:59], s[0:1], 56")
    a("s_load_dwordx2 s[60:61], s[0:1], 72")
    a("s_memrealtime s[66:67]")
    a("s_and_b32 s3, s2, 7")
    a("s_lshr_b32 s48, s2, 3")
    a("s_and_b32 s49, s3, 1")
    a("s_bfe_u32 s50, s3, 0x10001")
    a("s_lshr_b32 s51, s3, 2")
    a("s_lshl_b32 s30, s50, 3")
    a("s_lshl_b32 s34, s51, 2")
    a("s_add_u32 s30, s30, s34")
    a("s_and_b32 s34, s48, 3")
    a("s_add_u32 s30, s30, s34")
    a("s_lshr_b32 s31, s48, 2")
    a("v_lshrrev_b32 v1, 6, v0")
    a("v_and_b32 v2, 63, v0")
    a("s_nop 0")
    a("v_readfirstlane_b32 s32, v1")
    a("s_mov_b32 s53, 0xffff0000")
    a("s_mov_b32 s69, 0x40000")
    a("s_xor_b32 s32, s32, 4")
    a("s_cmp_lt_u32 s32, 4")
    a(f"s_cbranch_scc1 {name}_cons")
    a("s_sub_u32 s33, s32, 4")
    a("v_lshrrev_b32 v3, 3, v2")
    a("v_and_b32 v4, 7, v2")
    a("v_bfe_u32 v5, v2, 4, 1")
    a("v_xor_b32 v4, v4, v5")
    a("v_lshlrev_b32 v3, 10, v3")
    for i in range(4):
        g0g1 = (i & 1) ^ (i >> 1)
        a(f"v_xor_b32 v{8 + i}, {(2 * i) ^ g0g1}, v4")
        a(f"v_lshl_add_u32 v{8 + i}, v{8 + i}, 4, v3")
        if i:
            a(f"v_add_u32 v{8 + i}, {i * (8192 - 1024)}, v{8 + i}")
    a("s_bitcmp1_b32 s33, 0")
    a("s_cselect_b32 s34, 5, 0")
    a("s_cselect_b32 s35, 6, 3")
    a("v_xor_b32 v12, s34, v4")
    a("v_lshl_add_u32 v12, v12, 4, v3")
    a("v_xor_b32 v13, s35, v4")
    a("v_lshl_add_u32 v13, v13, 4, v3")
    a(f"v_add_u32 v13, {8192 - 1024}, v13")
    a("s_lshl_b32 s34, s33, 5")
    a("s_lshl_b32 s35, s30, 7")
    a("s_add_u32 s35, s35, s34")
    a("s_lshl_b32 s35, s35, 10")
    a("s_lshl_b32 s36, s31, 6")
    a("s_lshl_b32 s34, s33, 4")
    a("s_add_u32 s36, s36, s34")
    a("s_lshl_b32 s36, s36, 10")
    a("s_lshl_b32 s37, s33, 12")
    a("s_lshl_b32 s38, s33, 11")
    a("s_add_u32 s38, s38, 16384")
    a("v_lshrrev_b32 v14, 4, v2")
    a("v_and_b32 v15, 15, v2")
    a("v_lshlrev_b32 v6, 10, v14")
    a("v_lshl_add_u32 v6, v15, 4, v6")
    a("v_mov_b32 v7, 0")
    a("s_lshl_b32 s52, s2, 3")
    a("s_lshl_b32 s34, s33, 2")
    a("s_add_u32 s52, s52, s34")
    a("s_lshl_b32 s54, s2, 2")
    a("s_waitcnt lgkmcnt(0)")
    stamp(a, 1)
    srd(a, 24, 44, 45, 256)
    srd(a, 20, 46, 47, 14 << 20)
    a("s_or_b32 s62, s2, s33")
    a("s_cmp_lg_u32 s62, 0")
    a(f"s_cbranch_scc1 {name}_nopub")
    a("s_or_b32 s62, s66, 1")
    a("v_mov_b32 v25, s62")
    a("buffer_store_dword v25, v7, s[24:27], 0 offen sc0 sc1")
    a(f"s_mov_b32 s62, {13 << 20}")
    a("buffer_store_dword v25, v7, s[20:23], s62 offen sc0 sc1")
    a.label(f"{name}_nopub")
    srd(a, 12, 4, 5, S * D * 2)
    a("s_cmp_ge_u32 s54, 512")
    a("s_cselect_b32 s62, s10, s8")
    a("s_cselect_b32 s63, s11, s9")
    a("s_and_b32 s55, s54, 511")
    a("s_cmp_lt_u32 s33, 2")
    a("s_cselect_b32 s62, s4, s62")
    a("s_cselect_b32 s63, s5, s63")
    a("s_cselect_b32 s55, s52, s55")
    a(f"s_mov_b32 s65, {D * D * 2}")
    a(f"s_cselect_b32 s64, {S * D * 2}, s65")
    a("s_cmp_eq_u32 s33, 3")
    a("s_cselect_b32 s64, 0, s64")
    a("s_lshl_b32 s55, s55, 10")
    a("s_mov_b32 s16, s62")
    a("s_and_b32 s17, s63, 0xffff")
    a("s_mov_b32 s18, s64")
    a("s_mov_b32 s19, 0x00020000")
    for jj in range(4):
        a(f"buffer_load_dwordx4 v[{16 + 4 * jj}:{19 + 4 * jj}], v6, s[16:19], s55 offen offset:{256 * jj}")
    a("s_cmp_eq_u32 s49, 1")
    a("s_cselect_b32 s8, s10, s8")
    a("s_cselect_b32 s9, s11, s9")
    srd(a, 16, 8, 9, D * D * 2)

    def load_stage(kk):
        slot = (kk % NSTG) * SLOT
        a(f"s_add_u32 m0, s37, {slot}")
        a(f"s_add_u32 s39, s35, {kk * 128}")
        for i in range(4):
            a(f"buffer_load_dwordx4 v{8 + i}, s[12:15], s39 offen offset:{i * 1024} lds")
        a(f"s_add_u32 m0, s38, {slot}")
        a(f"s_add_u32 s39, s36, {kk * 128}")
        for i in range(2):
            a(f"buffer_load_dwordx4 v{12 + i}, s[16:19], s39 offen offset:{i * 1024} lds")

    def red16(v):
        for pat in ("quad_perm:[1,0,3,2]", "quad_perm:[2,3,0,1]", "row_half_mirror", "row_mirror"):
            a("s_nop 1")
            a(f"v_add_f32_dpp v{v}, v{v}, v{v} {pat} {DPP}")

    def stats_block():
        X = 64
        for r in range(16):
            a(f"v_lshlrev_b32 v{X + 2 * r}, 16, v{16 + r}")
            a(f"v_and_b32 v{X + 2 * r + 1}, s53, v{16 + r}")
        a(f"v_add_f32 v34, v{X}, v{X + 1}")
        a(f"v_add_f32 v35, v{X + 2}, v{X + 3}")
        for r in range(4, 32, 2):
            a(f"v_add_f32 v34, v34, v{X + r}")
            a(f"v_add_f32 v35, v35, v{X + r + 1}")
        a("v_add_f32 v34, v34, v35")
        red16(34)
        a("v_mul_f32 v36, 0x3b000000, v34")
        a("v_mov_b32 v37, 0")
        a("v_mov_b32 v38, 0")
        for r in range(0, 32, 2):
            a(f"v_sub_f32 v{X + r}, v{X + r}, v36")
            a(f"v_sub_f32 v{X + r + 1}, v{X + r + 1}, v36")
            a(f"v_fmac_f32 v37, v{X + r}, v{X + r}")
            a(f"v_fmac_f32 v38, v{X + r + 1}, v{X + r + 1}")
        a("v_add_f32 v37, v37, v38")
        red16(37)
        a("v_mul_f32 v37, 0x3b000000, v37")
        a("v_cvt_pk_bf16_f32 v40, v36, v36")
        a("v_lshlrev_b32 v40, 16, v40")
        a("v_cvt_pk_bf16_f32 v37, v37, v37")
        a("v_lshlrev_b32 v37, 16, v37")
        a("v_add_f32 v37, 0x3727c5ac, v37")
        a("v_cvt_pk_bf16_f32 v37, v37, v37")
        a("v_lshlrev_b32 v37, 16, v37")
        a("v_sqrt_f32 v37, v37")
        a("s_nop 0")
        a("v_cvt_pk_bf16_f32 v37, v37, v37")
        a("v_and_b32 v37, 0xffff, v37")
        a("v_or_b32 v40, v40, v37")
        a("s_cmp_eq_u32 s33, 2")
        a("s_cselect_b64 s[62:63], -1, 0")
        a("v_cndmask_b32 v40, v40, v34, s[62:63]")
        a("s_lshl_b32 s64, s52, 3")
        a(f"s_add_u32 s64, s64, {WS_STATS}")
        a("s_lshl_b32 s65, s54, 3")
        a(f"s_add_u32 s65, s65, {WS_CS}")
        a("s_cmp_eq_u32 s33, 2")
        a("s_cselect_b32 s64, s65, s64")
        a("s_add_u32 s65, s65, 8192")
        a("s_cmp_eq_u32 s33, 3")
        a("s_cselect_b32 s64, s65, s64")
        a("v_lshlrev_b32 v42, 3, v14")

    vq = ["s"] * 4
    for kk in range(PRO):
        load_stage(kk)
        vq += [kk] * 6
        if kk == NPOS:
            a("buffer_load_dword v33, v7, s[24:27], 0 offen sc1")
            vq.append("n")
    stamp(a, 2)
    issued = PRO

    def wait_tag(tag):
        nonlocal vq
        if tag in vq:
            idx = max(k for k, t in enumerate(vq) if t == tag)
            a(f"s_waitcnt vmcnt({len(vq) - 1 - idx})")
            vq = vq[idx + 1:]

    for kk in range(NST):
        wait_tag(kk)
        a("s_barrier")
        n_new = 0
        while issued < NST and issued - NSTG < kk and n_new < 2:
            load_stage(issued)
            vq += [issued] * 6
            issued += 1
            n_new += 1
        if kk == SPOS:
            stats_block()
        if kk == SPOS:
            wait_tag("n")
            a("v_readfirstlane_b32 s65, v33")
            a("s_cmp_lg_u32 s65, 0")
            a(f"s_cbranch_scc1 {name}_nok")
            a.label(f"{name}_nl")
            a("buffer_load_dword v33, v7, s[24:27], 0 offen sc1")
            a("s_waitcnt vmcnt(0)")
            a("v_readfirstlane_b32 s65, v33")
            a("s_cmp_lg_u32 s65, 0")
            a(f"s_cbranch_scc1 {name}_nok")
            a("s_sub_u32 s69, s69, 1")
            a(f"s_cbranch_scc0 {name}_nl")
            a("s_mov_b32 s69, 0")
            a.label(f"{name}_nok")
            a("v_mov_b32 v41, v33")
            a("v_cmp_eq_u32 vcc, 0, v15")
            a("s_and_saveexec_b64 s[62:63], vcc")
            a("buffer_store_dwordx2 v[40:41], v42, s[20:23], s64 offen sc0 sc1")
            a("s_mov_b64 exec, s[62:63]")
            vq.append("st")
        if issued == NST and kk == 2:
            if wk:
                emit_wtouch(a, "s33", 44, 45)
            if cpf:
                a("s_cmp_eq_u32 s49, 1")
                a("s_cselect_b32 s40, s42, s40")
                a("s_cselect_b32 s41, s43, s41")
                srd(a, 24, 40, 41, S * S * 2)
                a("s_lshl_b32 s62, s51, 10")
                a("s_lshl_b32 s63, s48, 5")
                a("s_add_u32 s62, s62, s63")
                a("s_lshl_b32 s63, s33, 3")
                a("s_add_u32 s62, s62, s63")
                a("s_lshl_b32 s62, s62, 12")
                a("s_lshl_b32 s63, s50, 11")
                a("s_add_u32 s62, s62, s63")
                a("v_lshrrev_b32 v46, 3, v2")
                a("v_lshlrev_b32 v46, 12, v46")
                a("v_and_b32 v47, 7, v2")
                a("v_lshl_add_u32 v46, v47, 7, v46")
                a("buffer_load_dword v48, v46, s[24:27], s62 offen")
                if cpf >= 2:
                    a("buffer_load_dword v49, v46, s[24:27], s62 offen offset:1024")
            vq += ["t"] * ((1 if wk else 0) + (0 if not cpf else (1 if cpf == 1 else 2)))
    stamp(a, 3)
    a(f"s_branch {name}_fin")
    a.label(f"{name}_cons")
    a("s_and_b32 s33, s32, 1")
    a("s_lshr_b32 s34, s32, 1")
    a("v_and_b32 v4, 15, v2")
    a("v_lshrrev_b32 v6, 4, v2")
    a("v_lshrrev_b32 v5, 2, v4")
    a("v_and_b32 v7, 3, v4")
    a("v_lshl_add_u32 v7, v5, 3, v7")
    a("v_lshrrev_b32 v20, 1, v4")
    a("v_lshrrev_b32 v21, 2, v4")
    a("v_lshrrev_b32 v22, 3, v4")
    a("v_xor_b32 v21, v21, v22")
    a("v_and_b32 v21, 1, v21")
    a("v_xor_b32 v20, v20, v21")
    a("v_xor_b32 v20, v20, v6")
    a("v_lshlrev_b32 v20, 4, v20")
    a("v_lshl_add_u32 v20, v7, 7, v20")
    a("s_lshl_b32 s35, s33, 13")
    a("s_lshl_b32 s36, s34, 12")
    a("s_add_u32 s36, s36, 16384")
    for g2 in range(3):
        a(f"v_add_u32 v{8 + 4 * g2}, s35, v20")
        a(f"v_xor_b32 v{9 + 4 * g2}, 64, v{8 + 4 * g2}")
        a(f"v_add_u32 v{10 + 4 * g2}, s36, v20")
        a(f"v_xor_b32 v{11 + 4 * g2}, 64, v{10 + 4 * g2}")
        if g2:
            for r in range(4):
                a(f"v_add_u32 v{8 + 4 * g2 + r}, {2 * SLOT * g2}, v{8 + 4 * g2 + r}")
    ACC = 32
    FB = 64
    ST = 112
    CSR = 144
    for i in range(32):
        a(f"v_mov_b32 v{ACC + i}, 0")
    a("s_lshl_b32 s38, s30, 7")
    a("s_lshl_b32 s39, s33, 6")
    a("s_add_u32 s38, s38, s39")
    a("s_lshl_b32 s38, s38, 3")
    a(f"s_add_u32 s38, s38, {WS_STATS}")
    a("v_lshlrev_b32 v23, 6, v6")
    a("v_mov_b32 v24, 0")
    a("s_lshl_b32 s39, s49, 9")
    a("s_lshl_b32 s65, s31, 6")
    a("s_add_u32 s39, s39, s65")
    a("s_lshl_b32 s65, s34, 5")
    a("s_add_u32 s39, s39, s65")
    a("s_lshl_b32 s39, s39, 3")
    a(f"s_add_u32 s52, s39, {WS_CS}")
    a("v_lshlrev_b32 v21, 3, v7")
    a("s_lshl_b32 s35, s49, 5")
    a("s_lshl_b32 s36, s31, 2")
    a("s_add_u32 s35, s35, s36")
    a("s_lshl_b32 s36, s34, 1")
    a("s_add_u32 s35, s35, s36")
    a("s_lshl_b32 s35, s35, 6")
    a("s_lshl_b32 s36, s30, 2")
    a("s_add_u32 s35, s35, s36")
    a("s_lshl_b32 s36, s33, 1")
    a("s_add_u32 s35, s35, s36")
    a("s_lshl_b32 s54, s35, 10")
    a("s_add_u32 s55, s54, 65536")
    a("v_lshlrev_b32 v22, 4, v2")
    a("s_waitcnt lgkmcnt(0)")
    stamp(a, 1)
    srd(a, 20, 46, 47, 14 << 20)
    srd(a, 24, 44, 45, 256)
    NU = NST * 2

    def read_list(u):
        s, ks = u // 2, u % 2
        slot = s % NSTG
        g2, so = slot // 2, (slot % 2) * SLOT
        f = FB + 24 * (u % 2)
        L = []
        for i in range(2):
            L.append(f"ds_read_b128 v[{f + 16 + 4 * i}:{f + 19 + 4 * i}], v{10 + 4 * g2 + ks} offset:{so + i * 512}")
        for i in range(4):
            off = so + (i >> 1) * 4096 + (i & 1) * 512
            L.append(f"ds_read_b128 v[{f + 4 * i}:{f + 3 + 4 * i}], v{8 + 4 * g2 + ks} offset:{off}")
        return L

    def stats_loads():
        for blk in range(2):
            for q4 in range(4):
                r = ST + 16 * blk + 4 * q4
                a(f"buffer_load_dwordx4 v[{r}:{r + 3}], v23, s[20:23], s38 offen offset:{256 * blk + 16 * q4} sc1")
        for T in range(2):
            a(f"buffer_load_dwordx2 v[{CSR + 2 * T}:{CSR + 1 + 2 * T}], v21, s[20:23], s52 offen offset:{T * 32} sc1")
        a("buffer_load_dword v25, v24, s[24:27], 0 offen sc1")

    def check_ops():
        L = [f"v_xor_b32 v26, v25, v{ST + 1}"]
        for r in range(1, 16):
            L.append(f"v_xor_b32 v27, v25, v{ST + 2 * r + 1}")
            L.append("v_or_b32 v26, v26, v27")
        for T in range(2):
            L.append(f"v_xor_b32 v27, v25, v{CSR + 1 + 2 * T}")
            L.append("v_or_b32 v26, v26, v27")
        for r in range(16):
            L.append(f"v_lshlrev_b32 v{ST + 2 * r + 1}, 16, v{ST + 2 * r}")
            L.append(f"v_rcp_f32 v{ST + 2 * r + 1}, v{ST + 2 * r + 1}")
            L.append(f"v_and_b32 v{ST + 2 * r}, s53, v{ST + 2 * r}")
        return L

    a("s_barrier")
    stamp(a, 2)
    for r in read_list(0):
        a(r)
    for u in range(NU):
        a("s_waitcnt lgkmcnt(0)")
        f = FB + 24 * (u % 2)
        nxt = read_list(u + 1) if u + 1 < NU else []
        n = 0
        for xi in range(4):
            for T in range(2):
                acc = ACC + (xi * 2 + T) * 4
                a(f"v_mfma_f32_16x16x32_bf16 v[{acc}:{acc + 3}], v[{f + 4 * xi}:{f + 3 + 4 * xi}], v[{f + 16 + 4 * T}:{f + 19 + 4 * T}], v[{acc}:{acc + 3}]")
                n += 1
                if n == 1 and nxt and (u + 1) % 2 == 0:
                    a("s_barrier")
                if nxt:
                    a(nxt.pop(0))
                if u == U1 and n == 7:
                    stats_loads()
    stamp(a, 3)
    a.label(f"{name}_chk")
    a("s_waitcnt vmcnt(0)")
    for op in check_ops():
        a(op)
    a("v_cmp_eq_u32 vcc, 0, v25")
    a("v_cmp_ne_u32 s[62:63], 0, v26")
    a("s_or_b64 s[62:63], s[62:63], vcc")
    a(f"s_cbranch_scc0 {name}_have")
    a("s_sleep 2")
    stats_loads()
    a("s_sub_u32 s69, s69, 1")
    a(f"s_cbranch_scc0 {name}_chk")
    a("s_mov_b32 s69, 0")
    a.label(f"{name}_have")
    stamp(a, 4)
    for blk in range(2):
        for T in range(2):
            o = 64 + 4 * (blk * 2 + T)
            for hb in range(2):
                acc = ACC + ((blk * 2 + hb) * 2 + T) * 4
                for j in range(4):
                    sr = ST + 16 * blk + 2 * (4 * hb + j)
                    a(f"v_fma_f32 v{acc + j}, -v{sr}, v{CSR + 2 * T}, v{acc + j}")
                    a(f"v_mul_f32 v{acc + j}, v{acc + j}, v{sr + 1}")
                a(f"v_cvt_pk_bf16_f32 v{o + 2 * hb}, v{acc}, v{acc + 1}")
                a(f"v_cvt_pk_bf16_f32 v{o + 2 * hb + 1}, v{acc + 2}, v{acc + 3}")
            a(f"buffer_store_dwordx4 v[{o}:{o + 3}], v22, s[20:23], s{54 + T} offen offset:{blk * 1024}" + (" sc0 sc1" if wt else ""))
    stamp(a, 5)
    a.label(f"{name}_fin")
    stamp_flush(a, 1, 6, 46, 47)
    a.label(f"{name}_done")
    a("s_endpgm")
    return kernel_desc(name, 152, 72, 152)


def gen_k3(a, name):
    kernel_begin(a, name)
    a("s_cmp_ge_u32 s2, 256")
    a(f"s_cbranch_scc1 {name}_done")
    stamp(a, 0)
    a("s_load_dwordx2 s[4:5], s[0:1], 0")
    a("s_load_dwordx2 s[6:7], s[0:1], 48")
    a("s_load_dwordx2 s[8:9], s[0:1], 80")
    a("s_load_dwordx2 s[10:11], s[0:1], 96")
    a("v_lshrrev_b32 v1, 6, v0")
    a("v_and_b32 v2, 63, v0")
    a("s_nop 0")
    a("v_readfirstlane_b32 s32, v1")
    a("v_lshlrev_b32 v3, 4, v2")
    a("s_waitcnt lgkmcnt(0)")
    stamp(a, 1)
    srd(a, 12, 4, 5, S * D * 2)
    srd(a, 16, 6, 7, D * 2)
    srd(a, 20, 8, 9, S * D * 2)
    srd(a, 24, 10, 11, 14 << 20)
    a("s_lshl_b32 s33, s2, 3")
    a("s_lshl_b32 s34, s32, 1")
    a("s_add_u32 s33, s33, s34")
    a("s_lshl_b32 s34, s33, 10")
    a(f"s_add_u32 s35, s34, {WS_P}")
    a(f"s_add_u32 s36, s34, {WS_P + (4 << 20)}")
    a(f"s_add_u32 s43, s34, {WS_P + (2 << 20)}")
    a(f"s_add_u32 s44, s34, {WS_P + (6 << 20)}")
    for R in range(2):
        B = 16 + 64 * R
        a(f"buffer_load_dwordx4 v[{B}:{B + 3}], v3, s[24:27], s35 offen offset:{1024 * R}")
        a(f"buffer_load_dwordx4 v[{B + 12}:{B + 15}], v3, s[24:27], s43 offen offset:{1024 * R}")
        a(f"buffer_load_dwordx4 v[{B + 4}:{B + 7}], v3, s[24:27], s36 offen offset:{1024 * R}")
        a(f"buffer_load_dwordx4 v[{B + 56}:{B + 59}], v3, s[24:27], s44 offen offset:{1024 * R}")
        a(f"buffer_load_dwordx4 v[{B + 8}:{B + 11}], v3, s[12:15], s34 offen offset:{1024 * R}")
    a("buffer_load_dwordx4 v[8:11], v3, s[16:19], 0 offen")
    a("s_mov_b32 s53, 0xffff0000")
    a("s_waitcnt vmcnt(1)")
    stamp(a, 2)

    def unpack(dst, src):
        a(f"v_lshlrev_b32 v{dst}, 16, v{src}")
        a(f"v_and_b32 v{dst + 1}, s53, v{src}")

    for R in range(2):
        B = 16 + 64 * R
        H, T = B + 16, B + 24
        for i in range(4):
            unpack(T, B + i)
            unpack(T + 2, B + 12 + i)
            unpack(T + 4, B + 4 + i)
            unpack(T + 6, B + 56 + i)
            a(f"v_add_f32 v{T}, v{T}, v{T + 2}")
            a(f"v_add_f32 v{T + 1}, v{T + 1}, v{T + 3}")
            a(f"v_add_f32 v{T + 4}, v{T + 4}, v{T + 6}")
            a(f"v_add_f32 v{T + 5}, v{T + 5}, v{T + 7}")
            a(f"v_cvt_pk_bf16_f32 v{T + 8}, v{T}, v{T + 1}")
            a(f"v_cvt_pk_bf16_f32 v{T + 9}, v{T + 4}, v{T + 5}")
            unpack(T, T + 8)
            unpack(T + 2, T + 9)
            a(f"v_sub_f32 v{T}, v{T}, v{T + 2}")
            a(f"v_sub_f32 v{T + 1}, v{T + 1}, v{T + 3}")
            a(f"v_cvt_pk_bf16_f32 v{T + 4}, v{T}, v{T + 1}")
            unpack(T, T + 4)
            unpack(T + 2, B + 8 + i)
            a(f"v_add_f32 v{T}, v{T + 2}, v{T}")
            a(f"v_add_f32 v{T + 1}, v{T + 3}, v{T + 1}")
            a(f"v_cvt_pk_bf16_f32 v{B + 40 + i}, v{T}, v{T + 1}")
            unpack(H + 2 * i, B + 40 + i)
        St = B + 48
        a(f"v_add_f32 v{St}, v{H}, v{H + 1}")
        for i in range(2, 8):
            a(f"v_add_f32 v{St}, v{St}, v{H + i}")
    for R in range(2):
        B = 16 + 64 * R
        wave_allreduce(a, "v_add_f32", B + 48, B + 49)
    for R in range(2):
        B = 16 + 64 * R
        H, T, St = B + 16, B + 24, B + 48
        a(f"v_mul_f32 v{St}, 0x3b000000, v{St}")
        a(f"v_cvt_pk_bf16_f32 v{St + 1}, v{St}, v{St}")
        a(f"v_lshlrev_b32 v{St + 1}, 16, v{St + 1}")
        for i in range(8):
            a(f"v_sub_f32 v{T + i}, v{H + i}, v{St}")
        a(f"v_mul_f32 v{St + 2}, v{T}, v{T}")
        for i in range(1, 8):
            a(f"v_fmac_f32 v{St + 2}, v{T + i}, v{T + i}")
    for R in range(2):
        B = 16 + 64 * R
        wave_allreduce(a, "v_add_f32", B + 50, B + 51)
    a("s_waitcnt vmcnt(0)")
    for R in range(2):
        B = 16 + 64 * R
        H, T, St = B + 16, B + 24, B + 48
        v = St + 2
        a(f"v_mul_f32 v{v}, 0x3b000000, v{v}")
        a(f"v_cvt_pk_bf16_f32 v{v}, v{v}, v{v}")
        a(f"v_lshlrev_b32 v{v}, 16, v{v}")
        a(f"v_add_f32 v{v}, 0x3727c5ac, v{v}")
        a(f"v_cvt_pk_bf16_f32 v{v}, v{v}, v{v}")
        a(f"v_lshlrev_b32 v{v}, 16, v{v}")
        a(f"v_sqrt_f32 v{v}, v{v}")
        a("s_nop 0")
        a(f"v_cvt_pk_bf16_f32 v{v}, v{v}, v{v}")
        a(f"v_lshlrev_b32 v{v}, 16, v{v}")
        a(f"v_rcp_f32 v{v}, v{v}")
        a("s_nop 0")
        a(f"v_mov_b32 v{St + 4}, 0")
        for i in range(4):
            a(f"v_sub_f32 v{T}, v{H + 2 * i}, v{St + 1}")
            a(f"v_sub_f32 v{T + 1}, v{H + 2 * i + 1}, v{St + 1}")
            a(f"v_cvt_pk_bf16_f32 v{T + 2}, v{T}, v{T + 1}")
            unpack(T, T + 2)
            a(f"v_mul_f32 v{T}, v{T}, v{v}")
            a(f"v_mul_f32 v{T + 1}, v{T + 1}, v{v}")
            a(f"v_cvt_pk_bf16_f32 v{B + 44 + i}, v{T}, v{T + 1}")
            unpack(T, B + 44 + i)
            a(f"v_add_f32 v{T}, v{H + 2 * i}, v{T}")
            a(f"v_add_f32 v{T + 1}, v{H + 2 * i + 1}, v{T + 1}")
            a(f"v_cvt_pk_bf16_f32 v{B + 4 + i}, v{T}, v{T + 1}")
            a(f"v_dot2_f32_bf16 v{St + 4}, v{B + 44 + i}, v{8 + i}, v{St + 4}")
        a(f"buffer_store_dwordx4 v[{B + 4}:{B + 7}], v3, s[20:23], s34 offen offset:{1024 * R}")
    a("s_nop 2")
    for R in range(2):
        B = 16 + 64 * R
        wave_allreduce(a, "v_add_f32", B + 52, B + 53)
    for R in range(2):
        B = 16 + 64 * R
        v = B + 52
        a(f"v_cvt_pk_bf16_f32 v{v}, v{v}, v{v}")
        a(f"v_lshlrev_b32 v{v}, 16, v{v}")
        a(f"v_ashrrev_i32 v{v + 1}, 31, v{v}")
        a(f"v_or_b32 v{v + 1}, 0x80000000, v{v + 1}")
        a(f"v_xor_b32 v{v}, v{v}, v{v + 1}")
        a(f"v_and_b32 v{v}, s53, v{v}")
        a(f"s_sub_u32 s37, {2047 - R}, s33")
        a(f"v_or_b32 v{v}, s37, v{v}")
    a("v_max_u32 v4, v68, v132")
    a("s_lshl_b32 s37, s32, 2")
    a("v_mov_b32 v5, s37")
    a("ds_write_b32 v5, v4")
    stamp(a, 3)
    a("s_waitcnt lgkmcnt(0)")
    a("s_barrier")
    a("v_mov_b32 v5, 0")
    a("ds_read_b128 v[12:15], v5")
    a("s_waitcnt lgkmcnt(0)")
    a("v_max_u32 v12, v12, v13")
    a("v_max_u32 v14, v14, v15")
    a("v_max_u32 v12, v12, v14")
    a("s_nop 0")
    a("v_readfirstlane_b32 s38, v12")
    a("v_readfirstlane_b32 s39, v68")
    a("v_readfirstlane_b32 s40, v132")
    a(f"s_lshl_b32 s41, s2, 11")
    a(f"s_add_u32 s41, s41, {WS_CROW}")
    a(f"s_lshl_b32 s42, s2, 2")
    a(f"s_add_u32 s42, s42, {WS_CAND}")
    a("v_mov_b32 v5, 0")
    for R in range(2):
        B = 16 + 64 * R
        a(f"s_cmp_lg_u32 s38, s{39 + R}")
        a(f"s_cbranch_scc1 {name}_nw{R}")
        a(f"buffer_store_dwordx4 v[{B + 40}:{B + 43}], v3, s[24:27], s41 offen")
        a(f"buffer_store_dwordx4 v[{B + 44}:{B + 47}], v3, s[24:27], s41 offen offset:1024")
        a(f"buffer_store_dword v12, v5, s[24:27], s42 offen")
        a.label(f"{name}_nw{R}")
    stamp_flush(a, 3, 4, 10, 11)
    a.label(f"{name}_done")
    a("s_endpgm")
    return kernel_desc(name, 144, 64, 144)


NSL = 56


def emit_winner(a, vkey, t, ldsaddr_tmp, s_out):
    wave_allreduce(a, "v_max_u32", vkey, t)
    a("s_lshl_b32 s37, s32, 2")
    a(f"v_mov_b32 v{ldsaddr_tmp}, s37")
    a(f"ds_write_b32 v{ldsaddr_tmp}, v{vkey}")
    a("s_waitcnt lgkmcnt(0)")
    a("s_barrier")
    a(f"v_mov_b32 v{ldsaddr_tmp}, 0")
    a(f"ds_read_b64 v[{t}:{t + 1}], v{ldsaddr_tmp}")
    a(f"ds_read_b64 v[{t + 2}:{t + 3}], v{ldsaddr_tmp} offset:8")
    a("s_waitcnt lgkmcnt(0)")
    a(f"v_max_u32 v{t}, v{t}, v{t + 1}")
    a(f"v_max_u32 v{t + 2}, v{t + 2}, v{t + 3}")
    a(f"v_max_u32 v{t}, v{t}, v{t + 2}")
    a("s_nop 0")
    a(f"v_readfirstlane_b32 s{s_out}, v{t}")


def gen_k4(a, name):
    kernel_begin(a, name)
    a(f"s_cmp_ge_u32 s2, {NSL}")
    a(f"s_cbranch_scc1 {name}_done")
    stamp(a, 0)
    a("s_load_dwordx4 s[4:7], s[0:1], 56")
    a("s_load_dwordx2 s[8:9], s[0:1], 72")
    a("s_load_dwordx2 s[10:11], s[0:1], 96")
    a("v_lshrrev_b32 v1, 6, v0")
    a("v_and_b32 v2, 63, v0")
    a("s_nop 0")
    a("v_readfirstlane_b32 s32, v1")
    a("v_lshrrev_b32 v3, 2, v0")
    a("v_and_b32 v4, 3, v0")
    a("v_lshlrev_b32 v5, 2, v0")
    a("s_mov_b32 s33, 28672")
    a("v_mul_lo_u32 v6, v3, s33")
    a("v_lshl_add_u32 v6, v4, 4, v6")
    a("v_lshlrev_b32 v7, 4, v2")
    a("s_waitcnt lgkmcnt(0)")
    stamp(a, 1)
    srd(a, 12, 4, 5, D * F * 2)
    srd(a, 16, 6, 7, D * F * 2)
    srd(a, 20, 8, 9, D * F * 2)
    srd(a, 24, 10, 11, 14 << 20)
    a(f"s_mov_b32 s34, {WS_CAND}")
    a("buffer_load_dword v8, v5, s[24:27], s34 offen")
    a("s_lshl_b32 s34, s2, 6")
    G, U, W = 32, 64, 96
    for j in range(8):
        a(f"s_add_u32 s35, s34, {3584 * j}")
        a(f"buffer_load_dwordx4 v[{G + 4 * j}:{G + 4 * j + 3}], v6, s[12:15], s35 offen")
        a(f"buffer_load_dwordx4 v[{U + 4 * j}:{U + 4 * j + 3}], v6, s[16:19], s35 offen")
    a("s_lshl_b32 s35, s2, 5")
    a("s_lshl_b32 s36, s32, 3")
    a("s_add_u32 s35, s35, s36")
    a("s_lshl_b32 s35, s35, 10")
    for j in range(8):
        a(f"s_add_u32 s36, s35, {1024 * j}")
        a(f"buffer_load_dwordx4 v[{W + 4 * j}:{W + 4 * j + 3}], v7, s[20:23], s36 offen")
    a("s_waitcnt vmcnt(24)")
    stamp(a, 2)
    emit_winner(a, 8, 12, 9, 38)
    stamp(a, 3)
    a("s_and_b32 s39, s38, 0xffff")
    a("s_sub_u32 s39, 2047, s39")
    a("s_lshr_b32 s39, s39, 3")
    a("s_lshl_b32 s39, s39, 11")
    a(f"s_add_u32 s39, s39, {WS_CROW + 1024}")
    a("v_lshlrev_b32 v9, 4, v3")
    a("v_add_u32 v9, s39, v9")
    a("buffer_load_dwordx4 v[12:15], v9, s[24:27], 0 offen")
    a("s_mov_b32 s53, 0xffff0000")
    A = 128
    for i in range(16):
        a(f"v_mov_b32 v{A + i}, 0")
    a("s_waitcnt vmcnt(0)")
    stamp(a, 4)
    X = 16
    for i in range(4):
        a(f"v_lshlrev_b32 v{X + 2 * i}, 16, v{12 + i}")
        a(f"v_and_b32 v{X + 2 * i + 1}, s53, v{12 + i}")
    for j in range(8):
        for (M, ao) in ((G, 0), (U, 8)):
            for i in range(4):
                t = 24 + 2 * (i & 1)
                a(f"v_lshlrev_b32 v{t}, 16, v{M + 4 * j + i}")
                a(f"v_and_b32 v{t + 1}, s53, v{M + 4 * j + i}")
                a(f"v_fmac_f32 v{A + ao + 2 * i}, v{X + j}, v{t}")
                a(f"v_fmac_f32 v{A + ao + 2 * i + 1}, v{X + j}, v{t + 1}")
    a("s_nop 1")
    for i in range(8):
        a(f"v_permlane32_swap_b32 v{A + i}, v{A + i + 8}")
    a("s_nop 1")
    for i in range(8):
        a(f"v_add_f32 v{A + i}, v{A + i}, v{A + i + 8}")
    a("s_nop 1")
    for i in range(4):
        a(f"v_permlane16_swap_b32 v{A + i}, v{A + i + 4}")
    a("s_nop 1")
    for i in range(4):
        a(f"v_add_f32 v{A + i}, v{A + i}, v{A + i + 4}")
    a("s_nop 1")
    for i in range(4):
        a(f"v_add_f32_dpp v{A + i}, v{A + i}, v{A + i} row_ror:4 {DPP}")
    a("s_nop 1")
    for i in range(4):
        a(f"v_add_f32_dpp v{A + i}, v{A + i}, v{A + i} row_ror:8 {DPP}")
    a("v_and_b32 v9, 3, v2")
    a("v_lshlrev_b32 v9, 5, v9")
    a("v_bfe_u32 v10, v2, 4, 1")
    a("v_lshl_add_u32 v9, v10, 4, v9")
    a("v_bfe_u32 v10, v2, 5, 1")
    a("v_lshl_add_u32 v9, v10, 7, v9")
    a("s_lshl_b32 s37, s32, 8")
    a("v_add_u32 v9, s37, v9")
    a(f"ds_write_b128 v9, v[{A}:{A + 3}] offset:64")
    a("s_waitcnt lgkmcnt(0)")
    a("s_barrier")
    stamp(a, 5)
    a("v_and_b32 v9, 31, v2")
    a("v_lshlrev_b32 v9, 2, v9")
    for w in range(4):
        a(f"ds_read_b32 v{16 + w}, v9 offset:{64 + 256 * w}")
        a(f"ds_read_b32 v{20 + w}, v9 offset:{64 + 256 * w + 128}")
    a("s_waitcnt lgkmcnt(0)")
    a("v_add_f32 v16, v16, v17")
    a("v_add_f32 v18, v18, v19")
    a("v_add_f32 v20, v20, v21")
    a("v_add_f32 v22, v22, v23")
    a("v_add_f32 v16, v16, v18")
    a("v_add_f32 v20, v20, v22")
    a("v_cvt_pk_bf16_f32 v16, v16, v20")
    a("v_and_b32 v20, s53, v16")
    a("v_lshlrev_b32 v16, 16, v16")
    a("v_mul_f32 v17, 0xbfb8aa3b, v16")
    a("v_exp_f32 v17, v17")
    a("s_nop 0")
    a("v_add_f32 v17, 1.0, v17")
    a("v_rcp_f32 v17, v17")
    a("s_nop 0")
    a("v_mul_f32 v16, v16, v17")
    a("v_cvt_pk_bf16_f32 v16, v16, v16")
    a("v_lshlrev_b32 v16, 16, v16")
    a("v_mul_f32 v16, v16, v20")
    a("v_cvt_pk_bf16_f32 v16, v16, v16")
    a("v_lshlrev_b32 v16, 16, v16")
    a("s_lshl_b32 s37, s32, 3")
    for j in range(8):
        a(f"s_add_u32 s36, s37, {j}")
        a("s_nop 0")
        a(f"v_readlane_b32 s{40 + j}, v16, s36")
    for i in range(8):
        a(f"v_mov_b32 v{A + i}, 0")
    a("s_nop 1")
    for j in range(8):
        for i in range(4):
            t = 24 + 2 * (i & 1)
            a(f"v_lshlrev_b32 v{t}, 16, v{W + 4 * j + i}")
            a(f"v_and_b32 v{t + 1}, s53, v{W + 4 * j + i}")
            a(f"v_fmac_f32 v{A + 2 * i}, s{40 + j}, v{t}")
            a(f"v_fmac_f32 v{A + 2 * i + 1}, s{40 + j}, v{t + 1}")
    a("v_lshlrev_b32 v9, 5, v2")
    a("s_lshl_b32 s37, s32, 11")
    a("v_add_u32 v9, s37, v9")
    a(f"ds_write_b128 v9, v[{A}:{A + 3}] offset:2048")
    a(f"ds_write_b128 v9, v[{A + 4}:{A + 7}] offset:2064")
    a("s_waitcnt lgkmcnt(0)")
    a("s_barrier")
    a("v_lshlrev_b32 v9, 3, v0")
    for w in range(4):
        a(f"ds_read_b64 v[{16 + 2 * w}:{17 + 2 * w}], v9 offset:{2048 + 2048 * w}")
    a("s_waitcnt lgkmcnt(0)")
    a("v_add_f32 v16, v16, v18")
    a("v_add_f32 v17, v17, v19")
    a("v_add_f32 v20, v20, v22")
    a("v_add_f32 v21, v21, v23")
    a("v_add_f32 v16, v16, v20")
    a("v_add_f32 v17, v17, v21")
    a("s_lshl_b32 s37, s2, 11")
    a(f"s_add_u32 s37, s37, {WS_SLAB}")
    a("buffer_store_dwordx2 v[16:17], v9, s[24:27], s37 offen")
    stamp_flush(a, 4, 6, 10, 11)
    a.label(f"{name}_done")
    a("s_endpgm")
    return kernel_desc(name, 144, 64, 144)


def gen_k3b(a, name, wpf=0):
    kernel_begin(a, name)
    a("s_cmp_ge_u32 s2, 256")
    a(f"s_cbranch_scc1 {name}_done")
    stamp(a, 0)
    a("s_load_dwordx2 s[4:5], s[0:1], 0")
    a("s_load_dwordx2 s[6:7], s[0:1], 48")
    a("s_load_dwordx2 s[8:9], s[0:1], 80")
    a("s_load_dwordx2 s[10:11], s[0:1], 96")
    if wpf:
        a("s_load_dwordx4 s[56:59], s[0:1], 56")
        a("s_load_dwordx2 s[60:61], s[0:1], 72")
    a("v_lshrrev_b32 v1, 6, v0")
    a("v_and_b32 v2, 63, v0")
    a("s_nop 0")
    a("v_readfirstlane_b32 s32, v1")
    a("v_lshlrev_b32 v3, 4, v2")
    a("s_lshl_b32 s33, s2, 3")
    a("s_add_u32 s33, s33, s32")
    a("s_lshl_b32 s34, s33, 10")
    a(f"s_add_u32 s35, s34, {WS_P}")
    a(f"s_add_u32 s36, s34, {WS_P + (4 << 20)}")
    a(f"s_add_u32 s43, s34, {WS_P + (2 << 20)}")
    a(f"s_add_u32 s44, s34, {WS_P + (6 << 20)}")
    a("s_mov_b32 s53, 0xffff0000")
    a("s_waitcnt lgkmcnt(0)")
    stamp(a, 1)
    srd(a, 24, 10, 11, 14 << 20)
    B = 16
    a(f"buffer_load_dwordx4 v[{B}:{B + 3}], v3, s[24:27], s35 offen")
    a(f"buffer_load_dwordx4 v[{B + 12}:{B + 15}], v3, s[24:27], s43 offen")
    a(f"buffer_load_dwordx4 v[{B + 4}:{B + 7}], v3, s[24:27], s36 offen")
    a(f"buffer_load_dwordx4 v[{B + 56}:{B + 59}], v3, s[24:27], s44 offen")
    srd(a, 12, 4, 5, S * D * 2)
    a(f"buffer_load_dwordx4 v[{B + 8}:{B + 11}], v3, s[12:15], s34 offen")
    srd(a, 16, 6, 7, D * 2)
    a("buffer_load_dwordx4 v[8:11], v3, s[16:19], 0 offen")
    if wpf:
        a("s_sub_u32 s45, s32, 5")
        a("s_min_u32 s45, s45, 3")
        emit_wtouch(a, "s45", 120, 121)
    srd(a, 20, 8, 9, S * D * 2)
    a(f"s_waitcnt vmcnt({2 if wpf else 1})")
    stamp(a, 2)

    def unpack(dst, src):
        a(f"v_lshlrev_b32 v{dst}, 16, v{src}")
        a(f"v_and_b32 v{dst + 1}, s53, v{src}")

    H = B + 16
    TT = [80 + 10 * i for i in range(4)]
    steps = []
    for i in range(4):
        T = TT[i]
        steps.append([
            f"v_lshlrev_b32 v{T}, 16, v{B + i}", f"v_and_b32 v{T + 1}, s53, v{B + i}",
            f"v_lshlrev_b32 v{T + 2}, 16, v{B + 12 + i}", f"v_and_b32 v{T + 3}, s53, v{B + 12 + i}",
            f"v_lshlrev_b32 v{T + 4}, 16, v{B + 4 + i}", f"v_and_b32 v{T + 5}, s53, v{B + 4 + i}",
            f"v_lshlrev_b32 v{T + 6}, 16, v{B + 56 + i}", f"v_and_b32 v{T + 7}, s53, v{B + 56 + i}",
            f"v_add_f32 v{T}, v{T}, v{T + 2}", f"v_add_f32 v{T + 1}, v{T + 1}, v{T + 3}",
            f"v_add_f32 v{T + 4}, v{T + 4}, v{T + 6}", f"v_add_f32 v{T + 5}, v{T + 5}, v{T + 7}",
            f"v_cvt_pk_bf16_f32 v{T + 8}, v{T}, v{T + 1}", f"v_cvt_pk_bf16_f32 v{T + 9}, v{T + 4}, v{T + 5}",
            f"v_lshlrev_b32 v{T}, 16, v{T + 8}", f"v_and_b32 v{T + 1}, s53, v{T + 8}",
            f"v_lshlrev_b32 v{T + 2}, 16, v{T + 9}", f"v_and_b32 v{T + 3}, s53, v{T + 9}",
            f"v_sub_f32 v{T}, v{T}, v{T + 2}", f"v_sub_f32 v{T + 1}, v{T + 1}, v{T + 3}",
            f"v_cvt_pk_bf16_f32 v{T + 4}, v{T}, v{T + 1}",
            f"v_lshlrev_b32 v{T}, 16, v{T + 4}", f"v_and_b32 v{T + 1}, s53, v{T + 4}",
            f"v_lshlrev_b32 v{T + 2}, 16, v{B + 8 + i}", f"v_and_b32 v{T + 3}, s53, v{B + 8 + i}",
            f"v_add_f32 v{T}, v{T + 2}, v{T}", f"v_add_f32 v{T + 1}, v{T + 3}, v{T + 1}",
            f"v_cvt_pk_bf16_f32 v{B + 40 + i}, v{T}, v{T + 1}",
            f"v_lshlrev_b32 v{H + 2 * i}, 16, v{B + 40 + i}", f"v_and_b32 v{H + 2 * i + 1}, s53, v{B + 40 + i}",
        ])
    for k in range(len(steps[0])):
        for i in range(4):
            a(steps[i][k])
    St = B + 48
    a(f"v_add_f32 v{St}, v{H}, v{H + 1}")
    a(f"v_add_f32 v{St + 1}, v{H + 2}, v{H + 3}")
    a(f"v_add_f32 v{St + 2}, v{H + 4}, v{H + 5}")
    a(f"v_add_f32 v{St + 3}, v{H + 6}, v{H + 7}")
    a(f"v_add_f32 v{St}, v{St}, v{St + 1}")
    a(f"v_add_f32 v{St + 2}, v{St + 2}, v{St + 3}")
    a(f"v_add_f32 v{St}, v{St}, v{St + 2}")
    wave_allreduce(a, "v_add_f32", St, St + 1)
    T = 80
    a(f"v_mul_f32 v{St}, 0x3b000000, v{St}")
    for i in range(8):
        a(f"v_sub_f32 v{T + i}, v{H + i}, v{St}")
    a(f"v_cvt_pk_bf16_f32 v{St + 1}, v{St}, v{St}")
    a(f"v_mul_f32 v{St + 2}, v{T}, v{T}")
    a(f"v_mul_f32 v{St + 3}, v{T + 1}, v{T + 1}")
    a(f"v_lshlrev_b32 v{St + 1}, 16, v{St + 1}")
    for i in range(2, 8, 2):
        a(f"v_fmac_f32 v{St + 2}, v{T + i}, v{T + i}")
        a(f"v_fmac_f32 v{St + 3}, v{T + i + 1}, v{T + i + 1}")
    a(f"v_add_f32 v{St + 2}, v{St + 2}, v{St + 3}")
    for i in range(8):
        a(f"v_sub_f32 v{T + 10 + i}, v{H + i}, v{St + 1}")
    for i in range(4):
        a(f"v_cvt_pk_bf16_f32 v{T + 20 + i}, v{T + 10 + 2 * i}, v{T + 11 + 2 * i}")
    for i in range(4):
        unpack(T + 10 + 2 * i, T + 20 + i)
    wave_allreduce(a, "v_add_f32", St + 2, St + 3)
    v = St + 2
    a(f"v_mul_f32 v{v}, 0x3b000000, v{v}")
    a(f"v_cvt_pk_bf16_f32 v{v}, v{v}, v{v}")
    a(f"v_lshlrev_b32 v{v}, 16, v{v}")
    a(f"v_add_f32 v{v}, 0x3727c5ac, v{v}")
    a(f"v_cvt_pk_bf16_f32 v{v}, v{v}, v{v}")
    a(f"v_lshlrev_b32 v{v}, 16, v{v}")
    a(f"v_sqrt_f32 v{v}, v{v}")
    a("s_nop 0")
    a(f"v_cvt_pk_bf16_f32 v{v}, v{v}, v{v}")
    a(f"v_lshlrev_b32 v{v}, 16, v{v}")
    a(f"v_rcp_f32 v{v}, v{v}")
    a(f"s_waitcnt vmcnt({1 if wpf else 0})")
    for i in range(8):
        a(f"v_mul_f32 v{T + 10 + i}, v{T + 10 + i}, v{v}")
    for i in range(4):
        a(f"v_cvt_pk_bf16_f32 v{B + 44 + i}, v{T + 10 + 2 * i}, v{T + 11 + 2 * i}")
    for i in range(4):
        unpack(T + 10 + 2 * i, B + 44 + i)
        unpack(T + 2 * i, 8 + i)
    a(f"v_mul_f32 v{St + 4}, v{T + 10}, v{T}")
    a(f"v_mul_f32 v{St + 5}, v{T + 11}, v{T + 1}")
    for i in range(2, 8, 2):
        a(f"v_fmac_f32 v{St + 4}, v{T + 10 + i}, v{T + i}")
        a(f"v_fmac_f32 v{St + 5}, v{T + 11 + i}, v{T + i + 1}")
    a(f"v_add_f32 v{St + 4}, v{St + 4}, v{St + 5}")
    for i in range(8):
        a(f"v_add_f32 v{T + 20 + i}, v{H + i}, v{T + 10 + i}")
    for i in range(4):
        a(f"v_cvt_pk_bf16_f32 v{B + 4 + i}, v{T + 20 + 2 * i}, v{T + 21 + 2 * i}")
    a(f"buffer_store_dwordx4 v[{B + 4}:{B + 7}], v3, s[20:23], s34 offen")
    wave_allreduce(a, "v_add_f32", St + 4, St + 5)
    v = St + 4
    a(f"v_cvt_pk_bf16_f32 v{v}, v{v}, v{v}")
    a(f"v_lshlrev_b32 v{v}, 16, v{v}")
    a(f"v_ashrrev_i32 v{v + 1}, 31, v{v}")
    a(f"v_or_b32 v{v + 1}, 0x80000000, v{v + 1}")
    a(f"v_xor_b32 v{v}, v{v}, v{v + 1}")
    a(f"v_and_b32 v{v}, s53, v{v}")
    a("s_sub_u32 s37, 2047, s33")
    a(f"v_or_b32 v{v}, s37, v{v}")
    a("s_lshl_b32 s37, s32, 2")
    a("v_mov_b32 v5, s37")
    a(f"ds_write_b32 v5, v{v}")
    stamp(a, 3)
    a("s_waitcnt lgkmcnt(0)")
    a("s_barrier")
    a("v_mov_b32 v5, 0")
    a("ds_read_b128 v[12:15], v5")
    a("ds_read_b128 v[80:83], v5 offset:16")
    a(f"v_readfirstlane_b32 s39, v{v}")
    a(f"s_lshl_b32 s41, s2, 11")
    a(f"s_add_u32 s41, s41, {WS_CROW}")
    a(f"s_lshl_b32 s42, s2, 2")
    a(f"s_add_u32 s42, s42, {WS_CAND}")
    a("s_waitcnt lgkmcnt(0)")
    a("v_max3_u32 v12, v12, v13, v14")
    a("v_max3_u32 v80, v80, v81, v82")
    a("v_max3_u32 v12, v12, v15, v83")
    a("v_max_u32 v12, v12, v80")
    a("s_nop 0")
    a("v_readfirstlane_b32 s38, v12")
    a("s_cmp_lg_u32 s38, s39")
    a(f"s_cbranch_scc1 {name}_nw")
    a(f"buffer_store_dwordx4 v[{B + 40}:{B + 43}], v3, s[24:27], s41 offen")
    a(f"buffer_store_dwordx4 v[{B + 44}:{B + 47}], v3, s[24:27], s41 offen offset:1024")
    a(f"buffer_store_dword v12, v5, s[24:27], s42 offen")
    a.label(f"{name}_nw")
    stamp_flush(a, 3, 4, 10, 11)
    a.label(f"{name}_done")
    a("s_endpgm")
    return kernel_desc(name, 128, 64, 128)


def emit_winner_wave(a, v4, t, s_out):
    a(f"v_max3_u32 v{v4}, v{v4}, v{v4 + 1}, v{v4 + 2}")
    a(f"v_max_u32 v{v4}, v{v4}, v{v4 + 3}")
    wave_allreduce(a, "v_max_u32", v4, t)
    a("s_nop 0")
    a(f"v_readfirstlane_b32 s{s_out}, v{v4}")


def gen_k4b(a, name):
    kernel_begin(a, name)
    a(f"s_cmp_ge_u32 s2, {NSL}")
    a(f"s_cbranch_scc1 {name}_done")
    stamp(a, 0)
    a("s_load_dwordx2 s[10:11], s[0:1], 96")
    a("s_load_dwordx4 s[4:7], s[0:1], 56")
    a("s_load_dwordx2 s[8:9], s[0:1], 72")
    a("v_lshrrev_b32 v1, 6, v0")
    a("v_and_b32 v2, 63, v0")
    a("s_nop 0")
    a("v_readfirstlane_b32 s32, v1")
    a("v_lshrrev_b32 v3, 2, v0")
    a("v_and_b32 v4, 3, v0")
    a("s_mov_b32 s33, 14336")
    a("v_mul_lo_u32 v6, v3, s33")
    a("v_lshl_add_u32 v6, v4, 4, v6")
    a("v_lshlrev_b32 v7, 4, v2")
    a("s_lshl_b32 s34, s2, 6")
    a("s_lshl_b32 s35, s2, 5")
    a("s_lshl_b32 s36, s32, 2")
    a("s_add_u32 s35, s35, s36")
    a("s_lshl_b32 s35, s35, 10")
    a(f"s_mov_b32 s37, {WS_CAND}")
    a("s_mov_b32 s53, 0xffff0000")
    a("s_waitcnt lgkmcnt(0)")
    stamp(a, 1)
    srd(a, 24, 10, 11, 14 << 20)
    a("buffer_load_dwordx4 v[8:11], v7, s[24:27], s37 offen")
    srd(a, 12, 4, 5, D * F * 2)
    srd(a, 16, 6, 7, D * F * 2)
    srd(a, 20, 8, 9, D * F * 2)
    G, U, W = 32, 48, 64
    for j in range(4):
        a(f"s_add_u32 s36, s34, {3584 * j}")
        a(f"buffer_load_dwordx4 v[{G + 4 * j}:{G + 4 * j + 3}], v6, s[12:15], s36 offen")
        a(f"buffer_load_dwordx4 v[{U + 4 * j}:{U + 4 * j + 3}], v6, s[16:19], s36 offen")
    a("s_waitcnt vmcnt(8)")
    stamp(a, 2)
    emit_winner_wave(a, 8, 12, 38)
    a("s_and_b32 s39, s38, 0xffff")
    a("s_sub_u32 s39, 2047, s39")
    a("s_lshr_b32 s39, s39, 3")
    a("s_lshl_b32 s39, s39, 11")
    a(f"s_add_u32 s39, s39, {WS_CROW + 1024}")
    a("v_lshlrev_b32 v9, 3, v3")
    a("v_add_u32 v9, s39, v9")
    a("buffer_load_dwordx2 v[12:13], v9, s[24:27], 0 offen")
    stamp(a, 3)
    for j in range(4):
        a(f"buffer_load_dwordx4 v[{W + 4 * j}:{W + 4 * j + 3}], v7, s[20:23], s35 offen offset:{1024 * j}")
    A = 96
    for i in range(16):
        a(f"v_mov_b32 v{A + i}, 0")
    a("s_waitcnt vmcnt(4)")
    stamp(a, 4)
    X = 16
    for i in range(2):
        a(f"v_lshlrev_b32 v{X + 2 * i}, 16, v{12 + i}")
        a(f"v_and_b32 v{X + 2 * i + 1}, s53, v{12 + i}")
    for j in range(4):
        for (M, ao) in ((G, 0), (U, 8)):
            for i in range(4):
                t = 24 + 2 * (i & 3)
                a(f"v_lshlrev_b32 v{t}, 16, v{M + 4 * j + i}")
                a(f"v_and_b32 v{t + 1}, s53, v{M + 4 * j + i}")
            for i in range(4):
                t = 24 + 2 * (i & 3)
                a(f"v_fmac_f32 v{A + ao + 2 * i}, v{X + j}, v{t}")
                a(f"v_fmac_f32 v{A + ao + 2 * i + 1}, v{X + j}, v{t + 1}")
    a("s_nop 1")
    for i in range(8):
        a(f"v_permlane32_swap_b32 v{A + i}, v{A + i + 8}")
    a("s_nop 1")
    for i in range(8):
        a(f"v_add_f32 v{A + i}, v{A + i}, v{A + i + 8}")
    a("s_nop 1")
    for i in range(4):
        a(f"v_permlane16_swap_b32 v{A + i}, v{A + i + 4}")
    a("s_nop 1")
    for i in range(4):
        a(f"v_add_f32 v{A + i}, v{A + i}, v{A + i + 4}")
    a("s_nop 1")
    for i in range(4):
        a(f"v_add_f32_dpp v{A + i}, v{A + i}, v{A + i} row_ror:4 {DPP}")
    a("s_nop 1")
    for i in range(4):
        a(f"v_add_f32_dpp v{A + i}, v{A + i}, v{A + i} row_ror:8 {DPP}")
    a("v_and_b32 v9, 3, v2")
    a("v_lshlrev_b32 v9, 5, v9")
    a("v_bfe_u32 v10, v2, 4, 1")
    a("v_lshl_add_u32 v9, v10, 4, v9")
    a("v_bfe_u32 v10, v2, 5, 1")
    a("v_lshl_add_u32 v9, v10, 7, v9")
    a("s_lshl_b32 s37, s32, 8")
    a("v_add_u32 v9, s37, v9")
    a(f"ds_write_b128 v9, v[{A}:{A + 3}]")
    a("s_waitcnt lgkmcnt(0)")
    a("s_barrier")
    stamp(a, 5)
    a("v_lshlrev_b32 v9, 2, v2")
    for w in range(8):
        a(f"ds_read_b32 v{16 + w}, v9 offset:{256 * w}")
    a("s_waitcnt lgkmcnt(0)")
    a("v_add_f32 v16, v16, v17")
    a("v_add_f32 v18, v18, v19")
    a("v_add_f32 v20, v20, v21")
    a("v_add_f32 v22, v22, v23")
    a("v_add_f32 v16, v16, v18")
    a("v_add_f32 v20, v20, v22")
    a("v_add_f32 v16, v16, v20")
    a("v_mov_b32 v20, v16")
    a("s_nop 1")
    a("v_permlane32_swap_b32 v16, v20")
    a("s_nop 1")
    a("v_cvt_pk_bf16_f32 v16, v16, v20")
    a("v_and_b32 v20, s53, v16")
    a("v_lshlrev_b32 v16, 16, v16")
    a("v_mul_f32 v17, 0xbfb8aa3b, v16")
    a("v_exp_f32 v17, v17")
    a("s_nop 0")
    a("v_add_f32 v17, 1.0, v17")
    a("v_rcp_f32 v17, v17")
    a("s_nop 0")
    a("v_mul_f32 v16, v16, v17")
    a("v_cvt_pk_bf16_f32 v16, v16, v16")
    a("v_lshlrev_b32 v16, 16, v16")
    a("v_mul_f32 v16, v16, v20")
    a("v_cvt_pk_bf16_f32 v16, v16, v16")
    a("v_lshlrev_b32 v16, 16, v16")
    a("s_lshl_b32 s37, s32, 2")
    for j in range(4):
        a(f"s_add_u32 s36, s37, {j}")
        a("s_nop 0")
        a(f"v_readlane_b32 s{40 + j}, v16, s36")
    a("s_waitcnt vmcnt(0)")
    for j in range(4):
        for i in range(4):
            t = 24 + 2 * i
            a(f"v_lshlrev_b32 v{t}, 16, v{W + 4 * j + i}")
            a(f"v_and_b32 v{t + 1}, s53, v{W + 4 * j + i}")
        for i in range(4):
            t = 24 + 2 * i
            if j == 0:
                a(f"v_mul_f32 v{A + 2 * i}, s{40 + j}, v{t}")
                a(f"v_mul_f32 v{A + 2 * i + 1}, s{40 + j}, v{t + 1}")
            else:
                a(f"v_fmac_f32 v{A + 2 * i}, s{40 + j}, v{t}")
                a(f"v_fmac_f32 v{A + 2 * i + 1}, s{40 + j}, v{t + 1}")
    a("v_lshlrev_b32 v9, 5, v2")
    a("s_lshl_b32 s37, s32, 11")
    a("v_add_u32 v9, s37, v9")
    a(f"ds_write_b128 v9, v[{A}:{A + 3}] offset:2048")
    a(f"ds_write_b128 v9, v[{A + 4}:{A + 7}] offset:2064")
    a("s_waitcnt lgkmcnt(0)")
    a("s_barrier")
    a("v_lshlrev_b32 v9, 2, v0")
    for w in range(8):
        a(f"ds_read_b32 v{16 + w}, v9 offset:{2048 + 2048 * w}")
    a("s_lshl_b32 s37, s2, 11")
    a(f"s_add_u32 s37, s37, {WS_SLAB}")
    a("s_waitcnt lgkmcnt(0)")
    a("v_add_f32 v16, v16, v17")
    a("v_add_f32 v18, v18, v19")
    a("v_add_f32 v20, v20, v21")
    a("v_add_f32 v22, v22, v23")
    a("v_add_f32 v16, v16, v18")
    a("v_add_f32 v20, v20, v22")
    a("v_add_f32 v16, v16, v20")
    a("buffer_store_dword v16, v9, s[24:27], s37 offen")
    stamp_flush(a, 4, 6, 10, 11)
    a.label(f"{name}_done")
    a("s_endpgm")
    return kernel_desc(name, 112, 64, 112)


WS_NONCE = 13 << 20
WS_ANN = WS_NONCE + 128
WS_KEYS = WS_NONCE + 4096
WS_ROWS = WS_NONCE + 8192
WS_SLABS = 15 << 20
WS_FLAG2 = (15 << 20) + (1 << 19)


KSLEEP, SSLEEP, FSLEEP, ASLEEP = 1, 1, 1, 8


def gen_kt(a, name, fused=0):
    SLOT = "s63" if fused else "s2"
    LP = " sc1" if fused else ""
    if not fused:
        kernel_begin(a, name)
        a("s_cmp_ge_u32 s2, 256")
        a(f"s_cbranch_scc1 {name}_done")
    stamp(a, 0)
    a("s_load_dwordx2 s[10:11], s[0:1], 96")
    a("s_load_dwordx2 s[4:5], s[0:1], 0")
    a("s_load_dwordx2 s[6:7], s[0:1], 48")
    a("s_load_dwordx2 s[8:9], s[0:1], 80")
    a("s_load_dwordx4 s[56:59], s[0:1], 56")
    a("s_load_dwordx2 s[60:61], s[0:1], 72")
    if fused:
        a("v_mbcnt_lo_u32_b32 v2, -1, 0")
        a("v_mbcnt_hi_u32_b32 v2, -1, v2")
        a("s_lshl_b32 s33, s32, 6")
        a("v_add_u32 v0, s33, v2")
    else:
        a("v_lshrrev_b32 v1, 6, v0")
        a("v_and_b32 v2, 63, v0")
        a("s_nop 0")
        a("v_readfirstlane_b32 s32, v1")
    a("v_lshlrev_b32 v3, 4, v2")
    a(f"s_lshl_b32 s33, {SLOT}, 3")
    a("s_add_u32 s33, s33, s32")
    a("s_lshl_b32 s34, s33, 10")
    a(f"s_add_u32 s35, s34, {WS_P}")
    a(f"s_add_u32 s36, s34, {WS_P + (4 << 20)}")
    a(f"s_add_u32 s43, s34, {WS_P + (2 << 20)}")
    a(f"s_add_u32 s44, s34, {WS_P + (6 << 20)}")
    a("s_mov_b32 s53, 0xffff0000")
    a("s_mov_b32 s69, 0x40000")
    a(f"s_mov_b32 s45, {WS_NONCE}")
    a("v_mov_b32 v5, 0")
    a("v_lshrrev_b32 v6, 2, v0")
    a("s_mov_b32 s46, 14336")
    a("v_mul_lo_u32 v7, v6, s46")
    a("v_and_b32 v4, 3, v0")
    a("v_lshl_add_u32 v7, v4, 4, v7")
    a("v_lshlrev_b32 v4, 5, v2")
    a("s_waitcnt lgkmcnt(0)")
    stamp(a, 1)
    srd(a, 24, 10, 11, 16 << 20)
    srd(a, 20, 8, 9, S * D * 2)
    P0, P2, XX, P1, P3 = 16, 20, 24, 28, 12

    def p_loads():
        a(f"buffer_load_dwordx4 v[{P0}:{P0 + 3}], v3, s[24:27], s35 offen{LP}")
        a(f"buffer_load_dwordx4 v[{P1}:{P1 + 3}], v3, s[24:27], s43 offen{LP}")
        a(f"buffer_load_dwordx4 v[{P2}:{P2 + 3}], v3, s[24:27], s36 offen{LP}")
        a(f"buffer_load_dwordx4 v[{P3}:{P3 + 3}], v3, s[24:27], s44 offen{LP}")

    if fused:
        a("buffer_load_dword v88, v5, s[24:27], s45 offen")
        srd(a, 12, 4, 5, S * D * 2)
        a(f"buffer_load_dwordx4 v[{XX}:{XX + 3}], v3, s[12:15], s34 offen")
        srd(a, 16, 6, 7, D * 2)
        a("buffer_load_dwordx4 v[8:11], v3, s[16:19], 0 offen")
        a("s_cmp_lg_u32 s32, 0")
        a(f"s_cbranch_scc1 {name}_nf")
        a("s_lshl_b32 s46, s63, 7")
        a(f"s_add_u32 s46, s46, {WS_FLAG2}")
        a("s_waitcnt vmcnt(2)")
        a("buffer_store_dword v88, v5, s[24:27], s46 offen sc0 sc1")
        a.label(f"{name}_nf")
        a("s_cmp_lg_u32 s32, 4")
        a(f"s_cbranch_scc1 {name}_np")
        a("s_lshr_b32 s46, s63, 4")
        a("s_lshl_b32 s46, s46, 11")
        a(f"s_add_u32 s46, s46, {WS_FLAG2}")
        a("v_and_b32 v56, 15, v2")
        a("v_lshlrev_b32 v56, 7, v56")
        a.label(f"{name}_fp")
        a("buffer_load_dword v57, v56, s[24:27], s46 offen sc1")
        a("s_waitcnt vmcnt(0)")
        a("v_cmp_ne_u32 vcc, v57, v88")
        a("s_or_b32 s47, vcc_lo, vcc_hi")
        a(f"s_cbranch_scc0 {name}_np")
        a(f"s_sleep {FSLEEP}")
        a("s_sub_u32 s69, s69, 1")
        a(f"s_cbranch_scc0 {name}_fp")
        a("s_mov_b32 s69, 0")
        a.label(f"{name}_np")
        a("s_barrier")
        p_loads()
    else:
        p_loads()
        srd(a, 12, 4, 5, S * D * 2)
        a(f"buffer_load_dwordx4 v[{XX}:{XX + 3}], v3, s[12:15], s34 offen")
        srd(a, 16, 6, 7, D * 2)
        a("buffer_load_dwordx4 v[8:11], v3, s[16:19], 0 offen")
        a("buffer_load_dword v88, v5, s[24:27], s45 offen")
    G, U = 96, 112
    a(f"s_waitcnt vmcnt({0 if fused else 2})")
    stamp(a, 2)

    def unpack(dst, src):
        a(f"v_lshlrev_b32 v{dst}, 16, v{src}")
        a(f"v_and_b32 v{dst + 1}, s53, v{src}")

    H, HP, HN, St = 32, 40, 44, 48
    for half in range(2):
        steps = []
        for ii in range(2):
            i = 2 * half + ii
            T = 56 + 10 * ii
            steps.append([
                f"v_lshlrev_b32 v{T}, 16, v{P0 + i}", f"v_and_b32 v{T + 1}, s53, v{P0 + i}",
                f"v_lshlrev_b32 v{T + 2}, 16, v{P1 + i}", f"v_and_b32 v{T + 3}, s53, v{P1 + i}",
                f"v_lshlrev_b32 v{T + 4}, 16, v{P2 + i}", f"v_and_b32 v{T + 5}, s53, v{P2 + i}",
                f"v_lshlrev_b32 v{T + 6}, 16, v{P3 + i}", f"v_and_b32 v{T + 7}, s53, v{P3 + i}",
                f"v_add_f32 v{T}, v{T}, v{T + 2}", f"v_add_f32 v{T + 1}, v{T + 1}, v{T + 3}",
                f"v_add_f32 v{T + 4}, v{T + 4}, v{T + 6}", f"v_add_f32 v{T + 5}, v{T + 5}, v{T + 7}",
                f"v_cvt_pk_bf16_f32 v{T + 8}, v{T}, v{T + 1}", f"v_cvt_pk_bf16_f32 v{T + 9}, v{T + 4}, v{T + 5}",
                f"v_lshlrev_b32 v{T}, 16, v{T + 8}", f"v_and_b32 v{T + 1}, s53, v{T + 8}",
                f"v_lshlrev_b32 v{T + 2}, 16, v{T + 9}", f"v_and_b32 v{T + 3}, s53, v{T + 9}",
                f"v_sub_f32 v{T}, v{T}, v{T + 2}", f"v_sub_f32 v{T + 1}, v{T + 1}, v{T + 3}",
                f"v_cvt_pk_bf16_f32 v{T + 4}, v{T}, v{T + 1}",
                f"v_lshlrev_b32 v{T}, 16, v{T + 4}", f"v_and_b32 v{T + 1}, s53, v{T + 4}",
                f"v_lshlrev_b32 v{T + 2}, 16, v{XX + i}", f"v_and_b32 v{T + 3}, s53, v{XX + i}",
                f"v_add_f32 v{T}, v{T + 2}, v{T}", f"v_add_f32 v{T + 1}, v{T + 3}, v{T + 1}",
                f"v_cvt_pk_bf16_f32 v{HP + i}, v{T}, v{T + 1}",
                f"v_lshlrev_b32 v{H + 2 * i}, 16, v{HP + i}", f"v_and_b32 v{H + 2 * i + 1}, s53, v{HP + i}",
            ])
        for k in range(len(steps[0])):
            for ii in range(2):
                a(steps[ii][k])
    a(f"v_add_f32 v{St}, v{H}, v{H + 1}")
    a(f"v_add_f32 v{St + 1}, v{H + 2}, v{H + 3}")
    a(f"v_add_f32 v{St + 2}, v{H + 4}, v{H + 5}")
    a(f"v_add_f32 v{St + 3}, v{H + 6}, v{H + 7}")
    a(f"v_add_f32 v{St}, v{St}, v{St + 1}")
    a(f"v_add_f32 v{St + 2}, v{St + 2}, v{St + 3}")
    a(f"v_add_f32 v{St}, v{St}, v{St + 2}")
    wave_allreduce(a, "v_add_f32", St, St + 1)
    T = 56
    a(f"v_mul_f32 v{St}, 0x3b000000, v{St}")
    for i in range(8):
        a(f"v_sub_f32 v{T + i}, v{H + i}, v{St}")
    a(f"v_cvt_pk_bf16_f32 v{St + 1}, v{St}, v{St}")
    a(f"v_mul_f32 v{St + 2}, v{T}, v{T}")
    a(f"v_mul_f32 v{St + 3}, v{T + 1}, v{T + 1}")
    a(f"v_lshlrev_b32 v{St + 1}, 16, v{St + 1}")
    for i in range(2, 8, 2):
        a(f"v_fmac_f32 v{St + 2}, v{T + i}, v{T + i}")
        a(f"v_fmac_f32 v{St + 3}, v{T + i + 1}, v{T + i + 1}")
    a(f"v_add_f32 v{St + 2}, v{St + 2}, v{St + 3}")
    for i in range(8):
        a(f"v_sub_f32 v{T + 10 + i}, v{H + i}, v{St + 1}")
    for i in range(4):
        a(f"v_cvt_pk_bf16_f32 v{T + 20 + i}, v{T + 10 + 2 * i}, v{T + 11 + 2 * i}")
    for i in range(4):
        unpack(T + 10 + 2 * i, T + 20 + i)
    wave_allreduce(a, "v_add_f32", St + 2, St + 3)
    v = St + 2
    a(f"v_mul_f32 v{v}, 0x3b000000, v{v}")
    a(f"v_cvt_pk_bf16_f32 v{v}, v{v}, v{v}")
    a(f"v_lshlrev_b32 v{v}, 16, v{v}")
    a(f"v_add_f32 v{v}, 0x3727c5ac, v{v}")
    a(f"v_cvt_pk_bf16_f32 v{v}, v{v}, v{v}")
    a(f"v_lshlrev_b32 v{v}, 16, v{v}")
    a(f"v_sqrt_f32 v{v}, v{v}")
    a("s_nop 0")
    a(f"v_cvt_pk_bf16_f32 v{v}, v{v}, v{v}")
    a(f"v_lshlrev_b32 v{v}, 16, v{v}")
    a(f"v_rcp_f32 v{v}, v{v}")
    a("s_waitcnt vmcnt(0)")
    for i in range(8):
        a(f"v_mul_f32 v{T + 10 + i}, v{T + 10 + i}, v{v}")
    for i in range(4):
        a(f"v_cvt_pk_bf16_f32 v{HN + i}, v{T + 10 + 2 * i}, v{T + 11 + 2 * i}")
    for i in range(4):
        unpack(T + 10 + 2 * i, HN + i)
        unpack(T + 2 * i, 8 + i)
    a(f"v_mul_f32 v{St + 4}, v{T + 10}, v{T}")
    a(f"v_mul_f32 v{St + 5}, v{T + 11}, v{T + 1}")
    for i in range(2, 8, 2):
        a(f"v_fmac_f32 v{St + 4}, v{T + 10 + i}, v{T + i}")
        a(f"v_fmac_f32 v{St + 5}, v{T + 11 + i}, v{T + i + 1}")
    a(f"v_add_f32 v{St + 4}, v{St + 4}, v{St + 5}")
    wave_allreduce(a, "v_add_f32", St + 4, St + 5)
    v = St + 4
    a(f"v_cvt_pk_bf16_f32 v{v}, v{v}, v{v}")
    a(f"v_lshlrev_b32 v{v}, 16, v{v}")
    a(f"v_ashrrev_i32 v{v + 1}, 31, v{v}")
    a(f"v_or_b32 v{v + 1}, 0x80000000, v{v + 1}")
    a(f"v_xor_b32 v{v}, v{v}, v{v + 1}")
    a(f"v_and_b32 v{v}, s53, v{v}")
    a("s_sub_u32 s37, 2047, s33")
    a(f"v_or_b32 v{v}, s37, v{v}")
    a("s_lshl_b32 s37, s32, 2")
    a("v_mov_b32 v89, s37")
    a(f"ds_write_b32 v89, v{v}")
    OUT = 84
    for i in range(8):
        a(f"v_add_f32 v{T + 20 + i}, v{H + i}, v{T + 10 + i}")
    for i in range(4):
        a(f"v_cvt_pk_bf16_f32 v{OUT + i}, v{T + 20 + 2 * i}, v{T + 21 + 2 * i}")
    for i in range(4):
        a(f"v_mov_b32 v{56 + 2 * i}, v{HP + i}")
        a(f"v_mov_b32 v{57 + 2 * i}, v88")
        a(f"v_mov_b32 v{64 + 2 * i}, v{HN + i}")
        a(f"v_mov_b32 v{65 + 2 * i}, v88")
    a(f"v_readfirstlane_b32 s39, v{v}")
    a("v_readfirstlane_b32 s50, v88")
    a(f"s_lshl_b32 s41, {SLOT}, 12")
    a(f"s_add_u32 s41, s41, {WS_ROWS}")
    a(f"s_lshl_b32 s42, {SLOT}, 3")
    a(f"s_add_u32 s42, s42, {WS_KEYS}")
    stamp(a, 3)
    a("s_waitcnt lgkmcnt(0)")
    a("s_barrier")
    a("ds_read_b128 v[72:75], v5")
    a("ds_read_b128 v[76:79], v5 offset:16")
    a("s_waitcnt lgkmcnt(0)")
    a("v_max3_u32 v72, v72, v73, v74")
    a("v_max3_u32 v76, v76, v77, v78")
    a("v_max3_u32 v72, v72, v75, v79")
    a("v_max_u32 v72, v72, v76")
    a("v_mov_b32 v73, v88")
    a("s_nop 0")
    a("v_readfirstlane_b32 s38, v72")
    a("s_mov_b32 s51, 0")
    a("s_cmp_lg_u32 s38, s39")
    a(f"s_cbranch_scc1 {name}_nc")
    a("s_mov_b32 s51, 1")
    a("buffer_store_dwordx2 v[72:73], v5, s[24:27], s42 offen sc0 sc1")
    a("buffer_store_dwordx4 v[64:67], v4, s[24:27], s41 offen offset:2048 sc0 sc1")
    a("buffer_store_dwordx4 v[68:71], v4, s[24:27], s41 offen offset:2064 sc0 sc1")
    a("buffer_store_dwordx4 v[56:59], v4, s[24:27], s41 offen sc0 sc1")
    a("buffer_store_dwordx4 v[60:63], v4, s[24:27], s41 offen offset:16 sc0 sc1")
    a(f"s_branch {name}_role")
    a.label(f"{name}_nc")
    a(f"buffer_store_dwordx4 v[{OUT}:{OUT + 3}], v3, s[20:23], s34 offen{OWT}")
    a.label(f"{name}_role")
    stamp(a, 4)
    a(f"s_cmp_lt_u32 s2, {NSL}")
    a(f"s_cbranch_scc1 {name}_needkeys")
    a("s_sub_u32 s52, s2, 64")
    a("s_cmp_lt_u32 s52, 16")
    a(f"s_cbranch_scc1 {name}_needkeys")
    a("s_cmp_eq_u32 s51, 0")
    a(f"s_cbranch_scc1 {name}_fin")
    a(f"s_mov_b32 s45, {WS_ANN}")
    a.label(f"{name}_annp")
    a(f"s_sleep {ASLEEP}")
    a("buffer_load_dwordx2 v[72:73], v5, s[24:27], s45 offen sc1")
    a("s_waitcnt vmcnt(0)")
    a("v_readfirstlane_b32 s46, v73")
    a("v_readfirstlane_b32 s38, v72")
    a("s_cmp_eq_u32 s46, s50")
    a(f"s_cbranch_scc1 {name}_annd")
    a("s_sub_u32 s69, s69, 1")
    a(f"s_cbranch_scc0 {name}_annp")
    a("s_mov_b32 s69, 0")
    a.label(f"{name}_annd")
    a("s_cmp_eq_u32 s38, s39")
    a(f"s_cbranch_scc1 {name}_fin")
    a(f"buffer_store_dwordx4 v[{OUT}:{OUT + 3}], v3, s[20:23], s34 offen{OWT}")
    a(f"s_branch {name}_fin")
    a.label(f"{name}_needkeys")
    W = 16
    a(f"s_cmp_lt_u32 s2, {NSL}")
    a(f"s_cbranch_scc0 {name}_nowd")
    a("s_barrier")
    srd(a, 12, 56, 57, D * F * 2)
    srd(a, 16, 58, 59, D * F * 2)
    a("s_lshl_b32 s48, s2, 6")
    for j in range(4):
        a(f"s_add_u32 s49, s48, {3584 * j}")
        a(f"buffer_load_dwordx4 v[{G + 4 * j}:{G + 4 * j + 3}], v7, s[12:15], s49 offen")
        a(f"buffer_load_dwordx4 v[{U + 4 * j}:{U + 4 * j + 3}], v7, s[16:19], s49 offen")
    srd(a, 28, 60, 61, D * F * 2)
    a("s_lshl_b32 s35, s2, 5")
    a("s_lshl_b32 s36, s32, 2")
    a("s_add_u32 s35, s35, s36")
    a("s_lshl_b32 s35, s35, 10")
    for j in range(4):
        a(f"buffer_load_dwordx4 v[{W + 4 * j}:{W + 4 * j + 3}], v3, s[28:31], s35 offen offset:{1024 * j}")
    a.label(f"{name}_nowd")
    a("s_cmp_lg_u32 s32, 0")
    a(f"s_cbranch_scc1 {name}_kw")
    a(f"s_mov_b32 s45, {WS_KEYS}")
    a.label(f"{name}_kp")
    a("buffer_load_dwordx4 v[56:59], v4, s[24:27], s45 offen sc1")
    a("buffer_load_dwordx4 v[60:63], v4, s[24:27], s45 offen offset:16 sc1")
    a("s_waitcnt vmcnt(0)")
    a("v_cmp_ne_u32 s[46:47], v57, v88")
    a("v_cmp_ne_u32 vcc, v59, v88")
    a("s_or_b64 s[46:47], s[46:47], vcc")
    a("v_cmp_ne_u32 vcc, v61, v88")
    a("s_or_b64 s[46:47], s[46:47], vcc")
    a("v_cmp_ne_u32 vcc, v63, v88")
    a("s_or_b64 s[46:47], s[46:47], vcc")
    a(f"s_cbranch_scc0 {name}_kd")
    a(f"s_sleep {KSLEEP}")
    a("s_sub_u32 s69, s69, 1")
    a(f"s_cbranch_scc0 {name}_kp")
    a("s_mov_b32 s69, 0")
    a.label(f"{name}_kd")
    a("v_max3_u32 v56, v56, v58, v60")
    a("v_max_u32 v56, v56, v62")
    wave_allreduce(a, "v_max_u32", 56, 57)
    a("ds_write_b32 v5, v56 offset:64")
    a("s_cmp_lg_u32 s2, 64")
    a(f"s_cbranch_scc1 {name}_noann")
    a("v_mov_b32 v57, v88")
    a(f"s_mov_b32 s45, {WS_ANN}")
    a("buffer_store_dwordx2 v[56:57], v5, s[24:27], s45 offen sc0 sc1")
    a.label(f"{name}_noann")
    a("s_waitcnt lgkmcnt(0)")
    a.label(f"{name}_kw")
    a("s_barrier")
    a("ds_read_b32 v56, v5 offset:64")
    a("s_waitcnt lgkmcnt(0)")
    a("v_readfirstlane_b32 s38, v56")
    stamp(a, 5)
    a("s_cmp_eq_u32 s51, 0")
    a(f"s_cbranch_scc1 {name}_nodef")
    a("s_cmp_eq_u32 s38, s39")
    a(f"s_cbranch_scc1 {name}_nodef")
    a(f"buffer_store_dwordx4 v[{OUT}:{OUT + 3}], v3, s[20:23], s34 offen{OWT}")
    a.label(f"{name}_nodef")
    a("s_and_b32 s39, s38, 0xffff")
    a("s_sub_u32 s39, 2047, s39")
    a("s_lshr_b32 s40, s39, 3")
    a("s_lshl_b32 s40, s40, 12")
    a(f"s_add_u32 s40, s40, {WS_ROWS}")
    a(f"s_cmp_lt_u32 s2, {NSL}")
    a(f"s_cbranch_scc0 {name}_red")
    a("v_lshlrev_b32 v9, 4, v6")
    a("v_add_u32 v9, s40, v9")
    A = 32
    a.label(f"{name}_xp")
    a("buffer_load_dwordx4 v[56:59], v9, s[24:27], 0 offen offset:2048 sc1")
    for i in range(16):
        a(f"v_mov_b32 v{A + i}, 0")
    a("s_waitcnt vmcnt(0)")
    a("v_cmp_ne_u32 s[46:47], v57, v88")
    a("v_cmp_ne_u32 vcc, v59, v88")
    a("s_or_b64 s[46:47], s[46:47], vcc")
    a(f"s_cbranch_scc0 {name}_xd")
    a("s_sub_u32 s69, s69, 1")
    a(f"s_cbranch_scc0 {name}_xp")
    a("s_mov_b32 s69, 0")
    a.label(f"{name}_xd")
    stamp(a, 6)
    X = 60
    a(f"v_lshlrev_b32 v{X}, 16, v56")
    a(f"v_and_b32 v{X + 1}, s53, v56")
    a(f"v_lshlrev_b32 v{X + 2}, 16, v58")
    a(f"v_and_b32 v{X + 3}, s53, v58")
    for j in range(4):
        for (M, ao) in ((G, 0), (U, 8)):
            for i in range(4):
                t = 64 + 2 * i
                a(f"v_lshlrev_b32 v{t}, 16, v{M + 4 * j + i}")
                a(f"v_and_b32 v{t + 1}, s53, v{M + 4 * j + i}")
            for i in range(4):
                t = 64 + 2 * i
                a(f"v_fmac_f32 v{A + ao + 2 * i}, v{X + j}, v{t}")
                a(f"v_fmac_f32 v{A + ao + 2 * i + 1}, v{X + j}, v{t + 1}")
    a("s_nop 1")
    for i in range(8):
        a(f"v_permlane32_swap_b32 v{A + i}, v{A + i + 8}")
    a("s_nop 1")
    for i in range(8):
        a(f"v_add_f32 v{A + i}, v{A + i}, v{A + i + 8}")
    a("s_nop 1")
    for i in range(4):
        a(f"v_permlane16_swap_b32 v{A + i}, v{A + i + 4}")
    a("s_nop 1")
    for i in range(4):
        a(f"v_add_f32 v{A + i}, v{A + i}, v{A + i + 4}")
    a("s_nop 1")
    for i in range(4):
        a(f"v_add_f32_dpp v{A + i}, v{A + i}, v{A + i} row_ror:4 {DPP}")
    a("s_nop 1")
    for i in range(4):
        a(f"v_add_f32_dpp v{A + i}, v{A + i}, v{A + i} row_ror:8 {DPP}")
    a("v_and_b32 v9, 3, v2")
    a("v_lshlrev_b32 v9, 5, v9")
    a("v_bfe_u32 v10, v2, 4, 1")
    a("v_lshl_add_u32 v9, v10, 4, v9")
    a("v_bfe_u32 v10, v2, 5, 1")
    a("v_lshl_add_u32 v9, v10, 7, v9")
    a("s_lshl_b32 s37, s32, 8")
    a("v_add_u32 v9, s37, v9")
    a(f"ds_write_b128 v9, v[{A}:{A + 3}] offset:128")
    a("s_waitcnt lgkmcnt(0)")
    a("s_barrier")
    a("v_lshlrev_b32 v9, 2, v2")
    for w in range(8):
        a(f"ds_read_b32 v{56 + w}, v9 offset:{128 + 256 * w}")
    a("s_waitcnt lgkmcnt(0)")
    a("v_add_f32 v56, v56, v57")
    a("v_add_f32 v58, v58, v59")
    a("v_add_f32 v60, v60, v61")
    a("v_add_f32 v62, v62, v63")
    a("v_add_f32 v56, v56, v58")
    a("v_add_f32 v60, v60, v62")
    a("v_add_f32 v56, v56, v60")
    a("v_mov_b32 v60, v56")
    a("s_nop 1")
    a("v_permlane32_swap_b32 v56, v60")
    a("s_nop 1")
    a("v_cvt_pk_bf16_f32 v56, v56, v60")
    a("v_and_b32 v60, s53, v56")
    a("v_lshlrev_b32 v56, 16, v56")
    a("v_mul_f32 v57, 0xbfb8aa3b, v56")
    a("v_exp_f32 v57, v57")
    a("s_nop 0")
    a("v_add_f32 v57, 1.0, v57")
    a("v_rcp_f32 v57, v57")
    a("s_nop 0")
    a("v_mul_f32 v56, v56, v57")
    a("v_cvt_pk_bf16_f32 v56, v56, v56")
    a("v_lshlrev_b32 v56, 16, v56")
    a("v_mul_f32 v56, v56, v60")
    a("v_cvt_pk_bf16_f32 v56, v56, v56")
    a("v_lshlrev_b32 v56, 16, v56")
    a("s_lshl_b32 s37, s32, 2")
    for j in range(4):
        a(f"s_add_u32 s36, s37, {j}")
        a("s_nop 0")
        a(f"v_readlane_b32 s{40 + j}, v56, s36")
    for j in range(4):
        for i in range(4):
            t = 64 + 2 * i
            a(f"v_lshlrev_b32 v{t}, 16, v{W + 4 * j + i}")
            a(f"v_and_b32 v{t + 1}, s53, v{W + 4 * j + i}")
        for i in range(4):
            t = 64 + 2 * i
            if j == 0:
                a(f"v_mul_f32 v{A + 2 * i}, s{40 + j}, v{t}")
                a(f"v_mul_f32 v{A + 2 * i + 1}, s{40 + j}, v{t + 1}")
            else:
                a(f"v_fmac_f32 v{A + 2 * i}, s{40 + j}, v{t}")
                a(f"v_fmac_f32 v{A + 2 * i + 1}, s{40 + j}, v{t + 1}")
    a("s_lshl_b32 s37, s32, 11")
    a("v_add_u32 v9, s37, v4")
    a(f"ds_write_b128 v9, v[{A}:{A + 3}] offset:4096")
    a(f"ds_write_b128 v9, v[{A + 4}:{A + 7}] offset:4112")
    a("s_waitcnt lgkmcnt(0)")
    a("s_barrier")
    a("v_lshlrev_b32 v9, 2, v0")
    for w in range(8):
        a(f"ds_read_b32 v{56 + w}, v9 offset:{4096 + 2048 * w}")
    a("s_lshl_b32 s37, s2, 12")
    a(f"s_add_u32 s37, s37, {WS_SLABS}")
    a("v_lshlrev_b32 v9, 3, v0")
    a("s_waitcnt lgkmcnt(0)")
    a("v_add_f32 v56, v56, v57")
    a("v_add_f32 v58, v58, v59")
    a("v_add_f32 v60, v60, v61")
    a("v_add_f32 v62, v62, v63")
    a("v_add_f32 v56, v56, v58")
    a("v_add_f32 v60, v60, v62")
    a("v_add_f32 v56, v56, v60")
    a("v_mov_b32 v57, v88")
    a("buffer_store_dwordx2 v[56:57], v9, s[24:27], s37 offen sc0 sc1")
    stamp(a, 7)
    a(f"s_branch {name}_fin2")
    a.label(f"{name}_red")
    a("v_lshrrev_b32 v8, 4, v0")
    a("v_and_b32 v9, 15, v0")
    a("s_lshl_b32 s41, s52, 8")
    a(f"s_add_u32 s42, s41, {WS_SLABS}")
    a("v_lshlrev_b32 v10, 12, v8")
    a("v_lshl_add_u32 v10, v9, 4, v10")
    a("v_add_u32 v11, 0x20000, v10")
    a("v_cmp_gt_u32 s[54:55], 24, v8")
    a("s_nop 1")
    a("v_cndmask_b32 v11, v10, v11, s[54:55]")
    a("s_lshl_b32 s43, s52, 7")
    a("s_add_u32 s43, s43, s40")
    a("v_lshlrev_b32 v12, 3, v9")
    a("v_add_u32 v12, s43, v12")
    a("s_and_b32 s44, s38, 0xffff0000")
    a("s_xor_b32 s45, s44, 0x80000000")
    a("s_not_b32 s46, s44")
    a("s_and_b32 s46, s46, 0xffff0000")
    a("s_cmp_ge_u32 s44, 0x80000000")
    a("s_cselect_b32 s44, s45, s46")
    a("v_mov_b32 v13, s44")
    a("v_mul_f32 v13, 0xbfb8aa3b, v13")
    a("v_exp_f32 v13, v13")
    a("s_nop 0")
    a("v_add_f32 v13, 1.0, v13")
    a("v_rcp_f32 v13, v13")
    a("s_nop 0")
    a("v_cvt_pk_bf16_f32 v13, v13, v13")
    a("v_lshlrev_b32 v13, 16, v13")
    a.label(f"{name}_sp")
    a("buffer_load_dwordx4 v[56:59], v10, s[24:27], s42 offen sc1")
    a("buffer_load_dwordx4 v[60:63], v11, s[24:27], s42 offen sc1")
    a("buffer_load_dwordx2 v[64:65], v12, s[24:27], 0 offen sc1")
    a("buffer_load_dwordx2 v[66:67], v12, s[24:27], 0 offen offset:2048 sc1")
    a("s_waitcnt vmcnt(0)")
    a("v_cmp_ne_u32 s[46:47], v57, v88")
    for r in (59, 61, 63, 65, 67):
        a(f"v_cmp_ne_u32 vcc, v{r}, v88")
        a("s_or_b64 s[46:47], s[46:47], vcc")
    a(f"s_cbranch_scc0 {name}_sd")
    a(f"s_sleep {SSLEEP}")
    a("s_sub_u32 s69, s69, 1")
    a(f"s_cbranch_scc0 {name}_sp")
    a("s_mov_b32 s69, 0")
    a.label(f"{name}_sd")
    stamp(a, 6)
    a("v_cndmask_b32 v60, 0, v60, s[54:55]")
    a("v_cndmask_b32 v62, 0, v62, s[54:55]")
    a("v_add_f32 v56, v56, v60")
    a("v_add_f32 v57, v58, v62")
    for sw in ("v_permlane16_swap_b32", "v_permlane32_swap_b32"):
        a("v_mov_b32 v58, v56")
        a("v_mov_b32 v59, v57")
        a("s_nop 1")
        a(f"{sw} v56, v58")
        a(f"{sw} v57, v59")
        a("s_nop 1")
        a("v_add_f32 v56, v56, v58")
        a("v_add_f32 v57, v57, v59")
    a("v_lshlrev_b32 v10, 3, v9")
    a("s_lshl_b32 s37, s32, 7")
    a("v_add_u32 v11, s37, v10")
    a("ds_write_b64 v11, v[56:57] offset:128")
    a("s_waitcnt lgkmcnt(0)")
    a("s_barrier")
    a("s_cmp_lg_u32 s32, 0")
    a(f"s_cbranch_scc1 {name}_fin2")
    for w in range(8):
        a(f"ds_read_b64 v[{32 + 2 * w}:{33 + 2 * w}], v10 offset:{128 + 128 * w}")
    a("s_waitcnt lgkmcnt(0)")
    for (d, s1) in ((32, 34), (36, 38), (40, 42), (44, 46), (32, 36), (40, 44), (32, 40)):
        a(f"v_add_f32 v{d}, v{d}, v{s1}")
        a(f"v_add_f32 v{d + 1}, v{d + 1}, v{s1 + 1}")
    y0, y1 = 32, 33
    a(f"v_cvt_pk_bf16_f32 v48, v{y0}, v{y1}")
    a(f"v_lshlrev_b32 v{y0}, 16, v48")
    a(f"v_and_b32 v{y1}, s53, v48")
    a(f"v_mul_f32 v{y0}, v{y0}, v13")
    a(f"v_mul_f32 v{y1}, v{y1}, v13")
    a(f"v_cvt_pk_bf16_f32 v48, v{y0}, v{y1}")
    a(f"v_lshlrev_b32 v{y0}, 16, v48")
    a(f"v_and_b32 v{y1}, s53, v48")
    a("v_lshlrev_b32 v49, 16, v66")
    a("v_and_b32 v50, s53, v66")
    a(f"v_add_f32 v{y0}, v49, v{y0}")
    a(f"v_add_f32 v{y1}, v50, v{y1}")
    a(f"v_cvt_pk_bf16_f32 v48, v{y0}, v{y1}")
    a(f"v_lshlrev_b32 v{y0}, 16, v48")
    a(f"v_and_b32 v{y1}, s53, v48")
    a("v_lshlrev_b32 v49, 16, v64")
    a("v_and_b32 v50, s53, v64")
    a(f"v_add_f32 v{y0}, v49, v{y0}")
    a(f"v_add_f32 v{y1}, v50, v{y1}")
    a(f"v_cvt_pk_bf16_f32 v48, v{y0}, v{y1}")
    a("s_lshl_b32 s39, s39, 10")
    a("s_lshl_b32 s41, s52, 6")
    a("s_add_u32 s39, s39, s41")
    a("v_lshlrev_b32 v10, 2, v9")
    a("v_add_u32 v10, s39, v10")
    a(f"buffer_store_dword v48, v10, s[20:23], 0 offen{OWT}")
    stamp(a, 7)
    a.label(f"{name}_fin2")
    a.label(f"{name}_fin")
    stamp_flush(a, 3, 8, 10, 11)
    if fused:
        return None
    a.label(f"{name}_done")
    a("s_endpgm")
    return kernel_desc(name, 128, 72, 128)


def gen_k5(a, name):
    kernel_begin(a, name)
    a("s_cmp_ge_u32 s2, 16")
    a(f"s_cbranch_scc1 {name}_done")
    stamp(a, 0)
    a("s_load_dwordx2 s[8:9], s[0:1], 80")
    a("s_load_dwordx2 s[10:11], s[0:1], 96")
    a("v_lshrrev_b32 v1, 6, v0")
    a("v_and_b32 v2, 63, v0")
    a("s_nop 0")
    a("v_readfirstlane_b32 s32, v1")
    a("v_lshlrev_b32 v5, 2, v0")
    a("v_lshrrev_b32 v3, 3, v0")
    a("v_and_b32 v4, 7, v0")
    a("v_lshlrev_b32 v6, 11, v3")
    a("v_lshl_add_u32 v6, v4, 4, v6")
    a("s_waitcnt lgkmcnt(0)")
    stamp(a, 1)
    srd(a, 20, 8, 9, S * D * 2)
    srd(a, 24, 10, 11, 14 << 20)
    srd(a, 28, 10, 11, WS_SLAB + NSL * 2048)
    a(f"s_mov_b32 s34, {WS_CAND}")
    a("buffer_load_dword v8, v5, s[24:27], s34 offen")
    a("s_lshl_b32 s34, s2, 7")
    a(f"s_add_u32 s34, s34, {WS_SLAB}")
    a("s_add_u32 s35, s34, 65536")
    a("buffer_load_dwordx4 v[16:19], v6, s[28:31], s34 offen")
    a("buffer_load_dwordx4 v[20:23], v6, s[28:31], s35 offen")
    a("s_waitcnt vmcnt(2)")
    stamp(a, 2)
    emit_winner(a, 8, 12, 9, 38)
    a("s_and_b32 s39, s38, 0xffff")
    a("s_sub_u32 s39, 2047, s39")
    a("s_lshr_b32 s40, s39, 3")
    a("s_lshl_b32 s40, s40, 11")
    a(f"s_add_u32 s40, s40, {WS_CROW}")
    a("s_lshl_b32 s41, s2, 6")
    a("s_add_u32 s40, s40, s41")
    a("v_lshlrev_b32 v9, 3, v4")
    a("v_add_u32 v9, s40, v9")
    a("buffer_load_dwordx2 v[24:25], v9, s[24:27], 0 offen")
    a("buffer_load_dwordx2 v[26:27], v9, s[24:27], 0 offen offset:1024")
    a("s_waitcnt vmcnt(2)")
    for i in range(4):
        a(f"v_add_f32 v{16 + i}, v{16 + i}, v{20 + i}")
    a("s_nop 1")
    for i in range(4):
        a(f"v_add_f32_dpp v{16 + i}, v{16 + i}, v{16 + i} row_ror:8 {DPP}")
    for i in range(4):
        a(f"v_mov_b32 v{20 + i}, v{16 + i}")
    a("s_nop 1")
    for i in range(4):
        a(f"v_permlane16_swap_b32 v{16 + i}, v{20 + i}")
    a("s_nop 1")
    for i in range(4):
        a(f"v_add_f32 v{16 + i}, v{16 + i}, v{20 + i}")
    for i in range(4):
        a(f"v_mov_b32 v{20 + i}, v{16 + i}")
    a("s_nop 1")
    for i in range(4):
        a(f"v_permlane32_swap_b32 v{16 + i}, v{20 + i}")
    a("s_nop 1")
    for i in range(4):
        a(f"v_add_f32 v{16 + i}, v{16 + i}, v{20 + i}")
    a("v_lshlrev_b32 v10, 4, v4")
    a("s_lshl_b32 s37, s32, 7")
    a("v_add_u32 v11, s37, v10")
    a("ds_write_b128 v11, v[16:19] offset:64")
    a("s_waitcnt lgkmcnt(0)")
    a("s_barrier")
    for w in range(4):
        a(f"ds_read_b128 v[{32 + 4 * w}:{35 + 4 * w}], v10 offset:{64 + 128 * w}")
    a("s_and_b32 s42, s38, 0xffff0000")
    a("s_xor_b32 s43, s42, 0x80000000")
    a("s_not_b32 s44, s42")
    a("s_and_b32 s44, s44, 0xffff0000")
    a("s_cmp_ge_u32 s42, 0x80000000")
    a("s_cselect_b32 s42, s43, s44")
    a("v_mov_b32 v12, s42")
    a("v_mul_f32 v13, 0xbfb8aa3b, v12")
    a("v_exp_f32 v13, v13")
    a("s_nop 0")
    a("v_add_f32 v13, 1.0, v13")
    a("v_rcp_f32 v13, v13")
    a("s_nop 0")
    a("v_cvt_pk_bf16_f32 v13, v13, v13")
    a("v_lshlrev_b32 v13, 16, v13")
    a("s_mov_b32 s53, 0xffff0000")
    a("s_waitcnt vmcnt(0) lgkmcnt(0)")
    stamp(a, 3)
    for i in range(4):
        a(f"v_add_f32 v{32 + i}, v{32 + i}, v{36 + i}")
        a(f"v_add_f32 v{40 + i}, v{40 + i}, v{44 + i}")
        a(f"v_add_f32 v{32 + i}, v{32 + i}, v{40 + i}")
    for i in range(2):
        y0, y1 = 32 + 2 * i, 33 + 2 * i
        a(f"v_cvt_pk_bf16_f32 v48, v{y0}, v{y1}")
        a(f"v_lshlrev_b32 v{y0}, 16, v48")
        a(f"v_and_b32 v{y1}, s53, v48")
        a(f"v_mul_f32 v{y0}, v{y0}, v13")
        a(f"v_mul_f32 v{y1}, v{y1}, v13")
        a(f"v_cvt_pk_bf16_f32 v48, v{y0}, v{y1}")
        a(f"v_lshlrev_b32 v{y0}, 16, v48")
        a(f"v_and_b32 v{y1}, s53, v48")
        a(f"v_lshlrev_b32 v49, 16, v{26 + i}")
        a(f"v_and_b32 v50, s53, v{26 + i}")
        a(f"v_add_f32 v{y0}, v49, v{y0}")
        a(f"v_add_f32 v{y1}, v50, v{y1}")
        a(f"v_cvt_pk_bf16_f32 v48, v{y0}, v{y1}")
        a(f"v_lshlrev_b32 v{y0}, 16, v48")
        a(f"v_and_b32 v{y1}, s53, v48")
        a(f"v_lshlrev_b32 v49, 16, v{24 + i}")
        a(f"v_and_b32 v50, s53, v{24 + i}")
        a(f"v_add_f32 v{y0}, v49, v{y0}")
        a(f"v_add_f32 v{y1}, v50, v{y1}")
        a(f"v_cvt_pk_bf16_f32 v{52 + i}, v{y0}, v{y1}")
    a("s_lshl_b32 s39, s39, 10")
    a("s_add_u32 s39, s39, s41")
    a("v_lshlrev_b32 v9, 3, v4")
    a("v_add_u32 v9, s39, v9")
    a("v_cmp_gt_u32 vcc, 8, v0")
    a("s_and_saveexec_b64 s[46:47], vcc")
    a(f"s_cbranch_execz {name}_fin")
    a("buffer_store_dwordx2 v[52:53], v9, s[20:23], 0 offen")
    a.label(f"{name}_fin")
    a("s_mov_b64 exec, -1")
    stamp_flush(a, 5, 4, 10, 11)
    a.label(f"{name}_done")
    a("s_endpgm")
    return kernel_desc(name, 64, 64, 64)


HEADER = open(__file__.rsplit("/", 1)[0] + "/cdna_kernels/" + NAME + ".s.ref").read().split("; Override launch")[0]


def build(path, **opt):
    global STAMP, KSLEEP, SSLEEP, FSLEEP, ASLEEP, ESLEEP, OWT
    ESLEEP = opt.get('es', 4)
    OWT = {0: '', 1: ' sc0 sc1', 2: ' nt'}[opt.get('owt', 0)]
    STAMP = opt.get('stamp', 0)
    KSLEEP, SSLEEP, FSLEEP, ASLEEP = opt.get('ks', 1), opt.get('ss', 1), opt.get('fs', 1), opt.get('as', 8)
    a = Asm()
    only = opt.get("only", 0)
    launches = [
        ("k1_kernel", 256, 512, 163840),
        ("k2_kernel", 256, 512, 163840),
        ("k3_kernel", 256, 512, 64),
        ("k4_kernel", NSL, 512, 18432),
        ("k5_kernel", 16, 256, 1024),
    ]
    if opt.get("fused", 1) == 1:
        launches = launches[:2] + [("kt_kernel", 256, 512, 4096 + 16384)]
    if opt.get("fused", 1) == 2:
        launches = launches[:2]
    if opt.get("f12", 1):
        launches = launches[:1] + launches[2:]
    if only:
        launches = [launches[int(ch) - 1] for ch in str(only)]
    hdr = HEADER
    for (k, g, b, l) in launches:
        hdr += f"; @launch kernel={k} grid=({g},1,1) block=({b},1,1) lds={l}\n"
    a.raw('.amdgcn_target "amdgcn-amd-amdhsa--gfx950"')
    descs = []
    if opt.get("k1g", 0):
        descs.append(gen_k1g(a, "k1_kernel", wt=opt.get("wt1", 1), PRO=opt.get("PRO1", 3), U1=opt.get("U1", 11), wk=opt.get("wk1", 1), cpf=opt.get("cpf", 1), SPOS=opt.get("SPOS", 0), NPOS=opt.get("NPOS", 1)))
    else:
        descs.append(gen_k1e(a, "k1_kernel", wt=opt.get("wt1", 1), PRO=opt.get("PRO1", 3), pf=opt.get("prefetch", 1), pace=opt.get("pace", 1), U1=opt.get("U1", 10), U2=opt.get("U2", 12), pfq=opt.get("pfq", 2), pol=opt.get("pol1", 0), ppol=opt.get("ppol", 0), tlb=opt.get("tlb", 0), UC=opt.get("UC", 13), vst=opt.get("vst", 0), swap=opt.get("swap", 1), wk1=opt.get("wk1", 1), early=opt.get("early", 0), cpre=opt.get("cpre", 0), fuse2=((lambda a, n: gen_k2c(a, n, LA=opt.get("LA", 1), wt=opt.get("wt2", 1), PRO=opt.get("PRO2", 3), rot=opt.get("rot", 1), BARPOS=opt.get("BARPOS", 1), RSTEP=opt.get("RSTEP", 1), wpf=opt.get("wpf", 0), wpf2=opt.get("wpf2", 16), pol=opt.get("pol2", 0), fuse3=(opt.get("fused", 1) == 2), etouch=opt.get("etouch", 0), swap=opt.get("swap", 1), cw=opt.get("cw", -1), fused_in=1)) if opt.get("f12", 1) else None)))
    if not opt.get("f12", 1):
        descs.append(gen_k2c(a, "k2_kernel", LA=opt.get("LA", 1), wt=opt.get("wt2", 1), PRO=opt.get("PRO2", 3), rot=opt.get("rot", 1), BARPOS=opt.get("BARPOS", 1), RSTEP=opt.get("RSTEP", 1), wpf=opt.get("wpf", 0), wpf2=opt.get("wpf2", 16), pol=opt.get("pol2", 0), fuse3=(opt.get("fused", 1) == 2), etouch=opt.get("etouch", 0), swap=opt.get("swap", 1), cw=opt.get("cw", -1)))
    if opt.get("fused", 1) == 1:
        descs.append(gen_kt(a, "kt_kernel"))
    elif opt.get("fused", 1) == 0:
        descs.append(gen_k3b(a, "k3_kernel", wpf=opt.get("wpf3", 0)))
        descs.append(gen_k4b(a, "k4_kernel"))
        descs.append(gen_k5(a, "k5_kernel"))
    a.label("code_end")
    open(path, "w").write(hdr + a.text() + "".join(descs))


if __name__ == "__main__":
    out = sys.argv[1] if len(sys.argv) > 1 else "cdna_kernels/" + NAME + ".s"
    opt = {}
    for kv in sys.argv[2:]:
        k, v = kv.split("=")
        opt[k] = int(v)
    build(out, **opt)
```

```python
import sys

NAME = "sequential_preLN__spectral_fnet__moe_arch_mod__prompt"

WS_AT = 0
WS_Y = 4 << 20
WS_CAND = 12 << 20
WS_CROW = (12 << 20) + 4096
WS_SLAB = (13 << 20)
WS_SIZE = 268435456

S, D, F = 2048, 512, 1792


class Asm:
    def __init__(self):
        self.lines = []

    def __call__(self, s):
        self.lines.append("    " + s)

    def label(self, l):
        self.lines.append(l + ":")

    def raw(self, s):
        self.lines.append(s)

    def text(self):
        return "\n".join(self.lines) + "\n"


class VM:
    def __init__(self, a):
        self.a = a
        self.q = []

    def issue(self, tag):
        self.q.append(tag)

    def wait(self, tag):
        idx = max(i for i, t in enumerate(self.q) if t == tag) if tag in self.q else None
        if idx is None:
            return
        n = len(self.q) - 1 - idx
        assert n <= 63
        self.a(f"s_waitcnt vmcnt({n})")
        self.q = self.q[idx + 1:]

    def wait_all(self):
        self.a("s_waitcnt vmcnt(0)")
        self.q = []


def srd(a, d, lo, hi, nbytes):
    a(f"s_mov_b32 s{d}, s{lo}")
    a(f"s_and_b32 s{d+1}, s{hi}, 0xffff")
    a(f"s_mov_b32 s{d+2}, {nbytes}")
    a(f"s_mov_b32 s{d+3}, 0x00020000")


def kernel_begin(a, name):
    a.raw(".text")
    a.raw(f".globl {name}")
    a.raw(".p2align 8")
    a.raw(f".type {name},@function")
    a.label(name)


def kernel_desc(name, vgpr, sgpr, accum):
    return f""".section .rodata,"a"
.p2align 6
.amdhsa_kernel {name}
  .amdhsa_next_free_vgpr {vgpr}
  .amdhsa_next_free_sgpr {102 if STAMP else sgpr}
  .amdhsa_accum_offset {accum}
  .amdhsa_group_segment_fixed_size 0
  .amdhsa_kernarg_size 104
  .amdhsa_user_sgpr_count 2
  .amdhsa_user_sgpr_kernarg_segment_ptr 1
  .amdhsa_system_sgpr_workgroup_id_x 1
  .amdhsa_float_denorm_mode_32 3
.end_amdhsa_kernel
"""


STAMP = 0
WS_STAMP = 16 << 20
_stamp_kid = {}


def stamp(a, i):
    if STAMP == 1:
        a(f"s_memrealtime s[{70 + 2 * i}:{71 + 2 * i}]")
    elif STAMP == 2:
        a(f"s_memtime s[{70 + 2 * i}:{71 + 2 * i}]")


def stamp_flush(a, kid, n, ws_lo, ws_hi, wave_sgpr="s32"):
    if not STAMP:
        return
    a("s_waitcnt vmcnt(0) lgkmcnt(0)")
    stamp(a, n)
    a(f"s_mov_b32 s92, s{ws_lo}")
    a(f"s_and_b32 s93, s{ws_hi}, 0xffff")
    a(f"s_mov_b32 s94, {WS_SIZE}")
    a("s_mov_b32 s95, 0x00020000")
    a(f"s_add_u32 s96, s2, {kid * 512}")
    a("s_lshl_b32 s96, s96, 4")
    a(f"s_add_u32 s96, s96, {wave_sgpr}")
    a("s_lshl_b32 s96, s96, 7")
    a(f"s_add_u32 s96, s96, {WS_STAMP}")
    a("s_waitcnt lgkmcnt(0)")
    a("v_mov_b32 v0, 0")
    for i in range(n + 1):
        a(f"v_mov_b32 v2, s{70 + 2 * i}")
        a(f"v_mov_b32 v3, s{71 + 2 * i}")
        a(f"buffer_store_dwordx2 v[2:3], v0, s[92:95], s96 offen offset:{8 * i}")
        a("s_nop 1")


ESLEEP = 4
WEARLY = 1
KSPREAD = 0
OWT = ''
DPP = "row_mask:0xf bank_mask:0xf"


def emit_perm32(a, dst, src, t):
    a(f"v_and_b32 v{dst}, 3, v{src}")
    a(f"v_lshrrev_b32 v{t}, 3, v{src}")
    a(f"v_lshl_or_b32 v{dst}, v{t}, 2, v{dst}")
    a(f"v_bfe_u32 v{t}, v{src}, 2, 1")
    a(f"v_lshl_or_b32 v{dst}, v{t}, 4, v{dst}")


def wave_allreduce(a, op, v, t):
    a("s_nop 1")
    a(f"{op}_dpp v{v}, v{v}, v{v} quad_perm:[1,0,3,2] {DPP}")
    a("s_nop 1")
    a(f"{op}_dpp v{v}, v{v}, v{v} quad_perm:[2,3,0,1] {DPP}")
    a("s_nop 1")
    a(f"{op}_dpp v{v}, v{v}, v{v} row_half_mirror {DPP}")
    a("s_nop 1")
    a(f"{op}_dpp v{v}, v{v}, v{v} row_mirror {DPP}")
    a(f"v_mov_b32 v{t}, v{v}")
    a("s_nop 1")
    a(f"v_permlane16_swap_b32 v{v}, v{t}")
    a("s_nop 1")
    a(f"{op} v{v}, v{v}, v{t}")
    a(f"v_mov_b32 v{t}, v{v}")
    a("s_nop 1")
    a(f"v_permlane32_swap_b32 v{v}, v{t}")
    a("s_nop 1")
    a(f"{op} v{v}, v{v}, v{t}")


def gen_k1(a, name, prefetch=True):
    kernel_begin(a, name)
    a("s_cmp_ge_u32 s2, 256")
    a(f"s_cbranch_scc1 {name}_done")
    stamp(a, 0)
    a("s_load_dwordx2 s[4:5], s[0:1], 0")
    a("s_load_dwordx4 s[8:11], s[0:1], 24")
    a("s_load_dwordx2 s[6:7], s[0:1], 96")
    a("s_load_dwordx4 s[36:39], s[0:1], 8")
    a("s_load_dwordx4 s[40:43], s[0:1], 56")
    a("s_load_dwordx2 s[44:45], s[0:1], 72")
    a("s_and_b32 s3, s2, 7")
    a("s_lshr_b32 s28, s2, 3")
    a("s_and_b32 s29, s28, 3")
    a("s_lshl_b32 s30, s3, 2")
    a("s_add_u32 s30, s30, s29")
    a("s_lshr_b32 s31, s28, 2")
    a("v_lshrrev_b32 v1, 6, v0")
    a("v_and_b32 v2, 63, v0")
    a("s_nop 0")
    a("v_readfirstlane_b32 s32, v1")
    a("v_lshrrev_b32 v3, 3, v2")
    a("v_and_b32 v4, 7, v2")
    a("s_waitcnt lgkmcnt(0)")
    stamp(a, 1)
    srd(a, 12, 4, 5, S * D * 2)
    a("s_cmp_ge_u32 s31, 4")
    a("s_cselect_b32 s8, s10, s8")
    a("s_cselect_b32 s9, s11, s9")
    srd(a, 16, 8, 9, D * D * 2)
    srd(a, 20, 6, 7, 4 << 20)
    a("s_lshl_b32 s33, s30, 6")
    a("s_lshl_b32 s34, s32, 3")
    a("s_add_u32 s33, s33, s34")
    a("s_lshl_b32 s33, s33, 10")
    a("v_lshlrev_b32 v5, 10, v3")
    a("v_lshl_add_u32 v5, v4, 4, v5")
    XR = 32
    for j in range(8):
        a(f"buffer_load_dwordx4 v[{XR+4*j}:{XR+4*j+3}], v5, s[12:15], s33 offen offset:{128*j}")
    a("v_lshrrev_b32 v6, 4, v2")
    a("v_xor_b32 v6, v6, v4")
    a("v_xor_b32 v7, 4, v6")
    a("v_lshlrev_b32 v8, 10, v3")
    a("v_lshl_add_u32 v6, v6, 4, v8")
    a("v_lshl_add_u32 v7, v7, 4, v8")
    a("s_cmp_ge_u32 s32, 4")
    a(f"s_cbranch_scc1 {name}_helper")
    a("s_and_b32 s35, s31, 3")
    a("s_lshl_b32 s35, s35, 7")
    a("s_lshl_b32 s34, s32, 5")
    a("s_add_u32 s35, s35, s34")
    a("s_lshl_b32 s35, s35, 10")
    a("s_mul_i32 s46, s32, 24576")
    a("s_add_u32 s46, s46, 65536")

    def dma_slot(kk):
        for i in range(4):
            a(f"s_add_u32 m0, s46, {(kk % 6) * 4096 + i * 1024}")
            a(f"s_add_u32 s47, s35, {i * 8192 + kk * 128}")
            a(f"buffer_load_dwordx4 v{6 + (i & 1)}, s[16:19], s47 offen lds")

    for kk in range(6):
        dma_slot(kk)
    a("s_waitcnt vmcnt(24)")
    a(f"s_branch {name}_ln")
    a.label(f"{name}_helper")
    npf = 0
    if prefetch:
        a("s_and_b32 s48, s3, 1")
        a("s_cmp_eq_u32 s48, 1")
        a("s_cselect_b32 s36, s38, s36")
        a("s_cselect_b32 s37, s39, s37")
        srd(a, 24, 36, 37, S * S * 2)
        a("s_lshr_b32 s48, s3, 2")
        a("s_lshl_b32 s48, s48, 10")
        a("s_lshl_b32 s49, s28, 5")
        a("s_add_u32 s48, s48, s49")
        a("s_sub_u32 s49, s32, 4")
        a("s_lshl_b32 s49, s49, 3")
        a("s_add_u32 s48, s48, s49")
        a("s_lshl_b32 s48, s48, 12")
        a("s_bfe_u32 s49, s3, 0x10001")
        a("s_lshl_b32 s49, s49, 11")
        a("s_add_u32 s48, s48, s49")
        a("v_lshrrev_b32 v9, 5, v2")
        a("v_lshlrev_b32 v9, 12, v9")
        a("v_and_b32 v129, 31, v2")
        a("v_lshl_add_u32 v9, v129, 6, v9")
        a("s_waitcnt vmcnt(0)")
        for i in range(4):
            a(f"s_add_u32 s49, s48, {i * 8192}")
            a(f"buffer_load_dword v{130 + i}, v9, s[24:27], s49 offen")
            npf += 1
    a(f"s_waitcnt vmcnt({npf})")
    a.label(f"{name}_ln")
    stamp(a, 2)
    a("s_mov_b32 s50, 0x3f803f80")
    a("s_mov_b32 s51, 0x00003f80")
    a("s_mov_b32 s52, 0x3f800000")
    a("s_mov_b32 s53, 0xffff0000")
    a("v_mov_b32 v16, 0")
    a("v_mov_b32 v17, 0")
    for j in range(32):
        a(f"v_dot2_f32_bf16 v{16 + (j & 1)}, v{XR + j}, s50, v{16 + (j & 1)}")
    a("s_nop 2")
    a("v_add_f32 v16, v16, v17")

    def red8(v):
        a("s_nop 1")
        a(f"v_add_f32_dpp v{v}, v{v}, v{v} quad_perm:[1,0,3,2] {DPP}")
        a("s_nop 1")
        a(f"v_add_f32_dpp v{v}, v{v}, v{v} quad_perm:[2,3,0,1] {DPP}")
        a("s_nop 1")
        a(f"v_add_f32_dpp v{v}, v{v}, v{v} row_half_mirror {DPP}")

    red8(16)
    a("v_mul_f32 v16, 0x3b000000, v16")
    a("v_cvt_pk_bf16_f32 v17, v16, v16")
    a("v_lshlrev_b32 v17, 16, v17")
    a("v_sub_f32 v18, 0, v17")
    a("v_sub_f32 v19, v16, v17")
    a("v_mov_b32 v20, 0")
    a("v_mov_b32 v21, 0")
    for j in range(32):
        t = 22 + 2 * (j & 3)
        a(f"v_dot2_f32_bf16 v{t}, v{XR + j}, s51, v18")
        a(f"v_dot2_f32_bf16 v{t + 1}, v{XR + j}, s52, v18")
        if j >= 1:
            tp = 22 + 2 * ((j - 1) & 3)
            a(f"v_fmac_f32 v20, v{tp}, v{tp}")
            a(f"v_fmac_f32 v21, v{tp + 1}, v{tp + 1}")
            a(f"v_cvt_pk_bf16_f32 v{XR + j - 1}, v{tp}, v{tp + 1}")
    tp = 22 + 2 * (31 & 3)
    a("s_nop 2")
    a(f"v_fmac_f32 v20, v{tp}, v{tp}")
    a(f"v_fmac_f32 v21, v{tp + 1}, v{tp + 1}")
    a(f"v_cvt_pk_bf16_f32 v{XR + 31}, v{tp}, v{tp + 1}")
    a("v_add_f32 v20, v20, v21")
    red8(20)
    a("v_mul_f32 v20, 0x3b000000, v20")
    a("v_fma_f32 v20, -v19, v19, v20")
    a("v_max_f32 v20, 0, v20")
    a("v_cvt_pk_bf16_f32 v20, v20, v20")
    a("v_lshlrev_b32 v20, 16, v20")
    a("v_add_f32 v20, 0x3727c5ac, v20")
    a("v_cvt_pk_bf16_f32 v20, v20, v20")
    a("v_lshlrev_b32 v20, 16, v20")
    a("v_sqrt_f32 v20, v20")
    a("s_nop 0")
    a("v_cvt_pk_bf16_f32 v20, v20, v20")
    a("v_lshlrev_b32 v20, 16, v20")
    a("v_rcp_f32 v20, v20")
    a("s_nop 0")
    for j in range(32):
        t = 22 + 2 * (j & 3)
        a(f"v_lshlrev_b32 v{t}, 16, v{XR + j}")
        a(f"v_and_b32 v{t + 1}, s53, v{XR + j}")
        a(f"v_mul_f32 v{t}, v{t}, v20")
        a(f"v_mul_f32 v{t + 1}, v{t + 1}, v20")
        a(f"v_cvt_pk_bf16_f32 v{XR + j}, v{t}, v{t + 1}")
    a("s_lshl_b32 s34, s32, 3")
    a("v_add_u32 v9, s34, v3")
    a("v_bfe_u32 v10, v9, 1, 3")
    a("v_xor_b32 v10, v10, v4")
    a("v_lshlrev_b32 v10, 4, v10")
    a("v_lshl_add_u32 v10, v9, 7, v10")
    for j in range(8):
        a(f"ds_write_b128 v10, v[{XR + 4 * j}:{XR + 4 * j + 3}] offset:{8192 * j}")
    stamp(a, 3)
    a("s_waitcnt lgkmcnt(0)")
    a("s_barrier")
    stamp(a, 4)
    a("s_cmp_ge_u32 s32, 4")
    a(f"s_cbranch_scc1 {name}_fin")
    a("v_and_b32 v9, 31, v2")
    emit_perm32(a, 10, 9, 11)
    a("v_bfe_u32 v11, v10, 1, 3")
    a("v_lshrrev_b32 v12, 5, v2")
    a("v_xor_b32 v11, v11, v12")
    a("v_lshlrev_b32 v11, 4, v11")
    a("v_lshl_add_u32 v11, v10, 7, v11")
    for c in range(4):
        a(f"v_xor_b32 v{12 + c}, {c * 32}, v11")
        a(f"v_add_u32 v{16 + c}, s46, v{12 + c}")
    ACC = 64
    FR = [96, 108, 120]
    for i in range(32):
        a(f"v_mov_b32 v{ACC + i}, 0")
    units = [(kk, c) for kk in range(8) for c in range(4)]
    vq = [kk for kk in range(6) for _ in range(4)]

    def wait_slot(kk):
        nonlocal vq
        if kk in vq:
            idx = max(i for i, t in enumerate(vq) if t == kk)
            a(f"s_waitcnt vmcnt({len(vq) - 1 - idx})")
            vq = vq[idx + 1:]

    def reads(n):
        kk, c = units[n]
        f = FR[n % 3]
        if c == 0:
            wait_slot(kk)
        a(f"ds_read_b128 v[{f}:{f + 3}], v{16 + c} offset:{(kk % 6) * 4096}")
        a(f"ds_read_b128 v[{f + 4}:{f + 7}], v{12 + c} offset:{kk * 8192}")
        a(f"ds_read_b128 v[{f + 8}:{f + 11}], v{12 + c} offset:{kk * 8192 + 4096}")

    reads(0)
    reads(1)
    for n in range(len(units)):
        kk, c = units[n]
        if n + 2 < len(units):
            reads(n + 2)
            a("s_waitcnt lgkmcnt(6)")
        elif n + 1 < len(units):
            a("s_waitcnt lgkmcnt(3)")
        else:
            a("s_waitcnt lgkmcnt(0)")
        f = FR[n % 3]
        a(f"v_mfma_f32_32x32x16_bf16 v[{ACC}:{ACC + 15}], v[{f + 4}:{f + 7}], v[{f}:{f + 3}], v[{ACC}:{ACC + 15}]")
        a(f"v_mfma_f32_32x32x16_bf16 v[{ACC + 16}:{ACC + 31}], v[{f + 8}:{f + 11}], v[{f}:{f + 3}], v[{ACC + 16}:{ACC + 31}]")
        if c == 3 and kk + 6 < 8:
            dma_slot(kk + 6)
            vq += [kk + 6] * 4
    stamp(a, 5)
    a("s_lshl_b32 s34, s31, 2")
    a("s_add_u32 s34, s34, s32")
    a("s_lshl_b32 s34, s34, 6")
    a("s_lshl_b32 s33, s30, 1")
    a("s_add_u32 s34, s34, s33")
    a("s_lshl_b32 s34, s34, 11")
    a("v_lshlrev_b32 v9, 4, v2")
    a("s_nop 7")
    a("s_nop 3")
    for sh in range(2):
        for i in range(8):
            a(f"v_cvt_pk_bf16_f32 v{32 + 8 * sh + i}, v{ACC + 16 * sh + 2 * i}, v{ACC + 16 * sh + 2 * i + 1}")
    for sh in range(2):
        for u in range(2):
            r = 32 + 8 * sh + 4 * u
            a(f"buffer_store_dwordx4 v[{r}:{r + 3}], v9, s[20:23], s34 offen offset:{sh * 2048 + u * 1024}")
    a.label(f"{name}_fin")
    stamp_flush(a, 1, 6, 6, 7)
    a.label(f"{name}_done")
    a("s_endpgm")
    return kernel_desc(name, 136, 64, 136)


def gen_k2(a, name, NS=9, ED=3, nomfma=0, noload=0, spread=0, noC=0, noE=0):
    kernel_begin(a, name)
    a("s_cmp_ge_u32 s2, 256")
    a(f"s_cbranch_scc1 {name}_done")
    stamp(a, 0)
    a("s_load_dwordx4 s[4:7], s[0:1], 8")
    a("s_load_dwordx2 s[8:9], s[0:1], 96")
    a("s_and_b32 s3, s2, 7")
    a("s_lshr_b32 s28, s2, 3")
    a("s_and_b32 s29, s3, 1")
    a("s_lshr_b32 s30, s3, 1")
    a("s_lshl_b32 s30, s30, 2")
    a("s_and_b32 s31, s28, 3")
    a("s_add_u32 s30, s30, s31")
    a("s_lshr_b32 s31, s28, 2")
    a("v_lshrrev_b32 v200, 6, v0")
    a("v_and_b32 v201, 63, v0")
    a("s_nop 0")
    a("v_readfirstlane_b32 s32, v200")
    a("v_lshrrev_b32 v202, 3, v201")
    a("v_and_b32 v203, 7, v201")
    a("v_lshrrev_b32 v204, 4, v201")
    a("v_xor_b32 v204, v204, v203")
    a("v_xor_b32 v205, 4, v204")
    a("v_lshlrev_b32 v206, 12, v202")
    a("v_lshl_add_u32 v204, v204, 4, v206")
    a("v_lshl_add_u32 v205, v205, 4, v206")
    a("v_lshlrev_b32 v206, 4, v201")
    a("s_waitcnt lgkmcnt(0)")
    stamp(a, 1)
    a("s_cmp_eq_u32 s29, 1")
    a("s_cselect_b32 s4, s6, s4")
    a("s_cselect_b32 s5, s7, s5")
    srd(a, 12, 4, 5, S * S * 2)
    srd(a, 16, 8, 9, 8 << 20)
    a("s_lshl_b32 s35, s30, 19")
    a("s_lshl_b32 s34, s32, 10")
    a("s_add_u32 s35, s35, s34")
    for j in range(4):
        a(f"s_add_u32 s34, s32, {j}")
        a("s_and_b32 s34, s34, 3")
        a(f"s_mov_b32 s{52 + j}, s34")
        a("s_lshl_b32 s34, s34, 17")
        a(f"s_add_u32 s{40 + j}, s35, s34")
    a("s_lshl_b32 s36, s29, 4")
    a("s_lshl_b32 s34, s31, 1")
    a("s_add_u32 s36, s36, s34")
    a("s_lshl_b32 s36, s36, 6")
    a("s_lshl_b32 s34, s32, 4")
    a("s_add_u32 s36, s36, s34")
    a("s_lshl_b32 s36, s36, 11")
    a("s_add_u32 s37, s36, 131072")
    RING = NS * 4096
    a(f"s_mul_i32 s46, s32, {RING}")
    vm = VM(a)

    pend = []

    def dma_one(n, i):
        kk, j = n // 4, n % 4
        if noload or noC:
            return
        a(f"s_add_u32 m0, s46, {(n % NS) * 4096 + i * 1024}")
        a(f"s_add_u32 s47, s{40 + j}, {(i * 8) * 4096 + kk * 128}")
        a(f"buffer_load_dwordx4 v{204 + (i & 1)}, s[12:15], s47 offen lds")
        vm.issue(("C", n))

    def e_one(kk, et2, c):
        if noload or noE:
            return
        st = kk % ED
        r = st * 32 + et2 * 16 + c * 4
        a(f"s_add_u32 s48, s{36 + et2}, {kk * 4096}")
        a(f"buffer_load_dwordx4 a[{r}:{r + 3}], v206, s[16:19], s48 offen offset:{c * 1024}")
        vm.issue(("E", kk))

    def dma_slot(n, defer=False):
        for i in range(4):
            if defer:
                pend.append(lambda n=n, i=i: dma_one(n, i))
            else:
                dma_one(n, i)

    def e_loads(kk, defer=False):
        for et2 in range(2):
            for c in range(4):
                if defer:
                    pend.append(lambda kk=kk, et2=et2, c=c: e_one(kk, et2, c))
                else:
                    e_one(kk, et2, c)

    def flush_pend(pred=None, maxn=None):
        cnt = 0
        while pend and (maxn is None or cnt < maxn):
            pend.pop(0)()
            cnt += 1

    nslot_issued = 0
    for kk in range(ED):
        e_loads(kk)
        for tt in range(4):
            if nslot_issued < NS:
                dma_slot(nslot_issued)
                nslot_issued += 1
    while nslot_issued < NS:
        dma_slot(nslot_issued)
        nslot_issued += 1
    stamp(a, 2)
    a("v_and_b32 v207, 31, v201")
    a("v_bfe_u32 v208, v207, 1, 3")
    a("v_lshrrev_b32 v209, 5, v201")
    a("v_lshlrev_b32 v209, 1, v209")
    a("v_xor_b32 v208, v208, v209")
    a("v_lshlrev_b32 v208, 4, v208")
    a("v_lshl_add_u32 v208, v207, 7, v208")
    for c in range(4):
        x = ((c >> 1) * 4 + (c & 1)) << 4
        a(f"v_xor_b32 v{210 + c}, {x}, v208")
        a(f"v_add_u32 v{210 + c}, s46, v{210 + c}")
    for i in range(128):
        a(f"v_mov_b32 v{i}, 0")
    def pend_has(tag):
        return any(getattr(p, '__defaults__', (None,))[0] == tag[1] and len(p.__defaults__) == (2 if tag[0] == 'C' else 3) for p in pend)

    units = [(n, c) for n in range(32) for c in range(4)]
    NF = 6
    LOOKAHEAD = 4

    def reads(un):
        n, c = units[un]
        if c == 0:
            assert noload or noC or vm.q.count(("C", n)) == 4 or ("C", n) not in vm.q and n < nslot_issued and not pend_has(("C", n))
            vm.wait(("C", n))
        f = 128 + 4 * (un % NF)
        a(f"ds_read_b128 v[{f}:{f + 3}], v{210 + c} offset:{(n % NS) * 4096}")

    for un in range(LOOKAHEAD):
        reads(un)
    for un in range(len(units)):
        n, c = units[un]
        kk, j = n // 4, n % 4
        if un + LOOKAHEAD < len(units):
            reads(un + LOOKAHEAD)
            a(f"s_waitcnt lgkmcnt({LOOKAHEAD})")
        else:
            a(f"s_waitcnt lgkmcnt({len(units) - 1 - un})")
        if j == 0 and c == 0:
            assert not pend_has(("E", kk))
            vm.wait(("E", kk))
        f = 128 + 4 * (un % NF)
        st = kk % ED
        if un == 0:
            stamp(a, 3)
        if un == 64:
            stamp(a, 4)
        for et2 in range(2):
            acc = (j * 2 + et2) * 16
            r = st * 32 + et2 * 16 + c * 4
            if not nomfma:
                a(f"v_mfma_f32_32x32x16_bf16 v[{acc}:{acc + 15}], a[{r}:{r + 3}], v[{f}:{f + 3}], v[{acc}:{acc + 15}]")
            if spread:
                flush_pend(maxn=1)
        if c == 3:
            if nslot_issued < 32:
                dma_slot(nslot_issued, defer=bool(spread))
                nslot_issued += 1
            if j == 3 and kk + ED < 8:
                e_loads(kk + ED, defer=bool(spread))
    stamp(a, 5)
    a("s_barrier")
    stamp(a, 6)
    for j in range(1, 4):
        a(f"s_mul_i32 s34, s{52 + j}, 24576")
        a(f"s_add_u32 s34, s34, {(j - 1) * 8192}")
        a(f"v_add_u32 v{214 + j}, s34, v206")
    a("s_mul_i32 s34, s32, 24576")
    a("v_add_u32 v214, s34, v206")
    a("s_nop 7")
    for j in range(1, 4):
        for q in range(8):
            r = j * 32 + 4 * q
            a(f"ds_write_b128 v{214 + j}, v[{r}:{r + 3}] offset:{q * 1024}")
    a("s_waitcnt lgkmcnt(0)")
    a("s_barrier")
    stamp(a, 7)
    for j in range(1, 4):
        for q in range(8):
            r = j * 32 + 4 * q
            a(f"ds_read_b128 v[{r}:{r + 3}], v214 offset:{(j - 1) * 8192 + q * 1024}")
    a("s_lshl_b32 s34, s30, 7")
    a("s_lshl_b32 s33, s32, 5")
    a("s_add_u32 s34, s34, s33")
    a("s_lshl_b32 s34, s34, 10")
    a("s_lshl_b32 s33, s31, 7")
    a("s_add_u32 s34, s34, s33")
    a("s_lshl_b32 s33, s29, 21")
    a("s_add_u32 s34, s34, s33")
    a(f"s_add_u32 s34, s34, {WS_Y}")
    a("v_lshrrev_b32 v209, 5, v201")
    a("v_lshlrev_b32 v209, 5, v209")
    a("v_lshl_add_u32 v209, v207, 10, v209")
    for j in range(1, 4):
        a(f"s_waitcnt lgkmcnt({min(15, (3 - j) * 8)})")
        for i in range(32):
            a(f"v_add_f32 v{i}, v{i}, v{j * 32 + i}")
    for i in range(16):
        a(f"v_cvt_pk_bf16_f32 v{128 + i}, v{2 * i}, v{2 * i + 1}")
    for et2 in range(2):
        for hh in range(2):
            r = 128 + et2 * 8 + hh * 4
            a(f"buffer_store_dwordx4 v[{r}:{r + 3}], v209, s[16:19], s34 offen offset:{et2 * 64 + hh * 16}")
    stamp_flush(a, 2, 8, 8, 9)
    a.label(f"{name}_done")
    a("s_endpgm")
    return kernel_desc(name, 224 + 32 * ED, 64, 224)


WS_P = 4 << 20


def gen_k2b(a, name, NSTG=5, LA=2, nomfma=0, noread=0, nodma=0, nostore=0):
    kernel_begin(a, name)
    a("s_cmp_ge_u32 s2, 256")
    a(f"s_cbranch_scc1 {name}_done")
    stamp(a, 0)
    a("s_load_dwordx4 s[4:7], s[0:1], 8")
    a("s_load_dwordx2 s[8:9], s[0:1], 96")
    a("s_and_b32 s3, s2, 7")
    a("s_lshr_b32 s28, s2, 3")
    a("s_and_b32 s29, s3, 1")
    a("s_bfe_u32 s27, s3, 0x10001")
    a("s_lshr_b32 s30, s3, 2")
    a("s_lshl_b32 s30, s30, 3")
    a("s_and_b32 s31, s28, 7")
    a("s_add_u32 s30, s30, s31")
    a("s_lshr_b32 s31, s28, 3")
    a("v_lshrrev_b32 v1, 6, v0")
    a("v_and_b32 v2, 63, v0")
    a("s_nop 0")
    a("v_readfirstlane_b32 s32, v1")
    a("v_lshlrev_b32 v3, 4, v2")
    a("s_waitcnt lgkmcnt(0)")
    stamp(a, 1)
    a("s_cmp_eq_u32 s29, 1")
    a("s_cselect_b32 s4, s6, s4")
    a("s_cselect_b32 s5, s7, s5")
    srd(a, 12, 4, 5, S * S * 2)
    srd(a, 16, 8, 9, 12 << 20)
    a("s_cmp_lt_u32 s32, 4")
    a(f"s_cbranch_scc1 {name}_cons")
    a("s_sub_u32 s33, s32, 4")
    a("v_lshrrev_b32 v4, 3, v2")
    a("v_and_b32 v5, 7, v2")
    a("v_lshrrev_b32 v6, 4, v2")
    a("v_xor_b32 v6, v6, v5")
    a("v_xor_b32 v7, 4, v6")
    a("v_lshlrev_b32 v4, 12, v4")
    a("v_lshl_add_u32 v6, v6, 4, v4")
    a("v_lshl_add_u32 v7, v7, 4, v4")
    a("v_mov_b32 v8, v6")
    a(f"v_add_u32 v9, {32768 - 1024}, v7")
    a(f"v_add_u32 v10, {2 * (32768 - 1024)}, v6")
    a(f"v_add_u32 v11, {3 * (32768 - 1024)}, v7")
    a("s_lshl_b32 s35, s30, 19")
    a("s_lshl_b32 s34, s33, 17")
    a("s_add_u32 s35, s35, s34")
    a("s_lshl_b32 s34, s27, 11")
    a("s_add_u32 s35, s35, s34")
    a("s_lshl_b32 s36, s29, 4")
    a("s_lshl_b32 s34, s31, 2")
    a("s_add_u32 s36, s36, s34")
    a("s_add_u32 s36, s36, s33")
    a("s_lshl_b32 s36, s36, 6")
    a("s_lshl_b32 s34, s27, 5")
    a("s_add_u32 s36, s36, s34")
    a("s_lshl_b32 s36, s36, 11")
    a("s_lshl_b32 s37, s33, 12")

    def load_stage(s):
        slot = (s % NSTG) * 32768
        a(f"s_add_u32 m0, s37, {slot}")
        a(f"s_add_u32 s38, s35, {s * 128}")
        for i in range(4):
            if not nodma:
                a(f"buffer_load_dwordx4 v{8 + i}, s[12:15], s38 offen offset:{i * 1024} lds")
        a(f"s_add_u32 m0, s37, {slot + 16384}")
        a(f"s_add_u32 s39, s36, {s * 4096}")
        for c in range(4):
            if not nodma:
                a(f"buffer_load_dwordx4 v3, s[16:19], s39 offen offset:{c * 1024} lds")

    NST = 16
    for s in range(NSTG - 1):
        load_stage(s)
    stamp(a, 2)
    for s in range(NST):
        issued = min(s + NSTG - 2, NST - 1)
        a(f"s_waitcnt vmcnt({(issued - s) * 8})")
        a("s_barrier")
        if s + NSTG - 1 < NST:
            load_stage(s + NSTG - 1)
    stamp(a, 5)
    a(f"s_branch {name}_fin")
    a.label(f"{name}_cons")
    a("s_and_b32 s33, s32, 1")
    a("s_lshr_b32 s34, s32, 1")
    a("v_and_b32 v4, 31, v2")
    a("v_bfe_u32 v5, v4, 1, 3")
    a("v_lshrrev_b32 v6, 5, v2")
    a("v_lshlrev_b32 v6, 1, v6")
    a("v_xor_b32 v5, v5, v6")
    a("v_lshlrev_b32 v5, 4, v5")
    a("v_lshl_add_u32 v5, v4, 7, v5")
    a("s_lshl_b32 s35, s33, 13")
    a("s_lshl_b32 s36, s34, 13")
    a("s_add_u32 s36, s36, 16384")
    for g in range(3):
        for c in range(4):
            x = ((c >> 1) * 4 + (c & 1)) << 4
            a(f"v_xor_b32 v{8 + 5 * g + c}, {x}, v5")
            a(f"v_add_u32 v{8 + 5 * g + c}, s35, v{8 + 5 * g + c}")
            if g:
                a(f"v_add_u32 v{8 + 5 * g + c}, {65536 * g}, v{8 + 5 * g + c}")
        a(f"v_add_u32 v{8 + 5 * g + 4}, s36, v3")
        if g:
            a(f"v_add_u32 v{8 + 5 * g + 4}, {65536 * g}, v{8 + 5 * g + 4}")
    ACC = 64
    FB = 128
    for i in range(64):
        a(f"v_mov_b32 v{ACC + i}, 0")
    NU = NST * 4

    def reads(u):
        s, c = u // 4, u % 4
        slot = s % NSTG
        g, so = slot // 2, (slot % 2) * 32768
        f = FB + 16 * (u % (LA + 1))
        if c == 0:
            a("s_waitcnt lgkmcnt(0)")
            a("s_barrier")
            if s == 0:
                stamp(a, 3)
            if s == 8:
                stamp(a, 4)
        if noread:
            return
        a(f"ds_read_b128 v[{f}:{f + 3}], v{8 + 5 * g + c} offset:{so}")
        a(f"ds_read_b128 v[{f + 8}:{f + 11}], v{8 + 5 * g + 4} offset:{so + c * 1024}")
        a(f"ds_read_b128 v[{f + 4}:{f + 7}], v{8 + 5 * g + c} offset:{so + 4096}")
        a(f"ds_read_b128 v[{f + 12}:{f + 15}], v{8 + 5 * g + 4} offset:{so + 4096 + c * 1024}")

    for u in range(LA):
        reads(u)
    for u in range(NU):
        if u + LA < NU:
            reads(u + LA)
        nxt = min(u + LA, NU - 1)
        cnt = 0
        for uu in range(u + 1, nxt + 1):
            cnt += 4
        a(f"s_waitcnt lgkmcnt({min(cnt, 15)})")
        f = FB + 16 * (u % (LA + 1))
        for et in range(2):
            for tt in range(2):
                acc = ACC + (et * 2 + tt) * 16
                if not nomfma:
                    a(f"v_mfma_f32_32x32x16_bf16 v[{acc}:{acc + 15}], v[{f + 8 + 4 * et}:{f + 11 + 4 * et}], v[{f + 4 * tt}:{f + 4 * tt + 3}], v[{acc}:{acc + 15}]")
    stamp(a, 5)
    a("s_lshl_b32 s35, s30, 7")
    a("s_lshl_b32 s36, s33, 6")
    a("s_add_u32 s35, s35, s36")
    a("s_lshl_b32 s35, s35, 10")
    a("s_lshl_b32 s36, s31, 8")
    a("s_add_u32 s35, s35, s36")
    a("s_lshl_b32 s36, s34, 7")
    a("s_add_u32 s35, s35, s36")
    a("s_lshl_b32 s36, s29, 1")
    a("s_add_u32 s36, s36, s27")
    a("s_lshl_b32 s36, s36, 21")
    a("s_add_u32 s35, s35, s36")
    a(f"s_add_u32 s35, s35, {WS_P}")
    a("s_add_u32 s36, s35, 32768")
    a("v_lshrrev_b32 v6, 5, v2")
    a("v_lshlrev_b32 v6, 5, v6")
    a("v_lshl_add_u32 v6, v4, 10, v6")
    a("s_nop 4")
    for et in range(2):
        for tt in range(2):
            acc = ACC + (et * 2 + tt) * 16
            o = 24 + (et * 2 + tt) * 8
            for i in range(8):
                a(f"v_cvt_pk_bf16_f32 v{o + i}, v{acc + 2 * i}, v{acc + 2 * i + 1}")
            for hh in range(2):
                if not nostore:
                    a(f"buffer_store_dwordx4 v[{o + 4 * hh}:{o + 4 * hh + 3}], v6, s[16:19], s{35 + tt} offen offset:{et * 64 + hh * 16}")
    a.label(f"{name}_fin")
    stamp_flush(a, 2, 6, 8, 9)
    a.label(f"{name}_done")
    a("s_endpgm")
    nv = FB + 16 * (LA + 1)
    return kernel_desc(name, nv, 64, nv)


def emit_perm2(a, dst, src, t):
    a(f"v_and_b32 v{dst}, 3, v{src}")
    a(f"v_bfe_u32 v{t}, v{src}, 2, 2")
    a(f"v_lshl_or_b32 v{dst}, v{t}, 3, v{dst}")
    a(f"v_bfe_u32 v{t}, v{src}, 4, 1")
    a(f"v_lshl_or_b32 v{dst}, v{t}, 2, v{dst}")


def gen_k1b(a, name, prefetch=1, wt=0, nostats=0, nocs=0, PRO=6, pfpos=2, rot=1):
    NSTG, SLOT = 6, 24576
    STATS = NSTG * SLOT
    kernel_begin(a, name)
    a("s_cmp_ge_u32 s2, 256")
    a(f"s_cbranch_scc1 {name}_done")
    stamp(a, 0)
    a("s_load_dwordx2 s[4:5], s[0:1], 0")
    a("s_load_dwordx4 s[8:11], s[0:1], 24")
    a("s_load_dwordx2 s[6:7], s[0:1], 96")
    a("s_load_dwordx4 s[40:43], s[0:1], 8")
    a("s_and_b32 s3, s2, 7")
    a("s_lshr_b32 s28, s2, 3")
    a("s_and_b32 s29, s28, 3")
    a("s_lshl_b32 s30, s3, 2")
    a("s_add_u32 s30, s30, s29")
    a("s_lshr_b32 s31, s28, 2")
    a("v_lshrrev_b32 v1, 6, v0")
    a("v_and_b32 v2, 63, v0")
    a("s_nop 0")
    a("v_readfirstlane_b32 s32, v1")
    a("s_mov_b32 s53, 0xffff0000")
    a("s_cmp_lt_u32 s32, 4")
    a(f"s_cbranch_scc1 {name}_cons")
    a("s_sub_u32 s33, s32, 4")
    a("v_lshrrev_b32 v3, 3, v2")
    a("v_and_b32 v4, 7, v2")
    a("v_lshrrev_b32 v6, 4, v2")
    a("v_xor_b32 v6, v6, v4")
    a("v_xor_b32 v7, 4, v6")
    a("v_lshlrev_b32 v3, 10, v3")
    a("v_lshl_add_u32 v8, v6, 4, v3")
    a("v_lshl_add_u32 v7, v7, 4, v3")
    a(f"v_add_u32 v9, {8192 - 1024}, v7")
    a(f"v_add_u32 v10, {2 * (8192 - 1024)}, v8")
    a(f"v_add_u32 v11, {3 * (8192 - 1024)}, v7")
    a("s_lshl_b32 s35, s30, 6")
    a("s_lshl_b32 s34, s33, 4")
    a("s_add_u32 s35, s35, s34")
    a("s_lshl_b32 s35, s35, 10")
    a("s_and_b32 s36, s31, 3")
    a("s_lshl_b32 s36, s36, 7")
    a("s_lshl_b32 s34, s33, 5")
    a("s_add_u32 s36, s36, s34")
    a("s_lshl_b32 s36, s36, 10")
    a("s_lshl_b32 s37, s33, 11")
    a("s_lshl_b32 s38, s33, 12")
    a("s_add_u32 s38, s38, 8192")
    a("s_lshl_b32 s34, s29, 1")
    a("s_add_u32 s34, s34, s31")
    for kk in range(8):
        if rot:
            a(f"s_add_u32 s39, s34, {kk}")
            a("s_and_b32 s39, s39, 7")
            a(f"s_lshl_b32 s{54 + kk}, s39, 7")
        else:
            a(f"s_mov_b32 s{54 + kk}, {kk * 128}")
    a("s_waitcnt lgkmcnt(0)")
    stamp(a, 1)
    srd(a, 12, 4, 5, S * D * 2)
    a("s_cmp_ge_u32 s31, 4")
    a("s_cselect_b32 s8, s10, s8")
    a("s_cselect_b32 s9, s11, s9")
    srd(a, 16, 8, 9, D * D * 2)

    def load_stage(kk):
        slot = (kk % NSTG) * SLOT
        a(f"s_add_u32 m0, s37, {slot}")
        a(f"s_add_u32 s39, s35, s{54 + kk}")
        for i in range(2):
            a(f"buffer_load_dwordx4 v{8 + i}, s[12:15], s39 offen offset:{i * 1024} lds")
        a(f"s_add_u32 m0, s38, {slot}")
        a(f"s_add_u32 s39, s36, s{54 + kk}")
        for i in range(4):
            a(f"buffer_load_dwordx4 v{8 + i}, s[16:19], s39 offen offset:{i * 1024} lds")

    for kk in range(PRO):
        load_stage(kk)
    stamp(a, 2)
    a("v_lshrrev_b32 v12, 2, v2")
    a("v_lshlrev_b32 v12, 7, v12")
    a("v_and_b32 v13, 3, v2")
    a("v_lshl_add_u32 v12, v13, 5, v12")
    a("v_add_u32 v12, s37, v12")
    a(f"v_add_u32 v13, {3 * SLOT}, v12")
    a("v_mov_b32 v14, 0")
    a("v_mov_b32 v15, 0")
    a("v_mov_b32 v16, 0")
    a("v_mov_b32 v17, 0")
    issued = PRO
    npf = 0

    def emit_prefetch(vb):
        a("s_and_b32 s48, s3, 1")
        a("s_cmp_eq_u32 s48, 1")
        a("s_cselect_b32 s40, s42, s40")
        a("s_cselect_b32 s41, s43, s41")
        srd(a, 24, 40, 41, S * S * 2)
        a("s_lshr_b32 s48, s3, 2")
        a("s_lshl_b32 s48, s48, 10")
        a("s_lshl_b32 s49, s28, 5")
        a("s_add_u32 s48, s48, s49")
        a("s_and_b32 s49, s32, 3")
        a("s_lshl_b32 s49, s49, 3")
        a("s_add_u32 s48, s48, s49")
        a("s_lshl_b32 s48, s48, 12")
        a("s_bfe_u32 s49, s3, 0x10001")
        a("s_lshl_b32 s49, s49, 11")
        a("s_add_u32 s48, s48, s49")
        a(f"v_lshrrev_b32 v{vb}, 4, v2")
        a(f"v_lshlrev_b32 v{vb}, 12, v{vb}")
        a(f"v_and_b32 v{vb + 1}, 15, v2")
        a(f"v_lshl_add_u32 v{vb}, v{vb + 1}, 7, v{vb}")
        for i in range(2):
            a(f"s_add_u32 s49, s48, {i * 16384}")
            a(f"buffer_load_dword v{vb + 2 + i}, v{vb}, s[24:27], s49 offen")

    vq = [k for k in range(PRO) for _ in range(6)]
    for kk in range(8):
        idx = max(i for i, t in enumerate(vq) if t == kk)
        a(f"s_waitcnt vmcnt({len(vq) - 1 - idx})")
        vq = vq[idx + 1:]
        slot = kk % NSTG
        ar, so = (12, slot * SLOT) if slot < 3 else (13, (slot - 3) * SLOT)
        a(f"ds_read_b128 v[24:27], v{ar} offset:{so}")
        a(f"ds_read_b128 v[28:31], v{ar} offset:{so + 16}")
        a("s_barrier")
        a("s_waitcnt lgkmcnt(0)")
        n_new = 0
        while issued < 8 and issued - NSTG < kk and n_new < 2:
            load_stage(issued)
            vq += [issued] * 6
            issued += 1
            n_new += 1
        if prefetch and pfpos == kk:
            emit_prefetch(40)
            vq += ["pf"] * 2
        if kk == 0:
            a("v_lshlrev_b32 v18, 16, v24")
            a("s_nop 1")
            a(f"v_mov_b32_dpp v18, v18 quad_perm:[0,0,0,0] {DPP}")
        for r in range(0 if nostats else 8):
            t = 32 + 2 * (r & 3)
            a(f"v_lshlrev_b32 v{t}, 16, v{24 + r}")
            a(f"v_and_b32 v{t + 1}, s53, v{24 + r}")
            a(f"v_sub_f32 v{t}, v{t}, v18")
            a(f"v_sub_f32 v{t + 1}, v{t + 1}, v18")
            a(f"v_add_f32 v14, v14, v{t}")
            a(f"v_add_f32 v15, v15, v{t + 1}")
            a(f"v_fmac_f32 v16, v{t}, v{t}")
            a(f"v_fmac_f32 v17, v{t + 1}, v{t + 1}")
    a("v_add_f32 v14, v14, v15")
    a("v_add_f32 v16, v16, v17")
    for qp in ("[1,0,3,2]", "[2,3,0,1]"):
        a("s_nop 1")
        a(f"v_add_f32_dpp v14, v14, v14 quad_perm:{qp} {DPP}")
        a(f"v_add_f32_dpp v16, v16, v16 quad_perm:{qp} {DPP}")
    a("v_mul_f32 v14, 0x3b000000, v14")
    a("v_mul_f32 v16, 0x3b000000, v16")
    a("v_fma_f32 v16, -v14, v14, v16")
    a("v_max_f32 v16, 0, v16")
    a("v_add_f32 v14, v14, v18")
    a("v_cvt_pk_bf16_f32 v14, v14, v14")
    a("v_lshlrev_b32 v14, 16, v14")
    a("v_cvt_pk_bf16_f32 v16, v16, v16")
    a("v_lshlrev_b32 v16, 16, v16")
    a("v_add_f32 v16, 0x3727c5ac, v16")
    a("v_cvt_pk_bf16_f32 v16, v16, v16")
    a("v_lshlrev_b32 v16, 16, v16")
    a("v_sqrt_f32 v16, v16")
    a("s_nop 0")
    a("v_cvt_pk_bf16_f32 v16, v16, v16")
    a("v_lshlrev_b32 v16, 16, v16")
    a("v_rcp_f32 v16, v16")
    a("v_lshrrev_b32 v19, 2, v2")
    a("v_lshlrev_b32 v19, 2, v19")
    a("s_lshl_b32 s34, s33, 6")
    a(f"s_add_u32 s34, s34, {STATS}")
    a("v_add_u32 v19, s34, v19")
    a("ds_write_b32 v19, v14")
    a("ds_write_b32 v19, v16 offset:256")
    a("s_waitcnt lgkmcnt(0)")
    stamp(a, 3)
    a("s_barrier")
    a(f"s_branch {name}_fin")
    a.label(f"{name}_cons")
    a("v_and_b32 v9, 31, v2")
    a("v_lshrrev_b32 v5, 5, v2")
    emit_perm32(a, 10, 9, 11)
    a("v_bfe_u32 v11, v10, 1, 3")
    a("v_xor_b32 v11, v11, v5")
    a("v_lshlrev_b32 v11, 4, v11")
    a("v_lshl_add_u32 v11, v10, 7, v11")
    emit_perm2(a, 10, 9, 12)
    a("v_bfe_u32 v12, v10, 1, 3")
    a("v_xor_b32 v12, v12, v5")
    a("v_lshlrev_b32 v12, 4, v12")
    a("v_lshl_add_u32 v12, v10, 7, v12")
    a("s_lshl_b32 s34, s32, 12")
    a("s_add_u32 s34, s34, 8192")
    a("v_add_u32 v12, s34, v12")
    for g in range(3):
        for c in range(4):
            a(f"v_xor_b32 v{16 + 8 * g + c}, {c * 32}, v11")
            a(f"v_xor_b32 v{20 + 8 * g + c}, {c * 32}, v12")
            if g:
                a(f"v_add_u32 v{16 + 8 * g + c}, {2 * SLOT * g}, v{16 + 8 * g + c}")
                a(f"v_add_u32 v{20 + 8 * g + c}, {2 * SLOT * g}, v{20 + 8 * g + c}")
    ACC = 64
    FR = [96, 108, 120]
    for i in range(32):
        a(f"v_mov_b32 v{ACC + i}, 0")
    a("v_mov_b32 v40, 0")
    a("v_mov_b32 v41, 0")
    a("s_mov_b32 s50, 0x3f803f80")
    a("s_waitcnt lgkmcnt(0)")
    stamp(a, 1)
    srd(a, 20, 6, 7, 4 << 20)
    if prefetch and pfpos == -1:
        emit_prefetch(150)
    units = [(kk, c) for kk in range(8) for c in range(4)]

    def reads(n):
        kk, c = units[n]
        f = FR[n % 3]
        slot = kk % NSTG
        g, so = slot // 2, (slot % 2) * SLOT
        if c == 0:
            a("s_waitcnt lgkmcnt(0)")
            a("s_barrier")
            if kk == 0:
                stamp(a, 2)
        a(f"ds_read_b128 v[{f}:{f + 3}], v{20 + 8 * g + c} offset:{so}")
        a(f"ds_read_b128 v[{f + 4}:{f + 7}], v{16 + 8 * g + c} offset:{so}")
        a(f"ds_read_b128 v[{f + 8}:{f + 11}], v{16 + 8 * g + c} offset:{so + 4096}")

    reads(0)
    reads(1)
    for n in range(len(units)):
        if n + 2 < len(units):
            reads(n + 2)
            a("s_waitcnt lgkmcnt(6)")
        elif n + 1 < len(units):
            a("s_waitcnt lgkmcnt(3)")
        else:
            a("s_waitcnt lgkmcnt(0)")
        f = FR[n % 3]
        a(f"v_mfma_f32_32x32x16_bf16 v[{ACC}:{ACC + 15}], v[{f + 4}:{f + 7}], v[{f}:{f + 3}], v[{ACC}:{ACC + 15}]")
        if not nocs:
            a(f"v_dot2_f32_bf16 v40, v{f}, s50, v40")
        if not nocs:
            a(f"v_dot2_f32_bf16 v41, v{f + 1}, s50, v41")
        a(f"v_mfma_f32_32x32x16_bf16 v[{ACC + 16}:{ACC + 31}], v[{f + 8}:{f + 11}], v[{f}:{f + 3}], v[{ACC + 16}:{ACC + 31}]")
        if not nocs:
            a(f"v_dot2_f32_bf16 v40, v{f + 2}, s50, v40")
        if not nocs:
            a(f"v_dot2_f32_bf16 v41, v{f + 3}, s50, v41")
    stamp(a, 3)
    a("s_barrier")
    stamp(a, 4)
    a("v_lshlrev_b32 v42, 6, v5")
    a(f"v_add_u32 v42, {STATS}, v42")
    for sh in range(2):
        for q in range(4):
            a(f"ds_read_b128 v[{96 + 16 * sh + 4 * q}:{99 + 16 * sh + 4 * q}], v42 offset:{128 * sh + 16 * q}")
            a(f"ds_read_b128 v[{128 + 16 * sh + 4 * q}:{131 + 16 * sh + 4 * q}], v42 offset:{256 + 128 * sh + 16 * q}")
    a("v_add_f32 v40, v40, v41")
    a("v_mov_b32 v41, v40")
    a("s_nop 1")
    a("v_permlane32_swap_b32 v40, v41")
    a("s_nop 1")
    a("v_add_f32 v40, v40, v41")
    a("s_lshl_b32 s34, s31, 2")
    a("s_add_u32 s34, s34, s32")
    a("s_lshl_b32 s34, s34, 7")
    a("s_lshl_b32 s33, s30, 1")
    a("s_add_u32 s34, s34, s33")
    a("s_lshl_b32 s34, s34, 10")
    a("v_bfe_u32 v43, v2, 4, 1")
    a("v_lshlrev_b32 v43, 16, v43")
    a("v_lshl_add_u32 v43, v5, 9, v43")
    a("v_and_b32 v44, 15, v2")
    a("v_lshl_add_u32 v43, v44, 4, v43")
    a("s_waitcnt lgkmcnt(0)")
    for sh in range(2):
        for i in range(16):
            r = ACC + 16 * sh + i
            a(f"v_fma_f32 v{r}, -v{96 + 16 * sh + i}, v40, v{r}")
            a(f"v_mul_f32 v{r}, v{r}, v{128 + 16 * sh + i}")
        for i in range(8):
            a(f"v_cvt_pk_bf16_f32 v{48 + 8 * sh + i}, v{ACC + 16 * sh + 2 * i}, v{ACC + 16 * sh + 2 * i + 1}")
        for u in range(2):
            r = 48 + 8 * sh + 4 * u
            a(f"buffer_store_dwordx4 v[{r}:{r + 3}], v43, s[20:23], s34 offen offset:{sh * 1024 + u * 256}" + (" sc0 sc1" if wt else ""))
    stamp(a, 5)
    a.label(f"{name}_fin")
    stamp_flush(a, 1, 6, 6, 7)
    a.label(f"{name}_done")
    a("s_endpgm")
    return kernel_desc(name, 160, 64, 160)


def emit_wtouch(a, s_sel, vt, vd):
    a(f"s_cmp_eq_u32 {s_sel}, 1")
    a("s_cselect_b32 s56, s58, s56")
    a("s_cselect_b32 s57, s59, s57")
    a(f"s_cmp_eq_u32 {s_sel}, 2")
    a("s_cselect_b32 s56, s60, s56")
    a("s_cselect_b32 s57, s61, s57")
    a("s_mul_i32 s62, s2, 7168")
    a("s_add_u32 s63, s62, 7168")
    a(f"s_cmp_eq_u32 {s_sel}, 3")
    a("s_cselect_b32 s63, 0, s63")
    a("s_mov_b32 s20, s56")
    a("s_and_b32 s21, s57, 0xffff")
    a("s_mov_b32 s22, s63")
    a("s_mov_b32 s23, 0x00020000")
    a(f"v_lshlrev_b32 v{vt}, 7, v2")
    a(f"buffer_load_dword v{vd}, v{vt}, s[20:23], s62 offen")


def emit_wtouch2(a):
    a("s_cmp_ge_u32 s33, 2")
    a("s_cselect_b32 s56, s66, s64")
    a("s_cselect_b32 s57, s67, s65")
    a("s_cmp_lt_u32 s28, 28")
    a(f"s_cselect_b32 s62, {D * F * 2}, 0")
    a("s_mov_b32 s20, s56")
    a("s_and_b32 s21, s57, 0xffff")
    a("s_mov_b32 s22, s62")
    a("s_mov_b32 s23, 0x00020000")
    a("s_mov_b32 s24, s68")
    a("s_and_b32 s25, s69, 0xffff")
    a("s_mov_b32 s26, s62")
    a("s_mov_b32 s27, 0x00020000")
    a("s_lshr_b32 s58, s28, 2")
    a("s_lshl_b32 s58, s58, 3")
    a("s_add_u32 s58, s58, s3")
    a("s_and_b32 s59, s28, 3")
    a("s_lshl_b32 s62, s59, 1")
    a("s_and_b32 s63, s33, 1")
    a("s_add_u32 s62, s62, s63")
    a("s_mul_i32 s62, s62, 229376")
    a("s_lshr_b32 s63, s58, 1")
    a("s_lshl_b32 s63, s63, 7")
    a("s_add_u32 s62, s62, s63")
    a("s_mov_b32 s63, 3584")
    a("v_mul_lo_u32 v13, v2, s63")
    a("buffer_load_dword v15, v13, s[20:23], s62 offen")
    a("s_lshl_b32 s62, s58, 15")
    a("s_lshl_b32 s63, s59, 13")
    a("s_add_u32 s62, s62, s63")
    a("s_lshl_b32 s63, s33, 11")
    a("s_add_u32 s62, s62, s63")
    a("v_and_b32 v13, 15, v2")
    a("v_lshlrev_b32 v13, 7, v13")
    a("buffer_load_dword v16, v13, s[24:27], s62 offen")


def gen_k2c(a, name, NSTG=5, LA=1, wt=0, PRO=5, rot=1, BARPOS=1, RSTEP=1, wpf=1, wpf2=0, pol=0, fuse3=0, etouch=0, swap=1, cw=-1, fused_in=0):
    SOFF = 3 if fused_in else 0
    POL = {0: '', 1: ' sc1', 2: ' nt', 3: ' sc0'}[pol]
    if not fused_in:
        kernel_begin(a, name)
        a("s_cmp_ge_u32 s2, 256")
        a(f"s_cbranch_scc1 {name}_done")
    stamp(a, 0)
    if fused_in:
        a("s_load_dwordx2 s[10:11], s[0:1], 88")
    a("s_load_dwordx4 s[4:7], s[0:1], 8")
    a("s_load_dwordx2 s[8:9], s[0:1], 96")
    a("s_load_dwordx4 s[56:59], s[0:1], 56")
    a("s_load_dwordx2 s[60:61], s[0:1], 72")
    a("s_load_dwordx4 s[64:67], s[0:1], 56")
    a("s_load_dwordx2 s[68:69], s[0:1], 72")
    a("s_and_b32 s3, s2, 7")
    a("s_lshr_b32 s28, s2, 3")
    a("s_and_b32 s29, s3, 1")
    a("s_bfe_u32 s27, s3, 0x10001")
    a("s_lshr_b32 s30, s3, 2")
    a("s_lshl_b32 s30, s30, 3")
    a("s_and_b32 s31, s28, 7")
    a("s_add_u32 s30, s30, s31")
    a("s_lshr_b32 s31, s28, 3")
    if fused_in:
        a("v_mbcnt_lo_u32_b32 v2, -1, 0")
        a("v_mbcnt_hi_u32_b32 v2, -1, v2")
    else:
        a("v_lshrrev_b32 v1, 6, v0")
        a("v_and_b32 v2, 63, v0")
        a("s_nop 0")
        a("v_readfirstlane_b32 s32, v1")
    a("v_lshlrev_b32 v3, 4, v2")
    if swap and not fused_in:
        a("s_xor_b32 s32, s32, 4")
    a("s_cmp_lt_u32 s32, 4")
    a(f"s_cbranch_scc1 {name}_cons")
    a("s_sub_u32 s33, s32, 4")
    a("v_lshrrev_b32 v4, 3, v2")
    a("v_and_b32 v5, 7, v2")
    a("v_lshrrev_b32 v6, 4, v2")
    a("v_xor_b32 v6, v6, v5")
    a("v_xor_b32 v7, 4, v6")
    a("v_lshlrev_b32 v4, 12, v4")
    a("v_lshl_add_u32 v6, v6, 4, v4")
    a("v_lshl_add_u32 v7, v7, 4, v4")
    a("v_mov_b32 v8, v6")
    a(f"v_add_u32 v9, {32768 - 1024}, v7")
    a(f"v_add_u32 v10, {2 * (32768 - 1024)}, v6")
    a(f"v_add_u32 v11, {3 * (32768 - 1024)}, v7")
    a(f"v_add_u32 v12, {65536 - 2048}, v3")
    a("s_lshl_b32 s35, s30, 19")
    a("s_lshl_b32 s34, s33, 17")
    a("s_add_u32 s35, s35, s34")
    a("s_lshl_b32 s34, s27, 11")
    a("s_add_u32 s35, s35, s34")
    a("s_lshl_b32 s36, s29, 5")
    a("s_lshl_b32 s34, s31, 3")
    a("s_add_u32 s36, s36, s34")
    a("s_lshl_b32 s34, s33, 1")
    a("s_add_u32 s36, s36, s34")
    a("s_lshl_b32 s36, s36, 6")
    a("s_lshl_b32 s34, s27, 5")
    a("s_add_u32 s36, s36, s34")
    a("s_lshl_b32 s36, s36, 10")
    a("s_lshl_b32 s37, s33, 12")
    if rot >= 2:
        a("s_lshl_b32 s52, s31, 1")
        a("s_add_u32 s52, s52, s30")
        if rot == 3:
            a("s_add_u32 s52, s31, s30")
    for j in range(4):
        if rot:
            a(f"s_add_u32 s34, s31, {j}")
            a("s_and_b32 s34, s34, 3")
        else:
            a(f"s_mov_b32 s34, {j}")
        a("s_lshl_b32 s38, s34, 7")
        a(f"s_add_u32 s{44 + j}, s35, s38")
        a("s_lshl_b32 s38, s34, 11")
        a(f"s_add_u32 s{48 + j}, s36, s38")
    a("s_waitcnt lgkmcnt(0)")
    stamp(a, 1)
    a("s_cmp_eq_u32 s29, 1")
    a("s_cselect_b32 s4, s6, s4")
    a("s_cselect_b32 s5, s7, s5")
    srd(a, 12, 4, 5, S * S * 2)
    srd(a, 16, 8, 9, 14 << 20)

    def load_stage(s, part=3):
        slot = ((s + SOFF) % NSTG) * 32768
        if part & 1:
            load_c(s, slot)
        if part & 2:
            load_e(s, slot)

    def load_c(s, slot):
        a(f"s_add_u32 m0, s37, {slot}")
        if rot >= 2:
            G8 = {2: 8, 3: 4, 4: 16}[rot]
            a(f"s_add_u32 s53, s52, {s}")
            a(f"s_and_b32 s53, s53, {G8 - 1}")
            a(f"s_add_u32 s53, s53, {s & ~(G8 - 1)}")
            a("s_lshl_b32 s54, s53, 7")
            a("s_add_u32 s38, s35, s54")
        else:
            a(f"s_add_u32 s38, s{44 + (s & 3)}, {(s & ~3) * 128}")
        for i in range(4):
            a(f"buffer_load_dwordx4 v{8 + i}, s[12:15], s38 offen offset:{i * 1024}{POL} lds")

    def load_e(s, slot):
        a(f"s_add_u32 m0, s37, {slot + 16384}")
        if rot >= 2:
            a("s_lshl_b32 s54, s53, 11")
            a("s_add_u32 s39, s36, s54")
        else:
            a(f"s_add_u32 s39, s{48 + (s & 3)}, {(s & ~3) * 2048}")
        for c in range(4):
            a(f"buffer_load_dwordx4 v{3 if c < 2 else 12}, s[16:19], s39 offen offset:{c * 1024}{' sc1' if fused_in else POL} lds")

    NST = 16
    if fused_in:
        PRO = 4
        for s in range(PRO):
            load_stage(s, 1)
        srd(a, 20, 10, 11, 256)
        a("s_lshl_b32 s52, s29, 1")
        a("s_add_u32 s52, s52, s27")
        a("s_lshl_b32 s52, s52, 2")
        a("s_add_u32 s52, s52, s31")
        a("s_lshl_b32 s52, s52, 10")
        a(f"s_add_u32 s52, s52, {WS_FLAG1}")
        a("v_bfe_u32 v13, v2, 2, 3")
        a("v_lshlrev_b32 v13, 7, v13")
        a("v_and_b32 v14, 3, v2")
        a("v_lshl_add_u32 v13, v14, 2, v13")
        a("v_mov_b32 v14, 0")
        a("s_mov_b32 s55, 0x40000")
        a.label(f"{name}_np")
        a("buffer_load_dword v15, v14, s[20:23], 0 offen sc1")
        a("v_and_b32 v17, 3, v2")
        a("v_lshlrev_b32 v17, 12, v17")
        a(f"v_add_u32 v17, {3 * 32768 + 16384}, v17")
        a(f"s_add_u32 s54, s37, {3 * 32768 + 16384}")
        a("v_mov_b32 v18, s54")
        a("s_waitcnt vmcnt(0)")
        a("v_readfirstlane_b32 s53, v15")
        a("s_cmp_lg_u32 s53, 0")
        a(f"s_cbranch_scc1 {name}_nd")
        a("s_sub_u32 s55, s55, 1")
        a(f"s_cbranch_scc0 {name}_np")
        a("s_mov_b32 s55, 0")
        a.label(f"{name}_nd")
        a("s_cmp_lg_u32 s33, 0")
        a(f"s_cbranch_scc1 {name}_lp")
        a.label(f"{name}_ep")
        a("buffer_load_dword v16, v13, s[16:19], s52 offen sc1")
        a("s_waitcnt vmcnt(0)")
        a("v_cmp_ne_u32 vcc, v15, v16")
        a("s_or_b32 s62, vcc_lo, vcc_hi")
        a(f"s_cbranch_scc0 {name}_eo")
        a(f"s_sleep {ESLEEP}")
        a("s_sub_u32 s55, s55, 1")
        a(f"s_cbranch_scc0 {name}_ep")
        a.label(f"{name}_eo")
        a("ds_write_b32 v17, v15")
        a("s_waitcnt lgkmcnt(0)")
        a(f"s_branch {name}_ed")
        a.label(f"{name}_lp")
        a("ds_read_b32 v16, v18")
        a("s_waitcnt lgkmcnt(0)")
        a("v_readfirstlane_b32 s62, v16")
        a("s_cmp_eq_u32 s62, s53")
        a(f"s_cbranch_scc1 {name}_ed")
        a("s_sleep 1")
        a("s_sub_u32 s55, s55, 1")
        a(f"s_cbranch_scc0 {name}_lp")
        a.label(f"{name}_ed")
        for s in range(PRO):
            load_stage(s, 2)
        vq = [st for st in range(PRO) for _ in range(4)]
    else:
        for s in range(PRO):
            load_stage(s)
        vq = [st for st in range(PRO) for _ in range(8)]
    stamp(a, 2)
    issued = PRO
    for s in range(NST):
        idx = max(k for k, t in enumerate(vq) if t == s)
        a(f"s_waitcnt vmcnt({len(vq) - 1 - idx})")
        vq = vq[idx + 1:]
        a("s_barrier")
        n_new = 0
        while issued < NST and issued - NSTG < s and n_new < 2:
            load_stage(issued)
            vq += [issued] * 8
            issued += 1
            n_new += 1
            if issued == wpf:
                emit_wtouch(a, "s33", 13, 14)
                vq.append("w")
            if issued == wpf2:
                emit_wtouch2(a)
                vq += ["w", "w"]
    stamp(a, 5)
    a(f"s_branch {name}_fin")
    a.label(f"{name}_cons")
    a("s_and_b32 s33, s32, 1")
    a("s_lshr_b32 s34, s32, 1")
    a("v_and_b32 v4, 15, v2")
    a("v_lshrrev_b32 v5, 1, v4")
    a("v_lshrrev_b32 v6, 4, v2")
    a("v_xor_b32 v5, v5, v6")
    a("v_lshlrev_b32 v5, 4, v5")
    a("v_lshl_add_u32 v5, v4, 7, v5")
    a("s_lshl_b32 s35, s33, 13")
    a("s_lshl_b32 s36, s34, 13")
    a("s_add_u32 s36, s36, 16384")
    for g in range(3):
        a(f"v_add_u32 v{8 + 3 * g}, s35, v5")
        a(f"v_xor_b32 v{9 + 3 * g}, 64, v5")
        a(f"v_add_u32 v{9 + 3 * g}, s35, v{9 + 3 * g}")
        a(f"v_add_u32 v{10 + 3 * g}, s36, v3")
        if g:
            for r in range(3):
                a(f"v_add_u32 v{8 + 3 * g + r}, {65536 * g}, v{8 + 3 * g + r}")
    ACC = 64
    FB = 128
    for i in range(64):
        a(f"v_mov_b32 v{ACC + i}, 0")
    a("s_waitcnt lgkmcnt(0)")
    stamp(a, 1)
    srd(a, 16, 8, 9, 16 << 20)
    if fuse3:
        a("v_mov_b32 v198, 0")
        if fused_in:
            srd(a, 20, 10, 11, 256)
            a("buffer_load_dword v199, v198, s[20:23], 0 offen sc1")
        else:
            a(f"s_mov_b32 s38, {13 << 20}")
            a("buffer_load_dword v199, v198, s[16:19], s38 offen sc1")
    if etouch:
        a("s_lshl_b32 s38, s29, 5")
        a("s_add_u32 s38, s38, s28")
        a("s_lshl_b32 s38, s38, 6")
        a("s_lshl_b32 s39, s27, 5")
        a("s_add_u32 s38, s38, s39")
        a("s_lshl_b32 s38, s38, 10")
        a("s_lshl_b32 s39, s32, 13")
        a("s_add_u32 s38, s38, s39")
        a("v_lshlrev_b32 v20, 7, v2")
        a("buffer_load_dword v21, v20, s[16:19], s38 offen")
    NU = NST * 2

    def read_list(u):
        s, ks = u // 2, u % 2
        slot = (s + SOFF) % NSTG
        g, so = slot // 2, (slot % 2) * 32768
        f = FB + 32 * (u % 2)
        L = []
        for i in range(4):
            L.append(f"ds_read_b128 v[{f + 16 + 4 * i}:{f + 19 + 4 * i}], v{10 + 3 * g} offset:{so + i * 2048 + ks * 1024}")
            L.append(f"ds_read_b128 v[{f + 4 * i}:{f + 3 + 4 * i}], v{8 + 3 * g + ks} offset:{so + i * 2048}")
        return L

    if cw == 100:
        emit_wtouch(a, "s32", 20, 21)
    a("s_barrier")
    stamp(a, 3)
    for r in read_list(0):
        a(r)
    for u in range(NU):
        a("s_waitcnt lgkmcnt(0)")
        f = FB + 32 * (u % 2)
        nxt = read_list(u + 1) if u + 1 < NU else []
        n = 0
        for T in range(4):
            for tt in range(4):
                acc = ACC + (T * 4 + tt) * 4
                a(f"v_mfma_f32_16x16x32_bf16 v[{acc}:{acc + 3}], v[{f + 16 + 4 * T}:{f + 19 + 4 * T}], v[{f + 4 * tt}:{f + 4 * tt + 3}], v[{acc}:{acc + 3}]")
                n += 1
                if n == BARPOS and nxt and (u + 1) % 2 == 0:
                    a("s_barrier")
                    if (u + 1) // 2 == 8:
                        stamp(a, 4)
                if n >= BARPOS and nxt and (n - BARPOS) % RSTEP == 0:
                    a(nxt.pop(0))
                if u == cw and n == 10:
                    emit_wtouch(a, "s32", 20, 21)
        for r in nxt:
            a(r)
    stamp(a, 5)
    a("s_lshl_b32 s35, s30, 7")
    a("s_lshl_b32 s36, s33, 6")
    a("s_add_u32 s35, s35, s36")
    a("s_lshl_b32 s35, s35, 10")
    a("s_lshl_b32 s36, s31, 8")
    a("s_add_u32 s35, s35, s36")
    a("s_lshl_b32 s36, s34, 7")
    a("s_add_u32 s35, s35, s36")
    a("s_lshl_b32 s36, s29, 1")
    a("s_add_u32 s36, s36, s27")
    a("s_lshl_b32 s36, s36, 21")
    a("s_add_u32 s35, s35, s36")
    a(f"s_add_u32 s35, s35, {WS_P}")
    a("v_lshlrev_b32 v6, 4, v6")
    a("v_lshl_add_u32 v6, v4, 10, v6")
    for tt in range(4):
        a(f"s_add_u32 s{40 + tt}, s35, {tt * 16384}")
    for tt in range(4):
        for Th in range(2):
            o = 24 + (tt * 2 + Th) * 4
            for Tl in range(2):
                acc = ACC + ((Th * 2 + Tl) * 4 + tt) * 4
                a(f"v_cvt_pk_bf16_f32 v{o + 2 * Tl}, v{acc}, v{acc + 1}")
                a(f"v_cvt_pk_bf16_f32 v{o + 2 * Tl + 1}, v{acc + 2}, v{acc + 3}")
            a(f"buffer_store_dwordx4 v[{o}:{o + 3}], v6, s[16:19], s{40 + tt} offen offset:{Th * 64}" + (" sc0 sc1" if wt else ""))
    if fuse3:
        a("s_waitcnt vmcnt(0)")
    a.label(f"{name}_fin")
    stamp_flush(a, 2, 6, 8, 9)
    nv = FB + 64
    if fuse3:
        a("s_and_b32 s3, s2, 7")
        a("s_and_b32 s29, s3, 1")
        a("s_bfe_u32 s27, s3, 0x10001")
        a("s_lshl_b32 s62, s29, 1")
        a("s_add_u32 s62, s62, s27")
        a("s_lshl_b32 s62, s62, 2")
        a("s_add_u32 s62, s62, s31")
        a("s_lshl_b32 s63, s30, 4")
        a("s_add_u32 s63, s63, s62")
        a("s_lshl_b32 s46, s63, 7")
        a(f"s_add_u32 s46, s46, {WS_FLAG2}")
        a("s_barrier")
        a("s_cmp_lg_u32 s32, 0")
        a(f"s_cbranch_scc1 {name}_nf")
        a("v_mov_b32 v198, 0")
        a("buffer_store_dword v199, v198, s[16:19], s46 offen sc0 sc1")
        a.label(f"{name}_nf")
        a("s_barrier")
        gen_kt(a, name + "t", fused=1)
        a.label(f"{name}_done")
        a("s_endpgm")
        return kernel_desc(name, 208, 72, 208)
    if fused_in:
        return None
    a.label(f"{name}_done")
    a("s_endpgm")
    return kernel_desc(name, nv, 72, nv)


def gen_k1c(a, name, wt=1, PRO=3, pf=1, pace=1, pfw=1, pfxd=1):
    NSTG, SLOT, NST = 4, 32768, 8
    STATS = NSTG * SLOT
    kernel_begin(a, name)
    a("s_cmp_ge_u32 s2, 256")
    a(f"s_cbranch_scc1 {name}_done")
    stamp(a, 0)
    a("s_load_dwordx2 s[4:5], s[0:1], 0")
    a("s_load_dwordx4 s[8:11], s[0:1], 24")
    a("s_load_dwordx2 s[6:7], s[0:1], 96")
    a("s_load_dwordx4 s[40:43], s[0:1], 8")
    a("s_load_dwordx4 s[44:47], s[0:1], 56")
    a("s_load_dwordx2 s[48:49], s[0:1], 72")
    a("s_and_b32 s3, s2, 7")
    a("s_lshr_b32 s28, s2, 4")
    a("s_and_b32 s29, s28, 1")
    a("s_lshl_b32 s30, s3, 1")
    a("s_add_u32 s30, s30, s29")
    a("s_lshr_b32 s31, s28, 1")
    a("v_lshrrev_b32 v1, 6, v0")
    a("v_and_b32 v2, 63, v0")
    a("s_nop 0")
    a("v_readfirstlane_b32 s32, v1")
    a("s_mov_b32 s53, 0xffff0000")
    a("s_bitcmp1_b32 s2, 3")
    a(f"s_cbranch_scc1 {name}_pf")
    a("s_cmp_lt_u32 s32, 4")
    a(f"s_cbranch_scc1 {name}_cons")
    a("s_cmp_ge_u32 s32, 8")
    a(f"s_cbranch_scc1 {name}_stat")
    a("s_sub_u32 s33, s32, 4")
    a("v_lshrrev_b32 v3, 3, v2")
    a("v_and_b32 v4, 7, v2")
    a("v_bfe_u32 v5, v2, 4, 1")
    a("v_xor_b32 v4, v4, v5")
    a("v_lshlrev_b32 v3, 10, v3")
    for i in range(4):
        g0g1 = (i & 1) ^ (i >> 1)
        a(f"v_xor_b32 v{8 + i}, {(2 * i) ^ g0g1}, v4")
        a(f"v_lshl_add_u32 v{8 + i}, v{8 + i}, 4, v3")
        if i:
            a(f"v_add_u32 v{8 + i}, {i * (8192 - 1024)}, v{8 + i}")
    a("s_lshl_b32 s34, s33, 5")
    a("s_lshl_b32 s35, s30, 7")
    a("s_add_u32 s35, s35, s34")
    a("s_lshl_b32 s35, s35, 10")
    a("s_and_b32 s36, s31, 3")
    a("s_lshl_b32 s36, s36, 7")
    a("s_add_u32 s36, s36, s34")
    a("s_lshl_b32 s36, s36, 10")
    a("s_lshl_b32 s37, s33, 12")
    a("v_lshlrev_b32 v12, 6, v2")
    a("v_add_u32 v12, s37, v12")
    a("v_add_u32 v12, 16384, v12")
    a(f"v_add_u32 v13, {2 * SLOT}, v12")
    a("v_mov_b32 v14, 0")
    a("v_mov_b32 v15, 0")
    a("s_mov_b32 s50, 0x3f803f80")
    a("s_waitcnt lgkmcnt(0)")
    stamp(a, 1)
    srd(a, 12, 4, 5, S * D * 2)
    a("s_cmp_ge_u32 s31, 4")
    a("s_cselect_b32 s8, s10, s8")
    a("s_cselect_b32 s9, s11, s9")
    srd(a, 16, 8, 9, D * D * 2)

    def load_stage(kk):
        slot = (kk % NSTG) * SLOT
        a(f"s_add_u32 m0, s37, {slot}")
        a(f"s_add_u32 s39, s35, {kk * 128}")
        for i in range(4):
            a(f"buffer_load_dwordx4 v{8 + i}, s[12:15], s39 offen offset:{i * 1024} lds")
        a(f"s_add_u32 m0, s37, {slot + 16384}")
        a(f"s_add_u32 s39, s36, {kk * 128}")
        for i in range(4):
            a(f"buffer_load_dwordx4 v{8 + i}, s[16:19], s39 offen offset:{i * 1024} lds")

    for kk in range(PRO):
        load_stage(kk)
    stamp(a, 2)
    issued = PRO
    for kk in range(NST):
        a(f"s_waitcnt vmcnt({(issued - 1 - kk) * 8})")
        slot = kk % NSTG
        ar, so = (12, slot * SLOT) if slot < 2 else (13, (slot - 2) * SLOT)
        for q in range(4):
            a(f"ds_read_b128 v[{16 + 4 * q}:{19 + 4 * q}], v{ar} offset:{so + 16 * q}")
        a("s_barrier")
        n_new = 0
        while issued < NST and issued - NSTG < kk and n_new < 2:
            load_stage(issued)
            issued += 1
            n_new += 1
        a("s_waitcnt lgkmcnt(0)")
        for r in range(16):
            a(f"v_dot2_f32_bf16 v{14 + (r & 1)}, v{16 + r}, s50, v{14 + (r & 1)}")
    a("s_nop 2")
    a("v_add_f32 v14, v14, v15")
    a("s_nop 1")
    a(f"v_add_f32_dpp v14, v14, v14 quad_perm:[1,0,3,2] {DPP}")
    a("v_lshrrev_b32 v19, 1, v2")
    a("v_lshlrev_b32 v19, 2, v19")
    a("s_lshl_b32 s34, s33, 7")
    a(f"s_add_u32 s34, s34, {STATS + 1024}")
    a("v_add_u32 v19, s34, v19")
    a("ds_write_b32 v19, v14")
    a("s_waitcnt lgkmcnt(0)")
    stamp(a, 3)
    a("s_barrier")
    a(f"s_branch {name}_fin")
    a.label(f"{name}_stat")
    a("s_sub_u32 s33, s32, 8")
    a("s_lshl_b32 s37, s33, 12")
    a("v_lshlrev_b32 v12, 6, v2")
    a("v_add_u32 v12, s37, v12")
    a(f"v_add_u32 v13, {2 * SLOT}, v12")
    for r in range(4):
        a(f"v_mov_b32 v{80 + r}, 0")
    a("s_waitcnt lgkmcnt(0)")
    stamp(a, 1)

    def stat_valu(base):
        for r in range(16):
            t = 72 + 2 * (r & 3)
            a(f"v_lshlrev_b32 v{t}, 16, v{base + r}")
            a(f"v_and_b32 v{t + 1}, s53, v{base + r}")
            a(f"v_sub_f32 v{t}, v{t}, v18")
            a(f"v_sub_f32 v{t + 1}, v{t + 1}, v18")
            a(f"v_add_f32 v80, v80, v{t}")
            a(f"v_add_f32 v81, v81, v{t + 1}")
            a(f"v_fmac_f32 v82, v{t}, v{t}")
            a(f"v_fmac_f32 v83, v{t + 1}, v{t + 1}")

    for kk in range(NST):
        a("s_barrier")
        slot = kk % NSTG
        ar, so = (12, slot * SLOT) if slot < 2 else (13, (slot - 2) * SLOT)
        base = 32 + 16 * (kk & 1)
        for q in range(4):
            a(f"ds_read_b128 v[{base + 4 * q}:{base + 3 + 4 * q}], v{ar} offset:{so + 16 * q}")
        if kk >= 1:
            stat_valu(32 + 16 * ((kk - 1) & 1))
        a("s_waitcnt lgkmcnt(0)")
        if kk == 0:
            a("v_lshlrev_b32 v18, 16, v32")
            a("s_nop 1")
            a(f"v_mov_b32_dpp v18, v18 quad_perm:[0,0,2,2] {DPP}")
    stat_valu(32 + 16 * ((NST - 1) & 1))
    a("v_add_f32 v14, v80, v81")
    a("v_add_f32 v16, v82, v83")
    a("s_nop 1")
    a(f"v_add_f32_dpp v14, v14, v14 quad_perm:[1,0,3,2] {DPP}")
    a(f"v_add_f32_dpp v16, v16, v16 quad_perm:[1,0,3,2] {DPP}")
    a("v_mul_f32 v14, 0x3b000000, v14")
    a("v_mul_f32 v16, 0x3b000000, v16")
    a("v_fma_f32 v16, -v14, v14, v16")
    a("v_max_f32 v16, 0, v16")
    a("v_add_f32 v14, v14, v18")
    a("v_cvt_pk_bf16_f32 v14, v14, v14")
    a("v_lshlrev_b32 v14, 16, v14")
    a("v_cvt_pk_bf16_f32 v16, v16, v16")
    a("v_lshlrev_b32 v16, 16, v16")
    a("v_add_f32 v16, 0x3727c5ac, v16")
    a("v_cvt_pk_bf16_f32 v16, v16, v16")
    a("v_lshlrev_b32 v16, 16, v16")
    a("v_sqrt_f32 v16, v16")
    a("s_nop 0")
    a("v_cvt_pk_bf16_f32 v16, v16, v16")
    a("v_lshlrev_b32 v16, 16, v16")
    a("v_rcp_f32 v16, v16")
    a("v_lshrrev_b32 v19, 1, v2")
    a("v_lshlrev_b32 v19, 2, v19")
    a("s_lshl_b32 s34, s33, 7")
    a(f"s_add_u32 s34, s34, {STATS}")
    a("v_add_u32 v19, s34, v19")
    a("ds_write_b32 v19, v14")
    a("ds_write_b32 v19, v16 offset:512")
    a("s_waitcnt lgkmcnt(0)")
    stamp(a, 3)
    a("s_barrier")
    a(f"s_branch {name}_fin")
    a.label(f"{name}_cons")
    a("s_and_b32 s33, s32, 1")
    a("s_lshr_b32 s34, s32, 1")
    a("v_and_b32 v4, 15, v2")
    a("v_lshrrev_b32 v6, 4, v2")
    a("v_lshrrev_b32 v5, 2, v4")
    a("v_and_b32 v7, 3, v4")
    a("v_lshl_add_u32 v7, v5, 3, v7")
    a("v_lshrrev_b32 v20, 1, v4")
    a("v_lshrrev_b32 v21, 2, v4")
    a("v_lshrrev_b32 v22, 3, v4")
    a("v_xor_b32 v21, v21, v22")
    a("v_and_b32 v21, 1, v21")
    a("v_xor_b32 v20, v20, v21")
    a("v_xor_b32 v20, v20, v6")
    a("v_lshlrev_b32 v20, 4, v20")
    a("v_lshl_add_u32 v20, v7, 7, v20")
    a("s_lshl_b32 s35, s33, 13")
    a("s_lshl_b32 s36, s34, 13")
    a("s_add_u32 s36, s36, 16384")
    for g2 in range(2):
        a(f"v_add_u32 v{8 + 4 * g2}, s35, v20")
        a(f"v_xor_b32 v{9 + 4 * g2}, 64, v{8 + 4 * g2}")
        a(f"v_add_u32 v{10 + 4 * g2}, s36, v20")
        a(f"v_xor_b32 v{11 + 4 * g2}, 64, v{10 + 4 * g2}")
        if g2:
            for r in range(4):
                a(f"v_add_u32 v{8 + 4 * g2 + r}, {65536 * g2}, v{8 + 4 * g2 + r}")
    ACC = 32
    FB = 96
    for i in range(64):
        a(f"v_mov_b32 v{ACC + i}, 0")
    a("s_waitcnt lgkmcnt(0)")
    stamp(a, 1)
    srd(a, 20, 6, 7, 4 << 20)
    NU = NST * 2

    def reads(u):
        s, ks = u // 2, u % 2
        slot = s % NSTG
        g2, so = slot // 2, (slot % 2) * SLOT
        f = FB + 32 * (u % 2)
        if ks == 0:
            a("s_waitcnt lgkmcnt(0)")
            a("s_barrier")
            if s == 0:
                stamp(a, 2)
        for i in range(4):
            off = so + (i >> 1) * 4096 + (i & 1) * 512
            a(f"ds_read_b128 v[{f + 4 * i}:{f + 3 + 4 * i}], v{8 + 4 * g2 + ks} offset:{off}")
            a(f"ds_read_b128 v[{f + 16 + 4 * i}:{f + 19 + 4 * i}], v{10 + 4 * g2 + ks} offset:{off}")

    reads(0)
    for u in range(NU):
        if u + 1 < NU:
            reads(u + 1)
            a("s_waitcnt lgkmcnt(8)")
        else:
            a("s_waitcnt lgkmcnt(0)")
        f = FB + 32 * (u % 2)
        for xi in range(4):
            for T in range(4):
                acc = ACC + (xi * 4 + T) * 4
                a(f"v_mfma_f32_16x16x32_bf16 v[{acc}:{acc + 3}], v[{f + 4 * xi}:{f + 3 + 4 * xi}], v[{f + 16 + 4 * T}:{f + 19 + 4 * T}], v[{acc}:{acc + 3}]")
    stamp(a, 3)
    a("s_barrier")
    stamp(a, 4)
    a("s_lshl_b32 s35, s33, 8")
    a(f"s_add_u32 s35, s35, {STATS}")
    a("v_lshlrev_b32 v20, 5, v6")
    a("v_add_u32 v20, s35, v20")
    for blk in range(2):
        for h in range(2):
            a(f"ds_read_b128 v[{96 + 16 * blk + 4 * h}:{99 + 16 * blk + 4 * h}], v20 offset:{128 * blk + 16 * h}")
            a(f"ds_read_b128 v[{104 + 16 * blk + 4 * h}:{107 + 16 * blk + 4 * h}], v20 offset:{512 + 128 * blk + 16 * h}")
    a("s_lshl_b32 s36, s34, 8")
    a(f"s_add_u32 s36, s36, {STATS + 1024}")
    a("v_lshlrev_b32 v21, 2, v7")
    a("v_add_u32 v21, s36, v21")
    for T in range(4):
        a(f"ds_read_b32 v{128 + T}, v21 offset:{(T >> 1) * 128 + (T & 1) * 16}")
    a("s_lshl_b32 s35, s31, 3")
    a("s_lshl_b32 s36, s34, 2")
    a("s_add_u32 s35, s35, s36")
    a("s_lshl_b32 s35, s35, 6")
    a("s_lshl_b32 s36, s30, 2")
    a("s_add_u32 s35, s35, s36")
    a("s_lshl_b32 s36, s33, 1")
    a("s_add_u32 s35, s35, s36")
    a("s_lshl_b32 s35, s35, 10")
    for T in range(4):
        a(f"s_add_u32 s{40 + T}, s35, {T * 65536}")
    a("v_lshlrev_b32 v22, 4, v2")
    a("s_waitcnt lgkmcnt(0)")
    for blk in range(2):
        for T in range(4):
            o = 132 + 4 * ((blk * 4 + T) & 3)
            for hb in range(2):
                acc = ACC + ((blk * 2 + hb) * 4 + T) * 4
                for j in range(4):
                    a(f"v_fma_f32 v{acc + j}, -v{96 + 16 * blk + 4 * hb + j}, v{128 + T}, v{acc + j}")
                    a(f"v_mul_f32 v{acc + j}, v{acc + j}, v{104 + 16 * blk + 4 * hb + j}")
                a(f"v_cvt_pk_bf16_f32 v{o + 2 * hb}, v{acc}, v{acc + 1}")
                a(f"v_cvt_pk_bf16_f32 v{o + 2 * hb + 1}, v{acc + 2}, v{acc + 3}")
            a(f"buffer_store_dwordx4 v[{o}:{o + 3}], v22, s[20:23], s{40 + T} offen offset:{blk * 1024}" + (" sc0 sc1" if wt else ""))
    stamp(a, 5)
    a(f"s_branch {name}_fin")
    a.label(f"{name}_pf")
    a("s_waitcnt lgkmcnt(0)")
    stamp(a, 1)
    if pf:
        a("v_lshlrev_b32 v3, 7, v2")
        a("v_lshrrev_b32 v4, 4, v2")
        a("v_lshlrev_b32 v4, 12, v4")
        a("v_and_b32 v5, 15, v2")
        a("v_lshl_add_u32 v4, v5, 7, v4")
        a("s_mul_i32 s33, s28, 12")
        a("s_add_u32 s33, s33, s32")
        nld = 0
        if pfxd:
            srd(a, 12, 4, 5, S * D * 2)
            srd(a, 16, 8, 9, D * D * 2)
            srd(a, 20, 10, 11, D * D * 2)
            a("s_lshl_b32 s34, s33, 13")
            a("s_lshl_b32 s35, s3, 18")
            a("s_add_u32 s35, s35, s34")
            a("s_cmp_lt_u32 s33, 32")
            a(f"s_cbranch_scc0 {name}_pf1")
            a("buffer_load_dword v10, v3, s[12:15], s35 offen")
            a(f"s_branch {name}_pf3")
            a.label(f"{name}_pf1")
            a("s_sub_u32 s34, s34, 262144")
            a("s_cmp_lt_u32 s33, 96")
            a(f"s_cbranch_scc0 {name}_pf2")
            a("buffer_load_dword v10, v3, s[16:19], s34 offen")
            a(f"s_branch {name}_pf3")
            a.label(f"{name}_pf2")
            a("s_sub_u32 s34, s34, 524288")
            a("buffer_load_dword v10, v3, s[20:23], s34 offen")
            a.label(f"{name}_pf3")
            if pace:
                a("s_waitcnt vmcnt(0)")
        a("s_and_b32 s48, s3, 1")
        a("s_cmp_eq_u32 s48, 1")
        a("s_cselect_b32 s40, s42, s40")
        a("s_cselect_b32 s41, s43, s41")
        srd(a, 24, 40, 41, S * S * 2)
        a("s_cmp_ge_u32 s33, 128")
        a(f"s_cbranch_scc1 {name}_fin")
        a("s_lshr_b32 s48, s3, 2")
        a("s_lshl_b32 s48, s48, 10")
        a("s_lshl_b32 s49, s33, 3")
        a("s_add_u32 s48, s48, s49")
        a("s_lshl_b32 s48, s48, 12")
        a("s_bfe_u32 s49, s3, 0x10001")
        a("s_lshl_b32 s49, s49, 11")
        a("s_add_u32 s48, s48, s49")
        a("buffer_load_dword v11, v4, s[24:27], s48 offen")
        if pace >= 2:
            a("s_waitcnt vmcnt(0)")
        a("s_add_u32 s48, s48, 16384")
        a("buffer_load_dword v12, v4, s[24:27], s48 offen")
    a.label(f"{name}_fin")
    stamp_flush(a, 1, 6, 6, 7)
    a.label(f"{name}_done")
    a("s_endpgm")
    return kernel_desc(name, 160, 64, 160)


WS_STATS = (12 << 20) + (1 << 19) + 8192
WS_FLAG1 = WS_STATS + 65536
WS_CS = WS_STATS + 16384


def gen_k1d(a, name, wt=1, PRO=3, pf=1, pace=1, pfq=4):
    NSTG, SLOT, NST = 4, 32768, 8
    STATS = NSTG * SLOT
    kernel_begin(a, name)
    a("s_cmp_ge_u32 s2, 256")
    a(f"s_cbranch_scc1 {name}_done")
    stamp(a, 0)
    a("s_load_dwordx2 s[4:5], s[0:1], 0")
    a("s_load_dwordx4 s[8:11], s[0:1], 24")
    a("s_load_dwordx4 s[44:47], s[0:1], 88")
    a("s_load_dwordx4 s[40:43], s[0:1], 8")
    a("s_and_b32 s3, s2, 7")
    a("s_lshr_b32 s28, s2, 4")
    a("s_and_b32 s29, s28, 1")
    a("s_lshl_b32 s30, s3, 1")
    a("s_add_u32 s30, s30, s29")
    a("s_lshr_b32 s31, s28, 1")
    a("v_lshrrev_b32 v1, 6, v0")
    a("v_and_b32 v2, 63, v0")
    a("s_nop 0")
    a("v_readfirstlane_b32 s32, v1")
    a("s_mov_b32 s53, 0xffff0000")
    a("s_bitcmp1_b32 s2, 3")
    a(f"s_cbranch_scc1 {name}_aux")
    a("s_cmp_lt_u32 s32, 4")
    a(f"s_cbranch_scc1 {name}_cons")
    a("s_sub_u32 s33, s32, 4")
    a("v_lshrrev_b32 v3, 3, v2")
    a("v_and_b32 v4, 7, v2")
    a("v_bfe_u32 v5, v2, 4, 1")
    a("v_xor_b32 v4, v4, v5")
    a("v_lshlrev_b32 v3, 10, v3")
    for i in range(4):
        g0g1 = (i & 1) ^ (i >> 1)
        a(f"v_xor_b32 v{8 + i}, {(2 * i) ^ g0g1}, v4")
        a(f"v_lshl_add_u32 v{8 + i}, v{8 + i}, 4, v3")
        if i:
            a(f"v_add_u32 v{8 + i}, {i * (8192 - 1024)}, v{8 + i}")
    a("s_lshl_b32 s34, s33, 5")
    a("s_lshl_b32 s35, s30, 7")
    a("s_add_u32 s35, s35, s34")
    a("s_lshl_b32 s38, s35, 3")
    a("s_lshl_b32 s35, s35, 10")
    a("s_and_b32 s36, s31, 3")
    a("s_lshl_b32 s36, s36, 7")
    a("s_add_u32 s36, s36, s34")
    a("s_lshl_b32 s36, s36, 10")
    a("s_lshl_b32 s37, s33, 12")
    a("v_lshlrev_b32 v12, 6, v2")
    a("v_add_u32 v12, s37, v12")
    a("v_add_u32 v12, 16384, v12")
    a(f"v_add_u32 v13, {2 * SLOT}, v12")
    a("v_mov_b32 v14, 0")
    a("v_mov_b32 v15, 0")
    a("s_mov_b32 s50, 0x3f803f80")
    a("s_waitcnt lgkmcnt(0)")
    stamp(a, 1)
    srd(a, 12, 4, 5, S * D * 2)
    a("s_cmp_ge_u32 s31, 4")
    a("s_cselect_b32 s8, s10, s8")
    a("s_cselect_b32 s9, s11, s9")
    srd(a, 16, 8, 9, D * D * 2)
    srd(a, 20, 46, 47, 14 << 20)
    srd(a, 24, 44, 45, 256)

    def load_stage(kk):
        slot = (kk % NSTG) * SLOT
        a(f"s_add_u32 m0, s37, {slot}")
        a(f"s_add_u32 s39, s35, {kk * 128}")
        for i in range(4):
            a(f"buffer_load_dwordx4 v{8 + i}, s[12:15], s39 offen offset:{i * 1024} lds")
        a(f"s_add_u32 m0, s37, {slot + 16384}")
        a(f"s_add_u32 s39, s36, {kk * 128}")
        for i in range(4):
            a(f"buffer_load_dwordx4 v{8 + i}, s[16:19], s39 offen offset:{i * 1024} lds")

    for kk in range(PRO):
        load_stage(kk)
    stamp(a, 2)
    issued = PRO
    for kk in range(NST):
        a(f"s_waitcnt vmcnt({(issued - 1 - kk) * 8})")
        slot = kk % NSTG
        ar, so = (12, slot * SLOT) if slot < 2 else (13, (slot - 2) * SLOT)
        for q in range(4):
            a(f"ds_read_b128 v[{16 + 4 * q}:{19 + 4 * q}], v{ar} offset:{so + 16 * q}")
        a("s_barrier")
        n_new = 0
        while issued < NST and issued - NSTG < kk and n_new < 2:
            load_stage(issued)
            issued += 1
            n_new += 1
        a("s_waitcnt lgkmcnt(0)")
        for r in range(16):
            a(f"v_dot2_f32_bf16 v{14 + (r & 1)}, v{16 + r}, s50, v{14 + (r & 1)}")
    a("s_lshl_b32 s34, s30, 2")
    a("v_mov_b32 v20, s34")
    a.label(f"{name}_poll")
    a("buffer_load_dword v21, v20, s[24:27], 0 offen sc0 sc1")
    a("s_waitcnt vmcnt(0)")
    a("v_readfirstlane_b32 s34, v21")
    a("s_cmp_ge_u32 s34, 8")
    a(f"s_cbranch_scc1 {name}_polled")
    a("s_sleep 2")
    a(f"s_branch {name}_poll")
    a.label(f"{name}_polled")
    a("v_and_b32 v20, 31, v2")
    a("v_lshlrev_b32 v20, 3, v20")
    a(f"s_add_u32 s38, s38, {WS_STATS}")
    a("buffer_load_dwordx2 v[22:23], v20, s[20:23], s38 offen sc0 sc1")
    a("v_add_f32 v14, v14, v15")
    a("s_nop 1")
    a(f"v_add_f32_dpp v14, v14, v14 quad_perm:[1,0,3,2] {DPP}")
    a("v_lshrrev_b32 v19, 1, v2")
    a("v_lshlrev_b32 v19, 2, v19")
    a("s_lshl_b32 s34, s33, 7")
    a(f"s_add_u32 s34, s34, {STATS + 1024}")
    a("v_add_u32 v19, s34, v19")
    a("ds_write_b32 v19, v14")
    a("v_lshrrev_b32 v20, 1, v20")
    a("s_lshl_b32 s34, s33, 7")
    a(f"s_add_u32 s34, s34, {STATS}")
    a("v_add_u32 v20, s34, v20")
    a("s_waitcnt vmcnt(0)")
    a("ds_write_b32 v20, v22")
    a("ds_write_b32 v20, v23 offset:512")
    a("s_waitcnt lgkmcnt(0)")
    stamp(a, 3)
    a("s_barrier")
    a(f"s_branch {name}_fin")
    a.label(f"{name}_cons")
    a("s_and_b32 s33, s32, 1")
    a("s_lshr_b32 s34, s32, 1")
    a("v_and_b32 v4, 15, v2")
    a("v_lshrrev_b32 v6, 4, v2")
    a("v_lshrrev_b32 v5, 2, v4")
    a("v_and_b32 v7, 3, v4")
    a("v_lshl_add_u32 v7, v5, 3, v7")
    a("v_lshrrev_b32 v20, 1, v4")
    a("v_lshrrev_b32 v21, 2, v4")
    a("v_lshrrev_b32 v22, 3, v4")
    a("v_xor_b32 v21, v21, v22")
    a("v_and_b32 v21, 1, v21")
    a("v_xor_b32 v20, v20, v21")
    a("v_xor_b32 v20, v20, v6")
    a("v_lshlrev_b32 v20, 4, v20")
    a("v_lshl_add_u32 v20, v7, 7, v20")
    a("s_lshl_b32 s35, s33, 13")
    a("s_lshl_b32 s36, s34, 13")
    a("s_add_u32 s36, s36, 16384")
    for g2 in range(2):
        a(f"v_add_u32 v{8 + 4 * g2}, s35, v20")
        a(f"v_xor_b32 v{9 + 4 * g2}, 64, v{8 + 4 * g2}")
        a(f"v_add_u32 v{10 + 4 * g2}, s36, v20")
        a(f"v_xor_b32 v{11 + 4 * g2}, 64, v{10 + 4 * g2}")
        if g2:
            for r in range(4):
                a(f"v_add_u32 v{8 + 4 * g2 + r}, {65536 * g2}, v{8 + 4 * g2 + r}")
    ACC = 32
    FB = 96
    for i in range(64):
        a(f"v_mov_b32 v{ACC + i}, 0")
    a("s_waitcnt lgkmcnt(0)")
    stamp(a, 1)
    srd(a, 20, 46, 47, 4 << 20)
    NU = NST * 2

    def read_list(u):
        s, ks = u // 2, u % 2
        slot = s % NSTG
        g2, so = slot // 2, (slot % 2) * SLOT
        f = FB + 32 * (u % 2)
        L = []
        for i in range(4):
            off = so + (i >> 1) * 4096 + (i & 1) * 512
            L.append(f"ds_read_b128 v[{f + 4 * i}:{f + 3 + 4 * i}], v{8 + 4 * g2 + ks} offset:{off}")
            L.append(f"ds_read_b128 v[{f + 16 + 4 * i}:{f + 19 + 4 * i}], v{10 + 4 * g2 + ks} offset:{off}")
        return L

    a("s_barrier")
    stamp(a, 2)
    for r in read_list(0):
        a(r)
    for u in range(NU):
        a("s_waitcnt lgkmcnt(0)")
        f = FB + 32 * (u % 2)
        nxt = read_list(u + 1) if u + 1 < NU else []
        n = 0
        for xi in range(4):
            for T in range(4):
                acc = ACC + (xi * 4 + T) * 4
                a(f"v_mfma_f32_16x16x32_bf16 v[{acc}:{acc + 3}], v[{f + 4 * xi}:{f + 3 + 4 * xi}], v[{f + 16 + 4 * T}:{f + 19 + 4 * T}], v[{acc}:{acc + 3}]")
                n += 1
                if n == 1 and nxt and (u + 1) % 2 == 0:
                    a("s_barrier")
                if nxt:
                    a(nxt.pop(0))
    stamp(a, 3)
    a("s_barrier")
    stamp(a, 4)
    a("s_lshl_b32 s35, s33, 8")
    a(f"s_add_u32 s35, s35, {STATS}")
    a("v_lshlrev_b32 v20, 5, v6")
    a("v_add_u32 v20, s35, v20")
    for blk in range(2):
        for h in range(2):
            a(f"ds_read_b128 v[{96 + 16 * blk + 4 * h}:{99 + 16 * blk + 4 * h}], v20 offset:{128 * blk + 16 * h}")
            a(f"ds_read_b128 v[{104 + 16 * blk + 4 * h}:{107 + 16 * blk + 4 * h}], v20 offset:{512 + 128 * blk + 16 * h}")
    a("s_lshl_b32 s36, s34, 8")
    a(f"s_add_u32 s36, s36, {STATS + 1024}")
    a("v_lshlrev_b32 v21, 2, v7")
    a("v_add_u32 v21, s36, v21")
    for T in range(4):
        a(f"ds_read_b32 v{128 + T}, v21 offset:{(T >> 1) * 128 + (T & 1) * 16}")
    a("s_lshl_b32 s35, s31, 3")
    a("s_lshl_b32 s36, s34, 2")
    a("s_add_u32 s35, s35, s36")
    a("s_lshl_b32 s35, s35, 6")
    a("s_lshl_b32 s36, s30, 2")
    a("s_add_u32 s35, s35, s36")
    a("s_lshl_b32 s36, s33, 1")
    a("s_add_u32 s35, s35, s36")
    a("s_lshl_b32 s35, s35, 10")
    for T in range(4):
        a(f"s_add_u32 s{40 + T}, s35, {T * 65536}")
    a("v_lshlrev_b32 v22, 4, v2")
    a("s_waitcnt lgkmcnt(0)")
    for blk in range(2):
        for T in range(4):
            o = 132 + 4 * ((blk * 4 + T) & 3)
            for hb in range(2):
                acc = ACC + ((blk * 2 + hb) * 4 + T) * 4
                for j in range(4):
                    a(f"v_fma_f32 v{acc + j}, -v{96 + 16 * blk + 4 * hb + j}, v{128 + T}, v{acc + j}")
                    a(f"v_mul_f32 v{acc + j}, v{acc + j}, v{104 + 16 * blk + 4 * hb + j}")
                a(f"v_cvt_pk_bf16_f32 v{o + 2 * hb}, v{acc}, v{acc + 1}")
                a(f"v_cvt_pk_bf16_f32 v{o + 2 * hb + 1}, v{acc + 2}, v{acc + 3}")
            a(f"buffer_store_dwordx4 v[{o}:{o + 3}], v22, s[20:23], s{40 + T} offen offset:{blk * 1024}" + (" sc0 sc1" if wt else ""))
    stamp(a, 5)
    a(f"s_branch {name}_fin")
    a.label(f"{name}_aux")
    a("v_mov_b32 v3, 0")
    a("ds_write_b32 v3, v3")
    a("s_waitcnt lgkmcnt(0)")
    a("s_barrier")
    stamp(a, 1)
    a("s_cmp_ge_u32 s32, 4")
    a(f"s_cbranch_scc1 {name}_pfw")
    a("s_lshl_b32 s33, s3, 8")
    a("s_lshl_b32 s34, s28, 4")
    a("s_add_u32 s33, s33, s34")
    a("s_lshl_b32 s34, s32, 2")
    a("s_add_u32 s33, s33, s34")
    a("v_lshrrev_b32 v3, 4, v2")
    a("v_and_b32 v4, 15, v2")
    a("v_lshlrev_b32 v5, 10, v3")
    a("v_lshl_add_u32 v5, v4, 4, v5")
    a("s_lshl_b32 s34, s33, 10")
    srd(a, 12, 4, 5, S * D * 2)
    for jj in range(4):
        a(f"buffer_load_dwordx4 v[{16 + 4 * jj}:{19 + 4 * jj}], v5, s[12:15], s34 offen offset:{256 * jj}")
    srd(a, 20, 46, 47, 14 << 20)
    srd(a, 28, 44, 45, 256)
    a("s_waitcnt vmcnt(0)")
    stamp(a, 2)
    X = 32
    for r in range(16):
        a(f"v_lshlrev_b32 v{X + 2 * r}, 16, v{16 + r}")
        a(f"v_and_b32 v{X + 2 * r + 1}, s53, v{16 + r}")
    a(f"v_add_f32 v8, v{X}, v{X + 1}")
    a(f"v_add_f32 v9, v{X + 2}, v{X + 3}")
    for r in range(4, 32, 2):
        a(f"v_add_f32 v8, v8, v{X + r}")
        a(f"v_add_f32 v9, v9, v{X + r + 1}")
    a("v_add_f32 v8, v8, v9")

    def red16(v):
        for pat in ("quad_perm:[1,0,3,2]", "quad_perm:[2,3,0,1]", "row_half_mirror", "row_mirror"):
            a("s_nop 1")
            a(f"v_add_f32_dpp v{v}, v{v}, v{v} {pat} {DPP}")

    red16(8)
    a("v_mul_f32 v8, 0x3b000000, v8")
    a("v_mov_b32 v10, 0")
    a("v_mov_b32 v11, 0")
    for r in range(0, 32, 2):
        a(f"v_sub_f32 v{X + r}, v{X + r}, v8")
        a(f"v_sub_f32 v{X + r + 1}, v{X + r + 1}, v8")
        a(f"v_fmac_f32 v10, v{X + r}, v{X + r}")
        a(f"v_fmac_f32 v11, v{X + r + 1}, v{X + r + 1}")
    a("v_add_f32 v10, v10, v11")
    red16(10)
    a("v_mul_f32 v10, 0x3b000000, v10")
    a("v_cvt_pk_bf16_f32 v12, v8, v8")
    a("v_lshlrev_b32 v12, 16, v12")
    a("v_cvt_pk_bf16_f32 v10, v10, v10")
    a("v_lshlrev_b32 v10, 16, v10")
    a("v_add_f32 v10, 0x3727c5ac, v10")
    a("v_cvt_pk_bf16_f32 v10, v10, v10")
    a("v_lshlrev_b32 v10, 16, v10")
    a("v_sqrt_f32 v10, v10")
    a("s_nop 0")
    a("v_cvt_pk_bf16_f32 v10, v10, v10")
    a("v_lshlrev_b32 v10, 16, v10")
    a("v_rcp_f32 v13, v10")
    a("v_lshlrev_b32 v14, 3, v3")
    a("s_lshl_b32 s36, s33, 3")
    a(f"s_add_u32 s36, s36, {WS_STATS}")
    a("v_cmp_eq_u32 vcc, 0, v4")
    a("s_and_saveexec_b64 s[54:55], vcc")
    a("buffer_store_dwordx2 v[12:13], v14, s[20:23], s36 offen sc0 sc1")
    a("s_mov_b64 exec, s[54:55]")
    a("s_waitcnt vmcnt(0)")
    stamp(a, 3)
    a("v_mov_b32 v14, 0")
    a("v_mov_b32 v15, 1")
    a("v_cmp_eq_u32 vcc, 0, v2")
    a("s_and_saveexec_b64 s[54:55], vcc")
    a("ds_add_rtn_u32 v6, v14, v15")
    a("s_waitcnt lgkmcnt(0)")
    a("v_readfirstlane_b32 s36, v6")
    a("s_cmp_lg_u32 s36, 3")
    a(f"s_cbranch_scc1 {name}_nosig")
    a("s_lshr_b32 s36, s33, 7")
    a("s_lshl_b32 s36, s36, 2")
    a("v_mov_b32 v14, s36")
    a("buffer_atomic_add v15, v14, s[28:31], 0 offen")
    a.label(f"{name}_nosig")
    a("s_mov_b64 exec, s[54:55]")
    a(f"s_branch {name}_fin")
    a.label(f"{name}_pfw")
    a("v_lshlrev_b32 v6, 7, v2")
    a("v_lshrrev_b32 v7, 4, v2")
    a("v_lshlrev_b32 v7, 12, v7")
    a("v_and_b32 v8, 15, v2")
    a("v_lshl_add_u32 v7, v8, 7, v7")
    a("s_lshl_b32 s35, s28, 2")
    a("s_add_u32 s35, s35, s32")
    a("s_sub_u32 s35, s35, 4")
    srd(a, 16, 8, 9, D * D * 2)
    srd(a, 20, 10, 11, D * D * 2)
    a("s_lshl_b32 s36, s35, 13")
    a("buffer_load_dword v10, v6, s[16:19], s36 offen")
    a("buffer_load_dword v11, v6, s[20:23], s36 offen")
    a("s_and_b32 s48, s3, 1")
    a("s_cmp_eq_u32 s48, 1")
    a("s_cselect_b32 s40, s42, s40")
    a("s_cselect_b32 s41, s43, s41")
    srd(a, 24, 40, 41, S * S * 2)
    a("s_lshr_b32 s48, s3, 2")
    a("s_lshl_b32 s48, s48, 10")
    a("s_lshl_b32 s49, s35, 4")
    a("s_add_u32 s48, s48, s49")
    a("s_lshl_b32 s48, s48, 12")
    a("s_bfe_u32 s49, s3, 0x10001")
    a("s_lshl_b32 s49, s49, 11")
    a("s_add_u32 s48, s48, s49")
    if pace:
        a("s_waitcnt vmcnt(0)")
    stamp(a, 2)
    if pf:
        if pfq < 4:
            a(f"v_cmp_gt_u32 vcc, {4 * pfq}, v8")
            a("s_and_saveexec_b64 s[54:55], vcc")
        for ii in range(4):
            a(f"s_add_u32 s49, s48, {ii * 16384}")
            a(f"buffer_load_dword v{12 + ii}, v7, s[24:27], s49 offen")
        if pfq < 4:
            a("s_mov_b64 exec, s[54:55]")
    a.label(f"{name}_fin")
    stamp_flush(a, 1, 6, 46, 47)
    a.label(f"{name}_done")
    a("s_endpgm")
    return kernel_desc(name, 160, 64, 160)


def gen_k1e(a, name, wt=1, PRO=4, pf=1, pace=1, U1=10, U2=12, pfq=4, pol=0, ppol=0, tlb=0, UC=13, vst=0, swap=1, wk1=0, early=0, fuse2=None, cpre=0):
    POL = {0: '', 1: ' sc1', 2: ' nt', 3: ' sc0'}[pol]
    PPOL = {0: '', 1: ' sc1', 2: ' nt', 3: ' sc0'}[ppol]
    NSTG, SLOT, NST = 5, 32768, 8
    CS = 3 * SLOT
    kernel_begin(a, name)
    a("s_cmp_ge_u32 s2, 256")
    a(f"s_cbranch_scc1 {name}_done")
    stamp(a, 0)
    a("s_load_dwordx2 s[4:5], s[0:1], 0")
    a("s_load_dwordx4 s[8:11], s[0:1], 24")
    a("s_load_dwordx4 s[44:47], s[0:1], 88")
    a("s_load_dwordx4 s[40:43], s[0:1], 8")
    a("s_and_b32 s3, s2, 7")
    a("s_lshr_b32 s28, s2, 4")
    a("s_and_b32 s29, s3, 1")
    a("s_bfe_u32 s27, s3, 0x10001")
    a("s_lshr_b32 s26, s3, 2")
    a("s_lshl_b32 s30, s27, 3")
    a("s_lshl_b32 s34, s26, 2")
    a("s_add_u32 s30, s30, s34")
    a("s_and_b32 s34, s28, 3")
    a("s_add_u32 s30, s30, s34")
    a("s_lshr_b32 s31, s28, 2")
    a("v_lshrrev_b32 v1, 6, v0")
    a("v_and_b32 v2, 63, v0")
    a("s_nop 0")
    a("v_readfirstlane_b32 s32, v1")
    a("s_mov_b32 s53, 0xffff0000")
    a("s_mov_b32 s69, 0x40000")
    a("s_bitcmp1_b32 s2, 3")
    a(f"s_cbranch_scc1 {name}_aux")
    if swap:
        a("s_xor_b32 s32, s32, 4")
    a("s_cmp_lt_u32 s32, 4")
    a(f"s_cbranch_scc1 {name}_cons")
    a("s_sub_u32 s33, s32, 4")
    a("v_lshrrev_b32 v3, 3, v2")
    a("v_and_b32 v4, 7, v2")
    a("v_bfe_u32 v5, v2, 4, 1")
    a("v_xor_b32 v4, v4, v5")
    a("v_lshlrev_b32 v3, 10, v3")
    for i in range(4):
        g0g1 = (i & 1) ^ (i >> 1)
        a(f"v_xor_b32 v{8 + i}, {(2 * i) ^ g0g1}, v4")
        a(f"v_lshl_add_u32 v{8 + i}, v{8 + i}, 4, v3")
        if i:
            a(f"v_add_u32 v{8 + i}, {i * (8192 - 1024)}, v{8 + i}")
    a("s_lshl_b32 s34, s33, 5")
    a("s_lshl_b32 s35, s30, 7")
    a("s_add_u32 s35, s35, s34")
    a("s_lshl_b32 s35, s35, 10")
    a("s_lshl_b32 s36, s31, 7")
    a("s_add_u32 s36, s36, s34")
    a("s_lshl_b32 s36, s36, 10")
    a("s_lshl_b32 s37, s33, 12")
    a("v_lshlrev_b32 v12, 6, v2")
    a("v_add_u32 v12, s37, v12")
    a("v_add_u32 v12, 16384, v12")
    a(f"v_add_u32 v13, {2 * SLOT}, v12")
    a(f"v_add_u32 v6, {4 * SLOT}, v12")
    a("v_mov_b32 v14, 0")
    a("v_mov_b32 v15, 0")
    a("s_mov_b32 s50, 0x3f803f80")
    a("s_waitcnt lgkmcnt(0)")
    stamp(a, 1)
    srd(a, 12, 4, 5, S * D * 2)
    a("s_cmp_eq_u32 s29, 1")
    a("s_cselect_b32 s8, s10, s8")
    a("s_cselect_b32 s9, s11, s9")
    srd(a, 16, 8, 9, D * D * 2)

    def load_stage(kk):
        slot = (kk % NSTG) * SLOT
        a(f"s_add_u32 m0, s37, {slot}")
        a(f"s_add_u32 s39, s35, {kk * 128}")
        for i in range(4):
            a(f"buffer_load_dwordx4 v{8 + i}, s[12:15], s39 offen offset:{i * 1024}{POL} lds")
        a(f"s_add_u32 m0, s37, {slot + 16384}")
        a(f"s_add_u32 s39, s36, {kk * 128}")
        for i in range(4):
            a(f"buffer_load_dwordx4 v{8 + i}, s[16:19], s39 offen offset:{i * 1024}{POL} lds")

    if vst:
        VB = 32

        def vload_stage(kk):
            r = VB + (kk - NSTG) * 32
            a(f"s_add_u32 s39, s35, {kk * 128}")
            for i in range(4):
                a(f"buffer_load_dwordx4 v[{r + 4 * i}:{r + 4 * i + 3}], v{8 + i}, s[12:15], s39 offen offset:{i * 1024}")
            a(f"s_add_u32 s39, s36, {kk * 128}")
            for i in range(4):
                a(f"buffer_load_dwordx4 v[{r + 16 + 4 * i}:{r + 19 + 4 * i}], v{8 + i}, s[16:19], s39 offen offset:{i * 1024}")

        def vwrite_stage(kk):
            r = VB + (kk - NSTG) * 32
            slot = (kk % NSTG) * SLOT
            ar = 16 if slot < 65536 - 32768 + 1 else 17
            so = slot if ar == 16 else slot - 65536
            for i in range(4):
                a(f"ds_write_b128 v{ar}, v[{r + 4 * i}:{r + 4 * i + 3}] offset:{so + i * 1024}")
                a(f"ds_write_b128 v{ar}, v[{r + 16 + 4 * i}:{r + 19 + 4 * i}] offset:{so + 16384 + i * 1024}")

        a("v_lshlrev_b32 v16, 4, v2")
        a("v_add_u32 v16, s37, v16")
        a("v_add_u32 v17, 65536, v16")
        for kk in range(PRO):
            load_stage(kk)
        stamp(a, 2)
        issued = PRO
        for kk in range(NST):
            if kk < NSTG:
                a(f"s_waitcnt vmcnt({(issued - 1 - kk) * 8})")
            else:
                a("s_waitcnt lgkmcnt(0)")
            a("s_barrier")
            n_new = 0
            while issued < NST and n_new < 2:
                (load_stage if issued < NSTG else vload_stage)(issued)
                issued += 1
                n_new += 1
            if NSTG <= kk + 1 < NST:
                a(f"s_waitcnt vmcnt({(issued - 1 - (kk + 1)) * 8})")
                vwrite_stage(kk + 1)
    else:
        for kk in range(PRO):
            load_stage(kk)
        stamp(a, 2)
        issued = PRO
        for kk in range(NST):
            a(f"s_waitcnt vmcnt({(issued - 1 - kk) * 8})")
            a("s_barrier")
            n_new = 0
            while issued < NST and issued - NSTG < kk and n_new < 2:
                load_stage(issued)
                issued += 1
                n_new += 1
    stamp(a, 3)
    if fuse2:
        a("s_barrier")
    a(f"s_branch {name}_fin")
    a.label(f"{name}_cons")
    a("s_and_b32 s33, s32, 1")
    a("s_lshr_b32 s34, s32, 1")
    a("v_and_b32 v4, 15, v2")
    a("v_lshrrev_b32 v6, 4, v2")
    a("v_lshrrev_b32 v5, 2, v4")
    a("v_and_b32 v7, 3, v4")
    a("v_lshl_add_u32 v7, v5, 3, v7")
    a("v_lshrrev_b32 v20, 1, v4")
    a("v_lshrrev_b32 v21, 2, v4")
    a("v_lshrrev_b32 v22, 3, v4")
    a("v_xor_b32 v21, v21, v22")
    a("v_and_b32 v21, 1, v21")
    a("v_xor_b32 v20, v20, v21")
    a("v_xor_b32 v20, v20, v6")
    a("v_lshlrev_b32 v20, 4, v20")
    a("v_lshl_add_u32 v20, v7, 7, v20")
    a("s_lshl_b32 s35, s33, 13")
    a("s_lshl_b32 s36, s34, 13")
    a("s_add_u32 s36, s36, 16384")
    for g2 in range(3):
        a(f"v_add_u32 v{8 + 4 * g2}, s35, v20")
        a(f"v_xor_b32 v{9 + 4 * g2}, 64, v{8 + 4 * g2}")
        a(f"v_add_u32 v{10 + 4 * g2}, s36, v20")
        a(f"v_xor_b32 v{11 + 4 * g2}, 64, v{10 + 4 * g2}")
        if g2:
            for r in range(4):
                a(f"v_add_u32 v{8 + 4 * g2 + r}, {65536 * g2}, v{8 + 4 * g2 + r}")
    ACC = 32
    FB = 96
    ST = 160
    for i in range(64):
        a(f"v_mov_b32 v{ACC + i}, 0")
    a("s_lshl_b32 s38, s30, 7")
    a("s_lshl_b32 s39, s33, 6")
    a("s_add_u32 s38, s38, s39")
    a("s_lshl_b32 s38, s38, 3")
    a(f"s_add_u32 s38, s38, {WS_STATS}")
    a("v_lshlrev_b32 v23, 6, v6")
    a("v_mov_b32 v24, 0")
    a("s_lshl_b32 s39, s29, 9")
    a("s_lshl_b32 s61, s31, 7")
    a("s_add_u32 s39, s39, s61")
    a("s_lshl_b32 s61, s34, 6")
    a("s_add_u32 s39, s39, s61")
    a("s_lshl_b32 s39, s39, 3")
    a(f"s_add_u32 s61, s39, {WS_CS}")
    a("v_lshlrev_b32 v21, 3, v7")
    a("s_waitcnt lgkmcnt(0)")
    stamp(a, 1)
    srd(a, 20, 46, 47, 14 << 20)
    srd(a, 24, 44, 45, 256)
    NU = NST * 2

    def read_list(u):
        s, ks = u // 2, u % 2
        slot = s % NSTG
        g2, so = slot // 2, (slot % 2) * SLOT
        f = FB + 32 * (u % 2)
        L = []
        for i in range(4):
            off = so + (i >> 1) * 4096 + (i & 1) * 512
            L.append(f"ds_read_b128 v[{f + 4 * i}:{f + 3 + 4 * i}], v{8 + 4 * g2 + ks} offset:{off}")
            L.append(f"ds_read_b128 v[{f + 16 + 4 * i}:{f + 19 + 4 * i}], v{10 + 4 * g2 + ks} offset:{off}")
        return L

    def stats_loads():
        for blk in range(2):
            for q4 in range(4):
                r = ST + 16 * blk + 4 * q4
                a(f"buffer_load_dwordx4 v[{r}:{r + 3}], v23, s[20:23], s38 offen offset:{256 * blk + 16 * q4} sc1")
        for T in range(4):
            a(f"buffer_load_dwordx2 v[{192 + 2 * T}:{193 + 2 * T}], v21, s[20:23], s61 offen offset:{(T >> 1) * 256 + (T & 1) * 32} sc1")
        a("buffer_load_dword v25, v24, s[24:27], 0 offen sc1")

    a("s_lshl_b32 s35, s29, 5")
    a("s_lshl_b32 s36, s31, 3")
    a("s_add_u32 s35, s35, s36")
    a("s_lshl_b32 s36, s34, 2")
    a("s_add_u32 s35, s35, s36")
    a("s_lshl_b32 s35, s35, 6")
    a("s_lshl_b32 s36, s30, 2")
    a("s_add_u32 s35, s35, s36")
    a("s_lshl_b32 s36, s33, 1")
    a("s_add_u32 s35, s35, s36")
    a("s_lshl_b32 s35, s35, 10")
    for T in range(4):
        a(f"s_add_u32 s{40 + T}, s35, {T * 65536}")

    def check_ops():
        L = [f"v_xor_b32 v26, v25, v{ST + 1}"]
        for r in range(1, 16):
            L.append(f"v_xor_b32 v27, v25, v{ST + 2 * r + 1}")
            L.append("v_or_b32 v26, v26, v27")
        for T in range(4):
            L.append(f"v_xor_b32 v27, v25, v{193 + 2 * T}")
            L.append("v_or_b32 v26, v26, v27")
        for r in range(16):
            L.append(f"v_lshlrev_b32 v{ST + 2 * r + 1}, 16, v{ST + 2 * r}")
            L.append(f"v_rcp_f32 v{ST + 2 * r + 1}, v{ST + 2 * r + 1}")
            L.append(f"v_and_b32 v{ST + 2 * r}, s53, v{ST + 2 * r}")
        return L

    a("s_barrier")
    stamp(a, 2)
    for r in read_list(0):
        a(r)
    shadow = []
    for u in range(NU):
        a("s_waitcnt lgkmcnt(0)")
        f = FB + 32 * (u % 2)
        nxt = read_list(u + 1) if u + 1 < NU else []
        n = 0
        if u == UC:
            a("s_waitcnt vmcnt(0)")
            shadow = check_ops()
        for xi in range(4):
            for T in range(4):
                acc = ACC + (xi * 4 + T) * 4
                a(f"v_mfma_f32_16x16x32_bf16 v[{acc}:{acc + 3}], v[{f + 4 * xi}:{f + 3 + 4 * xi}], v[{f + 16 + 4 * T}:{f + 19 + 4 * T}], v[{acc}:{acc + 3}]")
                n += 1
                if n == 1 and nxt and (u + 1) % 2 == 0:
                    a("s_barrier")
                if nxt:
                    a(nxt.pop(0))
                for _ in range(2):
                    if shadow:
                        a(shadow.pop(0))
                if u == U1 and n == 10:
                    stats_loads()
    for op in shadow:
        a(op)
    stamp(a, 3)
    a.label(f"{name}_chk")
    a("v_cmp_eq_u32 vcc, 0, v25")
    a("v_cmp_ne_u32 s[62:63], 0, v26")
    a("s_or_b64 s[62:63], s[62:63], vcc")
    a(f"s_cbranch_scc0 {name}_have")
    a("s_sleep 4")
    stats_loads()
    a("s_waitcnt vmcnt(0)")
    for op in check_ops():
        a(op)
    a("s_sub_u32 s69, s69, 1")
    a(f"s_cbranch_scc0 {name}_chk")
    a("s_mov_b32 s69, 0")
    a.label(f"{name}_have")
    stamp(a, 4)
    a("v_lshlrev_b32 v22, 4, v2")
    a("s_nop 4")
    for blk in range(2):
        for T in range(4):
            o = 132 + 4 * ((blk * 4 + T) & 3)
            for hb in range(2):
                acc = ACC + ((blk * 2 + hb) * 4 + T) * 4
                for j in range(4):
                    sr = ST + 16 * blk + 2 * (4 * hb + j)
                    a(f"v_fma_f32 v{acc + j}, -v{sr}, v{192 + 2 * T}, v{acc + j}")
                    a(f"v_mul_f32 v{acc + j}, v{acc + j}, v{sr + 1}")
                a(f"v_cvt_pk_bf16_f32 v{o + 2 * hb}, v{acc}, v{acc + 1}")
                a(f"v_cvt_pk_bf16_f32 v{o + 2 * hb + 1}, v{acc + 2}, v{acc + 3}")
            a(f"buffer_store_dwordx4 v[{o}:{o + 3}], v22, s[20:23], s{40 + T} offen offset:{blk * 1024}" + (" sc0 sc1" if wt else ""))
    stamp(a, 5)
    if fuse2:
        a("s_bfe_u32 s36, s3, 0x10001")
        a("s_lshl_b32 s35, s29, 1")
        a("s_add_u32 s35, s35, s36")
        a("s_lshl_b32 s35, s35, 2")
        a("s_add_u32 s35, s35, s31")
        a("s_lshl_b32 s35, s35, 3")
        a("s_and_b32 s36, s30, 7")
        a("s_add_u32 s35, s35, s36")
        a("s_lshl_b32 s35, s35, 7")
        a("s_lshl_b32 s36, s32, 2")
        a("s_add_u32 s35, s35, s36")
        a(f"s_add_u32 s35, s35, {WS_FLAG1}")
        a("s_waitcnt vmcnt(0)")
        a("buffer_store_dword v25, v24, s[20:23], s35 offen sc0 sc1")
        a("s_barrier")
    a(f"s_branch {name}_fin")
    a.label(f"{name}_aux")
    a("s_mov_b32 s50, s28")
    a("s_mov_b32 s51, s29")
    a("s_memrealtime s[66:67]")
    a("v_lshlrev_b32 v6, 7, v2")
    a("v_lshrrev_b32 v3, 4, v2")
    a("v_and_b32 v4, 15, v2")
    a("v_lshlrev_b32 v7, 12, v3")
    a("v_lshl_add_u32 v7, v4, 7, v7")
    a("v_lshlrev_b32 v5, 10, v3")
    a("v_lshl_add_u32 v5, v4, 4, v5")
    a("s_lshl_b32 s35, s50, 3")
    a("s_add_u32 s56, s35, s3")
    a("s_add_u32 s35, s35, s32")
    a("s_lshl_b32 s48, s26, 10")
    a("s_lshl_b32 s49, s35, 3")
    a("s_add_u32 s48, s48, s49")
    a("s_lshl_b32 s48, s48, 12")
    a("s_lshl_b32 s49, s27, 11")
    a("s_add_u32 s48, s48, s49")
    a("s_add_u32 s49, s48, 16384")
    a("s_waitcnt lgkmcnt(0)")
    stamp(a, 1)
    srd(a, 28, 44, 45, 256)
    srd(a, 20, 46, 47, 14 << 20)
    a("s_xor_b32 s62, s2, 8")
    a("s_or_b32 s62, s62, s32")
    a("s_cmp_lg_u32 s62, 0")
    a(f"s_cbranch_scc1 {name}_nopub")
    a("s_or_b32 s62, s66, 1")
    a("v_mov_b32 v25, s62")
    a("v_mov_b32 v24, 0")
    a("buffer_store_dword v25, v24, s[28:31], 0 offen sc0 sc1")
    a(f"s_mov_b32 s62, {13 << 20}")
    a("buffer_store_dword v25, v24, s[20:23], s62 offen sc0 sc1")
    a.label(f"{name}_nopub")
    srd(a, 12, 4, 5, S * D * 2)
    a("s_cmp_ge_u32 s32, 6")
    a(f"s_cbranch_scc1 {name}_touch")
    a("s_cmp_ge_u32 s32, 4")
    a(f"s_cbranch_scc1 {name}_csw")
    a("s_lshl_b32 s33, s56, 4")
    a("s_lshl_b32 s34, s32, 2")
    a("s_add_u32 s33, s33, s34")
    a("s_lshl_b32 s34, s33, 10")
    for jj in range(4):
        a(f"buffer_load_dwordx4 v[{16 + 4 * jj}:{19 + 4 * jj}], v5, s[12:15], s34 offen offset:{256 * jj}")
    a("v_mov_b32 v9, 0")
    a.label(f"{name}_nl1")
    a("buffer_load_dword v15, v9, s[28:31], 0 offen sc1")
    a("s_waitcnt vmcnt(0)")
    a("v_readfirstlane_b32 s57, v15")
    a("s_cmp_lg_u32 s57, 0")
    a(f"s_cbranch_scc1 {name}_nd1")
    a("s_sleep 1")
    a("s_sub_u32 s69, s69, 1")
    a(f"s_cbranch_scc0 {name}_nl1")
    a("s_mov_b32 s69, 0")
    a.label(f"{name}_nd1")
    stamp(a, 2)
    X = 32
    for r in range(16):
        a(f"v_lshlrev_b32 v{X + 2 * r}, 16, v{16 + r}")
        a(f"v_and_b32 v{X + 2 * r + 1}, s53, v{16 + r}")
    a(f"v_add_f32 v8, v{X}, v{X + 1}")
    a(f"v_add_f32 v9, v{X + 2}, v{X + 3}")
    for r in range(4, 32, 2):
        a(f"v_add_f32 v8, v8, v{X + r}")
        a(f"v_add_f32 v9, v9, v{X + r + 1}")
    a("v_add_f32 v8, v8, v9")

    def red16(v):
        for pat in ("quad_perm:[1,0,3,2]", "quad_perm:[2,3,0,1]", "row_half_mirror", "row_mirror"):
            a("s_nop 1")
            a(f"v_add_f32_dpp v{v}, v{v}, v{v} {pat} {DPP}")

    red16(8)
    a("v_mul_f32 v8, 0x3b000000, v8")
    a("v_mov_b32 v10, 0")
    a("v_mov_b32 v11, 0")
    for r in range(0, 32, 2):
        a(f"v_sub_f32 v{X + r}, v{X + r}, v8")
        a(f"v_sub_f32 v{X + r + 1}, v{X + r + 1}, v8")
        a(f"v_fmac_f32 v10, v{X + r}, v{X + r}")
        a(f"v_fmac_f32 v11, v{X + r + 1}, v{X + r + 1}")
    a("v_add_f32 v10, v10, v11")
    red16(10)
    a("v_mul_f32 v10, 0x3b000000, v10")
    a("v_cvt_pk_bf16_f32 v12, v8, v8")
    a("v_lshlrev_b32 v12, 16, v12")
    a("v_cvt_pk_bf16_f32 v10, v10, v10")
    a("v_lshlrev_b32 v10, 16, v10")
    a("v_add_f32 v10, 0x3727c5ac, v10")
    a("v_cvt_pk_bf16_f32 v10, v10, v10")
    a("v_lshlrev_b32 v10, 16, v10")
    a("v_sqrt_f32 v10, v10")
    a("s_nop 0")
    a("v_cvt_pk_bf16_f32 v10, v10, v10")
    a("v_and_b32 v10, 0xffff, v10")
    a("v_or_b32 v12, v12, v10")
    a("v_mov_b32 v13, v15")
    a("v_lshlrev_b32 v14, 3, v3")
    a("s_lshl_b32 s36, s33, 3")
    a(f"s_add_u32 s36, s36, {WS_STATS}")
    a("v_cmp_eq_u32 vcc, 0, v4")
    a("s_and_saveexec_b64 s[54:55], vcc")
    a("buffer_store_dwordx2 v[12:13], v14, s[20:23], s36 offen sc0 sc1")
    a("s_mov_b64 exec, s[54:55]")
    a(f"s_branch {name}_auxj")
    a.label(f"{name}_csw")
    a("s_lshl_b32 s33, s56, 3")
    a("s_sub_u32 s34, s32, 4")
    a("s_lshl_b32 s34, s34, 2")
    a("s_add_u32 s33, s33, s34")
    a("s_cmp_ge_u32 s33, 512")
    a("s_cselect_b32 s58, s10, s8")
    a("s_cselect_b32 s59, s11, s9")
    srd(a, 16, 58, 59, D * D * 2)
    a("s_and_b32 s34, s33, 511")
    a("s_lshl_b32 s34, s34, 10")
    for jj in range(4):
        a(f"buffer_load_dwordx4 v[{16 + 4 * jj}:{19 + 4 * jj}], v5, s[16:19], s34 offen offset:{256 * jj}")
    a("v_mov_b32 v8, 0")
    a("v_mov_b32 v9, 0")
    a.label(f"{name}_nl2")
    a("buffer_load_dword v15, v9, s[28:31], 0 offen sc1")
    a("s_waitcnt vmcnt(0)")
    a("v_readfirstlane_b32 s57, v15")
    a("s_cmp_lg_u32 s57, 0")
    a(f"s_cbranch_scc1 {name}_nd2")
    a("s_sleep 1")
    a("s_sub_u32 s69, s69, 1")
    a(f"s_cbranch_scc0 {name}_nl2")
    a("s_mov_b32 s69, 0")
    a.label(f"{name}_nd2")
    for r in range(16):
        a(f"v_lshlrev_b32 v{32 + 2 * (r & 3)}, 16, v{16 + r}")
        a(f"v_and_b32 v{33 + 2 * (r & 3)}, s53, v{16 + r}")
        a(f"v_add_f32 v8, v8, v{32 + 2 * (r & 3)}")
        a(f"v_add_f32 v9, v9, v{33 + 2 * (r & 3)}")
    a("v_add_f32 v8, v8, v9")
    red16(8)
    a("v_lshlrev_b32 v14, 3, v3")
    a("v_mov_b32 v9, v15")
    a("s_lshl_b32 s36, s33, 3")
    a(f"s_add_u32 s36, s36, {WS_CS}")
    a("v_cmp_eq_u32 vcc, 0, v4")
    a("s_and_saveexec_b64 s[54:55], vcc")
    a("buffer_store_dwordx2 v[8:9], v14, s[20:23], s36 offen sc0 sc1")
    a("s_mov_b64 exec, s[54:55]")
    a(f"s_branch {name}_auxj")
    a.label(f"{name}_touch")
    if cpre:
        a("s_cmp_lg_u32 s32, 6")
        a(f"s_cbranch_scc1 {name}_nocp")
        a("s_getpc_b64 s[60:61]")
        a.label(f"{name}_pc")
        a(f"s_sub_u32 s60, s60, {name}_pc-{name}")
        a("s_subb_u32 s61, s61, 0")
        a("s_lshl_b32 s62, s50, 13")
        a("v_add_u32 v16, s62, v6")
        a(f"v_min_u32 v16, code_end-{name}-4, v16")
        a("global_load_dword v207, v16, s[60:61]")
        a.label(f"{name}_nocp")
    a("s_cmp_eq_u32 s51, 1")
    a("s_cselect_b32 s58, s10, s8")
    a("s_cselect_b32 s59, s11, s9")
    srd(a, 16, 58, 59, D * D * 2)
    a("s_lshl_b32 s36, s27, 20")
    a("s_lshl_b32 s37, s26, 19")
    a("s_add_u32 s36, s36, s37")
    a("s_lshl_b32 s37, s50, 1")
    a("s_add_u32 s37, s37, s32")
    a("s_sub_u32 s37, s37, 6")
    a("s_lshl_b32 s37, s37, 14")
    a("s_add_u32 s36, s36, s37")
    a("buffer_load_dword v202, v6, s[12:15], s36 offen")
    a("buffer_load_dword v203, v6, s[16:19], s37 offen")
    a("s_add_u32 s36, s36, 8192")
    a("s_add_u32 s37, s37, 8192")
    a("buffer_load_dword v204, v6, s[12:15], s36 offen")
    a("buffer_load_dword v205, v6, s[16:19], s37 offen")
    if tlb:
        a("s_load_dwordx8 s[64:71], s[0:1], 48")
        a("s_load_dwordx2 s[58:59], s[0:1], 80")
        a("v_lshlrev_b32 v16, 14, v2")
        a("v_lshlrev_b32 v17, 11, v2")
        a("s_lshl_b32 s36, s50, 20")
        a("s_lshl_b32 s37, s50, 17")
        a("s_waitcnt lgkmcnt(0)")
        a("s_cmp_eq_u32 s32, 6")
        a(f"s_cbranch_scc0 {name}_tl7")
        srd(a, 16, 46, 47, 16 << 20)
        a("buffer_load_dword v202, v16, s[16:19], s36 offen")
        srd(a, 16, 58, 59, S * D * 2)
        a("buffer_load_dword v203, v17, s[16:19], s37 offen")
        a(f"s_branch {name}_auxj")
        a.label(f"{name}_tl7")
        for k, (lo, hi) in enumerate(((66, 67), (68, 69), (70, 71))):
            srd(a, 16, lo, hi, D * F * 2)
            a(f"buffer_load_dword v{18 + k}, v17, s[16:19], s37 offen")
        srd(a, 16, 64, 65, D * 2)
        a("buffer_load_dword v205, v17, s[16:19], 0 offen")
    a.label(f"{name}_auxj")
    a("s_cmp_eq_u32 s51, 1")
    a("s_cselect_b32 s40, s42, s40")
    a("s_cselect_b32 s41, s43, s41")
    srd(a, 24, 40, 41, S * S * 2)
    if pf and early:
        a("s_cmp_lt_u32 s32, 6")
        a(f"s_cbranch_scc1 {name}_noearly")
        if pfq < 4:
            a(f"v_cmp_gt_u32 vcc, {4 * pfq}, v4")
            a("s_and_saveexec_b64 s[54:55], vcc")
        a("buffer_load_dword v202, v7, s[24:27], s48 offen")
        a("buffer_load_dword v203, v7, s[24:27], s49 offen")
        if early >= 2:
            a("s_sub_u32 s48, s48, 65536")
            a("s_sub_u32 s49, s49, 65536")
            a("buffer_load_dword v204, v7, s[24:27], s48 offen")
            a("buffer_load_dword v205, v7, s[24:27], s49 offen")
        if pfq < 4:
            a("s_mov_b64 exec, s[54:55]")
        a.label(f"{name}_noearly")
    a("s_barrier")
    stamp(a, 3)
    if pf and early:
        a(f"s_cmp_ge_u32 s32, {6 if early == 1 else 4}")
        a(f"s_cbranch_scc1 {name}_pfskip")
    if pf:
        if pfq < 4:
            a(f"v_cmp_gt_u32 vcc, {4 * pfq}, v4")
            a("s_and_saveexec_b64 s[54:55], vcc")
        if pace == 3:
            a("v_lshrrev_b32 v16, 3, v2")
            a("v_lshlrev_b32 v16, 12, v16")
            a("v_and_b32 v17, 7, v2")
            a("v_lshl_add_u32 v16, v17, 7, v16")
            a(f"buffer_load_dword v204, v16, s[24:27], s48 offen{PPOL}")
            a("s_waitcnt vmcnt(0)")
            a(f"buffer_load_dword v205, v16, s[24:27], s48 offen offset:1024{PPOL}")
        else:
            a(f"buffer_load_dword v204, v7, s[24:27], s48 offen{PPOL}")
            if pace == 2:
                a("s_waitcnt vmcnt(0)")
            a(f"buffer_load_dword v205, v7, s[24:27], s49 offen{PPOL}")
        if pfq < 4:
            a("s_mov_b64 exec, s[54:55]")
    a.label(f"{name}_pfskip")
    if wk1:
        a("s_cmp_ge_u32 s32, 6")
        a(f"s_cbranch_scc1 {name}_fina")
        a("s_lshr_b32 s58, s32, 1")
        a("s_lshl_b32 s58, s58, 3")
        a("s_add_u32 s58, s58, 56")
        a("s_load_dwordx2 s[60:61], s[0:1], s58")
        a("s_mul_i32 s62, s56, 14336")
        a("s_and_b32 s63, s32, 1")
        a("s_mul_i32 s63, s63, 7168")
        a("s_add_u32 s62, s62, s63")
        a("s_add_u32 s63, s62, 7168")
        a("s_waitcnt lgkmcnt(0)")
        a("s_mov_b32 s16, s60")
        a("s_and_b32 s17, s61, 0xffff")
        a("s_mov_b32 s18, s63")
        a("s_mov_b32 s19, 0x00020000")
        a("buffer_load_dword v206, v6, s[16:19], s62 offen" + (" nt" if wk1 == 2 else ""))
    a.label(f"{name}_fina")
    if fuse2:
        a("s_xor_b32 s32, s32, 4")
    a.label(f"{name}_fin")
    stamp_flush(a, 1, 6, 46, 47)
    if fuse2:
        fuse2(a, name + "g")
        a.label(f"{name}_done")
        a("s_endpgm")
        return kernel_desc(name, 208, 72, 208)
    a.label(f"{name}_done")
    a("s_endpgm")
    return kernel_desc(name, 208, 72, 208)


def gen_k1g(a, name, wt=1, PRO=3, U1=11, UC=14, wk=1, cpf=1, SPOS=0, NPOS=1):
    NSTG, SLOT, NST = 6, 24576, 8
    kernel_begin(a, name)
    a("s_cmp_ge_u32 s2, 256")
    a(f"s_cbranch_scc1 {name}_done")
    stamp(a, 0)
    a("s_load_dwordx2 s[4:5], s[0:1], 0")
    a("s_load_dwordx4 s[8:11], s[0:1], 24")
    a("s_load_dwordx4 s[44:47], s[0:1], 88")
    a("s_load_dwordx4 s[40:43], s[0:1], 8")
    a("s_load_dwordx4 s[56:59], s[0:1], 56")
    a("s_load_dwordx2 s[60:61], s[0:1], 72")
    a("s_memrealtime s[66:67]")
    a("s_and_b32 s3, s2, 7")
    a("s_lshr_b32 s48, s2, 3")
    a("s_and_b32 s49, s3, 1")
    a("s_bfe_u32 s50, s3, 0x10001")
    a("s_lshr_b32 s51, s3, 2")
    a("s_lshl_b32 s30, s50, 3")
    a("s_lshl_b32 s34, s51, 2")
    a("s_add_u32 s30, s30, s34")
    a("s_and_b32 s34, s48, 3")
    a("s_add_u32 s30, s30, s34")
    a("s_lshr_b32 s31, s48, 2")
    a("v_lshrrev_b32 v1, 6, v0")
    a("v_and_b32 v2, 63, v0")
    a("s_nop 0")
    a("v_readfirstlane_b32 s32, v1")
    a("s_mov_b32 s53, 0xffff0000")
    a("s_mov_b32 s69, 0x40000")
    a("s_xor_b32 s32, s32, 4")
    a("s_cmp_lt_u32 s32, 4")
    a(f"s_cbranch_scc1 {name}_cons")
    a("s_sub_u32 s33, s32, 4")
    a("v_lshrrev_b32 v3, 3, v2")
    a("v_and_b32 v4, 7, v2")
    a("v_bfe_u32 v5, v2, 4, 1")
    a("v_xor_b32 v4, v4, v5")
    a("v_lshlrev_b32 v3, 10, v3")
    for i in range(4):
        g0g1 = (i & 1) ^ (i >> 1)
        a(f"v_xor_b32 v{8 + i}, {(2 * i) ^ g0g1}, v4")
        a(f"v_lshl_add_u32 v{8 + i}, v{8 + i}, 4, v3")
        if i:
            a(f"v_add_u32 v{8 + i}, {i * (8192 - 1024)}, v{8 + i}")
    a("s_bitcmp1_b32 s33, 0")
    a("s_cselect_b32 s34, 5, 0")
    a("s_cselect_b32 s35, 6, 3")
    a("v_xor_b32 v12, s34, v4")
    a("v_lshl_add_u32 v12, v12, 4, v3")
    a("v_xor_b32 v13, s35, v4")
    a("v_lshl_add_u32 v13, v13, 4, v3")
    a(f"v_add_u32 v13, {8192 - 1024}, v13")
    a("s_lshl_b32 s34, s33, 5")
    a("s_lshl_b32 s35, s30, 7")
    a("s_add_u32 s35, s35, s34")
    a("s_lshl_b32 s35, s35, 10")
    a("s_lshl_b32 s36, s31, 6")
    a("s_lshl_b32 s34, s33, 4")
    a("s_add_u32 s36, s36, s34")
    a("s_lshl_b32 s36, s36, 10")
    a("s_lshl_b32 s37, s33, 12")
    a("s_lshl_b32 s38, s33, 11")
    a("s_add_u32 s38, s38, 16384")
    a("v_lshrrev_b32 v14, 4, v2")
    a("v_and_b32 v15, 15, v2")
    a("v_lshlrev_b32 v6, 10, v14")
    a("v_lshl_add_u32 v6, v15, 4, v6")
    a("v_mov_b32 v7, 0")
    a("s_lshl_b32 s52, s2, 3")
    a("s_lshl_b32 s34, s33, 2")
    a("s_add_u32 s52, s52, s34")
    a("s_lshl_b32 s54, s2, 2")
    a("s_waitcnt lgkmcnt(0)")
    stamp(a, 1)
    srd(a, 24, 44, 45, 256)
    srd(a, 20, 46, 47, 14 << 20)
    a("s_or_b32 s62, s2, s33")
    a("s_cmp_lg_u32 s62, 0")
    a(f"s_cbranch_scc1 {name}_nopub")
    a("s_or_b32 s62, s66, 1")
    a("v_mov_b32 v25, s62")
    a("buffer_store_dword v25, v7, s[24:27], 0 offen sc0 sc1")
    a(f"s_mov_b32 s62, {13 << 20}")
    a("buffer_store_dword v25, v7, s[20:23], s62 offen sc0 sc1")
    a.label(f"{name}_nopub")
    srd(a, 12, 4, 5, S * D * 2)
    a("s_cmp_ge_u32 s54, 512")
    a("s_cselect_b32 s62, s10, s8")
    a("s_cselect_b32 s63, s11, s9")
    a("s_and_b32 s55, s54, 511")
    a("s_cmp_lt_u32 s33, 2")
    a("s_cselect_b32 s62, s4, s62")
    a("s_cselect_b32 s63, s5, s63")
    a("s_cselect_b32 s55, s52, s55")
    a(f"s_mov_b32 s65, {D * D * 2}")
    a(f"s_cselect_b32 s64, {S * D * 2}, s65")
    a("s_cmp_eq_u32 s33, 3")
    a("s_cselect_b32 s64, 0, s64")
    a("s_lshl_b32 s55, s55, 10")
    a("s_mov_b32 s16, s62")
    a("s_and_b32 s17, s63, 0xffff")
    a("s_mov_b32 s18, s64")
    a("s_mov_b32 s19, 0x00020000")
    for jj in range(4):
        a(f"buffer_load_dwordx4 v[{16 + 4 * jj}:{19 + 4 * jj}], v6, s[16:19], s55 offen offset:{256 * jj}")
    a("s_cmp_eq_u32 s49, 1")
    a("s_cselect_b32 s8, s10, s8")
    a("s_cselect_b32 s9, s11, s9")
    srd(a, 16, 8, 9, D * D * 2)

    def load_stage(kk):
        slot = (kk % NSTG) * SLOT
        a(f"s_add_u32 m0, s37, {slot}")
        a(f"s_add_u32 s39, s35, {kk * 128}")
        for i in range(4):
            a(f"buffer_load_dwordx4 v{8 + i}, s[12:15], s39 offen offset:{i * 1024} lds")
        a(f"s_add_u32 m0, s38, {slot}")
        a(f"s_add_u32 s39, s36, {kk * 128}")
        for i in range(2):
            a(f"buffer_load_dwordx4 v{12 + i}, s[16:19], s39 offen offset:{i * 1024} lds")

    def red16(v):
        for pat in ("quad_perm:[1,0,3,2]", "quad_perm:[2,3,0,1]", "row_half_mirror", "row_mirror"):
            a("s_nop 1")
            a(f"v_add_f32_dpp v{v}, v{v}, v{v} {pat} {DPP}")

    def stats_block():
        X = 64
        for r in range(16):
            a(f"v_lshlrev_b32 v{X + 2 * r}, 16, v{16 + r}")
            a(f"v_and_b32 v{X + 2 * r + 1}, s53, v{16 + r}")
        a(f"v_add_f32 v34, v{X}, v{X + 1}")
        a(f"v_add_f32 v35, v{X + 2}, v{X + 3}")
        for r in range(4, 32, 2):
            a(f"v_add_f32 v34, v34, v{X + r}")
            a(f"v_add_f32 v35, v35, v{X + r + 1}")
        a("v_add_f32 v34, v34, v35")
        red16(34)
        a("v_mul_f32 v36, 0x3b000000, v34")
        a("v_mov_b32 v37, 0")
        a("v_mov_b32 v38, 0")
        for r in range(0, 32, 2):
            a(f"v_sub_f32 v{X + r}, v{X + r}, v36")
            a(f"v_sub_f32 v{X + r + 1}, v{X + r + 1}, v36")
            a(f"v_fmac_f32 v37, v{X + r}, v{X + r}")
            a(f"v_fmac_f32 v38, v{X + r + 1}, v{X + r + 1}")
        a("v_add_f32 v37, v37, v38")
        red16(37)
        a("v_mul_f32 v37, 0x3b000000, v37")
        a("v_cvt_pk_bf16_f32 v40, v36, v36")
        a("v_lshlrev_b32 v40, 16, v40")
        a("v_cvt_pk_bf16_f32 v37, v37, v37")
        a("v_lshlrev_b32 v37, 16, v37")
        a("v_add_f32 v37, 0x3727c5ac, v37")
        a("v_cvt_pk_bf16_f32 v37, v37, v37")
        a("v_lshlrev_b32 v37, 16, v37")
        a("v_sqrt_f32 v37, v37")
        a("s_nop 0")
        a("v_cvt_pk_bf16_f32 v37, v37, v37")
        a("v_and_b32 v37, 0xffff, v37")
        a("v_or_b32 v40, v40, v37")
        a("s_cmp_eq_u32 s33, 2")
        a("s_cselect_b64 s[62:63], -1, 0")
        a("v_cndmask_b32 v40, v40, v34, s[62:63]")
        a("s_lshl_b32 s64, s52, 3")
        a(f"s_add_u32 s64, s64, {WS_STATS}")
        a("s_lshl_b32 s65, s54, 3")
        a(f"s_add_u32 s65, s65, {WS_CS}")
        a("s_cmp_eq_u32 s33, 2")
        a("s_cselect_b32 s64, s65, s64")
        a("s_add_u32 s65, s65, 8192")
        a("s_cmp_eq_u32 s33, 3")
        a("s_cselect_b32 s64, s65, s64")
        a("v_lshlrev_b32 v42, 3, v14")

    vq = ["s"] * 4
    for kk in range(PRO):
        load_stage(kk)
        vq += [kk] * 6
        if kk == NPOS:
            a("buffer_load_dword v33, v7, s[24:27], 0 offen sc1")
            vq.append("n")
    stamp(a, 2)
    issued = PRO

    def wait_tag(tag):
        nonlocal vq
        if tag in vq:
            idx = max(k for k, t in enumerate(vq) if t == tag)
            a(f"s_waitcnt vmcnt({len(vq) - 1 - idx})")
            vq = vq[idx + 1:]

    for kk in range(NST):
        wait_tag(kk)
        a("s_barrier")
        n_new = 0
        while issued < NST and issued - NSTG < kk and n_new < 2:
            load_stage(issued)
            vq += [issued] * 6
            issued += 1
            n_new += 1
        if kk == SPOS:
            stats_block()
        if kk == SPOS:
            wait_tag("n")
            a("v_readfirstlane_b32 s65, v33")
            a("s_cmp_lg_u32 s65, 0")
            a(f"s_cbranch_scc1 {name}_nok")
            a.label(f"{name}_nl")
            a("buffer_load_dword v33, v7, s[24:27], 0 offen sc1")
            a("s_waitcnt vmcnt(0)")
            a("v_readfirstlane_b32 s65, v33")
            a("s_cmp_lg_u32 s65, 0")
            a(f"s_cbranch_scc1 {name}_nok")
            a("s_sub_u32 s69, s69, 1")
            a(f"s_cbranch_scc0 {name}_nl")
            a("s_mov_b32 s69, 0")
            a.label(f"{name}_nok")
            a("v_mov_b32 v41, v33")
            a("v_cmp_eq_u32 vcc, 0, v15")
            a("s_and_saveexec_b64 s[62:63], vcc")
            a("buffer_store_dwordx2 v[40:41], v42, s[20:23], s64 offen sc0 sc1")
            a("s_mov_b64 exec, s[62:63]")
            vq.append("st")
        if issued == NST and kk == 2:
            if wk:
                emit_wtouch(a, "s33", 44, 45)
            if cpf:
                a("s_cmp_eq_u32 s49, 1")
                a("s_cselect_b32 s40, s42, s40")
                a("s_cselect_b32 s41, s43, s41")
                srd(a, 24, 40, 41, S * S * 2)
                a("s_lshl_b32 s62, s51, 10")
                a("s_lshl_b32 s63, s48, 5")
                a("s_add_u32 s62, s62, s63")
                a("s_lshl_b32 s63, s33, 3")
                a("s_add_u32 s62, s62, s63")
                a("s_lshl_b32 s62, s62, 12")
                a("s_lshl_b32 s63, s50, 11")
                a("s_add_u32 s62, s62, s63")
                a("v_lshrrev_b32 v46, 3, v2")
                a("v_lshlrev_b32 v46, 12, v46")
                a("v_and_b32 v47, 7, v2")
                a("v_lshl_add_u32 v46, v47, 7, v46")
                a("buffer_load_dword v48, v46, s[24:27], s62 offen")
                if cpf >= 2:
                    a("buffer_load_dword v49, v46, s[24:27], s62 offen offset:1024")
            vq += ["t"] * ((1 if wk else 0) + (0 if not cpf else (1 if cpf == 1 else 2)))
    stamp(a, 3)
    a(f"s_branch {name}_fin")
    a.label(f"{name}_cons")
    a("s_and_b32 s33, s32, 1")
    a("s_lshr_b32 s34, s32, 1")
    a("v_and_b32 v4, 15, v2")
    a("v_lshrrev_b32 v6, 4, v2")
    a("v_lshrrev_b32 v5, 2, v4")
    a("v_and_b32 v7, 3, v4")
    a("v_lshl_add_u32 v7, v5, 3, v7")
    a("v_lshrrev_b32 v20, 1, v4")
    a("v_lshrrev_b32 v21, 2, v4")
    a("v_lshrrev_b32 v22, 3, v4")
    a("v_xor_b32 v21, v21, v22")
    a("v_and_b32 v21, 1, v21")
    a("v_xor_b32 v20, v20, v21")
    a("v_xor_b32 v20, v20, v6")
    a("v_lshlrev_b32 v20, 4, v20")
    a("v_lshl_add_u32 v20, v7, 7, v20")
    a("s_lshl_b32 s35, s33, 13")
    a("s_lshl_b32 s36, s34, 12")
    a("s_add_u32 s36, s36, 16384")
    for g2 in range(3):
        a(f"v_add_u32 v{8 + 4 * g2}, s35, v20")
        a(f"v_xor_b32 v{9 + 4 * g2}, 64, v{8 + 4 * g2}")
        a(f"v_add_u32 v{10 + 4 * g2}, s36, v20")
        a(f"v_xor_b32 v{11 + 4 * g2}, 64, v{10 + 4 * g2}")
        if g2:
            for r in range(4):
                a(f"v_add_u32 v{8 + 4 * g2 + r}, {2 * SLOT * g2}, v{8 + 4 * g2 + r}")
    ACC = 32
    FB = 64
    ST = 112
    CSR = 144
    for i in range(32):
        a(f"v_mov_b32 v{ACC + i}, 0")
    a("s_lshl_b32 s38, s30, 7")
    a("s_lshl_b32 s39, s33, 6")
    a("s_add_u32 s38, s38, s39")
    a("s_lshl_b32 s38, s38, 3")
    a(f"s_add_u32 s38, s38, {WS_STATS}")
    a("v_lshlrev_b32 v23, 6, v6")
    a("v_mov_b32 v24, 0")
    a("s_lshl_b32 s39, s49, 9")
    a("s_lshl_b32 s65, s31, 6")
    a("s_add_u32 s39, s39, s65")
    a("s_lshl_b32 s65, s34, 5")
    a("s_add_u32 s39, s39, s65")
    a("s_lshl_b32 s39, s39, 3")
    a(f"s_add_u32 s52, s39, {WS_CS}")
    a("v_lshlrev_b32 v21, 3, v7")
    a("s_lshl_b32 s35, s49, 5")
    a("s_lshl_b32 s36, s31, 2")
    a("s_add_u32 s35, s35, s36")
    a("s_lshl_b32 s36, s34, 1")
    a("s_add_u32 s35, s35, s36")
    a("s_lshl_b32 s35, s35, 6")
    a("s_lshl_b32 s36, s30, 2")
    a("s_add_u32 s35, s35, s36")
    a("s_lshl_b32 s36, s33, 1")
    a("s_add_u32 s35, s35, s36")
    a("s_lshl_b32 s54, s35, 10")
    a("s_add_u32 s55, s54, 65536")
    a("v_lshlrev_b32 v22, 4, v2")
    a("s_waitcnt lgkmcnt(0)")
    stamp(a, 1)
    srd(a, 20, 46, 47, 14 << 20)
    srd(a, 24, 44, 45, 256)
    NU = NST * 2

    def read_list(u):
        s, ks = u // 2, u % 2
        slot = s % NSTG
        g2, so = slot // 2, (slot % 2) * SLOT
        f = FB + 24 * (u % 2)
        L = []
        for i in range(2):
            L.append(f"ds_read_b128 v[{f + 16 + 4 * i}:{f + 19 + 4 * i}], v{10 + 4 * g2 + ks} offset:{so + i * 512}")
        for i in range(4):
            off = so + (i >> 1) * 4096 + (i & 1) * 512
            L.append(f"ds_read_b128 v[{f + 4 * i}:{f + 3 + 4 * i}], v{8 + 4 * g2 + ks} offset:{off}")
        return L

    def stats_loads():
        for blk in range(2):
            for q4 in range(4):
                r = ST + 16 * blk + 4 * q4
                a(f"buffer_load_dwordx4 v[{r}:{r + 3}], v23, s[20:23], s38 offen offset:{256 * blk + 16 * q4} sc1")
        for T in range(2):
            a(f"buffer_load_dwordx2 v[{CSR + 2 * T}:{CSR + 1 + 2 * T}], v21, s[20:23], s52 offen offset:{T * 32} sc1")
        a("buffer_load_dword v25, v24, s[24:27], 0 offen sc1")

    def check_ops():
        L = [f"v_xor_b32 v26, v25, v{ST + 1}"]
        for r in range(1, 16):
            L.append(f"v_xor_b32 v27, v25, v{ST + 2 * r + 1}")
            L.append("v_or_b32 v26, v26, v27")
        for T in range(2):
            L.append(f"v_xor_b32 v27, v25, v{CSR + 1 + 2 * T}")
            L.append("v_or_b32 v26, v26, v27")
        for r in range(16):
            L.append(f"v_lshlrev_b32 v{ST + 2 * r + 1}, 16, v{ST + 2 * r}")
            L.append(f"v_rcp_f32 v{ST + 2 * r + 1}, v{ST + 2 * r + 1}")
            L.append(f"v_and_b32 v{ST + 2 * r}, s53, v{ST + 2 * r}")
        return L

    a("s_barrier")
    stamp(a, 2)
    for r in read_list(0):
        a(r)
    for u in range(NU):
        a("s_waitcnt lgkmcnt(0)")
        f = FB + 24 * (u % 2)
        nxt = read_list(u + 1) if u + 1 < NU else []
        n = 0
        for xi in range(4):
            for T in range(2):
                acc = ACC + (xi * 2 + T) * 4
                a(f"v_mfma_f32_16x16x32_bf16 v[{acc}:{acc + 3}], v[{f + 4 * xi}:{f + 3 + 4 * xi}], v[{f + 16 + 4 * T}:{f + 19 + 4 * T}], v[{acc}:{acc + 3}]")
                n += 1
                if n == 1 and nxt and (u + 1) % 2 == 0:
                    a("s_barrier")
                if nxt:
                    a(nxt.pop(0))
                if u == U1 and n == 7:
                    stats_loads()
    stamp(a, 3)
    a.label(f"{name}_chk")
    a("s_waitcnt vmcnt(0)")
    for op in check_ops():
        a(op)
    a("v_cmp_eq_u32 vcc, 0, v25")
    a("v_cmp_ne_u32 s[62:63], 0, v26")
    a("s_or_b64 s[62:63], s[62:63], vcc")
    a(f"s_cbranch_scc0 {name}_have")
    a("s_sleep 2")
    stats_loads()
    a("s_sub_u32 s69, s69, 1")
    a(f"s_cbranch_scc0 {name}_chk")
    a("s_mov_b32 s69, 0")
    a.label(f"{name}_have")
    stamp(a, 4)
    for blk in range(2):
        for T in range(2):
            o = 64 + 4 * (blk * 2 + T)
            for hb in range(2):
                acc = ACC + ((blk * 2 + hb) * 2 + T) * 4
                for j in range(4):
                    sr = ST + 16 * blk + 2 * (4 * hb + j)
                    a(f"v_fma_f32 v{acc + j}, -v{sr}, v{CSR + 2 * T}, v{acc + j}")
                    a(f"v_mul_f32 v{acc + j}, v{acc + j}, v{sr + 1}")
                a(f"v_cvt_pk_bf16_f32 v{o + 2 * hb}, v{acc}, v{acc + 1}")
                a(f"v_cvt_pk_bf16_f32 v{o + 2 * hb + 1}, v{acc + 2}, v{acc + 3}")
            a(f"buffer_store_dwordx4 v[{o}:{o + 3}], v22, s[20:23], s{54 + T} offen offset:{blk * 1024}" + (" sc0 sc1" if wt else ""))
    stamp(a, 5)
    a.label(f"{name}_fin")
    stamp_flush(a, 1, 6, 46, 47)
    a.label(f"{name}_done")
    a("s_endpgm")
    return kernel_desc(name, 152, 72, 152)


def gen_k3(a, name):
    kernel_begin(a, name)
    a("s_cmp_ge_u32 s2, 256")
    a(f"s_cbranch_scc1 {name}_done")
    stamp(a, 0)
    a("s_load_dwordx2 s[4:5], s[0:1], 0")
    a("s_load_dwordx2 s[6:7], s[0:1], 48")
    a("s_load_dwordx2 s[8:9], s[0:1], 80")
    a("s_load_dwordx2 s[10:11], s[0:1], 96")
    a("v_lshrrev_b32 v1, 6, v0")
    a("v_and_b32 v2, 63, v0")
    a("s_nop 0")
    a("v_readfirstlane_b32 s32, v1")
    a("v_lshlrev_b32 v3, 4, v2")
    a("s_waitcnt lgkmcnt(0)")
    stamp(a, 1)
    srd(a, 12, 4, 5, S * D * 2)
    srd(a, 16, 6, 7, D * 2)
    srd(a, 20, 8, 9, S * D * 2)
    srd(a, 24, 10, 11, 14 << 20)
    a("s_lshl_b32 s33, s2, 3")
    a("s_lshl_b32 s34, s32, 1")
    a("s_add_u32 s33, s33, s34")
    a("s_lshl_b32 s34, s33, 10")
    a(f"s_add_u32 s35, s34, {WS_P}")
    a(f"s_add_u32 s36, s34, {WS_P + (4 << 20)}")
    a(f"s_add_u32 s43, s34, {WS_P + (2 << 20)}")
    a(f"s_add_u32 s44, s34, {WS_P + (6 << 20)}")
    for R in range(2):
        B = 16 + 64 * R
        a(f"buffer_load_dwordx4 v[{B}:{B + 3}], v3, s[24:27], s35 offen offset:{1024 * R}")
        a(f"buffer_load_dwordx4 v[{B + 12}:{B + 15}], v3, s[24:27], s43 offen offset:{1024 * R}")
        a(f"buffer_load_dwordx4 v[{B + 4}:{B + 7}], v3, s[24:27], s36 offen offset:{1024 * R}")
        a(f"buffer_load_dwordx4 v[{B + 56}:{B + 59}], v3, s[24:27], s44 offen offset:{1024 * R}")
        a(f"buffer_load_dwordx4 v[{B + 8}:{B + 11}], v3, s[12:15], s34 offen offset:{1024 * R}")
    a("buffer_load_dwordx4 v[8:11], v3, s[16:19], 0 offen")
    a("s_mov_b32 s53, 0xffff0000")
    a("s_waitcnt vmcnt(1)")
    stamp(a, 2)

    def unpack(dst, src):
        a(f"v_lshlrev_b32 v{dst}, 16, v{src}")
        a(f"v_and_b32 v{dst + 1}, s53, v{src}")

    for R in range(2):
        B = 16 + 64 * R
        H, T = B + 16, B + 24
        for i in range(4):
            unpack(T, B + i)
            unpack(T + 2, B + 12 + i)
            unpack(T + 4, B + 4 + i)
            unpack(T + 6, B + 56 + i)
            a(f"v_add_f32 v{T}, v{T}, v{T + 2}")
            a(f"v_add_f32 v{T + 1}, v{T + 1}, v{T + 3}")
            a(f"v_add_f32 v{T + 4}, v{T + 4}, v{T + 6}")
            a(f"v_add_f32 v{T + 5}, v{T + 5}, v{T + 7}")
            a(f"v_cvt_pk_bf16_f32 v{T + 8}, v{T}, v{T + 1}")
            a(f"v_cvt_pk_bf16_f32 v{T + 9}, v{T + 4}, v{T + 5}")
            unpack(T, T + 8)
            unpack(T + 2, T + 9)
            a(f"v_sub_f32 v{T}, v{T}, v{T + 2}")
            a(f"v_sub_f32 v{T + 1}, v{T + 1}, v{T + 3}")
            a(f"v_cvt_pk_bf16_f32 v{T + 4}, v{T}, v{T + 1}")
            unpack(T, T + 4)
            unpack(T + 2, B + 8 + i)
            a(f"v_add_f32 v{T}, v{T + 2}, v{T}")
            a(f"v_add_f32 v{T + 1}, v{T + 3}, v{T + 1}")
            a(f"v_cvt_pk_bf16_f32 v{B + 40 + i}, v{T}, v{T + 1}")
            unpack(H + 2 * i, B + 40 + i)
        St = B + 48
        a(f"v_add_f32 v{St}, v{H}, v{H + 1}")
        for i in range(2, 8):
            a(f"v_add_f32 v{St}, v{St}, v{H + i}")
    for R in range(2):
        B = 16 + 64 * R
        wave_allreduce(a, "v_add_f32", B + 48, B + 49)
    for R in range(2):
        B = 16 + 64 * R
        H, T, St = B + 16, B + 24, B + 48
        a(f"v_mul_f32 v{St}, 0x3b000000, v{St}")
        a(f"v_cvt_pk_bf16_f32 v{St + 1}, v{St}, v{St}")
        a(f"v_lshlrev_b32 v{St + 1}, 16, v{St + 1}")
        for i in range(8):
            a(f"v_sub_f32 v{T + i}, v{H + i}, v{St}")
        a(f"v_mul_f32 v{St + 2}, v{T}, v{T}")
        for i in range(1, 8):
            a(f"v_fmac_f32 v{St + 2}, v{T + i}, v{T + i}")
    for R in range(2):
        B = 16 + 64 * R
        wave_allreduce(a, "v_add_f32", B + 50, B + 51)
    a("s_waitcnt vmcnt(0)")
    for R in range(2):
        B = 16 + 64 * R
        H, T, St = B + 16, B + 24, B + 48
        v = St + 2
        a(f"v_mul_f32 v{v}, 0x3b000000, v{v}")
        a(f"v_cvt_pk_bf16_f32 v{v}, v{v}, v{v}")
        a(f"v_lshlrev_b32 v{v}, 16, v{v}")
        a(f"v_add_f32 v{v}, 0x3727c5ac, v{v}")
        a(f"v_cvt_pk_bf16_f32 v{v}, v{v}, v{v}")
        a(f"v_lshlrev_b32 v{v}, 16, v{v}")
        a(f"v_sqrt_f32 v{v}, v{v}")
        a("s_nop 0")
        a(f"v_cvt_pk_bf16_f32 v{v}, v{v}, v{v}")
        a(f"v_lshlrev_b32 v{v}, 16, v{v}")
        a(f"v_rcp_f32 v{v}, v{v}")
        a("s_nop 0")
        a(f"v_mov_b32 v{St + 4}, 0")
        for i in range(4):
            a(f"v_sub_f32 v{T}, v{H + 2 * i}, v{St + 1}")
            a(f"v_sub_f32 v{T + 1}, v{H + 2 * i + 1}, v{St + 1}")
            a(f"v_cvt_pk_bf16_f32 v{T + 2}, v{T}, v{T + 1}")
            unpack(T, T + 2)
            a(f"v_mul_f32 v{T}, v{T}, v{v}")
            a(f"v_mul_f32 v{T + 1}, v{T + 1}, v{v}")
            a(f"v_cvt_pk_bf16_f32 v{B + 44 + i}, v{T}, v{T + 1}")
            unpack(T, B + 44 + i)
            a(f"v_add_f32 v{T}, v{H + 2 * i}, v{T}")
            a(f"v_add_f32 v{T + 1}, v{H + 2 * i + 1}, v{T + 1}")
            a(f"v_cvt_pk_bf16_f32 v{B + 4 + i}, v{T}, v{T + 1}")
            a(f"v_dot2_f32_bf16 v{St + 4}, v{B + 44 + i}, v{8 + i}, v{St + 4}")
        a(f"buffer_store_dwordx4 v[{B + 4}:{B + 7}], v3, s[20:23], s34 offen offset:{1024 * R}")
    a("s_nop 2")
    for R in range(2):
        B = 16 + 64 * R
        wave_allreduce(a, "v_add_f32", B + 52, B + 53)
    for R in range(2):
        B = 16 + 64 * R
        v = B + 52
        a(f"v_cvt_pk_bf16_f32 v{v}, v{v}, v{v}")
        a(f"v_lshlrev_b32 v{v}, 16, v{v}")
        a(f"v_ashrrev_i32 v{v + 1}, 31, v{v}")
        a(f"v_or_b32 v{v + 1}, 0x80000000, v{v + 1}")
        a(f"v_xor_b32 v{v}, v{v}, v{v + 1}")
        a(f"v_and_b32 v{v}, s53, v{v}")
        a(f"s_sub_u32 s37, {2047 - R}, s33")
        a(f"v_or_b32 v{v}, s37, v{v}")
    a("v_max_u32 v4, v68, v132")
    a("s_lshl_b32 s37, s32, 2")
    a("v_mov_b32 v5, s37")
    a("ds_write_b32 v5, v4")
    stamp(a, 3)
    a("s_waitcnt lgkmcnt(0)")
    a("s_barrier")
    a("v_mov_b32 v5, 0")
    a("ds_read_b128 v[12:15], v5")
    a("s_waitcnt lgkmcnt(0)")
    a("v_max_u32 v12, v12, v13")
    a("v_max_u32 v14, v14, v15")
    a("v_max_u32 v12, v12, v14")
    a("s_nop 0")
    a("v_readfirstlane_b32 s38, v12")
    a("v_readfirstlane_b32 s39, v68")
    a("v_readfirstlane_b32 s40, v132")
    a(f"s_lshl_b32 s41, s2, 11")
    a(f"s_add_u32 s41, s41, {WS_CROW}")
    a(f"s_lshl_b32 s42, s2, 2")
    a(f"s_add_u32 s42, s42, {WS_CAND}")
    a("v_mov_b32 v5, 0")
    for R in range(2):
        B = 16 + 64 * R
        a(f"s_cmp_lg_u32 s38, s{39 + R}")
        a(f"s_cbranch_scc1 {name}_nw{R}")
        a(f"buffer_store_dwordx4 v[{B + 40}:{B + 43}], v3, s[24:27], s41 offen")
        a(f"buffer_store_dwordx4 v[{B + 44}:{B + 47}], v3, s[24:27], s41 offen offset:1024")
        a(f"buffer_store_dword v12, v5, s[24:27], s42 offen")
        a.label(f"{name}_nw{R}")
    stamp_flush(a, 3, 4, 10, 11)
    a.label(f"{name}_done")
    a("s_endpgm")
    return kernel_desc(name, 144, 64, 144)


NSL = 56


def emit_winner(a, vkey, t, ldsaddr_tmp, s_out):
    wave_allreduce(a, "v_max_u32", vkey, t)
    a("s_lshl_b32 s37, s32, 2")
    a(f"v_mov_b32 v{ldsaddr_tmp}, s37")
    a(f"ds_write_b32 v{ldsaddr_tmp}, v{vkey}")
    a("s_waitcnt lgkmcnt(0)")
    a("s_barrier")
    a(f"v_mov_b32 v{ldsaddr_tmp}, 0")
    a(f"ds_read_b64 v[{t}:{t + 1}], v{ldsaddr_tmp}")
    a(f"ds_read_b64 v[{t + 2}:{t + 3}], v{ldsaddr_tmp} offset:8")
    a("s_waitcnt lgkmcnt(0)")
    a(f"v_max_u32 v{t}, v{t}, v{t + 1}")
    a(f"v_max_u32 v{t + 2}, v{t + 2}, v{t + 3}")
    a(f"v_max_u32 v{t}, v{t}, v{t + 2}")
    a("s_nop 0")
    a(f"v_readfirstlane_b32 s{s_out}, v{t}")


def gen_k4(a, name):
    kernel_begin(a, name)
    a(f"s_cmp_ge_u32 s2, {NSL}")
    a(f"s_cbranch_scc1 {name}_done")
    stamp(a, 0)
    a("s_load_dwordx4 s[4:7], s[0:1], 56")
    a("s_load_dwordx2 s[8:9], s[0:1], 72")
    a("s_load_dwordx2 s[10:11], s[0:1], 96")
    a("v_lshrrev_b32 v1, 6, v0")
    a("v_and_b32 v2, 63, v0")
    a("s_nop 0")
    a("v_readfirstlane_b32 s32, v1")
    a("v_lshrrev_b32 v3, 2, v0")
    a("v_and_b32 v4, 3, v0")
    a("v_lshlrev_b32 v5, 2, v0")
    a("s_mov_b32 s33, 28672")
    a("v_mul_lo_u32 v6, v3, s33")
    a("v_lshl_add_u32 v6, v4, 4, v6")
    a("v_lshlrev_b32 v7, 4, v2")
    a("s_waitcnt lgkmcnt(0)")
    stamp(a, 1)
    srd(a, 12, 4, 5, D * F * 2)
    srd(a, 16, 6, 7, D * F * 2)
    srd(a, 20, 8, 9, D * F * 2)
    srd(a, 24, 10, 11, 14 << 20)
    a(f"s_mov_b32 s34, {WS_CAND}")
    a("buffer_load_dword v8, v5, s[24:27], s34 offen")
    a("s_lshl_b32 s34, s2, 6")
    G, U, W = 32, 64, 96
    for j in range(8):
        a(f"s_add_u32 s35, s34, {3584 * j}")
        a(f"buffer_load_dwordx4 v[{G + 4 * j}:{G + 4 * j + 3}], v6, s[12:15], s35 offen")
        a(f"buffer_load_dwordx4 v[{U + 4 * j}:{U + 4 * j + 3}], v6, s[16:19], s35 offen")
    a("s_lshl_b32 s35, s2, 5")
    a("s_lshl_b32 s36, s32, 3")
    a("s_add_u32 s35, s35, s36")
    a("s_lshl_b32 s35, s35, 10")
    for j in range(8):
        a(f"s_add_u32 s36, s35, {1024 * j}")
        a(f"buffer_load_dwordx4 v[{W + 4 * j}:{W + 4 * j + 3}], v7, s[20:23], s36 offen")
    a("s_waitcnt vmcnt(24)")
    stamp(a, 2)
    emit_winner(a, 8, 12, 9, 38)
    stamp(a, 3)
    a("s_and_b32 s39, s38, 0xffff")
    a("s_sub_u32 s39, 2047, s39")
    a("s_lshr_b32 s39, s39, 3")
    a("s_lshl_b32 s39, s39, 11")
    a(f"s_add_u32 s39, s39, {WS_CROW + 1024}")
    a("v_lshlrev_b32 v9, 4, v3")
    a("v_add_u32 v9, s39, v9")
    a("buffer_load_dwordx4 v[12:15], v9, s[24:27], 0 offen")
    a("s_mov_b32 s53, 0xffff0000")
    A = 128
    for i in range(16):
        a(f"v_mov_b32 v{A + i}, 0")
    a("s_waitcnt vmcnt(0)")
    stamp(a, 4)
    X = 16
    for i in range(4):
        a(f"v_lshlrev_b32 v{X + 2 * i}, 16, v{12 + i}")
        a(f"v_and_b32 v{X + 2 * i + 1}, s53, v{12 + i}")
    for j in range(8):
        for (M, ao) in ((G, 0), (U, 8)):
            for i in range(4):
                t = 24 + 2 * (i & 1)
                a(f"v_lshlrev_b32 v{t}, 16, v{M + 4 * j + i}")
                a(f"v_and_b32 v{t + 1}, s53, v{M + 4 * j + i}")
                a(f"v_fmac_f32 v{A + ao + 2 * i}, v{X + j}, v{t}")
                a(f"v_fmac_f32 v{A + ao + 2 * i + 1}, v{X + j}, v{t + 1}")
    a("s_nop 1")
    for i in range(8):
        a(f"v_permlane32_swap_b32 v{A + i}, v{A + i + 8}")
    a("s_nop 1")
    for i in range(8):
        a(f"v_add_f32 v{A + i}, v{A + i}, v{A + i + 8}")
    a("s_nop 1")
    for i in range(4):
        a(f"v_permlane16_swap_b32 v{A + i}, v{A + i + 4}")
    a("s_nop 1")
    for i in range(4):
        a(f"v_add_f32 v{A + i}, v{A + i}, v{A + i + 4}")
    a("s_nop 1")
    for i in range(4):
        a(f"v_add_f32_dpp v{A + i}, v{A + i}, v{A + i} row_ror:4 {DPP}")
    a("s_nop 1")
    for i in range(4):
        a(f"v_add_f32_dpp v{A + i}, v{A + i}, v{A + i} row_ror:8 {DPP}")
    a("v_and_b32 v9, 3, v2")
    a("v_lshlrev_b32 v9, 5, v9")
    a("v_bfe_u32 v10, v2, 4, 1")
    a("v_lshl_add_u32 v9, v10, 4, v9")
    a("v_bfe_u32 v10, v2, 5, 1")
    a("v_lshl_add_u32 v9, v10, 7, v9")
    a("s_lshl_b32 s37, s32, 8")
    a("v_add_u32 v9, s37, v9")
    a(f"ds_write_b128 v9, v[{A}:{A + 3}] offset:64")
    a("s_waitcnt lgkmcnt(0)")
    a("s_barrier")
    stamp(a, 5)
    a("v_and_b32 v9, 31, v2")
    a("v_lshlrev_b32 v9, 2, v9")
    for w in range(4):
        a(f"ds_read_b32 v{16 + w}, v9 offset:{64 + 256 * w}")
        a(f"ds_read_b32 v{20 + w}, v9 offset:{64 + 256 * w + 128}")
    a("s_waitcnt lgkmcnt(0)")
    a("v_add_f32 v16, v16, v17")
    a("v_add_f32 v18, v18, v19")
    a("v_add_f32 v20, v20, v21")
    a("v_add_f32 v22, v22, v23")
    a("v_add_f32 v16, v16, v18")
    a("v_add_f32 v20, v20, v22")
    a("v_cvt_pk_bf16_f32 v16, v16, v20")
    a("v_and_b32 v20, s53, v16")
    a("v_lshlrev_b32 v16, 16, v16")
    a("v_mul_f32 v17, 0xbfb8aa3b, v16")
    a("v_exp_f32 v17, v17")
    a("s_nop 0")
    a("v_add_f32 v17, 1.0, v17")
    a("v_rcp_f32 v17, v17")
    a("s_nop 0")
    a("v_mul_f32 v16, v16, v17")
    a("v_cvt_pk_bf16_f32 v16, v16, v16")
    a("v_lshlrev_b32 v16, 16, v16")
    a("v_mul_f32 v16, v16, v20")
    a("v_cvt_pk_bf16_f32 v16, v16, v16")
    a("v_lshlrev_b32 v16, 16, v16")
    a("s_lshl_b32 s37, s32, 3")
    for j in range(8):
        a(f"s_add_u32 s36, s37, {j}")
        a("s_nop 0")
        a(f"v_readlane_b32 s{40 + j}, v16, s36")
    for i in range(8):
        a(f"v_mov_b32 v{A + i}, 0")
    a("s_nop 1")
    for j in range(8):
        for i in range(4):
            t = 24 + 2 * (i & 1)
            a(f"v_lshlrev_b32 v{t}, 16, v{W + 4 * j + i}")
            a(f"v_and_b32 v{t + 1}, s53, v{W + 4 * j + i}")
            a(f"v_fmac_f32 v{A + 2 * i}, s{40 + j}, v{t}")
            a(f"v_fmac_f32 v{A + 2 * i + 1}, s{40 + j}, v{t + 1}")
    a("v_lshlrev_b32 v9, 5, v2")
    a("s_lshl_b32 s37, s32, 11")
    a("v_add_u32 v9, s37, v9")
    a(f"ds_write_b128 v9, v[{A}:{A + 3}] offset:2048")
    a(f"ds_write_b128 v9, v[{A + 4}:{A + 7}] offset:2064")
    a("s_waitcnt lgkmcnt(0)")
    a("s_barrier")
    a("v_lshlrev_b32 v9, 3, v0")
    for w in range(4):
        a(f"ds_read_b64 v[{16 + 2 * w}:{17 + 2 * w}], v9 offset:{2048 + 2048 * w}")
    a("s_waitcnt lgkmcnt(0)")
    a("v_add_f32 v16, v16, v18")
    a("v_add_f32 v17, v17, v19")
    a("v_add_f32 v20, v20, v22")
    a("v_add_f32 v21, v21, v23")
    a("v_add_f32 v16, v16, v20")
    a("v_add_f32 v17, v17, v21")
    a("s_lshl_b32 s37, s2, 11")
    a(f"s_add_u32 s37, s37, {WS_SLAB}")
    a("buffer_store_dwordx2 v[16:17], v9, s[24:27], s37 offen")
    stamp_flush(a, 4, 6, 10, 11)
    a.label(f"{name}_done")
    a("s_endpgm")
    return kernel_desc(name, 144, 64, 144)


def gen_k3b(a, name, wpf=0):
    kernel_begin(a, name)
    a("s_cmp_ge_u32 s2, 256")
    a(f"s_cbranch_scc1 {name}_done")
    stamp(a, 0)
    a("s_load_dwordx2 s[4:5], s[0:1], 0")
    a("s_load_dwordx2 s[6:7], s[0:1], 48")
    a("s_load_dwordx2 s[8:9], s[0:1], 80")
    a("s_load_dwordx2 s[10:11], s[0:1], 96")
    if wpf:
        a("s_load_dwordx4 s[56:59], s[0:1], 56")
        a("s_load_dwordx2 s[60:61], s[0:1], 72")
    a("v_lshrrev_b32 v1, 6, v0")
    a("v_and_b32 v2, 63, v0")
    a("s_nop 0")
    a("v_readfirstlane_b32 s32, v1")
    a("v_lshlrev_b32 v3, 4, v2")
    a("s_lshl_b32 s33, s2, 3")
    a("s_add_u32 s33, s33, s32")
    a("s_lshl_b32 s34, s33, 10")
    a(f"s_add_u32 s35, s34, {WS_P}")
    a(f"s_add_u32 s36, s34, {WS_P + (4 << 20)}")
    a(f"s_add_u32 s43, s34, {WS_P + (2 << 20)}")
    a(f"s_add_u32 s44, s34, {WS_P + (6 << 20)}")
    a("s_mov_b32 s53, 0xffff0000")
    a("s_waitcnt lgkmcnt(0)")
    stamp(a, 1)
    srd(a, 24, 10, 11, 14 << 20)
    B = 16
    a(f"buffer_load_dwordx4 v[{B}:{B + 3}], v3, s[24:27], s35 offen")
    a(f"buffer_load_dwordx4 v[{B + 12}:{B + 15}], v3, s[24:27], s43 offen")
    a(f"buffer_load_dwordx4 v[{B + 4}:{B + 7}], v3, s[24:27], s36 offen")
    a(f"buffer_load_dwordx4 v[{B + 56}:{B + 59}], v3, s[24:27], s44 offen")
    srd(a, 12, 4, 5, S * D * 2)
    a(f"buffer_load_dwordx4 v[{B + 8}:{B + 11}], v3, s[12:15], s34 offen")
    srd(a, 16, 6, 7, D * 2)
    a("buffer_load_dwordx4 v[8:11], v3, s[16:19], 0 offen")
    if wpf:
        a("s_sub_u32 s45, s32, 5")
        a("s_min_u32 s45, s45, 3")
        emit_wtouch(a, "s45", 120, 121)
    srd(a, 20, 8, 9, S * D * 2)
    a(f"s_waitcnt vmcnt({2 if wpf else 1})")
    stamp(a, 2)

    def unpack(dst, src):
        a(f"v_lshlrev_b32 v{dst}, 16, v{src}")
        a(f"v_and_b32 v{dst + 1}, s53, v{src}")

    H = B + 16
    TT = [80 + 10 * i for i in range(4)]
    steps = []
    for i in range(4):
        T = TT[i]
        steps.append([
            f"v_lshlrev_b32 v{T}, 16, v{B + i}", f"v_and_b32 v{T + 1}, s53, v{B + i}",
            f"v_lshlrev_b32 v{T + 2}, 16, v{B + 12 + i}", f"v_and_b32 v{T + 3}, s53, v{B + 12 + i}",
            f"v_lshlrev_b32 v{T + 4}, 16, v{B + 4 + i}", f"v_and_b32 v{T + 5}, s53, v{B + 4 + i}",
            f"v_lshlrev_b32 v{T + 6}, 16, v{B + 56 + i}", f"v_and_b32 v{T + 7}, s53, v{B + 56 + i}",
            f"v_add_f32 v{T}, v{T}, v{T + 2}", f"v_add_f32 v{T + 1}, v{T + 1}, v{T + 3}",
            f"v_add_f32 v{T + 4}, v{T + 4}, v{T + 6}", f"v_add_f32 v{T + 5}, v{T + 5}, v{T + 7}",
            f"v_cvt_pk_bf16_f32 v{T + 8}, v{T}, v{T + 1}", f"v_cvt_pk_bf16_f32 v{T + 9}, v{T + 4}, v{T + 5}",
            f"v_lshlrev_b32 v{T}, 16, v{T + 8}", f"v_and_b32 v{T + 1}, s53, v{T + 8}",
            f"v_lshlrev_b32 v{T + 2}, 16, v{T + 9}", f"v_and_b32 v{T + 3}, s53, v{T + 9}",
            f"v_sub_f32 v{T}, v{T}, v{T + 2}", f"v_sub_f32 v{T + 1}, v{T + 1}, v{T + 3}",
            f"v_cvt_pk_bf16_f32 v{T + 4}, v{T}, v{T + 1}",
            f"v_lshlrev_b32 v{T}, 16, v{T + 4}", f"v_and_b32 v{T + 1}, s53, v{T + 4}",
            f"v_lshlrev_b32 v{T + 2}, 16, v{B + 8 + i}", f"v_and_b32 v{T + 3}, s53, v{B + 8 + i}",
            f"v_add_f32 v{T}, v{T + 2}, v{T}", f"v_add_f32 v{T + 1}, v{T + 3}, v{T + 1}",
            f"v_cvt_pk_bf16_f32 v{B + 40 + i}, v{T}, v{T + 1}",
            f"v_lshlrev_b32 v{H + 2 * i}, 16, v{B + 40 + i}", f"v_and_b32 v{H + 2 * i + 1}, s53, v{B + 40 + i}",
        ])
    for k in range(len(steps[0])):
        for i in range(4):
            a(steps[i][k])
    St = B + 48
    a(f"v_add_f32 v{St}, v{H}, v{H + 1}")
    a(f"v_add_f32 v{St + 1}, v{H + 2}, v{H + 3}")
    a(f"v_add_f32 v{St + 2}, v{H + 4}, v{H + 5}")
    a(f"v_add_f32 v{St + 3}, v{H + 6}, v{H + 7}")
    a(f"v_add_f32 v{St}, v{St}, v{St + 1}")
    a(f"v_add_f32 v{St + 2}, v{St + 2}, v{St + 3}")
    a(f"v_add_f32 v{St}, v{St}, v{St + 2}")
    wave_allreduce(a, "v_add_f32", St, St + 1)
    T = 80
    a(f"v_mul_f32 v{St}, 0x3b000000, v{St}")
    for i in range(8):
        a(f"v_sub_f32 v{T + i}, v{H + i}, v{St}")
    a(f"v_cvt_pk_bf16_f32 v{St + 1}, v{St}, v{St}")
    a(f"v_mul_f32 v{St + 2}, v{T}, v{T}")
    a(f"v_mul_f32 v{St + 3}, v{T + 1}, v{T + 1}")
    a(f"v_lshlrev_b32 v{St + 1}, 16, v{St + 1}")
    for i in range(2, 8, 2):
        a(f"v_fmac_f32 v{St + 2}, v{T + i}, v{T + i}")
        a(f"v_fmac_f32 v{St + 3}, v{T + i + 1}, v{T + i + 1}")
    a(f"v_add_f32 v{St + 2}, v{St + 2}, v{St + 3}")
    for i in range(8):
        a(f"v_sub_f32 v{T + 10 + i}, v{H + i}, v{St + 1}")
    for i in range(4):
        a(f"v_cvt_pk_bf16_f32 v{T + 20 + i}, v{T + 10 + 2 * i}, v{T + 11 + 2 * i}")
    for i in range(4):
        unpack(T + 10 + 2 * i, T + 20 + i)
    wave_allreduce(a, "v_add_f32", St + 2, St + 3)
    v = St + 2
    a(f"v_mul_f32 v{v}, 0x3b000000, v{v}")
    a(f"v_cvt_pk_bf16_f32 v{v}, v{v}, v{v}")
    a(f"v_lshlrev_b32 v{v}, 16, v{v}")
    a(f"v_add_f32 v{v}, 0x3727c5ac, v{v}")
    a(f"v_cvt_pk_bf16_f32 v{v}, v{v}, v{v}")
    a(f"v_lshlrev_b32 v{v}, 16, v{v}")
    a(f"v_sqrt_f32 v{v}, v{v}")
    a("s_nop 0")
    a(f"v_cvt_pk_bf16_f32 v{v}, v{v}, v{v}")
    a(f"v_lshlrev_b32 v{v}, 16, v{v}")
    a(f"v_rcp_f32 v{v}, v{v}")
    a(f"s_waitcnt vmcnt({1 if wpf else 0})")
    for i in range(8):
        a(f"v_mul_f32 v{T + 10 + i}, v{T + 10 + i}, v{v}")
    for i in range(4):
        a(f"v_cvt_pk_bf16_f32 v{B + 44 + i}, v{T + 10 + 2 * i}, v{T + 11 + 2 * i}")
    for i in range(4):
        unpack(T + 10 + 2 * i, B + 44 + i)
        unpack(T + 2 * i, 8 + i)
    a(f"v_mul_f32 v{St + 4}, v{T + 10}, v{T}")
    a(f"v_mul_f32 v{St + 5}, v{T + 11}, v{T + 1}")
    for i in range(2, 8, 2):
        a(f"v_fmac_f32 v{St + 4}, v{T + 10 + i}, v{T + i}")
        a(f"v_fmac_f32 v{St + 5}, v{T + 11 + i}, v{T + i + 1}")
    a(f"v_add_f32 v{St + 4}, v{St + 4}, v{St + 5}")
    for i in range(8):
        a(f"v_add_f32 v{T + 20 + i}, v{H + i}, v{T + 10 + i}")
    for i in range(4):
        a(f"v_cvt_pk_bf16_f32 v{B + 4 + i}, v{T + 20 + 2 * i}, v{T + 21 + 2 * i}")
    a(f"buffer_store_dwordx4 v[{B + 4}:{B + 7}], v3, s[20:23], s34 offen")
    wave_allreduce(a, "v_add_f32", St + 4, St + 5)
    v = St + 4
    a(f"v_cvt_pk_bf16_f32 v{v}, v{v}, v{v}")
    a(f"v_lshlrev_b32 v{v}, 16, v{v}")
    a(f"v_ashrrev_i32 v{v + 1}, 31, v{v}")
    a(f"v_or_b32 v{v + 1}, 0x80000000, v{v + 1}")
    a(f"v_xor_b32 v{v}, v{v}, v{v + 1}")
    a(f"v_and_b32 v{v}, s53, v{v}")
    a("s_sub_u32 s37, 2047, s33")
    a(f"v_or_b32 v{v}, s37, v{v}")
    a("s_lshl_b32 s37, s32, 2")
    a("v_mov_b32 v5, s37")
    a(f"ds_write_b32 v5, v{v}")
    stamp(a, 3)
    a("s_waitcnt lgkmcnt(0)")
    a("s_barrier")
    a("v_mov_b32 v5, 0")
    a("ds_read_b128 v[12:15], v5")
    a("ds_read_b128 v[80:83], v5 offset:16")
    a(f"v_readfirstlane_b32 s39, v{v}")
    a(f"s_lshl_b32 s41, s2, 11")
    a(f"s_add_u32 s41, s41, {WS_CROW}")
    a(f"s_lshl_b32 s42, s2, 2")
    a(f"s_add_u32 s42, s42, {WS_CAND}")
    a("s_waitcnt lgkmcnt(0)")
    a("v_max3_u32 v12, v12, v13, v14")
    a("v_max3_u32 v80, v80, v81, v82")
    a("v_max3_u32 v12, v12, v15, v83")
    a("v_max_u32 v12, v12, v80")
    a("s_nop 0")
    a("v_readfirstlane_b32 s38, v12")
    a("s_cmp_lg_u32 s38, s39")
    a(f"s_cbranch_scc1 {name}_nw")
    a(f"buffer_store_dwordx4 v[{B + 40}:{B + 43}], v3, s[24:27], s41 offen")
    a(f"buffer_store_dwordx4 v[{B + 44}:{B + 47}], v3, s[24:27], s41 offen offset:1024")
    a(f"buffer_store_dword v12, v5, s[24:27], s42 offen")
    a.label(f"{name}_nw")
    stamp_flush(a, 3, 4, 10, 11)
    a.label(f"{name}_done")
    a("s_endpgm")
    return kernel_desc(name, 128, 64, 128)


def emit_winner_wave(a, v4, t, s_out):
    a(f"v_max3_u32 v{v4}, v{v4}, v{v4 + 1}, v{v4 + 2}")
    a(f"v_max_u32 v{v4}, v{v4}, v{v4 + 3}")
    wave_allreduce(a, "v_max_u32", v4, t)
    a("s_nop 0")
    a(f"v_readfirstlane_b32 s{s_out}, v{v4}")


def gen_k4b(a, name):
    kernel_begin(a, name)
    a(f"s_cmp_ge_u32 s2, {NSL}")
    a(f"s_cbranch_scc1 {name}_done")
    stamp(a, 0)
    a("s_load_dwordx2 s[10:11], s[0:1], 96")
    a("s_load_dwordx4 s[4:7], s[0:1], 56")
    a("s_load_dwordx2 s[8:9], s[0:1], 72")
    a("v_lshrrev_b32 v1, 6, v0")
    a("v_and_b32 v2, 63, v0")
    a("s_nop 0")
    a("v_readfirstlane_b32 s32, v1")
    a("v_lshrrev_b32 v3, 2, v0")
    a("v_and_b32 v4, 3, v0")
    a("s_mov_b32 s33, 14336")
    a("v_mul_lo_u32 v6, v3, s33")
    a("v_lshl_add_u32 v6, v4, 4, v6")
    a("v_lshlrev_b32 v7, 4, v2")
    a("s_lshl_b32 s34, s2, 6")
    a("s_lshl_b32 s35, s2, 5")
    a("s_lshl_b32 s36, s32, 2")
    a("s_add_u32 s35, s35, s36")
    a("s_lshl_b32 s35, s35, 10")
    a(f"s_mov_b32 s37, {WS_CAND}")
    a("s_mov_b32 s53, 0xffff0000")
    a("s_waitcnt lgkmcnt(0)")
    stamp(a, 1)
    srd(a, 24, 10, 11, 14 << 20)
    a("buffer_load_dwordx4 v[8:11], v7, s[24:27], s37 offen")
    srd(a, 12, 4, 5, D * F * 2)
    srd(a, 16, 6, 7, D * F * 2)
    srd(a, 20, 8, 9, D * F * 2)
    G, U, W = 32, 48, 64
    for j in range(4):
        a(f"s_add_u32 s36, s34, {3584 * j}")
        a(f"buffer_load_dwordx4 v[{G + 4 * j}:{G + 4 * j + 3}], v6, s[12:15], s36 offen")
        a(f"buffer_load_dwordx4 v[{U + 4 * j}:{U + 4 * j + 3}], v6, s[16:19], s36 offen")
    a("s_waitcnt vmcnt(8)")
    stamp(a, 2)
    emit_winner_wave(a, 8, 12, 38)
    a("s_and_b32 s39, s38, 0xffff")
    a("s_sub_u32 s39, 2047, s39")
    a("s_lshr_b32 s39, s39, 3")
    a("s_lshl_b32 s39, s39, 11")
    a(f"s_add_u32 s39, s39, {WS_CROW + 1024}")
    a("v_lshlrev_b32 v9, 3, v3")
    a("v_add_u32 v9, s39, v9")
    a("buffer_load_dwordx2 v[12:13], v9, s[24:27], 0 offen")
    stamp(a, 3)
    for j in range(4):
        a(f"buffer_load_dwordx4 v[{W + 4 * j}:{W + 4 * j + 3}], v7, s[20:23], s35 offen offset:{1024 * j}")
    A = 96
    for i in range(16):
        a(f"v_mov_b32 v{A + i}, 0")
    a("s_waitcnt vmcnt(4)")
    stamp(a, 4)
    X = 16
    for i in range(2):
        a(f"v_lshlrev_b32 v{X + 2 * i}, 16, v{12 + i}")
        a(f"v_and_b32 v{X + 2 * i + 1}, s53, v{12 + i}")
    for j in range(4):
        for (M, ao) in ((G, 0), (U, 8)):
            for i in range(4):
                t = 24 + 2 * (i & 3)
                a(f"v_lshlrev_b32 v{t}, 16, v{M + 4 * j + i}")
                a(f"v_and_b32 v{t + 1}, s53, v{M + 4 * j + i}")
            for i in range(4):
                t = 24 + 2 * (i & 3)
                a(f"v_fmac_f32 v{A + ao + 2 * i}, v{X + j}, v{t}")
                a(f"v_fmac_f32 v{A + ao + 2 * i + 1}, v{X + j}, v{t + 1}")
    a("s_nop 1")
    for i in range(8):
        a(f"v_permlane32_swap_b32 v{A + i}, v{A + i + 8}")
    a("s_nop 1")
    for i in range(8):
        a(f"v_add_f32 v{A + i}, v{A + i}, v{A + i + 8}")
    a("s_nop 1")
    for i in range(4):
        a(f"v_permlane16_swap_b32 v{A + i}, v{A + i + 4}")
    a("s_nop 1")
    for i in range(4):
        a(f"v_add_f32 v{A + i}, v{A + i}, v{A + i + 4}")
    a("s_nop 1")
    for i in range(4):
        a(f"v_add_f32_dpp v{A + i}, v{A + i}, v{A + i} row_ror:4 {DPP}")
    a("s_nop 1")
    for i in range(4):
        a(f"v_add_f32_dpp v{A + i}, v{A + i}, v{A + i} row_ror:8 {DPP}")
    a("v_and_b32 v9, 3, v2")
    a("v_lshlrev_b32 v9, 5, v9")
    a("v_bfe_u32 v10, v2, 4, 1")
    a("v_lshl_add_u32 v9, v10, 4, v9")
    a("v_bfe_u32 v10, v2, 5, 1")
    a("v_lshl_add_u32 v9, v10, 7, v9")
    a("s_lshl_b32 s37, s32, 8")
    a("v_add_u32 v9, s37, v9")
    a(f"ds_write_b128 v9, v[{A}:{A + 3}]")
    a("s_waitcnt lgkmcnt(0)")
    a("s_barrier")
    stamp(a, 5)
    a("v_lshlrev_b32 v9, 2, v2")
    for w in range(8):
        a(f"ds_read_b32 v{16 + w}, v9 offset:{256 * w}")
    a("s_waitcnt lgkmcnt(0)")
    a("v_add_f32 v16, v16, v17")
    a("v_add_f32 v18, v18, v19")
    a("v_add_f32 v20, v20, v21")
    a("v_add_f32 v22, v22, v23")
    a("v_add_f32 v16, v16, v18")
    a("v_add_f32 v20, v20, v22")
    a("v_add_f32 v16, v16, v20")
    a("v_mov_b32 v20, v16")
    a("s_nop 1")
    a("v_permlane32_swap_b32 v16, v20")
    a("s_nop 1")
    a("v_cvt_pk_bf16_f32 v16, v16, v20")
    a("v_and_b32 v20, s53, v16")
    a("v_lshlrev_b32 v16, 16, v16")
    a("v_mul_f32 v17, 0xbfb8aa3b, v16")
    a("v_exp_f32 v17, v17")
    a("s_nop 0")
    a("v_add_f32 v17, 1.0, v17")
    a("v_rcp_f32 v17, v17")
    a("s_nop 0")
    a("v_mul_f32 v16, v16, v17")
    a("v_cvt_pk_bf16_f32 v16, v16, v16")
    a("v_lshlrev_b32 v16, 16, v16")
    a("v_mul_f32 v16, v16, v20")
    a("v_cvt_pk_bf16_f32 v16, v16, v16")
    a("v_lshlrev_b32 v16, 16, v16")
    a("s_lshl_b32 s37, s32, 2")
    for j in range(4):
        a(f"s_add_u32 s36, s37, {j}")
        a("s_nop 0")
        a(f"v_readlane_b32 s{40 + j}, v16, s36")
    a("s_waitcnt vmcnt(0)")
    for j in range(4):
        for i in range(4):
            t = 24 + 2 * i
            a(f"v_lshlrev_b32 v{t}, 16, v{W + 4 * j + i}")
            a(f"v_and_b32 v{t + 1}, s53, v{W + 4 * j + i}")
        for i in range(4):
            t = 24 + 2 * i
            if j == 0:
                a(f"v_mul_f32 v{A + 2 * i}, s{40 + j}, v{t}")
                a(f"v_mul_f32 v{A + 2 * i + 1}, s{40 + j}, v{t + 1}")
            else:
                a(f"v_fmac_f32 v{A + 2 * i}, s{40 + j}, v{t}")
                a(f"v_fmac_f32 v{A + 2 * i + 1}, s{40 + j}, v{t + 1}")
    a("v_lshlrev_b32 v9, 5, v2")
    a("s_lshl_b32 s37, s32, 11")
    a("v_add_u32 v9, s37, v9")
    a(f"ds_write_b128 v9, v[{A}:{A + 3}] offset:2048")
    a(f"ds_write_b128 v9, v[{A + 4}:{A + 7}] offset:2064")
    a("s_waitcnt lgkmcnt(0)")
    a("s_barrier")
    a("v_lshlrev_b32 v9, 2, v0")
    for w in range(8):
        a(f"ds_read_b32 v{16 + w}, v9 offset:{2048 + 2048 * w}")
    a("s_lshl_b32 s37, s2, 11")
    a(f"s_add_u32 s37, s37, {WS_SLAB}")
    a("s_waitcnt lgkmcnt(0)")
    a("v_add_f32 v16, v16, v17")
    a("v_add_f32 v18, v18, v19")
    a("v_add_f32 v20, v20, v21")
    a("v_add_f32 v22, v22, v23")
    a("v_add_f32 v16, v16, v18")
    a("v_add_f32 v20, v20, v22")
    a("v_add_f32 v16, v16, v20")
    a("buffer_store_dword v16, v9, s[24:27], s37 offen")
    stamp_flush(a, 4, 6, 10, 11)
    a.label(f"{name}_done")
    a("s_endpgm")
    return kernel_desc(name, 112, 64, 112)


WS_NONCE = 13 << 20
WS_ANN = WS_NONCE + 128
WS_KEYS = WS_NONCE + 4096
WS_ROWS = WS_NONCE + 8192
WS_KEYS2 = (15 << 20) + (3 << 18)
WS_SLABS = 15 << 20
WS_FLAG2 = (15 << 20) + (1 << 19)


KSLEEP, SSLEEP, FSLEEP, ASLEEP = 1, 1, 1, 8


def gen_kt(a, name, fused=0):
    SLOT = "s63" if fused else "s2"
    LP = " sc1" if fused else ""
    if not fused:
        kernel_begin(a, name)
        a("s_cmp_ge_u32 s2, 256")
        a(f"s_cbranch_scc1 {name}_done")
    stamp(a, 0)
    a("s_load_dwordx2 s[10:11], s[0:1], 96")
    a("s_load_dwordx2 s[4:5], s[0:1], 0")
    a("s_load_dwordx2 s[6:7], s[0:1], 48")
    a("s_load_dwordx2 s[8:9], s[0:1], 80")
    a("s_load_dwordx4 s[56:59], s[0:1], 56")
    a("s_load_dwordx2 s[60:61], s[0:1], 72")
    if fused:
        a("v_mbcnt_lo_u32_b32 v2, -1, 0")
        a("v_mbcnt_hi_u32_b32 v2, -1, v2")
        a("s_lshl_b32 s33, s32, 6")
        a("v_add_u32 v0, s33, v2")
    else:
        a("v_lshrrev_b32 v1, 6, v0")
        a("v_and_b32 v2, 63, v0")
        a("s_nop 0")
        a("v_readfirstlane_b32 s32, v1")
    a("v_lshlrev_b32 v3, 4, v2")
    a(f"s_lshl_b32 s33, {SLOT}, 3")
    a("s_add_u32 s33, s33, s32")
    a("s_lshl_b32 s34, s33, 10")
    a(f"s_add_u32 s35, s34, {WS_P}")
    a(f"s_add_u32 s36, s34, {WS_P + (4 << 20)}")
    a(f"s_add_u32 s43, s34, {WS_P + (2 << 20)}")
    a(f"s_add_u32 s44, s34, {WS_P + (6 << 20)}")
    a("s_mov_b32 s53, 0xffff0000")
    a("s_mov_b32 s69, 0x40000")
    a(f"s_mov_b32 s45, {WS_NONCE}")
    a("v_mov_b32 v5, 0")
    a("v_lshrrev_b32 v6, 2, v0")
    a("s_mov_b32 s46, 14336")
    a("v_mul_lo_u32 v7, v6, s46")
    a("v_and_b32 v4, 3, v0")
    a("v_lshl_add_u32 v7, v4, 4, v7")
    a("v_lshlrev_b32 v4, 5, v2")
    a("s_waitcnt lgkmcnt(0)")
    stamp(a, 1)
    srd(a, 24, 10, 11, 16 << 20)
    srd(a, 20, 8, 9, S * D * 2)
    P0, P2, XX, P1, P3 = 16, 20, 24, 28, 12

    EARLYW = fused and WEARLY
    G, U = 96, 112
    W = 128 if EARLYW else 16

    def w_loads():
        srd(a, 12, 56, 57, D * F * 2)
        srd(a, 16, 58, 59, D * F * 2)
        a("s_lshl_b32 s48, s2, 6")
        for j in range(4):
            a(f"s_add_u32 s49, s48, {3584 * j}")
            a(f"buffer_load_dwordx4 v[{G + 4 * j}:{G + 4 * j + 3}], v7, s[12:15], s49 offen")
            a(f"buffer_load_dwordx4 v[{U + 4 * j}:{U + 4 * j + 3}], v7, s[16:19], s49 offen")
        srd(a, 28, 60, 61, D * F * 2)
        a("s_lshl_b32 s48, s2, 5")
        a("s_lshl_b32 s49, s32, 2")
        a("s_add_u32 s48, s48, s49")
        a("s_lshl_b32 s48, s48, 10")
        for j in range(4):
            a(f"buffer_load_dwordx4 v[{W + 4 * j}:{W + 4 * j + 3}], v3, s[28:31], s48 offen offset:{1024 * j}")

    def p_loads():
        a(f"buffer_load_dwordx4 v[{P0}:{P0 + 3}], v3, s[24:27], s35 offen{LP}")
        a(f"buffer_load_dwordx4 v[{P1}:{P1 + 3}], v3, s[24:27], s43 offen{LP}")
        a(f"buffer_load_dwordx4 v[{P2}:{P2 + 3}], v3, s[24:27], s36 offen{LP}")
        a(f"buffer_load_dwordx4 v[{P3}:{P3 + 3}], v3, s[24:27], s44 offen{LP}")

    if fused:
        a("buffer_load_dword v88, v5, s[24:27], s45 offen")
        srd(a, 12, 4, 5, S * D * 2)
        a(f"buffer_load_dwordx4 v[{XX}:{XX + 3}], v3, s[12:15], s34 offen")
        srd(a, 16, 6, 7, D * 2)
        a("buffer_load_dwordx4 v[8:11], v3, s[16:19], 0 offen")
        if EARLYW:
            a(f"s_cmp_lt_u32 s2, {NSL}")
            a(f"s_cbranch_scc0 {name}_noew")
            w_loads()
            a.label(f"{name}_noew")
        a("s_cmp_lg_u32 s32, 4")
        a(f"s_cbranch_scc1 {name}_np")
        a("s_lshr_b32 s46, s63, 4")
        a("s_lshl_b32 s46, s46, 11")
        a(f"s_add_u32 s46, s46, {WS_FLAG2}")
        a("v_and_b32 v56, 15, v2")
        a("v_lshlrev_b32 v56, 7, v56")
        a.label(f"{name}_fp")
        a("buffer_load_dword v57, v56, s[24:27], s46 offen sc1")
        a("s_waitcnt vmcnt(0)")
        a("v_cmp_ne_u32 vcc, v57, v88")
        a("s_or_b32 s47, vcc_lo, vcc_hi")
        a(f"s_cbranch_scc0 {name}_np")
        a(f"s_sleep {FSLEEP}")
        a("s_sub_u32 s69, s69, 1")
        a(f"s_cbranch_scc0 {name}_fp")
        a("s_mov_b32 s69, 0")
        a.label(f"{name}_np")
        a("s_barrier")
        p_loads()
    else:
        p_loads()
        srd(a, 12, 4, 5, S * D * 2)
        a(f"buffer_load_dwordx4 v[{XX}:{XX + 3}], v3, s[12:15], s34 offen")
        srd(a, 16, 6, 7, D * 2)
        a("buffer_load_dwordx4 v[8:11], v3, s[16:19], 0 offen")
        a("buffer_load_dword v88, v5, s[24:27], s45 offen")
    G, U = 96, 112
    a(f"s_waitcnt vmcnt({0 if fused else 2})")
    stamp(a, 2)

    def unpack(dst, src):
        a(f"v_lshlrev_b32 v{dst}, 16, v{src}")
        a(f"v_and_b32 v{dst + 1}, s53, v{src}")

    H, HP, HN, St = 32, 40, 44, 48
    for half in range(2):
        steps = []
        for ii in range(2):
            i = 2 * half + ii
            T = 56 + 10 * ii
            steps.append([
                f"v_lshlrev_b32 v{T}, 16, v{P0 + i}", f"v_and_b32 v{T + 1}, s53, v{P0 + i}",
                f"v_lshlrev_b32 v{T + 2}, 16, v{P1 + i}", f"v_and_b32 v{T + 3}, s53, v{P1 + i}",
                f"v_lshlrev_b32 v{T + 4}, 16, v{P2 + i}", f"v_and_b32 v{T + 5}, s53, v{P2 + i}",
                f"v_lshlrev_b32 v{T + 6}, 16, v{P3 + i}", f"v_and_b32 v{T + 7}, s53, v{P3 + i}",
                f"v_add_f32 v{T}, v{T}, v{T + 2}", f"v_add_f32 v{T + 1}, v{T + 1}, v{T + 3}",
                f"v_add_f32 v{T + 4}, v{T + 4}, v{T + 6}", f"v_add_f32 v{T + 5}, v{T + 5}, v{T + 7}",
                f"v_cvt_pk_bf16_f32 v{T + 8}, v{T}, v{T + 1}", f"v_cvt_pk_bf16_f32 v{T + 9}, v{T + 4}, v{T + 5}",
                f"v_lshlrev_b32 v{T}, 16, v{T + 8}", f"v_and_b32 v{T + 1}, s53, v{T + 8}",
                f"v_lshlrev_b32 v{T + 2}, 16, v{T + 9}", f"v_and_b32 v{T + 3}, s53, v{T + 9}",
                f"v_sub_f32 v{T}, v{T}, v{T + 2}", f"v_sub_f32 v{T + 1}, v{T + 1}, v{T + 3}",
                f"v_cvt_pk_bf16_f32 v{T + 4}, v{T}, v{T + 1}",
                f"v_lshlrev_b32 v{T}, 16, v{T + 4}", f"v_and_b32 v{T + 1}, s53, v{T + 4}",
                f"v_lshlrev_b32 v{T + 2}, 16, v{XX + i}", f"v_and_b32 v{T + 3}, s53, v{XX + i}",
                f"v_add_f32 v{T}, v{T + 2}, v{T}", f"v_add_f32 v{T + 1}, v{T + 3}, v{T + 1}",
                f"v_cvt_pk_bf16_f32 v{HP + i}, v{T}, v{T + 1}",
                f"v_lshlrev_b32 v{H + 2 * i}, 16, v{HP + i}", f"v_and_b32 v{H + 2 * i + 1}, s53, v{HP + i}",
            ])
        for k in range(len(steps[0])):
            for ii in range(2):
                a(steps[ii][k])
    a(f"v_add_f32 v{St}, v{H}, v{H + 1}")
    a(f"v_add_f32 v{St + 1}, v{H + 2}, v{H + 3}")
    a(f"v_add_f32 v{St + 2}, v{H + 4}, v{H + 5}")
    a(f"v_add_f32 v{St + 3}, v{H + 6}, v{H + 7}")
    a(f"v_add_f32 v{St}, v{St}, v{St + 1}")
    a(f"v_add_f32 v{St + 2}, v{St + 2}, v{St + 3}")
    a(f"v_add_f32 v{St}, v{St}, v{St + 2}")
    wave_allreduce(a, "v_add_f32", St, St + 1)
    T = 56
    a(f"v_mul_f32 v{St}, 0x3b000000, v{St}")
    for i in range(8):
        a(f"v_sub_f32 v{T + i}, v{H + i}, v{St}")
    a(f"v_cvt_pk_bf16_f32 v{St + 1}, v{St}, v{St}")
    a(f"v_mul_f32 v{St + 2}, v{T}, v{T}")
    a(f"v_mul_f32 v{St + 3}, v{T + 1}, v{T + 1}")
    a(f"v_lshlrev_b32 v{St + 1}, 16, v{St + 1}")
    for i in range(2, 8, 2):
        a(f"v_fmac_f32 v{St + 2}, v{T + i}, v{T + i}")
        a(f"v_fmac_f32 v{St + 3}, v{T + i + 1}, v{T + i + 1}")
    a(f"v_add_f32 v{St + 2}, v{St + 2}, v{St + 3}")
    for i in range(8):
        a(f"v_sub_f32 v{T + 10 + i}, v{H + i}, v{St + 1}")
    for i in range(4):
        a(f"v_cvt_pk_bf16_f32 v{T + 20 + i}, v{T + 10 + 2 * i}, v{T + 11 + 2 * i}")
    for i in range(4):
        unpack(T + 10 + 2 * i, T + 20 + i)
    wave_allreduce(a, "v_add_f32", St + 2, St + 3)
    v = St + 2
    a(f"v_mul_f32 v{v}, 0x3b000000, v{v}")
    a(f"v_cvt_pk_bf16_f32 v{v}, v{v}, v{v}")
    a(f"v_lshlrev_b32 v{v}, 16, v{v}")
    a(f"v_add_f32 v{v}, 0x3727c5ac, v{v}")
    a(f"v_cvt_pk_bf16_f32 v{v}, v{v}, v{v}")
    a(f"v_lshlrev_b32 v{v}, 16, v{v}")
    a(f"v_sqrt_f32 v{v}, v{v}")
    a("s_nop 0")
    a(f"v_cvt_pk_bf16_f32 v{v}, v{v}, v{v}")
    a(f"v_lshlrev_b32 v{v}, 16, v{v}")
    a(f"v_rcp_f32 v{v}, v{v}")
    a("s_waitcnt vmcnt(0)")
    for i in range(8):
        a(f"v_mul_f32 v{T + 10 + i}, v{T + 10 + i}, v{v}")
    for i in range(4):
        a(f"v_cvt_pk_bf16_f32 v{HN + i}, v{T + 10 + 2 * i}, v{T + 11 + 2 * i}")
    for i in range(4):
        unpack(T + 10 + 2 * i, HN + i)
        unpack(T + 2 * i, 8 + i)
    a(f"v_mul_f32 v{St + 4}, v{T + 10}, v{T}")
    a(f"v_mul_f32 v{St + 5}, v{T + 11}, v{T + 1}")
    for i in range(2, 8, 2):
        a(f"v_fmac_f32 v{St + 4}, v{T + 10 + i}, v{T + i}")
        a(f"v_fmac_f32 v{St + 5}, v{T + 11 + i}, v{T + i + 1}")
    a(f"v_add_f32 v{St + 4}, v{St + 4}, v{St + 5}")
    wave_allreduce(a, "v_add_f32", St + 4, St + 5)
    v = St + 4
    a(f"v_cvt_pk_bf16_f32 v{v}, v{v}, v{v}")
    a(f"v_lshlrev_b32 v{v}, 16, v{v}")
    a(f"v_ashrrev_i32 v{v + 1}, 31, v{v}")
    a(f"v_or_b32 v{v + 1}, 0x80000000, v{v + 1}")
    a(f"v_xor_b32 v{v}, v{v}, v{v + 1}")
    a(f"v_and_b32 v{v}, s53, v{v}")
    a("s_sub_u32 s37, 2047, s33")
    a(f"v_or_b32 v{v}, s37, v{v}")
    a("s_lshl_b32 s37, s32, 2")
    a("v_mov_b32 v89, s37")
    a(f"ds_write_b32 v89, v{v}")
    OUT = 84
    for i in range(8):
        a(f"v_add_f32 v{T + 20 + i}, v{H + i}, v{T + 10 + i}")
    for i in range(4):
        a(f"v_cvt_pk_bf16_f32 v{OUT + i}, v{T + 20 + 2 * i}, v{T + 21 + 2 * i}")
    for i in range(4):
        a(f"v_mov_b32 v{56 + 2 * i}, v{HP + i}")
        a(f"v_mov_b32 v{57 + 2 * i}, v88")
        a(f"v_mov_b32 v{64 + 2 * i}, v{HN + i}")
        a(f"v_mov_b32 v{65 + 2 * i}, v88")
    a(f"v_readfirstlane_b32 s39, v{v}")
    a("v_readfirstlane_b32 s50, v88")
    a(f"s_lshl_b32 s41, {SLOT}, 12")
    a(f"s_add_u32 s41, s41, {WS_ROWS}")
    if KSPREAD:
        a(f"s_and_b32 s42, {SLOT}, 63")
        a("s_lshl_b32 s42, s42, 7")
        a(f"s_lshr_b32 s47, {SLOT}, 6")
        a("s_lshl_b32 s47, s47, 3")
        a("s_add_u32 s42, s42, s47")
        a(f"s_add_u32 s42, s42, {WS_KEYS2}")
    else:
        a(f"s_lshl_b32 s42, {SLOT}, 3")
        a(f"s_add_u32 s42, s42, {WS_KEYS}")
    stamp(a, 3)
    a("s_waitcnt lgkmcnt(0)")
    a("s_barrier")
    a("ds_read_b128 v[72:75], v5")
    a("ds_read_b128 v[76:79], v5 offset:16")
    a("s_waitcnt lgkmcnt(0)")
    a("v_max3_u32 v72, v72, v73, v74")
    a("v_max3_u32 v76, v76, v77, v78")
    a("v_max3_u32 v72, v72, v75, v79")
    a("v_max_u32 v72, v72, v76")
    a("v_mov_b32 v73, v88")
    a("s_nop 0")
    a("v_readfirstlane_b32 s38, v72")
    a("s_mov_b32 s51, 0")
    a("s_cmp_lg_u32 s38, s39")
    a(f"s_cbranch_scc1 {name}_nc")
    a("s_mov_b32 s51, 1")
    a("buffer_store_dwordx2 v[72:73], v5, s[24:27], s42 offen sc0 sc1")
    a("buffer_store_dwordx4 v[64:67], v4, s[24:27], s41 offen offset:2048 sc0 sc1")
    a("buffer_store_dwordx4 v[68:71], v4, s[24:27], s41 offen offset:2064 sc0 sc1")
    a("buffer_store_dwordx4 v[56:59], v4, s[24:27], s41 offen sc0 sc1")
    a("buffer_store_dwordx4 v[60:63], v4, s[24:27], s41 offen offset:16 sc0 sc1")
    a(f"s_branch {name}_role")
    a.label(f"{name}_nc")
    a(f"buffer_store_dwordx4 v[{OUT}:{OUT + 3}], v3, s[20:23], s34 offen{OWT}")
    a.label(f"{name}_role")
    stamp(a, 4)
    a(f"s_cmp_lt_u32 s2, {NSL}")
    a(f"s_cbranch_scc1 {name}_needkeys")
    a("s_sub_u32 s52, s2, 64")
    a("s_cmp_lt_u32 s52, 16")
    a(f"s_cbranch_scc1 {name}_needkeys")
    a("s_cmp_eq_u32 s51, 0")
    a(f"s_cbranch_scc1 {name}_fin")
    a(f"s_mov_b32 s45, {WS_ANN}")
    a.label(f"{name}_annp")
    a(f"s_sleep {ASLEEP}")
    a("buffer_load_dwordx2 v[72:73], v5, s[24:27], s45 offen sc1")
    a("s_waitcnt vmcnt(0)")
    a("v_readfirstlane_b32 s46, v73")
    a("v_readfirstlane_b32 s38, v72")
    a("s_cmp_eq_u32 s46, s50")
    a(f"s_cbranch_scc1 {name}_annd")
    a("s_sub_u32 s69, s69, 1")
    a(f"s_cbranch_scc0 {name}_annp")
    a("s_mov_b32 s69, 0")
    a.label(f"{name}_annd")
    a("s_cmp_eq_u32 s38, s39")
    a(f"s_cbranch_scc1 {name}_fin")
    a(f"buffer_store_dwordx4 v[{OUT}:{OUT + 3}], v3, s[20:23], s34 offen{OWT}")
    a(f"s_branch {name}_fin")
    a.label(f"{name}_needkeys")
    if not EARLYW:
        a(f"s_cmp_lt_u32 s2, {NSL}")
        a(f"s_cbranch_scc0 {name}_nowd")
        a("s_barrier")
        w_loads()
    a.label(f"{name}_nowd")
    a("s_cmp_lg_u32 s32, 0")
    a(f"s_cbranch_scc1 {name}_kw")
    a(f"s_mov_b32 s45, {WS_KEYS2 if KSPREAD else WS_KEYS}")
    a(f"v_lshlrev_b32 v64, {7 if KSPREAD else 5}, v2")
    a.label(f"{name}_kp")
    a("buffer_load_dwordx4 v[56:59], v64, s[24:27], s45 offen sc1")
    a("buffer_load_dwordx4 v[60:63], v64, s[24:27], s45 offen offset:16 sc1")
    a("s_waitcnt vmcnt(0)")
    a("v_cmp_ne_u32 s[46:47], v57, v88")
    a("v_cmp_ne_u32 vcc, v59, v88")
    a("s_or_b64 s[46:47], s[46:47], vcc")
    a("v_cmp_ne_u32 vcc, v61, v88")
    a("s_or_b64 s[46:47], s[46:47], vcc")
    a("v_cmp_ne_u32 vcc, v63, v88")
    a("s_or_b64 s[46:47], s[46:47], vcc")
    a(f"s_cbranch_scc0 {name}_kd")
    a(f"s_sleep {KSLEEP}")
    a("s_sub_u32 s69, s69, 1")
    a(f"s_cbranch_scc0 {name}_kp")
    a("s_mov_b32 s69, 0")
    a.label(f"{name}_kd")
    a("v_max3_u32 v56, v56, v58, v60")
    a("v_max_u32 v56, v56, v62")
    wave_allreduce(a, "v_max_u32", 56, 57)
    a("ds_write_b32 v5, v56 offset:64")
    a("s_cmp_lg_u32 s2, 64")
    a(f"s_cbranch_scc1 {name}_noann")
    a("v_mov_b32 v57, v88")
    a(f"s_mov_b32 s45, {WS_ANN}")
    a("buffer_store_dwordx2 v[56:57], v5, s[24:27], s45 offen sc0 sc1")
    a.label(f"{name}_noann")
    a("s_waitcnt lgkmcnt(0)")
    a.label(f"{name}_kw")
    a("s_barrier")
    a("ds_read_b32 v56, v5 offset:64")
    a("s_waitcnt lgkmcnt(0)")
    a("v_readfirstlane_b32 s38, v56")
    stamp(a, 5)
    a("s_cmp_eq_u32 s51, 0")
    a(f"s_cbranch_scc1 {name}_nodef")
    a("s_cmp_eq_u32 s38, s39")
    a(f"s_cbranch_scc1 {name}_nodef")
    a(f"buffer_store_dwordx4 v[{OUT}:{OUT + 3}], v3, s[20:23], s34 offen{OWT}")
    a.label(f"{name}_nodef")
    a("s_and_b32 s39, s38, 0xffff")
    a("s_sub_u32 s39, 2047, s39")
    a("s_lshr_b32 s40, s39, 3")
    a("s_lshl_b32 s40, s40, 12")
    a(f"s_add_u32 s40, s40, {WS_ROWS}")
    a(f"s_cmp_lt_u32 s2, {NSL}")
    a(f"s_cbranch_scc0 {name}_red")
    a("v_lshlrev_b32 v9, 4, v6")
    a("v_add_u32 v9, s40, v9")
    A = 32
    a.label(f"{name}_xp")
    a("buffer_load_dwordx4 v[56:59], v9, s[24:27], 0 offen offset:2048 sc1")
    for i in range(16):
        a(f"v_mov_b32 v{A + i}, 0")
    a("s_waitcnt vmcnt(0)")
    a("v_cmp_ne_u32 s[46:47], v57, v88")
    a("v_cmp_ne_u32 vcc, v59, v88")
    a("s_or_b64 s[46:47], s[46:47], vcc")
    a(f"s_cbranch_scc0 {name}_xd")
    a("s_sub_u32 s69, s69, 1")
    a(f"s_cbranch_scc0 {name}_xp")
    a("s_mov_b32 s69, 0")
    a.label(f"{name}_xd")
    stamp(a, 6)
    X = 60
    a(f"v_lshlrev_b32 v{X}, 16, v56")
    a(f"v_and_b32 v{X + 1}, s53, v56")
    a(f"v_lshlrev_b32 v{X + 2}, 16, v58")
    a(f"v_and_b32 v{X + 3}, s53, v58")
    for j in range(4):
        for (M, ao) in ((G, 0), (U, 8)):
            for i in range(4):
                t = 64 + 2 * i
                a(f"v_lshlrev_b32 v{t}, 16, v{M + 4 * j + i}")
                a(f"v_and_b32 v{t + 1}, s53, v{M + 4 * j + i}")
            for i in range(4):
                t = 64 + 2 * i
                a(f"v_fmac_f32 v{A + ao + 2 * i}, v{X + j}, v{t}")
                a(f"v_fmac_f32 v{A + ao + 2 * i + 1}, v{X + j}, v{t + 1}")
    a("s_nop 1")
    for i in range(8):
        a(f"v_permlane32_swap_b32 v{A + i}, v{A + i + 8}")
    a("s_nop 1")
    for i in range(8):
        a(f"v_add_f32 v{A + i}, v{A + i}, v{A + i + 8}")
    a("s_nop 1")
    for i in range(4):
        a(f"v_permlane16_swap_b32 v{A + i}, v{A + i + 4}")
    a("s_nop 1")
    for i in range(4):
        a(f"v_add_f32 v{A + i}, v{A + i}, v{A + i + 4}")
    a("s_nop 1")
    for i in range(4):
        a(f"v_add_f32_dpp v{A + i}, v{A + i}, v{A + i} row_ror:4 {DPP}")
    a("s_nop 1")
    for i in range(4):
        a(f"v_add_f32_dpp v{A + i}, v{A + i}, v{A + i} row_ror:8 {DPP}")
    a("v_and_b32 v9, 3, v2")
    a("v_lshlrev_b32 v9, 5, v9")
    a("v_bfe_u32 v10, v2, 4, 1")
    a("v_lshl_add_u32 v9, v10, 4, v9")
    a("v_bfe_u32 v10, v2, 5, 1")
    a("v_lshl_add_u32 v9, v10, 7, v9")
    a("s_lshl_b32 s37, s32, 8")
    a("v_add_u32 v9, s37, v9")
    a(f"ds_write_b128 v9, v[{A}:{A + 3}] offset:128")
    a("s_waitcnt lgkmcnt(0)")
    a("s_barrier")
    a("v_lshlrev_b32 v9, 2, v2")
    for w in range(8):
        a(f"ds_read_b32 v{56 + w}, v9 offset:{128 + 256 * w}")
    a("s_waitcnt lgkmcnt(0)")
    a("v_add_f32 v56, v56, v57")
    a("v_add_f32 v58, v58, v59")
    a("v_add_f32 v60, v60, v61")
    a("v_add_f32 v62, v62, v63")
    a("v_add_f32 v56, v56, v58")
    a("v_add_f32 v60, v60, v62")
    a("v_add_f32 v56, v56, v60")
    a("v_mov_b32 v60, v56")
    a("s_nop 1")
    a("v_permlane32_swap_b32 v56, v60")
    a("s_nop 1")
    a("v_cvt_pk_bf16_f32 v56, v56, v60")
    a("v_and_b32 v60, s53, v56")
    a("v_lshlrev_b32 v56, 16, v56")
    a("v_mul_f32 v57, 0xbfb8aa3b, v56")
    a("v_exp_f32 v57, v57")
    a("s_nop 0")
    a("v_add_f32 v57, 1.0, v57")
    a("v_rcp_f32 v57, v57")
    a("s_nop 0")
    a("v_mul_f32 v56, v56, v57")
    a("v_cvt_pk_bf16_f32 v56, v56, v56")
    a("v_lshlrev_b32 v56, 16, v56")
    a("v_mul_f32 v56, v56, v60")
    a("v_cvt_pk_bf16_f32 v56, v56, v56")
    a("v_lshlrev_b32 v56, 16, v56")
    a("s_lshl_b32 s37, s32, 2")
    for j in range(4):
        a(f"s_add_u32 s36, s37, {j}")
        a("s_nop 0")
        a(f"v_readlane_b32 s{40 + j}, v56, s36")
    for j in range(4):
        for i in range(4):
            t = 64 + 2 * i
            a(f"v_lshlrev_b32 v{t}, 16, v{W + 4 * j + i}")
            a(f"v_and_b32 v{t + 1}, s53, v{W + 4 * j + i}")
        for i in range(4):
            t = 64 + 2 * i
            if j == 0:
                a(f"v_mul_f32 v{A + 2 * i}, s{40 + j}, v{t}")
                a(f"v_mul_f32 v{A + 2 * i + 1}, s{40 + j}, v{t + 1}")
            else:
                a(f"v_fmac_f32 v{A + 2 * i}, s{40 + j}, v{t}")
                a(f"v_fmac_f32 v{A + 2 * i + 1}, s{40 + j}, v{t + 1}")
    a("s_lshl_b32 s37, s32, 11")
    a("v_add_u32 v9, s37, v4")
    a(f"ds_write_b128 v9, v[{A}:{A + 3}] offset:4096")
    a(f"ds_write_b128 v9, v[{A + 4}:{A + 7}] offset:4112")
    a("s_waitcnt lgkmcnt(0)")
    a("s_barrier")
    a("v_lshlrev_b32 v9, 2, v0")
    for w in range(8):
        a(f"ds_read_b32 v{56 + w}, v9 offset:{4096 + 2048 * w}")
    a("s_lshl_b32 s37, s2, 12")
    a(f"s_add_u32 s37, s37, {WS_SLABS}")
    a("v_lshlrev_b32 v9, 3, v0")
    a("s_waitcnt lgkmcnt(0)")
    a("v_add_f32 v56, v56, v57")
    a("v_add_f32 v58, v58, v59")
    a("v_add_f32 v60, v60, v61")
    a("v_add_f32 v62, v62, v63")
    a("v_add_f32 v56, v56, v58")
    a("v_add_f32 v60, v60, v62")
    a("v_add_f32 v56, v56, v60")
    a("v_mov_b32 v57, v88")
    a("buffer_store_dwordx2 v[56:57], v9, s[24:27], s37 offen sc0 sc1")
    stamp(a, 7)
    a(f"s_branch {name}_fin2")
    a.label(f"{name}_red")
    a("v_lshrrev_b32 v8, 4, v0")
    a("v_and_b32 v9, 15, v0")
    a("s_lshl_b32 s41, s52, 8")
    a(f"s_add_u32 s42, s41, {WS_SLABS}")
    a("v_lshlrev_b32 v10, 12, v8")
    a("v_lshl_add_u32 v10, v9, 4, v10")
    a("v_add_u32 v11, 0x20000, v10")
    a("v_cmp_gt_u32 s[54:55], 24, v8")
    a("s_nop 1")
    a("v_cndmask_b32 v11, v10, v11, s[54:55]")
    a("s_lshl_b32 s43, s52, 7")
    a("s_add_u32 s43, s43, s40")
    a("v_lshlrev_b32 v12, 3, v9")
    a("v_add_u32 v12, s43, v12")
    a("s_and_b32 s44, s38, 0xffff0000")
    a("s_xor_b32 s45, s44, 0x80000000")
    a("s_not_b32 s46, s44")
    a("s_and_b32 s46, s46, 0xffff0000")
    a("s_cmp_ge_u32 s44, 0x80000000")
    a("s_cselect_b32 s44, s45, s46")
    a("v_mov_b32 v13, s44")
    a("v_mul_f32 v13, 0xbfb8aa3b, v13")
    a("v_exp_f32 v13, v13")
    a("s_nop 0")
    a("v_add_f32 v13, 1.0, v13")
    a("v_rcp_f32 v13, v13")
    a("s_nop 0")
    a("v_cvt_pk_bf16_f32 v13, v13, v13")
    a("v_lshlrev_b32 v13, 16, v13")
    a.label(f"{name}_sp")
    a("buffer_load_dwordx4 v[56:59], v10, s[24:27], s42 offen sc1")
    a("buffer_load_dwordx4 v[60:63], v11, s[24:27], s42 offen sc1")
    a("buffer_load_dwordx2 v[64:65], v12, s[24:27], 0 offen sc1")
    a("buffer_load_dwordx2 v[66:67], v12, s[24:27], 0 offen offset:2048 sc1")
    a("s_waitcnt vmcnt(0)")
    a("v_cmp_ne_u32 s[46:47], v57, v88")
    for r in (59, 61, 63, 65, 67):
        a(f"v_cmp_ne_u32 vcc, v{r}, v88")
        a("s_or_b64 s[46:47], s[46:47], vcc")
    a(f"s_cbranch_scc0 {name}_sd")
    a(f"s_sleep {SSLEEP}")
    a("s_sub_u32 s69, s69, 1")
    a(f"s_cbranch_scc0 {name}_sp")
    a("s_mov_b32 s69, 0")
    a.label(f"{name}_sd")
    stamp(a, 6)
    a("v_cndmask_b32 v60, 0, v60, s[54:55]")
    a("v_cndmask_b32 v62, 0, v62, s[54:55]")
    a("v_add_f32 v56, v56, v60")
    a("v_add_f32 v57, v58, v62")
    for sw in ("v_permlane16_swap_b32", "v_permlane32_swap_b32"):
        a("v_mov_b32 v58, v56")
        a("v_mov_b32 v59, v57")
        a("s_nop 1")
        a(f"{sw} v56, v58")
        a(f"{sw} v57, v59")
        a("s_nop 1")
        a("v_add_f32 v56, v56, v58")
        a("v_add_f32 v57, v57, v59")
    a("v_lshlrev_b32 v10, 3, v9")
    a("s_lshl_b32 s37, s32, 7")
    a("v_add_u32 v11, s37, v10")
    a("ds_write_b64 v11, v[56:57] offset:128")
    a("s_waitcnt lgkmcnt(0)")
    a("s_barrier")
    a("s_cmp_lg_u32 s32, 0")
    a(f"s_cbranch_scc1 {name}_fin2")
    for w in range(8):
        a(f"ds_read_b64 v[{32 + 2 * w}:{33 + 2 * w}], v10 offset:{128 + 128 * w}")
    a("s_waitcnt lgkmcnt(0)")
    for (d, s1) in ((32, 34), (36, 38), (40, 42), (44, 46), (32, 36), (40, 44), (32, 40)):
        a(f"v_add_f32 v{d}, v{d}, v{s1}")
        a(f"v_add_f32 v{d + 1}, v{d + 1}, v{s1 + 1}")
    y0, y1 = 32, 33
    a(f"v_cvt_pk_bf16_f32 v48, v{y0}, v{y1}")
    a(f"v_lshlrev_b32 v{y0}, 16, v48")
    a(f"v_and_b32 v{y1}, s53, v48")
    a(f"v_mul_f32 v{y0}, v{y0}, v13")
    a(f"v_mul_f32 v{y1}, v{y1}, v13")
    a(f"v_cvt_pk_bf16_f32 v48, v{y0}, v{y1}")
    a(f"v_lshlrev_b32 v{y0}, 16, v48")
    a(f"v_and_b32 v{y1}, s53, v48")
    a("v_lshlrev_b32 v49, 16, v66")
    a("v_and_b32 v50, s53, v66")
    a(f"v_add_f32 v{y0}, v49, v{y0}")
    a(f"v_add_f32 v{y1}, v50, v{y1}")
    a(f"v_cvt_pk_bf16_f32 v48, v{y0}, v{y1}")
    a(f"v_lshlrev_b32 v{y0}, 16, v48")
    a(f"v_and_b32 v{y1}, s53, v48")
    a("v_lshlrev_b32 v49, 16, v64")
    a("v_and_b32 v50, s53, v64")
    a(f"v_add_f32 v{y0}, v49, v{y0}")
    a(f"v_add_f32 v{y1}, v50, v{y1}")
    a(f"v_cvt_pk_bf16_f32 v48, v{y0}, v{y1}")
    a("s_lshl_b32 s39, s39, 10")
    a("s_lshl_b32 s41, s52, 6")
    a("s_add_u32 s39, s39, s41")
    a("v_lshlrev_b32 v10, 2, v9")
    a("v_add_u32 v10, s39, v10")
    a(f"buffer_store_dword v48, v10, s[20:23], 0 offen{OWT}")
    stamp(a, 7)
    a.label(f"{name}_fin2")
    a.label(f"{name}_fin")
    stamp_flush(a, 3, 8, 10, 11)
    if fused:
        return None
    a.label(f"{name}_done")
    a("s_endpgm")
    return kernel_desc(name, 128, 72, 128)


def gen_k5(a, name):
    kernel_begin(a, name)
    a("s_cmp_ge_u32 s2, 16")
    a(f"s_cbranch_scc1 {name}_done")
    stamp(a, 0)
    a("s_load_dwordx2 s[8:9], s[0:1], 80")
    a("s_load_dwordx2 s[10:11], s[0:1], 96")
    a("v_lshrrev_b32 v1, 6, v0")
    a("v_and_b32 v2, 63, v0")
    a("s_nop 0")
    a("v_readfirstlane_b32 s32, v1")
    a("v_lshlrev_b32 v5, 2, v0")
    a("v_lshrrev_b32 v3, 3, v0")
    a("v_and_b32 v4, 7, v0")
    a("v_lshlrev_b32 v6, 11, v3")
    a("v_lshl_add_u32 v6, v4, 4, v6")
    a("s_waitcnt lgkmcnt(0)")
    stamp(a, 1)
    srd(a, 20, 8, 9, S * D * 2)
    srd(a, 24, 10, 11, 14 << 20)
    srd(a, 28, 10, 11, WS_SLAB + NSL * 2048)
    a(f"s_mov_b32 s34, {WS_CAND}")
    a("buffer_load_dword v8, v5, s[24:27], s34 offen")
    a("s_lshl_b32 s34, s2, 7")
    a(f"s_add_u32 s34, s34, {WS_SLAB}")
    a("s_add_u32 s35, s34, 65536")
    a("buffer_load_dwordx4 v[16:19], v6, s[28:31], s34 offen")
    a("buffer_load_dwordx4 v[20:23], v6, s[28:31], s35 offen")
    a("s_waitcnt vmcnt(2)")
    stamp(a, 2)
    emit_winner(a, 8, 12, 9, 38)
    a("s_and_b32 s39, s38, 0xffff")
    a("s_sub_u32 s39, 2047, s39")
    a("s_lshr_b32 s40, s39, 3")
    a("s_lshl_b32 s40, s40, 11")
    a(f"s_add_u32 s40, s40, {WS_CROW}")
    a("s_lshl_b32 s41, s2, 6")
    a("s_add_u32 s40, s40, s41")
    a("v_lshlrev_b32 v9, 3, v4")
    a("v_add_u32 v9, s40, v9")
    a("buffer_load_dwordx2 v[24:25], v9, s[24:27], 0 offen")
    a("buffer_load_dwordx2 v[26:27], v9, s[24:27], 0 offen offset:1024")
    a("s_waitcnt vmcnt(2)")
    for i in range(4):
        a(f"v_add_f32 v{16 + i}, v{16 + i}, v{20 + i}")
    a("s_nop 1")
    for i in range(4):
        a(f"v_add_f32_dpp v{16 + i}, v{16 + i}, v{16 + i} row_ror:8 {DPP}")
    for i in range(4):
        a(f"v_mov_b32 v{20 + i}, v{16 + i}")
    a("s_nop 1")
    for i in range(4):
        a(f"v_permlane16_swap_b32 v{16 + i}, v{20 + i}")
    a("s_nop 1")
    for i in range(4):
        a(f"v_add_f32 v{16 + i}, v{16 + i}, v{20 + i}")
    for i in range(4):
        a(f"v_mov_b32 v{20 + i}, v{16 + i}")
    a("s_nop 1")
    for i in range(4):
        a(f"v_permlane32_swap_b32 v{16 + i}, v{20 + i}")
    a("s_nop 1")
    for i in range(4):
        a(f"v_add_f32 v{16 + i}, v{16 + i}, v{20 + i}")
    a("v_lshlrev_b32 v10, 4, v4")
    a("s_lshl_b32 s37, s32, 7")
    a("v_add_u32 v11, s37, v10")
    a("ds_write_b128 v11, v[16:19] offset:64")
    a("s_waitcnt lgkmcnt(0)")
    a("s_barrier")
    for w in range(4):
        a(f"ds_read_b128 v[{32 + 4 * w}:{35 + 4 * w}], v10 offset:{64 + 128 * w}")
    a("s_and_b32 s42, s38, 0xffff0000")
    a("s_xor_b32 s43, s42, 0x80000000")
    a("s_not_b32 s44, s42")
    a("s_and_b32 s44, s44, 0xffff0000")
    a("s_cmp_ge_u32 s42, 0x80000000")
    a("s_cselect_b32 s42, s43, s44")
    a("v_mov_b32 v12, s42")
    a("v_mul_f32 v13, 0xbfb8aa3b, v12")
    a("v_exp_f32 v13, v13")
    a("s_nop 0")
    a("v_add_f32 v13, 1.0, v13")
    a("v_rcp_f32 v13, v13")
    a("s_nop 0")
    a("v_cvt_pk_bf16_f32 v13, v13, v13")
    a("v_lshlrev_b32 v13, 16, v13")
    a("s_mov_b32 s53, 0xffff0000")
    a("s_waitcnt vmcnt(0) lgkmcnt(0)")
    stamp(a, 3)
    for i in range(4):
        a(f"v_add_f32 v{32 + i}, v{32 + i}, v{36 + i}")
        a(f"v_add_f32 v{40 + i}, v{40 + i}, v{44 + i}")
        a(f"v_add_f32 v{32 + i}, v{32 + i}, v{40 + i}")
    for i in range(2):
        y0, y1 = 32 + 2 * i, 33 + 2 * i
        a(f"v_cvt_pk_bf16_f32 v48, v{y0}, v{y1}")
        a(f"v_lshlrev_b32 v{y0}, 16, v48")
        a(f"v_and_b32 v{y1}, s53, v48")
        a(f"v_mul_f32 v{y0}, v{y0}, v13")
        a(f"v_mul_f32 v{y1}, v{y1}, v13")
        a(f"v_cvt_pk_bf16_f32 v48, v{y0}, v{y1}")
        a(f"v_lshlrev_b32 v{y0}, 16, v48")
        a(f"v_and_b32 v{y1}, s53, v48")
        a(f"v_lshlrev_b32 v49, 16, v{26 + i}")
        a(f"v_and_b32 v50, s53, v{26 + i}")
        a(f"v_add_f32 v{y0}, v49, v{y0}")
        a(f"v_add_f32 v{y1}, v50, v{y1}")
        a(f"v_cvt_pk_bf16_f32 v48, v{y0}, v{y1}")
        a(f"v_lshlrev_b32 v{y0}, 16, v48")
        a(f"v_and_b32 v{y1}, s53, v48")
        a(f"v_lshlrev_b32 v49, 16, v{24 + i}")
        a(f"v_and_b32 v50, s53, v{24 + i}")
        a(f"v_add_f32 v{y0}, v49, v{y0}")
        a(f"v_add_f32 v{y1}, v50, v{y1}")
        a(f"v_cvt_pk_bf16_f32 v{52 + i}, v{y0}, v{y1}")
    a("s_lshl_b32 s39, s39, 10")
    a("s_add_u32 s39, s39, s41")
    a("v_lshlrev_b32 v9, 3, v4")
    a("v_add_u32 v9, s39, v9")
    a("v_cmp_gt_u32 vcc, 8, v0")
    a("s_and_saveexec_b64 s[46:47], vcc")
    a(f"s_cbranch_execz {name}_fin")
    a("buffer_store_dwordx2 v[52:53], v9, s[20:23], 0 offen")
    a.label(f"{name}_fin")
    a("s_mov_b64 exec, -1")
    stamp_flush(a, 5, 4, 10, 11)
    a.label(f"{name}_done")
    a("s_endpgm")
    return kernel_desc(name, 64, 64, 64)


HEADER = open(__file__.rsplit("/", 1)[0] + "/cdna_kernels/" + NAME + ".s.ref").read().split("; Override launch")[0]


def build(path, **opt):
    global STAMP, KSLEEP, SSLEEP, FSLEEP, ASLEEP, ESLEEP, OWT, KSPREAD, WEARLY
    WEARLY = opt.get('wearly', 1)
    KSPREAD = opt.get('ksp', 1)
    ESLEEP = opt.get('es', 4)
    OWT = {0: '', 1: ' sc0 sc1', 2: ' nt'}[opt.get('owt', 0)]
    STAMP = opt.get('stamp', 0)
    KSLEEP, SSLEEP, FSLEEP, ASLEEP = opt.get('ks', 1), opt.get('ss', 1), opt.get('fs', 1), opt.get('as', 8)
    a = Asm()
    only = opt.get("only", 0)
    launches = [
        ("k1_kernel", 256, 512, 163840),
        ("k2_kernel", 256, 512, 163840),
        ("k3_kernel", 256, 512, 64),
        ("k4_kernel", NSL, 512, 18432),
        ("k5_kernel", 16, 256, 1024),
    ]
    if opt.get("fused", 1) == 1:
        launches = launches[:2] + [("kt_kernel", 256, 512, 4096 + 16384)]
    if opt.get("fused", 1) == 2:
        launches = launches[:2]
    if opt.get("f12", 1):
        launches = launches[:1] + launches[2:]
    if only:
        launches = [launches[int(ch) - 1] for ch in str(only)]
    hdr = HEADER
    for (k, g, b, l) in launches:
        hdr += f"; @launch kernel={k} grid=({g},1,1) block=({b},1,1) lds={l}\n"
    a.raw('.amdgcn_target "amdgcn-amd-amdhsa--gfx950"')
    descs = []
    if opt.get("k1g", 0):
        descs.append(gen_k1g(a, "k1_kernel", wt=opt.get("wt1", 1), PRO=opt.get("PRO1", 3), U1=opt.get("U1", 11), wk=opt.get("wk1", 1), cpf=opt.get("cpf", 1), SPOS=opt.get("SPOS", 0), NPOS=opt.get("NPOS", 1)))
    else:
        descs.append(gen_k1e(a, "k1_kernel", wt=opt.get("wt1", 1), PRO=opt.get("PRO1", 3), pf=opt.get("prefetch", 1), pace=opt.get("pace", 1), U1=opt.get("U1", 10), U2=opt.get("U2", 12), pfq=opt.get("pfq", 2), pol=opt.get("pol1", 0), ppol=opt.get("ppol", 0), tlb=opt.get("tlb", 0), UC=opt.get("UC", 13), vst=opt.get("vst", 0), swap=opt.get("swap", 1), wk1=opt.get("wk1", 1), early=opt.get("early", 0), cpre=opt.get("cpre", 0), fuse2=((lambda a, n: gen_k2c(a, n, LA=opt.get("LA", 1), wt=opt.get("wt2", 1), PRO=opt.get("PRO2", 3), rot=opt.get("rot", 1), BARPOS=opt.get("BARPOS", 1), RSTEP=opt.get("RSTEP", 1), wpf=opt.get("wpf", 0), wpf2=opt.get("wpf2", 16), pol=opt.get("pol2", 0), fuse3=(opt.get("fused", 1) == 2), etouch=opt.get("etouch", 0), swap=opt.get("swap", 1), cw=opt.get("cw", -1), fused_in=1)) if opt.get("f12", 1) else None)))
    if not opt.get("f12", 1):
        descs.append(gen_k2c(a, "k2_kernel", LA=opt.get("LA", 1), wt=opt.get("wt2", 1), PRO=opt.get("PRO2", 3), rot=opt.get("rot", 1), BARPOS=opt.get("BARPOS", 1), RSTEP=opt.get("RSTEP", 1), wpf=opt.get("wpf", 0), wpf2=opt.get("wpf2", 16), pol=opt.get("pol2", 0), fuse3=(opt.get("fused", 1) == 2), etouch=opt.get("etouch", 0), swap=opt.get("swap", 1), cw=opt.get("cw", -1)))
    if opt.get("fused", 1) == 1:
        descs.append(gen_kt(a, "kt_kernel"))
    elif opt.get("fused", 1) == 0:
        descs.append(gen_k3b(a, "k3_kernel", wpf=opt.get("wpf3", 0)))
        descs.append(gen_k4b(a, "k4_kernel"))
        descs.append(gen_k5(a, "k5_kernel"))
    a.label("code_end")
    open(path, "w").write(hdr + a.text() + "".join(descs))


if __name__ == "__main__":
    out = sys.argv[1] if len(sys.argv) > 1 else "cdna_kernels/" + NAME + ".s"
    opt = {}
    for kv in sys.argv[2:]:
        k, v = kv.split("=")
        opt[k] = int(v)
    build(out, **opt)
```

```python
import sys

NAME = "sequential_preLN__spectral_fnet__moe_arch_mod__prompt"

WS_AT = 0
WS_Y = 4 << 20
WS_CAND = 12 << 20
WS_CROW = (12 << 20) + 4096
WS_SLAB = (13 << 20)
WS_SIZE = 268435456

S, D, F = 2048, 512, 1792


class Asm:
    def __init__(self):
        self.lines = []

    def __call__(self, s):
        self.lines.append("    " + s)

    def label(self, l):
        self.lines.append(l + ":")

    def raw(self, s):
        self.lines.append(s)

    def text(self):
        return "\n".join(self.lines) + "\n"


class VM:
    def __init__(self, a):
        self.a = a
        self.q = []

    def issue(self, tag):
        self.q.append(tag)

    def wait(self, tag):
        idx = max(i for i, t in enumerate(self.q) if t == tag) if tag in self.q else None
        if idx is None:
            return
        n = len(self.q) - 1 - idx
        assert n <= 63
        self.a(f"s_waitcnt vmcnt({n})")
        self.q = self.q[idx + 1:]

    def wait_all(self):
        self.a("s_waitcnt vmcnt(0)")
        self.q = []


def srd(a, d, lo, hi, nbytes):
    a(f"s_mov_b32 s{d}, s{lo}")
    a(f"s_and_b32 s{d+1}, s{hi}, 0xffff")
    a(f"s_mov_b32 s{d+2}, {nbytes}")
    a(f"s_mov_b32 s{d+3}, 0x00020000")


def kernel_begin(a, name):
    a.raw(".text")
    a.raw(f".globl {name}")
    a.raw(".p2align 8")
    a.raw(f".type {name},@function")
    a.label(name)


def kernel_desc(name, vgpr, sgpr, accum):
    return f""".section .rodata,"a"
.p2align 6
.amdhsa_kernel {name}
  .amdhsa_next_free_vgpr {vgpr}
  .amdhsa_next_free_sgpr {102 if STAMP else sgpr}
  .amdhsa_accum_offset {accum}
  .amdhsa_group_segment_fixed_size 0
  .amdhsa_kernarg_size 104
  .amdhsa_user_sgpr_count 2
  .amdhsa_user_sgpr_kernarg_segment_ptr 1
  .amdhsa_system_sgpr_workgroup_id_x 1
  .amdhsa_float_denorm_mode_32 3
.end_amdhsa_kernel
"""


STAMP = 0
WS_STAMP = 16 << 20
_stamp_kid = {}


def stamp(a, i):
    if STAMP == 1:
        a(f"s_memrealtime s[{70 + 2 * i}:{71 + 2 * i}]")
    elif STAMP == 2:
        a(f"s_memtime s[{70 + 2 * i}:{71 + 2 * i}]")


def stamp_flush(a, kid, n, ws_lo, ws_hi, wave_sgpr="s32"):
    if not STAMP:
        return
    a("s_waitcnt vmcnt(0) lgkmcnt(0)")
    stamp(a, n)
    a(f"s_mov_b32 s92, s{ws_lo}")
    a(f"s_and_b32 s93, s{ws_hi}, 0xffff")
    a(f"s_mov_b32 s94, {WS_SIZE}")
    a("s_mov_b32 s95, 0x00020000")
    a(f"s_add_u32 s96, s2, {kid * 512}")
    a("s_lshl_b32 s96, s96, 4")
    a(f"s_add_u32 s96, s96, {wave_sgpr}")
    a("s_lshl_b32 s96, s96, 7")
    a(f"s_add_u32 s96, s96, {WS_STAMP}")
    a("s_waitcnt lgkmcnt(0)")
    a("v_mov_b32 v0, 0")
    for i in range(n + 1):
        a(f"v_mov_b32 v2, s{70 + 2 * i}")
        a(f"v_mov_b32 v3, s{71 + 2 * i}")
        a(f"buffer_store_dwordx2 v[2:3], v0, s[92:95], s96 offen offset:{8 * i}")
        a("s_nop 1")


ESLEEP = 4
SENT = 0
PSLEEP = 2
WEARLY = 1
KSPREAD = 0
OWT = ''
DPP = "row_mask:0xf bank_mask:0xf"


def emit_perm32(a, dst, src, t):
    a(f"v_and_b32 v{dst}, 3, v{src}")
    a(f"v_lshrrev_b32 v{t}, 3, v{src}")
    a(f"v_lshl_or_b32 v{dst}, v{t}, 2, v{dst}")
    a(f"v_bfe_u32 v{t}, v{src}, 2, 1")
    a(f"v_lshl_or_b32 v{dst}, v{t}, 4, v{dst}")


def wave_allreduce(a, op, v, t):
    a("s_nop 1")
    a(f"{op}_dpp v{v}, v{v}, v{v} quad_perm:[1,0,3,2] {DPP}")
    a("s_nop 1")
    a(f"{op}_dpp v{v}, v{v}, v{v} quad_perm:[2,3,0,1] {DPP}")
    a("s_nop 1")
    a(f"{op}_dpp v{v}, v{v}, v{v} row_half_mirror {DPP}")
    a("s_nop 1")
    a(f"{op}_dpp v{v}, v{v}, v{v} row_mirror {DPP}")
    a(f"v_mov_b32 v{t}, v{v}")
    a("s_nop 1")
    a(f"v_permlane16_swap_b32 v{v}, v{t}")
    a("s_nop 1")
    a(f"{op} v{v}, v{v}, v{t}")
    a(f"v_mov_b32 v{t}, v{v}")
    a("s_nop 1")
    a(f"v_permlane32_swap_b32 v{v}, v{t}")
    a("s_nop 1")
    a(f"{op} v{v}, v{v}, v{t}")


def gen_k1(a, name, prefetch=True):
    kernel_begin(a, name)
    a("s_cmp_ge_u32 s2, 256")
    a(f"s_cbranch_scc1 {name}_done")
    stamp(a, 0)
    a("s_load_dwordx2 s[4:5], s[0:1], 0")
    a("s_load_dwordx4 s[8:11], s[0:1], 24")
    a("s_load_dwordx2 s[6:7], s[0:1], 96")
    a("s_load_dwordx4 s[36:39], s[0:1], 8")
    a("s_load_dwordx4 s[40:43], s[0:1], 56")
    a("s_load_dwordx2 s[44:45], s[0:1], 72")
    a("s_and_b32 s3, s2, 7")
    a("s_lshr_b32 s28, s2, 3")
    a("s_and_b32 s29, s28, 3")
    a("s_lshl_b32 s30, s3, 2")
    a("s_add_u32 s30, s30, s29")
    a("s_lshr_b32 s31, s28, 2")
    a("v_lshrrev_b32 v1, 6, v0")
    a("v_and_b32 v2, 63, v0")
    a("s_nop 0")
    a("v_readfirstlane_b32 s32, v1")
    a("v_lshrrev_b32 v3, 3, v2")
    a("v_and_b32 v4, 7, v2")
    a("s_waitcnt lgkmcnt(0)")
    stamp(a, 1)
    srd(a, 12, 4, 5, S * D * 2)
    a("s_cmp_ge_u32 s31, 4")
    a("s_cselect_b32 s8, s10, s8")
    a("s_cselect_b32 s9, s11, s9")
    srd(a, 16, 8, 9, D * D * 2)
    srd(a, 20, 6, 7, 4 << 20)
    a("s_lshl_b32 s33, s30, 6")
    a("s_lshl_b32 s34, s32, 3")
    a("s_add_u32 s33, s33, s34")
    a("s_lshl_b32 s33, s33, 10")
    a("v_lshlrev_b32 v5, 10, v3")
    a("v_lshl_add_u32 v5, v4, 4, v5")
    XR = 32
    for j in range(8):
        a(f"buffer_load_dwordx4 v[{XR+4*j}:{XR+4*j+3}], v5, s[12:15], s33 offen offset:{128*j}")
    a("v_lshrrev_b32 v6, 4, v2")
    a("v_xor_b32 v6, v6, v4")
    a("v_xor_b32 v7, 4, v6")
    a("v_lshlrev_b32 v8, 10, v3")
    a("v_lshl_add_u32 v6, v6, 4, v8")
    a("v_lshl_add_u32 v7, v7, 4, v8")
    a("s_cmp_ge_u32 s32, 4")
    a(f"s_cbranch_scc1 {name}_helper")
    a("s_and_b32 s35, s31, 3")
    a("s_lshl_b32 s35, s35, 7")
    a("s_lshl_b32 s34, s32, 5")
    a("s_add_u32 s35, s35, s34")
    a("s_lshl_b32 s35, s35, 10")
    a("s_mul_i32 s46, s32, 24576")
    a("s_add_u32 s46, s46, 65536")

    def dma_slot(kk):
        for i in range(4):
            a(f"s_add_u32 m0, s46, {(kk % 6) * 4096 + i * 1024}")
            a(f"s_add_u32 s47, s35, {i * 8192 + kk * 128}")
            a(f"buffer_load_dwordx4 v{6 + (i & 1)}, s[16:19], s47 offen lds")

    for kk in range(6):
        dma_slot(kk)
    a("s_waitcnt vmcnt(24)")
    a(f"s_branch {name}_ln")
    a.label(f"{name}_helper")
    npf = 0
    if prefetch:
        a("s_and_b32 s48, s3, 1")
        a("s_cmp_eq_u32 s48, 1")
        a("s_cselect_b32 s36, s38, s36")
        a("s_cselect_b32 s37, s39, s37")
        srd(a, 24, 36, 37, S * S * 2)
        a("s_lshr_b32 s48, s3, 2")
        a("s_lshl_b32 s48, s48, 10")
        a("s_lshl_b32 s49, s28, 5")
        a("s_add_u32 s48, s48, s49")
        a("s_sub_u32 s49, s32, 4")
        a("s_lshl_b32 s49, s49, 3")
        a("s_add_u32 s48, s48, s49")
        a("s_lshl_b32 s48, s48, 12")
        a("s_bfe_u32 s49, s3, 0x10001")
        a("s_lshl_b32 s49, s49, 11")
        a("s_add_u32 s48, s48, s49")
        a("v_lshrrev_b32 v9, 5, v2")
        a("v_lshlrev_b32 v9, 12, v9")
        a("v_and_b32 v129, 31, v2")
        a("v_lshl_add_u32 v9, v129, 6, v9")
        a("s_waitcnt vmcnt(0)")
        for i in range(4):
            a(f"s_add_u32 s49, s48, {i * 8192}")
            a(f"buffer_load_dword v{130 + i}, v9, s[24:27], s49 offen")
            npf += 1
    a(f"s_waitcnt vmcnt({npf})")
    a.label(f"{name}_ln")
    stamp(a, 2)
    a("s_mov_b32 s50, 0x3f803f80")
    a("s_mov_b32 s51, 0x00003f80")
    a("s_mov_b32 s52, 0x3f800000")
    a("s_mov_b32 s53, 0xffff0000")
    a("v_mov_b32 v16, 0")
    a("v_mov_b32 v17, 0")
    for j in range(32):
        a(f"v_dot2_f32_bf16 v{16 + (j & 1)}, v{XR + j}, s50, v{16 + (j & 1)}")
    a("s_nop 2")
    a("v_add_f32 v16, v16, v17")

    def red8(v):
        a("s_nop 1")
        a(f"v_add_f32_dpp v{v}, v{v}, v{v} quad_perm:[1,0,3,2] {DPP}")
        a("s_nop 1")
        a(f"v_add_f32_dpp v{v}, v{v}, v{v} quad_perm:[2,3,0,1] {DPP}")
        a("s_nop 1")
        a(f"v_add_f32_dpp v{v}, v{v}, v{v} row_half_mirror {DPP}")

    red8(16)
    a("v_mul_f32 v16, 0x3b000000, v16")
    a("v_cvt_pk_bf16_f32 v17, v16, v16")
    a("v_lshlrev_b32 v17, 16, v17")
    a("v_sub_f32 v18, 0, v17")
    a("v_sub_f32 v19, v16, v17")
    a("v_mov_b32 v20, 0")
    a("v_mov_b32 v21, 0")
    for j in range(32):
        t = 22 + 2 * (j & 3)
        a(f"v_dot2_f32_bf16 v{t}, v{XR + j}, s51, v18")
        a(f"v_dot2_f32_bf16 v{t + 1}, v{XR + j}, s52, v18")
        if j >= 1:
            tp = 22 + 2 * ((j - 1) & 3)
            a(f"v_fmac_f32 v20, v{tp}, v{tp}")
            a(f"v_fmac_f32 v21, v{tp + 1}, v{tp + 1}")
            a(f"v_cvt_pk_bf16_f32 v{XR + j - 1}, v{tp}, v{tp + 1}")
    tp = 22 + 2 * (31 & 3)
    a("s_nop 2")
    a(f"v_fmac_f32 v20, v{tp}, v{tp}")
    a(f"v_fmac_f32 v21, v{tp + 1}, v{tp + 1}")
    a(f"v_cvt_pk_bf16_f32 v{XR + 31}, v{tp}, v{tp + 1}")
    a("v_add_f32 v20, v20, v21")
    red8(20)
    a("v_mul_f32 v20, 0x3b000000, v20")
    a("v_fma_f32 v20, -v19, v19, v20")
    a("v_max_f32 v20, 0, v20")
    a("v_cvt_pk_bf16_f32 v20, v20, v20")
    a("v_lshlrev_b32 v20, 16, v20")
    a("v_add_f32 v20, 0x3727c5ac, v20")
    a("v_cvt_pk_bf16_f32 v20, v20, v20")
    a("v_lshlrev_b32 v20, 16, v20")
    a("v_sqrt_f32 v20, v20")
    a("s_nop 0")
    a("v_cvt_pk_bf16_f32 v20, v20, v20")
    a("v_lshlrev_b32 v20, 16, v20")
    a("v_rcp_f32 v20, v20")
    a("s_nop 0")
    for j in range(32):
        t = 22 + 2 * (j & 3)
        a(f"v_lshlrev_b32 v{t}, 16, v{XR + j}")
        a(f"v_and_b32 v{t + 1}, s53, v{XR + j}")
        a(f"v_mul_f32 v{t}, v{t}, v20")
        a(f"v_mul_f32 v{t + 1}, v{t + 1}, v20")
        a(f"v_cvt_pk_bf16_f32 v{XR + j}, v{t}, v{t + 1}")
    a("s_lshl_b32 s34, s32, 3")
    a("v_add_u32 v9, s34, v3")
    a("v_bfe_u32 v10, v9, 1, 3")
    a("v_xor_b32 v10, v10, v4")
    a("v_lshlrev_b32 v10, 4, v10")
    a("v_lshl_add_u32 v10, v9, 7, v10")
    for j in range(8):
        a(f"ds_write_b128 v10, v[{XR + 4 * j}:{XR + 4 * j + 3}] offset:{8192 * j}")
    stamp(a, 3)
    a("s_waitcnt lgkmcnt(0)")
    a("s_barrier")
    stamp(a, 4)
    a("s_cmp_ge_u32 s32, 4")
    a(f"s_cbranch_scc1 {name}_fin")
    a("v_and_b32 v9, 31, v2")
    emit_perm32(a, 10, 9, 11)
    a("v_bfe_u32 v11, v10, 1, 3")
    a("v_lshrrev_b32 v12, 5, v2")
    a("v_xor_b32 v11, v11, v12")
    a("v_lshlrev_b32 v11, 4, v11")
    a("v_lshl_add_u32 v11, v10, 7, v11")
    for c in range(4):
        a(f"v_xor_b32 v{12 + c}, {c * 32}, v11")
        a(f"v_add_u32 v{16 + c}, s46, v{12 + c}")
    ACC = 64
    FR = [96, 108, 120]
    for i in range(32):
        a(f"v_mov_b32 v{ACC + i}, 0")
    units = [(kk, c) for kk in range(8) for c in range(4)]
    vq = [kk for kk in range(6) for _ in range(4)]

    def wait_slot(kk):
        nonlocal vq
        if kk in vq:
            idx = max(i for i, t in enumerate(vq) if t == kk)
            a(f"s_waitcnt vmcnt({len(vq) - 1 - idx})")
            vq = vq[idx + 1:]

    def reads(n):
        kk, c = units[n]
        f = FR[n % 3]
        if c == 0:
            wait_slot(kk)
        a(f"ds_read_b128 v[{f}:{f + 3}], v{16 + c} offset:{(kk % 6) * 4096}")
        a(f"ds_read_b128 v[{f + 4}:{f + 7}], v{12 + c} offset:{kk * 8192}")
        a(f"ds_read_b128 v[{f + 8}:{f + 11}], v{12 + c} offset:{kk * 8192 + 4096}")

    reads(0)
    reads(1)
    for n in range(len(units)):
        kk, c = units[n]
        if n + 2 < len(units):
            reads(n + 2)
            a("s_waitcnt lgkmcnt(6)")
        elif n + 1 < len(units):
            a("s_waitcnt lgkmcnt(3)")
        else:
            a("s_waitcnt lgkmcnt(0)")
        f = FR[n % 3]
        a(f"v_mfma_f32_32x32x16_bf16 v[{ACC}:{ACC + 15}], v[{f + 4}:{f + 7}], v[{f}:{f + 3}], v[{ACC}:{ACC + 15}]")
        a(f"v_mfma_f32_32x32x16_bf16 v[{ACC + 16}:{ACC + 31}], v[{f + 8}:{f + 11}], v[{f}:{f + 3}], v[{ACC + 16}:{ACC + 31}]")
        if c == 3 and kk + 6 < 8:
            dma_slot(kk + 6)
            vq += [kk + 6] * 4
    stamp(a, 5)
    a("s_lshl_b32 s34, s31, 2")
    a("s_add_u32 s34, s34, s32")
    a("s_lshl_b32 s34, s34, 6")
    a("s_lshl_b32 s33, s30, 1")
    a("s_add_u32 s34, s34, s33")
    a("s_lshl_b32 s34, s34, 11")
    a("v_lshlrev_b32 v9, 4, v2")
    a("s_nop 7")
    a("s_nop 3")
    for sh in range(2):
        for i in range(8):
            a(f"v_cvt_pk_bf16_f32 v{32 + 8 * sh + i}, v{ACC + 16 * sh + 2 * i}, v{ACC + 16 * sh + 2 * i + 1}")
    for sh in range(2):
        for u in range(2):
            r = 32 + 8 * sh + 4 * u
            a(f"buffer_store_dwordx4 v[{r}:{r + 3}], v9, s[20:23], s34 offen offset:{sh * 2048 + u * 1024}")
    a.label(f"{name}_fin")
    stamp_flush(a, 1, 6, 6, 7)
    a.label(f"{name}_done")
    a("s_endpgm")
    return kernel_desc(name, 136, 64, 136)


def gen_k2(a, name, NS=9, ED=3, nomfma=0, noload=0, spread=0, noC=0, noE=0):
    kernel_begin(a, name)
    a("s_cmp_ge_u32 s2, 256")
    a(f"s_cbranch_scc1 {name}_done")
    stamp(a, 0)
    a("s_load_dwordx4 s[4:7], s[0:1], 8")
    a("s_load_dwordx2 s[8:9], s[0:1], 96")
    a("s_and_b32 s3, s2, 7")
    a("s_lshr_b32 s28, s2, 3")
    a("s_and_b32 s29, s3, 1")
    a("s_lshr_b32 s30, s3, 1")
    a("s_lshl_b32 s30, s30, 2")
    a("s_and_b32 s31, s28, 3")
    a("s_add_u32 s30, s30, s31")
    a("s_lshr_b32 s31, s28, 2")
    a("v_lshrrev_b32 v200, 6, v0")
    a("v_and_b32 v201, 63, v0")
    a("s_nop 0")
    a("v_readfirstlane_b32 s32, v200")
    a("v_lshrrev_b32 v202, 3, v201")
    a("v_and_b32 v203, 7, v201")
    a("v_lshrrev_b32 v204, 4, v201")
    a("v_xor_b32 v204, v204, v203")
    a("v_xor_b32 v205, 4, v204")
    a("v_lshlrev_b32 v206, 12, v202")
    a("v_lshl_add_u32 v204, v204, 4, v206")
    a("v_lshl_add_u32 v205, v205, 4, v206")
    a("v_lshlrev_b32 v206, 4, v201")
    a("s_waitcnt lgkmcnt(0)")
    stamp(a, 1)
    a("s_cmp_eq_u32 s29, 1")
    a("s_cselect_b32 s4, s6, s4")
    a("s_cselect_b32 s5, s7, s5")
    srd(a, 12, 4, 5, S * S * 2)
    srd(a, 16, 8, 9, 8 << 20)
    a("s_lshl_b32 s35, s30, 19")
    a("s_lshl_b32 s34, s32, 10")
    a("s_add_u32 s35, s35, s34")
    for j in range(4):
        a(f"s_add_u32 s34, s32, {j}")
        a("s_and_b32 s34, s34, 3")
        a(f"s_mov_b32 s{52 + j}, s34")
        a("s_lshl_b32 s34, s34, 17")
        a(f"s_add_u32 s{40 + j}, s35, s34")
    a("s_lshl_b32 s36, s29, 4")
    a("s_lshl_b32 s34, s31, 1")
    a("s_add_u32 s36, s36, s34")
    a("s_lshl_b32 s36, s36, 6")
    a("s_lshl_b32 s34, s32, 4")
    a("s_add_u32 s36, s36, s34")
    a("s_lshl_b32 s36, s36, 11")
    a("s_add_u32 s37, s36, 131072")
    RING = NS * 4096
    a(f"s_mul_i32 s46, s32, {RING}")
    vm = VM(a)

    pend = []

    def dma_one(n, i):
        kk, j = n // 4, n % 4
        if noload or noC:
            return
        a(f"s_add_u32 m0, s46, {(n % NS) * 4096 + i * 1024}")
        a(f"s_add_u32 s47, s{40 + j}, {(i * 8) * 4096 + kk * 128}")
        a(f"buffer_load_dwordx4 v{204 + (i & 1)}, s[12:15], s47 offen lds")
        vm.issue(("C", n))

    def e_one(kk, et2, c):
        if noload or noE:
            return
        st = kk % ED
        r = st * 32 + et2 * 16 + c * 4
        a(f"s_add_u32 s48, s{36 + et2}, {kk * 4096}")
        a(f"buffer_load_dwordx4 a[{r}:{r + 3}], v206, s[16:19], s48 offen offset:{c * 1024}")
        vm.issue(("E", kk))

    def dma_slot(n, defer=False):
        for i in range(4):
            if defer:
                pend.append(lambda n=n, i=i: dma_one(n, i))
            else:
                dma_one(n, i)

    def e_loads(kk, defer=False):
        for et2 in range(2):
            for c in range(4):
                if defer:
                    pend.append(lambda kk=kk, et2=et2, c=c: e_one(kk, et2, c))
                else:
                    e_one(kk, et2, c)

    def flush_pend(pred=None, maxn=None):
        cnt = 0
        while pend and (maxn is None or cnt < maxn):
            pend.pop(0)()
            cnt += 1

    nslot_issued = 0
    for kk in range(ED):
        e_loads(kk)
        for tt in range(4):
            if nslot_issued < NS:
                dma_slot(nslot_issued)
                nslot_issued += 1
    while nslot_issued < NS:
        dma_slot(nslot_issued)
        nslot_issued += 1
    stamp(a, 2)
    a("v_and_b32 v207, 31, v201")
    a("v_bfe_u32 v208, v207, 1, 3")
    a("v_lshrrev_b32 v209, 5, v201")
    a("v_lshlrev_b32 v209, 1, v209")
    a("v_xor_b32 v208, v208, v209")
    a("v_lshlrev_b32 v208, 4, v208")
    a("v_lshl_add_u32 v208, v207, 7, v208")
    for c in range(4):
        x = ((c >> 1) * 4 + (c & 1)) << 4
        a(f"v_xor_b32 v{210 + c}, {x}, v208")
        a(f"v_add_u32 v{210 + c}, s46, v{210 + c}")
    for i in range(128):
        a(f"v_mov_b32 v{i}, 0")
    def pend_has(tag):
        return any(getattr(p, '__defaults__', (None,))[0] == tag[1] and len(p.__defaults__) == (2 if tag[0] == 'C' else 3) for p in pend)

    units = [(n, c) for n in range(32) for c in range(4)]
    NF = 6
    LOOKAHEAD = 4

    def reads(un):
        n, c = units[un]
        if c == 0:
            assert noload or noC or vm.q.count(("C", n)) == 4 or ("C", n) not in vm.q and n < nslot_issued and not pend_has(("C", n))
            vm.wait(("C", n))
        f = 128 + 4 * (un % NF)
        a(f"ds_read_b128 v[{f}:{f + 3}], v{210 + c} offset:{(n % NS) * 4096}")

    for un in range(LOOKAHEAD):
        reads(un)
    for un in range(len(units)):
        n, c = units[un]
        kk, j = n // 4, n % 4
        if un + LOOKAHEAD < len(units):
            reads(un + LOOKAHEAD)
            a(f"s_waitcnt lgkmcnt({LOOKAHEAD})")
        else:
            a(f"s_waitcnt lgkmcnt({len(units) - 1 - un})")
        if j == 0 and c == 0:
            assert not pend_has(("E", kk))
            vm.wait(("E", kk))
        f = 128 + 4 * (un % NF)
        st = kk % ED
        if un == 0:
            stamp(a, 3)
        if un == 64:
            stamp(a, 4)
        for et2 in range(2):
            acc = (j * 2 + et2) * 16
            r = st * 32 + et2 * 16 + c * 4
            if not nomfma:
                a(f"v_mfma_f32_32x32x16_bf16 v[{acc}:{acc + 15}], a[{r}:{r + 3}], v[{f}:{f + 3}], v[{acc}:{acc + 15}]")
            if spread:
                flush_pend(maxn=1)
        if c == 3:
            if nslot_issued < 32:
                dma_slot(nslot_issued, defer=bool(spread))
                nslot_issued += 1
            if j == 3 and kk + ED < 8:
                e_loads(kk + ED, defer=bool(spread))
    stamp(a, 5)
    a("s_barrier")
    stamp(a, 6)
    for j in range(1, 4):
        a(f"s_mul_i32 s34, s{52 + j}, 24576")
        a(f"s_add_u32 s34, s34, {(j - 1) * 8192}")
        a(f"v_add_u32 v{214 + j}, s34, v206")
    a("s_mul_i32 s34, s32, 24576")
    a("v_add_u32 v214, s34, v206")
    a("s_nop 7")
    for j in range(1, 4):
        for q in range(8):
            r = j * 32 + 4 * q
            a(f"ds_write_b128 v{214 + j}, v[{r}:{r + 3}] offset:{q * 1024}")
    a("s_waitcnt lgkmcnt(0)")
    a("s_barrier")
    stamp(a, 7)
    for j in range(1, 4):
        for q in range(8):
            r = j * 32 + 4 * q
            a(f"ds_read_b128 v[{r}:{r + 3}], v214 offset:{(j - 1) * 8192 + q * 1024}")
    a("s_lshl_b32 s34, s30, 7")
    a("s_lshl_b32 s33, s32, 5")
    a("s_add_u32 s34, s34, s33")
    a("s_lshl_b32 s34, s34, 10")
    a("s_lshl_b32 s33, s31, 7")
    a("s_add_u32 s34, s34, s33")
    a("s_lshl_b32 s33, s29, 21")
    a("s_add_u32 s34, s34, s33")
    a(f"s_add_u32 s34, s34, {WS_Y}")
    a("v_lshrrev_b32 v209, 5, v201")
    a("v_lshlrev_b32 v209, 5, v209")
    a("v_lshl_add_u32 v209, v207, 10, v209")
    for j in range(1, 4):
        a(f"s_waitcnt lgkmcnt({min(15, (3 - j) * 8)})")
        for i in range(32):
            a(f"v_add_f32 v{i}, v{i}, v{j * 32 + i}")
    for i in range(16):
        a(f"v_cvt_pk_bf16_f32 v{128 + i}, v{2 * i}, v{2 * i + 1}")
    for et2 in range(2):
        for hh in range(2):
            r = 128 + et2 * 8 + hh * 4
            a(f"buffer_store_dwordx4 v[{r}:{r + 3}], v209, s[16:19], s34 offen offset:{et2 * 64 + hh * 16}")
    stamp_flush(a, 2, 8, 8, 9)
    a.label(f"{name}_done")
    a("s_endpgm")
    return kernel_desc(name, 224 + 32 * ED, 64, 224)


WS_P = 4 << 20


def gen_k2b(a, name, NSTG=5, LA=2, nomfma=0, noread=0, nodma=0, nostore=0):
    kernel_begin(a, name)
    a("s_cmp_ge_u32 s2, 256")
    a(f"s_cbranch_scc1 {name}_done")
    stamp(a, 0)
    a("s_load_dwordx4 s[4:7], s[0:1], 8")
    a("s_load_dwordx2 s[8:9], s[0:1], 96")
    a("s_and_b32 s3, s2, 7")
    a("s_lshr_b32 s28, s2, 3")
    a("s_and_b32 s29, s3, 1")
    a("s_bfe_u32 s27, s3, 0x10001")
    a("s_lshr_b32 s30, s3, 2")
    a("s_lshl_b32 s30, s30, 3")
    a("s_and_b32 s31, s28, 7")
    a("s_add_u32 s30, s30, s31")
    a("s_lshr_b32 s31, s28, 3")
    a("v_lshrrev_b32 v1, 6, v0")
    a("v_and_b32 v2, 63, v0")
    a("s_nop 0")
    a("v_readfirstlane_b32 s32, v1")
    a("v_lshlrev_b32 v3, 4, v2")
    a("s_waitcnt lgkmcnt(0)")
    stamp(a, 1)
    a("s_cmp_eq_u32 s29, 1")
    a("s_cselect_b32 s4, s6, s4")
    a("s_cselect_b32 s5, s7, s5")
    srd(a, 12, 4, 5, S * S * 2)
    srd(a, 16, 8, 9, 12 << 20)
    a("s_cmp_lt_u32 s32, 4")
    a(f"s_cbranch_scc1 {name}_cons")
    a("s_sub_u32 s33, s32, 4")
    a("v_lshrrev_b32 v4, 3, v2")
    a("v_and_b32 v5, 7, v2")
    a("v_lshrrev_b32 v6, 4, v2")
    a("v_xor_b32 v6, v6, v5")
    a("v_xor_b32 v7, 4, v6")
    a("v_lshlrev_b32 v4, 12, v4")
    a("v_lshl_add_u32 v6, v6, 4, v4")
    a("v_lshl_add_u32 v7, v7, 4, v4")
    a("v_mov_b32 v8, v6")
    a(f"v_add_u32 v9, {32768 - 1024}, v7")
    a(f"v_add_u32 v10, {2 * (32768 - 1024)}, v6")
    a(f"v_add_u32 v11, {3 * (32768 - 1024)}, v7")
    a("s_lshl_b32 s35, s30, 19")
    a("s_lshl_b32 s34, s33, 17")
    a("s_add_u32 s35, s35, s34")
    a("s_lshl_b32 s34, s27, 11")
    a("s_add_u32 s35, s35, s34")
    a("s_lshl_b32 s36, s29, 4")
    a("s_lshl_b32 s34, s31, 2")
    a("s_add_u32 s36, s36, s34")
    a("s_add_u32 s36, s36, s33")
    a("s_lshl_b32 s36, s36, 6")
    a("s_lshl_b32 s34, s27, 5")
    a("s_add_u32 s36, s36, s34")
    a("s_lshl_b32 s36, s36, 11")
    a("s_lshl_b32 s37, s33, 12")

    def load_stage(s):
        slot = (s % NSTG) * 32768
        a(f"s_add_u32 m0, s37, {slot}")
        a(f"s_add_u32 s38, s35, {s * 128}")
        for i in range(4):
            if not nodma:
                a(f"buffer_load_dwordx4 v{8 + i}, s[12:15], s38 offen offset:{i * 1024} lds")
        a(f"s_add_u32 m0, s37, {slot + 16384}")
        a(f"s_add_u32 s39, s36, {s * 4096}")
        for c in range(4):
            if not nodma:
                a(f"buffer_load_dwordx4 v3, s[16:19], s39 offen offset:{c * 1024} lds")

    NST = 16
    for s in range(NSTG - 1):
        load_stage(s)
    stamp(a, 2)
    for s in range(NST):
        issued = min(s + NSTG - 2, NST - 1)
        a(f"s_waitcnt vmcnt({(issued - s) * 8})")
        a("s_barrier")
        if s + NSTG - 1 < NST:
            load_stage(s + NSTG - 1)
    stamp(a, 5)
    a(f"s_branch {name}_fin")
    a.label(f"{name}_cons")
    a("s_and_b32 s33, s32, 1")
    a("s_lshr_b32 s34, s32, 1")
    a("v_and_b32 v4, 31, v2")
    a("v_bfe_u32 v5, v4, 1, 3")
    a("v_lshrrev_b32 v6, 5, v2")
    a("v_lshlrev_b32 v6, 1, v6")
    a("v_xor_b32 v5, v5, v6")
    a("v_lshlrev_b32 v5, 4, v5")
    a("v_lshl_add_u32 v5, v4, 7, v5")
    a("s_lshl_b32 s35, s33, 13")
    a("s_lshl_b32 s36, s34, 13")
    a("s_add_u32 s36, s36, 16384")
    for g in range(3):
        for c in range(4):
            x = ((c >> 1) * 4 + (c & 1)) << 4
            a(f"v_xor_b32 v{8 + 5 * g + c}, {x}, v5")
            a(f"v_add_u32 v{8 + 5 * g + c}, s35, v{8 + 5 * g + c}")
            if g:
                a(f"v_add_u32 v{8 + 5 * g + c}, {65536 * g}, v{8 + 5 * g + c}")
        a(f"v_add_u32 v{8 + 5 * g + 4}, s36, v3")
        if g:
            a(f"v_add_u32 v{8 + 5 * g + 4}, {65536 * g}, v{8 + 5 * g + 4}")
    ACC = 64
    FB = 128
    for i in range(64):
        a(f"v_mov_b32 v{ACC + i}, 0")
    NU = NST * 4

    def reads(u):
        s, c = u // 4, u % 4
        slot = s % NSTG
        g, so = slot // 2, (slot % 2) * 32768
        f = FB + 16 * (u % (LA + 1))
        if c == 0:
            a("s_waitcnt lgkmcnt(0)")
            a("s_barrier")
            if s == 0:
                stamp(a, 3)
            if s == 8:
                stamp(a, 4)
        if noread:
            return
        a(f"ds_read_b128 v[{f}:{f + 3}], v{8 + 5 * g + c} offset:{so}")
        a(f"ds_read_b128 v[{f + 8}:{f + 11}], v{8 + 5 * g + 4} offset:{so + c * 1024}")
        a(f"ds_read_b128 v[{f + 4}:{f + 7}], v{8 + 5 * g + c} offset:{so + 4096}")
        a(f"ds_read_b128 v[{f + 12}:{f + 15}], v{8 + 5 * g + 4} offset:{so + 4096 + c * 1024}")

    for u in range(LA):
        reads(u)
    for u in range(NU):
        if u + LA < NU:
            reads(u + LA)
        nxt = min(u + LA, NU - 1)
        cnt = 0
        for uu in range(u + 1, nxt + 1):
            cnt += 4
        a(f"s_waitcnt lgkmcnt({min(cnt, 15)})")
        f = FB + 16 * (u % (LA + 1))
        for et in range(2):
            for tt in range(2):
                acc = ACC + (et * 2 + tt) * 16
                if not nomfma:
                    a(f"v_mfma_f32_32x32x16_bf16 v[{acc}:{acc + 15}], v[{f + 8 + 4 * et}:{f + 11 + 4 * et}], v[{f + 4 * tt}:{f + 4 * tt + 3}], v[{acc}:{acc + 15}]")
    stamp(a, 5)
    a("s_lshl_b32 s35, s30, 7")
    a("s_lshl_b32 s36, s33, 6")
    a("s_add_u32 s35, s35, s36")
    a("s_lshl_b32 s35, s35, 10")
    a("s_lshl_b32 s36, s31, 8")
    a("s_add_u32 s35, s35, s36")
    a("s_lshl_b32 s36, s34, 7")
    a("s_add_u32 s35, s35, s36")
    a("s_lshl_b32 s36, s29, 1")
    a("s_add_u32 s36, s36, s27")
    a("s_lshl_b32 s36, s36, 21")
    a("s_add_u32 s35, s35, s36")
    a(f"s_add_u32 s35, s35, {WS_P}")
    a("s_add_u32 s36, s35, 32768")
    a("v_lshrrev_b32 v6, 5, v2")
    a("v_lshlrev_b32 v6, 5, v6")
    a("v_lshl_add_u32 v6, v4, 10, v6")
    a("s_nop 4")
    for et in range(2):
        for tt in range(2):
            acc = ACC + (et * 2 + tt) * 16
            o = 24 + (et * 2 + tt) * 8
            for i in range(8):
                a(f"v_cvt_pk_bf16_f32 v{o + i}, v{acc + 2 * i}, v{acc + 2 * i + 1}")
            for hh in range(2):
                if not nostore:
                    a(f"buffer_store_dwordx4 v[{o + 4 * hh}:{o + 4 * hh + 3}], v6, s[16:19], s{35 + tt} offen offset:{et * 64 + hh * 16}")
    a.label(f"{name}_fin")
    stamp_flush(a, 2, 6, 8, 9)
    a.label(f"{name}_done")
    a("s_endpgm")
    nv = FB + 16 * (LA + 1)
    return kernel_desc(name, nv, 64, nv)


def emit_perm2(a, dst, src, t):
    a(f"v_and_b32 v{dst}, 3, v{src}")
    a(f"v_bfe_u32 v{t}, v{src}, 2, 2")
    a(f"v_lshl_or_b32 v{dst}, v{t}, 3, v{dst}")
    a(f"v_bfe_u32 v{t}, v{src}, 4, 1")
    a(f"v_lshl_or_b32 v{dst}, v{t}, 2, v{dst}")


def gen_k1b(a, name, prefetch=1, wt=0, nostats=0, nocs=0, PRO=6, pfpos=2, rot=1):
    NSTG, SLOT = 6, 24576
    STATS = NSTG * SLOT
    kernel_begin(a, name)
    a("s_cmp_ge_u32 s2, 256")
    a(f"s_cbranch_scc1 {name}_done")
    stamp(a, 0)
    a("s_load_dwordx2 s[4:5], s[0:1], 0")
    a("s_load_dwordx4 s[8:11], s[0:1], 24")
    a("s_load_dwordx2 s[6:7], s[0:1], 96")
    a("s_load_dwordx4 s[40:43], s[0:1], 8")
    a("s_and_b32 s3, s2, 7")
    a("s_lshr_b32 s28, s2, 3")
    a("s_and_b32 s29, s28, 3")
    a("s_lshl_b32 s30, s3, 2")
    a("s_add_u32 s30, s30, s29")
    a("s_lshr_b32 s31, s28, 2")
    a("v_lshrrev_b32 v1, 6, v0")
    a("v_and_b32 v2, 63, v0")
    a("s_nop 0")
    a("v_readfirstlane_b32 s32, v1")
    a("s_mov_b32 s53, 0xffff0000")
    a("s_cmp_lt_u32 s32, 4")
    a(f"s_cbranch_scc1 {name}_cons")
    a("s_sub_u32 s33, s32, 4")
    a("v_lshrrev_b32 v3, 3, v2")
    a("v_and_b32 v4, 7, v2")
    a("v_lshrrev_b32 v6, 4, v2")
    a("v_xor_b32 v6, v6, v4")
    a("v_xor_b32 v7, 4, v6")
    a("v_lshlrev_b32 v3, 10, v3")
    a("v_lshl_add_u32 v8, v6, 4, v3")
    a("v_lshl_add_u32 v7, v7, 4, v3")
    a(f"v_add_u32 v9, {8192 - 1024}, v7")
    a(f"v_add_u32 v10, {2 * (8192 - 1024)}, v8")
    a(f"v_add_u32 v11, {3 * (8192 - 1024)}, v7")
    a("s_lshl_b32 s35, s30, 6")
    a("s_lshl_b32 s34, s33, 4")
    a("s_add_u32 s35, s35, s34")
    a("s_lshl_b32 s35, s35, 10")
    a("s_and_b32 s36, s31, 3")
    a("s_lshl_b32 s36, s36, 7")
    a("s_lshl_b32 s34, s33, 5")
    a("s_add_u32 s36, s36, s34")
    a("s_lshl_b32 s36, s36, 10")
    a("s_lshl_b32 s37, s33, 11")
    a("s_lshl_b32 s38, s33, 12")
    a("s_add_u32 s38, s38, 8192")
    a("s_lshl_b32 s34, s29, 1")
    a("s_add_u32 s34, s34, s31")
    for kk in range(8):
        if rot:
            a(f"s_add_u32 s39, s34, {kk}")
            a("s_and_b32 s39, s39, 7")
            a(f"s_lshl_b32 s{54 + kk}, s39, 7")
        else:
            a(f"s_mov_b32 s{54 + kk}, {kk * 128}")
    a("s_waitcnt lgkmcnt(0)")
    stamp(a, 1)
    srd(a, 12, 4, 5, S * D * 2)
    a("s_cmp_ge_u32 s31, 4")
    a("s_cselect_b32 s8, s10, s8")
    a("s_cselect_b32 s9, s11, s9")
    srd(a, 16, 8, 9, D * D * 2)

    def load_stage(kk):
        slot = (kk % NSTG) * SLOT
        a(f"s_add_u32 m0, s37, {slot}")
        a(f"s_add_u32 s39, s35, s{54 + kk}")
        for i in range(2):
            a(f"buffer_load_dwordx4 v{8 + i}, s[12:15], s39 offen offset:{i * 1024} lds")
        a(f"s_add_u32 m0, s38, {slot}")
        a(f"s_add_u32 s39, s36, s{54 + kk}")
        for i in range(4):
            a(f"buffer_load_dwordx4 v{8 + i}, s[16:19], s39 offen offset:{i * 1024} lds")

    for kk in range(PRO):
        load_stage(kk)
    stamp(a, 2)
    a("v_lshrrev_b32 v12, 2, v2")
    a("v_lshlrev_b32 v12, 7, v12")
    a("v_and_b32 v13, 3, v2")
    a("v_lshl_add_u32 v12, v13, 5, v12")
    a("v_add_u32 v12, s37, v12")
    a(f"v_add_u32 v13, {3 * SLOT}, v12")
    a("v_mov_b32 v14, 0")
    a("v_mov_b32 v15, 0")
    a("v_mov_b32 v16, 0")
    a("v_mov_b32 v17, 0")
    issued = PRO
    npf = 0

    def emit_prefetch(vb):
        a("s_and_b32 s48, s3, 1")
        a("s_cmp_eq_u32 s48, 1")
        a("s_cselect_b32 s40, s42, s40")
        a("s_cselect_b32 s41, s43, s41")
        srd(a, 24, 40, 41, S * S * 2)
        a("s_lshr_b32 s48, s3, 2")
        a("s_lshl_b32 s48, s48, 10")
        a("s_lshl_b32 s49, s28, 5")
        a("s_add_u32 s48, s48, s49")
        a("s_and_b32 s49, s32, 3")
        a("s_lshl_b32 s49, s49, 3")
        a("s_add_u32 s48, s48, s49")
        a("s_lshl_b32 s48, s48, 12")
        a("s_bfe_u32 s49, s3, 0x10001")
        a("s_lshl_b32 s49, s49, 11")
        a("s_add_u32 s48, s48, s49")
        a(f"v_lshrrev_b32 v{vb}, 4, v2")
        a(f"v_lshlrev_b32 v{vb}, 12, v{vb}")
        a(f"v_and_b32 v{vb + 1}, 15, v2")
        a(f"v_lshl_add_u32 v{vb}, v{vb + 1}, 7, v{vb}")
        for i in range(2):
            a(f"s_add_u32 s49, s48, {i * 16384}")
            a(f"buffer_load_dword v{vb + 2 + i}, v{vb}, s[24:27], s49 offen")

    vq = [k for k in range(PRO) for _ in range(6)]
    for kk in range(8):
        idx = max(i for i, t in enumerate(vq) if t == kk)
        a(f"s_waitcnt vmcnt({len(vq) - 1 - idx})")
        vq = vq[idx + 1:]
        slot = kk % NSTG
        ar, so = (12, slot * SLOT) if slot < 3 else (13, (slot - 3) * SLOT)
        a(f"ds_read_b128 v[24:27], v{ar} offset:{so}")
        a(f"ds_read_b128 v[28:31], v{ar} offset:{so + 16}")
        a("s_barrier")
        a("s_waitcnt lgkmcnt(0)")
        n_new = 0
        while issued < 8 and issued - NSTG < kk and n_new < 2:
            load_stage(issued)
            vq += [issued] * 6
            issued += 1
            n_new += 1
        if prefetch and pfpos == kk:
            emit_prefetch(40)
            vq += ["pf"] * 2
        if kk == 0:
            a("v_lshlrev_b32 v18, 16, v24")
            a("s_nop 1")
            a(f"v_mov_b32_dpp v18, v18 quad_perm:[0,0,0,0] {DPP}")
        for r in range(0 if nostats else 8):
            t = 32 + 2 * (r & 3)
            a(f"v_lshlrev_b32 v{t}, 16, v{24 + r}")
            a(f"v_and_b32 v{t + 1}, s53, v{24 + r}")
            a(f"v_sub_f32 v{t}, v{t}, v18")
            a(f"v_sub_f32 v{t + 1}, v{t + 1}, v18")
            a(f"v_add_f32 v14, v14, v{t}")
            a(f"v_add_f32 v15, v15, v{t + 1}")
            a(f"v_fmac_f32 v16, v{t}, v{t}")
            a(f"v_fmac_f32 v17, v{t + 1}, v{t + 1}")
    a("v_add_f32 v14, v14, v15")
    a("v_add_f32 v16, v16, v17")
    for qp in ("[1,0,3,2]", "[2,3,0,1]"):
        a("s_nop 1")
        a(f"v_add_f32_dpp v14, v14, v14 quad_perm:{qp} {DPP}")
        a(f"v_add_f32_dpp v16, v16, v16 quad_perm:{qp} {DPP}")
    a("v_mul_f32 v14, 0x3b000000, v14")
    a("v_mul_f32 v16, 0x3b000000, v16")
    a("v_fma_f32 v16, -v14, v14, v16")
    a("v_max_f32 v16, 0, v16")
    a("v_add_f32 v14, v14, v18")
    a("v_cvt_pk_bf16_f32 v14, v14, v14")
    a("v_lshlrev_b32 v14, 16, v14")
    a("v_cvt_pk_bf16_f32 v16, v16, v16")
    a("v_lshlrev_b32 v16, 16, v16")
    a("v_add_f32 v16, 0x3727c5ac, v16")
    a("v_cvt_pk_bf16_f32 v16, v16, v16")
    a("v_lshlrev_b32 v16, 16, v16")
    a("v_sqrt_f32 v16, v16")
    a("s_nop 0")
    a("v_cvt_pk_bf16_f32 v16, v16, v16")
    a("v_lshlrev_b32 v16, 16, v16")
    a("v_rcp_f32 v16, v16")
    a("v_lshrrev_b32 v19, 2, v2")
    a("v_lshlrev_b32 v19, 2, v19")
    a("s_lshl_b32 s34, s33, 6")
    a(f"s_add_u32 s34, s34, {STATS}")
    a("v_add_u32 v19, s34, v19")
    a("ds_write_b32 v19, v14")
    a("ds_write_b32 v19, v16 offset:256")
    a("s_waitcnt lgkmcnt(0)")
    stamp(a, 3)
    a("s_barrier")
    a(f"s_branch {name}_fin")
    a.label(f"{name}_cons")
    a("v_and_b32 v9, 31, v2")
    a("v_lshrrev_b32 v5, 5, v2")
    emit_perm32(a, 10, 9, 11)
    a("v_bfe_u32 v11, v10, 1, 3")
    a("v_xor_b32 v11, v11, v5")
    a("v_lshlrev_b32 v11, 4, v11")
    a("v_lshl_add_u32 v11, v10, 7, v11")
    emit_perm2(a, 10, 9, 12)
    a("v_bfe_u32 v12, v10, 1, 3")
    a("v_xor_b32 v12, v12, v5")
    a("v_lshlrev_b32 v12, 4, v12")
    a("v_lshl_add_u32 v12, v10, 7, v12")
    a("s_lshl_b32 s34, s32, 12")
    a("s_add_u32 s34, s34, 8192")
    a("v_add_u32 v12, s34, v12")
    for g in range(3):
        for c in range(4):
            a(f"v_xor_b32 v{16 + 8 * g + c}, {c * 32}, v11")
            a(f"v_xor_b32 v{20 + 8 * g + c}, {c * 32}, v12")
            if g:
                a(f"v_add_u32 v{16 + 8 * g + c}, {2 * SLOT * g}, v{16 + 8 * g + c}")
                a(f"v_add_u32 v{20 + 8 * g + c}, {2 * SLOT * g}, v{20 + 8 * g + c}")
    ACC = 64
    FR = [96, 108, 120]
    for i in range(32):
        a(f"v_mov_b32 v{ACC + i}, 0")
    a("v_mov_b32 v40, 0")
    a("v_mov_b32 v41, 0")
    a("s_mov_b32 s50, 0x3f803f80")
    a("s_waitcnt lgkmcnt(0)")
    stamp(a, 1)
    srd(a, 20, 6, 7, 4 << 20)
    if prefetch and pfpos == -1:
        emit_prefetch(150)
    units = [(kk, c) for kk in range(8) for c in range(4)]

    def reads(n):
        kk, c = units[n]
        f = FR[n % 3]
        slot = kk % NSTG
        g, so = slot // 2, (slot % 2) * SLOT
        if c == 0:
            a("s_waitcnt lgkmcnt(0)")
            a("s_barrier")
            if kk == 0:
                stamp(a, 2)
        a(f"ds_read_b128 v[{f}:{f + 3}], v{20 + 8 * g + c} offset:{so}")
        a(f"ds_read_b128 v[{f + 4}:{f + 7}], v{16 + 8 * g + c} offset:{so}")
        a(f"ds_read_b128 v[{f + 8}:{f + 11}], v{16 + 8 * g + c} offset:{so + 4096}")

    reads(0)
    reads(1)
    for n in range(len(units)):
        if n + 2 < len(units):
            reads(n + 2)
            a("s_waitcnt lgkmcnt(6)")
        elif n + 1 < len(units):
            a("s_waitcnt lgkmcnt(3)")
        else:
            a("s_waitcnt lgkmcnt(0)")
        f = FR[n % 3]
        a(f"v_mfma_f32_32x32x16_bf16 v[{ACC}:{ACC + 15}], v[{f + 4}:{f + 7}], v[{f}:{f + 3}], v[{ACC}:{ACC + 15}]")
        if not nocs:
            a(f"v_dot2_f32_bf16 v40, v{f}, s50, v40")
        if not nocs:
            a(f"v_dot2_f32_bf16 v41, v{f + 1}, s50, v41")
        a(f"v_mfma_f32_32x32x16_bf16 v[{ACC + 16}:{ACC + 31}], v[{f + 8}:{f + 11}], v[{f}:{f + 3}], v[{ACC + 16}:{ACC + 31}]")
        if not nocs:
            a(f"v_dot2_f32_bf16 v40, v{f + 2}, s50, v40")
        if not nocs:
            a(f"v_dot2_f32_bf16 v41, v{f + 3}, s50, v41")
    stamp(a, 3)
    a("s_barrier")
    stamp(a, 4)
    a("v_lshlrev_b32 v42, 6, v5")
    a(f"v_add_u32 v42, {STATS}, v42")
    for sh in range(2):
        for q in range(4):
            a(f"ds_read_b128 v[{96 + 16 * sh + 4 * q}:{99 + 16 * sh + 4 * q}], v42 offset:{128 * sh + 16 * q}")
            a(f"ds_read_b128 v[{128 + 16 * sh + 4 * q}:{131 + 16 * sh + 4 * q}], v42 offset:{256 + 128 * sh + 16 * q}")
    a("v_add_f32 v40, v40, v41")
    a("v_mov_b32 v41, v40")
    a("s_nop 1")
    a("v_permlane32_swap_b32 v40, v41")
    a("s_nop 1")
    a("v_add_f32 v40, v40, v41")
    a("s_lshl_b32 s34, s31, 2")
    a("s_add_u32 s34, s34, s32")
    a("s_lshl_b32 s34, s34, 7")
    a("s_lshl_b32 s33, s30, 1")
    a("s_add_u32 s34, s34, s33")
    a("s_lshl_b32 s34, s34, 10")
    a("v_bfe_u32 v43, v2, 4, 1")
    a("v_lshlrev_b32 v43, 16, v43")
    a("v_lshl_add_u32 v43, v5, 9, v43")
    a("v_and_b32 v44, 15, v2")
    a("v_lshl_add_u32 v43, v44, 4, v43")
    a("s_waitcnt lgkmcnt(0)")
    for sh in range(2):
        for i in range(16):
            r = ACC + 16 * sh + i
            a(f"v_fma_f32 v{r}, -v{96 + 16 * sh + i}, v40, v{r}")
            a(f"v_mul_f32 v{r}, v{r}, v{128 + 16 * sh + i}")
        for i in range(8):
            a(f"v_cvt_pk_bf16_f32 v{48 + 8 * sh + i}, v{ACC + 16 * sh + 2 * i}, v{ACC + 16 * sh + 2 * i + 1}")
        for u in range(2):
            r = 48 + 8 * sh + 4 * u
            a(f"buffer_store_dwordx4 v[{r}:{r + 3}], v43, s[20:23], s34 offen offset:{sh * 1024 + u * 256}" + (" sc0 sc1" if wt else ""))
    stamp(a, 5)
    a.label(f"{name}_fin")
    stamp_flush(a, 1, 6, 6, 7)
    a.label(f"{name}_done")
    a("s_endpgm")
    return kernel_desc(name, 160, 64, 160)


def emit_wtouch(a, s_sel, vt, vd):
    a(f"s_cmp_eq_u32 {s_sel}, 1")
    a("s_cselect_b32 s56, s58, s56")
    a("s_cselect_b32 s57, s59, s57")
    a(f"s_cmp_eq_u32 {s_sel}, 2")
    a("s_cselect_b32 s56, s60, s56")
    a("s_cselect_b32 s57, s61, s57")
    a("s_mul_i32 s62, s2, 7168")
    a("s_add_u32 s63, s62, 7168")
    a(f"s_cmp_eq_u32 {s_sel}, 3")
    a("s_cselect_b32 s63, 0, s63")
    a("s_mov_b32 s20, s56")
    a("s_and_b32 s21, s57, 0xffff")
    a("s_mov_b32 s22, s63")
    a("s_mov_b32 s23, 0x00020000")
    a(f"v_lshlrev_b32 v{vt}, 7, v2")
    a(f"buffer_load_dword v{vd}, v{vt}, s[20:23], s62 offen")


def emit_wtouch2(a):
    a("s_cmp_ge_u32 s33, 2")
    a("s_cselect_b32 s56, s66, s64")
    a("s_cselect_b32 s57, s67, s65")
    a("s_cmp_lt_u32 s28, 28")
    a(f"s_cselect_b32 s62, {D * F * 2}, 0")
    a("s_mov_b32 s20, s56")
    a("s_and_b32 s21, s57, 0xffff")
    a("s_mov_b32 s22, s62")
    a("s_mov_b32 s23, 0x00020000")
    a("s_mov_b32 s24, s68")
    a("s_and_b32 s25, s69, 0xffff")
    a("s_mov_b32 s26, s62")
    a("s_mov_b32 s27, 0x00020000")
    a("s_lshr_b32 s58, s28, 2")
    a("s_lshl_b32 s58, s58, 3")
    a("s_add_u32 s58, s58, s3")
    a("s_and_b32 s59, s28, 3")
    a("s_lshl_b32 s62, s59, 1")
    a("s_and_b32 s63, s33, 1")
    a("s_add_u32 s62, s62, s63")
    a("s_mul_i32 s62, s62, 229376")
    a("s_lshr_b32 s63, s58, 1")
    a("s_lshl_b32 s63, s63, 7")
    a("s_add_u32 s62, s62, s63")
    a("s_mov_b32 s63, 3584")
    a("v_mul_lo_u32 v13, v2, s63")
    a("buffer_load_dword v15, v13, s[20:23], s62 offen")
    a("s_lshl_b32 s62, s58, 15")
    a("s_lshl_b32 s63, s59, 13")
    a("s_add_u32 s62, s62, s63")
    a("s_lshl_b32 s63, s33, 11")
    a("s_add_u32 s62, s62, s63")
    a("v_and_b32 v13, 15, v2")
    a("v_lshlrev_b32 v13, 7, v13")
    a("buffer_load_dword v16, v13, s[24:27], s62 offen")


def gen_k2c(a, name, NSTG=5, LA=1, wt=0, PRO=5, rot=1, BARPOS=1, RSTEP=1, wpf=1, wpf2=0, pol=0, fuse3=0, etouch=0, swap=1, cw=-1, fused_in=0):
    SOFF = 3 if fused_in else 0
    POL = {0: '', 1: ' sc1', 2: ' nt', 3: ' sc0'}[pol]
    if not fused_in:
        kernel_begin(a, name)
        a("s_cmp_ge_u32 s2, 256")
        a(f"s_cbranch_scc1 {name}_done")
    stamp(a, 0)
    if fused_in:
        a("s_load_dwordx2 s[10:11], s[0:1], 88")
    a("s_load_dwordx4 s[4:7], s[0:1], 8")
    a("s_load_dwordx2 s[8:9], s[0:1], 96")
    a("s_load_dwordx4 s[56:59], s[0:1], 56")
    a("s_load_dwordx2 s[60:61], s[0:1], 72")
    a("s_load_dwordx4 s[64:67], s[0:1], 56")
    a("s_load_dwordx2 s[68:69], s[0:1], 72")
    a("s_and_b32 s3, s2, 7")
    a("s_lshr_b32 s28, s2, 3")
    a("s_and_b32 s29, s3, 1")
    a("s_bfe_u32 s27, s3, 0x10001")
    a("s_lshr_b32 s30, s3, 2")
    a("s_lshl_b32 s30, s30, 3")
    a("s_and_b32 s31, s28, 7")
    a("s_add_u32 s30, s30, s31")
    a("s_lshr_b32 s31, s28, 3")
    if fused_in:
        a("v_mbcnt_lo_u32_b32 v2, -1, 0")
        a("v_mbcnt_hi_u32_b32 v2, -1, v2")
    else:
        a("v_lshrrev_b32 v1, 6, v0")
        a("v_and_b32 v2, 63, v0")
        a("s_nop 0")
        a("v_readfirstlane_b32 s32, v1")
    a("v_lshlrev_b32 v3, 4, v2")
    if swap and not fused_in:
        a("s_xor_b32 s32, s32, 4")
    a("s_cmp_lt_u32 s32, 4")
    a(f"s_cbranch_scc1 {name}_cons")
    a("s_sub_u32 s33, s32, 4")
    a("v_lshrrev_b32 v4, 3, v2")
    a("v_and_b32 v5, 7, v2")
    a("v_lshrrev_b32 v6, 4, v2")
    a("v_xor_b32 v6, v6, v5")
    a("v_xor_b32 v7, 4, v6")
    a("v_lshlrev_b32 v4, 12, v4")
    a("v_lshl_add_u32 v6, v6, 4, v4")
    a("v_lshl_add_u32 v7, v7, 4, v4")
    a("v_mov_b32 v8, v6")
    a(f"v_add_u32 v9, {32768 - 1024}, v7")
    a(f"v_add_u32 v10, {2 * (32768 - 1024)}, v6")
    a(f"v_add_u32 v11, {3 * (32768 - 1024)}, v7")
    a(f"v_add_u32 v12, {65536 - 2048}, v3")
    a("s_lshl_b32 s35, s30, 19")
    a("s_lshl_b32 s34, s33, 17")
    a("s_add_u32 s35, s35, s34")
    a("s_lshl_b32 s34, s27, 11")
    a("s_add_u32 s35, s35, s34")
    a("s_lshl_b32 s36, s29, 5")
    a("s_lshl_b32 s34, s31, 3")
    a("s_add_u32 s36, s36, s34")
    a("s_lshl_b32 s34, s33, 1")
    a("s_add_u32 s36, s36, s34")
    a("s_lshl_b32 s36, s36, 6")
    a("s_lshl_b32 s34, s27, 5")
    a("s_add_u32 s36, s36, s34")
    a("s_lshl_b32 s36, s36, 10")
    a("s_lshl_b32 s37, s33, 12")
    if rot >= 2:
        a("s_lshl_b32 s52, s31, 1")
        a("s_add_u32 s52, s52, s30")
        if rot == 3:
            a("s_add_u32 s52, s31, s30")
    for j in range(4):
        if rot:
            a(f"s_add_u32 s34, s31, {j}")
            a("s_and_b32 s34, s34, 3")
        else:
            a(f"s_mov_b32 s34, {j}")
        a("s_lshl_b32 s38, s34, 7")
        a(f"s_add_u32 s{44 + j}, s35, s38")
        a("s_lshl_b32 s38, s34, 11")
        a(f"s_add_u32 s{48 + j}, s36, s38")
    a("s_waitcnt lgkmcnt(0)")
    stamp(a, 1)
    a("s_cmp_eq_u32 s29, 1")
    a("s_cselect_b32 s4, s6, s4")
    a("s_cselect_b32 s5, s7, s5")
    srd(a, 12, 4, 5, S * S * 2)
    srd(a, 16, 8, 9, 14 << 20)

    def load_stage(s, part=3):
        slot = ((s + SOFF) % NSTG) * 32768
        if part & 1:
            load_c(s, slot)
        if part & 2:
            load_e(s, slot)

    def load_c(s, slot):
        a(f"s_add_u32 m0, s37, {slot}")
        if rot >= 2:
            G8 = {2: 8, 3: 4, 4: 16}[rot]
            a(f"s_add_u32 s53, s52, {s}")
            a(f"s_and_b32 s53, s53, {G8 - 1}")
            a(f"s_add_u32 s53, s53, {s & ~(G8 - 1)}")
            a("s_lshl_b32 s54, s53, 7")
            a("s_add_u32 s38, s35, s54")
        else:
            a(f"s_add_u32 s38, s{44 + (s & 3)}, {(s & ~3) * 128}")
        for i in range(4):
            a(f"buffer_load_dwordx4 v{8 + i}, s[12:15], s38 offen offset:{i * 1024}{POL} lds")

    def load_e(s, slot):
        a(f"s_add_u32 m0, s37, {slot + 16384}")
        if rot >= 2:
            a("s_lshl_b32 s54, s53, 11")
            a("s_add_u32 s39, s36, s54")
        else:
            a(f"s_add_u32 s39, s{48 + (s & 3)}, {(s & ~3) * 2048}")
        for c in range(4):
            a(f"buffer_load_dwordx4 v{3 if c < 2 else 12}, s[16:19], s39 offen offset:{c * 1024}{' sc1' if fused_in else POL} lds")

    NST = 16
    if fused_in:
        PRO = 4
        for s in range(PRO):
            load_stage(s, 1)
        srd(a, 20, 10, 11, 256)
        a("s_lshl_b32 s52, s29, 1")
        a("s_add_u32 s52, s52, s27")
        a("s_lshl_b32 s52, s52, 2")
        a("s_add_u32 s52, s52, s31")
        a("s_lshl_b32 s52, s52, 10")
        a(f"s_add_u32 s52, s52, {WS_FLAG1}")
        a("v_bfe_u32 v13, v2, 2, 3")
        a("v_lshlrev_b32 v13, 7, v13")
        a("v_and_b32 v14, 3, v2")
        a("v_lshl_add_u32 v13, v14, 2, v13")
        a("v_mov_b32 v14, 0")
        a("s_mov_b32 s55, 0x40000")
        a.label(f"{name}_np")
        a("buffer_load_dword v15, v14, s[20:23], 0 offen sc1")
        a("v_and_b32 v17, 3, v2")
        a("v_lshlrev_b32 v17, 12, v17")
        a(f"v_add_u32 v17, {3 * 32768 + 16384}, v17")
        a(f"s_add_u32 s54, s37, {3 * 32768 + 16384}")
        a("v_mov_b32 v18, s54")
        a("s_waitcnt vmcnt(0)")
        a("v_readfirstlane_b32 s53, v15")
        a("s_cmp_lg_u32 s53, 0")
        a(f"s_cbranch_scc1 {name}_nd")
        a("s_sub_u32 s55, s55, 1")
        a(f"s_cbranch_scc0 {name}_np")
        a("s_mov_b32 s55, 0")
        a.label(f"{name}_nd")
        a("s_cmp_lg_u32 s33, 0")
        a(f"s_cbranch_scc1 {name}_lp")
        a.label(f"{name}_ep")
        a("buffer_load_dword v16, v13, s[16:19], s52 offen sc1")
        a("s_waitcnt vmcnt(0)")
        a("v_cmp_ne_u32 vcc, v15, v16")
        a("s_or_b32 s62, vcc_lo, vcc_hi")
        a(f"s_cbranch_scc0 {name}_eo")
        a(f"s_sleep {ESLEEP}")
        a("s_sub_u32 s55, s55, 1")
        a(f"s_cbranch_scc0 {name}_ep")
        a.label(f"{name}_eo")
        a("ds_write_b32 v17, v15")
        a("s_waitcnt lgkmcnt(0)")
        a(f"s_branch {name}_ed")
        a.label(f"{name}_lp")
        a("ds_read_b32 v16, v18")
        a("s_waitcnt lgkmcnt(0)")
        a("v_readfirstlane_b32 s62, v16")
        a("s_cmp_eq_u32 s62, s53")
        a(f"s_cbranch_scc1 {name}_ed")
        a("s_sleep 1")
        a("s_sub_u32 s55, s55, 1")
        a(f"s_cbranch_scc0 {name}_lp")
        a.label(f"{name}_ed")
        for s in range(PRO):
            load_stage(s, 2)
        vq = [st for st in range(PRO) for _ in range(4)]
        if fuse3 and SENT == 3:
            srd(a, 20, 8, 9, 16 << 20)
            a("s_lshl_b32 s62, s29, 1")
            a("s_add_u32 s62, s62, s27")
            a("s_lshl_b32 s62, s62, 2")
            a("s_add_u32 s62, s62, s31")
            a("s_lshl_b32 s63, s30, 4")
            a("s_add_u32 s63, s63, s62")
            a("s_lshl_b32 s62, s63, 7")
            a("s_lshl_b32 s63, s32, 2")
            a("s_add_u32 s62, s62, s63")
            a(f"s_add_u32 s62, s62, {WS_FLAG2}")
            a("buffer_store_dword v15, v14, s[20:23], s62 offen sc0 sc1")
            vq.append("f")
            a("s_or_b32 s52, s30, 1")
            a("s_lshl_b32 s52, s52, 11")
            a(f"s_add_u32 s52, s52, {WS_FLAG2}")
            a("v_lshrrev_b32 v17, 2, v2")
            a("v_lshlrev_b32 v17, 7, v17")
            a("v_and_b32 v18, 3, v2")
            a("v_lshl_add_u32 v17, v18, 3, v17")
            a("v_mov_b32 v19, v15")
    else:
        for s in range(PRO):
            load_stage(s)
        vq = [st for st in range(PRO) for _ in range(8)]
    stamp(a, 2)
    issued = PRO
    for s in range(NST):
        idx = max(k for k, t in enumerate(vq) if t == s)
        a(f"s_waitcnt vmcnt({len(vq) - 1 - idx})")
        vq = vq[idx + 1:]
        if fused_in and fuse3 and SENT == 3 and s == 8:
            a("buffer_load_dwordx2 v[20:21], v17, s[20:23], s52 offen sc1")
            vq.append("g")
        if fused_in and fuse3 and SENT == 3 and s == 14:
            assert "g" not in vq
            srd(a, 20, 8, 9, 16 << 20)
            a.label(f"{name}_sfp")
            a("v_cmp_ne_u32 vcc, v19, v20")
            a("v_cmp_ne_u32 s[62:63], v19, v21")
            a("s_or_b64 s[62:63], s[62:63], vcc")
            a(f"s_cbranch_scc0 {name}_sfd")
            a("s_sleep 2")
            a("buffer_load_dwordx2 v[20:21], v17, s[20:23], s52 offen sc1")
            a("s_waitcnt vmcnt(0)")
            a("s_sub_u32 s55, s55, 1")
            a(f"s_cbranch_scc0 {name}_sfp")
            a.label(f"{name}_sfd")
        a("s_barrier")
        n_new = 0
        while issued < NST and issued - NSTG < s and n_new < 2:
            load_stage(issued)
            vq += [issued] * 8
            issued += 1
            n_new += 1
            if issued == wpf:
                emit_wtouch(a, "s33", 13, 14)
                vq.append("w")
            if issued == wpf2:
                emit_wtouch2(a)
                vq += ["w", "w"]
    stamp(a, 5)
    a(f"s_branch {name}_fin")
    a.label(f"{name}_cons")
    a("s_and_b32 s33, s32, 1")
    a("s_lshr_b32 s34, s32, 1")
    a("v_and_b32 v4, 15, v2")
    a("v_lshrrev_b32 v5, 1, v4")
    a("v_lshrrev_b32 v6, 4, v2")
    a("v_xor_b32 v5, v5, v6")
    a("v_lshlrev_b32 v5, 4, v5")
    a("v_lshl_add_u32 v5, v4, 7, v5")
    a("s_lshl_b32 s35, s33, 13")
    a("s_lshl_b32 s36, s34, 13")
    a("s_add_u32 s36, s36, 16384")
    for g in range(3):
        a(f"v_add_u32 v{8 + 3 * g}, s35, v5")
        a(f"v_xor_b32 v{9 + 3 * g}, 64, v5")
        a(f"v_add_u32 v{9 + 3 * g}, s35, v{9 + 3 * g}")
        a(f"v_add_u32 v{10 + 3 * g}, s36, v3")
        if g:
            for r in range(3):
                a(f"v_add_u32 v{8 + 3 * g + r}, {65536 * g}, v{8 + 3 * g + r}")
    ACC = 64
    FB = 128
    for i in range(64):
        a(f"v_mov_b32 v{ACC + i}, 0")
    a("s_waitcnt lgkmcnt(0)")
    stamp(a, 1)
    srd(a, 16, 8, 9, 16 << 20)
    if fuse3:
        a("v_mov_b32 v198, 0")
        if fused_in:
            srd(a, 20, 10, 11, 256)
            a("buffer_load_dword v199, v198, s[20:23], 0 offen sc1")
        else:
            a(f"s_mov_b32 s38, {13 << 20}")
            a("buffer_load_dword v199, v198, s[16:19], s38 offen sc1")
    def epi_addr():
        a("s_lshl_b32 s35, s30, 7")
        a("s_lshl_b32 s36, s33, 6")
        a("s_add_u32 s35, s35, s36")
        a("s_lshl_b32 s35, s35, 10")
        a("s_lshl_b32 s36, s31, 8")
        a("s_add_u32 s35, s35, s36")
        a("s_lshl_b32 s36, s34, 7")
        a("s_add_u32 s35, s35, s36")
        a("s_lshl_b32 s36, s29, 1")
        a("s_add_u32 s36, s36, s27")
        a("s_lshl_b32 s36, s36, 21")
        a("s_add_u32 s35, s35, s36")
        a(f"s_add_u32 s35, s35, {WS_P}")
        a("v_lshlrev_b32 v7, 4, v6")
        a("v_lshl_add_u32 v7, v4, 10, v7")
        for tt in range(4):
            a(f"s_add_u32 s{40 + tt}, s35, {tt * 16384}")

    SENTM = fuse3 and SENT
    if SENTM:
        epi_addr()
        for r in range(4):
            a(f"v_mov_b32 v{24 + r}, -1")
        if fused_in:
            a("s_bitcmp1_b32 s2, 3")
            a(f"s_cbranch_scc0 {name}_nofill")
        for tt in range(4 if SENT < 3 else 0):
            for Th in range(2):
                a(f"buffer_store_dwordx4 v[24:27], v7, s[16:19], s{40 + tt} offen offset:{Th * 64} sc0 sc1")
        a.label(f"{name}_nofill")
        a("s_lshl_b32 s62, s29, 1")
        a("s_add_u32 s62, s62, s27")
        a("s_lshl_b32 s62, s62, 2")
        a("s_add_u32 s62, s62, s31")
        a("s_lshl_b32 s63, s30, 4")
        a("s_add_u32 s63, s63, s62")
        a("s_lshl_b32 s46, s63, 7")
        a("s_lshl_b32 s47, s32, 2")
        a("s_add_u32 s46, s46, s47")
        a(f"s_add_u32 s46, s46, {WS_FLAG2}")
    if etouch:
        a("s_lshl_b32 s38, s29, 5")
        a("s_add_u32 s38, s38, s28")
        a("s_lshl_b32 s38, s38, 6")
        a("s_lshl_b32 s39, s27, 5")
        a("s_add_u32 s38, s38, s39")
        a("s_lshl_b32 s38, s38, 10")
        a("s_lshl_b32 s39, s32, 13")
        a("s_add_u32 s38, s38, s39")
        a("v_lshlrev_b32 v20, 7, v2")
        a("buffer_load_dword v21, v20, s[16:19], s38 offen")
    NU = NST * 2

    def read_list(u):
        s, ks = u // 2, u % 2
        slot = (s + SOFF) % NSTG
        g, so = slot // 2, (slot % 2) * 32768
        f = FB + 32 * (u % 2)
        L = []
        for i in range(4):
            L.append(f"ds_read_b128 v[{f + 16 + 4 * i}:{f + 19 + 4 * i}], v{10 + 3 * g} offset:{so + i * 2048 + ks * 1024}")
            L.append(f"ds_read_b128 v[{f + 4 * i}:{f + 3 + 4 * i}], v{8 + 3 * g + ks} offset:{so + i * 2048}")
        return L

    if cw == 100:
        emit_wtouch(a, "s32", 20, 21)
    a("s_barrier")
    stamp(a, 3)
    for r in read_list(0):
        a(r)
    for u in range(NU):
        a("s_waitcnt lgkmcnt(0)")
        f = FB + 32 * (u % 2)
        nxt = read_list(u + 1) if u + 1 < NU else []
        n = 0
        for T in range(4):
            for tt in range(4):
                acc = ACC + (T * 4 + tt) * 4
                a(f"v_mfma_f32_16x16x32_bf16 v[{acc}:{acc + 3}], v[{f + 16 + 4 * T}:{f + 19 + 4 * T}], v[{f + 4 * tt}:{f + 4 * tt + 3}], v[{acc}:{acc + 3}]")
                n += 1
                if n == BARPOS and nxt and (u + 1) % 2 == 0:
                    a("s_barrier")
                    if (u + 1) // 2 == 8:
                        stamp(a, 4)
                if n >= BARPOS and nxt and (n - BARPOS) % RSTEP == 0:
                    a(nxt.pop(0))
                if SENTM and u == 6 and n == 10:
                    a("s_waitcnt vmcnt(0)")
                    a("buffer_store_dword v199, v198, s[16:19], s46 offen sc0 sc1")
                if u == cw and n == 10:
                    emit_wtouch(a, "s32", 20, 21)
        for r in nxt:
            a(r)
    stamp(a, 5)
    if not SENTM:
        epi_addr()
    else:
        a("s_nop 7")
    for tt in range(4):
        for Th in range(2):
            o = 24 + (tt * 2 + Th) * 4
            for Tl in range(2):
                acc = ACC + ((Th * 2 + Tl) * 4 + tt) * 4
                a(f"v_cvt_pk_bf16_f32 v{o + 2 * Tl}, v{acc}, v{acc + 1}")
                a(f"v_cvt_pk_bf16_f32 v{o + 2 * Tl + 1}, v{acc + 2}, v{acc + 3}")
            a(f"buffer_store_dwordx4 v[{o}:{o + 3}], v7, s[16:19], s{40 + tt} offen offset:{Th * 64}" + (" sc0 sc1" if wt else ""))
    if fuse3 and not (SENTM and SENT == 2):
        a("s_waitcnt vmcnt(0)")
    a.label(f"{name}_fin")
    stamp_flush(a, 2, 6, 8, 9)
    nv = FB + 64
    if fuse3:
        a("s_and_b32 s3, s2, 7")
        a("s_and_b32 s29, s3, 1")
        a("s_bfe_u32 s27, s3, 0x10001")
        a("s_lshl_b32 s62, s29, 1")
        a("s_add_u32 s62, s62, s27")
        a("s_lshl_b32 s62, s62, 2")
        a("s_add_u32 s62, s62, s31")
        a("s_lshl_b32 s63, s30, 4")
        a("s_add_u32 s63, s63, s62")
        a("s_lshl_b32 s46, s63, 7")
        a(f"s_add_u32 s46, s46, {WS_FLAG2}")
        if not SENT:
            a("s_barrier")
            a("s_cmp_lg_u32 s32, 0")
            a(f"s_cbranch_scc1 {name}_nf")
            a("v_mov_b32 v198, 0")
            a("buffer_store_dword v199, v198, s[16:19], s46 offen sc0 sc1")
            a.label(f"{name}_nf")
            a("s_barrier")
        gen_kt(a, name + "t", fused=1)
        a.label(f"{name}_done")
        a("s_endpgm")
        return kernel_desc(name, 208, 72, 208)
    if fused_in:
        return None
    a.label(f"{name}_done")
    a("s_endpgm")
    return kernel_desc(name, nv, 72, nv)


def gen_k1c(a, name, wt=1, PRO=3, pf=1, pace=1, pfw=1, pfxd=1):
    NSTG, SLOT, NST = 4, 32768, 8
    STATS = NSTG * SLOT
    kernel_begin(a, name)
    a("s_cmp_ge_u32 s2, 256")
    a(f"s_cbranch_scc1 {name}_done")
    stamp(a, 0)
    a("s_load_dwordx2 s[4:5], s[0:1], 0")
    a("s_load_dwordx4 s[8:11], s[0:1], 24")
    a("s_load_dwordx2 s[6:7], s[0:1], 96")
    a("s_load_dwordx4 s[40:43], s[0:1], 8")
    a("s_load_dwordx4 s[44:47], s[0:1], 56")
    a("s_load_dwordx2 s[48:49], s[0:1], 72")
    a("s_and_b32 s3, s2, 7")
    a("s_lshr_b32 s28, s2, 4")
    a("s_and_b32 s29, s28, 1")
    a("s_lshl_b32 s30, s3, 1")
    a("s_add_u32 s30, s30, s29")
    a("s_lshr_b32 s31, s28, 1")
    a("v_lshrrev_b32 v1, 6, v0")
    a("v_and_b32 v2, 63, v0")
    a("s_nop 0")
    a("v_readfirstlane_b32 s32, v1")
    a("s_mov_b32 s53, 0xffff0000")
    a("s_bitcmp1_b32 s2, 3")
    a(f"s_cbranch_scc1 {name}_pf")
    a("s_cmp_lt_u32 s32, 4")
    a(f"s_cbranch_scc1 {name}_cons")
    a("s_cmp_ge_u32 s32, 8")
    a(f"s_cbranch_scc1 {name}_stat")
    a("s_sub_u32 s33, s32, 4")
    a("v_lshrrev_b32 v3, 3, v2")
    a("v_and_b32 v4, 7, v2")
    a("v_bfe_u32 v5, v2, 4, 1")
    a("v_xor_b32 v4, v4, v5")
    a("v_lshlrev_b32 v3, 10, v3")
    for i in range(4):
        g0g1 = (i & 1) ^ (i >> 1)
        a(f"v_xor_b32 v{8 + i}, {(2 * i) ^ g0g1}, v4")
        a(f"v_lshl_add_u32 v{8 + i}, v{8 + i}, 4, v3")
        if i:
            a(f"v_add_u32 v{8 + i}, {i * (8192 - 1024)}, v{8 + i}")
    a("s_lshl_b32 s34, s33, 5")
    a("s_lshl_b32 s35, s30, 7")
    a("s_add_u32 s35, s35, s34")
    a("s_lshl_b32 s35, s35, 10")
    a("s_and_b32 s36, s31, 3")
    a("s_lshl_b32 s36, s36, 7")
    a("s_add_u32 s36, s36, s34")
    a("s_lshl_b32 s36, s36, 10")
    a("s_lshl_b32 s37, s33, 12")
    a("v_lshlrev_b32 v12, 6, v2")
    a("v_add_u32 v12, s37, v12")
    a("v_add_u32 v12, 16384, v12")
    a(f"v_add_u32 v13, {2 * SLOT}, v12")
    a("v_mov_b32 v14, 0")
    a("v_mov_b32 v15, 0")
    a("s_mov_b32 s50, 0x3f803f80")
    a("s_waitcnt lgkmcnt(0)")
    stamp(a, 1)
    srd(a, 12, 4, 5, S * D * 2)
    a("s_cmp_ge_u32 s31, 4")
    a("s_cselect_b32 s8, s10, s8")
    a("s_cselect_b32 s9, s11, s9")
    srd(a, 16, 8, 9, D * D * 2)

    def load_stage(kk):
        slot = (kk % NSTG) * SLOT
        a(f"s_add_u32 m0, s37, {slot}")
        a(f"s_add_u32 s39, s35, {kk * 128}")
        for i in range(4):
            a(f"buffer_load_dwordx4 v{8 + i}, s[12:15], s39 offen offset:{i * 1024} lds")
        a(f"s_add_u32 m0, s37, {slot + 16384}")
        a(f"s_add_u32 s39, s36, {kk * 128}")
        for i in range(4):
            a(f"buffer_load_dwordx4 v{8 + i}, s[16:19], s39 offen offset:{i * 1024} lds")

    for kk in range(PRO):
        load_stage(kk)
    stamp(a, 2)
    issued = PRO
    for kk in range(NST):
        a(f"s_waitcnt vmcnt({(issued - 1 - kk) * 8})")
        slot = kk % NSTG
        ar, so = (12, slot * SLOT) if slot < 2 else (13, (slot - 2) * SLOT)
        for q in range(4):
            a(f"ds_read_b128 v[{16 + 4 * q}:{19 + 4 * q}], v{ar} offset:{so + 16 * q}")
        a("s_barrier")
        n_new = 0
        while issued < NST and issued - NSTG < kk and n_new < 2:
            load_stage(issued)
            issued += 1
            n_new += 1
        a("s_waitcnt lgkmcnt(0)")
        for r in range(16):
            a(f"v_dot2_f32_bf16 v{14 + (r & 1)}, v{16 + r}, s50, v{14 + (r & 1)}")
    a("s_nop 2")
    a("v_add_f32 v14, v14, v15")
    a("s_nop 1")
    a(f"v_add_f32_dpp v14, v14, v14 quad_perm:[1,0,3,2] {DPP}")
    a("v_lshrrev_b32 v19, 1, v2")
    a("v_lshlrev_b32 v19, 2, v19")
    a("s_lshl_b32 s34, s33, 7")
    a(f"s_add_u32 s34, s34, {STATS + 1024}")
    a("v_add_u32 v19, s34, v19")
    a("ds_write_b32 v19, v14")
    a("s_waitcnt lgkmcnt(0)")
    stamp(a, 3)
    a("s_barrier")
    a(f"s_branch {name}_fin")
    a.label(f"{name}_stat")
    a("s_sub_u32 s33, s32, 8")
    a("s_lshl_b32 s37, s33, 12")
    a("v_lshlrev_b32 v12, 6, v2")
    a("v_add_u32 v12, s37, v12")
    a(f"v_add_u32 v13, {2 * SLOT}, v12")
    for r in range(4):
        a(f"v_mov_b32 v{80 + r}, 0")
    a("s_waitcnt lgkmcnt(0)")
    stamp(a, 1)

    def stat_valu(base):
        for r in range(16):
            t = 72 + 2 * (r & 3)
            a(f"v_lshlrev_b32 v{t}, 16, v{base + r}")
            a(f"v_and_b32 v{t + 1}, s53, v{base + r}")
            a(f"v_sub_f32 v{t}, v{t}, v18")
            a(f"v_sub_f32 v{t + 1}, v{t + 1}, v18")
            a(f"v_add_f32 v80, v80, v{t}")
            a(f"v_add_f32 v81, v81, v{t + 1}")
            a(f"v_fmac_f32 v82, v{t}, v{t}")
            a(f"v_fmac_f32 v83, v{t + 1}, v{t + 1}")

    for kk in range(NST):
        a("s_barrier")
        slot = kk % NSTG
        ar, so = (12, slot * SLOT) if slot < 2 else (13, (slot - 2) * SLOT)
        base = 32 + 16 * (kk & 1)
        for q in range(4):
            a(f"ds_read_b128 v[{base + 4 * q}:{base + 3 + 4 * q}], v{ar} offset:{so + 16 * q}")
        if kk >= 1:
            stat_valu(32 + 16 * ((kk - 1) & 1))
        a("s_waitcnt lgkmcnt(0)")
        if kk == 0:
            a("v_lshlrev_b32 v18, 16, v32")
            a("s_nop 1")
            a(f"v_mov_b32_dpp v18, v18 quad_perm:[0,0,2,2] {DPP}")
    stat_valu(32 + 16 * ((NST - 1) & 1))
    a("v_add_f32 v14, v80, v81")
    a("v_add_f32 v16, v82, v83")
    a("s_nop 1")
    a(f"v_add_f32_dpp v14, v14, v14 quad_perm:[1,0,3,2] {DPP}")
    a(f"v_add_f32_dpp v16, v16, v16 quad_perm:[1,0,3,2] {DPP}")
    a("v_mul_f32 v14, 0x3b000000, v14")
    a("v_mul_f32 v16, 0x3b000000, v16")
    a("v_fma_f32 v16, -v14, v14, v16")
    a("v_max_f32 v16, 0, v16")
    a("v_add_f32 v14, v14, v18")
    a("v_cvt_pk_bf16_f32 v14, v14, v14")
    a("v_lshlrev_b32 v14, 16, v14")
    a("v_cvt_pk_bf16_f32 v16, v16, v16")
    a("v_lshlrev_b32 v16, 16, v16")
    a("v_add_f32 v16, 0x3727c5ac, v16")
    a("v_cvt_pk_bf16_f32 v16, v16, v16")
    a("v_lshlrev_b32 v16, 16, v16")
    a("v_sqrt_f32 v16, v16")
    a("s_nop 0")
    a("v_cvt_pk_bf16_f32 v16, v16, v16")
    a("v_lshlrev_b32 v16, 16, v16")
    a("v_rcp_f32 v16, v16")
    a("v_lshrrev_b32 v19, 1, v2")
    a("v_lshlrev_b32 v19, 2, v19")
    a("s_lshl_b32 s34, s33, 7")
    a(f"s_add_u32 s34, s34, {STATS}")
    a("v_add_u32 v19, s34, v19")
    a("ds_write_b32 v19, v14")
    a("ds_write_b32 v19, v16 offset:512")
    a("s_waitcnt lgkmcnt(0)")
    stamp(a, 3)
    a("s_barrier")
    a(f"s_branch {name}_fin")
    a.label(f"{name}_cons")
    a("s_and_b32 s33, s32, 1")
    a("s_lshr_b32 s34, s32, 1")
    a("v_and_b32 v4, 15, v2")
    a("v_lshrrev_b32 v6, 4, v2")
    a("v_lshrrev_b32 v5, 2, v4")
    a("v_and_b32 v7, 3, v4")
    a("v_lshl_add_u32 v7, v5, 3, v7")
    a("v_lshrrev_b32 v20, 1, v4")
    a("v_lshrrev_b32 v21, 2, v4")
    a("v_lshrrev_b32 v22, 3, v4")
    a("v_xor_b32 v21, v21, v22")
    a("v_and_b32 v21, 1, v21")
    a("v_xor_b32 v20, v20, v21")
    a("v_xor_b32 v20, v20, v6")
    a("v_lshlrev_b32 v20, 4, v20")
    a("v_lshl_add_u32 v20, v7, 7, v20")
    a("s_lshl_b32 s35, s33, 13")
    a("s_lshl_b32 s36, s34, 13")
    a("s_add_u32 s36, s36, 16384")
    for g2 in range(2):
        a(f"v_add_u32 v{8 + 4 * g2}, s35, v20")
        a(f"v_xor_b32 v{9 + 4 * g2}, 64, v{8 + 4 * g2}")
        a(f"v_add_u32 v{10 + 4 * g2}, s36, v20")
        a(f"v_xor_b32 v{11 + 4 * g2}, 64, v{10 + 4 * g2}")
        if g2:
            for r in range(4):
                a(f"v_add_u32 v{8 + 4 * g2 + r}, {65536 * g2}, v{8 + 4 * g2 + r}")
    ACC = 32
    FB = 96
    for i in range(64):
        a(f"v_mov_b32 v{ACC + i}, 0")
    a("s_waitcnt lgkmcnt(0)")
    stamp(a, 1)
    srd(a, 20, 6, 7, 4 << 20)
    NU = NST * 2

    def reads(u):
        s, ks = u // 2, u % 2
        slot = s % NSTG
        g2, so = slot // 2, (slot % 2) * SLOT
        f = FB + 32 * (u % 2)
        if ks == 0:
            a("s_waitcnt lgkmcnt(0)")
            a("s_barrier")
            if s == 0:
                stamp(a, 2)
        for i in range(4):
            off = so + (i >> 1) * 4096 + (i & 1) * 512
            a(f"ds_read_b128 v[{f + 4 * i}:{f + 3 + 4 * i}], v{8 + 4 * g2 + ks} offset:{off}")
            a(f"ds_read_b128 v[{f + 16 + 4 * i}:{f + 19 + 4 * i}], v{10 + 4 * g2 + ks} offset:{off}")

    reads(0)
    for u in range(NU):
        if u + 1 < NU:
            reads(u + 1)
            a("s_waitcnt lgkmcnt(8)")
        else:
            a("s_waitcnt lgkmcnt(0)")
        f = FB + 32 * (u % 2)
        for xi in range(4):
            for T in range(4):
                acc = ACC + (xi * 4 + T) * 4
                a(f"v_mfma_f32_16x16x32_bf16 v[{acc}:{acc + 3}], v[{f + 4 * xi}:{f + 3 + 4 * xi}], v[{f + 16 + 4 * T}:{f + 19 + 4 * T}], v[{acc}:{acc + 3}]")
    stamp(a, 3)
    a("s_barrier")
    stamp(a, 4)
    a("s_lshl_b32 s35, s33, 8")
    a(f"s_add_u32 s35, s35, {STATS}")
    a("v_lshlrev_b32 v20, 5, v6")
    a("v_add_u32 v20, s35, v20")
    for blk in range(2):
        for h in range(2):
            a(f"ds_read_b128 v[{96 + 16 * blk + 4 * h}:{99 + 16 * blk + 4 * h}], v20 offset:{128 * blk + 16 * h}")
            a(f"ds_read_b128 v[{104 + 16 * blk + 4 * h}:{107 + 16 * blk + 4 * h}], v20 offset:{512 + 128 * blk + 16 * h}")
    a("s_lshl_b32 s36, s34, 8")
    a(f"s_add_u32 s36, s36, {STATS + 1024}")
    a("v_lshlrev_b32 v21, 2, v7")
    a("v_add_u32 v21, s36, v21")
    for T in range(4):
        a(f"ds_read_b32 v{128 + T}, v21 offset:{(T >> 1) * 128 + (T & 1) * 16}")
    a("s_lshl_b32 s35, s31, 3")
    a("s_lshl_b32 s36, s34, 2")
    a("s_add_u32 s35, s35, s36")
    a("s_lshl_b32 s35, s35, 6")
    a("s_lshl_b32 s36, s30, 2")
    a("s_add_u32 s35, s35, s36")
    a("s_lshl_b32 s36, s33, 1")
    a("s_add_u32 s35, s35, s36")
    a("s_lshl_b32 s35, s35, 10")
    for T in range(4):
        a(f"s_add_u32 s{40 + T}, s35, {T * 65536}")
    a("v_lshlrev_b32 v22, 4, v2")
    a("s_waitcnt lgkmcnt(0)")
    for blk in range(2):
        for T in range(4):
            o = 132 + 4 * ((blk * 4 + T) & 3)
            for hb in range(2):
                acc = ACC + ((blk * 2 + hb) * 4 + T) * 4
                for j in range(4):
                    a(f"v_fma_f32 v{acc + j}, -v{96 + 16 * blk + 4 * hb + j}, v{128 + T}, v{acc + j}")
                    a(f"v_mul_f32 v{acc + j}, v{acc + j}, v{104 + 16 * blk + 4 * hb + j}")
                a(f"v_cvt_pk_bf16_f32 v{o + 2 * hb}, v{acc}, v{acc + 1}")
                a(f"v_cvt_pk_bf16_f32 v{o + 2 * hb + 1}, v{acc + 2}, v{acc + 3}")
            a(f"buffer_store_dwordx4 v[{o}:{o + 3}], v22, s[20:23], s{40 + T} offen offset:{blk * 1024}" + (" sc0 sc1" if wt else ""))
    stamp(a, 5)
    a(f"s_branch {name}_fin")
    a.label(f"{name}_pf")
    a("s_waitcnt lgkmcnt(0)")
    stamp(a, 1)
    if pf:
        a("v_lshlrev_b32 v3, 7, v2")
        a("v_lshrrev_b32 v4, 4, v2")
        a("v_lshlrev_b32 v4, 12, v4")
        a("v_and_b32 v5, 15, v2")
        a("v_lshl_add_u32 v4, v5, 7, v4")
        a("s_mul_i32 s33, s28, 12")
        a("s_add_u32 s33, s33, s32")
        nld = 0
        if pfxd:
            srd(a, 12, 4, 5, S * D * 2)
            srd(a, 16, 8, 9, D * D * 2)
            srd(a, 20, 10, 11, D * D * 2)
            a("s_lshl_b32 s34, s33, 13")
            a("s_lshl_b32 s35, s3, 18")
            a("s_add_u32 s35, s35, s34")
            a("s_cmp_lt_u32 s33, 32")
            a(f"s_cbranch_scc0 {name}_pf1")
            a("buffer_load_dword v10, v3, s[12:15], s35 offen")
            a(f"s_branch {name}_pf3")
            a.label(f"{name}_pf1")
            a("s_sub_u32 s34, s34, 262144")
            a("s_cmp_lt_u32 s33, 96")
            a(f"s_cbranch_scc0 {name}_pf2")
            a("buffer_load_dword v10, v3, s[16:19], s34 offen")
            a(f"s_branch {name}_pf3")
            a.label(f"{name}_pf2")
            a("s_sub_u32 s34, s34, 524288")
            a("buffer_load_dword v10, v3, s[20:23], s34 offen")
            a.label(f"{name}_pf3")
            if pace:
                a("s_waitcnt vmcnt(0)")
        a("s_and_b32 s48, s3, 1")
        a("s_cmp_eq_u32 s48, 1")
        a("s_cselect_b32 s40, s42, s40")
        a("s_cselect_b32 s41, s43, s41")
        srd(a, 24, 40, 41, S * S * 2)
        a("s_cmp_ge_u32 s33, 128")
        a(f"s_cbranch_scc1 {name}_fin")
        a("s_lshr_b32 s48, s3, 2")
        a("s_lshl_b32 s48, s48, 10")
        a("s_lshl_b32 s49, s33, 3")
        a("s_add_u32 s48, s48, s49")
        a("s_lshl_b32 s48, s48, 12")
        a("s_bfe_u32 s49, s3, 0x10001")
        a("s_lshl_b32 s49, s49, 11")
        a("s_add_u32 s48, s48, s49")
        a("buffer_load_dword v11, v4, s[24:27], s48 offen")
        if pace >= 2:
            a("s_waitcnt vmcnt(0)")
        a("s_add_u32 s48, s48, 16384")
        a("buffer_load_dword v12, v4, s[24:27], s48 offen")
    a.label(f"{name}_fin")
    stamp_flush(a, 1, 6, 6, 7)
    a.label(f"{name}_done")
    a("s_endpgm")
    return kernel_desc(name, 160, 64, 160)


WS_STATS = (12 << 20) + (1 << 19) + 8192
WS_FLAG1 = WS_STATS + 65536
WS_CS = WS_STATS + 16384


def gen_k1d(a, name, wt=1, PRO=3, pf=1, pace=1, pfq=4):
    NSTG, SLOT, NST = 4, 32768, 8
    STATS = NSTG * SLOT
    kernel_begin(a, name)
    a("s_cmp_ge_u32 s2, 256")
    a(f"s_cbranch_scc1 {name}_done")
    stamp(a, 0)
    a("s_load_dwordx2 s[4:5], s[0:1], 0")
    a("s_load_dwordx4 s[8:11], s[0:1], 24")
    a("s_load_dwordx4 s[44:47], s[0:1], 88")
    a("s_load_dwordx4 s[40:43], s[0:1], 8")
    a("s_and_b32 s3, s2, 7")
    a("s_lshr_b32 s28, s2, 4")
    a("s_and_b32 s29, s28, 1")
    a("s_lshl_b32 s30, s3, 1")
    a("s_add_u32 s30, s30, s29")
    a("s_lshr_b32 s31, s28, 1")
    a("v_lshrrev_b32 v1, 6, v0")
    a("v_and_b32 v2, 63, v0")
    a("s_nop 0")
    a("v_readfirstlane_b32 s32, v1")
    a("s_mov_b32 s53, 0xffff0000")
    a("s_bitcmp1_b32 s2, 3")
    a(f"s_cbranch_scc1 {name}_aux")
    a("s_cmp_lt_u32 s32, 4")
    a(f"s_cbranch_scc1 {name}_cons")
    a("s_sub_u32 s33, s32, 4")
    a("v_lshrrev_b32 v3, 3, v2")
    a("v_and_b32 v4, 7, v2")
    a("v_bfe_u32 v5, v2, 4, 1")
    a("v_xor_b32 v4, v4, v5")
    a("v_lshlrev_b32 v3, 10, v3")
    for i in range(4):
        g0g1 = (i & 1) ^ (i >> 1)
        a(f"v_xor_b32 v{8 + i}, {(2 * i) ^ g0g1}, v4")
        a(f"v_lshl_add_u32 v{8 + i}, v{8 + i}, 4, v3")
        if i:
            a(f"v_add_u32 v{8 + i}, {i * (8192 - 1024)}, v{8 + i}")
    a("s_lshl_b32 s34, s33, 5")
    a("s_lshl_b32 s35, s30, 7")
    a("s_add_u32 s35, s35, s34")
    a("s_lshl_b32 s38, s35, 3")
    a("s_lshl_b32 s35, s35, 10")
    a("s_and_b32 s36, s31, 3")
    a("s_lshl_b32 s36, s36, 7")
    a("s_add_u32 s36, s36, s34")
    a("s_lshl_b32 s36, s36, 10")
    a("s_lshl_b32 s37, s33, 12")
    a("v_lshlrev_b32 v12, 6, v2")
    a("v_add_u32 v12, s37, v12")
    a("v_add_u32 v12, 16384, v12")
    a(f"v_add_u32 v13, {2 * SLOT}, v12")
    a("v_mov_b32 v14, 0")
    a("v_mov_b32 v15, 0")
    a("s_mov_b32 s50, 0x3f803f80")
    a("s_waitcnt lgkmcnt(0)")
    stamp(a, 1)
    srd(a, 12, 4, 5, S * D * 2)
    a("s_cmp_ge_u32 s31, 4")
    a("s_cselect_b32 s8, s10, s8")
    a("s_cselect_b32 s9, s11, s9")
    srd(a, 16, 8, 9, D * D * 2)
    srd(a, 20, 46, 47, 14 << 20)
    srd(a, 24, 44, 45, 256)

    def load_stage(kk):
        slot = (kk % NSTG) * SLOT
        a(f"s_add_u32 m0, s37, {slot}")
        a(f"s_add_u32 s39, s35, {kk * 128}")
        for i in range(4):
            a(f"buffer_load_dwordx4 v{8 + i}, s[12:15], s39 offen offset:{i * 1024} lds")
        a(f"s_add_u32 m0, s37, {slot + 16384}")
        a(f"s_add_u32 s39, s36, {kk * 128}")
        for i in range(4):
            a(f"buffer_load_dwordx4 v{8 + i}, s[16:19], s39 offen offset:{i * 1024} lds")

    for kk in range(PRO):
        load_stage(kk)
    stamp(a, 2)
    issued = PRO
    for kk in range(NST):
        a(f"s_waitcnt vmcnt({(issued - 1 - kk) * 8})")
        slot = kk % NSTG
        ar, so = (12, slot * SLOT) if slot < 2 else (13, (slot - 2) * SLOT)
        for q in range(4):
            a(f"ds_read_b128 v[{16 + 4 * q}:{19 + 4 * q}], v{ar} offset:{so + 16 * q}")
        a("s_barrier")
        n_new = 0
        while issued < NST and issued - NSTG < kk and n_new < 2:
            load_stage(issued)
            issued += 1
            n_new += 1
        a("s_waitcnt lgkmcnt(0)")
        for r in range(16):
            a(f"v_dot2_f32_bf16 v{14 + (r & 1)}, v{16 + r}, s50, v{14 + (r & 1)}")
    a("s_lshl_b32 s34, s30, 2")
    a("v_mov_b32 v20, s34")
    a.label(f"{name}_poll")
    a("buffer_load_dword v21, v20, s[24:27], 0 offen sc0 sc1")
    a("s_waitcnt vmcnt(0)")
    a("v_readfirstlane_b32 s34, v21")
    a("s_cmp_ge_u32 s34, 8")
    a(f"s_cbranch_scc1 {name}_polled")
    a("s_sleep 2")
    a(f"s_branch {name}_poll")
    a.label(f"{name}_polled")
    a("v_and_b32 v20, 31, v2")
    a("v_lshlrev_b32 v20, 3, v20")
    a(f"s_add_u32 s38, s38, {WS_STATS}")
    a("buffer_load_dwordx2 v[22:23], v20, s[20:23], s38 offen sc0 sc1")
    a("v_add_f32 v14, v14, v15")
    a("s_nop 1")
    a(f"v_add_f32_dpp v14, v14, v14 quad_perm:[1,0,3,2] {DPP}")
    a("v_lshrrev_b32 v19, 1, v2")
    a("v_lshlrev_b32 v19, 2, v19")
    a("s_lshl_b32 s34, s33, 7")
    a(f"s_add_u32 s34, s34, {STATS + 1024}")
    a("v_add_u32 v19, s34, v19")
    a("ds_write_b32 v19, v14")
    a("v_lshrrev_b32 v20, 1, v20")
    a("s_lshl_b32 s34, s33, 7")
    a(f"s_add_u32 s34, s34, {STATS}")
    a("v_add_u32 v20, s34, v20")
    a("s_waitcnt vmcnt(0)")
    a("ds_write_b32 v20, v22")
    a("ds_write_b32 v20, v23 offset:512")
    a("s_waitcnt lgkmcnt(0)")
    stamp(a, 3)
    a("s_barrier")
    a(f"s_branch {name}_fin")
    a.label(f"{name}_cons")
    a("s_and_b32 s33, s32, 1")
    a("s_lshr_b32 s34, s32, 1")
    a("v_and_b32 v4, 15, v2")
    a("v_lshrrev_b32 v6, 4, v2")
    a("v_lshrrev_b32 v5, 2, v4")
    a("v_and_b32 v7, 3, v4")
    a("v_lshl_add_u32 v7, v5, 3, v7")
    a("v_lshrrev_b32 v20, 1, v4")
    a("v_lshrrev_b32 v21, 2, v4")
    a("v_lshrrev_b32 v22, 3, v4")
    a("v_xor_b32 v21, v21, v22")
    a("v_and_b32 v21, 1, v21")
    a("v_xor_b32 v20, v20, v21")
    a("v_xor_b32 v20, v20, v6")
    a("v_lshlrev_b32 v20, 4, v20")
    a("v_lshl_add_u32 v20, v7, 7, v20")
    a("s_lshl_b32 s35, s33, 13")
    a("s_lshl_b32 s36, s34, 13")
    a("s_add_u32 s36, s36, 16384")
    for g2 in range(2):
        a(f"v_add_u32 v{8 + 4 * g2}, s35, v20")
        a(f"v_xor_b32 v{9 + 4 * g2}, 64, v{8 + 4 * g2}")
        a(f"v_add_u32 v{10 + 4 * g2}, s36, v20")
        a(f"v_xor_b32 v{11 + 4 * g2}, 64, v{10 + 4 * g2}")
        if g2:
            for r in range(4):
                a(f"v_add_u32 v{8 + 4 * g2 + r}, {65536 * g2}, v{8 + 4 * g2 + r}")
    ACC = 32
    FB = 96
    for i in range(64):
        a(f"v_mov_b32 v{ACC + i}, 0")
    a("s_waitcnt lgkmcnt(0)")
    stamp(a, 1)
    srd(a, 20, 46, 47, 4 << 20)
    NU = NST * 2

    def read_list(u):
        s, ks = u // 2, u % 2
        slot = s % NSTG
        g2, so = slot // 2, (slot % 2) * SLOT
        f = FB + 32 * (u % 2)
        L = []
        for i in range(4):
            off = so + (i >> 1) * 4096 + (i & 1) * 512
            L.append(f"ds_read_b128 v[{f + 4 * i}:{f + 3 + 4 * i}], v{8 + 4 * g2 + ks} offset:{off}")
            L.append(f"ds_read_b128 v[{f + 16 + 4 * i}:{f + 19 + 4 * i}], v{10 + 4 * g2 + ks} offset:{off}")
        return L

    a("s_barrier")
    stamp(a, 2)
    for r in read_list(0):
        a(r)
    for u in range(NU):
        a("s_waitcnt lgkmcnt(0)")
        f = FB + 32 * (u % 2)
        nxt = read_list(u + 1) if u + 1 < NU else []
        n = 0
        for xi in range(4):
            for T in range(4):
                acc = ACC + (xi * 4 + T) * 4
                a(f"v_mfma_f32_16x16x32_bf16 v[{acc}:{acc + 3}], v[{f + 4 * xi}:{f + 3 + 4 * xi}], v[{f + 16 + 4 * T}:{f + 19 + 4 * T}], v[{acc}:{acc + 3}]")
                n += 1
                if n == 1 and nxt and (u + 1) % 2 == 0:
                    a("s_barrier")
                if nxt:
                    a(nxt.pop(0))
    stamp(a, 3)
    a("s_barrier")
    stamp(a, 4)
    a("s_lshl_b32 s35, s33, 8")
    a(f"s_add_u32 s35, s35, {STATS}")
    a("v_lshlrev_b32 v20, 5, v6")
    a("v_add_u32 v20, s35, v20")
    for blk in range(2):
        for h in range(2):
            a(f"ds_read_b128 v[{96 + 16 * blk + 4 * h}:{99 + 16 * blk + 4 * h}], v20 offset:{128 * blk + 16 * h}")
            a(f"ds_read_b128 v[{104 + 16 * blk + 4 * h}:{107 + 16 * blk + 4 * h}], v20 offset:{512 + 128 * blk + 16 * h}")
    a("s_lshl_b32 s36, s34, 8")
    a(f"s_add_u32 s36, s36, {STATS + 1024}")
    a("v_lshlrev_b32 v21, 2, v7")
    a("v_add_u32 v21, s36, v21")
    for T in range(4):
        a(f"ds_read_b32 v{128 + T}, v21 offset:{(T >> 1) * 128 + (T & 1) * 16}")
    a("s_lshl_b32 s35, s31, 3")
    a("s_lshl_b32 s36, s34, 2")
    a("s_add_u32 s35, s35, s36")
    a("s_lshl_b32 s35, s35, 6")
    a("s_lshl_b32 s36, s30, 2")
    a("s_add_u32 s35, s35, s36")
    a("s_lshl_b32 s36, s33, 1")
    a("s_add_u32 s35, s35, s36")
    a("s_lshl_b32 s35, s35, 10")
    for T in range(4):
        a(f"s_add_u32 s{40 + T}, s35, {T * 65536}")
    a("v_lshlrev_b32 v22, 4, v2")
    a("s_waitcnt lgkmcnt(0)")
    for blk in range(2):
        for T in range(4):
            o = 132 + 4 * ((blk * 4 + T) & 3)
            for hb in range(2):
                acc = ACC + ((blk * 2 + hb) * 4 + T) * 4
                for j in range(4):
                    a(f"v_fma_f32 v{acc + j}, -v{96 + 16 * blk + 4 * hb + j}, v{128 + T}, v{acc + j}")
                    a(f"v_mul_f32 v{acc + j}, v{acc + j}, v{104 + 16 * blk + 4 * hb + j}")
                a(f"v_cvt_pk_bf16_f32 v{o + 2 * hb}, v{acc}, v{acc + 1}")
                a(f"v_cvt_pk_bf16_f32 v{o + 2 * hb + 1}, v{acc + 2}, v{acc + 3}")
            a(f"buffer_store_dwordx4 v[{o}:{o + 3}], v22, s[20:23], s{40 + T} offen offset:{blk * 1024}" + (" sc0 sc1" if wt else ""))
    stamp(a, 5)
    a(f"s_branch {name}_fin")
    a.label(f"{name}_aux")
    a("v_mov_b32 v3, 0")
    a("ds_write_b32 v3, v3")
    a("s_waitcnt lgkmcnt(0)")
    a("s_barrier")
    stamp(a, 1)
    a("s_cmp_ge_u32 s32, 4")
    a(f"s_cbranch_scc1 {name}_pfw")
    a("s_lshl_b32 s33, s3, 8")
    a("s_lshl_b32 s34, s28, 4")
    a("s_add_u32 s33, s33, s34")
    a("s_lshl_b32 s34, s32, 2")
    a("s_add_u32 s33, s33, s34")
    a("v_lshrrev_b32 v3, 4, v2")
    a("v_and_b32 v4, 15, v2")
    a("v_lshlrev_b32 v5, 10, v3")
    a("v_lshl_add_u32 v5, v4, 4, v5")
    a("s_lshl_b32 s34, s33, 10")
    srd(a, 12, 4, 5, S * D * 2)
    for jj in range(4):
        a(f"buffer_load_dwordx4 v[{16 + 4 * jj}:{19 + 4 * jj}], v5, s[12:15], s34 offen offset:{256 * jj}")
    srd(a, 20, 46, 47, 14 << 20)
    srd(a, 28, 44, 45, 256)
    a("s_waitcnt vmcnt(0)")
    stamp(a, 2)
    X = 32
    for r in range(16):
        a(f"v_lshlrev_b32 v{X + 2 * r}, 16, v{16 + r}")
        a(f"v_and_b32 v{X + 2 * r + 1}, s53, v{16 + r}")
    a(f"v_add_f32 v8, v{X}, v{X + 1}")
    a(f"v_add_f32 v9, v{X + 2}, v{X + 3}")
    for r in range(4, 32, 2):
        a(f"v_add_f32 v8, v8, v{X + r}")
        a(f"v_add_f32 v9, v9, v{X + r + 1}")
    a("v_add_f32 v8, v8, v9")

    def red16(v):
        for pat in ("quad_perm:[1,0,3,2]", "quad_perm:[2,3,0,1]", "row_half_mirror", "row_mirror"):
            a("s_nop 1")
            a(f"v_add_f32_dpp v{v}, v{v}, v{v} {pat} {DPP}")

    red16(8)
    a("v_mul_f32 v8, 0x3b000000, v8")
    a("v_mov_b32 v10, 0")
    a("v_mov_b32 v11, 0")
    for r in range(0, 32, 2):
        a(f"v_sub_f32 v{X + r}, v{X + r}, v8")
        a(f"v_sub_f32 v{X + r + 1}, v{X + r + 1}, v8")
        a(f"v_fmac_f32 v10, v{X + r}, v{X + r}")
        a(f"v_fmac_f32 v11, v{X + r + 1}, v{X + r + 1}")
    a("v_add_f32 v10, v10, v11")
    red16(10)
    a("v_mul_f32 v10, 0x3b000000, v10")
    a("v_cvt_pk_bf16_f32 v12, v8, v8")
    a("v_lshlrev_b32 v12, 16, v12")
    a("v_cvt_pk_bf16_f32 v10, v10, v10")
    a("v_lshlrev_b32 v10, 16, v10")
    a("v_add_f32 v10, 0x3727c5ac, v10")
    a("v_cvt_pk_bf16_f32 v10, v10, v10")
    a("v_lshlrev_b32 v10, 16, v10")
    a("v_sqrt_f32 v10, v10")
    a("s_nop 0")
    a("v_cvt_pk_bf16_f32 v10, v10, v10")
    a("v_lshlrev_b32 v10, 16, v10")
    a("v_rcp_f32 v13, v10")
    a("v_lshlrev_b32 v14, 3, v3")
    a("s_lshl_b32 s36, s33, 3")
    a(f"s_add_u32 s36, s36, {WS_STATS}")
    a("v_cmp_eq_u32 vcc, 0, v4")
    a("s_and_saveexec_b64 s[54:55], vcc")
    a("buffer_store_dwordx2 v[12:13], v14, s[20:23], s36 offen sc0 sc1")
    a("s_mov_b64 exec, s[54:55]")
    a("s_waitcnt vmcnt(0)")
    stamp(a, 3)
    a("v_mov_b32 v14, 0")
    a("v_mov_b32 v15, 1")
    a("v_cmp_eq_u32 vcc, 0, v2")
    a("s_and_saveexec_b64 s[54:55], vcc")
    a("ds_add_rtn_u32 v6, v14, v15")
    a("s_waitcnt lgkmcnt(0)")
    a("v_readfirstlane_b32 s36, v6")
    a("s_cmp_lg_u32 s36, 3")
    a(f"s_cbranch_scc1 {name}_nosig")
    a("s_lshr_b32 s36, s33, 7")
    a("s_lshl_b32 s36, s36, 2")
    a("v_mov_b32 v14, s36")
    a("buffer_atomic_add v15, v14, s[28:31], 0 offen")
    a.label(f"{name}_nosig")
    a("s_mov_b64 exec, s[54:55]")
    a(f"s_branch {name}_fin")
    a.label(f"{name}_pfw")
    a("v_lshlrev_b32 v6, 7, v2")
    a("v_lshrrev_b32 v7, 4, v2")
    a("v_lshlrev_b32 v7, 12, v7")
    a("v_and_b32 v8, 15, v2")
    a("v_lshl_add_u32 v7, v8, 7, v7")
    a("s_lshl_b32 s35, s28, 2")
    a("s_add_u32 s35, s35, s32")
    a("s_sub_u32 s35, s35, 4")
    srd(a, 16, 8, 9, D * D * 2)
    srd(a, 20, 10, 11, D * D * 2)
    a("s_lshl_b32 s36, s35, 13")
    a("buffer_load_dword v10, v6, s[16:19], s36 offen")
    a("buffer_load_dword v11, v6, s[20:23], s36 offen")
    a("s_and_b32 s48, s3, 1")
    a("s_cmp_eq_u32 s48, 1")
    a("s_cselect_b32 s40, s42, s40")
    a("s_cselect_b32 s41, s43, s41")
    srd(a, 24, 40, 41, S * S * 2)
    a("s_lshr_b32 s48, s3, 2")
    a("s_lshl_b32 s48, s48, 10")
    a("s_lshl_b32 s49, s35, 4")
    a("s_add_u32 s48, s48, s49")
    a("s_lshl_b32 s48, s48, 12")
    a("s_bfe_u32 s49, s3, 0x10001")
    a("s_lshl_b32 s49, s49, 11")
    a("s_add_u32 s48, s48, s49")
    if pace:
        a("s_waitcnt vmcnt(0)")
    stamp(a, 2)
    if pf:
        if pfq < 4:
            a(f"v_cmp_gt_u32 vcc, {4 * pfq}, v8")
            a("s_and_saveexec_b64 s[54:55], vcc")
        for ii in range(4):
            a(f"s_add_u32 s49, s48, {ii * 16384}")
            a(f"buffer_load_dword v{12 + ii}, v7, s[24:27], s49 offen")
        if pfq < 4:
            a("s_mov_b64 exec, s[54:55]")
    a.label(f"{name}_fin")
    stamp_flush(a, 1, 6, 46, 47)
    a.label(f"{name}_done")
    a("s_endpgm")
    return kernel_desc(name, 160, 64, 160)


def gen_k1e(a, name, wt=1, PRO=4, pf=1, pace=1, U1=10, U2=12, pfq=4, pol=0, ppol=0, tlb=0, UC=13, vst=0, swap=1, wk1=0, early=0, fuse2=None, cpre=0):
    POL = {0: '', 1: ' sc1', 2: ' nt', 3: ' sc0'}[pol]
    PPOL = {0: '', 1: ' sc1', 2: ' nt', 3: ' sc0'}[ppol]
    NSTG, SLOT, NST = 5, 32768, 8
    CS = 3 * SLOT
    kernel_begin(a, name)
    a("s_cmp_ge_u32 s2, 256")
    a(f"s_cbranch_scc1 {name}_done")
    stamp(a, 0)
    a("s_load_dwordx2 s[4:5], s[0:1], 0")
    a("s_load_dwordx4 s[8:11], s[0:1], 24")
    a("s_load_dwordx4 s[44:47], s[0:1], 88")
    a("s_load_dwordx4 s[40:43], s[0:1], 8")
    a("s_and_b32 s3, s2, 7")
    a("s_lshr_b32 s28, s2, 4")
    a("s_and_b32 s29, s3, 1")
    a("s_bfe_u32 s27, s3, 0x10001")
    a("s_lshr_b32 s26, s3, 2")
    a("s_lshl_b32 s30, s27, 3")
    a("s_lshl_b32 s34, s26, 2")
    a("s_add_u32 s30, s30, s34")
    a("s_and_b32 s34, s28, 3")
    a("s_add_u32 s30, s30, s34")
    a("s_lshr_b32 s31, s28, 2")
    a("v_lshrrev_b32 v1, 6, v0")
    a("v_and_b32 v2, 63, v0")
    a("s_nop 0")
    a("v_readfirstlane_b32 s32, v1")
    a("s_mov_b32 s53, 0xffff0000")
    a("s_mov_b32 s69, 0x40000")
    a("s_bitcmp1_b32 s2, 3")
    a(f"s_cbranch_scc1 {name}_aux")
    if swap:
        a("s_xor_b32 s32, s32, 4")
    a("s_cmp_lt_u32 s32, 4")
    a(f"s_cbranch_scc1 {name}_cons")
    a("s_sub_u32 s33, s32, 4")
    a("v_lshrrev_b32 v3, 3, v2")
    a("v_and_b32 v4, 7, v2")
    a("v_bfe_u32 v5, v2, 4, 1")
    a("v_xor_b32 v4, v4, v5")
    a("v_lshlrev_b32 v3, 10, v3")
    for i in range(4):
        g0g1 = (i & 1) ^ (i >> 1)
        a(f"v_xor_b32 v{8 + i}, {(2 * i) ^ g0g1}, v4")
        a(f"v_lshl_add_u32 v{8 + i}, v{8 + i}, 4, v3")
        if i:
            a(f"v_add_u32 v{8 + i}, {i * (8192 - 1024)}, v{8 + i}")
    a("s_lshl_b32 s34, s33, 5")
    a("s_lshl_b32 s35, s30, 7")
    a("s_add_u32 s35, s35, s34")
    a("s_lshl_b32 s35, s35, 10")
    a("s_lshl_b32 s36, s31, 7")
    a("s_add_u32 s36, s36, s34")
    a("s_lshl_b32 s36, s36, 10")
    a("s_lshl_b32 s37, s33, 12")
    a("v_lshlrev_b32 v12, 6, v2")
    a("v_add_u32 v12, s37, v12")
    a("v_add_u32 v12, 16384, v12")
    a(f"v_add_u32 v13, {2 * SLOT}, v12")
    a(f"v_add_u32 v6, {4 * SLOT}, v12")
    a("v_mov_b32 v14, 0")
    a("v_mov_b32 v15, 0")
    a("s_mov_b32 s50, 0x3f803f80")
    a("s_waitcnt lgkmcnt(0)")
    stamp(a, 1)
    srd(a, 12, 4, 5, S * D * 2)
    a("s_cmp_eq_u32 s29, 1")
    a("s_cselect_b32 s8, s10, s8")
    a("s_cselect_b32 s9, s11, s9")
    srd(a, 16, 8, 9, D * D * 2)

    def load_stage(kk):
        slot = (kk % NSTG) * SLOT
        a(f"s_add_u32 m0, s37, {slot}")
        a(f"s_add_u32 s39, s35, {kk * 128}")
        for i in range(4):
            a(f"buffer_load_dwordx4 v{8 + i}, s[12:15], s39 offen offset:{i * 1024}{POL} lds")
        a(f"s_add_u32 m0, s37, {slot + 16384}")
        a(f"s_add_u32 s39, s36, {kk * 128}")
        for i in range(4):
            a(f"buffer_load_dwordx4 v{8 + i}, s[16:19], s39 offen offset:{i * 1024}{POL} lds")

    if vst:
        VB = 32

        def vload_stage(kk):
            r = VB + (kk - NSTG) * 32
            a(f"s_add_u32 s39, s35, {kk * 128}")
            for i in range(4):
                a(f"buffer_load_dwordx4 v[{r + 4 * i}:{r + 4 * i + 3}], v{8 + i}, s[12:15], s39 offen offset:{i * 1024}")
            a(f"s_add_u32 s39, s36, {kk * 128}")
            for i in range(4):
                a(f"buffer_load_dwordx4 v[{r + 16 + 4 * i}:{r + 19 + 4 * i}], v{8 + i}, s[16:19], s39 offen offset:{i * 1024}")

        def vwrite_stage(kk):
            r = VB + (kk - NSTG) * 32
            slot = (kk % NSTG) * SLOT
            ar = 16 if slot < 65536 - 32768 + 1 else 17
            so = slot if ar == 16 else slot - 65536
            for i in range(4):
                a(f"ds_write_b128 v{ar}, v[{r + 4 * i}:{r + 4 * i + 3}] offset:{so + i * 1024}")
                a(f"ds_write_b128 v{ar}, v[{r + 16 + 4 * i}:{r + 19 + 4 * i}] offset:{so + 16384 + i * 1024}")

        a("v_lshlrev_b32 v16, 4, v2")
        a("v_add_u32 v16, s37, v16")
        a("v_add_u32 v17, 65536, v16")
        for kk in range(PRO):
            load_stage(kk)
        stamp(a, 2)
        issued = PRO
        for kk in range(NST):
            if kk < NSTG:
                a(f"s_waitcnt vmcnt({(issued - 1 - kk) * 8})")
            else:
                a("s_waitcnt lgkmcnt(0)")
            a("s_barrier")
            n_new = 0
            while issued < NST and n_new < 2:
                (load_stage if issued < NSTG else vload_stage)(issued)
                issued += 1
                n_new += 1
            if NSTG <= kk + 1 < NST:
                a(f"s_waitcnt vmcnt({(issued - 1 - (kk + 1)) * 8})")
                vwrite_stage(kk + 1)
    else:
        for kk in range(PRO):
            load_stage(kk)
        stamp(a, 2)
        issued = PRO
        for kk in range(NST):
            a(f"s_waitcnt vmcnt({(issued - 1 - kk) * 8})")
            a("s_barrier")
            n_new = 0
            while issued < NST and issued - NSTG < kk and n_new < 2:
                load_stage(issued)
                issued += 1
                n_new += 1
    stamp(a, 3)
    if fuse2:
        a("s_barrier")
    a(f"s_branch {name}_fin")
    a.label(f"{name}_cons")
    a("s_and_b32 s33, s32, 1")
    a("s_lshr_b32 s34, s32, 1")
    a("v_and_b32 v4, 15, v2")
    a("v_lshrrev_b32 v6, 4, v2")
    a("v_lshrrev_b32 v5, 2, v4")
    a("v_and_b32 v7, 3, v4")
    a("v_lshl_add_u32 v7, v5, 3, v7")
    a("v_lshrrev_b32 v20, 1, v4")
    a("v_lshrrev_b32 v21, 2, v4")
    a("v_lshrrev_b32 v22, 3, v4")
    a("v_xor_b32 v21, v21, v22")
    a("v_and_b32 v21, 1, v21")
    a("v_xor_b32 v20, v20, v21")
    a("v_xor_b32 v20, v20, v6")
    a("v_lshlrev_b32 v20, 4, v20")
    a("v_lshl_add_u32 v20, v7, 7, v20")
    a("s_lshl_b32 s35, s33, 13")
    a("s_lshl_b32 s36, s34, 13")
    a("s_add_u32 s36, s36, 16384")
    for g2 in range(3):
        a(f"v_add_u32 v{8 + 4 * g2}, s35, v20")
        a(f"v_xor_b32 v{9 + 4 * g2}, 64, v{8 + 4 * g2}")
        a(f"v_add_u32 v{10 + 4 * g2}, s36, v20")
        a(f"v_xor_b32 v{11 + 4 * g2}, 64, v{10 + 4 * g2}")
        if g2:
            for r in range(4):
                a(f"v_add_u32 v{8 + 4 * g2 + r}, {65536 * g2}, v{8 + 4 * g2 + r}")
    ACC = 32
    FB = 96
    ST = 160
    for i in range(64):
        a(f"v_mov_b32 v{ACC + i}, 0")
    a("s_lshl_b32 s38, s30, 7")
    a("s_lshl_b32 s39, s33, 6")
    a("s_add_u32 s38, s38, s39")
    a("s_lshl_b32 s38, s38, 3")
    a(f"s_add_u32 s38, s38, {WS_STATS}")
    a("v_lshlrev_b32 v23, 6, v6")
    a("v_mov_b32 v24, 0")
    a("s_lshl_b32 s39, s29, 9")
    a("s_lshl_b32 s61, s31, 7")
    a("s_add_u32 s39, s39, s61")
    a("s_lshl_b32 s61, s34, 6")
    a("s_add_u32 s39, s39, s61")
    a("s_lshl_b32 s39, s39, 3")
    a(f"s_add_u32 s61, s39, {WS_CS}")
    a("v_lshlrev_b32 v21, 3, v7")
    a("s_waitcnt lgkmcnt(0)")
    stamp(a, 1)
    srd(a, 20, 46, 47, 14 << 20)
    srd(a, 24, 44, 45, 256)
    if fuse2 and SENT in (1, 2):
        a("s_lshr_b32 s56, s2, 3")
        a("s_lshr_b32 s57, s3, 2")
        a("s_lshl_b32 s57, s57, 3")
        a("s_and_b32 s58, s56, 7")
        a("s_add_u32 s57, s57, s58")
        a("s_lshr_b32 s56, s56, 3")
        a("s_lshl_b32 s57, s57, 7")
        a("s_lshl_b32 s58, s33, 6")
        a("s_add_u32 s57, s57, s58")
        a("s_lshl_b32 s57, s57, 10")
        a("s_lshl_b32 s58, s56, 8")
        a("s_add_u32 s57, s57, s58")
        a("s_lshl_b32 s58, s34, 7")
        a("s_add_u32 s57, s57, s58")
        a("s_bfe_u32 s58, s3, 0x10001")
        a("s_lshl_b32 s59, s29, 1")
        a("s_add_u32 s58, s58, s59")
        a("s_lshl_b32 s58, s58, 21")
        a("s_add_u32 s57, s57, s58")
        a(f"s_add_u32 s57, s57, {WS_P}")
        a("v_lshlrev_b32 v26, 4, v6")
        a("v_lshl_add_u32 v26, v4, 10, v26")
        for r in range(4):
            a(f"v_mov_b32 v{28 + r}, -1")
        for tt in range(4):
            a(f"s_add_u32 s58, s57, {tt * 16384}")
            for Th in range(2):
                a(f"buffer_store_dwordx4 v[28:31], v26, s[20:23], s58 offen offset:{Th * 64} sc0 sc1")
    NU = NST * 2

    def read_list(u):
        s, ks = u // 2, u % 2
        slot = s % NSTG
        g2, so = slot // 2, (slot % 2) * SLOT
        f = FB + 32 * (u % 2)
        L = []
        for i in range(4):
            off = so + (i >> 1) * 4096 + (i & 1) * 512
            L.append(f"ds_read_b128 v[{f + 4 * i}:{f + 3 + 4 * i}], v{8 + 4 * g2 + ks} offset:{off}")
            L.append(f"ds_read_b128 v[{f + 16 + 4 * i}:{f + 19 + 4 * i}], v{10 + 4 * g2 + ks} offset:{off}")
        return L

    def stats_loads():
        for blk in range(2):
            for q4 in range(4):
                r = ST + 16 * blk + 4 * q4
                a(f"buffer_load_dwordx4 v[{r}:{r + 3}], v23, s[20:23], s38 offen offset:{256 * blk + 16 * q4} sc1")
        for T in range(4):
            a(f"buffer_load_dwordx2 v[{192 + 2 * T}:{193 + 2 * T}], v21, s[20:23], s61 offen offset:{(T >> 1) * 256 + (T & 1) * 32} sc1")
        a("buffer_load_dword v25, v24, s[24:27], 0 offen sc1")

    a("s_lshl_b32 s35, s29, 5")
    a("s_lshl_b32 s36, s31, 3")
    a("s_add_u32 s35, s35, s36")
    a("s_lshl_b32 s36, s34, 2")
    a("s_add_u32 s35, s35, s36")
    a("s_lshl_b32 s35, s35, 6")
    a("s_lshl_b32 s36, s30, 2")
    a("s_add_u32 s35, s35, s36")
    a("s_lshl_b32 s36, s33, 1")
    a("s_add_u32 s35, s35, s36")
    a("s_lshl_b32 s35, s35, 10")
    for T in range(4):
        a(f"s_add_u32 s{40 + T}, s35, {T * 65536}")

    def check_ops():
        L = [f"v_xor_b32 v26, v25, v{ST + 1}"]
        for r in range(1, 16):
            L.append(f"v_xor_b32 v27, v25, v{ST + 2 * r + 1}")
            L.append("v_or_b32 v26, v26, v27")
        for T in range(4):
            L.append(f"v_xor_b32 v27, v25, v{193 + 2 * T}")
            L.append("v_or_b32 v26, v26, v27")
        for r in range(16):
            L.append(f"v_lshlrev_b32 v{ST + 2 * r + 1}, 16, v{ST + 2 * r}")
            L.append(f"v_rcp_f32 v{ST + 2 * r + 1}, v{ST + 2 * r + 1}")
            L.append(f"v_and_b32 v{ST + 2 * r}, s53, v{ST + 2 * r}")
        return L

    a("s_barrier")
    stamp(a, 2)
    for r in read_list(0):
        a(r)
    shadow = []
    for u in range(NU):
        a("s_waitcnt lgkmcnt(0)")
        f = FB + 32 * (u % 2)
        nxt = read_list(u + 1) if u + 1 < NU else []
        n = 0
        if u == UC:
            a("s_waitcnt vmcnt(0)")
            shadow = check_ops()
        for xi in range(4):
            for T in range(4):
                acc = ACC + (xi * 4 + T) * 4
                a(f"v_mfma_f32_16x16x32_bf16 v[{acc}:{acc + 3}], v[{f + 4 * xi}:{f + 3 + 4 * xi}], v[{f + 16 + 4 * T}:{f + 19 + 4 * T}], v[{acc}:{acc + 3}]")
                n += 1
                if n == 1 and nxt and (u + 1) % 2 == 0:
                    a("s_barrier")
                if nxt:
                    a(nxt.pop(0))
                for _ in range(2):
                    if shadow:
                        a(shadow.pop(0))
                if u == U1 and n == 10:
                    stats_loads()
    for op in shadow:
        a(op)
    stamp(a, 3)
    a.label(f"{name}_chk")
    a("v_cmp_eq_u32 vcc, 0, v25")
    a("v_cmp_ne_u32 s[62:63], 0, v26")
    a("s_or_b64 s[62:63], s[62:63], vcc")
    a(f"s_cbranch_scc0 {name}_have")
    a("s_sleep 4")
    stats_loads()
    a("s_waitcnt vmcnt(0)")
    for op in check_ops():
        a(op)
    a("s_sub_u32 s69, s69, 1")
    a(f"s_cbranch_scc0 {name}_chk")
    a("s_mov_b32 s69, 0")
    a.label(f"{name}_have")
    stamp(a, 4)
    a("v_lshlrev_b32 v22, 4, v2")
    a("s_nop 4")
    for blk in range(2):
        for T in range(4):
            o = 132 + 4 * ((blk * 4 + T) & 3)
            for hb in range(2):
                acc = ACC + ((blk * 2 + hb) * 4 + T) * 4
                for j in range(4):
                    sr = ST + 16 * blk + 2 * (4 * hb + j)
                    a(f"v_fma_f32 v{acc + j}, -v{sr}, v{192 + 2 * T}, v{acc + j}")
                    a(f"v_mul_f32 v{acc + j}, v{acc + j}, v{sr + 1}")
                a(f"v_cvt_pk_bf16_f32 v{o + 2 * hb}, v{acc}, v{acc + 1}")
                a(f"v_cvt_pk_bf16_f32 v{o + 2 * hb + 1}, v{acc + 2}, v{acc + 3}")
            a(f"buffer_store_dwordx4 v[{o}:{o + 3}], v22, s[20:23], s{40 + T} offen offset:{blk * 1024}" + (" sc0 sc1" if wt else ""))
    stamp(a, 5)
    if fuse2:
        a("s_bfe_u32 s36, s3, 0x10001")
        a("s_lshl_b32 s35, s29, 1")
        a("s_add_u32 s35, s35, s36")
        a("s_lshl_b32 s35, s35, 2")
        a("s_add_u32 s35, s35, s31")
        a("s_lshl_b32 s35, s35, 3")
        a("s_and_b32 s36, s30, 7")
        a("s_add_u32 s35, s35, s36")
        a("s_lshl_b32 s35, s35, 7")
        a("s_lshl_b32 s36, s32, 2")
        a("s_add_u32 s35, s35, s36")
        a(f"s_add_u32 s35, s35, {WS_FLAG1}")
        a("s_waitcnt vmcnt(0)")
        a("buffer_store_dword v25, v24, s[20:23], s35 offen sc0 sc1")
        a("s_barrier")
    a(f"s_branch {name}_fin")
    a.label(f"{name}_aux")
    a("s_mov_b32 s50, s28")
    a("s_mov_b32 s51, s29")
    a("s_memrealtime s[66:67]")
    a("v_lshlrev_b32 v6, 7, v2")
    a("v_lshrrev_b32 v3, 4, v2")
    a("v_and_b32 v4, 15, v2")
    a("v_lshlrev_b32 v7, 12, v3")
    a("v_lshl_add_u32 v7, v4, 7, v7")
    a("v_lshlrev_b32 v5, 10, v3")
    a("v_lshl_add_u32 v5, v4, 4, v5")
    a("s_lshl_b32 s35, s50, 3")
    a("s_add_u32 s56, s35, s3")
    a("s_add_u32 s35, s35, s32")
    a("s_lshl_b32 s48, s26, 10")
    a("s_lshl_b32 s49, s35, 3")
    a("s_add_u32 s48, s48, s49")
    a("s_lshl_b32 s48, s48, 12")
    a("s_lshl_b32 s49, s27, 11")
    a("s_add_u32 s48, s48, s49")
    a("s_add_u32 s49, s48, 16384")
    a("s_waitcnt lgkmcnt(0)")
    stamp(a, 1)
    srd(a, 28, 44, 45, 256)
    srd(a, 20, 46, 47, 14 << 20)
    a("s_xor_b32 s62, s2, 8")
    a("s_or_b32 s62, s62, s32")
    a("s_cmp_lg_u32 s62, 0")
    a(f"s_cbranch_scc1 {name}_nopub")
    a("s_or_b32 s62, s66, 1")
    a("v_mov_b32 v25, s62")
    a("v_mov_b32 v24, 0")
    a("buffer_store_dword v25, v24, s[28:31], 0 offen sc0 sc1")
    a(f"s_mov_b32 s62, {13 << 20}")
    a("buffer_store_dword v25, v24, s[20:23], s62 offen sc0 sc1")
    a.label(f"{name}_nopub")
    srd(a, 12, 4, 5, S * D * 2)
    a("s_cmp_ge_u32 s32, 6")
    a(f"s_cbranch_scc1 {name}_touch")
    a("s_cmp_ge_u32 s32, 4")
    a(f"s_cbranch_scc1 {name}_csw")
    a("s_lshl_b32 s33, s56, 4")
    a("s_lshl_b32 s34, s32, 2")
    a("s_add_u32 s33, s33, s34")
    a("s_lshl_b32 s34, s33, 10")
    for jj in range(4):
        a(f"buffer_load_dwordx4 v[{16 + 4 * jj}:{19 + 4 * jj}], v5, s[12:15], s34 offen offset:{256 * jj}")
    a("v_mov_b32 v9, 0")
    a.label(f"{name}_nl1")
    a("buffer_load_dword v15, v9, s[28:31], 0 offen sc1")
    a("s_waitcnt vmcnt(0)")
    a("v_readfirstlane_b32 s57, v15")
    a("s_cmp_lg_u32 s57, 0")
    a(f"s_cbranch_scc1 {name}_nd1")
    a("s_sleep 1")
    a("s_sub_u32 s69, s69, 1")
    a(f"s_cbranch_scc0 {name}_nl1")
    a("s_mov_b32 s69, 0")
    a.label(f"{name}_nd1")
    stamp(a, 2)
    X = 32
    for r in range(16):
        a(f"v_lshlrev_b32 v{X + 2 * r}, 16, v{16 + r}")
        a(f"v_and_b32 v{X + 2 * r + 1}, s53, v{16 + r}")
    a(f"v_add_f32 v8, v{X}, v{X + 1}")
    a(f"v_add_f32 v9, v{X + 2}, v{X + 3}")
    for r in range(4, 32, 2):
        a(f"v_add_f32 v8, v8, v{X + r}")
        a(f"v_add_f32 v9, v9, v{X + r + 1}")
    a("v_add_f32 v8, v8, v9")

    def red16(v):
        for pat in ("quad_perm:[1,0,3,2]", "quad_perm:[2,3,0,1]", "row_half_mirror", "row_mirror"):
            a("s_nop 1")
            a(f"v_add_f32_dpp v{v}, v{v}, v{v} {pat} {DPP}")

    red16(8)
    a("v_mul_f32 v8, 0x3b000000, v8")
    a("v_mov_b32 v10, 0")
    a("v_mov_b32 v11, 0")
    for r in range(0, 32, 2):
        a(f"v_sub_f32 v{X + r}, v{X + r}, v8")
        a(f"v_sub_f32 v{X + r + 1}, v{X + r + 1}, v8")
        a(f"v_fmac_f32 v10, v{X + r}, v{X + r}")
        a(f"v_fmac_f32 v11, v{X + r + 1}, v{X + r + 1}")
    a("v_add_f32 v10, v10, v11")
    red16(10)
    a("v_mul_f32 v10, 0x3b000000, v10")
    a("v_cvt_pk_bf16_f32 v12, v8, v8")
    a("v_lshlrev_b32 v12, 16, v12")
    a("v_cvt_pk_bf16_f32 v10, v10, v10")
    a("v_lshlrev_b32 v10, 16, v10")
    a("v_add_f32 v10, 0x3727c5ac, v10")
    a("v_cvt_pk_bf16_f32 v10, v10, v10")
    a("v_lshlrev_b32 v10, 16, v10")
    a("v_sqrt_f32 v10, v10")
    a("s_nop 0")
    a("v_cvt_pk_bf16_f32 v10, v10, v10")
    a("v_and_b32 v10, 0xffff, v10")
    a("v_or_b32 v12, v12, v10")
    a("v_mov_b32 v13, v15")
    a("v_lshlrev_b32 v14, 3, v3")
    a("s_lshl_b32 s36, s33, 3")
    a(f"s_add_u32 s36, s36, {WS_STATS}")
    a("v_cmp_eq_u32 vcc, 0, v4")
    a("s_and_saveexec_b64 s[54:55], vcc")
    a("buffer_store_dwordx2 v[12:13], v14, s[20:23], s36 offen sc0 sc1")
    a("s_mov_b64 exec, s[54:55]")
    a(f"s_branch {name}_auxj")
    a.label(f"{name}_csw")
    a("s_lshl_b32 s33, s56, 3")
    a("s_sub_u32 s34, s32, 4")
    a("s_lshl_b32 s34, s34, 2")
    a("s_add_u32 s33, s33, s34")
    a("s_cmp_ge_u32 s33, 512")
    a("s_cselect_b32 s58, s10, s8")
    a("s_cselect_b32 s59, s11, s9")
    srd(a, 16, 58, 59, D * D * 2)
    a("s_and_b32 s34, s33, 511")
    a("s_lshl_b32 s34, s34, 10")
    for jj in range(4):
        a(f"buffer_load_dwordx4 v[{16 + 4 * jj}:{19 + 4 * jj}], v5, s[16:19], s34 offen offset:{256 * jj}")
    a("v_mov_b32 v8, 0")
    a("v_mov_b32 v9, 0")
    a.label(f"{name}_nl2")
    a("buffer_load_dword v15, v9, s[28:31], 0 offen sc1")
    a("s_waitcnt vmcnt(0)")
    a("v_readfirstlane_b32 s57, v15")
    a("s_cmp_lg_u32 s57, 0")
    a(f"s_cbranch_scc1 {name}_nd2")
    a("s_sleep 1")
    a("s_sub_u32 s69, s69, 1")
    a(f"s_cbranch_scc0 {name}_nl2")
    a("s_mov_b32 s69, 0")
    a.label(f"{name}_nd2")
    for r in range(16):
        a(f"v_lshlrev_b32 v{32 + 2 * (r & 3)}, 16, v{16 + r}")
        a(f"v_and_b32 v{33 + 2 * (r & 3)}, s53, v{16 + r}")
        a(f"v_add_f32 v8, v8, v{32 + 2 * (r & 3)}")
        a(f"v_add_f32 v9, v9, v{33 + 2 * (r & 3)}")
    a("v_add_f32 v8, v8, v9")
    red16(8)
    a("v_lshlrev_b32 v14, 3, v3")
    a("v_mov_b32 v9, v15")
    a("s_lshl_b32 s36, s33, 3")
    a(f"s_add_u32 s36, s36, {WS_CS}")
    a("v_cmp_eq_u32 vcc, 0, v4")
    a("s_and_saveexec_b64 s[54:55], vcc")
    a("buffer_store_dwordx2 v[8:9], v14, s[20:23], s36 offen sc0 sc1")
    a("s_mov_b64 exec, s[54:55]")
    a(f"s_branch {name}_auxj")
    a.label(f"{name}_touch")
    if cpre:
        a("s_cmp_lg_u32 s32, 6")
        a(f"s_cbranch_scc1 {name}_nocp")
        a("s_getpc_b64 s[60:61]")
        a.label(f"{name}_pc")
        a(f"s_sub_u32 s60, s60, {name}_pc-{name}")
        a("s_subb_u32 s61, s61, 0")
        a("s_lshl_b32 s62, s50, 13")
        a("v_add_u32 v16, s62, v6")
        a(f"v_min_u32 v16, code_end-{name}-4, v16")
        a("global_load_dword v207, v16, s[60:61]")
        a.label(f"{name}_nocp")
    a("s_cmp_eq_u32 s51, 1")
    a("s_cselect_b32 s58, s10, s8")
    a("s_cselect_b32 s59, s11, s9")
    srd(a, 16, 58, 59, D * D * 2)
    a("s_lshl_b32 s36, s27, 20")
    a("s_lshl_b32 s37, s26, 19")
    a("s_add_u32 s36, s36, s37")
    a("s_lshl_b32 s37, s50, 1")
    a("s_add_u32 s37, s37, s32")
    a("s_sub_u32 s37, s37, 6")
    a("s_lshl_b32 s37, s37, 14")
    a("s_add_u32 s36, s36, s37")
    a("buffer_load_dword v202, v6, s[12:15], s36 offen")
    a("buffer_load_dword v203, v6, s[16:19], s37 offen")
    a("s_add_u32 s36, s36, 8192")
    a("s_add_u32 s37, s37, 8192")
    a("buffer_load_dword v204, v6, s[12:15], s36 offen")
    a("buffer_load_dword v205, v6, s[16:19], s37 offen")
    if tlb:
        a("s_load_dwordx8 s[64:71], s[0:1], 48")
        a("s_load_dwordx2 s[58:59], s[0:1], 80")
        a("v_lshlrev_b32 v16, 14, v2")
        a("v_lshlrev_b32 v17, 11, v2")
        a("s_lshl_b32 s36, s50, 20")
        a("s_lshl_b32 s37, s50, 17")
        a("s_waitcnt lgkmcnt(0)")
        a("s_cmp_eq_u32 s32, 6")
        a(f"s_cbranch_scc0 {name}_tl7")
        srd(a, 16, 46, 47, 16 << 20)
        a("buffer_load_dword v202, v16, s[16:19], s36 offen")
        srd(a, 16, 58, 59, S * D * 2)
        a("buffer_load_dword v203, v17, s[16:19], s37 offen")
        a(f"s_branch {name}_auxj")
        a.label(f"{name}_tl7")
        for k, (lo, hi) in enumerate(((66, 67), (68, 69), (70, 71))):
            srd(a, 16, lo, hi, D * F * 2)
            a(f"buffer_load_dword v{18 + k}, v17, s[16:19], s37 offen")
        srd(a, 16, 64, 65, D * 2)
        a("buffer_load_dword v205, v17, s[16:19], 0 offen")
    a.label(f"{name}_auxj")
    a("s_cmp_eq_u32 s51, 1")
    a("s_cselect_b32 s40, s42, s40")
    a("s_cselect_b32 s41, s43, s41")
    srd(a, 24, 40, 41, S * S * 2)
    if pf and early:
        a("s_cmp_lt_u32 s32, 6")
        a(f"s_cbranch_scc1 {name}_noearly")
        if pfq < 4:
            a(f"v_cmp_gt_u32 vcc, {4 * pfq}, v4")
            a("s_and_saveexec_b64 s[54:55], vcc")
        a("buffer_load_dword v202, v7, s[24:27], s48 offen")
        a("buffer_load_dword v203, v7, s[24:27], s49 offen")
        if early >= 2:
            a("s_sub_u32 s48, s48, 65536")
            a("s_sub_u32 s49, s49, 65536")
            a("buffer_load_dword v204, v7, s[24:27], s48 offen")
            a("buffer_load_dword v205, v7, s[24:27], s49 offen")
        if pfq < 4:
            a("s_mov_b64 exec, s[54:55]")
        a.label(f"{name}_noearly")
    a("s_barrier")
    stamp(a, 3)
    if fuse2 and SENT == 3:
        a("s_lshr_b32 s57, s2, 3")
        a("s_lshr_b32 s58, s3, 2")
        a("s_lshl_b32 s58, s58, 3")
        a("s_and_b32 s59, s57, 6")
        a("s_add_u32 s58, s58, s59")
        a("s_lshl_b32 s58, s58, 7")
        a("s_lshr_b32 s57, s57, 3")
        a("s_lshl_b32 s57, s57, 6")
        a("s_add_u32 s58, s58, s57")
        a("s_lshl_b32 s59, s32, 3")
        a("s_add_u32 s58, s58, s59")
        a("s_lshl_b32 s58, s58, 10")
        a("s_bfe_u32 s59, s3, 0x10001")
        a("s_lshl_b32 s57, s51, 1")
        a("s_add_u32 s59, s59, s57")
        a("s_lshl_b32 s59, s59, 21")
        a("s_add_u32 s58, s58, s59")
        a(f"s_add_u32 s58, s58, {WS_P}")
        a("s_add_u32 s59, s58, 4096")
        a("v_lshlrev_b32 v26, 4, v2")
        for r in range(4):
            a(f"v_mov_b32 v{28 + r}, -1")
        for rr in range(8):
            a(f"buffer_store_dwordx4 v[28:31], v26, s[20:23], s{58 + (rr >> 2)} offen offset:{(rr & 3) * 1024} sc0 sc1")
    if pf and early:
        a(f"s_cmp_ge_u32 s32, {6 if early == 1 else 4}")
        a(f"s_cbranch_scc1 {name}_pfskip")
    if pf:
        if pfq < 4:
            a(f"v_cmp_gt_u32 vcc, {4 * pfq}, v4")
            a("s_and_saveexec_b64 s[54:55], vcc")
        if pace == 3:
            a("v_lshrrev_b32 v16, 3, v2")
            a("v_lshlrev_b32 v16, 12, v16")
            a("v_and_b32 v17, 7, v2")
            a("v_lshl_add_u32 v16, v17, 7, v16")
            a(f"buffer_load_dword v204, v16, s[24:27], s48 offen{PPOL}")
            a("s_waitcnt vmcnt(0)")
            a(f"buffer_load_dword v205, v16, s[24:27], s48 offen offset:1024{PPOL}")
        else:
            a(f"buffer_load_dword v204, v7, s[24:27], s48 offen{PPOL}")
            if pace == 2:
                a("s_waitcnt vmcnt(0)")
            a(f"buffer_load_dword v205, v7, s[24:27], s49 offen{PPOL}")
        if pfq < 4:
            a("s_mov_b64 exec, s[54:55]")
    a.label(f"{name}_pfskip")
    if wk1:
        a("s_cmp_ge_u32 s32, 6")
        a(f"s_cbranch_scc1 {name}_fina")
        a("s_lshr_b32 s58, s32, 1")
        a("s_lshl_b32 s58, s58, 3")
        a("s_add_u32 s58, s58, 56")
        a("s_load_dwordx2 s[60:61], s[0:1], s58")
        a("s_mul_i32 s62, s56, 14336")
        a("s_and_b32 s63, s32, 1")
        a("s_mul_i32 s63, s63, 7168")
        a("s_add_u32 s62, s62, s63")
        a("s_add_u32 s63, s62, 7168")
        a("s_waitcnt lgkmcnt(0)")
        a("s_mov_b32 s16, s60")
        a("s_and_b32 s17, s61, 0xffff")
        a("s_mov_b32 s18, s63")
        a("s_mov_b32 s19, 0x00020000")
        a("buffer_load_dword v206, v6, s[16:19], s62 offen" + (" nt" if wk1 == 2 else ""))
    a.label(f"{name}_fina")
    if fuse2:
        a("s_xor_b32 s32, s32, 4")
    a.label(f"{name}_fin")
    stamp_flush(a, 1, 6, 46, 47)
    if fuse2:
        fuse2(a, name + "g")
        a.label(f"{name}_done")
        a("s_endpgm")
        return kernel_desc(name, 208, 72, 208)
    a.label(f"{name}_done")
    a("s_endpgm")
    return kernel_desc(name, 208, 72, 208)


def gen_k1g(a, name, wt=1, PRO=3, U1=11, UC=14, wk=1, cpf=1, SPOS=0, NPOS=1):
    NSTG, SLOT, NST = 6, 24576, 8
    kernel_begin(a, name)
    a("s_cmp_ge_u32 s2, 256")
    a(f"s_cbranch_scc1 {name}_done")
    stamp(a, 0)
    a("s_load_dwordx2 s[4:5], s[0:1], 0")
    a("s_load_dwordx4 s[8:11], s[0:1], 24")
    a("s_load_dwordx4 s[44:47], s[0:1], 88")
    a("s_load_dwordx4 s[40:43], s[0:1], 8")
    a("s_load_dwordx4 s[56:59], s[0:1], 56")
    a("s_load_dwordx2 s[60:61], s[0:1], 72")
    a("s_memrealtime s[66:67]")
    a("s_and_b32 s3, s2, 7")
    a("s_lshr_b32 s48, s2, 3")
    a("s_and_b32 s49, s3, 1")
    a("s_bfe_u32 s50, s3, 0x10001")
    a("s_lshr_b32 s51, s3, 2")
    a("s_lshl_b32 s30, s50, 3")
    a("s_lshl_b32 s34, s51, 2")
    a("s_add_u32 s30, s30, s34")
    a("s_and_b32 s34, s48, 3")
    a("s_add_u32 s30, s30, s34")
    a("s_lshr_b32 s31, s48, 2")
    a("v_lshrrev_b32 v1, 6, v0")
    a("v_and_b32 v2, 63, v0")
    a("s_nop 0")
    a("v_readfirstlane_b32 s32, v1")
    a("s_mov_b32 s53, 0xffff0000")
    a("s_mov_b32 s69, 0x40000")
    a("s_xor_b32 s32, s32, 4")
    a("s_cmp_lt_u32 s32, 4")
    a(f"s_cbranch_scc1 {name}_cons")
    a("s_sub_u32 s33, s32, 4")
    a("v_lshrrev_b32 v3, 3, v2")
    a("v_and_b32 v4, 7, v2")
    a("v_bfe_u32 v5, v2, 4, 1")
    a("v_xor_b32 v4, v4, v5")
    a("v_lshlrev_b32 v3, 10, v3")
    for i in range(4):
        g0g1 = (i & 1) ^ (i >> 1)
        a(f"v_xor_b32 v{8 + i}, {(2 * i) ^ g0g1}, v4")
        a(f"v_lshl_add_u32 v{8 + i}, v{8 + i}, 4, v3")
        if i:
            a(f"v_add_u32 v{8 + i}, {i * (8192 - 1024)}, v{8 + i}")
    a("s_bitcmp1_b32 s33, 0")
    a("s_cselect_b32 s34, 5, 0")
    a("s_cselect_b32 s35, 6, 3")
    a("v_xor_b32 v12, s34, v4")
    a("v_lshl_add_u32 v12, v12, 4, v3")
    a("v_xor_b32 v13, s35, v4")
    a("v_lshl_add_u32 v13, v13, 4, v3")
    a(f"v_add_u32 v13, {8192 - 1024}, v13")
    a("s_lshl_b32 s34, s33, 5")
    a("s_lshl_b32 s35, s30, 7")
    a("s_add_u32 s35, s35, s34")
    a("s_lshl_b32 s35, s35, 10")
    a("s_lshl_b32 s36, s31, 6")
    a("s_lshl_b32 s34, s33, 4")
    a("s_add_u32 s36, s36, s34")
    a("s_lshl_b32 s36, s36, 10")
    a("s_lshl_b32 s37, s33, 12")
    a("s_lshl_b32 s38, s33, 11")
    a("s_add_u32 s38, s38, 16384")
    a("v_lshrrev_b32 v14, 4, v2")
    a("v_and_b32 v15, 15, v2")
    a("v_lshlrev_b32 v6, 10, v14")
    a("v_lshl_add_u32 v6, v15, 4, v6")
    a("v_mov_b32 v7, 0")
    a("s_lshl_b32 s52, s2, 3")
    a("s_lshl_b32 s34, s33, 2")
    a("s_add_u32 s52, s52, s34")
    a("s_lshl_b32 s54, s2, 2")
    a("s_waitcnt lgkmcnt(0)")
    stamp(a, 1)
    srd(a, 24, 44, 45, 256)
    srd(a, 20, 46, 47, 14 << 20)
    a("s_or_b32 s62, s2, s33")
    a("s_cmp_lg_u32 s62, 0")
    a(f"s_cbranch_scc1 {name}_nopub")
    a("s_or_b32 s62, s66, 1")
    a("v_mov_b32 v25, s62")
    a("buffer_store_dword v25, v7, s[24:27], 0 offen sc0 sc1")
    a(f"s_mov_b32 s62, {13 << 20}")
    a("buffer_store_dword v25, v7, s[20:23], s62 offen sc0 sc1")
    a.label(f"{name}_nopub")
    srd(a, 12, 4, 5, S * D * 2)
    a("s_cmp_ge_u32 s54, 512")
    a("s_cselect_b32 s62, s10, s8")
    a("s_cselect_b32 s63, s11, s9")
    a("s_and_b32 s55, s54, 511")
    a("s_cmp_lt_u32 s33, 2")
    a("s_cselect_b32 s62, s4, s62")
    a("s_cselect_b32 s63, s5, s63")
    a("s_cselect_b32 s55, s52, s55")
    a(f"s_mov_b32 s65, {D * D * 2}")
    a(f"s_cselect_b32 s64, {S * D * 2}, s65")
    a("s_cmp_eq_u32 s33, 3")
    a("s_cselect_b32 s64, 0, s64")
    a("s_lshl_b32 s55, s55, 10")
    a("s_mov_b32 s16, s62")
    a("s_and_b32 s17, s63, 0xffff")
    a("s_mov_b32 s18, s64")
    a("s_mov_b32 s19, 0x00020000")
    for jj in range(4):
        a(f"buffer_load_dwordx4 v[{16 + 4 * jj}:{19 + 4 * jj}], v6, s[16:19], s55 offen offset:{256 * jj}")
    a("s_cmp_eq_u32 s49, 1")
    a("s_cselect_b32 s8, s10, s8")
    a("s_cselect_b32 s9, s11, s9")
    srd(a, 16, 8, 9, D * D * 2)

    def load_stage(kk):
        slot = (kk % NSTG) * SLOT
        a(f"s_add_u32 m0, s37, {slot}")
        a(f"s_add_u32 s39, s35, {kk * 128}")
        for i in range(4):
            a(f"buffer_load_dwordx4 v{8 + i}, s[12:15], s39 offen offset:{i * 1024} lds")
        a(f"s_add_u32 m0, s38, {slot}")
        a(f"s_add_u32 s39, s36, {kk * 128}")
        for i in range(2):
            a(f"buffer_load_dwordx4 v{12 + i}, s[16:19], s39 offen offset:{i * 1024} lds")

    def red16(v):
        for pat in ("quad_perm:[1,0,3,2]", "quad_perm:[2,3,0,1]", "row_half_mirror", "row_mirror"):
            a("s_nop 1")
            a(f"v_add_f32_dpp v{v}, v{v}, v{v} {pat} {DPP}")

    def stats_block():
        X = 64
        for r in range(16):
            a(f"v_lshlrev_b32 v{X + 2 * r}, 16, v{16 + r}")
            a(f"v_and_b32 v{X + 2 * r + 1}, s53, v{16 + r}")
        a(f"v_add_f32 v34, v{X}, v{X + 1}")
        a(f"v_add_f32 v35, v{X + 2}, v{X + 3}")
        for r in range(4, 32, 2):
            a(f"v_add_f32 v34, v34, v{X + r}")
            a(f"v_add_f32 v35, v35, v{X + r + 1}")
        a("v_add_f32 v34, v34, v35")
        red16(34)
        a("v_mul_f32 v36, 0x3b000000, v34")
        a("v_mov_b32 v37, 0")
        a("v_mov_b32 v38, 0")
        for r in range(0, 32, 2):
            a(f"v_sub_f32 v{X + r}, v{X + r}, v36")
            a(f"v_sub_f32 v{X + r + 1}, v{X + r + 1}, v36")
            a(f"v_fmac_f32 v37, v{X + r}, v{X + r}")
            a(f"v_fmac_f32 v38, v{X + r + 1}, v{X + r + 1}")
        a("v_add_f32 v37, v37, v38")
        red16(37)
        a("v_mul_f32 v37, 0x3b000000, v37")
        a("v_cvt_pk_bf16_f32 v40, v36, v36")
        a("v_lshlrev_b32 v40, 16, v40")
        a("v_cvt_pk_bf16_f32 v37, v37, v37")
        a("v_lshlrev_b32 v37, 16, v37")
        a("v_add_f32 v37, 0x3727c5ac, v37")
        a("v_cvt_pk_bf16_f32 v37, v37, v37")
        a("v_lshlrev_b32 v37, 16, v37")
        a("v_sqrt_f32 v37, v37")
        a("s_nop 0")
        a("v_cvt_pk_bf16_f32 v37, v37, v37")
        a("v_and_b32 v37, 0xffff, v37")
        a("v_or_b32 v40, v40, v37")
        a("s_cmp_eq_u32 s33, 2")
        a("s_cselect_b64 s[62:63], -1, 0")
        a("v_cndmask_b32 v40, v40, v34, s[62:63]")
        a("s_lshl_b32 s64, s52, 3")
        a(f"s_add_u32 s64, s64, {WS_STATS}")
        a("s_lshl_b32 s65, s54, 3")
        a(f"s_add_u32 s65, s65, {WS_CS}")
        a("s_cmp_eq_u32 s33, 2")
        a("s_cselect_b32 s64, s65, s64")
        a("s_add_u32 s65, s65, 8192")
        a("s_cmp_eq_u32 s33, 3")
        a("s_cselect_b32 s64, s65, s64")
        a("v_lshlrev_b32 v42, 3, v14")

    vq = ["s"] * 4
    for kk in range(PRO):
        load_stage(kk)
        vq += [kk] * 6
        if kk == NPOS:
            a("buffer_load_dword v33, v7, s[24:27], 0 offen sc1")
            vq.append("n")
    stamp(a, 2)
    issued = PRO

    def wait_tag(tag):
        nonlocal vq
        if tag in vq:
            idx = max(k for k, t in enumerate(vq) if t == tag)
            a(f"s_waitcnt vmcnt({len(vq) - 1 - idx})")
            vq = vq[idx + 1:]

    for kk in range(NST):
        wait_tag(kk)
        a("s_barrier")
        n_new = 0
        while issued < NST and issued - NSTG < kk and n_new < 2:
            load_stage(issued)
            vq += [issued] * 6
            issued += 1
            n_new += 1
        if kk == SPOS:
            stats_block()
        if kk == SPOS:
            wait_tag("n")
            a("v_readfirstlane_b32 s65, v33")
            a("s_cmp_lg_u32 s65, 0")
            a(f"s_cbranch_scc1 {name}_nok")
            a.label(f"{name}_nl")
            a("buffer_load_dword v33, v7, s[24:27], 0 offen sc1")
            a("s_waitcnt vmcnt(0)")
            a("v_readfirstlane_b32 s65, v33")
            a("s_cmp_lg_u32 s65, 0")
            a(f"s_cbranch_scc1 {name}_nok")
            a("s_sub_u32 s69, s69, 1")
            a(f"s_cbranch_scc0 {name}_nl")
            a("s_mov_b32 s69, 0")
            a.label(f"{name}_nok")
            a("v_mov_b32 v41, v33")
            a("v_cmp_eq_u32 vcc, 0, v15")
            a("s_and_saveexec_b64 s[62:63], vcc")
            a("buffer_store_dwordx2 v[40:41], v42, s[20:23], s64 offen sc0 sc1")
            a("s_mov_b64 exec, s[62:63]")
            vq.append("st")
        if issued == NST and kk == 2:
            if wk:
                emit_wtouch(a, "s33", 44, 45)
            if cpf:
                a("s_cmp_eq_u32 s49, 1")
                a("s_cselect_b32 s40, s42, s40")
                a("s_cselect_b32 s41, s43, s41")
                srd(a, 24, 40, 41, S * S * 2)
                a("s_lshl_b32 s62, s51, 10")
                a("s_lshl_b32 s63, s48, 5")
                a("s_add_u32 s62, s62, s63")
                a("s_lshl_b32 s63, s33, 3")
                a("s_add_u32 s62, s62, s63")
                a("s_lshl_b32 s62, s62, 12")
                a("s_lshl_b32 s63, s50, 11")
                a("s_add_u32 s62, s62, s63")
                a("v_lshrrev_b32 v46, 3, v2")
                a("v_lshlrev_b32 v46, 12, v46")
                a("v_and_b32 v47, 7, v2")
                a("v_lshl_add_u32 v46, v47, 7, v46")
                a("buffer_load_dword v48, v46, s[24:27], s62 offen")
                if cpf >= 2:
                    a("buffer_load_dword v49, v46, s[24:27], s62 offen offset:1024")
            vq += ["t"] * ((1 if wk else 0) + (0 if not cpf else (1 if cpf == 1 else 2)))
    stamp(a, 3)
    a(f"s_branch {name}_fin")
    a.label(f"{name}_cons")
    a("s_and_b32 s33, s32, 1")
    a("s_lshr_b32 s34, s32, 1")
    a("v_and_b32 v4, 15, v2")
    a("v_lshrrev_b32 v6, 4, v2")
    a("v_lshrrev_b32 v5, 2, v4")
    a("v_and_b32 v7, 3, v4")
    a("v_lshl_add_u32 v7, v5, 3, v7")
    a("v_lshrrev_b32 v20, 1, v4")
    a("v_lshrrev_b32 v21, 2, v4")
    a("v_lshrrev_b32 v22, 3, v4")
    a("v_xor_b32 v21, v21, v22")
    a("v_and_b32 v21, 1, v21")
    a("v_xor_b32 v20, v20, v21")
    a("v_xor_b32 v20, v20, v6")
    a("v_lshlrev_b32 v20, 4, v20")
    a("v_lshl_add_u32 v20, v7, 7, v20")
    a("s_lshl_b32 s35, s33, 13")
    a("s_lshl_b32 s36, s34, 12")
    a("s_add_u32 s36, s36, 16384")
    for g2 in range(3):
        a(f"v_add_u32 v{8 + 4 * g2}, s35, v20")
        a(f"v_xor_b32 v{9 + 4 * g2}, 64, v{8 + 4 * g2}")
        a(f"v_add_u32 v{10 + 4 * g2}, s36, v20")
        a(f"v_xor_b32 v{11 + 4 * g2}, 64, v{10 + 4 * g2}")
        if g2:
            for r in range(4):
                a(f"v_add_u32 v{8 + 4 * g2 + r}, {2 * SLOT * g2}, v{8 + 4 * g2 + r}")
    ACC = 32
    FB = 64
    ST = 112
    CSR = 144
    for i in range(32):
        a(f"v_mov_b32 v{ACC + i}, 0")
    a("s_lshl_b32 s38, s30, 7")
    a("s_lshl_b32 s39, s33, 6")
    a("s_add_u32 s38, s38, s39")
    a("s_lshl_b32 s38, s38, 3")
    a(f"s_add_u32 s38, s38, {WS_STATS}")
    a("v_lshlrev_b32 v23, 6, v6")
    a("v_mov_b32 v24, 0")
    a("s_lshl_b32 s39, s49, 9")
    a("s_lshl_b32 s65, s31, 6")
    a("s_add_u32 s39, s39, s65")
    a("s_lshl_b32 s65, s34, 5")
    a("s_add_u32 s39, s39, s65")
    a("s_lshl_b32 s39, s39, 3")
    a(f"s_add_u32 s52, s39, {WS_CS}")
    a("v_lshlrev_b32 v21, 3, v7")
    a("s_lshl_b32 s35, s49, 5")
    a("s_lshl_b32 s36, s31, 2")
    a("s_add_u32 s35, s35, s36")
    a("s_lshl_b32 s36, s34, 1")
    a("s_add_u32 s35, s35, s36")
    a("s_lshl_b32 s35, s35, 6")
    a("s_lshl_b32 s36, s30, 2")
    a("s_add_u32 s35, s35, s36")
    a("s_lshl_b32 s36, s33, 1")
    a("s_add_u32 s35, s35, s36")
    a("s_lshl_b32 s54, s35, 10")
    a("s_add_u32 s55, s54, 65536")
    a("v_lshlrev_b32 v22, 4, v2")
    a("s_waitcnt lgkmcnt(0)")
    stamp(a, 1)
    srd(a, 20, 46, 47, 14 << 20)
    srd(a, 24, 44, 45, 256)
    NU = NST * 2

    def read_list(u):
        s, ks = u // 2, u % 2
        slot = s % NSTG
        g2, so = slot // 2, (slot % 2) * SLOT
        f = FB + 24 * (u % 2)
        L = []
        for i in range(2):
            L.append(f"ds_read_b128 v[{f + 16 + 4 * i}:{f + 19 + 4 * i}], v{10 + 4 * g2 + ks} offset:{so + i * 512}")
        for i in range(4):
            off = so + (i >> 1) * 4096 + (i & 1) * 512
            L.append(f"ds_read_b128 v[{f + 4 * i}:{f + 3 + 4 * i}], v{8 + 4 * g2 + ks} offset:{off}")
        return L

    def stats_loads():
        for blk in range(2):
            for q4 in range(4):
                r = ST + 16 * blk + 4 * q4
                a(f"buffer_load_dwordx4 v[{r}:{r + 3}], v23, s[20:23], s38 offen offset:{256 * blk + 16 * q4} sc1")
        for T in range(2):
            a(f"buffer_load_dwordx2 v[{CSR + 2 * T}:{CSR + 1 + 2 * T}], v21, s[20:23], s52 offen offset:{T * 32} sc1")
        a("buffer_load_dword v25, v24, s[24:27], 0 offen sc1")

    def check_ops():
        L = [f"v_xor_b32 v26, v25, v{ST + 1}"]
        for r in range(1, 16):
            L.append(f"v_xor_b32 v27, v25, v{ST + 2 * r + 1}")
            L.append("v_or_b32 v26, v26, v27")
        for T in range(2):
            L.append(f"v_xor_b32 v27, v25, v{CSR + 1 + 2 * T}")
            L.append("v_or_b32 v26, v26, v27")
        for r in range(16):
            L.append(f"v_lshlrev_b32 v{ST + 2 * r + 1}, 16, v{ST + 2 * r}")
            L.append(f"v_rcp_f32 v{ST + 2 * r + 1}, v{ST + 2 * r + 1}")
            L.append(f"v_and_b32 v{ST + 2 * r}, s53, v{ST + 2 * r}")
        return L

    a("s_barrier")
    stamp(a, 2)
    for r in read_list(0):
        a(r)
    for u in range(NU):
        a("s_waitcnt lgkmcnt(0)")
        f = FB + 24 * (u % 2)
        nxt = read_list(u + 1) if u + 1 < NU else []
        n = 0
        for xi in range(4):
            for T in range(2):
                acc = ACC + (xi * 2 + T) * 4
                a(f"v_mfma_f32_16x16x32_bf16 v[{acc}:{acc + 3}], v[{f + 4 * xi}:{f + 3 + 4 * xi}], v[{f + 16 + 4 * T}:{f + 19 + 4 * T}], v[{acc}:{acc + 3}]")
                n += 1
                if n == 1 and nxt and (u + 1) % 2 == 0:
                    a("s_barrier")
                if nxt:
                    a(nxt.pop(0))
                if u == U1 and n == 7:
                    stats_loads()
    stamp(a, 3)
    a.label(f"{name}_chk")
    a("s_waitcnt vmcnt(0)")
    for op in check_ops():
        a(op)
    a("v_cmp_eq_u32 vcc, 0, v25")
    a("v_cmp_ne_u32 s[62:63], 0, v26")
    a("s_or_b64 s[62:63], s[62:63], vcc")
    a(f"s_cbranch_scc0 {name}_have")
    a("s_sleep 2")
    stats_loads()
    a("s_sub_u32 s69, s69, 1")
    a(f"s_cbranch_scc0 {name}_chk")
    a("s_mov_b32 s69, 0")
    a.label(f"{name}_have")
    stamp(a, 4)
    for blk in range(2):
        for T in range(2):
            o = 64 + 4 * (blk * 2 + T)
            for hb in range(2):
                acc = ACC + ((blk * 2 + hb) * 2 + T) * 4
                for j in range(4):
                    sr = ST + 16 * blk + 2 * (4 * hb + j)
                    a(f"v_fma_f32 v{acc + j}, -v{sr}, v{CSR + 2 * T}, v{acc + j}")
                    a(f"v_mul_f32 v{acc + j}, v{acc + j}, v{sr + 1}")
                a(f"v_cvt_pk_bf16_f32 v{o + 2 * hb}, v{acc}, v{acc + 1}")
                a(f"v_cvt_pk_bf16_f32 v{o + 2 * hb + 1}, v{acc + 2}, v{acc + 3}")
            a(f"buffer_store_dwordx4 v[{o}:{o + 3}], v22, s[20:23], s{54 + T} offen offset:{blk * 1024}" + (" sc0 sc1" if wt else ""))
    stamp(a, 5)
    a.label(f"{name}_fin")
    stamp_flush(a, 1, 6, 46, 47)
    a.label(f"{name}_done")
    a("s_endpgm")
    return kernel_desc(name, 152, 72, 152)


def gen_k3(a, name):
    kernel_begin(a, name)
    a("s_cmp_ge_u32 s2, 256")
    a(f"s_cbranch_scc1 {name}_done")
    stamp(a, 0)
    a("s_load_dwordx2 s[4:5], s[0:1], 0")
    a("s_load_dwordx2 s[6:7], s[0:1], 48")
    a("s_load_dwordx2 s[8:9], s[0:1], 80")
    a("s_load_dwordx2 s[10:11], s[0:1], 96")
    a("v_lshrrev_b32 v1, 6, v0")
    a("v_and_b32 v2, 63, v0")
    a("s_nop 0")
    a("v_readfirstlane_b32 s32, v1")
    a("v_lshlrev_b32 v3, 4, v2")
    a("s_waitcnt lgkmcnt(0)")
    stamp(a, 1)
    srd(a, 12, 4, 5, S * D * 2)
    srd(a, 16, 6, 7, D * 2)
    srd(a, 20, 8, 9, S * D * 2)
    srd(a, 24, 10, 11, 14 << 20)
    a("s_lshl_b32 s33, s2, 3")
    a("s_lshl_b32 s34, s32, 1")
    a("s_add_u32 s33, s33, s34")
    a("s_lshl_b32 s34, s33, 10")
    a(f"s_add_u32 s35, s34, {WS_P}")
    a(f"s_add_u32 s36, s34, {WS_P + (4 << 20)}")
    a(f"s_add_u32 s43, s34, {WS_P + (2 << 20)}")
    a(f"s_add_u32 s44, s34, {WS_P + (6 << 20)}")
    for R in range(2):
        B = 16 + 64 * R
        a(f"buffer_load_dwordx4 v[{B}:{B + 3}], v3, s[24:27], s35 offen offset:{1024 * R}")
        a(f"buffer_load_dwordx4 v[{B + 12}:{B + 15}], v3, s[24:27], s43 offen offset:{1024 * R}")
        a(f"buffer_load_dwordx4 v[{B + 4}:{B + 7}], v3, s[24:27], s36 offen offset:{1024 * R}")
        a(f"buffer_load_dwordx4 v[{B + 56}:{B + 59}], v3, s[24:27], s44 offen offset:{1024 * R}")
        a(f"buffer_load_dwordx4 v[{B + 8}:{B + 11}], v3, s[12:15], s34 offen offset:{1024 * R}")
    a("buffer_load_dwordx4 v[8:11], v3, s[16:19], 0 offen")
    a("s_mov_b32 s53, 0xffff0000")
    a("s_waitcnt vmcnt(1)")
    stamp(a, 2)

    def unpack(dst, src):
        a(f"v_lshlrev_b32 v{dst}, 16, v{src}")
        a(f"v_and_b32 v{dst + 1}, s53, v{src}")

    for R in range(2):
        B = 16 + 64 * R
        H, T = B + 16, B + 24
        for i in range(4):
            unpack(T, B + i)
            unpack(T + 2, B + 12 + i)
            unpack(T + 4, B + 4 + i)
            unpack(T + 6, B + 56 + i)
            a(f"v_add_f32 v{T}, v{T}, v{T + 2}")
            a(f"v_add_f32 v{T + 1}, v{T + 1}, v{T + 3}")
            a(f"v_add_f32 v{T + 4}, v{T + 4}, v{T + 6}")
            a(f"v_add_f32 v{T + 5}, v{T + 5}, v{T + 7}")
            a(f"v_cvt_pk_bf16_f32 v{T + 8}, v{T}, v{T + 1}")
            a(f"v_cvt_pk_bf16_f32 v{T + 9}, v{T + 4}, v{T + 5}")
            unpack(T, T + 8)
            unpack(T + 2, T + 9)
            a(f"v_sub_f32 v{T}, v{T}, v{T + 2}")
            a(f"v_sub_f32 v{T + 1}, v{T + 1}, v{T + 3}")
            a(f"v_cvt_pk_bf16_f32 v{T + 4}, v{T}, v{T + 1}")
            unpack(T, T + 4)
            unpack(T + 2, B + 8 + i)
            a(f"v_add_f32 v{T}, v{T + 2}, v{T}")
            a(f"v_add_f32 v{T + 1}, v{T + 3}, v{T + 1}")
            a(f"v_cvt_pk_bf16_f32 v{B + 40 + i}, v{T}, v{T + 1}")
            unpack(H + 2 * i, B + 40 + i)
        St = B + 48
        a(f"v_add_f32 v{St}, v{H}, v{H + 1}")
        for i in range(2, 8):
            a(f"v_add_f32 v{St}, v{St}, v{H + i}")
    for R in range(2):
        B = 16 + 64 * R
        wave_allreduce(a, "v_add_f32", B + 48, B + 49)
    for R in range(2):
        B = 16 + 64 * R
        H, T, St = B + 16, B + 24, B + 48
        a(f"v_mul_f32 v{St}, 0x3b000000, v{St}")
        a(f"v_cvt_pk_bf16_f32 v{St + 1}, v{St}, v{St}")
        a(f"v_lshlrev_b32 v{St + 1}, 16, v{St + 1}")
        for i in range(8):
            a(f"v_sub_f32 v{T + i}, v{H + i}, v{St}")
        a(f"v_mul_f32 v{St + 2}, v{T}, v{T}")
        for i in range(1, 8):
            a(f"v_fmac_f32 v{St + 2}, v{T + i}, v{T + i}")
    for R in range(2):
        B = 16 + 64 * R
        wave_allreduce(a, "v_add_f32", B + 50, B + 51)
    a("s_waitcnt vmcnt(0)")
    for R in range(2):
        B = 16 + 64 * R
        H, T, St = B + 16, B + 24, B + 48
        v = St + 2
        a(f"v_mul_f32 v{v}, 0x3b000000, v{v}")
        a(f"v_cvt_pk_bf16_f32 v{v}, v{v}, v{v}")
        a(f"v_lshlrev_b32 v{v}, 16, v{v}")
        a(f"v_add_f32 v{v}, 0x3727c5ac, v{v}")
        a(f"v_cvt_pk_bf16_f32 v{v}, v{v}, v{v}")
        a(f"v_lshlrev_b32 v{v}, 16, v{v}")
        a(f"v_sqrt_f32 v{v}, v{v}")
        a("s_nop 0")
        a(f"v_cvt_pk_bf16_f32 v{v}, v{v}, v{v}")
        a(f"v_lshlrev_b32 v{v}, 16, v{v}")
        a(f"v_rcp_f32 v{v}, v{v}")
        a("s_nop 0")
        a(f"v_mov_b32 v{St + 4}, 0")
        for i in range(4):
            a(f"v_sub_f32 v{T}, v{H + 2 * i}, v{St + 1}")
            a(f"v_sub_f32 v{T + 1}, v{H + 2 * i + 1}, v{St + 1}")
            a(f"v_cvt_pk_bf16_f32 v{T + 2}, v{T}, v{T + 1}")
            unpack(T, T + 2)
            a(f"v_mul_f32 v{T}, v{T}, v{v}")
            a(f"v_mul_f32 v{T + 1}, v{T + 1}, v{v}")
            a(f"v_cvt_pk_bf16_f32 v{B + 44 + i}, v{T}, v{T + 1}")
            unpack(T, B + 44 + i)
            a(f"v_add_f32 v{T}, v{H + 2 * i}, v{T}")
            a(f"v_add_f32 v{T + 1}, v{H + 2 * i + 1}, v{T + 1}")
            a(f"v_cvt_pk_bf16_f32 v{B + 4 + i}, v{T}, v{T + 1}")
            a(f"v_dot2_f32_bf16 v{St + 4}, v{B + 44 + i}, v{8 + i}, v{St + 4}")
        a(f"buffer_store_dwordx4 v[{B + 4}:{B + 7}], v3, s[20:23], s34 offen offset:{1024 * R}")
    a("s_nop 2")
    for R in range(2):
        B = 16 + 64 * R
        wave_allreduce(a, "v_add_f32", B + 52, B + 53)
    for R in range(2):
        B = 16 + 64 * R
        v = B + 52
        a(f"v_cvt_pk_bf16_f32 v{v}, v{v}, v{v}")
        a(f"v_lshlrev_b32 v{v}, 16, v{v}")
        a(f"v_ashrrev_i32 v{v + 1}, 31, v{v}")
        a(f"v_or_b32 v{v + 1}, 0x80000000, v{v + 1}")
        a(f"v_xor_b32 v{v}, v{v}, v{v + 1}")
        a(f"v_and_b32 v{v}, s53, v{v}")
        a(f"s_sub_u32 s37, {2047 - R}, s33")
        a(f"v_or_b32 v{v}, s37, v{v}")
    a("v_max_u32 v4, v68, v132")
    a("s_lshl_b32 s37, s32, 2")
    a("v_mov_b32 v5, s37")
    a("ds_write_b32 v5, v4")
    stamp(a, 3)
    a("s_waitcnt lgkmcnt(0)")
    a("s_barrier")
    a("v_mov_b32 v5, 0")
    a("ds_read_b128 v[12:15], v5")
    a("s_waitcnt lgkmcnt(0)")
    a("v_max_u32 v12, v12, v13")
    a("v_max_u32 v14, v14, v15")
    a("v_max_u32 v12, v12, v14")
    a("s_nop 0")
    a("v_readfirstlane_b32 s38, v12")
    a("v_readfirstlane_b32 s39, v68")
    a("v_readfirstlane_b32 s40, v132")
    a(f"s_lshl_b32 s41, s2, 11")
    a(f"s_add_u32 s41, s41, {WS_CROW}")
    a(f"s_lshl_b32 s42, s2, 2")
    a(f"s_add_u32 s42, s42, {WS_CAND}")
    a("v_mov_b32 v5, 0")
    for R in range(2):
        B = 16 + 64 * R
        a(f"s_cmp_lg_u32 s38, s{39 + R}")
        a(f"s_cbranch_scc1 {name}_nw{R}")
        a(f"buffer_store_dwordx4 v[{B + 40}:{B + 43}], v3, s[24:27], s41 offen")
        a(f"buffer_store_dwordx4 v[{B + 44}:{B + 47}], v3, s[24:27], s41 offen offset:1024")
        a(f"buffer_store_dword v12, v5, s[24:27], s42 offen")
        a.label(f"{name}_nw{R}")
    stamp_flush(a, 3, 4, 10, 11)
    a.label(f"{name}_done")
    a("s_endpgm")
    return kernel_desc(name, 144, 64, 144)


NSL = 56


def emit_winner(a, vkey, t, ldsaddr_tmp, s_out):
    wave_allreduce(a, "v_max_u32", vkey, t)
    a("s_lshl_b32 s37, s32, 2")
    a(f"v_mov_b32 v{ldsaddr_tmp}, s37")
    a(f"ds_write_b32 v{ldsaddr_tmp}, v{vkey}")
    a("s_waitcnt lgkmcnt(0)")
    a("s_barrier")
    a(f"v_mov_b32 v{ldsaddr_tmp}, 0")
    a(f"ds_read_b64 v[{t}:{t + 1}], v{ldsaddr_tmp}")
    a(f"ds_read_b64 v[{t + 2}:{t + 3}], v{ldsaddr_tmp} offset:8")
    a("s_waitcnt lgkmcnt(0)")
    a(f"v_max_u32 v{t}, v{t}, v{t + 1}")
    a(f"v_max_u32 v{t + 2}, v{t + 2}, v{t + 3}")
    a(f"v_max_u32 v{t}, v{t}, v{t + 2}")
    a("s_nop 0")
    a(f"v_readfirstlane_b32 s{s_out}, v{t}")


def gen_k4(a, name):
    kernel_begin(a, name)
    a(f"s_cmp_ge_u32 s2, {NSL}")
    a(f"s_cbranch_scc1 {name}_done")
    stamp(a, 0)
    a("s_load_dwordx4 s[4:7], s[0:1], 56")
    a("s_load_dwordx2 s[8:9], s[0:1], 72")
    a("s_load_dwordx2 s[10:11], s[0:1], 96")
    a("v_lshrrev_b32 v1, 6, v0")
    a("v_and_b32 v2, 63, v0")
    a("s_nop 0")
    a("v_readfirstlane_b32 s32, v1")
    a("v_lshrrev_b32 v3, 2, v0")
    a("v_and_b32 v4, 3, v0")
    a("v_lshlrev_b32 v5, 2, v0")
    a("s_mov_b32 s33, 28672")
    a("v_mul_lo_u32 v6, v3, s33")
    a("v_lshl_add_u32 v6, v4, 4, v6")
    a("v_lshlrev_b32 v7, 4, v2")
    a("s_waitcnt lgkmcnt(0)")
    stamp(a, 1)
    srd(a, 12, 4, 5, D * F * 2)
    srd(a, 16, 6, 7, D * F * 2)
    srd(a, 20, 8, 9, D * F * 2)
    srd(a, 24, 10, 11, 14 << 20)
    a(f"s_mov_b32 s34, {WS_CAND}")
    a("buffer_load_dword v8, v5, s[24:27], s34 offen")
    a("s_lshl_b32 s34, s2, 6")
    G, U, W = 32, 64, 96
    for j in range(8):
        a(f"s_add_u32 s35, s34, {3584 * j}")
        a(f"buffer_load_dwordx4 v[{G + 4 * j}:{G + 4 * j + 3}], v6, s[12:15], s35 offen")
        a(f"buffer_load_dwordx4 v[{U + 4 * j}:{U + 4 * j + 3}], v6, s[16:19], s35 offen")
    a("s_lshl_b32 s35, s2, 5")
    a("s_lshl_b32 s36, s32, 3")
    a("s_add_u32 s35, s35, s36")
    a("s_lshl_b32 s35, s35, 10")
    for j in range(8):
        a(f"s_add_u32 s36, s35, {1024 * j}")
        a(f"buffer_load_dwordx4 v[{W + 4 * j}:{W + 4 * j + 3}], v7, s[20:23], s36 offen")
    a("s_waitcnt vmcnt(24)")
    stamp(a, 2)
    emit_winner(a, 8, 12, 9, 38)
    stamp(a, 3)
    a("s_and_b32 s39, s38, 0xffff")
    a("s_sub_u32 s39, 2047, s39")
    a("s_lshr_b32 s39, s39, 3")
    a("s_lshl_b32 s39, s39, 11")
    a(f"s_add_u32 s39, s39, {WS_CROW + 1024}")
    a("v_lshlrev_b32 v9, 4, v3")
    a("v_add_u32 v9, s39, v9")
    a("buffer_load_dwordx4 v[12:15], v9, s[24:27], 0 offen")
    a("s_mov_b32 s53, 0xffff0000")
    A = 128
    for i in range(16):
        a(f"v_mov_b32 v{A + i}, 0")
    a("s_waitcnt vmcnt(0)")
    stamp(a, 4)
    X = 16
    for i in range(4):
        a(f"v_lshlrev_b32 v{X + 2 * i}, 16, v{12 + i}")
        a(f"v_and_b32 v{X + 2 * i + 1}, s53, v{12 + i}")
    for j in range(8):
        for (M, ao) in ((G, 0), (U, 8)):
            for i in range(4):
                t = 24 + 2 * (i & 1)
                a(f"v_lshlrev_b32 v{t}, 16, v{M + 4 * j + i}")
                a(f"v_and_b32 v{t + 1}, s53, v{M + 4 * j + i}")
                a(f"v_fmac_f32 v{A + ao + 2 * i}, v{X + j}, v{t}")
                a(f"v_fmac_f32 v{A + ao + 2 * i + 1}, v{X + j}, v{t + 1}")
    a("s_nop 1")
    for i in range(8):
        a(f"v_permlane32_swap_b32 v{A + i}, v{A + i + 8}")
    a("s_nop 1")
    for i in range(8):
        a(f"v_add_f32 v{A + i}, v{A + i}, v{A + i + 8}")
    a("s_nop 1")
    for i in range(4):
        a(f"v_permlane16_swap_b32 v{A + i}, v{A + i + 4}")
    a("s_nop 1")
    for i in range(4):
        a(f"v_add_f32 v{A + i}, v{A + i}, v{A + i + 4}")
    a("s_nop 1")
    for i in range(4):
        a(f"v_add_f32_dpp v{A + i}, v{A + i}, v{A + i} row_ror:4 {DPP}")
    a("s_nop 1")
    for i in range(4):
        a(f"v_add_f32_dpp v{A + i}, v{A + i}, v{A + i} row_ror:8 {DPP}")
    a("v_and_b32 v9, 3, v2")
    a("v_lshlrev_b32 v9, 5, v9")
    a("v_bfe_u32 v10, v2, 4, 1")
    a("v_lshl_add_u32 v9, v10, 4, v9")
    a("v_bfe_u32 v10, v2, 5, 1")
    a("v_lshl_add_u32 v9, v10, 7, v9")
    a("s_lshl_b32 s37, s32, 8")
    a("v_add_u32 v9, s37, v9")
    a(f"ds_write_b128 v9, v[{A}:{A + 3}] offset:64")
    a("s_waitcnt lgkmcnt(0)")
    a("s_barrier")
    stamp(a, 5)
    a("v_and_b32 v9, 31, v2")
    a("v_lshlrev_b32 v9, 2, v9")
    for w in range(4):
        a(f"ds_read_b32 v{16 + w}, v9 offset:{64 + 256 * w}")
        a(f"ds_read_b32 v{20 + w}, v9 offset:{64 + 256 * w + 128}")
    a("s_waitcnt lgkmcnt(0)")
    a("v_add_f32 v16, v16, v17")
    a("v_add_f32 v18, v18, v19")
    a("v_add_f32 v20, v20, v21")
    a("v_add_f32 v22, v22, v23")
    a("v_add_f32 v16, v16, v18")
    a("v_add_f32 v20, v20, v22")
    a("v_cvt_pk_bf16_f32 v16, v16, v20")
    a("v_and_b32 v20, s53, v16")
    a("v_lshlrev_b32 v16, 16, v16")
    a("v_mul_f32 v17, 0xbfb8aa3b, v16")
    a("v_exp_f32 v17, v17")
    a("s_nop 0")
    a("v_add_f32 v17, 1.0, v17")
    a("v_rcp_f32 v17, v17")
    a("s_nop 0")
    a("v_mul_f32 v16, v16, v17")
    a("v_cvt_pk_bf16_f32 v16, v16, v16")
    a("v_lshlrev_b32 v16, 16, v16")
    a("v_mul_f32 v16, v16, v20")
    a("v_cvt_pk_bf16_f32 v16, v16, v16")
    a("v_lshlrev_b32 v16, 16, v16")
    a("s_lshl_b32 s37, s32, 3")
    for j in range(8):
        a(f"s_add_u32 s36, s37, {j}")
        a("s_nop 0")
        a(f"v_readlane_b32 s{40 + j}, v16, s36")
    for i in range(8):
        a(f"v_mov_b32 v{A + i}, 0")
    a("s_nop 1")
    for j in range(8):
        for i in range(4):
            t = 24 + 2 * (i & 1)
            a(f"v_lshlrev_b32 v{t}, 16, v{W + 4 * j + i}")
            a(f"v_and_b32 v{t + 1}, s53, v{W + 4 * j + i}")
            a(f"v_fmac_f32 v{A + 2 * i}, s{40 + j}, v{t}")
            a(f"v_fmac_f32 v{A + 2 * i + 1}, s{40 + j}, v{t + 1}")
    a("v_lshlrev_b32 v9, 5, v2")
    a("s_lshl_b32 s37, s32, 11")
    a("v_add_u32 v9, s37, v9")
    a(f"ds_write_b128 v9, v[{A}:{A + 3}] offset:2048")
    a(f"ds_write_b128 v9, v[{A + 4}:{A + 7}] offset:2064")
    a("s_waitcnt lgkmcnt(0)")
    a("s_barrier")
    a("v_lshlrev_b32 v9, 3, v0")
    for w in range(4):
        a(f"ds_read_b64 v[{16 + 2 * w}:{17 + 2 * w}], v9 offset:{2048 + 2048 * w}")
    a("s_waitcnt lgkmcnt(0)")
    a("v_add_f32 v16, v16, v18")
    a("v_add_f32 v17, v17, v19")
    a("v_add_f32 v20, v20, v22")
    a("v_add_f32 v21, v21, v23")
    a("v_add_f32 v16, v16, v20")
    a("v_add_f32 v17, v17, v21")
    a("s_lshl_b32 s37, s2, 11")
    a(f"s_add_u32 s37, s37, {WS_SLAB}")
    a("buffer_store_dwordx2 v[16:17], v9, s[24:27], s37 offen")
    stamp_flush(a, 4, 6, 10, 11)
    a.label(f"{name}_done")
    a("s_endpgm")
    return kernel_desc(name, 144, 64, 144)


def gen_k3b(a, name, wpf=0):
    kernel_begin(a, name)
    a("s_cmp_ge_u32 s2, 256")
    a(f"s_cbranch_scc1 {name}_done")
    stamp(a, 0)
    a("s_load_dwordx2 s[4:5], s[0:1], 0")
    a("s_load_dwordx2 s[6:7], s[0:1], 48")
    a("s_load_dwordx2 s[8:9], s[0:1], 80")
    a("s_load_dwordx2 s[10:11], s[0:1], 96")
    if wpf:
        a("s_load_dwordx4 s[56:59], s[0:1], 56")
        a("s_load_dwordx2 s[60:61], s[0:1], 72")
    a("v_lshrrev_b32 v1, 6, v0")
    a("v_and_b32 v2, 63, v0")
    a("s_nop 0")
    a("v_readfirstlane_b32 s32, v1")
    a("v_lshlrev_b32 v3, 4, v2")
    a("s_lshl_b32 s33, s2, 3")
    a("s_add_u32 s33, s33, s32")
    a("s_lshl_b32 s34, s33, 10")
    a(f"s_add_u32 s35, s34, {WS_P}")
    a(f"s_add_u32 s36, s34, {WS_P + (4 << 20)}")
    a(f"s_add_u32 s43, s34, {WS_P + (2 << 20)}")
    a(f"s_add_u32 s44, s34, {WS_P + (6 << 20)}")
    a("s_mov_b32 s53, 0xffff0000")
    a("s_waitcnt lgkmcnt(0)")
    stamp(a, 1)
    srd(a, 24, 10, 11, 14 << 20)
    B = 16
    a(f"buffer_load_dwordx4 v[{B}:{B + 3}], v3, s[24:27], s35 offen")
    a(f"buffer_load_dwordx4 v[{B + 12}:{B + 15}], v3, s[24:27], s43 offen")
    a(f"buffer_load_dwordx4 v[{B + 4}:{B + 7}], v3, s[24:27], s36 offen")
    a(f"buffer_load_dwordx4 v[{B + 56}:{B + 59}], v3, s[24:27], s44 offen")
    srd(a, 12, 4, 5, S * D * 2)
    a(f"buffer_load_dwordx4 v[{B + 8}:{B + 11}], v3, s[12:15], s34 offen")
    srd(a, 16, 6, 7, D * 2)
    a("buffer_load_dwordx4 v[8:11], v3, s[16:19], 0 offen")
    if wpf:
        a("s_sub_u32 s45, s32, 5")
        a("s_min_u32 s45, s45, 3")
        emit_wtouch(a, "s45", 120, 121)
    srd(a, 20, 8, 9, S * D * 2)
    a(f"s_waitcnt vmcnt({2 if wpf else 1})")
    stamp(a, 2)

    def unpack(dst, src):
        a(f"v_lshlrev_b32 v{dst}, 16, v{src}")
        a(f"v_and_b32 v{dst + 1}, s53, v{src}")

    H = B + 16
    TT = [80 + 10 * i for i in range(4)]
    steps = []
    for i in range(4):
        T = TT[i]
        steps.append([
            f"v_lshlrev_b32 v{T}, 16, v{B + i}", f"v_and_b32 v{T + 1}, s53, v{B + i}",
            f"v_lshlrev_b32 v{T + 2}, 16, v{B + 12 + i}", f"v_and_b32 v{T + 3}, s53, v{B + 12 + i}",
            f"v_lshlrev_b32 v{T + 4}, 16, v{B + 4 + i}", f"v_and_b32 v{T + 5}, s53, v{B + 4 + i}",
            f"v_lshlrev_b32 v{T + 6}, 16, v{B + 56 + i}", f"v_and_b32 v{T + 7}, s53, v{B + 56 + i}",
            f"v_add_f32 v{T}, v{T}, v{T + 2}", f"v_add_f32 v{T + 1}, v{T + 1}, v{T + 3}",
            f"v_add_f32 v{T + 4}, v{T + 4}, v{T + 6}", f"v_add_f32 v{T + 5}, v{T + 5}, v{T + 7}",
            f"v_cvt_pk_bf16_f32 v{T + 8}, v{T}, v{T + 1}", f"v_cvt_pk_bf16_f32 v{T + 9}, v{T + 4}, v{T + 5}",
            f"v_lshlrev_b32 v{T}, 16, v{T + 8}", f"v_and_b32 v{T + 1}, s53, v{T + 8}",
            f"v_lshlrev_b32 v{T + 2}, 16, v{T + 9}", f"v_and_b32 v{T + 3}, s53, v{T + 9}",
            f"v_sub_f32 v{T}, v{T}, v{T + 2}", f"v_sub_f32 v{T + 1}, v{T + 1}, v{T + 3}",
            f"v_cvt_pk_bf16_f32 v{T + 4}, v{T}, v{T + 1}",
            f"v_lshlrev_b32 v{T}, 16, v{T + 4}", f"v_and_b32 v{T + 1}, s53, v{T + 4}",
            f"v_lshlrev_b32 v{T + 2}, 16, v{B + 8 + i}", f"v_and_b32 v{T + 3}, s53, v{B + 8 + i}",
            f"v_add_f32 v{T}, v{T + 2}, v{T}", f"v_add_f32 v{T + 1}, v{T + 3}, v{T + 1}",
            f"v_cvt_pk_bf16_f32 v{B + 40 + i}, v{T}, v{T + 1}",
            f"v_lshlrev_b32 v{H + 2 * i}, 16, v{B + 40 + i}", f"v_and_b32 v{H + 2 * i + 1}, s53, v{B + 40 + i}",
        ])
    for k in range(len(steps[0])):
        for i in range(4):
            a(steps[i][k])
    St = B + 48
    a(f"v_add_f32 v{St}, v{H}, v{H + 1}")
    a(f"v_add_f32 v{St + 1}, v{H + 2}, v{H + 3}")
    a(f"v_add_f32 v{St + 2}, v{H + 4}, v{H + 5}")
    a(f"v_add_f32 v{St + 3}, v{H + 6}, v{H + 7}")
    a(f"v_add_f32 v{St}, v{St}, v{St + 1}")
    a(f"v_add_f32 v{St + 2}, v{St + 2}, v{St + 3}")
    a(f"v_add_f32 v{St}, v{St}, v{St + 2}")
    wave_allreduce(a, "v_add_f32", St, St + 1)
    T = 80
    a(f"v_mul_f32 v{St}, 0x3b000000, v{St}")
    for i in range(8):
        a(f"v_sub_f32 v{T + i}, v{H + i}, v{St}")
    a(f"v_cvt_pk_bf16_f32 v{St + 1}, v{St}, v{St}")
    a(f"v_mul_f32 v{St + 2}, v{T}, v{T}")
    a(f"v_mul_f32 v{St + 3}, v{T + 1}, v{T + 1}")
    a(f"v_lshlrev_b32 v{St + 1}, 16, v{St + 1}")
    for i in range(2, 8, 2):
        a(f"v_fmac_f32 v{St + 2}, v{T + i}, v{T + i}")
        a(f"v_fmac_f32 v{St + 3}, v{T + i + 1}, v{T + i + 1}")
    a(f"v_add_f32 v{St + 2}, v{St + 2}, v{St + 3}")
    for i in range(8):
        a(f"v_sub_f32 v{T + 10 + i}, v{H + i}, v{St + 1}")
    for i in range(4):
        a(f"v_cvt_pk_bf16_f32 v{T + 20 + i}, v{T + 10 + 2 * i}, v{T + 11 + 2 * i}")
    for i in range(4):
        unpack(T + 10 + 2 * i, T + 20 + i)
    wave_allreduce(a, "v_add_f32", St + 2, St + 3)
    v = St + 2
    a(f"v_mul_f32 v{v}, 0x3b000000, v{v}")
    a(f"v_cvt_pk_bf16_f32 v{v}, v{v}, v{v}")
    a(f"v_lshlrev_b32 v{v}, 16, v{v}")
    a(f"v_add_f32 v{v}, 0x3727c5ac, v{v}")
    a(f"v_cvt_pk_bf16_f32 v{v}, v{v}, v{v}")
    a(f"v_lshlrev_b32 v{v}, 16, v{v}")
    a(f"v_sqrt_f32 v{v}, v{v}")
    a("s_nop 0")
    a(f"v_cvt_pk_bf16_f32 v{v}, v{v}, v{v}")
    a(f"v_lshlrev_b32 v{v}, 16, v{v}")
    a(f"v_rcp_f32 v{v}, v{v}")
    a(f"s_waitcnt vmcnt({1 if wpf else 0})")
    for i in range(8):
        a(f"v_mul_f32 v{T + 10 + i}, v{T + 10 + i}, v{v}")
    for i in range(4):
        a(f"v_cvt_pk_bf16_f32 v{B + 44 + i}, v{T + 10 + 2 * i}, v{T + 11 + 2 * i}")
    for i in range(4):
        unpack(T + 10 + 2 * i, B + 44 + i)
        unpack(T + 2 * i, 8 + i)
    a(f"v_mul_f32 v{St + 4}, v{T + 10}, v{T}")
    a(f"v_mul_f32 v{St + 5}, v{T + 11}, v{T + 1}")
    for i in range(2, 8, 2):
        a(f"v_fmac_f32 v{St + 4}, v{T + 10 + i}, v{T + i}")
        a(f"v_fmac_f32 v{St + 5}, v{T + 11 + i}, v{T + i + 1}")
    a(f"v_add_f32 v{St + 4}, v{St + 4}, v{St + 5}")
    for i in range(8):
        a(f"v_add_f32 v{T + 20 + i}, v{H + i}, v{T + 10 + i}")
    for i in range(4):
        a(f"v_cvt_pk_bf16_f32 v{B + 4 + i}, v{T + 20 + 2 * i}, v{T + 21 + 2 * i}")
    a(f"buffer_store_dwordx4 v[{B + 4}:{B + 7}], v3, s[20:23], s34 offen")
    wave_allreduce(a, "v_add_f32", St + 4, St + 5)
    v = St + 4
    a(f"v_cvt_pk_bf16_f32 v{v}, v{v}, v{v}")
    a(f"v_lshlrev_b32 v{v}, 16, v{v}")
    a(f"v_ashrrev_i32 v{v + 1}, 31, v{v}")
    a(f"v_or_b32 v{v + 1}, 0x80000000, v{v + 1}")
    a(f"v_xor_b32 v{v}, v{v}, v{v + 1}")
    a(f"v_and_b32 v{v}, s53, v{v}")
    a("s_sub_u32 s37, 2047, s33")
    a(f"v_or_b32 v{v}, s37, v{v}")
    a("s_lshl_b32 s37, s32, 2")
    a("v_mov_b32 v5, s37")
    a(f"ds_write_b32 v5, v{v}")
    stamp(a, 3)
    a("s_waitcnt lgkmcnt(0)")
    a("s_barrier")
    a("v_mov_b32 v5, 0")
    a("ds_read_b128 v[12:15], v5")
    a("ds_read_b128 v[80:83], v5 offset:16")
    a(f"v_readfirstlane_b32 s39, v{v}")
    a(f"s_lshl_b32 s41, s2, 11")
    a(f"s_add_u32 s41, s41, {WS_CROW}")
    a(f"s_lshl_b32 s42, s2, 2")
    a(f"s_add_u32 s42, s42, {WS_CAND}")
    a("s_waitcnt lgkmcnt(0)")
    a("v_max3_u32 v12, v12, v13, v14")
    a("v_max3_u32 v80, v80, v81, v82")
    a("v_max3_u32 v12, v12, v15, v83")
    a("v_max_u32 v12, v12, v80")
    a("s_nop 0")
    a("v_readfirstlane_b32 s38, v12")
    a("s_cmp_lg_u32 s38, s39")
    a(f"s_cbranch_scc1 {name}_nw")
    a(f"buffer_store_dwordx4 v[{B + 40}:{B + 43}], v3, s[24:27], s41 offen")
    a(f"buffer_store_dwordx4 v[{B + 44}:{B + 47}], v3, s[24:27], s41 offen offset:1024")
    a(f"buffer_store_dword v12, v5, s[24:27], s42 offen")
    a.label(f"{name}_nw")
    stamp_flush(a, 3, 4, 10, 11)
    a.label(f"{name}_done")
    a("s_endpgm")
    return kernel_desc(name, 128, 64, 128)


def emit_winner_wave(a, v4, t, s_out):
    a(f"v_max3_u32 v{v4}, v{v4}, v{v4 + 1}, v{v4 + 2}")
    a(f"v_max_u32 v{v4}, v{v4}, v{v4 + 3}")
    wave_allreduce(a, "v_max_u32", v4, t)
    a("s_nop 0")
    a(f"v_readfirstlane_b32 s{s_out}, v{v4}")


def gen_k4b(a, name):
    kernel_begin(a, name)
    a(f"s_cmp_ge_u32 s2, {NSL}")
    a(f"s_cbranch_scc1 {name}_done")
    stamp(a, 0)
    a("s_load_dwordx2 s[10:11], s[0:1], 96")
    a("s_load_dwordx4 s[4:7], s[0:1], 56")
    a("s_load_dwordx2 s[8:9], s[0:1], 72")
    a("v_lshrrev_b32 v1, 6, v0")
    a("v_and_b32 v2, 63, v0")
    a("s_nop 0")
    a("v_readfirstlane_b32 s32, v1")
    a("v_lshrrev_b32 v3, 2, v0")
    a("v_and_b32 v4, 3, v0")
    a("s_mov_b32 s33, 14336")
    a("v_mul_lo_u32 v6, v3, s33")
    a("v_lshl_add_u32 v6, v4, 4, v6")
    a("v_lshlrev_b32 v7, 4, v2")
    a("s_lshl_b32 s34, s2, 6")
    a("s_lshl_b32 s35, s2, 5")
    a("s_lshl_b32 s36, s32, 2")
    a("s_add_u32 s35, s35, s36")
    a("s_lshl_b32 s35, s35, 10")
    a(f"s_mov_b32 s37, {WS_CAND}")
    a("s_mov_b32 s53, 0xffff0000")
    a("s_waitcnt lgkmcnt(0)")
    stamp(a, 1)
    srd(a, 24, 10, 11, 14 << 20)
    a("buffer_load_dwordx4 v[8:11], v7, s[24:27], s37 offen")
    srd(a, 12, 4, 5, D * F * 2)
    srd(a, 16, 6, 7, D * F * 2)
    srd(a, 20, 8, 9, D * F * 2)
    G, U, W = 32, 48, 64
    for j in range(4):
        a(f"s_add_u32 s36, s34, {3584 * j}")
        a(f"buffer_load_dwordx4 v[{G + 4 * j}:{G + 4 * j + 3}], v6, s[12:15], s36 offen")
        a(f"buffer_load_dwordx4 v[{U + 4 * j}:{U + 4 * j + 3}], v6, s[16:19], s36 offen")
    a("s_waitcnt vmcnt(8)")
    stamp(a, 2)
    emit_winner_wave(a, 8, 12, 38)
    a("s_and_b32 s39, s38, 0xffff")
    a("s_sub_u32 s39, 2047, s39")
    a("s_lshr_b32 s39, s39, 3")
    a("s_lshl_b32 s39, s39, 11")
    a(f"s_add_u32 s39, s39, {WS_CROW + 1024}")
    a("v_lshlrev_b32 v9, 3, v3")
    a("v_add_u32 v9, s39, v9")
    a("buffer_load_dwordx2 v[12:13], v9, s[24:27], 0 offen")
    stamp(a, 3)
    for j in range(4):
        a(f"buffer_load_dwordx4 v[{W + 4 * j}:{W + 4 * j + 3}], v7, s[20:23], s35 offen offset:{1024 * j}")
    A = 96
    for i in range(16):
        a(f"v_mov_b32 v{A + i}, 0")
    a("s_waitcnt vmcnt(4)")
    stamp(a, 4)
    X = 16
    for i in range(2):
        a(f"v_lshlrev_b32 v{X + 2 * i}, 16, v{12 + i}")
        a(f"v_and_b32 v{X + 2 * i + 1}, s53, v{12 + i}")
    for j in range(4):
        for (M, ao) in ((G, 0), (U, 8)):
            for i in range(4):
                t = 24 + 2 * (i & 3)
                a(f"v_lshlrev_b32 v{t}, 16, v{M + 4 * j + i}")
                a(f"v_and_b32 v{t + 1}, s53, v{M + 4 * j + i}")
            for i in range(4):
                t = 24 + 2 * (i & 3)
                a(f"v_fmac_f32 v{A + ao + 2 * i}, v{X + j}, v{t}")
                a(f"v_fmac_f32 v{A + ao + 2 * i + 1}, v{X + j}, v{t + 1}")
    a("s_nop 1")
    for i in range(8):
        a(f"v_permlane32_swap_b32 v{A + i}, v{A + i + 8}")
    a("s_nop 1")
    for i in range(8):
        a(f"v_add_f32 v{A + i}, v{A + i}, v{A + i + 8}")
    a("s_nop 1")
    for i in range(4):
        a(f"v_permlane16_swap_b32 v{A + i}, v{A + i + 4}")
    a("s_nop 1")
    for i in range(4):
        a(f"v_add_f32 v{A + i}, v{A + i}, v{A + i + 4}")
    a("s_nop 1")
    for i in range(4):
        a(f"v_add_f32_dpp v{A + i}, v{A + i}, v{A + i} row_ror:4 {DPP}")
    a("s_nop 1")
    for i in range(4):
        a(f"v_add_f32_dpp v{A + i}, v{A + i}, v{A + i} row_ror:8 {DPP}")
    a("v_and_b32 v9, 3, v2")
    a("v_lshlrev_b32 v9, 5, v9")
    a("v_bfe_u32 v10, v2, 4, 1")
    a("v_lshl_add_u32 v9, v10, 4, v9")
    a("v_bfe_u32 v10, v2, 5, 1")
    a("v_lshl_add_u32 v9, v10, 7, v9")
    a("s_lshl_b32 s37, s32, 8")
    a("v_add_u32 v9, s37, v9")
    a(f"ds_write_b128 v9, v[{A}:{A + 3}]")
    a("s_waitcnt lgkmcnt(0)")
    a("s_barrier")
    stamp(a, 5)
    a("v_lshlrev_b32 v9, 2, v2")
    for w in range(8):
        a(f"ds_read_b32 v{16 + w}, v9 offset:{256 * w}")
    a("s_waitcnt lgkmcnt(0)")
    a("v_add_f32 v16, v16, v17")
    a("v_add_f32 v18, v18, v19")
    a("v_add_f32 v20, v20, v21")
    a("v_add_f32 v22, v22, v23")
    a("v_add_f32 v16, v16, v18")
    a("v_add_f32 v20, v20, v22")
    a("v_add_f32 v16, v16, v20")
    a("v_mov_b32 v20, v16")
    a("s_nop 1")
    a("v_permlane32_swap_b32 v16, v20")
    a("s_nop 1")
    a("v_cvt_pk_bf16_f32 v16, v16, v20")
    a("v_and_b32 v20, s53, v16")
    a("v_lshlrev_b32 v16, 16, v16")
    a("v_mul_f32 v17, 0xbfb8aa3b, v16")
    a("v_exp_f32 v17, v17")
    a("s_nop 0")
    a("v_add_f32 v17, 1.0, v17")
    a("v_rcp_f32 v17, v17")
    a("s_nop 0")
    a("v_mul_f32 v16, v16, v17")
    a("v_cvt_pk_bf16_f32 v16, v16, v16")
    a("v_lshlrev_b32 v16, 16, v16")
    a("v_mul_f32 v16, v16, v20")
    a("v_cvt_pk_bf16_f32 v16, v16, v16")
    a("v_lshlrev_b32 v16, 16, v16")
    a("s_lshl_b32 s37, s32, 2")
    for j in range(4):
        a(f"s_add_u32 s36, s37, {j}")
        a("s_nop 0")
        a(f"v_readlane_b32 s{40 + j}, v16, s36")
    a("s_waitcnt vmcnt(0)")
    for j in range(4):
        for i in range(4):
            t = 24 + 2 * i
            a(f"v_lshlrev_b32 v{t}, 16, v{W + 4 * j + i}")
            a(f"v_and_b32 v{t + 1}, s53, v{W + 4 * j + i}")
        for i in range(4):
            t = 24 + 2 * i
            if j == 0:
                a(f"v_mul_f32 v{A + 2 * i}, s{40 + j}, v{t}")
                a(f"v_mul_f32 v{A + 2 * i + 1}, s{40 + j}, v{t + 1}")
            else:
                a(f"v_fmac_f32 v{A + 2 * i}, s{40 + j}, v{t}")
                a(f"v_fmac_f32 v{A + 2 * i + 1}, s{40 + j}, v{t + 1}")
    a("v_lshlrev_b32 v9, 5, v2")
    a("s_lshl_b32 s37, s32, 11")
    a("v_add_u32 v9, s37, v9")
    a(f"ds_write_b128 v9, v[{A}:{A + 3}] offset:2048")
    a(f"ds_write_b128 v9, v[{A + 4}:{A + 7}] offset:2064")
    a("s_waitcnt lgkmcnt(0)")
    a("s_barrier")
    a("v_lshlrev_b32 v9, 2, v0")
    for w in range(8):
        a(f"ds_read_b32 v{16 + w}, v9 offset:{2048 + 2048 * w}")
    a("s_lshl_b32 s37, s2, 11")
    a(f"s_add_u32 s37, s37, {WS_SLAB}")
    a("s_waitcnt lgkmcnt(0)")
    a("v_add_f32 v16, v16, v17")
    a("v_add_f32 v18, v18, v19")
    a("v_add_f32 v20, v20, v21")
    a("v_add_f32 v22, v22, v23")
    a("v_add_f32 v16, v16, v18")
    a("v_add_f32 v20, v20, v22")
    a("v_add_f32 v16, v16, v20")
    a("buffer_store_dword v16, v9, s[24:27], s37 offen")
    stamp_flush(a, 4, 6, 10, 11)
    a.label(f"{name}_done")
    a("s_endpgm")
    return kernel_desc(name, 112, 64, 112)


WS_NONCE = 13 << 20
WS_ANN = WS_NONCE + 128
WS_KEYS = WS_NONCE + 4096
WS_ROWS = WS_NONCE + 8192
WS_KEYS2 = (15 << 20) + (3 << 18)
WS_SLABS = 15 << 20
WS_FLAG2 = (15 << 20) + (1 << 19)


KSLEEP, SSLEEP, FSLEEP, ASLEEP = 1, 1, 1, 8


def gen_kt(a, name, fused=0):
    SLOT = "s63" if fused else "s2"
    LP = " sc1" if fused else ""
    if not fused:
        kernel_begin(a, name)
        a("s_cmp_ge_u32 s2, 256")
        a(f"s_cbranch_scc1 {name}_done")
    stamp(a, 0)
    a("s_load_dwordx2 s[10:11], s[0:1], 96")
    a("s_load_dwordx2 s[4:5], s[0:1], 0")
    a("s_load_dwordx2 s[6:7], s[0:1], 48")
    a("s_load_dwordx2 s[8:9], s[0:1], 80")
    a("s_load_dwordx4 s[56:59], s[0:1], 56")
    a("s_load_dwordx2 s[60:61], s[0:1], 72")
    if fused:
        a("v_mbcnt_lo_u32_b32 v2, -1, 0")
        a("v_mbcnt_hi_u32_b32 v2, -1, v2")
        a("s_lshl_b32 s33, s32, 6")
        a("v_add_u32 v0, s33, v2")
    else:
        a("v_lshrrev_b32 v1, 6, v0")
        a("v_and_b32 v2, 63, v0")
        a("s_nop 0")
        a("v_readfirstlane_b32 s32, v1")
    a("v_lshlrev_b32 v3, 4, v2")
    a(f"s_lshl_b32 s33, {SLOT}, 3")
    a("s_add_u32 s33, s33, s32")
    a("s_lshl_b32 s34, s33, 10")
    a(f"s_add_u32 s35, s34, {WS_P}")
    a(f"s_add_u32 s36, s34, {WS_P + (4 << 20)}")
    a(f"s_add_u32 s43, s34, {WS_P + (2 << 20)}")
    a(f"s_add_u32 s44, s34, {WS_P + (6 << 20)}")
    a("s_mov_b32 s53, 0xffff0000")
    a("s_mov_b32 s69, 0x40000")
    a(f"s_mov_b32 s45, {WS_NONCE}")
    a("v_mov_b32 v5, 0")
    a("v_lshrrev_b32 v6, 2, v0")
    a("s_mov_b32 s46, 14336")
    a("v_mul_lo_u32 v7, v6, s46")
    a("v_and_b32 v4, 3, v0")
    a("v_lshl_add_u32 v7, v4, 4, v7")
    a("v_lshlrev_b32 v4, 5, v2")
    a("s_waitcnt lgkmcnt(0)")
    stamp(a, 1)
    srd(a, 24, 10, 11, 16 << 20)
    srd(a, 20, 8, 9, S * D * 2)
    P0, P2, XX, P1, P3 = 16, 20, 24, 28, 12

    EARLYW = fused and WEARLY
    G, U = 96, 112
    W = 128 if EARLYW else 16

    def w_loads():
        srd(a, 12, 56, 57, D * F * 2)
        srd(a, 16, 58, 59, D * F * 2)
        a("s_lshl_b32 s48, s2, 6")
        for j in range(4):
            a(f"s_add_u32 s49, s48, {3584 * j}")
            a(f"buffer_load_dwordx4 v[{G + 4 * j}:{G + 4 * j + 3}], v7, s[12:15], s49 offen")
            a(f"buffer_load_dwordx4 v[{U + 4 * j}:{U + 4 * j + 3}], v7, s[16:19], s49 offen")
        srd(a, 28, 60, 61, D * F * 2)
        a("s_lshl_b32 s48, s2, 5")
        a("s_lshl_b32 s49, s32, 2")
        a("s_add_u32 s48, s48, s49")
        a("s_lshl_b32 s48, s48, 10")
        for j in range(4):
            a(f"buffer_load_dwordx4 v[{W + 4 * j}:{W + 4 * j + 3}], v3, s[28:31], s48 offen offset:{1024 * j}")

    def p_loads():
        a(f"buffer_load_dwordx4 v[{P0}:{P0 + 3}], v3, s[24:27], s35 offen{LP}")
        a(f"buffer_load_dwordx4 v[{P1}:{P1 + 3}], v3, s[24:27], s43 offen{LP}")
        a(f"buffer_load_dwordx4 v[{P2}:{P2 + 3}], v3, s[24:27], s36 offen{LP}")
        a(f"buffer_load_dwordx4 v[{P3}:{P3 + 3}], v3, s[24:27], s44 offen{LP}")

    if fused:
        a("buffer_load_dword v88, v5, s[24:27], s45 offen")
        srd(a, 12, 4, 5, S * D * 2)
        a(f"buffer_load_dwordx4 v[{XX}:{XX + 3}], v3, s[12:15], s34 offen")
        srd(a, 16, 6, 7, D * 2)
        a("buffer_load_dwordx4 v[8:11], v3, s[16:19], 0 offen")
        if EARLYW:
            a(f"s_cmp_lt_u32 s2, {NSL}")
            a(f"s_cbranch_scc0 {name}_noew")
            w_loads()
            a.label(f"{name}_noew")
        if SENT == 3:
            a(f"s_branch {name}_np")
        a("s_cmp_lg_u32 s32, 4")
        a(f"s_cbranch_scc1 {name}_np")
        a("s_lshr_b32 s46, s63, 4")
        a("s_lshl_b32 s46, s46, 11")
        a(f"s_add_u32 s46, s46, {WS_FLAG2}")
        if SENT:
            a("v_lshrrev_b32 v56, 2, v2")
            a("v_lshlrev_b32 v56, 7, v56")
            a("v_and_b32 v57, 3, v2")
            a("v_lshl_add_u32 v56, v57, 2, v56")
        else:
            a("v_and_b32 v56, 15, v2")
            a("v_lshlrev_b32 v56, 7, v56")
        a.label(f"{name}_fp")
        a("buffer_load_dword v57, v56, s[24:27], s46 offen sc1")
        a("s_waitcnt vmcnt(0)")
        a("v_cmp_ne_u32 vcc, v57, v88")
        a("s_or_b32 s47, vcc_lo, vcc_hi")
        a(f"s_cbranch_scc0 {name}_np")
        a(f"s_sleep {FSLEEP}")
        a("s_sub_u32 s69, s69, 1")
        a(f"s_cbranch_scc0 {name}_fp")
        a("s_mov_b32 s69, 0")
        a.label(f"{name}_np")
        a("s_barrier")
        if SENT:
            a.label(f"{name}_pp")
        p_loads()
        if SENT:
            a("s_waitcnt vmcnt(0)")
            for (r0, d) in ((P0, 56), (P1, 57), (P2, 58), (P3, 59)):
                a(f"v_max3_u32 v{d}, v{r0}, v{r0 + 1}, v{r0 + 2}")
                a(f"v_max_u32 v{d}, v{d}, v{r0 + 3}")
            a("v_max3_u32 v56, v56, v57, v58")
            a("v_max_u32 v56, v56, v59")
            a("v_cmp_eq_u32 vcc, -1, v56")
            a("s_or_b32 s47, vcc_lo, vcc_hi")
            a(f"s_cbranch_scc0 {name}_pd")
            a(f"s_sleep {PSLEEP}")
            a("s_sub_u32 s69, s69, 1")
            a(f"s_cbranch_scc0 {name}_pp")
            a("s_mov_b32 s69, 0")
            a.label(f"{name}_pd")
    else:
        p_loads()
        srd(a, 12, 4, 5, S * D * 2)
        a(f"buffer_load_dwordx4 v[{XX}:{XX + 3}], v3, s[12:15], s34 offen")
        srd(a, 16, 6, 7, D * 2)
        a("buffer_load_dwordx4 v[8:11], v3, s[16:19], 0 offen")
        a("buffer_load_dword v88, v5, s[24:27], s45 offen")
    G, U = 96, 112
    a(f"s_waitcnt vmcnt({0 if fused else 2})")
    stamp(a, 2)

    def unpack(dst, src):
        a(f"v_lshlrev_b32 v{dst}, 16, v{src}")
        a(f"v_and_b32 v{dst + 1}, s53, v{src}")

    H, HP, HN, St = 32, 40, 44, 48
    for half in range(2):
        steps = []
        for ii in range(2):
            i = 2 * half + ii
            T = 56 + 10 * ii
            steps.append([
                f"v_lshlrev_b32 v{T}, 16, v{P0 + i}", f"v_and_b32 v{T + 1}, s53, v{P0 + i}",
                f"v_lshlrev_b32 v{T + 2}, 16, v{P1 + i}", f"v_and_b32 v{T + 3}, s53, v{P1 + i}",
                f"v_lshlrev_b32 v{T + 4}, 16, v{P2 + i}", f"v_and_b32 v{T + 5}, s53, v{P2 + i}",
                f"v_lshlrev_b32 v{T + 6}, 16, v{P3 + i}", f"v_and_b32 v{T + 7}, s53, v{P3 + i}",
                f"v_add_f32 v{T}, v{T}, v{T + 2}", f"v_add_f32 v{T + 1}, v{T + 1}, v{T + 3}",
                f"v_add_f32 v{T + 4}, v{T + 4}, v{T + 6}", f"v_add_f32 v{T + 5}, v{T + 5}, v{T + 7}",
                f"v_cvt_pk_bf16_f32 v{T + 8}, v{T}, v{T + 1}", f"v_cvt_pk_bf16_f32 v{T + 9}, v{T + 4}, v{T + 5}",
                f"v_lshlrev_b32 v{T}, 16, v{T + 8}", f"v_and_b32 v{T + 1}, s53, v{T + 8}",
                f"v_lshlrev_b32 v{T + 2}, 16, v{T + 9}", f"v_and_b32 v{T + 3}, s53, v{T + 9}",
                f"v_sub_f32 v{T}, v{T}, v{T + 2}", f"v_sub_f32 v{T + 1}, v{T + 1}, v{T + 3}",
                f"v_cvt_pk_bf16_f32 v{T + 4}, v{T}, v{T + 1}",
                f"v_lshlrev_b32 v{T}, 16, v{T + 4}", f"v_and_b32 v{T + 1}, s53, v{T + 4}",
                f"v_lshlrev_b32 v{T + 2}, 16, v{XX + i}", f"v_and_b32 v{T + 3}, s53, v{XX + i}",
                f"v_add_f32 v{T}, v{T + 2}, v{T}", f"v_add_f32 v{T + 1}, v{T + 3}, v{T + 1}",
                f"v_cvt_pk_bf16_f32 v{HP + i}, v{T}, v{T + 1}",
                f"v_lshlrev_b32 v{H + 2 * i}, 16, v{HP + i}", f"v_and_b32 v{H + 2 * i + 1}, s53, v{HP + i}",
            ])
        for k in range(len(steps[0])):
            for ii in range(2):
                a(steps[ii][k])
    a(f"v_add_f32 v{St}, v{H}, v{H + 1}")
    a(f"v_add_f32 v{St + 1}, v{H + 2}, v{H + 3}")
    a(f"v_add_f32 v{St + 2}, v{H + 4}, v{H + 5}")
    a(f"v_add_f32 v{St + 3}, v{H + 6}, v{H + 7}")
    a(f"v_add_f32 v{St}, v{St}, v{St + 1}")
    a(f"v_add_f32 v{St + 2}, v{St + 2}, v{St + 3}")
    a(f"v_add_f32 v{St}, v{St}, v{St + 2}")
    wave_allreduce(a, "v_add_f32", St, St + 1)
    T = 56
    a(f"v_mul_f32 v{St}, 0x3b000000, v{St}")
    for i in range(8):
        a(f"v_sub_f32 v{T + i}, v{H + i}, v{St}")
    a(f"v_cvt_pk_bf16_f32 v{St + 1}, v{St}, v{St}")
    a(f"v_mul_f32 v{St + 2}, v{T}, v{T}")
    a(f"v_mul_f32 v{St + 3}, v{T + 1}, v{T + 1}")
    a(f"v_lshlrev_b32 v{St + 1}, 16, v{St + 1}")
    for i in range(2, 8, 2):
        a(f"v_fmac_f32 v{St + 2}, v{T + i}, v{T + i}")
        a(f"v_fmac_f32 v{St + 3}, v{T + i + 1}, v{T + i + 1}")
    a(f"v_add_f32 v{St + 2}, v{St + 2}, v{St + 3}")
    for i in range(8):
        a(f"v_sub_f32 v{T + 10 + i}, v{H + i}, v{St + 1}")
    for i in range(4):
        a(f"v_cvt_pk_bf16_f32 v{T + 20 + i}, v{T + 10 + 2 * i}, v{T + 11 + 2 * i}")
    for i in range(4):
        unpack(T + 10 + 2 * i, T + 20 + i)
    wave_allreduce(a, "v_add_f32", St + 2, St + 3)
    v = St + 2
    a(f"v_mul_f32 v{v}, 0x3b000000, v{v}")
    a(f"v_cvt_pk_bf16_f32 v{v}, v{v}, v{v}")
    a(f"v_lshlrev_b32 v{v}, 16, v{v}")
    a(f"v_add_f32 v{v}, 0x3727c5ac, v{v}")
    a(f"v_cvt_pk_bf16_f32 v{v}, v{v}, v{v}")
    a(f"v_lshlrev_b32 v{v}, 16, v{v}")
    a(f"v_sqrt_f32 v{v}, v{v}")
    a("s_nop 0")
    a(f"v_cvt_pk_bf16_f32 v{v}, v{v}, v{v}")
    a(f"v_lshlrev_b32 v{v}, 16, v{v}")
    a(f"v_rcp_f32 v{v}, v{v}")
    a("s_waitcnt vmcnt(0)")
    for i in range(8):
        a(f"v_mul_f32 v{T + 10 + i}, v{T + 10 + i}, v{v}")
    for i in range(4):
        a(f"v_cvt_pk_bf16_f32 v{HN + i}, v{T + 10 + 2 * i}, v{T + 11 + 2 * i}")
    for i in range(4):
        unpack(T + 10 + 2 * i, HN + i)
        unpack(T + 2 * i, 8 + i)
    a(f"v_mul_f32 v{St + 4}, v{T + 10}, v{T}")
    a(f"v_mul_f32 v{St + 5}, v{T + 11}, v{T + 1}")
    for i in range(2, 8, 2):
        a(f"v_fmac_f32 v{St + 4}, v{T + 10 + i}, v{T + i}")
        a(f"v_fmac_f32 v{St + 5}, v{T + 11 + i}, v{T + i + 1}")
    a(f"v_add_f32 v{St + 4}, v{St + 4}, v{St + 5}")
    wave_allreduce(a, "v_add_f32", St + 4, St + 5)
    v = St + 4
    a(f"v_cvt_pk_bf16_f32 v{v}, v{v}, v{v}")
    a(f"v_lshlrev_b32 v{v}, 16, v{v}")
    a(f"v_ashrrev_i32 v{v + 1}, 31, v{v}")
    a(f"v_or_b32 v{v + 1}, 0x80000000, v{v + 1}")
    a(f"v_xor_b32 v{v}, v{v}, v{v + 1}")
    a(f"v_and_b32 v{v}, s53, v{v}")
    a("s_sub_u32 s37, 2047, s33")
    a(f"v_or_b32 v{v}, s37, v{v}")
    a("s_lshl_b32 s37, s32, 2")
    a("v_mov_b32 v89, s37")
    a(f"ds_write_b32 v89, v{v}")
    OUT = 84
    for i in range(8):
        a(f"v_add_f32 v{T + 20 + i}, v{H + i}, v{T + 10 + i}")
    for i in range(4):
        a(f"v_cvt_pk_bf16_f32 v{OUT + i}, v{T + 20 + 2 * i}, v{T + 21 + 2 * i}")
    for i in range(4):
        a(f"v_mov_b32 v{56 + 2 * i}, v{HP + i}")
        a(f"v_mov_b32 v{57 + 2 * i}, v88")
        a(f"v_mov_b32 v{64 + 2 * i}, v{HN + i}")
        a(f"v_mov_b32 v{65 + 2 * i}, v88")
    a(f"v_readfirstlane_b32 s39, v{v}")
    a("v_readfirstlane_b32 s50, v88")
    a(f"s_lshl_b32 s41, {SLOT}, 12")
    a(f"s_add_u32 s41, s41, {WS_ROWS}")
    if KSPREAD:
        a(f"s_and_b32 s42, {SLOT}, 63")
        a("s_lshl_b32 s42, s42, 7")
        a(f"s_lshr_b32 s47, {SLOT}, 6")
        a("s_lshl_b32 s47, s47, 3")
        a("s_add_u32 s42, s42, s47")
        a(f"s_add_u32 s42, s42, {WS_KEYS2}")
    else:
        a(f"s_lshl_b32 s42, {SLOT}, 3")
        a(f"s_add_u32 s42, s42, {WS_KEYS}")
    stamp(a, 3)
    a("s_waitcnt lgkmcnt(0)")
    a("s_barrier")
    a("ds_read_b128 v[72:75], v5")
    a("ds_read_b128 v[76:79], v5 offset:16")
    a("s_waitcnt lgkmcnt(0)")
    a("v_max3_u32 v72, v72, v73, v74")
    a("v_max3_u32 v76, v76, v77, v78")
    a("v_max3_u32 v72, v72, v75, v79")
    a("v_max_u32 v72, v72, v76")
    a("v_mov_b32 v73, v88")
    a("s_nop 0")
    a("v_readfirstlane_b32 s38, v72")
    a("s_mov_b32 s51, 0")
    a("s_cmp_lg_u32 s38, s39")
    a(f"s_cbranch_scc1 {name}_nc")
    a("s_mov_b32 s51, 1")
    a("buffer_store_dwordx2 v[72:73], v5, s[24:27], s42 offen sc0 sc1")
    a("buffer_store_dwordx4 v[64:67], v4, s[24:27], s41 offen offset:2048 sc0 sc1")
    a("buffer_store_dwordx4 v[68:71], v4, s[24:27], s41 offen offset:2064 sc0 sc1")
    a("buffer_store_dwordx4 v[56:59], v4, s[24:27], s41 offen sc0 sc1")
    a("buffer_store_dwordx4 v[60:63], v4, s[24:27], s41 offen offset:16 sc0 sc1")
    a(f"s_branch {name}_role")
    a.label(f"{name}_nc")
    a(f"buffer_store_dwordx4 v[{OUT}:{OUT + 3}], v3, s[20:23], s34 offen{OWT}")
    a.label(f"{name}_role")
    stamp(a, 4)
    a(f"s_cmp_lt_u32 s2, {NSL}")
    a(f"s_cbranch_scc1 {name}_needkeys")
    a("s_sub_u32 s52, s2, 64")
    a("s_cmp_lt_u32 s52, 16")
    a(f"s_cbranch_scc1 {name}_needkeys")
    a("s_cmp_eq_u32 s51, 0")
    a(f"s_cbranch_scc1 {name}_fin")
    a(f"s_mov_b32 s45, {WS_ANN}")
    a.label(f"{name}_annp")
    a(f"s_sleep {ASLEEP}")
    a("buffer_load_dwordx2 v[72:73], v5, s[24:27], s45 offen sc1")
    a("s_waitcnt vmcnt(0)")
    a("v_readfirstlane_b32 s46, v73")
    a("v_readfirstlane_b32 s38, v72")
    a("s_cmp_eq_u32 s46, s50")
    a(f"s_cbranch_scc1 {name}_annd")
    a("s_sub_u32 s69, s69, 1")
    a(f"s_cbranch_scc0 {name}_annp")
    a("s_mov_b32 s69, 0")
    a.label(f"{name}_annd")
    a("s_cmp_eq_u32 s38, s39")
    a(f"s_cbranch_scc1 {name}_fin")
    a(f"buffer_store_dwordx4 v[{OUT}:{OUT + 3}], v3, s[20:23], s34 offen{OWT}")
    a(f"s_branch {name}_fin")
    a.label(f"{name}_needkeys")
    if not EARLYW:
        a(f"s_cmp_lt_u32 s2, {NSL}")
        a(f"s_cbranch_scc0 {name}_nowd")
        a("s_barrier")
        w_loads()
    a.label(f"{name}_nowd")
    a("s_cmp_lg_u32 s32, 0")
    a(f"s_cbranch_scc1 {name}_kw")
    a(f"s_mov_b32 s45, {WS_KEYS2 if KSPREAD else WS_KEYS}")
    a(f"v_lshlrev_b32 v64, {7 if KSPREAD else 5}, v2")
    a.label(f"{name}_kp")
    a("buffer_load_dwordx4 v[56:59], v64, s[24:27], s45 offen sc1")
    a("buffer_load_dwordx4 v[60:63], v64, s[24:27], s45 offen offset:16 sc1")
    a("s_waitcnt vmcnt(0)")
    a("v_cmp_ne_u32 s[46:47], v57, v88")
    a("v_cmp_ne_u32 vcc, v59, v88")
    a("s_or_b64 s[46:47], s[46:47], vcc")
    a("v_cmp_ne_u32 vcc, v61, v88")
    a("s_or_b64 s[46:47], s[46:47], vcc")
    a("v_cmp_ne_u32 vcc, v63, v88")
    a("s_or_b64 s[46:47], s[46:47], vcc")
    a(f"s_cbranch_scc0 {name}_kd")
    a(f"s_sleep {KSLEEP}")
    a("s_sub_u32 s69, s69, 1")
    a(f"s_cbranch_scc0 {name}_kp")
    a("s_mov_b32 s69, 0")
    a.label(f"{name}_kd")
    a("v_max3_u32 v56, v56, v58, v60")
    a("v_max_u32 v56, v56, v62")
    wave_allreduce(a, "v_max_u32", 56, 57)
    a("ds_write_b32 v5, v56 offset:64")
    a("s_cmp_lg_u32 s2, 64")
    a(f"s_cbranch_scc1 {name}_noann")
    a("v_mov_b32 v57, v88")
    a(f"s_mov_b32 s45, {WS_ANN}")
    a("buffer_store_dwordx2 v[56:57], v5, s[24:27], s45 offen sc0 sc1")
    a.label(f"{name}_noann")
    a("s_waitcnt lgkmcnt(0)")
    a.label(f"{name}_kw")
    a("s_barrier")
    a("ds_read_b32 v56, v5 offset:64")
    a("s_waitcnt lgkmcnt(0)")
    a("v_readfirstlane_b32 s38, v56")
    stamp(a, 5)
    a("s_cmp_eq_u32 s51, 0")
    a(f"s_cbranch_scc1 {name}_nodef")
    a("s_cmp_eq_u32 s38, s39")
    a(f"s_cbranch_scc1 {name}_nodef")
    a(f"buffer_store_dwordx4 v[{OUT}:{OUT + 3}], v3, s[20:23], s34 offen{OWT}")
    a.label(f"{name}_nodef")
    a("s_and_b32 s39, s38, 0xffff")
    a("s_sub_u32 s39, 2047, s39")
    a("s_lshr_b32 s40, s39, 3")
    a("s_lshl_b32 s40, s40, 12")
    a(f"s_add_u32 s40, s40, {WS_ROWS}")
    a(f"s_cmp_lt_u32 s2, {NSL}")
    a(f"s_cbranch_scc0 {name}_red")
    a("v_lshlrev_b32 v9, 4, v6")
    a("v_add_u32 v9, s40, v9")
    A = 32
    a.label(f"{name}_xp")
    a("buffer_load_dwordx4 v[56:59], v9, s[24:27], 0 offen offset:2048 sc1")
    for i in range(16):
        a(f"v_mov_b32 v{A + i}, 0")
    a("s_waitcnt vmcnt(0)")
    a("v_cmp_ne_u32 s[46:47], v57, v88")
    a("v_cmp_ne_u32 vcc, v59, v88")
    a("s_or_b64 s[46:47], s[46:47], vcc")
    a(f"s_cbranch_scc0 {name}_xd")
    a("s_sub_u32 s69, s69, 1")
    a(f"s_cbranch_scc0 {name}_xp")
    a("s_mov_b32 s69, 0")
    a.label(f"{name}_xd")
    stamp(a, 6)
    X = 60
    a(f"v_lshlrev_b32 v{X}, 16, v56")
    a(f"v_and_b32 v{X + 1}, s53, v56")
    a(f"v_lshlrev_b32 v{X + 2}, 16, v58")
    a(f"v_and_b32 v{X + 3}, s53, v58")
    for j in range(4):
        for (M, ao) in ((G, 0), (U, 8)):
            for i in range(4):
                t = 64 + 2 * i
                a(f"v_lshlrev_b32 v{t}, 16, v{M + 4 * j + i}")
                a(f"v_and_b32 v{t + 1}, s53, v{M + 4 * j + i}")
            for i in range(4):
                t = 64 + 2 * i
                a(f"v_fmac_f32 v{A + ao + 2 * i}, v{X + j}, v{t}")
                a(f"v_fmac_f32 v{A + ao + 2 * i + 1}, v{X + j}, v{t + 1}")
    a("s_nop 1")
    for i in range(8):
        a(f"v_permlane32_swap_b32 v{A + i}, v{A + i + 8}")
    a("s_nop 1")
    for i in range(8):
        a(f"v_add_f32 v{A + i}, v{A + i}, v{A + i + 8}")
    a("s_nop 1")
    for i in range(4):
        a(f"v_permlane16_swap_b32 v{A + i}, v{A + i + 4}")
    a("s_nop 1")
    for i in range(4):
        a(f"v_add_f32 v{A + i}, v{A + i}, v{A + i + 4}")
    a("s_nop 1")
    for i in range(4):
        a(f"v_add_f32_dpp v{A + i}, v{A + i}, v{A + i} row_ror:4 {DPP}")
    a("s_nop 1")
    for i in range(4):
        a(f"v_add_f32_dpp v{A + i}, v{A + i}, v{A + i} row_ror:8 {DPP}")
    a("v_and_b32 v9, 3, v2")
    a("v_lshlrev_b32 v9, 5, v9")
    a("v_bfe_u32 v10, v2, 4, 1")
    a("v_lshl_add_u32 v9, v10, 4, v9")
    a("v_bfe_u32 v10, v2, 5, 1")
    a("v_lshl_add_u32 v9, v10, 7, v9")
    a("s_lshl_b32 s37, s32, 8")
    a("v_add_u32 v9, s37, v9")
    a(f"ds_write_b128 v9, v[{A}:{A + 3}] offset:128")
    a("s_waitcnt lgkmcnt(0)")
    a("s_barrier")
    a("v_lshlrev_b32 v9, 2, v2")
    for w in range(8):
        a(f"ds_read_b32 v{56 + w}, v9 offset:{128 + 256 * w}")
    a("s_waitcnt lgkmcnt(0)")
    a("v_add_f32 v56, v56, v57")
    a("v_add_f32 v58, v58, v59")
    a("v_add_f32 v60, v60, v61")
    a("v_add_f32 v62, v62, v63")
    a("v_add_f32 v56, v56, v58")
    a("v_add_f32 v60, v60, v62")
    a("v_add_f32 v56, v56, v60")
    a("v_mov_b32 v60, v56")
    a("s_nop 1")
    a("v_permlane32_swap_b32 v56, v60")
    a("s_nop 1")
    a("v_cvt_pk_bf16_f32 v56, v56, v60")
    a("v_and_b32 v60, s53, v56")
    a("v_lshlrev_b32 v56, 16, v56")
    a("v_mul_f32 v57, 0xbfb8aa3b, v56")
    a("v_exp_f32 v57, v57")
    a("s_nop 0")
    a("v_add_f32 v57, 1.0, v57")
    a("v_rcp_f32 v57, v57")
    a("s_nop 0")
    a("v_mul_f32 v56, v56, v57")
    a("v_cvt_pk_bf16_f32 v56, v56, v56")
    a("v_lshlrev_b32 v56, 16, v56")
    a("v_mul_f32 v56, v56, v60")
    a("v_cvt_pk_bf16_f32 v56, v56, v56")
    a("v_lshlrev_b32 v56, 16, v56")
    a("s_lshl_b32 s37, s32, 2")
    for j in range(4):
        a(f"s_add_u32 s36, s37, {j}")
        a("s_nop 0")
        a(f"v_readlane_b32 s{40 + j}, v56, s36")
    for j in range(4):
        for i in range(4):
            t = 64 + 2 * i
            a(f"v_lshlrev_b32 v{t}, 16, v{W + 4 * j + i}")
            a(f"v_and_b32 v{t + 1}, s53, v{W + 4 * j + i}")
        for i in range(4):
            t = 64 + 2 * i
            if j == 0:
                a(f"v_mul_f32 v{A + 2 * i}, s{40 + j}, v{t}")
                a(f"v_mul_f32 v{A + 2 * i + 1}, s{40 + j}, v{t + 1}")
            else:
                a(f"v_fmac_f32 v{A + 2 * i}, s{40 + j}, v{t}")
                a(f"v_fmac_f32 v{A + 2 * i + 1}, s{40 + j}, v{t + 1}")
    a("s_lshl_b32 s37, s32, 11")
    a("v_add_u32 v9, s37, v4")
    a(f"ds_write_b128 v9, v[{A}:{A + 3}] offset:4096")
    a(f"ds_write_b128 v9, v[{A + 4}:{A + 7}] offset:4112")
    a("s_waitcnt lgkmcnt(0)")
    a("s_barrier")
    a("v_lshlrev_b32 v9, 2, v0")
    for w in range(8):
        a(f"ds_read_b32 v{56 + w}, v9 offset:{4096 + 2048 * w}")
    a("s_lshl_b32 s37, s2, 12")
    a(f"s_add_u32 s37, s37, {WS_SLABS}")
    a("v_lshlrev_b32 v9, 3, v0")
    a("s_waitcnt lgkmcnt(0)")
    a("v_add_f32 v56, v56, v57")
    a("v_add_f32 v58, v58, v59")
    a("v_add_f32 v60, v60, v61")
    a("v_add_f32 v62, v62, v63")
    a("v_add_f32 v56, v56, v58")
    a("v_add_f32 v60, v60, v62")
    a("v_add_f32 v56, v56, v60")
    a("v_mov_b32 v57, v88")
    a("buffer_store_dwordx2 v[56:57], v9, s[24:27], s37 offen sc0 sc1")
    stamp(a, 7)
    a(f"s_branch {name}_fin2")
    a.label(f"{name}_red")
    a("v_lshrrev_b32 v8, 4, v0")
    a("v_and_b32 v9, 15, v0")
    a("s_lshl_b32 s41, s52, 8")
    a(f"s_add_u32 s42, s41, {WS_SLABS}")
    a("v_lshlrev_b32 v10, 12, v8")
    a("v_lshl_add_u32 v10, v9, 4, v10")
    a("v_add_u32 v11, 0x20000, v10")
    a("v_cmp_gt_u32 s[54:55], 24, v8")
    a("s_nop 1")
    a("v_cndmask_b32 v11, v10, v11, s[54:55]")
    a("s_lshl_b32 s43, s52, 7")
    a("s_add_u32 s43, s43, s40")
    a("v_lshlrev_b32 v12, 3, v9")
    a("v_add_u32 v12, s43, v12")
    a("s_and_b32 s44, s38, 0xffff0000")
    a("s_xor_b32 s45, s44, 0x80000000")
    a("s_not_b32 s46, s44")
    a("s_and_b32 s46, s46, 0xffff0000")
    a("s_cmp_ge_u32 s44, 0x80000000")
    a("s_cselect_b32 s44, s45, s46")
    a("v_mov_b32 v13, s44")
    a("v_mul_f32 v13, 0xbfb8aa3b, v13")
    a("v_exp_f32 v13, v13")
    a("s_nop 0")
    a("v_add_f32 v13, 1.0, v13")
    a("v_rcp_f32 v13, v13")
    a("s_nop 0")
    a("v_cvt_pk_bf16_f32 v13, v13, v13")
    a("v_lshlrev_b32 v13, 16, v13")
    a.label(f"{name}_sp")
    a("buffer_load_dwordx4 v[56:59], v10, s[24:27], s42 offen sc1")
    a("buffer_load_dwordx4 v[60:63], v11, s[24:27], s42 offen sc1")
    a("buffer_load_dwordx2 v[64:65], v12, s[24:27], 0 offen sc1")
    a("buffer_load_dwordx2 v[66:67], v12, s[24:27], 0 offen offset:2048 sc1")
    a("s_waitcnt vmcnt(0)")
    a("v_cmp_ne_u32 s[46:47], v57, v88")
    for r in (59, 61, 63, 65, 67):
        a(f"v_cmp_ne_u32 vcc, v{r}, v88")
        a("s_or_b64 s[46:47], s[46:47], vcc")
    a(f"s_cbranch_scc0 {name}_sd")
    a(f"s_sleep {SSLEEP}")
    a("s_sub_u32 s69, s69, 1")
    a(f"s_cbranch_scc0 {name}_sp")
    a("s_mov_b32 s69, 0")
    a.label(f"{name}_sd")
    stamp(a, 6)
    a("v_cndmask_b32 v60, 0, v60, s[54:55]")
    a("v_cndmask_b32 v62, 0, v62, s[54:55]")
    a("v_add_f32 v56, v56, v60")
    a("v_add_f32 v57, v58, v62")
    for sw in ("v_permlane16_swap_b32", "v_permlane32_swap_b32"):
        a("v_mov_b32 v58, v56")
        a("v_mov_b32 v59, v57")
        a("s_nop 1")
        a(f"{sw} v56, v58")
        a(f"{sw} v57, v59")
        a("s_nop 1")
        a("v_add_f32 v56, v56, v58")
        a("v_add_f32 v57, v57, v59")
    a("v_lshlrev_b32 v10, 3, v9")
    a("s_lshl_b32 s37, s32, 7")
    a("v_add_u32 v11, s37, v10")
    a("ds_write_b64 v11, v[56:57] offset:128")
    a("s_waitcnt lgkmcnt(0)")
    a("s_barrier")
    a("s_cmp_lg_u32 s32, 0")
    a(f"s_cbranch_scc1 {name}_fin2")
    for w in range(8):
        a(f"ds_read_b64 v[{32 + 2 * w}:{33 + 2 * w}], v10 offset:{128 + 128 * w}")
    a("s_waitcnt lgkmcnt(0)")
    for (d, s1) in ((32, 34), (36, 38), (40, 42), (44, 46), (32, 36), (40, 44), (32, 40)):
        a(f"v_add_f32 v{d}, v{d}, v{s1}")
        a(f"v_add_f32 v{d + 1}, v{d + 1}, v{s1 + 1}")
    y0, y1 = 32, 33
    a(f"v_cvt_pk_bf16_f32 v48, v{y0}, v{y1}")
    a(f"v_lshlrev_b32 v{y0}, 16, v48")
    a(f"v_and_b32 v{y1}, s53, v48")
    a(f"v_mul_f32 v{y0}, v{y0}, v13")
    a(f"v_mul_f32 v{y1}, v{y1}, v13")
    a(f"v_cvt_pk_bf16_f32 v48, v{y0}, v{y1}")
    a(f"v_lshlrev_b32 v{y0}, 16, v48")
    a(f"v_and_b32 v{y1}, s53, v48")
    a("v_lshlrev_b32 v49, 16, v66")
    a("v_and_b32 v50, s53, v66")
    a(f"v_add_f32 v{y0}, v49, v{y0}")
    a(f"v_add_f32 v{y1}, v50, v{y1}")
    a(f"v_cvt_pk_bf16_f32 v48, v{y0}, v{y1}")
    a(f"v_lshlrev_b32 v{y0}, 16, v48")
    a(f"v_and_b32 v{y1}, s53, v48")
    a("v_lshlrev_b32 v49, 16, v64")
    a("v_and_b32 v50, s53, v64")
    a(f"v_add_f32 v{y0}, v49, v{y0}")
    a(f"v_add_f32 v{y1}, v50, v{y1}")
    a(f"v_cvt_pk_bf16_f32 v48, v{y0}, v{y1}")
    a("s_lshl_b32 s39, s39, 10")
    a("s_lshl_b32 s41, s52, 6")
    a("s_add_u32 s39, s39, s41")
    a("v_lshlrev_b32 v10, 2, v9")
    a("v_add_u32 v10, s39, v10")
    a(f"buffer_store_dword v48, v10, s[20:23], 0 offen{OWT}")
    stamp(a, 7)
    a.label(f"{name}_fin2")
    a.label(f"{name}_fin")
    stamp_flush(a, 3, 8, 10, 11)
    if fused:
        return None
    a.label(f"{name}_done")
    a("s_endpgm")
    return kernel_desc(name, 128, 72, 128)


def gen_k5(a, name):
    kernel_begin(a, name)
    a("s_cmp_ge_u32 s2, 16")
    a(f"s_cbranch_scc1 {name}_done")
    stamp(a, 0)
    a("s_load_dwordx2 s[8:9], s[0:1], 80")
    a("s_load_dwordx2 s[10:11], s[0:1], 96")
    a("v_lshrrev_b32 v1, 6, v0")
    a("v_and_b32 v2, 63, v0")
    a("s_nop 0")
    a("v_readfirstlane_b32 s32, v1")
    a("v_lshlrev_b32 v5, 2, v0")
    a("v_lshrrev_b32 v3, 3, v0")
    a("v_and_b32 v4, 7, v0")
    a("v_lshlrev_b32 v6, 11, v3")
    a("v_lshl_add_u32 v6, v4, 4, v6")
    a("s_waitcnt lgkmcnt(0)")
    stamp(a, 1)
    srd(a, 20, 8, 9, S * D * 2)
    srd(a, 24, 10, 11, 14 << 20)
    srd(a, 28, 10, 11, WS_SLAB + NSL * 2048)
    a(f"s_mov_b32 s34, {WS_CAND}")
    a("buffer_load_dword v8, v5, s[24:27], s34 offen")
    a("s_lshl_b32 s34, s2, 7")
    a(f"s_add_u32 s34, s34, {WS_SLAB}")
    a("s_add_u32 s35, s34, 65536")
    a("buffer_load_dwordx4 v[16:19], v6, s[28:31], s34 offen")
    a("buffer_load_dwordx4 v[20:23], v6, s[28:31], s35 offen")
    a("s_waitcnt vmcnt(2)")
    stamp(a, 2)
    emit_winner(a, 8, 12, 9, 38)
    a("s_and_b32 s39, s38, 0xffff")
    a("s_sub_u32 s39, 2047, s39")
    a("s_lshr_b32 s40, s39, 3")
    a("s_lshl_b32 s40, s40, 11")
    a(f"s_add_u32 s40, s40, {WS_CROW}")
    a("s_lshl_b32 s41, s2, 6")
    a("s_add_u32 s40, s40, s41")
    a("v_lshlrev_b32 v9, 3, v4")
    a("v_add_u32 v9, s40, v9")
    a("buffer_load_dwordx2 v[24:25], v9, s[24:27], 0 offen")
    a("buffer_load_dwordx2 v[26:27], v9, s[24:27], 0 offen offset:1024")
    a("s_waitcnt vmcnt(2)")
    for i in range(4):
        a(f"v_add_f32 v{16 + i}, v{16 + i}, v{20 + i}")
    a("s_nop 1")
    for i in range(4):
        a(f"v_add_f32_dpp v{16 + i}, v{16 + i}, v{16 + i} row_ror:8 {DPP}")
    for i in range(4):
        a(f"v_mov_b32 v{20 + i}, v{16 + i}")
    a("s_nop 1")
    for i in range(4):
        a(f"v_permlane16_swap_b32 v{16 + i}, v{20 + i}")
    a("s_nop 1")
    for i in range(4):
        a(f"v_add_f32 v{16 + i}, v{16 + i}, v{20 + i}")
    for i in range(4):
        a(f"v_mov_b32 v{20 + i}, v{16 + i}")
    a("s_nop 1")
    for i in range(4):
        a(f"v_permlane32_swap_b32 v{16 + i}, v{20 + i}")
    a("s_nop 1")
    for i in range(4):
        a(f"v_add_f32 v{16 + i}, v{16 + i}, v{20 + i}")
    a("v_lshlrev_b32 v10, 4, v4")
    a("s_lshl_b32 s37, s32, 7")
    a("v_add_u32 v11, s37, v10")
    a("ds_write_b128 v11, v[16:19] offset:64")
    a("s_waitcnt lgkmcnt(0)")
    a("s_barrier")
    for w in range(4):
        a(f"ds_read_b128 v[{32 + 4 * w}:{35 + 4 * w}], v10 offset:{64 + 128 * w}")
    a("s_and_b32 s42, s38, 0xffff0000")
    a("s_xor_b32 s43, s42, 0x80000000")
    a("s_not_b32 s44, s42")
    a("s_and_b32 s44, s44, 0xffff0000")
    a("s_cmp_ge_u32 s42, 0x80000000")
    a("s_cselect_b32 s42, s43, s44")
    a("v_mov_b32 v12, s42")
    a("v_mul_f32 v13, 0xbfb8aa3b, v12")
    a("v_exp_f32 v13, v13")
    a("s_nop 0")
    a("v_add_f32 v13, 1.0, v13")
    a("v_rcp_f32 v13, v13")
    a("s_nop 0")
    a("v_cvt_pk_bf16_f32 v13, v13, v13")
    a("v_lshlrev_b32 v13, 16, v13")
    a("s_mov_b32 s53, 0xffff0000")
    a("s_waitcnt vmcnt(0) lgkmcnt(0)")
    stamp(a, 3)
    for i in range(4):
        a(f"v_add_f32 v{32 + i}, v{32 + i}, v{36 + i}")
        a(f"v_add_f32 v{40 + i}, v{40 + i}, v{44 + i}")
        a(f"v_add_f32 v{32 + i}, v{32 + i}, v{40 + i}")
    for i in range(2):
        y0, y1 = 32 + 2 * i, 33 + 2 * i
        a(f"v_cvt_pk_bf16_f32 v48, v{y0}, v{y1}")
        a(f"v_lshlrev_b32 v{y0}, 16, v48")
        a(f"v_and_b32 v{y1}, s53, v48")
        a(f"v_mul_f32 v{y0}, v{y0}, v13")
        a(f"v_mul_f32 v{y1}, v{y1}, v13")
        a(f"v_cvt_pk_bf16_f32 v48, v{y0}, v{y1}")
        a(f"v_lshlrev_b32 v{y0}, 16, v48")
        a(f"v_and_b32 v{y1}, s53, v48")
        a(f"v_lshlrev_b32 v49, 16, v{26 + i}")
        a(f"v_and_b32 v50, s53, v{26 + i}")
        a(f"v_add_f32 v{y0}, v49, v{y0}")
        a(f"v_add_f32 v{y1}, v50, v{y1}")
        a(f"v_cvt_pk_bf16_f32 v48, v{y0}, v{y1}")
        a(f"v_lshlrev_b32 v{y0}, 16, v48")
        a(f"v_and_b32 v{y1}, s53, v48")
        a(f"v_lshlrev_b32 v49, 16, v{24 + i}")
        a(f"v_and_b32 v50, s53, v{24 + i}")
        a(f"v_add_f32 v{y0}, v49, v{y0}")
        a(f"v_add_f32 v{y1}, v50, v{y1}")
        a(f"v_cvt_pk_bf16_f32 v{52 + i}, v{y0}, v{y1}")
    a("s_lshl_b32 s39, s39, 10")
    a("s_add_u32 s39, s39, s41")
    a("v_lshlrev_b32 v9, 3, v4")
    a("v_add_u32 v9, s39, v9")
    a("v_cmp_gt_u32 vcc, 8, v0")
    a("s_and_saveexec_b64 s[46:47], vcc")
    a(f"s_cbranch_execz {name}_fin")
    a("buffer_store_dwordx2 v[52:53], v9, s[20:23], 0 offen")
    a.label(f"{name}_fin")
    a("s_mov_b64 exec, -1")
    stamp_flush(a, 5, 4, 10, 11)
    a.label(f"{name}_done")
    a("s_endpgm")
    return kernel_desc(name, 64, 64, 64)


HEADER = open(__file__.rsplit("/", 1)[0] + "/cdna_kernels/" + NAME + ".s.ref").read().split("; Override launch")[0]


def build(path, **opt):
    global STAMP, KSLEEP, SSLEEP, FSLEEP, ASLEEP, ESLEEP, OWT, KSPREAD, WEARLY, SENT, PSLEEP
    SENT = opt.get('sent', 0)
    PSLEEP = opt.get('ps', 2)
    WEARLY = opt.get("wearly", 0)
    KSPREAD = opt.get('ksp', 1)
    ESLEEP = opt.get('es', 4)
    OWT = {0: '', 1: ' sc0 sc1', 2: ' nt'}[opt.get('owt', 0)]
    STAMP = opt.get('stamp', 0)
    KSLEEP, SSLEEP, FSLEEP, ASLEEP = opt.get('ks', 1), opt.get('ss', 1), opt.get('fs', 1), opt.get('as', 8)
    a = Asm()
    only = opt.get("only", 0)
    launches = [
        ("k1_kernel", 256, 512, 163840),
        ("k2_kernel", 256, 512, 163840),
        ("k3_kernel", 256, 512, 64),
        ("k4_kernel", NSL, 512, 18432),
        ("k5_kernel", 16, 256, 1024),
    ]
    if opt.get("fused", 2) == 1:
        launches = launches[:2] + [("kt_kernel", 256, 512, 4096 + 16384)]
    if opt.get("fused", 2) == 2:
        launches = launches[:2]
    if opt.get("f12", 1):
        launches = launches[:1] + launches[2:]
    if only:
        launches = [launches[int(ch) - 1] for ch in str(only)]
    hdr = HEADER
    for (k, g, b, l) in launches:
        hdr += f"; @launch kernel={k} grid=({g},1,1) block=({b},1,1) lds={l}\n"
    a.raw('.amdgcn_target "amdgcn-amd-amdhsa--gfx950"')
    descs = []
    if opt.get("k1g", 0):
        descs.append(gen_k1g(a, "k1_kernel", wt=opt.get("wt1", 1), PRO=opt.get("PRO1", 3), U1=opt.get("U1", 11), wk=opt.get("wk1", 1), cpf=opt.get("cpf", 1), SPOS=opt.get("SPOS", 0), NPOS=opt.get("NPOS", 1)))
    else:
        descs.append(gen_k1e(a, "k1_kernel", wt=opt.get("wt1", 1), PRO=opt.get("PRO1", 3), pf=opt.get("prefetch", 1), pace=opt.get("pace", 1), U1=opt.get("U1", 10), U2=opt.get("U2", 12), pfq=opt.get("pfq", 2), pol=opt.get("pol1", 0), ppol=opt.get("ppol", 0), tlb=opt.get("tlb", 0), UC=opt.get("UC", 13), vst=opt.get("vst", 0), swap=opt.get("swap", 1), wk1=opt.get("wk1", 1), early=opt.get("early", 0), cpre=opt.get("cpre", 0), fuse2=((lambda a, n: gen_k2c(a, n, LA=opt.get("LA", 1), wt=opt.get("wt2", 1), PRO=opt.get("PRO2", 3), rot=opt.get("rot", 1), BARPOS=opt.get("BARPOS", 1), RSTEP=opt.get("RSTEP", 1), wpf=opt.get("wpf", 0), wpf2=opt.get("wpf2", 16), pol=opt.get("pol2", 0), fuse3=(opt.get("fused", 2) == 2), etouch=opt.get("etouch", 0), swap=opt.get("swap", 1), cw=opt.get("cw", -1), fused_in=1)) if opt.get("f12", 1) else None)))
    if not opt.get("f12", 1):
        descs.append(gen_k2c(a, "k2_kernel", LA=opt.get("LA", 1), wt=opt.get("wt2", 1), PRO=opt.get("PRO2", 3), rot=opt.get("rot", 1), BARPOS=opt.get("BARPOS", 1), RSTEP=opt.get("RSTEP", 1), wpf=opt.get("wpf", 0), wpf2=opt.get("wpf2", 16), pol=opt.get("pol2", 0), fuse3=(opt.get("fused", 2) == 2), etouch=opt.get("etouch", 0), swap=opt.get("swap", 1), cw=opt.get("cw", -1)))
    if opt.get("fused", 2) == 1:
        descs.append(gen_kt(a, "kt_kernel"))
    elif opt.get("fused", 2) == 0:
        descs.append(gen_k3b(a, "k3_kernel", wpf=opt.get("wpf3", 0)))
        descs.append(gen_k4b(a, "k4_kernel"))
        descs.append(gen_k5(a, "k5_kernel"))
    a.label("code_end")
    open(path, "w").write(hdr + a.text() + "".join(descs))


if __name__ == "__main__":
    out = sys.argv[1] if len(sys.argv) > 1 else "cdna_kernels/" + NAME + ".s"
    opt = {}
    for kv in sys.argv[2:]:
        k, v = kv.split("=")
        opt[k] = int(v)
    build(out, **opt)
```

```python
import sys

NAME = "sequential_preLN__spectral_fnet__moe_arch_mod__prompt"

WS_AT = 0
WS_Y = 4 << 20
WS_CAND = 12 << 20
WS_CROW = (12 << 20) + 4096
WS_SLAB = (13 << 20)
WS_SIZE = 268435456

S, D, F = 2048, 512, 1792


class Asm:
    def __init__(self):
        self.lines = []

    def __call__(self, s):
        self.lines.append("    " + s)

    def label(self, l):
        self.lines.append(l + ":")

    def raw(self, s):
        self.lines.append(s)

    def text(self):
        return "\n".join(self.lines) + "\n"


class VM:
    def __init__(self, a):
        self.a = a
        self.q = []

    def issue(self, tag):
        self.q.append(tag)

    def wait(self, tag):
        idx = max(i for i, t in enumerate(self.q) if t == tag) if tag in self.q else None
        if idx is None:
            return
        n = len(self.q) - 1 - idx
        assert n <= 63
        self.a(f"s_waitcnt vmcnt({n})")
        self.q = self.q[idx + 1:]

    def wait_all(self):
        self.a("s_waitcnt vmcnt(0)")
        self.q = []


def srd(a, d, lo, hi, nbytes):
    a(f"s_mov_b32 s{d}, s{lo}")
    a(f"s_and_b32 s{d+1}, s{hi}, 0xffff")
    a(f"s_mov_b32 s{d+2}, {nbytes}")
    a(f"s_mov_b32 s{d+3}, 0x00020000")


def kernel_begin(a, name):
    a.raw(".text")
    a.raw(f".globl {name}")
    a.raw(".p2align 8")
    a.raw(f".type {name},@function")
    a.label(name)


def kernel_desc(name, vgpr, sgpr, accum):
    return f""".section .rodata,"a"
.p2align 6
.amdhsa_kernel {name}
  .amdhsa_next_free_vgpr {vgpr}
  .amdhsa_next_free_sgpr {102 if STAMP else sgpr}
  .amdhsa_accum_offset {accum}
  .amdhsa_group_segment_fixed_size 0
  .amdhsa_kernarg_size 104
  .amdhsa_user_sgpr_count 2
  .amdhsa_user_sgpr_kernarg_segment_ptr 1
  .amdhsa_system_sgpr_workgroup_id_x 1
  .amdhsa_float_denorm_mode_32 3
.end_amdhsa_kernel
"""


STAMP = 0
WS_STAMP = 16 << 20
_stamp_kid = {}


def stamp(a, i):
    if STAMP == 1:
        a(f"s_memrealtime s[{70 + 2 * i}:{71 + 2 * i}]")
    elif STAMP == 2:
        a(f"s_memtime s[{70 + 2 * i}:{71 + 2 * i}]")


def stamp_flush(a, kid, n, ws_lo, ws_hi, wave_sgpr="s32"):
    if not STAMP:
        return
    a("s_waitcnt vmcnt(0) lgkmcnt(0)")
    stamp(a, n)
    a(f"s_mov_b32 s92, s{ws_lo}")
    a(f"s_and_b32 s93, s{ws_hi}, 0xffff")
    a(f"s_mov_b32 s94, {WS_SIZE}")
    a("s_mov_b32 s95, 0x00020000")
    a(f"s_add_u32 s96, s2, {kid * 512}")
    a("s_lshl_b32 s96, s96, 4")
    a(f"s_add_u32 s96, s96, {wave_sgpr}")
    a("s_lshl_b32 s96, s96, 7")
    a(f"s_add_u32 s96, s96, {WS_STAMP}")
    a("s_waitcnt lgkmcnt(0)")
    a("v_mov_b32 v0, 0")
    for i in range(n + 1):
        a(f"v_mov_b32 v2, s{70 + 2 * i}")
        a(f"v_mov_b32 v3, s{71 + 2 * i}")
        a(f"buffer_store_dwordx2 v[2:3], v0, s[92:95], s96 offen offset:{8 * i}")
        a("s_nop 1")


ESLEEP = 4
PBLK = 0
SENT = 0
PSLEEP = 2
WEARLY = 1
KSPREAD = 0
OWT = ''
DPP = "row_mask:0xf bank_mask:0xf"


def emit_perm32(a, dst, src, t):
    a(f"v_and_b32 v{dst}, 3, v{src}")
    a(f"v_lshrrev_b32 v{t}, 3, v{src}")
    a(f"v_lshl_or_b32 v{dst}, v{t}, 2, v{dst}")
    a(f"v_bfe_u32 v{t}, v{src}, 2, 1")
    a(f"v_lshl_or_b32 v{dst}, v{t}, 4, v{dst}")


def wave_allreduce(a, op, v, t):
    a("s_nop 1")
    a(f"{op}_dpp v{v}, v{v}, v{v} quad_perm:[1,0,3,2] {DPP}")
    a("s_nop 1")
    a(f"{op}_dpp v{v}, v{v}, v{v} quad_perm:[2,3,0,1] {DPP}")
    a("s_nop 1")
    a(f"{op}_dpp v{v}, v{v}, v{v} row_half_mirror {DPP}")
    a("s_nop 1")
    a(f"{op}_dpp v{v}, v{v}, v{v} row_mirror {DPP}")
    a(f"v_mov_b32 v{t}, v{v}")
    a("s_nop 1")
    a(f"v_permlane16_swap_b32 v{v}, v{t}")
    a("s_nop 1")
    a(f"{op} v{v}, v{v}, v{t}")
    a(f"v_mov_b32 v{t}, v{v}")
    a("s_nop 1")
    a(f"v_permlane32_swap_b32 v{v}, v{t}")
    a("s_nop 1")
    a(f"{op} v{v}, v{v}, v{t}")


def gen_k1(a, name, prefetch=True):
    kernel_begin(a, name)
    a("s_cmp_ge_u32 s2, 256")
    a(f"s_cbranch_scc1 {name}_done")
    stamp(a, 0)
    a("s_load_dwordx2 s[4:5], s[0:1], 0")
    a("s_load_dwordx4 s[8:11], s[0:1], 24")
    a("s_load_dwordx2 s[6:7], s[0:1], 96")
    a("s_load_dwordx4 s[36:39], s[0:1], 8")
    a("s_load_dwordx4 s[40:43], s[0:1], 56")
    a("s_load_dwordx2 s[44:45], s[0:1], 72")
    a("s_and_b32 s3, s2, 7")
    a("s_lshr_b32 s28, s2, 3")
    a("s_and_b32 s29, s28, 3")
    a("s_lshl_b32 s30, s3, 2")
    a("s_add_u32 s30, s30, s29")
    a("s_lshr_b32 s31, s28, 2")
    a("v_lshrrev_b32 v1, 6, v0")
    a("v_and_b32 v2, 63, v0")
    a("s_nop 0")
    a("v_readfirstlane_b32 s32, v1")
    a("v_lshrrev_b32 v3, 3, v2")
    a("v_and_b32 v4, 7, v2")
    a("s_waitcnt lgkmcnt(0)")
    stamp(a, 1)
    srd(a, 12, 4, 5, S * D * 2)
    a("s_cmp_ge_u32 s31, 4")
    a("s_cselect_b32 s8, s10, s8")
    a("s_cselect_b32 s9, s11, s9")
    srd(a, 16, 8, 9, D * D * 2)
    srd(a, 20, 6, 7, 4 << 20)
    a("s_lshl_b32 s33, s30, 6")
    a("s_lshl_b32 s34, s32, 3")
    a("s_add_u32 s33, s33, s34")
    a("s_lshl_b32 s33, s33, 10")
    a("v_lshlrev_b32 v5, 10, v3")
    a("v_lshl_add_u32 v5, v4, 4, v5")
    XR = 32
    for j in range(8):
        a(f"buffer_load_dwordx4 v[{XR+4*j}:{XR+4*j+3}], v5, s[12:15], s33 offen offset:{128*j}")
    a("v_lshrrev_b32 v6, 4, v2")
    a("v_xor_b32 v6, v6, v4")
    a("v_xor_b32 v7, 4, v6")
    a("v_lshlrev_b32 v8, 10, v3")
    a("v_lshl_add_u32 v6, v6, 4, v8")
    a("v_lshl_add_u32 v7, v7, 4, v8")
    a("s_cmp_ge_u32 s32, 4")
    a(f"s_cbranch_scc1 {name}_helper")
    a("s_and_b32 s35, s31, 3")
    a("s_lshl_b32 s35, s35, 7")
    a("s_lshl_b32 s34, s32, 5")
    a("s_add_u32 s35, s35, s34")
    a("s_lshl_b32 s35, s35, 10")
    a("s_mul_i32 s46, s32, 24576")
    a("s_add_u32 s46, s46, 65536")

    def dma_slot(kk):
        for i in range(4):
            a(f"s_add_u32 m0, s46, {(kk % 6) * 4096 + i * 1024}")
            a(f"s_add_u32 s47, s35, {i * 8192 + kk * 128}")
            a(f"buffer_load_dwordx4 v{6 + (i & 1)}, s[16:19], s47 offen lds")

    for kk in range(6):
        dma_slot(kk)
    a("s_waitcnt vmcnt(24)")
    a(f"s_branch {name}_ln")
    a.label(f"{name}_helper")
    npf = 0
    if prefetch:
        a("s_and_b32 s48, s3, 1")
        a("s_cmp_eq_u32 s48, 1")
        a("s_cselect_b32 s36, s38, s36")
        a("s_cselect_b32 s37, s39, s37")
        srd(a, 24, 36, 37, S * S * 2)
        a("s_lshr_b32 s48, s3, 2")
        a("s_lshl_b32 s48, s48, 10")
        a("s_lshl_b32 s49, s28, 5")
        a("s_add_u32 s48, s48, s49")
        a("s_sub_u32 s49, s32, 4")
        a("s_lshl_b32 s49, s49, 3")
        a("s_add_u32 s48, s48, s49")
        a("s_lshl_b32 s48, s48, 12")
        a("s_bfe_u32 s49, s3, 0x10001")
        a("s_lshl_b32 s49, s49, 11")
        a("s_add_u32 s48, s48, s49")
        a("v_lshrrev_b32 v9, 5, v2")
        a("v_lshlrev_b32 v9, 12, v9")
        a("v_and_b32 v129, 31, v2")
        a("v_lshl_add_u32 v9, v129, 6, v9")
        a("s_waitcnt vmcnt(0)")
        for i in range(4):
            a(f"s_add_u32 s49, s48, {i * 8192}")
            a(f"buffer_load_dword v{130 + i}, v9, s[24:27], s49 offen")
            npf += 1
    a(f"s_waitcnt vmcnt({npf})")
    a.label(f"{name}_ln")
    stamp(a, 2)
    a("s_mov_b32 s50, 0x3f803f80")
    a("s_mov_b32 s51, 0x00003f80")
    a("s_mov_b32 s52, 0x3f800000")
    a("s_mov_b32 s53, 0xffff0000")
    a("v_mov_b32 v16, 0")
    a("v_mov_b32 v17, 0")
    for j in range(32):
        a(f"v_dot2_f32_bf16 v{16 + (j & 1)}, v{XR + j}, s50, v{16 + (j & 1)}")
    a("s_nop 2")
    a("v_add_f32 v16, v16, v17")

    def red8(v):
        a("s_nop 1")
        a(f"v_add_f32_dpp v{v}, v{v}, v{v} quad_perm:[1,0,3,2] {DPP}")
        a("s_nop 1")
        a(f"v_add_f32_dpp v{v}, v{v}, v{v} quad_perm:[2,3,0,1] {DPP}")
        a("s_nop 1")
        a(f"v_add_f32_dpp v{v}, v{v}, v{v} row_half_mirror {DPP}")

    red8(16)
    a("v_mul_f32 v16, 0x3b000000, v16")
    a("v_cvt_pk_bf16_f32 v17, v16, v16")
    a("v_lshlrev_b32 v17, 16, v17")
    a("v_sub_f32 v18, 0, v17")
    a("v_sub_f32 v19, v16, v17")
    a("v_mov_b32 v20, 0")
    a("v_mov_b32 v21, 0")
    for j in range(32):
        t = 22 + 2 * (j & 3)
        a(f"v_dot2_f32_bf16 v{t}, v{XR + j}, s51, v18")
        a(f"v_dot2_f32_bf16 v{t + 1}, v{XR + j}, s52, v18")
        if j >= 1:
            tp = 22 + 2 * ((j - 1) & 3)
            a(f"v_fmac_f32 v20, v{tp}, v{tp}")
            a(f"v_fmac_f32 v21, v{tp + 1}, v{tp + 1}")
            a(f"v_cvt_pk_bf16_f32 v{XR + j - 1}, v{tp}, v{tp + 1}")
    tp = 22 + 2 * (31 & 3)
    a("s_nop 2")
    a(f"v_fmac_f32 v20, v{tp}, v{tp}")
    a(f"v_fmac_f32 v21, v{tp + 1}, v{tp + 1}")
    a(f"v_cvt_pk_bf16_f32 v{XR + 31}, v{tp}, v{tp + 1}")
    a("v_add_f32 v20, v20, v21")
    red8(20)
    a("v_mul_f32 v20, 0x3b000000, v20")
    a("v_fma_f32 v20, -v19, v19, v20")
    a("v_max_f32 v20, 0, v20")
    a("v_cvt_pk_bf16_f32 v20, v20, v20")
    a("v_lshlrev_b32 v20, 16, v20")
    a("v_add_f32 v20, 0x3727c5ac, v20")
    a("v_cvt_pk_bf16_f32 v20, v20, v20")
    a("v_lshlrev_b32 v20, 16, v20")
    a("v_sqrt_f32 v20, v20")
    a("s_nop 0")
    a("v_cvt_pk_bf16_f32 v20, v20, v20")
    a("v_lshlrev_b32 v20, 16, v20")
    a("v_rcp_f32 v20, v20")
    a("s_nop 0")
    for j in range(32):
        t = 22 + 2 * (j & 3)
        a(f"v_lshlrev_b32 v{t}, 16, v{XR + j}")
        a(f"v_and_b32 v{t + 1}, s53, v{XR + j}")
        a(f"v_mul_f32 v{t}, v{t}, v20")
        a(f"v_mul_f32 v{t + 1}, v{t + 1}, v20")
        a(f"v_cvt_pk_bf16_f32 v{XR + j}, v{t}, v{t + 1}")
    a("s_lshl_b32 s34, s32, 3")
    a("v_add_u32 v9, s34, v3")
    a("v_bfe_u32 v10, v9, 1, 3")
    a("v_xor_b32 v10, v10, v4")
    a("v_lshlrev_b32 v10, 4, v10")
    a("v_lshl_add_u32 v10, v9, 7, v10")
    for j in range(8):
        a(f"ds_write_b128 v10, v[{XR + 4 * j}:{XR + 4 * j + 3}] offset:{8192 * j}")
    stamp(a, 3)
    a("s_waitcnt lgkmcnt(0)")
    a("s_barrier")
    stamp(a, 4)
    a("s_cmp_ge_u32 s32, 4")
    a(f"s_cbranch_scc1 {name}_fin")
    a("v_and_b32 v9, 31, v2")
    emit_perm32(a, 10, 9, 11)
    a("v_bfe_u32 v11, v10, 1, 3")
    a("v_lshrrev_b32 v12, 5, v2")
    a("v_xor_b32 v11, v11, v12")
    a("v_lshlrev_b32 v11, 4, v11")
    a("v_lshl_add_u32 v11, v10, 7, v11")
    for c in range(4):
        a(f"v_xor_b32 v{12 + c}, {c * 32}, v11")
        a(f"v_add_u32 v{16 + c}, s46, v{12 + c}")
    ACC = 64
    FR = [96, 108, 120]
    for i in range(32):
        a(f"v_mov_b32 v{ACC + i}, 0")
    units = [(kk, c) for kk in range(8) for c in range(4)]
    vq = [kk for kk in range(6) for _ in range(4)]

    def wait_slot(kk):
        nonlocal vq
        if kk in vq:
            idx = max(i for i, t in enumerate(vq) if t == kk)
            a(f"s_waitcnt vmcnt({len(vq) - 1 - idx})")
            vq = vq[idx + 1:]

    def reads(n):
        kk, c = units[n]
        f = FR[n % 3]
        if c == 0:
            wait_slot(kk)
        a(f"ds_read_b128 v[{f}:{f + 3}], v{16 + c} offset:{(kk % 6) * 4096}")
        a(f"ds_read_b128 v[{f + 4}:{f + 7}], v{12 + c} offset:{kk * 8192}")
        a(f"ds_read_b128 v[{f + 8}:{f + 11}], v{12 + c} offset:{kk * 8192 + 4096}")

    reads(0)
    reads(1)
    for n in range(len(units)):
        kk, c = units[n]
        if n + 2 < len(units):
            reads(n + 2)
            a("s_waitcnt lgkmcnt(6)")
        elif n + 1 < len(units):
            a("s_waitcnt lgkmcnt(3)")
        else:
            a("s_waitcnt lgkmcnt(0)")
        f = FR[n % 3]
        a(f"v_mfma_f32_32x32x16_bf16 v[{ACC}:{ACC + 15}], v[{f + 4}:{f + 7}], v[{f}:{f + 3}], v[{ACC}:{ACC + 15}]")
        a(f"v_mfma_f32_32x32x16_bf16 v[{ACC + 16}:{ACC + 31}], v[{f + 8}:{f + 11}], v[{f}:{f + 3}], v[{ACC + 16}:{ACC + 31}]")
        if c == 3 and kk + 6 < 8:
            dma_slot(kk + 6)
            vq += [kk + 6] * 4
    stamp(a, 5)
    a("s_lshl_b32 s34, s31, 2")
    a("s_add_u32 s34, s34, s32")
    a("s_lshl_b32 s34, s34, 6")
    a("s_lshl_b32 s33, s30, 1")
    a("s_add_u32 s34, s34, s33")
    a("s_lshl_b32 s34, s34, 11")
    a("v_lshlrev_b32 v9, 4, v2")
    a("s_nop 7")
    a("s_nop 3")
    for sh in range(2):
        for i in range(8):
            a(f"v_cvt_pk_bf16_f32 v{32 + 8 * sh + i}, v{ACC + 16 * sh + 2 * i}, v{ACC + 16 * sh + 2 * i + 1}")
    for sh in range(2):
        for u in range(2):
            r = 32 + 8 * sh + 4 * u
            a(f"buffer_store_dwordx4 v[{r}:{r + 3}], v9, s[20:23], s34 offen offset:{sh * 2048 + u * 1024}")
    a.label(f"{name}_fin")
    stamp_flush(a, 1, 6, 6, 7)
    a.label(f"{name}_done")
    a("s_endpgm")
    return kernel_desc(name, 136, 64, 136)


def gen_k2(a, name, NS=9, ED=3, nomfma=0, noload=0, spread=0, noC=0, noE=0):
    kernel_begin(a, name)
    a("s_cmp_ge_u32 s2, 256")
    a(f"s_cbranch_scc1 {name}_done")
    stamp(a, 0)
    a("s_load_dwordx4 s[4:7], s[0:1], 8")
    a("s_load_dwordx2 s[8:9], s[0:1], 96")
    a("s_and_b32 s3, s2, 7")
    a("s_lshr_b32 s28, s2, 3")
    a("s_and_b32 s29, s3, 1")
    a("s_lshr_b32 s30, s3, 1")
    a("s_lshl_b32 s30, s30, 2")
    a("s_and_b32 s31, s28, 3")
    a("s_add_u32 s30, s30, s31")
    a("s_lshr_b32 s31, s28, 2")
    a("v_lshrrev_b32 v200, 6, v0")
    a("v_and_b32 v201, 63, v0")
    a("s_nop 0")
    a("v_readfirstlane_b32 s32, v200")
    a("v_lshrrev_b32 v202, 3, v201")
    a("v_and_b32 v203, 7, v201")
    a("v_lshrrev_b32 v204, 4, v201")
    a("v_xor_b32 v204, v204, v203")
    a("v_xor_b32 v205, 4, v204")
    a("v_lshlrev_b32 v206, 12, v202")
    a("v_lshl_add_u32 v204, v204, 4, v206")
    a("v_lshl_add_u32 v205, v205, 4, v206")
    a("v_lshlrev_b32 v206, 4, v201")
    a("s_waitcnt lgkmcnt(0)")
    stamp(a, 1)
    a("s_cmp_eq_u32 s29, 1")
    a("s_cselect_b32 s4, s6, s4")
    a("s_cselect_b32 s5, s7, s5")
    srd(a, 12, 4, 5, S * S * 2)
    srd(a, 16, 8, 9, 8 << 20)
    a("s_lshl_b32 s35, s30, 19")
    a("s_lshl_b32 s34, s32, 10")
    a("s_add_u32 s35, s35, s34")
    for j in range(4):
        a(f"s_add_u32 s34, s32, {j}")
        a("s_and_b32 s34, s34, 3")
        a(f"s_mov_b32 s{52 + j}, s34")
        a("s_lshl_b32 s34, s34, 17")
        a(f"s_add_u32 s{40 + j}, s35, s34")
    a("s_lshl_b32 s36, s29, 4")
    a("s_lshl_b32 s34, s31, 1")
    a("s_add_u32 s36, s36, s34")
    a("s_lshl_b32 s36, s36, 6")
    a("s_lshl_b32 s34, s32, 4")
    a("s_add_u32 s36, s36, s34")
    a("s_lshl_b32 s36, s36, 11")
    a("s_add_u32 s37, s36, 131072")
    RING = NS * 4096
    a(f"s_mul_i32 s46, s32, {RING}")
    vm = VM(a)

    pend = []

    def dma_one(n, i):
        kk, j = n // 4, n % 4
        if noload or noC:
            return
        a(f"s_add_u32 m0, s46, {(n % NS) * 4096 + i * 1024}")
        a(f"s_add_u32 s47, s{40 + j}, {(i * 8) * 4096 + kk * 128}")
        a(f"buffer_load_dwordx4 v{204 + (i & 1)}, s[12:15], s47 offen lds")
        vm.issue(("C", n))

    def e_one(kk, et2, c):
        if noload or noE:
            return
        st = kk % ED
        r = st * 32 + et2 * 16 + c * 4
        a(f"s_add_u32 s48, s{36 + et2}, {kk * 4096}")
        a(f"buffer_load_dwordx4 a[{r}:{r + 3}], v206, s[16:19], s48 offen offset:{c * 1024}")
        vm.issue(("E", kk))

    def dma_slot(n, defer=False):
        for i in range(4):
            if defer:
                pend.append(lambda n=n, i=i: dma_one(n, i))
            else:
                dma_one(n, i)

    def e_loads(kk, defer=False):
        for et2 in range(2):
            for c in range(4):
                if defer:
                    pend.append(lambda kk=kk, et2=et2, c=c: e_one(kk, et2, c))
                else:
                    e_one(kk, et2, c)

    def flush_pend(pred=None, maxn=None):
        cnt = 0
        while pend and (maxn is None or cnt < maxn):
            pend.pop(0)()
            cnt += 1

    nslot_issued = 0
    for kk in range(ED):
        e_loads(kk)
        for tt in range(4):
            if nslot_issued < NS:
                dma_slot(nslot_issued)
                nslot_issued += 1
    while nslot_issued < NS:
        dma_slot(nslot_issued)
        nslot_issued += 1
    stamp(a, 2)
    a("v_and_b32 v207, 31, v201")
    a("v_bfe_u32 v208, v207, 1, 3")
    a("v_lshrrev_b32 v209, 5, v201")
    a("v_lshlrev_b32 v209, 1, v209")
    a("v_xor_b32 v208, v208, v209")
    a("v_lshlrev_b32 v208, 4, v208")
    a("v_lshl_add_u32 v208, v207, 7, v208")
    for c in range(4):
        x = ((c >> 1) * 4 + (c & 1)) << 4
        a(f"v_xor_b32 v{210 + c}, {x}, v208")
        a(f"v_add_u32 v{210 + c}, s46, v{210 + c}")
    for i in range(128):
        a(f"v_mov_b32 v{i}, 0")
    def pend_has(tag):
        return any(getattr(p, '__defaults__', (None,))[0] == tag[1] and len(p.__defaults__) == (2 if tag[0] == 'C' else 3) for p in pend)

    units = [(n, c) for n in range(32) for c in range(4)]
    NF = 6
    LOOKAHEAD = 4

    def reads(un):
        n, c = units[un]
        if c == 0:
            assert noload or noC or vm.q.count(("C", n)) == 4 or ("C", n) not in vm.q and n < nslot_issued and not pend_has(("C", n))
            vm.wait(("C", n))
        f = 128 + 4 * (un % NF)
        a(f"ds_read_b128 v[{f}:{f + 3}], v{210 + c} offset:{(n % NS) * 4096}")

    for un in range(LOOKAHEAD):
        reads(un)
    for un in range(len(units)):
        n, c = units[un]
        kk, j = n // 4, n % 4
        if un + LOOKAHEAD < len(units):
            reads(un + LOOKAHEAD)
            a(f"s_waitcnt lgkmcnt({LOOKAHEAD})")
        else:
            a(f"s_waitcnt lgkmcnt({len(units) - 1 - un})")
        if j == 0 and c == 0:
            assert not pend_has(("E", kk))
            vm.wait(("E", kk))
        f = 128 + 4 * (un % NF)
        st = kk % ED
        if un == 0:
            stamp(a, 3)
        if un == 64:
            stamp(a, 4)
        for et2 in range(2):
            acc = (j * 2 + et2) * 16
            r = st * 32 + et2 * 16 + c * 4
            if not nomfma:
                a(f"v_mfma_f32_32x32x16_bf16 v[{acc}:{acc + 15}], a[{r}:{r + 3}], v[{f}:{f + 3}], v[{acc}:{acc + 15}]")
            if spread:
                flush_pend(maxn=1)
        if c == 3:
            if nslot_issued < 32:
                dma_slot(nslot_issued, defer=bool(spread))
                nslot_issued += 1
            if j == 3 and kk + ED < 8:
                e_loads(kk + ED, defer=bool(spread))
    stamp(a, 5)
    a("s_barrier")
    stamp(a, 6)
    for j in range(1, 4):
        a(f"s_mul_i32 s34, s{52 + j}, 24576")
        a(f"s_add_u32 s34, s34, {(j - 1) * 8192}")
        a(f"v_add_u32 v{214 + j}, s34, v206")
    a("s_mul_i32 s34, s32, 24576")
    a("v_add_u32 v214, s34, v206")
    a("s_nop 7")
    for j in range(1, 4):
        for q in range(8):
            r = j * 32 + 4 * q
            a(f"ds_write_b128 v{214 + j}, v[{r}:{r + 3}] offset:{q * 1024}")
    a("s_waitcnt lgkmcnt(0)")
    a("s_barrier")
    stamp(a, 7)
    for j in range(1, 4):
        for q in range(8):
            r = j * 32 + 4 * q
            a(f"ds_read_b128 v[{r}:{r + 3}], v214 offset:{(j - 1) * 8192 + q * 1024}")
    a("s_lshl_b32 s34, s30, 7")
    a("s_lshl_b32 s33, s32, 5")
    a("s_add_u32 s34, s34, s33")
    a("s_lshl_b32 s34, s34, 10")
    a("s_lshl_b32 s33, s31, 7")
    a("s_add_u32 s34, s34, s33")
    a("s_lshl_b32 s33, s29, 21")
    a("s_add_u32 s34, s34, s33")
    a(f"s_add_u32 s34, s34, {WS_Y}")
    a("v_lshrrev_b32 v209, 5, v201")
    a("v_lshlrev_b32 v209, 5, v209")
    a("v_lshl_add_u32 v209, v207, 10, v209")
    for j in range(1, 4):
        a(f"s_waitcnt lgkmcnt({min(15, (3 - j) * 8)})")
        for i in range(32):
            a(f"v_add_f32 v{i}, v{i}, v{j * 32 + i}")
    for i in range(16):
        a(f"v_cvt_pk_bf16_f32 v{128 + i}, v{2 * i}, v{2 * i + 1}")
    for et2 in range(2):
        for hh in range(2):
            r = 128 + et2 * 8 + hh * 4
            a(f"buffer_store_dwordx4 v[{r}:{r + 3}], v209, s[16:19], s34 offen offset:{et2 * 64 + hh * 16}")
    stamp_flush(a, 2, 8, 8, 9)
    a.label(f"{name}_done")
    a("s_endpgm")
    return kernel_desc(name, 224 + 32 * ED, 64, 224)


WS_P = 4 << 20


def gen_k2b(a, name, NSTG=5, LA=2, nomfma=0, noread=0, nodma=0, nostore=0):
    kernel_begin(a, name)
    a("s_cmp_ge_u32 s2, 256")
    a(f"s_cbranch_scc1 {name}_done")
    stamp(a, 0)
    a("s_load_dwordx4 s[4:7], s[0:1], 8")
    a("s_load_dwordx2 s[8:9], s[0:1], 96")
    a("s_and_b32 s3, s2, 7")
    a("s_lshr_b32 s28, s2, 3")
    a("s_and_b32 s29, s3, 1")
    a("s_bfe_u32 s27, s3, 0x10001")
    a("s_lshr_b32 s30, s3, 2")
    a("s_lshl_b32 s30, s30, 3")
    a("s_and_b32 s31, s28, 7")
    a("s_add_u32 s30, s30, s31")
    a("s_lshr_b32 s31, s28, 3")
    a("v_lshrrev_b32 v1, 6, v0")
    a("v_and_b32 v2, 63, v0")
    a("s_nop 0")
    a("v_readfirstlane_b32 s32, v1")
    a("v_lshlrev_b32 v3, 4, v2")
    a("s_waitcnt lgkmcnt(0)")
    stamp(a, 1)
    a("s_cmp_eq_u32 s29, 1")
    a("s_cselect_b32 s4, s6, s4")
    a("s_cselect_b32 s5, s7, s5")
    srd(a, 12, 4, 5, S * S * 2)
    srd(a, 16, 8, 9, 12 << 20)
    a("s_cmp_lt_u32 s32, 4")
    a(f"s_cbranch_scc1 {name}_cons")
    a("s_sub_u32 s33, s32, 4")
    a("v_lshrrev_b32 v4, 3, v2")
    a("v_and_b32 v5, 7, v2")
    a("v_lshrrev_b32 v6, 4, v2")
    a("v_xor_b32 v6, v6, v5")
    a("v_xor_b32 v7, 4, v6")
    a("v_lshlrev_b32 v4, 12, v4")
    a("v_lshl_add_u32 v6, v6, 4, v4")
    a("v_lshl_add_u32 v7, v7, 4, v4")
    a("v_mov_b32 v8, v6")
    a(f"v_add_u32 v9, {32768 - 1024}, v7")
    a(f"v_add_u32 v10, {2 * (32768 - 1024)}, v6")
    a(f"v_add_u32 v11, {3 * (32768 - 1024)}, v7")
    a("s_lshl_b32 s35, s30, 19")
    a("s_lshl_b32 s34, s33, 17")
    a("s_add_u32 s35, s35, s34")
    a("s_lshl_b32 s34, s27, 11")
    a("s_add_u32 s35, s35, s34")
    a("s_lshl_b32 s36, s29, 4")
    a("s_lshl_b32 s34, s31, 2")
    a("s_add_u32 s36, s36, s34")
    a("s_add_u32 s36, s36, s33")
    a("s_lshl_b32 s36, s36, 6")
    a("s_lshl_b32 s34, s27, 5")
    a("s_add_u32 s36, s36, s34")
    a("s_lshl_b32 s36, s36, 11")
    a("s_lshl_b32 s37, s33, 12")

    def load_stage(s):
        slot = (s % NSTG) * 32768
        a(f"s_add_u32 m0, s37, {slot}")
        a(f"s_add_u32 s38, s35, {s * 128}")
        for i in range(4):
            if not nodma:
                a(f"buffer_load_dwordx4 v{8 + i}, s[12:15], s38 offen offset:{i * 1024} lds")
        a(f"s_add_u32 m0, s37, {slot + 16384}")
        a(f"s_add_u32 s39, s36, {s * 4096}")
        for c in range(4):
            if not nodma:
                a(f"buffer_load_dwordx4 v3, s[16:19], s39 offen offset:{c * 1024} lds")

    NST = 16
    for s in range(NSTG - 1):
        load_stage(s)
    stamp(a, 2)
    for s in range(NST):
        issued = min(s + NSTG - 2, NST - 1)
        a(f"s_waitcnt vmcnt({(issued - s) * 8})")
        a("s_barrier")
        if s + NSTG - 1 < NST:
            load_stage(s + NSTG - 1)
    stamp(a, 5)
    a(f"s_branch {name}_fin")
    a.label(f"{name}_cons")
    a("s_and_b32 s33, s32, 1")
    a("s_lshr_b32 s34, s32, 1")
    a("v_and_b32 v4, 31, v2")
    a("v_bfe_u32 v5, v4, 1, 3")
    a("v_lshrrev_b32 v6, 5, v2")
    a("v_lshlrev_b32 v6, 1, v6")
    a("v_xor_b32 v5, v5, v6")
    a("v_lshlrev_b32 v5, 4, v5")
    a("v_lshl_add_u32 v5, v4, 7, v5")
    a("s_lshl_b32 s35, s33, 13")
    a("s_lshl_b32 s36, s34, 13")
    a("s_add_u32 s36, s36, 16384")
    for g in range(3):
        for c in range(4):
            x = ((c >> 1) * 4 + (c & 1)) << 4
            a(f"v_xor_b32 v{8 + 5 * g + c}, {x}, v5")
            a(f"v_add_u32 v{8 + 5 * g + c}, s35, v{8 + 5 * g + c}")
            if g:
                a(f"v_add_u32 v{8 + 5 * g + c}, {65536 * g}, v{8 + 5 * g + c}")
        a(f"v_add_u32 v{8 + 5 * g + 4}, s36, v3")
        if g:
            a(f"v_add_u32 v{8 + 5 * g + 4}, {65536 * g}, v{8 + 5 * g + 4}")
    ACC = 64
    FB = 128
    for i in range(64):
        a(f"v_mov_b32 v{ACC + i}, 0")
    NU = NST * 4

    def reads(u):
        s, c = u // 4, u % 4
        slot = s % NSTG
        g, so = slot // 2, (slot % 2) * 32768
        f = FB + 16 * (u % (LA + 1))
        if c == 0:
            a("s_waitcnt lgkmcnt(0)")
            a("s_barrier")
            if s == 0:
                stamp(a, 3)
            if s == 8:
                stamp(a, 4)
        if noread:
            return
        a(f"ds_read_b128 v[{f}:{f + 3}], v{8 + 5 * g + c} offset:{so}")
        a(f"ds_read_b128 v[{f + 8}:{f + 11}], v{8 + 5 * g + 4} offset:{so + c * 1024}")
        a(f"ds_read_b128 v[{f + 4}:{f + 7}], v{8 + 5 * g + c} offset:{so + 4096}")
        a(f"ds_read_b128 v[{f + 12}:{f + 15}], v{8 + 5 * g + 4} offset:{so + 4096 + c * 1024}")

    for u in range(LA):
        reads(u)
    for u in range(NU):
        if u + LA < NU:
            reads(u + LA)
        nxt = min(u + LA, NU - 1)
        cnt = 0
        for uu in range(u + 1, nxt + 1):
            cnt += 4
        a(f"s_waitcnt lgkmcnt({min(cnt, 15)})")
        f = FB + 16 * (u % (LA + 1))
        for et in range(2):
            for tt in range(2):
                acc = ACC + (et * 2 + tt) * 16
                if not nomfma:
                    a(f"v_mfma_f32_32x32x16_bf16 v[{acc}:{acc + 15}], v[{f + 8 + 4 * et}:{f + 11 + 4 * et}], v[{f + 4 * tt}:{f + 4 * tt + 3}], v[{acc}:{acc + 15}]")
    stamp(a, 5)
    a("s_lshl_b32 s35, s30, 7")
    a("s_lshl_b32 s36, s33, 6")
    a("s_add_u32 s35, s35, s36")
    a("s_lshl_b32 s35, s35, 10")
    a("s_lshl_b32 s36, s31, 8")
    a("s_add_u32 s35, s35, s36")
    a("s_lshl_b32 s36, s34, 7")
    a("s_add_u32 s35, s35, s36")
    a("s_lshl_b32 s36, s29, 1")
    a("s_add_u32 s36, s36, s27")
    a("s_lshl_b32 s36, s36, 21")
    a("s_add_u32 s35, s35, s36")
    a(f"s_add_u32 s35, s35, {WS_P}")
    a("s_add_u32 s36, s35, 32768")
    a("v_lshrrev_b32 v6, 5, v2")
    a("v_lshlrev_b32 v6, 5, v6")
    a("v_lshl_add_u32 v6, v4, 10, v6")
    a("s_nop 4")
    for et in range(2):
        for tt in range(2):
            acc = ACC + (et * 2 + tt) * 16
            o = 24 + (et * 2 + tt) * 8
            for i in range(8):
                a(f"v_cvt_pk_bf16_f32 v{o + i}, v{acc + 2 * i}, v{acc + 2 * i + 1}")
            for hh in range(2):
                if not nostore:
                    a(f"buffer_store_dwordx4 v[{o + 4 * hh}:{o + 4 * hh + 3}], v6, s[16:19], s{35 + tt} offen offset:{et * 64 + hh * 16}")
    a.label(f"{name}_fin")
    stamp_flush(a, 2, 6, 8, 9)
    a.label(f"{name}_done")
    a("s_endpgm")
    nv = FB + 16 * (LA + 1)
    return kernel_desc(name, nv, 64, nv)


def emit_perm2(a, dst, src, t):
    a(f"v_and_b32 v{dst}, 3, v{src}")
    a(f"v_bfe_u32 v{t}, v{src}, 2, 2")
    a(f"v_lshl_or_b32 v{dst}, v{t}, 3, v{dst}")
    a(f"v_bfe_u32 v{t}, v{src}, 4, 1")
    a(f"v_lshl_or_b32 v{dst}, v{t}, 2, v{dst}")


def gen_k1b(a, name, prefetch=1, wt=0, nostats=0, nocs=0, PRO=6, pfpos=2, rot=1):
    NSTG, SLOT = 6, 24576
    STATS = NSTG * SLOT
    kernel_begin(a, name)
    a("s_cmp_ge_u32 s2, 256")
    a(f"s_cbranch_scc1 {name}_done")
    stamp(a, 0)
    a("s_load_dwordx2 s[4:5], s[0:1], 0")
    a("s_load_dwordx4 s[8:11], s[0:1], 24")
    a("s_load_dwordx2 s[6:7], s[0:1], 96")
    a("s_load_dwordx4 s[40:43], s[0:1], 8")
    a("s_and_b32 s3, s2, 7")
    a("s_lshr_b32 s28, s2, 3")
    a("s_and_b32 s29, s28, 3")
    a("s_lshl_b32 s30, s3, 2")
    a("s_add_u32 s30, s30, s29")
    a("s_lshr_b32 s31, s28, 2")
    a("v_lshrrev_b32 v1, 6, v0")
    a("v_and_b32 v2, 63, v0")
    a("s_nop 0")
    a("v_readfirstlane_b32 s32, v1")
    a("s_mov_b32 s53, 0xffff0000")
    a("s_cmp_lt_u32 s32, 4")
    a(f"s_cbranch_scc1 {name}_cons")
    a("s_sub_u32 s33, s32, 4")
    a("v_lshrrev_b32 v3, 3, v2")
    a("v_and_b32 v4, 7, v2")
    a("v_lshrrev_b32 v6, 4, v2")
    a("v_xor_b32 v6, v6, v4")
    a("v_xor_b32 v7, 4, v6")
    a("v_lshlrev_b32 v3, 10, v3")
    a("v_lshl_add_u32 v8, v6, 4, v3")
    a("v_lshl_add_u32 v7, v7, 4, v3")
    a(f"v_add_u32 v9, {8192 - 1024}, v7")
    a(f"v_add_u32 v10, {2 * (8192 - 1024)}, v8")
    a(f"v_add_u32 v11, {3 * (8192 - 1024)}, v7")
    a("s_lshl_b32 s35, s30, 6")
    a("s_lshl_b32 s34, s33, 4")
    a("s_add_u32 s35, s35, s34")
    a("s_lshl_b32 s35, s35, 10")
    a("s_and_b32 s36, s31, 3")
    a("s_lshl_b32 s36, s36, 7")
    a("s_lshl_b32 s34, s33, 5")
    a("s_add_u32 s36, s36, s34")
    a("s_lshl_b32 s36, s36, 10")
    a("s_lshl_b32 s37, s33, 11")
    a("s_lshl_b32 s38, s33, 12")
    a("s_add_u32 s38, s38, 8192")
    a("s_lshl_b32 s34, s29, 1")
    a("s_add_u32 s34, s34, s31")
    for kk in range(8):
        if rot:
            a(f"s_add_u32 s39, s34, {kk}")
            a("s_and_b32 s39, s39, 7")
            a(f"s_lshl_b32 s{54 + kk}, s39, 7")
        else:
            a(f"s_mov_b32 s{54 + kk}, {kk * 128}")
    a("s_waitcnt lgkmcnt(0)")
    stamp(a, 1)
    srd(a, 12, 4, 5, S * D * 2)
    a("s_cmp_ge_u32 s31, 4")
    a("s_cselect_b32 s8, s10, s8")
    a("s_cselect_b32 s9, s11, s9")
    srd(a, 16, 8, 9, D * D * 2)

    def load_stage(kk):
        slot = (kk % NSTG) * SLOT
        a(f"s_add_u32 m0, s37, {slot}")
        a(f"s_add_u32 s39, s35, s{54 + kk}")
        for i in range(2):
            a(f"buffer_load_dwordx4 v{8 + i}, s[12:15], s39 offen offset:{i * 1024} lds")
        a(f"s_add_u32 m0, s38, {slot}")
        a(f"s_add_u32 s39, s36, s{54 + kk}")
        for i in range(4):
            a(f"buffer_load_dwordx4 v{8 + i}, s[16:19], s39 offen offset:{i * 1024} lds")

    for kk in range(PRO):
        load_stage(kk)
    stamp(a, 2)
    a("v_lshrrev_b32 v12, 2, v2")
    a("v_lshlrev_b32 v12, 7, v12")
    a("v_and_b32 v13, 3, v2")
    a("v_lshl_add_u32 v12, v13, 5, v12")
    a("v_add_u32 v12, s37, v12")
    a(f"v_add_u32 v13, {3 * SLOT}, v12")
    a("v_mov_b32 v14, 0")
    a("v_mov_b32 v15, 0")
    a("v_mov_b32 v16, 0")
    a("v_mov_b32 v17, 0")
    issued = PRO
    npf = 0

    def emit_prefetch(vb):
        a("s_and_b32 s48, s3, 1")
        a("s_cmp_eq_u32 s48, 1")
        a("s_cselect_b32 s40, s42, s40")
        a("s_cselect_b32 s41, s43, s41")
        srd(a, 24, 40, 41, S * S * 2)
        a("s_lshr_b32 s48, s3, 2")
        a("s_lshl_b32 s48, s48, 10")
        a("s_lshl_b32 s49, s28, 5")
        a("s_add_u32 s48, s48, s49")
        a("s_and_b32 s49, s32, 3")
        a("s_lshl_b32 s49, s49, 3")
        a("s_add_u32 s48, s48, s49")
        a("s_lshl_b32 s48, s48, 12")
        a("s_bfe_u32 s49, s3, 0x10001")
        a("s_lshl_b32 s49, s49, 11")
        a("s_add_u32 s48, s48, s49")
        a(f"v_lshrrev_b32 v{vb}, 4, v2")
        a(f"v_lshlrev_b32 v{vb}, 12, v{vb}")
        a(f"v_and_b32 v{vb + 1}, 15, v2")
        a(f"v_lshl_add_u32 v{vb}, v{vb + 1}, 7, v{vb}")
        for i in range(2):
            a(f"s_add_u32 s49, s48, {i * 16384}")
            a(f"buffer_load_dword v{vb + 2 + i}, v{vb}, s[24:27], s49 offen")

    vq = [k for k in range(PRO) for _ in range(6)]
    for kk in range(8):
        idx = max(i for i, t in enumerate(vq) if t == kk)
        a(f"s_waitcnt vmcnt({len(vq) - 1 - idx})")
        vq = vq[idx + 1:]
        slot = kk % NSTG
        ar, so = (12, slot * SLOT) if slot < 3 else (13, (slot - 3) * SLOT)
        a(f"ds_read_b128 v[24:27], v{ar} offset:{so}")
        a(f"ds_read_b128 v[28:31], v{ar} offset:{so + 16}")
        a("s_barrier")
        a("s_waitcnt lgkmcnt(0)")
        n_new = 0
        while issued < 8 and issued - NSTG < kk and n_new < 2:
            load_stage(issued)
            vq += [issued] * 6
            issued += 1
            n_new += 1
        if prefetch and pfpos == kk:
            emit_prefetch(40)
            vq += ["pf"] * 2
        if kk == 0:
            a("v_lshlrev_b32 v18, 16, v24")
            a("s_nop 1")
            a(f"v_mov_b32_dpp v18, v18 quad_perm:[0,0,0,0] {DPP}")
        for r in range(0 if nostats else 8):
            t = 32 + 2 * (r & 3)
            a(f"v_lshlrev_b32 v{t}, 16, v{24 + r}")
            a(f"v_and_b32 v{t + 1}, s53, v{24 + r}")
            a(f"v_sub_f32 v{t}, v{t}, v18")
            a(f"v_sub_f32 v{t + 1}, v{t + 1}, v18")
            a(f"v_add_f32 v14, v14, v{t}")
            a(f"v_add_f32 v15, v15, v{t + 1}")
            a(f"v_fmac_f32 v16, v{t}, v{t}")
            a(f"v_fmac_f32 v17, v{t + 1}, v{t + 1}")
    a("v_add_f32 v14, v14, v15")
    a("v_add_f32 v16, v16, v17")
    for qp in ("[1,0,3,2]", "[2,3,0,1]"):
        a("s_nop 1")
        a(f"v_add_f32_dpp v14, v14, v14 quad_perm:{qp} {DPP}")
        a(f"v_add_f32_dpp v16, v16, v16 quad_perm:{qp} {DPP}")
    a("v_mul_f32 v14, 0x3b000000, v14")
    a("v_mul_f32 v16, 0x3b000000, v16")
    a("v_fma_f32 v16, -v14, v14, v16")
    a("v_max_f32 v16, 0, v16")
    a("v_add_f32 v14, v14, v18")
    a("v_cvt_pk_bf16_f32 v14, v14, v14")
    a("v_lshlrev_b32 v14, 16, v14")
    a("v_cvt_pk_bf16_f32 v16, v16, v16")
    a("v_lshlrev_b32 v16, 16, v16")
    a("v_add_f32 v16, 0x3727c5ac, v16")
    a("v_cvt_pk_bf16_f32 v16, v16, v16")
    a("v_lshlrev_b32 v16, 16, v16")
    a("v_sqrt_f32 v16, v16")
    a("s_nop 0")
    a("v_cvt_pk_bf16_f32 v16, v16, v16")
    a("v_lshlrev_b32 v16, 16, v16")
    a("v_rcp_f32 v16, v16")
    a("v_lshrrev_b32 v19, 2, v2")
    a("v_lshlrev_b32 v19, 2, v19")
    a("s_lshl_b32 s34, s33, 6")
    a(f"s_add_u32 s34, s34, {STATS}")
    a("v_add_u32 v19, s34, v19")
    a("ds_write_b32 v19, v14")
    a("ds_write_b32 v19, v16 offset:256")
    a("s_waitcnt lgkmcnt(0)")
    stamp(a, 3)
    a("s_barrier")
    a(f"s_branch {name}_fin")
    a.label(f"{name}_cons")
    a("v_and_b32 v9, 31, v2")
    a("v_lshrrev_b32 v5, 5, v2")
    emit_perm32(a, 10, 9, 11)
    a("v_bfe_u32 v11, v10, 1, 3")
    a("v_xor_b32 v11, v11, v5")
    a("v_lshlrev_b32 v11, 4, v11")
    a("v_lshl_add_u32 v11, v10, 7, v11")
    emit_perm2(a, 10, 9, 12)
    a("v_bfe_u32 v12, v10, 1, 3")
    a("v_xor_b32 v12, v12, v5")
    a("v_lshlrev_b32 v12, 4, v12")
    a("v_lshl_add_u32 v12, v10, 7, v12")
    a("s_lshl_b32 s34, s32, 12")
    a("s_add_u32 s34, s34, 8192")
    a("v_add_u32 v12, s34, v12")
    for g in range(3):
        for c in range(4):
            a(f"v_xor_b32 v{16 + 8 * g + c}, {c * 32}, v11")
            a(f"v_xor_b32 v{20 + 8 * g + c}, {c * 32}, v12")
            if g:
                a(f"v_add_u32 v{16 + 8 * g + c}, {2 * SLOT * g}, v{16 + 8 * g + c}")
                a(f"v_add_u32 v{20 + 8 * g + c}, {2 * SLOT * g}, v{20 + 8 * g + c}")
    ACC = 64
    FR = [96, 108, 120]
    for i in range(32):
        a(f"v_mov_b32 v{ACC + i}, 0")
    a("v_mov_b32 v40, 0")
    a("v_mov_b32 v41, 0")
    a("s_mov_b32 s50, 0x3f803f80")
    a("s_waitcnt lgkmcnt(0)")
    stamp(a, 1)
    srd(a, 20, 6, 7, 4 << 20)
    if prefetch and pfpos == -1:
        emit_prefetch(150)
    units = [(kk, c) for kk in range(8) for c in range(4)]

    def reads(n):
        kk, c = units[n]
        f = FR[n % 3]
        slot = kk % NSTG
        g, so = slot // 2, (slot % 2) * SLOT
        if c == 0:
            a("s_waitcnt lgkmcnt(0)")
            a("s_barrier")
            if kk == 0:
                stamp(a, 2)
        a(f"ds_read_b128 v[{f}:{f + 3}], v{20 + 8 * g + c} offset:{so}")
        a(f"ds_read_b128 v[{f + 4}:{f + 7}], v{16 + 8 * g + c} offset:{so}")
        a(f"ds_read_b128 v[{f + 8}:{f + 11}], v{16 + 8 * g + c} offset:{so + 4096}")

    reads(0)
    reads(1)
    for n in range(len(units)):
        if n + 2 < len(units):
            reads(n + 2)
            a("s_waitcnt lgkmcnt(6)")
        elif n + 1 < len(units):
            a("s_waitcnt lgkmcnt(3)")
        else:
            a("s_waitcnt lgkmcnt(0)")
        f = FR[n % 3]
        a(f"v_mfma_f32_32x32x16_bf16 v[{ACC}:{ACC + 15}], v[{f + 4}:{f + 7}], v[{f}:{f + 3}], v[{ACC}:{ACC + 15}]")
        if not nocs:
            a(f"v_dot2_f32_bf16 v40, v{f}, s50, v40")
        if not nocs:
            a(f"v_dot2_f32_bf16 v41, v{f + 1}, s50, v41")
        a(f"v_mfma_f32_32x32x16_bf16 v[{ACC + 16}:{ACC + 31}], v[{f + 8}:{f + 11}], v[{f}:{f + 3}], v[{ACC + 16}:{ACC + 31}]")
        if not nocs:
            a(f"v_dot2_f32_bf16 v40, v{f + 2}, s50, v40")
        if not nocs:
            a(f"v_dot2_f32_bf16 v41, v{f + 3}, s50, v41")
    stamp(a, 3)
    a("s_barrier")
    stamp(a, 4)
    a("v_lshlrev_b32 v42, 6, v5")
    a(f"v_add_u32 v42, {STATS}, v42")
    for sh in range(2):
        for q in range(4):
            a(f"ds_read_b128 v[{96 + 16 * sh + 4 * q}:{99 + 16 * sh + 4 * q}], v42 offset:{128 * sh + 16 * q}")
            a(f"ds_read_b128 v[{128 + 16 * sh + 4 * q}:{131 + 16 * sh + 4 * q}], v42 offset:{256 + 128 * sh + 16 * q}")
    a("v_add_f32 v40, v40, v41")
    a("v_mov_b32 v41, v40")
    a("s_nop 1")
    a("v_permlane32_swap_b32 v40, v41")
    a("s_nop 1")
    a("v_add_f32 v40, v40, v41")
    a("s_lshl_b32 s34, s31, 2")
    a("s_add_u32 s34, s34, s32")
    a("s_lshl_b32 s34, s34, 7")
    a("s_lshl_b32 s33, s30, 1")
    a("s_add_u32 s34, s34, s33")
    a("s_lshl_b32 s34, s34, 10")
    a("v_bfe_u32 v43, v2, 4, 1")
    a("v_lshlrev_b32 v43, 16, v43")
    a("v_lshl_add_u32 v43, v5, 9, v43")
    a("v_and_b32 v44, 15, v2")
    a("v_lshl_add_u32 v43, v44, 4, v43")
    a("s_waitcnt lgkmcnt(0)")
    for sh in range(2):
        for i in range(16):
            r = ACC + 16 * sh + i
            a(f"v_fma_f32 v{r}, -v{96 + 16 * sh + i}, v40, v{r}")
            a(f"v_mul_f32 v{r}, v{r}, v{128 + 16 * sh + i}")
        for i in range(8):
            a(f"v_cvt_pk_bf16_f32 v{48 + 8 * sh + i}, v{ACC + 16 * sh + 2 * i}, v{ACC + 16 * sh + 2 * i + 1}")
        for u in range(2):
            r = 48 + 8 * sh + 4 * u
            a(f"buffer_store_dwordx4 v[{r}:{r + 3}], v43, s[20:23], s34 offen offset:{sh * 1024 + u * 256}" + (" sc0 sc1" if wt else ""))
    stamp(a, 5)
    a.label(f"{name}_fin")
    stamp_flush(a, 1, 6, 6, 7)
    a.label(f"{name}_done")
    a("s_endpgm")
    return kernel_desc(name, 160, 64, 160)


def emit_wtouch(a, s_sel, vt, vd):
    a(f"s_cmp_eq_u32 {s_sel}, 1")
    a("s_cselect_b32 s56, s58, s56")
    a("s_cselect_b32 s57, s59, s57")
    a(f"s_cmp_eq_u32 {s_sel}, 2")
    a("s_cselect_b32 s56, s60, s56")
    a("s_cselect_b32 s57, s61, s57")
    a("s_mul_i32 s62, s2, 7168")
    a("s_add_u32 s63, s62, 7168")
    a(f"s_cmp_eq_u32 {s_sel}, 3")
    a("s_cselect_b32 s63, 0, s63")
    a("s_mov_b32 s20, s56")
    a("s_and_b32 s21, s57, 0xffff")
    a("s_mov_b32 s22, s63")
    a("s_mov_b32 s23, 0x00020000")
    a(f"v_lshlrev_b32 v{vt}, 7, v2")
    a(f"buffer_load_dword v{vd}, v{vt}, s[20:23], s62 offen")


def emit_wtouch2(a):
    a("s_cmp_ge_u32 s33, 2")
    a("s_cselect_b32 s56, s66, s64")
    a("s_cselect_b32 s57, s67, s65")
    a("s_cmp_lt_u32 s28, 28")
    a(f"s_cselect_b32 s62, {D * F * 2}, 0")
    a("s_mov_b32 s20, s56")
    a("s_and_b32 s21, s57, 0xffff")
    a("s_mov_b32 s22, s62")
    a("s_mov_b32 s23, 0x00020000")
    a("s_mov_b32 s24, s68")
    a("s_and_b32 s25, s69, 0xffff")
    a("s_mov_b32 s26, s62")
    a("s_mov_b32 s27, 0x00020000")
    a("s_lshr_b32 s58, s28, 2")
    a("s_lshl_b32 s58, s58, 3")
    a("s_add_u32 s58, s58, s3")
    a("s_and_b32 s59, s28, 3")
    a("s_lshl_b32 s62, s59, 1")
    a("s_and_b32 s63, s33, 1")
    a("s_add_u32 s62, s62, s63")
    a("s_mul_i32 s62, s62, 229376")
    a("s_lshr_b32 s63, s58, 1")
    a("s_lshl_b32 s63, s63, 7")
    a("s_add_u32 s62, s62, s63")
    a("s_mov_b32 s63, 3584")
    a("v_mul_lo_u32 v13, v2, s63")
    a("buffer_load_dword v15, v13, s[20:23], s62 offen")
    a("s_lshl_b32 s62, s58, 15")
    a("s_lshl_b32 s63, s59, 13")
    a("s_add_u32 s62, s62, s63")
    a("s_lshl_b32 s63, s33, 11")
    a("s_add_u32 s62, s62, s63")
    a("v_and_b32 v13, 15, v2")
    a("v_lshlrev_b32 v13, 7, v13")
    a("buffer_load_dword v16, v13, s[24:27], s62 offen")


def gen_k2c(a, name, NSTG=5, LA=1, wt=0, PRO=5, rot=1, BARPOS=1, RSTEP=1, wpf=1, wpf2=0, pol=0, fuse3=0, etouch=0, swap=1, cw=-1, fused_in=0):
    SOFF = 3 if fused_in else 0
    POL = {0: '', 1: ' sc1', 2: ' nt', 3: ' sc0'}[pol]
    if not fused_in:
        kernel_begin(a, name)
        a("s_cmp_ge_u32 s2, 256")
        a(f"s_cbranch_scc1 {name}_done")
    stamp(a, 0)
    if fused_in:
        a("s_load_dwordx2 s[10:11], s[0:1], 88")
    a("s_load_dwordx4 s[4:7], s[0:1], 8")
    a("s_load_dwordx2 s[8:9], s[0:1], 96")
    a("s_load_dwordx4 s[56:59], s[0:1], 56")
    a("s_load_dwordx2 s[60:61], s[0:1], 72")
    a("s_load_dwordx4 s[64:67], s[0:1], 56")
    a("s_load_dwordx2 s[68:69], s[0:1], 72")
    a("s_and_b32 s3, s2, 7")
    a("s_lshr_b32 s28, s2, 3")
    a("s_and_b32 s29, s3, 1")
    a("s_bfe_u32 s27, s3, 0x10001")
    a("s_lshr_b32 s30, s3, 2")
    a("s_lshl_b32 s30, s30, 3")
    a("s_and_b32 s31, s28, 7")
    a("s_add_u32 s30, s30, s31")
    a("s_lshr_b32 s31, s28, 3")
    if fused_in:
        a("v_mbcnt_lo_u32_b32 v2, -1, 0")
        a("v_mbcnt_hi_u32_b32 v2, -1, v2")
    else:
        a("v_lshrrev_b32 v1, 6, v0")
        a("v_and_b32 v2, 63, v0")
        a("s_nop 0")
        a("v_readfirstlane_b32 s32, v1")
    a("v_lshlrev_b32 v3, 4, v2")
    if swap and not fused_in:
        a("s_xor_b32 s32, s32, 4")
    a("s_cmp_lt_u32 s32, 4")
    a(f"s_cbranch_scc1 {name}_cons")
    a("s_sub_u32 s33, s32, 4")
    a("v_lshrrev_b32 v4, 3, v2")
    a("v_and_b32 v5, 7, v2")
    a("v_lshrrev_b32 v6, 4, v2")
    a("v_xor_b32 v6, v6, v5")
    a("v_xor_b32 v7, 4, v6")
    a("v_lshlrev_b32 v4, 12, v4")
    a("v_lshl_add_u32 v6, v6, 4, v4")
    a("v_lshl_add_u32 v7, v7, 4, v4")
    a("v_mov_b32 v8, v6")
    a(f"v_add_u32 v9, {32768 - 1024}, v7")
    a(f"v_add_u32 v10, {2 * (32768 - 1024)}, v6")
    a(f"v_add_u32 v11, {3 * (32768 - 1024)}, v7")
    a(f"v_add_u32 v12, {65536 - 2048}, v3")
    a("s_lshl_b32 s35, s30, 19")
    a("s_lshl_b32 s34, s33, 17")
    a("s_add_u32 s35, s35, s34")
    a("s_lshl_b32 s34, s27, 11")
    a("s_add_u32 s35, s35, s34")
    a("s_lshl_b32 s36, s29, 5")
    a("s_lshl_b32 s34, s31, 3")
    a("s_add_u32 s36, s36, s34")
    a("s_lshl_b32 s34, s33, 1")
    a("s_add_u32 s36, s36, s34")
    a("s_lshl_b32 s36, s36, 6")
    a("s_lshl_b32 s34, s27, 5")
    a("s_add_u32 s36, s36, s34")
    a("s_lshl_b32 s36, s36, 10")
    a("s_lshl_b32 s37, s33, 12")
    if rot >= 2:
        a("s_lshl_b32 s52, s31, 1")
        a("s_add_u32 s52, s52, s30")
        if rot == 3:
            a("s_add_u32 s52, s31, s30")
    for j in range(4):
        if rot:
            a(f"s_add_u32 s34, s31, {j}")
            a("s_and_b32 s34, s34, 3")
        else:
            a(f"s_mov_b32 s34, {j}")
        a("s_lshl_b32 s38, s34, 7")
        a(f"s_add_u32 s{44 + j}, s35, s38")
        a("s_lshl_b32 s38, s34, 11")
        a(f"s_add_u32 s{48 + j}, s36, s38")
    a("s_waitcnt lgkmcnt(0)")
    stamp(a, 1)
    a("s_cmp_eq_u32 s29, 1")
    a("s_cselect_b32 s4, s6, s4")
    a("s_cselect_b32 s5, s7, s5")
    srd(a, 12, 4, 5, S * S * 2)
    srd(a, 16, 8, 9, 14 << 20)

    def load_stage(s, part=3):
        slot = ((s + SOFF) % NSTG) * 32768
        if part & 1:
            load_c(s, slot)
        if part & 2:
            load_e(s, slot)

    def load_c(s, slot):
        a(f"s_add_u32 m0, s37, {slot}")
        if rot >= 2:
            G8 = {2: 8, 3: 4, 4: 16}[rot]
            a(f"s_add_u32 s53, s52, {s}")
            a(f"s_and_b32 s53, s53, {G8 - 1}")
            a(f"s_add_u32 s53, s53, {s & ~(G8 - 1)}")
            a("s_lshl_b32 s54, s53, 7")
            a("s_add_u32 s38, s35, s54")
        else:
            a(f"s_add_u32 s38, s{44 + (s & 3)}, {(s & ~3) * 128}")
        for i in range(4):
            a(f"buffer_load_dwordx4 v{8 + i}, s[12:15], s38 offen offset:{i * 1024}{POL} lds")

    def load_e(s, slot):
        a(f"s_add_u32 m0, s37, {slot + 16384}")
        if rot >= 2:
            a("s_lshl_b32 s54, s53, 11")
            a("s_add_u32 s39, s36, s54")
        else:
            a(f"s_add_u32 s39, s{48 + (s & 3)}, {(s & ~3) * 2048}")
        for c in range(4):
            a(f"buffer_load_dwordx4 v{3 if c < 2 else 12}, s[16:19], s39 offen offset:{c * 1024}{' sc1' if fused_in else POL} lds")

    NST = 16
    if fused_in:
        PRO = 4
        for s in range(PRO):
            load_stage(s, 1)
        srd(a, 20, 10, 11, 256)
        a("s_lshl_b32 s52, s29, 1")
        a("s_add_u32 s52, s52, s27")
        a("s_lshl_b32 s52, s52, 2")
        a("s_add_u32 s52, s52, s31")
        a("s_lshl_b32 s52, s52, 10")
        a(f"s_add_u32 s52, s52, {WS_FLAG1}")
        a("v_bfe_u32 v13, v2, 2, 3")
        a("v_lshlrev_b32 v13, 7, v13")
        a("v_and_b32 v14, 3, v2")
        a("v_lshl_add_u32 v13, v14, 2, v13")
        a("v_mov_b32 v14, 0")
        a("s_mov_b32 s55, 0x40000")
        a.label(f"{name}_np")
        a("buffer_load_dword v15, v14, s[20:23], 0 offen sc1")
        a("v_and_b32 v17, 3, v2")
        a("v_lshlrev_b32 v17, 12, v17")
        a(f"v_add_u32 v17, {3 * 32768 + 16384}, v17")
        a(f"s_add_u32 s54, s37, {3 * 32768 + 16384}")
        a("v_mov_b32 v18, s54")
        a("s_waitcnt vmcnt(0)")
        a("v_readfirstlane_b32 s53, v15")
        a("s_cmp_lg_u32 s53, 0")
        a(f"s_cbranch_scc1 {name}_nd")
        a("s_sub_u32 s55, s55, 1")
        a(f"s_cbranch_scc0 {name}_np")
        a("s_mov_b32 s55, 0")
        a.label(f"{name}_nd")
        a("s_cmp_lg_u32 s33, 0")
        a(f"s_cbranch_scc1 {name}_lp")
        a.label(f"{name}_ep")
        a("buffer_load_dword v16, v13, s[16:19], s52 offen sc1")
        a("s_waitcnt vmcnt(0)")
        a("v_cmp_ne_u32 vcc, v15, v16")
        a("s_or_b32 s62, vcc_lo, vcc_hi")
        a(f"s_cbranch_scc0 {name}_eo")
        a(f"s_sleep {ESLEEP}")
        a("s_sub_u32 s55, s55, 1")
        a(f"s_cbranch_scc0 {name}_ep")
        a.label(f"{name}_eo")
        a("ds_write_b32 v17, v15")
        a("s_waitcnt lgkmcnt(0)")
        a(f"s_branch {name}_ed")
        a.label(f"{name}_lp")
        a("ds_read_b32 v16, v18")
        a("s_waitcnt lgkmcnt(0)")
        a("v_readfirstlane_b32 s62, v16")
        a("s_cmp_eq_u32 s62, s53")
        a(f"s_cbranch_scc1 {name}_ed")
        a("s_sleep 1")
        a("s_sub_u32 s55, s55, 1")
        a(f"s_cbranch_scc0 {name}_lp")
        a.label(f"{name}_ed")
        for s in range(PRO):
            load_stage(s, 2)
        vq = [st for st in range(PRO) for _ in range(4)]
        if fuse3 and SENT == 3:
            srd(a, 20, 8, 9, 16 << 20)
            a("s_lshl_b32 s62, s29, 1")
            a("s_add_u32 s62, s62, s27")
            a("s_lshl_b32 s62, s62, 2")
            a("s_add_u32 s62, s62, s31")
            a("s_lshl_b32 s63, s30, 4")
            a("s_add_u32 s63, s63, s62")
            a("s_lshl_b32 s62, s63, 7")
            a("s_lshl_b32 s63, s32, 2")
            a("s_add_u32 s62, s62, s63")
            a(f"s_add_u32 s62, s62, {WS_FLAG2}")
            a("buffer_store_dword v15, v14, s[20:23], s62 offen sc0 sc1")
            vq.append("f")
            a("s_or_b32 s52, s30, 1")
            a("s_lshl_b32 s52, s52, 11")
            a(f"s_add_u32 s52, s52, {WS_FLAG2}")
            a("v_lshrrev_b32 v17, 2, v2")
            a("v_lshlrev_b32 v17, 7, v17")
            a("v_and_b32 v18, 3, v2")
            a("v_lshl_add_u32 v17, v18, 3, v17")
            a("v_mov_b32 v19, v15")
    else:
        for s in range(PRO):
            load_stage(s)
        vq = [st for st in range(PRO) for _ in range(8)]
    stamp(a, 2)
    issued = PRO
    for s in range(NST):
        idx = max(k for k, t in enumerate(vq) if t == s)
        a(f"s_waitcnt vmcnt({len(vq) - 1 - idx})")
        vq = vq[idx + 1:]
        if fused_in and fuse3 and SENT == 3 and s == 8:
            a("buffer_load_dwordx2 v[20:21], v17, s[20:23], s52 offen sc1")
            vq.append("g")
        if fused_in and fuse3 and SENT == 3 and s == 14:
            assert "g" not in vq
            srd(a, 20, 8, 9, 16 << 20)
            a.label(f"{name}_sfp")
            a("v_cmp_ne_u32 vcc, v19, v20")
            a("v_cmp_ne_u32 s[62:63], v19, v21")
            a("s_or_b64 s[62:63], s[62:63], vcc")
            a(f"s_cbranch_scc0 {name}_sfd")
            a("s_sleep 2")
            a("buffer_load_dwordx2 v[20:21], v17, s[20:23], s52 offen sc1")
            a("s_waitcnt vmcnt(0)")
            a("s_sub_u32 s55, s55, 1")
            a(f"s_cbranch_scc0 {name}_sfp")
            a.label(f"{name}_sfd")
        a("s_barrier")
        n_new = 0
        while issued < NST and issued - NSTG < s and n_new < 2:
            load_stage(issued)
            vq += [issued] * 8
            issued += 1
            n_new += 1
            if issued == wpf:
                emit_wtouch(a, "s33", 13, 14)
                vq.append("w")
            if issued == wpf2:
                emit_wtouch2(a)
                vq += ["w", "w"]
    stamp(a, 5)
    a(f"s_branch {name}_fin")
    a.label(f"{name}_cons")
    a("s_and_b32 s33, s32, 1")
    a("s_lshr_b32 s34, s32, 1")
    a("v_and_b32 v4, 15, v2")
    a("v_lshrrev_b32 v5, 1, v4")
    a("v_lshrrev_b32 v6, 4, v2")
    a("v_xor_b32 v5, v5, v6")
    a("v_lshlrev_b32 v5, 4, v5")
    a("v_lshl_add_u32 v5, v4, 7, v5")
    a("s_lshl_b32 s35, s33, 13")
    a("s_lshl_b32 s36, s34, 13")
    a("s_add_u32 s36, s36, 16384")
    for g in range(3):
        a(f"v_add_u32 v{8 + 3 * g}, s35, v5")
        a(f"v_xor_b32 v{9 + 3 * g}, 64, v5")
        a(f"v_add_u32 v{9 + 3 * g}, s35, v{9 + 3 * g}")
        a(f"v_add_u32 v{10 + 3 * g}, s36, v3")
        if g:
            for r in range(3):
                a(f"v_add_u32 v{8 + 3 * g + r}, {65536 * g}, v{8 + 3 * g + r}")
    ACC = 64
    FB = 128
    for i in range(64):
        a(f"v_mov_b32 v{ACC + i}, 0")
    a("s_waitcnt lgkmcnt(0)")
    stamp(a, 1)
    srd(a, 16, 8, 9, 16 << 20)
    if fuse3:
        a("v_mov_b32 v198, 0")
        if fused_in:
            srd(a, 20, 10, 11, 256)
            a("buffer_load_dword v199, v198, s[20:23], 0 offen sc1")
        else:
            a(f"s_mov_b32 s38, {13 << 20}")
            a("buffer_load_dword v199, v198, s[16:19], s38 offen sc1")
    def epi_addr():
        a("s_lshl_b32 s35, s30, 7")
        a("s_lshl_b32 s36, s33, 6")
        a("s_add_u32 s35, s35, s36")
        a("s_lshl_b32 s35, s35, 10")
        a(f"s_lshl_b32 s36, s31, {12 if PBLK else 8}")
        a("s_add_u32 s35, s35, s36")
        a(f"s_lshl_b32 s36, s34, {11 if PBLK else 7}")
        a("s_add_u32 s35, s35, s36")
        a("s_lshl_b32 s36, s29, 1")
        a("s_add_u32 s36, s36, s27")
        a("s_lshl_b32 s36, s36, 21")
        a("s_add_u32 s35, s35, s36")
        a(f"s_add_u32 s35, s35, {WS_P}")
        a("v_lshlrev_b32 v7, 4, v6")
        a(f"v_lshl_add_u32 v7, v4, {6 if PBLK else 10}, v7")
        for tt in range(4):
            a(f"s_add_u32 s{40 + tt}, s35, {tt * 16384}")

    SENTM = fuse3 and SENT
    if SENTM:
        epi_addr()
        for r in range(4):
            a(f"v_mov_b32 v{24 + r}, -1")
        if fused_in:
            a("s_bitcmp1_b32 s2, 3")
            a(f"s_cbranch_scc0 {name}_nofill")
        for tt in range(4 if SENT < 3 else 0):
            for Th in range(2):
                a(f"buffer_store_dwordx4 v[24:27], v7, s[16:19], s{40 + tt} offen offset:{Th * 64} sc0 sc1")
        a.label(f"{name}_nofill")
        a("s_lshl_b32 s62, s29, 1")
        a("s_add_u32 s62, s62, s27")
        a("s_lshl_b32 s62, s62, 2")
        a("s_add_u32 s62, s62, s31")
        a("s_lshl_b32 s63, s30, 4")
        a("s_add_u32 s63, s63, s62")
        a("s_lshl_b32 s46, s63, 7")
        a("s_lshl_b32 s47, s32, 2")
        a("s_add_u32 s46, s46, s47")
        a(f"s_add_u32 s46, s46, {WS_FLAG2}")
    if etouch:
        a("s_lshl_b32 s38, s29, 5")
        a("s_add_u32 s38, s38, s28")
        a("s_lshl_b32 s38, s38, 6")
        a("s_lshl_b32 s39, s27, 5")
        a("s_add_u32 s38, s38, s39")
        a("s_lshl_b32 s38, s38, 10")
        a("s_lshl_b32 s39, s32, 13")
        a("s_add_u32 s38, s38, s39")
        a("v_lshlrev_b32 v20, 7, v2")
        a("buffer_load_dword v21, v20, s[16:19], s38 offen")
    NU = NST * 2

    def read_list(u):
        s, ks = u // 2, u % 2
        slot = (s + SOFF) % NSTG
        g, so = slot // 2, (slot % 2) * 32768
        f = FB + 32 * (u % 2)
        L = []
        for i in range(4):
            L.append(f"ds_read_b128 v[{f + 16 + 4 * i}:{f + 19 + 4 * i}], v{10 + 3 * g} offset:{so + i * 2048 + ks * 1024}")
            L.append(f"ds_read_b128 v[{f + 4 * i}:{f + 3 + 4 * i}], v{8 + 3 * g + ks} offset:{so + i * 2048}")
        return L

    if cw == 100:
        emit_wtouch(a, "s32", 20, 21)
    a("s_barrier")
    stamp(a, 3)
    for r in read_list(0):
        a(r)
    for u in range(NU):
        a("s_waitcnt lgkmcnt(0)")
        f = FB + 32 * (u % 2)
        nxt = read_list(u + 1) if u + 1 < NU else []
        n = 0
        for T in range(4):
            for tt in range(4):
                acc = ACC + (T * 4 + tt) * 4
                a(f"v_mfma_f32_16x16x32_bf16 v[{acc}:{acc + 3}], v[{f + 16 + 4 * T}:{f + 19 + 4 * T}], v[{f + 4 * tt}:{f + 4 * tt + 3}], v[{acc}:{acc + 3}]")
                n += 1
                if n == BARPOS and nxt and (u + 1) % 2 == 0:
                    a("s_barrier")
                    if (u + 1) // 2 == 8:
                        stamp(a, 4)
                if n >= BARPOS and nxt and (n - BARPOS) % RSTEP == 0:
                    a(nxt.pop(0))
                if SENTM and u == 6 and n == 10:
                    a("s_waitcnt vmcnt(0)")
                    a("buffer_store_dword v199, v198, s[16:19], s46 offen sc0 sc1")
                if u == cw and n == 10:
                    emit_wtouch(a, "s32", 20, 21)
        for r in nxt:
            a(r)
    stamp(a, 5)
    if not SENTM:
        epi_addr()
    else:
        a("s_nop 7")
    for tt in range(4):
        for Th in range(2):
            o = 24 + (tt * 2 + Th) * 4
            for Tl in range(2):
                acc = ACC + ((Th * 2 + Tl) * 4 + tt) * 4
                a(f"v_cvt_pk_bf16_f32 v{o + 2 * Tl}, v{acc}, v{acc + 1}")
                a(f"v_cvt_pk_bf16_f32 v{o + 2 * Tl + 1}, v{acc + 2}, v{acc + 3}")
            a(f"buffer_store_dwordx4 v[{o}:{o + 3}], v7, s[16:19], s{40 + tt} offen offset:{Th * (1024 if PBLK else 64)}" + (" sc0 sc1" if wt else ""))
    if fuse3 and not (SENTM and SENT == 2):
        a("s_waitcnt vmcnt(0)")
    a.label(f"{name}_fin")
    stamp_flush(a, 2, 6, 8, 9)
    nv = FB + 64
    if fuse3:
        a("s_and_b32 s3, s2, 7")
        a("s_and_b32 s29, s3, 1")
        a("s_bfe_u32 s27, s3, 0x10001")
        a("s_lshl_b32 s62, s29, 1")
        a("s_add_u32 s62, s62, s27")
        a("s_lshl_b32 s62, s62, 2")
        a("s_add_u32 s62, s62, s31")
        a("s_lshl_b32 s63, s30, 4")
        a("s_add_u32 s63, s63, s62")
        a("s_lshl_b32 s46, s63, 7")
        a(f"s_add_u32 s46, s46, {WS_FLAG2}")
        if not SENT:
            a("s_barrier")
            a("s_cmp_lg_u32 s32, 0")
            a(f"s_cbranch_scc1 {name}_nf")
            a("v_mov_b32 v198, 0")
            a("buffer_store_dword v199, v198, s[16:19], s46 offen sc0 sc1")
            a.label(f"{name}_nf")
            a("s_barrier")
        gen_kt(a, name + "t", fused=1)
        a.label(f"{name}_done")
        a("s_endpgm")
        return kernel_desc(name, 208, 72, 208)
    if fused_in:
        return None
    a.label(f"{name}_done")
    a("s_endpgm")
    return kernel_desc(name, nv, 72, nv)


def gen_k1c(a, name, wt=1, PRO=3, pf=1, pace=1, pfw=1, pfxd=1):
    NSTG, SLOT, NST = 4, 32768, 8
    STATS = NSTG * SLOT
    kernel_begin(a, name)
    a("s_cmp_ge_u32 s2, 256")
    a(f"s_cbranch_scc1 {name}_done")
    stamp(a, 0)
    a("s_load_dwordx2 s[4:5], s[0:1], 0")
    a("s_load_dwordx4 s[8:11], s[0:1], 24")
    a("s_load_dwordx2 s[6:7], s[0:1], 96")
    a("s_load_dwordx4 s[40:43], s[0:1], 8")
    a("s_load_dwordx4 s[44:47], s[0:1], 56")
    a("s_load_dwordx2 s[48:49], s[0:1], 72")
    a("s_and_b32 s3, s2, 7")
    a("s_lshr_b32 s28, s2, 4")
    a("s_and_b32 s29, s28, 1")
    a("s_lshl_b32 s30, s3, 1")
    a("s_add_u32 s30, s30, s29")
    a("s_lshr_b32 s31, s28, 1")
    a("v_lshrrev_b32 v1, 6, v0")
    a("v_and_b32 v2, 63, v0")
    a("s_nop 0")
    a("v_readfirstlane_b32 s32, v1")
    a("s_mov_b32 s53, 0xffff0000")
    a("s_bitcmp1_b32 s2, 3")
    a(f"s_cbranch_scc1 {name}_pf")
    a("s_cmp_lt_u32 s32, 4")
    a(f"s_cbranch_scc1 {name}_cons")
    a("s_cmp_ge_u32 s32, 8")
    a(f"s_cbranch_scc1 {name}_stat")
    a("s_sub_u32 s33, s32, 4")
    a("v_lshrrev_b32 v3, 3, v2")
    a("v_and_b32 v4, 7, v2")
    a("v_bfe_u32 v5, v2, 4, 1")
    a("v_xor_b32 v4, v4, v5")
    a("v_lshlrev_b32 v3, 10, v3")
    for i in range(4):
        g0g1 = (i & 1) ^ (i >> 1)
        a(f"v_xor_b32 v{8 + i}, {(2 * i) ^ g0g1}, v4")
        a(f"v_lshl_add_u32 v{8 + i}, v{8 + i}, 4, v3")
        if i:
            a(f"v_add_u32 v{8 + i}, {i * (8192 - 1024)}, v{8 + i}")
    a("s_lshl_b32 s34, s33, 5")
    a("s_lshl_b32 s35, s30, 7")
    a("s_add_u32 s35, s35, s34")
    a("s_lshl_b32 s35, s35, 10")
    a("s_and_b32 s36, s31, 3")
    a("s_lshl_b32 s36, s36, 7")
    a("s_add_u32 s36, s36, s34")
    a("s_lshl_b32 s36, s36, 10")
    a("s_lshl_b32 s37, s33, 12")
    a("v_lshlrev_b32 v12, 6, v2")
    a("v_add_u32 v12, s37, v12")
    a("v_add_u32 v12, 16384, v12")
    a(f"v_add_u32 v13, {2 * SLOT}, v12")
    a("v_mov_b32 v14, 0")
    a("v_mov_b32 v15, 0")
    a("s_mov_b32 s50, 0x3f803f80")
    a("s_waitcnt lgkmcnt(0)")
    stamp(a, 1)
    srd(a, 12, 4, 5, S * D * 2)
    a("s_cmp_ge_u32 s31, 4")
    a("s_cselect_b32 s8, s10, s8")
    a("s_cselect_b32 s9, s11, s9")
    srd(a, 16, 8, 9, D * D * 2)

    def load_stage(kk):
        slot = (kk % NSTG) * SLOT
        a(f"s_add_u32 m0, s37, {slot}")
        a(f"s_add_u32 s39, s35, {kk * 128}")
        for i in range(4):
            a(f"buffer_load_dwordx4 v{8 + i}, s[12:15], s39 offen offset:{i * 1024} lds")
        a(f"s_add_u32 m0, s37, {slot + 16384}")
        a(f"s_add_u32 s39, s36, {kk * 128}")
        for i in range(4):
            a(f"buffer_load_dwordx4 v{8 + i}, s[16:19], s39 offen offset:{i * 1024} lds")

    for kk in range(PRO):
        load_stage(kk)
    stamp(a, 2)
    issued = PRO
    for kk in range(NST):
        a(f"s_waitcnt vmcnt({(issued - 1 - kk) * 8})")
        slot = kk % NSTG
        ar, so = (12, slot * SLOT) if slot < 2 else (13, (slot - 2) * SLOT)
        for q in range(4):
            a(f"ds_read_b128 v[{16 + 4 * q}:{19 + 4 * q}], v{ar} offset:{so + 16 * q}")
        a("s_barrier")
        n_new = 0
        while issued < NST and issued - NSTG < kk and n_new < 2:
            load_stage(issued)
            issued += 1
            n_new += 1
        a("s_waitcnt lgkmcnt(0)")
        for r in range(16):
            a(f"v_dot2_f32_bf16 v{14 + (r & 1)}, v{16 + r}, s50, v{14 + (r & 1)}")
    a("s_nop 2")
    a("v_add_f32 v14, v14, v15")
    a("s_nop 1")
    a(f"v_add_f32_dpp v14, v14, v14 quad_perm:[1,0,3,2] {DPP}")
    a("v_lshrrev_b32 v19, 1, v2")
    a("v_lshlrev_b32 v19, 2, v19")
    a("s_lshl_b32 s34, s33, 7")
    a(f"s_add_u32 s34, s34, {STATS + 1024}")
    a("v_add_u32 v19, s34, v19")
    a("ds_write_b32 v19, v14")
    a("s_waitcnt lgkmcnt(0)")
    stamp(a, 3)
    a("s_barrier")
    a(f"s_branch {name}_fin")
    a.label(f"{name}_stat")
    a("s_sub_u32 s33, s32, 8")
    a("s_lshl_b32 s37, s33, 12")
    a("v_lshlrev_b32 v12, 6, v2")
    a("v_add_u32 v12, s37, v12")
    a(f"v_add_u32 v13, {2 * SLOT}, v12")
    for r in range(4):
        a(f"v_mov_b32 v{80 + r}, 0")
    a("s_waitcnt lgkmcnt(0)")
    stamp(a, 1)

    def stat_valu(base):
        for r in range(16):
            t = 72 + 2 * (r & 3)
            a(f"v_lshlrev_b32 v{t}, 16, v{base + r}")
            a(f"v_and_b32 v{t + 1}, s53, v{base + r}")
            a(f"v_sub_f32 v{t}, v{t}, v18")
            a(f"v_sub_f32 v{t + 1}, v{t + 1}, v18")
            a(f"v_add_f32 v80, v80, v{t}")
            a(f"v_add_f32 v81, v81, v{t + 1}")
            a(f"v_fmac_f32 v82, v{t}, v{t}")
            a(f"v_fmac_f32 v83, v{t + 1}, v{t + 1}")

    for kk in range(NST):
        a("s_barrier")
        slot = kk % NSTG
        ar, so = (12, slot * SLOT) if slot < 2 else (13, (slot - 2) * SLOT)
        base = 32 + 16 * (kk & 1)
        for q in range(4):
            a(f"ds_read_b128 v[{base + 4 * q}:{base + 3 + 4 * q}], v{ar} offset:{so + 16 * q}")
        if kk >= 1:
            stat_valu(32 + 16 * ((kk - 1) & 1))
        a("s_waitcnt lgkmcnt(0)")
        if kk == 0:
            a("v_lshlrev_b32 v18, 16, v32")
            a("s_nop 1")
            a(f"v_mov_b32_dpp v18, v18 quad_perm:[0,0,2,2] {DPP}")
    stat_valu(32 + 16 * ((NST - 1) & 1))
    a("v_add_f32 v14, v80, v81")
    a("v_add_f32 v16, v82, v83")
    a("s_nop 1")
    a(f"v_add_f32_dpp v14, v14, v14 quad_perm:[1,0,3,2] {DPP}")
    a(f"v_add_f32_dpp v16, v16, v16 quad_perm:[1,0,3,2] {DPP}")
    a("v_mul_f32 v14, 0x3b000000, v14")
    a("v_mul_f32 v16, 0x3b000000, v16")
    a("v_fma_f32 v16, -v14, v14, v16")
    a("v_max_f32 v16, 0, v16")
    a("v_add_f32 v14, v14, v18")
    a("v_cvt_pk_bf16_f32 v14, v14, v14")
    a("v_lshlrev_b32 v14, 16, v14")
    a("v_cvt_pk_bf16_f32 v16, v16, v16")
    a("v_lshlrev_b32 v16, 16, v16")
    a("v_add_f32 v16, 0x3727c5ac, v16")
    a("v_cvt_pk_bf16_f32 v16, v16, v16")
    a("v_lshlrev_b32 v16, 16, v16")
    a("v_sqrt_f32 v16, v16")
    a("s_nop 0")
    a("v_cvt_pk_bf16_f32 v16, v16, v16")
    a("v_lshlrev_b32 v16, 16, v16")
    a("v_rcp_f32 v16, v16")
    a("v_lshrrev_b32 v19, 1, v2")
    a("v_lshlrev_b32 v19, 2, v19")
    a("s_lshl_b32 s34, s33, 7")
    a(f"s_add_u32 s34, s34, {STATS}")
    a("v_add_u32 v19, s34, v19")
    a("ds_write_b32 v19, v14")
    a("ds_write_b32 v19, v16 offset:512")
    a("s_waitcnt lgkmcnt(0)")
    stamp(a, 3)
    a("s_barrier")
    a(f"s_branch {name}_fin")
    a.label(f"{name}_cons")
    a("s_and_b32 s33, s32, 1")
    a("s_lshr_b32 s34, s32, 1")
    a("v_and_b32 v4, 15, v2")
    a("v_lshrrev_b32 v6, 4, v2")
    a("v_lshrrev_b32 v5, 2, v4")
    a("v_and_b32 v7, 3, v4")
    a("v_lshl_add_u32 v7, v5, 3, v7")
    a("v_lshrrev_b32 v20, 1, v4")
    a("v_lshrrev_b32 v21, 2, v4")
    a("v_lshrrev_b32 v22, 3, v4")
    a("v_xor_b32 v21, v21, v22")
    a("v_and_b32 v21, 1, v21")
    a("v_xor_b32 v20, v20, v21")
    a("v_xor_b32 v20, v20, v6")
    a("v_lshlrev_b32 v20, 4, v20")
    a("v_lshl_add_u32 v20, v7, 7, v20")
    a("s_lshl_b32 s35, s33, 13")
    a("s_lshl_b32 s36, s34, 13")
    a("s_add_u32 s36, s36, 16384")
    for g2 in range(2):
        a(f"v_add_u32 v{8 + 4 * g2}, s35, v20")
        a(f"v_xor_b32 v{9 + 4 * g2}, 64, v{8 + 4 * g2}")
        a(f"v_add_u32 v{10 + 4 * g2}, s36, v20")
        a(f"v_xor_b32 v{11 + 4 * g2}, 64, v{10 + 4 * g2}")
        if g2:
            for r in range(4):
                a(f"v_add_u32 v{8 + 4 * g2 + r}, {65536 * g2}, v{8 + 4 * g2 + r}")
    ACC = 32
    FB = 96
    for i in range(64):
        a(f"v_mov_b32 v{ACC + i}, 0")
    a("s_waitcnt lgkmcnt(0)")
    stamp(a, 1)
    srd(a, 20, 6, 7, 4 << 20)
    NU = NST * 2

    def reads(u):
        s, ks = u // 2, u % 2
        slot = s % NSTG
        g2, so = slot // 2, (slot % 2) * SLOT
        f = FB + 32 * (u % 2)
        if ks == 0:
            a("s_waitcnt lgkmcnt(0)")
            a("s_barrier")
            if s == 0:
                stamp(a, 2)
        for i in range(4):
            off = so + (i >> 1) * 4096 + (i & 1) * 512
            a(f"ds_read_b128 v[{f + 4 * i}:{f + 3 + 4 * i}], v{8 + 4 * g2 + ks} offset:{off}")
            a(f"ds_read_b128 v[{f + 16 + 4 * i}:{f + 19 + 4 * i}], v{10 + 4 * g2 + ks} offset:{off}")

    reads(0)
    for u in range(NU):
        if u + 1 < NU:
            reads(u + 1)
            a("s_waitcnt lgkmcnt(8)")
        else:
            a("s_waitcnt lgkmcnt(0)")
        f = FB + 32 * (u % 2)
        for xi in range(4):
            for T in range(4):
                acc = ACC + (xi * 4 + T) * 4
                a(f"v_mfma_f32_16x16x32_bf16 v[{acc}:{acc + 3}], v[{f + 4 * xi}:{f + 3 + 4 * xi}], v[{f + 16 + 4 * T}:{f + 19 + 4 * T}], v[{acc}:{acc + 3}]")
    stamp(a, 3)
    a("s_barrier")
    stamp(a, 4)
    a("s_lshl_b32 s35, s33, 8")
    a(f"s_add_u32 s35, s35, {STATS}")
    a("v_lshlrev_b32 v20, 5, v6")
    a("v_add_u32 v20, s35, v20")
    for blk in range(2):
        for h in range(2):
            a(f"ds_read_b128 v[{96 + 16 * blk + 4 * h}:{99 + 16 * blk + 4 * h}], v20 offset:{128 * blk + 16 * h}")
            a(f"ds_read_b128 v[{104 + 16 * blk + 4 * h}:{107 + 16 * blk + 4 * h}], v20 offset:{512 + 128 * blk + 16 * h}")
    a("s_lshl_b32 s36, s34, 8")
    a(f"s_add_u32 s36, s36, {STATS + 1024}")
    a("v_lshlrev_b32 v21, 2, v7")
    a("v_add_u32 v21, s36, v21")
    for T in range(4):
        a(f"ds_read_b32 v{128 + T}, v21 offset:{(T >> 1) * 128 + (T & 1) * 16}")
    a("s_lshl_b32 s35, s31, 3")
    a("s_lshl_b32 s36, s34, 2")
    a("s_add_u32 s35, s35, s36")
    a("s_lshl_b32 s35, s35, 6")
    a("s_lshl_b32 s36, s30, 2")
    a("s_add_u32 s35, s35, s36")
    a("s_lshl_b32 s36, s33, 1")
    a("s_add_u32 s35, s35, s36")
    a("s_lshl_b32 s35, s35, 10")
    for T in range(4):
        a(f"s_add_u32 s{40 + T}, s35, {T * 65536}")
    a("v_lshlrev_b32 v22, 4, v2")
    a("s_waitcnt lgkmcnt(0)")
    for blk in range(2):
        for T in range(4):
            o = 132 + 4 * ((blk * 4 + T) & 3)
            for hb in range(2):
                acc = ACC + ((blk * 2 + hb) * 4 + T) * 4
                for j in range(4):
                    a(f"v_fma_f32 v{acc + j}, -v{96 + 16 * blk + 4 * hb + j}, v{128 + T}, v{acc + j}")
                    a(f"v_mul_f32 v{acc + j}, v{acc + j}, v{104 + 16 * blk + 4 * hb + j}")
                a(f"v_cvt_pk_bf16_f32 v{o + 2 * hb}, v{acc}, v{acc + 1}")
                a(f"v_cvt_pk_bf16_f32 v{o + 2 * hb + 1}, v{acc + 2}, v{acc + 3}")
            a(f"buffer_store_dwordx4 v[{o}:{o + 3}], v22, s[20:23], s{40 + T} offen offset:{blk * 1024}" + (" sc0 sc1" if wt else ""))
    stamp(a, 5)
    a(f"s_branch {name}_fin")
    a.label(f"{name}_pf")
    a("s_waitcnt lgkmcnt(0)")
    stamp(a, 1)
    if pf:
        a("v_lshlrev_b32 v3, 7, v2")
        a("v_lshrrev_b32 v4, 4, v2")
        a("v_lshlrev_b32 v4, 12, v4")
        a("v_and_b32 v5, 15, v2")
        a("v_lshl_add_u32 v4, v5, 7, v4")
        a("s_mul_i32 s33, s28, 12")
        a("s_add_u32 s33, s33, s32")
        nld = 0
        if pfxd:
            srd(a, 12, 4, 5, S * D * 2)
            srd(a, 16, 8, 9, D * D * 2)
            srd(a, 20, 10, 11, D * D * 2)
            a("s_lshl_b32 s34, s33, 13")
            a("s_lshl_b32 s35, s3, 18")
            a("s_add_u32 s35, s35, s34")
            a("s_cmp_lt_u32 s33, 32")
            a(f"s_cbranch_scc0 {name}_pf1")
            a("buffer_load_dword v10, v3, s[12:15], s35 offen")
            a(f"s_branch {name}_pf3")
            a.label(f"{name}_pf1")
            a("s_sub_u32 s34, s34, 262144")
            a("s_cmp_lt_u32 s33, 96")
            a(f"s_cbranch_scc0 {name}_pf2")
            a("buffer_load_dword v10, v3, s[16:19], s34 offen")
            a(f"s_branch {name}_pf3")
            a.label(f"{name}_pf2")
            a("s_sub_u32 s34, s34, 524288")
            a("buffer_load_dword v10, v3, s[20:23], s34 offen")
            a.label(f"{name}_pf3")
            if pace:
                a("s_waitcnt vmcnt(0)")
        a("s_and_b32 s48, s3, 1")
        a("s_cmp_eq_u32 s48, 1")
        a("s_cselect_b32 s40, s42, s40")
        a("s_cselect_b32 s41, s43, s41")
        srd(a, 24, 40, 41, S * S * 2)
        a("s_cmp_ge_u32 s33, 128")
        a(f"s_cbranch_scc1 {name}_fin")
        a("s_lshr_b32 s48, s3, 2")
        a("s_lshl_b32 s48, s48, 10")
        a("s_lshl_b32 s49, s33, 3")
        a("s_add_u32 s48, s48, s49")
        a("s_lshl_b32 s48, s48, 12")
        a("s_bfe_u32 s49, s3, 0x10001")
        a("s_lshl_b32 s49, s49, 11")
        a("s_add_u32 s48, s48, s49")
        a("buffer_load_dword v11, v4, s[24:27], s48 offen")
        if pace >= 2:
            a("s_waitcnt vmcnt(0)")
        a("s_add_u32 s48, s48, 16384")
        a("buffer_load_dword v12, v4, s[24:27], s48 offen")
    a.label(f"{name}_fin")
    stamp_flush(a, 1, 6, 6, 7)
    a.label(f"{name}_done")
    a("s_endpgm")
    return kernel_desc(name, 160, 64, 160)


WS_STATS = (12 << 20) + (1 << 19) + 8192
WS_FLAG1 = WS_STATS + 65536
WS_CS = WS_STATS + 16384


def gen_k1d(a, name, wt=1, PRO=3, pf=1, pace=1, pfq=4):
    NSTG, SLOT, NST = 4, 32768, 8
    STATS = NSTG * SLOT
    kernel_begin(a, name)
    a("s_cmp_ge_u32 s2, 256")
    a(f"s_cbranch_scc1 {name}_done")
    stamp(a, 0)
    a("s_load_dwordx2 s[4:5], s[0:1], 0")
    a("s_load_dwordx4 s[8:11], s[0:1], 24")
    a("s_load_dwordx4 s[44:47], s[0:1], 88")
    a("s_load_dwordx4 s[40:43], s[0:1], 8")
    a("s_and_b32 s3, s2, 7")
    a("s_lshr_b32 s28, s2, 4")
    a("s_and_b32 s29, s28, 1")
    a("s_lshl_b32 s30, s3, 1")
    a("s_add_u32 s30, s30, s29")
    a("s_lshr_b32 s31, s28, 1")
    a("v_lshrrev_b32 v1, 6, v0")
    a("v_and_b32 v2, 63, v0")
    a("s_nop 0")
    a("v_readfirstlane_b32 s32, v1")
    a("s_mov_b32 s53, 0xffff0000")
    a("s_bitcmp1_b32 s2, 3")
    a(f"s_cbranch_scc1 {name}_aux")
    a("s_cmp_lt_u32 s32, 4")
    a(f"s_cbranch_scc1 {name}_cons")
    a("s_sub_u32 s33, s32, 4")
    a("v_lshrrev_b32 v3, 3, v2")
    a("v_and_b32 v4, 7, v2")
    a("v_bfe_u32 v5, v2, 4, 1")
    a("v_xor_b32 v4, v4, v5")
    a("v_lshlrev_b32 v3, 10, v3")
    for i in range(4):
        g0g1 = (i & 1) ^ (i >> 1)
        a(f"v_xor_b32 v{8 + i}, {(2 * i) ^ g0g1}, v4")
        a(f"v_lshl_add_u32 v{8 + i}, v{8 + i}, 4, v3")
        if i:
            a(f"v_add_u32 v{8 + i}, {i * (8192 - 1024)}, v{8 + i}")
    a("s_lshl_b32 s34, s33, 5")
    a("s_lshl_b32 s35, s30, 7")
    a("s_add_u32 s35, s35, s34")
    a("s_lshl_b32 s38, s35, 3")
    a("s_lshl_b32 s35, s35, 10")
    a("s_and_b32 s36, s31, 3")
    a("s_lshl_b32 s36, s36, 7")
    a("s_add_u32 s36, s36, s34")
    a("s_lshl_b32 s36, s36, 10")
    a("s_lshl_b32 s37, s33, 12")
    a("v_lshlrev_b32 v12, 6, v2")
    a("v_add_u32 v12, s37, v12")
    a("v_add_u32 v12, 16384, v12")
    a(f"v_add_u32 v13, {2 * SLOT}, v12")
    a("v_mov_b32 v14, 0")
    a("v_mov_b32 v15, 0")
    a("s_mov_b32 s50, 0x3f803f80")
    a("s_waitcnt lgkmcnt(0)")
    stamp(a, 1)
    srd(a, 12, 4, 5, S * D * 2)
    a("s_cmp_ge_u32 s31, 4")
    a("s_cselect_b32 s8, s10, s8")
    a("s_cselect_b32 s9, s11, s9")
    srd(a, 16, 8, 9, D * D * 2)
    srd(a, 20, 46, 47, 14 << 20)
    srd(a, 24, 44, 45, 256)

    def load_stage(kk):
        slot = (kk % NSTG) * SLOT
        a(f"s_add_u32 m0, s37, {slot}")
        a(f"s_add_u32 s39, s35, {kk * 128}")
        for i in range(4):
            a(f"buffer_load_dwordx4 v{8 + i}, s[12:15], s39 offen offset:{i * 1024} lds")
        a(f"s_add_u32 m0, s37, {slot + 16384}")
        a(f"s_add_u32 s39, s36, {kk * 128}")
        for i in range(4):
            a(f"buffer_load_dwordx4 v{8 + i}, s[16:19], s39 offen offset:{i * 1024} lds")

    for kk in range(PRO):
        load_stage(kk)
    stamp(a, 2)
    issued = PRO
    for kk in range(NST):
        a(f"s_waitcnt vmcnt({(issued - 1 - kk) * 8})")
        slot = kk % NSTG
        ar, so = (12, slot * SLOT) if slot < 2 else (13, (slot - 2) * SLOT)
        for q in range(4):
            a(f"ds_read_b128 v[{16 + 4 * q}:{19 + 4 * q}], v{ar} offset:{so + 16 * q}")
        a("s_barrier")
        n_new = 0
        while issued < NST and issued - NSTG < kk and n_new < 2:
            load_stage(issued)
            issued += 1
            n_new += 1
        a("s_waitcnt lgkmcnt(0)")
        for r in range(16):
            a(f"v_dot2_f32_bf16 v{14 + (r & 1)}, v{16 + r}, s50, v{14 + (r & 1)}")
    a("s_lshl_b32 s34, s30, 2")
    a("v_mov_b32 v20, s34")
    a.label(f"{name}_poll")
    a("buffer_load_dword v21, v20, s[24:27], 0 offen sc0 sc1")
    a("s_waitcnt vmcnt(0)")
    a("v_readfirstlane_b32 s34, v21")
    a("s_cmp_ge_u32 s34, 8")
    a(f"s_cbranch_scc1 {name}_polled")
    a("s_sleep 2")
    a(f"s_branch {name}_poll")
    a.label(f"{name}_polled")
    a("v_and_b32 v20, 31, v2")
    a("v_lshlrev_b32 v20, 3, v20")
    a(f"s_add_u32 s38, s38, {WS_STATS}")
    a("buffer_load_dwordx2 v[22:23], v20, s[20:23], s38 offen sc0 sc1")
    a("v_add_f32 v14, v14, v15")
    a("s_nop 1")
    a(f"v_add_f32_dpp v14, v14, v14 quad_perm:[1,0,3,2] {DPP}")
    a("v_lshrrev_b32 v19, 1, v2")
    a("v_lshlrev_b32 v19, 2, v19")
    a("s_lshl_b32 s34, s33, 7")
    a(f"s_add_u32 s34, s34, {STATS + 1024}")
    a("v_add_u32 v19, s34, v19")
    a("ds_write_b32 v19, v14")
    a("v_lshrrev_b32 v20, 1, v20")
    a("s_lshl_b32 s34, s33, 7")
    a(f"s_add_u32 s34, s34, {STATS}")
    a("v_add_u32 v20, s34, v20")
    a("s_waitcnt vmcnt(0)")
    a("ds_write_b32 v20, v22")
    a("ds_write_b32 v20, v23 offset:512")
    a("s_waitcnt lgkmcnt(0)")
    stamp(a, 3)
    a("s_barrier")
    a(f"s_branch {name}_fin")
    a.label(f"{name}_cons")
    a("s_and_b32 s33, s32, 1")
    a("s_lshr_b32 s34, s32, 1")
    a("v_and_b32 v4, 15, v2")
    a("v_lshrrev_b32 v6, 4, v2")
    a("v_lshrrev_b32 v5, 2, v4")
    a("v_and_b32 v7, 3, v4")
    a("v_lshl_add_u32 v7, v5, 3, v7")
    a("v_lshrrev_b32 v20, 1, v4")
    a("v_lshrrev_b32 v21, 2, v4")
    a("v_lshrrev_b32 v22, 3, v4")
    a("v_xor_b32 v21, v21, v22")
    a("v_and_b32 v21, 1, v21")
    a("v_xor_b32 v20, v20, v21")
    a("v_xor_b32 v20, v20, v6")
    a("v_lshlrev_b32 v20, 4, v20")
    a("v_lshl_add_u32 v20, v7, 7, v20")
    a("s_lshl_b32 s35, s33, 13")
    a("s_lshl_b32 s36, s34, 13")
    a("s_add_u32 s36, s36, 16384")
    for g2 in range(2):
        a(f"v_add_u32 v{8 + 4 * g2}, s35, v20")
        a(f"v_xor_b32 v{9 + 4 * g2}, 64, v{8 + 4 * g2}")
        a(f"v_add_u32 v{10 + 4 * g2}, s36, v20")
        a(f"v_xor_b32 v{11 + 4 * g2}, 64, v{10 + 4 * g2}")
        if g2:
            for r in range(4):
                a(f"v_add_u32 v{8 + 4 * g2 + r}, {65536 * g2}, v{8 + 4 * g2 + r}")
    ACC = 32
    FB = 96
    for i in range(64):
        a(f"v_mov_b32 v{ACC + i}, 0")
    a("s_waitcnt lgkmcnt(0)")
    stamp(a, 1)
    srd(a, 20, 46, 47, 4 << 20)
    NU = NST * 2

    def read_list(u):
        s, ks = u // 2, u % 2
        slot = s % NSTG
        g2, so = slot // 2, (slot % 2) * SLOT
        f = FB + 32 * (u % 2)
        L = []
        for i in range(4):
            off = so + (i >> 1) * 4096 + (i & 1) * 512
            L.append(f"ds_read_b128 v[{f + 4 * i}:{f + 3 + 4 * i}], v{8 + 4 * g2 + ks} offset:{off}")
            L.append(f"ds_read_b128 v[{f + 16 + 4 * i}:{f + 19 + 4 * i}], v{10 + 4 * g2 + ks} offset:{off}")
        return L

    a("s_barrier")
    stamp(a, 2)
    for r in read_list(0):
        a(r)
    for u in range(NU):
        a("s_waitcnt lgkmcnt(0)")
        f = FB + 32 * (u % 2)
        nxt = read_list(u + 1) if u + 1 < NU else []
        n = 0
        for xi in range(4):
            for T in range(4):
                acc = ACC + (xi * 4 + T) * 4
                a(f"v_mfma_f32_16x16x32_bf16 v[{acc}:{acc + 3}], v[{f + 4 * xi}:{f + 3 + 4 * xi}], v[{f + 16 + 4 * T}:{f + 19 + 4 * T}], v[{acc}:{acc + 3}]")
                n += 1
                if n == 1 and nxt and (u + 1) % 2 == 0:
                    a("s_barrier")
                if nxt:
                    a(nxt.pop(0))
    stamp(a, 3)
    a("s_barrier")
    stamp(a, 4)
    a("s_lshl_b32 s35, s33, 8")
    a(f"s_add_u32 s35, s35, {STATS}")
    a("v_lshlrev_b32 v20, 5, v6")
    a("v_add_u32 v20, s35, v20")
    for blk in range(2):
        for h in range(2):
            a(f"ds_read_b128 v[{96 + 16 * blk + 4 * h}:{99 + 16 * blk + 4 * h}], v20 offset:{128 * blk + 16 * h}")
            a(f"ds_read_b128 v[{104 + 16 * blk + 4 * h}:{107 + 16 * blk + 4 * h}], v20 offset:{512 + 128 * blk + 16 * h}")
    a("s_lshl_b32 s36, s34, 8")
    a(f"s_add_u32 s36, s36, {STATS + 1024}")
    a("v_lshlrev_b32 v21, 2, v7")
    a("v_add_u32 v21, s36, v21")
    for T in range(4):
        a(f"ds_read_b32 v{128 + T}, v21 offset:{(T >> 1) * 128 + (T & 1) * 16}")
    a("s_lshl_b32 s35, s31, 3")
    a("s_lshl_b32 s36, s34, 2")
    a("s_add_u32 s35, s35, s36")
    a("s_lshl_b32 s35, s35, 6")
    a("s_lshl_b32 s36, s30, 2")
    a("s_add_u32 s35, s35, s36")
    a("s_lshl_b32 s36, s33, 1")
    a("s_add_u32 s35, s35, s36")
    a("s_lshl_b32 s35, s35, 10")
    for T in range(4):
        a(f"s_add_u32 s{40 + T}, s35, {T * 65536}")
    a("v_lshlrev_b32 v22, 4, v2")
    a("s_waitcnt lgkmcnt(0)")
    for blk in range(2):
        for T in range(4):
            o = 132 + 4 * ((blk * 4 + T) & 3)
            for hb in range(2):
                acc = ACC + ((blk * 2 + hb) * 4 + T) * 4
                for j in range(4):
                    a(f"v_fma_f32 v{acc + j}, -v{96 + 16 * blk + 4 * hb + j}, v{128 + T}, v{acc + j}")
                    a(f"v_mul_f32 v{acc + j}, v{acc + j}, v{104 + 16 * blk + 4 * hb + j}")
                a(f"v_cvt_pk_bf16_f32 v{o + 2 * hb}, v{acc}, v{acc + 1}")
                a(f"v_cvt_pk_bf16_f32 v{o + 2 * hb + 1}, v{acc + 2}, v{acc + 3}")
            a(f"buffer_store_dwordx4 v[{o}:{o + 3}], v22, s[20:23], s{40 + T} offen offset:{blk * 1024}" + (" sc0 sc1" if wt else ""))
    stamp(a, 5)
    a(f"s_branch {name}_fin")
    a.label(f"{name}_aux")
    a("v_mov_b32 v3, 0")
    a("ds_write_b32 v3, v3")
    a("s_waitcnt lgkmcnt(0)")
    a("s_barrier")
    stamp(a, 1)
    a("s_cmp_ge_u32 s32, 4")
    a(f"s_cbranch_scc1 {name}_pfw")
    a("s_lshl_b32 s33, s3, 8")
    a("s_lshl_b32 s34, s28, 4")
    a("s_add_u32 s33, s33, s34")
    a("s_lshl_b32 s34, s32, 2")
    a("s_add_u32 s33, s33, s34")
    a("v_lshrrev_b32 v3, 4, v2")
    a("v_and_b32 v4, 15, v2")
    a("v_lshlrev_b32 v5, 10, v3")
    a("v_lshl_add_u32 v5, v4, 4, v5")
    a("s_lshl_b32 s34, s33, 10")
    srd(a, 12, 4, 5, S * D * 2)
    for jj in range(4):
        a(f"buffer_load_dwordx4 v[{16 + 4 * jj}:{19 + 4 * jj}], v5, s[12:15], s34 offen offset:{256 * jj}")
    srd(a, 20, 46, 47, 14 << 20)
    srd(a, 28, 44, 45, 256)
    a("s_waitcnt vmcnt(0)")
    stamp(a, 2)
    X = 32
    for r in range(16):
        a(f"v_lshlrev_b32 v{X + 2 * r}, 16, v{16 + r}")
        a(f"v_and_b32 v{X + 2 * r + 1}, s53, v{16 + r}")
    a(f"v_add_f32 v8, v{X}, v{X + 1}")
    a(f"v_add_f32 v9, v{X + 2}, v{X + 3}")
    for r in range(4, 32, 2):
        a(f"v_add_f32 v8, v8, v{X + r}")
        a(f"v_add_f32 v9, v9, v{X + r + 1}")
    a("v_add_f32 v8, v8, v9")

    def red16(v):
        for pat in ("quad_perm:[1,0,3,2]", "quad_perm:[2,3,0,1]", "row_half_mirror", "row_mirror"):
            a("s_nop 1")
            a(f"v_add_f32_dpp v{v}, v{v}, v{v} {pat} {DPP}")

    red16(8)
    a("v_mul_f32 v8, 0x3b000000, v8")
    a("v_mov_b32 v10, 0")
    a("v_mov_b32 v11, 0")
    for r in range(0, 32, 2):
        a(f"v_sub_f32 v{X + r}, v{X + r}, v8")
        a(f"v_sub_f32 v{X + r + 1}, v{X + r + 1}, v8")
        a(f"v_fmac_f32 v10, v{X + r}, v{X + r}")
        a(f"v_fmac_f32 v11, v{X + r + 1}, v{X + r + 1}")
    a("v_add_f32 v10, v10, v11")
    red16(10)
    a("v_mul_f32 v10, 0x3b000000, v10")
    a("v_cvt_pk_bf16_f32 v12, v8, v8")
    a("v_lshlrev_b32 v12, 16, v12")
    a("v_cvt_pk_bf16_f32 v10, v10, v10")
    a("v_lshlrev_b32 v10, 16, v10")
    a("v_add_f32 v10, 0x3727c5ac, v10")
    a("v_cvt_pk_bf16_f32 v10, v10, v10")
    a("v_lshlrev_b32 v10, 16, v10")
    a("v_sqrt_f32 v10, v10")
    a("s_nop 0")
    a("v_cvt_pk_bf16_f32 v10, v10, v10")
    a("v_lshlrev_b32 v10, 16, v10")
    a("v_rcp_f32 v13, v10")
    a("v_lshlrev_b32 v14, 3, v3")
    a("s_lshl_b32 s36, s33, 3")
    a(f"s_add_u32 s36, s36, {WS_STATS}")
    a("v_cmp_eq_u32 vcc, 0, v4")
    a("s_and_saveexec_b64 s[54:55], vcc")
    a("buffer_store_dwordx2 v[12:13], v14, s[20:23], s36 offen sc0 sc1")
    a("s_mov_b64 exec, s[54:55]")
    a("s_waitcnt vmcnt(0)")
    stamp(a, 3)
    a("v_mov_b32 v14, 0")
    a("v_mov_b32 v15, 1")
    a("v_cmp_eq_u32 vcc, 0, v2")
    a("s_and_saveexec_b64 s[54:55], vcc")
    a("ds_add_rtn_u32 v6, v14, v15")
    a("s_waitcnt lgkmcnt(0)")
    a("v_readfirstlane_b32 s36, v6")
    a("s_cmp_lg_u32 s36, 3")
    a(f"s_cbranch_scc1 {name}_nosig")
    a("s_lshr_b32 s36, s33, 7")
    a("s_lshl_b32 s36, s36, 2")
    a("v_mov_b32 v14, s36")
    a("buffer_atomic_add v15, v14, s[28:31], 0 offen")
    a.label(f"{name}_nosig")
    a("s_mov_b64 exec, s[54:55]")
    a(f"s_branch {name}_fin")
    a.label(f"{name}_pfw")
    a("v_lshlrev_b32 v6, 7, v2")
    a("v_lshrrev_b32 v7, 4, v2")
    a("v_lshlrev_b32 v7, 12, v7")
    a("v_and_b32 v8, 15, v2")
    a("v_lshl_add_u32 v7, v8, 7, v7")
    a("s_lshl_b32 s35, s28, 2")
    a("s_add_u32 s35, s35, s32")
    a("s_sub_u32 s35, s35, 4")
    srd(a, 16, 8, 9, D * D * 2)
    srd(a, 20, 10, 11, D * D * 2)
    a("s_lshl_b32 s36, s35, 13")
    a("buffer_load_dword v10, v6, s[16:19], s36 offen")
    a("buffer_load_dword v11, v6, s[20:23], s36 offen")
    a("s_and_b32 s48, s3, 1")
    a("s_cmp_eq_u32 s48, 1")
    a("s_cselect_b32 s40, s42, s40")
    a("s_cselect_b32 s41, s43, s41")
    srd(a, 24, 40, 41, S * S * 2)
    a("s_lshr_b32 s48, s3, 2")
    a("s_lshl_b32 s48, s48, 10")
    a("s_lshl_b32 s49, s35, 4")
    a("s_add_u32 s48, s48, s49")
    a("s_lshl_b32 s48, s48, 12")
    a("s_bfe_u32 s49, s3, 0x10001")
    a("s_lshl_b32 s49, s49, 11")
    a("s_add_u32 s48, s48, s49")
    if pace:
        a("s_waitcnt vmcnt(0)")
    stamp(a, 2)
    if pf:
        if pfq < 4:
            a(f"v_cmp_gt_u32 vcc, {4 * pfq}, v8")
            a("s_and_saveexec_b64 s[54:55], vcc")
        for ii in range(4):
            a(f"s_add_u32 s49, s48, {ii * 16384}")
            a(f"buffer_load_dword v{12 + ii}, v7, s[24:27], s49 offen")
        if pfq < 4:
            a("s_mov_b64 exec, s[54:55]")
    a.label(f"{name}_fin")
    stamp_flush(a, 1, 6, 46, 47)
    a.label(f"{name}_done")
    a("s_endpgm")
    return kernel_desc(name, 160, 64, 160)


def gen_k1e(a, name, wt=1, PRO=4, pf=1, pace=1, U1=10, U2=12, pfq=4, pol=0, ppol=0, tlb=0, UC=13, vst=0, swap=1, wk1=0, early=0, fuse2=None, cpre=0):
    POL = {0: '', 1: ' sc1', 2: ' nt', 3: ' sc0'}[pol]
    PPOL = {0: '', 1: ' sc1', 2: ' nt', 3: ' sc0'}[ppol]
    NSTG, SLOT, NST = 5, 32768, 8
    CS = 3 * SLOT
    kernel_begin(a, name)
    a("s_cmp_ge_u32 s2, 256")
    a(f"s_cbranch_scc1 {name}_done")
    stamp(a, 0)
    a("s_load_dwordx2 s[4:5], s[0:1], 0")
    a("s_load_dwordx4 s[8:11], s[0:1], 24")
    a("s_load_dwordx4 s[44:47], s[0:1], 88")
    a("s_load_dwordx4 s[40:43], s[0:1], 8")
    a("s_and_b32 s3, s2, 7")
    a("s_lshr_b32 s28, s2, 4")
    a("s_and_b32 s29, s3, 1")
    a("s_bfe_u32 s27, s3, 0x10001")
    a("s_lshr_b32 s26, s3, 2")
    a("s_lshl_b32 s30, s27, 3")
    a("s_lshl_b32 s34, s26, 2")
    a("s_add_u32 s30, s30, s34")
    a("s_and_b32 s34, s28, 3")
    a("s_add_u32 s30, s30, s34")
    a("s_lshr_b32 s31, s28, 2")
    a("v_lshrrev_b32 v1, 6, v0")
    a("v_and_b32 v2, 63, v0")
    a("s_nop 0")
    a("v_readfirstlane_b32 s32, v1")
    a("s_mov_b32 s53, 0xffff0000")
    a("s_mov_b32 s69, 0x40000")
    a("s_bitcmp1_b32 s2, 3")
    a(f"s_cbranch_scc1 {name}_aux")
    if swap:
        a("s_xor_b32 s32, s32, 4")
    a("s_cmp_lt_u32 s32, 4")
    a(f"s_cbranch_scc1 {name}_cons")
    a("s_sub_u32 s33, s32, 4")
    a("v_lshrrev_b32 v3, 3, v2")
    a("v_and_b32 v4, 7, v2")
    a("v_bfe_u32 v5, v2, 4, 1")
    a("v_xor_b32 v4, v4, v5")
    a("v_lshlrev_b32 v3, 10, v3")
    for i in range(4):
        g0g1 = (i & 1) ^ (i >> 1)
        a(f"v_xor_b32 v{8 + i}, {(2 * i) ^ g0g1}, v4")
        a(f"v_lshl_add_u32 v{8 + i}, v{8 + i}, 4, v3")
        if i:
            a(f"v_add_u32 v{8 + i}, {i * (8192 - 1024)}, v{8 + i}")
    a("s_lshl_b32 s34, s33, 5")
    a("s_lshl_b32 s35, s30, 7")
    a("s_add_u32 s35, s35, s34")
    a("s_lshl_b32 s35, s35, 10")
    a("s_lshl_b32 s36, s31, 7")
    a("s_add_u32 s36, s36, s34")
    a("s_lshl_b32 s36, s36, 10")
    a("s_lshl_b32 s37, s33, 12")
    a("v_lshlrev_b32 v12, 6, v2")
    a("v_add_u32 v12, s37, v12")
    a("v_add_u32 v12, 16384, v12")
    a(f"v_add_u32 v13, {2 * SLOT}, v12")
    a(f"v_add_u32 v6, {4 * SLOT}, v12")
    a("v_mov_b32 v14, 0")
    a("v_mov_b32 v15, 0")
    a("s_mov_b32 s50, 0x3f803f80")
    a("s_waitcnt lgkmcnt(0)")
    stamp(a, 1)
    srd(a, 12, 4, 5, S * D * 2)
    a("s_cmp_eq_u32 s29, 1")
    a("s_cselect_b32 s8, s10, s8")
    a("s_cselect_b32 s9, s11, s9")
    srd(a, 16, 8, 9, D * D * 2)

    def load_stage(kk):
        slot = (kk % NSTG) * SLOT
        a(f"s_add_u32 m0, s37, {slot}")
        a(f"s_add_u32 s39, s35, {kk * 128}")
        for i in range(4):
            a(f"buffer_load_dwordx4 v{8 + i}, s[12:15], s39 offen offset:{i * 1024}{POL} lds")
        a(f"s_add_u32 m0, s37, {slot + 16384}")
        a(f"s_add_u32 s39, s36, {kk * 128}")
        for i in range(4):
            a(f"buffer_load_dwordx4 v{8 + i}, s[16:19], s39 offen offset:{i * 1024}{POL} lds")

    if vst:
        VB = 32

        def vload_stage(kk):
            r = VB + (kk - NSTG) * 32
            a(f"s_add_u32 s39, s35, {kk * 128}")
            for i in range(4):
                a(f"buffer_load_dwordx4 v[{r + 4 * i}:{r + 4 * i + 3}], v{8 + i}, s[12:15], s39 offen offset:{i * 1024}")
            a(f"s_add_u32 s39, s36, {kk * 128}")
            for i in range(4):
                a(f"buffer_load_dwordx4 v[{r + 16 + 4 * i}:{r + 19 + 4 * i}], v{8 + i}, s[16:19], s39 offen offset:{i * 1024}")

        def vwrite_stage(kk):
            r = VB + (kk - NSTG) * 32
            slot = (kk % NSTG) * SLOT
            ar = 16 if slot < 65536 - 32768 + 1 else 17
            so = slot if ar == 16 else slot - 65536
            for i in range(4):
                a(f"ds_write_b128 v{ar}, v[{r + 4 * i}:{r + 4 * i + 3}] offset:{so + i * 1024}")
                a(f"ds_write_b128 v{ar}, v[{r + 16 + 4 * i}:{r + 19 + 4 * i}] offset:{so + 16384 + i * 1024}")

        a("v_lshlrev_b32 v16, 4, v2")
        a("v_add_u32 v16, s37, v16")
        a("v_add_u32 v17, 65536, v16")
        for kk in range(PRO):
            load_stage(kk)
        stamp(a, 2)
        issued = PRO
        for kk in range(NST):
            if kk < NSTG:
                a(f"s_waitcnt vmcnt({(issued - 1 - kk) * 8})")
            else:
                a("s_waitcnt lgkmcnt(0)")
            a("s_barrier")
            n_new = 0
            while issued < NST and n_new < 2:
                (load_stage if issued < NSTG else vload_stage)(issued)
                issued += 1
                n_new += 1
            if NSTG <= kk + 1 < NST:
                a(f"s_waitcnt vmcnt({(issued - 1 - (kk + 1)) * 8})")
                vwrite_stage(kk + 1)
    else:
        for kk in range(PRO):
            load_stage(kk)
        stamp(a, 2)
        issued = PRO
        for kk in range(NST):
            a(f"s_waitcnt vmcnt({(issued - 1 - kk) * 8})")
            a("s_barrier")
            n_new = 0
            while issued < NST and issued - NSTG < kk and n_new < 2:
                load_stage(issued)
                issued += 1
                n_new += 1
    stamp(a, 3)
    if fuse2:
        a("s_barrier")
    a(f"s_branch {name}_fin")
    a.label(f"{name}_cons")
    a("s_and_b32 s33, s32, 1")
    a("s_lshr_b32 s34, s32, 1")
    a("v_and_b32 v4, 15, v2")
    a("v_lshrrev_b32 v6, 4, v2")
    a("v_lshrrev_b32 v5, 2, v4")
    a("v_and_b32 v7, 3, v4")
    a("v_lshl_add_u32 v7, v5, 3, v7")
    a("v_lshrrev_b32 v20, 1, v4")
    a("v_lshrrev_b32 v21, 2, v4")
    a("v_lshrrev_b32 v22, 3, v4")
    a("v_xor_b32 v21, v21, v22")
    a("v_and_b32 v21, 1, v21")
    a("v_xor_b32 v20, v20, v21")
    a("v_xor_b32 v20, v20, v6")
    a("v_lshlrev_b32 v20, 4, v20")
    a("v_lshl_add_u32 v20, v7, 7, v20")
    a("s_lshl_b32 s35, s33, 13")
    a("s_lshl_b32 s36, s34, 13")
    a("s_add_u32 s36, s36, 16384")
    for g2 in range(3):
        a(f"v_add_u32 v{8 + 4 * g2}, s35, v20")
        a(f"v_xor_b32 v{9 + 4 * g2}, 64, v{8 + 4 * g2}")
        a(f"v_add_u32 v{10 + 4 * g2}, s36, v20")
        a(f"v_xor_b32 v{11 + 4 * g2}, 64, v{10 + 4 * g2}")
        if g2:
            for r in range(4):
                a(f"v_add_u32 v{8 + 4 * g2 + r}, {65536 * g2}, v{8 + 4 * g2 + r}")
    ACC = 32
    FB = 96
    ST = 160
    for i in range(64):
        a(f"v_mov_b32 v{ACC + i}, 0")
    a("s_lshl_b32 s38, s30, 7")
    a("s_lshl_b32 s39, s33, 6")
    a("s_add_u32 s38, s38, s39")
    a("s_lshl_b32 s38, s38, 3")
    a(f"s_add_u32 s38, s38, {WS_STATS}")
    a("v_lshlrev_b32 v23, 6, v6")
    a("v_mov_b32 v24, 0")
    a("s_lshl_b32 s39, s29, 9")
    a("s_lshl_b32 s61, s31, 7")
    a("s_add_u32 s39, s39, s61")
    a("s_lshl_b32 s61, s34, 6")
    a("s_add_u32 s39, s39, s61")
    a("s_lshl_b32 s39, s39, 3")
    a(f"s_add_u32 s61, s39, {WS_CS}")
    a("v_lshlrev_b32 v21, 3, v7")
    a("s_waitcnt lgkmcnt(0)")
    stamp(a, 1)
    srd(a, 20, 46, 47, 14 << 20)
    srd(a, 24, 44, 45, 256)
    if fuse2 and SENT in (1, 2):
        a("s_lshr_b32 s56, s2, 3")
        a("s_lshr_b32 s57, s3, 2")
        a("s_lshl_b32 s57, s57, 3")
        a("s_and_b32 s58, s56, 7")
        a("s_add_u32 s57, s57, s58")
        a("s_lshr_b32 s56, s56, 3")
        a("s_lshl_b32 s57, s57, 7")
        a("s_lshl_b32 s58, s33, 6")
        a("s_add_u32 s57, s57, s58")
        a("s_lshl_b32 s57, s57, 10")
        a("s_lshl_b32 s58, s56, 8")
        a("s_add_u32 s57, s57, s58")
        a("s_lshl_b32 s58, s34, 7")
        a("s_add_u32 s57, s57, s58")
        a("s_bfe_u32 s58, s3, 0x10001")
        a("s_lshl_b32 s59, s29, 1")
        a("s_add_u32 s58, s58, s59")
        a("s_lshl_b32 s58, s58, 21")
        a("s_add_u32 s57, s57, s58")
        a(f"s_add_u32 s57, s57, {WS_P}")
        a("v_lshlrev_b32 v26, 4, v6")
        a("v_lshl_add_u32 v26, v4, 10, v26")
        for r in range(4):
            a(f"v_mov_b32 v{28 + r}, -1")
        for tt in range(4):
            a(f"s_add_u32 s58, s57, {tt * 16384}")
            for Th in range(2):
                a(f"buffer_store_dwordx4 v[28:31], v26, s[20:23], s58 offen offset:{Th * 64} sc0 sc1")
    NU = NST * 2

    def read_list(u):
        s, ks = u // 2, u % 2
        slot = s % NSTG
        g2, so = slot // 2, (slot % 2) * SLOT
        f = FB + 32 * (u % 2)
        L = []
        for i in range(4):
            off = so + (i >> 1) * 4096 + (i & 1) * 512
            L.append(f"ds_read_b128 v[{f + 4 * i}:{f + 3 + 4 * i}], v{8 + 4 * g2 + ks} offset:{off}")
            L.append(f"ds_read_b128 v[{f + 16 + 4 * i}:{f + 19 + 4 * i}], v{10 + 4 * g2 + ks} offset:{off}")
        return L

    def stats_loads():
        for blk in range(2):
            for q4 in range(4):
                r = ST + 16 * blk + 4 * q4
                a(f"buffer_load_dwordx4 v[{r}:{r + 3}], v23, s[20:23], s38 offen offset:{256 * blk + 16 * q4} sc1")
        for T in range(4):
            a(f"buffer_load_dwordx2 v[{192 + 2 * T}:{193 + 2 * T}], v21, s[20:23], s61 offen offset:{(T >> 1) * 256 + (T & 1) * 32} sc1")
        a("buffer_load_dword v25, v24, s[24:27], 0 offen sc1")

    a("s_lshl_b32 s35, s29, 5")
    a("s_lshl_b32 s36, s31, 3")
    a("s_add_u32 s35, s35, s36")
    a("s_lshl_b32 s36, s34, 2")
    a("s_add_u32 s35, s35, s36")
    a("s_lshl_b32 s35, s35, 6")
    a("s_lshl_b32 s36, s30, 2")
    a("s_add_u32 s35, s35, s36")
    a("s_lshl_b32 s36, s33, 1")
    a("s_add_u32 s35, s35, s36")
    a("s_lshl_b32 s35, s35, 10")
    for T in range(4):
        a(f"s_add_u32 s{40 + T}, s35, {T * 65536}")

    def check_ops():
        L = [f"v_xor_b32 v26, v25, v{ST + 1}"]
        for r in range(1, 16):
            L.append(f"v_xor_b32 v27, v25, v{ST + 2 * r + 1}")
            L.append("v_or_b32 v26, v26, v27")
        for T in range(4):
            L.append(f"v_xor_b32 v27, v25, v{193 + 2 * T}")
            L.append("v_or_b32 v26, v26, v27")
        for r in range(16):
            L.append(f"v_lshlrev_b32 v{ST + 2 * r + 1}, 16, v{ST + 2 * r}")
            L.append(f"v_rcp_f32 v{ST + 2 * r + 1}, v{ST + 2 * r + 1}")
            L.append(f"v_and_b32 v{ST + 2 * r}, s53, v{ST + 2 * r}")
        return L

    a("s_barrier")
    stamp(a, 2)
    for r in read_list(0):
        a(r)
    shadow = []
    for u in range(NU):
        a("s_waitcnt lgkmcnt(0)")
        f = FB + 32 * (u % 2)
        nxt = read_list(u + 1) if u + 1 < NU else []
        n = 0
        if u == UC:
            a("s_waitcnt vmcnt(0)")
            shadow = check_ops()
        for xi in range(4):
            for T in range(4):
                acc = ACC + (xi * 4 + T) * 4
                a(f"v_mfma_f32_16x16x32_bf16 v[{acc}:{acc + 3}], v[{f + 4 * xi}:{f + 3 + 4 * xi}], v[{f + 16 + 4 * T}:{f + 19 + 4 * T}], v[{acc}:{acc + 3}]")
                n += 1
                if n == 1 and nxt and (u + 1) % 2 == 0:
                    a("s_barrier")
                if nxt:
                    a(nxt.pop(0))
                for _ in range(2):
                    if shadow:
                        a(shadow.pop(0))
                if u == U1 and n == 10:
                    stats_loads()
    for op in shadow:
        a(op)
    stamp(a, 3)
    a.label(f"{name}_chk")
    a("v_cmp_eq_u32 vcc, 0, v25")
    a("v_cmp_ne_u32 s[62:63], 0, v26")
    a("s_or_b64 s[62:63], s[62:63], vcc")
    a(f"s_cbranch_scc0 {name}_have")
    a("s_sleep 4")
    stats_loads()
    a("s_waitcnt vmcnt(0)")
    for op in check_ops():
        a(op)
    a("s_sub_u32 s69, s69, 1")
    a(f"s_cbranch_scc0 {name}_chk")
    a("s_mov_b32 s69, 0")
    a.label(f"{name}_have")
    stamp(a, 4)
    a("v_lshlrev_b32 v22, 4, v2")
    a("s_nop 4")
    for blk in range(2):
        for T in range(4):
            o = 132 + 4 * ((blk * 4 + T) & 3)
            for hb in range(2):
                acc = ACC + ((blk * 2 + hb) * 4 + T) * 4
                for j in range(4):
                    sr = ST + 16 * blk + 2 * (4 * hb + j)
                    a(f"v_fma_f32 v{acc + j}, -v{sr}, v{192 + 2 * T}, v{acc + j}")
                    a(f"v_mul_f32 v{acc + j}, v{acc + j}, v{sr + 1}")
                a(f"v_cvt_pk_bf16_f32 v{o + 2 * hb}, v{acc}, v{acc + 1}")
                a(f"v_cvt_pk_bf16_f32 v{o + 2 * hb + 1}, v{acc + 2}, v{acc + 3}")
            a(f"buffer_store_dwordx4 v[{o}:{o + 3}], v22, s[20:23], s{40 + T} offen offset:{blk * 1024}" + (" sc0 sc1" if wt else ""))
    stamp(a, 5)
    if fuse2:
        a("s_bfe_u32 s36, s3, 0x10001")
        a("s_lshl_b32 s35, s29, 1")
        a("s_add_u32 s35, s35, s36")
        a("s_lshl_b32 s35, s35, 2")
        a("s_add_u32 s35, s35, s31")
        a("s_lshl_b32 s35, s35, 3")
        a("s_and_b32 s36, s30, 7")
        a("s_add_u32 s35, s35, s36")
        a("s_lshl_b32 s35, s35, 7")
        a("s_lshl_b32 s36, s32, 2")
        a("s_add_u32 s35, s35, s36")
        a(f"s_add_u32 s35, s35, {WS_FLAG1}")
        a("s_waitcnt vmcnt(0)")
        a("buffer_store_dword v25, v24, s[20:23], s35 offen sc0 sc1")
        a("s_barrier")
    a(f"s_branch {name}_fin")
    a.label(f"{name}_aux")
    a("s_mov_b32 s50, s28")
    a("s_mov_b32 s51, s29")
    a("s_memrealtime s[66:67]")
    a("v_lshlrev_b32 v6, 7, v2")
    a("v_lshrrev_b32 v3, 4, v2")
    a("v_and_b32 v4, 15, v2")
    a("v_lshlrev_b32 v7, 12, v3")
    a("v_lshl_add_u32 v7, v4, 7, v7")
    a("v_lshlrev_b32 v5, 10, v3")
    a("v_lshl_add_u32 v5, v4, 4, v5")
    a("s_lshl_b32 s35, s50, 3")
    a("s_add_u32 s56, s35, s3")
    a("s_add_u32 s35, s35, s32")
    a("s_lshl_b32 s48, s26, 10")
    a("s_lshl_b32 s49, s35, 3")
    a("s_add_u32 s48, s48, s49")
    a("s_lshl_b32 s48, s48, 12")
    a("s_lshl_b32 s49, s27, 11")
    a("s_add_u32 s48, s48, s49")
    a("s_add_u32 s49, s48, 16384")
    a("s_waitcnt lgkmcnt(0)")
    stamp(a, 1)
    srd(a, 28, 44, 45, 256)
    srd(a, 20, 46, 47, 14 << 20)
    a("s_xor_b32 s62, s2, 8")
    a("s_or_b32 s62, s62, s32")
    a("s_cmp_lg_u32 s62, 0")
    a(f"s_cbranch_scc1 {name}_nopub")
    a("s_or_b32 s62, s66, 1")
    a("v_mov_b32 v25, s62")
    a("v_mov_b32 v24, 0")
    a("buffer_store_dword v25, v24, s[28:31], 0 offen sc0 sc1")
    a(f"s_mov_b32 s62, {13 << 20}")
    a("buffer_store_dword v25, v24, s[20:23], s62 offen sc0 sc1")
    a.label(f"{name}_nopub")
    srd(a, 12, 4, 5, S * D * 2)
    a("s_cmp_ge_u32 s32, 6")
    a(f"s_cbranch_scc1 {name}_touch")
    a("s_cmp_ge_u32 s32, 4")
    a(f"s_cbranch_scc1 {name}_csw")
    a("s_lshl_b32 s33, s56, 4")
    a("s_lshl_b32 s34, s32, 2")
    a("s_add_u32 s33, s33, s34")
    a("s_lshl_b32 s34, s33, 10")
    for jj in range(4):
        a(f"buffer_load_dwordx4 v[{16 + 4 * jj}:{19 + 4 * jj}], v5, s[12:15], s34 offen offset:{256 * jj}")
    a("v_mov_b32 v9, 0")
    a.label(f"{name}_nl1")
    a("buffer_load_dword v15, v9, s[28:31], 0 offen sc1")
    a("s_waitcnt vmcnt(0)")
    a("v_readfirstlane_b32 s57, v15")
    a("s_cmp_lg_u32 s57, 0")
    a(f"s_cbranch_scc1 {name}_nd1")
    a("s_sleep 1")
    a("s_sub_u32 s69, s69, 1")
    a(f"s_cbranch_scc0 {name}_nl1")
    a("s_mov_b32 s69, 0")
    a.label(f"{name}_nd1")
    stamp(a, 2)
    X = 32
    for r in range(16):
        a(f"v_lshlrev_b32 v{X + 2 * r}, 16, v{16 + r}")
        a(f"v_and_b32 v{X + 2 * r + 1}, s53, v{16 + r}")
    a(f"v_add_f32 v8, v{X}, v{X + 1}")
    a(f"v_add_f32 v9, v{X + 2}, v{X + 3}")
    for r in range(4, 32, 2):
        a(f"v_add_f32 v8, v8, v{X + r}")
        a(f"v_add_f32 v9, v9, v{X + r + 1}")
    a("v_add_f32 v8, v8, v9")

    def red16(v):
        for pat in ("quad_perm:[1,0,3,2]", "quad_perm:[2,3,0,1]", "row_half_mirror", "row_mirror"):
            a("s_nop 1")
            a(f"v_add_f32_dpp v{v}, v{v}, v{v} {pat} {DPP}")

    red16(8)
    a("v_mul_f32 v8, 0x3b000000, v8")
    a("v_mov_b32 v10, 0")
    a("v_mov_b32 v11, 0")
    for r in range(0, 32, 2):
        a(f"v_sub_f32 v{X + r}, v{X + r}, v8")
        a(f"v_sub_f32 v{X + r + 1}, v{X + r + 1}, v8")
        a(f"v_fmac_f32 v10, v{X + r}, v{X + r}")
        a(f"v_fmac_f32 v11, v{X + r + 1}, v{X + r + 1}")
    a("v_add_f32 v10, v10, v11")
    red16(10)
    a("v_mul_f32 v10, 0x3b000000, v10")
    a("v_cvt_pk_bf16_f32 v12, v8, v8")
    a("v_lshlrev_b32 v12, 16, v12")
    a("v_cvt_pk_bf16_f32 v10, v10, v10")
    a("v_lshlrev_b32 v10, 16, v10")
    a("v_add_f32 v10, 0x3727c5ac, v10")
    a("v_cvt_pk_bf16_f32 v10, v10, v10")
    a("v_lshlrev_b32 v10, 16, v10")
    a("v_sqrt_f32 v10, v10")
    a("s_nop 0")
    a("v_cvt_pk_bf16_f32 v10, v10, v10")
    a("v_and_b32 v10, 0xffff, v10")
    a("v_or_b32 v12, v12, v10")
    a("v_mov_b32 v13, v15")
    a("v_lshlrev_b32 v14, 3, v3")
    a("s_lshl_b32 s36, s33, 3")
    a(f"s_add_u32 s36, s36, {WS_STATS}")
    a("v_cmp_eq_u32 vcc, 0, v4")
    a("s_and_saveexec_b64 s[54:55], vcc")
    a("buffer_store_dwordx2 v[12:13], v14, s[20:23], s36 offen sc0 sc1")
    a("s_mov_b64 exec, s[54:55]")
    a(f"s_branch {name}_auxj")
    a.label(f"{name}_csw")
    a("s_lshl_b32 s33, s56, 3")
    a("s_sub_u32 s34, s32, 4")
    a("s_lshl_b32 s34, s34, 2")
    a("s_add_u32 s33, s33, s34")
    a("s_cmp_ge_u32 s33, 512")
    a("s_cselect_b32 s58, s10, s8")
    a("s_cselect_b32 s59, s11, s9")
    srd(a, 16, 58, 59, D * D * 2)
    a("s_and_b32 s34, s33, 511")
    a("s_lshl_b32 s34, s34, 10")
    for jj in range(4):
        a(f"buffer_load_dwordx4 v[{16 + 4 * jj}:{19 + 4 * jj}], v5, s[16:19], s34 offen offset:{256 * jj}")
    a("v_mov_b32 v8, 0")
    a("v_mov_b32 v9, 0")
    a.label(f"{name}_nl2")
    a("buffer_load_dword v15, v9, s[28:31], 0 offen sc1")
    a("s_waitcnt vmcnt(0)")
    a("v_readfirstlane_b32 s57, v15")
    a("s_cmp_lg_u32 s57, 0")
    a(f"s_cbranch_scc1 {name}_nd2")
    a("s_sleep 1")
    a("s_sub_u32 s69, s69, 1")
    a(f"s_cbranch_scc0 {name}_nl2")
    a("s_mov_b32 s69, 0")
    a.label(f"{name}_nd2")
    for r in range(16):
        a(f"v_lshlrev_b32 v{32 + 2 * (r & 3)}, 16, v{16 + r}")
        a(f"v_and_b32 v{33 + 2 * (r & 3)}, s53, v{16 + r}")
        a(f"v_add_f32 v8, v8, v{32 + 2 * (r & 3)}")
        a(f"v_add_f32 v9, v9, v{33 + 2 * (r & 3)}")
    a("v_add_f32 v8, v8, v9")
    red16(8)
    a("v_lshlrev_b32 v14, 3, v3")
    a("v_mov_b32 v9, v15")
    a("s_lshl_b32 s36, s33, 3")
    a(f"s_add_u32 s36, s36, {WS_CS}")
    a("v_cmp_eq_u32 vcc, 0, v4")
    a("s_and_saveexec_b64 s[54:55], vcc")
    a("buffer_store_dwordx2 v[8:9], v14, s[20:23], s36 offen sc0 sc1")
    a("s_mov_b64 exec, s[54:55]")
    a(f"s_branch {name}_auxj")
    a.label(f"{name}_touch")
    if cpre:
        a("s_cmp_lg_u32 s32, 6")
        a(f"s_cbranch_scc1 {name}_nocp")
        a("s_getpc_b64 s[60:61]")
        a.label(f"{name}_pc")
        a(f"s_sub_u32 s60, s60, {name}_pc-{name}")
        a("s_subb_u32 s61, s61, 0")
        a("s_lshl_b32 s62, s50, 13")
        a("v_add_u32 v16, s62, v6")
        a(f"v_min_u32 v16, code_end-{name}-4, v16")
        a("global_load_dword v207, v16, s[60:61]")
        a.label(f"{name}_nocp")
    a("s_cmp_eq_u32 s51, 1")
    a("s_cselect_b32 s58, s10, s8")
    a("s_cselect_b32 s59, s11, s9")
    srd(a, 16, 58, 59, D * D * 2)
    a("s_lshl_b32 s36, s27, 20")
    a("s_lshl_b32 s37, s26, 19")
    a("s_add_u32 s36, s36, s37")
    a("s_lshl_b32 s37, s50, 1")
    a("s_add_u32 s37, s37, s32")
    a("s_sub_u32 s37, s37, 6")
    a("s_lshl_b32 s37, s37, 14")
    a("s_add_u32 s36, s36, s37")
    a("buffer_load_dword v202, v6, s[12:15], s36 offen")
    a("buffer_load_dword v203, v6, s[16:19], s37 offen")
    a("s_add_u32 s36, s36, 8192")
    a("s_add_u32 s37, s37, 8192")
    a("buffer_load_dword v204, v6, s[12:15], s36 offen")
    a("buffer_load_dword v205, v6, s[16:19], s37 offen")
    if tlb:
        a("s_load_dwordx8 s[64:71], s[0:1], 48")
        a("s_load_dwordx2 s[58:59], s[0:1], 80")
        a("v_lshlrev_b32 v16, 14, v2")
        a("v_lshlrev_b32 v17, 11, v2")
        a("s_lshl_b32 s36, s50, 20")
        a("s_lshl_b32 s37, s50, 17")
        a("s_waitcnt lgkmcnt(0)")
        a("s_cmp_eq_u32 s32, 6")
        a(f"s_cbranch_scc0 {name}_tl7")
        srd(a, 16, 46, 47, 16 << 20)
        a("buffer_load_dword v202, v16, s[16:19], s36 offen")
        srd(a, 16, 58, 59, S * D * 2)
        a("buffer_load_dword v203, v17, s[16:19], s37 offen")
        a(f"s_branch {name}_auxj")
        a.label(f"{name}_tl7")
        for k, (lo, hi) in enumerate(((66, 67), (68, 69), (70, 71))):
            srd(a, 16, lo, hi, D * F * 2)
            a(f"buffer_load_dword v{18 + k}, v17, s[16:19], s37 offen")
        srd(a, 16, 64, 65, D * 2)
        a("buffer_load_dword v205, v17, s[16:19], 0 offen")
    a.label(f"{name}_auxj")
    a("s_cmp_eq_u32 s51, 1")
    a("s_cselect_b32 s40, s42, s40")
    a("s_cselect_b32 s41, s43, s41")
    srd(a, 24, 40, 41, S * S * 2)
    if pf and early:
        a("s_cmp_lt_u32 s32, 6")
        a(f"s_cbranch_scc1 {name}_noearly")
        if pfq < 4:
            a(f"v_cmp_gt_u32 vcc, {4 * pfq}, v4")
            a("s_and_saveexec_b64 s[54:55], vcc")
        a("buffer_load_dword v202, v7, s[24:27], s48 offen")
        a("buffer_load_dword v203, v7, s[24:27], s49 offen")
        if early >= 2:
            a("s_sub_u32 s48, s48, 65536")
            a("s_sub_u32 s49, s49, 65536")
            a("buffer_load_dword v204, v7, s[24:27], s48 offen")
            a("buffer_load_dword v205, v7, s[24:27], s49 offen")
        if pfq < 4:
            a("s_mov_b64 exec, s[54:55]")
        a.label(f"{name}_noearly")
    a("s_barrier")
    stamp(a, 3)
    if fuse2 and SENT == 3:
        a("s_lshr_b32 s57, s2, 3")
        a("s_lshr_b32 s58, s3, 2")
        a("s_lshl_b32 s58, s58, 3")
        a("s_and_b32 s59, s57, 6")
        a("s_add_u32 s58, s58, s59")
        a("s_lshl_b32 s58, s58, 7")
        a("s_lshr_b32 s57, s57, 3")
        a("s_lshl_b32 s57, s57, 6")
        a("s_add_u32 s58, s58, s57")
        a("s_lshl_b32 s59, s32, 3")
        a("s_add_u32 s58, s58, s59")
        a("s_lshl_b32 s58, s58, 10")
        a("s_bfe_u32 s59, s3, 0x10001")
        a("s_lshl_b32 s57, s51, 1")
        a("s_add_u32 s59, s59, s57")
        a("s_lshl_b32 s59, s59, 21")
        a("s_add_u32 s58, s58, s59")
        a(f"s_add_u32 s58, s58, {WS_P}")
        a("s_add_u32 s59, s58, 4096")
        a("v_lshlrev_b32 v26, 4, v2")
        for r in range(4):
            a(f"v_mov_b32 v{28 + r}, -1")
        for rr in range(8):
            a(f"buffer_store_dwordx4 v[28:31], v26, s[20:23], s{58 + (rr >> 2)} offen offset:{(rr & 3) * 1024} sc0 sc1")
    if pf and early:
        a(f"s_cmp_ge_u32 s32, {6 if early == 1 else 4}")
        a(f"s_cbranch_scc1 {name}_pfskip")
    if pf:
        if pfq < 4:
            a(f"v_cmp_gt_u32 vcc, {4 * pfq}, v4")
            a("s_and_saveexec_b64 s[54:55], vcc")
        if pace == 3:
            a("v_lshrrev_b32 v16, 3, v2")
            a("v_lshlrev_b32 v16, 12, v16")
            a("v_and_b32 v17, 7, v2")
            a("v_lshl_add_u32 v16, v17, 7, v16")
            a(f"buffer_load_dword v204, v16, s[24:27], s48 offen{PPOL}")
            a("s_waitcnt vmcnt(0)")
            a(f"buffer_load_dword v205, v16, s[24:27], s48 offen offset:1024{PPOL}")
        else:
            a(f"buffer_load_dword v204, v7, s[24:27], s48 offen{PPOL}")
            if pace == 2:
                a("s_waitcnt vmcnt(0)")
            a(f"buffer_load_dword v205, v7, s[24:27], s49 offen{PPOL}")
        if pfq < 4:
            a("s_mov_b64 exec, s[54:55]")
    a.label(f"{name}_pfskip")
    if wk1:
        a("s_cmp_ge_u32 s32, 6")
        a(f"s_cbranch_scc1 {name}_fina")
        a("s_lshr_b32 s58, s32, 1")
        a("s_lshl_b32 s58, s58, 3")
        a("s_add_u32 s58, s58, 56")
        a("s_load_dwordx2 s[60:61], s[0:1], s58")
        a("s_mul_i32 s62, s56, 14336")
        a("s_and_b32 s63, s32, 1")
        a("s_mul_i32 s63, s63, 7168")
        a("s_add_u32 s62, s62, s63")
        a("s_add_u32 s63, s62, 7168")
        a("s_waitcnt lgkmcnt(0)")
        a("s_mov_b32 s16, s60")
        a("s_and_b32 s17, s61, 0xffff")
        a("s_mov_b32 s18, s63")
        a("s_mov_b32 s19, 0x00020000")
        a("buffer_load_dword v206, v6, s[16:19], s62 offen" + (" nt" if wk1 == 2 else ""))
    a.label(f"{name}_fina")
    if fuse2:
        a("s_xor_b32 s32, s32, 4")
    a.label(f"{name}_fin")
    stamp_flush(a, 1, 6, 46, 47)
    if fuse2:
        fuse2(a, name + "g")
        a.label(f"{name}_done")
        a("s_endpgm")
        return kernel_desc(name, 208, 72, 208)
    a.label(f"{name}_done")
    a("s_endpgm")
    return kernel_desc(name, 208, 72, 208)


def gen_k1g(a, name, wt=1, PRO=3, U1=11, UC=14, wk=1, cpf=1, SPOS=0, NPOS=1):
    NSTG, SLOT, NST = 6, 24576, 8
    kernel_begin(a, name)
    a("s_cmp_ge_u32 s2, 256")
    a(f"s_cbranch_scc1 {name}_done")
    stamp(a, 0)
    a("s_load_dwordx2 s[4:5], s[0:1], 0")
    a("s_load_dwordx4 s[8:11], s[0:1], 24")
    a("s_load_dwordx4 s[44:47], s[0:1], 88")
    a("s_load_dwordx4 s[40:43], s[0:1], 8")
    a("s_load_dwordx4 s[56:59], s[0:1], 56")
    a("s_load_dwordx2 s[60:61], s[0:1], 72")
    a("s_memrealtime s[66:67]")
    a("s_and_b32 s3, s2, 7")
    a("s_lshr_b32 s48, s2, 3")
    a("s_and_b32 s49, s3, 1")
    a("s_bfe_u32 s50, s3, 0x10001")
    a("s_lshr_b32 s51, s3, 2")
    a("s_lshl_b32 s30, s50, 3")
    a("s_lshl_b32 s34, s51, 2")
    a("s_add_u32 s30, s30, s34")
    a("s_and_b32 s34, s48, 3")
    a("s_add_u32 s30, s30, s34")
    a("s_lshr_b32 s31, s48, 2")
    a("v_lshrrev_b32 v1, 6, v0")
    a("v_and_b32 v2, 63, v0")
    a("s_nop 0")
    a("v_readfirstlane_b32 s32, v1")
    a("s_mov_b32 s53, 0xffff0000")
    a("s_mov_b32 s69, 0x40000")
    a("s_xor_b32 s32, s32, 4")
    a("s_cmp_lt_u32 s32, 4")
    a(f"s_cbranch_scc1 {name}_cons")
    a("s_sub_u32 s33, s32, 4")
    a("v_lshrrev_b32 v3, 3, v2")
    a("v_and_b32 v4, 7, v2")
    a("v_bfe_u32 v5, v2, 4, 1")
    a("v_xor_b32 v4, v4, v5")
    a("v_lshlrev_b32 v3, 10, v3")
    for i in range(4):
        g0g1 = (i & 1) ^ (i >> 1)
        a(f"v_xor_b32 v{8 + i}, {(2 * i) ^ g0g1}, v4")
        a(f"v_lshl_add_u32 v{8 + i}, v{8 + i}, 4, v3")
        if i:
            a(f"v_add_u32 v{8 + i}, {i * (8192 - 1024)}, v{8 + i}")
    a("s_bitcmp1_b32 s33, 0")
    a("s_cselect_b32 s34, 5, 0")
    a("s_cselect_b32 s35, 6, 3")
    a("v_xor_b32 v12, s34, v4")
    a("v_lshl_add_u32 v12, v12, 4, v3")
    a("v_xor_b32 v13, s35, v4")
    a("v_lshl_add_u32 v13, v13, 4, v3")
    a(f"v_add_u32 v13, {8192 - 1024}, v13")
    a("s_lshl_b32 s34, s33, 5")
    a("s_lshl_b32 s35, s30, 7")
    a("s_add_u32 s35, s35, s34")
    a("s_lshl_b32 s35, s35, 10")
    a("s_lshl_b32 s36, s31, 6")
    a("s_lshl_b32 s34, s33, 4")
    a("s_add_u32 s36, s36, s34")
    a("s_lshl_b32 s36, s36, 10")
    a("s_lshl_b32 s37, s33, 12")
    a("s_lshl_b32 s38, s33, 11")
    a("s_add_u32 s38, s38, 16384")
    a("v_lshrrev_b32 v14, 4, v2")
    a("v_and_b32 v15, 15, v2")
    a("v_lshlrev_b32 v6, 10, v14")
    a("v_lshl_add_u32 v6, v15, 4, v6")
    a("v_mov_b32 v7, 0")
    a("s_lshl_b32 s52, s2, 3")
    a("s_lshl_b32 s34, s33, 2")
    a("s_add_u32 s52, s52, s34")
    a("s_lshl_b32 s54, s2, 2")
    a("s_waitcnt lgkmcnt(0)")
    stamp(a, 1)
    srd(a, 24, 44, 45, 256)
    srd(a, 20, 46, 47, 14 << 20)
    a("s_or_b32 s62, s2, s33")
    a("s_cmp_lg_u32 s62, 0")
    a(f"s_cbranch_scc1 {name}_nopub")
    a("s_or_b32 s62, s66, 1")
    a("v_mov_b32 v25, s62")
    a("buffer_store_dword v25, v7, s[24:27], 0 offen sc0 sc1")
    a(f"s_mov_b32 s62, {13 << 20}")
    a("buffer_store_dword v25, v7, s[20:23], s62 offen sc0 sc1")
    a.label(f"{name}_nopub")
    srd(a, 12, 4, 5, S * D * 2)
    a("s_cmp_ge_u32 s54, 512")
    a("s_cselect_b32 s62, s10, s8")
    a("s_cselect_b32 s63, s11, s9")
    a("s_and_b32 s55, s54, 511")
    a("s_cmp_lt_u32 s33, 2")
    a("s_cselect_b32 s62, s4, s62")
    a("s_cselect_b32 s63, s5, s63")
    a("s_cselect_b32 s55, s52, s55")
    a(f"s_mov_b32 s65, {D * D * 2}")
    a(f"s_cselect_b32 s64, {S * D * 2}, s65")
    a("s_cmp_eq_u32 s33, 3")
    a("s_cselect_b32 s64, 0, s64")
    a("s_lshl_b32 s55, s55, 10")
    a("s_mov_b32 s16, s62")
    a("s_and_b32 s17, s63, 0xffff")
    a("s_mov_b32 s18, s64")
    a("s_mov_b32 s19, 0x00020000")
    for jj in range(4):
        a(f"buffer_load_dwordx4 v[{16 + 4 * jj}:{19 + 4 * jj}], v6, s[16:19], s55 offen offset:{256 * jj}")
    a("s_cmp_eq_u32 s49, 1")
    a("s_cselect_b32 s8, s10, s8")
    a("s_cselect_b32 s9, s11, s9")
    srd(a, 16, 8, 9, D * D * 2)

    def load_stage(kk):
        slot = (kk % NSTG) * SLOT
        a(f"s_add_u32 m0, s37, {slot}")
        a(f"s_add_u32 s39, s35, {kk * 128}")
        for i in range(4):
            a(f"buffer_load_dwordx4 v{8 + i}, s[12:15], s39 offen offset:{i * 1024} lds")
        a(f"s_add_u32 m0, s38, {slot}")
        a(f"s_add_u32 s39, s36, {kk * 128}")
        for i in range(2):
            a(f"buffer_load_dwordx4 v{12 + i}, s[16:19], s39 offen offset:{i * 1024} lds")

    def red16(v):
        for pat in ("quad_perm:[1,0,3,2]", "quad_perm:[2,3,0,1]", "row_half_mirror", "row_mirror"):
            a("s_nop 1")
            a(f"v_add_f32_dpp v{v}, v{v}, v{v} {pat} {DPP}")

    def stats_block():
        X = 64
        for r in range(16):
            a(f"v_lshlrev_b32 v{X + 2 * r}, 16, v{16 + r}")
            a(f"v_and_b32 v{X + 2 * r + 1}, s53, v{16 + r}")
        a(f"v_add_f32 v34, v{X}, v{X + 1}")
        a(f"v_add_f32 v35, v{X + 2}, v{X + 3}")
        for r in range(4, 32, 2):
            a(f"v_add_f32 v34, v34, v{X + r}")
            a(f"v_add_f32 v35, v35, v{X + r + 1}")
        a("v_add_f32 v34, v34, v35")
        red16(34)
        a("v_mul_f32 v36, 0x3b000000, v34")
        a("v_mov_b32 v37, 0")
        a("v_mov_b32 v38, 0")
        for r in range(0, 32, 2):
            a(f"v_sub_f32 v{X + r}, v{X + r}, v36")
            a(f"v_sub_f32 v{X + r + 1}, v{X + r + 1}, v36")
            a(f"v_fmac_f32 v37, v{X + r}, v{X + r}")
            a(f"v_fmac_f32 v38, v{X + r + 1}, v{X + r + 1}")
        a("v_add_f32 v37, v37, v38")
        red16(37)
        a("v_mul_f32 v37, 0x3b000000, v37")
        a("v_cvt_pk_bf16_f32 v40, v36, v36")
        a("v_lshlrev_b32 v40, 16, v40")
        a("v_cvt_pk_bf16_f32 v37, v37, v37")
        a("v_lshlrev_b32 v37, 16, v37")
        a("v_add_f32 v37, 0x3727c5ac, v37")
        a("v_cvt_pk_bf16_f32 v37, v37, v37")
        a("v_lshlrev_b32 v37, 16, v37")
        a("v_sqrt_f32 v37, v37")
        a("s_nop 0")
        a("v_cvt_pk_bf16_f32 v37, v37, v37")
        a("v_and_b32 v37, 0xffff, v37")
        a("v_or_b32 v40, v40, v37")
        a("s_cmp_eq_u32 s33, 2")
        a("s_cselect_b64 s[62:63], -1, 0")
        a("v_cndmask_b32 v40, v40, v34, s[62:63]")
        a("s_lshl_b32 s64, s52, 3")
        a(f"s_add_u32 s64, s64, {WS_STATS}")
        a("s_lshl_b32 s65, s54, 3")
        a(f"s_add_u32 s65, s65, {WS_CS}")
        a("s_cmp_eq_u32 s33, 2")
        a("s_cselect_b32 s64, s65, s64")
        a("s_add_u32 s65, s65, 8192")
        a("s_cmp_eq_u32 s33, 3")
        a("s_cselect_b32 s64, s65, s64")
        a("v_lshlrev_b32 v42, 3, v14")

    vq = ["s"] * 4
    for kk in range(PRO):
        load_stage(kk)
        vq += [kk] * 6
        if kk == NPOS:
            a("buffer_load_dword v33, v7, s[24:27], 0 offen sc1")
            vq.append("n")
    stamp(a, 2)
    issued = PRO

    def wait_tag(tag):
        nonlocal vq
        if tag in vq:
            idx = max(k for k, t in enumerate(vq) if t == tag)
            a(f"s_waitcnt vmcnt({len(vq) - 1 - idx})")
            vq = vq[idx + 1:]

    for kk in range(NST):
        wait_tag(kk)
        a("s_barrier")
        n_new = 0
        while issued < NST and issued - NSTG < kk and n_new < 2:
            load_stage(issued)
            vq += [issued] * 6
            issued += 1
            n_new += 1
        if kk == SPOS:
            stats_block()
        if kk == SPOS:
            wait_tag("n")
            a("v_readfirstlane_b32 s65, v33")
            a("s_cmp_lg_u32 s65, 0")
            a(f"s_cbranch_scc1 {name}_nok")
            a.label(f"{name}_nl")
            a("buffer_load_dword v33, v7, s[24:27], 0 offen sc1")
            a("s_waitcnt vmcnt(0)")
            a("v_readfirstlane_b32 s65, v33")
            a("s_cmp_lg_u32 s65, 0")
            a(f"s_cbranch_scc1 {name}_nok")
            a("s_sub_u32 s69, s69, 1")
            a(f"s_cbranch_scc0 {name}_nl")
            a("s_mov_b32 s69, 0")
            a.label(f"{name}_nok")
            a("v_mov_b32 v41, v33")
            a("v_cmp_eq_u32 vcc, 0, v15")
            a("s_and_saveexec_b64 s[62:63], vcc")
            a("buffer_store_dwordx2 v[40:41], v42, s[20:23], s64 offen sc0 sc1")
            a("s_mov_b64 exec, s[62:63]")
            vq.append("st")
        if issued == NST and kk == 2:
            if wk:
                emit_wtouch(a, "s33", 44, 45)
            if cpf:
                a("s_cmp_eq_u32 s49, 1")
                a("s_cselect_b32 s40, s42, s40")
                a("s_cselect_b32 s41, s43, s41")
                srd(a, 24, 40, 41, S * S * 2)
                a("s_lshl_b32 s62, s51, 10")
                a("s_lshl_b32 s63, s48, 5")
                a("s_add_u32 s62, s62, s63")
                a("s_lshl_b32 s63, s33, 3")
                a("s_add_u32 s62, s62, s63")
                a("s_lshl_b32 s62, s62, 12")
                a("s_lshl_b32 s63, s50, 11")
                a("s_add_u32 s62, s62, s63")
                a("v_lshrrev_b32 v46, 3, v2")
                a("v_lshlrev_b32 v46, 12, v46")
                a("v_and_b32 v47, 7, v2")
                a("v_lshl_add_u32 v46, v47, 7, v46")
                a("buffer_load_dword v48, v46, s[24:27], s62 offen")
                if cpf >= 2:
                    a("buffer_load_dword v49, v46, s[24:27], s62 offen offset:1024")
            vq += ["t"] * ((1 if wk else 0) + (0 if not cpf else (1 if cpf == 1 else 2)))
    stamp(a, 3)
    a(f"s_branch {name}_fin")
    a.label(f"{name}_cons")
    a("s_and_b32 s33, s32, 1")
    a("s_lshr_b32 s34, s32, 1")
    a("v_and_b32 v4, 15, v2")
    a("v_lshrrev_b32 v6, 4, v2")
    a("v_lshrrev_b32 v5, 2, v4")
    a("v_and_b32 v7, 3, v4")
    a("v_lshl_add_u32 v7, v5, 3, v7")
    a("v_lshrrev_b32 v20, 1, v4")
    a("v_lshrrev_b32 v21, 2, v4")
    a("v_lshrrev_b32 v22, 3, v4")
    a("v_xor_b32 v21, v21, v22")
    a("v_and_b32 v21, 1, v21")
    a("v_xor_b32 v20, v20, v21")
    a("v_xor_b32 v20, v20, v6")
    a("v_lshlrev_b32 v20, 4, v20")
    a("v_lshl_add_u32 v20, v7, 7, v20")
    a("s_lshl_b32 s35, s33, 13")
    a("s_lshl_b32 s36, s34, 12")
    a("s_add_u32 s36, s36, 16384")
    for g2 in range(3):
        a(f"v_add_u32 v{8 + 4 * g2}, s35, v20")
        a(f"v_xor_b32 v{9 + 4 * g2}, 64, v{8 + 4 * g2}")
        a(f"v_add_u32 v{10 + 4 * g2}, s36, v20")
        a(f"v_xor_b32 v{11 + 4 * g2}, 64, v{10 + 4 * g2}")
        if g2:
            for r in range(4):
                a(f"v_add_u32 v{8 + 4 * g2 + r}, {2 * SLOT * g2}, v{8 + 4 * g2 + r}")
    ACC = 32
    FB = 64
    ST = 112
    CSR = 144
    for i in range(32):
        a(f"v_mov_b32 v{ACC + i}, 0")
    a("s_lshl_b32 s38, s30, 7")
    a("s_lshl_b32 s39, s33, 6")
    a("s_add_u32 s38, s38, s39")
    a("s_lshl_b32 s38, s38, 3")
    a(f"s_add_u32 s38, s38, {WS_STATS}")
    a("v_lshlrev_b32 v23, 6, v6")
    a("v_mov_b32 v24, 0")
    a("s_lshl_b32 s39, s49, 9")
    a("s_lshl_b32 s65, s31, 6")
    a("s_add_u32 s39, s39, s65")
    a("s_lshl_b32 s65, s34, 5")
    a("s_add_u32 s39, s39, s65")
    a("s_lshl_b32 s39, s39, 3")
    a(f"s_add_u32 s52, s39, {WS_CS}")
    a("v_lshlrev_b32 v21, 3, v7")
    a("s_lshl_b32 s35, s49, 5")
    a("s_lshl_b32 s36, s31, 2")
    a("s_add_u32 s35, s35, s36")
    a("s_lshl_b32 s36, s34, 1")
    a("s_add_u32 s35, s35, s36")
    a("s_lshl_b32 s35, s35, 6")
    a("s_lshl_b32 s36, s30, 2")
    a("s_add_u32 s35, s35, s36")
    a("s_lshl_b32 s36, s33, 1")
    a("s_add_u32 s35, s35, s36")
    a("s_lshl_b32 s54, s35, 10")
    a("s_add_u32 s55, s54, 65536")
    a("v_lshlrev_b32 v22, 4, v2")
    a("s_waitcnt lgkmcnt(0)")
    stamp(a, 1)
    srd(a, 20, 46, 47, 14 << 20)
    srd(a, 24, 44, 45, 256)
    NU = NST * 2

    def read_list(u):
        s, ks = u // 2, u % 2
        slot = s % NSTG
        g2, so = slot // 2, (slot % 2) * SLOT
        f = FB + 24 * (u % 2)
        L = []
        for i in range(2):
            L.append(f"ds_read_b128 v[{f + 16 + 4 * i}:{f + 19 + 4 * i}], v{10 + 4 * g2 + ks} offset:{so + i * 512}")
        for i in range(4):
            off = so + (i >> 1) * 4096 + (i & 1) * 512
            L.append(f"ds_read_b128 v[{f + 4 * i}:{f + 3 + 4 * i}], v{8 + 4 * g2 + ks} offset:{off}")
        return L

    def stats_loads():
        for blk in range(2):
            for q4 in range(4):
                r = ST + 16 * blk + 4 * q4
                a(f"buffer_load_dwordx4 v[{r}:{r + 3}], v23, s[20:23], s38 offen offset:{256 * blk + 16 * q4} sc1")
        for T in range(2):
            a(f"buffer_load_dwordx2 v[{CSR + 2 * T}:{CSR + 1 + 2 * T}], v21, s[20:23], s52 offen offset:{T * 32} sc1")
        a("buffer_load_dword v25, v24, s[24:27], 0 offen sc1")

    def check_ops():
        L = [f"v_xor_b32 v26, v25, v{ST + 1}"]
        for r in range(1, 16):
            L.append(f"v_xor_b32 v27, v25, v{ST + 2 * r + 1}")
            L.append("v_or_b32 v26, v26, v27")
        for T in range(2):
            L.append(f"v_xor_b32 v27, v25, v{CSR + 1 + 2 * T}")
            L.append("v_or_b32 v26, v26, v27")
        for r in range(16):
            L.append(f"v_lshlrev_b32 v{ST + 2 * r + 1}, 16, v{ST + 2 * r}")
            L.append(f"v_rcp_f32 v{ST + 2 * r + 1}, v{ST + 2 * r + 1}")
            L.append(f"v_and_b32 v{ST + 2 * r}, s53, v{ST + 2 * r}")
        return L

    a("s_barrier")
    stamp(a, 2)
    for r in read_list(0):
        a(r)
    for u in range(NU):
        a("s_waitcnt lgkmcnt(0)")
        f = FB + 24 * (u % 2)
        nxt = read_list(u + 1) if u + 1 < NU else []
        n = 0
        for xi in range(4):
            for T in range(2):
                acc = ACC + (xi * 2 + T) * 4
                a(f"v_mfma_f32_16x16x32_bf16 v[{acc}:{acc + 3}], v[{f + 4 * xi}:{f + 3 + 4 * xi}], v[{f + 16 + 4 * T}:{f + 19 + 4 * T}], v[{acc}:{acc + 3}]")
                n += 1
                if n == 1 and nxt and (u + 1) % 2 == 0:
                    a("s_barrier")
                if nxt:
                    a(nxt.pop(0))
                if u == U1 and n == 7:
                    stats_loads()
    stamp(a, 3)
    a.label(f"{name}_chk")
    a("s_waitcnt vmcnt(0)")
    for op in check_ops():
        a(op)
    a("v_cmp_eq_u32 vcc, 0, v25")
    a("v_cmp_ne_u32 s[62:63], 0, v26")
    a("s_or_b64 s[62:63], s[62:63], vcc")
    a(f"s_cbranch_scc0 {name}_have")
    a("s_sleep 2")
    stats_loads()
    a("s_sub_u32 s69, s69, 1")
    a(f"s_cbranch_scc0 {name}_chk")
    a("s_mov_b32 s69, 0")
    a.label(f"{name}_have")
    stamp(a, 4)
    for blk in range(2):
        for T in range(2):
            o = 64 + 4 * (blk * 2 + T)
            for hb in range(2):
                acc = ACC + ((blk * 2 + hb) * 2 + T) * 4
                for j in range(4):
                    sr = ST + 16 * blk + 2 * (4 * hb + j)
                    a(f"v_fma_f32 v{acc + j}, -v{sr}, v{CSR + 2 * T}, v{acc + j}")
                    a(f"v_mul_f32 v{acc + j}, v{acc + j}, v{sr + 1}")
                a(f"v_cvt_pk_bf16_f32 v{o + 2 * hb}, v{acc}, v{acc + 1}")
                a(f"v_cvt_pk_bf16_f32 v{o + 2 * hb + 1}, v{acc + 2}, v{acc + 3}")
            a(f"buffer_store_dwordx4 v[{o}:{o + 3}], v22, s[20:23], s{54 + T} offen offset:{blk * 1024}" + (" sc0 sc1" if wt else ""))
    stamp(a, 5)
    a.label(f"{name}_fin")
    stamp_flush(a, 1, 6, 46, 47)
    a.label(f"{name}_done")
    a("s_endpgm")
    return kernel_desc(name, 152, 72, 152)


def gen_k3(a, name):
    kernel_begin(a, name)
    a("s_cmp_ge_u32 s2, 256")
    a(f"s_cbranch_scc1 {name}_done")
    stamp(a, 0)
    a("s_load_dwordx2 s[4:5], s[0:1], 0")
    a("s_load_dwordx2 s[6:7], s[0:1], 48")
    a("s_load_dwordx2 s[8:9], s[0:1], 80")
    a("s_load_dwordx2 s[10:11], s[0:1], 96")
    a("v_lshrrev_b32 v1, 6, v0")
    a("v_and_b32 v2, 63, v0")
    a("s_nop 0")
    a("v_readfirstlane_b32 s32, v1")
    a("v_lshlrev_b32 v3, 4, v2")
    a("s_waitcnt lgkmcnt(0)")
    stamp(a, 1)
    srd(a, 12, 4, 5, S * D * 2)
    srd(a, 16, 6, 7, D * 2)
    srd(a, 20, 8, 9, S * D * 2)
    srd(a, 24, 10, 11, 14 << 20)
    a("s_lshl_b32 s33, s2, 3")
    a("s_lshl_b32 s34, s32, 1")
    a("s_add_u32 s33, s33, s34")
    a("s_lshl_b32 s34, s33, 10")
    a(f"s_add_u32 s35, s34, {WS_P}")
    a(f"s_add_u32 s36, s34, {WS_P + (4 << 20)}")
    a(f"s_add_u32 s43, s34, {WS_P + (2 << 20)}")
    a(f"s_add_u32 s44, s34, {WS_P + (6 << 20)}")
    for R in range(2):
        B = 16 + 64 * R
        a(f"buffer_load_dwordx4 v[{B}:{B + 3}], v3, s[24:27], s35 offen offset:{1024 * R}")
        a(f"buffer_load_dwordx4 v[{B + 12}:{B + 15}], v3, s[24:27], s43 offen offset:{1024 * R}")
        a(f"buffer_load_dwordx4 v[{B + 4}:{B + 7}], v3, s[24:27], s36 offen offset:{1024 * R}")
        a(f"buffer_load_dwordx4 v[{B + 56}:{B + 59}], v3, s[24:27], s44 offen offset:{1024 * R}")
        a(f"buffer_load_dwordx4 v[{B + 8}:{B + 11}], v3, s[12:15], s34 offen offset:{1024 * R}")
    a("buffer_load_dwordx4 v[8:11], v3, s[16:19], 0 offen")
    a("s_mov_b32 s53, 0xffff0000")
    a("s_waitcnt vmcnt(1)")
    stamp(a, 2)

    def unpack(dst, src):
        a(f"v_lshlrev_b32 v{dst}, 16, v{src}")
        a(f"v_and_b32 v{dst + 1}, s53, v{src}")

    for R in range(2):
        B = 16 + 64 * R
        H, T = B + 16, B + 24
        for i in range(4):
            unpack(T, B + i)
            unpack(T + 2, B + 12 + i)
            unpack(T + 4, B + 4 + i)
            unpack(T + 6, B + 56 + i)
            a(f"v_add_f32 v{T}, v{T}, v{T + 2}")
            a(f"v_add_f32 v{T + 1}, v{T + 1}, v{T + 3}")
            a(f"v_add_f32 v{T + 4}, v{T + 4}, v{T + 6}")
            a(f"v_add_f32 v{T + 5}, v{T + 5}, v{T + 7}")
            a(f"v_cvt_pk_bf16_f32 v{T + 8}, v{T}, v{T + 1}")
            a(f"v_cvt_pk_bf16_f32 v{T + 9}, v{T + 4}, v{T + 5}")
            unpack(T, T + 8)
            unpack(T + 2, T + 9)
            a(f"v_sub_f32 v{T}, v{T}, v{T + 2}")
            a(f"v_sub_f32 v{T + 1}, v{T + 1}, v{T + 3}")
            a(f"v_cvt_pk_bf16_f32 v{T + 4}, v{T}, v{T + 1}")
            unpack(T, T + 4)
            unpack(T + 2, B + 8 + i)
            a(f"v_add_f32 v{T}, v{T + 2}, v{T}")
            a(f"v_add_f32 v{T + 1}, v{T + 3}, v{T + 1}")
            a(f"v_cvt_pk_bf16_f32 v{B + 40 + i}, v{T}, v{T + 1}")
            unpack(H + 2 * i, B + 40 + i)
        St = B + 48
        a(f"v_add_f32 v{St}, v{H}, v{H + 1}")
        for i in range(2, 8):
            a(f"v_add_f32 v{St}, v{St}, v{H + i}")
    for R in range(2):
        B = 16 + 64 * R
        wave_allreduce(a, "v_add_f32", B + 48, B + 49)
    for R in range(2):
        B = 16 + 64 * R
        H, T, St = B + 16, B + 24, B + 48
        a(f"v_mul_f32 v{St}, 0x3b000000, v{St}")
        a(f"v_cvt_pk_bf16_f32 v{St + 1}, v{St}, v{St}")
        a(f"v_lshlrev_b32 v{St + 1}, 16, v{St + 1}")
        for i in range(8):
            a(f"v_sub_f32 v{T + i}, v{H + i}, v{St}")
        a(f"v_mul_f32 v{St + 2}, v{T}, v{T}")
        for i in range(1, 8):
            a(f"v_fmac_f32 v{St + 2}, v{T + i}, v{T + i}")
    for R in range(2):
        B = 16 + 64 * R
        wave_allreduce(a, "v_add_f32", B + 50, B + 51)
    a("s_waitcnt vmcnt(0)")
    for R in range(2):
        B = 16 + 64 * R
        H, T, St = B + 16, B + 24, B + 48
        v = St + 2
        a(f"v_mul_f32 v{v}, 0x3b000000, v{v}")
        a(f"v_cvt_pk_bf16_f32 v{v}, v{v}, v{v}")
        a(f"v_lshlrev_b32 v{v}, 16, v{v}")
        a(f"v_add_f32 v{v}, 0x3727c5ac, v{v}")
        a(f"v_cvt_pk_bf16_f32 v{v}, v{v}, v{v}")
        a(f"v_lshlrev_b32 v{v}, 16, v{v}")
        a(f"v_sqrt_f32 v{v}, v{v}")
        a("s_nop 0")
        a(f"v_cvt_pk_bf16_f32 v{v}, v{v}, v{v}")
        a(f"v_lshlrev_b32 v{v}, 16, v{v}")
        a(f"v_rcp_f32 v{v}, v{v}")
        a("s_nop 0")
        a(f"v_mov_b32 v{St + 4}, 0")
        for i in range(4):
            a(f"v_sub_f32 v{T}, v{H + 2 * i}, v{St + 1}")
            a(f"v_sub_f32 v{T + 1}, v{H + 2 * i + 1}, v{St + 1}")
            a(f"v_cvt_pk_bf16_f32 v{T + 2}, v{T}, v{T + 1}")
            unpack(T, T + 2)
            a(f"v_mul_f32 v{T}, v{T}, v{v}")
            a(f"v_mul_f32 v{T + 1}, v{T + 1}, v{v}")
            a(f"v_cvt_pk_bf16_f32 v{B + 44 + i}, v{T}, v{T + 1}")
            unpack(T, B + 44 + i)
            a(f"v_add_f32 v{T}, v{H + 2 * i}, v{T}")
            a(f"v_add_f32 v{T + 1}, v{H + 2 * i + 1}, v{T + 1}")
            a(f"v_cvt_pk_bf16_f32 v{B + 4 + i}, v{T}, v{T + 1}")
            a(f"v_dot2_f32_bf16 v{St + 4}, v{B + 44 + i}, v{8 + i}, v{St + 4}")
        a(f"buffer_store_dwordx4 v[{B + 4}:{B + 7}], v3, s[20:23], s34 offen offset:{1024 * R}")
    a("s_nop 2")
    for R in range(2):
        B = 16 + 64 * R
        wave_allreduce(a, "v_add_f32", B + 52, B + 53)
    for R in range(2):
        B = 16 + 64 * R
        v = B + 52
        a(f"v_cvt_pk_bf16_f32 v{v}, v{v}, v{v}")
        a(f"v_lshlrev_b32 v{v}, 16, v{v}")
        a(f"v_ashrrev_i32 v{v + 1}, 31, v{v}")
        a(f"v_or_b32 v{v + 1}, 0x80000000, v{v + 1}")
        a(f"v_xor_b32 v{v}, v{v}, v{v + 1}")
        a(f"v_and_b32 v{v}, s53, v{v}")
        a(f"s_sub_u32 s37, {2047 - R}, s33")
        a(f"v_or_b32 v{v}, s37, v{v}")
    a("v_max_u32 v4, v68, v132")
    a("s_lshl_b32 s37, s32, 2")
    a("v_mov_b32 v5, s37")
    a("ds_write_b32 v5, v4")
    stamp(a, 3)
    a("s_waitcnt lgkmcnt(0)")
    a("s_barrier")
    a("v_mov_b32 v5, 0")
    a("ds_read_b128 v[12:15], v5")
    a("s_waitcnt lgkmcnt(0)")
    a("v_max_u32 v12, v12, v13")
    a("v_max_u32 v14, v14, v15")
    a("v_max_u32 v12, v12, v14")
    a("s_nop 0")
    a("v_readfirstlane_b32 s38, v12")
    a("v_readfirstlane_b32 s39, v68")
    a("v_readfirstlane_b32 s40, v132")
    a(f"s_lshl_b32 s41, s2, 11")
    a(f"s_add_u32 s41, s41, {WS_CROW}")
    a(f"s_lshl_b32 s42, s2, 2")
    a(f"s_add_u32 s42, s42, {WS_CAND}")
    a("v_mov_b32 v5, 0")
    for R in range(2):
        B = 16 + 64 * R
        a(f"s_cmp_lg_u32 s38, s{39 + R}")
        a(f"s_cbranch_scc1 {name}_nw{R}")
        a(f"buffer_store_dwordx4 v[{B + 40}:{B + 43}], v3, s[24:27], s41 offen")
        a(f"buffer_store_dwordx4 v[{B + 44}:{B + 47}], v3, s[24:27], s41 offen offset:1024")
        a(f"buffer_store_dword v12, v5, s[24:27], s42 offen")
        a.label(f"{name}_nw{R}")
    stamp_flush(a, 3, 4, 10, 11)
    a.label(f"{name}_done")
    a("s_endpgm")
    return kernel_desc(name, 144, 64, 144)


NSL = 56


def emit_winner(a, vkey, t, ldsaddr_tmp, s_out):
    wave_allreduce(a, "v_max_u32", vkey, t)
    a("s_lshl_b32 s37, s32, 2")
    a(f"v_mov_b32 v{ldsaddr_tmp}, s37")
    a(f"ds_write_b32 v{ldsaddr_tmp}, v{vkey}")
    a("s_waitcnt lgkmcnt(0)")
    a("s_barrier")
    a(f"v_mov_b32 v{ldsaddr_tmp}, 0")
    a(f"ds_read_b64 v[{t}:{t + 1}], v{ldsaddr_tmp}")
    a(f"ds_read_b64 v[{t + 2}:{t + 3}], v{ldsaddr_tmp} offset:8")
    a("s_waitcnt lgkmcnt(0)")
    a(f"v_max_u32 v{t}, v{t}, v{t + 1}")
    a(f"v_max_u32 v{t + 2}, v{t + 2}, v{t + 3}")
    a(f"v_max_u32 v{t}, v{t}, v{t + 2}")
    a("s_nop 0")
    a(f"v_readfirstlane_b32 s{s_out}, v{t}")


def gen_k4(a, name):
    kernel_begin(a, name)
    a(f"s_cmp_ge_u32 s2, {NSL}")
    a(f"s_cbranch_scc1 {name}_done")
    stamp(a, 0)
    a("s_load_dwordx4 s[4:7], s[0:1], 56")
    a("s_load_dwordx2 s[8:9], s[0:1], 72")
    a("s_load_dwordx2 s[10:11], s[0:1], 96")
    a("v_lshrrev_b32 v1, 6, v0")
    a("v_and_b32 v2, 63, v0")
    a("s_nop 0")
    a("v_readfirstlane_b32 s32, v1")
    a("v_lshrrev_b32 v3, 2, v0")
    a("v_and_b32 v4, 3, v0")
    a("v_lshlrev_b32 v5, 2, v0")
    a("s_mov_b32 s33, 28672")
    a("v_mul_lo_u32 v6, v3, s33")
    a("v_lshl_add_u32 v6, v4, 4, v6")
    a("v_lshlrev_b32 v7, 4, v2")
    a("s_waitcnt lgkmcnt(0)")
    stamp(a, 1)
    srd(a, 12, 4, 5, D * F * 2)
    srd(a, 16, 6, 7, D * F * 2)
    srd(a, 20, 8, 9, D * F * 2)
    srd(a, 24, 10, 11, 14 << 20)
    a(f"s_mov_b32 s34, {WS_CAND}")
    a("buffer_load_dword v8, v5, s[24:27], s34 offen")
    a("s_lshl_b32 s34, s2, 6")
    G, U, W = 32, 64, 96
    for j in range(8):
        a(f"s_add_u32 s35, s34, {3584 * j}")
        a(f"buffer_load_dwordx4 v[{G + 4 * j}:{G + 4 * j + 3}], v6, s[12:15], s35 offen")
        a(f"buffer_load_dwordx4 v[{U + 4 * j}:{U + 4 * j + 3}], v6, s[16:19], s35 offen")
    a("s_lshl_b32 s35, s2, 5")
    a("s_lshl_b32 s36, s32, 3")
    a("s_add_u32 s35, s35, s36")
    a("s_lshl_b32 s35, s35, 10")
    for j in range(8):
        a(f"s_add_u32 s36, s35, {1024 * j}")
        a(f"buffer_load_dwordx4 v[{W + 4 * j}:{W + 4 * j + 3}], v7, s[20:23], s36 offen")
    a("s_waitcnt vmcnt(24)")
    stamp(a, 2)
    emit_winner(a, 8, 12, 9, 38)
    stamp(a, 3)
    a("s_and_b32 s39, s38, 0xffff")
    a("s_sub_u32 s39, 2047, s39")
    a("s_lshr_b32 s39, s39, 3")
    a("s_lshl_b32 s39, s39, 11")
    a(f"s_add_u32 s39, s39, {WS_CROW + 1024}")
    a("v_lshlrev_b32 v9, 4, v3")
    a("v_add_u32 v9, s39, v9")
    a("buffer_load_dwordx4 v[12:15], v9, s[24:27], 0 offen")
    a("s_mov_b32 s53, 0xffff0000")
    A = 128
    for i in range(16):
        a(f"v_mov_b32 v{A + i}, 0")
    a("s_waitcnt vmcnt(0)")
    stamp(a, 4)
    X = 16
    for i in range(4):
        a(f"v_lshlrev_b32 v{X + 2 * i}, 16, v{12 + i}")
        a(f"v_and_b32 v{X + 2 * i + 1}, s53, v{12 + i}")
    for j in range(8):
        for (M, ao) in ((G, 0), (U, 8)):
            for i in range(4):
                t = 24 + 2 * (i & 1)
                a(f"v_lshlrev_b32 v{t}, 16, v{M + 4 * j + i}")
                a(f"v_and_b32 v{t + 1}, s53, v{M + 4 * j + i}")
                a(f"v_fmac_f32 v{A + ao + 2 * i}, v{X + j}, v{t}")
                a(f"v_fmac_f32 v{A + ao + 2 * i + 1}, v{X + j}, v{t + 1}")
    a("s_nop 1")
    for i in range(8):
        a(f"v_permlane32_swap_b32 v{A + i}, v{A + i + 8}")
    a("s_nop 1")
    for i in range(8):
        a(f"v_add_f32 v{A + i}, v{A + i}, v{A + i + 8}")
    a("s_nop 1")
    for i in range(4):
        a(f"v_permlane16_swap_b32 v{A + i}, v{A + i + 4}")
    a("s_nop 1")
    for i in range(4):
        a(f"v_add_f32 v{A + i}, v{A + i}, v{A + i + 4}")
    a("s_nop 1")
    for i in range(4):
        a(f"v_add_f32_dpp v{A + i}, v{A + i}, v{A + i} row_ror:4 {DPP}")
    a("s_nop 1")
    for i in range(4):
        a(f"v_add_f32_dpp v{A + i}, v{A + i}, v{A + i} row_ror:8 {DPP}")
    a("v_and_b32 v9, 3, v2")
    a("v_lshlrev_b32 v9, 5, v9")
    a("v_bfe_u32 v10, v2, 4, 1")
    a("v_lshl_add_u32 v9, v10, 4, v9")
    a("v_bfe_u32 v10, v2, 5, 1")
    a("v_lshl_add_u32 v9, v10, 7, v9")
    a("s_lshl_b32 s37, s32, 8")
    a("v_add_u32 v9, s37, v9")
    a(f"ds_write_b128 v9, v[{A}:{A + 3}] offset:64")
    a("s_waitcnt lgkmcnt(0)")
    a("s_barrier")
    stamp(a, 5)
    a("v_and_b32 v9, 31, v2")
    a("v_lshlrev_b32 v9, 2, v9")
    for w in range(4):
        a(f"ds_read_b32 v{16 + w}, v9 offset:{64 + 256 * w}")
        a(f"ds_read_b32 v{20 + w}, v9 offset:{64 + 256 * w + 128}")
    a("s_waitcnt lgkmcnt(0)")
    a("v_add_f32 v16, v16, v17")
    a("v_add_f32 v18, v18, v19")
    a("v_add_f32 v20, v20, v21")
    a("v_add_f32 v22, v22, v23")
    a("v_add_f32 v16, v16, v18")
    a("v_add_f32 v20, v20, v22")
    a("v_cvt_pk_bf16_f32 v16, v16, v20")
    a("v_and_b32 v20, s53, v16")
    a("v_lshlrev_b32 v16, 16, v16")
    a("v_mul_f32 v17, 0xbfb8aa3b, v16")
    a("v_exp_f32 v17, v17")
    a("s_nop 0")
    a("v_add_f32 v17, 1.0, v17")
    a("v_rcp_f32 v17, v17")
    a("s_nop 0")
    a("v_mul_f32 v16, v16, v17")
    a("v_cvt_pk_bf16_f32 v16, v16, v16")
    a("v_lshlrev_b32 v16, 16, v16")
    a("v_mul_f32 v16, v16, v20")
    a("v_cvt_pk_bf16_f32 v16, v16, v16")
    a("v_lshlrev_b32 v16, 16, v16")
    a("s_lshl_b32 s37, s32, 3")
    for j in range(8):
        a(f"s_add_u32 s36, s37, {j}")
        a("s_nop 0")
        a(f"v_readlane_b32 s{40 + j}, v16, s36")
    for i in range(8):
        a(f"v_mov_b32 v{A + i}, 0")
    a("s_nop 1")
    for j in range(8):
        for i in range(4):
            t = 24 + 2 * (i & 1)
            a(f"v_lshlrev_b32 v{t}, 16, v{W + 4 * j + i}")
            a(f"v_and_b32 v{t + 1}, s53, v{W + 4 * j + i}")
            a(f"v_fmac_f32 v{A + 2 * i}, s{40 + j}, v{t}")
            a(f"v_fmac_f32 v{A + 2 * i + 1}, s{40 + j}, v{t + 1}")
    a("v_lshlrev_b32 v9, 5, v2")
    a("s_lshl_b32 s37, s32, 11")
    a("v_add_u32 v9, s37, v9")
    a(f"ds_write_b128 v9, v[{A}:{A + 3}] offset:2048")
    a(f"ds_write_b128 v9, v[{A + 4}:{A + 7}] offset:2064")
    a("s_waitcnt lgkmcnt(0)")
    a("s_barrier")
    a("v_lshlrev_b32 v9, 3, v0")
    for w in range(4):
        a(f"ds_read_b64 v[{16 + 2 * w}:{17 + 2 * w}], v9 offset:{2048 + 2048 * w}")
    a("s_waitcnt lgkmcnt(0)")
    a("v_add_f32 v16, v16, v18")
    a("v_add_f32 v17, v17, v19")
    a("v_add_f32 v20, v20, v22")
    a("v_add_f32 v21, v21, v23")
    a("v_add_f32 v16, v16, v20")
    a("v_add_f32 v17, v17, v21")
    a("s_lshl_b32 s37, s2, 11")
    a(f"s_add_u32 s37, s37, {WS_SLAB}")
    a("buffer_store_dwordx2 v[16:17], v9, s[24:27], s37 offen")
    stamp_flush(a, 4, 6, 10, 11)
    a.label(f"{name}_done")
    a("s_endpgm")
    return kernel_desc(name, 144, 64, 144)


def gen_k3b(a, name, wpf=0):
    kernel_begin(a, name)
    a("s_cmp_ge_u32 s2, 256")
    a(f"s_cbranch_scc1 {name}_done")
    stamp(a, 0)
    a("s_load_dwordx2 s[4:5], s[0:1], 0")
    a("s_load_dwordx2 s[6:7], s[0:1], 48")
    a("s_load_dwordx2 s[8:9], s[0:1], 80")
    a("s_load_dwordx2 s[10:11], s[0:1], 96")
    if wpf:
        a("s_load_dwordx4 s[56:59], s[0:1], 56")
        a("s_load_dwordx2 s[60:61], s[0:1], 72")
    a("v_lshrrev_b32 v1, 6, v0")
    a("v_and_b32 v2, 63, v0")
    a("s_nop 0")
    a("v_readfirstlane_b32 s32, v1")
    a("v_lshlrev_b32 v3, 4, v2")
    a("s_lshl_b32 s33, s2, 3")
    a("s_add_u32 s33, s33, s32")
    a("s_lshl_b32 s34, s33, 10")
    a(f"s_add_u32 s35, s34, {WS_P}")
    a(f"s_add_u32 s36, s34, {WS_P + (4 << 20)}")
    a(f"s_add_u32 s43, s34, {WS_P + (2 << 20)}")
    a(f"s_add_u32 s44, s34, {WS_P + (6 << 20)}")
    a("s_mov_b32 s53, 0xffff0000")
    a("s_waitcnt lgkmcnt(0)")
    stamp(a, 1)
    srd(a, 24, 10, 11, 14 << 20)
    B = 16
    a(f"buffer_load_dwordx4 v[{B}:{B + 3}], v3, s[24:27], s35 offen")
    a(f"buffer_load_dwordx4 v[{B + 12}:{B + 15}], v3, s[24:27], s43 offen")
    a(f"buffer_load_dwordx4 v[{B + 4}:{B + 7}], v3, s[24:27], s36 offen")
    a(f"buffer_load_dwordx4 v[{B + 56}:{B + 59}], v3, s[24:27], s44 offen")
    srd(a, 12, 4, 5, S * D * 2)
    a(f"buffer_load_dwordx4 v[{B + 8}:{B + 11}], v3, s[12:15], s34 offen")
    srd(a, 16, 6, 7, D * 2)
    a("buffer_load_dwordx4 v[8:11], v3, s[16:19], 0 offen")
    if wpf:
        a("s_sub_u32 s45, s32, 5")
        a("s_min_u32 s45, s45, 3")
        emit_wtouch(a, "s45", 120, 121)
    srd(a, 20, 8, 9, S * D * 2)
    a(f"s_waitcnt vmcnt({2 if wpf else 1})")
    stamp(a, 2)

    def unpack(dst, src):
        a(f"v_lshlrev_b32 v{dst}, 16, v{src}")
        a(f"v_and_b32 v{dst + 1}, s53, v{src}")

    H = B + 16
    TT = [80 + 10 * i for i in range(4)]
    steps = []
    for i in range(4):
        T = TT[i]
        steps.append([
            f"v_lshlrev_b32 v{T}, 16, v{B + i}", f"v_and_b32 v{T + 1}, s53, v{B + i}",
            f"v_lshlrev_b32 v{T + 2}, 16, v{B + 12 + i}", f"v_and_b32 v{T + 3}, s53, v{B + 12 + i}",
            f"v_lshlrev_b32 v{T + 4}, 16, v{B + 4 + i}", f"v_and_b32 v{T + 5}, s53, v{B + 4 + i}",
            f"v_lshlrev_b32 v{T + 6}, 16, v{B + 56 + i}", f"v_and_b32 v{T + 7}, s53, v{B + 56 + i}",
            f"v_add_f32 v{T}, v{T}, v{T + 2}", f"v_add_f32 v{T + 1}, v{T + 1}, v{T + 3}",
            f"v_add_f32 v{T + 4}, v{T + 4}, v{T + 6}", f"v_add_f32 v{T + 5}, v{T + 5}, v{T + 7}",
            f"v_cvt_pk_bf16_f32 v{T + 8}, v{T}, v{T + 1}", f"v_cvt_pk_bf16_f32 v{T + 9}, v{T + 4}, v{T + 5}",
            f"v_lshlrev_b32 v{T}, 16, v{T + 8}", f"v_and_b32 v{T + 1}, s53, v{T + 8}",
            f"v_lshlrev_b32 v{T + 2}, 16, v{T + 9}", f"v_and_b32 v{T + 3}, s53, v{T + 9}",
            f"v_sub_f32 v{T}, v{T}, v{T + 2}", f"v_sub_f32 v{T + 1}, v{T + 1}, v{T + 3}",
            f"v_cvt_pk_bf16_f32 v{T + 4}, v{T}, v{T + 1}",
            f"v_lshlrev_b32 v{T}, 16, v{T + 4}", f"v_and_b32 v{T + 1}, s53, v{T + 4}",
            f"v_lshlrev_b32 v{T + 2}, 16, v{B + 8 + i}", f"v_and_b32 v{T + 3}, s53, v{B + 8 + i}",
            f"v_add_f32 v{T}, v{T + 2}, v{T}", f"v_add_f32 v{T + 1}, v{T + 3}, v{T + 1}",
            f"v_cvt_pk_bf16_f32 v{B + 40 + i}, v{T}, v{T + 1}",
            f"v_lshlrev_b32 v{H + 2 * i}, 16, v{B + 40 + i}", f"v_and_b32 v{H + 2 * i + 1}, s53, v{B + 40 + i}",
        ])
    for k in range(len(steps[0])):
        for i in range(4):
            a(steps[i][k])
    St = B + 48
    a(f"v_add_f32 v{St}, v{H}, v{H + 1}")
    a(f"v_add_f32 v{St + 1}, v{H + 2}, v{H + 3}")
    a(f"v_add_f32 v{St + 2}, v{H + 4}, v{H + 5}")
    a(f"v_add_f32 v{St + 3}, v{H + 6}, v{H + 7}")
    a(f"v_add_f32 v{St}, v{St}, v{St + 1}")
    a(f"v_add_f32 v{St + 2}, v{St + 2}, v{St + 3}")
    a(f"v_add_f32 v{St}, v{St}, v{St + 2}")
    wave_allreduce(a, "v_add_f32", St, St + 1)
    T = 80
    a(f"v_mul_f32 v{St}, 0x3b000000, v{St}")
    for i in range(8):
        a(f"v_sub_f32 v{T + i}, v{H + i}, v{St}")
    a(f"v_cvt_pk_bf16_f32 v{St + 1}, v{St}, v{St}")
    a(f"v_mul_f32 v{St + 2}, v{T}, v{T}")
    a(f"v_mul_f32 v{St + 3}, v{T + 1}, v{T + 1}")
    a(f"v_lshlrev_b32 v{St + 1}, 16, v{St + 1}")
    for i in range(2, 8, 2):
        a(f"v_fmac_f32 v{St + 2}, v{T + i}, v{T + i}")
        a(f"v_fmac_f32 v{St + 3}, v{T + i + 1}, v{T + i + 1}")
    a(f"v_add_f32 v{St + 2}, v{St + 2}, v{St + 3}")
    for i in range(8):
        a(f"v_sub_f32 v{T + 10 + i}, v{H + i}, v{St + 1}")
    for i in range(4):
        a(f"v_cvt_pk_bf16_f32 v{T + 20 + i}, v{T + 10 + 2 * i}, v{T + 11 + 2 * i}")
    for i in range(4):
        unpack(T + 10 + 2 * i, T + 20 + i)
    wave_allreduce(a, "v_add_f32", St + 2, St + 3)
    v = St + 2
    a(f"v_mul_f32 v{v}, 0x3b000000, v{v}")
    a(f"v_cvt_pk_bf16_f32 v{v}, v{v}, v{v}")
    a(f"v_lshlrev_b32 v{v}, 16, v{v}")
    a(f"v_add_f32 v{v}, 0x3727c5ac, v{v}")
    a(f"v_cvt_pk_bf16_f32 v{v}, v{v}, v{v}")
    a(f"v_lshlrev_b32 v{v}, 16, v{v}")
    a(f"v_sqrt_f32 v{v}, v{v}")
    a("s_nop 0")
    a(f"v_cvt_pk_bf16_f32 v{v}, v{v}, v{v}")
    a(f"v_lshlrev_b32 v{v}, 16, v{v}")
    a(f"v_rcp_f32 v{v}, v{v}")
    a(f"s_waitcnt vmcnt({1 if wpf else 0})")
    for i in range(8):
        a(f"v_mul_f32 v{T + 10 + i}, v{T + 10 + i}, v{v}")
    for i in range(4):
        a(f"v_cvt_pk_bf16_f32 v{B + 44 + i}, v{T + 10 + 2 * i}, v{T + 11 + 2 * i}")
    for i in range(4):
        unpack(T + 10 + 2 * i, B + 44 + i)
        unpack(T + 2 * i, 8 + i)
    a(f"v_mul_f32 v{St + 4}, v{T + 10}, v{T}")
    a(f"v_mul_f32 v{St + 5}, v{T + 11}, v{T + 1}")
    for i in range(2, 8, 2):
        a(f"v_fmac_f32 v{St + 4}, v{T + 10 + i}, v{T + i}")
        a(f"v_fmac_f32 v{St + 5}, v{T + 11 + i}, v{T + i + 1}")
    a(f"v_add_f32 v{St + 4}, v{St + 4}, v{St + 5}")
    for i in range(8):
        a(f"v_add_f32 v{T + 20 + i}, v{H + i}, v{T + 10 + i}")
    for i in range(4):
        a(f"v_cvt_pk_bf16_f32 v{B + 4 + i}, v{T + 20 + 2 * i}, v{T + 21 + 2 * i}")
    a(f"buffer_store_dwordx4 v[{B + 4}:{B + 7}], v3, s[20:23], s34 offen")
    wave_allreduce(a, "v_add_f32", St + 4, St + 5)
    v = St + 4
    a(f"v_cvt_pk_bf16_f32 v{v}, v{v}, v{v}")
    a(f"v_lshlrev_b32 v{v}, 16, v{v}")
    a(f"v_ashrrev_i32 v{v + 1}, 31, v{v}")
    a(f"v_or_b32 v{v + 1}, 0x80000000, v{v + 1}")
    a(f"v_xor_b32 v{v}, v{v}, v{v + 1}")
    a(f"v_and_b32 v{v}, s53, v{v}")
    a("s_sub_u32 s37, 2047, s33")
    a(f"v_or_b32 v{v}, s37, v{v}")
    a("s_lshl_b32 s37, s32, 2")
    a("v_mov_b32 v5, s37")
    a(f"ds_write_b32 v5, v{v}")
    stamp(a, 3)
    a("s_waitcnt lgkmcnt(0)")
    a("s_barrier")
    a("v_mov_b32 v5, 0")
    a("ds_read_b128 v[12:15], v5")
    a("ds_read_b128 v[80:83], v5 offset:16")
    a(f"v_readfirstlane_b32 s39, v{v}")
    a(f"s_lshl_b32 s41, s2, 11")
    a(f"s_add_u32 s41, s41, {WS_CROW}")
    a(f"s_lshl_b32 s42, s2, 2")
    a(f"s_add_u32 s42, s42, {WS_CAND}")
    a("s_waitcnt lgkmcnt(0)")
    a("v_max3_u32 v12, v12, v13, v14")
    a("v_max3_u32 v80, v80, v81, v82")
    a("v_max3_u32 v12, v12, v15, v83")
    a("v_max_u32 v12, v12, v80")
    a("s_nop 0")
    a("v_readfirstlane_b32 s38, v12")
    a("s_cmp_lg_u32 s38, s39")
    a(f"s_cbranch_scc1 {name}_nw")
    a(f"buffer_store_dwordx4 v[{B + 40}:{B + 43}], v3, s[24:27], s41 offen")
    a(f"buffer_store_dwordx4 v[{B + 44}:{B + 47}], v3, s[24:27], s41 offen offset:1024")
    a(f"buffer_store_dword v12, v5, s[24:27], s42 offen")
    a.label(f"{name}_nw")
    stamp_flush(a, 3, 4, 10, 11)
    a.label(f"{name}_done")
    a("s_endpgm")
    return kernel_desc(name, 128, 64, 128)


def emit_winner_wave(a, v4, t, s_out):
    a(f"v_max3_u32 v{v4}, v{v4}, v{v4 + 1}, v{v4 + 2}")
    a(f"v_max_u32 v{v4}, v{v4}, v{v4 + 3}")
    wave_allreduce(a, "v_max_u32", v4, t)
    a("s_nop 0")
    a(f"v_readfirstlane_b32 s{s_out}, v{v4}")


def gen_k4b(a, name):
    kernel_begin(a, name)
    a(f"s_cmp_ge_u32 s2, {NSL}")
    a(f"s_cbranch_scc1 {name}_done")
    stamp(a, 0)
    a("s_load_dwordx2 s[10:11], s[0:1], 96")
    a("s_load_dwordx4 s[4:7], s[0:1], 56")
    a("s_load_dwordx2 s[8:9], s[0:1], 72")
    a("v_lshrrev_b32 v1, 6, v0")
    a("v_and_b32 v2, 63, v0")
    a("s_nop 0")
    a("v_readfirstlane_b32 s32, v1")
    a("v_lshrrev_b32 v3, 2, v0")
    a("v_and_b32 v4, 3, v0")
    a("s_mov_b32 s33, 14336")
    a("v_mul_lo_u32 v6, v3, s33")
    a("v_lshl_add_u32 v6, v4, 4, v6")
    a("v_lshlrev_b32 v7, 4, v2")
    a("s_lshl_b32 s34, s2, 6")
    a("s_lshl_b32 s35, s2, 5")
    a("s_lshl_b32 s36, s32, 2")
    a("s_add_u32 s35, s35, s36")
    a("s_lshl_b32 s35, s35, 10")
    a(f"s_mov_b32 s37, {WS_CAND}")
    a("s_mov_b32 s53, 0xffff0000")
    a("s_waitcnt lgkmcnt(0)")
    stamp(a, 1)
    srd(a, 24, 10, 11, 14 << 20)
    a("buffer_load_dwordx4 v[8:11], v7, s[24:27], s37 offen")
    srd(a, 12, 4, 5, D * F * 2)
    srd(a, 16, 6, 7, D * F * 2)
    srd(a, 20, 8, 9, D * F * 2)
    G, U, W = 32, 48, 64
    for j in range(4):
        a(f"s_add_u32 s36, s34, {3584 * j}")
        a(f"buffer_load_dwordx4 v[{G + 4 * j}:{G + 4 * j + 3}], v6, s[12:15], s36 offen")
        a(f"buffer_load_dwordx4 v[{U + 4 * j}:{U + 4 * j + 3}], v6, s[16:19], s36 offen")
    a("s_waitcnt vmcnt(8)")
    stamp(a, 2)
    emit_winner_wave(a, 8, 12, 38)
    a("s_and_b32 s39, s38, 0xffff")
    a("s_sub_u32 s39, 2047, s39")
    a("s_lshr_b32 s39, s39, 3")
    a("s_lshl_b32 s39, s39, 11")
    a(f"s_add_u32 s39, s39, {WS_CROW + 1024}")
    a("v_lshlrev_b32 v9, 3, v3")
    a("v_add_u32 v9, s39, v9")
    a("buffer_load_dwordx2 v[12:13], v9, s[24:27], 0 offen")
    stamp(a, 3)
    for j in range(4):
        a(f"buffer_load_dwordx4 v[{W + 4 * j}:{W + 4 * j + 3}], v7, s[20:23], s35 offen offset:{1024 * j}")
    A = 96
    for i in range(16):
        a(f"v_mov_b32 v{A + i}, 0")
    a("s_waitcnt vmcnt(4)")
    stamp(a, 4)
    X = 16
    for i in range(2):
        a(f"v_lshlrev_b32 v{X + 2 * i}, 16, v{12 + i}")
        a(f"v_and_b32 v{X + 2 * i + 1}, s53, v{12 + i}")
    for j in range(4):
        for (M, ao) in ((G, 0), (U, 8)):
            for i in range(4):
                t = 24 + 2 * (i & 3)
                a(f"v_lshlrev_b32 v{t}, 16, v{M + 4 * j + i}")
                a(f"v_and_b32 v{t + 1}, s53, v{M + 4 * j + i}")
            for i in range(4):
                t = 24 + 2 * (i & 3)
                a(f"v_fmac_f32 v{A + ao + 2 * i}, v{X + j}, v{t}")
                a(f"v_fmac_f32 v{A + ao + 2 * i + 1}, v{X + j}, v{t + 1}")
    a("s_nop 1")
    for i in range(8):
        a(f"v_permlane32_swap_b32 v{A + i}, v{A + i + 8}")
    a("s_nop 1")
    for i in range(8):
        a(f"v_add_f32 v{A + i}, v{A + i}, v{A + i + 8}")
    a("s_nop 1")
    for i in range(4):
        a(f"v_permlane16_swap_b32 v{A + i}, v{A + i + 4}")
    a("s_nop 1")
    for i in range(4):
        a(f"v_add_f32 v{A + i}, v{A + i}, v{A + i + 4}")
    a("s_nop 1")
    for i in range(4):
        a(f"v_add_f32_dpp v{A + i}, v{A + i}, v{A + i} row_ror:4 {DPP}")
    a("s_nop 1")
    for i in range(4):
        a(f"v_add_f32_dpp v{A + i}, v{A + i}, v{A + i} row_ror:8 {DPP}")
    a("v_and_b32 v9, 3, v2")
    a("v_lshlrev_b32 v9, 5, v9")
    a("v_bfe_u32 v10, v2, 4, 1")
    a("v_lshl_add_u32 v9, v10, 4, v9")
    a("v_bfe_u32 v10, v2, 5, 1")
    a("v_lshl_add_u32 v9, v10, 7, v9")
    a("s_lshl_b32 s37, s32, 8")
    a("v_add_u32 v9, s37, v9")
    a(f"ds_write_b128 v9, v[{A}:{A + 3}]")
    a("s_waitcnt lgkmcnt(0)")
    a("s_barrier")
    stamp(a, 5)
    a("v_lshlrev_b32 v9, 2, v2")
    for w in range(8):
        a(f"ds_read_b32 v{16 + w}, v9 offset:{256 * w}")
    a("s_waitcnt lgkmcnt(0)")
    a("v_add_f32 v16, v16, v17")
    a("v_add_f32 v18, v18, v19")
    a("v_add_f32 v20, v20, v21")
    a("v_add_f32 v22, v22, v23")
    a("v_add_f32 v16, v16, v18")
    a("v_add_f32 v20, v20, v22")
    a("v_add_f32 v16, v16, v20")
    a("v_mov_b32 v20, v16")
    a("s_nop 1")
    a("v_permlane32_swap_b32 v16, v20")
    a("s_nop 1")
    a("v_cvt_pk_bf16_f32 v16, v16, v20")
    a("v_and_b32 v20, s53, v16")
    a("v_lshlrev_b32 v16, 16, v16")
    a("v_mul_f32 v17, 0xbfb8aa3b, v16")
    a("v_exp_f32 v17, v17")
    a("s_nop 0")
    a("v_add_f32 v17, 1.0, v17")
    a("v_rcp_f32 v17, v17")
    a("s_nop 0")
    a("v_mul_f32 v16, v16, v17")
    a("v_cvt_pk_bf16_f32 v16, v16, v16")
    a("v_lshlrev_b32 v16, 16, v16")
    a("v_mul_f32 v16, v16, v20")
    a("v_cvt_pk_bf16_f32 v16, v16, v16")
    a("v_lshlrev_b32 v16, 16, v16")
    a("s_lshl_b32 s37, s32, 2")
    for j in range(4):
        a(f"s_add_u32 s36, s37, {j}")
        a("s_nop 0")
        a(f"v_readlane_b32 s{40 + j}, v16, s36")
    a("s_waitcnt vmcnt(0)")
    for j in range(4):
        for i in range(4):
            t = 24 + 2 * i
            a(f"v_lshlrev_b32 v{t}, 16, v{W + 4 * j + i}")
            a(f"v_and_b32 v{t + 1}, s53, v{W + 4 * j + i}")
        for i in range(4):
            t = 24 + 2 * i
            if j == 0:
                a(f"v_mul_f32 v{A + 2 * i}, s{40 + j}, v{t}")
                a(f"v_mul_f32 v{A + 2 * i + 1}, s{40 + j}, v{t + 1}")
            else:
                a(f"v_fmac_f32 v{A + 2 * i}, s{40 + j}, v{t}")
                a(f"v_fmac_f32 v{A + 2 * i + 1}, s{40 + j}, v{t + 1}")
    a("v_lshlrev_b32 v9, 5, v2")
    a("s_lshl_b32 s37, s32, 11")
    a("v_add_u32 v9, s37, v9")
    a(f"ds_write_b128 v9, v[{A}:{A + 3}] offset:2048")
    a(f"ds_write_b128 v9, v[{A + 4}:{A + 7}] offset:2064")
    a("s_waitcnt lgkmcnt(0)")
    a("s_barrier")
    a("v_lshlrev_b32 v9, 2, v0")
    for w in range(8):
        a(f"ds_read_b32 v{16 + w}, v9 offset:{2048 + 2048 * w}")
    a("s_lshl_b32 s37, s2, 11")
    a(f"s_add_u32 s37, s37, {WS_SLAB}")
    a("s_waitcnt lgkmcnt(0)")
    a("v_add_f32 v16, v16, v17")
    a("v_add_f32 v18, v18, v19")
    a("v_add_f32 v20, v20, v21")
    a("v_add_f32 v22, v22, v23")
    a("v_add_f32 v16, v16, v18")
    a("v_add_f32 v20, v20, v22")
    a("v_add_f32 v16, v16, v20")
    a("buffer_store_dword v16, v9, s[24:27], s37 offen")
    stamp_flush(a, 4, 6, 10, 11)
    a.label(f"{name}_done")
    a("s_endpgm")
    return kernel_desc(name, 112, 64, 112)


WS_NONCE = 13 << 20
WS_ANN = WS_NONCE + 128
WS_KEYS = WS_NONCE + 4096
WS_ROWS = WS_NONCE + 8192
WS_KEYS2 = (15 << 20) + (3 << 18)
WS_SLABS = 15 << 20
WS_FLAG2 = (15 << 20) + (1 << 19)


KSLEEP, SSLEEP, FSLEEP, ASLEEP = 1, 1, 1, 8


def gen_kt(a, name, fused=0):
    SLOT = "s63" if fused else "s2"
    LP = " sc1" if fused else ""
    if not fused:
        kernel_begin(a, name)
        a("s_cmp_ge_u32 s2, 256")
        a(f"s_cbranch_scc1 {name}_done")
    stamp(a, 0)
    a("s_load_dwordx2 s[10:11], s[0:1], 96")
    a("s_load_dwordx2 s[4:5], s[0:1], 0")
    a("s_load_dwordx2 s[6:7], s[0:1], 48")
    a("s_load_dwordx2 s[8:9], s[0:1], 80")
    a("s_load_dwordx4 s[56:59], s[0:1], 56")
    a("s_load_dwordx2 s[60:61], s[0:1], 72")
    if fused:
        a("v_mbcnt_lo_u32_b32 v2, -1, 0")
        a("v_mbcnt_hi_u32_b32 v2, -1, v2")
        a("s_lshl_b32 s33, s32, 6")
        a("v_add_u32 v0, s33, v2")
    else:
        a("v_lshrrev_b32 v1, 6, v0")
        a("v_and_b32 v2, 63, v0")
        a("s_nop 0")
        a("v_readfirstlane_b32 s32, v1")
    a("v_lshlrev_b32 v3, 4, v2")
    a(f"s_lshl_b32 s33, {SLOT}, 3")
    a("s_add_u32 s33, s33, s32")
    a("s_lshl_b32 s34, s33, 10")
    if PBLK:
        a("s_lshr_b32 s47, s33, 4")
        a("s_lshl_b32 s47, s47, 14")
        a("s_and_b32 s46, s33, 15")
        a("s_lshl_b32 s46, s46, 6")
        a("s_add_u32 s47, s47, s46")
        a("v_lshrrev_b32 v90, 2, v2")
        a("v_lshlrev_b32 v90, 10, v90")
        a("v_and_b32 v91, 3, v2")
        a("v_lshl_add_u32 v90, v91, 4, v90")
    PB = "s47" if PBLK else "s34"
    PV = "v90" if PBLK else "v3"
    a(f"s_add_u32 s35, {PB}, {WS_P}")
    a(f"s_add_u32 s36, {PB}, {WS_P + (4 << 20)}")
    a(f"s_add_u32 s43, {PB}, {WS_P + (2 << 20)}")
    a(f"s_add_u32 s44, {PB}, {WS_P + (6 << 20)}")
    a("s_mov_b32 s53, 0xffff0000")
    a("s_mov_b32 s69, 0x40000")
    a(f"s_mov_b32 s45, {WS_NONCE}")
    a("v_mov_b32 v5, 0")
    a("v_lshrrev_b32 v6, 2, v0")
    a("s_mov_b32 s46, 14336")
    a("v_mul_lo_u32 v7, v6, s46")
    a("v_and_b32 v4, 3, v0")
    a("v_lshl_add_u32 v7, v4, 4, v7")
    a("v_lshlrev_b32 v4, 5, v2")
    a("s_waitcnt lgkmcnt(0)")
    stamp(a, 1)
    srd(a, 24, 10, 11, 16 << 20)
    srd(a, 20, 8, 9, S * D * 2)
    P0, P2, XX, P1, P3 = 16, 20, 24, 28, 12

    EARLYW = fused and WEARLY
    G, U = 96, 112
    W = 128 if EARLYW else 16

    def w_loads():
        srd(a, 12, 56, 57, D * F * 2)
        srd(a, 16, 58, 59, D * F * 2)
        a("s_lshl_b32 s48, s2, 6")
        for j in range(4):
            a(f"s_add_u32 s49, s48, {3584 * j}")
            a(f"buffer_load_dwordx4 v[{G + 4 * j}:{G + 4 * j + 3}], v7, s[12:15], s49 offen")
            a(f"buffer_load_dwordx4 v[{U + 4 * j}:{U + 4 * j + 3}], v7, s[16:19], s49 offen")
        srd(a, 28, 60, 61, D * F * 2)
        a("s_lshl_b32 s48, s2, 5")
        a("s_lshl_b32 s49, s32, 2")
        a("s_add_u32 s48, s48, s49")
        a("s_lshl_b32 s48, s48, 10")
        for j in range(4):
            a(f"buffer_load_dwordx4 v[{W + 4 * j}:{W + 4 * j + 3}], v3, s[28:31], s48 offen offset:{1024 * j}")

    def p_loads():
        a(f"buffer_load_dwordx4 v[{P0}:{P0 + 3}], {PV}, s[24:27], s35 offen{LP}")
        a(f"buffer_load_dwordx4 v[{P1}:{P1 + 3}], {PV}, s[24:27], s43 offen{LP}")
        a(f"buffer_load_dwordx4 v[{P2}:{P2 + 3}], {PV}, s[24:27], s36 offen{LP}")
        a(f"buffer_load_dwordx4 v[{P3}:{P3 + 3}], {PV}, s[24:27], s44 offen{LP}")

    if fused:
        a("buffer_load_dword v88, v5, s[24:27], s45 offen")
        srd(a, 12, 4, 5, S * D * 2)
        a(f"buffer_load_dwordx4 v[{XX}:{XX + 3}], v3, s[12:15], s34 offen")
        srd(a, 16, 6, 7, D * 2)
        a("buffer_load_dwordx4 v[8:11], v3, s[16:19], 0 offen")
        if EARLYW:
            a(f"s_cmp_lt_u32 s2, {NSL}")
            a(f"s_cbranch_scc0 {name}_noew")
            w_loads()
            a.label(f"{name}_noew")
        if SENT == 3:
            a(f"s_branch {name}_np")
        a("s_cmp_lg_u32 s32, 4")
        a(f"s_cbranch_scc1 {name}_np")
        a("s_lshr_b32 s46, s63, 4")
        a("s_lshl_b32 s46, s46, 11")
        a(f"s_add_u32 s46, s46, {WS_FLAG2}")
        if SENT:
            a("v_lshrrev_b32 v56, 2, v2")
            a("v_lshlrev_b32 v56, 7, v56")
            a("v_and_b32 v57, 3, v2")
            a("v_lshl_add_u32 v56, v57, 2, v56")
        else:
            a("v_and_b32 v56, 15, v2")
            a("v_lshlrev_b32 v56, 7, v56")
        a.label(f"{name}_fp")
        a("buffer_load_dword v57, v56, s[24:27], s46 offen sc1")
        a("s_waitcnt vmcnt(0)")
        a("v_cmp_ne_u32 vcc, v57, v88")
        a("s_or_b32 s47, vcc_lo, vcc_hi")
        a(f"s_cbranch_scc0 {name}_np")
        a(f"s_sleep {FSLEEP}")
        a("s_sub_u32 s69, s69, 1")
        a(f"s_cbranch_scc0 {name}_fp")
        a("s_mov_b32 s69, 0")
        a.label(f"{name}_np")
        a("s_barrier")
        if SENT:
            a.label(f"{name}_pp")
        p_loads()
        if SENT:
            a("s_waitcnt vmcnt(0)")
            for (r0, d) in ((P0, 56), (P1, 57), (P2, 58), (P3, 59)):
                a(f"v_max3_u32 v{d}, v{r0}, v{r0 + 1}, v{r0 + 2}")
                a(f"v_max_u32 v{d}, v{d}, v{r0 + 3}")
            a("v_max3_u32 v56, v56, v57, v58")
            a("v_max_u32 v56, v56, v59")
            a("v_cmp_eq_u32 vcc, -1, v56")
            a("s_or_b32 s47, vcc_lo, vcc_hi")
            a(f"s_cbranch_scc0 {name}_pd")
            a(f"s_sleep {PSLEEP}")
            a("s_sub_u32 s69, s69, 1")
            a(f"s_cbranch_scc0 {name}_pp")
            a("s_mov_b32 s69, 0")
            a.label(f"{name}_pd")
    else:
        p_loads()
        srd(a, 12, 4, 5, S * D * 2)
        a(f"buffer_load_dwordx4 v[{XX}:{XX + 3}], v3, s[12:15], s34 offen")
        srd(a, 16, 6, 7, D * 2)
        a("buffer_load_dwordx4 v[8:11], v3, s[16:19], 0 offen")
        a("buffer_load_dword v88, v5, s[24:27], s45 offen")
    G, U = 96, 112
    a(f"s_waitcnt vmcnt({0 if fused else 2})")
    stamp(a, 2)

    def unpack(dst, src):
        a(f"v_lshlrev_b32 v{dst}, 16, v{src}")
        a(f"v_and_b32 v{dst + 1}, s53, v{src}")

    H, HP, HN, St = 32, 40, 44, 48
    for half in range(2):
        steps = []
        for ii in range(2):
            i = 2 * half + ii
            T = 56 + 10 * ii
            steps.append([
                f"v_lshlrev_b32 v{T}, 16, v{P0 + i}", f"v_and_b32 v{T + 1}, s53, v{P0 + i}",
                f"v_lshlrev_b32 v{T + 2}, 16, v{P1 + i}", f"v_and_b32 v{T + 3}, s53, v{P1 + i}",
                f"v_lshlrev_b32 v{T + 4}, 16, v{P2 + i}", f"v_and_b32 v{T + 5}, s53, v{P2 + i}",
                f"v_lshlrev_b32 v{T + 6}, 16, v{P3 + i}", f"v_and_b32 v{T + 7}, s53, v{P3 + i}",
                f"v_add_f32 v{T}, v{T}, v{T + 2}", f"v_add_f32 v{T + 1}, v{T + 1}, v{T + 3}",
                f"v_add_f32 v{T + 4}, v{T + 4}, v{T + 6}", f"v_add_f32 v{T + 5}, v{T + 5}, v{T + 7}",
                f"v_cvt_pk_bf16_f32 v{T + 8}, v{T}, v{T + 1}", f"v_cvt_pk_bf16_f32 v{T + 9}, v{T + 4}, v{T + 5}",
                f"v_lshlrev_b32 v{T}, 16, v{T + 8}", f"v_and_b32 v{T + 1}, s53, v{T + 8}",
                f"v_lshlrev_b32 v{T + 2}, 16, v{T + 9}", f"v_and_b32 v{T + 3}, s53, v{T + 9}",
                f"v_sub_f32 v{T}, v{T}, v{T + 2}", f"v_sub_f32 v{T + 1}, v{T + 1}, v{T + 3}",
                f"v_cvt_pk_bf16_f32 v{T + 4}, v{T}, v{T + 1}",
                f"v_lshlrev_b32 v{T}, 16, v{T + 4}", f"v_and_b32 v{T + 1}, s53, v{T + 4}",
                f"v_lshlrev_b32 v{T + 2}, 16, v{XX + i}", f"v_and_b32 v{T + 3}, s53, v{XX + i}",
                f"v_add_f32 v{T}, v{T + 2}, v{T}", f"v_add_f32 v{T + 1}, v{T + 3}, v{T + 1}",
                f"v_cvt_pk_bf16_f32 v{HP + i}, v{T}, v{T + 1}",
                f"v_lshlrev_b32 v{H + 2 * i}, 16, v{HP + i}", f"v_and_b32 v{H + 2 * i + 1}, s53, v{HP + i}",
            ])
        for k in range(len(steps[0])):
            for ii in range(2):
                a(steps[ii][k])
    a(f"v_add_f32 v{St}, v{H}, v{H + 1}")
    a(f"v_add_f32 v{St + 1}, v{H + 2}, v{H + 3}")
    a(f"v_add_f32 v{St + 2}, v{H + 4}, v{H + 5}")
    a(f"v_add_f32 v{St + 3}, v{H + 6}, v{H + 7}")
    a(f"v_add_f32 v{St}, v{St}, v{St + 1}")
    a(f"v_add_f32 v{St + 2}, v{St + 2}, v{St + 3}")
    a(f"v_add_f32 v{St}, v{St}, v{St + 2}")
    wave_allreduce(a, "v_add_f32", St, St + 1)
    T = 56
    a(f"v_mul_f32 v{St}, 0x3b000000, v{St}")
    for i in range(8):
        a(f"v_sub_f32 v{T + i}, v{H + i}, v{St}")
    a(f"v_cvt_pk_bf16_f32 v{St + 1}, v{St}, v{St}")
    a(f"v_mul_f32 v{St + 2}, v{T}, v{T}")
    a(f"v_mul_f32 v{St + 3}, v{T + 1}, v{T + 1}")
    a(f"v_lshlrev_b32 v{St + 1}, 16, v{St + 1}")
    for i in range(2, 8, 2):
        a(f"v_fmac_f32 v{St + 2}, v{T + i}, v{T + i}")
        a(f"v_fmac_f32 v{St + 3}, v{T + i + 1}, v{T + i + 1}")
    a(f"v_add_f32 v{St + 2}, v{St + 2}, v{St + 3}")
    for i in range(8):
        a(f"v_sub_f32 v{T + 10 + i}, v{H + i}, v{St + 1}")
    for i in range(4):
        a(f"v_cvt_pk_bf16_f32 v{T + 20 + i}, v{T + 10 + 2 * i}, v{T + 11 + 2 * i}")
    for i in range(4):
        unpack(T + 10 + 2 * i, T + 20 + i)
    wave_allreduce(a, "v_add_f32", St + 2, St + 3)
    v = St + 2
    a(f"v_mul_f32 v{v}, 0x3b000000, v{v}")
    a(f"v_cvt_pk_bf16_f32 v{v}, v{v}, v{v}")
    a(f"v_lshlrev_b32 v{v}, 16, v{v}")
    a(f"v_add_f32 v{v}, 0x3727c5ac, v{v}")
    a(f"v_cvt_pk_bf16_f32 v{v}, v{v}, v{v}")
    a(f"v_lshlrev_b32 v{v}, 16, v{v}")
    a(f"v_sqrt_f32 v{v}, v{v}")
    a("s_nop 0")
    a(f"v_cvt_pk_bf16_f32 v{v}, v{v}, v{v}")
    a(f"v_lshlrev_b32 v{v}, 16, v{v}")
    a(f"v_rcp_f32 v{v}, v{v}")
    a("s_waitcnt vmcnt(0)")
    for i in range(8):
        a(f"v_mul_f32 v{T + 10 + i}, v{T + 10 + i}, v{v}")
    for i in range(4):
        a(f"v_cvt_pk_bf16_f32 v{HN + i}, v{T + 10 + 2 * i}, v{T + 11 + 2 * i}")
    for i in range(4):
        unpack(T + 10 + 2 * i, HN + i)
        unpack(T + 2 * i, 8 + i)
    a(f"v_mul_f32 v{St + 4}, v{T + 10}, v{T}")
    a(f"v_mul_f32 v{St + 5}, v{T + 11}, v{T + 1}")
    for i in range(2, 8, 2):
        a(f"v_fmac_f32 v{St + 4}, v{T + 10 + i}, v{T + i}")
        a(f"v_fmac_f32 v{St + 5}, v{T + 11 + i}, v{T + i + 1}")
    a(f"v_add_f32 v{St + 4}, v{St + 4}, v{St + 5}")
    wave_allreduce(a, "v_add_f32", St + 4, St + 5)
    v = St + 4
    a(f"v_cvt_pk_bf16_f32 v{v}, v{v}, v{v}")
    a(f"v_lshlrev_b32 v{v}, 16, v{v}")
    a(f"v_ashrrev_i32 v{v + 1}, 31, v{v}")
    a(f"v_or_b32 v{v + 1}, 0x80000000, v{v + 1}")
    a(f"v_xor_b32 v{v}, v{v}, v{v + 1}")
    a(f"v_and_b32 v{v}, s53, v{v}")
    a("s_sub_u32 s37, 2047, s33")
    a(f"v_or_b32 v{v}, s37, v{v}")
    a("s_lshl_b32 s37, s32, 2")
    a("v_mov_b32 v89, s37")
    a(f"ds_write_b32 v89, v{v}")
    OUT = 84
    for i in range(8):
        a(f"v_add_f32 v{T + 20 + i}, v{H + i}, v{T + 10 + i}")
    for i in range(4):
        a(f"v_cvt_pk_bf16_f32 v{OUT + i}, v{T + 20 + 2 * i}, v{T + 21 + 2 * i}")
    for i in range(4):
        a(f"v_mov_b32 v{56 + 2 * i}, v{HP + i}")
        a(f"v_mov_b32 v{57 + 2 * i}, v88")
        a(f"v_mov_b32 v{64 + 2 * i}, v{HN + i}")
        a(f"v_mov_b32 v{65 + 2 * i}, v88")
    a(f"v_readfirstlane_b32 s39, v{v}")
    a("v_readfirstlane_b32 s50, v88")
    a(f"s_lshl_b32 s41, {SLOT}, 12")
    a(f"s_add_u32 s41, s41, {WS_ROWS}")
    if KSPREAD:
        a(f"s_and_b32 s42, {SLOT}, 63")
        a("s_lshl_b32 s42, s42, 7")
        a(f"s_lshr_b32 s47, {SLOT}, 6")
        a("s_lshl_b32 s47, s47, 3")
        a("s_add_u32 s42, s42, s47")
        a(f"s_add_u32 s42, s42, {WS_KEYS2}")
    else:
        a(f"s_lshl_b32 s42, {SLOT}, 3")
        a(f"s_add_u32 s42, s42, {WS_KEYS}")
    stamp(a, 3)
    a("s_waitcnt lgkmcnt(0)")
    a("s_barrier")
    a("ds_read_b128 v[72:75], v5")
    a("ds_read_b128 v[76:79], v5 offset:16")
    a("s_waitcnt lgkmcnt(0)")
    a("v_max3_u32 v72, v72, v73, v74")
    a("v_max3_u32 v76, v76, v77, v78")
    a("v_max3_u32 v72, v72, v75, v79")
    a("v_max_u32 v72, v72, v76")
    a("v_mov_b32 v73, v88")
    a("s_nop 0")
    a("v_readfirstlane_b32 s38, v72")
    a("s_mov_b32 s51, 0")
    a("s_cmp_lg_u32 s38, s39")
    a(f"s_cbranch_scc1 {name}_nc")
    a("s_mov_b32 s51, 1")
    a("buffer_store_dwordx2 v[72:73], v5, s[24:27], s42 offen sc0 sc1")
    a("buffer_store_dwordx4 v[64:67], v4, s[24:27], s41 offen offset:2048 sc0 sc1")
    a("buffer_store_dwordx4 v[68:71], v4, s[24:27], s41 offen offset:2064 sc0 sc1")
    a("buffer_store_dwordx4 v[56:59], v4, s[24:27], s41 offen sc0 sc1")
    a("buffer_store_dwordx4 v[60:63], v4, s[24:27], s41 offen offset:16 sc0 sc1")
    a(f"s_branch {name}_role")
    a.label(f"{name}_nc")
    a(f"buffer_store_dwordx4 v[{OUT}:{OUT + 3}], v3, s[20:23], s34 offen{OWT}")
    a.label(f"{name}_role")
    stamp(a, 4)
    a(f"s_cmp_lt_u32 s2, {NSL}")
    a(f"s_cbranch_scc1 {name}_needkeys")
    a("s_sub_u32 s52, s2, 64")
    a("s_cmp_lt_u32 s52, 16")
    a(f"s_cbranch_scc1 {name}_needkeys")
    a("s_cmp_eq_u32 s51, 0")
    a(f"s_cbranch_scc1 {name}_fin")
    a(f"s_mov_b32 s45, {WS_ANN}")
    a.label(f"{name}_annp")
    a(f"s_sleep {ASLEEP}")
    a("buffer_load_dwordx2 v[72:73], v5, s[24:27], s45 offen sc1")
    a("s_waitcnt vmcnt(0)")
    a("v_readfirstlane_b32 s46, v73")
    a("v_readfirstlane_b32 s38, v72")
    a("s_cmp_eq_u32 s46, s50")
    a(f"s_cbranch_scc1 {name}_annd")
    a("s_sub_u32 s69, s69, 1")
    a(f"s_cbranch_scc0 {name}_annp")
    a("s_mov_b32 s69, 0")
    a.label(f"{name}_annd")
    a("s_cmp_eq_u32 s38, s39")
    a(f"s_cbranch_scc1 {name}_fin")
    a(f"buffer_store_dwordx4 v[{OUT}:{OUT + 3}], v3, s[20:23], s34 offen{OWT}")
    a(f"s_branch {name}_fin")
    a.label(f"{name}_needkeys")
    if not EARLYW:
        a(f"s_cmp_lt_u32 s2, {NSL}")
        a(f"s_cbranch_scc0 {name}_nowd")
        a("s_barrier")
        w_loads()
    a.label(f"{name}_nowd")
    a("s_cmp_lg_u32 s32, 0")
    a(f"s_cbranch_scc1 {name}_kw")
    a(f"s_mov_b32 s45, {WS_KEYS2 if KSPREAD else WS_KEYS}")
    a(f"v_lshlrev_b32 v64, {7 if KSPREAD else 5}, v2")
    a.label(f"{name}_kp")
    a("buffer_load_dwordx4 v[56:59], v64, s[24:27], s45 offen sc1")
    a("buffer_load_dwordx4 v[60:63], v64, s[24:27], s45 offen offset:16 sc1")
    a("s_waitcnt vmcnt(0)")
    a("v_cmp_ne_u32 s[46:47], v57, v88")
    a("v_cmp_ne_u32 vcc, v59, v88")
    a("s_or_b64 s[46:47], s[46:47], vcc")
    a("v_cmp_ne_u32 vcc, v61, v88")
    a("s_or_b64 s[46:47], s[46:47], vcc")
    a("v_cmp_ne_u32 vcc, v63, v88")
    a("s_or_b64 s[46:47], s[46:47], vcc")
    a(f"s_cbranch_scc0 {name}_kd")
    a(f"s_sleep {KSLEEP}")
    a("s_sub_u32 s69, s69, 1")
    a(f"s_cbranch_scc0 {name}_kp")
    a("s_mov_b32 s69, 0")
    a.label(f"{name}_kd")
    a("v_max3_u32 v56, v56, v58, v60")
    a("v_max_u32 v56, v56, v62")
    wave_allreduce(a, "v_max_u32", 56, 57)
    a("ds_write_b32 v5, v56 offset:64")
    a("s_cmp_lg_u32 s2, 64")
    a(f"s_cbranch_scc1 {name}_noann")
    a("v_mov_b32 v57, v88")
    a(f"s_mov_b32 s45, {WS_ANN}")
    a("buffer_store_dwordx2 v[56:57], v5, s[24:27], s45 offen sc0 sc1")
    a.label(f"{name}_noann")
    a("s_waitcnt lgkmcnt(0)")
    a.label(f"{name}_kw")
    a("s_barrier")
    a("ds_read_b32 v56, v5 offset:64")
    a("s_waitcnt lgkmcnt(0)")
    a("v_readfirstlane_b32 s38, v56")
    stamp(a, 5)
    a("s_cmp_eq_u32 s51, 0")
    a(f"s_cbranch_scc1 {name}_nodef")
    a("s_cmp_eq_u32 s38, s39")
    a(f"s_cbranch_scc1 {name}_nodef")
    a(f"buffer_store_dwordx4 v[{OUT}:{OUT + 3}], v3, s[20:23], s34 offen{OWT}")
    a.label(f"{name}_nodef")
    a("s_and_b32 s39, s38, 0xffff")
    a("s_sub_u32 s39, 2047, s39")
    a("s_lshr_b32 s40, s39, 3")
    a("s_lshl_b32 s40, s40, 12")
    a(f"s_add_u32 s40, s40, {WS_ROWS}")
    a(f"s_cmp_lt_u32 s2, {NSL}")
    a(f"s_cbranch_scc0 {name}_red")
    a("v_lshlrev_b32 v9, 4, v6")
    a("v_add_u32 v9, s40, v9")
    A = 32
    a.label(f"{name}_xp")
    a("buffer_load_dwordx4 v[56:59], v9, s[24:27], 0 offen offset:2048 sc1")
    for i in range(16):
        a(f"v_mov_b32 v{A + i}, 0")
    a("s_waitcnt vmcnt(0)")
    a("v_cmp_ne_u32 s[46:47], v57, v88")
    a("v_cmp_ne_u32 vcc, v59, v88")
    a("s_or_b64 s[46:47], s[46:47], vcc")
    a(f"s_cbranch_scc0 {name}_xd")
    a("s_sub_u32 s69, s69, 1")
    a(f"s_cbranch_scc0 {name}_xp")
    a("s_mov_b32 s69, 0")
    a.label(f"{name}_xd")
    stamp(a, 6)
    X = 60
    a(f"v_lshlrev_b32 v{X}, 16, v56")
    a(f"v_and_b32 v{X + 1}, s53, v56")
    a(f"v_lshlrev_b32 v{X + 2}, 16, v58")
    a(f"v_and_b32 v{X + 3}, s53, v58")
    for j in range(4):
        for (M, ao) in ((G, 0), (U, 8)):
            for i in range(4):
                t = 64 + 2 * i
                a(f"v_lshlrev_b32 v{t}, 16, v{M + 4 * j + i}")
                a(f"v_and_b32 v{t + 1}, s53, v{M + 4 * j + i}")
            for i in range(4):
                t = 64 + 2 * i
                a(f"v_fmac_f32 v{A + ao + 2 * i}, v{X + j}, v{t}")
                a(f"v_fmac_f32 v{A + ao + 2 * i + 1}, v{X + j}, v{t + 1}")
    a("s_nop 1")
    for i in range(8):
        a(f"v_permlane32_swap_b32 v{A + i}, v{A + i + 8}")
    a("s_nop 1")
    for i in range(8):
        a(f"v_add_f32 v{A + i}, v{A + i}, v{A + i + 8}")
    a("s_nop 1")
    for i in range(4):
        a(f"v_permlane16_swap_b32 v{A + i}, v{A + i + 4}")
    a("s_nop 1")
    for i in range(4):
        a(f"v_add_f32 v{A + i}, v{A + i}, v{A + i + 4}")
    a("s_nop 1")
    for i in range(4):
        a(f"v_add_f32_dpp v{A + i}, v{A + i}, v{A + i} row_ror:4 {DPP}")
    a("s_nop 1")
    for i in range(4):
        a(f"v_add_f32_dpp v{A + i}, v{A + i}, v{A + i} row_ror:8 {DPP}")
    a("v_and_b32 v9, 3, v2")
    a("v_lshlrev_b32 v9, 5, v9")
    a("v_bfe_u32 v10, v2, 4, 1")
    a("v_lshl_add_u32 v9, v10, 4, v9")
    a("v_bfe_u32 v10, v2, 5, 1")
    a("v_lshl_add_u32 v9, v10, 7, v9")
    a("s_lshl_b32 s37, s32, 8")
    a("v_add_u32 v9, s37, v9")
    a(f"ds_write_b128 v9, v[{A}:{A + 3}] offset:128")
    a("s_waitcnt lgkmcnt(0)")
    a("s_barrier")
    a("v_lshlrev_b32 v9, 2, v2")
    for w in range(8):
        a(f"ds_read_b32 v{56 + w}, v9 offset:{128 + 256 * w}")
    a("s_waitcnt lgkmcnt(0)")
    a("v_add_f32 v56, v56, v57")
    a("v_add_f32 v58, v58, v59")
    a("v_add_f32 v60, v60, v61")
    a("v_add_f32 v62, v62, v63")
    a("v_add_f32 v56, v56, v58")
    a("v_add_f32 v60, v60, v62")
    a("v_add_f32 v56, v56, v60")
    a("v_mov_b32 v60, v56")
    a("s_nop 1")
    a("v_permlane32_swap_b32 v56, v60")
    a("s_nop 1")
    a("v_cvt_pk_bf16_f32 v56, v56, v60")
    a("v_and_b32 v60, s53, v56")
    a("v_lshlrev_b32 v56, 16, v56")
    a("v_mul_f32 v57, 0xbfb8aa3b, v56")
    a("v_exp_f32 v57, v57")
    a("s_nop 0")
    a("v_add_f32 v57, 1.0, v57")
    a("v_rcp_f32 v57, v57")
    a("s_nop 0")
    a("v_mul_f32 v56, v56, v57")
    a("v_cvt_pk_bf16_f32 v56, v56, v56")
    a("v_lshlrev_b32 v56, 16, v56")
    a("v_mul_f32 v56, v56, v60")
    a("v_cvt_pk_bf16_f32 v56, v56, v56")
    a("v_lshlrev_b32 v56, 16, v56")
    a("s_lshl_b32 s37, s32, 2")
    for j in range(4):
        a(f"s_add_u32 s36, s37, {j}")
        a("s_nop 0")
        a(f"v_readlane_b32 s{40 + j}, v56, s36")
    for j in range(4):
        for i in range(4):
            t = 64 + 2 * i
            a(f"v_lshlrev_b32 v{t}, 16, v{W + 4 * j + i}")
            a(f"v_and_b32 v{t + 1}, s53, v{W + 4 * j + i}")
        for i in range(4):
            t = 64 + 2 * i
            if j == 0:
                a(f"v_mul_f32 v{A + 2 * i}, s{40 + j}, v{t}")
                a(f"v_mul_f32 v{A + 2 * i + 1}, s{40 + j}, v{t + 1}")
            else:
                a(f"v_fmac_f32 v{A + 2 * i}, s{40 + j}, v{t}")
                a(f"v_fmac_f32 v{A + 2 * i + 1}, s{40 + j}, v{t + 1}")
    a("s_lshl_b32 s37, s32, 11")
    a("v_add_u32 v9, s37, v4")
    a(f"ds_write_b128 v9, v[{A}:{A + 3}] offset:4096")
    a(f"ds_write_b128 v9, v[{A + 4}:{A + 7}] offset:4112")
    a("s_waitcnt lgkmcnt(0)")
    a("s_barrier")
    a("v_lshlrev_b32 v9, 2, v0")
    for w in range(8):
        a(f"ds_read_b32 v{56 + w}, v9 offset:{4096 + 2048 * w}")
    a("s_lshl_b32 s37, s2, 12")
    a(f"s_add_u32 s37, s37, {WS_SLABS}")
    a("v_lshlrev_b32 v9, 3, v0")
    a("s_waitcnt lgkmcnt(0)")
    a("v_add_f32 v56, v56, v57")
    a("v_add_f32 v58, v58, v59")
    a("v_add_f32 v60, v60, v61")
    a("v_add_f32 v62, v62, v63")
    a("v_add_f32 v56, v56, v58")
    a("v_add_f32 v60, v60, v62")
    a("v_add_f32 v56, v56, v60")
    a("v_mov_b32 v57, v88")
    a("buffer_store_dwordx2 v[56:57], v9, s[24:27], s37 offen sc0 sc1")
    stamp(a, 7)
    a(f"s_branch {name}_fin2")
    a.label(f"{name}_red")
    a("v_lshrrev_b32 v8, 4, v0")
    a("v_and_b32 v9, 15, v0")
    a("s_lshl_b32 s41, s52, 8")
    a(f"s_add_u32 s42, s41, {WS_SLABS}")
    a("v_lshlrev_b32 v10, 12, v8")
    a("v_lshl_add_u32 v10, v9, 4, v10")
    a("v_add_u32 v11, 0x20000, v10")
    a("v_cmp_gt_u32 s[54:55], 24, v8")
    a("s_nop 1")
    a("v_cndmask_b32 v11, v10, v11, s[54:55]")
    a("s_lshl_b32 s43, s52, 7")
    a("s_add_u32 s43, s43, s40")
    a("v_lshlrev_b32 v12, 3, v9")
    a("v_add_u32 v12, s43, v12")
    a("s_and_b32 s44, s38, 0xffff0000")
    a("s_xor_b32 s45, s44, 0x80000000")
    a("s_not_b32 s46, s44")
    a("s_and_b32 s46, s46, 0xffff0000")
    a("s_cmp_ge_u32 s44, 0x80000000")
    a("s_cselect_b32 s44, s45, s46")
    a("v_mov_b32 v13, s44")
    a("v_mul_f32 v13, 0xbfb8aa3b, v13")
    a("v_exp_f32 v13, v13")
    a("s_nop 0")
    a("v_add_f32 v13, 1.0, v13")
    a("v_rcp_f32 v13, v13")
    a("s_nop 0")
    a("v_cvt_pk_bf16_f32 v13, v13, v13")
    a("v_lshlrev_b32 v13, 16, v13")
    a.label(f"{name}_sp")
    a("buffer_load_dwordx4 v[56:59], v10, s[24:27], s42 offen sc1")
    a("buffer_load_dwordx4 v[60:63], v11, s[24:27], s42 offen sc1")
    a("buffer_load_dwordx2 v[64:65], v12, s[24:27], 0 offen sc1")
    a("buffer_load_dwordx2 v[66:67], v12, s[24:27], 0 offen offset:2048 sc1")
    a("s_waitcnt vmcnt(0)")
    a("v_cmp_ne_u32 s[46:47], v57, v88")
    for r in (59, 61, 63, 65, 67):
        a(f"v_cmp_ne_u32 vcc, v{r}, v88")
        a("s_or_b64 s[46:47], s[46:47], vcc")
    a(f"s_cbranch_scc0 {name}_sd")
    a(f"s_sleep {SSLEEP}")
    a("s_sub_u32 s69, s69, 1")
    a(f"s_cbranch_scc0 {name}_sp")
    a("s_mov_b32 s69, 0")
    a.label(f"{name}_sd")
    stamp(a, 6)
    a("v_cndmask_b32 v60, 0, v60, s[54:55]")
    a("v_cndmask_b32 v62, 0, v62, s[54:55]")
    a("v_add_f32 v56, v56, v60")
    a("v_add_f32 v57, v58, v62")
    for sw in ("v_permlane16_swap_b32", "v_permlane32_swap_b32"):
        a("v_mov_b32 v58, v56")
        a("v_mov_b32 v59, v57")
        a("s_nop 1")
        a(f"{sw} v56, v58")
        a(f"{sw} v57, v59")
        a("s_nop 1")
        a("v_add_f32 v56, v56, v58")
        a("v_add_f32 v57, v57, v59")
    a("v_lshlrev_b32 v10, 3, v9")
    a("s_lshl_b32 s37, s32, 7")
    a("v_add_u32 v11, s37, v10")
    a("ds_write_b64 v11, v[56:57] offset:128")
    a("s_waitcnt lgkmcnt(0)")
    a("s_barrier")
    a("s_cmp_lg_u32 s32, 0")
    a(f"s_cbranch_scc1 {name}_fin2")
    for w in range(8):
        a(f"ds_read_b64 v[{32 + 2 * w}:{33 + 2 * w}], v10 offset:{128 + 128 * w}")
    a("s_waitcnt lgkmcnt(0)")
    for (d, s1) in ((32, 34), (36, 38), (40, 42), (44, 46), (32, 36), (40, 44), (32, 40)):
        a(f"v_add_f32 v{d}, v{d}, v{s1}")
        a(f"v_add_f32 v{d + 1}, v{d + 1}, v{s1 + 1}")
    y0, y1 = 32, 33
    a(f"v_cvt_pk_bf16_f32 v48, v{y0}, v{y1}")
    a(f"v_lshlrev_b32 v{y0}, 16, v48")
    a(f"v_and_b32 v{y1}, s53, v48")
    a(f"v_mul_f32 v{y0}, v{y0}, v13")
    a(f"v_mul_f32 v{y1}, v{y1}, v13")
    a(f"v_cvt_pk_bf16_f32 v48, v{y0}, v{y1}")
    a(f"v_lshlrev_b32 v{y0}, 16, v48")
    a(f"v_and_b32 v{y1}, s53, v48")
    a("v_lshlrev_b32 v49, 16, v66")
    a("v_and_b32 v50, s53, v66")
    a(f"v_add_f32 v{y0}, v49, v{y0}")
    a(f"v_add_f32 v{y1}, v50, v{y1}")
    a(f"v_cvt_pk_bf16_f32 v48, v{y0}, v{y1}")
    a(f"v_lshlrev_b32 v{y0}, 16, v48")
    a(f"v_and_b32 v{y1}, s53, v48")
    a("v_lshlrev_b32 v49, 16, v64")
    a("v_and_b32 v50, s53, v64")
    a(f"v_add_f32 v{y0}, v49, v{y0}")
    a(f"v_add_f32 v{y1}, v50, v{y1}")
    a(f"v_cvt_pk_bf16_f32 v48, v{y0}, v{y1}")
    a("s_lshl_b32 s39, s39, 10")
    a("s_lshl_b32 s41, s52, 6")
    a("s_add_u32 s39, s39, s41")
    a("v_lshlrev_b32 v10, 2, v9")
    a("v_add_u32 v10, s39, v10")
    a(f"buffer_store_dword v48, v10, s[20:23], 0 offen{OWT}")
    stamp(a, 7)
    a.label(f"{name}_fin2")
    a.label(f"{name}_fin")
    stamp_flush(a, 3, 8, 10, 11)
    if fused:
        return None
    a.label(f"{name}_done")
    a("s_endpgm")
    return kernel_desc(name, 128, 72, 128)


def gen_k5(a, name):
    kernel_begin(a, name)
    a("s_cmp_ge_u32 s2, 16")
    a(f"s_cbranch_scc1 {name}_done")
    stamp(a, 0)
    a("s_load_dwordx2 s[8:9], s[0:1], 80")
    a("s_load_dwordx2 s[10:11], s[0:1], 96")
    a("v_lshrrev_b32 v1, 6, v0")
    a("v_and_b32 v2, 63, v0")
    a("s_nop 0")
    a("v_readfirstlane_b32 s32, v1")
    a("v_lshlrev_b32 v5, 2, v0")
    a("v_lshrrev_b32 v3, 3, v0")
    a("v_and_b32 v4, 7, v0")
    a("v_lshlrev_b32 v6, 11, v3")
    a("v_lshl_add_u32 v6, v4, 4, v6")
    a("s_waitcnt lgkmcnt(0)")
    stamp(a, 1)
    srd(a, 20, 8, 9, S * D * 2)
    srd(a, 24, 10, 11, 14 << 20)
    srd(a, 28, 10, 11, WS_SLAB + NSL * 2048)
    a(f"s_mov_b32 s34, {WS_CAND}")
    a("buffer_load_dword v8, v5, s[24:27], s34 offen")
    a("s_lshl_b32 s34, s2, 7")
    a(f"s_add_u32 s34, s34, {WS_SLAB}")
    a("s_add_u32 s35, s34, 65536")
    a("buffer_load_dwordx4 v[16:19], v6, s[28:31], s34 offen")
    a("buffer_load_dwordx4 v[20:23], v6, s[28:31], s35 offen")
    a("s_waitcnt vmcnt(2)")
    stamp(a, 2)
    emit_winner(a, 8, 12, 9, 38)
    a("s_and_b32 s39, s38, 0xffff")
    a("s_sub_u32 s39, 2047, s39")
    a("s_lshr_b32 s40, s39, 3")
    a("s_lshl_b32 s40, s40, 11")
    a(f"s_add_u32 s40, s40, {WS_CROW}")
    a("s_lshl_b32 s41, s2, 6")
    a("s_add_u32 s40, s40, s41")
    a("v_lshlrev_b32 v9, 3, v4")
    a("v_add_u32 v9, s40, v9")
    a("buffer_load_dwordx2 v[24:25], v9, s[24:27], 0 offen")
    a("buffer_load_dwordx2 v[26:27], v9, s[24:27], 0 offen offset:1024")
    a("s_waitcnt vmcnt(2)")
    for i in range(4):
        a(f"v_add_f32 v{16 + i}, v{16 + i}, v{20 + i}")
    a("s_nop 1")
    for i in range(4):
        a(f"v_add_f32_dpp v{16 + i}, v{16 + i}, v{16 + i} row_ror:8 {DPP}")
    for i in range(4):
        a(f"v_mov_b32 v{20 + i}, v{16 + i}")
    a("s_nop 1")
    for i in range(4):
        a(f"v_permlane16_swap_b32 v{16 + i}, v{20 + i}")
    a("s_nop 1")
    for i in range(4):
        a(f"v_add_f32 v{16 + i}, v{16 + i}, v{20 + i}")
    for i in range(4):
        a(f"v_mov_b32 v{20 + i}, v{16 + i}")
    a("s_nop 1")
    for i in range(4):
        a(f"v_permlane32_swap_b32 v{16 + i}, v{20 + i}")
    a("s_nop 1")
    for i in range(4):
        a(f"v_add_f32 v{16 + i}, v{16 + i}, v{20 + i}")
    a("v_lshlrev_b32 v10, 4, v4")
    a("s_lshl_b32 s37, s32, 7")
    a("v_add_u32 v11, s37, v10")
    a("ds_write_b128 v11, v[16:19] offset:64")
    a("s_waitcnt lgkmcnt(0)")
    a("s_barrier")
    for w in range(4):
        a(f"ds_read_b128 v[{32 + 4 * w}:{35 + 4 * w}], v10 offset:{64 + 128 * w}")
    a("s_and_b32 s42, s38, 0xffff0000")
    a("s_xor_b32 s43, s42, 0x80000000")
    a("s_not_b32 s44, s42")
    a("s_and_b32 s44, s44, 0xffff0000")
    a("s_cmp_ge_u32 s42, 0x80000000")
    a("s_cselect_b32 s42, s43, s44")
    a("v_mov_b32 v12, s42")
    a("v_mul_f32 v13, 0xbfb8aa3b, v12")
    a("v_exp_f32 v13, v13")
    a("s_nop 0")
    a("v_add_f32 v13, 1.0, v13")
    a("v_rcp_f32 v13, v13")
    a("s_nop 0")
    a("v_cvt_pk_bf16_f32 v13, v13, v13")
    a("v_lshlrev_b32 v13, 16, v13")
    a("s_mov_b32 s53, 0xffff0000")
    a("s_waitcnt vmcnt(0) lgkmcnt(0)")
    stamp(a, 3)
    for i in range(4):
        a(f"v_add_f32 v{32 + i}, v{32 + i}, v{36 + i}")
        a(f"v_add_f32 v{40 + i}, v{40 + i}, v{44 + i}")
        a(f"v_add_f32 v{32 + i}, v{32 + i}, v{40 + i}")
    for i in range(2):
        y0, y1 = 32 + 2 * i, 33 + 2 * i
        a(f"v_cvt_pk_bf16_f32 v48, v{y0}, v{y1}")
        a(f"v_lshlrev_b32 v{y0}, 16, v48")
        a(f"v_and_b32 v{y1}, s53, v48")
        a(f"v_mul_f32 v{y0}, v{y0}, v13")
        a(f"v_mul_f32 v{y1}, v{y1}, v13")
        a(f"v_cvt_pk_bf16_f32 v48, v{y0}, v{y1}")
        a(f"v_lshlrev_b32 v{y0}, 16, v48")
        a(f"v_and_b32 v{y1}, s53, v48")
        a(f"v_lshlrev_b32 v49, 16, v{26 + i}")
        a(f"v_and_b32 v50, s53, v{26 + i}")
        a(f"v_add_f32 v{y0}, v49, v{y0}")
        a(f"v_add_f32 v{y1}, v50, v{y1}")
        a(f"v_cvt_pk_bf16_f32 v48, v{y0}, v{y1}")
        a(f"v_lshlrev_b32 v{y0}, 16, v48")
        a(f"v_and_b32 v{y1}, s53, v48")
        a(f"v_lshlrev_b32 v49, 16, v{24 + i}")
        a(f"v_and_b32 v50, s53, v{24 + i}")
        a(f"v_add_f32 v{y0}, v49, v{y0}")
        a(f"v_add_f32 v{y1}, v50, v{y1}")
        a(f"v_cvt_pk_bf16_f32 v{52 + i}, v{y0}, v{y1}")
    a("s_lshl_b32 s39, s39, 10")
    a("s_add_u32 s39, s39, s41")
    a("v_lshlrev_b32 v9, 3, v4")
    a("v_add_u32 v9, s39, v9")
    a("v_cmp_gt_u32 vcc, 8, v0")
    a("s_and_saveexec_b64 s[46:47], vcc")
    a(f"s_cbranch_execz {name}_fin")
    a("buffer_store_dwordx2 v[52:53], v9, s[20:23], 0 offen")
    a.label(f"{name}_fin")
    a("s_mov_b64 exec, -1")
    stamp_flush(a, 5, 4, 10, 11)
    a.label(f"{name}_done")
    a("s_endpgm")
    return kernel_desc(name, 64, 64, 64)


HEADER = open(__file__.rsplit("/", 1)[0] + "/cdna_kernels/" + NAME + ".s.ref").read().split("; Override launch")[0]


def build(path, **opt):
    global STAMP, KSLEEP, SSLEEP, FSLEEP, ASLEEP, ESLEEP, OWT, KSPREAD, WEARLY, SENT, PSLEEP, PBLK
    PBLK = opt.get('pblk', 0)
    SENT = opt.get('sent', 0)
    PSLEEP = opt.get('ps', 2)
    WEARLY = opt.get("wearly", 0)
    KSPREAD = opt.get('ksp', 1)
    ESLEEP = opt.get('es', 4)
    OWT = {0: '', 1: ' sc0 sc1', 2: ' nt'}[opt.get('owt', 0)]
    STAMP = opt.get('stamp', 0)
    KSLEEP, SSLEEP, FSLEEP, ASLEEP = opt.get('ks', 1), opt.get('ss', 1), opt.get('fs', 1), opt.get('as', 8)
    a = Asm()
    only = opt.get("only", 0)
    launches = [
        ("k1_kernel", 256, 512, 163840),
        ("k2_kernel", 256, 512, 163840),
        ("k3_kernel", 256, 512, 64),
        ("k4_kernel", NSL, 512, 18432),
        ("k5_kernel", 16, 256, 1024),
    ]
    if opt.get("fused", 2) == 1:
        launches = launches[:2] + [("kt_kernel", 256, 512, 4096 + 16384)]
    if opt.get("fused", 2) == 2:
        launches = launches[:2]
    if opt.get("f12", 1):
        launches = launches[:1] + launches[2:]
    if only:
        launches = [launches[int(ch) - 1] for ch in str(only)]
    hdr = HEADER
    for (k, g, b, l) in launches:
        hdr += f"; @launch kernel={k} grid=({g},1,1) block=({b},1,1) lds={l}\n"
    a.raw('.amdgcn_target "amdgcn-amd-amdhsa--gfx950"')
    descs = []
    if opt.get("k1g", 0):
        descs.append(gen_k1g(a, "k1_kernel", wt=opt.get("wt1", 1), PRO=opt.get("PRO1", 3), U1=opt.get("U1", 11), wk=opt.get("wk1", 1), cpf=opt.get("cpf", 1), SPOS=opt.get("SPOS", 0), NPOS=opt.get("NPOS", 1)))
    else:
        descs.append(gen_k1e(a, "k1_kernel", wt=opt.get("wt1", 1), PRO=opt.get("PRO1", 3), pf=opt.get("prefetch", 1), pace=opt.get("pace", 1), U1=opt.get("U1", 10), U2=opt.get("U2", 12), pfq=opt.get("pfq", 2), pol=opt.get("pol1", 0), ppol=opt.get("ppol", 0), tlb=opt.get("tlb", 0), UC=opt.get("UC", 13), vst=opt.get("vst", 0), swap=opt.get("swap", 1), wk1=opt.get("wk1", 1), early=opt.get("early", 0), cpre=opt.get("cpre", 0), fuse2=((lambda a, n: gen_k2c(a, n, LA=opt.get("LA", 1), wt=opt.get("wt2", 1), PRO=opt.get("PRO2", 3), rot=opt.get("rot", 1), BARPOS=opt.get("BARPOS", 1), RSTEP=opt.get("RSTEP", 1), wpf=opt.get("wpf", 0), wpf2=opt.get("wpf2", 16), pol=opt.get("pol2", 0), fuse3=(opt.get("fused", 2) == 2), etouch=opt.get("etouch", 0), swap=opt.get("swap", 1), cw=opt.get("cw", -1), fused_in=1)) if opt.get("f12", 1) else None)))
    if not opt.get("f12", 1):
        descs.append(gen_k2c(a, "k2_kernel", LA=opt.get("LA", 1), wt=opt.get("wt2", 1), PRO=opt.get("PRO2", 3), rot=opt.get("rot", 1), BARPOS=opt.get("BARPOS", 1), RSTEP=opt.get("RSTEP", 1), wpf=opt.get("wpf", 0), wpf2=opt.get("wpf2", 16), pol=opt.get("pol2", 0), fuse3=(opt.get("fused", 2) == 2), etouch=opt.get("etouch", 0), swap=opt.get("swap", 1), cw=opt.get("cw", -1)))
    if opt.get("fused", 2) == 1:
        descs.append(gen_kt(a, "kt_kernel"))
    elif opt.get("fused", 2) == 0:
        descs.append(gen_k3b(a, "k3_kernel", wpf=opt.get("wpf3", 0)))
        descs.append(gen_k4b(a, "k4_kernel"))
        descs.append(gen_k5(a, "k5_kernel"))
    a.label("code_end")
    open(path, "w").write(hdr + a.text() + "".join(descs))


if __name__ == "__main__":
    out = sys.argv[1] if len(sys.argv) > 1 else "cdna_kernels/" + NAME + ".s"
    opt = {}
    for kv in sys.argv[2:]:
        k, v = kv.split("=")
        opt[k] = int(v)
    build(out, **opt)
```

```python
import sys

NAME = "sequential_preLN__spectral_fnet__moe_arch_mod__prompt"

WS_AT = 0
WS_Y = 4 << 20
WS_CAND = 12 << 20
WS_CROW = (12 << 20) + 4096
WS_SLAB = (13 << 20)
WS_SIZE = 268435456

S, D, F = 2048, 512, 1792


class Asm:
    def __init__(self):
        self.lines = []

    def __call__(self, s):
        self.lines.append("    " + s)

    def label(self, l):
        self.lines.append(l + ":")

    def raw(self, s):
        self.lines.append(s)

    def text(self):
        return "\n".join(self.lines) + "\n"


class VM:
    def __init__(self, a):
        self.a = a
        self.q = []

    def issue(self, tag):
        self.q.append(tag)

    def wait(self, tag):
        idx = max(i for i, t in enumerate(self.q) if t == tag) if tag in self.q else None
        if idx is None:
            return
        n = len(self.q) - 1 - idx
        assert n <= 63
        self.a(f"s_waitcnt vmcnt({n})")
        self.q = self.q[idx + 1:]

    def wait_all(self):
        self.a("s_waitcnt vmcnt(0)")
        self.q = []


def srd(a, d, lo, hi, nbytes):
    a(f"s_mov_b32 s{d}, s{lo}")
    a(f"s_and_b32 s{d+1}, s{hi}, 0xffff")
    a(f"s_mov_b32 s{d+2}, {nbytes}")
    a(f"s_mov_b32 s{d+3}, 0x00020000")


def kernel_begin(a, name):
    a.raw(".text")
    a.raw(f".globl {name}")
    a.raw(".p2align 8")
    a.raw(f".type {name},@function")
    a.label(name)


def kernel_desc(name, vgpr, sgpr, accum):
    return f""".section .rodata,"a"
.p2align 6
.amdhsa_kernel {name}
  .amdhsa_next_free_vgpr {vgpr}
  .amdhsa_next_free_sgpr {102 if STAMP else sgpr}
  .amdhsa_accum_offset {accum}
  .amdhsa_group_segment_fixed_size 0
  .amdhsa_kernarg_size 104
  .amdhsa_user_sgpr_count 2
  .amdhsa_user_sgpr_kernarg_segment_ptr 1
  .amdhsa_system_sgpr_workgroup_id_x 1
  .amdhsa_float_denorm_mode_32 3
.end_amdhsa_kernel
"""


STAMP = 0
WS_STAMP = 16 << 20
_stamp_kid = {}


def stamp(a, i):
    if STAMP == 1:
        a(f"s_memrealtime s[{70 + 2 * i}:{71 + 2 * i}]")
    elif STAMP == 2:
        a(f"s_memtime s[{70 + 2 * i}:{71 + 2 * i}]")


def stamp_flush(a, kid, n, ws_lo, ws_hi, wave_sgpr="s32"):
    if not STAMP:
        return
    a("s_waitcnt vmcnt(0) lgkmcnt(0)")
    stamp(a, n)
    a(f"s_mov_b32 s92, s{ws_lo}")
    a(f"s_and_b32 s93, s{ws_hi}, 0xffff")
    a(f"s_mov_b32 s94, {WS_SIZE}")
    a("s_mov_b32 s95, 0x00020000")
    a(f"s_add_u32 s96, s2, {kid * 512}")
    a("s_lshl_b32 s96, s96, 4")
    a(f"s_add_u32 s96, s96, {wave_sgpr}")
    a("s_lshl_b32 s96, s96, 7")
    a(f"s_add_u32 s96, s96, {WS_STAMP}")
    a("s_waitcnt lgkmcnt(0)")
    a("v_mov_b32 v0, 0")
    for i in range(n + 1):
        a(f"v_mov_b32 v2, s{70 + 2 * i}")
        a(f"v_mov_b32 v3, s{71 + 2 * i}")
        a(f"buffer_store_dwordx2 v[2:3], v0, s[92:95], s96 offen offset:{8 * i}")
        a("s_nop 1")


ESLEEP = 4
PBLK = 0
SENT = 0
PSLEEP = 2
WEARLY = 1
KSPREAD = 0
OWT = ''
DPP = "row_mask:0xf bank_mask:0xf"


def emit_perm32(a, dst, src, t):
    a(f"v_and_b32 v{dst}, 3, v{src}")
    a(f"v_lshrrev_b32 v{t}, 3, v{src}")
    a(f"v_lshl_or_b32 v{dst}, v{t}, 2, v{dst}")
    a(f"v_bfe_u32 v{t}, v{src}, 2, 1")
    a(f"v_lshl_or_b32 v{dst}, v{t}, 4, v{dst}")


def wave_allreduce(a, op, v, t):
    a("s_nop 1")
    a(f"{op}_dpp v{v}, v{v}, v{v} quad_perm:[1,0,3,2] {DPP}")
    a("s_nop 1")
    a(f"{op}_dpp v{v}, v{v}, v{v} quad_perm:[2,3,0,1] {DPP}")
    a("s_nop 1")
    a(f"{op}_dpp v{v}, v{v}, v{v} row_half_mirror {DPP}")
    a("s_nop 1")
    a(f"{op}_dpp v{v}, v{v}, v{v} row_mirror {DPP}")
    a(f"v_mov_b32 v{t}, v{v}")
    a("s_nop 1")
    a(f"v_permlane16_swap_b32 v{v}, v{t}")
    a("s_nop 1")
    a(f"{op} v{v}, v{v}, v{t}")
    a(f"v_mov_b32 v{t}, v{v}")
    a("s_nop 1")
    a(f"v_permlane32_swap_b32 v{v}, v{t}")
    a("s_nop 1")
    a(f"{op} v{v}, v{v}, v{t}")


def gen_k1(a, name, prefetch=True):
    kernel_begin(a, name)
    a("s_cmp_ge_u32 s2, 256")
    a(f"s_cbranch_scc1 {name}_done")
    stamp(a, 0)
    a("s_load_dwordx2 s[4:5], s[0:1], 0")
    a("s_load_dwordx4 s[8:11], s[0:1], 24")
    a("s_load_dwordx2 s[6:7], s[0:1], 96")
    a("s_load_dwordx4 s[36:39], s[0:1], 8")
    a("s_load_dwordx4 s[40:43], s[0:1], 56")
    a("s_load_dwordx2 s[44:45], s[0:1], 72")
    a("s_and_b32 s3, s2, 7")
    a("s_lshr_b32 s28, s2, 3")
    a("s_and_b32 s29, s28, 3")
    a("s_lshl_b32 s30, s3, 2")
    a("s_add_u32 s30, s30, s29")
    a("s_lshr_b32 s31, s28, 2")
    a("v_lshrrev_b32 v1, 6, v0")
    a("v_and_b32 v2, 63, v0")
    a("s_nop 0")
    a("v_readfirstlane_b32 s32, v1")
    a("v_lshrrev_b32 v3, 3, v2")
    a("v_and_b32 v4, 7, v2")
    a("s_waitcnt lgkmcnt(0)")
    stamp(a, 1)
    srd(a, 12, 4, 5, S * D * 2)
    a("s_cmp_ge_u32 s31, 4")
    a("s_cselect_b32 s8, s10, s8")
    a("s_cselect_b32 s9, s11, s9")
    srd(a, 16, 8, 9, D * D * 2)
    srd(a, 20, 6, 7, 4 << 20)
    a("s_lshl_b32 s33, s30, 6")
    a("s_lshl_b32 s34, s32, 3")
    a("s_add_u32 s33, s33, s34")
    a("s_lshl_b32 s33, s33, 10")
    a("v_lshlrev_b32 v5, 10, v3")
    a("v_lshl_add_u32 v5, v4, 4, v5")
    XR = 32
    for j in range(8):
        a(f"buffer_load_dwordx4 v[{XR+4*j}:{XR+4*j+3}], v5, s[12:15], s33 offen offset:{128*j}")
    a("v_lshrrev_b32 v6, 4, v2")
    a("v_xor_b32 v6, v6, v4")
    a("v_xor_b32 v7, 4, v6")
    a("v_lshlrev_b32 v8, 10, v3")
    a("v_lshl_add_u32 v6, v6, 4, v8")
    a("v_lshl_add_u32 v7, v7, 4, v8")
    a("s_cmp_ge_u32 s32, 4")
    a(f"s_cbranch_scc1 {name}_helper")
    a("s_and_b32 s35, s31, 3")
    a("s_lshl_b32 s35, s35, 7")
    a("s_lshl_b32 s34, s32, 5")
    a("s_add_u32 s35, s35, s34")
    a("s_lshl_b32 s35, s35, 10")
    a("s_mul_i32 s46, s32, 24576")
    a("s_add_u32 s46, s46, 65536")

    def dma_slot(kk):
        for i in range(4):
            a(f"s_add_u32 m0, s46, {(kk % 6) * 4096 + i * 1024}")
            a(f"s_add_u32 s47, s35, {i * 8192 + kk * 128}")
            a(f"buffer_load_dwordx4 v{6 + (i & 1)}, s[16:19], s47 offen lds")

    for kk in range(6):
        dma_slot(kk)
    a("s_waitcnt vmcnt(24)")
    a(f"s_branch {name}_ln")
    a.label(f"{name}_helper")
    npf = 0
    if prefetch:
        a("s_and_b32 s48, s3, 1")
        a("s_cmp_eq_u32 s48, 1")
        a("s_cselect_b32 s36, s38, s36")
        a("s_cselect_b32 s37, s39, s37")
        srd(a, 24, 36, 37, S * S * 2)
        a("s_lshr_b32 s48, s3, 2")
        a("s_lshl_b32 s48, s48, 10")
        a("s_lshl_b32 s49, s28, 5")
        a("s_add_u32 s48, s48, s49")
        a("s_sub_u32 s49, s32, 4")
        a("s_lshl_b32 s49, s49, 3")
        a("s_add_u32 s48, s48, s49")
        a("s_lshl_b32 s48, s48, 12")
        a("s_bfe_u32 s49, s3, 0x10001")
        a("s_lshl_b32 s49, s49, 11")
        a("s_add_u32 s48, s48, s49")
        a("v_lshrrev_b32 v9, 5, v2")
        a("v_lshlrev_b32 v9, 12, v9")
        a("v_and_b32 v129, 31, v2")
        a("v_lshl_add_u32 v9, v129, 6, v9")
        a("s_waitcnt vmcnt(0)")
        for i in range(4):
            a(f"s_add_u32 s49, s48, {i * 8192}")
            a(f"buffer_load_dword v{130 + i}, v9, s[24:27], s49 offen")
            npf += 1
    a(f"s_waitcnt vmcnt({npf})")
    a.label(f"{name}_ln")
    stamp(a, 2)
    a("s_mov_b32 s50, 0x3f803f80")
    a("s_mov_b32 s51, 0x00003f80")
    a("s_mov_b32 s52, 0x3f800000")
    a("s_mov_b32 s53, 0xffff0000")
    a("v_mov_b32 v16, 0")
    a("v_mov_b32 v17, 0")
    for j in range(32):
        a(f"v_dot2_f32_bf16 v{16 + (j & 1)}, v{XR + j}, s50, v{16 + (j & 1)}")
    a("s_nop 2")
    a("v_add_f32 v16, v16, v17")

    def red8(v):
        a("s_nop 1")
        a(f"v_add_f32_dpp v{v}, v{v}, v{v} quad_perm:[1,0,3,2] {DPP}")
        a("s_nop 1")
        a(f"v_add_f32_dpp v{v}, v{v}, v{v} quad_perm:[2,3,0,1] {DPP}")
        a("s_nop 1")
        a(f"v_add_f32_dpp v{v}, v{v}, v{v} row_half_mirror {DPP}")

    red8(16)
    a("v_mul_f32 v16, 0x3b000000, v16")
    a("v_cvt_pk_bf16_f32 v17, v16, v16")
    a("v_lshlrev_b32 v17, 16, v17")
    a("v_sub_f32 v18, 0, v17")
    a("v_sub_f32 v19, v16, v17")
    a("v_mov_b32 v20, 0")
    a("v_mov_b32 v21, 0")
    for j in range(32):
        t = 22 + 2 * (j & 3)
        a(f"v_dot2_f32_bf16 v{t}, v{XR + j}, s51, v18")
        a(f"v_dot2_f32_bf16 v{t + 1}, v{XR + j}, s52, v18")
        if j >= 1:
            tp = 22 + 2 * ((j - 1) & 3)
            a(f"v_fmac_f32 v20, v{tp}, v{tp}")
            a(f"v_fmac_f32 v21, v{tp + 1}, v{tp + 1}")
            a(f"v_cvt_pk_bf16_f32 v{XR + j - 1}, v{tp}, v{tp + 1}")
    tp = 22 + 2 * (31 & 3)
    a("s_nop 2")
    a(f"v_fmac_f32 v20, v{tp}, v{tp}")
    a(f"v_fmac_f32 v21, v{tp + 1}, v{tp + 1}")
    a(f"v_cvt_pk_bf16_f32 v{XR + 31}, v{tp}, v{tp + 1}")
    a("v_add_f32 v20, v20, v21")
    red8(20)
    a("v_mul_f32 v20, 0x3b000000, v20")
    a("v_fma_f32 v20, -v19, v19, v20")
    a("v_max_f32 v20, 0, v20")
    a("v_cvt_pk_bf16_f32 v20, v20, v20")
    a("v_lshlrev_b32 v20, 16, v20")
    a("v_add_f32 v20, 0x3727c5ac, v20")
    a("v_cvt_pk_bf16_f32 v20, v20, v20")
    a("v_lshlrev_b32 v20, 16, v20")
    a("v_sqrt_f32 v20, v20")
    a("s_nop 0")
    a("v_cvt_pk_bf16_f32 v20, v20, v20")
    a("v_lshlrev_b32 v20, 16, v20")
    a("v_rcp_f32 v20, v20")
    a("s_nop 0")
    for j in range(32):
        t = 22 + 2 * (j & 3)
        a(f"v_lshlrev_b32 v{t}, 16, v{XR + j}")
        a(f"v_and_b32 v{t + 1}, s53, v{XR + j}")
        a(f"v_mul_f32 v{t}, v{t}, v20")
        a(f"v_mul_f32 v{t + 1}, v{t + 1}, v20")
        a(f"v_cvt_pk_bf16_f32 v{XR + j}, v{t}, v{t + 1}")
    a("s_lshl_b32 s34, s32, 3")
    a("v_add_u32 v9, s34, v3")
    a("v_bfe_u32 v10, v9, 1, 3")
    a("v_xor_b32 v10, v10, v4")
    a("v_lshlrev_b32 v10, 4, v10")
    a("v_lshl_add_u32 v10, v9, 7, v10")
    for j in range(8):
        a(f"ds_write_b128 v10, v[{XR + 4 * j}:{XR + 4 * j + 3}] offset:{8192 * j}")
    stamp(a, 3)
    a("s_waitcnt lgkmcnt(0)")
    a("s_barrier")
    stamp(a, 4)
    a("s_cmp_ge_u32 s32, 4")
    a(f"s_cbranch_scc1 {name}_fin")
    a("v_and_b32 v9, 31, v2")
    emit_perm32(a, 10, 9, 11)
    a("v_bfe_u32 v11, v10, 1, 3")
    a("v_lshrrev_b32 v12, 5, v2")
    a("v_xor_b32 v11, v11, v12")
    a("v_lshlrev_b32 v11, 4, v11")
    a("v_lshl_add_u32 v11, v10, 7, v11")
    for c in range(4):
        a(f"v_xor_b32 v{12 + c}, {c * 32}, v11")
        a(f"v_add_u32 v{16 + c}, s46, v{12 + c}")
    ACC = 64
    FR = [96, 108, 120]
    for i in range(32):
        a(f"v_mov_b32 v{ACC + i}, 0")
    units = [(kk, c) for kk in range(8) for c in range(4)]
    vq = [kk for kk in range(6) for _ in range(4)]

    def wait_slot(kk):
        nonlocal vq
        if kk in vq:
            idx = max(i for i, t in enumerate(vq) if t == kk)
            a(f"s_waitcnt vmcnt({len(vq) - 1 - idx})")
            vq = vq[idx + 1:]

    def reads(n):
        kk, c = units[n]
        f = FR[n % 3]
        if c == 0:
            wait_slot(kk)
        a(f"ds_read_b128 v[{f}:{f + 3}], v{16 + c} offset:{(kk % 6) * 4096}")
        a(f"ds_read_b128 v[{f + 4}:{f + 7}], v{12 + c} offset:{kk * 8192}")
        a(f"ds_read_b128 v[{f + 8}:{f + 11}], v{12 + c} offset:{kk * 8192 + 4096}")

    reads(0)
    reads(1)
    for n in range(len(units)):
        kk, c = units[n]
        if n + 2 < len(units):
            reads(n + 2)
            a("s_waitcnt lgkmcnt(6)")
        elif n + 1 < len(units):
            a("s_waitcnt lgkmcnt(3)")
        else:
            a("s_waitcnt lgkmcnt(0)")
        f = FR[n % 3]
        a(f"v_mfma_f32_32x32x16_bf16 v[{ACC}:{ACC + 15}], v[{f + 4}:{f + 7}], v[{f}:{f + 3}], v[{ACC}:{ACC + 15}]")
        a(f"v_mfma_f32_32x32x16_bf16 v[{ACC + 16}:{ACC + 31}], v[{f + 8}:{f + 11}], v[{f}:{f + 3}], v[{ACC + 16}:{ACC + 31}]")
        if c == 3 and kk + 6 < 8:
            dma_slot(kk + 6)
            vq += [kk + 6] * 4
    stamp(a, 5)
    a("s_lshl_b32 s34, s31, 2")
    a("s_add_u32 s34, s34, s32")
    a("s_lshl_b32 s34, s34, 6")
    a("s_lshl_b32 s33, s30, 1")
    a("s_add_u32 s34, s34, s33")
    a("s_lshl_b32 s34, s34, 11")
    a("v_lshlrev_b32 v9, 4, v2")
    a("s_nop 7")
    a("s_nop 3")
    for sh in range(2):
        for i in range(8):
            a(f"v_cvt_pk_bf16_f32 v{32 + 8 * sh + i}, v{ACC + 16 * sh + 2 * i}, v{ACC + 16 * sh + 2 * i + 1}")
    for sh in range(2):
        for u in range(2):
            r = 32 + 8 * sh + 4 * u
            a(f"buffer_store_dwordx4 v[{r}:{r + 3}], v9, s[20:23], s34 offen offset:{sh * 2048 + u * 1024}")
    a.label(f"{name}_fin")
    stamp_flush(a, 1, 6, 6, 7)
    a.label(f"{name}_done")
    a("s_endpgm")
    return kernel_desc(name, 136, 64, 136)


def gen_k2(a, name, NS=9, ED=3, nomfma=0, noload=0, spread=0, noC=0, noE=0):
    kernel_begin(a, name)
    a("s_cmp_ge_u32 s2, 256")
    a(f"s_cbranch_scc1 {name}_done")
    stamp(a, 0)
    a("s_load_dwordx4 s[4:7], s[0:1], 8")
    a("s_load_dwordx2 s[8:9], s[0:1], 96")
    a("s_and_b32 s3, s2, 7")
    a("s_lshr_b32 s28, s2, 3")
    a("s_and_b32 s29, s3, 1")
    a("s_lshr_b32 s30, s3, 1")
    a("s_lshl_b32 s30, s30, 2")
    a("s_and_b32 s31, s28, 3")
    a("s_add_u32 s30, s30, s31")
    a("s_lshr_b32 s31, s28, 2")
    a("v_lshrrev_b32 v200, 6, v0")
    a("v_and_b32 v201, 63, v0")
    a("s_nop 0")
    a("v_readfirstlane_b32 s32, v200")
    a("v_lshrrev_b32 v202, 3, v201")
    a("v_and_b32 v203, 7, v201")
    a("v_lshrrev_b32 v204, 4, v201")
    a("v_xor_b32 v204, v204, v203")
    a("v_xor_b32 v205, 4, v204")
    a("v_lshlrev_b32 v206, 12, v202")
    a("v_lshl_add_u32 v204, v204, 4, v206")
    a("v_lshl_add_u32 v205, v205, 4, v206")
    a("v_lshlrev_b32 v206, 4, v201")
    a("s_waitcnt lgkmcnt(0)")
    stamp(a, 1)
    a("s_cmp_eq_u32 s29, 1")
    a("s_cselect_b32 s4, s6, s4")
    a("s_cselect_b32 s5, s7, s5")
    srd(a, 12, 4, 5, S * S * 2)
    srd(a, 16, 8, 9, 8 << 20)
    a("s_lshl_b32 s35, s30, 19")
    a("s_lshl_b32 s34, s32, 10")
    a("s_add_u32 s35, s35, s34")
    for j in range(4):
        a(f"s_add_u32 s34, s32, {j}")
        a("s_and_b32 s34, s34, 3")
        a(f"s_mov_b32 s{52 + j}, s34")
        a("s_lshl_b32 s34, s34, 17")
        a(f"s_add_u32 s{40 + j}, s35, s34")
    a("s_lshl_b32 s36, s29, 4")
    a("s_lshl_b32 s34, s31, 1")
    a("s_add_u32 s36, s36, s34")
    a("s_lshl_b32 s36, s36, 6")
    a("s_lshl_b32 s34, s32, 4")
    a("s_add_u32 s36, s36, s34")
    a("s_lshl_b32 s36, s36, 11")
    a("s_add_u32 s37, s36, 131072")
    RING = NS * 4096
    a(f"s_mul_i32 s46, s32, {RING}")
    vm = VM(a)

    pend = []

    def dma_one(n, i):
        kk, j = n // 4, n % 4
        if noload or noC:
            return
        a(f"s_add_u32 m0, s46, {(n % NS) * 4096 + i * 1024}")
        a(f"s_add_u32 s47, s{40 + j}, {(i * 8) * 4096 + kk * 128}")
        a(f"buffer_load_dwordx4 v{204 + (i & 1)}, s[12:15], s47 offen lds")
        vm.issue(("C", n))

    def e_one(kk, et2, c):
        if noload or noE:
            return
        st = kk % ED
        r = st * 32 + et2 * 16 + c * 4
        a(f"s_add_u32 s48, s{36 + et2}, {kk * 4096}")
        a(f"buffer_load_dwordx4 a[{r}:{r + 3}], v206, s[16:19], s48 offen offset:{c * 1024}")
        vm.issue(("E", kk))

    def dma_slot(n, defer=False):
        for i in range(4):
            if defer:
                pend.append(lambda n=n, i=i: dma_one(n, i))
            else:
                dma_one(n, i)

    def e_loads(kk, defer=False):
        for et2 in range(2):
            for c in range(4):
                if defer:
                    pend.append(lambda kk=kk, et2=et2, c=c: e_one(kk, et2, c))
                else:
                    e_one(kk, et2, c)

    def flush_pend(pred=None, maxn=None):
        cnt = 0
        while pend and (maxn is None or cnt < maxn):
            pend.pop(0)()
            cnt += 1

    nslot_issued = 0
    for kk in range(ED):
        e_loads(kk)
        for tt in range(4):
            if nslot_issued < NS:
                dma_slot(nslot_issued)
                nslot_issued += 1
    while nslot_issued < NS:
        dma_slot(nslot_issued)
        nslot_issued += 1
    stamp(a, 2)
    a("v_and_b32 v207, 31, v201")
    a("v_bfe_u32 v208, v207, 1, 3")
    a("v_lshrrev_b32 v209, 5, v201")
    a("v_lshlrev_b32 v209, 1, v209")
    a("v_xor_b32 v208, v208, v209")
    a("v_lshlrev_b32 v208, 4, v208")
    a("v_lshl_add_u32 v208, v207, 7, v208")
    for c in range(4):
        x = ((c >> 1) * 4 + (c & 1)) << 4
        a(f"v_xor_b32 v{210 + c}, {x}, v208")
        a(f"v_add_u32 v{210 + c}, s46, v{210 + c}")
    for i in range(128):
        a(f"v_mov_b32 v{i}, 0")
    def pend_has(tag):
        return any(getattr(p, '__defaults__', (None,))[0] == tag[1] and len(p.__defaults__) == (2 if tag[0] == 'C' else 3) for p in pend)

    units = [(n, c) for n in range(32) for c in range(4)]
    NF = 6
    LOOKAHEAD = 4

    def reads(un):
        n, c = units[un]
        if c == 0:
            assert noload or noC or vm.q.count(("C", n)) == 4 or ("C", n) not in vm.q and n < nslot_issued and not pend_has(("C", n))
            vm.wait(("C", n))
        f = 128 + 4 * (un % NF)
        a(f"ds_read_b128 v[{f}:{f + 3}], v{210 + c} offset:{(n % NS) * 4096}")

    for un in range(LOOKAHEAD):
        reads(un)
    for un in range(len(units)):
        n, c = units[un]
        kk, j = n // 4, n % 4
        if un + LOOKAHEAD < len(units):
            reads(un + LOOKAHEAD)
            a(f"s_waitcnt lgkmcnt({LOOKAHEAD})")
        else:
            a(f"s_waitcnt lgkmcnt({len(units) - 1 - un})")
        if j == 0 and c == 0:
            assert not pend_has(("E", kk))
            vm.wait(("E", kk))
        f = 128 + 4 * (un % NF)
        st = kk % ED
        if un == 0:
            stamp(a, 3)
        if un == 64:
            stamp(a, 4)
        for et2 in range(2):
            acc = (j * 2 + et2) * 16
            r = st * 32 + et2 * 16 + c * 4
            if not nomfma:
                a(f"v_mfma_f32_32x32x16_bf16 v[{acc}:{acc + 15}], a[{r}:{r + 3}], v[{f}:{f + 3}], v[{acc}:{acc + 15}]")
            if spread:
                flush_pend(maxn=1)
        if c == 3:
            if nslot_issued < 32:
                dma_slot(nslot_issued, defer=bool(spread))
                nslot_issued += 1
            if j == 3 and kk + ED < 8:
                e_loads(kk + ED, defer=bool(spread))
    stamp(a, 5)
    a("s_barrier")
    stamp(a, 6)
    for j in range(1, 4):
        a(f"s_mul_i32 s34, s{52 + j}, 24576")
        a(f"s_add_u32 s34, s34, {(j - 1) * 8192}")
        a(f"v_add_u32 v{214 + j}, s34, v206")
    a("s_mul_i32 s34, s32, 24576")
    a("v_add_u32 v214, s34, v206")
    a("s_nop 7")
    for j in range(1, 4):
        for q in range(8):
            r = j * 32 + 4 * q
            a(f"ds_write_b128 v{214 + j}, v[{r}:{r + 3}] offset:{q * 1024}")
    a("s_waitcnt lgkmcnt(0)")
    a("s_barrier")
    stamp(a, 7)
    for j in range(1, 4):
        for q in range(8):
            r = j * 32 + 4 * q
            a(f"ds_read_b128 v[{r}:{r + 3}], v214 offset:{(j - 1) * 8192 + q * 1024}")
    a("s_lshl_b32 s34, s30, 7")
    a("s_lshl_b32 s33, s32, 5")
    a("s_add_u32 s34, s34, s33")
    a("s_lshl_b32 s34, s34, 10")
    a("s_lshl_b32 s33, s31, 7")
    a("s_add_u32 s34, s34, s33")
    a("s_lshl_b32 s33, s29, 21")
    a("s_add_u32 s34, s34, s33")
    a(f"s_add_u32 s34, s34, {WS_Y}")
    a("v_lshrrev_b32 v209, 5, v201")
    a("v_lshlrev_b32 v209, 5, v209")
    a("v_lshl_add_u32 v209, v207, 10, v209")
    for j in range(1, 4):
        a(f"s_waitcnt lgkmcnt({min(15, (3 - j) * 8)})")
        for i in range(32):
            a(f"v_add_f32 v{i}, v{i}, v{j * 32 + i}")
    for i in range(16):
        a(f"v_cvt_pk_bf16_f32 v{128 + i}, v{2 * i}, v{2 * i + 1}")
    for et2 in range(2):
        for hh in range(2):
            r = 128 + et2 * 8 + hh * 4
            a(f"buffer_store_dwordx4 v[{r}:{r + 3}], v209, s[16:19], s34 offen offset:{et2 * 64 + hh * 16}")
    stamp_flush(a, 2, 8, 8, 9)
    a.label(f"{name}_done")
    a("s_endpgm")
    return kernel_desc(name, 224 + 32 * ED, 64, 224)


WS_P = 4 << 20


def gen_k2b(a, name, NSTG=5, LA=2, nomfma=0, noread=0, nodma=0, nostore=0):
    kernel_begin(a, name)
    a("s_cmp_ge_u32 s2, 256")
    a(f"s_cbranch_scc1 {name}_done")
    stamp(a, 0)
    a("s_load_dwordx4 s[4:7], s[0:1], 8")
    a("s_load_dwordx2 s[8:9], s[0:1], 96")
    a("s_and_b32 s3, s2, 7")
    a("s_lshr_b32 s28, s2, 3")
    a("s_and_b32 s29, s3, 1")
    a("s_bfe_u32 s27, s3, 0x10001")
    a("s_lshr_b32 s30, s3, 2")
    a("s_lshl_b32 s30, s30, 3")
    a("s_and_b32 s31, s28, 7")
    a("s_add_u32 s30, s30, s31")
    a("s_lshr_b32 s31, s28, 3")
    a("v_lshrrev_b32 v1, 6, v0")
    a("v_and_b32 v2, 63, v0")
    a("s_nop 0")
    a("v_readfirstlane_b32 s32, v1")
    a("v_lshlrev_b32 v3, 4, v2")
    a("s_waitcnt lgkmcnt(0)")
    stamp(a, 1)
    a("s_cmp_eq_u32 s29, 1")
    a("s_cselect_b32 s4, s6, s4")
    a("s_cselect_b32 s5, s7, s5")
    srd(a, 12, 4, 5, S * S * 2)
    srd(a, 16, 8, 9, 12 << 20)
    a("s_cmp_lt_u32 s32, 4")
    a(f"s_cbranch_scc1 {name}_cons")
    a("s_sub_u32 s33, s32, 4")
    a("v_lshrrev_b32 v4, 3, v2")
    a("v_and_b32 v5, 7, v2")
    a("v_lshrrev_b32 v6, 4, v2")
    a("v_xor_b32 v6, v6, v5")
    a("v_xor_b32 v7, 4, v6")
    a("v_lshlrev_b32 v4, 12, v4")
    a("v_lshl_add_u32 v6, v6, 4, v4")
    a("v_lshl_add_u32 v7, v7, 4, v4")
    a("v_mov_b32 v8, v6")
    a(f"v_add_u32 v9, {32768 - 1024}, v7")
    a(f"v_add_u32 v10, {2 * (32768 - 1024)}, v6")
    a(f"v_add_u32 v11, {3 * (32768 - 1024)}, v7")
    a("s_lshl_b32 s35, s30, 19")
    a("s_lshl_b32 s34, s33, 17")
    a("s_add_u32 s35, s35, s34")
    a("s_lshl_b32 s34, s27, 11")
    a("s_add_u32 s35, s35, s34")
    a("s_lshl_b32 s36, s29, 4")
    a("s_lshl_b32 s34, s31, 2")
    a("s_add_u32 s36, s36, s34")
    a("s_add_u32 s36, s36, s33")
    a("s_lshl_b32 s36, s36, 6")
    a("s_lshl_b32 s34, s27, 5")
    a("s_add_u32 s36, s36, s34")
    a("s_lshl_b32 s36, s36, 11")
    a("s_lshl_b32 s37, s33, 12")

    def load_stage(s):
        slot = (s % NSTG) * 32768
        a(f"s_add_u32 m0, s37, {slot}")
        a(f"s_add_u32 s38, s35, {s * 128}")
        for i in range(4):
            if not nodma:
                a(f"buffer_load_dwordx4 v{8 + i}, s[12:15], s38 offen offset:{i * 1024} lds")
        a(f"s_add_u32 m0, s37, {slot + 16384}")
        a(f"s_add_u32 s39, s36, {s * 4096}")
        for c in range(4):
            if not nodma:
                a(f"buffer_load_dwordx4 v3, s[16:19], s39 offen offset:{c * 1024} lds")

    NST = 16
    for s in range(NSTG - 1):
        load_stage(s)
    stamp(a, 2)
    for s in range(NST):
        issued = min(s + NSTG - 2, NST - 1)
        a(f"s_waitcnt vmcnt({(issued - s) * 8})")
        a("s_barrier")
        if s + NSTG - 1 < NST:
            load_stage(s + NSTG - 1)
    stamp(a, 5)
    a(f"s_branch {name}_fin")
    a.label(f"{name}_cons")
    a("s_and_b32 s33, s32, 1")
    a("s_lshr_b32 s34, s32, 1")
    a("v_and_b32 v4, 31, v2")
    a("v_bfe_u32 v5, v4, 1, 3")
    a("v_lshrrev_b32 v6, 5, v2")
    a("v_lshlrev_b32 v6, 1, v6")
    a("v_xor_b32 v5, v5, v6")
    a("v_lshlrev_b32 v5, 4, v5")
    a("v_lshl_add_u32 v5, v4, 7, v5")
    a("s_lshl_b32 s35, s33, 13")
    a("s_lshl_b32 s36, s34, 13")
    a("s_add_u32 s36, s36, 16384")
    for g in range(3):
        for c in range(4):
            x = ((c >> 1) * 4 + (c & 1)) << 4
            a(f"v_xor_b32 v{8 + 5 * g + c}, {x}, v5")
            a(f"v_add_u32 v{8 + 5 * g + c}, s35, v{8 + 5 * g + c}")
            if g:
                a(f"v_add_u32 v{8 + 5 * g + c}, {65536 * g}, v{8 + 5 * g + c}")
        a(f"v_add_u32 v{8 + 5 * g + 4}, s36, v3")
        if g:
            a(f"v_add_u32 v{8 + 5 * g + 4}, {65536 * g}, v{8 + 5 * g + 4}")
    ACC = 64
    FB = 128
    for i in range(64):
        a(f"v_mov_b32 v{ACC + i}, 0")
    NU = NST * 4

    def reads(u):
        s, c = u // 4, u % 4
        slot = s % NSTG
        g, so = slot // 2, (slot % 2) * 32768
        f = FB + 16 * (u % (LA + 1))
        if c == 0:
            a("s_waitcnt lgkmcnt(0)")
            a("s_barrier")
            if s == 0:
                stamp(a, 3)
            if s == 8:
                stamp(a, 4)
        if noread:
            return
        a(f"ds_read_b128 v[{f}:{f + 3}], v{8 + 5 * g + c} offset:{so}")
        a(f"ds_read_b128 v[{f + 8}:{f + 11}], v{8 + 5 * g + 4} offset:{so + c * 1024}")
        a(f"ds_read_b128 v[{f + 4}:{f + 7}], v{8 + 5 * g + c} offset:{so + 4096}")
        a(f"ds_read_b128 v[{f + 12}:{f + 15}], v{8 + 5 * g + 4} offset:{so + 4096 + c * 1024}")

    for u in range(LA):
        reads(u)
    for u in range(NU):
        if u + LA < NU:
            reads(u + LA)
        nxt = min(u + LA, NU - 1)
        cnt = 0
        for uu in range(u + 1, nxt + 1):
            cnt += 4
        a(f"s_waitcnt lgkmcnt({min(cnt, 15)})")
        f = FB + 16 * (u % (LA + 1))
        for et in range(2):
            for tt in range(2):
                acc = ACC + (et * 2 + tt) * 16
                if not nomfma:
                    a(f"v_mfma_f32_32x32x16_bf16 v[{acc}:{acc + 15}], v[{f + 8 + 4 * et}:{f + 11 + 4 * et}], v[{f + 4 * tt}:{f + 4 * tt + 3}], v[{acc}:{acc + 15}]")
    stamp(a, 5)
    a("s_lshl_b32 s35, s30, 7")
    a("s_lshl_b32 s36, s33, 6")
    a("s_add_u32 s35, s35, s36")
    a("s_lshl_b32 s35, s35, 10")
    a("s_lshl_b32 s36, s31, 8")
    a("s_add_u32 s35, s35, s36")
    a("s_lshl_b32 s36, s34, 7")
    a("s_add_u32 s35, s35, s36")
    a("s_lshl_b32 s36, s29, 1")
    a("s_add_u32 s36, s36, s27")
    a("s_lshl_b32 s36, s36, 21")
    a("s_add_u32 s35, s35, s36")
    a(f"s_add_u32 s35, s35, {WS_P}")
    a("s_add_u32 s36, s35, 32768")
    a("v_lshrrev_b32 v6, 5, v2")
    a("v_lshlrev_b32 v6, 5, v6")
    a("v_lshl_add_u32 v6, v4, 10, v6")
    a("s_nop 4")
    for et in range(2):
        for tt in range(2):
            acc = ACC + (et * 2 + tt) * 16
            o = 24 + (et * 2 + tt) * 8
            for i in range(8):
                a(f"v_cvt_pk_bf16_f32 v{o + i}, v{acc + 2 * i}, v{acc + 2 * i + 1}")
            for hh in range(2):
                if not nostore:
                    a(f"buffer_store_dwordx4 v[{o + 4 * hh}:{o + 4 * hh + 3}], v6, s[16:19], s{35 + tt} offen offset:{et * 64 + hh * 16}")
    a.label(f"{name}_fin")
    stamp_flush(a, 2, 6, 8, 9)
    a.label(f"{name}_done")
    a("s_endpgm")
    nv = FB + 16 * (LA + 1)
    return kernel_desc(name, nv, 64, nv)


def emit_perm2(a, dst, src, t):
    a(f"v_and_b32 v{dst}, 3, v{src}")
    a(f"v_bfe_u32 v{t}, v{src}, 2, 2")
    a(f"v_lshl_or_b32 v{dst}, v{t}, 3, v{dst}")
    a(f"v_bfe_u32 v{t}, v{src}, 4, 1")
    a(f"v_lshl_or_b32 v{dst}, v{t}, 2, v{dst}")


def gen_k1b(a, name, prefetch=1, wt=0, nostats=0, nocs=0, PRO=6, pfpos=2, rot=1):
    NSTG, SLOT = 6, 24576
    STATS = NSTG * SLOT
    kernel_begin(a, name)
    a("s_cmp_ge_u32 s2, 256")
    a(f"s_cbranch_scc1 {name}_done")
    stamp(a, 0)
    a("s_load_dwordx2 s[4:5], s[0:1], 0")
    a("s_load_dwordx4 s[8:11], s[0:1], 24")
    a("s_load_dwordx2 s[6:7], s[0:1], 96")
    a("s_load_dwordx4 s[40:43], s[0:1], 8")
    a("s_and_b32 s3, s2, 7")
    a("s_lshr_b32 s28, s2, 3")
    a("s_and_b32 s29, s28, 3")
    a("s_lshl_b32 s30, s3, 2")
    a("s_add_u32 s30, s30, s29")
    a("s_lshr_b32 s31, s28, 2")
    a("v_lshrrev_b32 v1, 6, v0")
    a("v_and_b32 v2, 63, v0")
    a("s_nop 0")
    a("v_readfirstlane_b32 s32, v1")
    a("s_mov_b32 s53, 0xffff0000")
    a("s_cmp_lt_u32 s32, 4")
    a(f"s_cbranch_scc1 {name}_cons")
    a("s_sub_u32 s33, s32, 4")
    a("v_lshrrev_b32 v3, 3, v2")
    a("v_and_b32 v4, 7, v2")
    a("v_lshrrev_b32 v6, 4, v2")
    a("v_xor_b32 v6, v6, v4")
    a("v_xor_b32 v7, 4, v6")
    a("v_lshlrev_b32 v3, 10, v3")
    a("v_lshl_add_u32 v8, v6, 4, v3")
    a("v_lshl_add_u32 v7, v7, 4, v3")
    a(f"v_add_u32 v9, {8192 - 1024}, v7")
    a(f"v_add_u32 v10, {2 * (8192 - 1024)}, v8")
    a(f"v_add_u32 v11, {3 * (8192 - 1024)}, v7")
    a("s_lshl_b32 s35, s30, 6")
    a("s_lshl_b32 s34, s33, 4")
    a("s_add_u32 s35, s35, s34")
    a("s_lshl_b32 s35, s35, 10")
    a("s_and_b32 s36, s31, 3")
    a("s_lshl_b32 s36, s36, 7")
    a("s_lshl_b32 s34, s33, 5")
    a("s_add_u32 s36, s36, s34")
    a("s_lshl_b32 s36, s36, 10")
    a("s_lshl_b32 s37, s33, 11")
    a("s_lshl_b32 s38, s33, 12")
    a("s_add_u32 s38, s38, 8192")
    a("s_lshl_b32 s34, s29, 1")
    a("s_add_u32 s34, s34, s31")
    for kk in range(8):
        if rot:
            a(f"s_add_u32 s39, s34, {kk}")
            a("s_and_b32 s39, s39, 7")
            a(f"s_lshl_b32 s{54 + kk}, s39, 7")
        else:
            a(f"s_mov_b32 s{54 + kk}, {kk * 128}")
    a("s_waitcnt lgkmcnt(0)")
    stamp(a, 1)
    srd(a, 12, 4, 5, S * D * 2)
    a("s_cmp_ge_u32 s31, 4")
    a("s_cselect_b32 s8, s10, s8")
    a("s_cselect_b32 s9, s11, s9")
    srd(a, 16, 8, 9, D * D * 2)

    def load_stage(kk):
        slot = (kk % NSTG) * SLOT
        a(f"s_add_u32 m0, s37, {slot}")
        a(f"s_add_u32 s39, s35, s{54 + kk}")
        for i in range(2):
            a(f"buffer_load_dwordx4 v{8 + i}, s[12:15], s39 offen offset:{i * 1024} lds")
        a(f"s_add_u32 m0, s38, {slot}")
        a(f"s_add_u32 s39, s36, s{54 + kk}")
        for i in range(4):
            a(f"buffer_load_dwordx4 v{8 + i}, s[16:19], s39 offen offset:{i * 1024} lds")

    for kk in range(PRO):
        load_stage(kk)
    stamp(a, 2)
    a("v_lshrrev_b32 v12, 2, v2")
    a("v_lshlrev_b32 v12, 7, v12")
    a("v_and_b32 v13, 3, v2")
    a("v_lshl_add_u32 v12, v13, 5, v12")
    a("v_add_u32 v12, s37, v12")
    a(f"v_add_u32 v13, {3 * SLOT}, v12")
    a("v_mov_b32 v14, 0")
    a("v_mov_b32 v15, 0")
    a("v_mov_b32 v16, 0")
    a("v_mov_b32 v17, 0")
    issued = PRO
    npf = 0

    def emit_prefetch(vb):
        a("s_and_b32 s48, s3, 1")
        a("s_cmp_eq_u32 s48, 1")
        a("s_cselect_b32 s40, s42, s40")
        a("s_cselect_b32 s41, s43, s41")
        srd(a, 24, 40, 41, S * S * 2)
        a("s_lshr_b32 s48, s3, 2")
        a("s_lshl_b32 s48, s48, 10")
        a("s_lshl_b32 s49, s28, 5")
        a("s_add_u32 s48, s48, s49")
        a("s_and_b32 s49, s32, 3")
        a("s_lshl_b32 s49, s49, 3")
        a("s_add_u32 s48, s48, s49")
        a("s_lshl_b32 s48, s48, 12")
        a("s_bfe_u32 s49, s3, 0x10001")
        a("s_lshl_b32 s49, s49, 11")
        a("s_add_u32 s48, s48, s49")
        a(f"v_lshrrev_b32 v{vb}, 4, v2")
        a(f"v_lshlrev_b32 v{vb}, 12, v{vb}")
        a(f"v_and_b32 v{vb + 1}, 15, v2")
        a(f"v_lshl_add_u32 v{vb}, v{vb + 1}, 7, v{vb}")
        for i in range(2):
            a(f"s_add_u32 s49, s48, {i * 16384}")
            a(f"buffer_load_dword v{vb + 2 + i}, v{vb}, s[24:27], s49 offen")

    vq = [k for k in range(PRO) for _ in range(6)]
    for kk in range(8):
        idx = max(i for i, t in enumerate(vq) if t == kk)
        a(f"s_waitcnt vmcnt({len(vq) - 1 - idx})")
        vq = vq[idx + 1:]
        slot = kk % NSTG
        ar, so = (12, slot * SLOT) if slot < 3 else (13, (slot - 3) * SLOT)
        a(f"ds_read_b128 v[24:27], v{ar} offset:{so}")
        a(f"ds_read_b128 v[28:31], v{ar} offset:{so + 16}")
        a("s_barrier")
        a("s_waitcnt lgkmcnt(0)")
        n_new = 0
        while issued < 8 and issued - NSTG < kk and n_new < 2:
            load_stage(issued)
            vq += [issued] * 6
            issued += 1
            n_new += 1
        if prefetch and pfpos == kk:
            emit_prefetch(40)
            vq += ["pf"] * 2
        if kk == 0:
            a("v_lshlrev_b32 v18, 16, v24")
            a("s_nop 1")
            a(f"v_mov_b32_dpp v18, v18 quad_perm:[0,0,0,0] {DPP}")
        for r in range(0 if nostats else 8):
            t = 32 + 2 * (r & 3)
            a(f"v_lshlrev_b32 v{t}, 16, v{24 + r}")
            a(f"v_and_b32 v{t + 1}, s53, v{24 + r}")
            a(f"v_sub_f32 v{t}, v{t}, v18")
            a(f"v_sub_f32 v{t + 1}, v{t + 1}, v18")
            a(f"v_add_f32 v14, v14, v{t}")
            a(f"v_add_f32 v15, v15, v{t + 1}")
            a(f"v_fmac_f32 v16, v{t}, v{t}")
            a(f"v_fmac_f32 v17, v{t + 1}, v{t + 1}")
    a("v_add_f32 v14, v14, v15")
    a("v_add_f32 v16, v16, v17")
    for qp in ("[1,0,3,2]", "[2,3,0,1]"):
        a("s_nop 1")
        a(f"v_add_f32_dpp v14, v14, v14 quad_perm:{qp} {DPP}")
        a(f"v_add_f32_dpp v16, v16, v16 quad_perm:{qp} {DPP}")
    a("v_mul_f32 v14, 0x3b000000, v14")
    a("v_mul_f32 v16, 0x3b000000, v16")
    a("v_fma_f32 v16, -v14, v14, v16")
    a("v_max_f32 v16, 0, v16")
    a("v_add_f32 v14, v14, v18")
    a("v_cvt_pk_bf16_f32 v14, v14, v14")
    a("v_lshlrev_b32 v14, 16, v14")
    a("v_cvt_pk_bf16_f32 v16, v16, v16")
    a("v_lshlrev_b32 v16, 16, v16")
    a("v_add_f32 v16, 0x3727c5ac, v16")
    a("v_cvt_pk_bf16_f32 v16, v16, v16")
    a("v_lshlrev_b32 v16, 16, v16")
    a("v_sqrt_f32 v16, v16")
    a("s_nop 0")
    a("v_cvt_pk_bf16_f32 v16, v16, v16")
    a("v_lshlrev_b32 v16, 16, v16")
    a("v_rcp_f32 v16, v16")
    a("v_lshrrev_b32 v19, 2, v2")
    a("v_lshlrev_b32 v19, 2, v19")
    a("s_lshl_b32 s34, s33, 6")
    a(f"s_add_u32 s34, s34, {STATS}")
    a("v_add_u32 v19, s34, v19")
    a("ds_write_b32 v19, v14")
    a("ds_write_b32 v19, v16 offset:256")
    a("s_waitcnt lgkmcnt(0)")
    stamp(a, 3)
    a("s_barrier")
    a(f"s_branch {name}_fin")
    a.label(f"{name}_cons")
    a("v_and_b32 v9, 31, v2")
    a("v_lshrrev_b32 v5, 5, v2")
    emit_perm32(a, 10, 9, 11)
    a("v_bfe_u32 v11, v10, 1, 3")
    a("v_xor_b32 v11, v11, v5")
    a("v_lshlrev_b32 v11, 4, v11")
    a("v_lshl_add_u32 v11, v10, 7, v11")
    emit_perm2(a, 10, 9, 12)
    a("v_bfe_u32 v12, v10, 1, 3")
    a("v_xor_b32 v12, v12, v5")
    a("v_lshlrev_b32 v12, 4, v12")
    a("v_lshl_add_u32 v12, v10, 7, v12")
    a("s_lshl_b32 s34, s32, 12")
    a("s_add_u32 s34, s34, 8192")
    a("v_add_u32 v12, s34, v12")
    for g in range(3):
        for c in range(4):
            a(f"v_xor_b32 v{16 + 8 * g + c}, {c * 32}, v11")
            a(f"v_xor_b32 v{20 + 8 * g + c}, {c * 32}, v12")
            if g:
                a(f"v_add_u32 v{16 + 8 * g + c}, {2 * SLOT * g}, v{16 + 8 * g + c}")
                a(f"v_add_u32 v{20 + 8 * g + c}, {2 * SLOT * g}, v{20 + 8 * g + c}")
    ACC = 64
    FR = [96, 108, 120]
    for i in range(32):
        a(f"v_mov_b32 v{ACC + i}, 0")
    a("v_mov_b32 v40, 0")
    a("v_mov_b32 v41, 0")
    a("s_mov_b32 s50, 0x3f803f80")
    a("s_waitcnt lgkmcnt(0)")
    stamp(a, 1)
    srd(a, 20, 6, 7, 4 << 20)
    if prefetch and pfpos == -1:
        emit_prefetch(150)
    units = [(kk, c) for kk in range(8) for c in range(4)]

    def reads(n):
        kk, c = units[n]
        f = FR[n % 3]
        slot = kk % NSTG
        g, so = slot // 2, (slot % 2) * SLOT
        if c == 0:
            a("s_waitcnt lgkmcnt(0)")
            a("s_barrier")
            if kk == 0:
                stamp(a, 2)
        a(f"ds_read_b128 v[{f}:{f + 3}], v{20 + 8 * g + c} offset:{so}")
        a(f"ds_read_b128 v[{f + 4}:{f + 7}], v{16 + 8 * g + c} offset:{so}")
        a(f"ds_read_b128 v[{f + 8}:{f + 11}], v{16 + 8 * g + c} offset:{so + 4096}")

    reads(0)
    reads(1)
    for n in range(len(units)):
        if n + 2 < len(units):
            reads(n + 2)
            a("s_waitcnt lgkmcnt(6)")
        elif n + 1 < len(units):
            a("s_waitcnt lgkmcnt(3)")
        else:
            a("s_waitcnt lgkmcnt(0)")
        f = FR[n % 3]
        a(f"v_mfma_f32_32x32x16_bf16 v[{ACC}:{ACC + 15}], v[{f + 4}:{f + 7}], v[{f}:{f + 3}], v[{ACC}:{ACC + 15}]")
        if not nocs:
            a(f"v_dot2_f32_bf16 v40, v{f}, s50, v40")
        if not nocs:
            a(f"v_dot2_f32_bf16 v41, v{f + 1}, s50, v41")
        a(f"v_mfma_f32_32x32x16_bf16 v[{ACC + 16}:{ACC + 31}], v[{f + 8}:{f + 11}], v[{f}:{f + 3}], v[{ACC + 16}:{ACC + 31}]")
        if not nocs:
            a(f"v_dot2_f32_bf16 v40, v{f + 2}, s50, v40")
        if not nocs:
            a(f"v_dot2_f32_bf16 v41, v{f + 3}, s50, v41")
    stamp(a, 3)
    a("s_barrier")
    stamp(a, 4)
    a("v_lshlrev_b32 v42, 6, v5")
    a(f"v_add_u32 v42, {STATS}, v42")
    for sh in range(2):
        for q in range(4):
            a(f"ds_read_b128 v[{96 + 16 * sh + 4 * q}:{99 + 16 * sh + 4 * q}], v42 offset:{128 * sh + 16 * q}")
            a(f"ds_read_b128 v[{128 + 16 * sh + 4 * q}:{131 + 16 * sh + 4 * q}], v42 offset:{256 + 128 * sh + 16 * q}")
    a("v_add_f32 v40, v40, v41")
    a("v_mov_b32 v41, v40")
    a("s_nop 1")
    a("v_permlane32_swap_b32 v40, v41")
    a("s_nop 1")
    a("v_add_f32 v40, v40, v41")
    a("s_lshl_b32 s34, s31, 2")
    a("s_add_u32 s34, s34, s32")
    a("s_lshl_b32 s34, s34, 7")
    a("s_lshl_b32 s33, s30, 1")
    a("s_add_u32 s34, s34, s33")
    a("s_lshl_b32 s34, s34, 10")
    a("v_bfe_u32 v43, v2, 4, 1")
    a("v_lshlrev_b32 v43, 16, v43")
    a("v_lshl_add_u32 v43, v5, 9, v43")
    a("v_and_b32 v44, 15, v2")
    a("v_lshl_add_u32 v43, v44, 4, v43")
    a("s_waitcnt lgkmcnt(0)")
    for sh in range(2):
        for i in range(16):
            r = ACC + 16 * sh + i
            a(f"v_fma_f32 v{r}, -v{96 + 16 * sh + i}, v40, v{r}")
            a(f"v_mul_f32 v{r}, v{r}, v{128 + 16 * sh + i}")
        for i in range(8):
            a(f"v_cvt_pk_bf16_f32 v{48 + 8 * sh + i}, v{ACC + 16 * sh + 2 * i}, v{ACC + 16 * sh + 2 * i + 1}")
        for u in range(2):
            r = 48 + 8 * sh + 4 * u
            a(f"buffer_store_dwordx4 v[{r}:{r + 3}], v43, s[20:23], s34 offen offset:{sh * 1024 + u * 256}" + (" sc0 sc1" if wt else ""))
    stamp(a, 5)
    a.label(f"{name}_fin")
    stamp_flush(a, 1, 6, 6, 7)
    a.label(f"{name}_done")
    a("s_endpgm")
    return kernel_desc(name, 160, 64, 160)


def emit_wtouch(a, s_sel, vt, vd):
    a(f"s_cmp_eq_u32 {s_sel}, 1")
    a("s_cselect_b32 s56, s58, s56")
    a("s_cselect_b32 s57, s59, s57")
    a(f"s_cmp_eq_u32 {s_sel}, 2")
    a("s_cselect_b32 s56, s60, s56")
    a("s_cselect_b32 s57, s61, s57")
    a("s_mul_i32 s62, s2, 7168")
    a("s_add_u32 s63, s62, 7168")
    a(f"s_cmp_eq_u32 {s_sel}, 3")
    a("s_cselect_b32 s63, 0, s63")
    a("s_mov_b32 s20, s56")
    a("s_and_b32 s21, s57, 0xffff")
    a("s_mov_b32 s22, s63")
    a("s_mov_b32 s23, 0x00020000")
    a(f"v_lshlrev_b32 v{vt}, 7, v2")
    a(f"buffer_load_dword v{vd}, v{vt}, s[20:23], s62 offen")


def emit_wtouch2(a):
    a("s_cmp_ge_u32 s33, 2")
    a("s_cselect_b32 s56, s66, s64")
    a("s_cselect_b32 s57, s67, s65")
    a("s_cmp_lt_u32 s28, 28")
    a(f"s_cselect_b32 s62, {D * F * 2}, 0")
    a("s_mov_b32 s20, s56")
    a("s_and_b32 s21, s57, 0xffff")
    a("s_mov_b32 s22, s62")
    a("s_mov_b32 s23, 0x00020000")
    a("s_mov_b32 s24, s68")
    a("s_and_b32 s25, s69, 0xffff")
    a("s_mov_b32 s26, s62")
    a("s_mov_b32 s27, 0x00020000")
    a("s_lshr_b32 s58, s28, 2")
    a("s_lshl_b32 s58, s58, 3")
    a("s_add_u32 s58, s58, s3")
    a("s_and_b32 s59, s28, 3")
    a("s_lshl_b32 s62, s59, 1")
    a("s_and_b32 s63, s33, 1")
    a("s_add_u32 s62, s62, s63")
    a("s_mul_i32 s62, s62, 229376")
    a("s_lshr_b32 s63, s58, 1")
    a("s_lshl_b32 s63, s63, 7")
    a("s_add_u32 s62, s62, s63")
    a("s_mov_b32 s63, 3584")
    a("v_mul_lo_u32 v13, v2, s63")
    a("buffer_load_dword v15, v13, s[20:23], s62 offen")
    a("s_lshl_b32 s62, s58, 15")
    a("s_lshl_b32 s63, s59, 13")
    a("s_add_u32 s62, s62, s63")
    a("s_lshl_b32 s63, s33, 11")
    a("s_add_u32 s62, s62, s63")
    a("v_and_b32 v13, 15, v2")
    a("v_lshlrev_b32 v13, 7, v13")
    a("buffer_load_dword v16, v13, s[24:27], s62 offen")


def gen_k2c(a, name, NSTG=5, LA=1, wt=0, PRO=5, rot=1, BARPOS=1, RSTEP=1, wpf=1, wpf2=0, pol=0, fuse3=0, etouch=0, swap=1, cw=-1, fused_in=0):
    SOFF = 3 if fused_in else 0
    POL = {0: '', 1: ' sc1', 2: ' nt', 3: ' sc0'}[pol]
    if not fused_in:
        kernel_begin(a, name)
        a("s_cmp_ge_u32 s2, 256")
        a(f"s_cbranch_scc1 {name}_done")
    stamp(a, 0)
    if fused_in:
        a("s_load_dwordx2 s[10:11], s[0:1], 88")
    a("s_load_dwordx4 s[4:7], s[0:1], 8")
    a("s_load_dwordx2 s[8:9], s[0:1], 96")
    a("s_load_dwordx4 s[56:59], s[0:1], 56")
    a("s_load_dwordx2 s[60:61], s[0:1], 72")
    a("s_load_dwordx4 s[64:67], s[0:1], 56")
    a("s_load_dwordx2 s[68:69], s[0:1], 72")
    a("s_and_b32 s3, s2, 7")
    a("s_lshr_b32 s28, s2, 3")
    a("s_and_b32 s29, s3, 1")
    a("s_bfe_u32 s27, s3, 0x10001")
    a("s_lshr_b32 s30, s3, 2")
    a("s_lshl_b32 s30, s30, 3")
    a("s_and_b32 s31, s28, 7")
    a("s_add_u32 s30, s30, s31")
    a("s_lshr_b32 s31, s28, 3")
    if fused_in:
        a("v_mbcnt_lo_u32_b32 v2, -1, 0")
        a("v_mbcnt_hi_u32_b32 v2, -1, v2")
    else:
        a("v_lshrrev_b32 v1, 6, v0")
        a("v_and_b32 v2, 63, v0")
        a("s_nop 0")
        a("v_readfirstlane_b32 s32, v1")
    a("v_lshlrev_b32 v3, 4, v2")
    if swap and not fused_in:
        a("s_xor_b32 s32, s32, 4")
    a("s_cmp_lt_u32 s32, 4")
    a(f"s_cbranch_scc1 {name}_cons")
    a("s_sub_u32 s33, s32, 4")
    a("v_lshrrev_b32 v4, 3, v2")
    a("v_and_b32 v5, 7, v2")
    a("v_lshrrev_b32 v6, 4, v2")
    a("v_xor_b32 v6, v6, v5")
    a("v_xor_b32 v7, 4, v6")
    a("v_lshlrev_b32 v4, 12, v4")
    a("v_lshl_add_u32 v6, v6, 4, v4")
    a("v_lshl_add_u32 v7, v7, 4, v4")
    a("v_mov_b32 v8, v6")
    a(f"v_add_u32 v9, {32768 - 1024}, v7")
    a(f"v_add_u32 v10, {2 * (32768 - 1024)}, v6")
    a(f"v_add_u32 v11, {3 * (32768 - 1024)}, v7")
    a(f"v_add_u32 v12, {65536 - 2048}, v3")
    a("s_lshl_b32 s35, s30, 19")
    a("s_lshl_b32 s34, s33, 17")
    a("s_add_u32 s35, s35, s34")
    a("s_lshl_b32 s34, s27, 11")
    a("s_add_u32 s35, s35, s34")
    a("s_lshl_b32 s36, s29, 5")
    a("s_lshl_b32 s34, s31, 3")
    a("s_add_u32 s36, s36, s34")
    a("s_lshl_b32 s34, s33, 1")
    a("s_add_u32 s36, s36, s34")
    a("s_lshl_b32 s36, s36, 6")
    a("s_lshl_b32 s34, s27, 5")
    a("s_add_u32 s36, s36, s34")
    a("s_lshl_b32 s36, s36, 10")
    a("s_lshl_b32 s37, s33, 12")
    if rot >= 2:
        a("s_lshl_b32 s52, s31, 1")
        a("s_add_u32 s52, s52, s30")
        if rot == 3:
            a("s_add_u32 s52, s31, s30")
    for j in range(4):
        if rot:
            a(f"s_add_u32 s34, s31, {j}")
            a("s_and_b32 s34, s34, 3")
        else:
            a(f"s_mov_b32 s34, {j}")
        a("s_lshl_b32 s38, s34, 7")
        a(f"s_add_u32 s{44 + j}, s35, s38")
        a("s_lshl_b32 s38, s34, 11")
        a(f"s_add_u32 s{48 + j}, s36, s38")
    a("s_waitcnt lgkmcnt(0)")
    stamp(a, 1)
    a("s_cmp_eq_u32 s29, 1")
    a("s_cselect_b32 s4, s6, s4")
    a("s_cselect_b32 s5, s7, s5")
    srd(a, 12, 4, 5, S * S * 2)
    srd(a, 16, 8, 9, 14 << 20)

    def load_stage(s, part=3):
        slot = ((s + SOFF) % NSTG) * 32768
        if part & 1:
            load_c(s, slot)
        if part & 2:
            load_e(s, slot)

    def load_c(s, slot):
        a(f"s_add_u32 m0, s37, {slot}")
        if rot >= 2:
            G8 = {2: 8, 3: 4, 4: 16}[rot]
            a(f"s_add_u32 s53, s52, {s}")
            a(f"s_and_b32 s53, s53, {G8 - 1}")
            a(f"s_add_u32 s53, s53, {s & ~(G8 - 1)}")
            a("s_lshl_b32 s54, s53, 7")
            a("s_add_u32 s38, s35, s54")
        else:
            a(f"s_add_u32 s38, s{44 + (s & 3)}, {(s & ~3) * 128}")
        for i in range(4):
            a(f"buffer_load_dwordx4 v{8 + i}, s[12:15], s38 offen offset:{i * 1024}{POL} lds")

    def load_e(s, slot):
        a(f"s_add_u32 m0, s37, {slot + 16384}")
        if rot >= 2:
            a("s_lshl_b32 s54, s53, 11")
            a("s_add_u32 s39, s36, s54")
        else:
            a(f"s_add_u32 s39, s{48 + (s & 3)}, {(s & ~3) * 2048}")
        for c in range(4):
            a(f"buffer_load_dwordx4 v{3 if c < 2 else 12}, s[16:19], s39 offen offset:{c * 1024}{' sc1' if fused_in else POL} lds")

    NST = 16
    if fused_in:
        PRO = 4
        for s in range(PRO):
            load_stage(s, 1)
        srd(a, 20, 10, 11, 256)
        a("s_lshl_b32 s52, s29, 1")
        a("s_add_u32 s52, s52, s27")
        a("s_lshl_b32 s52, s52, 2")
        a("s_add_u32 s52, s52, s31")
        a("s_lshl_b32 s52, s52, 10")
        a(f"s_add_u32 s52, s52, {WS_FLAG1}")
        a("v_bfe_u32 v13, v2, 2, 3")
        a("v_lshlrev_b32 v13, 7, v13")
        a("v_and_b32 v14, 3, v2")
        a("v_lshl_add_u32 v13, v14, 2, v13")
        a("v_mov_b32 v14, 0")
        a("s_mov_b32 s55, 0x40000")
        a.label(f"{name}_np")
        a("buffer_load_dword v15, v14, s[20:23], 0 offen sc1")
        a("v_and_b32 v17, 3, v2")
        a("v_lshlrev_b32 v17, 12, v17")
        a(f"v_add_u32 v17, {3 * 32768 + 16384}, v17")
        a(f"s_add_u32 s54, s37, {3 * 32768 + 16384}")
        a("v_mov_b32 v18, s54")
        a("s_waitcnt vmcnt(0)")
        a("v_readfirstlane_b32 s53, v15")
        a("s_cmp_lg_u32 s53, 0")
        a(f"s_cbranch_scc1 {name}_nd")
        a("s_sub_u32 s55, s55, 1")
        a(f"s_cbranch_scc0 {name}_np")
        a("s_mov_b32 s55, 0")
        a.label(f"{name}_nd")
        a("s_cmp_lg_u32 s33, 0")
        a(f"s_cbranch_scc1 {name}_lp")
        a.label(f"{name}_ep")
        a("buffer_load_dword v16, v13, s[16:19], s52 offen sc1")
        a("s_waitcnt vmcnt(0)")
        a("v_cmp_ne_u32 vcc, v15, v16")
        a("s_or_b32 s62, vcc_lo, vcc_hi")
        a(f"s_cbranch_scc0 {name}_eo")
        a(f"s_sleep {ESLEEP}")
        a("s_sub_u32 s55, s55, 1")
        a(f"s_cbranch_scc0 {name}_ep")
        a.label(f"{name}_eo")
        a("ds_write_b32 v17, v15")
        a("s_waitcnt lgkmcnt(0)")
        a(f"s_branch {name}_ed")
        a.label(f"{name}_lp")
        a("ds_read_b32 v16, v18")
        a("s_waitcnt lgkmcnt(0)")
        a("v_readfirstlane_b32 s62, v16")
        a("s_cmp_eq_u32 s62, s53")
        a(f"s_cbranch_scc1 {name}_ed")
        a("s_sleep 1")
        a("s_sub_u32 s55, s55, 1")
        a(f"s_cbranch_scc0 {name}_lp")
        a.label(f"{name}_ed")
        for s in range(PRO):
            load_stage(s, 2)
        vq = [st for st in range(PRO) for _ in range(4)]
        if fuse3 and SENT == 3:
            srd(a, 20, 8, 9, 16 << 20)
            a("s_lshl_b32 s62, s29, 1")
            a("s_add_u32 s62, s62, s27")
            a("s_lshl_b32 s62, s62, 2")
            a("s_add_u32 s62, s62, s31")
            a("s_lshl_b32 s63, s30, 4")
            a("s_add_u32 s63, s63, s62")
            a("s_lshl_b32 s62, s63, 7")
            a("s_lshl_b32 s63, s32, 2")
            a("s_add_u32 s62, s62, s63")
            a(f"s_add_u32 s62, s62, {WS_FLAG2}")
            a("buffer_store_dword v15, v14, s[20:23], s62 offen sc0 sc1")
            vq.append("f")
            a("s_or_b32 s52, s30, 1")
            a("s_lshl_b32 s52, s52, 11")
            a(f"s_add_u32 s52, s52, {WS_FLAG2}")
            a("v_lshrrev_b32 v17, 2, v2")
            a("v_lshlrev_b32 v17, 7, v17")
            a("v_and_b32 v18, 3, v2")
            a("v_lshl_add_u32 v17, v18, 3, v17")
            a("v_mov_b32 v19, v15")
    else:
        for s in range(PRO):
            load_stage(s)
        vq = [st for st in range(PRO) for _ in range(8)]
    stamp(a, 2)
    issued = PRO
    for s in range(NST):
        idx = max(k for k, t in enumerate(vq) if t == s)
        a(f"s_waitcnt vmcnt({len(vq) - 1 - idx})")
        vq = vq[idx + 1:]
        if fused_in and fuse3 and SENT == 3 and s == 8:
            a("buffer_load_dwordx2 v[20:21], v17, s[20:23], s52 offen sc1")
            vq.append("g")
        if fused_in and fuse3 and SENT == 3 and s == 14:
            assert "g" not in vq
            srd(a, 20, 8, 9, 16 << 20)
            a.label(f"{name}_sfp")
            a("v_cmp_ne_u32 vcc, v19, v20")
            a("v_cmp_ne_u32 s[62:63], v19, v21")
            a("s_or_b64 s[62:63], s[62:63], vcc")
            a(f"s_cbranch_scc0 {name}_sfd")
            a("s_sleep 2")
            a("buffer_load_dwordx2 v[20:21], v17, s[20:23], s52 offen sc1")
            a("s_waitcnt vmcnt(0)")
            a("s_sub_u32 s55, s55, 1")
            a(f"s_cbranch_scc0 {name}_sfp")
            a.label(f"{name}_sfd")
        a("s_barrier")
        n_new = 0
        while issued < NST and issued - NSTG < s and n_new < 2:
            load_stage(issued)
            vq += [issued] * 8
            issued += 1
            n_new += 1
            if issued == wpf:
                emit_wtouch(a, "s33", 13, 14)
                vq.append("w")
            if issued == wpf2:
                emit_wtouch2(a)
                vq += ["w", "w"]
    stamp(a, 5)
    a(f"s_branch {name}_fin")
    a.label(f"{name}_cons")
    a("s_and_b32 s33, s32, 1")
    a("s_lshr_b32 s34, s32, 1")
    a("v_and_b32 v4, 15, v2")
    a("v_lshrrev_b32 v5, 1, v4")
    a("v_lshrrev_b32 v6, 4, v2")
    a("v_xor_b32 v5, v5, v6")
    a("v_lshlrev_b32 v5, 4, v5")
    a("v_lshl_add_u32 v5, v4, 7, v5")
    a("s_lshl_b32 s35, s33, 13")
    a("s_lshl_b32 s36, s34, 13")
    a("s_add_u32 s36, s36, 16384")
    for g in range(3):
        a(f"v_add_u32 v{8 + 3 * g}, s35, v5")
        a(f"v_xor_b32 v{9 + 3 * g}, 64, v5")
        a(f"v_add_u32 v{9 + 3 * g}, s35, v{9 + 3 * g}")
        a(f"v_add_u32 v{10 + 3 * g}, s36, v3")
        if g:
            for r in range(3):
                a(f"v_add_u32 v{8 + 3 * g + r}, {65536 * g}, v{8 + 3 * g + r}")
    ACC = 64
    FB = 128
    for i in range(64):
        a(f"v_mov_b32 v{ACC + i}, 0")
    a("s_waitcnt lgkmcnt(0)")
    stamp(a, 1)
    srd(a, 16, 8, 9, 16 << 20)
    if fuse3:
        a("v_mov_b32 v198, 0")
        if fused_in:
            srd(a, 20, 10, 11, 256)
            a("buffer_load_dword v199, v198, s[20:23], 0 offen sc1")
        else:
            a(f"s_mov_b32 s38, {13 << 20}")
            a("buffer_load_dword v199, v198, s[16:19], s38 offen sc1")
    def epi_addr():
        a("s_lshl_b32 s35, s30, 7")
        a("s_lshl_b32 s36, s33, 6")
        a("s_add_u32 s35, s35, s36")
        a("s_lshl_b32 s35, s35, 10")
        a(f"s_lshl_b32 s36, s31, {12 if PBLK else 8}")
        a("s_add_u32 s35, s35, s36")
        a(f"s_lshl_b32 s36, s34, {11 if PBLK else 7}")
        a("s_add_u32 s35, s35, s36")
        a("s_lshl_b32 s36, s29, 1")
        a("s_add_u32 s36, s36, s27")
        a("s_lshl_b32 s36, s36, 21")
        a("s_add_u32 s35, s35, s36")
        a(f"s_add_u32 s35, s35, {WS_P}")
        a("v_lshlrev_b32 v7, 4, v6")
        a(f"v_lshl_add_u32 v7, v4, {6 if PBLK else 10}, v7")
        for tt in range(4):
            a(f"s_add_u32 s{40 + tt}, s35, {tt * 16384}")

    SENTM = fuse3 and SENT
    if SENTM:
        epi_addr()
        for r in range(4):
            a(f"v_mov_b32 v{24 + r}, -1")
        if fused_in:
            a("s_bitcmp1_b32 s2, 3")
            a(f"s_cbranch_scc0 {name}_nofill")
        for tt in range(4 if SENT < 3 else 0):
            for Th in range(2):
                a(f"buffer_store_dwordx4 v[24:27], v7, s[16:19], s{40 + tt} offen offset:{Th * 64} sc0 sc1")
        a.label(f"{name}_nofill")
        a("s_lshl_b32 s62, s29, 1")
        a("s_add_u32 s62, s62, s27")
        a("s_lshl_b32 s62, s62, 2")
        a("s_add_u32 s62, s62, s31")
        a("s_lshl_b32 s63, s30, 4")
        a("s_add_u32 s63, s63, s62")
        a("s_lshl_b32 s46, s63, 7")
        a("s_lshl_b32 s47, s32, 2")
        a("s_add_u32 s46, s46, s47")
        a(f"s_add_u32 s46, s46, {WS_FLAG2}")
    if etouch:
        a("s_lshl_b32 s38, s29, 5")
        a("s_add_u32 s38, s38, s28")
        a("s_lshl_b32 s38, s38, 6")
        a("s_lshl_b32 s39, s27, 5")
        a("s_add_u32 s38, s38, s39")
        a("s_lshl_b32 s38, s38, 10")
        a("s_lshl_b32 s39, s32, 13")
        a("s_add_u32 s38, s38, s39")
        a("v_lshlrev_b32 v20, 7, v2")
        a("buffer_load_dword v21, v20, s[16:19], s38 offen")
    NU = NST * 2

    def read_list(u):
        s, ks = u // 2, u % 2
        slot = (s + SOFF) % NSTG
        g, so = slot // 2, (slot % 2) * 32768
        f = FB + 32 * (u % 2)
        L = []
        for i in range(4):
            L.append(f"ds_read_b128 v[{f + 16 + 4 * i}:{f + 19 + 4 * i}], v{10 + 3 * g} offset:{so + i * 2048 + ks * 1024}")
            L.append(f"ds_read_b128 v[{f + 4 * i}:{f + 3 + 4 * i}], v{8 + 3 * g + ks} offset:{so + i * 2048}")
        return L

    if cw == 100:
        emit_wtouch(a, "s32", 20, 21)
    a("s_barrier")
    stamp(a, 3)
    for r in read_list(0):
        a(r)
    for u in range(NU):
        a("s_waitcnt lgkmcnt(0)")
        f = FB + 32 * (u % 2)
        nxt = read_list(u + 1) if u + 1 < NU else []
        n = 0
        for T in range(4):
            for tt in range(4):
                acc = ACC + (T * 4 + tt) * 4
                a(f"v_mfma_f32_16x16x32_bf16 v[{acc}:{acc + 3}], v[{f + 16 + 4 * T}:{f + 19 + 4 * T}], v[{f + 4 * tt}:{f + 4 * tt + 3}], v[{acc}:{acc + 3}]")
                n += 1
                if n == BARPOS and nxt and (u + 1) % 2 == 0:
                    a("s_barrier")
                    if (u + 1) // 2 == 8:
                        stamp(a, 4)
                if n >= BARPOS and nxt and (n - BARPOS) % RSTEP == 0:
                    a(nxt.pop(0))
                if SENTM and u == 6 and n == 10:
                    a("s_waitcnt vmcnt(0)")
                    a("buffer_store_dword v199, v198, s[16:19], s46 offen sc0 sc1")
                if u == cw and n == 10:
                    emit_wtouch(a, "s32", 20, 21)
        for r in nxt:
            a(r)
    stamp(a, 5)
    if not SENTM:
        epi_addr()
    else:
        a("s_nop 7")
    for tt in range(4):
        for Th in range(2):
            o = 24 + (tt * 2 + Th) * 4
            for Tl in range(2):
                acc = ACC + ((Th * 2 + Tl) * 4 + tt) * 4
                a(f"v_cvt_pk_bf16_f32 v{o + 2 * Tl}, v{acc}, v{acc + 1}")
                a(f"v_cvt_pk_bf16_f32 v{o + 2 * Tl + 1}, v{acc + 2}, v{acc + 3}")
            a(f"buffer_store_dwordx4 v[{o}:{o + 3}], v7, s[16:19], s{40 + tt} offen offset:{Th * (1024 if PBLK else 64)}" + (" sc0 sc1" if wt else ""))
    if fuse3 and not (SENTM and SENT == 2):
        a("s_waitcnt vmcnt(0)")
    a.label(f"{name}_fin")
    stamp_flush(a, 2, 6, 8, 9)
    nv = FB + 64
    if fuse3:
        a("s_and_b32 s3, s2, 7")
        a("s_and_b32 s29, s3, 1")
        a("s_bfe_u32 s27, s3, 0x10001")
        a("s_lshl_b32 s62, s29, 1")
        a("s_add_u32 s62, s62, s27")
        a("s_lshl_b32 s62, s62, 2")
        a("s_add_u32 s62, s62, s31")
        a("s_lshl_b32 s63, s30, 4")
        a("s_add_u32 s63, s63, s62")
        a("s_lshl_b32 s46, s63, 7")
        a(f"s_add_u32 s46, s46, {WS_FLAG2}")
        if not SENT:
            a("s_barrier")
            a("s_cmp_lg_u32 s32, 0")
            a(f"s_cbranch_scc1 {name}_nf")
            a("v_mov_b32 v198, 0")
            a("buffer_store_dword v199, v198, s[16:19], s46 offen sc0 sc1")
            a.label(f"{name}_nf")
            a("s_barrier")
        gen_kt(a, name + "t", fused=1)
        a.label(f"{name}_done")
        a("s_endpgm")
        return kernel_desc(name, 208, 72, 208)
    if fused_in:
        return None
    a.label(f"{name}_done")
    a("s_endpgm")
    return kernel_desc(name, nv, 72, nv)


def gen_k1c(a, name, wt=1, PRO=3, pf=1, pace=1, pfw=1, pfxd=1):
    NSTG, SLOT, NST = 4, 32768, 8
    STATS = NSTG * SLOT
    kernel_begin(a, name)
    a("s_cmp_ge_u32 s2, 256")
    a(f"s_cbranch_scc1 {name}_done")
    stamp(a, 0)
    a("s_load_dwordx2 s[4:5], s[0:1], 0")
    a("s_load_dwordx4 s[8:11], s[0:1], 24")
    a("s_load_dwordx2 s[6:7], s[0:1], 96")
    a("s_load_dwordx4 s[40:43], s[0:1], 8")
    a("s_load_dwordx4 s[44:47], s[0:1], 56")
    a("s_load_dwordx2 s[48:49], s[0:1], 72")
    a("s_and_b32 s3, s2, 7")
    a("s_lshr_b32 s28, s2, 4")
    a("s_and_b32 s29, s28, 1")
    a("s_lshl_b32 s30, s3, 1")
    a("s_add_u32 s30, s30, s29")
    a("s_lshr_b32 s31, s28, 1")
    a("v_lshrrev_b32 v1, 6, v0")
    a("v_and_b32 v2, 63, v0")
    a("s_nop 0")
    a("v_readfirstlane_b32 s32, v1")
    a("s_mov_b32 s53, 0xffff0000")
    a("s_bitcmp1_b32 s2, 3")
    a(f"s_cbranch_scc1 {name}_pf")
    a("s_cmp_lt_u32 s32, 4")
    a(f"s_cbranch_scc1 {name}_cons")
    a("s_cmp_ge_u32 s32, 8")
    a(f"s_cbranch_scc1 {name}_stat")
    a("s_sub_u32 s33, s32, 4")
    a("v_lshrrev_b32 v3, 3, v2")
    a("v_and_b32 v4, 7, v2")
    a("v_bfe_u32 v5, v2, 4, 1")
    a("v_xor_b32 v4, v4, v5")
    a("v_lshlrev_b32 v3, 10, v3")
    for i in range(4):
        g0g1 = (i & 1) ^ (i >> 1)
        a(f"v_xor_b32 v{8 + i}, {(2 * i) ^ g0g1}, v4")
        a(f"v_lshl_add_u32 v{8 + i}, v{8 + i}, 4, v3")
        if i:
            a(f"v_add_u32 v{8 + i}, {i * (8192 - 1024)}, v{8 + i}")
    a("s_lshl_b32 s34, s33, 5")
    a("s_lshl_b32 s35, s30, 7")
    a("s_add_u32 s35, s35, s34")
    a("s_lshl_b32 s35, s35, 10")
    a("s_and_b32 s36, s31, 3")
    a("s_lshl_b32 s36, s36, 7")
    a("s_add_u32 s36, s36, s34")
    a("s_lshl_b32 s36, s36, 10")
    a("s_lshl_b32 s37, s33, 12")
    a("v_lshlrev_b32 v12, 6, v2")
    a("v_add_u32 v12, s37, v12")
    a("v_add_u32 v12, 16384, v12")
    a(f"v_add_u32 v13, {2 * SLOT}, v12")
    a("v_mov_b32 v14, 0")
    a("v_mov_b32 v15, 0")
    a("s_mov_b32 s50, 0x3f803f80")
    a("s_waitcnt lgkmcnt(0)")
    stamp(a, 1)
    srd(a, 12, 4, 5, S * D * 2)
    a("s_cmp_ge_u32 s31, 4")
    a("s_cselect_b32 s8, s10, s8")
    a("s_cselect_b32 s9, s11, s9")
    srd(a, 16, 8, 9, D * D * 2)

    def load_stage(kk):
        slot = (kk % NSTG) * SLOT
        a(f"s_add_u32 m0, s37, {slot}")
        a(f"s_add_u32 s39, s35, {kk * 128}")
        for i in range(4):
            a(f"buffer_load_dwordx4 v{8 + i}, s[12:15], s39 offen offset:{i * 1024} lds")
        a(f"s_add_u32 m0, s37, {slot + 16384}")
        a(f"s_add_u32 s39, s36, {kk * 128}")
        for i in range(4):
            a(f"buffer_load_dwordx4 v{8 + i}, s[16:19], s39 offen offset:{i * 1024} lds")

    for kk in range(PRO):
        load_stage(kk)
    stamp(a, 2)
    issued = PRO
    for kk in range(NST):
        a(f"s_waitcnt vmcnt({(issued - 1 - kk) * 8})")
        slot = kk % NSTG
        ar, so = (12, slot * SLOT) if slot < 2 else (13, (slot - 2) * SLOT)
        for q in range(4):
            a(f"ds_read_b128 v[{16 + 4 * q}:{19 + 4 * q}], v{ar} offset:{so + 16 * q}")
        a("s_barrier")
        n_new = 0
        while issued < NST and issued - NSTG < kk and n_new < 2:
            load_stage(issued)
            issued += 1
            n_new += 1
        a("s_waitcnt lgkmcnt(0)")
        for r in range(16):
            a(f"v_dot2_f32_bf16 v{14 + (r & 1)}, v{16 + r}, s50, v{14 + (r & 1)}")
    a("s_nop 2")
    a("v_add_f32 v14, v14, v15")
    a("s_nop 1")
    a(f"v_add_f32_dpp v14, v14, v14 quad_perm:[1,0,3,2] {DPP}")
    a("v_lshrrev_b32 v19, 1, v2")
    a("v_lshlrev_b32 v19, 2, v19")
    a("s_lshl_b32 s34, s33, 7")
    a(f"s_add_u32 s34, s34, {STATS + 1024}")
    a("v_add_u32 v19, s34, v19")
    a("ds_write_b32 v19, v14")
    a("s_waitcnt lgkmcnt(0)")
    stamp(a, 3)
    a("s_barrier")
    a(f"s_branch {name}_fin")
    a.label(f"{name}_stat")
    a("s_sub_u32 s33, s32, 8")
    a("s_lshl_b32 s37, s33, 12")
    a("v_lshlrev_b32 v12, 6, v2")
    a("v_add_u32 v12, s37, v12")
    a(f"v_add_u32 v13, {2 * SLOT}, v12")
    for r in range(4):
        a(f"v_mov_b32 v{80 + r}, 0")
    a("s_waitcnt lgkmcnt(0)")
    stamp(a, 1)

    def stat_valu(base):
        for r in range(16):
            t = 72 + 2 * (r & 3)
            a(f"v_lshlrev_b32 v{t}, 16, v{base + r}")
            a(f"v_and_b32 v{t + 1}, s53, v{base + r}")
            a(f"v_sub_f32 v{t}, v{t}, v18")
            a(f"v_sub_f32 v{t + 1}, v{t + 1}, v18")
            a(f"v_add_f32 v80, v80, v{t}")
            a(f"v_add_f32 v81, v81, v{t + 1}")
            a(f"v_fmac_f32 v82, v{t}, v{t}")
            a(f"v_fmac_f32 v83, v{t + 1}, v{t + 1}")

    for kk in range(NST):
        a("s_barrier")
        slot = kk % NSTG
        ar, so = (12, slot * SLOT) if slot < 2 else (13, (slot - 2) * SLOT)
        base = 32 + 16 * (kk & 1)
        for q in range(4):
            a(f"ds_read_b128 v[{base + 4 * q}:{base + 3 + 4 * q}], v{ar} offset:{so + 16 * q}")
        if kk >= 1:
            stat_valu(32 + 16 * ((kk - 1) & 1))
        a("s_waitcnt lgkmcnt(0)")
        if kk == 0:
            a("v_lshlrev_b32 v18, 16, v32")
            a("s_nop 1")
            a(f"v_mov_b32_dpp v18, v18 quad_perm:[0,0,2,2] {DPP}")
    stat_valu(32 + 16 * ((NST - 1) & 1))
    a("v_add_f32 v14, v80, v81")
    a("v_add_f32 v16, v82, v83")
    a("s_nop 1")
    a(f"v_add_f32_dpp v14, v14, v14 quad_perm:[1,0,3,2] {DPP}")
    a(f"v_add_f32_dpp v16, v16, v16 quad_perm:[1,0,3,2] {DPP}")
    a("v_mul_f32 v14, 0x3b000000, v14")
    a("v_mul_f32 v16, 0x3b000000, v16")
    a("v_fma_f32 v16, -v14, v14, v16")
    a("v_max_f32 v16, 0, v16")
    a("v_add_f32 v14, v14, v18")
    a("v_cvt_pk_bf16_f32 v14, v14, v14")
    a("v_lshlrev_b32 v14, 16, v14")
    a("v_cvt_pk_bf16_f32 v16, v16, v16")
    a("v_lshlrev_b32 v16, 16, v16")
    a("v_add_f32 v16, 0x3727c5ac, v16")
    a("v_cvt_pk_bf16_f32 v16, v16, v16")
    a("v_lshlrev_b32 v16, 16, v16")
    a("v_sqrt_f32 v16, v16")
    a("s_nop 0")
    a("v_cvt_pk_bf16_f32 v16, v16, v16")
    a("v_lshlrev_b32 v16, 16, v16")
    a("v_rcp_f32 v16, v16")
    a("v_lshrrev_b32 v19, 1, v2")
    a("v_lshlrev_b32 v19, 2, v19")
    a("s_lshl_b32 s34, s33, 7")
    a(f"s_add_u32 s34, s34, {STATS}")
    a("v_add_u32 v19, s34, v19")
    a("ds_write_b32 v19, v14")
    a("ds_write_b32 v19, v16 offset:512")
    a("s_waitcnt lgkmcnt(0)")
    stamp(a, 3)
    a("s_barrier")
    a(f"s_branch {name}_fin")
    a.label(f"{name}_cons")
    a("s_and_b32 s33, s32, 1")
    a("s_lshr_b32 s34, s32, 1")
    a("v_and_b32 v4, 15, v2")
    a("v_lshrrev_b32 v6, 4, v2")
    a("v_lshrrev_b32 v5, 2, v4")
    a("v_and_b32 v7, 3, v4")
    a("v_lshl_add_u32 v7, v5, 3, v7")
    a("v_lshrrev_b32 v20, 1, v4")
    a("v_lshrrev_b32 v21, 2, v4")
    a("v_lshrrev_b32 v22, 3, v4")
    a("v_xor_b32 v21, v21, v22")
    a("v_and_b32 v21, 1, v21")
    a("v_xor_b32 v20, v20, v21")
    a("v_xor_b32 v20, v20, v6")
    a("v_lshlrev_b32 v20, 4, v20")
    a("v_lshl_add_u32 v20, v7, 7, v20")
    a("s_lshl_b32 s35, s33, 13")
    a("s_lshl_b32 s36, s34, 13")
    a("s_add_u32 s36, s36, 16384")
    for g2 in range(2):
        a(f"v_add_u32 v{8 + 4 * g2}, s35, v20")
        a(f"v_xor_b32 v{9 + 4 * g2}, 64, v{8 + 4 * g2}")
        a(f"v_add_u32 v{10 + 4 * g2}, s36, v20")
        a(f"v_xor_b32 v{11 + 4 * g2}, 64, v{10 + 4 * g2}")
        if g2:
            for r in range(4):
                a(f"v_add_u32 v{8 + 4 * g2 + r}, {65536 * g2}, v{8 + 4 * g2 + r}")
    ACC = 32
    FB = 96
    for i in range(64):
        a(f"v_mov_b32 v{ACC + i}, 0")
    a("s_waitcnt lgkmcnt(0)")
    stamp(a, 1)
    srd(a, 20, 6, 7, 4 << 20)
    NU = NST * 2

    def reads(u):
        s, ks = u // 2, u % 2
        slot = s % NSTG
        g2, so = slot // 2, (slot % 2) * SLOT
        f = FB + 32 * (u % 2)
        if ks == 0:
            a("s_waitcnt lgkmcnt(0)")
            a("s_barrier")
            if s == 0:
                stamp(a, 2)
        for i in range(4):
            off = so + (i >> 1) * 4096 + (i & 1) * 512
            a(f"ds_read_b128 v[{f + 4 * i}:{f + 3 + 4 * i}], v{8 + 4 * g2 + ks} offset:{off}")
            a(f"ds_read_b128 v[{f + 16 + 4 * i}:{f + 19 + 4 * i}], v{10 + 4 * g2 + ks} offset:{off}")

    reads(0)
    for u in range(NU):
        if u + 1 < NU:
            reads(u + 1)
            a("s_waitcnt lgkmcnt(8)")
        else:
            a("s_waitcnt lgkmcnt(0)")
        f = FB + 32 * (u % 2)
        for xi in range(4):
            for T in range(4):
                acc = ACC + (xi * 4 + T) * 4
                a(f"v_mfma_f32_16x16x32_bf16 v[{acc}:{acc + 3}], v[{f + 4 * xi}:{f + 3 + 4 * xi}], v[{f + 16 + 4 * T}:{f + 19 + 4 * T}], v[{acc}:{acc + 3}]")
    stamp(a, 3)
    a("s_barrier")
    stamp(a, 4)
    a("s_lshl_b32 s35, s33, 8")
    a(f"s_add_u32 s35, s35, {STATS}")
    a("v_lshlrev_b32 v20, 5, v6")
    a("v_add_u32 v20, s35, v20")
    for blk in range(2):
        for h in range(2):
            a(f"ds_read_b128 v[{96 + 16 * blk + 4 * h}:{99 + 16 * blk + 4 * h}], v20 offset:{128 * blk + 16 * h}")
            a(f"ds_read_b128 v[{104 + 16 * blk + 4 * h}:{107 + 16 * blk + 4 * h}], v20 offset:{512 + 128 * blk + 16 * h}")
    a("s_lshl_b32 s36, s34, 8")
    a(f"s_add_u32 s36, s36, {STATS + 1024}")
    a("v_lshlrev_b32 v21, 2, v7")
    a("v_add_u32 v21, s36, v21")
    for T in range(4):
        a(f"ds_read_b32 v{128 + T}, v21 offset:{(T >> 1) * 128 + (T & 1) * 16}")
    a("s_lshl_b32 s35, s31, 3")
    a("s_lshl_b32 s36, s34, 2")
    a("s_add_u32 s35, s35, s36")
    a("s_lshl_b32 s35, s35, 6")
    a("s_lshl_b32 s36, s30, 2")
    a("s_add_u32 s35, s35, s36")
    a("s_lshl_b32 s36, s33, 1")
    a("s_add_u32 s35, s35, s36")
    a("s_lshl_b32 s35, s35, 10")
    for T in range(4):
        a(f"s_add_u32 s{40 + T}, s35, {T * 65536}")
    a("v_lshlrev_b32 v22, 4, v2")
    a("s_waitcnt lgkmcnt(0)")
    for blk in range(2):
        for T in range(4):
            o = 132 + 4 * ((blk * 4 + T) & 3)
            for hb in range(2):
                acc = ACC + ((blk * 2 + hb) * 4 + T) * 4
                for j in range(4):
                    a(f"v_fma_f32 v{acc + j}, -v{96 + 16 * blk + 4 * hb + j}, v{128 + T}, v{acc + j}")
                    a(f"v_mul_f32 v{acc + j}, v{acc + j}, v{104 + 16 * blk + 4 * hb + j}")
                a(f"v_cvt_pk_bf16_f32 v{o + 2 * hb}, v{acc}, v{acc + 1}")
                a(f"v_cvt_pk_bf16_f32 v{o + 2 * hb + 1}, v{acc + 2}, v{acc + 3}")
            a(f"buffer_store_dwordx4 v[{o}:{o + 3}], v22, s[20:23], s{40 + T} offen offset:{blk * 1024}" + (" sc0 sc1" if wt else ""))
    stamp(a, 5)
    a(f"s_branch {name}_fin")
    a.label(f"{name}_pf")
    a("s_waitcnt lgkmcnt(0)")
    stamp(a, 1)
    if pf:
        a("v_lshlrev_b32 v3, 7, v2")
        a("v_lshrrev_b32 v4, 4, v2")
        a("v_lshlrev_b32 v4, 12, v4")
        a("v_and_b32 v5, 15, v2")
        a("v_lshl_add_u32 v4, v5, 7, v4")
        a("s_mul_i32 s33, s28, 12")
        a("s_add_u32 s33, s33, s32")
        nld = 0
        if pfxd:
            srd(a, 12, 4, 5, S * D * 2)
            srd(a, 16, 8, 9, D * D * 2)
            srd(a, 20, 10, 11, D * D * 2)
            a("s_lshl_b32 s34, s33, 13")
            a("s_lshl_b32 s35, s3, 18")
            a("s_add_u32 s35, s35, s34")
            a("s_cmp_lt_u32 s33, 32")
            a(f"s_cbranch_scc0 {name}_pf1")
            a("buffer_load_dword v10, v3, s[12:15], s35 offen")
            a(f"s_branch {name}_pf3")
            a.label(f"{name}_pf1")
            a("s_sub_u32 s34, s34, 262144")
            a("s_cmp_lt_u32 s33, 96")
            a(f"s_cbranch_scc0 {name}_pf2")
            a("buffer_load_dword v10, v3, s[16:19], s34 offen")
            a(f"s_branch {name}_pf3")
            a.label(f"{name}_pf2")
            a("s_sub_u32 s34, s34, 524288")
            a("buffer_load_dword v10, v3, s[20:23], s34 offen")
            a.label(f"{name}_pf3")
            if pace:
                a("s_waitcnt vmcnt(0)")
        a("s_and_b32 s48, s3, 1")
        a("s_cmp_eq_u32 s48, 1")
        a("s_cselect_b32 s40, s42, s40")
        a("s_cselect_b32 s41, s43, s41")
        srd(a, 24, 40, 41, S * S * 2)
        a("s_cmp_ge_u32 s33, 128")
        a(f"s_cbranch_scc1 {name}_fin")
        a("s_lshr_b32 s48, s3, 2")
        a("s_lshl_b32 s48, s48, 10")
        a("s_lshl_b32 s49, s33, 3")
        a("s_add_u32 s48, s48, s49")
        a("s_lshl_b32 s48, s48, 12")
        a("s_bfe_u32 s49, s3, 0x10001")
        a("s_lshl_b32 s49, s49, 11")
        a("s_add_u32 s48, s48, s49")
        a("buffer_load_dword v11, v4, s[24:27], s48 offen")
        if pace >= 2:
            a("s_waitcnt vmcnt(0)")
        a("s_add_u32 s48, s48, 16384")
        a("buffer_load_dword v12, v4, s[24:27], s48 offen")
    a.label(f"{name}_fin")
    stamp_flush(a, 1, 6, 6, 7)
    a.label(f"{name}_done")
    a("s_endpgm")
    return kernel_desc(name, 160, 64, 160)


WS_STATS = (12 << 20) + (1 << 19) + 8192
WS_FLAG1 = WS_STATS + 65536
WS_CS = WS_STATS + 16384


def gen_k1d(a, name, wt=1, PRO=3, pf=1, pace=1, pfq=4):
    NSTG, SLOT, NST = 4, 32768, 8
    STATS = NSTG * SLOT
    kernel_begin(a, name)
    a("s_cmp_ge_u32 s2, 256")
    a(f"s_cbranch_scc1 {name}_done")
    stamp(a, 0)
    a("s_load_dwordx2 s[4:5], s[0:1], 0")
    a("s_load_dwordx4 s[8:11], s[0:1], 24")
    a("s_load_dwordx4 s[44:47], s[0:1], 88")
    a("s_load_dwordx4 s[40:43], s[0:1], 8")
    a("s_and_b32 s3, s2, 7")
    a("s_lshr_b32 s28, s2, 4")
    a("s_and_b32 s29, s28, 1")
    a("s_lshl_b32 s30, s3, 1")
    a("s_add_u32 s30, s30, s29")
    a("s_lshr_b32 s31, s28, 1")
    a("v_lshrrev_b32 v1, 6, v0")
    a("v_and_b32 v2, 63, v0")
    a("s_nop 0")
    a("v_readfirstlane_b32 s32, v1")
    a("s_mov_b32 s53, 0xffff0000")
    a("s_bitcmp1_b32 s2, 3")
    a(f"s_cbranch_scc1 {name}_aux")
    a("s_cmp_lt_u32 s32, 4")
    a(f"s_cbranch_scc1 {name}_cons")
    a("s_sub_u32 s33, s32, 4")
    a("v_lshrrev_b32 v3, 3, v2")
    a("v_and_b32 v4, 7, v2")
    a("v_bfe_u32 v5, v2, 4, 1")
    a("v_xor_b32 v4, v4, v5")
    a("v_lshlrev_b32 v3, 10, v3")
    for i in range(4):
        g0g1 = (i & 1) ^ (i >> 1)
        a(f"v_xor_b32 v{8 + i}, {(2 * i) ^ g0g1}, v4")
        a(f"v_lshl_add_u32 v{8 + i}, v{8 + i}, 4, v3")
        if i:
            a(f"v_add_u32 v{8 + i}, {i * (8192 - 1024)}, v{8 + i}")
    a("s_lshl_b32 s34, s33, 5")
    a("s_lshl_b32 s35, s30, 7")
    a("s_add_u32 s35, s35, s34")
    a("s_lshl_b32 s38, s35, 3")
    a("s_lshl_b32 s35, s35, 10")
    a("s_and_b32 s36, s31, 3")
    a("s_lshl_b32 s36, s36, 7")
    a("s_add_u32 s36, s36, s34")
    a("s_lshl_b32 s36, s36, 10")
    a("s_lshl_b32 s37, s33, 12")
    a("v_lshlrev_b32 v12, 6, v2")
    a("v_add_u32 v12, s37, v12")
    a("v_add_u32 v12, 16384, v12")
    a(f"v_add_u32 v13, {2 * SLOT}, v12")
    a("v_mov_b32 v14, 0")
    a("v_mov_b32 v15, 0")
    a("s_mov_b32 s50, 0x3f803f80")
    a("s_waitcnt lgkmcnt(0)")
    stamp(a, 1)
    srd(a, 12, 4, 5, S * D * 2)
    a("s_cmp_ge_u32 s31, 4")
    a("s_cselect_b32 s8, s10, s8")
    a("s_cselect_b32 s9, s11, s9")
    srd(a, 16, 8, 9, D * D * 2)
    srd(a, 20, 46, 47, 14 << 20)
    srd(a, 24, 44, 45, 256)

    def load_stage(kk):
        slot = (kk % NSTG) * SLOT
        a(f"s_add_u32 m0, s37, {slot}")
        a(f"s_add_u32 s39, s35, {kk * 128}")
        for i in range(4):
            a(f"buffer_load_dwordx4 v{8 + i}, s[12:15], s39 offen offset:{i * 1024} lds")
        a(f"s_add_u32 m0, s37, {slot + 16384}")
        a(f"s_add_u32 s39, s36, {kk * 128}")
        for i in range(4):
            a(f"buffer_load_dwordx4 v{8 + i}, s[16:19], s39 offen offset:{i * 1024} lds")

    for kk in range(PRO):
        load_stage(kk)
    stamp(a, 2)
    issued = PRO
    for kk in range(NST):
        a(f"s_waitcnt vmcnt({(issued - 1 - kk) * 8})")
        slot = kk % NSTG
        ar, so = (12, slot * SLOT) if slot < 2 else (13, (slot - 2) * SLOT)
        for q in range(4):
            a(f"ds_read_b128 v[{16 + 4 * q}:{19 + 4 * q}], v{ar} offset:{so + 16 * q}")
        a("s_barrier")
        n_new = 0
        while issued < NST and issued - NSTG < kk and n_new < 2:
            load_stage(issued)
            issued += 1
            n_new += 1
        a("s_waitcnt lgkmcnt(0)")
        for r in range(16):
            a(f"v_dot2_f32_bf16 v{14 + (r & 1)}, v{16 + r}, s50, v{14 + (r & 1)}")
    a("s_lshl_b32 s34, s30, 2")
    a("v_mov_b32 v20, s34")
    a.label(f"{name}_poll")
    a("buffer_load_dword v21, v20, s[24:27], 0 offen sc0 sc1")
    a("s_waitcnt vmcnt(0)")
    a("v_readfirstlane_b32 s34, v21")
    a("s_cmp_ge_u32 s34, 8")
    a(f"s_cbranch_scc1 {name}_polled")
    a("s_sleep 2")
    a(f"s_branch {name}_poll")
    a.label(f"{name}_polled")
    a("v_and_b32 v20, 31, v2")
    a("v_lshlrev_b32 v20, 3, v20")
    a(f"s_add_u32 s38, s38, {WS_STATS}")
    a("buffer_load_dwordx2 v[22:23], v20, s[20:23], s38 offen sc0 sc1")
    a("v_add_f32 v14, v14, v15")
    a("s_nop 1")
    a(f"v_add_f32_dpp v14, v14, v14 quad_perm:[1,0,3,2] {DPP}")
    a("v_lshrrev_b32 v19, 1, v2")
    a("v_lshlrev_b32 v19, 2, v19")
    a("s_lshl_b32 s34, s33, 7")
    a(f"s_add_u32 s34, s34, {STATS + 1024}")
    a("v_add_u32 v19, s34, v19")
    a("ds_write_b32 v19, v14")
    a("v_lshrrev_b32 v20, 1, v20")
    a("s_lshl_b32 s34, s33, 7")
    a(f"s_add_u32 s34, s34, {STATS}")
    a("v_add_u32 v20, s34, v20")
    a("s_waitcnt vmcnt(0)")
    a("ds_write_b32 v20, v22")
    a("ds_write_b32 v20, v23 offset:512")
    a("s_waitcnt lgkmcnt(0)")
    stamp(a, 3)
    a("s_barrier")
    a(f"s_branch {name}_fin")
    a.label(f"{name}_cons")
    a("s_and_b32 s33, s32, 1")
    a("s_lshr_b32 s34, s32, 1")
    a("v_and_b32 v4, 15, v2")
    a("v_lshrrev_b32 v6, 4, v2")
    a("v_lshrrev_b32 v5, 2, v4")
    a("v_and_b32 v7, 3, v4")
    a("v_lshl_add_u32 v7, v5, 3, v7")
    a("v_lshrrev_b32 v20, 1, v4")
    a("v_lshrrev_b32 v21, 2, v4")
    a("v_lshrrev_b32 v22, 3, v4")
    a("v_xor_b32 v21, v21, v22")
    a("v_and_b32 v21, 1, v21")
    a("v_xor_b32 v20, v20, v21")
    a("v_xor_b32 v20, v20, v6")
    a("v_lshlrev_b32 v20, 4, v20")
    a("v_lshl_add_u32 v20, v7, 7, v20")
    a("s_lshl_b32 s35, s33, 13")
    a("s_lshl_b32 s36, s34, 13")
    a("s_add_u32 s36, s36, 16384")
    for g2 in range(2):
        a(f"v_add_u32 v{8 + 4 * g2}, s35, v20")
        a(f"v_xor_b32 v{9 + 4 * g2}, 64, v{8 + 4 * g2}")
        a(f"v_add_u32 v{10 + 4 * g2}, s36, v20")
        a(f"v_xor_b32 v{11 + 4 * g2}, 64, v{10 + 4 * g2}")
        if g2:
            for r in range(4):
                a(f"v_add_u32 v{8 + 4 * g2 + r}, {65536 * g2}, v{8 + 4 * g2 + r}")
    ACC = 32
    FB = 96
    for i in range(64):
        a(f"v_mov_b32 v{ACC + i}, 0")
    a("s_waitcnt lgkmcnt(0)")
    stamp(a, 1)
    srd(a, 20, 46, 47, 4 << 20)
    NU = NST * 2

    def read_list(u):
        s, ks = u // 2, u % 2
        slot = s % NSTG
        g2, so = slot // 2, (slot % 2) * SLOT
        f = FB + 32 * (u % 2)
        L = []
        for i in range(4):
            off = so + (i >> 1) * 4096 + (i & 1) * 512
            L.append(f"ds_read_b128 v[{f + 4 * i}:{f + 3 + 4 * i}], v{8 + 4 * g2 + ks} offset:{off}")
            L.append(f"ds_read_b128 v[{f + 16 + 4 * i}:{f + 19 + 4 * i}], v{10 + 4 * g2 + ks} offset:{off}")
        return L

    a("s_barrier")
    stamp(a, 2)
    for r in read_list(0):
        a(r)
    for u in range(NU):
        a("s_waitcnt lgkmcnt(0)")
        f = FB + 32 * (u % 2)
        nxt = read_list(u + 1) if u + 1 < NU else []
        n = 0
        for xi in range(4):
            for T in range(4):
                acc = ACC + (xi * 4 + T) * 4
                a(f"v_mfma_f32_16x16x32_bf16 v[{acc}:{acc + 3}], v[{f + 4 * xi}:{f + 3 + 4 * xi}], v[{f + 16 + 4 * T}:{f + 19 + 4 * T}], v[{acc}:{acc + 3}]")
                n += 1
                if n == 1 and nxt and (u + 1) % 2 == 0:
                    a("s_barrier")
                if nxt:
                    a(nxt.pop(0))
    stamp(a, 3)
    a("s_barrier")
    stamp(a, 4)
    a("s_lshl_b32 s35, s33, 8")
    a(f"s_add_u32 s35, s35, {STATS}")
    a("v_lshlrev_b32 v20, 5, v6")
    a("v_add_u32 v20, s35, v20")
    for blk in range(2):
        for h in range(2):
            a(f"ds_read_b128 v[{96 + 16 * blk + 4 * h}:{99 + 16 * blk + 4 * h}], v20 offset:{128 * blk + 16 * h}")
            a(f"ds_read_b128 v[{104 + 16 * blk + 4 * h}:{107 + 16 * blk + 4 * h}], v20 offset:{512 + 128 * blk + 16 * h}")
    a("s_lshl_b32 s36, s34, 8")
    a(f"s_add_u32 s36, s36, {STATS + 1024}")
    a("v_lshlrev_b32 v21, 2, v7")
    a("v_add_u32 v21, s36, v21")
    for T in range(4):
        a(f"ds_read_b32 v{128 + T}, v21 offset:{(T >> 1) * 128 + (T & 1) * 16}")
    a("s_lshl_b32 s35, s31, 3")
    a("s_lshl_b32 s36, s34, 2")
    a("s_add_u32 s35, s35, s36")
    a("s_lshl_b32 s35, s35, 6")
    a("s_lshl_b32 s36, s30, 2")
    a("s_add_u32 s35, s35, s36")
    a("s_lshl_b32 s36, s33, 1")
    a("s_add_u32 s35, s35, s36")
    a("s_lshl_b32 s35, s35, 10")
    for T in range(4):
        a(f"s_add_u32 s{40 + T}, s35, {T * 65536}")
    a("v_lshlrev_b32 v22, 4, v2")
    a("s_waitcnt lgkmcnt(0)")
    for blk in range(2):
        for T in range(4):
            o = 132 + 4 * ((blk * 4 + T) & 3)
            for hb in range(2):
                acc = ACC + ((blk * 2 + hb) * 4 + T) * 4
                for j in range(4):
                    a(f"v_fma_f32 v{acc + j}, -v{96 + 16 * blk + 4 * hb + j}, v{128 + T}, v{acc + j}")
                    a(f"v_mul_f32 v{acc + j}, v{acc + j}, v{104 + 16 * blk + 4 * hb + j}")
                a(f"v_cvt_pk_bf16_f32 v{o + 2 * hb}, v{acc}, v{acc + 1}")
                a(f"v_cvt_pk_bf16_f32 v{o + 2 * hb + 1}, v{acc + 2}, v{acc + 3}")
            a(f"buffer_store_dwordx4 v[{o}:{o + 3}], v22, s[20:23], s{40 + T} offen offset:{blk * 1024}" + (" sc0 sc1" if wt else ""))
    stamp(a, 5)
    a(f"s_branch {name}_fin")
    a.label(f"{name}_aux")
    a("v_mov_b32 v3, 0")
    a("ds_write_b32 v3, v3")
    a("s_waitcnt lgkmcnt(0)")
    a("s_barrier")
    stamp(a, 1)
    a("s_cmp_ge_u32 s32, 4")
    a(f"s_cbranch_scc1 {name}_pfw")
    a("s_lshl_b32 s33, s3, 8")
    a("s_lshl_b32 s34, s28, 4")
    a("s_add_u32 s33, s33, s34")
    a("s_lshl_b32 s34, s32, 2")
    a("s_add_u32 s33, s33, s34")
    a("v_lshrrev_b32 v3, 4, v2")
    a("v_and_b32 v4, 15, v2")
    a("v_lshlrev_b32 v5, 10, v3")
    a("v_lshl_add_u32 v5, v4, 4, v5")
    a("s_lshl_b32 s34, s33, 10")
    srd(a, 12, 4, 5, S * D * 2)
    for jj in range(4):
        a(f"buffer_load_dwordx4 v[{16 + 4 * jj}:{19 + 4 * jj}], v5, s[12:15], s34 offen offset:{256 * jj}")
    srd(a, 20, 46, 47, 14 << 20)
    srd(a, 28, 44, 45, 256)
    a("s_waitcnt vmcnt(0)")
    stamp(a, 2)
    X = 32
    for r in range(16):
        a(f"v_lshlrev_b32 v{X + 2 * r}, 16, v{16 + r}")
        a(f"v_and_b32 v{X + 2 * r + 1}, s53, v{16 + r}")
    a(f"v_add_f32 v8, v{X}, v{X + 1}")
    a(f"v_add_f32 v9, v{X + 2}, v{X + 3}")
    for r in range(4, 32, 2):
        a(f"v_add_f32 v8, v8, v{X + r}")
        a(f"v_add_f32 v9, v9, v{X + r + 1}")
    a("v_add_f32 v8, v8, v9")

    def red16(v):
        for pat in ("quad_perm:[1,0,3,2]", "quad_perm:[2,3,0,1]", "row_half_mirror", "row_mirror"):
            a("s_nop 1")
            a(f"v_add_f32_dpp v{v}, v{v}, v{v} {pat} {DPP}")

    red16(8)
    a("v_mul_f32 v8, 0x3b000000, v8")
    a("v_mov_b32 v10, 0")
    a("v_mov_b32 v11, 0")
    for r in range(0, 32, 2):
        a(f"v_sub_f32 v{X + r}, v{X + r}, v8")
        a(f"v_sub_f32 v{X + r + 1}, v{X + r + 1}, v8")
        a(f"v_fmac_f32 v10, v{X + r}, v{X + r}")
        a(f"v_fmac_f32 v11, v{X + r + 1}, v{X + r + 1}")
    a("v_add_f32 v10, v10, v11")
    red16(10)
    a("v_mul_f32 v10, 0x3b000000, v10")
    a("v_cvt_pk_bf16_f32 v12, v8, v8")
    a("v_lshlrev_b32 v12, 16, v12")
    a("v_cvt_pk_bf16_f32 v10, v10, v10")
    a("v_lshlrev_b32 v10, 16, v10")
    a("v_add_f32 v10, 0x3727c5ac, v10")
    a("v_cvt_pk_bf16_f32 v10, v10, v10")
    a("v_lshlrev_b32 v10, 16, v10")
    a("v_sqrt_f32 v10, v10")
    a("s_nop 0")
    a("v_cvt_pk_bf16_f32 v10, v10, v10")
    a("v_lshlrev_b32 v10, 16, v10")
    a("v_rcp_f32 v13, v10")
    a("v_lshlrev_b32 v14, 3, v3")
    a("s_lshl_b32 s36, s33, 3")
    a(f"s_add_u32 s36, s36, {WS_STATS}")
    a("v_cmp_eq_u32 vcc, 0, v4")
    a("s_and_saveexec_b64 s[54:55], vcc")
    a("buffer_store_dwordx2 v[12:13], v14, s[20:23], s36 offen sc0 sc1")
    a("s_mov_b64 exec, s[54:55]")
    a("s_waitcnt vmcnt(0)")
    stamp(a, 3)
    a("v_mov_b32 v14, 0")
    a("v_mov_b32 v15, 1")
    a("v_cmp_eq_u32 vcc, 0, v2")
    a("s_and_saveexec_b64 s[54:55], vcc")
    a("ds_add_rtn_u32 v6, v14, v15")
    a("s_waitcnt lgkmcnt(0)")
    a("v_readfirstlane_b32 s36, v6")
    a("s_cmp_lg_u32 s36, 3")
    a(f"s_cbranch_scc1 {name}_nosig")
    a("s_lshr_b32 s36, s33, 7")
    a("s_lshl_b32 s36, s36, 2")
    a("v_mov_b32 v14, s36")
    a("buffer_atomic_add v15, v14, s[28:31], 0 offen")
    a.label(f"{name}_nosig")
    a("s_mov_b64 exec, s[54:55]")
    a(f"s_branch {name}_fin")
    a.label(f"{name}_pfw")
    a("v_lshlrev_b32 v6, 7, v2")
    a("v_lshrrev_b32 v7, 4, v2")
    a("v_lshlrev_b32 v7, 12, v7")
    a("v_and_b32 v8, 15, v2")
    a("v_lshl_add_u32 v7, v8, 7, v7")
    a("s_lshl_b32 s35, s28, 2")
    a("s_add_u32 s35, s35, s32")
    a("s_sub_u32 s35, s35, 4")
    srd(a, 16, 8, 9, D * D * 2)
    srd(a, 20, 10, 11, D * D * 2)
    a("s_lshl_b32 s36, s35, 13")
    a("buffer_load_dword v10, v6, s[16:19], s36 offen")
    a("buffer_load_dword v11, v6, s[20:23], s36 offen")
    a("s_and_b32 s48, s3, 1")
    a("s_cmp_eq_u32 s48, 1")
    a("s_cselect_b32 s40, s42, s40")
    a("s_cselect_b32 s41, s43, s41")
    srd(a, 24, 40, 41, S * S * 2)
    a("s_lshr_b32 s48, s3, 2")
    a("s_lshl_b32 s48, s48, 10")
    a("s_lshl_b32 s49, s35, 4")
    a("s_add_u32 s48, s48, s49")
    a("s_lshl_b32 s48, s48, 12")
    a("s_bfe_u32 s49, s3, 0x10001")
    a("s_lshl_b32 s49, s49, 11")
    a("s_add_u32 s48, s48, s49")
    if pace:
        a("s_waitcnt vmcnt(0)")
    stamp(a, 2)
    if pf:
        if pfq < 4:
            a(f"v_cmp_gt_u32 vcc, {4 * pfq}, v8")
            a("s_and_saveexec_b64 s[54:55], vcc")
        for ii in range(4):
            a(f"s_add_u32 s49, s48, {ii * 16384}")
            a(f"buffer_load_dword v{12 + ii}, v7, s[24:27], s49 offen")
        if pfq < 4:
            a("s_mov_b64 exec, s[54:55]")
    a.label(f"{name}_fin")
    stamp_flush(a, 1, 6, 46, 47)
    a.label(f"{name}_done")
    a("s_endpgm")
    return kernel_desc(name, 160, 64, 160)


def gen_k1e(a, name, wt=1, PRO=4, pf=1, pace=1, U1=10, U2=12, pfq=4, pol=0, ppol=0, tlb=0, UC=13, vst=0, swap=1, wk1=0, early=0, fuse2=None, cpre=0):
    POL = {0: '', 1: ' sc1', 2: ' nt', 3: ' sc0'}[pol]
    PPOL = {0: '', 1: ' sc1', 2: ' nt', 3: ' sc0'}[ppol]
    NSTG, SLOT, NST = 5, 32768, 8
    CS = 3 * SLOT
    kernel_begin(a, name)
    a("s_cmp_ge_u32 s2, 256")
    a(f"s_cbranch_scc1 {name}_done")
    stamp(a, 0)
    a("s_load_dwordx2 s[4:5], s[0:1], 0")
    a("s_load_dwordx4 s[8:11], s[0:1], 24")
    a("s_load_dwordx4 s[44:47], s[0:1], 88")
    a("s_load_dwordx4 s[40:43], s[0:1], 8")
    a("s_and_b32 s3, s2, 7")
    a("s_lshr_b32 s28, s2, 4")
    a("s_and_b32 s29, s3, 1")
    a("s_bfe_u32 s27, s3, 0x10001")
    a("s_lshr_b32 s26, s3, 2")
    a("s_lshl_b32 s30, s27, 3")
    a("s_lshl_b32 s34, s26, 2")
    a("s_add_u32 s30, s30, s34")
    a("s_and_b32 s34, s28, 3")
    a("s_add_u32 s30, s30, s34")
    a("s_lshr_b32 s31, s28, 2")
    a("v_lshrrev_b32 v1, 6, v0")
    a("v_and_b32 v2, 63, v0")
    a("s_nop 0")
    a("v_readfirstlane_b32 s32, v1")
    a("s_mov_b32 s53, 0xffff0000")
    a("s_mov_b32 s69, 0x40000")
    a("s_bitcmp1_b32 s2, 3")
    a(f"s_cbranch_scc1 {name}_aux")
    if swap:
        a("s_xor_b32 s32, s32, 4")
    a("s_cmp_lt_u32 s32, 4")
    a(f"s_cbranch_scc1 {name}_cons")
    a("s_sub_u32 s33, s32, 4")
    a("v_lshrrev_b32 v3, 3, v2")
    a("v_and_b32 v4, 7, v2")
    a("v_bfe_u32 v5, v2, 4, 1")
    a("v_xor_b32 v4, v4, v5")
    a("v_lshlrev_b32 v3, 10, v3")
    for i in range(4):
        g0g1 = (i & 1) ^ (i >> 1)
        a(f"v_xor_b32 v{8 + i}, {(2 * i) ^ g0g1}, v4")
        a(f"v_lshl_add_u32 v{8 + i}, v{8 + i}, 4, v3")
        if i:
            a(f"v_add_u32 v{8 + i}, {i * (8192 - 1024)}, v{8 + i}")
    a("s_lshl_b32 s34, s33, 5")
    a("s_lshl_b32 s35, s30, 7")
    a("s_add_u32 s35, s35, s34")
    a("s_lshl_b32 s35, s35, 10")
    a("s_lshl_b32 s36, s31, 7")
    a("s_add_u32 s36, s36, s34")
    a("s_lshl_b32 s36, s36, 10")
    a("s_lshl_b32 s37, s33, 12")
    a("v_lshlrev_b32 v12, 6, v2")
    a("v_add_u32 v12, s37, v12")
    a("v_add_u32 v12, 16384, v12")
    a(f"v_add_u32 v13, {2 * SLOT}, v12")
    a(f"v_add_u32 v6, {4 * SLOT}, v12")
    a("v_mov_b32 v14, 0")
    a("v_mov_b32 v15, 0")
    a("s_mov_b32 s50, 0x3f803f80")
    a("s_waitcnt lgkmcnt(0)")
    stamp(a, 1)
    srd(a, 12, 4, 5, S * D * 2)
    a("s_cmp_eq_u32 s29, 1")
    a("s_cselect_b32 s8, s10, s8")
    a("s_cselect_b32 s9, s11, s9")
    srd(a, 16, 8, 9, D * D * 2)

    def load_stage(kk):
        slot = (kk % NSTG) * SLOT
        a(f"s_add_u32 m0, s37, {slot}")
        a(f"s_add_u32 s39, s35, {kk * 128}")
        for i in range(4):
            a(f"buffer_load_dwordx4 v{8 + i}, s[12:15], s39 offen offset:{i * 1024}{POL} lds")
        a(f"s_add_u32 m0, s37, {slot + 16384}")
        a(f"s_add_u32 s39, s36, {kk * 128}")
        for i in range(4):
            a(f"buffer_load_dwordx4 v{8 + i}, s[16:19], s39 offen offset:{i * 1024}{POL} lds")

    if vst:
        VB = 32

        def vload_stage(kk):
            r = VB + (kk - NSTG) * 32
            a(f"s_add_u32 s39, s35, {kk * 128}")
            for i in range(4):
                a(f"buffer_load_dwordx4 v[{r + 4 * i}:{r + 4 * i + 3}], v{8 + i}, s[12:15], s39 offen offset:{i * 1024}")
            a(f"s_add_u32 s39, s36, {kk * 128}")
            for i in range(4):
                a(f"buffer_load_dwordx4 v[{r + 16 + 4 * i}:{r + 19 + 4 * i}], v{8 + i}, s[16:19], s39 offen offset:{i * 1024}")

        def vwrite_stage(kk):
            r = VB + (kk - NSTG) * 32
            slot = (kk % NSTG) * SLOT
            ar = 16 if slot < 65536 - 32768 + 1 else 17
            so = slot if ar == 16 else slot - 65536
            for i in range(4):
                a(f"ds_write_b128 v{ar}, v[{r + 4 * i}:{r + 4 * i + 3}] offset:{so + i * 1024}")
                a(f"ds_write_b128 v{ar}, v[{r + 16 + 4 * i}:{r + 19 + 4 * i}] offset:{so + 16384 + i * 1024}")

        a("v_lshlrev_b32 v16, 4, v2")
        a("v_add_u32 v16, s37, v16")
        a("v_add_u32 v17, 65536, v16")
        for kk in range(PRO):
            load_stage(kk)
        stamp(a, 2)
        issued = PRO
        for kk in range(NST):
            if kk < NSTG:
                a(f"s_waitcnt vmcnt({(issued - 1 - kk) * 8})")
            else:
                a("s_waitcnt lgkmcnt(0)")
            a("s_barrier")
            n_new = 0
            while issued < NST and n_new < 2:
                (load_stage if issued < NSTG else vload_stage)(issued)
                issued += 1
                n_new += 1
            if NSTG <= kk + 1 < NST:
                a(f"s_waitcnt vmcnt({(issued - 1 - (kk + 1)) * 8})")
                vwrite_stage(kk + 1)
    else:
        for kk in range(PRO):
            load_stage(kk)
        stamp(a, 2)
        issued = PRO
        for kk in range(NST):
            a(f"s_waitcnt vmcnt({(issued - 1 - kk) * 8})")
            a("s_barrier")
            n_new = 0
            while issued < NST and issued - NSTG < kk and n_new < 2:
                load_stage(issued)
                issued += 1
                n_new += 1
    stamp(a, 3)
    if fuse2:
        a("s_barrier")
    a(f"s_branch {name}_fin")
    a.label(f"{name}_cons")
    a("s_and_b32 s33, s32, 1")
    a("s_lshr_b32 s34, s32, 1")
    a("v_and_b32 v4, 15, v2")
    a("v_lshrrev_b32 v6, 4, v2")
    a("v_lshrrev_b32 v5, 2, v4")
    a("v_and_b32 v7, 3, v4")
    a("v_lshl_add_u32 v7, v5, 3, v7")
    a("v_lshrrev_b32 v20, 1, v4")
    a("v_lshrrev_b32 v21, 2, v4")
    a("v_lshrrev_b32 v22, 3, v4")
    a("v_xor_b32 v21, v21, v22")
    a("v_and_b32 v21, 1, v21")
    a("v_xor_b32 v20, v20, v21")
    a("v_xor_b32 v20, v20, v6")
    a("v_lshlrev_b32 v20, 4, v20")
    a("v_lshl_add_u32 v20, v7, 7, v20")
    a("s_lshl_b32 s35, s33, 13")
    a("s_lshl_b32 s36, s34, 13")
    a("s_add_u32 s36, s36, 16384")
    for g2 in range(3):
        a(f"v_add_u32 v{8 + 4 * g2}, s35, v20")
        a(f"v_xor_b32 v{9 + 4 * g2}, 64, v{8 + 4 * g2}")
        a(f"v_add_u32 v{10 + 4 * g2}, s36, v20")
        a(f"v_xor_b32 v{11 + 4 * g2}, 64, v{10 + 4 * g2}")
        if g2:
            for r in range(4):
                a(f"v_add_u32 v{8 + 4 * g2 + r}, {65536 * g2}, v{8 + 4 * g2 + r}")
    ACC = 32
    FB = 96
    ST = 160
    for i in range(64):
        a(f"v_mov_b32 v{ACC + i}, 0")
    a("s_lshl_b32 s38, s30, 7")
    a("s_lshl_b32 s39, s33, 6")
    a("s_add_u32 s38, s38, s39")
    a("s_lshl_b32 s38, s38, 3")
    a(f"s_add_u32 s38, s38, {WS_STATS}")
    a("v_lshlrev_b32 v23, 6, v6")
    a("v_mov_b32 v24, 0")
    a("s_lshl_b32 s39, s29, 9")
    a("s_lshl_b32 s61, s31, 7")
    a("s_add_u32 s39, s39, s61")
    a("s_lshl_b32 s61, s34, 6")
    a("s_add_u32 s39, s39, s61")
    a("s_lshl_b32 s39, s39, 3")
    a(f"s_add_u32 s61, s39, {WS_CS}")
    a("v_lshlrev_b32 v21, 3, v7")
    a("s_waitcnt lgkmcnt(0)")
    stamp(a, 1)
    srd(a, 20, 46, 47, 14 << 20)
    srd(a, 24, 44, 45, 256)
    if fuse2 and SENT in (1, 2):
        a("s_lshr_b32 s56, s2, 3")
        a("s_lshr_b32 s57, s3, 2")
        a("s_lshl_b32 s57, s57, 3")
        a("s_and_b32 s58, s56, 7")
        a("s_add_u32 s57, s57, s58")
        a("s_lshr_b32 s56, s56, 3")
        a("s_lshl_b32 s57, s57, 7")
        a("s_lshl_b32 s58, s33, 6")
        a("s_add_u32 s57, s57, s58")
        a("s_lshl_b32 s57, s57, 10")
        a("s_lshl_b32 s58, s56, 8")
        a("s_add_u32 s57, s57, s58")
        a("s_lshl_b32 s58, s34, 7")
        a("s_add_u32 s57, s57, s58")
        a("s_bfe_u32 s58, s3, 0x10001")
        a("s_lshl_b32 s59, s29, 1")
        a("s_add_u32 s58, s58, s59")
        a("s_lshl_b32 s58, s58, 21")
        a("s_add_u32 s57, s57, s58")
        a(f"s_add_u32 s57, s57, {WS_P}")
        a("v_lshlrev_b32 v26, 4, v6")
        a("v_lshl_add_u32 v26, v4, 10, v26")
        for r in range(4):
            a(f"v_mov_b32 v{28 + r}, -1")
        for tt in range(4):
            a(f"s_add_u32 s58, s57, {tt * 16384}")
            for Th in range(2):
                a(f"buffer_store_dwordx4 v[28:31], v26, s[20:23], s58 offen offset:{Th * 64} sc0 sc1")
    NU = NST * 2

    def read_list(u):
        s, ks = u // 2, u % 2
        slot = s % NSTG
        g2, so = slot // 2, (slot % 2) * SLOT
        f = FB + 32 * (u % 2)
        L = []
        for i in range(4):
            off = so + (i >> 1) * 4096 + (i & 1) * 512
            L.append(f"ds_read_b128 v[{f + 4 * i}:{f + 3 + 4 * i}], v{8 + 4 * g2 + ks} offset:{off}")
            L.append(f"ds_read_b128 v[{f + 16 + 4 * i}:{f + 19 + 4 * i}], v{10 + 4 * g2 + ks} offset:{off}")
        return L

    def stats_loads():
        for blk in range(2):
            for q4 in range(4):
                r = ST + 16 * blk + 4 * q4
                a(f"buffer_load_dwordx4 v[{r}:{r + 3}], v23, s[20:23], s38 offen offset:{256 * blk + 16 * q4} sc1")
        for T in range(4):
            a(f"buffer_load_dwordx2 v[{192 + 2 * T}:{193 + 2 * T}], v21, s[20:23], s61 offen offset:{(T >> 1) * 256 + (T & 1) * 32} sc1")
        a("buffer_load_dword v25, v24, s[24:27], 0 offen sc1")

    a("s_lshl_b32 s35, s29, 5")
    a("s_lshl_b32 s36, s31, 3")
    a("s_add_u32 s35, s35, s36")
    a("s_lshl_b32 s36, s34, 2")
    a("s_add_u32 s35, s35, s36")
    a("s_lshl_b32 s35, s35, 6")
    a("s_lshl_b32 s36, s30, 2")
    a("s_add_u32 s35, s35, s36")
    a("s_lshl_b32 s36, s33, 1")
    a("s_add_u32 s35, s35, s36")
    a("s_lshl_b32 s35, s35, 10")
    for T in range(4):
        a(f"s_add_u32 s{40 + T}, s35, {T * 65536}")

    def check_ops():
        L = [f"v_xor_b32 v26, v25, v{ST + 1}"]
        for r in range(1, 16):
            L.append(f"v_xor_b32 v27, v25, v{ST + 2 * r + 1}")
            L.append("v_or_b32 v26, v26, v27")
        for T in range(4):
            L.append(f"v_xor_b32 v27, v25, v{193 + 2 * T}")
            L.append("v_or_b32 v26, v26, v27")
        for r in range(16):
            L.append(f"v_lshlrev_b32 v{ST + 2 * r + 1}, 16, v{ST + 2 * r}")
            L.append(f"v_rcp_f32 v{ST + 2 * r + 1}, v{ST + 2 * r + 1}")
            L.append(f"v_and_b32 v{ST + 2 * r}, s53, v{ST + 2 * r}")
        return L

    a("s_barrier")
    stamp(a, 2)
    for r in read_list(0):
        a(r)
    shadow = []
    for u in range(NU):
        a("s_waitcnt lgkmcnt(0)")
        f = FB + 32 * (u % 2)
        nxt = read_list(u + 1) if u + 1 < NU else []
        n = 0
        if u == UC:
            a("s_waitcnt vmcnt(0)")
            shadow = check_ops()
        for xi in range(4):
            for T in range(4):
                acc = ACC + (xi * 4 + T) * 4
                a(f"v_mfma_f32_16x16x32_bf16 v[{acc}:{acc + 3}], v[{f + 4 * xi}:{f + 3 + 4 * xi}], v[{f + 16 + 4 * T}:{f + 19 + 4 * T}], v[{acc}:{acc + 3}]")
                n += 1
                if n == 1 and nxt and (u + 1) % 2 == 0:
                    a("s_barrier")
                if nxt:
                    a(nxt.pop(0))
                for _ in range(2):
                    if shadow:
                        a(shadow.pop(0))
                if u == U1 and n == 10:
                    stats_loads()
    for op in shadow:
        a(op)
    stamp(a, 3)
    a.label(f"{name}_chk")
    a("v_cmp_eq_u32 vcc, 0, v25")
    a("v_cmp_ne_u32 s[62:63], 0, v26")
    a("s_or_b64 s[62:63], s[62:63], vcc")
    a(f"s_cbranch_scc0 {name}_have")
    a("s_sleep 4")
    stats_loads()
    a("s_waitcnt vmcnt(0)")
    for op in check_ops():
        a(op)
    a("s_sub_u32 s69, s69, 1")
    a(f"s_cbranch_scc0 {name}_chk")
    a("s_mov_b32 s69, 0")
    a.label(f"{name}_have")
    stamp(a, 4)
    a("v_lshlrev_b32 v22, 4, v2")
    a("s_nop 4")
    for blk in range(2):
        for T in range(4):
            o = 132 + 4 * ((blk * 4 + T) & 3)
            for hb in range(2):
                acc = ACC + ((blk * 2 + hb) * 4 + T) * 4
                for j in range(4):
                    sr = ST + 16 * blk + 2 * (4 * hb + j)
                    a(f"v_fma_f32 v{acc + j}, -v{sr}, v{192 + 2 * T}, v{acc + j}")
                    a(f"v_mul_f32 v{acc + j}, v{acc + j}, v{sr + 1}")
                a(f"v_cvt_pk_bf16_f32 v{o + 2 * hb}, v{acc}, v{acc + 1}")
                a(f"v_cvt_pk_bf16_f32 v{o + 2 * hb + 1}, v{acc + 2}, v{acc + 3}")
            a(f"buffer_store_dwordx4 v[{o}:{o + 3}], v22, s[20:23], s{40 + T} offen offset:{blk * 1024}" + (" sc0 sc1" if wt else ""))
    stamp(a, 5)
    if fuse2:
        a("s_bfe_u32 s36, s3, 0x10001")
        a("s_lshl_b32 s35, s29, 1")
        a("s_add_u32 s35, s35, s36")
        a("s_lshl_b32 s35, s35, 2")
        a("s_add_u32 s35, s35, s31")
        a("s_lshl_b32 s35, s35, 3")
        a("s_and_b32 s36, s30, 7")
        a("s_add_u32 s35, s35, s36")
        a("s_lshl_b32 s35, s35, 7")
        a("s_lshl_b32 s36, s32, 2")
        a("s_add_u32 s35, s35, s36")
        a(f"s_add_u32 s35, s35, {WS_FLAG1}")
        a("s_waitcnt vmcnt(0)")
        a("buffer_store_dword v25, v24, s[20:23], s35 offen sc0 sc1")
        a("s_barrier")
    a(f"s_branch {name}_fin")
    a.label(f"{name}_aux")
    a("s_mov_b32 s50, s28")
    a("s_mov_b32 s51, s29")
    a("s_memrealtime s[66:67]")
    a("v_lshlrev_b32 v6, 7, v2")
    a("v_lshrrev_b32 v3, 4, v2")
    a("v_and_b32 v4, 15, v2")
    a("v_lshlrev_b32 v7, 12, v3")
    a("v_lshl_add_u32 v7, v4, 7, v7")
    a("v_lshlrev_b32 v5, 10, v3")
    a("v_lshl_add_u32 v5, v4, 4, v5")
    a("s_lshl_b32 s35, s50, 3")
    a("s_add_u32 s56, s35, s3")
    a("s_add_u32 s35, s35, s32")
    a("s_lshl_b32 s48, s26, 10")
    a("s_lshl_b32 s49, s35, 3")
    a("s_add_u32 s48, s48, s49")
    a("s_lshl_b32 s48, s48, 12")
    a("s_lshl_b32 s49, s27, 11")
    a("s_add_u32 s48, s48, s49")
    a("s_add_u32 s49, s48, 16384")
    a("s_waitcnt lgkmcnt(0)")
    stamp(a, 1)
    srd(a, 28, 44, 45, 256)
    srd(a, 20, 46, 47, 14 << 20)
    a("s_xor_b32 s62, s2, 8")
    a("s_or_b32 s62, s62, s32")
    a("s_cmp_lg_u32 s62, 0")
    a(f"s_cbranch_scc1 {name}_nopub")
    a("s_or_b32 s62, s66, 1")
    a("v_mov_b32 v25, s62")
    a("v_mov_b32 v24, 0")
    a("buffer_store_dword v25, v24, s[28:31], 0 offen sc0 sc1")
    a(f"s_mov_b32 s62, {13 << 20}")
    a("buffer_store_dword v25, v24, s[20:23], s62 offen sc0 sc1")
    a.label(f"{name}_nopub")
    srd(a, 12, 4, 5, S * D * 2)
    a("s_cmp_ge_u32 s32, 6")
    a(f"s_cbranch_scc1 {name}_touch")
    a("s_cmp_ge_u32 s32, 4")
    a(f"s_cbranch_scc1 {name}_csw")
    a("s_lshl_b32 s33, s56, 4")
    a("s_lshl_b32 s34, s32, 2")
    a("s_add_u32 s33, s33, s34")
    a("s_lshl_b32 s34, s33, 10")
    for jj in range(4):
        a(f"buffer_load_dwordx4 v[{16 + 4 * jj}:{19 + 4 * jj}], v5, s[12:15], s34 offen offset:{256 * jj}")
    a("v_mov_b32 v9, 0")
    a.label(f"{name}_nl1")
    a("buffer_load_dword v15, v9, s[28:31], 0 offen sc1")
    a("s_waitcnt vmcnt(0)")
    a("v_readfirstlane_b32 s57, v15")
    a("s_cmp_lg_u32 s57, 0")
    a(f"s_cbranch_scc1 {name}_nd1")
    a("s_sleep 1")
    a("s_sub_u32 s69, s69, 1")
    a(f"s_cbranch_scc0 {name}_nl1")
    a("s_mov_b32 s69, 0")
    a.label(f"{name}_nd1")
    stamp(a, 2)
    X = 32
    for r in range(16):
        a(f"v_lshlrev_b32 v{X + 2 * r}, 16, v{16 + r}")
        a(f"v_and_b32 v{X + 2 * r + 1}, s53, v{16 + r}")
    a(f"v_add_f32 v8, v{X}, v{X + 1}")
    a(f"v_add_f32 v9, v{X + 2}, v{X + 3}")
    for r in range(4, 32, 2):
        a(f"v_add_f32 v8, v8, v{X + r}")
        a(f"v_add_f32 v9, v9, v{X + r + 1}")
    a("v_add_f32 v8, v8, v9")

    def red16(v):
        for pat in ("quad_perm:[1,0,3,2]", "quad_perm:[2,3,0,1]", "row_half_mirror", "row_mirror"):
            a("s_nop 1")
            a(f"v_add_f32_dpp v{v}, v{v}, v{v} {pat} {DPP}")

    red16(8)
    a("v_mul_f32 v8, 0x3b000000, v8")
    a("v_mov_b32 v10, 0")
    a("v_mov_b32 v11, 0")
    for r in range(0, 32, 2):
        a(f"v_sub_f32 v{X + r}, v{X + r}, v8")
        a(f"v_sub_f32 v{X + r + 1}, v{X + r + 1}, v8")
        a(f"v_fmac_f32 v10, v{X + r}, v{X + r}")
        a(f"v_fmac_f32 v11, v{X + r + 1}, v{X + r + 1}")
    a("v_add_f32 v10, v10, v11")
    red16(10)
    a("v_mul_f32 v10, 0x3b000000, v10")
    a("v_cvt_pk_bf16_f32 v12, v8, v8")
    a("v_lshlrev_b32 v12, 16, v12")
    a("v_cvt_pk_bf16_f32 v10, v10, v10")
    a("v_lshlrev_b32 v10, 16, v10")
    a("v_add_f32 v10, 0x3727c5ac, v10")
    a("v_cvt_pk_bf16_f32 v10, v10, v10")
    a("v_lshlrev_b32 v10, 16, v10")
    a("v_sqrt_f32 v10, v10")
    a("s_nop 0")
    a("v_cvt_pk_bf16_f32 v10, v10, v10")
    a("v_and_b32 v10, 0xffff, v10")
    a("v_or_b32 v12, v12, v10")
    a("v_mov_b32 v13, v15")
    a("v_lshlrev_b32 v14, 3, v3")
    a("s_lshl_b32 s36, s33, 3")
    a(f"s_add_u32 s36, s36, {WS_STATS}")
    a("v_cmp_eq_u32 vcc, 0, v4")
    a("s_and_saveexec_b64 s[54:55], vcc")
    a("buffer_store_dwordx2 v[12:13], v14, s[20:23], s36 offen sc0 sc1")
    a("s_mov_b64 exec, s[54:55]")
    a(f"s_branch {name}_auxj")
    a.label(f"{name}_csw")
    a("s_lshl_b32 s33, s56, 3")
    a("s_sub_u32 s34, s32, 4")
    a("s_lshl_b32 s34, s34, 2")
    a("s_add_u32 s33, s33, s34")
    a("s_cmp_ge_u32 s33, 512")
    a("s_cselect_b32 s58, s10, s8")
    a("s_cselect_b32 s59, s11, s9")
    srd(a, 16, 58, 59, D * D * 2)
    a("s_and_b32 s34, s33, 511")
    a("s_lshl_b32 s34, s34, 10")
    for jj in range(4):
        a(f"buffer_load_dwordx4 v[{16 + 4 * jj}:{19 + 4 * jj}], v5, s[16:19], s34 offen offset:{256 * jj}")
    a("v_mov_b32 v8, 0")
    a("v_mov_b32 v9, 0")
    a.label(f"{name}_nl2")
    a("buffer_load_dword v15, v9, s[28:31], 0 offen sc1")
    a("s_waitcnt vmcnt(0)")
    a("v_readfirstlane_b32 s57, v15")
    a("s_cmp_lg_u32 s57, 0")
    a(f"s_cbranch_scc1 {name}_nd2")
    a("s_sleep 1")
    a("s_sub_u32 s69, s69, 1")
    a(f"s_cbranch_scc0 {name}_nl2")
    a("s_mov_b32 s69, 0")
    a.label(f"{name}_nd2")
    for r in range(16):
        a(f"v_lshlrev_b32 v{32 + 2 * (r & 3)}, 16, v{16 + r}")
        a(f"v_and_b32 v{33 + 2 * (r & 3)}, s53, v{16 + r}")
        a(f"v_add_f32 v8, v8, v{32 + 2 * (r & 3)}")
        a(f"v_add_f32 v9, v9, v{33 + 2 * (r & 3)}")
    a("v_add_f32 v8, v8, v9")
    red16(8)
    a("v_lshlrev_b32 v14, 3, v3")
    a("v_mov_b32 v9, v15")
    a("s_lshl_b32 s36, s33, 3")
    a(f"s_add_u32 s36, s36, {WS_CS}")
    a("v_cmp_eq_u32 vcc, 0, v4")
    a("s_and_saveexec_b64 s[54:55], vcc")
    a("buffer_store_dwordx2 v[8:9], v14, s[20:23], s36 offen sc0 sc1")
    a("s_mov_b64 exec, s[54:55]")
    a(f"s_branch {name}_auxj")
    a.label(f"{name}_touch")
    if cpre:
        a("s_cmp_lg_u32 s32, 6")
        a(f"s_cbranch_scc1 {name}_nocp")
        a("s_getpc_b64 s[60:61]")
        a.label(f"{name}_pc")
        a(f"s_sub_u32 s60, s60, {name}_pc-{name}")
        a("s_subb_u32 s61, s61, 0")
        a("s_lshl_b32 s62, s50, 13")
        a("v_add_u32 v16, s62, v6")
        a(f"v_min_u32 v16, code_end-{name}-4, v16")
        a("global_load_dword v207, v16, s[60:61]")
        a.label(f"{name}_nocp")
    a("s_cmp_eq_u32 s51, 1")
    a("s_cselect_b32 s58, s10, s8")
    a("s_cselect_b32 s59, s11, s9")
    srd(a, 16, 58, 59, D * D * 2)
    a("s_lshl_b32 s36, s27, 20")
    a("s_lshl_b32 s37, s26, 19")
    a("s_add_u32 s36, s36, s37")
    a("s_lshl_b32 s37, s50, 1")
    a("s_add_u32 s37, s37, s32")
    a("s_sub_u32 s37, s37, 6")
    a("s_lshl_b32 s37, s37, 14")
    a("s_add_u32 s36, s36, s37")
    a("buffer_load_dword v202, v6, s[12:15], s36 offen")
    a("buffer_load_dword v203, v6, s[16:19], s37 offen")
    a("s_add_u32 s36, s36, 8192")
    a("s_add_u32 s37, s37, 8192")
    a("buffer_load_dword v204, v6, s[12:15], s36 offen")
    a("buffer_load_dword v205, v6, s[16:19], s37 offen")
    if tlb:
        a("s_load_dwordx8 s[64:71], s[0:1], 48")
        a("s_load_dwordx2 s[58:59], s[0:1], 80")
        a("v_lshlrev_b32 v16, 14, v2")
        a("v_lshlrev_b32 v17, 11, v2")
        a("s_lshl_b32 s36, s50, 20")
        a("s_lshl_b32 s37, s50, 17")
        a("s_waitcnt lgkmcnt(0)")
        a("s_cmp_eq_u32 s32, 6")
        a(f"s_cbranch_scc0 {name}_tl7")
        srd(a, 16, 46, 47, 16 << 20)
        a("buffer_load_dword v202, v16, s[16:19], s36 offen")
        srd(a, 16, 58, 59, S * D * 2)
        a("buffer_load_dword v203, v17, s[16:19], s37 offen")
        a(f"s_branch {name}_auxj")
        a.label(f"{name}_tl7")
        for k, (lo, hi) in enumerate(((66, 67), (68, 69), (70, 71))):
            srd(a, 16, lo, hi, D * F * 2)
            a(f"buffer_load_dword v{18 + k}, v17, s[16:19], s37 offen")
        srd(a, 16, 64, 65, D * 2)
        a("buffer_load_dword v205, v17, s[16:19], 0 offen")
    a.label(f"{name}_auxj")
    a("s_cmp_eq_u32 s51, 1")
    a("s_cselect_b32 s40, s42, s40")
    a("s_cselect_b32 s41, s43, s41")
    srd(a, 24, 40, 41, S * S * 2)
    if pf and early:
        a("s_cmp_lt_u32 s32, 6")
        a(f"s_cbranch_scc1 {name}_noearly")
        if pfq < 4:
            a(f"v_cmp_gt_u32 vcc, {4 * pfq}, v4")
            a("s_and_saveexec_b64 s[54:55], vcc")
        a("buffer_load_dword v202, v7, s[24:27], s48 offen")
        a("buffer_load_dword v203, v7, s[24:27], s49 offen")
        if early >= 2:
            a("s_sub_u32 s48, s48, 65536")
            a("s_sub_u32 s49, s49, 65536")
            a("buffer_load_dword v204, v7, s[24:27], s48 offen")
            a("buffer_load_dword v205, v7, s[24:27], s49 offen")
        if pfq < 4:
            a("s_mov_b64 exec, s[54:55]")
        a.label(f"{name}_noearly")
    a("s_barrier")
    stamp(a, 3)
    if fuse2 and SENT == 3:
        a("s_lshr_b32 s57, s2, 3")
        a("s_lshr_b32 s58, s3, 2")
        a("s_lshl_b32 s58, s58, 3")
        a("s_and_b32 s59, s57, 6")
        a("s_add_u32 s58, s58, s59")
        a("s_lshl_b32 s58, s58, 7")
        a("s_lshr_b32 s57, s57, 3")
        a("s_lshl_b32 s57, s57, 6")
        a("s_add_u32 s58, s58, s57")
        a("s_lshl_b32 s59, s32, 3")
        a("s_add_u32 s58, s58, s59")
        a("s_lshl_b32 s58, s58, 10")
        a("s_bfe_u32 s59, s3, 0x10001")
        a("s_lshl_b32 s57, s51, 1")
        a("s_add_u32 s59, s59, s57")
        a("s_lshl_b32 s59, s59, 21")
        a("s_add_u32 s58, s58, s59")
        a(f"s_add_u32 s58, s58, {WS_P}")
        a("s_add_u32 s59, s58, 4096")
        a("v_lshlrev_b32 v26, 4, v2")
        for r in range(4):
            a(f"v_mov_b32 v{28 + r}, -1")
        for rr in range(8):
            a(f"buffer_store_dwordx4 v[28:31], v26, s[20:23], s{58 + (rr >> 2)} offen offset:{(rr & 3) * 1024} sc0 sc1")
    if pf and early:
        a(f"s_cmp_ge_u32 s32, {6 if early == 1 else 4}")
        a(f"s_cbranch_scc1 {name}_pfskip")
    if pf:
        if pfq < 4:
            a(f"v_cmp_gt_u32 vcc, {4 * pfq}, v4")
            a("s_and_saveexec_b64 s[54:55], vcc")
        if pace == 3:
            a("v_lshrrev_b32 v16, 3, v2")
            a("v_lshlrev_b32 v16, 12, v16")
            a("v_and_b32 v17, 7, v2")
            a("v_lshl_add_u32 v16, v17, 7, v16")
            a(f"buffer_load_dword v204, v16, s[24:27], s48 offen{PPOL}")
            a("s_waitcnt vmcnt(0)")
            a(f"buffer_load_dword v205, v16, s[24:27], s48 offen offset:1024{PPOL}")
        else:
            a(f"buffer_load_dword v204, v7, s[24:27], s48 offen{PPOL}")
            if pace == 2:
                a("s_waitcnt vmcnt(0)")
            a(f"buffer_load_dword v205, v7, s[24:27], s49 offen{PPOL}")
        if pfq < 4:
            a("s_mov_b64 exec, s[54:55]")
    a.label(f"{name}_pfskip")
    if wk1:
        a("s_cmp_ge_u32 s32, 6")
        a(f"s_cbranch_scc1 {name}_fina")
        a("s_lshr_b32 s58, s32, 1")
        a("s_lshl_b32 s58, s58, 3")
        a("s_add_u32 s58, s58, 56")
        a("s_load_dwordx2 s[60:61], s[0:1], s58")
        a("s_mul_i32 s62, s56, 14336")
        a("s_and_b32 s63, s32, 1")
        a("s_mul_i32 s63, s63, 7168")
        a("s_add_u32 s62, s62, s63")
        a("s_add_u32 s63, s62, 7168")
        a("s_waitcnt lgkmcnt(0)")
        a("s_mov_b32 s16, s60")
        a("s_and_b32 s17, s61, 0xffff")
        a("s_mov_b32 s18, s63")
        a("s_mov_b32 s19, 0x00020000")
        a("buffer_load_dword v206, v6, s[16:19], s62 offen" + (" nt" if wk1 == 2 else ""))
    a.label(f"{name}_fina")
    if fuse2:
        a("s_xor_b32 s32, s32, 4")
    a.label(f"{name}_fin")
    stamp_flush(a, 1, 6, 46, 47)
    if fuse2:
        fuse2(a, name + "g")
        a.label(f"{name}_done")
        a("s_endpgm")
        return kernel_desc(name, 208, 72, 208)
    a.label(f"{name}_done")
    a("s_endpgm")
    return kernel_desc(name, 208, 72, 208)


def gen_k1g(a, name, wt=1, PRO=3, U1=11, UC=14, wk=1, cpf=1, SPOS=0, NPOS=1):
    NSTG, SLOT, NST = 6, 24576, 8
    kernel_begin(a, name)
    a("s_cmp_ge_u32 s2, 256")
    a(f"s_cbranch_scc1 {name}_done")
    stamp(a, 0)
    a("s_load_dwordx2 s[4:5], s[0:1], 0")
    a("s_load_dwordx4 s[8:11], s[0:1], 24")
    a("s_load_dwordx4 s[44:47], s[0:1], 88")
    a("s_load_dwordx4 s[40:43], s[0:1], 8")
    a("s_load_dwordx4 s[56:59], s[0:1], 56")
    a("s_load_dwordx2 s[60:61], s[0:1], 72")
    a("s_memrealtime s[66:67]")
    a("s_and_b32 s3, s2, 7")
    a("s_lshr_b32 s48, s2, 3")
    a("s_and_b32 s49, s3, 1")
    a("s_bfe_u32 s50, s3, 0x10001")
    a("s_lshr_b32 s51, s3, 2")
    a("s_lshl_b32 s30, s50, 3")
    a("s_lshl_b32 s34, s51, 2")
    a("s_add_u32 s30, s30, s34")
    a("s_and_b32 s34, s48, 3")
    a("s_add_u32 s30, s30, s34")
    a("s_lshr_b32 s31, s48, 2")
    a("v_lshrrev_b32 v1, 6, v0")
    a("v_and_b32 v2, 63, v0")
    a("s_nop 0")
    a("v_readfirstlane_b32 s32, v1")
    a("s_mov_b32 s53, 0xffff0000")
    a("s_mov_b32 s69, 0x40000")
    a("s_xor_b32 s32, s32, 4")
    a("s_cmp_lt_u32 s32, 4")
    a(f"s_cbranch_scc1 {name}_cons")
    a("s_sub_u32 s33, s32, 4")
    a("v_lshrrev_b32 v3, 3, v2")
    a("v_and_b32 v4, 7, v2")
    a("v_bfe_u32 v5, v2, 4, 1")
    a("v_xor_b32 v4, v4, v5")
    a("v_lshlrev_b32 v3, 10, v3")
    for i in range(4):
        g0g1 = (i & 1) ^ (i >> 1)
        a(f"v_xor_b32 v{8 + i}, {(2 * i) ^ g0g1}, v4")
        a(f"v_lshl_add_u32 v{8 + i}, v{8 + i}, 4, v3")
        if i:
            a(f"v_add_u32 v{8 + i}, {i * (8192 - 1024)}, v{8 + i}")
    a("s_bitcmp1_b32 s33, 0")
    a("s_cselect_b32 s34, 5, 0")
    a("s_cselect_b32 s35, 6, 3")
    a("v_xor_b32 v12, s34, v4")
    a("v_lshl_add_u32 v12, v12, 4, v3")
    a("v_xor_b32 v13, s35, v4")
    a("v_lshl_add_u32 v13, v13, 4, v3")
    a(f"v_add_u32 v13, {8192 - 1024}, v13")
    a("s_lshl_b32 s34, s33, 5")
    a("s_lshl_b32 s35, s30, 7")
    a("s_add_u32 s35, s35, s34")
    a("s_lshl_b32 s35, s35, 10")
    a("s_lshl_b32 s36, s31, 6")
    a("s_lshl_b32 s34, s33, 4")
    a("s_add_u32 s36, s36, s34")
    a("s_lshl_b32 s36, s36, 10")
    a("s_lshl_b32 s37, s33, 12")
    a("s_lshl_b32 s38, s33, 11")
    a("s_add_u32 s38, s38, 16384")
    a("v_lshrrev_b32 v14, 4, v2")
    a("v_and_b32 v15, 15, v2")
    a("v_lshlrev_b32 v6, 10, v14")
    a("v_lshl_add_u32 v6, v15, 4, v6")
    a("v_mov_b32 v7, 0")
    a("s_lshl_b32 s52, s2, 3")
    a("s_lshl_b32 s34, s33, 2")
    a("s_add_u32 s52, s52, s34")
    a("s_lshl_b32 s54, s2, 2")
    a("s_waitcnt lgkmcnt(0)")
    stamp(a, 1)
    srd(a, 24, 44, 45, 256)
    srd(a, 20, 46, 47, 14 << 20)
    a("s_or_b32 s62, s2, s33")
    a("s_cmp_lg_u32 s62, 0")
    a(f"s_cbranch_scc1 {name}_nopub")
    a("s_or_b32 s62, s66, 1")
    a("v_mov_b32 v25, s62")
    a("buffer_store_dword v25, v7, s[24:27], 0 offen sc0 sc1")
    a(f"s_mov_b32 s62, {13 << 20}")
    a("buffer_store_dword v25, v7, s[20:23], s62 offen sc0 sc1")
    a.label(f"{name}_nopub")
    srd(a, 12, 4, 5, S * D * 2)
    a("s_cmp_ge_u32 s54, 512")
    a("s_cselect_b32 s62, s10, s8")
    a("s_cselect_b32 s63, s11, s9")
    a("s_and_b32 s55, s54, 511")
    a("s_cmp_lt_u32 s33, 2")
    a("s_cselect_b32 s62, s4, s62")
    a("s_cselect_b32 s63, s5, s63")
    a("s_cselect_b32 s55, s52, s55")
    a(f"s_mov_b32 s65, {D * D * 2}")
    a(f"s_cselect_b32 s64, {S * D * 2}, s65")
    a("s_cmp_eq_u32 s33, 3")
    a("s_cselect_b32 s64, 0, s64")
    a("s_lshl_b32 s55, s55, 10")
    a("s_mov_b32 s16, s62")
    a("s_and_b32 s17, s63, 0xffff")
    a("s_mov_b32 s18, s64")
    a("s_mov_b32 s19, 0x00020000")
    for jj in range(4):
        a(f"buffer_load_dwordx4 v[{16 + 4 * jj}:{19 + 4 * jj}], v6, s[16:19], s55 offen offset:{256 * jj}")
    a("s_cmp_eq_u32 s49, 1")
    a("s_cselect_b32 s8, s10, s8")
    a("s_cselect_b32 s9, s11, s9")
    srd(a, 16, 8, 9, D * D * 2)

    def load_stage(kk):
        slot = (kk % NSTG) * SLOT
        a(f"s_add_u32 m0, s37, {slot}")
        a(f"s_add_u32 s39, s35, {kk * 128}")
        for i in range(4):
            a(f"buffer_load_dwordx4 v{8 + i}, s[12:15], s39 offen offset:{i * 1024} lds")
        a(f"s_add_u32 m0, s38, {slot}")
        a(f"s_add_u32 s39, s36, {kk * 128}")
        for i in range(2):
            a(f"buffer_load_dwordx4 v{12 + i}, s[16:19], s39 offen offset:{i * 1024} lds")

    def red16(v):
        for pat in ("quad_perm:[1,0,3,2]", "quad_perm:[2,3,0,1]", "row_half_mirror", "row_mirror"):
            a("s_nop 1")
            a(f"v_add_f32_dpp v{v}, v{v}, v{v} {pat} {DPP}")

    def stats_block():
        X = 64
        for r in range(16):
            a(f"v_lshlrev_b32 v{X + 2 * r}, 16, v{16 + r}")
            a(f"v_and_b32 v{X + 2 * r + 1}, s53, v{16 + r}")
        a(f"v_add_f32 v34, v{X}, v{X + 1}")
        a(f"v_add_f32 v35, v{X + 2}, v{X + 3}")
        for r in range(4, 32, 2):
            a(f"v_add_f32 v34, v34, v{X + r}")
            a(f"v_add_f32 v35, v35, v{X + r + 1}")
        a("v_add_f32 v34, v34, v35")
        red16(34)
        a("v_mul_f32 v36, 0x3b000000, v34")
        a("v_mov_b32 v37, 0")
        a("v_mov_b32 v38, 0")
        for r in range(0, 32, 2):
            a(f"v_sub_f32 v{X + r}, v{X + r}, v36")
            a(f"v_sub_f32 v{X + r + 1}, v{X + r + 1}, v36")
            a(f"v_fmac_f32 v37, v{X + r}, v{X + r}")
            a(f"v_fmac_f32 v38, v{X + r + 1}, v{X + r + 1}")
        a("v_add_f32 v37, v37, v38")
        red16(37)
        a("v_mul_f32 v37, 0x3b000000, v37")
        a("v_cvt_pk_bf16_f32 v40, v36, v36")
        a("v_lshlrev_b32 v40, 16, v40")
        a("v_cvt_pk_bf16_f32 v37, v37, v37")
        a("v_lshlrev_b32 v37, 16, v37")
        a("v_add_f32 v37, 0x3727c5ac, v37")
        a("v_cvt_pk_bf16_f32 v37, v37, v37")
        a("v_lshlrev_b32 v37, 16, v37")
        a("v_sqrt_f32 v37, v37")
        a("s_nop 0")
        a("v_cvt_pk_bf16_f32 v37, v37, v37")
        a("v_and_b32 v37, 0xffff, v37")
        a("v_or_b32 v40, v40, v37")
        a("s_cmp_eq_u32 s33, 2")
        a("s_cselect_b64 s[62:63], -1, 0")
        a("v_cndmask_b32 v40, v40, v34, s[62:63]")
        a("s_lshl_b32 s64, s52, 3")
        a(f"s_add_u32 s64, s64, {WS_STATS}")
        a("s_lshl_b32 s65, s54, 3")
        a(f"s_add_u32 s65, s65, {WS_CS}")
        a("s_cmp_eq_u32 s33, 2")
        a("s_cselect_b32 s64, s65, s64")
        a("s_add_u32 s65, s65, 8192")
        a("s_cmp_eq_u32 s33, 3")
        a("s_cselect_b32 s64, s65, s64")
        a("v_lshlrev_b32 v42, 3, v14")

    vq = ["s"] * 4
    for kk in range(PRO):
        load_stage(kk)
        vq += [kk] * 6
        if kk == NPOS:
            a("buffer_load_dword v33, v7, s[24:27], 0 offen sc1")
            vq.append("n")
    stamp(a, 2)
    issued = PRO

    def wait_tag(tag):
        nonlocal vq
        if tag in vq:
            idx = max(k for k, t in enumerate(vq) if t == tag)
            a(f"s_waitcnt vmcnt({len(vq) - 1 - idx})")
            vq = vq[idx + 1:]

    for kk in range(NST):
        wait_tag(kk)
        a("s_barrier")
        n_new = 0
        while issued < NST and issued - NSTG < kk and n_new < 2:
            load_stage(issued)
            vq += [issued] * 6
            issued += 1
            n_new += 1
        if kk == SPOS:
            stats_block()
        if kk == SPOS:
            wait_tag("n")
            a("v_readfirstlane_b32 s65, v33")
            a("s_cmp_lg_u32 s65, 0")
            a(f"s_cbranch_scc1 {name}_nok")
            a.label(f"{name}_nl")
            a("buffer_load_dword v33, v7, s[24:27], 0 offen sc1")
            a("s_waitcnt vmcnt(0)")
            a("v_readfirstlane_b32 s65, v33")
            a("s_cmp_lg_u32 s65, 0")
            a(f"s_cbranch_scc1 {name}_nok")
            a("s_sub_u32 s69, s69, 1")
            a(f"s_cbranch_scc0 {name}_nl")
            a("s_mov_b32 s69, 0")
            a.label(f"{name}_nok")
            a("v_mov_b32 v41, v33")
            a("v_cmp_eq_u32 vcc, 0, v15")
            a("s_and_saveexec_b64 s[62:63], vcc")
            a("buffer_store_dwordx2 v[40:41], v42, s[20:23], s64 offen sc0 sc1")
            a("s_mov_b64 exec, s[62:63]")
            vq.append("st")
        if issued == NST and kk == 2:
            if wk:
                emit_wtouch(a, "s33", 44, 45)
            if cpf:
                a("s_cmp_eq_u32 s49, 1")
                a("s_cselect_b32 s40, s42, s40")
                a("s_cselect_b32 s41, s43, s41")
                srd(a, 24, 40, 41, S * S * 2)
                a("s_lshl_b32 s62, s51, 10")
                a("s_lshl_b32 s63, s48, 5")
                a("s_add_u32 s62, s62, s63")
                a("s_lshl_b32 s63, s33, 3")
                a("s_add_u32 s62, s62, s63")
                a("s_lshl_b32 s62, s62, 12")
                a("s_lshl_b32 s63, s50, 11")
                a("s_add_u32 s62, s62, s63")
                a("v_lshrrev_b32 v46, 3, v2")
                a("v_lshlrev_b32 v46, 12, v46")
                a("v_and_b32 v47, 7, v2")
                a("v_lshl_add_u32 v46, v47, 7, v46")
                a("buffer_load_dword v48, v46, s[24:27], s62 offen")
                if cpf >= 2:
                    a("buffer_load_dword v49, v46, s[24:27], s62 offen offset:1024")
            vq += ["t"] * ((1 if wk else 0) + (0 if not cpf else (1 if cpf == 1 else 2)))
    stamp(a, 3)
    a(f"s_branch {name}_fin")
    a.label(f"{name}_cons")
    a("s_and_b32 s33, s32, 1")
    a("s_lshr_b32 s34, s32, 1")
    a("v_and_b32 v4, 15, v2")
    a("v_lshrrev_b32 v6, 4, v2")
    a("v_lshrrev_b32 v5, 2, v4")
    a("v_and_b32 v7, 3, v4")
    a("v_lshl_add_u32 v7, v5, 3, v7")
    a("v_lshrrev_b32 v20, 1, v4")
    a("v_lshrrev_b32 v21, 2, v4")
    a("v_lshrrev_b32 v22, 3, v4")
    a("v_xor_b32 v21, v21, v22")
    a("v_and_b32 v21, 1, v21")
    a("v_xor_b32 v20, v20, v21")
    a("v_xor_b32 v20, v20, v6")
    a("v_lshlrev_b32 v20, 4, v20")
    a("v_lshl_add_u32 v20, v7, 7, v20")
    a("s_lshl_b32 s35, s33, 13")
    a("s_lshl_b32 s36, s34, 12")
    a("s_add_u32 s36, s36, 16384")
    for g2 in range(3):
        a(f"v_add_u32 v{8 + 4 * g2}, s35, v20")
        a(f"v_xor_b32 v{9 + 4 * g2}, 64, v{8 + 4 * g2}")
        a(f"v_add_u32 v{10 + 4 * g2}, s36, v20")
        a(f"v_xor_b32 v{11 + 4 * g2}, 64, v{10 + 4 * g2}")
        if g2:
            for r in range(4):
                a(f"v_add_u32 v{8 + 4 * g2 + r}, {2 * SLOT * g2}, v{8 + 4 * g2 + r}")
    ACC = 32
    FB = 64
    ST = 112
    CSR = 144
    for i in range(32):
        a(f"v_mov_b32 v{ACC + i}, 0")
    a("s_lshl_b32 s38, s30, 7")
    a("s_lshl_b32 s39, s33, 6")
    a("s_add_u32 s38, s38, s39")
    a("s_lshl_b32 s38, s38, 3")
    a(f"s_add_u32 s38, s38, {WS_STATS}")
    a("v_lshlrev_b32 v23, 6, v6")
    a("v_mov_b32 v24, 0")
    a("s_lshl_b32 s39, s49, 9")
    a("s_lshl_b32 s65, s31, 6")
    a("s_add_u32 s39, s39, s65")
    a("s_lshl_b32 s65, s34, 5")
    a("s_add_u32 s39, s39, s65")
    a("s_lshl_b32 s39, s39, 3")
    a(f"s_add_u32 s52, s39, {WS_CS}")
    a("v_lshlrev_b32 v21, 3, v7")
    a("s_lshl_b32 s35, s49, 5")
    a("s_lshl_b32 s36, s31, 2")
    a("s_add_u32 s35, s35, s36")
    a("s_lshl_b32 s36, s34, 1")
    a("s_add_u32 s35, s35, s36")
    a("s_lshl_b32 s35, s35, 6")
    a("s_lshl_b32 s36, s30, 2")
    a("s_add_u32 s35, s35, s36")
    a("s_lshl_b32 s36, s33, 1")
    a("s_add_u32 s35, s35, s36")
    a("s_lshl_b32 s54, s35, 10")
    a("s_add_u32 s55, s54, 65536")
    a("v_lshlrev_b32 v22, 4, v2")
    a("s_waitcnt lgkmcnt(0)")
    stamp(a, 1)
    srd(a, 20, 46, 47, 14 << 20)
    srd(a, 24, 44, 45, 256)
    NU = NST * 2

    def read_list(u):
        s, ks = u // 2, u % 2
        slot = s % NSTG
        g2, so = slot // 2, (slot % 2) * SLOT
        f = FB + 24 * (u % 2)
        L = []
        for i in range(2):
            L.append(f"ds_read_b128 v[{f + 16 + 4 * i}:{f + 19 + 4 * i}], v{10 + 4 * g2 + ks} offset:{so + i * 512}")
        for i in range(4):
            off = so + (i >> 1) * 4096 + (i & 1) * 512
            L.append(f"ds_read_b128 v[{f + 4 * i}:{f + 3 + 4 * i}], v{8 + 4 * g2 + ks} offset:{off}")
        return L

    def stats_loads():
        for blk in range(2):
            for q4 in range(4):
                r = ST + 16 * blk + 4 * q4
                a(f"buffer_load_dwordx4 v[{r}:{r + 3}], v23, s[20:23], s38 offen offset:{256 * blk + 16 * q4} sc1")
        for T in range(2):
            a(f"buffer_load_dwordx2 v[{CSR + 2 * T}:{CSR + 1 + 2 * T}], v21, s[20:23], s52 offen offset:{T * 32} sc1")
        a("buffer_load_dword v25, v24, s[24:27], 0 offen sc1")

    def check_ops():
        L = [f"v_xor_b32 v26, v25, v{ST + 1}"]
        for r in range(1, 16):
            L.append(f"v_xor_b32 v27, v25, v{ST + 2 * r + 1}")
            L.append("v_or_b32 v26, v26, v27")
        for T in range(2):
            L.append(f"v_xor_b32 v27, v25, v{CSR + 1 + 2 * T}")
            L.append("v_or_b32 v26, v26, v27")
        for r in range(16):
            L.append(f"v_lshlrev_b32 v{ST + 2 * r + 1}, 16, v{ST + 2 * r}")
            L.append(f"v_rcp_f32 v{ST + 2 * r + 1}, v{ST + 2 * r + 1}")
            L.append(f"v_and_b32 v{ST + 2 * r}, s53, v{ST + 2 * r}")
        return L

    a("s_barrier")
    stamp(a, 2)
    for r in read_list(0):
        a(r)
    for u in range(NU):
        a("s_waitcnt lgkmcnt(0)")
        f = FB + 24 * (u % 2)
        nxt = read_list(u + 1) if u + 1 < NU else []
        n = 0
        for xi in range(4):
            for T in range(2):
                acc = ACC + (xi * 2 + T) * 4
                a(f"v_mfma_f32_16x16x32_bf16 v[{acc}:{acc + 3}], v[{f + 4 * xi}:{f + 3 + 4 * xi}], v[{f + 16 + 4 * T}:{f + 19 + 4 * T}], v[{acc}:{acc + 3}]")
                n += 1
                if n == 1 and nxt and (u + 1) % 2 == 0:
                    a("s_barrier")
                if nxt:
                    a(nxt.pop(0))
                if u == U1 and n == 7:
                    stats_loads()
    stamp(a, 3)
    a.label(f"{name}_chk")
    a("s_waitcnt vmcnt(0)")
    for op in check_ops():
        a(op)
    a("v_cmp_eq_u32 vcc, 0, v25")
    a("v_cmp_ne_u32 s[62:63], 0, v26")
    a("s_or_b64 s[62:63], s[62:63], vcc")
    a(f"s_cbranch_scc0 {name}_have")
    a("s_sleep 2")
    stats_loads()
    a("s_sub_u32 s69, s69, 1")
    a(f"s_cbranch_scc0 {name}_chk")
    a("s_mov_b32 s69, 0")
    a.label(f"{name}_have")
    stamp(a, 4)
    for blk in range(2):
        for T in range(2):
            o = 64 + 4 * (blk * 2 + T)
            for hb in range(2):
                acc = ACC + ((blk * 2 + hb) * 2 + T) * 4
                for j in range(4):
                    sr = ST + 16 * blk + 2 * (4 * hb + j)
                    a(f"v_fma_f32 v{acc + j}, -v{sr}, v{CSR + 2 * T}, v{acc + j}")
                    a(f"v_mul_f32 v{acc + j}, v{acc + j}, v{sr + 1}")
                a(f"v_cvt_pk_bf16_f32 v{o + 2 * hb}, v{acc}, v{acc + 1}")
                a(f"v_cvt_pk_bf16_f32 v{o + 2 * hb + 1}, v{acc + 2}, v{acc + 3}")
            a(f"buffer_store_dwordx4 v[{o}:{o + 3}], v22, s[20:23], s{54 + T} offen offset:{blk * 1024}" + (" sc0 sc1" if wt else ""))
    stamp(a, 5)
    a.label(f"{name}_fin")
    stamp_flush(a, 1, 6, 46, 47)
    a.label(f"{name}_done")
    a("s_endpgm")
    return kernel_desc(name, 152, 72, 152)


def gen_k3(a, name):
    kernel_begin(a, name)
    a("s_cmp_ge_u32 s2, 256")
    a(f"s_cbranch_scc1 {name}_done")
    stamp(a, 0)
    a("s_load_dwordx2 s[4:5], s[0:1], 0")
    a("s_load_dwordx2 s[6:7], s[0:1], 48")
    a("s_load_dwordx2 s[8:9], s[0:1], 80")
    a("s_load_dwordx2 s[10:11], s[0:1], 96")
    a("v_lshrrev_b32 v1, 6, v0")
    a("v_and_b32 v2, 63, v0")
    a("s_nop 0")
    a("v_readfirstlane_b32 s32, v1")
    a("v_lshlrev_b32 v3, 4, v2")
    a("s_waitcnt lgkmcnt(0)")
    stamp(a, 1)
    srd(a, 12, 4, 5, S * D * 2)
    srd(a, 16, 6, 7, D * 2)
    srd(a, 20, 8, 9, S * D * 2)
    srd(a, 24, 10, 11, 14 << 20)
    a("s_lshl_b32 s33, s2, 3")
    a("s_lshl_b32 s34, s32, 1")
    a("s_add_u32 s33, s33, s34")
    a("s_lshl_b32 s34, s33, 10")
    a(f"s_add_u32 s35, s34, {WS_P}")
    a(f"s_add_u32 s36, s34, {WS_P + (4 << 20)}")
    a(f"s_add_u32 s43, s34, {WS_P + (2 << 20)}")
    a(f"s_add_u32 s44, s34, {WS_P + (6 << 20)}")
    for R in range(2):
        B = 16 + 64 * R
        a(f"buffer_load_dwordx4 v[{B}:{B + 3}], v3, s[24:27], s35 offen offset:{1024 * R}")
        a(f"buffer_load_dwordx4 v[{B + 12}:{B + 15}], v3, s[24:27], s43 offen offset:{1024 * R}")
        a(f"buffer_load_dwordx4 v[{B + 4}:{B + 7}], v3, s[24:27], s36 offen offset:{1024 * R}")
        a(f"buffer_load_dwordx4 v[{B + 56}:{B + 59}], v3, s[24:27], s44 offen offset:{1024 * R}")
        a(f"buffer_load_dwordx4 v[{B + 8}:{B + 11}], v3, s[12:15], s34 offen offset:{1024 * R}")
    a("buffer_load_dwordx4 v[8:11], v3, s[16:19], 0 offen")
    a("s_mov_b32 s53, 0xffff0000")
    a("s_waitcnt vmcnt(1)")
    stamp(a, 2)

    def unpack(dst, src):
        a(f"v_lshlrev_b32 v{dst}, 16, v{src}")
        a(f"v_and_b32 v{dst + 1}, s53, v{src}")

    for R in range(2):
        B = 16 + 64 * R
        H, T = B + 16, B + 24
        for i in range(4):
            unpack(T, B + i)
            unpack(T + 2, B + 12 + i)
            unpack(T + 4, B + 4 + i)
            unpack(T + 6, B + 56 + i)
            a(f"v_add_f32 v{T}, v{T}, v{T + 2}")
            a(f"v_add_f32 v{T + 1}, v{T + 1}, v{T + 3}")
            a(f"v_add_f32 v{T + 4}, v{T + 4}, v{T + 6}")
            a(f"v_add_f32 v{T + 5}, v{T + 5}, v{T + 7}")
            a(f"v_cvt_pk_bf16_f32 v{T + 8}, v{T}, v{T + 1}")
            a(f"v_cvt_pk_bf16_f32 v{T + 9}, v{T + 4}, v{T + 5}")
            unpack(T, T + 8)
            unpack(T + 2, T + 9)
            a(f"v_sub_f32 v{T}, v{T}, v{T + 2}")
            a(f"v_sub_f32 v{T + 1}, v{T + 1}, v{T + 3}")
            a(f"v_cvt_pk_bf16_f32 v{T + 4}, v{T}, v{T + 1}")
            unpack(T, T + 4)
            unpack(T + 2, B + 8 + i)
            a(f"v_add_f32 v{T}, v{T + 2}, v{T}")
            a(f"v_add_f32 v{T + 1}, v{T + 3}, v{T + 1}")
            a(f"v_cvt_pk_bf16_f32 v{B + 40 + i}, v{T}, v{T + 1}")
            unpack(H + 2 * i, B + 40 + i)
        St = B + 48
        a(f"v_add_f32 v{St}, v{H}, v{H + 1}")
        for i in range(2, 8):
            a(f"v_add_f32 v{St}, v{St}, v{H + i}")
    for R in range(2):
        B = 16 + 64 * R
        wave_allreduce(a, "v_add_f32", B + 48, B + 49)
    for R in range(2):
        B = 16 + 64 * R
        H, T, St = B + 16, B + 24, B + 48
        a(f"v_mul_f32 v{St}, 0x3b000000, v{St}")
        a(f"v_cvt_pk_bf16_f32 v{St + 1}, v{St}, v{St}")
        a(f"v_lshlrev_b32 v{St + 1}, 16, v{St + 1}")
        for i in range(8):
            a(f"v_sub_f32 v{T + i}, v{H + i}, v{St}")
        a(f"v_mul_f32 v{St + 2}, v{T}, v{T}")
        for i in range(1, 8):
            a(f"v_fmac_f32 v{St + 2}, v{T + i}, v{T + i}")
    for R in range(2):
        B = 16 + 64 * R
        wave_allreduce(a, "v_add_f32", B + 50, B + 51)
    a("s_waitcnt vmcnt(0)")
    for R in range(2):
        B = 16 + 64 * R
        H, T, St = B + 16, B + 24, B + 48
        v = St + 2
        a(f"v_mul_f32 v{v}, 0x3b000000, v{v}")
        a(f"v_cvt_pk_bf16_f32 v{v}, v{v}, v{v}")
        a(f"v_lshlrev_b32 v{v}, 16, v{v}")
        a(f"v_add_f32 v{v}, 0x3727c5ac, v{v}")
        a(f"v_cvt_pk_bf16_f32 v{v}, v{v}, v{v}")
        a(f"v_lshlrev_b32 v{v}, 16, v{v}")
        a(f"v_sqrt_f32 v{v}, v{v}")
        a("s_nop 0")
        a(f"v_cvt_pk_bf16_f32 v{v}, v{v}, v{v}")
        a(f"v_lshlrev_b32 v{v}, 16, v{v}")
        a(f"v_rcp_f32 v{v}, v{v}")
        a("s_nop 0")
        a(f"v_mov_b32 v{St + 4}, 0")
        for i in range(4):
            a(f"v_sub_f32 v{T}, v{H + 2 * i}, v{St + 1}")
            a(f"v_sub_f32 v{T + 1}, v{H + 2 * i + 1}, v{St + 1}")
            a(f"v_cvt_pk_bf16_f32 v{T + 2}, v{T}, v{T + 1}")
            unpack(T, T + 2)
            a(f"v_mul_f32 v{T}, v{T}, v{v}")
            a(f"v_mul_f32 v{T + 1}, v{T + 1}, v{v}")
            a(f"v_cvt_pk_bf16_f32 v{B + 44 + i}, v{T}, v{T + 1}")
            unpack(T, B + 44 + i)
            a(f"v_add_f32 v{T}, v{H + 2 * i}, v{T}")
            a(f"v_add_f32 v{T + 1}, v{H + 2 * i + 1}, v{T + 1}")
            a(f"v_cvt_pk_bf16_f32 v{B + 4 + i}, v{T}, v{T + 1}")
            a(f"v_dot2_f32_bf16 v{St + 4}, v{B + 44 + i}, v{8 + i}, v{St + 4}")
        a(f"buffer_store_dwordx4 v[{B + 4}:{B + 7}], v3, s[20:23], s34 offen offset:{1024 * R}")
    a("s_nop 2")
    for R in range(2):
        B = 16 + 64 * R
        wave_allreduce(a, "v_add_f32", B + 52, B + 53)
    for R in range(2):
        B = 16 + 64 * R
        v = B + 52
        a(f"v_cvt_pk_bf16_f32 v{v}, v{v}, v{v}")
        a(f"v_lshlrev_b32 v{v}, 16, v{v}")
        a(f"v_ashrrev_i32 v{v + 1}, 31, v{v}")
        a(f"v_or_b32 v{v + 1}, 0x80000000, v{v + 1}")
        a(f"v_xor_b32 v{v}, v{v}, v{v + 1}")
        a(f"v_and_b32 v{v}, s53, v{v}")
        a(f"s_sub_u32 s37, {2047 - R}, s33")
        a(f"v_or_b32 v{v}, s37, v{v}")
    a("v_max_u32 v4, v68, v132")
    a("s_lshl_b32 s37, s32, 2")
    a("v_mov_b32 v5, s37")
    a("ds_write_b32 v5, v4")
    stamp(a, 3)
    a("s_waitcnt lgkmcnt(0)")
    a("s_barrier")
    a("v_mov_b32 v5, 0")
    a("ds_read_b128 v[12:15], v5")
    a("s_waitcnt lgkmcnt(0)")
    a("v_max_u32 v12, v12, v13")
    a("v_max_u32 v14, v14, v15")
    a("v_max_u32 v12, v12, v14")
    a("s_nop 0")
    a("v_readfirstlane_b32 s38, v12")
    a("v_readfirstlane_b32 s39, v68")
    a("v_readfirstlane_b32 s40, v132")
    a(f"s_lshl_b32 s41, s2, 11")
    a(f"s_add_u32 s41, s41, {WS_CROW}")
    a(f"s_lshl_b32 s42, s2, 2")
    a(f"s_add_u32 s42, s42, {WS_CAND}")
    a("v_mov_b32 v5, 0")
    for R in range(2):
        B = 16 + 64 * R
        a(f"s_cmp_lg_u32 s38, s{39 + R}")
        a(f"s_cbranch_scc1 {name}_nw{R}")
        a(f"buffer_store_dwordx4 v[{B + 40}:{B + 43}], v3, s[24:27], s41 offen")
        a(f"buffer_store_dwordx4 v[{B + 44}:{B + 47}], v3, s[24:27], s41 offen offset:1024")
        a(f"buffer_store_dword v12, v5, s[24:27], s42 offen")
        a.label(f"{name}_nw{R}")
    stamp_flush(a, 3, 4, 10, 11)
    a.label(f"{name}_done")
    a("s_endpgm")
    return kernel_desc(name, 144, 64, 144)


NSL = 56


def emit_winner(a, vkey, t, ldsaddr_tmp, s_out):
    wave_allreduce(a, "v_max_u32", vkey, t)
    a("s_lshl_b32 s37, s32, 2")
    a(f"v_mov_b32 v{ldsaddr_tmp}, s37")
    a(f"ds_write_b32 v{ldsaddr_tmp}, v{vkey}")
    a("s_waitcnt lgkmcnt(0)")
    a("s_barrier")
    a(f"v_mov_b32 v{ldsaddr_tmp}, 0")
    a(f"ds_read_b64 v[{t}:{t + 1}], v{ldsaddr_tmp}")
    a(f"ds_read_b64 v[{t + 2}:{t + 3}], v{ldsaddr_tmp} offset:8")
    a("s_waitcnt lgkmcnt(0)")
    a(f"v_max_u32 v{t}, v{t}, v{t + 1}")
    a(f"v_max_u32 v{t + 2}, v{t + 2}, v{t + 3}")
    a(f"v_max_u32 v{t}, v{t}, v{t + 2}")
    a("s_nop 0")
    a(f"v_readfirstlane_b32 s{s_out}, v{t}")


def gen_k4(a, name):
    kernel_begin(a, name)
    a(f"s_cmp_ge_u32 s2, {NSL}")
    a(f"s_cbranch_scc1 {name}_done")
    stamp(a, 0)
    a("s_load_dwordx4 s[4:7], s[0:1], 56")
    a("s_load_dwordx2 s[8:9], s[0:1], 72")
    a("s_load_dwordx2 s[10:11], s[0:1], 96")
    a("v_lshrrev_b32 v1, 6, v0")
    a("v_and_b32 v2, 63, v0")
    a("s_nop 0")
    a("v_readfirstlane_b32 s32, v1")
    a("v_lshrrev_b32 v3, 2, v0")
    a("v_and_b32 v4, 3, v0")
    a("v_lshlrev_b32 v5, 2, v0")
    a("s_mov_b32 s33, 28672")
    a("v_mul_lo_u32 v6, v3, s33")
    a("v_lshl_add_u32 v6, v4, 4, v6")
    a("v_lshlrev_b32 v7, 4, v2")
    a("s_waitcnt lgkmcnt(0)")
    stamp(a, 1)
    srd(a, 12, 4, 5, D * F * 2)
    srd(a, 16, 6, 7, D * F * 2)
    srd(a, 20, 8, 9, D * F * 2)
    srd(a, 24, 10, 11, 14 << 20)
    a(f"s_mov_b32 s34, {WS_CAND}")
    a("buffer_load_dword v8, v5, s[24:27], s34 offen")
    a("s_lshl_b32 s34, s2, 6")
    G, U, W = 32, 64, 96
    for j in range(8):
        a(f"s_add_u32 s35, s34, {3584 * j}")
        a(f"buffer_load_dwordx4 v[{G + 4 * j}:{G + 4 * j + 3}], v6, s[12:15], s35 offen")
        a(f"buffer_load_dwordx4 v[{U + 4 * j}:{U + 4 * j + 3}], v6, s[16:19], s35 offen")
    a("s_lshl_b32 s35, s2, 5")
    a("s_lshl_b32 s36, s32, 3")
    a("s_add_u32 s35, s35, s36")
    a("s_lshl_b32 s35, s35, 10")
    for j in range(8):
        a(f"s_add_u32 s36, s35, {1024 * j}")
        a(f"buffer_load_dwordx4 v[{W + 4 * j}:{W + 4 * j + 3}], v7, s[20:23], s36 offen")
    a("s_waitcnt vmcnt(24)")
    stamp(a, 2)
    emit_winner(a, 8, 12, 9, 38)
    stamp(a, 3)
    a("s_and_b32 s39, s38, 0xffff")
    a("s_sub_u32 s39, 2047, s39")
    a("s_lshr_b32 s39, s39, 3")
    a("s_lshl_b32 s39, s39, 11")
    a(f"s_add_u32 s39, s39, {WS_CROW + 1024}")
    a("v_lshlrev_b32 v9, 4, v3")
    a("v_add_u32 v9, s39, v9")
    a("buffer_load_dwordx4 v[12:15], v9, s[24:27], 0 offen")
    a("s_mov_b32 s53, 0xffff0000")
    A = 128
    for i in range(16):
        a(f"v_mov_b32 v{A + i}, 0")
    a("s_waitcnt vmcnt(0)")
    stamp(a, 4)
    X = 16
    for i in range(4):
        a(f"v_lshlrev_b32 v{X + 2 * i}, 16, v{12 + i}")
        a(f"v_and_b32 v{X + 2 * i + 1}, s53, v{12 + i}")
    for j in range(8):
        for (M, ao) in ((G, 0), (U, 8)):
            for i in range(4):
                t = 24 + 2 * (i & 1)
                a(f"v_lshlrev_b32 v{t}, 16, v{M + 4 * j + i}")
                a(f"v_and_b32 v{t + 1}, s53, v{M + 4 * j + i}")
                a(f"v_fmac_f32 v{A + ao + 2 * i}, v{X + j}, v{t}")
                a(f"v_fmac_f32 v{A + ao + 2 * i + 1}, v{X + j}, v{t + 1}")
    a("s_nop 1")
    for i in range(8):
        a(f"v_permlane32_swap_b32 v{A + i}, v{A + i + 8}")
    a("s_nop 1")
    for i in range(8):
        a(f"v_add_f32 v{A + i}, v{A + i}, v{A + i + 8}")
    a("s_nop 1")
    for i in range(4):
        a(f"v_permlane16_swap_b32 v{A + i}, v{A + i + 4}")
    a("s_nop 1")
    for i in range(4):
        a(f"v_add_f32 v{A + i}, v{A + i}, v{A + i + 4}")
    a("s_nop 1")
    for i in range(4):
        a(f"v_add_f32_dpp v{A + i}, v{A + i}, v{A + i} row_ror:4 {DPP}")
    a("s_nop 1")
    for i in range(4):
        a(f"v_add_f32_dpp v{A + i}, v{A + i}, v{A + i} row_ror:8 {DPP}")
    a("v_and_b32 v9, 3, v2")
    a("v_lshlrev_b32 v9, 5, v9")
    a("v_bfe_u32 v10, v2, 4, 1")
    a("v_lshl_add_u32 v9, v10, 4, v9")
    a("v_bfe_u32 v10, v2, 5, 1")
    a("v_lshl_add_u32 v9, v10, 7, v9")
    a("s_lshl_b32 s37, s32, 8")
    a("v_add_u32 v9, s37, v9")
    a(f"ds_write_b128 v9, v[{A}:{A + 3}] offset:64")
    a("s_waitcnt lgkmcnt(0)")
    a("s_barrier")
    stamp(a, 5)
    a("v_and_b32 v9, 31, v2")
    a("v_lshlrev_b32 v9, 2, v9")
    for w in range(4):
        a(f"ds_read_b32 v{16 + w}, v9 offset:{64 + 256 * w}")
        a(f"ds_read_b32 v{20 + w}, v9 offset:{64 + 256 * w + 128}")
    a("s_waitcnt lgkmcnt(0)")
    a("v_add_f32 v16, v16, v17")
    a("v_add_f32 v18, v18, v19")
    a("v_add_f32 v20, v20, v21")
    a("v_add_f32 v22, v22, v23")
    a("v_add_f32 v16, v16, v18")
    a("v_add_f32 v20, v20, v22")
    a("v_cvt_pk_bf16_f32 v16, v16, v20")
    a("v_and_b32 v20, s53, v16")
    a("v_lshlrev_b32 v16, 16, v16")
    a("v_mul_f32 v17, 0xbfb8aa3b, v16")
    a("v_exp_f32 v17, v17")
    a("s_nop 0")
    a("v_add_f32 v17, 1.0, v17")
    a("v_rcp_f32 v17, v17")
    a("s_nop 0")
    a("v_mul_f32 v16, v16, v17")
    a("v_cvt_pk_bf16_f32 v16, v16, v16")
    a("v_lshlrev_b32 v16, 16, v16")
    a("v_mul_f32 v16, v16, v20")
    a("v_cvt_pk_bf16_f32 v16, v16, v16")
    a("v_lshlrev_b32 v16, 16, v16")
    a("s_lshl_b32 s37, s32, 3")
    for j in range(8):
        a(f"s_add_u32 s36, s37, {j}")
        a("s_nop 0")
        a(f"v_readlane_b32 s{40 + j}, v16, s36")
    for i in range(8):
        a(f"v_mov_b32 v{A + i}, 0")
    a("s_nop 1")
    for j in range(8):
        for i in range(4):
            t = 24 + 2 * (i & 1)
            a(f"v_lshlrev_b32 v{t}, 16, v{W + 4 * j + i}")
            a(f"v_and_b32 v{t + 1}, s53, v{W + 4 * j + i}")
            a(f"v_fmac_f32 v{A + 2 * i}, s{40 + j}, v{t}")
            a(f"v_fmac_f32 v{A + 2 * i + 1}, s{40 + j}, v{t + 1}")
    a("v_lshlrev_b32 v9, 5, v2")
    a("s_lshl_b32 s37, s32, 11")
    a("v_add_u32 v9, s37, v9")
    a(f"ds_write_b128 v9, v[{A}:{A + 3}] offset:2048")
    a(f"ds_write_b128 v9, v[{A + 4}:{A + 7}] offset:2064")
    a("s_waitcnt lgkmcnt(0)")
    a("s_barrier")
    a("v_lshlrev_b32 v9, 3, v0")
    for w in range(4):
        a(f"ds_read_b64 v[{16 + 2 * w}:{17 + 2 * w}], v9 offset:{2048 + 2048 * w}")
    a("s_waitcnt lgkmcnt(0)")
    a("v_add_f32 v16, v16, v18")
    a("v_add_f32 v17, v17, v19")
    a("v_add_f32 v20, v20, v22")
    a("v_add_f32 v21, v21, v23")
    a("v_add_f32 v16, v16, v20")
    a("v_add_f32 v17, v17, v21")
    a("s_lshl_b32 s37, s2, 11")
    a(f"s_add_u32 s37, s37, {WS_SLAB}")
    a("buffer_store_dwordx2 v[16:17], v9, s[24:27], s37 offen")
    stamp_flush(a, 4, 6, 10, 11)
    a.label(f"{name}_done")
    a("s_endpgm")
    return kernel_desc(name, 144, 64, 144)


def gen_k3b(a, name, wpf=0):
    kernel_begin(a, name)
    a("s_cmp_ge_u32 s2, 256")
    a(f"s_cbranch_scc1 {name}_done")
    stamp(a, 0)
    a("s_load_dwordx2 s[4:5], s[0:1], 0")
    a("s_load_dwordx2 s[6:7], s[0:1], 48")
    a("s_load_dwordx2 s[8:9], s[0:1], 80")
    a("s_load_dwordx2 s[10:11], s[0:1], 96")
    if wpf:
        a("s_load_dwordx4 s[56:59], s[0:1], 56")
        a("s_load_dwordx2 s[60:61], s[0:1], 72")
    a("v_lshrrev_b32 v1, 6, v0")
    a("v_and_b32 v2, 63, v0")
    a("s_nop 0")
    a("v_readfirstlane_b32 s32, v1")
    a("v_lshlrev_b32 v3, 4, v2")
    a("s_lshl_b32 s33, s2, 3")
    a("s_add_u32 s33, s33, s32")
    a("s_lshl_b32 s34, s33, 10")
    a(f"s_add_u32 s35, s34, {WS_P}")
    a(f"s_add_u32 s36, s34, {WS_P + (4 << 20)}")
    a(f"s_add_u32 s43, s34, {WS_P + (2 << 20)}")
    a(f"s_add_u32 s44, s34, {WS_P + (6 << 20)}")
    a("s_mov_b32 s53, 0xffff0000")
    a("s_waitcnt lgkmcnt(0)")
    stamp(a, 1)
    srd(a, 24, 10, 11, 14 << 20)
    B = 16
    a(f"buffer_load_dwordx4 v[{B}:{B + 3}], v3, s[24:27], s35 offen")
    a(f"buffer_load_dwordx4 v[{B + 12}:{B + 15}], v3, s[24:27], s43 offen")
    a(f"buffer_load_dwordx4 v[{B + 4}:{B + 7}], v3, s[24:27], s36 offen")
    a(f"buffer_load_dwordx4 v[{B + 56}:{B + 59}], v3, s[24:27], s44 offen")
    srd(a, 12, 4, 5, S * D * 2)
    a(f"buffer_load_dwordx4 v[{B + 8}:{B + 11}], v3, s[12:15], s34 offen")
    srd(a, 16, 6, 7, D * 2)
    a("buffer_load_dwordx4 v[8:11], v3, s[16:19], 0 offen")
    if wpf:
        a("s_sub_u32 s45, s32, 5")
        a("s_min_u32 s45, s45, 3")
        emit_wtouch(a, "s45", 120, 121)
    srd(a, 20, 8, 9, S * D * 2)
    a(f"s_waitcnt vmcnt({2 if wpf else 1})")
    stamp(a, 2)

    def unpack(dst, src):
        a(f"v_lshlrev_b32 v{dst}, 16, v{src}")
        a(f"v_and_b32 v{dst + 1}, s53, v{src}")

    H = B + 16
    TT = [80 + 10 * i for i in range(4)]
    steps = []
    for i in range(4):
        T = TT[i]
        steps.append([
            f"v_lshlrev_b32 v{T}, 16, v{B + i}", f"v_and_b32 v{T + 1}, s53, v{B + i}",
            f"v_lshlrev_b32 v{T + 2}, 16, v{B + 12 + i}", f"v_and_b32 v{T + 3}, s53, v{B + 12 + i}",
            f"v_lshlrev_b32 v{T + 4}, 16, v{B + 4 + i}", f"v_and_b32 v{T + 5}, s53, v{B + 4 + i}",
            f"v_lshlrev_b32 v{T + 6}, 16, v{B + 56 + i}", f"v_and_b32 v{T + 7}, s53, v{B + 56 + i}",
            f"v_add_f32 v{T}, v{T}, v{T + 2}", f"v_add_f32 v{T + 1}, v{T + 1}, v{T + 3}",
            f"v_add_f32 v{T + 4}, v{T + 4}, v{T + 6}", f"v_add_f32 v{T + 5}, v{T + 5}, v{T + 7}",
            f"v_cvt_pk_bf16_f32 v{T + 8}, v{T}, v{T + 1}", f"v_cvt_pk_bf16_f32 v{T + 9}, v{T + 4}, v{T + 5}",
            f"v_lshlrev_b32 v{T}, 16, v{T + 8}", f"v_and_b32 v{T + 1}, s53, v{T + 8}",
            f"v_lshlrev_b32 v{T + 2}, 16, v{T + 9}", f"v_and_b32 v{T + 3}, s53, v{T + 9}",
            f"v_sub_f32 v{T}, v{T}, v{T + 2}", f"v_sub_f32 v{T + 1}, v{T + 1}, v{T + 3}",
            f"v_cvt_pk_bf16_f32 v{T + 4}, v{T}, v{T + 1}",
            f"v_lshlrev_b32 v{T}, 16, v{T + 4}", f"v_and_b32 v{T + 1}, s53, v{T + 4}",
            f"v_lshlrev_b32 v{T + 2}, 16, v{B + 8 + i}", f"v_and_b32 v{T + 3}, s53, v{B + 8 + i}",
            f"v_add_f32 v{T}, v{T + 2}, v{T}", f"v_add_f32 v{T + 1}, v{T + 3}, v{T + 1}",
            f"v_cvt_pk_bf16_f32 v{B + 40 + i}, v{T}, v{T + 1}",
            f"v_lshlrev_b32 v{H + 2 * i}, 16, v{B + 40 + i}", f"v_and_b32 v{H + 2 * i + 1}, s53, v{B + 40 + i}",
        ])
    for k in range(len(steps[0])):
        for i in range(4):
            a(steps[i][k])
    St = B + 48
    a(f"v_add_f32 v{St}, v{H}, v{H + 1}")
    a(f"v_add_f32 v{St + 1}, v{H + 2}, v{H + 3}")
    a(f"v_add_f32 v{St + 2}, v{H + 4}, v{H + 5}")
    a(f"v_add_f32 v{St + 3}, v{H + 6}, v{H + 7}")
    a(f"v_add_f32 v{St}, v{St}, v{St + 1}")
    a(f"v_add_f32 v{St + 2}, v{St + 2}, v{St + 3}")
    a(f"v_add_f32 v{St}, v{St}, v{St + 2}")
    wave_allreduce(a, "v_add_f32", St, St + 1)
    T = 80
    a(f"v_mul_f32 v{St}, 0x3b000000, v{St}")
    for i in range(8):
        a(f"v_sub_f32 v{T + i}, v{H + i}, v{St}")
    a(f"v_cvt_pk_bf16_f32 v{St + 1}, v{St}, v{St}")
    a(f"v_mul_f32 v{St + 2}, v{T}, v{T}")
    a(f"v_mul_f32 v{St + 3}, v{T + 1}, v{T + 1}")
    a(f"v_lshlrev_b32 v{St + 1}, 16, v{St + 1}")
    for i in range(2, 8, 2):
        a(f"v_fmac_f32 v{St + 2}, v{T + i}, v{T + i}")
        a(f"v_fmac_f32 v{St + 3}, v{T + i + 1}, v{T + i + 1}")
    a(f"v_add_f32 v{St + 2}, v{St + 2}, v{St + 3}")
    for i in range(8):
        a(f"v_sub_f32 v{T + 10 + i}, v{H + i}, v{St + 1}")
    for i in range(4):
        a(f"v_cvt_pk_bf16_f32 v{T + 20 + i}, v{T + 10 + 2 * i}, v{T + 11 + 2 * i}")
    for i in range(4):
        unpack(T + 10 + 2 * i, T + 20 + i)
    wave_allreduce(a, "v_add_f32", St + 2, St + 3)
    v = St + 2
    a(f"v_mul_f32 v{v}, 0x3b000000, v{v}")
    a(f"v_cvt_pk_bf16_f32 v{v}, v{v}, v{v}")
    a(f"v_lshlrev_b32 v{v}, 16, v{v}")
    a(f"v_add_f32 v{v}, 0x3727c5ac, v{v}")
    a(f"v_cvt_pk_bf16_f32 v{v}, v{v}, v{v}")
    a(f"v_lshlrev_b32 v{v}, 16, v{v}")
    a(f"v_sqrt_f32 v{v}, v{v}")
    a("s_nop 0")
    a(f"v_cvt_pk_bf16_f32 v{v}, v{v}, v{v}")
    a(f"v_lshlrev_b32 v{v}, 16, v{v}")
    a(f"v_rcp_f32 v{v}, v{v}")
    a(f"s_waitcnt vmcnt({1 if wpf else 0})")
    for i in range(8):
        a(f"v_mul_f32 v{T + 10 + i}, v{T + 10 + i}, v{v}")
    for i in range(4):
        a(f"v_cvt_pk_bf16_f32 v{B + 44 + i}, v{T + 10 + 2 * i}, v{T + 11 + 2 * i}")
    for i in range(4):
        unpack(T + 10 + 2 * i, B + 44 + i)
        unpack(T + 2 * i, 8 + i)
    a(f"v_mul_f32 v{St + 4}, v{T + 10}, v{T}")
    a(f"v_mul_f32 v{St + 5}, v{T + 11}, v{T + 1}")
    for i in range(2, 8, 2):
        a(f"v_fmac_f32 v{St + 4}, v{T + 10 + i}, v{T + i}")
        a(f"v_fmac_f32 v{St + 5}, v{T + 11 + i}, v{T + i + 1}")
    a(f"v_add_f32 v{St + 4}, v{St + 4}, v{St + 5}")
    for i in range(8):
        a(f"v_add_f32 v{T + 20 + i}, v{H + i}, v{T + 10 + i}")
    for i in range(4):
        a(f"v_cvt_pk_bf16_f32 v{B + 4 + i}, v{T + 20 + 2 * i}, v{T + 21 + 2 * i}")
    a(f"buffer_store_dwordx4 v[{B + 4}:{B + 7}], v3, s[20:23], s34 offen")
    wave_allreduce(a, "v_add_f32", St + 4, St + 5)
    v = St + 4
    a(f"v_cvt_pk_bf16_f32 v{v}, v{v}, v{v}")
    a(f"v_lshlrev_b32 v{v}, 16, v{v}")
    a(f"v_ashrrev_i32 v{v + 1}, 31, v{v}")
    a(f"v_or_b32 v{v + 1}, 0x80000000, v{v + 1}")
    a(f"v_xor_b32 v{v}, v{v}, v{v + 1}")
    a(f"v_and_b32 v{v}, s53, v{v}")
    a("s_sub_u32 s37, 2047, s33")
    a(f"v_or_b32 v{v}, s37, v{v}")
    a("s_lshl_b32 s37, s32, 2")
    a("v_mov_b32 v5, s37")
    a(f"ds_write_b32 v5, v{v}")
    stamp(a, 3)
    a("s_waitcnt lgkmcnt(0)")
    a("s_barrier")
    a("v_mov_b32 v5, 0")
    a("ds_read_b128 v[12:15], v5")
    a("ds_read_b128 v[80:83], v5 offset:16")
    a(f"v_readfirstlane_b32 s39, v{v}")
    a(f"s_lshl_b32 s41, s2, 11")
    a(f"s_add_u32 s41, s41, {WS_CROW}")
    a(f"s_lshl_b32 s42, s2, 2")
    a(f"s_add_u32 s42, s42, {WS_CAND}")
    a("s_waitcnt lgkmcnt(0)")
    a("v_max3_u32 v12, v12, v13, v14")
    a("v_max3_u32 v80, v80, v81, v82")
    a("v_max3_u32 v12, v12, v15, v83")
    a("v_max_u32 v12, v12, v80")
    a("s_nop 0")
    a("v_readfirstlane_b32 s38, v12")
    a("s_cmp_lg_u32 s38, s39")
    a(f"s_cbranch_scc1 {name}_nw")
    a(f"buffer_store_dwordx4 v[{B + 40}:{B + 43}], v3, s[24:27], s41 offen")
    a(f"buffer_store_dwordx4 v[{B + 44}:{B + 47}], v3, s[24:27], s41 offen offset:1024")
    a(f"buffer_store_dword v12, v5, s[24:27], s42 offen")
    a.label(f"{name}_nw")
    stamp_flush(a, 3, 4, 10, 11)
    a.label(f"{name}_done")
    a("s_endpgm")
    return kernel_desc(name, 128, 64, 128)


def emit_winner_wave(a, v4, t, s_out):
    a(f"v_max3_u32 v{v4}, v{v4}, v{v4 + 1}, v{v4 + 2}")
    a(f"v_max_u32 v{v4}, v{v4}, v{v4 + 3}")
    wave_allreduce(a, "v_max_u32", v4, t)
    a("s_nop 0")
    a(f"v_readfirstlane_b32 s{s_out}, v{v4}")


def gen_k4b(a, name):
    kernel_begin(a, name)
    a(f"s_cmp_ge_u32 s2, {NSL}")
    a(f"s_cbranch_scc1 {name}_done")
    stamp(a, 0)
    a("s_load_dwordx2 s[10:11], s[0:1], 96")
    a("s_load_dwordx4 s[4:7], s[0:1], 56")
    a("s_load_dwordx2 s[8:9], s[0:1], 72")
    a("v_lshrrev_b32 v1, 6, v0")
    a("v_and_b32 v2, 63, v0")
    a("s_nop 0")
    a("v_readfirstlane_b32 s32, v1")
    a("v_lshrrev_b32 v3, 2, v0")
    a("v_and_b32 v4, 3, v0")
    a("s_mov_b32 s33, 14336")
    a("v_mul_lo_u32 v6, v3, s33")
    a("v_lshl_add_u32 v6, v4, 4, v6")
    a("v_lshlrev_b32 v7, 4, v2")
    a("s_lshl_b32 s34, s2, 6")
    a("s_lshl_b32 s35, s2, 5")
    a("s_lshl_b32 s36, s32, 2")
    a("s_add_u32 s35, s35, s36")
    a("s_lshl_b32 s35, s35, 10")
    a(f"s_mov_b32 s37, {WS_CAND}")
    a("s_mov_b32 s53, 0xffff0000")
    a("s_waitcnt lgkmcnt(0)")
    stamp(a, 1)
    srd(a, 24, 10, 11, 14 << 20)
    a("buffer_load_dwordx4 v[8:11], v7, s[24:27], s37 offen")
    srd(a, 12, 4, 5, D * F * 2)
    srd(a, 16, 6, 7, D * F * 2)
    srd(a, 20, 8, 9, D * F * 2)
    G, U, W = 32, 48, 64
    for j in range(4):
        a(f"s_add_u32 s36, s34, {3584 * j}")
        a(f"buffer_load_dwordx4 v[{G + 4 * j}:{G + 4 * j + 3}], v6, s[12:15], s36 offen")
        a(f"buffer_load_dwordx4 v[{U + 4 * j}:{U + 4 * j + 3}], v6, s[16:19], s36 offen")
    a("s_waitcnt vmcnt(8)")
    stamp(a, 2)
    emit_winner_wave(a, 8, 12, 38)
    a("s_and_b32 s39, s38, 0xffff")
    a("s_sub_u32 s39, 2047, s39")
    a("s_lshr_b32 s39, s39, 3")
    a("s_lshl_b32 s39, s39, 11")
    a(f"s_add_u32 s39, s39, {WS_CROW + 1024}")
    a("v_lshlrev_b32 v9, 3, v3")
    a("v_add_u32 v9, s39, v9")
    a("buffer_load_dwordx2 v[12:13], v9, s[24:27], 0 offen")
    stamp(a, 3)
    for j in range(4):
        a(f"buffer_load_dwordx4 v[{W + 4 * j}:{W + 4 * j + 3}], v7, s[20:23], s35 offen offset:{1024 * j}")
    A = 96
    for i in range(16):
        a(f"v_mov_b32 v{A + i}, 0")
    a("s_waitcnt vmcnt(4)")
    stamp(a, 4)
    X = 16
    for i in range(2):
        a(f"v_lshlrev_b32 v{X + 2 * i}, 16, v{12 + i}")
        a(f"v_and_b32 v{X + 2 * i + 1}, s53, v{12 + i}")
    for j in range(4):
        for (M, ao) in ((G, 0), (U, 8)):
            for i in range(4):
                t = 24 + 2 * (i & 3)
                a(f"v_lshlrev_b32 v{t}, 16, v{M + 4 * j + i}")
                a(f"v_and_b32 v{t + 1}, s53, v{M + 4 * j + i}")
            for i in range(4):
                t = 24 + 2 * (i & 3)
                a(f"v_fmac_f32 v{A + ao + 2 * i}, v{X + j}, v{t}")
                a(f"v_fmac_f32 v{A + ao + 2 * i + 1}, v{X + j}, v{t + 1}")
    a("s_nop 1")
    for i in range(8):
        a(f"v_permlane32_swap_b32 v{A + i}, v{A + i + 8}")
    a("s_nop 1")
    for i in range(8):
        a(f"v_add_f32 v{A + i}, v{A + i}, v{A + i + 8}")
    a("s_nop 1")
    for i in range(4):
        a(f"v_permlane16_swap_b32 v{A + i}, v{A + i + 4}")
    a("s_nop 1")
    for i in range(4):
        a(f"v_add_f32 v{A + i}, v{A + i}, v{A + i + 4}")
    a("s_nop 1")
    for i in range(4):
        a(f"v_add_f32_dpp v{A + i}, v{A + i}, v{A + i} row_ror:4 {DPP}")
    a("s_nop 1")
    for i in range(4):
        a(f"v_add_f32_dpp v{A + i}, v{A + i}, v{A + i} row_ror:8 {DPP}")
    a("v_and_b32 v9, 3, v2")
    a("v_lshlrev_b32 v9, 5, v9")
    a("v_bfe_u32 v10, v2, 4, 1")
    a("v_lshl_add_u32 v9, v10, 4, v9")
    a("v_bfe_u32 v10, v2, 5, 1")
    a("v_lshl_add_u32 v9, v10, 7, v9")
    a("s_lshl_b32 s37, s32, 8")
    a("v_add_u32 v9, s37, v9")
    a(f"ds_write_b128 v9, v[{A}:{A + 3}]")
    a("s_waitcnt lgkmcnt(0)")
    a("s_barrier")
    stamp(a, 5)
    a("v_lshlrev_b32 v9, 2, v2")
    for w in range(8):
        a(f"ds_read_b32 v{16 + w}, v9 offset:{256 * w}")
    a("s_waitcnt lgkmcnt(0)")
    a("v_add_f32 v16, v16, v17")
    a("v_add_f32 v18, v18, v19")
    a("v_add_f32 v20, v20, v21")
    a("v_add_f32 v22, v22, v23")
    a("v_add_f32 v16, v16, v18")
    a("v_add_f32 v20, v20, v22")
    a("v_add_f32 v16, v16, v20")
    a("v_mov_b32 v20, v16")
    a("s_nop 1")
    a("v_permlane32_swap_b32 v16, v20")
    a("s_nop 1")
    a("v_cvt_pk_bf16_f32 v16, v16, v20")
    a("v_and_b32 v20, s53, v16")
    a("v_lshlrev_b32 v16, 16, v16")
    a("v_mul_f32 v17, 0xbfb8aa3b, v16")
    a("v_exp_f32 v17, v17")
    a("s_nop 0")
    a("v_add_f32 v17, 1.0, v17")
    a("v_rcp_f32 v17, v17")
    a("s_nop 0")
    a("v_mul_f32 v16, v16, v17")
    a("v_cvt_pk_bf16_f32 v16, v16, v16")
    a("v_lshlrev_b32 v16, 16, v16")
    a("v_mul_f32 v16, v16, v20")
    a("v_cvt_pk_bf16_f32 v16, v16, v16")
    a("v_lshlrev_b32 v16, 16, v16")
    a("s_lshl_b32 s37, s32, 2")
    for j in range(4):
        a(f"s_add_u32 s36, s37, {j}")
        a("s_nop 0")
        a(f"v_readlane_b32 s{40 + j}, v16, s36")
    a("s_waitcnt vmcnt(0)")
    for j in range(4):
        for i in range(4):
            t = 24 + 2 * i
            a(f"v_lshlrev_b32 v{t}, 16, v{W + 4 * j + i}")
            a(f"v_and_b32 v{t + 1}, s53, v{W + 4 * j + i}")
        for i in range(4):
            t = 24 + 2 * i
            if j == 0:
                a(f"v_mul_f32 v{A + 2 * i}, s{40 + j}, v{t}")
                a(f"v_mul_f32 v{A + 2 * i + 1}, s{40 + j}, v{t + 1}")
            else:
                a(f"v_fmac_f32 v{A + 2 * i}, s{40 + j}, v{t}")
                a(f"v_fmac_f32 v{A + 2 * i + 1}, s{40 + j}, v{t + 1}")
    a("v_lshlrev_b32 v9, 5, v2")
    a("s_lshl_b32 s37, s32, 11")
    a("v_add_u32 v9, s37, v9")
    a(f"ds_write_b128 v9, v[{A}:{A + 3}] offset:2048")
    a(f"ds_write_b128 v9, v[{A + 4}:{A + 7}] offset:2064")
    a("s_waitcnt lgkmcnt(0)")
    a("s_barrier")
    a("v_lshlrev_b32 v9, 2, v0")
    for w in range(8):
        a(f"ds_read_b32 v{16 + w}, v9 offset:{2048 + 2048 * w}")
    a("s_lshl_b32 s37, s2, 11")
    a(f"s_add_u32 s37, s37, {WS_SLAB}")
    a("s_waitcnt lgkmcnt(0)")
    a("v_add_f32 v16, v16, v17")
    a("v_add_f32 v18, v18, v19")
    a("v_add_f32 v20, v20, v21")
    a("v_add_f32 v22, v22, v23")
    a("v_add_f32 v16, v16, v18")
    a("v_add_f32 v20, v20, v22")
    a("v_add_f32 v16, v16, v20")
    a("buffer_store_dword v16, v9, s[24:27], s37 offen")
    stamp_flush(a, 4, 6, 10, 11)
    a.label(f"{name}_done")
    a("s_endpgm")
    return kernel_desc(name, 112, 64, 112)


WS_NONCE = 13 << 20
WS_ANN = WS_NONCE + 128
WS_KEYS = WS_NONCE + 4096
WS_ROWS = WS_NONCE + 8192
WS_KEYS2 = (15 << 20) + (3 << 18)
WS_SLABS = 15 << 20
WS_FLAG2 = (15 << 20) + (1 << 19)


KSLEEP, SSLEEP, FSLEEP, ASLEEP = 1, 1, 1, 8


def gen_kt(a, name, fused=0):
    SLOT = "s63" if fused else "s2"
    LP = " sc1" if fused else ""
    if not fused:
        kernel_begin(a, name)
        a("s_cmp_ge_u32 s2, 256")
        a(f"s_cbranch_scc1 {name}_done")
    stamp(a, 0)
    a("s_load_dwordx2 s[10:11], s[0:1], 96")
    a("s_load_dwordx2 s[4:5], s[0:1], 0")
    a("s_load_dwordx2 s[6:7], s[0:1], 48")
    a("s_load_dwordx2 s[8:9], s[0:1], 80")
    a("s_load_dwordx4 s[56:59], s[0:1], 56")
    a("s_load_dwordx2 s[60:61], s[0:1], 72")
    if fused:
        a("v_mbcnt_lo_u32_b32 v2, -1, 0")
        a("v_mbcnt_hi_u32_b32 v2, -1, v2")
        a("s_lshl_b32 s33, s32, 6")
        a("v_add_u32 v0, s33, v2")
    else:
        a("v_lshrrev_b32 v1, 6, v0")
        a("v_and_b32 v2, 63, v0")
        a("s_nop 0")
        a("v_readfirstlane_b32 s32, v1")
    a("v_lshlrev_b32 v3, 4, v2")
    a(f"s_lshl_b32 s33, {SLOT}, 3")
    a("s_add_u32 s33, s33, s32")
    a("s_lshl_b32 s34, s33, 10")
    if PBLK:
        a("s_lshr_b32 s47, s33, 4")
        a("s_lshl_b32 s47, s47, 14")
        a("s_and_b32 s46, s33, 15")
        a("s_lshl_b32 s46, s46, 6")
        a("s_add_u32 s47, s47, s46")
        a("v_lshrrev_b32 v90, 2, v2")
        a("v_lshlrev_b32 v90, 10, v90")
        a("v_and_b32 v91, 3, v2")
        a("v_lshl_add_u32 v90, v91, 4, v90")
    PB = "s47" if PBLK else "s34"
    PV = "v90" if PBLK else "v3"
    a(f"s_add_u32 s35, {PB}, {WS_P}")
    a(f"s_add_u32 s36, {PB}, {WS_P + (4 << 20)}")
    a(f"s_add_u32 s43, {PB}, {WS_P + (2 << 20)}")
    a(f"s_add_u32 s44, {PB}, {WS_P + (6 << 20)}")
    a("s_mov_b32 s53, 0xffff0000")
    a("s_mov_b32 s69, 0x40000")
    a(f"s_mov_b32 s45, {WS_NONCE}")
    a("v_mov_b32 v5, 0")
    a("v_lshrrev_b32 v6, 2, v0")
    a("s_mov_b32 s46, 14336")
    a("v_mul_lo_u32 v7, v6, s46")
    a("v_and_b32 v4, 3, v0")
    a("v_lshl_add_u32 v7, v4, 4, v7")
    a("v_lshlrev_b32 v4, 5, v2")
    a("s_waitcnt lgkmcnt(0)")
    stamp(a, 1)
    srd(a, 24, 10, 11, 16 << 20)
    srd(a, 20, 8, 9, S * D * 2)
    P0, P2, XX, P1, P3 = 16, 20, 24, 28, 12

    EARLYW = fused and WEARLY
    G, U = 96, 112
    W = 128 if EARLYW else 16

    def w_loads():
        srd(a, 12, 56, 57, D * F * 2)
        srd(a, 16, 58, 59, D * F * 2)
        a("s_lshl_b32 s48, s2, 6")
        for j in range(4):
            a(f"s_add_u32 s49, s48, {3584 * j}")
            a(f"buffer_load_dwordx4 v[{G + 4 * j}:{G + 4 * j + 3}], v7, s[12:15], s49 offen")
            a(f"buffer_load_dwordx4 v[{U + 4 * j}:{U + 4 * j + 3}], v7, s[16:19], s49 offen")
        srd(a, 28, 60, 61, D * F * 2)
        a("s_lshl_b32 s48, s2, 5")
        a("s_lshl_b32 s49, s32, 2")
        a("s_add_u32 s48, s48, s49")
        a("s_lshl_b32 s48, s48, 10")
        for j in range(4):
            a(f"buffer_load_dwordx4 v[{W + 4 * j}:{W + 4 * j + 3}], v3, s[28:31], s48 offen offset:{1024 * j}")

    def p_loads():
        a(f"buffer_load_dwordx4 v[{P0}:{P0 + 3}], {PV}, s[24:27], s35 offen{LP}")
        a(f"buffer_load_dwordx4 v[{P1}:{P1 + 3}], {PV}, s[24:27], s43 offen{LP}")
        a(f"buffer_load_dwordx4 v[{P2}:{P2 + 3}], {PV}, s[24:27], s36 offen{LP}")
        a(f"buffer_load_dwordx4 v[{P3}:{P3 + 3}], {PV}, s[24:27], s44 offen{LP}")

    if fused:
        a("buffer_load_dword v88, v5, s[24:27], s45 offen")
        srd(a, 12, 4, 5, S * D * 2)
        a(f"buffer_load_dwordx4 v[{XX}:{XX + 3}], v3, s[12:15], s34 offen")
        srd(a, 16, 6, 7, D * 2)
        a("buffer_load_dwordx4 v[8:11], v3, s[16:19], 0 offen")
        if EARLYW:
            a(f"s_cmp_lt_u32 s2, {NSL}")
            a(f"s_cbranch_scc0 {name}_noew")
            w_loads()
            a.label(f"{name}_noew")
        if SENT == 3:
            a(f"s_branch {name}_np")
        a("s_cmp_lg_u32 s32, 4")
        a(f"s_cbranch_scc1 {name}_np")
        a("s_lshr_b32 s46, s63, 4")
        a("s_lshl_b32 s46, s46, 11")
        a(f"s_add_u32 s46, s46, {WS_FLAG2}")
        if SENT:
            a("v_lshrrev_b32 v56, 2, v2")
            a("v_lshlrev_b32 v56, 7, v56")
            a("v_and_b32 v57, 3, v2")
            a("v_lshl_add_u32 v56, v57, 2, v56")
        else:
            a("v_and_b32 v56, 15, v2")
            a("v_lshlrev_b32 v56, 7, v56")
        a.label(f"{name}_fp")
        a("buffer_load_dword v57, v56, s[24:27], s46 offen sc1")
        a("s_waitcnt vmcnt(0)")
        a("v_cmp_ne_u32 vcc, v57, v88")
        a("s_or_b32 s47, vcc_lo, vcc_hi")
        a(f"s_cbranch_scc0 {name}_np")
        a(f"s_sleep {FSLEEP}")
        a("s_sub_u32 s69, s69, 1")
        a(f"s_cbranch_scc0 {name}_fp")
        a("s_mov_b32 s69, 0")
        a.label(f"{name}_np")
        a("s_barrier")
        if SENT:
            a.label(f"{name}_pp")
        p_loads()
        if SENT:
            a("s_waitcnt vmcnt(0)")
            for (r0, d) in ((P0, 56), (P1, 57), (P2, 58), (P3, 59)):
                a(f"v_max3_u32 v{d}, v{r0}, v{r0 + 1}, v{r0 + 2}")
                a(f"v_max_u32 v{d}, v{d}, v{r0 + 3}")
            a("v_max3_u32 v56, v56, v57, v58")
            a("v_max_u32 v56, v56, v59")
            a("v_cmp_eq_u32 vcc, -1, v56")
            a("s_or_b32 s47, vcc_lo, vcc_hi")
            a(f"s_cbranch_scc0 {name}_pd")
            a(f"s_sleep {PSLEEP}")
            a("s_sub_u32 s69, s69, 1")
            a(f"s_cbranch_scc0 {name}_pp")
            a("s_mov_b32 s69, 0")
            a.label(f"{name}_pd")
    else:
        p_loads()
        srd(a, 12, 4, 5, S * D * 2)
        a(f"buffer_load_dwordx4 v[{XX}:{XX + 3}], v3, s[12:15], s34 offen")
        srd(a, 16, 6, 7, D * 2)
        a("buffer_load_dwordx4 v[8:11], v3, s[16:19], 0 offen")
        a("buffer_load_dword v88, v5, s[24:27], s45 offen")
    G, U = 96, 112
    a(f"s_waitcnt vmcnt({0 if fused else 2})")
    stamp(a, 2)

    def unpack(dst, src):
        a(f"v_lshlrev_b32 v{dst}, 16, v{src}")
        a(f"v_and_b32 v{dst + 1}, s53, v{src}")

    H, HP, HN, St = 32, 40, 44, 48
    for half in range(2):
        steps = []
        for ii in range(2):
            i = 2 * half + ii
            T = 56 + 10 * ii
            steps.append([
                f"v_lshlrev_b32 v{T}, 16, v{P0 + i}", f"v_and_b32 v{T + 1}, s53, v{P0 + i}",
                f"v_lshlrev_b32 v{T + 2}, 16, v{P1 + i}", f"v_and_b32 v{T + 3}, s53, v{P1 + i}",
                f"v_lshlrev_b32 v{T + 4}, 16, v{P2 + i}", f"v_and_b32 v{T + 5}, s53, v{P2 + i}",
                f"v_lshlrev_b32 v{T + 6}, 16, v{P3 + i}", f"v_and_b32 v{T + 7}, s53, v{P3 + i}",
                f"v_add_f32 v{T}, v{T}, v{T + 2}", f"v_add_f32 v{T + 1}, v{T + 1}, v{T + 3}",
                f"v_add_f32 v{T + 4}, v{T + 4}, v{T + 6}", f"v_add_f32 v{T + 5}, v{T + 5}, v{T + 7}",
                f"v_cvt_pk_bf16_f32 v{T + 8}, v{T}, v{T + 1}", f"v_cvt_pk_bf16_f32 v{T + 9}, v{T + 4}, v{T + 5}",
                f"v_lshlrev_b32 v{T}, 16, v{T + 8}", f"v_and_b32 v{T + 1}, s53, v{T + 8}",
                f"v_lshlrev_b32 v{T + 2}, 16, v{T + 9}", f"v_and_b32 v{T + 3}, s53, v{T + 9}",
                f"v_sub_f32 v{T}, v{T}, v{T + 2}", f"v_sub_f32 v{T + 1}, v{T + 1}, v{T + 3}",
                f"v_cvt_pk_bf16_f32 v{T + 4}, v{T}, v{T + 1}",
                f"v_lshlrev_b32 v{T}, 16, v{T + 4}", f"v_and_b32 v{T + 1}, s53, v{T + 4}",
                f"v_lshlrev_b32 v{T + 2}, 16, v{XX + i}", f"v_and_b32 v{T + 3}, s53, v{XX + i}",
                f"v_add_f32 v{T}, v{T + 2}, v{T}", f"v_add_f32 v{T + 1}, v{T + 3}, v{T + 1}",
                f"v_cvt_pk_bf16_f32 v{HP + i}, v{T}, v{T + 1}",
                f"v_lshlrev_b32 v{H + 2 * i}, 16, v{HP + i}", f"v_and_b32 v{H + 2 * i + 1}, s53, v{HP + i}",
            ])
        for k in range(len(steps[0])):
            for ii in range(2):
                a(steps[ii][k])
    a(f"v_add_f32 v{St}, v{H}, v{H + 1}")
    a(f"v_add_f32 v{St + 1}, v{H + 2}, v{H + 3}")
    a(f"v_add_f32 v{St + 2}, v{H + 4}, v{H + 5}")
    a(f"v_add_f32 v{St + 3}, v{H + 6}, v{H + 7}")
    a(f"v_add_f32 v{St}, v{St}, v{St + 1}")
    a(f"v_add_f32 v{St + 2}, v{St + 2}, v{St + 3}")
    a(f"v_add_f32 v{St}, v{St}, v{St + 2}")
    wave_allreduce(a, "v_add_f32", St, St + 1)
    T = 56
    a(f"v_mul_f32 v{St}, 0x3b000000, v{St}")
    for i in range(8):
        a(f"v_sub_f32 v{T + i}, v{H + i}, v{St}")
    a(f"v_cvt_pk_bf16_f32 v{St + 1}, v{St}, v{St}")
    a(f"v_mul_f32 v{St + 2}, v{T}, v{T}")
    a(f"v_mul_f32 v{St + 3}, v{T + 1}, v{T + 1}")
    a(f"v_lshlrev_b32 v{St + 1}, 16, v{St + 1}")
    for i in range(2, 8, 2):
        a(f"v_fmac_f32 v{St + 2}, v{T + i}, v{T + i}")
        a(f"v_fmac_f32 v{St + 3}, v{T + i + 1}, v{T + i + 1}")
    a(f"v_add_f32 v{St + 2}, v{St + 2}, v{St + 3}")
    for i in range(8):
        a(f"v_sub_f32 v{T + 10 + i}, v{H + i}, v{St + 1}")
    for i in range(4):
        a(f"v_cvt_pk_bf16_f32 v{T + 20 + i}, v{T + 10 + 2 * i}, v{T + 11 + 2 * i}")
    for i in range(4):
        unpack(T + 10 + 2 * i, T + 20 + i)
    wave_allreduce(a, "v_add_f32", St + 2, St + 3)
    v = St + 2
    a(f"v_mul_f32 v{v}, 0x3b000000, v{v}")
    a(f"v_cvt_pk_bf16_f32 v{v}, v{v}, v{v}")
    a(f"v_lshlrev_b32 v{v}, 16, v{v}")
    a(f"v_add_f32 v{v}, 0x3727c5ac, v{v}")
    a(f"v_cvt_pk_bf16_f32 v{v}, v{v}, v{v}")
    a(f"v_lshlrev_b32 v{v}, 16, v{v}")
    a(f"v_sqrt_f32 v{v}, v{v}")
    a("s_nop 0")
    a(f"v_cvt_pk_bf16_f32 v{v}, v{v}, v{v}")
    a(f"v_lshlrev_b32 v{v}, 16, v{v}")
    a(f"v_rcp_f32 v{v}, v{v}")
    a("s_waitcnt vmcnt(0)")
    for i in range(8):
        a(f"v_mul_f32 v{T + 10 + i}, v{T + 10 + i}, v{v}")
    for i in range(4):
        a(f"v_cvt_pk_bf16_f32 v{HN + i}, v{T + 10 + 2 * i}, v{T + 11 + 2 * i}")
    for i in range(4):
        unpack(T + 10 + 2 * i, HN + i)
        unpack(T + 2 * i, 8 + i)
    a(f"v_mul_f32 v{St + 4}, v{T + 10}, v{T}")
    a(f"v_mul_f32 v{St + 5}, v{T + 11}, v{T + 1}")
    for i in range(2, 8, 2):
        a(f"v_fmac_f32 v{St + 4}, v{T + 10 + i}, v{T + i}")
        a(f"v_fmac_f32 v{St + 5}, v{T + 11 + i}, v{T + i + 1}")
    a(f"v_add_f32 v{St + 4}, v{St + 4}, v{St + 5}")
    wave_allreduce(a, "v_add_f32", St + 4, St + 5)
    v = St + 4
    a(f"v_cvt_pk_bf16_f32 v{v}, v{v}, v{v}")
    a(f"v_lshlrev_b32 v{v}, 16, v{v}")
    a(f"v_ashrrev_i32 v{v + 1}, 31, v{v}")
    a(f"v_or_b32 v{v + 1}, 0x80000000, v{v + 1}")
    a(f"v_xor_b32 v{v}, v{v}, v{v + 1}")
    a(f"v_and_b32 v{v}, s53, v{v}")
    a("s_sub_u32 s37, 2047, s33")
    a(f"v_or_b32 v{v}, s37, v{v}")
    a("s_lshl_b32 s37, s32, 2")
    a("v_mov_b32 v89, s37")
    a(f"ds_write_b32 v89, v{v}")
    OUT = 84
    for i in range(8):
        a(f"v_add_f32 v{T + 20 + i}, v{H + i}, v{T + 10 + i}")
    for i in range(4):
        a(f"v_cvt_pk_bf16_f32 v{OUT + i}, v{T + 20 + 2 * i}, v{T + 21 + 2 * i}")
    for i in range(4):
        a(f"v_mov_b32 v{56 + 2 * i}, v{HP + i}")
        a(f"v_mov_b32 v{57 + 2 * i}, v88")
        a(f"v_mov_b32 v{64 + 2 * i}, v{HN + i}")
        a(f"v_mov_b32 v{65 + 2 * i}, v88")
    a(f"v_readfirstlane_b32 s39, v{v}")
    a("v_readfirstlane_b32 s50, v88")
    a(f"s_lshl_b32 s41, {SLOT}, 12")
    a(f"s_add_u32 s41, s41, {WS_ROWS}")
    if KSPREAD:
        a(f"s_and_b32 s42, {SLOT}, 63")
        a("s_lshl_b32 s42, s42, 7")
        a(f"s_lshr_b32 s47, {SLOT}, 6")
        a("s_lshl_b32 s47, s47, 3")
        a("s_add_u32 s42, s42, s47")
        a(f"s_add_u32 s42, s42, {WS_KEYS2}")
    else:
        a(f"s_lshl_b32 s42, {SLOT}, 3")
        a(f"s_add_u32 s42, s42, {WS_KEYS}")
    stamp(a, 3)
    a("s_waitcnt lgkmcnt(0)")
    a("s_barrier")
    a("ds_read_b128 v[72:75], v5")
    a("ds_read_b128 v[76:79], v5 offset:16")
    a("s_waitcnt lgkmcnt(0)")
    a("v_max3_u32 v72, v72, v73, v74")
    a("v_max3_u32 v76, v76, v77, v78")
    a("v_max3_u32 v72, v72, v75, v79")
    a("v_max_u32 v72, v72, v76")
    a("v_mov_b32 v73, v88")
    a("s_nop 0")
    a("v_readfirstlane_b32 s38, v72")
    a("s_mov_b32 s51, 0")
    a("s_cmp_lg_u32 s38, s39")
    a(f"s_cbranch_scc1 {name}_nc")
    a("s_mov_b32 s51, 1")
    a("buffer_store_dwordx2 v[72:73], v5, s[24:27], s42 offen sc0 sc1")
    a("buffer_store_dwordx4 v[64:67], v4, s[24:27], s41 offen offset:2048 sc0 sc1")
    a("buffer_store_dwordx4 v[68:71], v4, s[24:27], s41 offen offset:2064 sc0 sc1")
    a("buffer_store_dwordx4 v[56:59], v4, s[24:27], s41 offen sc0 sc1")
    a("buffer_store_dwordx4 v[60:63], v4, s[24:27], s41 offen offset:16 sc0 sc1")
    a(f"s_branch {name}_role")
    a.label(f"{name}_nc")
    a(f"buffer_store_dwordx4 v[{OUT}:{OUT + 3}], v3, s[20:23], s34 offen{OWT}")
    a.label(f"{name}_role")
    stamp(a, 4)
    a(f"s_cmp_lt_u32 s2, {NSL}")
    a(f"s_cbranch_scc1 {name}_needkeys")
    a("s_sub_u32 s52, s2, 64")
    a("s_cmp_lt_u32 s52, 16")
    a(f"s_cbranch_scc1 {name}_needkeys")
    a("s_cmp_eq_u32 s51, 0")
    a(f"s_cbranch_scc1 {name}_fin")
    a(f"s_mov_b32 s45, {WS_ANN}")
    a.label(f"{name}_annp")
    a(f"s_sleep {ASLEEP}")
    a("buffer_load_dwordx2 v[72:73], v5, s[24:27], s45 offen sc1")
    a("s_waitcnt vmcnt(0)")
    a("v_readfirstlane_b32 s46, v73")
    a("v_readfirstlane_b32 s38, v72")
    a("s_cmp_eq_u32 s46, s50")
    a(f"s_cbranch_scc1 {name}_annd")
    a("s_sub_u32 s69, s69, 1")
    a(f"s_cbranch_scc0 {name}_annp")
    a("s_mov_b32 s69, 0")
    a.label(f"{name}_annd")
    a("s_cmp_eq_u32 s38, s39")
    a(f"s_cbranch_scc1 {name}_fin")
    a(f"buffer_store_dwordx4 v[{OUT}:{OUT + 3}], v3, s[20:23], s34 offen{OWT}")
    a(f"s_branch {name}_fin")
    a.label(f"{name}_needkeys")
    if not EARLYW:
        a(f"s_cmp_lt_u32 s2, {NSL}")
        a(f"s_cbranch_scc0 {name}_nowd")
        a("s_barrier")
        w_loads()
    a.label(f"{name}_nowd")
    a("s_cmp_lg_u32 s32, 0")
    a(f"s_cbranch_scc1 {name}_kw")
    a(f"s_mov_b32 s45, {WS_KEYS2 if KSPREAD else WS_KEYS}")
    a(f"v_lshlrev_b32 v64, {7 if KSPREAD else 5}, v2")
    a.label(f"{name}_kp")
    a("buffer_load_dwordx4 v[56:59], v64, s[24:27], s45 offen sc1")
    a("buffer_load_dwordx4 v[60:63], v64, s[24:27], s45 offen offset:16 sc1")
    a("s_waitcnt vmcnt(0)")
    a("v_cmp_ne_u32 s[46:47], v57, v88")
    a("v_cmp_ne_u32 vcc, v59, v88")
    a("s_or_b64 s[46:47], s[46:47], vcc")
    a("v_cmp_ne_u32 vcc, v61, v88")
    a("s_or_b64 s[46:47], s[46:47], vcc")
    a("v_cmp_ne_u32 vcc, v63, v88")
    a("s_or_b64 s[46:47], s[46:47], vcc")
    a(f"s_cbranch_scc0 {name}_kd")
    a(f"s_sleep {KSLEEP}")
    a("s_sub_u32 s69, s69, 1")
    a(f"s_cbranch_scc0 {name}_kp")
    a("s_mov_b32 s69, 0")
    a.label(f"{name}_kd")
    a("v_max3_u32 v56, v56, v58, v60")
    a("v_max_u32 v56, v56, v62")
    wave_allreduce(a, "v_max_u32", 56, 57)
    a("ds_write_b32 v5, v56 offset:64")
    a("s_cmp_lg_u32 s2, 64")
    a(f"s_cbranch_scc1 {name}_noann")
    a("v_mov_b32 v57, v88")
    a(f"s_mov_b32 s45, {WS_ANN}")
    a("buffer_store_dwordx2 v[56:57], v5, s[24:27], s45 offen sc0 sc1")
    a.label(f"{name}_noann")
    a("s_waitcnt lgkmcnt(0)")
    a.label(f"{name}_kw")
    a("s_barrier")
    a("ds_read_b32 v56, v5 offset:64")
    a("s_waitcnt lgkmcnt(0)")
    a("v_readfirstlane_b32 s38, v56")
    stamp(a, 5)
    a("s_cmp_eq_u32 s51, 0")
    a(f"s_cbranch_scc1 {name}_nodef")
    a("s_cmp_eq_u32 s38, s39")
    a(f"s_cbranch_scc1 {name}_nodef")
    a(f"buffer_store_dwordx4 v[{OUT}:{OUT + 3}], v3, s[20:23], s34 offen{OWT}")
    a.label(f"{name}_nodef")
    a("s_and_b32 s39, s38, 0xffff")
    a("s_sub_u32 s39, 2047, s39")
    a("s_lshr_b32 s40, s39, 3")
    a("s_lshl_b32 s40, s40, 12")
    a(f"s_add_u32 s40, s40, {WS_ROWS}")
    a(f"s_cmp_lt_u32 s2, {NSL}")
    a(f"s_cbranch_scc0 {name}_red")
    a("v_lshlrev_b32 v9, 4, v6")
    a("v_add_u32 v9, s40, v9")
    A = 32
    a.label(f"{name}_xp")
    a("buffer_load_dwordx4 v[56:59], v9, s[24:27], 0 offen offset:2048 sc1")
    for i in range(16):
        a(f"v_mov_b32 v{A + i}, 0")
    a("s_waitcnt vmcnt(0)")
    a("v_cmp_ne_u32 s[46:47], v57, v88")
    a("v_cmp_ne_u32 vcc, v59, v88")
    a("s_or_b64 s[46:47], s[46:47], vcc")
    a(f"s_cbranch_scc0 {name}_xd")
    a("s_sub_u32 s69, s69, 1")
    a(f"s_cbranch_scc0 {name}_xp")
    a("s_mov_b32 s69, 0")
    a.label(f"{name}_xd")
    stamp(a, 6)
    X = 60
    a(f"v_lshlrev_b32 v{X}, 16, v56")
    a(f"v_and_b32 v{X + 1}, s53, v56")
    a(f"v_lshlrev_b32 v{X + 2}, 16, v58")
    a(f"v_and_b32 v{X + 3}, s53, v58")
    for j in range(4):
        for (M, ao) in ((G, 0), (U, 8)):
            for i in range(4):
                t = 64 + 2 * i
                a(f"v_lshlrev_b32 v{t}, 16, v{M + 4 * j + i}")
                a(f"v_and_b32 v{t + 1}, s53, v{M + 4 * j + i}")
            for i in range(4):
                t = 64 + 2 * i
                a(f"v_fmac_f32 v{A + ao + 2 * i}, v{X + j}, v{t}")
                a(f"v_fmac_f32 v{A + ao + 2 * i + 1}, v{X + j}, v{t + 1}")
    a("s_nop 1")
    for i in range(8):
        a(f"v_permlane32_swap_b32 v{A + i}, v{A + i + 8}")
    a("s_nop 1")
    for i in range(8):
        a(f"v_add_f32 v{A + i}, v{A + i}, v{A + i + 8}")
    a("s_nop 1")
    for i in range(4):
        a(f"v_permlane16_swap_b32 v{A + i}, v{A + i + 4}")
    a("s_nop 1")
    for i in range(4):
        a(f"v_add_f32 v{A + i}, v{A + i}, v{A + i + 4}")
    a("s_nop 1")
    for i in range(4):
        a(f"v_add_f32_dpp v{A + i}, v{A + i}, v{A + i} row_ror:4 {DPP}")
    a("s_nop 1")
    for i in range(4):
        a(f"v_add_f32_dpp v{A + i}, v{A + i}, v{A + i} row_ror:8 {DPP}")
    a("v_and_b32 v9, 3, v2")
    a("v_lshlrev_b32 v9, 5, v9")
    a("v_bfe_u32 v10, v2, 4, 1")
    a("v_lshl_add_u32 v9, v10, 4, v9")
    a("v_bfe_u32 v10, v2, 5, 1")
    a("v_lshl_add_u32 v9, v10, 7, v9")
    a("s_lshl_b32 s37, s32, 8")
    a("v_add_u32 v9, s37, v9")
    a(f"ds_write_b128 v9, v[{A}:{A + 3}] offset:128")
    a("s_waitcnt lgkmcnt(0)")
    a("s_barrier")
    a("v_lshlrev_b32 v9, 2, v2")
    for w in range(8):
        a(f"ds_read_b32 v{56 + w}, v9 offset:{128 + 256 * w}")
    a("s_waitcnt lgkmcnt(0)")
    a("v_add_f32 v56, v56, v57")
    a("v_add_f32 v58, v58, v59")
    a("v_add_f32 v60, v60, v61")
    a("v_add_f32 v62, v62, v63")
    a("v_add_f32 v56, v56, v58")
    a("v_add_f32 v60, v60, v62")
    a("v_add_f32 v56, v56, v60")
    a("v_mov_b32 v60, v56")
    a("s_nop 1")
    a("v_permlane32_swap_b32 v56, v60")
    a("s_nop 1")
    a("v_cvt_pk_bf16_f32 v56, v56, v60")
    a("v_and_b32 v60, s53, v56")
    a("v_lshlrev_b32 v56, 16, v56")
    a("v_mul_f32 v57, 0xbfb8aa3b, v56")
    a("v_exp_f32 v57, v57")
    a("s_nop 0")
    a("v_add_f32 v57, 1.0, v57")
    a("v_rcp_f32 v57, v57")
    a("s_nop 0")
    a("v_mul_f32 v56, v56, v57")
    a("v_cvt_pk_bf16_f32 v56, v56, v56")
    a("v_lshlrev_b32 v56, 16, v56")
    a("v_mul_f32 v56, v56, v60")
    a("v_cvt_pk_bf16_f32 v56, v56, v56")
    a("v_lshlrev_b32 v56, 16, v56")
    a("s_lshl_b32 s37, s32, 2")
    for j in range(4):
        a(f"s_add_u32 s36, s37, {j}")
        a("s_nop 0")
        a(f"v_readlane_b32 s{40 + j}, v56, s36")
    for j in range(4):
        for i in range(4):
            t = 64 + 2 * i
            a(f"v_lshlrev_b32 v{t}, 16, v{W + 4 * j + i}")
            a(f"v_and_b32 v{t + 1}, s53, v{W + 4 * j + i}")
        for i in range(4):
            t = 64 + 2 * i
            if j == 0:
                a(f"v_mul_f32 v{A + 2 * i}, s{40 + j}, v{t}")
                a(f"v_mul_f32 v{A + 2 * i + 1}, s{40 + j}, v{t + 1}")
            else:
                a(f"v_fmac_f32 v{A + 2 * i}, s{40 + j}, v{t}")
                a(f"v_fmac_f32 v{A + 2 * i + 1}, s{40 + j}, v{t + 1}")
    a("s_lshl_b32 s37, s32, 11")
    a("v_add_u32 v9, s37, v4")
    a(f"ds_write_b128 v9, v[{A}:{A + 3}] offset:4096")
    a(f"ds_write_b128 v9, v[{A + 4}:{A + 7}] offset:4112")
    a("s_waitcnt lgkmcnt(0)")
    a("s_barrier")
    a("v_lshlrev_b32 v9, 2, v0")
    for w in range(8):
        a(f"ds_read_b32 v{56 + w}, v9 offset:{4096 + 2048 * w}")
    a("s_lshl_b32 s37, s2, 12")
    a(f"s_add_u32 s37, s37, {WS_SLABS}")
    a("v_lshlrev_b32 v9, 3, v0")
    a("s_waitcnt lgkmcnt(0)")
    a("v_add_f32 v56, v56, v57")
    a("v_add_f32 v58, v58, v59")
    a("v_add_f32 v60, v60, v61")
    a("v_add_f32 v62, v62, v63")
    a("v_add_f32 v56, v56, v58")
    a("v_add_f32 v60, v60, v62")
    a("v_add_f32 v56, v56, v60")
    a("v_mov_b32 v57, v88")
    a("buffer_store_dwordx2 v[56:57], v9, s[24:27], s37 offen sc0 sc1")
    stamp(a, 7)
    a(f"s_branch {name}_fin2")
    a.label(f"{name}_red")
    a("v_lshrrev_b32 v8, 4, v0")
    a("v_and_b32 v9, 15, v0")
    a("s_lshl_b32 s41, s52, 8")
    a(f"s_add_u32 s42, s41, {WS_SLABS}")
    a("v_lshlrev_b32 v10, 12, v8")
    a("v_lshl_add_u32 v10, v9, 4, v10")
    a("v_add_u32 v11, 0x20000, v10")
    a("v_cmp_gt_u32 s[54:55], 24, v8")
    a("s_nop 1")
    a("v_cndmask_b32 v11, v10, v11, s[54:55]")
    a("s_lshl_b32 s43, s52, 7")
    a("s_add_u32 s43, s43, s40")
    a("v_lshlrev_b32 v12, 3, v9")
    a("v_add_u32 v12, s43, v12")
    a("s_and_b32 s44, s38, 0xffff0000")
    a("s_xor_b32 s45, s44, 0x80000000")
    a("s_not_b32 s46, s44")
    a("s_and_b32 s46, s46, 0xffff0000")
    a("s_cmp_ge_u32 s44, 0x80000000")
    a("s_cselect_b32 s44, s45, s46")
    a("v_mov_b32 v13, s44")
    a("v_mul_f32 v13, 0xbfb8aa3b, v13")
    a("v_exp_f32 v13, v13")
    a("s_nop 0")
    a("v_add_f32 v13, 1.0, v13")
    a("v_rcp_f32 v13, v13")
    a("s_nop 0")
    a("v_cvt_pk_bf16_f32 v13, v13, v13")
    a("v_lshlrev_b32 v13, 16, v13")
    a.label(f"{name}_sp")
    a("buffer_load_dwordx4 v[56:59], v10, s[24:27], s42 offen sc1")
    a("buffer_load_dwordx4 v[60:63], v11, s[24:27], s42 offen sc1")
    a("buffer_load_dwordx2 v[64:65], v12, s[24:27], 0 offen sc1")
    a("buffer_load_dwordx2 v[66:67], v12, s[24:27], 0 offen offset:2048 sc1")
    a("s_waitcnt vmcnt(0)")
    a("v_cmp_ne_u32 s[46:47], v57, v88")
    for r in (59, 61, 63, 65, 67):
        a(f"v_cmp_ne_u32 vcc, v{r}, v88")
        a("s_or_b64 s[46:47], s[46:47], vcc")
    a(f"s_cbranch_scc0 {name}_sd")
    a(f"s_sleep {SSLEEP}")
    a("s_sub_u32 s69, s69, 1")
    a(f"s_cbranch_scc0 {name}_sp")
    a("s_mov_b32 s69, 0")
    a.label(f"{name}_sd")
    stamp(a, 6)
    a("v_cndmask_b32 v60, 0, v60, s[54:55]")
    a("v_cndmask_b32 v62, 0, v62, s[54:55]")
    a("v_add_f32 v56, v56, v60")
    a("v_add_f32 v57, v58, v62")
    for sw in ("v_permlane16_swap_b32", "v_permlane32_swap_b32"):
        a("v_mov_b32 v58, v56")
        a("v_mov_b32 v59, v57")
        a("s_nop 1")
        a(f"{sw} v56, v58")
        a(f"{sw} v57, v59")
        a("s_nop 1")
        a("v_add_f32 v56, v56, v58")
        a("v_add_f32 v57, v57, v59")
    a("v_lshlrev_b32 v10, 3, v9")
    a("s_lshl_b32 s37, s32, 7")
    a("v_add_u32 v11, s37, v10")
    a("ds_write_b64 v11, v[56:57] offset:128")
    a("s_waitcnt lgkmcnt(0)")
    a("s_barrier")
    a("s_cmp_lg_u32 s32, 0")
    a(f"s_cbranch_scc1 {name}_fin2")
    for w in range(8):
        a(f"ds_read_b64 v[{32 + 2 * w}:{33 + 2 * w}], v10 offset:{128 + 128 * w}")
    a("s_waitcnt lgkmcnt(0)")
    for (d, s1) in ((32, 34), (36, 38), (40, 42), (44, 46), (32, 36), (40, 44), (32, 40)):
        a(f"v_add_f32 v{d}, v{d}, v{s1}")
        a(f"v_add_f32 v{d + 1}, v{d + 1}, v{s1 + 1}")
    y0, y1 = 32, 33
    a(f"v_cvt_pk_bf16_f32 v48, v{y0}, v{y1}")
    a(f"v_lshlrev_b32 v{y0}, 16, v48")
    a(f"v_and_b32 v{y1}, s53, v48")
    a(f"v_mul_f32 v{y0}, v{y0}, v13")
    a(f"v_mul_f32 v{y1}, v{y1}, v13")
    a(f"v_cvt_pk_bf16_f32 v48, v{y0}, v{y1}")
    a(f"v_lshlrev_b32 v{y0}, 16, v48")
    a(f"v_and_b32 v{y1}, s53, v48")
    a("v_lshlrev_b32 v49, 16, v66")
    a("v_and_b32 v50, s53, v66")
    a(f"v_add_f32 v{y0}, v49, v{y0}")
    a(f"v_add_f32 v{y1}, v50, v{y1}")
    a(f"v_cvt_pk_bf16_f32 v48, v{y0}, v{y1}")
    a(f"v_lshlrev_b32 v{y0}, 16, v48")
    a(f"v_and_b32 v{y1}, s53, v48")
    a("v_lshlrev_b32 v49, 16, v64")
    a("v_and_b32 v50, s53, v64")
    a(f"v_add_f32 v{y0}, v49, v{y0}")
    a(f"v_add_f32 v{y1}, v50, v{y1}")
    a(f"v_cvt_pk_bf16_f32 v48, v{y0}, v{y1}")
    a("s_lshl_b32 s39, s39, 10")
    a("s_lshl_b32 s41, s52, 6")
    a("s_add_u32 s39, s39, s41")
    a("v_lshlrev_b32 v10, 2, v9")
    a("v_add_u32 v10, s39, v10")
    a(f"buffer_store_dword v48, v10, s[20:23], 0 offen{OWT}")
    stamp(a, 7)
    a.label(f"{name}_fin2")
    a.label(f"{name}_fin")
    stamp_flush(a, 3, 8, 10, 11)
    if fused:
        return None
    a.label(f"{name}_done")
    a("s_endpgm")
    return kernel_desc(name, 128, 72, 128)


def gen_k5(a, name):
    kernel_begin(a, name)
    a("s_cmp_ge_u32 s2, 16")
    a(f"s_cbranch_scc1 {name}_done")
    stamp(a, 0)
    a("s_load_dwordx2 s[8:9], s[0:1], 80")
    a("s_load_dwordx2 s[10:11], s[0:1], 96")
    a("v_lshrrev_b32 v1, 6, v0")
    a("v_and_b32 v2, 63, v0")
    a("s_nop 0")
    a("v_readfirstlane_b32 s32, v1")
    a("v_lshlrev_b32 v5, 2, v0")
    a("v_lshrrev_b32 v3, 3, v0")
    a("v_and_b32 v4, 7, v0")
    a("v_lshlrev_b32 v6, 11, v3")
    a("v_lshl_add_u32 v6, v4, 4, v6")
    a("s_waitcnt lgkmcnt(0)")
    stamp(a, 1)
    srd(a, 20, 8, 9, S * D * 2)
    srd(a, 24, 10, 11, 14 << 20)
    srd(a, 28, 10, 11, WS_SLAB + NSL * 2048)
    a(f"s_mov_b32 s34, {WS_CAND}")
    a("buffer_load_dword v8, v5, s[24:27], s34 offen")
    a("s_lshl_b32 s34, s2, 7")
    a(f"s_add_u32 s34, s34, {WS_SLAB}")
    a("s_add_u32 s35, s34, 65536")
    a("buffer_load_dwordx4 v[16:19], v6, s[28:31], s34 offen")
    a("buffer_load_dwordx4 v[20:23], v6, s[28:31], s35 offen")
    a("s_waitcnt vmcnt(2)")
    stamp(a, 2)
    emit_winner(a, 8, 12, 9, 38)
    a("s_and_b32 s39, s38, 0xffff")
    a("s_sub_u32 s39, 2047, s39")
    a("s_lshr_b32 s40, s39, 3")
    a("s_lshl_b32 s40, s40, 11")
    a(f"s_add_u32 s40, s40, {WS_CROW}")
    a("s_lshl_b32 s41, s2, 6")
    a("s_add_u32 s40, s40, s41")
    a("v_lshlrev_b32 v9, 3, v4")
    a("v_add_u32 v9, s40, v9")
    a("buffer_load_dwordx2 v[24:25], v9, s[24:27], 0 offen")
    a("buffer_load_dwordx2 v[26:27], v9, s[24:27], 0 offen offset:1024")
    a("s_waitcnt vmcnt(2)")
    for i in range(4):
        a(f"v_add_f32 v{16 + i}, v{16 + i}, v{20 + i}")
    a("s_nop 1")
    for i in range(4):
        a(f"v_add_f32_dpp v{16 + i}, v{16 + i}, v{16 + i} row_ror:8 {DPP}")
    for i in range(4):
        a(f"v_mov_b32 v{20 + i}, v{16 + i}")
    a("s_nop 1")
    for i in range(4):
        a(f"v_permlane16_swap_b32 v{16 + i}, v{20 + i}")
    a("s_nop 1")
    for i in range(4):
        a(f"v_add_f32 v{16 + i}, v{16 + i}, v{20 + i}")
    for i in range(4):
        a(f"v_mov_b32 v{20 + i}, v{16 + i}")
    a("s_nop 1")
    for i in range(4):
        a(f"v_permlane32_swap_b32 v{16 + i}, v{20 + i}")
    a("s_nop 1")
    for i in range(4):
        a(f"v_add_f32 v{16 + i}, v{16 + i}, v{20 + i}")
    a("v_lshlrev_b32 v10, 4, v4")
    a("s_lshl_b32 s37, s32, 7")
    a("v_add_u32 v11, s37, v10")
    a("ds_write_b128 v11, v[16:19] offset:64")
    a("s_waitcnt lgkmcnt(0)")
    a("s_barrier")
    for w in range(4):
        a(f"ds_read_b128 v[{32 + 4 * w}:{35 + 4 * w}], v10 offset:{64 + 128 * w}")
    a("s_and_b32 s42, s38, 0xffff0000")
    a("s_xor_b32 s43, s42, 0x80000000")
    a("s_not_b32 s44, s42")
    a("s_and_b32 s44, s44, 0xffff0000")
    a("s_cmp_ge_u32 s42, 0x80000000")
    a("s_cselect_b32 s42, s43, s44")
    a("v_mov_b32 v12, s42")
    a("v_mul_f32 v13, 0xbfb8aa3b, v12")
    a("v_exp_f32 v13, v13")
    a("s_nop 0")
    a("v_add_f32 v13, 1.0, v13")
    a("v_rcp_f32 v13, v13")
    a("s_nop 0")
    a("v_cvt_pk_bf16_f32 v13, v13, v13")
    a("v_lshlrev_b32 v13, 16, v13")
    a("s_mov_b32 s53, 0xffff0000")
    a("s_waitcnt vmcnt(0) lgkmcnt(0)")
    stamp(a, 3)
    for i in range(4):
        a(f"v_add_f32 v{32 + i}, v{32 + i}, v{36 + i}")
        a(f"v_add_f32 v{40 + i}, v{40 + i}, v{44 + i}")
        a(f"v_add_f32 v{32 + i}, v{32 + i}, v{40 + i}")
    for i in range(2):
        y0, y1 = 32 + 2 * i, 33 + 2 * i
        a(f"v_cvt_pk_bf16_f32 v48, v{y0}, v{y1}")
        a(f"v_lshlrev_b32 v{y0}, 16, v48")
        a(f"v_and_b32 v{y1}, s53, v48")
        a(f"v_mul_f32 v{y0}, v{y0}, v13")
        a(f"v_mul_f32 v{y1}, v{y1}, v13")
        a(f"v_cvt_pk_bf16_f32 v48, v{y0}, v{y1}")
        a(f"v_lshlrev_b32 v{y0}, 16, v48")
        a(f"v_and_b32 v{y1}, s53, v48")
        a(f"v_lshlrev_b32 v49, 16, v{26 + i}")
        a(f"v_and_b32 v50, s53, v{26 + i}")
        a(f"v_add_f32 v{y0}, v49, v{y0}")
        a(f"v_add_f32 v{y1}, v50, v{y1}")
        a(f"v_cvt_pk_bf16_f32 v48, v{y0}, v{y1}")
        a(f"v_lshlrev_b32 v{y0}, 16, v48")
        a(f"v_and_b32 v{y1}, s53, v48")
        a(f"v_lshlrev_b32 v49, 16, v{24 + i}")
        a(f"v_and_b32 v50, s53, v{24 + i}")
        a(f"v_add_f32 v{y0}, v49, v{y0}")
        a(f"v_add_f32 v{y1}, v50, v{y1}")
        a(f"v_cvt_pk_bf16_f32 v{52 + i}, v{y0}, v{y1}")
    a("s_lshl_b32 s39, s39, 10")
    a("s_add_u32 s39, s39, s41")
    a("v_lshlrev_b32 v9, 3, v4")
    a("v_add_u32 v9, s39, v9")
    a("v_cmp_gt_u32 vcc, 8, v0")
    a("s_and_saveexec_b64 s[46:47], vcc")
    a(f"s_cbranch_execz {name}_fin")
    a("buffer_store_dwordx2 v[52:53], v9, s[20:23], 0 offen")
    a.label(f"{name}_fin")
    a("s_mov_b64 exec, -1")
    stamp_flush(a, 5, 4, 10, 11)
    a.label(f"{name}_done")
    a("s_endpgm")
    return kernel_desc(name, 64, 64, 64)


HEADER = open(__file__.rsplit("/", 1)[0] + "/cdna_kernels/" + NAME + ".s.ref").read().split("; Override launch")[0]


def build(path, **opt):
    global STAMP, KSLEEP, SSLEEP, FSLEEP, ASLEEP, ESLEEP, OWT, KSPREAD, WEARLY, SENT, PSLEEP, PBLK
    PBLK = opt.get('pblk', 1)
    SENT = opt.get('sent', 0)
    PSLEEP = opt.get('ps', 2)
    WEARLY = opt.get("wearly", 0)
    KSPREAD = opt.get('ksp', 1)
    ESLEEP = opt.get('es', 4)
    OWT = {0: '', 1: ' sc0 sc1', 2: ' nt'}[opt.get('owt', 0)]
    STAMP = opt.get('stamp', 0)
    KSLEEP, SSLEEP, FSLEEP, ASLEEP = opt.get('ks', 1), opt.get('ss', 1), opt.get('fs', 1), opt.get('as', 8)
    a = Asm()
    only = opt.get("only", 0)
    launches = [
        ("k1_kernel", 256, 512, 163840),
        ("k2_kernel", 256, 512, 163840),
        ("k3_kernel", 256, 512, 64),
        ("k4_kernel", NSL, 512, 18432),
        ("k5_kernel", 16, 256, 1024),
    ]
    if opt.get("fused", 2) == 1:
        launches = launches[:2] + [("kt_kernel", 256, 512, 4096 + 16384)]
    if opt.get("fused", 2) == 2:
        launches = launches[:2]
    if opt.get("f12", 1):
        launches = launches[:1] + launches[2:]
    if only:
        launches = [launches[int(ch) - 1] for ch in str(only)]
    hdr = HEADER
    for (k, g, b, l) in launches:
        hdr += f"; @launch kernel={k} grid=({g},1,1) block=({b},1,1) lds={l}\n"
    hdr += """;
;  Cross-workgroup hand-offs: write-through stores + flags / 8-byte {data, tag} granules; tag = per-launch nonce (d_debug[0]).
"""
    a.raw('.amdgcn_target "amdgcn-amd-amdhsa--gfx950"')
    descs = []
    if opt.get("k1g", 0):
        descs.append(gen_k1g(a, "k1_kernel", wt=opt.get("wt1", 1), PRO=opt.get("PRO1", 3), U1=opt.get("U1", 11), wk=opt.get("wk1", 1), cpf=opt.get("cpf", 1), SPOS=opt.get("SPOS", 0), NPOS=opt.get("NPOS", 1)))
    else:
        descs.append(gen_k1e(a, "k1_kernel", wt=opt.get("wt1", 1), PRO=opt.get("PRO1", 3), pf=opt.get("prefetch", 1), pace=opt.get("pace", 1), U1=opt.get("U1", 10), U2=opt.get("U2", 12), pfq=opt.get("pfq", 2), pol=opt.get("pol1", 0), ppol=opt.get("ppol", 0), tlb=opt.get("tlb", 0), UC=opt.get("UC", 13), vst=opt.get("vst", 0), swap=opt.get("swap", 1), wk1=opt.get("wk1", 1), early=opt.get("early", 0), cpre=opt.get("cpre", 0), fuse2=((lambda a, n: gen_k2c(a, n, LA=opt.get("LA", 1), wt=opt.get("wt2", 1), PRO=opt.get("PRO2", 3), rot=opt.get("rot", 1), BARPOS=opt.get("BARPOS", 1), RSTEP=opt.get("RSTEP", 1), wpf=opt.get("wpf", 0), wpf2=opt.get("wpf2", 16), pol=opt.get("pol2", 0), fuse3=(opt.get("fused", 2) == 2), etouch=opt.get("etouch", 0), swap=opt.get("swap", 1), cw=opt.get("cw", -1), fused_in=1)) if opt.get("f12", 1) else None)))
    if not opt.get("f12", 1):
        descs.append(gen_k2c(a, "k2_kernel", LA=opt.get("LA", 1), wt=opt.get("wt2", 1), PRO=opt.get("PRO2", 3), rot=opt.get("rot", 1), BARPOS=opt.get("BARPOS", 1), RSTEP=opt.get("RSTEP", 1), wpf=opt.get("wpf", 0), wpf2=opt.get("wpf2", 16), pol=opt.get("pol2", 0), fuse3=(opt.get("fused", 2) == 2), etouch=opt.get("etouch", 0), swap=opt.get("swap", 1), cw=opt.get("cw", -1)))
    if opt.get("fused", 2) == 1:
        descs.append(gen_kt(a, "kt_kernel"))
    elif opt.get("fused", 2) == 0:
        descs.append(gen_k3b(a, "k3_kernel", wpf=opt.get("wpf3", 0)))
        descs.append(gen_k4b(a, "k4_kernel"))
        descs.append(gen_k5(a, "k5_kernel"))
    a.label("code_end")
    open(path, "w").write(hdr + a.text() + "".join(descs))


if __name__ == "__main__":
    out = sys.argv[1] if len(sys.argv) > 1 else "cdna_kernels/" + NAME + ".s"
    opt = {}
    for kv in sys.argv[2:]:
        k, v = kv.split("=")
        opt[k] = int(v)
    build(out, **opt)
```
